```python
import torch

def _softmax(x, axis=-1):
    return torch.softmax(x, dim=axis)
def _gelu(x):
    return torch.nn.functional.gelu(x, approximate="tanh")
def _silu(x):
    return torch.nn.functional.silu(x)
def _sigmoid(x):
    return torch.sigmoid(x)
def _layernorm(x, axis=-1, eps=1e-5):
    m = x.mean(dim=axis, keepdim=True)
    v = x.var(dim=axis, keepdim=True, unbiased=False)
    return (x - m) / torch.sqrt(v + eps)
def _scatter_add(tgt, idx, src, axis=0):
    return tgt.clone().index_add_(axis, idx, src)
def _segment_sum(src, seg, n):
    out = torch.zeros((n,) + src.shape[1:], dtype=src.dtype)
    return out.index_add_(0, seg, src)
def _pad(x, pw):
    flat = tuple(v for pair in reversed(pw) for v in pair)
    return torch.nn.functional.pad(x, flat)

kernel_name = 'gated_mix__softmax_full_mha__sliding_local_dilated__prompt'

def setup_inputs():

    _w = (lambda a: (lambda t: t.to(torch.bfloat16) if t.is_floating_point() else t)(torch.as_tensor(a)))
    def _A_setup():
        B, S, D = 1, 2048, 640
        return {
            "x": _w((lambda *s: torch.randn(*s, dtype=torch.bfloat16) * 0.05)(B, S, D)),
            "wqkv": _w((lambda *s: torch.randn(*s, dtype=torch.bfloat16) * 1.6)(D, 3 * D)),
            "wo": _w((lambda *s: torch.randn(*s, dtype=torch.bfloat16) * 0.1)(D, D)),
        }
    _A_in = _A_setup()

    def _B_setup():
        B, S, D = 1, 2048, 640
        return {
            "x": _w((lambda *s: torch.randn(*s, dtype=torch.bfloat16) * 0.05)(B, S, D)),
            "wqkv": _w((lambda *s: torch.randn(*s, dtype=torch.bfloat16) * 1.6)(D, 3 * D)),
            "wo": _w((lambda *s: torch.randn(*s, dtype=torch.bfloat16) * 0.05)(D, D)),
        }
    _B_in = _B_setup()

    return {
        "A_x": _A_in["x"],
        "A_wqkv": _A_in["wqkv"],
        "A_wo": _A_in["wo"],
        "B_x": _B_in["x"],
        "B_wqkv": _B_in["wqkv"],
        "B_wo": _B_in["wo"],
        "gate_w": _w((lambda *s: torch.randn(*s, dtype=torch.bfloat16) * 0.05)(640) * 16.0),
    }

def reference(A_x, A_wqkv, A_wo, B_x, B_wqkv, B_wo, gate_w):
    def _A_ref(x, wqkv, wo):
        B, S, D = x.shape
        H = 32; Dh = D // H
        qkv = (lambda x, *d: x.permute(*d))((x @ wqkv).reshape(B, S, 3, H, Dh), 2, 0, 3, 1, 4)
        q, k, v = qkv[0], qkv[1], qkv[2]
        scale = Dh ** -0.5
        scores = torch.einsum("bhqd,bhkd->bhqk", q, k) * scale
        p = _softmax(scores, axis=-1)
        o = torch.einsum("bhqk,bhkd->bhqd", p, v)
        return (lambda x, *d: x.permute(*d))(o, 0, 2, 1, 3).reshape(B, S, D) @ wo

    def _B_ref(x, wqkv, wo):
        B, S, D = x.shape
        H = 32; Dh = D // H
        W, dil = 8, 2
        qkv = (lambda x, *d: x.permute(*d))((x @ wqkv).reshape(B, S, 3, H, Dh), 2, 0, 3, 1, 4)
        q, k, v = qkv[0], qkv[1], qkv[2]
        scale = Dh ** -0.5
        pos = torch.arange(S)
        off = torch.arange(W) * dil
        idx = pos[:, None] - off[None, :]
        mask = idx >= 0
        idx_c = torch.where(mask, idx, 0).reshape(-1)
        kg = k[:, :, idx_c, :].reshape(B, H, S, W, Dh)
        vg = v[:, :, idx_c, :].reshape(B, H, S, W, Dh)
        logits = torch.einsum("bhsd,bhswd->bhsw", q, kg) * scale
        logits = torch.where(mask[None, None, :, :], logits, -1e9)
        attn = _softmax(logits, axis=-1)
        o = torch.einsum("bhsw,bhswd->bhsd", attn, vg)
        return (lambda x, *d: x.permute(*d))(o, 0, 2, 1, 3).reshape(B, S, D) @ wo

    x = A_x
    g = _sigmoid((x * gate_w).sum(-1, keepdims=True))
    a = _A_ref(x, A_wqkv, A_wo)
    b = _B_ref(x, B_wqkv, B_wo)
    return g * a + (1 - g) * b
```

```python
class Asm:
    def __init__(self):
        self.lines = []
        self.lds_q = []
        self.vm_q = []

    def __call__(self, text):
        for ln in text.split("\n"):
            ln = ln.rstrip()
            if ln.strip():
                self.lines.append(ln if ln.endswith(":") or ln.startswith(".") or ln.startswith(";") else "    " + ln.strip())

    def label(self, name):
        self.lines.append(name + ":")

    def comment(self, c):
        self.lines.append("    ; " + c)

    def text(self):
        return "\n".join(self.lines) + "\n"

    def lds(self, instr, tag=None):
        self(instr)
        self.lds_q.append(tag)

    def lds_wait(self, *tags):
        idx = -1
        for t in tags:
            if t in self.lds_q:
                idx = max(idx, len(self.lds_q) - 1 - self.lds_q[::-1].index(t))
        if idx < 0:
            return
        n = len(self.lds_q) - 1 - idx
        assert n <= 15, n
        self(f"s_waitcnt lgkmcnt({n})")
        self.lds_q = self.lds_q[idx + 1:]

    def lds_wait_all(self):
        self("s_waitcnt lgkmcnt(0)")
        self.lds_q = []

    def vm(self, instr, tag=None):
        self(instr)
        self.vm_q.append(tag)
        assert len(self.vm_q) <= 63, "vmcnt overflow"

    def vm_wait(self, *tags):
        idx = -1
        for t in tags:
            if t in self.vm_q:
                idx = max(idx, len(self.vm_q) - 1 - self.vm_q[::-1].index(t))
        if idx < 0:
            return
        n = len(self.vm_q) - 1 - idx
        self(f"s_waitcnt vmcnt({n})")
        self.vm_q = self.vm_q[idx + 1:]

    def vm_wait_all(self):
        self("s_waitcnt vmcnt(0)")
        self.vm_q = []


def v(a, n=1):
    return f"v{a}" if n == 1 else f"v[{a}:{a+n-1}]"


def s(a, n=1):
    return f"s{a}" if n == 1 else f"s[{a}:{a+n-1}]"


def srd(A, sreg, ptr_lo, nbytes):
    A(f"s_mov_b32 s{sreg}, s{ptr_lo}")
    A(f"s_and_b32 s{sreg+1}, s{ptr_lo+1}, 0xffff")
    A(f"s_mov_b32 s{sreg+2}, {nbytes}")
    A(f"s_mov_b32 s{sreg+3}, 0x20000")


def kernel_header(A, name):
    A.lines.append(".text")
    A.lines.append(f".globl {name}")
    A.lines.append(".p2align 8")
    A.lines.append(f".type {name},@function")
    A.lines.append(f"{name}:")


def kernel_footer(A, name, nvgpr, nsgpr=96):
    acc = (nvgpr + 3) // 4 * 4
    A.lines += [
        '.section .rodata,"a"',
        ".p2align 6",
        f".amdhsa_kernel {name}",
        f"  .amdhsa_next_free_vgpr {nvgpr}",
        f"  .amdhsa_next_free_sgpr {nsgpr}",
        f"  .amdhsa_accum_offset {acc}",
        "  .amdhsa_group_segment_fixed_size 0",
        "  .amdhsa_kernarg_size 80",
        "  .amdhsa_user_sgpr_count 2",
        "  .amdhsa_user_sgpr_kernarg_segment_ptr 1",
        "  .amdhsa_system_sgpr_workgroup_id_x 1",
        "  .amdhsa_float_denorm_mode_32 3",
        ".end_amdhsa_kernel",
    ]
```

```python
from asmlib import *
from layout import *

NAME = "k1_qkv_kernel"
STAGE = 32768
NST = 4
SCRATCH = NST * STAGE
LDS_BYTES = SCRATCH + 4 * 2560

sX, sWA, sWB, sG, sWS = 8, 12, 16, 20, 24
sW, sM, sRB, sNH, sMT = 28, 29, 30, 31, 32
sXOFF, sWOFF, sLDSW = 33, 34, 35
sEXW = 42
sT0, sT1, sT2, sT3 = 44, 45, 46, 47
sPOS = 48
sH0 = 49
sQS = 50
sSCR = 51
vL = 1
vXR, vXRH = 2, 6
vWR, vWRH = 10, 12
vXA, vXB, vW = 14, 15, 16
vGV = 17
vGA, vGD = 27, 28
vT = 110
XF = [32, 36]
WF = [[40, 44], [48, 52]]
ACC = [56, 72]
vP = 88
vPOS16, vPOS8, vVW, vVR, vVST = 104, 105, 106, 107, 108
NV = 120


def dma_block(A, b):
    task, kb, st = b // 10, b % 10, b % NST
    for t in range(2):
        A(f"s_add_u32 m0, s{sLDSW}, {st*STAGE + 8192*t}")
        extra = kb * 128 + (t * 81920 if task == 0 else t * 1280)
        A(f"s_add_u32 s{sT0}, s{sXOFF}, {extra}")
        A.vm(f"buffer_load_dwordx4 v{vXA if task == 0 else vXB}, s[{sX}:{sX+3}], s{sT0} offen lds", ("d", b))
    A(f"s_mov_b64 exec, s[{sEXW}:{sEXW+1}]")
    for t in range(2):
        A(f"s_add_u32 m0, s{sLDSW}, {st*STAGE + 16384 + 8192*t}")
        A(f"s_add_u32 s{sT0}, s{sWOFF}, {(kb*64 + 32*t) * 3840}")
        sw = sWA if task == 0 else sWB
        A.vm(f"buffer_load_dwordx4 v{vW}, s[{sw}:{sw+3}], s{sT0} offen lds", ("d", b))
    A("s_mov_b64 exec, -1")


def gate_write(A, b):
    if b >= 10:
        return
    st = b % NST
    A(f"s_cmp_lg_u32 s{sW}, 0")
    A(f"s_cbranch_scc1 L_k1_nog{b}")
    A(f"v_mov_b32 v{vGD}, v{vGV+b}")
    A(f"v_add_u32 v{vT}, {st*STAGE}, v{vGA}")
    A(f"ds_write_b64 v{vT}, v[{vGD}:{vGD+1}]")
    A.label(f"L_k1_nog{b}")


def frag_reads(A, b, ks):
    st = b % NST
    hi = st >= 2
    off = (st & 1) * STAGE
    buf = ks & 1
    xr = (vXRH if hi else vXR) + ks
    A.lds(f"ds_read_b128 {v(XF[buf],4)}, v{xr} offset:{off}", ("f", b, ks))
    for nt in range(2):
        wr = (vWRH if hi else vWR) + nt
        for q in range(2):
            A.lds(f"ds_read_b64_tr_b16 {v(WF[buf][nt]+2*q,2)}, v{wr} offset:{off + ks*4096 + q*1024}", ("f", b, ks))


def mfma(A, b, ks, nt):
    buf = ks & 1
    c = "0" if (b % 10 == 0 and ks == 0) else v(ACC[nt], 16)
    A(f"v_mfma_f32_32x32x16_bf16 {v(ACC[nt],16)}, {v(WF[buf][nt],4)}, {v(XF[buf],4)}, {c}")


def pack4(A, dst, src, scale):
    if scale:
        A(f"v_pk_mul_f32 {v(src,2)}, {v(src,2)}, v[{vT+2}:{vT+3}]")
        A(f"v_pk_mul_f32 {v(src+2,2)}, {v(src+2,2)}, v[{vT+2}:{vT+3}]")
    A(f"v_cvt_pk_bf16_f32 v{dst}, v{src}, v{src+1}")
    A(f"v_cvt_pk_bf16_f32 v{dst+1}, v{src+2}, v{src+3}")


def epilogue(A, task):
    RQ, RK, RV = (QA, KA, VA) if task == 0 else (QB, KB, VB)
    if task == 0:
        A(f"s_lshl_b32 s{sPOS}, s{sRB}, 7")
        A(f"s_lshl_b32 s{sT0}, s{sMT}, 5")
        A(f"s_add_u32 s{sPOS}, s{sPOS}, s{sT0}")
    else:
        A(f"s_lshl_b32 s{sPOS}, s{sRB}, 6")
        A(f"s_and_b32 s{sT0}, s{sMT}, 1")
        A(f"s_lshl_b32 s{sT0}, s{sT0}, 5")
        A(f"s_add_u32 s{sPOS}, s{sPOS}, s{sT0}")
        A(f"s_lshr_b32 s{sT0}, s{sMT}, 1")
        A(f"s_lshl_b32 s{sT0}, s{sT0}, 10")
        A(f"s_add_u32 s{sPOS}, s{sPOS}, s{sT0}")
    A(f"s_lshl_b32 s{sT1}, s{sPOS}, 4")
    A(f"s_add_u32 s{sT1}, s{sT1}, s{sH0}")
    A(f"s_lshl_b32 s{sT2}, s{sPOS}, 3")
    A(f"s_add_u32 s{sT2}, s{sT2}, s{sH0}")
    A("s_nop 7")
    A("s_nop 7")
    A(f"s_cmp_eq_u32 s{sNH}, 1")
    A(f"s_cbranch_scc1 L_k1_epi1_{task}")
    saved_vm, saved_lds = list(A.vm_q), list(A.lds_q)

    def st16(reg, const):
        A(f"s_add_u32 s{sT0}, s{sT1}, {const}")
        A.vm(f"buffer_store_dwordx2 {v(reg,2)}, v{vPOS16}, s[{sWS}:{sWS+3}], s{sT0} offen", "st")

    def st8(reg, const):
        A(f"s_add_u32 s{sT0}, s{sT2}, {const}")
        A.vm(f"buffer_store_dwordx2 {v(reg,2)}, v{vPOS8}, s[{sWS}:{sWS+3}], s{sT0} offen", "st")

    plan0 = [(0, 0, "16", RQ + 0, True), (0, 1, "16", RQ + 32768, True), (0, 2, "8", RQ + 65536, True),
             (0, 3, "16", RQ + HEADB, True), (1, 0, "16", RQ + HEADB + 32768, True),
             (1, 1, "16", RK + 0, False), (1, 2, "16", RK + 32768, False), (1, 3, "8", RK + 65536, False)]
    A(f"v_mov_b32 v{vT+2}, s{sQS}")
    A(f"v_mov_b32 v{vT+3}, s{sQS}")
    A("s_nop 1")
    for g, (nt, j, kind, const, sc) in enumerate(plan0):
        pack4(A, vP + 2 * g, ACC[nt] + 4 * j, sc)
        (st16 if kind == "16" else st8)(vP + 2 * g, const)
    n0 = len(A.vm_q) - len(saved_vm)
    A(f"s_branch L_k1_epi_done_{task}")
    A.label(f"L_k1_epi1_{task}")
    A.vm_q, A.lds_q = list(saved_vm), list(saved_lds)
    for g, (nt, j, const) in enumerate([(0, 0, RK + HEADB), (0, 1, RK + HEADB + 32768)]):
        pack4(A, vP + 2 * g, ACC[nt] + 4 * j, False)
        st16(vP + 2 * g, const)
    for jj, (nt, j) in enumerate([(0, 2), (0, 3), (1, 0), (1, 1), (1, 2)]):
        pack4(A, vP + 4 + 2 * jj, ACC[nt] + 4 * j, False)
        A.lds(f"ds_write_b64 v{vVW}, {v(vP+4+2*jj,2)} offset:{jj*16}", "vw")
    if task == 0:
        A(f"s_cmp_lg_u32 s{sM}, 0")
        A(f"s_cbranch_scc1 L_k1_nogate")
        A(f"v_mul_f32 v{vT}, {hex(f32bits(-LOG2E))}, v{ACC[1]+12}")
        A(f"v_exp_f32 v{vT}, v{vT}")
        A("s_nop 0")
        A(f"v_add_f32 v{vT}, 1.0, v{vT}")
        A(f"v_rcp_f32 v{vT}, v{vT}")
        A(f"v_and_b32 v{vT+1}, 31, v{vL}")
        A(f"v_lshlrev_b32 v{vT+1}, 2, v{vT+1}")
        A(f"s_lshl_b32 s{sT0}, s{sPOS}, 2")
        A(f"s_add_u32 s{sT0}, s{sT0}, {GATE}")
        A("s_mov_b32 exec_hi, 0")
        A(f"buffer_store_dword v{vT}, v{vT+1}, s[{sWS}:{sWS+3}], s{sT0} offen")
        A("s_mov_b64 exec, -1")
        A.label("L_k1_nogate")
    A.lds_wait_all()
    FR = vP + 16 - 16
    for e in range(2):
        for a in range(2):
            for q in range(2):
                A.lds(f"ds_read_b64_tr_b16 {v(FR + 8*e + 4*a + 2*q,2)}, v{vVR} offset:{(16*a + 8*q)*80 + 40*e}", ("vr", e, a))
    A(f"s_lshr_b32 s{sT3}, s{sPOS}, 4")
    A(f"s_mul_i32 s{sT3}, s{sT3}, 640")
    A(f"s_add_u32 s{sT3}, s{sT3}, s{sH0}")
    A(f"s_mov_b32 exec_lo, 0xfffff")
    A(f"s_mov_b32 exec_hi, 0xfffff")
    for e in range(2):
        for a in range(2):
            A.lds_wait(("vr", e, a))
            A(f"s_add_u32 s{sT0}, s{sT3}, {RV + e*HEADB + a*640}")
            A.vm(f"buffer_store_dwordx4 {v(FR + 8*e + 4*a,4)}, v{vVST}, s[{sWS}:{sWS+3}], s{sT0} offen", "st")
    A("s_mov_b64 exec, -1")
    n1 = len(A.vm_q) - len(saved_vm)
    A.label(f"L_k1_epi_done_{task}")
    A.vm_q = list(saved_vm) + ["st"] * min(n0, n1)
    A.lds_q = list(saved_lds)


def gen():
    A = Asm()
    kernel_header(A, NAME)
    A("s_cmp_ge_u32 s2, 256")
    A("s_cbranch_scc1 L_k1_end")
    A("s_load_dwordx4 s[4:7], s[0:1], 0")
    A("s_load_dwordx2 s[36:37], s[0:1], 32")
    A("s_load_dwordx2 s[38:39], s[0:1], 48")
    A("s_load_dwordx2 s[40:41], s[0:1], 72")
    A(f"v_lshrrev_b32 v{vT}, 6, v0")
    A(f"v_and_b32 v{vL}, 63, v0")
    A(f"v_readfirstlane_b32 s{sW}, v{vT}")
    A(f"s_and_b32 s{sT0}, s2, 7")
    A(f"s_lshr_b32 s{sT1}, s2, 3")
    A(f"s_and_b32 s{sM}, s{sT0}, 3")
    A(f"s_lshl_b32 s{sM}, s{sM}, 2")
    A(f"s_and_b32 s{sT2}, s{sT1}, 3")
    A(f"s_add_u32 s{sM}, s{sM}, s{sT2}")
    A(f"s_lshr_b32 s{sRB}, s{sT0}, 2")
    A(f"s_lshl_b32 s{sRB}, s{sRB}, 3")
    A(f"s_lshr_b32 s{sT2}, s{sT1}, 2")
    A(f"s_add_u32 s{sRB}, s{sRB}, s{sT2}")
    A(f"s_and_b32 s{sNH}, s{sW}, 1")
    A(f"s_lshr_b32 s{sMT}, s{sW}, 1")
    A(f"s_mul_i32 s{sXOFF}, s{sRB}, {128*1280}")
    A(f"s_mul_i32 s{sWOFF}, s{sM}, 80")
    A(f"s_lshl_b32 s{sLDSW}, s{sW}, 10")
    A(f"s_mul_i32 s{sH0}, s{sM}, {2*HEADB}")
    A(f"s_mov_b32 s{sQS}, {hex(f32bits(QSCALE))}")
    A(f"s_mov_b32 s{sEXW}, 0xf7ff7fff")
    A(f"s_mov_b32 s{sEXW+1}, 0xfff7ff7f")
    A(f"s_mul_i32 s{sSCR}, s{sMT}, 2560")
    A(f"s_add_u32 s{sSCR}, s{sSCR}, {SCRATCH}")
    A(f"v_lshrrev_b32 v{vT}, 3, v{vL}")
    A(f"s_lshl_b32 s{sT0}, s{sW}, 3")
    A(f"v_add_u32 v{vT}, s{sT0}, v{vT}")
    A(f"v_lshrrev_b32 v{vT+1}, 1, v{vT}")
    A(f"v_xor_b32 v{vT+1}, v{vT+1}, v{vL}")
    A(f"v_and_b32 v{vT+1}, 7, v{vT+1}")
    A(f"v_lshlrev_b32 v{vT+1}, 4, v{vT+1}")
    A(f"v_mul_u32_u24 v{vT+2}, 1280, v{vT}")
    A(f"v_add_u32 v{vXA}, v{vT+2}, v{vT+1}")
    A(f"v_lshl_add_u32 v{vXB}, v{vT+2}, 1, v{vT+1}")
    A(f"v_lshrrev_b32 v{vT}, 4, v{vL}")
    A(f"v_lshlrev_b32 v{vT+1}, 2, v{vT}")
    A(f"v_xor_b32 v{vT+1}, v{vT+1}, v{vL}")
    A(f"v_and_b32 v{vT+1}, 15, v{vT+1}")
    A(f"v_mul_u32_u24 v{vT+2}, 52, v{vT+1}")
    A(f"v_lshrrev_b32 v{vT+2}, 8, v{vT+2}")
    A(f"v_mul_u32_u24 v{vT+3}, 5, v{vT+2}")
    A(f"v_sub_u32 v{vT+3}, v{vT+1}, v{vT+3}")
    A(f"v_lshlrev_b32 v{vT+3}, 4, v{vT+3}")
    A(f"v_mul_u32_u24 v{vT+2}, 1280, v{vT+2}")
    A(f"v_add_u32 v{vT+3}, v{vT+3}, v{vT+2}")
    A(f"s_lshl_b32 s{sT0}, s{sW}, 2")
    A(f"v_add_u32 v{vT}, s{sT0}, v{vT}")
    A(f"v_mul_u32_u24 v{vT}, 3840, v{vT}")
    A(f"v_add_u32 v{vW}, v{vT}, v{vT+3}")
    A(f"v_lshlrev_b32 v{vT+4}, 1, v{vL}")
    A(f"v_and_b32 v{vT}, 3, v{vL}")
    A(f"v_lshlrev_b32 v{vT}, 2, v{vT}")
    A(f"v_xor_b32 v{vT}, 15, v{vT}")
    A(f"v_lshlrev_b32 v{vT}, 4, v{vT}")
    A(f"v_lshlrev_b32 v{vT+1}, 8, v{vL}")
    A(f"v_add_u32 v{vGA}, v{vT}, v{vT+1}")
    A(f"v_add_u32 v{vGA}, 16384, v{vGA}")
    A(f"v_mov_b32 v{vGD+1}, 0")
    A("s_waitcnt lgkmcnt(0)")
    srd(A, sX, 4, X_BYTES)
    srd(A, sWA, 6, W_BYTES)
    srd(A, sWB, 36, W_BYTES)
    srd(A, sG, 38, 1280)
    srd(A, sWS, 40, WS_USED)
    for kb in range(10):
        A.vm(f"buffer_load_ushort v{vGV+kb}, v{vT+4}, s[{sG}:{sG+3}], 0 offen offset:{kb*128}", "g")
    for b in range(NST):
        dma_block(A, b)
    A(f"v_and_b32 v{vT}, 31, v{vL}")
    A(f"v_lshrrev_b32 v{vT+1}, 5, v{vL}")
    A(f"v_lshrrev_b32 v{vT+2}, 1, v{vT}")
    A(f"v_and_b32 v{vT+2}, 7, v{vT+2}")
    A(f"v_xor_b32 v{vT+2}, v{vT+2}, v{vT+1}")
    A(f"v_lshlrev_b32 v{vT+2}, 4, v{vT+2}")
    A(f"s_lshl_b32 s{sT0}, s{sMT}, 5")
    A(f"v_add_u32 v{vT+3}, s{sT0}, v{vT}")
    A(f"v_lshl_add_u32 v{vXR}, v{vT+3}, 7, v{vT+2}")
    for ks in range(1, 4):
        A(f"v_xor_b32 v{vXR+ks}, {ks*32}, v{vXR}")
    for ks in range(4):
        A(f"v_add_u32 v{vXRH+ks}, 0x10000, v{vXR+ks}")
    A(f"v_bfe_u32 v{vT+2}, v{vL}, 2, 2")
    A(f"v_lshl_add_u32 v{vT+3}, v{vT+1}, 3, v{vT+2}")
    A(f"v_lshlrev_b32 v{vT+3}, 8, v{vT+3}")
    A(f"v_bfe_u32 v{vT+4}, v{vL}, 4, 1")
    A(f"v_lshlrev_b32 v{vT+4}, 5, v{vT+4}")
    A(f"v_add_u32 v{vT+3}, v{vT+3}, v{vT+4}")
    A(f"v_and_b32 v{vT+4}, 3, v{vL}")
    A(f"v_lshlrev_b32 v{vT+4}, 3, v{vT+4}")
    A(f"v_add_u32 v{vT+3}, v{vT+3}, v{vT+4}")
    A(f"v_add_u32 v{vT+3}, 16384, v{vT+3}")
    for nt in range(2):
        A(f"s_lshl_b32 s{sT0}, s{sNH}, 1")
        A(f"s_add_u32 s{sT0}, s{sT0}, {nt}")
        A(f"v_xor_b32 v{vT+4}, s{sT0}, v{vT+2}")
        A(f"v_lshl_add_u32 v{vWR+nt}, v{vT+4}, 6, v{vT+3}")
        A(f"v_add_u32 v{vWRH+nt}, 0x10000, v{vWR+nt}")
    A(f"v_lshlrev_b32 v{vT+2}, 3, v{vT+1}")
    A(f"v_lshl_add_u32 v{vPOS16}, v{vT}, 4, v{vT+2}")
    A(f"v_mul_u32_u24 v{vT+2}, {HEADB}, v{vT+1}")
    A(f"v_lshl_add_u32 v{vPOS8}, v{vT}, 3, v{vT+2}")
    A(f"v_mul_u32_u24 v{vT+2}, 80, v{vT}")
    A(f"v_lshl_add_u32 v{vT+2}, v{vT+1}, 3, v{vT+2}")
    A(f"v_add_u32 v{vVW}, s{sSCR}, v{vT+2}")
    A(f"v_bfe_u32 v{vT+2}, v{vL}, 2, 2")
    A(f"v_lshl_add_u32 v{vT+2}, v{vT+1}, 2, v{vT+2}")
    A(f"v_mul_u32_u24 v{vT+2}, 80, v{vT+2}")
    A(f"v_bfe_u32 v{vT+3}, v{vL}, 4, 1")
    A(f"v_and_b32 v{vT+4}, 3, v{vL}")
    A(f"v_mov_b32 v{vT+5}, 4")
    A(f"v_cmp_eq_u32 vcc, 1, v{vT+3}")
    A("s_nop 1")
    A(f"v_cndmask_b32 v{vT+4}, v{vT+4}, v{vT+5}, vcc")
    A(f"v_lshl_add_u32 v{vT+2}, v{vT+4}, 3, v{vT+2}")
    A(f"v_add_u32 v{vVR}, s{sSCR}, v{vT+2}")
    A(f"v_mul_u32_u24 v{vT+2}, 320, v{vT+1}")
    A(f"v_lshl_add_u32 v{vVST}, v{vT}, 4, v{vT+2}")
    A.vm_wait("g")
    for b in range(NST):
        gate_write(A, b)
    A.lds_wait_all()
    A.vm_wait(("d", 0))
    A("s_barrier")
    frag_reads(A, 0, 0)
    NB = 20
    for b in range(NB):
        for ks in range(4):
            if ks < 3:
                A.lds_wait(("f", b, ks))
                mfma(A, b, ks, 0)
                frag_reads(A, b, ks + 1)
                mfma(A, b, ks, 1)
            else:
                A.lds_wait_all()
                mfma(A, b, ks, 0)
                mfma(A, b, ks, 1)
                if b + 1 < NB:
                    A.vm_wait(("d", b + 1))
                    A("s_barrier")
                    if b + NST < NB:
                        gate_write(A, b + NST)
                    frag_reads(A, b + 1, 0)
                    if b + NST < NB:
                        dma_block(A, b + NST)
        if b % 10 == 9:
            if b + 1 < NB:
                A.lds_wait_all()
            epilogue(A, b // 10)
    A.label("L_k1_end")
    A("s_endpgm")
    kernel_footer(A, NAME, NV, 64)
    return A.text()

if __name__ == "__main__":
    print(gen())
```

```python
from asmlib import *
from layout import *

NAME = "k2_attn_kernel"
SLOT = 40960
NSLOT = 3
ONES = NSLOT * SLOT
LDS_BYTES = ONES + 24576
BIG = 2.0 ** 64

sWS = 8
sW, sH, sQB = 12, 13, 14
sHB = 15
sLDSW = 16
sSRC = 17
sSTR2 = 22
sT0, sT1, sT2, sT3 = 24, 25, 26, 27
sQ0 = 28
sBP = 29
sBT = 30
sQT = 31
sM = 32
sLO20 = 34
sCNT = 36
sFB = 37

vL, vR, vHH = 1, 2, 3
vK01 = 4
vK2 = 7
vV = 10
vL16 = 13
vG = 14
vGB = 15
vT = 16
SA, SB = 24, 40
NEGM = 56
O = 72
P = 88
Q01, Q2 = 96, 100
K01, K2 = 104, 108
V0, V1 = 112, 116
BQ01, BQ2 = 120, 124
BK01, BK2 = 128, 132
BKP01, BKP2 = 136, 140
BV0, BV1, BVP = 144, 148, 152
NV = 160


def mf16(A, d, a, b, c):
    A(f"v_mfma_f32_32x32x16_bf16 {v(d,16)}, {v(a,4)}, {v(b,4)}, {c}")


def mf8(A, d, a, b, c):
    A(f"v_mfma_f32_32x32x8_bf16 {v(d,16)}, {v(a,2)}, {v(b,2)}, {c}")


def dma_chunk(A, c):
    slot = c % NSLOT
    strides = [8192, 8192, None, 20480, 20480]
    for t in range(5):
        A(f"s_add_u32 m0, s{sLDSW}, {slot*SLOT + 8192*t}")
        if strides[t] is None:
            A(f"s_mul_i32 s{sT0}, s{sSTR2}, {c}")
            A(f"s_add_u32 s{sT0}, s{sT0}, s{sSRC+t}")
        else:
            A(f"s_add_u32 s{sT0}, s{sSRC+t}, {strides[t]*c}")
        A.vm(f"buffer_load_dwordx4 v{vL16}, s[{sWS}:{sWS+3}], s{sT0} offen lds", ("c", c))


def rd_k01(A, t):
    c, tt = t // 16, t % 16
    A.lds(f"ds_read_b128 {v(K01,4)}, v{vK01 + c % NSLOT} offset:{tt*512}", ("k01", t))


def rd_k2(A, t):
    c, tt = t // 16, t % 16
    A.lds(f"ds_read_b64 {v(K2,2)}, v{vK2 + c % NSLOT} offset:{16384 + tt*256}", ("k2", t))


def rd_v(A, t, a):
    c, tt = t // 16, t % 16
    A.lds(f"ds_read_b128 {v(V1 if a else V0,4)}, v{vV + c % NSLOT} offset:{20480 + (2*tt + a)*640}", ("v", t, a))


def exps(A, sreg, g):
    for i in range(4):
        A(f"v_exp_f32 v{sreg+4*g+i}, v{sreg+4*g+i}")
    A(f"v_cvt_pk_bf16_f32 v{P+2*g}, v{sreg+4*g}, v{sreg+4*g+1}")
    A(f"v_cvt_pk_bf16_f32 v{P+2*g+1}, v{sreg+4*g+2}, v{sreg+4*g+3}")


def cross_half_max(A, reg, tmp):
    A(f"v_mov_b32 v{tmp}, v{reg}")
    A("s_nop 1")
    A(f"v_permlane32_swap_b32 v{reg}, v{tmp}")
    A("s_nop 1")
    A(f"v_max_f32 v{reg}, v{reg}, v{tmp}")


def max16(A, dst, src, first):
    if first:
        A(f"v_max3_f32 v{dst}, v{src}, v{src+1}, v{src+2}")
        rest = list(range(3, 16))
    else:
        rest = list(range(0, 16))
    while rest:
        if len(rest) >= 2:
            A(f"v_max3_f32 v{dst}, v{dst}, v{src+rest[0]}, v{src+rest[1]}")
            rest = rest[2:]
        else:
            A(f"v_max_f32 v{dst}, v{dst}, v{src+rest[0]}")
            rest = rest[1:]


def finish_tile(A, oreg, gate, one_minus, tok_shift, tok_sreg, chunk0, tag):
    A(f"v_mov_b32 v{vT}, v{oreg+8}")
    A(f"v_mov_b32 v{vT+1}, v{oreg+8}")
    A("s_nop 1")
    A(f"v_permlane32_swap_b32 v{vT}, v{vT+1}")
    A("s_nop 1")
    A(f"v_rcp_f32 v{vT+1}, v{vT+1}")
    if one_minus:
        A(f"v_sub_f32 v{vT}, 1.0, v{gate}")
        A(f"v_mul_f32 v{vT+1}, v{vT+1}, v{vT}")
    else:
        A("s_nop 0")
        A(f"v_mul_f32 v{vT+1}, v{vT+1}, v{gate}")
    for i in range(12):
        A(f"v_mul_f32 v{oreg+i}, v{oreg+i}, v{vT+1}")
    for j in range(3):
        A(f"v_cvt_pk_bf16_f32 v{oreg+4*j}, v{oreg+4*j}, v{oreg+4*j+1}")
        A(f"v_cvt_pk_bf16_f32 v{oreg+4*j+1}, v{oreg+4*j+2}, v{oreg+4*j+3}")
    A(f"s_mul_i32 s{sT0}, s{sH}, 5")
    A(f"v_add_u32 v{vT+2}, s{sT0}, v{vHH}")
    A(f"v_lshrrev_b32 v{vT+3}, 1, v{vT+2}")
    A(f"v_lshlrev_b32 v{vT+3}, 15, v{vT+3}")
    A(f"v_and_b32 v{vT+2}, 1, v{vT+2}")
    A(f"v_lshl_add_u32 v{vT+3}, v{vT+2}, 3, v{vT+3}")
    A(f"v_lshl_add_u32 v{vT+3}, v{vR}, {tok_shift}, v{vT+3}")
    A(f"s_lshl_b32 s{sT0}, s{tok_sreg}, 4")
    A(f"s_add_u32 s{sT0}, s{sT0}, {OC + chunk0*32768}")
    for j in range(3):
        if j == 2:
            A("s_mov_b32 exec_hi, 0")
        A.vm(f"buffer_store_dwordx2 {v(oreg+4*j,2)}, v{vT+3}, s[{sWS}:{sWS+3}], s{sT0} offen", tag)
        if j < 2:
            A(f"s_add_u32 s{sT0}, s{sT0}, 32768")
    A("s_mov_b64 exec, -1")


def band_mask(j, i, prev):
    m = 0
    for l in range(64):
        q, hh = l & 31, l >> 5
        key = 8 * j + 4 * hh + i - (32 if prev else 0)
        if 0 <= q - key <= 7:
            m |= 1 << l
    return m


def b_unit(A):
    S0, S1 = SA, SB
    A.vm_wait("b")
    mf16(A, S0, BK01, BQ01, "0")
    mf16(A, S1, BKP01, BQ01, "0")
    mf8(A, S0, BK2, BQ2, v(S0, 16))
    mf8(A, S1, BKP2, BQ2, v(S1, 16))
    A(f"v_mov_b32 v{vT}, {hex(f32bits(-1e30))}")
    A(f"s_cmp_eq_u32 s{sQT}, 0")
    A(f"s_cselect_b32 s{sT3}, 0, -1")
    A("s_nop 7")
    A("s_nop 7")
    for j in range(4):
        for i in range(4):
            m = band_mask(j, i, False)
            A(f"s_mov_b32 s{sM}, {hex(m & 0xffffffff)}")
            A(f"s_mov_b32 s{sM+1}, {hex(m >> 32)}")
            A(f"v_cndmask_b32 v{S0+4*j+i}, v{vT}, v{S0+4*j+i}, s[{sM}:{sM+1}]")
    for i in range(4):
        m = band_mask(3, i, True)
        A(f"s_and_b32 s{sM}, s{sT3}, {hex(m & 0xffffffff)}")
        A(f"s_and_b32 s{sM+1}, s{sT3}, {hex(m >> 32)}")
        A(f"v_cndmask_b32 v{S1+12+i}, v{vT}, v{S1+12+i}, s[{sM}:{sM+1}]")
    max16(A, vT + 1, S0, True)
    A(f"v_max3_f32 v{vT+1}, v{vT+1}, v{S1+12}, v{S1+13}")
    A(f"v_max3_f32 v{vT+1}, v{vT+1}, v{S1+14}, v{S1+15}")
    cross_half_max(A, vT + 1, vT + 2)
    for r in list(range(S0, S0 + 16)) + list(range(S1 + 12, S1 + 16)):
        A(f"v_sub_f32 v{r}, v{r}, v{vT+1}")
    for g in range(4):
        exps(A, S0, g)
    PP = vT + 4
    for i in range(4):
        A(f"v_exp_f32 v{S1+12+i}, v{S1+12+i}")
    A(f"v_mov_b32 v{PP}, 0")
    A(f"v_mov_b32 v{PP+1}, 0")
    A(f"v_cvt_pk_bf16_f32 v{PP+2}, v{S1+12}, v{S1+13}")
    A(f"v_cvt_pk_bf16_f32 v{PP+3}, v{S1+14}, v{S1+15}")
    A("s_nop 1")
    mf16(A, O, BV0, P, "0")
    mf16(A, O, BV1, P + 4, v(O, 16))
    mf16(A, O, BVP, PP, v(O, 16))
    A("s_nop 7")
    A("s_nop 7")
    finish_tile(A, O, vGB, True, 5, sBT, 80, "st")


def fallback(A):
    A.label("L_k2_fallback")
    A("s_waitcnt vmcnt(0) lgkmcnt(0)")
    A(f"v_lshl_add_u32 v{vT+4}, v{vHH}, 15, 0")
    A(f"v_lshl_add_u32 v{vT+4}, v{vR}, 4, v{vT+4}")
    A(f"v_lshlrev_b32 v{vT+5}, 3, v{vR}")
    A(f"v_mul_u32_u24 v{vT+6}, 320, v{vHH}")
    A(f"v_lshl_add_u32 v{vT+6}, v{vR}, 4, v{vT+6}")
    A(f"v_mov_b32 v{vT+7}, {hex(f32bits(-3.0e38))}")
    A(f"s_add_u32 s{sT1}, s{sHB}, {KA}")
    A(f"s_add_u32 s{sT2}, s{sHB}, {KA + 65536}")
    A(f"s_mov_b32 s{sCNT}, 0")
    A.label("L_k2_fb1")
    A(f"buffer_load_dwordx4 {v(K01,4)}, v{vT+4}, s[{sWS}:{sWS+3}], s{sT1} offen")
    A(f"buffer_load_dwordx2 {v(K2,2)}, v{vT+5}, s[{sWS}:{sWS+3}], s{sT2} offen")
    A("s_waitcnt vmcnt(0)")
    mf16(A, SA, K01, Q01, "0")
    mf8(A, SA, K2, Q2, v(SA, 16))
    A("s_nop 7")
    A("s_nop 7")
    max16(A, vT + 7, SA, False)
    A(f"s_add_u32 s{sT1}, s{sT1}, 512")
    A(f"s_add_u32 s{sT2}, s{sT2}, 256")
    A(f"s_add_u32 s{sCNT}, s{sCNT}, 1")
    A(f"s_cmp_lt_u32 s{sCNT}, 64")
    A("s_cbranch_scc1 L_k2_fb1")
    cross_half_max(A, vT + 7, vT)
    for i in range(16):
        A(f"v_sub_f32 v{NEGM+i}, 0, v{vT+7}")
        A(f"v_mov_b32 v{O+i}, 0")
    A(f"v_cmp_eq_u32 vcc, 20, v{vR}")
    A(f"v_mov_b32 v{vT}, 0")
    A(f"v_mov_b32 v{vT+1}, 0x3f803f80")
    A(f"v_cndmask_b32 v{vT}, v{vT}, v{vT+1}, vcc")
    for i in range(4):
        A(f"v_mov_b32 v{V0+i}, v{vT}")
        A(f"v_mov_b32 v{V1+i}, v{vT}")
    A(f"s_add_u32 s{sT1}, s{sHB}, {KA}")
    A(f"s_add_u32 s{sT2}, s{sHB}, {KA + 65536}")
    A(f"s_add_u32 s{sT3}, s{sHB}, {VA}")
    A(f"s_mov_b32 s{sCNT}, 0")
    A.label("L_k2_fb2")
    A(f"buffer_load_dwordx4 {v(K01,4)}, v{vT+4}, s[{sWS}:{sWS+3}], s{sT1} offen")
    A(f"buffer_load_dwordx2 {v(K2,2)}, v{vT+5}, s[{sWS}:{sWS+3}], s{sT2} offen")
    A(f"s_mov_b64 exec, s[{sLO20}:{sLO20+1}]")
    A(f"buffer_load_dwordx4 {v(V0,4)}, v{vT+6}, s[{sWS}:{sWS+3}], s{sT3} offen")
    A(f"buffer_load_dwordx4 {v(V1,4)}, v{vT+6}, s[{sWS}:{sWS+3}], s{sT3} offen offset:640")
    A("s_mov_b64 exec, -1")
    A("s_waitcnt vmcnt(0)")
    mf16(A, SA, K01, Q01, v(NEGM, 16))
    mf8(A, SA, K2, Q2, v(SA, 16))
    A("s_nop 7")
    A("s_nop 7")
    for g in range(4):
        exps(A, SA, g)
    A("s_nop 1")
    mf16(A, O, V0, P, v(O, 16))
    mf16(A, O, V1, P + 4, v(O, 16))
    A(f"s_add_u32 s{sT1}, s{sT1}, 512")
    A(f"s_add_u32 s{sT2}, s{sT2}, 256")
    A(f"s_add_u32 s{sT3}, s{sT3}, 1280")
    A(f"s_add_u32 s{sCNT}, s{sCNT}, 1")
    A(f"s_cmp_lt_u32 s{sCNT}, 64")
    A("s_cbranch_scc1 L_k2_fb2")
    A("s_nop 7")
    A("s_nop 7")
    A("s_branch L_k2_finish")


def gen():
    A = Asm()
    kernel_header(A, NAME)
    A("s_cmp_ge_u32 s2, 256")
    A("s_cbranch_scc1 L_k2_end")
    A("s_load_dwordx2 s[4:5], s[0:1], 72")
    A(f"v_lshrrev_b32 v{vT}, 6, v0")
    A(f"v_and_b32 v{vL}, 63, v0")
    A(f"v_readfirstlane_b32 s{sW}, v{vT}")
    A(f"v_and_b32 v{vR}, 31, v{vL}")
    A(f"v_lshrrev_b32 v{vHH}, 5, v{vL}")
    A(f"v_lshlrev_b32 v{vL16}, 4, v{vL}")
    A(f"s_and_b32 s{sT0}, s2, 7")
    A(f"s_lshl_b32 s{sT0}, s{sT0}, 2")
    A(f"s_lshr_b32 s{sT1}, s2, 3")
    A(f"s_and_b32 s{sT1}, s{sT1}, 3")
    A(f"s_add_u32 s{sH}, s{sT0}, s{sT1}")
    A(f"s_lshr_b32 s{sQB}, s2, 5")
    A(f"s_mul_i32 s{sHB}, s{sH}, {HEADB}")
    A(f"s_lshl_b32 s{sLDSW}, s{sW}, 10")
    A(f"s_lshl_b32 s{sQ0}, s{sQB}, 8")
    A(f"s_lshl_b32 s{sT0}, s{sW}, 5")
    A(f"s_add_u32 s{sQ0}, s{sQ0}, s{sT0}")
    A(f"s_lshl_b32 s{sQT}, s{sQB}, 2")
    A(f"s_lshr_b32 s{sT0}, s{sW}, 1")
    A(f"s_add_u32 s{sQT}, s{sQT}, s{sT0}")
    A(f"s_and_b32 s{sT1}, s{sW}, 1")
    A(f"s_lshl_b32 s{sBP}, s{sT1}, 10")
    A(f"s_lshl_b32 s{sT0}, s{sQT}, 5")
    A(f"s_add_u32 s{sBP}, s{sBP}, s{sT0}")
    A(f"s_lshl_b32 s{sBT}, s{sQT}, 6")
    A(f"s_add_u32 s{sBT}, s{sBT}, s{sT1}")
    A(f"s_mov_b32 s{sLO20}, 0xfffff")
    A(f"s_mov_b32 s{sLO20+1}, 0xfffff")
    A(f"s_add_u32 s{sSRC}, s{sHB}, s{sLDSW}")
    A(f"s_add_u32 s{sSRC+1}, s{sSRC}, {KA + 32768}")
    A(f"s_add_u32 s{sSRC+2}, s{sSRC}, {KA + 65536}")
    A(f"s_add_u32 s{sT0}, s{sSRC}, {VA - 4096}")
    A(f"s_cmp_lt_u32 s{sW}, 4")
    A(f"s_cselect_b32 s{sSRC+2}, s{sSRC+2}, s{sT0}")
    A(f"s_movk_i32 s{sT1}, 4096")
    A(f"s_cselect_b32 s{sSTR2}, s{sT1}, 20480")
    A(f"s_add_u32 s{sSRC+3}, s{sSRC}, {VA + 4096}")
    A(f"s_add_u32 s{sSRC+4}, s{sSRC}, {VA + 12288}")
    A(f"s_add_u32 s{sSRC}, s{sSRC}, {KA}")
    A(f"v_lshlrev_b32 v{vT}, 15, v{vHH}")
    A(f"v_lshl_add_u32 v{vT}, v{vR}, 4, v{vT}")
    A(f"v_lshlrev_b32 v{vT+1}, 3, v{vR}")
    A(f"v_mul_u32_u24 v{vT+2}, 320, v{vHH}")
    A(f"v_lshl_add_u32 v{vT+2}, v{vR}, 4, v{vT+2}")
    A(f"v_lshlrev_b32 v{vT+3}, 2, v{vR}")
    A(f"v_cmp_eq_u32 vcc, 20, v{vR}")
    A(f"v_mov_b32 v{vT+4}, 0")
    A(f"v_mov_b32 v{vT+5}, 0x3f803f80")
    A(f"v_cndmask_b32 v{vT+4}, v{vT+4}, v{vT+5}, vcc")
    for base in (BV0, BV1, BVP):
        for i in range(4):
            A(f"v_mov_b32 v{base+i}, v{vT+4}")
    for r in (Q2, Q2 + 1, BQ2, BQ2 + 1):
        A(f"v_mov_b32 v{r}, 0")
    A("s_waitcnt lgkmcnt(0)")
    srd(A, sWS, 4, WS_USED)
    ws = f"s[{sWS}:{sWS+3}]"
    A(f"s_lshl_b32 s{sT0}, s{sBP}, 4")
    A(f"s_add_u32 s{sT0}, s{sT0}, s{sHB}")
    A(f"s_lshl_b32 s{sT1}, s{sBP}, 3")
    A(f"s_add_u32 s{sT1}, s{sT1}, s{sHB}")
    A(f"s_add_u32 s{sT2}, s{sT0}, {QB}")
    A.vm(f"buffer_load_dwordx4 {v(BQ01,4)}, v{vT}, {ws}, s{sT2} offen", "b")
    A(f"s_add_u32 s{sT2}, s{sT0}, {KB}")
    A.vm(f"buffer_load_dwordx4 {v(BK01,4)}, v{vT}, {ws}, s{sT2} offen", "b")
    A(f"s_add_u32 s{sT2}, s{sT1}, {KB + 65536}")
    A.vm(f"buffer_load_dwordx2 {v(BK2,2)}, v{vT+1}, {ws}, s{sT2} offen", "b")
    A(f"s_cmp_eq_u32 s{sQT}, 0")
    A(f"s_cselect_b32 s{sT3}, 0, 32")
    A(f"s_lshl_b32 s{sT2}, s{sT3}, 4")
    A(f"s_sub_u32 s{sT2}, s{sT0}, s{sT2}")
    A(f"s_add_u32 s{sT2}, s{sT2}, {KB}")
    A.vm(f"buffer_load_dwordx4 {v(BKP01,4)}, v{vT}, {ws}, s{sT2} offen", "b")
    A(f"s_lshl_b32 s{sT2}, s{sT3}, 3")
    A(f"s_sub_u32 s{sT2}, s{sT1}, s{sT2}")
    A(f"s_add_u32 s{sT2}, s{sT2}, {KB + 65536}")
    A.vm(f"buffer_load_dwordx2 {v(BKP2,2)}, v{vT+1}, {ws}, s{sT2} offen", "b")
    A(f"s_mov_b32 exec_hi, 0")
    A(f"s_add_u32 s{sT2}, s{sT1}, {QB + 65536}")
    A.vm(f"buffer_load_dwordx2 {v(BQ2,2)}, v{vT+1}, {ws}, s{sT2} offen", "b")
    A(f"s_lshl_b32 s{sT2}, s{sQ0}, 3")
    A(f"s_add_u32 s{sT2}, s{sT2}, s{sHB}")
    A(f"s_add_u32 s{sT2}, s{sT2}, {QA + 65536}")
    A.vm(f"buffer_load_dwordx2 {v(Q2,2)}, v{vT+1}, {ws}, s{sT2} offen", "a")
    A(f"s_mov_b64 exec, s[{sLO20}:{sLO20+1}]")
    A(f"s_lshr_b32 s{sT2}, s{sBP}, 4")
    A(f"s_mul_i32 s{sT2}, s{sT2}, 640")
    A(f"s_add_u32 s{sT2}, s{sT2}, s{sHB}")
    A(f"s_add_u32 s{sT2}, s{sT2}, {VB}")
    A.vm(f"buffer_load_dwordx4 {v(BV0,4)}, v{vT+2}, {ws}, s{sT2} offen", "b")
    A.vm(f"buffer_load_dwordx4 {v(BV1,4)}, v{vT+2}, {ws}, s{sT2} offen offset:640", "b")
    A(f"s_cmp_eq_u32 s{sQT}, 0")
    A(f"s_cselect_b32 s{sT3}, 0, 640")
    A(f"s_sub_u32 s{sT2}, s{sT2}, s{sT3}")
    A.vm(f"buffer_load_dwordx4 {v(BVP,4)}, v{vT+2}, {ws}, s{sT2} offen", "b")
    A("s_mov_b64 exec, -1")
    A(f"s_lshl_b32 s{sT2}, s{sBT}, 2")
    A(f"s_add_u32 s{sT2}, s{sT2}, {GATE}")
    A(f"v_lshlrev_b32 v{vT+6}, 3, v{vR}")
    A.vm(f"buffer_load_dword v{vGB}, v{vT+6}, {ws}, s{sT2} offen", "b")
    A(f"s_lshl_b32 s{sT2}, s{sQ0}, 2")
    A(f"s_add_u32 s{sT2}, s{sT2}, {GATE}")
    A.vm(f"buffer_load_dword v{vG}, v{vT+3}, {ws}, s{sT2} offen", "a")
    A(f"s_lshl_b32 s{sT2}, s{sQ0}, 4")
    A(f"s_add_u32 s{sT2}, s{sT2}, s{sHB}")
    A(f"s_add_u32 s{sT2}, s{sT2}, {QA}")
    A.vm(f"buffer_load_dwordx4 {v(Q01,4)}, v{vT}, {ws}, s{sT2} offen", "b")
    for c in range(NSLOT):
        dma_chunk(A, c)
    for sl in range(NSLOT):
        A(f"v_lshlrev_b32 v{vT}, 13, v{vHH}")
        A(f"v_lshl_add_u32 v{vT}, v{vR}, 4, v{vT}")
        A(f"v_add_u32 v{vK01+sl}, {sl*SLOT}, v{vT}")
        A(f"v_lshlrev_b32 v{vT}, 3, v{vR}")
        A(f"v_add_u32 v{vK2+sl}, {sl*SLOT}, v{vT}")
        A(f"v_mul_u32_u24 v{vT}, 320, v{vHH}")
        A(f"v_lshl_add_u32 v{vT}, v{vR}, 4, v{vT}")
        A(f"v_add_u32 v{vT+1}, {ONES - 20480}, v{vT}")
        A(f"v_add_u32 v{vT}, {sl*SLOT}, v{vT}")
        A(f"v_cmp_gt_u32 vcc, 20, v{vR}")
        A("s_nop 1")
        A(f"v_cndmask_b32 v{vV+sl}, v{vT+1}, v{vT}, vcc")
    A(f"v_mov_b32 v{vT+4}, 0x3f803f80")
    for i in range(1, 4):
        A(f"v_mov_b32 v{vT+4+i}, v{vT+4}")
    A(f"v_lshlrev_b32 v{vT}, 4, v0")
    A(f"v_add_u32 v{vT}, {ONES}, v{vT}")
    for r in range(3):
        A.lds(f"ds_write_b128 v{vT}, {v(vT+4,4)} offset:{r*8192}", "ones")
    b_unit(A)
    A.lds_wait_all()
    A.vm_wait(("c", 0))
    A("s_barrier")
    rd_k01(A, 0)
    rd_k2(A, 0)
    A.lds_wait_all()
    mf16(A, SA, K01, Q01, "0")
    mf8(A, SA, K2, Q2, v(SA, 16))
    A("s_nop 7")
    A("s_nop 7")
    max16(A, vT, SA, True)
    cross_half_max(A, vT, vT + 1)
    for i in range(16):
        A(f"v_sub_f32 v{NEGM+i}, 0, v{vT}")
    A("s_nop 1")
    mf16(A, SA, K01, Q01, v(NEGM, 16))
    mf8(A, SA, K2, Q2, v(SA, 16))
    rd_k01(A, 1)
    rd_k2(A, 1)
    rd_v(A, 0, 0)
    A("s_nop 7")
    A("s_nop 3")
    NT = 64
    for t in range(NT):
        cur = SA if t % 2 == 0 else SB
        nxt = SB if t % 2 == 0 else SA
        if t % 16 == 14 and t + 2 < NT:
            c = (t + 2) // 16
            A.vm_wait(("c", c))
            A("s_barrier")
            if c + 1 >= NSLOT and c + 1 < 4:
                dma_chunk(A, c + 1)
        if t + 1 < NT:
            A.lds_wait(("k01", t + 1))
            mf16(A, nxt, K01, Q01, v(NEGM, 16))
            if t + 2 < NT:
                rd_k01(A, t + 2)
        exps(A, cur, 0)
        if t > 0:
            A.lds_wait(("v", t - 1, 1))
            mf16(A, O, V1, P + 4, v(O, 16))
        rd_v(A, t, 1)
        exps(A, cur, 1)
        if t + 1 < NT:
            A.lds_wait(("k2", t + 1))
            mf8(A, nxt, K2, Q2, v(nxt, 16))
            if t + 2 < NT:
                rd_k2(A, t + 2)
        exps(A, cur, 2)
        A.lds_wait(("v", t, 0))
        mf16(A, O, V0, P, "0" if t == 0 else v(O, 16))
        if t + 1 < NT:
            rd_v(A, t + 1, 0)
        exps(A, cur, 3)
    A.lds_wait(("v", NT - 1, 1))
    A("s_nop 1")
    mf16(A, O, V1, P + 4, v(O, 16))
    A("s_nop 7")
    A("s_nop 7")
    A(f"v_mov_b32 v{vT}, v{O+8}")
    A(f"v_mov_b32 v{vT+1}, v{O+8}")
    A(f"v_mul_f32 v{vT+2}, 0, v{O}")
    A("s_nop 0")
    A(f"v_permlane32_swap_b32 v{vT}, v{vT+1}")
    for i in range(1, 12):
        A(f"v_fma_f32 v{vT+2}, v{O+i}, 0, v{vT+2}")
    A(f"v_mov_b32 v{vT+3}, {hex(f32bits(BIG))}")
    A(f"v_add_f32 v{vT+2}, v{vT+2}, v{vT+1}")
    A(f"v_cmp_lt_f32 vcc, v{vT+2}, v{vT+3}")
    A("s_nop 4")
    A("s_cmp_eq_u64 vcc, exec")
    A("s_cbranch_scc0 L_k2_fallback")
    A.label("L_k2_finish")
    finish_tile(A, O, vG, False, 4, sQ0, 0, "st")
    A("s_endpgm")
    fallback(A)
    A.label("L_k2_end")
    A("s_endpgm")
    kernel_footer(A, NAME, NV, 64)
    return A.text()

if __name__ == "__main__":
    print(gen())
```

```python
from asmlib import *
from layout import *

NAME = "k3_out_kernel"
STG = 20480
NSLOT = 7
AHEAD = 6
LDS_BYTES = NSLOT * STG

sWA, sWB, sWS, sOUT = 8, 12, 16, 20
sW, sRT, sCT = 24, 25, 26
sLDSW, sT0, sT1, sOC, sN0 = 27, 28, 29, 30, 31
vL = 1
vWA = 2
vOC = 7
vRD = 8
vST = 15
vT = 16
ACC = 24
WF = 44
OCF = 84
NV = OCF + NSLOT * 16


def issue_stage(A, st):
    slot = st % NSLOT
    sw = sWA if st < 5 else sWB
    for t in range(5):
        A(f"s_add_u32 m0, s{sLDSW}, {slot*STG + 4096*t}")
        A(f"s_add_u32 s{sT0}, s{sN0}, {(st % 5) * 128 * 1280}")
        A.vm(f"buffer_load_dwordx4 v{vWA+t}, s[{sw}:{sw+3}], s{sT0} offen lds", ("s", st))
    for ks in range(4):
        A(f"s_add_u32 s{sT0}, s{sOC}, {(4*st + ks) * 131072}")
        A.vm(f"buffer_load_dwordx4 {v(OCF + slot*16 + 4*ks,4)}, v{vOC}, s[{sWS}:{sWS+3}], s{sT0} offen", ("s", st))


def gen():
    A = Asm()
    kernel_header(A, NAME)
    A("s_cmp_ge_u32 s2, 256")
    A("s_cbranch_scc1 L_k3_end")
    A("s_load_dwordx2 s[4:5], s[0:1], 16")
    A("s_load_dwordx2 s[6:7], s[0:1], 40")
    A("s_load_dwordx2 s[32:33], s[0:1], 72")
    A("s_load_dwordx2 s[34:35], s[0:1], 56")
    A(f"v_lshrrev_b32 v{vT}, 6, v0")
    A(f"v_and_b32 v{vL}, 63, v0")
    A(f"v_readfirstlane_b32 s{sW}, v{vT}")
    A(f"s_and_b32 s{sT0}, s2, 7")
    A(f"s_lshr_b32 s{sT1}, s2, 3")
    A(f"s_and_b32 s{sCT}, s{sT0}, 1")
    A(f"s_lshl_b32 s{sCT}, s{sCT}, 2")
    A(f"s_and_b32 s{sRT}, s{sT1}, 3")
    A(f"s_add_u32 s{sCT}, s{sCT}, s{sRT}")
    A(f"s_lshr_b32 s{sRT}, s{sT0}, 1")
    A(f"s_lshl_b32 s{sRT}, s{sRT}, 3")
    A(f"s_lshr_b32 s{sT1}, s{sT1}, 2")
    A(f"s_add_u32 s{sRT}, s{sRT}, s{sT1}")
    A(f"s_lshl_b32 s{sLDSW}, s{sW}, 10")
    A(f"s_mul_i32 s{sN0}, s{sCT}, 160")
    A(f"s_lshl_b32 s{sOC}, s{sRT}, 6")
    A(f"s_lshl_b32 s{sT0}, s{sW}, 4")
    A(f"s_add_u32 s{sOC}, s{sOC}, s{sT0}")
    A(f"s_mul_i32 s{sT1}, s{sOC}, 1280")
    A(f"s_add_u32 s{sT1}, s{sT1}, s{sN0}")
    A(f"s_lshl_b32 s{sOC}, s{sOC}, 4")
    A(f"s_add_u32 s{sOC}, s{sOC}, {OC}")
    for t in range(5):
        A(f"v_lshlrev_b32 v{vT}, 4, v{vL}")
        A(f"v_add_u32 v{vT}, s{sLDSW}, v{vT}")
        if t:
            A(f"v_add_u32 v{vT}, {4096*t}, v{vT}")
        A(f"v_mul_u32_u24 v{vT+1}, 52429, v{vT}")
        A(f"v_lshrrev_b32 v{vT+1}, 23, v{vT+1}")
        A(f"v_mul_u32_u24 v{vT+2}, 160, v{vT+1}")
        A(f"v_sub_u32 v{vT+2}, v{vT}, v{vT+2}")
        A(f"v_and_b32 v{vT+3}, 0xffffffe3, v{vT+1}")
        A(f"v_and_b32 v{vT+3}, 0xffffffef, v{vT+3}")
        A(f"v_bfe_u32 v{vT+4}, v{vT+1}, 2, 2")
        A(f"v_lshl_add_u32 v{vT+3}, v{vT+4}, 3, v{vT+3}")
        A(f"v_bfe_u32 v{vT+4}, v{vT+1}, 4, 1")
        A(f"v_lshl_add_u32 v{vT+3}, v{vT+4}, 2, v{vT+3}")
        A(f"v_mul_u32_u24 v{vT+3}, 1280, v{vT+3}")
        A(f"v_add_u32 v{vWA+t}, v{vT+3}, v{vT+2}")
    A(f"v_lshrrev_b32 v{vT}, 4, v{vL}")
    A(f"v_and_b32 v{vT+1}, 15, v{vL}")
    A(f"v_lshlrev_b32 v{vT+2}, 15, v{vT}")
    A(f"v_lshl_add_u32 v{vOC}, v{vT+1}, 4, v{vT+2}")
    A(f"v_mul_u32_u24 v{vT+2}, 1280, v{vT+1}")
    A(f"v_lshl_add_u32 v{vST}, v{vT}, 3, v{vT+2}")
    A(f"v_bfe_u32 v{vT+2}, v{vL}, 2, 2")
    A(f"v_lshl_add_u32 v{vT+2}, v{vT}, 2, v{vT+2}")
    A(f"v_mul_u32_u24 v{vT+2}, 160, v{vT+2}")
    A(f"v_and_b32 v{vT+3}, 3, v{vL}")
    A(f"v_lshl_add_u32 v{vT+2}, v{vT+3}, 3, v{vT+2}")
    for sl in range(NSLOT):
        A(f"v_add_u32 v{vRD+sl}, {sl*STG}, v{vT+2}")
    A("s_waitcnt lgkmcnt(0)")
    srd(A, sWA, 4, WO_BYTES)
    srd(A, sWB, 6, WO_BYTES)
    srd(A, sWS, 32, WS_USED)
    srd(A, sOUT, 34, OUT_BYTES)
    for st in range(AHEAD):
        issue_stage(A, st)
    LOOK = 3
    seq = [(st, ks, nt) for st in range(10) for ks in range(4) for nt in range(5)]

    def rd(i):
        st, ks, nt = seq[i]
        reg = WF + (i % 10) * 4
        for bb in range(2):
            A.lds(f"ds_read_b64_tr_b16 {v(reg + 2*bb,2)}, v{vRD + st % NSLOT} offset:{(32*ks + 16*bb)*160 + nt*32}", ("w", i))

    for i, (st, ks, nt) in enumerate(seq):
        if ks == 0 and nt == 0:
            A.vm_wait(("s", st))
            A("s_barrier")
            if st + AHEAD < 10:
                issue_stage(A, st + AHEAD)
            for k in range(LOOK):
                rd(i + k)
        nxt = i + LOOK
        if nxt < len(seq) and seq[nxt][0] == st:
            rd(nxt)
        A.lds_wait(("w", i))
        reg = WF + (i % 10) * 4
        c = "0" if (st == 0 and ks == 0) else v(ACC + 4*nt, 4)
        A(f"v_mfma_f32_16x16x32_bf16 {v(ACC+4*nt,4)}, {v(reg,4)}, {v(OCF + (st % NSLOT)*16 + 4*ks,4)}, {c}")
    A("s_nop 7")
    A("s_nop 1")
    for nt in range(5):
        A(f"v_cvt_pk_bf16_f32 v{vT}, v{ACC+4*nt}, v{ACC+4*nt+1}".replace(f"v{vT},", f"v{ACC+4*nt},"))
        A(f"v_cvt_pk_bf16_f32 v{ACC+4*nt+1}, v{ACC+4*nt+2}, v{ACC+4*nt+3}")
        A.vm(f"buffer_store_dwordx2 {v(ACC+4*nt,2)}, v{vST}, s[{sOUT}:{sOUT+3}], s{sT1} offen offset:{nt*32}", "st")
    A.label("L_k3_end")
    A("s_endpgm")
    kernel_footer(A, NAME, NV, 64)
    return A.text()

if __name__ == "__main__":
    for b in range(0, 20480, 16):
        assert (b * 52429) >> 23 == b // 160
    print(gen())
```

```python
S, D, H, DH = 2048, 640, 32, 20
HEADB = 81920
REG = 0x280000
QA, KA, VA = 0 * REG, 1 * REG, 2 * REG
QB, KB, VB = 3 * REG, 4 * REG, 5 * REG
OC = 6 * REG
GATE = OC + 160 * 32768
WS_USED = GATE + 2048 * 4
X_BYTES = S * D * 2
W_BYTES = D * 3 * D * 2
WO_BYTES = D * D * 2
OUT_BYTES = S * D * 2
import struct
def f32bits(x):
    return struct.unpack("<I", struct.pack("<f", x))[0]
LOG2E = 1.4426950408889634
QSCALE = DH ** -0.5 * LOG2E
```

```python
import sys
import k1, k2, k3
from layout import *
HDR = open("gated_mix__softmax_full_mha__sliding_local_dilated__prompt.s.ref").read().split("; Override launch")[0]
def build(extra_launches=""):
    out = HDR
    out += f"; @launch kernel={k1.NAME} grid=(256,1,1) block=(512,1,1) lds={k1.LDS_BYTES}\n"
    out += f"; @launch kernel={k2.NAME} grid=(256,1,1) block=(512,1,1) lds={k2.LDS_BYTES}\n"
    out += f"; @launch kernel={k3.NAME} grid=(256,1,1) block=(256,1,1) lds={k3.LDS_BYTES}\n"
    out += extra_launches
    out += '.amdgcn_target "amdgcn-amd-amdhsa--gfx950"\n'
    out += k1.gen() + k2.gen() + k3.gen()
    return out
if __name__ == "__main__":
    path = sys.argv[1] if len(sys.argv) > 1 else "gated_mix__softmax_full_mha__sliding_local_dilated__prompt.s"
    open(path, "w").write(build())
    print("wrote", path)
```

```python
class Asm:
    def __init__(self):
        self.lines = []
        self.lds_q = []
        self.vm_q = []

    def __call__(self, text):
        for ln in text.split("\n"):
            ln = ln.rstrip()
            if ln.strip():
                self.lines.append(ln if ln.endswith(":") or ln.startswith(".") or ln.startswith(";") else "    " + ln.strip())

    prof = False
    PROF_S = 64
    def stamp(self, name=None):
        if not self.prof:
            return
        if not hasattr(self, "stamps"):
            self.stamps = []
        i = len(self.stamps)
        assert i < 16
        self.stamps.append(name or str(i))
        self("s_memtime s[60:61]")
        self("s_memrealtime s[62:63]")
        self.lds_wait_all()
        self(f"s_mov_b32 s{64+i}, s60")
        self(f"s_mov_b32 s{80+i}, s62")

    def stamp_flush(self, kidx, srd_reg, prof_off, tmpv):
        if not self.prof:
            return
        self("s_mov_b64 exec, -1")
        self(f"v_mov_b32 v{tmpv}, 0")
        for i in range(len(self.stamps)):
            self(f"v_writelane_b32 v{tmpv}, s{64+i}, {i}")
            self(f"v_writelane_b32 v{tmpv}, s{80+i}, {16+i}")
        self(f"v_lshrrev_b32 v{tmpv+1}, 6, v0")
        self(f"s_lshl_b32 s60, s2, 4")
        self(f"s_add_u32 s60, s60, {kidx*4096}")
        self(f"v_add_u32 v{tmpv+1}, s60, v{tmpv+1}")
        self(f"v_lshlrev_b32 v{tmpv+1}, 7, v{tmpv+1}")
        self(f"v_and_b32 v{tmpv+2}, 63, v0")
        self(f"v_lshl_add_u32 v{tmpv+1}, v{tmpv+2}, 2, v{tmpv+1}")
        self(f"s_mov_b32 s60, {prof_off}")
        self("s_mov_b32 exec_hi, 0")
        self(f"buffer_store_dword v{tmpv}, v{tmpv+1}, s[{srd_reg}:{srd_reg+3}], s60 offen")
        self("s_mov_b64 exec, -1")

    def label(self, name):
        self.lines.append(name + ":")

    def comment(self, c):
        self.lines.append("    ; " + c)

    def text(self):
        return "\n".join(self.lines) + "\n"

    def lds(self, instr, tag=None):
        self(instr)
        self.lds_q.append(tag)

    def lds_wait(self, *tags):
        idx = -1
        for t in tags:
            if t in self.lds_q:
                idx = max(idx, len(self.lds_q) - 1 - self.lds_q[::-1].index(t))
        if idx < 0:
            return
        n = len(self.lds_q) - 1 - idx
        assert n <= 15, n
        self(f"s_waitcnt lgkmcnt({n})")
        self.lds_q = self.lds_q[idx + 1:]

    def lds_wait_all(self):
        self("s_waitcnt lgkmcnt(0)")
        self.lds_q = []

    def vm(self, instr, tag=None):
        self(instr)
        self.vm_q.append(tag)
        assert len(self.vm_q) <= 63, "vmcnt overflow"

    def vm_wait(self, *tags):
        idx = -1
        for t in tags:
            if t in self.vm_q:
                idx = max(idx, len(self.vm_q) - 1 - self.vm_q[::-1].index(t))
        if idx < 0:
            return
        n = len(self.vm_q) - 1 - idx
        self(f"s_waitcnt vmcnt({n})")
        self.vm_q = self.vm_q[idx + 1:]

    def vm_wait_all(self):
        self("s_waitcnt vmcnt(0)")
        self.vm_q = []


def v(a, n=1):
    return f"v{a}" if n == 1 else f"v[{a}:{a+n-1}]"


def s(a, n=1):
    return f"s{a}" if n == 1 else f"s[{a}:{a+n-1}]"


def srd(A, sreg, ptr_lo, nbytes):
    A(f"s_mov_b32 s{sreg}, s{ptr_lo}")
    A(f"s_and_b32 s{sreg+1}, s{ptr_lo+1}, 0xffff")
    A(f"s_mov_b32 s{sreg+2}, {nbytes}")
    A(f"s_mov_b32 s{sreg+3}, 0x20000")


def kernel_header(A, name):
    A.lines.append(".text")
    A.lines.append(f".globl {name}")
    A.lines.append(".p2align 8")
    A.lines.append(f".type {name},@function")
    A.lines.append(f"{name}:")


def kernel_footer(A, name, nvgpr, nsgpr=96):
    if A.prof:
        nsgpr = 100
    acc = (nvgpr + 3) // 4 * 4
    A.lines += [
        '.section .rodata,"a"',
        ".p2align 6",
        f".amdhsa_kernel {name}",
        f"  .amdhsa_next_free_vgpr {nvgpr}",
        f"  .amdhsa_next_free_sgpr {nsgpr}",
        f"  .amdhsa_accum_offset {acc}",
        "  .amdhsa_group_segment_fixed_size 0",
        "  .amdhsa_kernarg_size 80",
        "  .amdhsa_user_sgpr_count 2",
        "  .amdhsa_user_sgpr_kernarg_segment_ptr 1",
        "  .amdhsa_system_sgpr_workgroup_id_x 1",
        "  .amdhsa_float_denorm_mode_32 3",
        ".end_amdhsa_kernel",
    ]
```

```python
from asmlib import *
from layout import *

NAME = "k1_qkv_kernel"
STAGE = 49152
NST = 3
LDS_BYTES = NST * STAGE
NB = 10

sX, sWA, sWB, sWS = 8, 12, 16, 20
sW, sRB, sCT, sMH, sNQ = 24, 25, 26, 27, 28
sXOFF, sWOFF, sLDSW = 29, 30, 31
sISB, sNH, sCT5 = 32, 33, 34
sT0, sT1, sT2, sT3, sT4, sT5 = 36, 37, 38, 39, 40, 41
sTP = 42
sQS = 43
sB16, sB8 = 44, 45
sHS, sPS, sP2 = 46, 47, 48
sPI = 49
sTSTEP16, sTSTEP8 = 50, 51
sP = 52

vL = 1
vXR = 2
vWR = 10
vXD, vWD = 14, 15
vA16, vA8 = 16, 17
vT = 18
XF = [[28, 32], [36, 40]]
WF = [[44, 48], [52, 56]]
ACC = 60
vP = 124
NV = 132


def acc(mt, nt):
    return ACC + 32 * mt + 16 * nt


def dma_piece(A, b, p):
    st = b % NST
    t = p & 1
    A(f"s_add_u32 m0, s{sLDSW}, {st*STAGE + (p >> 1)*16384 + 8192*t}")
    if p < 2:
        A(f"s_add_u32 s{sT0}, s{sXOFF}, {b*128 + t*81920}")
        A.vm(f"buffer_load_dwordx4 v{vXD}, s[{sX}:{sX+3}], s{sT0} offen lds", ("d", b))
    else:
        sw = sWA if p < 4 else sWB
        A(f"s_add_u32 s{sT0}, s{sWOFF}, {(b*64 + 32*t) * 3840}")
        A.vm(f"buffer_load_dwordx4 v{vWD}, s[{sw}:{sw+3}], s{sT0} offen lds", ("d", b))


def frag_reads(A, b, ks):
    st = b % NST
    hi = 1 if st == 2 else 0
    off = (st % 2) * STAGE if st < 2 else st * STAGE - 65536
    buf = ks & 1
    for mt in range(2):
        A.lds(f"ds_read_b128 {v(XF[buf][mt],4)}, v{vXR + 2*ks + hi} offset:{off + mt*4096}", ("f", b, ks))
    for nt in range(2):
        for q in range(2):
            A.lds(f"ds_read_b64_tr_b16 {v(WF[buf][nt]+2*q,2)}, v{vWR + 2*nt + hi} offset:{off + ks*4096 + q*1024}", ("f", b, ks))


def mfma(A, b, ks, mt, nt, tr):
    buf = ks & 1
    c = "0" if (b == 0 and ks == 0) else v(acc(mt, nt), 16)
    a, bb = (WF[buf][nt], XF[buf][mt]) if tr else (XF[buf][mt], WF[buf][nt])
    A(f"v_mfma_f32_32x32x16_bf16 {v(acc(mt,nt),16)}, {v(a,4)}, {v(bb,4)}, {c}")


def main_loop(A, tr, tag):
    A.vm_q = [("d", 0)] * 6 + [("d", 1)] * 6
    A.vm_wait(("d", 0))
    A("s_barrier")
    A.stamp("blk0 landed " + tag) if tag == "T" else None
    frag_reads(A, 0, 0)
    pend = [(2, p) for p in range(6)]
    for b in range(NB):
        for ks in range(4):
            last = ks == 3
            A.lds_wait(("f", b, ks)) if not last else A.lds_wait_all()
            mfma(A, b, ks, 0, 0, tr)
            if not last:
                frag_reads(A, b, ks + 1)
            mfma(A, b, ks, 0, 1, tr)
            for _ in range(2):
                if pend and not last:
                    dma_piece(A, *pend.pop(0))
            mfma(A, b, ks, 1, 0, tr)
            mfma(A, b, ks, 1, 1, tr)
            if last and b + 1 < NB:
                assert not pend
                A.vm_wait(("d", b + 1))
                A("s_barrier")
                frag_reads(A, b + 1, 0)
                if b + NST < NB:
                    pend = [(b + NST, p) for p in range(6)]


def pack4(A, dst, src, scale):
    if scale:
        A(f"v_pk_mul_f32 {v(src,2)}, {v(src,2)}, v[{vT+2}:{vT+3}]")
        A(f"v_pk_mul_f32 {v(src+2,2)}, {v(src+2,2)}, v[{vT+2}:{vT+3}]")
    A(f"v_cvt_pk_bf16_f32 v{dst}, v{src}, v{src+1}")
    A(f"v_cvt_pk_bf16_f32 v{dst+1}, v{src+2}, v{src+3}")


def epilogue_t(A):
    ws = f"s[{sWS}:{sWS+3}]"
    A(f"s_cmp_lt_u32 s{sCT}, 5")
    A(f"s_cbranch_scc0 L_k1_t_k")
    A(f"s_mov_b32 s{sHS}, {QH}")
    A(f"s_mov_b32 s{sPS}, 32768")
    A(f"s_mov_b32 s{sP2}, 65536")
    A(f"s_mov_b32 s{sQS}, {hex(f32bits(QSCALE))}")
    A(f"s_lshl_b32 s{sB16}, s{sTP}, 4")
    A(f"s_lshl_b32 s{sB8}, s{sTP}, 3")
    A(f"s_mul_i32 s{sT0}, s{sISB}, {QB - QA}")
    A(f"s_add_u32 s{sT0}, s{sT0}, {QA}")
    A(f"s_mov_b32 s{sT1}, 16384")
    A(f"s_mov_b32 s{sT2}, 8192")
    A("s_branch L_k1_t_go")
    A.label("L_k1_t_k")
    A(f"s_mov_b32 s{sHS}, {KVH}")
    A(f"s_mov_b32 s{sPS}, 4096")
    A(f"s_mov_b32 s{sP2}, 8192")
    A(f"s_mov_b32 s{sQS}, 1.0")
    A(f"s_lshr_b32 s{sT0}, s{sTP}, 8")
    A(f"s_mul_i32 s{sT0}, s{sT0}, {CHB}")
    A(f"s_and_b32 s{sT1}, s{sTP}, 255")
    A(f"s_lshl_b32 s{sB16}, s{sT1}, 4")
    A(f"s_add_u32 s{sB16}, s{sB16}, s{sT0}")
    A(f"s_lshl_b32 s{sB8}, s{sT1}, 3")
    A(f"s_add_u32 s{sB8}, s{sB8}, s{sT0}")
    A(f"s_mul_i32 s{sT0}, s{sISB}, {KVB - KVA}")
    A(f"s_add_u32 s{sT0}, s{sT0}, {KVA}")
    A(f"s_mov_b32 s{sT1}, {4*CHB}")
    A(f"s_mov_b32 s{sT2}, {4*CHB}")
    A.label("L_k1_t_go")
    A(f"s_add_u32 s{sB16}, s{sB16}, s{sT0}")
    A(f"s_add_u32 s{sB8}, s{sB8}, s{sT0}")
    A(f"s_add_u32 s{sB8}, s{sB8}, s{sP2}")
    A(f"v_and_b32 v{vT}, 31, v{vL}")
    A(f"v_lshrrev_b32 v{vT+1}, 5, v{vL}")
    A(f"v_and_b32 v{vT+4}, 1, v{vT}")
    A(f"v_lshrrev_b32 v{vT+5}, 1, v{vT}")
    A(f"s_cmp_eq_u32 s{sISB}, 1")
    A(f"s_cselect_b64 s[{sT4}:{sT5}], -1, 0")
    A(f"s_cselect_b32 s{sT1}, s{sT1}, 0")
    A(f"s_cselect_b32 s{sT2}, s{sT2}, 0")
    A(f"s_cselect_b32 s{sT3}, 1, 2")
    A(f"s_lshl_b32 s{sTSTEP16}, s{sT3}, 8")
    A(f"s_lshl_b32 s{sTSTEP8}, s{sT3}, 7")
    A(f"v_cndmask_b32 v{vT+5}, v{vT}, v{vT+5}, s[{sT4}:{sT5}]")
    A(f"v_mul_lo_u32 v{vT+6}, v{vT+4}, s{sT1}")
    A(f"v_lshl_add_u32 v{vT+6}, v{vT+5}, 4, v{vT+6}")
    A(f"v_lshl_add_u32 v{vA16}, v{vT+1}, 3, v{vT+6}")
    A(f"v_mul_lo_u32 v{vT+6}, v{vT+4}, s{sT2}")
    A(f"v_lshl_add_u32 v{vT+6}, v{vT+5}, 3, v{vT+6}")
    A(f"v_mul_lo_u32 v{vT+7}, v{vT+1}, s{sHS}")
    A(f"v_add_u32 v{vA8}, v{vT+6}, v{vT+7}")
    A(f"v_mov_b32 v{vT+2}, s{sQS}")
    A(f"v_mov_b32 v{vT+3}, s{sQS}")
    A(f"s_lshl_b32 s{sPI}, s{sCT5}, 4")
    A(f"s_lshl_b32 s{sT0}, s{sNH}, 3")
    A(f"s_add_u32 s{sPI}, s{sPI}, s{sT0}")
    g = 0
    for nt in range(2):
        for j in range(4):
            A(f"s_add_u32 s{sT0}, s{sPI}, {4*nt + j}")
            A(f"s_mul_hi_u32 s{sT1}, s{sT0}, 0x33333334")
            A(f"s_mul_i32 s{sT2}, s{sT1}, 5")
            A(f"s_sub_u32 s{sT2}, s{sT0}, s{sT2}")
            A(f"s_lshl_b32 s{sT1}, s{sT1}, 1")
            for mt in range(2):
                pack4(A, vP + 4 * (g & 1) + 2 * mt, acc(mt, nt) + 4 * j, True)
            reg = vP + 4 * (g & 1)
            A(f"s_cmp_eq_u32 s{sT2}, 2")
            A(f"s_cbranch_scc1 L_k1_mx{g}")
            A(f"s_cmp_ge_u32 s{sT2}, 3")
            A(f"s_cselect_b32 s{sT3}, 1, 0")
            A(f"s_add_u32 s{sT1}, s{sT1}, s{sT3}")
            A(f"s_mul_i32 s{sT3}, s{sT3}, 3")
            A(f"s_sub_u32 s{sT2}, s{sT2}, s{sT3}")
            A(f"s_mul_i32 s{sT1}, s{sT1}, s{sHS}")
            A(f"s_mul_i32 s{sT2}, s{sT2}, s{sPS}")
            A(f"s_add_u32 s{sT1}, s{sT1}, s{sT2}")
            A(f"s_add_u32 s{sT1}, s{sT1}, s{sB16}")
            A(f"buffer_store_dwordx2 {v(reg,2)}, v{vA16}, {ws}, s{sT1} offen")
            A(f"s_add_u32 s{sT1}, s{sT1}, s{sTSTEP16}")
            A(f"buffer_store_dwordx2 {v(reg+2,2)}, v{vA16}, {ws}, s{sT1} offen")
            A(f"s_branch L_k1_mxd{g}")
            A.label(f"L_k1_mx{g}")
            A(f"s_mul_i32 s{sT1}, s{sT1}, s{sHS}")
            A(f"s_add_u32 s{sT1}, s{sT1}, s{sB8}")
            A(f"buffer_store_dwordx2 {v(reg,2)}, v{vA8}, {ws}, s{sT1} offen")
            A(f"s_add_u32 s{sT1}, s{sT1}, s{sTSTEP8}")
            A(f"buffer_store_dwordx2 {v(reg+2,2)}, v{vA8}, {ws}, s{sT1} offen")
            A.label(f"L_k1_mxd{g}")
            g += 1


def epilogue_n(A):
    ws = f"s[{sWS}:{sWS+3}]"
    A(f"v_and_b32 v{vT}, 31, v{vL}")
    A(f"v_lshrrev_b32 v{vT+1}, 5, v{vL}")
    A(f"v_mul_u32_u24 v{vT+1}, 320, v{vT+1}")
    A(f"s_lshl_b32 s{sT0}, s{sCT5}, 7")
    A(f"s_lshl_b32 s{sT1}, s{sNH}, 6")
    A(f"s_add_u32 s{sT0}, s{sT0}, s{sT1}")
    for nt in range(2):
        A(f"v_add_u32 v{vT+2}, s{sT0}, v{vT}")
        if nt:
            A(f"v_add_u32 v{vT+2}, 32, v{vT+2}")
        A(f"v_mul_u32_u24 v{vT+3}, 3277, v{vT+2}")
        A(f"v_lshrrev_b32 v{vT+3}, 16, v{vT+3}")
        A(f"v_mul_u32_u24 v{vT+4}, 20, v{vT+3}")
        A(f"v_sub_u32 v{vT+4}, v{vT+2}, v{vT+4}")
        A(f"v_mul_u32_u24 v{vT+3}, {KVH}, v{vT+3}")
        A(f"v_lshl_add_u32 v{vT+3}, v{vT+4}, 4, v{vT+3}")
        A(f"v_add_u32 v{vA16+nt}, v{vT+3}, v{vT+1}")
    A(f"s_lshr_b32 s{sT0}, s{sTP}, 8")
    A(f"s_mul_i32 s{sT0}, s{sT0}, {CHB}")
    A(f"s_and_b32 s{sT1}, s{sTP}, 255")
    A(f"s_lshr_b32 s{sT1}, s{sT1}, 4")
    A(f"s_mul_i32 s{sT1}, s{sT1}, 640")
    A(f"s_add_u32 s{sT0}, s{sT0}, s{sT1}")
    A(f"s_mul_i32 s{sT1}, s{sISB}, {KVB - KVA}")
    A(f"s_add_u32 s{sT0}, s{sT0}, s{sT1}")
    A(f"s_add_u32 s{sB16}, s{sT0}, {KVA + 10240}")
    A(f"s_cmp_eq_u32 s{sISB}, 1")
    A("s_cbranch_scc1 L_k1_n_b")
    for mt in range(2):
        for nt in range(2):
            for a in range(2):
                reg = vP + 4 * ((2 * nt + a) & 1)
                src = acc(mt, nt) + 8 * a
                for p in range(4):
                    A(f"v_cvt_pk_bf16_f32 v{reg+p}, v{src+2*p}, v{src+2*p+1}")
                A(f"s_add_u32 s{sT1}, s{sB16}, {(2*mt + a)*640}")
                A(f"buffer_store_dwordx4 {v(reg,4)}, v{vA16+nt}, {ws}, s{sT1} offen")
    A("s_branch L_k1_n_done")
    A.label("L_k1_n_b")
    for mt in range(2):
        for nt in range(2):
            for par in range(2):
                reg = vP + 4 * par
                src = acc(mt, nt)
                for j in range(4):
                    A(f"v_cvt_pk_bf16_f32 v{reg+j}, v{src+4*j+par}, v{src+4*j+par+2}")
                A(f"s_add_u32 s{sT1}, s{sB16}, {mt*640 + par*4*CHB}")
                A(f"buffer_store_dwordx4 {v(reg,4)}, v{vA16+nt}, {ws}, s{sT1} offen")
    A.label("L_k1_n_done")


def spare(A):
    ws = f"s[{sWS}:{sWS+3}]"
    sWO, sG = 12, 16
    A.label("L_k1_spare")
    A("s_load_dwordx2 s[4:5], s[0:1], 16")
    A("s_load_dwordx2 s[6:7], s[0:1], 40")
    A(f"s_load_dwordx2 s[{sP}:{sP+1}], s[0:1], 48")
    A("s_waitcnt lgkmcnt(0)")
    A(f"s_cmp_lt_u32 s{sRB}, 8")
    A("s_cbranch_scc1 L_k1_sp_a")
    A("s_mov_b32 s4, s6")
    A("s_mov_b32 s5, s7")
    A.label("L_k1_sp_a")
    srd(A, sWO, 4, WO_BYTES)
    srd(A, sG, sP, 1280)
    A(f"s_and_b32 s{sT1}, s{sRB}, 7")
    A(f"s_mul_i32 s{sT1}, s{sT1}, {80*1280}")
    A(f"s_add_u32 s{sT1}, s{sT1}, s{sLDSW}")
    A(f"v_lshlrev_b32 v{vT}, 4, v{vL}")
    for t in range(13):
        if t == 12:
            A(f"s_cmp_ge_u32 s{sW}, 4")
            A("s_cbranch_scc1 L_k1_sp_dma_done")
        A(f"s_add_u32 m0, s{sLDSW}, {8192*t}")
        A(f"s_add_u32 s{sT0}, s{sT1}, {8192*t}")
        A(f"buffer_load_dwordx4 v{vT}, s[{sWO}:{sWO+3}], s{sT0} offen lds")
    A.label("L_k1_sp_dma_done")
    XG, GG = 28, 68
    A(f"v_lshrrev_b32 v{vT+1}, 2, v{vL}")
    A(f"s_lshl_b32 s{sT0}, s{sW}, 4")
    A(f"v_add_u32 v{vT+1}, s{sT0}, v{vT+1}")
    A(f"v_and_b32 v{vT+2}, 3, v{vL}")
    A(f"v_lshlrev_b32 v{vT+2}, 4, v{vT+2}")
    A(f"v_mul_u32_u24 v{vT+3}, 1280, v{vT+1}")
    A(f"v_add_u32 v{vT+3}, v{vT+3}, v{vT+2}")
    A(f"v_mov_b32 v{vT+4}, 0")
    for half in range(2):
        for i in range(10):
            A(f"buffer_load_dwordx4 {v(XG+4*i,4)}, v{vT+3}, s[{sX}:{sX+3}], s{sXOFF} offen offset:{(10*half+i)*64}")
            A(f"buffer_load_dwordx4 {v(GG+4*i,4)}, v{vT+2}, s[{sG}:{sG+3}], 0 offen offset:{(10*half+i)*64}")
        A("s_waitcnt vmcnt(0)")
        for i in range(40):
            A(f"v_dot2_f32_bf16 v{vT+4}, v{XG+i}, v{GG+i}, v{vT+4}")
    A("s_nop 2")
    A(f"v_add_f32_dpp v{vT+4}, v{vT+4}, v{vT+4} quad_perm:[1,0,3,2] row_mask:0xf bank_mask:0xf")
    A("s_nop 1")
    A(f"v_add_f32_dpp v{vT+4}, v{vT+4}, v{vT+4} quad_perm:[2,3,0,1] row_mask:0xf bank_mask:0xf")
    A(f"v_mul_f32 v{vT+4}, {hex(f32bits(-LOG2E))}, v{vT+4}")
    A(f"v_exp_f32 v{vT+4}, v{vT+4}")
    A("s_nop 0")
    A(f"v_add_f32 v{vT+4}, 1.0, v{vT+4}")
    A(f"v_rcp_f32 v{vT+4}, v{vT+4}")
    A(f"s_lshl_b32 s{sT0}, s{sRB}, 9")
    A(f"s_add_u32 s{sT0}, s{sT0}, {GATE}")
    A(f"v_lshlrev_b32 v{vT+1}, 2, v{vT+1}")
    A("s_mov_b32 exec_lo, 0x11111111")
    A("s_mov_b32 exec_hi, 0x11111111")
    A(f"buffer_store_dword v{vT+4}, v{vT+1}, {ws}, s{sT0} offen")
    A("s_mov_b64 exec, -1")
    A("s_waitcnt vmcnt(0)")
    A("s_barrier")
    A(f"v_bfe_u32 v{vT+1}, v{vL}, 2, 2")
    A(f"v_mul_u32_u24 v{vT+1}, 1280, v{vT+1}")
    A(f"v_lshrrev_b32 v{vT+2}, 4, v{vL}")
    A(f"v_lshl_add_u32 v{vT+1}, v{vT+2}, 5, v{vT+1}")
    A(f"v_and_b32 v{vT+2}, 3, v{vL}")
    A(f"v_lshl_add_u32 v{vT+1}, v{vT+2}, 3, v{vT+1}")
    A(f"v_lshlrev_b32 v{vT+2}, 4, v{vL}")
    A(f"s_mul_i32 s{sT3}, s{sRB}, {10*10240}")
    A(f"s_add_u32 s{sT3}, s{sT3}, {WOT}")
    A(f"s_mov_b32 s{sT1}, s{sW}")
    A.label("L_k1_sp_loop")
    A(f"s_mul_hi_u32 s{sT2}, s{sT1}, 0x1999999a")
    A(f"s_mul_i32 s{sT0}, s{sT2}, 10")
    A(f"s_sub_u32 s{sT0}, s{sT1}, s{sT0}")
    A(f"s_mul_i32 s{sT4}, s{sT2}, 10240")
    A(f"s_lshl_b32 s{sT5}, s{sT0}, 7")
    A(f"s_add_u32 s{sT4}, s{sT4}, s{sT5}")
    A(f"v_add_u32 v{vT+3}, s{sT4}, v{vT+1}")
    A(f"ds_read_b64_tr_b16 v[{XG}:{XG+1}], v{vT+3}")
    A(f"ds_read_b64_tr_b16 v[{XG+2}:{XG+3}], v{vT+3} offset:5120")
    A(f"s_mul_i32 s{sT4}, s{sT2}, 10240")
    A(f"s_lshl_b32 s{sT5}, s{sT0}, 10")
    A(f"s_add_u32 s{sT4}, s{sT4}, s{sT5}")
    A(f"s_add_u32 s{sT4}, s{sT4}, s{sT3}")
    A("s_waitcnt lgkmcnt(0)")
    A(f"buffer_store_dwordx4 {v(XG,4)}, v{vT+2}, {ws}, s{sT4} offen")
    A(f"s_add_u32 s{sT1}, s{sT1}, 8")
    A(f"s_cmp_lt_u32 s{sT1}, 100")
    A("s_nop 1")
    A("s_cbranch_scc1 L_k1_sp_loop")
    A("s_endpgm")


def gen(prof=False):
    A = Asm()
    A.prof = prof
    kernel_header(A, NAME)
    A("s_cmp_ge_u32 s2, 256")
    A("s_cbranch_scc1 L_k1_end")
    A.stamp("start")
    A("s_load_dwordx4 s[4:7], s[0:1], 0")
    A(f"s_load_dwordx2 s[{sP}:{sP+1}], s[0:1], 32")
    A(f"s_load_dwordx2 s[{sP+2}:{sP+3}], s[0:1], 72")
    A(f"v_lshrrev_b32 v{vT}, 6, v0")
    A(f"v_and_b32 v{vL}, 63, v0")
    A(f"v_readfirstlane_b32 s{sW}, v{vT}")
    A(f"s_and_b32 s{sT0}, s2, 7")
    A(f"s_lshr_b32 s{sT1}, s2, 3")
    A(f"s_and_b32 s{sRB}, s{sT0}, 1")
    A(f"s_lshl_b32 s{sRB}, s{sRB}, 3")
    A(f"s_and_b32 s{sT2}, s{sT1}, 7")
    A(f"s_add_u32 s{sRB}, s{sRB}, s{sT2}")
    A(f"s_lshr_b32 s{sCT}, s{sT0}, 1")
    A(f"s_lshl_b32 s{sCT}, s{sCT}, 2")
    A(f"s_lshr_b32 s{sT2}, s{sT1}, 3")
    A(f"s_add_u32 s{sCT}, s{sCT}, s{sT2}")
    A(f"s_and_b32 s{sMH}, s{sW}, 1")
    A(f"s_lshr_b32 s{sNQ}, s{sW}, 1")
    A(f"s_lshr_b32 s{sISB}, s{sNQ}, 1")
    A(f"s_and_b32 s{sNH}, s{sNQ}, 1")
    A(f"s_mul_i32 s{sXOFF}, s{sRB}, {128*1280}")
    A(f"s_lshl_b32 s{sWOFF}, s{sCT}, 8")
    A(f"s_lshl_b32 s{sLDSW}, s{sW}, 10")
    A(f"s_mul_hi_u32 s{sT0}, s{sCT}, 0x33333334")
    A(f"s_mul_i32 s{sT0}, s{sT0}, 5")
    A(f"s_sub_u32 s{sCT5}, s{sCT}, s{sT0}")
    A(f"s_lshl_b32 s{sTP}, s{sRB}, 7")
    A(f"s_lshl_b32 s{sT0}, s{sMH}, 6")
    A(f"s_add_u32 s{sTP}, s{sTP}, s{sT0}")
    A(f"s_lshr_b32 s{sTP}, s{sTP}, s{sISB}")
    A(f"v_lshrrev_b32 v{vT}, 3, v{vL}")
    A(f"s_lshl_b32 s{sT0}, s{sW}, 3")
    A(f"v_add_u32 v{vT}, s{sT0}, v{vT}")
    A(f"v_lshrrev_b32 v{vT+1}, 1, v{vT}")
    A(f"v_xor_b32 v{vT+1}, v{vT+1}, v{vL}")
    A(f"v_and_b32 v{vT+1}, 7, v{vT+1}")
    A(f"v_lshlrev_b32 v{vT+1}, 4, v{vT+1}")
    A(f"v_mul_u32_u24 v{vT+2}, 1280, v{vT}")
    A(f"v_add_u32 v{vXD}, v{vT+2}, v{vT+1}")
    A(f"v_lshrrev_b32 v{vT}, 4, v{vL}")
    A(f"v_lshlrev_b32 v{vT+1}, 2, v{vT}")
    A(f"v_xor_b32 v{vT+1}, v{vT+1}, v{vL}")
    A(f"v_and_b32 v{vT+1}, 15, v{vT+1}")
    A(f"v_lshlrev_b32 v{vT+1}, 4, v{vT+1}")
    A(f"s_lshl_b32 s{sT0}, s{sW}, 2")
    A(f"v_add_u32 v{vT}, s{sT0}, v{vT}")
    A(f"v_mul_u32_u24 v{vT}, 3840, v{vT}")
    A(f"v_add_u32 v{vWD}, v{vT}, v{vT+1}")
    A("s_waitcnt lgkmcnt(0)")
    srd(A, sX, 4, X_BYTES)
    srd(A, sWA, 6, W_BYTES)
    srd(A, sWB, sP, W_BYTES)
    srd(A, sWS, sP + 2, WS_USED)
    A(f"s_cmp_eq_u32 s{sCT}, 15")
    A("s_cbranch_scc1 L_k1_spare")
    for b in range(2):
        for p in range(6):
            dma_piece(A, b, p)
    A(f"v_and_b32 v{vT}, 31, v{vL}")
    A(f"v_lshrrev_b32 v{vT+1}, 5, v{vL}")
    A(f"v_lshrrev_b32 v{vT+2}, 1, v{vT}")
    A(f"v_and_b32 v{vT+2}, 7, v{vT+2}")
    A(f"v_xor_b32 v{vT+2}, v{vT+2}, v{vT+1}")
    A(f"v_lshlrev_b32 v{vT+2}, 4, v{vT+2}")
    A(f"s_lshl_b32 s{sT0}, s{sMH}, 6")
    A(f"v_add_u32 v{vT+3}, s{sT0}, v{vT}")
    A(f"v_lshl_add_u32 v{vXR}, v{vT+3}, 7, v{vT+2}")
    for ks in range(1, 4):
        A(f"v_xor_b32 v{vXR+2*ks}, {ks*32}, v{vXR}")
    for ks in range(4):
        A(f"v_add_u32 v{vXR+2*ks+1}, 0x10000, v{vXR+2*ks}")
    A(f"v_bfe_u32 v{vT+2}, v{vL}, 2, 2")
    A(f"v_lshl_add_u32 v{vT+3}, v{vT+1}, 3, v{vT+2}")
    A(f"v_lshlrev_b32 v{vT+3}, 8, v{vT+3}")
    A(f"v_bfe_u32 v{vT+4}, v{vL}, 4, 1")
    A(f"v_lshlrev_b32 v{vT+4}, 5, v{vT+4}")
    A(f"v_add_u32 v{vT+3}, v{vT+3}, v{vT+4}")
    A(f"v_and_b32 v{vT+4}, 3, v{vL}")
    A(f"v_lshlrev_b32 v{vT+4}, 3, v{vT+4}")
    A(f"v_add_u32 v{vT+3}, v{vT+3}, v{vT+4}")
    A(f"s_lshl_b32 s{sT1}, s{sISB}, 14")
    A(f"s_add_u32 s{sT1}, s{sT1}, 16384")
    A(f"v_add_u32 v{vT+3}, s{sT1}, v{vT+3}")
    for nt in range(2):
        A(f"s_lshl_b32 s{sT0}, s{sNH}, 1")
        A(f"s_add_u32 s{sT0}, s{sT0}, {nt}")
        A(f"v_xor_b32 v{vT+4}, s{sT0}, v{vT+2}")
        A(f"v_lshl_add_u32 v{vWR+2*nt}, v{vT+4}, 6, v{vT+3}")
        A(f"v_add_u32 v{vWR+2*nt+1}, 0x10000, v{vWR+2*nt}")
    A.stamp("issued")
    A(f"s_cmp_ge_u32 s{sCT}, 10")
    A("s_cbranch_scc1 L_k1_vtile")
    main_loop(A, True, "T")
    A.stamp("gemm")
    A("s_nop 7")
    A("s_nop 7")
    epilogue_t(A)
    A("s_branch L_k1_done")
    A.label("L_k1_vtile")
    ns = len(getattr(A, "stamps", []))
    if prof:
        A.stamps = A.stamps[:ns - 2]
        A.stamp("blk0 landed")
        A.stamps = A.stamps[:ns - 1]
    main_loop(A, False, "N")
    A.stamp("gemm")
    A("s_nop 7")
    A("s_nop 7")
    epilogue_n(A)
    A.label("L_k1_done")
    A.stamp("epi")
    A.stamp_flush(0, sWS, PROF, vT)
    A.label("L_k1_end")
    A("s_endpgm")
    spare(A)
    kernel_footer(A, NAME, NV, 64)
    gen.stamps = getattr(A, "stamps", [])
    return A.text()

if __name__ == "__main__":
    for c in range(640):
        assert (c * 3277) >> 16 == c // 20
    print(gen())
```

```python
from asmlib import *
from layout import *

NAME = "k2_attn_kernel"
EXP = {}
SLOT = CHB
NSLOT = 4
TPC = CH // 32
NCH = S // CH
ONES = NSLOT * SLOT
ONES_BYTES = 10240 + 640
LDS_BYTES = ONES + 12288
BIG = 2.0 ** 64
B_AT = 40
B_LOAD_AT = 32

sWS = 8
sW, sH, sQB = 12, 13, 14
sKV = 15
sLDSW = 16
sSRC = 17
sT0, sT1, sT2, sT3 = 24, 25, 26, 27
sQ0 = 28
sBP = 29
sBT = 30
sQT = 31
sM = 32
sLO20 = 34
sCNT = 36

vL, vR, vHH = 1, 2, 3
vK01 = 4
vK2 = 8
vV = 12
vL16 = 16
vG, vGB = 17, 18
vT = 20
SA, SB = 28, 44
NEGM = 60
O = 76
P = 92
Q01, Q2 = 100, 104
K01, K2 = 108, 112
V0, V1 = 116, 120
BQ01, BQ2 = 124, 128
BK01, BK2 = 132, 136
BKP01, BKP2 = 140, 144
BV0, BV1, BVP = 148, 152, 156
BS0, BS1 = 160, 176
BO = 192
BP = 208
NV = 220


def mf16(A, d, a, b, c):
    A(f"v_mfma_f32_32x32x16_bf16 {v(d,16)}, {v(a,4)}, {v(b,4)}, {c}")


def mf8(A, d, a, b, c):
    A(f"v_mfma_f32_32x32x8_bf16 {v(d,16)}, {v(a,2)}, {v(b,2)}, {c}")


def dma_chunk(A, c):
    slot = c % NSLOT
    for t in range(3):
        A(f"s_add_u32 m0, s{sLDSW}, {slot*SLOT + 1024*t}")
        A(f"s_add_u32 s{sT0}, s{sSRC}, {CHB*c + 1024*t}")
        if t == 2:
            A("s_mov_b32 exec_hi, 0")
        A.vm(f"buffer_load_dwordx4 v{vL16}, s[{sWS}:{sWS+3}], s{sT0} offen lds", ("c", c))
    A("s_mov_b32 exec_hi, -1")


def rd_k01(A, t):
    c, tt = t // TPC, t % TPC
    A.lds(f"ds_read_b128 {v(K01,4)}, v{vK01 + c % NSLOT} offset:{tt*512}", ("k01", t))


def rd_k2(A, t):
    c, tt = t // TPC, t % TPC
    A.lds(f"ds_read_b64 {v(K2,2)}, v{vK2 + c % NSLOT} offset:{8192 + tt*256}", ("k2", t))


def rd_v(A, t, a):
    c, tt = t // TPC, t % TPC
    A.lds(f"ds_read_b128 {v(V1 if a else V0,4)}, v{vV + c % NSLOT} offset:{(2*tt + a)*640}", ("v", t, a))


def exps(A, sreg, g, preg=P):
    if EXP.get("noexp") and preg == P:
        return
    for i in range(4):
        A(f"v_exp_f32 v{sreg+4*g+i}, v{sreg+4*g+i}")
    A(f"v_cvt_pk_bf16_f32 v{preg+2*g}, v{sreg+4*g}, v{sreg+4*g+1}")
    A(f"v_cvt_pk_bf16_f32 v{preg+2*g+1}, v{sreg+4*g+2}, v{sreg+4*g+3}")


def cross_half_max(A, reg, tmp):
    A(f"v_mov_b32 v{tmp}, v{reg}")
    A("s_nop 1")
    A(f"v_permlane32_swap_b32 v{reg}, v{tmp}")
    A("s_nop 1")
    A(f"v_max_f32 v{reg}, v{reg}, v{tmp}")


def max16(A, dst, src, first):
    if first:
        A(f"v_max3_f32 v{dst}, v{src}, v{src+1}, v{src+2}")
        rest = list(range(3, 16))
    else:
        rest = list(range(0, 16))
    while rest:
        if len(rest) >= 2:
            A(f"v_max3_f32 v{dst}, v{dst}, v{src+rest[0]}, v{src+rest[1]}")
            rest = rest[2:]
        else:
            A(f"v_max_f32 v{dst}, v{dst}, v{src+rest[0]}")
            rest = rest[1:]


def finish_tile(A, oreg, gate, one_minus, tok_shift, tok_sreg, chunk0, tag):
    A(f"v_mov_b32 v{vT}, v{oreg+8}")
    A(f"v_mov_b32 v{vT+1}, v{oreg+8}")
    A("s_nop 1")
    A(f"v_permlane32_swap_b32 v{vT}, v{vT+1}")
    A("s_nop 1")
    A(f"v_rcp_f32 v{vT+1}, v{vT+1}")
    if one_minus:
        A(f"v_sub_f32 v{vT}, 1.0, v{gate}")
        A(f"v_mul_f32 v{vT+1}, v{vT+1}, v{vT}")
    else:
        A("s_nop 0")
        A(f"v_mul_f32 v{vT+1}, v{vT+1}, v{gate}")
    for i in range(12):
        A(f"v_mul_f32 v{oreg+i}, v{oreg+i}, v{vT+1}")
    for j in range(3):
        A(f"v_cvt_pk_bf16_f32 v{oreg+4*j}, v{oreg+4*j}, v{oreg+4*j+1}")
        A(f"v_cvt_pk_bf16_f32 v{oreg+4*j+1}, v{oreg+4*j+2}, v{oreg+4*j+3}")
    A(f"s_mul_i32 s{sT0}, s{sH}, 5")
    A(f"v_add_u32 v{vT+2}, s{sT0}, v{vHH}")
    A(f"v_lshrrev_b32 v{vT+3}, 1, v{vT+2}")
    A(f"v_lshlrev_b32 v{vT+3}, 15, v{vT+3}")
    A(f"v_and_b32 v{vT+2}, 1, v{vT+2}")
    A(f"v_lshl_add_u32 v{vT+3}, v{vT+2}, 3, v{vT+3}")
    A(f"v_lshl_add_u32 v{vT+3}, v{vR}, {tok_shift}, v{vT+3}")
    A(f"s_lshl_b32 s{sT0}, s{tok_sreg}, 4")
    A(f"s_add_u32 s{sT0}, s{sT0}, {OC + chunk0*32768}")
    for j in range(3):
        if j == 2:
            A("s_mov_b32 exec_hi, 0")
        A.vm(f"buffer_store_dwordx2 {v(oreg+4*j,2)}, v{vT+3}, s[{sWS}:{sWS+3}], s{sT0} offen", tag)
        if j < 2:
            A(f"s_add_u32 s{sT0}, s{sT0}, 32768")
    A("s_mov_b64 exec, -1")


def keypos(kappa):
    return (kappa & 25) | ((kappa >> 1) & 1) << 2 | ((kappa >> 2) & 1) << 1


def band_mask(j, i, prev):
    m = 0
    for l in range(64):
        q, hh = l & 31, l >> 5
        key = keypos(8 * j + 4 * hh + i) - (32 if prev else 0)
        if 0 <= q - key <= 7:
            m |= 1 << l
    return m


def b_loads(A):
    ws = f"s[{sWS}:{sWS+3}]"
    A(f"v_lshlrev_b32 v{vT}, 15, v{vHH}")
    A(f"v_lshl_add_u32 v{vT}, v{vR}, 4, v{vT}")
    A(f"v_lshlrev_b32 v{vT+1}, 3, v{vR}")
    A(f"v_and_b32 v{vT+2}, 25, v{vR}")
    A(f"v_bfe_u32 v{vT+3}, v{vR}, 1, 1")
    A(f"v_lshl_or_b32 v{vT+2}, v{vT+3}, 2, v{vT+2}")
    A(f"v_bfe_u32 v{vT+3}, v{vR}, 2, 1")
    A(f"v_lshl_or_b32 v{vT+2}, v{vT+3}, 1, v{vT+2}")
    A(f"v_lshlrev_b32 v{vT+3}, 12, v{vHH}")
    A(f"v_lshl_add_u32 v{vT+3}, v{vT+2}, 4, v{vT+3}")
    A(f"v_lshlrev_b32 v{vT+2}, 3, v{vT+2}")
    A(f"v_mul_u32_u24 v{vT+4}, 320, v{vHH}")
    A(f"v_lshl_add_u32 v{vT+4}, v{vR}, 4, v{vT+4}")
    A(f"v_lshlrev_b32 v{vT+5}, 3, v{vR}")
    A(f"v_cmp_eq_u32 vcc, 20, v{vR}")
    A(f"v_mov_b32 v{vT+6}, 0")
    A(f"v_mov_b32 v{vT+7}, 0x3f803f80")
    A(f"v_cndmask_b32 v{vT+6}, v{vT+6}, v{vT+7}, vcc")
    for base in (BV0, BV1, BVP):
        for i in range(4):
            A(f"v_mov_b32 v{base+i}, v{vT+6}")
    A(f"v_mov_b32 v{BQ2}, 0")
    A(f"v_mov_b32 v{BQ2+1}, 0")
    A(f"s_mul_i32 s{sT0}, s{sH}, {QH}")
    A(f"s_lshl_b32 s{sT1}, s{sBP}, 4")
    A(f"s_add_u32 s{sT1}, s{sT1}, s{sT0}")
    A(f"s_add_u32 s{sT1}, s{sT1}, {QB}")
    A.vm(f"buffer_load_dwordx4 {v(BQ01,4)}, v{vT}, {ws}, s{sT1} offen", "b")
    A(f"s_lshl_b32 s{sT1}, s{sBP}, 3")
    A(f"s_add_u32 s{sT1}, s{sT1}, s{sT0}")
    A(f"s_add_u32 s{sT1}, s{sT1}, {QB + 65536}")
    A("s_mov_b32 exec_hi, 0")
    A.vm(f"buffer_load_dwordx2 {v(BQ2,2)}, v{vT+1}, {ws}, s{sT1} offen", "b")
    A("s_mov_b32 exec_hi, -1")

    def tile_base(dst, pos):
        A(f"s_lshr_b32 s{dst}, s{pos}, 8")
        A(f"s_mul_i32 s{dst}, s{dst}, {CHB}")
        A(f"s_add_u32 s{dst}, s{dst}, s{sKV}")
        A(f"s_add_u32 s{dst}, s{dst}, {KVB - KVA}")
        A(f"s_and_b32 s{sT3}, s{pos}, 255")

    for prev in range(2):
        if prev:
            A(f"s_cmp_eq_u32 s{sQT}, 0")
            A(f"s_cselect_b32 s{sT2}, 0, 32")
            A(f"s_sub_u32 s{sT2}, s{sBP}, s{sT2}")
            pos = sT2
        else:
            pos = sBP
        tile_base(sT0, pos)
        A(f"s_lshl_b32 s{sT1}, s{sT3}, 4")
        A(f"s_add_u32 s{sT1}, s{sT1}, s{sT0}")
        A.vm(f"buffer_load_dwordx4 {v(BKP01 if prev else BK01,4)}, v{vT+3}, {ws}, s{sT1} offen", "b")
        A(f"s_lshl_b32 s{sT1}, s{sT3}, 3")
        A(f"s_add_u32 s{sT1}, s{sT1}, s{sT0}")
        A(f"s_add_u32 s{sT1}, s{sT1}, 8192")
        A.vm(f"buffer_load_dwordx2 {v(BKP2 if prev else BK2,2)}, v{vT+2}, {ws}, s{sT1} offen", "b")
        A(f"s_lshr_b32 s{sT1}, s{sT3}, 4")
        A(f"s_mul_i32 s{sT1}, s{sT1}, 640")
        A(f"s_add_u32 s{sT1}, s{sT1}, s{sT0}")
        A(f"s_add_u32 s{sT1}, s{sT1}, 10240")
        A(f"s_mov_b64 exec, s[{sLO20}:{sLO20+1}]")
        if prev:
            A.vm(f"buffer_load_dwordx4 {v(BVP,4)}, v{vT+4}, {ws}, s{sT1} offen offset:640", "b")
        else:
            A.vm(f"buffer_load_dwordx4 {v(BV0,4)}, v{vT+4}, {ws}, s{sT1} offen", "b")
            A.vm(f"buffer_load_dwordx4 {v(BV1,4)}, v{vT+4}, {ws}, s{sT1} offen offset:640", "b")
        A("s_mov_b64 exec, -1")
    A(f"s_lshl_b32 s{sT2}, s{sBT}, 2")
    A(f"s_add_u32 s{sT2}, s{sT2}, {GATE}")
    A.vm(f"buffer_load_dword v{vGB}, v{vT+5}, {ws}, s{sT2} offen", "b")


def b_unit(A):
    S0, S1 = BS0, BS1
    A.vm_wait("b")
    mf16(A, S0, BK01, BQ01, "0")
    mf16(A, S1, BKP01, BQ01, "0")
    mf8(A, S0, BK2, BQ2, v(S0, 16))
    mf8(A, S1, BKP2, BQ2, v(S1, 16))
    A(f"v_mov_b32 v{vT}, {hex(f32bits(-1e30))}")
    A(f"s_cmp_eq_u32 s{sQT}, 0")
    A(f"s_cselect_b32 s{sT3}, 0, -1")
    A("s_nop 7")
    A("s_nop 7")
    for j in range(4):
        for i in range(4):
            m = band_mask(j, i, False)
            A(f"s_mov_b32 s{sM}, {hex(m & 0xffffffff)}")
            A(f"s_mov_b32 s{sM+1}, {hex(m >> 32)}")
            A(f"v_cndmask_b32 v{S0+4*j+i}, v{vT}, v{S0+4*j+i}, s[{sM}:{sM+1}]")
    for j in range(3):
        for i in range(4):
            assert band_mask(j, i, True) == 0
    for i in range(4):
        m = band_mask(3, i, True)
        A(f"s_and_b32 s{sM}, s{sT3}, {hex(m & 0xffffffff)}")
        A(f"s_and_b32 s{sM+1}, s{sT3}, {hex(m >> 32)}")
        A(f"v_cndmask_b32 v{S1+12+i}, v{vT}, v{S1+12+i}, s[{sM}:{sM+1}]")
    max16(A, vT + 1, S0, True)
    A(f"v_max3_f32 v{vT+1}, v{vT+1}, v{S1+12}, v{S1+13}")
    A(f"v_max3_f32 v{vT+1}, v{vT+1}, v{S1+14}, v{S1+15}")
    cross_half_max(A, vT + 1, vT + 2)
    for r in list(range(S0, S0 + 16)) + list(range(S1 + 12, S1 + 16)):
        A(f"v_sub_f32 v{r}, v{r}, v{vT+1}")
    for g in range(4):
        exps(A, S0, g, BP)
    PP = BP + 8
    for i in range(4):
        A(f"v_exp_f32 v{S1+12+i}, v{S1+12+i}")
    A(f"v_mov_b32 v{PP}, 0")
    A(f"v_mov_b32 v{PP+1}, 0")
    A(f"v_cvt_pk_bf16_f32 v{PP+2}, v{S1+12}, v{S1+13}")
    A(f"v_cvt_pk_bf16_f32 v{PP+3}, v{S1+14}, v{S1+15}")
    A("s_nop 1")
    mf16(A, BO, BV0, BP, "0")
    mf16(A, BO, BV1, BP + 4, v(BO, 16))
    mf16(A, BO, BVP, PP, v(BO, 16))
    A("s_nop 7")
    A("s_nop 7")
    finish_tile(A, BO, vGB, True, 5, sBT, 80, "st")


def fallback(A):
    ws = f"s[{sWS}:{sWS+3}]"
    A.label("L_k2_fallback")
    A("s_waitcnt vmcnt(0) lgkmcnt(0)")
    A(f"v_lshlrev_b32 v{vT+4}, 12, v{vHH}")
    A(f"v_lshl_add_u32 v{vT+4}, v{vR}, 4, v{vT+4}")
    A(f"v_lshlrev_b32 v{vT+5}, 3, v{vR}")
    A(f"v_mul_u32_u24 v{vT+6}, 320, v{vHH}")
    A(f"v_lshl_add_u32 v{vT+6}, v{vR}, 4, v{vT+6}")
    A(f"v_mov_b32 v{vT+7}, {hex(f32bits(-3.0e38))}")

    def tile_addr():
        A(f"s_lshr_b32 s{sT0}, s{sCNT}, 3")
        A(f"s_mul_i32 s{sT0}, s{sT0}, {CHB}")
        A(f"s_add_u32 s{sT0}, s{sT0}, s{sKV}")
        A(f"s_and_b32 s{sT3}, s{sCNT}, 7")
        A(f"s_lshl_b32 s{sT1}, s{sT3}, 9")
        A(f"s_add_u32 s{sT1}, s{sT1}, s{sT0}")
        A(f"s_lshl_b32 s{sT2}, s{sT3}, 8")
        A(f"s_add_u32 s{sT2}, s{sT2}, s{sT0}")
        A(f"s_add_u32 s{sT2}, s{sT2}, 8192")
        A(f"s_mul_i32 s{sT3}, s{sT3}, 1280")
        A(f"s_add_u32 s{sT3}, s{sT3}, s{sT0}")
        A(f"s_add_u32 s{sT3}, s{sT3}, 10240")

    A(f"s_mov_b32 s{sCNT}, 0")
    A.label("L_k2_fb1")
    tile_addr()
    A(f"buffer_load_dwordx4 {v(K01,4)}, v{vT+4}, {ws}, s{sT1} offen")
    A(f"buffer_load_dwordx2 {v(K2,2)}, v{vT+5}, {ws}, s{sT2} offen")
    A("s_waitcnt vmcnt(0)")
    mf16(A, SA, K01, Q01, "0")
    mf8(A, SA, K2, Q2, v(SA, 16))
    A("s_nop 7")
    A("s_nop 7")
    max16(A, vT + 7, SA, False)
    A(f"s_add_u32 s{sCNT}, s{sCNT}, 1")
    A(f"s_cmp_lt_u32 s{sCNT}, 64")
    A("s_cbranch_scc1 L_k2_fb1")
    cross_half_max(A, vT + 7, vT)
    for i in range(16):
        A(f"v_sub_f32 v{NEGM+i}, 0, v{vT+7}")
        A(f"v_mov_b32 v{O+i}, 0")
    A(f"v_cmp_eq_u32 vcc, 20, v{vR}")
    A(f"v_mov_b32 v{vT}, 0")
    A(f"v_mov_b32 v{vT+1}, 0x3f803f80")
    A(f"v_cndmask_b32 v{vT}, v{vT}, v{vT+1}, vcc")
    for i in range(4):
        A(f"v_mov_b32 v{V0+i}, v{vT}")
        A(f"v_mov_b32 v{V1+i}, v{vT}")
    A(f"s_mov_b32 s{sCNT}, 0")
    A.label("L_k2_fb2")
    tile_addr()
    A(f"buffer_load_dwordx4 {v(K01,4)}, v{vT+4}, {ws}, s{sT1} offen")
    A(f"buffer_load_dwordx2 {v(K2,2)}, v{vT+5}, {ws}, s{sT2} offen")
    A(f"s_mov_b64 exec, s[{sLO20}:{sLO20+1}]")
    A(f"buffer_load_dwordx4 {v(V0,4)}, v{vT+6}, {ws}, s{sT3} offen")
    A(f"buffer_load_dwordx4 {v(V1,4)}, v{vT+6}, {ws}, s{sT3} offen offset:640")
    A("s_mov_b64 exec, -1")
    A("s_waitcnt vmcnt(0)")
    mf16(A, SA, K01, Q01, v(NEGM, 16))
    mf8(A, SA, K2, Q2, v(SA, 16))
    A("s_nop 7")
    A("s_nop 7")
    for g in range(4):
        exps(A, SA, g)
    A("s_nop 1")
    mf16(A, O, V0, P, v(O, 16))
    mf16(A, O, V1, P + 4, v(O, 16))
    A(f"s_add_u32 s{sCNT}, s{sCNT}, 1")
    A(f"s_cmp_lt_u32 s{sCNT}, 64")
    A("s_cbranch_scc1 L_k2_fb2")
    A("s_nop 7")
    A("s_nop 7")
    A("s_branch L_k2_finish")


def gen(prof=False):
    A = Asm()
    A.prof = prof
    kernel_header(A, NAME)
    A("s_cmp_ge_u32 s2, 256")
    A("s_cbranch_scc1 L_k2_end")
    A.stamp("start")
    A("s_load_dwordx2 s[4:5], s[0:1], 72")
    A(f"v_lshrrev_b32 v{vT}, 6, v0")
    A(f"v_and_b32 v{vL}, 63, v0")
    A(f"v_readfirstlane_b32 s{sW}, v{vT}")
    A(f"v_and_b32 v{vR}, 31, v{vL}")
    A(f"v_lshrrev_b32 v{vHH}, 5, v{vL}")
    A(f"v_lshlrev_b32 v{vL16}, 4, v{vL}")
    A(f"s_and_b32 s{sT0}, s2, 7")
    A(f"s_lshl_b32 s{sT0}, s{sT0}, 2")
    A(f"s_lshr_b32 s{sT1}, s2, 3")
    A(f"s_and_b32 s{sT1}, s{sT1}, 3")
    A(f"s_add_u32 s{sH}, s{sT0}, s{sT1}")
    A(f"s_lshr_b32 s{sQB}, s2, 5")
    A(f"s_mul_i32 s{sKV}, s{sH}, {KVH}")
    A(f"s_add_u32 s{sKV}, s{sKV}, {KVA}")
    A(f"s_mul_i32 s{sLDSW}, s{sW}, 2560")
    A(f"s_add_u32 s{sSRC}, s{sKV}, s{sLDSW}")
    A(f"s_lshl_b32 s{sQ0}, s{sQB}, 8")
    A(f"s_lshl_b32 s{sT0}, s{sW}, 5")
    A(f"s_add_u32 s{sQ0}, s{sQ0}, s{sT0}")
    A(f"v_lshlrev_b32 v{vT}, 15, v{vHH}")
    A(f"v_lshl_add_u32 v{vT}, v{vR}, 4, v{vT}")
    A(f"v_lshlrev_b32 v{vT+1}, 3, v{vR}")
    A(f"v_lshlrev_b32 v{vT+2}, 2, v{vR}")
    A(f"v_mov_b32 v{Q2}, 0")
    A(f"v_mov_b32 v{Q2+1}, 0")
    A(f"s_mul_i32 s{sT1}, s{sH}, {QH}")
    A(f"s_lshl_b32 s{sT2}, s{sQ0}, 4")
    A(f"s_add_u32 s{sT2}, s{sT2}, s{sT1}")
    A(f"s_lshl_b32 s{sT3}, s{sQ0}, 3")
    A(f"s_add_u32 s{sT3}, s{sT3}, s{sT1}")
    A(f"s_add_u32 s{sT3}, s{sT3}, {QA + 65536}")
    A("s_waitcnt lgkmcnt(0)")
    srd(A, sWS, 4, WS_USED)
    ws = f"s[{sWS}:{sWS+3}]"
    dma_chunk(A, 0)
    if QA:
        A(f"s_add_u32 s{sT2}, s{sT2}, {QA}")
    A.vm(f"buffer_load_dwordx4 {v(Q01,4)}, v{vT}, {ws}, s{sT2} offen", "q")
    A("s_mov_b32 exec_hi, 0")
    A.vm(f"buffer_load_dwordx2 {v(Q2,2)}, v{vT+1}, {ws}, s{sT3} offen", "q")
    A("s_mov_b32 exec_hi, -1")
    dma_chunk(A, 1)
    A(f"s_lshl_b32 s{sT2}, s{sQ0}, 2")
    A(f"s_add_u32 s{sT2}, s{sT2}, {GATE}")
    A.vm(f"buffer_load_dword v{vG}, v{vT+2}, {ws}, s{sT2} offen", "g")
    A(f"s_lshl_b32 s{sQT}, s{sQB}, 2")
    A(f"s_lshr_b32 s{sT0}, s{sW}, 1")
    A(f"s_add_u32 s{sQT}, s{sQT}, s{sT0}")
    A(f"s_and_b32 s{sT1}, s{sW}, 1")
    A(f"s_lshl_b32 s{sBP}, s{sT1}, 10")
    A(f"s_lshl_b32 s{sT0}, s{sQT}, 5")
    A(f"s_add_u32 s{sBP}, s{sBP}, s{sT0}")
    A(f"s_lshl_b32 s{sBT}, s{sQT}, 6")
    A(f"s_add_u32 s{sBT}, s{sBT}, s{sT1}")
    A(f"s_mov_b32 s{sLO20}, 0xfffff")
    A(f"s_mov_b32 s{sLO20+1}, 0xfffff")
    A(f"v_lshlrev_b32 v{vT}, 12, v{vHH}")
    A(f"v_lshl_add_u32 v{vT}, v{vR}, 4, v{vT}")
    A(f"v_lshlrev_b32 v{vT+1}, 3, v{vR}")
    A(f"v_mul_u32_u24 v{vT+2}, 320, v{vHH}")
    A(f"v_lshl_add_u32 v{vT+2}, v{vR}, 4, v{vT+2}")
    A(f"v_add_u32 v{vT+3}, {ONES - 320}, v{vT+2}")
    A(f"v_cmp_gt_u32 vcc, 20, v{vR}")
    for sl in range(NSLOT):
        A(f"v_add_u32 v{vK01+sl}, {sl*SLOT}, v{vT}")
        A(f"v_add_u32 v{vK2+sl}, {sl*SLOT}, v{vT+1}")
        A(f"v_add_u32 v{vT+4}, {sl*SLOT + 10240}, v{vT+2}")
        A(f"v_cndmask_b32 v{vV+sl}, v{vT+3}, v{vT+4}, vcc")
    for r in range(2):
        A(f"v_add_u32 v{vT}, {512*r}, v0")
        A(f"v_mul_u32_u24 v{vT+1}, 3277, v{vT}")
        A(f"v_lshrrev_b32 v{vT+1}, 16, v{vT+1}")
        A(f"v_mul_u32_u24 v{vT+1}, 20, v{vT+1}")
        A(f"v_cmp_eq_u32 vcc, v{vT+1}, v{vT}")
        A(f"v_mov_b32 v{vT+4}, 0")
        A(f"v_mov_b32 v{vT+5}, 0x3f803f80")
        A(f"v_cndmask_b32 v{vT+4}, v{vT+4}, v{vT+5}, vcc")
        for i in range(1, 4):
            A(f"v_mov_b32 v{vT+4+i}, v{vT+4}")
        A(f"v_lshlrev_b32 v{vT}, 4, v{vT}")
        A(f"v_add_u32 v{vT}, {ONES}, v{vT}")
        if r == 1:
            A(f"s_cmp_ge_u32 s{sW}, 4")
            A("s_cbranch_scc1 L_k2_pat_done")
        A(f"ds_write_b128 v{vT}, {v(vT+4,4)}")
    A.label("L_k2_pat_done")
    A.stamp("issued")
    A.lds_wait_all()
    A.vm_wait("q")
    A("s_barrier")
    A.stamp("c0 landed")
    rd_k01(A, 0)
    rd_k2(A, 0)
    dma_chunk(A, 2)
    A.lds_wait_all()
    mf16(A, SA, K01, Q01, "0")
    mf8(A, SA, K2, Q2, v(SA, 16))
    dma_chunk(A, 3)
    A("s_nop 7")
    max16(A, vT, SA, True)
    cross_half_max(A, vT, vT + 1)
    for i in range(16):
        A(f"v_sub_f32 v{NEGM+i}, 0, v{vT}")
    A("s_nop 1")
    mf16(A, SA, K01, Q01, v(NEGM, 16))
    mf8(A, SA, K2, Q2, v(SA, 16))
    rd_k01(A, 1)
    rd_k2(A, 1)
    rd_v(A, 0, 0)
    A("s_nop 7")
    A("s_nop 3")
    NT = 64
    for t in range(NT):
        cur = SA if t % 2 == 0 else SB
        nxt = SB if t % 2 == 0 else SA
        if t in (0, 22, 46):
            A.stamp("t%d" % t)
        if t == B_LOAD_AT and not EXP.get("nob"):
            b_loads(A)
        if t == B_AT and not EXP.get("nob"):
            A.stamp("b start")
            b_unit(A)
            A.stamp("b done")
        if t % TPC == TPC - 2 and t + 2 < NT:
            c = (t + 2) // TPC
            A.vm_wait(("c", c))
            A("s_barrier")
            if c >= 2 and c + 2 < NCH:
                dma_chunk(A, c + 2)
        if t + 1 < NT:
            A.lds_wait(("k01", t + 1))
            if not EXP.get("noqk"): mf16(A, nxt, K01, Q01, v(NEGM, 16))
            if t + 2 < NT:
                rd_k01(A, t + 2)
        exps(A, cur, 0)
        if t > 0:
            A.lds_wait(("v", t - 1, 1))
            if not EXP.get("nopv"): mf16(A, O, V1, P + 4, v(O, 16))
        rd_v(A, t, 1)
        exps(A, cur, 1)
        if t + 1 < NT:
            A.lds_wait(("k2", t + 1))
            if not (EXP.get("noqk") or EXP.get("noqk2")): mf8(A, nxt, K2, Q2, v(nxt, 16))
            if t + 2 < NT:
                rd_k2(A, t + 2)
        exps(A, cur, 2)
        A.lds_wait(("v", t, 0))
        if not EXP.get("nopv"): mf16(A, O, V0, P, "0" if t == 0 else v(O, 16))
        if t + 1 < NT:
            rd_v(A, t + 1, 0)
        exps(A, cur, 3)
    A.lds_wait(("v", NT - 1, 1))
    A("s_nop 1")
    mf16(A, O, V1, P + 4, v(O, 16))
    A("s_nop 7")
    A("s_nop 7")
    A.stamp("loop end")
    A(f"v_mov_b32 v{vT}, v{O+8}")
    A(f"v_mov_b32 v{vT+1}, v{O+8}")
    A(f"v_mul_f32 v{vT+2}, 0, v{O}")
    A("s_nop 0")
    A(f"v_permlane32_swap_b32 v{vT}, v{vT+1}")
    for i in range(1, 12):
        A(f"v_fma_f32 v{vT+2}, v{O+i}, 0, v{vT+2}")
    A(f"v_mov_b32 v{vT+3}, {hex(f32bits(BIG))}")
    A(f"v_add_f32 v{vT+2}, v{vT+2}, v{vT+1}")
    A(f"v_cmp_lt_f32 vcc, v{vT+2}, v{vT+3}")
    A("s_nop 4")
    A("s_cmp_eq_u64 vcc, exec")
    A("s_cbranch_scc0 L_k2_fallback")
    A.label("L_k2_finish")
    A.vm_wait("g")
    finish_tile(A, O, vG, False, 4, sQ0, 0, "st")
    A.stamp("end")
    A.stamp_flush(1, sWS, PROF, vT)
    A("s_endpgm")
    fallback(A)
    A.label("L_k2_end")
    A("s_endpgm")
    kernel_footer(A, NAME, NV, 64)
    gen.stamps = getattr(A, "stamps", [])
    return A.text()

if __name__ == "__main__":
    print(gen())
```

```python
from asmlib import *
from layout import *

NAME = "k3_out_kernel"
EXP = {}
STG = 20480
NSLOT = 3
NSTG = 5
LDS_BYTES = NSLOT * 2 * STG

sWS, sOUT = 8, 12
sW, sRT, sCT, sPART, sTG = 16, 17, 18, 19, 20
sLDSW, sT0, sT1, sOC, sWSRC, sOUTO = 21, 22, 23, 24, 25, 26
vL = 1
vWA = 2
vOC = 7
vRD = 8
vST = 11
vRED = 12
vT = 16
ACC = 24
WF = 44
OCF = 76
NV = OCF + NSLOT * 16


def issue_stage(A, st):
    slot = st % NSLOT
    for t in range(5):
        A(f"s_add_u32 m0, s{sLDSW}, {slot*2*STG + 4096*t}")
        A(f"s_add_u32 s{sT0}, s{sWSRC}, {st * 16 * 10240}")
        A.vm(f"buffer_load_dwordx4 v{vWA+t}, s[{sWS}:{sWS+3}], s{sT0} offen lds", ("s", st))
    for ks in range(4):
        A(f"s_add_u32 s{sT0}, s{sOC}, {(4*st + ks) * 131072}")
        A.vm(f"buffer_load_dwordx4 {v(OCF + slot*16 + 4*ks,4)}, v{vOC}, s[{sWS}:{sWS+3}], s{sT0} offen", ("s", st))


def gen(prof=False):
    A = Asm()
    A.prof = prof
    kernel_header(A, NAME)
    A("s_cmp_ge_u32 s2, 256")
    A("s_cbranch_scc1 L_k3_end")
    A.stamp("start")
    A("s_load_dwordx2 s[4:5], s[0:1], 72")
    A("s_load_dwordx2 s[6:7], s[0:1], 56")
    A(f"v_lshrrev_b32 v{vT}, 6, v0")
    A(f"v_and_b32 v{vL}, 63, v0")
    A(f"v_readfirstlane_b32 s{sW}, v{vT}")
    A(f"s_and_b32 s{sT0}, s2, 7")
    A(f"s_lshr_b32 s{sT1}, s2, 3")
    A(f"s_and_b32 s{sCT}, s{sT0}, 1")
    A(f"s_lshl_b32 s{sCT}, s{sCT}, 2")
    A(f"s_and_b32 s{sRT}, s{sT1}, 3")
    A(f"s_add_u32 s{sCT}, s{sCT}, s{sRT}")
    A(f"s_lshr_b32 s{sRT}, s{sT0}, 1")
    A(f"s_lshl_b32 s{sRT}, s{sRT}, 3")
    A(f"s_lshr_b32 s{sT1}, s{sT1}, 2")
    A(f"s_add_u32 s{sRT}, s{sRT}, s{sT1}")
    A(f"s_lshr_b32 s{sPART}, s{sW}, 2")
    A(f"s_and_b32 s{sTG}, s{sW}, 3")
    A(f"s_mul_i32 s{sLDSW}, s{sPART}, {STG}")
    A(f"s_lshl_b32 s{sT0}, s{sTG}, 10")
    A(f"s_add_u32 s{sLDSW}, s{sLDSW}, s{sT0}")
    A(f"s_mul_i32 s{sWSRC}, s{sPART}, {80*10240}")
    A(f"s_mul_i32 s{sT0}, s{sCT}, 1280")
    A(f"s_add_u32 s{sWSRC}, s{sWSRC}, s{sT0}")
    A(f"s_add_u32 s{sWSRC}, s{sWSRC}, {WOT}")
    A(f"s_lshl_b32 s{sOC}, s{sRT}, 6")
    A(f"s_lshl_b32 s{sT0}, s{sTG}, 4")
    A(f"s_add_u32 s{sOC}, s{sOC}, s{sT0}")
    A(f"s_mul_i32 s{sOUTO}, s{sOC}, 1280")
    A(f"s_mul_i32 s{sT0}, s{sCT}, 160")
    A(f"s_add_u32 s{sOUTO}, s{sOUTO}, s{sT0}")
    A(f"s_lshl_b32 s{sOC}, s{sOC}, 4")
    A(f"s_mul_i32 s{sT0}, s{sPART}, {80*32768}")
    A(f"s_add_u32 s{sOC}, s{sOC}, s{sT0}")
    A(f"s_add_u32 s{sOC}, s{sOC}, {OC}")
    A(f"s_lshl_b32 s{sT1}, s{sTG}, 10")
    for t in range(5):
        A(f"v_lshlrev_b32 v{vT}, 4, v{vL}")
        A(f"v_add_u32 v{vT}, s{sT1}, v{vT}")
        if t:
            A(f"v_add_u32 v{vT}, {4096*t}, v{vT}")
        A(f"v_lshrrev_b32 v{vT+1}, 8, v{vT}")
        A(f"v_mul_u32_u24 v{vT+1}, 52429, v{vT+1}")
        A(f"v_lshrrev_b32 v{vT+1}, 18, v{vT+1}")
        A(f"v_mul_u32_u24 v{vT+2}, 1280, v{vT+1}")
        A(f"v_sub_u32 v{vT+2}, v{vT}, v{vT+2}")
        A(f"v_mul_u32_u24 v{vT+1}, 10240, v{vT+1}")
        A(f"v_add_u32 v{vWA+t}, v{vT+1}, v{vT+2}")
    A(f"v_lshrrev_b32 v{vT}, 4, v{vL}")
    A(f"v_and_b32 v{vT+1}, 15, v{vL}")
    A(f"v_lshlrev_b32 v{vT+2}, 15, v{vT}")
    A(f"v_lshl_add_u32 v{vOC}, v{vT+1}, 4, v{vT+2}")
    A("s_waitcnt lgkmcnt(0)")
    srd(A, sWS, 4, WS_USED)
    srd(A, sOUT, 6, OUT_BYTES)
    issue_stage(A, 0)
    issue_stage(A, 1)
    A(f"v_mul_u32_u24 v{vT+2}, 1280, v{vT+1}")
    A(f"v_lshl_add_u32 v{vST}, v{vT}, 3, v{vT+2}")
    A(f"v_mul_u32_u24 v{vT+2}, 1280, v{vT}")
    A(f"v_lshl_add_u32 v{vT+2}, v{vT+1}, 4, v{vT+2}")
    A(f"s_mul_i32 s{sT0}, s{sPART}, {STG}")
    A(f"v_add_u32 v{vT+2}, s{sT0}, v{vT+2}")
    for sl in range(NSLOT):
        A(f"v_add_u32 v{vRD+sl}, {sl*2*STG}, v{vT+2}")
    A(f"s_mul_i32 s{sT0}, s{sTG}, 5120")
    A(f"v_lshlrev_b32 v{vRED}, 4, v{vL}")
    A(f"v_add_u32 v{vRED}, s{sT0}, v{vRED}")
    A.stamp("issued")
    LOOK = 4
    seq = [(st, ks, nt) for st in range(NSTG) for ks in range(4) for nt in range(5)]

    def rd(i):
        st, ks, nt = seq[i]
        A.lds(f"ds_read_b128 {v(WF + (i % 8)*4,4)}, v{vRD + st % NSLOT} offset:{ks*4*1280 + nt*256}", ("w", i))

    for i, (st, ks, nt) in enumerate(seq):
        if ks == 0 and nt == 0:
            A.vm_wait(("s", st))
            A("s_barrier")
            if st in (0, 2, 4):
                A.stamp("st%d" % st)
            for k in range(LOOK):
                rd(i + k)
            if st + 2 < NSTG:
                issue_stage(A, st + 2)
        nxt = i + LOOK
        if nxt < len(seq) and seq[nxt][0] == st:
            rd(nxt)
        A.lds_wait(("w", i))
        c = "0" if (st == 0 and ks == 0) else v(ACC + 4*nt, 4)
        A(f"v_mfma_f32_16x16x32_bf16 {v(ACC+4*nt,4)}, {v(WF + (i % 8)*4,4)}, {v(OCF + (st % NSLOT)*16 + 4*ks,4)}, {c}")
    A.stamp("loop end")
    A("s_barrier")
    A(f"s_cmp_eq_u32 s{sPART}, 0")
    A("s_cbranch_scc1 L_k3_a")
    A("s_nop 7")
    for nt in range(5):
        A(f"ds_write_b128 v{vRED}, {v(ACC+4*nt,4)} offset:{nt*1024}")
    A("s_waitcnt lgkmcnt(0)")
    A("s_barrier")
    A("s_endpgm")
    A.label("L_k3_a")
    A("s_barrier")
    for nt in range(5):
        A.lds(f"ds_read_b128 {v(WF+4*nt,4)}, v{vRED} offset:{nt*1024}", ("r", nt))
    for nt in range(5):
        A.lds_wait(("r", nt))
        for i in range(4):
            A(f"v_add_f32 v{ACC+4*nt+i}, v{ACC+4*nt+i}, v{WF+4*nt+i}")
        A(f"v_cvt_pk_bf16_f32 v{ACC+4*nt}, v{ACC+4*nt}, v{ACC+4*nt+1}")
        A(f"v_cvt_pk_bf16_f32 v{ACC+4*nt+1}, v{ACC+4*nt+2}, v{ACC+4*nt+3}")
        A.vm(f"buffer_store_dwordx2 {v(ACC+4*nt,2)}, v{vST}, s[{sOUT}:{sOUT+3}], s{sOUTO} offen offset:{nt*32}", "st")
    A.stamp("end")
    A.stamp_flush(2, sWS, PROF, vT)
    A.label("L_k3_end")
    A("s_endpgm")
    kernel_footer(A, NAME, NV, 64)
    gen.stamps = getattr(A, "stamps", [])
    return A.text()

if __name__ == "__main__":
    for b in range(0, 20480, 16):
        assert ((b >> 8) * 52429) >> 18 == b // 1280
    print(gen())
```

```python
import struct
S, D, H, DH = 2048, 640, 32, 20
QH = 81920
KVH = 163840
CH = 256
CHB = CH * 80
QA = 0
QB = QA + H * QH
KVA = QB + H * QH
KVB = KVA + H * KVH
OC = KVB + H * KVH
WOT = OC + 160 * 32768
GATE = WOT + 160 * 10240
FLAGA = GATE + 2048 * 4
FLAGB = FLAGA + 8192
F1A = FLAGB + 8192
F1B = F1A + 1024
PROF = F1B + 1024
WS_USED = PROF + 3 * 4096 * 128
X_BYTES = S * D * 2
W_BYTES = D * 3 * D * 2
WO_BYTES = D * D * 2
OUT_BYTES = S * D * 2
def f32bits(x):
    return struct.unpack("<I", struct.pack("<f", x))[0]
LOG2E = 1.4426950408889634
QSCALE = DH ** -0.5 * LOG2E
```

```python
import sys
import k1, k2, k3
from layout import *
HDR = open("gated_mix__softmax_full_mha__sliding_local_dilated__prompt.s.ref").read().split("; Override launch")[0]
def build(extra_launches="", prof=False):
    out = HDR
    out += f"; @launch kernel={k1.NAME} grid=(256,1,1) block=(512,1,1) lds={k1.LDS_BYTES}\n"
    out += f"; @launch kernel={k2.NAME} grid=(256,1,1) block=(512,1,1) lds={k2.LDS_BYTES}\n"
    out += f"; @launch kernel={k3.NAME} grid=(256,1,1) block=(512,1,1) lds={k3.LDS_BYTES}\n"
    out += extra_launches
    out += '.amdgcn_target "amdgcn-amd-amdhsa--gfx950"\n'
    out += k1.gen(prof) + k2.gen(prof) + k3.gen(prof)
    return out
if __name__ == "__main__":
    path = sys.argv[1] if len(sys.argv) > 1 else "gated_mix__softmax_full_mha__sliding_local_dilated__prompt.s"
    prof = "--prof" in sys.argv
    for a in sys.argv:
        if a.startswith("--exp="):
            for kv in a[6:].split(","):
                k2.EXP[kv] = True
    open(path, "w").write(build(prof=prof))
    if prof:
        import json
        json.dump([k1.gen.stamps, k2.gen.stamps, k3.gen.stamps], open(path + ".stamps.json", "w"))
    print("wrote", path)
```

```python
from asmlib import *
from layout import *

NAME = "k1_qkv_kernel"
EXP = {}
def stf():
    return EXP.get("st", " sc1")
STAGE = 49152
NST = 3
LDS_BYTES = NST * STAGE
NB = 10

sX, sWA, sWB, sWS = 8, 12, 16, 20
sW, sRB, sCT, sMH, sNQ = 24, 25, 26, 27, 28
sXOFF, sWOFF, sLDSW = 29, 30, 31
sISB, sNH, sCT5 = 32, 33, 34
sT0, sT1, sT2, sT3, sT4, sT5 = 36, 37, 38, 39, 40, 41
sTP = 42
sQS = 43
sB16, sB8 = 44, 45
sHS, sPS, sP2 = 46, 47, 48
sPI = 49
sTSTEP16, sTSTEP8 = 50, 51
sP = 52

vL = 1
vXR = 2
vWR = 10
vXD, vWD = 14, 15
vA16, vA8 = 16, 17
vT = 18
XF = [[28, 32], [36, 40]]
WF = [[44, 48], [52, 56]]
ACC = 60
vP = 124
NV = 132


def acc(mt, nt):
    return ACC + 32 * mt + 16 * nt


def dma_piece(A, b, p):
    st = b % NST
    t = p & 1
    A(f"s_add_u32 m0, s{sLDSW}, {st*STAGE + (p >> 1)*16384 + 8192*t}")
    if p < 2:
        A(f"s_add_u32 s{sT0}, s{sXOFF}, {b*128 + t*81920}")
        A.vm(f"buffer_load_dwordx4 v{vXD}, s[{sX}:{sX+3}], s{sT0} offen lds", ("d", b))
    else:
        sw = sWA if p < 4 else sWB
        A(f"s_add_u32 s{sT0}, s{sWOFF}, {(b*64 + 32*t) * 3840}")
        A.vm(f"buffer_load_dwordx4 v{vWD}, s[{sw}:{sw+3}], s{sT0} offen lds", ("d", b))


def frag_reads(A, b, ks):
    st = b % NST
    hi = 1 if st == 2 else 0
    off = (st % 2) * STAGE if st < 2 else st * STAGE - 65536
    buf = ks & 1
    for mt in range(2):
        A.lds(f"ds_read_b128 {v(XF[buf][mt],4)}, v{vXR + 2*ks + hi} offset:{off + mt*4096}", ("f", b, ks))
    for nt in range(2):
        for q in range(2):
            A.lds(f"ds_read_b64_tr_b16 {v(WF[buf][nt]+2*q,2)}, v{vWR + 2*nt + hi} offset:{off + ks*4096 + q*1024}", ("f", b, ks))


def mfma(A, b, ks, mt, nt, tr):
    buf = ks & 1
    c = "0" if (b == 0 and ks == 0) else v(acc(mt, nt), 16)
    a, bb = (WF[buf][nt], XF[buf][mt]) if tr else (XF[buf][mt], WF[buf][nt])
    if EXP.get("m16"):
        for h in range(2):
            r = acc(mt, nt) + 8 * (ks & 1) + 4 * h
            cc = "0" if (b == 0 and ks < 2) else v(r, 4)
            A(f"v_mfma_f32_16x16x32_bf16 {v(r,4)}, {v(a,4)}, {v(bb,4)}, {cc}")
        return
    A(f"v_mfma_f32_32x32x16_bf16 {v(acc(mt,nt),16)}, {v(a,4)}, {v(bb,4)}, {c}")


def main_loop(A, tr, tag):
    A.vm_q = [("d", 0)] * 6 + [("d", 1)] * 6
    A.vm_wait(("d", 0))
    A("s_barrier")
    A.stamp("blk0 landed " + tag) if tag == "T" else None
    frag_reads(A, 0, 0)
    pend = [(2, p) for p in range(6)]
    for b in range(NB):
        for ks in range(4):
            last = ks == 3
            A.lds_wait(("f", b, ks)) if not last else A.lds_wait_all()
            mfma(A, b, ks, 0, 0, tr)
            if not last:
                frag_reads(A, b, ks + 1)
            mfma(A, b, ks, 0, 1, tr)
            for _ in range(2):
                if pend and not last:
                    dma_piece(A, *pend.pop(0))
            mfma(A, b, ks, 1, 0, tr)
            mfma(A, b, ks, 1, 1, tr)
            if last and b + 1 < NB:
                assert not pend
                A.vm_wait(("d", b + 1))
                A("s_barrier")
                frag_reads(A, b + 1, 0)
                if b + NST < NB:
                    pend = [(b + NST, p) for p in range(6)]


def pack4(A, dst, src, scale):
    if scale:
        A(f"v_pk_mul_f32 {v(src,2)}, {v(src,2)}, v[{vT+2}:{vT+3}]")
        A(f"v_pk_mul_f32 {v(src+2,2)}, {v(src+2,2)}, v[{vT+2}:{vT+3}]")
    A(f"v_cvt_pk_bf16_f32 v{dst}, v{src}, v{src+1}")
    A(f"v_cvt_pk_bf16_f32 v{dst+1}, v{src+2}, v{src+3}")


def epilogue_t(A):
    ws = f"s[{sWS}:{sWS+3}]"
    A(f"s_cmp_lt_u32 s{sCT}, 5")
    A(f"s_cbranch_scc0 L_k1_t_k")
    A(f"s_mov_b32 s{sHS}, {QH}")
    A(f"s_mov_b32 s{sPS}, 32768")
    A(f"s_mov_b32 s{sP2}, 65536")
    A(f"s_mov_b32 s{sQS}, {hex(f32bits(QSCALE))}")
    A(f"s_lshl_b32 s{sB16}, s{sTP}, 4")
    A(f"s_lshl_b32 s{sB8}, s{sTP}, 3")
    A(f"s_mul_i32 s{sT0}, s{sISB}, {QB - QA}")
    A(f"s_add_u32 s{sT0}, s{sT0}, {QA}")
    A(f"s_mov_b32 s{sT1}, 16384")
    A(f"s_mov_b32 s{sT2}, 8192")
    A("s_branch L_k1_t_go")
    A.label("L_k1_t_k")
    A(f"s_mov_b32 s{sHS}, {KVH}")
    A(f"s_mov_b32 s{sPS}, 4096")
    A(f"s_mov_b32 s{sP2}, 8192")
    A(f"s_mov_b32 s{sQS}, 1.0")
    A(f"s_lshr_b32 s{sT0}, s{sTP}, 8")
    A(f"s_mul_i32 s{sT0}, s{sT0}, {CHB}")
    A(f"s_and_b32 s{sT1}, s{sTP}, 255")
    A(f"s_lshl_b32 s{sB16}, s{sT1}, 4")
    A(f"s_add_u32 s{sB16}, s{sB16}, s{sT0}")
    A(f"s_lshl_b32 s{sB8}, s{sT1}, 3")
    A(f"s_add_u32 s{sB8}, s{sB8}, s{sT0}")
    A(f"s_mul_i32 s{sT0}, s{sISB}, {KVB - KVA}")
    A(f"s_add_u32 s{sT0}, s{sT0}, {KVA}")
    A(f"s_mov_b32 s{sT1}, {4*CHB}")
    A(f"s_mov_b32 s{sT2}, {4*CHB}")
    A.label("L_k1_t_go")
    A(f"s_add_u32 s{sB16}, s{sB16}, s{sT0}")
    A(f"s_add_u32 s{sB8}, s{sB8}, s{sT0}")
    A(f"s_add_u32 s{sB8}, s{sB8}, s{sP2}")
    A(f"v_and_b32 v{vT}, 31, v{vL}")
    A(f"v_lshrrev_b32 v{vT+1}, 5, v{vL}")
    A(f"v_and_b32 v{vT+4}, 1, v{vT}")
    A(f"v_lshrrev_b32 v{vT+5}, 1, v{vT}")
    A(f"s_cmp_eq_u32 s{sISB}, 1")
    A(f"s_cselect_b64 s[{sT4}:{sT5}], -1, 0")
    A(f"s_cselect_b32 s{sT1}, s{sT1}, 0")
    A(f"s_cselect_b32 s{sT2}, s{sT2}, 0")
    A(f"s_cselect_b32 s{sT3}, 1, 2")
    A(f"s_lshl_b32 s{sTSTEP16}, s{sT3}, 8")
    A(f"s_lshl_b32 s{sTSTEP8}, s{sT3}, 7")
    A(f"v_cndmask_b32 v{vT+5}, v{vT}, v{vT+5}, s[{sT4}:{sT5}]")
    A(f"v_mul_lo_u32 v{vT+6}, v{vT+4}, s{sT1}")
    A(f"v_lshl_add_u32 v{vT+6}, v{vT+5}, 4, v{vT+6}")
    A(f"v_lshl_add_u32 v{vA16}, v{vT+1}, 3, v{vT+6}")
    A(f"v_mul_lo_u32 v{vT+6}, v{vT+4}, s{sT2}")
    A(f"v_lshl_add_u32 v{vT+6}, v{vT+5}, 3, v{vT+6}")
    A(f"v_mul_lo_u32 v{vT+7}, v{vT+1}, s{sHS}")
    A(f"v_add_u32 v{vA8}, v{vT+6}, v{vT+7}")
    A(f"v_mov_b32 v{vT+2}, s{sQS}")
    A(f"v_mov_b32 v{vT+3}, s{sQS}")
    A(f"s_lshl_b32 s{sPI}, s{sCT5}, 4")
    A(f"s_lshl_b32 s{sT0}, s{sNH}, 3")
    A(f"s_add_u32 s{sPI}, s{sPI}, s{sT0}")
    g = 0
    for nt in range(2):
        for j in range(4):
            A(f"s_add_u32 s{sT0}, s{sPI}, {4*nt + j}")
            A(f"s_mul_hi_u32 s{sT1}, s{sT0}, 0x33333334")
            A(f"s_mul_i32 s{sT2}, s{sT1}, 5")
            A(f"s_sub_u32 s{sT2}, s{sT0}, s{sT2}")
            A(f"s_lshl_b32 s{sT1}, s{sT1}, 1")
            for mt in range(2):
                pack4(A, vP + 4 * (g & 1) + 2 * mt, acc(mt, nt) + 4 * j, True)
            reg = vP + 4 * (g & 1)
            A(f"s_cmp_eq_u32 s{sT2}, 2")
            A(f"s_cbranch_scc1 L_k1_mx{g}")
            A(f"s_cmp_ge_u32 s{sT2}, 3")
            A(f"s_cselect_b32 s{sT3}, 1, 0")
            A(f"s_add_u32 s{sT1}, s{sT1}, s{sT3}")
            A(f"s_mul_i32 s{sT3}, s{sT3}, 3")
            A(f"s_sub_u32 s{sT2}, s{sT2}, s{sT3}")
            A(f"s_mul_i32 s{sT1}, s{sT1}, s{sHS}")
            A(f"s_mul_i32 s{sT2}, s{sT2}, s{sPS}")
            A(f"s_add_u32 s{sT1}, s{sT1}, s{sT2}")
            A(f"s_add_u32 s{sT1}, s{sT1}, s{sB16}")
            A(f"buffer_store_dwordx2 {v(reg,2)}, v{vA16}, {ws}, s{sT1} offen{stf()}")
            A(f"s_add_u32 s{sT1}, s{sT1}, s{sTSTEP16}")
            A(f"buffer_store_dwordx2 {v(reg+2,2)}, v{vA16}, {ws}, s{sT1} offen{stf()}")
            A(f"s_branch L_k1_mxd{g}")
            A.label(f"L_k1_mx{g}")
            A(f"s_mul_i32 s{sT1}, s{sT1}, s{sHS}")
            A(f"s_add_u32 s{sT1}, s{sT1}, s{sB8}")
            A(f"buffer_store_dwordx2 {v(reg,2)}, v{vA8}, {ws}, s{sT1} offen{stf()}")
            A(f"s_add_u32 s{sT1}, s{sT1}, s{sTSTEP8}")
            A(f"buffer_store_dwordx2 {v(reg+2,2)}, v{vA8}, {ws}, s{sT1} offen{stf()}")
            A.label(f"L_k1_mxd{g}")
            g += 1


def epilogue_n(A):
    ws = f"s[{sWS}:{sWS+3}]"
    A(f"v_and_b32 v{vT}, 31, v{vL}")
    A(f"v_lshrrev_b32 v{vT+1}, 5, v{vL}")
    A(f"v_mul_u32_u24 v{vT+1}, 320, v{vT+1}")
    A(f"s_lshl_b32 s{sT0}, s{sCT5}, 7")
    A(f"s_lshl_b32 s{sT1}, s{sNH}, 6")
    A(f"s_add_u32 s{sT0}, s{sT0}, s{sT1}")
    for nt in range(2):
        A(f"v_add_u32 v{vT+2}, s{sT0}, v{vT}")
        if nt:
            A(f"v_add_u32 v{vT+2}, 32, v{vT+2}")
        A(f"v_mul_u32_u24 v{vT+3}, 3277, v{vT+2}")
        A(f"v_lshrrev_b32 v{vT+3}, 16, v{vT+3}")
        A(f"v_mul_u32_u24 v{vT+4}, 20, v{vT+3}")
        A(f"v_sub_u32 v{vT+4}, v{vT+2}, v{vT+4}")
        A(f"v_mul_u32_u24 v{vT+3}, {KVH}, v{vT+3}")
        A(f"v_lshl_add_u32 v{vT+3}, v{vT+4}, 4, v{vT+3}")
        A(f"v_add_u32 v{vA16+nt}, v{vT+3}, v{vT+1}")
    A(f"s_lshr_b32 s{sT0}, s{sTP}, 8")
    A(f"s_mul_i32 s{sT0}, s{sT0}, {CHB}")
    A(f"s_and_b32 s{sT1}, s{sTP}, 255")
    A(f"s_lshr_b32 s{sT1}, s{sT1}, 4")
    A(f"s_mul_i32 s{sT1}, s{sT1}, 640")
    A(f"s_add_u32 s{sT0}, s{sT0}, s{sT1}")
    A(f"s_mul_i32 s{sT1}, s{sISB}, {KVB - KVA}")
    A(f"s_add_u32 s{sT0}, s{sT0}, s{sT1}")
    A(f"s_add_u32 s{sB16}, s{sT0}, {KVA + 10240}")
    A(f"s_cmp_eq_u32 s{sISB}, 1")
    A("s_cbranch_scc1 L_k1_n_b")
    for mt in range(2):
        for nt in range(2):
            for a in range(2):
                reg = vP + 4 * ((2 * nt + a) & 1)
                src = acc(mt, nt) + 8 * a
                for p in range(4):
                    A(f"v_cvt_pk_bf16_f32 v{reg+p}, v{src+2*p}, v{src+2*p+1}")
                A(f"s_add_u32 s{sT1}, s{sB16}, {(2*mt + a)*640}")
                A(f"buffer_store_dwordx4 {v(reg,4)}, v{vA16+nt}, {ws}, s{sT1} offen{stf()}")
    A("s_branch L_k1_n_done")
    A.label("L_k1_n_b")
    for mt in range(2):
        for nt in range(2):
            for par in range(2):
                reg = vP + 4 * par
                src = acc(mt, nt)
                for j in range(4):
                    A(f"v_cvt_pk_bf16_f32 v{reg+j}, v{src+4*j+par}, v{src+4*j+par+2}")
                A(f"s_add_u32 s{sT1}, s{sB16}, {mt*640 + par*4*CHB}")
                A(f"buffer_store_dwordx4 {v(reg,4)}, v{vA16+nt}, {ws}, s{sT1} offen{stf()}")
    A.label("L_k1_n_done")


def spare(A):
    ws = f"s[{sWS}:{sWS+3}]"
    sWO, sG = 12, 16
    A.label("L_k1_spare")
    A("s_load_dwordx2 s[4:5], s[0:1], 16")
    A("s_load_dwordx2 s[6:7], s[0:1], 40")
    A(f"s_load_dwordx2 s[{sP}:{sP+1}], s[0:1], 48")
    A("s_waitcnt lgkmcnt(0)")
    A(f"s_cmp_lt_u32 s{sRB}, 8")
    A("s_cbranch_scc1 L_k1_sp_a")
    A("s_mov_b32 s4, s6")
    A("s_mov_b32 s5, s7")
    A.label("L_k1_sp_a")
    srd(A, sWO, 4, WO_BYTES)
    srd(A, sG, sP, 1280)
    A(f"s_cmp_lg_u32 s{sW}, 0")
    A("s_cbranch_scc1 L_k1_sp_noz")
    for i in range(4):
        A(f"v_mov_b32 v{28+i}, 0")
    A(f"v_lshlrev_b32 v{vT}, 4, v{vL}")
    A(f"s_lshl_b32 s{sT0}, s{sRB}, 10")
    A(f"s_add_u32 s{sT0}, s{sT0}, {FLAGA}")
    A(f"buffer_store_dwordx4 v[28:31], v{vT}, {ws}, s{sT0} offen")
    A.label("L_k1_sp_noz")
    A(f"s_and_b32 s{sT1}, s{sRB}, 7")
    A(f"s_mul_i32 s{sT1}, s{sT1}, {80*1280}")
    A(f"s_add_u32 s{sT1}, s{sT1}, s{sLDSW}")
    A(f"v_lshlrev_b32 v{vT}, 4, v{vL}")
    for t in range(13):
        if t == 12:
            A(f"s_cmp_ge_u32 s{sW}, 4")
            A("s_cbranch_scc1 L_k1_sp_dma_done")
        A(f"s_add_u32 m0, s{sLDSW}, {8192*t}")
        A(f"s_add_u32 s{sT0}, s{sT1}, {8192*t}")
        A(f"buffer_load_dwordx4 v{vT}, s[{sWO}:{sWO+3}], s{sT0} offen lds")
    A.label("L_k1_sp_dma_done")
    XG, GG = 28, 68
    A(f"v_lshrrev_b32 v{vT+1}, 2, v{vL}")
    A(f"s_lshl_b32 s{sT0}, s{sW}, 4")
    A(f"v_add_u32 v{vT+1}, s{sT0}, v{vT+1}")
    A(f"v_and_b32 v{vT+2}, 3, v{vL}")
    A(f"v_lshlrev_b32 v{vT+2}, 4, v{vT+2}")
    A(f"v_mul_u32_u24 v{vT+3}, 1280, v{vT+1}")
    A(f"v_add_u32 v{vT+3}, v{vT+3}, v{vT+2}")
    A(f"v_mov_b32 v{vT+4}, 0")
    for half in range(2):
        for i in range(10):
            A(f"buffer_load_dwordx4 {v(XG+4*i,4)}, v{vT+3}, s[{sX}:{sX+3}], s{sXOFF} offen offset:{(10*half+i)*64}")
            A(f"buffer_load_dwordx4 {v(GG+4*i,4)}, v{vT+2}, s[{sG}:{sG+3}], 0 offen offset:{(10*half+i)*64}")
        A("s_waitcnt vmcnt(0)")
        for i in range(40):
            A(f"v_dot2_f32_bf16 v{vT+4}, v{XG+i}, v{GG+i}, v{vT+4}")
    A("s_nop 2")
    A(f"v_add_f32_dpp v{vT+4}, v{vT+4}, v{vT+4} quad_perm:[1,0,3,2] row_mask:0xf bank_mask:0xf")
    A("s_nop 1")
    A(f"v_add_f32_dpp v{vT+4}, v{vT+4}, v{vT+4} quad_perm:[2,3,0,1] row_mask:0xf bank_mask:0xf")
    A(f"v_mul_f32 v{vT+4}, {hex(f32bits(-LOG2E))}, v{vT+4}")
    A(f"v_exp_f32 v{vT+4}, v{vT+4}")
    A("s_nop 0")
    A(f"v_add_f32 v{vT+4}, 1.0, v{vT+4}")
    A(f"v_rcp_f32 v{vT+4}, v{vT+4}")
    A(f"s_lshl_b32 s{sT0}, s{sRB}, 9")
    A(f"s_add_u32 s{sT0}, s{sT0}, {GATE}")
    A(f"v_lshlrev_b32 v{vT+1}, 2, v{vT+1}")
    A("s_mov_b32 exec_lo, 0x11111111")
    A("s_mov_b32 exec_hi, 0x11111111")
    A(f"buffer_store_dword v{vT+4}, v{vT+1}, {ws}, s{sT0} offen")
    A("s_mov_b64 exec, -1")
    A("s_waitcnt vmcnt(0)")
    A("s_barrier")
    A(f"v_bfe_u32 v{vT+1}, v{vL}, 2, 2")
    A(f"v_mul_u32_u24 v{vT+1}, 1280, v{vT+1}")
    A(f"v_lshrrev_b32 v{vT+2}, 4, v{vL}")
    A(f"v_lshl_add_u32 v{vT+1}, v{vT+2}, 5, v{vT+1}")
    A(f"v_and_b32 v{vT+2}, 3, v{vL}")
    A(f"v_lshl_add_u32 v{vT+1}, v{vT+2}, 3, v{vT+1}")
    A(f"v_lshlrev_b32 v{vT+2}, 4, v{vL}")
    A(f"s_mul_i32 s{sT3}, s{sRB}, {10*10240}")
    A(f"s_add_u32 s{sT3}, s{sT3}, {WOT}")
    A(f"s_mov_b32 s{sT1}, s{sW}")
    A.label("L_k1_sp_loop")
    A(f"s_mul_hi_u32 s{sT2}, s{sT1}, 0x1999999a")
    A(f"s_mul_i32 s{sT0}, s{sT2}, 10")
    A(f"s_sub_u32 s{sT0}, s{sT1}, s{sT0}")
    A(f"s_mul_i32 s{sT4}, s{sT2}, 10240")
    A(f"s_lshl_b32 s{sT5}, s{sT0}, 7")
    A(f"s_add_u32 s{sT4}, s{sT4}, s{sT5}")
    A(f"v_add_u32 v{vT+3}, s{sT4}, v{vT+1}")
    A(f"ds_read_b64_tr_b16 v[{XG}:{XG+1}], v{vT+3}")
    A(f"ds_read_b64_tr_b16 v[{XG+2}:{XG+3}], v{vT+3} offset:5120")
    A(f"s_mul_i32 s{sT4}, s{sT2}, 10240")
    A(f"s_lshl_b32 s{sT5}, s{sT0}, 10")
    A(f"s_add_u32 s{sT4}, s{sT4}, s{sT5}")
    A(f"s_add_u32 s{sT4}, s{sT4}, s{sT3}")
    A("s_waitcnt lgkmcnt(0)")
    A(f"buffer_store_dwordx4 {v(XG,4)}, v{vT+2}, {ws}, s{sT4} offen")
    A(f"s_add_u32 s{sT1}, s{sT1}, 8")
    A(f"s_cmp_lt_u32 s{sT1}, 100")
    A("s_nop 1")
    A("s_cbranch_scc1 L_k1_sp_loop")
    A("s_endpgm")


def gen(prof=False):
    A = Asm()
    A.prof = prof
    kernel_header(A, NAME)
    A("s_cmp_ge_u32 s2, 256")
    A("s_cbranch_scc1 L_k1_end")
    A.stamp("start")
    A("s_load_dwordx4 s[4:7], s[0:1], 0")
    A(f"s_load_dwordx2 s[{sP}:{sP+1}], s[0:1], 32")
    A(f"s_load_dwordx2 s[{sP+2}:{sP+3}], s[0:1], 72")
    A(f"v_lshrrev_b32 v{vT}, 6, v0")
    A(f"v_and_b32 v{vL}, 63, v0")
    A(f"v_readfirstlane_b32 s{sW}, v{vT}")
    if not EXP.get("nopf"):
        prefetch_code(A, NAME, EXP.get("pfend", "L_k1_code_end"), 56, vP, sW)
    A(f"s_and_b32 s{sT0}, s2, 7")
    A(f"s_lshr_b32 s{sT1}, s2, 3")
    A(f"s_and_b32 s{sRB}, s{sT0}, 1")
    A(f"s_lshl_b32 s{sRB}, s{sRB}, 3")
    A(f"s_and_b32 s{sT2}, s{sT1}, 7")
    A(f"s_add_u32 s{sRB}, s{sRB}, s{sT2}")
    A(f"s_lshr_b32 s{sCT}, s{sT0}, 1")
    A(f"s_lshl_b32 s{sCT}, s{sCT}, 2")
    A(f"s_lshr_b32 s{sT2}, s{sT1}, 3")
    A(f"s_add_u32 s{sCT}, s{sCT}, s{sT2}")
    A(f"s_and_b32 s{sMH}, s{sW}, 1")
    A(f"s_lshr_b32 s{sNQ}, s{sW}, 1")
    A(f"s_lshr_b32 s{sISB}, s{sNQ}, 1")
    A(f"s_and_b32 s{sNH}, s{sNQ}, 1")
    A(f"s_mul_i32 s{sXOFF}, s{sRB}, {128*1280}")
    A(f"s_lshl_b32 s{sWOFF}, s{sCT}, 8")
    A(f"s_lshl_b32 s{sLDSW}, s{sW}, 10")
    A(f"s_mul_hi_u32 s{sT0}, s{sCT}, 0x33333334")
    A(f"s_mul_i32 s{sT0}, s{sT0}, 5")
    A(f"s_sub_u32 s{sCT5}, s{sCT}, s{sT0}")
    A(f"s_lshl_b32 s{sTP}, s{sRB}, 7")
    A(f"s_lshl_b32 s{sT0}, s{sMH}, 6")
    A(f"s_add_u32 s{sTP}, s{sTP}, s{sT0}")
    A(f"s_lshr_b32 s{sTP}, s{sTP}, s{sISB}")
    A(f"v_lshrrev_b32 v{vT}, 3, v{vL}")
    A(f"s_lshl_b32 s{sT0}, s{sW}, 3")
    A(f"v_add_u32 v{vT}, s{sT0}, v{vT}")
    A(f"v_lshrrev_b32 v{vT+1}, 1, v{vT}")
    A(f"v_xor_b32 v{vT+1}, v{vT+1}, v{vL}")
    A(f"v_and_b32 v{vT+1}, 7, v{vT+1}")
    A(f"v_lshlrev_b32 v{vT+1}, 4, v{vT+1}")
    A(f"v_mul_u32_u24 v{vT+2}, 1280, v{vT}")
    A(f"v_add_u32 v{vXD}, v{vT+2}, v{vT+1}")
    A(f"v_lshrrev_b32 v{vT}, 4, v{vL}")
    A(f"v_lshlrev_b32 v{vT+1}, 2, v{vT}")
    A(f"v_xor_b32 v{vT+1}, v{vT+1}, v{vL}")
    A(f"v_and_b32 v{vT+1}, 15, v{vT+1}")
    A(f"v_lshlrev_b32 v{vT+1}, 4, v{vT+1}")
    A(f"s_lshl_b32 s{sT0}, s{sW}, 2")
    A(f"v_add_u32 v{vT}, s{sT0}, v{vT}")
    A(f"v_mul_u32_u24 v{vT}, 3840, v{vT}")
    A(f"v_add_u32 v{vWD}, v{vT}, v{vT+1}")
    A("s_waitcnt lgkmcnt(0)")
    srd(A, sX, 4, X_BYTES)
    srd(A, sWA, 6, W_BYTES)
    srd(A, sWB, sP, W_BYTES)
    srd(A, sWS, sP + 2, WS_USED)
    A(f"s_cmp_eq_u32 s{sCT}, 15")
    A("s_cbranch_scc1 L_k1_spare")
    for b in range(2):
        for p in range(6):
            dma_piece(A, b, p)
    A(f"v_and_b32 v{vT}, 31, v{vL}")
    A(f"v_lshrrev_b32 v{vT+1}, 5, v{vL}")
    A(f"v_lshrrev_b32 v{vT+2}, 1, v{vT}")
    A(f"v_and_b32 v{vT+2}, 7, v{vT+2}")
    A(f"v_xor_b32 v{vT+2}, v{vT+2}, v{vT+1}")
    A(f"v_lshlrev_b32 v{vT+2}, 4, v{vT+2}")
    A(f"s_lshl_b32 s{sT0}, s{sMH}, 6")
    A(f"v_add_u32 v{vT+3}, s{sT0}, v{vT}")
    A(f"v_lshl_add_u32 v{vXR}, v{vT+3}, 7, v{vT+2}")
    for ks in range(1, 4):
        A(f"v_xor_b32 v{vXR+2*ks}, {ks*32}, v{vXR}")
    for ks in range(4):
        A(f"v_add_u32 v{vXR+2*ks+1}, 0x10000, v{vXR+2*ks}")
    A(f"v_bfe_u32 v{vT+2}, v{vL}, 2, 2")
    A(f"v_lshl_add_u32 v{vT+3}, v{vT+1}, 3, v{vT+2}")
    A(f"v_lshlrev_b32 v{vT+3}, 8, v{vT+3}")
    A(f"v_bfe_u32 v{vT+4}, v{vL}, 4, 1")
    A(f"v_lshlrev_b32 v{vT+4}, 5, v{vT+4}")
    A(f"v_add_u32 v{vT+3}, v{vT+3}, v{vT+4}")
    A(f"v_and_b32 v{vT+4}, 3, v{vL}")
    A(f"v_lshlrev_b32 v{vT+4}, 3, v{vT+4}")
    A(f"v_add_u32 v{vT+3}, v{vT+3}, v{vT+4}")
    A(f"s_lshl_b32 s{sT1}, s{sISB}, 14")
    A(f"s_add_u32 s{sT1}, s{sT1}, 16384")
    A(f"v_add_u32 v{vT+3}, s{sT1}, v{vT+3}")
    for nt in range(2):
        A(f"s_lshl_b32 s{sT0}, s{sNH}, 1")
        A(f"s_add_u32 s{sT0}, s{sT0}, {nt}")
        A(f"v_xor_b32 v{vT+4}, s{sT0}, v{vT+2}")
        A(f"v_lshl_add_u32 v{vWR+2*nt}, v{vT+4}, 6, v{vT+3}")
        A(f"v_add_u32 v{vWR+2*nt+1}, 0x10000, v{vWR+2*nt}")
    A.stamp("issued")
    A(f"s_cmp_ge_u32 s{sCT}, 10")
    A("s_cbranch_scc1 L_k1_vtile")
    main_loop(A, True, "T")
    A.stamp("gemm")
    A("s_nop 7")
    A("s_nop 7")
    epilogue_t(A)
    A("s_branch L_k1_done")
    A.label("L_k1_vtile")
    ns = len(getattr(A, "stamps", []))
    if prof:
        A.stamps = A.stamps[:ns - 2]
        A.stamp("blk0 landed")
        A.stamps = A.stamps[:ns - 1]
    main_loop(A, False, "N")
    A.stamp("gemm")
    A("s_nop 7")
    A("s_nop 7")
    epilogue_n(A)
    A.label("L_k1_done")
    A.stamp("epi")
    A.stamp_flush(0, sWS, PROF, vT)
    A.label("L_k1_end")
    A("s_endpgm")
    spare(A)
    A.label("L_k1_code_end")
    kernel_footer(A, NAME, NV, 64)
    gen.stamps = getattr(A, "stamps", [])
    return A.text()

if __name__ == "__main__":
    for c in range(640):
        assert (c * 3277) >> 16 == c // 20
    print(gen())
```

```python
from asmlib import *
from layout import *

NAME = "k2_attn_out_kernel"
EXP = {}
SLOT = CHB
NSLOT = 4
TPC = CH // 32
NCH = S // CH
ONES = 4 * SLOT
LDS_BYTES = 8 * SLOT
WB_SLOT = [5, 6, 7, 0, 1]
WA_SLOT = [2, 3, 4, 5, 6]
BIG = 2.0 ** 64
B_LOAD_AT, B_AT, B_PUB_AT = 6, 14, 22
FB_LOAD_AT, FB_CHECK_AT = 44, 48
SPIN_MAX = 1 << 16

sWS = 8
sW, sH, sQB = 12, 13, 14
sKV = 15
sLDSW = 16
sSRC = 17
sWSRC = 18
sOCB = 19
sFLG = 20
sPUB = 21
sOUTO = 22
sKG = 23
sT0, sT1, sT2, sT3 = 24, 25, 26, 27
sQ0 = 28
sBT = 30
sQT = 31
sM = 32
sLO20 = 34
sCNT = 36
sBA = 40
sOUT = 52

vL, vR, vHH = 1, 2, 3
vK01 = 4
vK2 = 8
vV = 12
vL16 = 16
vG, vGB = 17, 18
vFL = 19
vT = 20
SA, SB = 28, 44
NEGM = 60
O = 76
P = 92
Q01, Q2 = 100, 104
K01, K2 = 108, 112
V0, V1 = 116, 120
BQ01, BQ2 = 124, 128
BK01, BK2 = 132, 136
BKP01, BKP2 = 140, 144
BV0, BV1, BVP = 148, 152, 156
BS0, BS1 = 160, 176
BO = 192
BP = 208
vBA = 220
vW0, vW1, vW2 = 225, 226, 227
vOC = 228
vWR = 229
vST = 230
vFA = 231
OCB = 124
OCA = 164
ACC = 204
WF = 28
NV = 232


def mf16(A, d, a, b, c):
    A(f"v_mfma_f32_32x32x16_bf16 {v(d,16)}, {v(a,4)}, {v(b,4)}, {c}")


def mf8(A, d, a, b, c):
    A(f"v_mfma_f32_32x32x8_bf16 {v(d,16)}, {v(a,2)}, {v(b,2)}, {c}")


WS = f"s[{sWS}:{sWS+3}]"


def dma_chunk(A, c):
    slot = c % NSLOT
    for t in range(3):
        A(f"s_add_u32 m0, s{sLDSW}, {slot*SLOT + 1024*t}")
        A(f"s_add_u32 s{sT0}, s{sSRC}, {CHB*c + 1024*t}")
        if t == 2:
            A("s_mov_b32 exec_hi, 0")
        A.vm(f"buffer_load_dwordx4 v{vL16}, {WS}, s{sT0} offen lds", ("c", c))
    A("s_mov_b32 exec_hi, -1")


def dma_w(A, part, st):
    slot = (WA_SLOT if part == 0 else WB_SLOT)[st]
    A(f"s_add_u32 s{sT0}, s{sWSRC}, {(part*80 + 16*st)*10240}")
    for t, vo in enumerate((vW0, vW1, vW2)):
        A(f"s_add_u32 m0, s{sLDSW}, {slot*SLOT + 1024*t}")
        if t == 2:
            A("s_mov_b32 exec_hi, 0")
        else:
            A("s_nop 0")
        A.vm(f"buffer_load_dwordx4 v{vo}, {WS}, s{sT0} offen lds", ("w", part, st))
    A("s_mov_b32 exec_hi, -1")


def rd_k01(A, t):
    c, tt = t // TPC, t % TPC
    A.lds(f"ds_read_b128 {v(K01,4)}, v{vK01 + c % NSLOT} offset:{tt*512}", ("k01", t))


def rd_k2(A, t):
    c, tt = t // TPC, t % TPC
    A.lds(f"ds_read_b64 {v(K2,2)}, v{vK2 + c % NSLOT} offset:{8192 + tt*256}", ("k2", t))


def rd_v(A, t, a):
    c, tt = t // TPC, t % TPC
    A.lds(f"ds_read_b128 {v(V1 if a else V0,4)}, v{vV + c % NSLOT} offset:{(2*tt + a)*640}", ("v", t, a))


def exps(A, sreg, g, preg=P):
    for i in range(4):
        A(f"v_exp_f32 v{sreg+4*g+i}, v{sreg+4*g+i}")
    A(f"v_cvt_pk_bf16_f32 v{preg+2*g}, v{sreg+4*g}, v{sreg+4*g+1}")
    A(f"v_cvt_pk_bf16_f32 v{preg+2*g+1}, v{sreg+4*g+2}, v{sreg+4*g+3}")


def cross_half_max(A, reg, tmp):
    A(f"v_mov_b32 v{tmp}, v{reg}")
    A("s_nop 1")
    A(f"v_permlane32_swap_b32 v{reg}, v{tmp}")
    A("s_nop 1")
    A(f"v_max_f32 v{reg}, v{reg}, v{tmp}")


def max16(A, dst, src, first):
    if first:
        A(f"v_max3_f32 v{dst}, v{src}, v{src+1}, v{src+2}")
        rest = list(range(3, 16))
    else:
        rest = list(range(0, 16))
    while rest:
        if len(rest) >= 2:
            A(f"v_max3_f32 v{dst}, v{dst}, v{src+rest[0]}, v{src+rest[1]}")
            rest = rest[2:]
        else:
            A(f"v_max_f32 v{dst}, v{dst}, v{src+rest[0]}")
            rest = rest[1:]


def finish_tile(A, oreg, gate, one_minus, tok_shift, tok_sreg, chunk0, tag):
    A(f"v_mov_b32 v{vT}, v{oreg+8}")
    A(f"v_mov_b32 v{vT+1}, v{oreg+8}")
    A("s_nop 1")
    A(f"v_permlane32_swap_b32 v{vT}, v{vT+1}")
    A("s_nop 1")
    A(f"v_rcp_f32 v{vT+1}, v{vT+1}")
    if one_minus:
        A(f"v_sub_f32 v{vT}, 1.0, v{gate}")
        A(f"v_mul_f32 v{vT+1}, v{vT+1}, v{vT}")
    else:
        A("s_nop 0")
        A(f"v_mul_f32 v{vT+1}, v{vT+1}, v{gate}")
    A(f"s_mul_i32 s{sT0}, s{sH}, 5")
    A(f"v_add_u32 v{vT+2}, s{sT0}, v{vHH}")
    A(f"v_lshrrev_b32 v{vT+3}, 1, v{vT+2}")
    A(f"v_lshlrev_b32 v{vT+3}, 15, v{vT+3}")
    A(f"v_and_b32 v{vT+2}, 1, v{vT+2}")
    A(f"v_lshl_add_u32 v{vT+3}, v{vT+2}, 3, v{vT+3}")
    A(f"v_lshl_add_u32 v{vT+3}, v{vR}, {tok_shift}, v{vT+3}")
    A(f"s_lshl_b32 s{sT0}, s{tok_sreg}, 4")
    A(f"s_add_u32 s{sT0}, s{sT0}, {OC + chunk0*32768}")
    for j in range(3):
        for i in range(0, 4, 2):
            A(f"v_mul_f32 v{oreg+4*j+i}, v{oreg+4*j+i}, v{vT+1}")
            A(f"v_mul_f32 v{oreg+4*j+i+1}, v{oreg+4*j+i+1}, v{vT+1}")
        A(f"v_cvt_pk_bf16_f32 v{oreg+4*j}, v{oreg+4*j}, v{oreg+4*j+1}")
        A(f"v_cvt_pk_bf16_f32 v{oreg+4*j+1}, v{oreg+4*j+2}, v{oreg+4*j+3}")
        if j == 2:
            A("s_mov_b32 exec_hi, 0")
        A.vm(f"buffer_store_dwordx2 {v(oreg+4*j,2)}, v{vT+3}, {WS}, s{sT0} offen sc1", tag)
        if j < 2:
            A(f"s_add_u32 s{sT0}, s{sT0}, 32768")
    A("s_mov_b64 exec, -1")


def publish(A, base, tag):
    A.vm_wait(tag)
    A(f"v_mov_b32 v{vT}, 1")
    A(f"v_mov_b32 v{vT+1}, 0")
    A(f"s_add_u32 s{sT0}, s{sPUB}, {base}")
    A("s_mov_b64 exec, 1")
    A.vm(f"buffer_store_dword v{vT}, v{vT+1}, {WS}, s{sT0} offen sc1", "pub")
    A("s_mov_b64 exec, -1")


def poll_issue(A, base, tag):
    A(f"s_add_u32 s{sT0}, s{sFLG}, {base}")
    A.vm(f"buffer_load_dword v{vFL}, v{vFA}, {WS}, s{sT0} offen sc1", tag)


def poll_check(A, base, tag, name):
    A.vm_wait(tag)
    A(f"v_cmp_eq_u32 vcc, 1, v{vFL}")
    A(f"s_mov_b32 s{sCNT}, 0")
    A("s_nop 3")
    A("s_cmp_eq_u64 vcc, exec")
    A(f"s_cbranch_scc1 L_{name}_ok")
    A.label(f"L_{name}_spin")
    A("s_sleep 1")
    A(f"s_add_u32 s{sT0}, s{sFLG}, {base}")
    A(f"buffer_load_dword v{vFL}, v{vFA}, {WS}, s{sT0} offen sc1")
    A(f"s_add_u32 s{sCNT}, s{sCNT}, 1")
    A("s_waitcnt vmcnt(0)")
    A(f"v_cmp_eq_u32 vcc, 1, v{vFL}")
    A(f"s_cmp_ge_u32 s{sCNT}, {SPIN_MAX}")
    A(f"s_cbranch_scc1 L_{name}_ok")
    A("s_nop 2")
    A("s_cmp_eq_u64 vcc, exec")
    A(f"s_cbranch_scc0 L_{name}_spin")
    A.label(f"L_{name}_ok")


def oc_loads(A, part):
    reg = OCA if part == 0 else OCB
    for k in range(10):
        A(f"s_add_u32 s{sT0}, s{sOCB}, {(part*80 + 4*k)*32768}")
        A.vm(f"buffer_load_dwordx4 {v(reg+4*k,4)}, v{vOC}, {WS}, s{sT0} offen sc1", ("oc", part, k))


def outproj(A, part, first):
    slots = WA_SLOT if part == 0 else WB_SLOT
    reg = OCA if part == 0 else OCB
    for kg in range(2):
        if kg == 0:
            A(f"s_cmp_eq_u32 s{sKG}, 1")
            A(f"s_cbranch_scc1 L_op{part}_g1")
            saved = (list(A.vm_q), list(A.lds_q))
        else:
            A.label(f"L_op{part}_g1")
            A.vm_q, A.lds_q = list(saved[0]), list(saved[1])
        seq = [(k, nt) for k in range(10) for nt in range(5)]

        def rd(i):
            k, nt = seq[i]
            kk = 10 * kg + k
            off = slots[kk // 4] * SLOT + (kk % 4) * 5120 + nt * 256
            areg = (vWR, vT + 5, vT + 6)[off >> 16]
            A.lds(f"ds_read_b128 {v(WF + (i % 8)*4,4)}, v{areg} offset:{off & 0xffff}", ("wf", i))

        LOOK = 5
        for i in range(LOOK):
            rd(i)
        for i, (k, nt) in enumerate(seq):
            if i + LOOK < len(seq):
                rd(i + LOOK)
            if nt == 0:
                A.vm_wait(("oc", part, k))
            A.lds_wait(("wf", i))
            c = "0" if (first and k == 0) else v(ACC + 4*nt, 4)
            A(f"v_mfma_f32_16x16x32_bf16 {v(ACC+4*nt,4)}, {v(WF + (i % 8)*4,4)}, {v(reg+4*k,4)}, {c}")
        if kg == 0:
            end0 = (list(A.vm_q), list(A.lds_q))
            A(f"s_branch L_op{part}_done")
    A.label(f"L_op{part}_done")
    assert end0[0] == A.vm_q and end0[1] == A.lds_q


def keypos(kappa):
    return (kappa & 25) | ((kappa >> 1) & 1) << 2 | ((kappa >> 2) & 1) << 1


def band_mask(j, i, prev):
    m = 0
    for l in range(64):
        q, hh = l & 31, l >> 5
        key = keypos(8 * j + 4 * hh + i) - (32 if prev else 0)
        if 0 <= q - key <= 7:
            m |= 1 << l
    return m


def b_addr(A):
    A(f"v_lshlrev_b32 v{vBA}, 15, v{vHH}")
    A(f"v_lshl_add_u32 v{vBA}, v{vR}, 4, v{vBA}")
    A(f"v_lshlrev_b32 v{vBA+1}, 3, v{vR}")
    A(f"v_and_b32 v{vT+2}, 25, v{vR}")
    A(f"v_bfe_u32 v{vT+3}, v{vR}, 1, 1")
    A(f"v_lshl_or_b32 v{vT+2}, v{vT+3}, 2, v{vT+2}")
    A(f"v_bfe_u32 v{vT+3}, v{vR}, 2, 1")
    A(f"v_lshl_or_b32 v{vT+2}, v{vT+3}, 1, v{vT+2}")
    A(f"v_lshlrev_b32 v{vT+3}, 12, v{vHH}")
    A(f"v_lshl_add_u32 v{vBA+2}, v{vT+2}, 4, v{vT+3}")
    A(f"v_lshlrev_b32 v{vBA+3}, 3, v{vT+2}")
    A(f"v_mul_u32_u24 v{vT+4}, 320, v{vHH}")
    A(f"v_lshl_add_u32 v{vBA+4}, v{vR}, 4, v{vT+4}")
    A(f"v_cmp_eq_u32 vcc, 20, v{vR}")
    A(f"v_mov_b32 v{vT+6}, 0")
    A(f"v_mov_b32 v{vT+7}, 0x3f803f80")
    A(f"v_cndmask_b32 v{vT+6}, v{vT+6}, v{vT+7}, vcc")
    for base in (BV0, BV1, BVP):
        for i in range(4):
            A(f"v_mov_b32 v{base+i}, v{vT+6}")
    A(f"v_mov_b32 v{BQ2}, 0")
    A(f"v_mov_b32 v{BQ2+1}, 0")
    A(f"s_and_b32 s{sT1}, s{sW}, 1")
    A(f"s_lshl_b32 s{sT1}, s{sT1}, 10")
    A(f"s_lshl_b32 s{sT0}, s{sQT}, 5")
    A(f"s_add_u32 s{sT2}, s{sT1}, s{sT0}")
    A(f"s_mul_i32 s{sT0}, s{sH}, {QH}")
    A(f"s_add_u32 s{sT0}, s{sT0}, {QB}")
    A(f"s_lshl_b32 s{sT1}, s{sT2}, 4")
    A(f"s_add_u32 s{sBA}, s{sT1}, s{sT0}")
    A(f"s_lshl_b32 s{sT1}, s{sT2}, 3")
    A(f"s_add_u32 s{sBA+1}, s{sT1}, s{sT0}")
    A(f"s_add_u32 s{sBA+1}, s{sBA+1}, 65536")
    for prev in range(2):
        if prev:
            A(f"s_cmp_eq_u32 s{sQT}, 0")
            A(f"s_cselect_b32 s{sT3}, 0, 32")
            A(f"s_sub_u32 s{sT2}, s{sT2}, s{sT3}")
        A(f"s_lshr_b32 s{sT0}, s{sT2}, 8")
        A(f"s_mul_i32 s{sT0}, s{sT0}, {CHB}")
        A(f"s_add_u32 s{sT0}, s{sT0}, s{sKV}")
        A(f"s_add_u32 s{sT0}, s{sT0}, {KVB - KVA}")
        A(f"s_and_b32 s{sT3}, s{sT2}, 255")
        o = sBA + 2 + 3 * prev
        A(f"s_lshl_b32 s{sT1}, s{sT3}, 4")
        A(f"s_add_u32 s{o}, s{sT1}, s{sT0}")
        A(f"s_lshl_b32 s{sT1}, s{sT3}, 3")
        A(f"s_add_u32 s{o+1}, s{sT1}, s{sT0}")
        A(f"s_add_u32 s{o+1}, s{o+1}, 8192")
        A(f"s_lshr_b32 s{sT1}, s{sT3}, 4")
        A(f"s_mul_i32 s{sT1}, s{sT1}, 640")
        A(f"s_add_u32 s{o+2}, s{sT1}, s{sT0}")
        A(f"s_add_u32 s{o+2}, s{o+2}, 10240")
    A(f"s_lshl_b32 s{sBA+8}, s{sBT}, 2")
    A(f"s_add_u32 s{sBA+8}, s{sBA+8}, {GATE}")


def b_loads(A):
    A.vm(f"buffer_load_dwordx4 {v(BQ01,4)}, v{vBA}, {WS}, s{sBA} offen", "b")
    A.vm(f"buffer_load_dwordx4 {v(BK01,4)}, v{vBA+2}, {WS}, s{sBA+2} offen", "b")
    A.vm(f"buffer_load_dwordx2 {v(BK2,2)}, v{vBA+3}, {WS}, s{sBA+3} offen", "b")
    A.vm(f"buffer_load_dwordx4 {v(BKP01,4)}, v{vBA+2}, {WS}, s{sBA+5} offen", "b")
    A.vm(f"buffer_load_dwordx2 {v(BKP2,2)}, v{vBA+3}, {WS}, s{sBA+6} offen", "b")
    A.vm(f"buffer_load_dword v{vGB}, v{vBA+1}, {WS}, s{sBA+8} offen", "b")
    A("s_mov_b32 exec_hi, 0")
    A.vm(f"buffer_load_dwordx2 {v(BQ2,2)}, v{vBA+1}, {WS}, s{sBA+1} offen", "b")
    A(f"s_mov_b64 exec, s[{sLO20}:{sLO20+1}]")
    A.vm(f"buffer_load_dwordx4 {v(BV0,4)}, v{vBA+4}, {WS}, s{sBA+4} offen", "b")
    A.vm(f"buffer_load_dwordx4 {v(BV1,4)}, v{vBA+4}, {WS}, s{sBA+4} offen offset:640", "b")
    A.vm(f"buffer_load_dwordx4 {v(BVP,4)}, v{vBA+4}, {WS}, s{sBA+7} offen offset:640", "b")
    A("s_mov_b64 exec, -1")


def b_unit(A):
    S0, S1 = BS0, BS1
    A.vm_wait("b")
    mf16(A, S0, BK01, BQ01, "0")
    mf16(A, S1, BKP01, BQ01, "0")
    mf8(A, S0, BK2, BQ2, v(S0, 16))
    mf8(A, S1, BKP2, BQ2, v(S1, 16))
    A(f"v_mov_b32 v{vT}, {hex(f32bits(-1e30))}")
    A(f"s_cmp_eq_u32 s{sQT}, 0")
    A(f"s_cselect_b32 s{sT3}, 0, -1")
    A("s_nop 7")
    A("s_nop 5")
    for j in range(4):
        for i in range(4):
            m = band_mask(j, i, False)
            A(f"s_mov_b32 s{sM}, {hex(m & 0xffffffff)}")
            A(f"s_mov_b32 s{sM+1}, {hex(m >> 32)}")
            A(f"v_cndmask_b32 v{S0+4*j+i}, v{vT}, v{S0+4*j+i}, s[{sM}:{sM+1}]")
    for j in range(3):
        for i in range(4):
            assert band_mask(j, i, True) == 0
    for i in range(4):
        m = band_mask(3, i, True)
        A(f"s_and_b32 s{sM}, s{sT3}, {hex(m & 0xffffffff)}")
        A(f"s_and_b32 s{sM+1}, s{sT3}, {hex(m >> 32)}")
        A(f"v_cndmask_b32 v{S1+12+i}, v{vT}, v{S1+12+i}, s[{sM}:{sM+1}]")
    max16(A, vT + 1, S0, True)
    A(f"v_max3_f32 v{vT+1}, v{vT+1}, v{S1+12}, v{S1+13}")
    A(f"v_max3_f32 v{vT+1}, v{vT+1}, v{S1+14}, v{S1+15}")
    cross_half_max(A, vT + 1, vT + 2)
    for r in list(range(S0, S0 + 16)) + list(range(S1 + 12, S1 + 16)):
        A(f"v_sub_f32 v{r}, v{r}, v{vT+1}")
    for g in range(4):
        exps(A, S0, g, BP)
    PP = BP + 8
    for i in range(4):
        A(f"v_exp_f32 v{S1+12+i}, v{S1+12+i}")
    A(f"v_mov_b32 v{PP}, 0")
    A(f"v_mov_b32 v{PP+1}, 0")
    A(f"v_cvt_pk_bf16_f32 v{PP+2}, v{S1+12}, v{S1+13}")
    A(f"v_cvt_pk_bf16_f32 v{PP+3}, v{S1+14}, v{S1+15}")
    A("s_nop 1")
    mf16(A, BO, BV0, BP, "0")
    mf16(A, BO, BV1, BP + 4, v(BO, 16))
    mf16(A, BO, BVP, PP, v(BO, 16))
    A("s_nop 7")
    A("s_nop 3")
    finish_tile(A, BO, vGB, True, 5, sBT, 80, "stb")


def fallback(A):
    A.label("L_k2_fallback")
    A("s_waitcnt vmcnt(0) lgkmcnt(0)")
    A(f"v_lshlrev_b32 v{vT+4}, 12, v{vHH}")
    A(f"v_lshl_add_u32 v{vT+4}, v{vR}, 4, v{vT+4}")
    A(f"v_lshlrev_b32 v{vT+5}, 3, v{vR}")
    A(f"v_mul_u32_u24 v{vT+6}, 320, v{vHH}")
    A(f"v_lshl_add_u32 v{vT+6}, v{vR}, 4, v{vT+6}")
    A(f"v_mov_b32 v{vT+7}, {hex(f32bits(-3.0e38))}")

    def tile_addr():
        A(f"s_lshr_b32 s{sT0}, s{sCNT}, 3")
        A(f"s_mul_i32 s{sT0}, s{sT0}, {CHB}")
        A(f"s_add_u32 s{sT0}, s{sT0}, s{sKV}")
        A(f"s_and_b32 s{sT3}, s{sCNT}, 7")
        A(f"s_lshl_b32 s{sT1}, s{sT3}, 9")
        A(f"s_add_u32 s{sT1}, s{sT1}, s{sT0}")
        A(f"s_lshl_b32 s{sT2}, s{sT3}, 8")
        A(f"s_add_u32 s{sT2}, s{sT2}, s{sT0}")
        A(f"s_add_u32 s{sT2}, s{sT2}, 8192")
        A(f"s_mul_i32 s{sT3}, s{sT3}, 1280")
        A(f"s_add_u32 s{sT3}, s{sT3}, s{sT0}")
        A(f"s_add_u32 s{sT3}, s{sT3}, 10240")

    A(f"s_mov_b32 s{sCNT}, 0")
    A.label("L_k2_fb1")
    tile_addr()
    A(f"buffer_load_dwordx4 {v(K01,4)}, v{vT+4}, {WS}, s{sT1} offen")
    A(f"buffer_load_dwordx2 {v(K2,2)}, v{vT+5}, {WS}, s{sT2} offen")
    A("s_waitcnt vmcnt(0)")
    mf16(A, SA, K01, Q01, "0")
    mf8(A, SA, K2, Q2, v(SA, 16))
    A("s_nop 7")
    A("s_nop 7")
    max16(A, vT + 7, SA, False)
    A(f"s_add_u32 s{sCNT}, s{sCNT}, 1")
    A(f"s_cmp_lt_u32 s{sCNT}, 64")
    A("s_cbranch_scc1 L_k2_fb1")
    cross_half_max(A, vT + 7, vT)
    for i in range(16):
        A(f"v_sub_f32 v{NEGM+i}, 0, v{vT+7}")
        A(f"v_mov_b32 v{O+i}, 0")
    A(f"v_cmp_eq_u32 vcc, 20, v{vR}")
    A(f"v_mov_b32 v{vT}, 0")
    A(f"v_mov_b32 v{vT+1}, 0x3f803f80")
    A(f"v_cndmask_b32 v{vT}, v{vT}, v{vT+1}, vcc")
    for i in range(4):
        A(f"v_mov_b32 v{V0+i}, v{vT}")
        A(f"v_mov_b32 v{V1+i}, v{vT}")
    A(f"s_mov_b32 s{sCNT}, 0")
    A.label("L_k2_fb2")
    tile_addr()
    A(f"buffer_load_dwordx4 {v(K01,4)}, v{vT+4}, {WS}, s{sT1} offen")
    A(f"buffer_load_dwordx2 {v(K2,2)}, v{vT+5}, {WS}, s{sT2} offen")
    A(f"s_mov_b64 exec, s[{sLO20}:{sLO20+1}]")
    A(f"buffer_load_dwordx4 {v(V0,4)}, v{vT+6}, {WS}, s{sT3} offen")
    A(f"buffer_load_dwordx4 {v(V1,4)}, v{vT+6}, {WS}, s{sT3} offen offset:640")
    A("s_mov_b64 exec, -1")
    A("s_waitcnt vmcnt(0)")
    mf16(A, SA, K01, Q01, v(NEGM, 16))
    mf8(A, SA, K2, Q2, v(SA, 16))
    A("s_nop 7")
    A("s_nop 7")
    for g in range(4):
        exps(A, SA, g)
    A("s_nop 1")
    mf16(A, O, V0, P, v(O, 16))
    mf16(A, O, V1, P + 4, v(O, 16))
    A(f"s_add_u32 s{sCNT}, s{sCNT}, 1")
    A(f"s_cmp_lt_u32 s{sCNT}, 64")
    A("s_cbranch_scc1 L_k2_fb2")
    A("s_nop 7")
    A("s_nop 7")
    A("s_branch L_k2_finish")


def op_addr(A):
    sRT, sCT, sTG = sT1, sT2, sT3
    A(f"s_lshr_b32 s{sRT}, s{sH}, 3")
    A(f"s_lshl_b32 s{sT0}, s{sQB}, 2")
    A(f"s_add_u32 s{sRT}, s{sRT}, s{sT0}")
    A(f"s_and_b32 s{sCT}, s{sH}, 7")
    A(f"s_and_b32 s{sTG}, s{sW}, 3")
    A(f"s_lshr_b32 s{sKG}, s{sW}, 2")
    A(f"s_lshl_b32 s{sFLG}, s{sRT}, 8")
    A(f"s_mul_i32 s{sWSRC}, s{sW}, 20480")
    A(f"s_mul_i32 s{sT0}, s{sCT}, 1280")
    A(f"s_add_u32 s{sWSRC}, s{sWSRC}, s{sT0}")
    A(f"s_add_u32 s{sWSRC}, s{sWSRC}, {WOT}")
    A(f"s_lshl_b32 s{sRT}, s{sRT}, 6")
    A(f"s_lshl_b32 s{sTG}, s{sTG}, 4")
    A(f"s_add_u32 s{sRT}, s{sRT}, s{sTG}")
    A(f"s_mul_i32 s{sOUTO}, s{sRT}, 1280")
    A(f"s_mul_i32 s{sT0}, s{sCT}, 160")
    A(f"s_add_u32 s{sOUTO}, s{sOUTO}, s{sT0}")
    A(f"s_lshl_b32 s{sOCB}, s{sRT}, 4")
    A(f"s_mul_i32 s{sT0}, s{sKG}, {40*32768}")
    A(f"s_add_u32 s{sOCB}, s{sOCB}, s{sT0}")
    A(f"s_add_u32 s{sOCB}, s{sOCB}, {OC}")
    A(f"s_lshl_b32 s{sPUB}, s{sQT}, 6")
    A(f"s_lshl_b32 s{sT0}, s{sH}, 1")
    A(f"s_add_u32 s{sPUB}, s{sPUB}, s{sT0}")
    A(f"s_and_b32 s{sT0}, s{sW}, 1")
    A(f"s_add_u32 s{sPUB}, s{sPUB}, s{sT0}")
    A(f"s_lshl_b32 s{sPUB}, s{sPUB}, 2")
    A(f"v_lshlrev_b32 v{vFA}, 2, v{vL}")
    A(f"v_mov_b32 v{vW0}, v{vL16}")
    A(f"v_add_u32 v{vT}, 1024, v{vL16}")
    A(f"v_add_u32 v{vT+1}, {10240 - 256}, v{vL16}")
    A(f"v_cmp_gt_u32 vcc, 16, v{vL}")
    A(f"v_add_u32 v{vW2}, {10240 + 768}, v{vL16}")
    A(f"v_lshrrev_b32 v{vT+2}, 4, v{vL}")
    A(f"v_cndmask_b32 v{vW1}, v{vT+1}, v{vT}, vcc")
    A(f"v_and_b32 v{vT+3}, 15, v{vL}")
    A(f"v_lshlrev_b32 v{vT+4}, 15, v{vT+2}")
    A(f"v_lshl_add_u32 v{vOC}, v{vT+3}, 4, v{vT+4}")
    A(f"v_mul_u32_u24 v{vT+4}, 1280, v{vT+2}")
    A(f"v_lshl_add_u32 v{vWR}, v{vT+3}, 4, v{vT+4}")
    A(f"v_mul_u32_u24 v{vT+4}, 1280, v{vT+3}")
    A(f"v_lshl_add_u32 v{vST}, v{vT+2}, 3, v{vT+4}")


def gen(prof=False):
    A = Asm()
    A.prof = prof
    kernel_header(A, NAME)
    A("s_cmp_ge_u32 s2, 256")
    A("s_cbranch_scc1 L_k2_end")
    A.stamp("start")
    A("s_load_dwordx2 s[4:5], s[0:1], 72")
    A("s_load_dwordx2 s[6:7], s[0:1], 56")
    A(f"v_lshrrev_b32 v{vT}, 6, v0")
    A(f"v_and_b32 v{vL}, 63, v0")
    A(f"v_readfirstlane_b32 s{sW}, v{vT}")
    if not EXP.get("nopf"):
        prefetch_code(A, NAME, "L_k2_end", 56, SB, sW)
    A(f"v_and_b32 v{vR}, 31, v{vL}")
    A(f"v_lshrrev_b32 v{vHH}, 5, v{vL}")
    A(f"v_lshlrev_b32 v{vL16}, 4, v{vL}")
    A(f"s_and_b32 s{sT0}, s2, 7")
    A(f"s_lshl_b32 s{sT0}, s{sT0}, 2")
    A(f"s_lshr_b32 s{sT1}, s2, 3")
    A(f"s_and_b32 s{sT1}, s{sT1}, 3")
    A(f"s_add_u32 s{sH}, s{sT0}, s{sT1}")
    A(f"s_lshr_b32 s{sQB}, s2, 5")
    A(f"s_mul_i32 s{sKV}, s{sH}, {KVH}")
    A(f"s_add_u32 s{sKV}, s{sKV}, {KVA}")
    A(f"s_mul_i32 s{sLDSW}, s{sW}, 2560")
    A(f"s_add_u32 s{sSRC}, s{sKV}, s{sLDSW}")
    A(f"s_lshl_b32 s{sQ0}, s{sQB}, 8")
    A(f"s_lshl_b32 s{sT0}, s{sW}, 5")
    A(f"s_add_u32 s{sQ0}, s{sQ0}, s{sT0}")
    A(f"v_lshlrev_b32 v{vT}, 15, v{vHH}")
    A(f"v_lshl_add_u32 v{vT}, v{vR}, 4, v{vT}")
    A(f"v_lshlrev_b32 v{vT+1}, 3, v{vR}")
    A(f"v_lshlrev_b32 v{vT+2}, 2, v{vR}")
    A(f"v_mov_b32 v{Q2}, 0")
    A(f"v_mov_b32 v{Q2+1}, 0")
    A(f"s_mul_i32 s{sT1}, s{sH}, {QH}")
    A(f"s_lshl_b32 s{sT2}, s{sQ0}, 4")
    A(f"s_add_u32 s{sT2}, s{sT2}, s{sT1}")
    A(f"s_lshl_b32 s{sT3}, s{sQ0}, 3")
    A(f"s_add_u32 s{sT3}, s{sT3}, s{sT1}")
    A(f"s_add_u32 s{sT3}, s{sT3}, {QA + 65536}")
    A("s_waitcnt lgkmcnt(0)")
    srd(A, sWS, 4, WS_USED)
    dma_chunk(A, 0)
    if QA:
        A(f"s_add_u32 s{sT2}, s{sT2}, {QA}")
    A.vm(f"buffer_load_dwordx4 {v(Q01,4)}, v{vT}, {WS}, s{sT2} offen", "q")
    A("s_mov_b32 exec_hi, 0")
    A.vm(f"buffer_load_dwordx2 {v(Q2,2)}, v{vT+1}, {WS}, s{sT3} offen", "q")
    A("s_mov_b32 exec_hi, -1")
    dma_chunk(A, 1)
    A(f"s_lshl_b32 s{sT2}, s{sQ0}, 2")
    A(f"s_add_u32 s{sT2}, s{sT2}, {GATE}")
    A.vm(f"buffer_load_dword v{vG}, v{vT+2}, {WS}, s{sT2} offen", "g")
    srd(A, sOUT, 6, OUT_BYTES)
    A(f"s_lshl_b32 s{sQT}, s{sQB}, 2")
    A(f"s_lshr_b32 s{sT0}, s{sW}, 1")
    A(f"s_add_u32 s{sQT}, s{sQT}, s{sT0}")
    A(f"s_and_b32 s{sT1}, s{sW}, 1")
    A(f"s_lshl_b32 s{sBT}, s{sQT}, 6")
    A(f"s_add_u32 s{sBT}, s{sBT}, s{sT1}")
    A(f"s_mov_b32 s{sLO20}, 0xfffff")
    A(f"s_mov_b32 s{sLO20+1}, 0xfffff")
    A(f"v_lshlrev_b32 v{vT}, 12, v{vHH}")
    A(f"v_lshl_add_u32 v{vT}, v{vR}, 4, v{vT}")
    A(f"v_lshlrev_b32 v{vT+1}, 3, v{vR}")
    A(f"v_mul_u32_u24 v{vT+2}, 320, v{vHH}")
    A(f"v_lshl_add_u32 v{vT+2}, v{vR}, 4, v{vT+2}")
    A(f"v_add_u32 v{vT+3}, {ONES - 320}, v{vT+2}")
    A(f"v_cmp_gt_u32 vcc, 20, v{vR}")
    for sl in range(NSLOT):
        A(f"v_add_u32 v{vK01+sl}, {sl*SLOT}, v{vT}")
        A(f"v_add_u32 v{vK2+sl}, {sl*SLOT}, v{vT+1}")
        A(f"v_add_u32 v{vT+4}, {sl*SLOT + 10240}, v{vT+2}")
        A(f"v_cndmask_b32 v{vV+sl}, v{vT+3}, v{vT+4}, vcc")
    for r in range(2):
        A(f"v_add_u32 v{vT}, {512*r}, v0")
        A(f"v_mul_u32_u24 v{vT+1}, 3277, v{vT}")
        A(f"v_lshrrev_b32 v{vT+1}, 16, v{vT+1}")
        A(f"v_mul_u32_u24 v{vT+1}, 20, v{vT+1}")
        A(f"v_cmp_eq_u32 vcc, v{vT+1}, v{vT}")
        A(f"v_mov_b32 v{vT+4}, 0")
        A(f"v_mov_b32 v{vT+5}, 0x3f803f80")
        A(f"v_cndmask_b32 v{vT+4}, v{vT+4}, v{vT+5}, vcc")
        for i in range(1, 4):
            A(f"v_mov_b32 v{vT+4+i}, v{vT+4}")
        A(f"v_lshlrev_b32 v{vT}, 4, v{vT}")
        A(f"v_add_u32 v{vT}, {ONES}, v{vT}")
        if r == 1:
            A(f"s_cmp_ge_u32 s{sW}, 4")
            A("s_cbranch_scc1 L_k2_pat_done")
        A(f"ds_write_b128 v{vT}, {v(vT+4,4)}")
    A.label("L_k2_pat_done")
    b_addr(A)
    op_addr(A)
    A.stamp("issued")
    A.lds_wait_all()
    A.vm_wait("q")
    A("s_barrier")
    A.stamp("c0 landed")
    rd_k01(A, 0)
    rd_k2(A, 0)
    dma_chunk(A, 2)
    A.lds_wait_all()
    mf16(A, SA, K01, Q01, "0")
    mf8(A, SA, K2, Q2, v(SA, 16))
    dma_chunk(A, 3)
    A("s_nop 7")
    max16(A, vT, SA, True)
    cross_half_max(A, vT, vT + 1)
    for i in range(16):
        A(f"v_sub_f32 v{NEGM+i}, 0, v{vT}")
    A("s_nop 1")
    mf16(A, SA, K01, Q01, v(NEGM, 16))
    mf8(A, SA, K2, Q2, v(SA, 16))
    rd_k01(A, 1)
    rd_k2(A, 1)
    rd_v(A, 0, 0)
    A("s_nop 7")
    A("s_nop 3")
    NT = 64
    for t in range(NT):
        cur = SA if t % 2 == 0 else SB
        nxt = SB if t % 2 == 0 else SA
        if t in (0, 30):
            A.stamp("t%d" % t)
        if t == B_LOAD_AT + 1:
            b_loads(A)
        if t == B_AT + 1:
            A.stamp("b start")
            b_unit(A)
            A.stamp("b done")
        if t == B_PUB_AT + 1:
            publish(A, FLAGB, "stb")
        if t == FB_LOAD_AT:
            poll_issue(A, FLAGB, "fb")
        if t == FB_CHECK_AT:
            poll_check(A, FLAGB, "fb", "pollb")
            oc_loads(A, 1)
        if t in (49, 51, 53):
            dma_w(A, 1, (t - 49) // 2)
        if t % TPC == TPC - 2 and t + 2 < NT:
            c = (t + 2) // TPC
            A.vm_wait(("c", c))
            A("s_barrier")
            if c >= 2 and c + 2 < NCH:
                dma_chunk(A, c + 2)
            if c == 7:
                dma_w(A, 1, 3)
                dma_w(A, 1, 4)
        if t + 1 < NT:
            A.lds_wait(("k01", t + 1))
            mf16(A, nxt, K01, Q01, v(NEGM, 16))
            if t + 2 < NT:
                rd_k01(A, t + 2)
        exps(A, cur, 0)
        if t > 0:
            A.lds_wait(("v", t - 1, 1))
            mf16(A, O, V1, P + 4, v(O, 16))
        rd_v(A, t, 1)
        exps(A, cur, 1)
        if t + 1 < NT:
            A.lds_wait(("k2", t + 1))
            mf8(A, nxt, K2, Q2, v(nxt, 16))
            if t + 2 < NT:
                rd_k2(A, t + 2)
        exps(A, cur, 2)
        A.lds_wait(("v", t, 0))
        mf16(A, O, V0, P, "0" if t == 0 else v(O, 16))
        if t + 1 < NT:
            rd_v(A, t + 1, 0)
        exps(A, cur, 3)
    A.lds_wait(("v", NT - 1, 1))
    A("s_nop 1")
    mf16(A, O, V1, P + 4, v(O, 16))
    A("s_nop 7")
    A("s_nop 7")
    A.stamp("loop end")
    A(f"v_mov_b32 v{vT}, v{O+8}")
    A(f"v_mov_b32 v{vT+1}, v{O+8}")
    A(f"v_mul_f32 v{vT+2}, 0, v{O}")
    A("s_nop 0")
    A(f"v_permlane32_swap_b32 v{vT}, v{vT+1}")
    for i in range(1, 12):
        A(f"v_fma_f32 v{vT+2}, v{O+i}, 0, v{vT+2}")
    A(f"v_mov_b32 v{vT+3}, {hex(f32bits(BIG))}")
    A(f"v_add_f32 v{vT+2}, v{vT+2}, v{vT+1}")
    A(f"v_cmp_lt_f32 vcc, v{vT+2}, v{vT+3}")
    A("s_nop 4")
    A("s_cmp_eq_u64 vcc, exec")
    A("s_cbranch_scc0 L_k2_fallback")
    A.label("L_k2_finish")
    A.vm_wait("g")
    finish_tile(A, O, vG, False, 4, sQ0, 0, "sta")
    A.vm_wait(("w", 1, 4))
    A("s_barrier")
    A.stamp("wb landed")
    for st in range(3):
        dma_w(A, 0, st)
    A(f"v_add_u32 v{vT+5}, 0x10000, v{vWR}")
    A(f"v_add_u32 v{vT+6}, 0x20000, v{vWR}")
    outproj(A, 1, True)
    A.stamp("b part")
    publish(A, FLAGA, "sta")
    A("s_barrier")
    for st in range(3, 5):
        dma_w(A, 0, st)
    poll_issue(A, FLAGA, "fa")
    poll_check(A, FLAGA, "fa", "polla")
    A.stamp("flags a")
    oc_loads(A, 0)
    A.vm_wait(("w", 0, 4))
    A("s_barrier")
    outproj(A, 0, False)
    A.stamp("a part")
    A(f"s_and_b32 s{sT0}, s{sW}, 3")
    A(f"s_mul_i32 s{sT0}, s{sT0}, 5120")
    A(f"v_add_u32 v{vT}, s{sT0}, v{vL16}")
    A("s_barrier")
    A(f"s_cmp_eq_u32 s{sKG}, 0")
    A("s_cbranch_scc1 L_k2_red_a")
    A("s_nop 3")
    for nt in range(5):
        A(f"ds_write_b128 v{vT}, {v(ACC+4*nt,4)} offset:{nt*1024}")
    A("s_waitcnt lgkmcnt(0)")
    A("s_barrier")
    A("s_endpgm")
    A.label("L_k2_red_a")
    A("s_barrier")
    A.lds_q = []
    for nt in range(5):
        A.lds(f"ds_read_b128 {v(WF+4*nt,4)}, v{vT} offset:{nt*1024}", ("r", nt))
    for nt in range(5):
        A.lds_wait(("r", nt))
        for i in range(4):
            A(f"v_add_f32 v{ACC+4*nt+i}, v{ACC+4*nt+i}, v{WF+4*nt+i}")
        A(f"v_cvt_pk_bf16_f32 v{ACC+4*nt}, v{ACC+4*nt}, v{ACC+4*nt+1}")
        A(f"v_cvt_pk_bf16_f32 v{ACC+4*nt+1}, v{ACC+4*nt+2}, v{ACC+4*nt+3}")
        A.vm(f"buffer_store_dwordx2 {v(ACC+4*nt,2)}, v{vST}, s[{sOUT}:{sOUT+3}], s{sOUTO} offen offset:{nt*32}", "st")
    A.stamp("end")
    A.stamp_flush(1, sWS, PROF, vT)
    A("s_endpgm")
    fallback(A)
    A.label("L_k2_end")
    A("s_endpgm")
    kernel_footer(A, NAME, NV, 64)
    gen.stamps = getattr(A, "stamps", [])
    return A.text()

if __name__ == "__main__":
    print(gen())
```

```python
import sys
import k1, k2, k3, k23
from layout import *
HDR = open("gated_mix__softmax_full_mha__sliding_local_dilated__prompt.s.ref").read().split("; Override launch")[0]
def build(extra_launches="", prof=False):
    out = HDR
    out += f"; @launch kernel={k1.NAME} grid=(256,1,1) block=(512,1,1) lds={k1.LDS_BYTES}\n"
    out += f"; @launch kernel={k23.NAME} grid=(256,1,1) block=(512,1,1) lds={k23.LDS_BYTES}\n"
    out += extra_launches
    out += '.amdgcn_target "amdgcn-amd-amdhsa--gfx950"\n'
    out += k1.gen(prof) + k23.gen(prof)
    return out
if __name__ == "__main__":
    path = sys.argv[1] if len(sys.argv) > 1 else "gated_mix__softmax_full_mha__sliding_local_dilated__prompt.s"
    prof = "--prof" in sys.argv
    for a in sys.argv:
        if a.startswith("--exp="):
            for kv in a[6:].split(","):
                if kv.startswith("st:"):
                    k1.EXP["st"] = " " + kv[3:].replace("+", " ")
                else:
                    k2.EXP[kv] = True; k1.EXP[kv] = True; k3.EXP[kv] = True; k23.EXP[kv] = True
    open(path, "w").write(build(prof=prof))
    if prof:
        import json
        json.dump([k1.gen.stamps, k23.gen.stamps], open(path + ".stamps.json", "w"))
    print("wrote", path)
```

```python
class Asm:
    def __init__(self):
        self.lines = []
        self.lds_q = []
        self.vm_q = []

    def __call__(self, text):
        for ln in text.split("\n"):
            ln = ln.rstrip()
            if ln.strip():
                self.lines.append(ln if ln.endswith(":") or ln.startswith(".") or ln.startswith(";") else "    " + ln.strip())

    prof = False
    PROF_S = 64
    def stamp(self, name=None):
        if not self.prof:
            return
        if not hasattr(self, "stamps"):
            self.stamps = []
        i = len(self.stamps)
        assert i < 16
        self.stamps.append(name or str(i))
        self("s_memtime s[60:61]")
        self("s_memrealtime s[62:63]")
        self.lds_wait_all()
        self(f"s_mov_b32 s{64+i}, s60")
        self(f"s_mov_b32 s{80+i}, s62")

    def stamp_flush(self, kidx, srd_reg, prof_off, tmpv):
        if not self.prof:
            return
        self("s_mov_b64 exec, -1")
        self(f"v_mov_b32 v{tmpv}, 0")
        for i in range(len(self.stamps)):
            self(f"v_writelane_b32 v{tmpv}, s{64+i}, {i}")
            self(f"v_writelane_b32 v{tmpv}, s{80+i}, {16+i}")
        self(f"v_lshrrev_b32 v{tmpv+1}, 6, v0")
        self(f"s_lshl_b32 s60, s2, 4")
        self(f"s_add_u32 s60, s60, {kidx*4096}")
        self(f"v_add_u32 v{tmpv+1}, s60, v{tmpv+1}")
        self(f"v_lshlrev_b32 v{tmpv+1}, 7, v{tmpv+1}")
        self(f"v_and_b32 v{tmpv+2}, 63, v0")
        self(f"v_lshl_add_u32 v{tmpv+1}, v{tmpv+2}, 2, v{tmpv+1}")
        self(f"s_mov_b32 s60, {prof_off}")
        self("s_mov_b32 exec_hi, 0")
        self(f"buffer_store_dword v{tmpv}, v{tmpv+1}, s[{srd_reg}:{srd_reg+3}], s60 offen")
        self("s_mov_b64 exec, -1")

    def label(self, name):
        self.lines.append(name + ":")

    def comment(self, c):
        self.lines.append("    ; " + c)

    def text(self):
        return "\n".join(self.lines) + "\n"

    def lds(self, instr, tag=None):
        self(instr)
        self.lds_q.append(tag)

    def lds_wait(self, *tags):
        idx = -1
        for t in tags:
            if t in self.lds_q:
                idx = max(idx, len(self.lds_q) - 1 - self.lds_q[::-1].index(t))
        if idx < 0:
            return
        n = len(self.lds_q) - 1 - idx
        assert n <= 15, n
        self(f"s_waitcnt lgkmcnt({n})")
        self.lds_q = self.lds_q[idx + 1:]

    def lds_wait_all(self):
        self("s_waitcnt lgkmcnt(0)")
        self.lds_q = []

    def vm(self, instr, tag=None):
        self(instr)
        self.vm_q.append(tag)
        assert len(self.vm_q) <= 63, "vmcnt overflow"

    def vm_wait(self, *tags):
        idx = -1
        for t in tags:
            if t in self.vm_q:
                idx = max(idx, len(self.vm_q) - 1 - self.vm_q[::-1].index(t))
        if idx < 0:
            return
        n = len(self.vm_q) - 1 - idx
        self(f"s_waitcnt vmcnt({n})")
        self.vm_q = self.vm_q[idx + 1:]

    def vm_wait_all(self):
        self("s_waitcnt vmcnt(0)")
        self.vm_q = []


def v(a, n=1):
    return f"v{a}" if n == 1 else f"v[{a}:{a+n-1}]"


def s(a, n=1):
    return f"s{a}" if n == 1 else f"s[{a}:{a+n-1}]"


def srd(A, sreg, ptr_lo, nbytes):
    A(f"s_mov_b32 s{sreg}, s{ptr_lo}")
    A(f"s_and_b32 s{sreg+1}, s{ptr_lo+1}, 0xffff")
    A(f"s_mov_b32 s{sreg+2}, {nbytes}")
    A(f"s_mov_b32 s{sreg+3}, 0x20000")


def kernel_header(A, name):
    A.lines.append(".text")
    A.lines.append(f".globl {name}")
    A.lines.append(".p2align 8")
    A.lines.append(f".type {name},@function")
    A.lines.append(f"{name}:")


def kernel_footer(A, name, nvgpr, nsgpr=96):
    if A.prof:
        nsgpr = 100
    acc = (nvgpr + 3) // 4 * 4
    A.lines += [
        '.section .rodata,"a"',
        ".p2align 6",
        f".amdhsa_kernel {name}",
        f"  .amdhsa_next_free_vgpr {nvgpr}",
        f"  .amdhsa_next_free_sgpr {nsgpr}",
        f"  .amdhsa_accum_offset {acc}",
        "  .amdhsa_group_segment_fixed_size 0",
        "  .amdhsa_kernarg_size 80",
        "  .amdhsa_user_sgpr_count 2",
        "  .amdhsa_user_sgpr_kernarg_segment_ptr 1",
        "  .amdhsa_system_sgpr_workgroup_id_x 1",
        "  .amdhsa_float_denorm_mode_32 3",
        ".end_amdhsa_kernel",
    ]


def prefetch_code(A, start_label, end_label, sreg, vtmp, wave_sreg, tag="pf"):
    here = f"L_pf_{start_label}"
    A(f"s_getpc_b64 s[{sreg}:{sreg+1}]")
    A.label(here)
    A(f"s_sub_u32 s{sreg}, s{sreg}, {here} - {start_label}")
    A(f"s_subb_u32 s{sreg+1}, s{sreg+1}, 0")
    A(f"v_and_b32 v{vtmp}, 63, v0")
    A(f"v_lshlrev_b32 v{vtmp}, 7, v{vtmp}")
    A(f"s_lshl_b32 s{sreg+2}, s{wave_sreg}, 13")
    A(f"v_add_u32 v{vtmp}, s{sreg+2}, v{vtmp}")
    A(f"v_min_u32 v{vtmp}, {end_label} - {start_label} - 4, v{vtmp}")
    A.vm(f"global_load_dword v{vtmp+1}, v{vtmp}, s[{sreg}:{sreg+1}]", tag)
```

```python
class Asm:
    def __init__(self):
        self.lines = []
        self.lds_q = []
        self.vm_q = []

    def __call__(self, text):
        for ln in text.split("\n"):
            ln = ln.rstrip()
            if ln.strip():
                self.lines.append(ln if ln.endswith(":") or ln.startswith(".") or ln.startswith(";") else "    " + ln.strip())

    prof = False
    PROF_S = 64
    PROF_V = 255
    PROF_T = 96
    def stamp(self, name=None, idx=None):
        if not self.prof:
            return
        if not hasattr(self, "stamps"):
            self.stamps = []
        if idx is None:
            idx = len(self.stamps)
            self.stamps.append(name or str(idx))
        assert idx < 16
        t = self.PROF_T
        self(f"s_memtime s[{t}:{t+1}]")
        self(f"s_memrealtime s[{t+2}:{t+3}]")
        self.lds_wait_all()
        self(f"v_writelane_b32 v{self.PROF_V}, s{t}, {idx}")
        self(f"v_writelane_b32 v{self.PROF_V}, s{t+2}, {16+idx}")

    def stamp_flush(self, kidx, srd_reg, prof_off, tmpv):
        if not self.prof:
            return
        t = self.PROF_T
        self("s_mov_b64 exec, -1")
        self(f"v_lshrrev_b32 v{tmpv+1}, 6, v0")
        self(f"s_lshl_b32 s{t}, s2, 4")
        self(f"s_add_u32 s{t}, s{t}, {kidx*4096}")
        self(f"v_add_u32 v{tmpv+1}, s{t}, v{tmpv+1}")
        self(f"v_lshlrev_b32 v{tmpv+1}, 7, v{tmpv+1}")
        self(f"v_and_b32 v{tmpv+2}, 63, v0")
        self(f"v_lshl_add_u32 v{tmpv+1}, v{tmpv+2}, 2, v{tmpv+1}")
        self(f"s_mov_b32 s{t}, {prof_off}")
        self("s_mov_b32 exec_hi, 0")
        self(f"buffer_store_dword v{self.PROF_V}, v{tmpv+1}, s[{srd_reg}:{srd_reg+3}], s{t} offen")
        self("s_mov_b64 exec, -1")

    def label(self, name):
        self.lines.append(name + ":")

    def comment(self, c):
        self.lines.append("    ; " + c)

    def text(self):
        return "\n".join(self.lines) + "\n"

    def lds(self, instr, tag=None):
        self(instr)
        self.lds_q.append(tag)

    def lds_wait(self, *tags):
        idx = -1
        for t in tags:
            if t in self.lds_q:
                idx = max(idx, len(self.lds_q) - 1 - self.lds_q[::-1].index(t))
        if idx < 0:
            return
        n = len(self.lds_q) - 1 - idx
        assert n <= 15, n
        self(f"s_waitcnt lgkmcnt({n})")
        self.lds_q = self.lds_q[idx + 1:]

    def lds_wait_all(self):
        self("s_waitcnt lgkmcnt(0)")
        self.lds_q = []

    vm_count = 0
    def vm_note(self, tag):
        self.vm_q.append(tag)
        self.vm_count += 1

    def vm(self, instr, tag=None):
        self(instr)
        self.vm_count += 1
        self.vm_q.append(tag)
        assert len(self.vm_q) <= 63, "vmcnt overflow"

    def vm_wait(self, *tags):
        idx = -1
        for t in tags:
            if t in self.vm_q:
                idx = max(idx, len(self.vm_q) - 1 - self.vm_q[::-1].index(t))
        if idx < 0:
            return
        n = len(self.vm_q) - 1 - idx
        self(f"s_waitcnt vmcnt({n})")
        self.vm_q = self.vm_q[idx + 1:]

    def vm_wait_all(self):
        self("s_waitcnt vmcnt(0)")
        self.vm_q = []


def v(a, n=1):
    return f"v{a}" if n == 1 else f"v[{a}:{a+n-1}]"


def s(a, n=1):
    return f"s{a}" if n == 1 else f"s[{a}:{a+n-1}]"


def srd(A, sreg, ptr_lo, nbytes):
    A(f"s_mov_b32 s{sreg}, s{ptr_lo}")
    A(f"s_and_b32 s{sreg+1}, s{ptr_lo+1}, 0xffff")
    A(f"s_mov_b32 s{sreg+2}, {nbytes}")
    A(f"s_mov_b32 s{sreg+3}, 0x20000")


def kernel_header(A, name):
    A.lines.append(".text")
    A.lines.append(f".globl {name}")
    A.lines.append(".p2align 8")
    A.lines.append(f".type {name},@function")
    A.lines.append(f"{name}:")


def kernel_footer(A, name, nvgpr, nsgpr=96):
    if A.prof:
        nsgpr, nvgpr = 100, 256
    acc = (nvgpr + 3) // 4 * 4
    A.lines += [
        '.section .rodata,"a"',
        ".p2align 6",
        f".amdhsa_kernel {name}",
        f"  .amdhsa_next_free_vgpr {nvgpr}",
        f"  .amdhsa_next_free_sgpr {nsgpr}",
        f"  .amdhsa_accum_offset {acc}",
        "  .amdhsa_group_segment_fixed_size 0",
        "  .amdhsa_kernarg_size 80",
        "  .amdhsa_user_sgpr_count 2",
        "  .amdhsa_user_sgpr_kernarg_segment_ptr 1",
        "  .amdhsa_system_sgpr_workgroup_id_x 1",
        "  .amdhsa_float_denorm_mode_32 3",
        ".end_amdhsa_kernel",
    ]


def prefetch_code(A, start_label, end_label, sreg, vtmp, wave_sreg, tag="pf"):
    here = f"L_pf_{start_label}"
    A(f"s_getpc_b64 s[{sreg}:{sreg+1}]")
    A.label(here)
    A(f"s_sub_u32 s{sreg}, s{sreg}, {here} - {start_label}")
    A(f"s_subb_u32 s{sreg+1}, s{sreg+1}, 0")
    A(f"v_and_b32 v{vtmp}, 63, v0")
    A(f"v_lshlrev_b32 v{vtmp}, 7, v{vtmp}")
    A(f"s_lshl_b32 s{sreg+2}, s{wave_sreg}, 13")
    A(f"v_add_u32 v{vtmp}, s{sreg+2}, v{vtmp}")
    A(f"v_min_u32 v{vtmp}, {end_label} - {start_label} - 4, v{vtmp}")
    A.vm(f"global_load_dword v{vtmp+1}, v{vtmp}, s[{sreg}:{sreg+1}]", tag)
```

```python
from asmlib import *
from layout import *

NAME = "gated_mix__softmax_full_mha__sliding_local_dilated__prompt_kernel"
EXP = {}
STAGE, NST, NB = 32768, 4, 20
SLOT = CHB
NSLOT = 4
TPC = CH // 32
NCH = S // CH
ONES = 4 * SLOT
LDS_BYTES = 8 * SLOT
WB_SLOT = [5, 6, 7, 0, 1]
WA_SLOT = [2, 3, 4, 5, 6]
BIG = 2.0 ** 64
SPIN_MAX = 1 << 16
sWS, sOUT = 8, 12
sW, sNONCE = 16, 17
sH, sQB, sKV, sLDSW, sSRC, sWSRC, sOCB, sFLG, sPUB, sOUTO, sKG, sQ0, sBT, sQT = range(18, 32)
sT0, sT1, sT2, sT3, sT4, sT5 = range(32, 38)
sM = 38
sLO20 = 40
sCNT = 42
sDBG = 44
sBA = 48
sX, sWA, sWB = 60, 64, 68
sRB, sCT, sMT, sNH, sXOFF, sWOFF, sLDS1, sCT5, sTP, sB16, sB8, sHS, sPS, sP2, sQS, sPI = range(72, 88)
sQOFF, sQOFF2, sGOFF, sF1 = 88, 89, 90, 91
sP = 92
vL, vR, vHH = 1, 2, 3
vK01, vK2, vV = 4, 8, 12
vL16, vG, vGB, vFL = 16, 17, 18, 19
vT = 20
SA, SB, NEGM, O, P = 28, 44, 60, 76, 92
Q01, Q2, K01, K2, V0, V1 = 100, 104, 108, 112, 116, 120
BQ01, BQ2, BK01, BK2, BKP01, BKP2 = 124, 128, 132, 136, 140, 144
BV0, BV1, BVP, BS0, BS1, BO, BP = 148, 152, 156, 160, 176, 192, 208
vBA = 220
vW0, vW1, vW2, vOC, vWR, vST, vFA = 225, 226, 227, 228, 229, 230, 231
vF1, vF2, vF3, vF4 = 232, 233, 234, 241
vFL2 = 235
vQA, vQA2, vGA = 236, 237, 238
vOST = 239
NV = 244
OCB, OCA, ACC, WF = 124, 164, 204, 28
G_ACC, G_XF, G_WF, G_P = 124, [156, 160], [[164, 168], [172, 176]], 180
vXR, vWR1, vXD, vWD, vA16, vA8 = 196, 204, 208, 209, 210, 211
WS = f"s[{sWS}:{sWS+3}]"


def st1():
    return " sc1"


def publish(A, soff_reg, base, tag=None):
    if tag is not None:
        A.vm_wait(tag)
    A(f"v_mov_b32 v{vT}, s{sNONCE}")
    A(f"v_mov_b32 v{vT+1}, 0")
    A(f"s_add_u32 s{sT0}, s{soff_reg}, {base}")
    A("s_mov_b64 exec, 1")
    A.vm(f"buffer_store_dword v{vT}, v{vT+1}, {WS}, s{sT0} offen sc1", "pub")
    A("s_mov_b64 exec, -1")


class Wave0:
    def __init__(self, A, name):
        self.A, self.name = A, name
    def __enter__(self):
        A = self.A
        A(f"s_cmp_lg_u32 s{sW}, 0")
        A(f"s_cbranch_scc1 L_w0_{self.name}")
        self.saved = (list(A.vm_q), A.vm_count)
    def __exit__(self, *a):
        A = self.A
        A.vm_q, A.vm_count = self.saved
        A.label(f"L_w0_{self.name}")


def _poll_loads(A, items):
    for (vdst, voff, base, soff_reg) in items:
        if soff_reg is None:
            A(f"s_mov_b32 s{sT0}, {base}")
        else:
            A(f"s_add_u32 s{sT0}, s{soff_reg}, {base}")
        A(f"buffer_load_dword v{vdst}, v{voff}, {WS}, s{sT0} offen sc1")


def poll_issue(A, items, name):
    with Wave0(A, name + "_i"):
        _poll_loads(A, items)
    return A.vm_count


def poll_check(A, items, pos, name, inv=False, drain=False):
    def compare():
        for i, (vdst, _, _, _) in enumerate(items):
            if i == 0:
                A(f"v_cmp_eq_u32 vcc, s{sNONCE}, v{vdst}")
            else:
                A(f"v_cmp_eq_u32 s[{sT4}:{sT5}], s{sNONCE}, v{vdst}")
                A("s_nop 3")
                A(f"s_and_b64 vcc, vcc, s[{sT4}:{sT5}]")
        A("s_nop 3")
        A("s_cmp_eq_u64 vcc, exec")
    with Wave0(A, name + "_c"):
        A(f"s_waitcnt vmcnt({A.vm_count - pos})")
        compare()
        A(f"s_cbranch_scc1 L_{name}_ok")
        A(f"s_mov_b32 s{sCNT}, 0")
        A.label(f"L_{name}_spin")
        A("s_sleep 8")
        _poll_loads(A, items)
        A(f"s_add_u32 s{sCNT}, s{sCNT}, 1")
        A(f"s_cmp_ge_u32 s{sCNT}, {SPIN_MAX}")
        A(f"s_cbranch_scc1 L_{name}_ok")
        A("s_waitcnt vmcnt(0)")
        compare()
        A(f"s_cbranch_scc0 L_{name}_spin")
        A.label(f"L_{name}_ok")
        if inv:
            A("buffer_inv sc1")
        if drain:
            A("s_waitcnt vmcnt(0)")


def nonce_issue(A):
    A(f"v_mov_b32 v{vT}, 0")
    A.vm(f"buffer_load_dword v{vFL}, v{vT}, s[{sDBG}:{sDBG+3}], 0 offen sc1", "nonce")


def nonce_check(A, name):
    A.vm_wait("nonce")
    A("s_nop 0")
    A(f"v_readfirstlane_b32 s{sNONCE}, v{vFL}")
    A("s_nop 3")
    A(f"s_cmp_lg_u32 s{sNONCE}, 0")
    A(f"s_cbranch_scc1 L_{name}_ok")
    A(f"s_mov_b32 s{sCNT}, 0")
    A.label(f"L_{name}_spin")
    A("s_sleep 1")
    A(f"v_mov_b32 v{vT}, 0")
    A(f"buffer_load_dword v{vFL}, v{vT}, s[{sDBG}:{sDBG+3}], 0 offen sc1")
    A(f"s_add_u32 s{sCNT}, s{sCNT}, 1")
    A(f"s_cmp_ge_u32 s{sCNT}, {SPIN_MAX}")
    A(f"s_cbranch_scc1 L_{name}_ok")
    A("s_waitcnt vmcnt(0)")
    A(f"v_readfirstlane_b32 s{sNONCE}, v{vFL}")
    A("s_nop 3")
    A(f"s_cmp_eq_u32 s{sNONCE}, 0")
    A(f"s_cbranch_scc1 L_{name}_spin")
    A.label(f"L_{name}_ok")


def g_dma(A, b, p):
    kb, st, t = b % 10, b % NST, p & 1
    A(f"s_add_u32 m0, s{sLDS1}, {st*STAGE + (p >> 1)*16384 + 8192*t}")
    if p < 2:
        A(f"s_add_u32 s{sT0}, s{sXOFF}, {kb*128 + t*81920}")
        A.vm(f"buffer_load_dwordx4 v{vXD}, s[{sX}:{sX+3}], s{sT0} offen lds", ("d", b))
    else:
        sw = sWA if b < 10 else sWB
        A(f"s_add_u32 s{sT0}, s{sWOFF}, {(kb*64 + 32*t) * 3840}")
        A.vm(f"buffer_load_dwordx4 v{vWD}, s[{sw}:{sw+3}], s{sT0} offen lds", ("d", b))


def g_reads(A, b, ks):
    st = b % NST
    hi, off, buf = st >> 1, (st & 1) * STAGE, ks & 1
    A.lds(f"ds_read_b128 {v(G_XF[buf],4)}, v{vXR + 2*ks + hi} offset:{off}", ("f", b, ks))
    for nt in range(2):
        for q in range(2):
            A.lds(f"ds_read_b64_tr_b16 {v(G_WF[buf][nt]+2*q,2)}, v{vWR1 + 2*nt + hi} offset:{off + ks*4096 + q*1024}", ("f", b, ks))


def g_mfma(A, b, ks, nt, tr):
    buf = ks & 1
    d = G_ACC + 16 * nt
    c = "0" if (b % 10 == 0 and ks == 0) else v(d, 16)
    a, bb = (G_WF[buf][nt], G_XF[buf]) if tr else (G_XF[buf], G_WF[buf][nt])
    A(f"v_mfma_f32_32x32x16_bf16 {v(d,16)}, {v(a,4)}, {v(bb,4)}, {c}")


def pack4(A, dst, src, scale):
    if scale:
        A(f"v_pk_mul_f32 {v(src,2)}, {v(src,2)}, v[{vT+2}:{vT+3}]")
        A(f"v_pk_mul_f32 {v(src+2,2)}, {v(src+2,2)}, v[{vT+2}:{vT+3}]")
    A(f"v_cvt_pk_bf16_f32 v{dst}, v{src}, v{src+1}")
    A(f"v_cvt_pk_bf16_f32 v{dst+1}, v{src+2}, v{src+3}")


def epi_t(A, isb, tag):
    n = f"{'b' if isb else 'a'}"
    A(f"s_lshl_b32 s{sTP}, s{sRB}, 7")
    A(f"s_lshl_b32 s{sT0}, s{sMT}, 5")
    A(f"s_add_u32 s{sTP}, s{sTP}, s{sT0}")
    if isb:
        A(f"s_lshr_b32 s{sTP}, s{sTP}, 1")
    A(f"s_cmp_lt_u32 s{sCT}, 5")
    A(f"s_cbranch_scc0 L_t{n}_k")
    A(f"s_mov_b32 s{sHS}, {QH}")
    A(f"s_mov_b32 s{sPS}, 32768")
    A(f"s_mov_b32 s{sP2}, 65536")
    A(f"s_mov_b32 s{sQS}, {hex(f32bits(QSCALE))}")
    A(f"s_lshl_b32 s{sB16}, s{sTP}, 4")
    A(f"s_lshl_b32 s{sB8}, s{sTP}, 3")
    A(f"s_mov_b32 s{sT0}, {QB if isb else QA}")
    A(f"s_mov_b32 s{sT1}, 16384")
    A(f"s_mov_b32 s{sT2}, 8192")
    A(f"s_branch L_t{n}_go")
    A.label(f"L_t{n}_k")
    A(f"s_mov_b32 s{sHS}, {KVH}")
    A(f"s_mov_b32 s{sPS}, 4096")
    A(f"s_mov_b32 s{sP2}, 8192")
    A(f"s_mov_b32 s{sQS}, 1.0")
    A(f"s_lshr_b32 s{sT0}, s{sTP}, 8")
    A(f"s_mul_i32 s{sT0}, s{sT0}, {CHB}")
    A(f"s_and_b32 s{sT1}, s{sTP}, 255")
    A(f"s_lshl_b32 s{sB16}, s{sT1}, 4")
    A(f"s_add_u32 s{sB16}, s{sB16}, s{sT0}")
    A(f"s_lshl_b32 s{sB8}, s{sT1}, 3")
    A(f"s_add_u32 s{sB8}, s{sB8}, s{sT0}")
    A(f"s_mov_b32 s{sT0}, {KVB if isb else KVA}")
    A(f"s_mov_b32 s{sT1}, {4*CHB}")
    A(f"s_mov_b32 s{sT2}, {4*CHB}")
    A.label(f"L_t{n}_go")
    A(f"s_add_u32 s{sB16}, s{sB16}, s{sT0}")
    A(f"s_add_u32 s{sB8}, s{sB8}, s{sT0}")
    A(f"s_add_u32 s{sB8}, s{sB8}, s{sP2}")
    if isb:
        A(f"v_and_b32 v{vT+4}, 1, v{vR}")
        A(f"v_lshrrev_b32 v{vT+5}, 1, v{vR}")
        A(f"v_mul_lo_u32 v{vT+6}, v{vT+4}, s{sT1}")
        A(f"v_lshl_add_u32 v{vT+6}, v{vT+5}, 4, v{vT+6}")
        A(f"v_lshl_add_u32 v{vA16}, v{vHH}, 3, v{vT+6}")
        A(f"v_mul_lo_u32 v{vT+6}, v{vT+4}, s{sT2}")
        A(f"v_lshl_add_u32 v{vT+6}, v{vT+5}, 3, v{vT+6}")
    else:
        A(f"v_lshlrev_b32 v{vT+6}, 4, v{vR}")
        A(f"v_lshl_add_u32 v{vA16}, v{vHH}, 3, v{vT+6}")
        A(f"v_lshlrev_b32 v{vT+6}, 3, v{vR}")
    A(f"v_mul_lo_u32 v{vT+7}, v{vHH}, s{sHS}")
    A(f"v_add_u32 v{vA8}, v{vT+6}, v{vT+7}")
    A(f"v_mov_b32 v{vT+2}, s{sQS}")
    A(f"v_mov_b32 v{vT+3}, s{sQS}")
    A(f"s_lshl_b32 s{sPI}, s{sCT5}, 4")
    A(f"s_lshl_b32 s{sT0}, s{sNH}, 3")
    A(f"s_add_u32 s{sPI}, s{sPI}, s{sT0}")
    g = 0
    for nt in range(2):
        for j in range(4):
            reg = G_P + 2 * g
            A(f"s_add_u32 s{sT0}, s{sPI}, {4*nt + j}")
            A(f"s_mul_hi_u32 s{sT1}, s{sT0}, 0x33333334")
            A(f"s_mul_i32 s{sT2}, s{sT1}, 5")
            A(f"s_sub_u32 s{sT2}, s{sT0}, s{sT2}")
            A(f"s_lshl_b32 s{sT1}, s{sT1}, 1")
            pack4(A, reg, G_ACC + 16 * nt + 4 * j, True)
            A(f"s_cmp_eq_u32 s{sT2}, 2")
            A(f"s_cbranch_scc1 L_t{n}_mx{g}")
            A(f"s_cmp_ge_u32 s{sT2}, 3")
            A(f"s_cselect_b32 s{sT3}, 1, 0")
            A(f"s_add_u32 s{sT1}, s{sT1}, s{sT3}")
            A(f"s_mul_i32 s{sT3}, s{sT3}, 3")
            A(f"s_sub_u32 s{sT2}, s{sT2}, s{sT3}")
            A(f"s_mul_i32 s{sT1}, s{sT1}, s{sHS}")
            A(f"s_mul_i32 s{sT2}, s{sT2}, s{sPS}")
            A(f"s_add_u32 s{sT1}, s{sT1}, s{sT2}")
            A(f"s_add_u32 s{sT1}, s{sT1}, s{sB16}")
            A(f"buffer_store_dwordx2 {v(reg,2)}, v{vA16}, {WS}, s{sT1} offen sc1")
            A(f"s_branch L_t{n}_mxd{g}")
            A.label(f"L_t{n}_mx{g}")
            A(f"s_mul_i32 s{sT1}, s{sT1}, s{sHS}")
            A(f"s_add_u32 s{sT1}, s{sT1}, s{sB8}")
            A(f"buffer_store_dwordx2 {v(reg,2)}, v{vA8}, {WS}, s{sT1} offen sc1")
            A.label(f"L_t{n}_mxd{g}")
            A.vm_note(tag)
            g += 1


def epi_n(A, isb, tag):
    A(f"s_lshl_b32 s{sTP}, s{sRB}, 7")
    A(f"s_lshl_b32 s{sT0}, s{sMT}, 5")
    A(f"s_add_u32 s{sTP}, s{sTP}, s{sT0}")
    if isb:
        A(f"s_lshr_b32 s{sTP}, s{sTP}, 1")
    A(f"v_mul_u32_u24 v{vT+1}, 320, v{vHH}")
    A(f"s_lshl_b32 s{sT0}, s{sCT5}, 7")
    A(f"s_lshl_b32 s{sT1}, s{sNH}, 6")
    A(f"s_add_u32 s{sT0}, s{sT0}, s{sT1}")
    for nt in range(2):
        A(f"v_add_u32 v{vT+2}, s{sT0}, v{vR}")
        if nt:
            A(f"v_add_u32 v{vT+2}, 32, v{vT+2}")
        A(f"v_mul_u32_u24 v{vT+3}, 3277, v{vT+2}")
        A(f"v_lshrrev_b32 v{vT+3}, 16, v{vT+3}")
        A(f"v_mul_u32_u24 v{vT+4}, 20, v{vT+3}")
        A(f"v_sub_u32 v{vT+4}, v{vT+2}, v{vT+4}")
        A(f"v_mul_u32_u24 v{vT+3}, {KVH}, v{vT+3}")
        A(f"v_lshl_add_u32 v{vT+3}, v{vT+4}, 4, v{vT+3}")
        A(f"v_add_u32 v{vA16+nt}, v{vT+3}, v{vT+1}")
    A(f"s_lshr_b32 s{sT0}, s{sTP}, 8")
    A(f"s_mul_i32 s{sT0}, s{sT0}, {CHB}")
    A(f"s_and_b32 s{sT1}, s{sTP}, 255")
    A(f"s_lshr_b32 s{sT1}, s{sT1}, 4")
    A(f"s_mul_i32 s{sT1}, s{sT1}, 640")
    A(f"s_add_u32 s{sT0}, s{sT0}, s{sT1}")
    A(f"s_add_u32 s{sB16}, s{sT0}, {(KVB if isb else KVA) + 10240}")
    for nt in range(2):
        for a in range(2):
            reg = G_P + 4 * (2 * nt + a)
            src = G_ACC + 16 * nt
            if isb:
                for j in range(4):
                    A(f"v_cvt_pk_bf16_f32 v{reg+j}, v{src+4*j+a}, v{src+4*j+a+2}")
                A(f"s_add_u32 s{sT1}, s{sB16}, {a*4*CHB}")
            else:
                for p in range(4):
                    A(f"v_cvt_pk_bf16_f32 v{reg+p}, v{src+8*a+2*p}, v{src+8*a+2*p+1}")
                A(f"s_add_u32 s{sT1}, s{sB16}, {a*640}")
            A.vm(f"buffer_store_dwordx4 {v(reg,4)}, v{vA16+nt}, {WS}, s{sT1} offen sc1", tag)


def acquire_items():
    return [(vFL, vF1, F1A, None), (vFL2, vF2, F1A, None)]


def p2_loads(A):
    dma_chunk(A, 0)
    A.vm(f"buffer_load_dwordx4 {v(Q01,4)}, v{vQA}, {WS}, s{sQOFF} offen sc1", "q")
    A(f"v_mov_b32 v{Q2}, 0")
    A(f"v_mov_b32 v{Q2+1}, 0")
    A("s_mov_b32 exec_hi, 0")
    A.vm(f"buffer_load_dwordx2 {v(Q2,2)}, v{vQA2}, {WS}, s{sQOFF2} offen sc1", "q")
    A("s_mov_b32 exec_hi, -1")
    dma_chunk(A, 1)
    dma_chunk(A, 2)


def gemm(A, tr, n):
    A.vm_q = [("d", 0)] * 4 + [("d", 1)] * 4
    A.lds_q = []
    A.vm_wait(("d", 0))
    A("s_barrier")
    A.stamp("blk0 landed", 2)
    g_reads(A, 0, 0)
    pend = [(2, p) for p in range(4)] + [(3, p) for p in range(4)]
    for b in range(NB):
        for ks in range(4):
            last = ks == 3
            A.lds_wait(("f", b, ks)) if not last else A.lds_wait_all()
            g_mfma(A, b, ks, 0, tr)
            if not last:
                g_reads(A, b, ks + 1)
                for _ in range(3 if b == 0 else 2):
                    if pend:
                        g_dma(A, *pend.pop(0))
            g_mfma(A, b, ks, 1, tr)
            if last and b + 1 < NB:
                assert not pend
                if b == 12:
                    A.vm_wait("sa")
                if b == 16:
                    poll_check(A, acquire_items(), pos_f1, f"f1{n}")
                A.vm_wait(("d", b + 1))
                A("s_barrier")
                if EXP.get("stampB") and b in (11, 12, 15, 16):
                    A.stamp("", {11: 7, 12: 8, 15: 9, 16: 10}[b])
                g_reads(A, b + 1, 0)
                if b + NST < NB:
                    pend = [(b + NST, p) for p in range(4)]
                if b == 5:
                    nonce_issue(A)
                if b == 7:
                    nonce_check(A, f"nonce{n}")
                if b == 12:
                    with Wave0(A, f"puba{n}"):
                        publish(A, sF1, F1A)
                if b == 15:
                    pos_f1 = poll_issue(A, acquire_items(), f"f1{n}")
                if b == 17:
                    p2_loads(A)
        if b == 9 or b == 19:
            A.stamp("gemm%d" % (b // 10), 3 + 2 * (b // 10))
            A.lds_wait_all() if b == 9 else None
            A("s_nop 7")
            A("s_nop 7")
            (epi_t if tr else epi_n)(A, b == 19, "sa" if b == 9 else "sb")
            A.stamp("epi%d" % (b // 10), 4 + 2 * (b // 10))
    A.vm_wait("q")


def spare(A):
    sWO, sG = sWA, sWB
    A.label("L_spare")
    A.vm_q, A.lds_q = [], []
    A("s_load_dwordx2 s[4:5], s[0:1], 16")
    A("s_load_dwordx2 s[6:7], s[0:1], 40")
    A(f"s_load_dwordx2 s[{sP}:{sP+1}], s[0:1], 48")
    A("s_waitcnt lgkmcnt(0)")
    A(f"s_cmp_lt_u32 s{sRB}, 8")
    A("s_cbranch_scc1 L_sp_a")
    A("s_mov_b32 s4, s6")
    A("s_mov_b32 s5, s7")
    A.label("L_sp_a")
    srd(A, sWO, 4, WO_BYTES)
    srd(A, sG, sP, 1280)
    A(f"s_and_b32 s{sT1}, s{sRB}, 7")
    A(f"s_mul_i32 s{sT1}, s{sT1}, {80*1280}")
    A(f"s_add_u32 s{sT1}, s{sT1}, s{sLDS1}")
    for t in range(13):
        if t == 12:
            A(f"s_cmp_ge_u32 s{sW}, 4")
            A("s_cbranch_scc1 L_sp_dma_done")
        A(f"s_add_u32 m0, s{sLDS1}, {8192*t}")
        A(f"s_add_u32 s{sT0}, s{sT1}, {8192*t}")
        A(f"buffer_load_dwordx4 v{vL16}, s[{sWO}:{sWO+3}], s{sT0} offen lds")
    A.label("L_sp_dma_done")
    XG, GG = 28, 68
    A(f"v_lshrrev_b32 v{vT+1}, 2, v{vL}")
    A(f"s_lshl_b32 s{sT0}, s{sW}, 4")
    A(f"v_add_u32 v{vT+1}, s{sT0}, v{vT+1}")
    A(f"v_and_b32 v{vT+2}, 3, v{vL}")
    A(f"v_lshlrev_b32 v{vT+2}, 4, v{vT+2}")
    A(f"v_mul_u32_u24 v{vT+3}, 1280, v{vT+1}")
    A(f"v_add_u32 v{vT+3}, v{vT+3}, v{vT+2}")
    A(f"v_mov_b32 v{vT+4}, 0")
    for half in range(2):
        for i in range(10):
            A(f"buffer_load_dwordx4 {v(XG+4*i,4)}, v{vT+3}, s[{sX}:{sX+3}], s{sXOFF} offen offset:{(10*half+i)*64}")
            A(f"buffer_load_dwordx4 {v(GG+4*i,4)}, v{vT+2}, s[{sG}:{sG+3}], 0 offen offset:{(10*half+i)*64}")
        A("s_waitcnt vmcnt(0)")
        for i in range(40):
            A(f"v_dot2_f32_bf16 v{vT+4}, v{XG+i}, v{GG+i}, v{vT+4}")
    A("s_nop 2")
    A(f"v_add_f32_dpp v{vT+4}, v{vT+4}, v{vT+4} quad_perm:[1,0,3,2] row_mask:0xf bank_mask:0xf")
    A("s_nop 1")
    A(f"v_add_f32_dpp v{vT+4}, v{vT+4}, v{vT+4} quad_perm:[2,3,0,1] row_mask:0xf bank_mask:0xf")
    A(f"v_mul_f32 v{vT+4}, {hex(f32bits(-LOG2E))}, v{vT+4}")
    A(f"v_exp_f32 v{vT+4}, v{vT+4}")
    A("s_nop 0")
    A(f"v_add_f32 v{vT+4}, 1.0, v{vT+4}")
    A(f"v_rcp_f32 v{vT+4}, v{vT+4}")
    A(f"s_lshl_b32 s{sT0}, s{sRB}, 9")
    A(f"s_add_u32 s{sT0}, s{sT0}, {GATE}")
    A(f"v_lshlrev_b32 v{vT+1}, 2, v{vT+1}")
    A("s_mov_b32 exec_lo, 0x11111111")
    A("s_mov_b32 exec_hi, 0x11111111")
    A(f"buffer_store_dword v{vT+4}, v{vT+1}, {WS}, s{sT0} offen sc1")
    A("s_mov_b64 exec, -1")
    A("s_waitcnt vmcnt(0)")
    A("s_barrier")
    A(f"v_bfe_u32 v{vT+1}, v{vL}, 2, 2")
    A(f"v_mul_u32_u24 v{vT+1}, 1280, v{vT+1}")
    A(f"v_lshrrev_b32 v{vT+2}, 4, v{vL}")
    A(f"v_lshl_add_u32 v{vT+1}, v{vT+2}, 5, v{vT+1}")
    A(f"v_and_b32 v{vT+2}, 3, v{vL}")
    A(f"v_lshl_add_u32 v{vT+1}, v{vT+2}, 3, v{vT+1}")
    A(f"s_mul_i32 s{sT3}, s{sRB}, {10*10240}")
    A(f"s_add_u32 s{sT3}, s{sT3}, {WOT}")
    A(f"s_mov_b32 s{sT1}, s{sW}")
    A.label("L_sp_loop")
    A(f"s_mul_hi_u32 s{sT2}, s{sT1}, 0x1999999a")
    A(f"s_mul_i32 s{sT0}, s{sT2}, 10")
    A(f"s_sub_u32 s{sT0}, s{sT1}, s{sT0}")
    A(f"s_mul_i32 s{sT4}, s{sT2}, 10240")
    A(f"s_lshl_b32 s{sT5}, s{sT0}, 7")
    A(f"s_add_u32 s{sT4}, s{sT4}, s{sT5}")
    A(f"v_add_u32 v{vT+3}, s{sT4}, v{vT+1}")
    A(f"ds_read_b64_tr_b16 v[{XG}:{XG+1}], v{vT+3}")
    A(f"ds_read_b64_tr_b16 v[{XG+2}:{XG+3}], v{vT+3} offset:5120")
    A(f"s_mul_i32 s{sT4}, s{sT2}, 10240")
    A(f"s_lshl_b32 s{sT5}, s{sT0}, 10")
    A(f"s_add_u32 s{sT4}, s{sT4}, s{sT5}")
    A(f"s_add_u32 s{sT4}, s{sT4}, s{sT3}")
    A("s_waitcnt lgkmcnt(0)")
    A(f"buffer_store_dwordx4 {v(XG,4)}, v{vL16}, {WS}, s{sT4} offen sc1")
    A(f"s_add_u32 s{sT1}, s{sT1}, 8")
    A(f"s_cmp_lt_u32 s{sT1}, 100")
    A("s_nop 1")
    A("s_cbranch_scc1 L_sp_loop")
    nonce_issue(A)
    nonce_check(A, "noncesp")
    A("s_waitcnt vmcnt(0)")
    A("s_barrier")
    A.vm_q = []
    with Wave0(A, "pubsp"):
        publish(A, sF1, F1A)
    pos = poll_issue(A, acquire_items(), "f1sp")
    poll_check(A, acquire_items(), pos, "f1sp")
    A("s_barrier")
    A.vm_q = []
    p2_loads(A)
    A.vm_wait("q")
    for i in (2, 3, 4, 5, 6) + ((7, 8, 9, 10) if EXP.get("stampB") else ()):
        A.stamp("", i)
    A("s_branch L_attn")


def mf16(A, d, a, b, c):
    A(f"v_mfma_f32_32x32x16_bf16 {v(d,16)}, {v(a,4)}, {v(b,4)}, {c}")


def mf8(A, d, a, b, c):
    A(f"v_mfma_f32_32x32x8_bf16 {v(d,16)}, {v(a,2)}, {v(b,2)}, {c}")


def dma_chunk_piece(A, c, t):
    slot = c % NSLOT
    A(f"s_add_u32 m0, s{sLDSW}, {slot*SLOT + 1024*t}")
    A(f"s_add_u32 s{sT0}, s{sSRC}, {CHB*c + 1024*t}")
    if t == 2:
        A("s_mov_b32 exec_hi, 0")
    A.vm(f"buffer_load_dwordx4 v{vL16}, {WS}, s{sT0} offen sc1 lds", ("c", c))
    if t == 2:
        A("s_mov_b32 exec_hi, -1")


def dma_chunk(A, c):
    for t in range(3):
        dma_chunk_piece(A, c, t)


def dma_w_piece(A, part, st, t):
    slot = (WA_SLOT if part == 0 else WB_SLOT)[st]
    A(f"s_add_u32 m0, s{sLDSW}, {slot*SLOT + 1024*t}")
    A(f"s_add_u32 s{sT0}, s{sWSRC}, {(part*80 + 16*st)*10240}")
    if t == 2:
        A("s_mov_b32 exec_hi, 0")
    A.vm(f"buffer_load_dwordx4 v{(vW0, vW1, vW2)[t]}, {WS}, s{sT0} offen sc1 lds", ("w", part, st))
    if t == 2:
        A("s_mov_b32 exec_hi, -1")


def rd_k01(A, t):
    c, tt = t // TPC, t % TPC
    A.lds(f"ds_read_b128 {v(K01,4)}, v{vK01 + c % NSLOT} offset:{tt*512}", ("k01", t))


def rd_k2(A, t):
    c, tt = t // TPC, t % TPC
    A.lds(f"ds_read_b64 {v(K2,2)}, v{vK2 + c % NSLOT} offset:{8192 + tt*256}", ("k2", t))


def rd_v(A, t, a):
    c, tt = t // TPC, t % TPC
    A.lds(f"ds_read_b128 {v(V1 if a else V0,4)}, v{vV + c % NSLOT} offset:{(2*tt + a)*640}", ("v", t, a))


def exps(A, sreg, g, preg=P):
    for i in range(4):
        A(f"v_exp_f32 v{sreg+4*g+i}, v{sreg+4*g+i}")
    A(f"v_cvt_pk_bf16_f32 v{preg+2*g}, v{sreg+4*g}, v{sreg+4*g+1}")
    A(f"v_cvt_pk_bf16_f32 v{preg+2*g+1}, v{sreg+4*g+2}, v{sreg+4*g+3}")


def cross_half_max(A, reg, tmp):
    A(f"v_mov_b32 v{tmp}, v{reg}")
    A("s_nop 1")
    A(f"v_permlane32_swap_b32 v{reg}, v{tmp}")
    A("s_nop 1")
    A(f"v_max_f32 v{reg}, v{reg}, v{tmp}")


def max16(A, dst, src, first):
    if first:
        A(f"v_max3_f32 v{dst}, v{src}, v{src+1}, v{src+2}")
        rest = list(range(3, 16))
    else:
        rest = list(range(0, 16))
    while rest:
        if len(rest) >= 2:
            A(f"v_max3_f32 v{dst}, v{dst}, v{src+rest[0]}, v{src+rest[1]}")
            rest = rest[2:]
        else:
            A(f"v_max_f32 v{dst}, v{dst}, v{src+rest[0]}")
            rest = rest[1:]


def row_sum(A, oreg):
    A(f"v_mov_b32 v{vT}, v{oreg+8}")
    A(f"v_mov_b32 v{vT+1}, v{oreg+8}")
    A("s_nop 1")
    A(f"v_permlane32_swap_b32 v{vT}, v{vT+1}")


def finish_tile(A, oreg, gate, one_minus, vaddr, tok_sreg, chunk0, tag):
    A(f"v_rcp_f32 v{vT+2}, v{vT+1}")
    A(f"s_lshl_b32 s{sT0}, s{tok_sreg}, 4")
    A(f"s_add_u32 s{sT0}, s{sT0}, {OC + chunk0*32768}")
    if one_minus:
        A(f"v_sub_f32 v{vT}, 1.0, v{gate}")
        A(f"v_mul_f32 v{vT+2}, v{vT+2}, v{vT}")
    else:
        A(f"v_mul_f32 v{vT+2}, v{vT+2}, v{gate}")
    A(f"v_mov_b32 v{vT+3}, v{vT+2}")
    for j in range(3):
        A(f"v_pk_mul_f32 {v(oreg+4*j,2)}, {v(oreg+4*j,2)}, v[{vT+2}:{vT+3}]")
        A(f"v_pk_mul_f32 {v(oreg+4*j+2,2)}, {v(oreg+4*j+2,2)}, v[{vT+2}:{vT+3}]")
        A(f"v_cvt_pk_bf16_f32 v{oreg+4*j}, v{oreg+4*j}, v{oreg+4*j+1}")
        A(f"v_cvt_pk_bf16_f32 v{oreg+4*j+1}, v{oreg+4*j+2}, v{oreg+4*j+3}")
        if j == 2:
            A("s_mov_b32 exec_hi, 0")
        A.vm(f"buffer_store_dwordx2 {v(oreg+4*j,2)}, v{vaddr}, {WS}, s{sT0} offen sc1", tag)
        if j < 2:
            A(f"s_add_u32 s{sT0}, s{sT0}, 32768")
    A("s_mov_b64 exec, -1")


def oc_load(A, part, k):
    reg = OCA if part == 0 else OCB
    A(f"s_add_u32 s{sT0}, s{sOCB}, {(part*80 + 4*k)*32768}")
    A.vm(f"buffer_load_dwordx4 {v(reg+4*k,4)}, v{vOC}, {WS}, s{sT0} offen sc1", ("oc", part, k))


def outproj(A, part, first, hook=None):
    slots = WA_SLOT if part == 0 else WB_SLOT
    reg = OCA if part == 0 else OCB
    for kg in range(2):
        if kg == 0:
            A(f"s_cmp_eq_u32 s{sKG}, 1")
            A(f"s_cbranch_scc1 L_op{part}_g1")
            saved = (list(A.vm_q), list(A.lds_q))
        else:
            A.label(f"L_op{part}_g1")
            A.vm_q, A.lds_q = list(saved[0]), list(saved[1])
        seq = [(k, nt) for k in range(10) for nt in range(5)]

        def rd(i):
            k, nt = seq[i]
            kk = 10 * kg + k
            off = slots[kk // 4] * SLOT + (kk % 4) * 5120 + nt * 256
            areg = (vWR, vT + 5, vT + 6)[off >> 16]
            A.lds(f"ds_read_b128 {v(WF + (i % 8)*4,4)}, v{areg} offset:{off & 0xffff}", ("wf", i))

        LOOK = 5
        for i in range(LOOK):
            rd(i)
        for i, (k, nt) in enumerate(seq):
            if i + LOOK < len(seq):
                rd(i + LOOK)
            if nt == 0:
                A.vm_wait(("oc", part, k))
                if hook:
                    hook(k, kg)
            A.lds_wait(("wf", i))
            c = "0" if (first and k == 0) else v(ACC + 4*nt, 4)
            A(f"v_mfma_f32_16x16x32_bf16 {v(ACC+4*nt,4)}, {v(WF + (i % 8)*4,4)}, {v(reg+4*k,4)}, {c}")
        if kg == 0:
            end0 = (list(A.vm_q), list(A.lds_q))
            A(f"s_branch L_op{part}_done")
    A.label(f"L_op{part}_done")
    assert end0[0] == A.vm_q and end0[1] == A.lds_q


def keypos(kappa):
    return (kappa & 25) | ((kappa >> 1) & 1) << 2 | ((kappa >> 2) & 1) << 1


def band_mask(j, i, prev):
    m = 0
    for l in range(64):
        q, hh = l & 31, l >> 5
        key = keypos(8 * j + 4 * hh + i) - (32 if prev else 0)
        if 0 <= q - key <= 7:
            m |= 1 << l
    return m


def b_consts(A):
    A(f"v_cmp_eq_u32 vcc, 20, v{vR}")
    A(f"v_mov_b32 v{vT+6}, 0")
    A(f"v_mov_b32 v{vT+7}, 0x3f803f80")
    A(f"v_cndmask_b32 v{vT+6}, v{vT+6}, v{vT+7}, vcc")
    for base in (BV0, BV1, BVP):
        for i in range(4):
            A(f"v_mov_b32 v{base+i}, v{vT+6}")
    A(f"v_mov_b32 v{BQ2}, 0")
    A(f"v_mov_b32 v{BQ2+1}, 0")


def b_load_items():
    def mk(instr, pre=None):
        def f(A):
            if pre:
                A(pre)
            A.vm(instr, "b")
            if pre:
                A("s_mov_b64 exec, -1")
        return f
    lo20 = f"s_mov_b64 exec, s[{sLO20}:{sLO20+1}]"
    return [
        mk(f"buffer_load_dwordx4 {v(BQ01,4)}, v{vBA}, {WS}, s{sBA} offen sc1"),
        mk(f"buffer_load_dwordx4 {v(BK01,4)}, v{vBA+2}, {WS}, s{sBA+2} offen sc1"),
        mk(f"buffer_load_dwordx2 {v(BK2,2)}, v{vBA+3}, {WS}, s{sBA+3} offen sc1"),
        mk(f"buffer_load_dwordx4 {v(BKP01,4)}, v{vBA+2}, {WS}, s{sBA+5} offen sc1"),
        mk(f"buffer_load_dwordx2 {v(BKP2,2)}, v{vBA+3}, {WS}, s{sBA+6} offen sc1"),
        mk(f"buffer_load_dword v{vGB}, v{vBA+1}, {WS}, s{sBA+8} offen sc1"),
        mk(f"buffer_load_dwordx2 {v(BQ2,2)}, v{vBA+1}, {WS}, s{sBA+1} offen sc1", "s_mov_b32 exec_hi, 0"),
        mk(f"buffer_load_dwordx4 {v(BV0,4)}, v{vBA+4}, {WS}, s{sBA+4} offen sc1", lo20),
        mk(f"buffer_load_dwordx4 {v(BV1,4)}, v{vBA+4}, {WS}, s{sBA+4} offen offset:640 sc1", lo20),
        mk(f"buffer_load_dwordx4 {v(BVP,4)}, v{vBA+4}, {WS}, s{sBA+7} offen offset:640 sc1", lo20),
    ]


def b_unit(A):
    S0, S1 = BS0, BS1
    A.vm_wait("b")
    mf16(A, S0, BK01, BQ01, "0")
    mf16(A, S1, BKP01, BQ01, "0")
    mf8(A, S0, BK2, BQ2, v(S0, 16))
    mf8(A, S1, BKP2, BQ2, v(S1, 16))
    A(f"v_mov_b32 v{vT}, {hex(f32bits(-1e30))}")
    A(f"s_cmp_eq_u32 s{sQT}, 0")
    A(f"s_cselect_b32 s{sT3}, 0, -1")
    A("s_nop 7")
    A("s_nop 5")
    for j in range(4):
        for i in range(4):
            m = band_mask(j, i, False)
            A(f"s_mov_b32 s{sM}, {hex(m & 0xffffffff)}")
            A(f"s_mov_b32 s{sM+1}, {hex(m >> 32)}")
            A(f"v_cndmask_b32 v{S0+4*j+i}, v{vT}, v{S0+4*j+i}, s[{sM}:{sM+1}]")
    for i in range(4):
        m = band_mask(3, i, True)
        A(f"s_and_b32 s{sM}, s{sT3}, {hex(m & 0xffffffff)}")
        A(f"s_and_b32 s{sM+1}, s{sT3}, {hex(m >> 32)}")
        A(f"v_cndmask_b32 v{S1+12+i}, v{vT}, v{S1+12+i}, s[{sM}:{sM+1}]")
    max16(A, vT + 1, S0, True)
    A(f"v_max3_f32 v{vT+1}, v{vT+1}, v{S1+12}, v{S1+13}")
    A(f"v_max3_f32 v{vT+1}, v{vT+1}, v{S1+14}, v{S1+15}")
    cross_half_max(A, vT + 1, vT + 2)
    for r in list(range(S0, S0 + 16)) + list(range(S1 + 12, S1 + 16)):
        A(f"v_sub_f32 v{r}, v{r}, v{vT+1}")
    for g in range(4):
        exps(A, S0, g, BP)
    PP = BP + 8
    for i in range(4):
        A(f"v_exp_f32 v{S1+12+i}, v{S1+12+i}")
    A(f"v_mov_b32 v{PP}, 0")
    A(f"v_mov_b32 v{PP+1}, 0")
    A(f"v_cvt_pk_bf16_f32 v{PP+2}, v{S1+12}, v{S1+13}")
    A(f"v_cvt_pk_bf16_f32 v{PP+3}, v{S1+14}, v{S1+15}")
    A("s_nop 1")
    mf16(A, BO, BV0, BP, "0")
    mf16(A, BO, BV1, BP + 4, v(BO, 16))
    mf16(A, BO, BVP, PP, v(BO, 16))
    A("s_nop 7")
    A("s_nop 3")
    row_sum(A, BO)
    A("s_nop 1")
    finish_tile(A, BO, vGB, True, vOST + 1, sBT, 80, "stb")


def fallback(A):
    A.label("L_fallback")
    A("s_waitcnt vmcnt(0) lgkmcnt(0)")
    A(f"v_lshlrev_b32 v{vT+4}, 12, v{vHH}")
    A(f"v_lshl_add_u32 v{vT+4}, v{vR}, 4, v{vT+4}")
    A(f"v_lshlrev_b32 v{vT+5}, 3, v{vR}")
    A(f"v_mul_u32_u24 v{vT+6}, 320, v{vHH}")
    A(f"v_lshl_add_u32 v{vT+6}, v{vR}, 4, v{vT+6}")
    A(f"v_mov_b32 v{vT+7}, {hex(f32bits(-3.0e38))}")

    def tile_addr():
        A(f"s_lshr_b32 s{sT0}, s{sCNT}, 3")
        A(f"s_mul_i32 s{sT0}, s{sT0}, {CHB}")
        A(f"s_add_u32 s{sT0}, s{sT0}, s{sKV}")
        A(f"s_and_b32 s{sT3}, s{sCNT}, 7")
        A(f"s_lshl_b32 s{sT1}, s{sT3}, 9")
        A(f"s_add_u32 s{sT1}, s{sT1}, s{sT0}")
        A(f"s_lshl_b32 s{sT2}, s{sT3}, 8")
        A(f"s_add_u32 s{sT2}, s{sT2}, s{sT0}")
        A(f"s_add_u32 s{sT2}, s{sT2}, 8192")
        A(f"s_mul_i32 s{sT3}, s{sT3}, 1280")
        A(f"s_add_u32 s{sT3}, s{sT3}, s{sT0}")
        A(f"s_add_u32 s{sT3}, s{sT3}, 10240")

    A(f"s_mov_b32 s{sCNT}, 0")
    A.label("L_fb1")
    tile_addr()
    A(f"buffer_load_dwordx4 {v(K01,4)}, v{vT+4}, {WS}, s{sT1} offen sc1")
    A(f"buffer_load_dwordx2 {v(K2,2)}, v{vT+5}, {WS}, s{sT2} offen sc1")
    A("s_waitcnt vmcnt(0)")
    mf16(A, SA, K01, Q01, "0")
    mf8(A, SA, K2, Q2, v(SA, 16))
    A("s_nop 7")
    A("s_nop 7")
    max16(A, vT + 7, SA, False)
    A(f"s_add_u32 s{sCNT}, s{sCNT}, 1")
    A(f"s_cmp_lt_u32 s{sCNT}, 64")
    A("s_cbranch_scc1 L_fb1")
    cross_half_max(A, vT + 7, vT)
    for i in range(16):
        A(f"v_sub_f32 v{NEGM+i}, 0, v{vT+7}")
        A(f"v_mov_b32 v{O+i}, 0")
    A(f"v_cmp_eq_u32 vcc, 20, v{vR}")
    A(f"v_mov_b32 v{vT}, 0")
    A(f"v_mov_b32 v{vT+1}, 0x3f803f80")
    A(f"v_cndmask_b32 v{vT}, v{vT}, v{vT+1}, vcc")
    for i in range(4):
        A(f"v_mov_b32 v{V0+i}, v{vT}")
        A(f"v_mov_b32 v{V1+i}, v{vT}")
    A(f"s_mov_b32 s{sCNT}, 0")
    A.label("L_fb2")
    tile_addr()
    A(f"buffer_load_dwordx4 {v(K01,4)}, v{vT+4}, {WS}, s{sT1} offen sc1")
    A(f"buffer_load_dwordx2 {v(K2,2)}, v{vT+5}, {WS}, s{sT2} offen sc1")
    A(f"s_mov_b64 exec, s[{sLO20}:{sLO20+1}]")
    A(f"buffer_load_dwordx4 {v(V0,4)}, v{vT+6}, {WS}, s{sT3} offen sc1")
    A(f"buffer_load_dwordx4 {v(V1,4)}, v{vT+6}, {WS}, s{sT3} offen offset:640 sc1")
    A("s_mov_b64 exec, -1")
    A("s_waitcnt vmcnt(0)")
    mf16(A, SA, K01, Q01, v(NEGM, 16))
    mf8(A, SA, K2, Q2, v(SA, 16))
    A("s_nop 7")
    A("s_nop 7")
    for g in range(4):
        exps(A, SA, g)
    A("s_nop 1")
    mf16(A, O, V0, P, v(O, 16))
    mf16(A, O, V1, P + 4, v(O, 16))
    A(f"s_add_u32 s{sCNT}, s{sCNT}, 1")
    A(f"s_cmp_lt_u32 s{sCNT}, 64")
    A("s_cbranch_scc1 L_fb2")
    A("s_nop 7")
    A("s_nop 7")
    row_sum(A, O)
    A("s_nop 1")
    A("s_branch L_finish")


def setup_phase1_reads(A):
    A(f"v_lshrrev_b32 v{vT+2}, 1, v{vR}")
    A(f"v_and_b32 v{vT+2}, 7, v{vT+2}")
    A(f"v_xor_b32 v{vT+2}, v{vT+2}, v{vHH}")
    A(f"v_lshlrev_b32 v{vT+2}, 4, v{vT+2}")
    A(f"s_lshl_b32 s{sT0}, s{sMT}, 5")
    A(f"v_add_u32 v{vT+3}, s{sT0}, v{vR}")
    A(f"v_lshl_add_u32 v{vXR}, v{vT+3}, 7, v{vT+2}")
    for ks in range(1, 4):
        A(f"v_xor_b32 v{vXR+2*ks}, {ks*32}, v{vXR}")
    for ks in range(4):
        A(f"v_add_u32 v{vXR+2*ks+1}, 0x10000, v{vXR+2*ks}")
    A(f"v_bfe_u32 v{vT+2}, v{vL}, 2, 2")
    A(f"v_lshl_add_u32 v{vT+3}, v{vHH}, 3, v{vT+2}")
    A(f"v_lshlrev_b32 v{vT+3}, 8, v{vT+3}")
    A(f"v_bfe_u32 v{vT+4}, v{vL}, 4, 1")
    A(f"v_lshlrev_b32 v{vT+4}, 5, v{vT+4}")
    A(f"v_add_u32 v{vT+3}, v{vT+3}, v{vT+4}")
    A(f"v_and_b32 v{vT+4}, 3, v{vL}")
    A(f"v_lshlrev_b32 v{vT+4}, 3, v{vT+4}")
    A(f"v_add_u32 v{vT+3}, v{vT+3}, v{vT+4}")
    A(f"v_add_u32 v{vT+3}, 16384, v{vT+3}")
    for nt in range(2):
        A(f"s_lshl_b32 s{sT0}, s{sNH}, 1")
        A(f"s_add_u32 s{sT0}, s{sT0}, {nt}")
        A(f"v_xor_b32 v{vT+4}, s{sT0}, v{vT+2}")
        A(f"v_lshl_add_u32 v{vWR1+2*nt}, v{vT+4}, 6, v{vT+3}")
        A(f"v_add_u32 v{vWR1+2*nt+1}, 0x10000, v{vWR1+2*nt}")


def setup_phase2(A):
    A(f"s_lshl_b32 s{sF1}, s{sCT}, 4")
    A(f"s_add_u32 s{sF1}, s{sF1}, s{sRB}")
    A(f"s_lshl_b32 s{sF1}, s{sF1}, 2")
    A(f"s_and_b32 s{sT0}, s2, 7")
    A(f"s_lshl_b32 s{sT0}, s{sT0}, 2")
    A(f"s_lshr_b32 s{sT1}, s2, 3")
    A(f"s_and_b32 s{sT1}, s{sT1}, 3")
    A(f"s_add_u32 s{sH}, s{sT0}, s{sT1}")
    A(f"s_lshr_b32 s{sQB}, s2, 5")
    A(f"s_mul_i32 s{sKV}, s{sH}, {KVH}")
    A(f"s_add_u32 s{sKV}, s{sKV}, {KVA}")
    A(f"s_mul_i32 s{sLDSW}, s{sW}, 2560")
    A(f"s_add_u32 s{sSRC}, s{sKV}, s{sLDSW}")
    A(f"s_lshl_b32 s{sQ0}, s{sQB}, 8")
    A(f"s_lshl_b32 s{sT0}, s{sW}, 5")
    A(f"s_add_u32 s{sQ0}, s{sQ0}, s{sT0}")
    A(f"s_lshl_b32 s{sQT}, s{sQB}, 2")
    A(f"s_lshr_b32 s{sT0}, s{sW}, 1")
    A(f"s_add_u32 s{sQT}, s{sQT}, s{sT0}")
    A(f"s_and_b32 s{sT1}, s{sW}, 1")
    A(f"s_lshl_b32 s{sBT}, s{sQT}, 6")
    A(f"s_add_u32 s{sBT}, s{sBT}, s{sT1}")
    A(f"s_mov_b32 s{sLO20}, 0xfffff")
    A(f"s_mov_b32 s{sLO20+1}, 0xfffff")
    A(f"v_lshlrev_b32 v{vQA}, 15, v{vHH}")
    A(f"v_lshl_add_u32 v{vQA}, v{vR}, 4, v{vQA}")
    A(f"v_lshlrev_b32 v{vQA2}, 3, v{vR}")
    A(f"v_lshlrev_b32 v{vGA}, 2, v{vR}")
    A(f"s_mul_i32 s{sT1}, s{sH}, {QH}")
    A(f"s_lshl_b32 s{sQOFF}, s{sQ0}, 4")
    A(f"s_add_u32 s{sQOFF}, s{sQOFF}, s{sT1}")
    if QA:
        A(f"s_add_u32 s{sQOFF}, s{sQOFF}, {QA}")
    A(f"s_lshl_b32 s{sQOFF2}, s{sQ0}, 3")
    A(f"s_add_u32 s{sQOFF2}, s{sQOFF2}, s{sT1}")
    A(f"s_add_u32 s{sQOFF2}, s{sQOFF2}, {QA + 65536}")
    A(f"s_lshl_b32 s{sGOFF}, s{sQ0}, 2")
    A(f"s_add_u32 s{sGOFF}, s{sGOFF}, {GATE}")
    A(f"v_lshlrev_b32 v{vT}, 12, v{vHH}")
    A(f"v_lshl_add_u32 v{vT}, v{vR}, 4, v{vT}")
    A(f"v_lshlrev_b32 v{vT+1}, 3, v{vR}")
    A(f"v_mul_u32_u24 v{vT+2}, 320, v{vHH}")
    A(f"v_lshl_add_u32 v{vT+2}, v{vR}, 4, v{vT+2}")
    A(f"v_add_u32 v{vT+3}, {ONES}, v{vT+2}")
    A(f"v_cmp_gt_u32 vcc, 20, v{vR}")
    for sl in range(NSLOT):
        A(f"v_add_u32 v{vK01+sl}, {sl*SLOT}, v{vT}")
        A(f"v_add_u32 v{vK2+sl}, {sl*SLOT}, v{vT+1}")
        A(f"v_add_u32 v{vT+4}, {sl*SLOT + 10240}, v{vT+2}")
        A(f"v_cndmask_b32 v{vV+sl}, v{vT+3}, v{vT+4}, vcc")
    A(f"s_mul_i32 s{sT0}, s{sH}, 5")
    A(f"v_add_u32 v{vT}, s{sT0}, v{vHH}")
    A(f"v_lshrrev_b32 v{vT+1}, 1, v{vT}")
    A(f"v_lshlrev_b32 v{vT+1}, 15, v{vT+1}")
    A(f"v_and_b32 v{vT}, 1, v{vT}")
    A(f"v_lshl_add_u32 v{vT+1}, v{vT}, 3, v{vT+1}")
    A(f"v_lshl_add_u32 v{vOST}, v{vR}, 4, v{vT+1}")
    A(f"v_lshl_add_u32 v{vOST+1}, v{vR}, 5, v{vT+1}")
    A(f"s_mul_i32 s{sT0}, s{sH}, 20")
    A(f"s_add_u32 s{sT1}, s{sT0}, 19")
    A(f"s_lshr_b32 s{sT0}, s{sT0}, 7")
    A(f"s_lshr_b32 s{sT1}, s{sT1}, 7")
    A(f"v_bfe_u32 v{vT}, v{vL}, 4, 1")
    A(f"s_sub_u32 s{sT2}, s{sT1}, s{sT0}")
    A(f"v_mul_u32_u24 v{vT+1}, s{sT2}, v{vT}")
    A(f"v_add_u32 v{vT+1}, s{sT0}, v{vT+1}")
    A(f"v_mul_u32_u24 v{vT+2}, 5, v{vHH}")
    A(f"v_add_u32 v{vT+2}, 5, v{vT+2}")
    A(f"v_add_u32 v{vT+2}, v{vT+2}, v{vT+1}")
    A(f"v_and_b32 v{vT+3}, 15, v{vL}")
    A(f"v_lshl_add_u32 v{vT+2}, v{vT+2}, 4, v{vT+3}")
    A(f"v_lshlrev_b32 v{vF1}, 2, v{vT+2}")
    A(f"v_add_u32 v{vT+2}, {15*16}, v{vT+3}")
    A(f"v_lshlrev_b32 v{vF4}, 2, v{vT+2}")
    A(f"v_and_b32 v{vT+4}, 1, v{vL}")
    A(f"s_lshl_b32 s{sT3}, s{sQB}, 1")
    A(f"v_add_u32 v{vT+4}, s{sT3}, v{vT+4}")
    A(f"v_lshl_add_u32 v{vT+4}, v{vT+1}, 4, v{vT+4}")
    A(f"v_lshlrev_b32 v{vF2}, 2, v{vT+4}")
    A(f"v_and_b32 v{vT}, 1, v{vL}")
    A(f"v_mul_u32_u24 v{vT+1}, s{sT2}, v{vT}")
    A(f"v_add_u32 v{vT+1}, s{sT0}, v{vT+1}")
    A(f"v_bfe_u32 v{vT+2}, v{vL}, 1, 2")
    A(f"v_min_u32 v{vT+2}, 2, v{vT+2}")
    A(f"v_mul_u32_u24 v{vT+2}, 5, v{vT+2}")
    A(f"v_add_u32 v{vT+1}, v{vT+1}, v{vT+2}")
    A(f"s_lshr_b32 s{sT3}, s{sQT}, 1")
    A(f"s_max_u32 s{sT4}, s{sQT}, 1")
    A(f"s_sub_u32 s{sT4}, s{sT4}, 1")
    A(f"s_lshr_b32 s{sT4}, s{sT4}, 1")
    A(f"s_sub_u32 s{sT4}, s{sT3}, s{sT4}")
    A(f"v_bfe_u32 v{vT+2}, v{vL}, 3, 1")
    A(f"v_mul_u32_u24 v{vT+2}, s{sT4}, v{vT+2}")
    A(f"v_sub_u32 v{vT+2}, s{sT3}, v{vT+2}")
    A(f"v_lshl_add_u32 v{vT+1}, v{vT+1}, 4, v{vT+2}")
    A(f"v_lshlrev_b32 v{vF3}, 2, v{vT+1}")
    A(f"v_lshlrev_b32 v{vBA}, 15, v{vHH}")
    A(f"v_lshl_add_u32 v{vBA}, v{vR}, 4, v{vBA}")
    A(f"v_lshlrev_b32 v{vBA+1}, 3, v{vR}")
    A(f"v_and_b32 v{vT+2}, 25, v{vR}")
    A(f"v_bfe_u32 v{vT+3}, v{vR}, 1, 1")
    A(f"v_lshl_or_b32 v{vT+2}, v{vT+3}, 2, v{vT+2}")
    A(f"v_bfe_u32 v{vT+3}, v{vR}, 2, 1")
    A(f"v_lshl_or_b32 v{vT+2}, v{vT+3}, 1, v{vT+2}")
    A(f"v_lshlrev_b32 v{vT+3}, 12, v{vHH}")
    A(f"v_lshl_add_u32 v{vBA+2}, v{vT+2}, 4, v{vT+3}")
    A(f"v_lshlrev_b32 v{vBA+3}, 3, v{vT+2}")
    A(f"v_mul_u32_u24 v{vT+4}, 320, v{vHH}")
    A(f"v_lshl_add_u32 v{vBA+4}, v{vR}, 4, v{vT+4}")
    A(f"s_and_b32 s{sT1}, s{sW}, 1")
    A(f"s_lshl_b32 s{sT1}, s{sT1}, 10")
    A(f"s_lshl_b32 s{sT0}, s{sQT}, 5")
    A(f"s_add_u32 s{sT2}, s{sT1}, s{sT0}")
    A(f"s_mul_i32 s{sT0}, s{sH}, {QH}")
    A(f"s_add_u32 s{sT0}, s{sT0}, {QB}")
    A(f"s_lshl_b32 s{sT1}, s{sT2}, 4")
    A(f"s_add_u32 s{sBA}, s{sT1}, s{sT0}")
    A(f"s_lshl_b32 s{sT1}, s{sT2}, 3")
    A(f"s_add_u32 s{sBA+1}, s{sT1}, s{sT0}")
    A(f"s_add_u32 s{sBA+1}, s{sBA+1}, 65536")
    for prev in range(2):
        if prev:
            A(f"s_cmp_eq_u32 s{sQT}, 0")
            A(f"s_cselect_b32 s{sT3}, 0, 32")
            A(f"s_sub_u32 s{sT2}, s{sT2}, s{sT3}")
        A(f"s_lshr_b32 s{sT0}, s{sT2}, 8")
        A(f"s_mul_i32 s{sT0}, s{sT0}, {CHB}")
        A(f"s_add_u32 s{sT0}, s{sT0}, s{sKV}")
        A(f"s_add_u32 s{sT0}, s{sT0}, {KVB - KVA}")
        A(f"s_and_b32 s{sT3}, s{sT2}, 255")
        o = sBA + 2 + 3 * prev
        A(f"s_lshl_b32 s{sT1}, s{sT3}, 4")
        A(f"s_add_u32 s{o}, s{sT1}, s{sT0}")
        A(f"s_lshl_b32 s{sT1}, s{sT3}, 3")
        A(f"s_add_u32 s{o+1}, s{sT1}, s{sT0}")
        A(f"s_add_u32 s{o+1}, s{o+1}, 8192")
        A(f"s_lshr_b32 s{sT1}, s{sT3}, 4")
        A(f"s_mul_i32 s{sT1}, s{sT1}, 640")
        A(f"s_add_u32 s{o+2}, s{sT1}, s{sT0}")
        A(f"s_add_u32 s{o+2}, s{o+2}, 10240")
    A(f"s_lshl_b32 s{sBA+8}, s{sBT}, 2")
    A(f"s_add_u32 s{sBA+8}, s{sBA+8}, {GATE}")
    sRT, sCO, sTG = sT1, sT2, sT3
    A(f"s_lshr_b32 s{sRT}, s{sH}, 3")
    A(f"s_lshl_b32 s{sT0}, s{sQB}, 2")
    A(f"s_add_u32 s{sRT}, s{sRT}, s{sT0}")
    A(f"s_and_b32 s{sCO}, s{sH}, 7")
    A(f"s_and_b32 s{sTG}, s{sW}, 3")
    A(f"s_lshr_b32 s{sKG}, s{sW}, 2")
    A(f"s_lshl_b32 s{sFLG}, s{sRT}, 8")
    A(f"s_mul_i32 s{sWSRC}, s{sW}, 20480")
    A(f"s_mul_i32 s{sT0}, s{sCO}, 1280")
    A(f"s_add_u32 s{sWSRC}, s{sWSRC}, s{sT0}")
    A(f"s_add_u32 s{sWSRC}, s{sWSRC}, {WOT}")
    A(f"s_lshl_b32 s{sRT}, s{sRT}, 6")
    A(f"s_lshl_b32 s{sTG}, s{sTG}, 4")
    A(f"s_add_u32 s{sRT}, s{sRT}, s{sTG}")
    A(f"s_mul_i32 s{sOUTO}, s{sRT}, 1280")
    A(f"s_mul_i32 s{sT0}, s{sCO}, 160")
    A(f"s_add_u32 s{sOUTO}, s{sOUTO}, s{sT0}")
    A(f"s_lshl_b32 s{sOCB}, s{sRT}, 4")
    A(f"s_mul_i32 s{sT0}, s{sKG}, {40*32768}")
    A(f"s_add_u32 s{sOCB}, s{sOCB}, s{sT0}")
    A(f"s_add_u32 s{sOCB}, s{sOCB}, {OC}")
    A(f"s_lshl_b32 s{sPUB}, s{sQT}, 6")
    A(f"s_lshl_b32 s{sT0}, s{sH}, 1")
    A(f"s_add_u32 s{sPUB}, s{sPUB}, s{sT0}")
    A(f"s_and_b32 s{sT0}, s{sW}, 1")
    A(f"s_add_u32 s{sPUB}, s{sPUB}, s{sT0}")
    A(f"s_lshl_b32 s{sPUB}, s{sPUB}, 2")
    A(f"v_lshlrev_b32 v{vFA}, 2, v{vL}")
    A(f"v_mov_b32 v{vW0}, v{vL16}")
    A(f"v_add_u32 v{vT}, 1024, v{vL16}")
    A(f"v_add_u32 v{vT+1}, {10240 - 256}, v{vL16}")
    A(f"v_cmp_gt_u32 vcc, 16, v{vL}")
    A(f"v_add_u32 v{vW2}, {10240 + 768}, v{vL16}")
    A(f"v_lshrrev_b32 v{vT+2}, 4, v{vL}")
    A(f"v_cndmask_b32 v{vW1}, v{vT+1}, v{vT}, vcc")
    A(f"v_and_b32 v{vT+3}, 15, v{vL}")
    A(f"v_lshlrev_b32 v{vT+4}, 15, v{vT+2}")
    A(f"v_lshl_add_u32 v{vOC}, v{vT+3}, 4, v{vT+4}")
    A(f"v_mul_u32_u24 v{vT+4}, 1280, v{vT+2}")
    A(f"v_lshl_add_u32 v{vWR}, v{vT+3}, 4, v{vT+4}")
    A(f"v_mul_u32_u24 v{vT+4}, 1280, v{vT+3}")
    A(f"v_lshl_add_u32 v{vST}, v{vT+2}, 3, v{vT+4}")


def pattern_fill(A):
    for r in range(2):
        A(f"v_add_u32 v{vT}, {512*r}, v0")
        A(f"v_mul_u32_u24 v{vT+1}, 3277, v{vT}")
        A(f"v_lshrrev_b32 v{vT+1}, 16, v{vT+1}")
        A(f"v_mul_u32_u24 v{vT+1}, 20, v{vT+1}")
        A(f"v_cmp_eq_u32 vcc, v{vT+1}, v{vT}")
        A(f"v_mov_b32 v{vT+4}, 0")
        A(f"v_mov_b32 v{vT+5}, 0x3f803f80")
        A(f"v_cndmask_b32 v{vT+4}, v{vT+4}, v{vT+5}, vcc")
        for i in range(1, 4):
            A(f"v_mov_b32 v{vT+4+i}, v{vT+4}")
        A(f"v_lshlrev_b32 v{vT}, 4, v{vT}")
        A(f"v_add_u32 v{vT}, {ONES}, v{vT}")
        if r == 1:
            A(f"s_cmp_ge_u32 s{sW}, 4")
            A("s_cbranch_scc1 L_pat_done")
        A(f"ds_write_b128 v{vT}, {v(vT+4,4)}")
    A.label("L_pat_done")


def gen(prof=False):
    A = Asm()
    A.prof = prof
    kernel_header(A, NAME)
    A("s_cmp_ge_u32 s2, 256")
    A("s_cbranch_scc1 L_end")
    A.stamp("start")
    A("s_load_dwordx4 s[4:7], s[0:1], 0")
    A(f"s_load_dwordx2 s[{sP}:{sP+1}], s[0:1], 32")
    A(f"s_load_dwordx2 s[{sP+2}:{sP+3}], s[0:1], 72")
    A(f"s_load_dwordx4 s[{sDBG}:{sDBG+3}], s[0:1], 56")
    A(f"v_lshrrev_b32 v{vT}, 6, v0")
    A(f"v_and_b32 v{vL}, 63, v0")
    A(f"v_readfirstlane_b32 s{sW}, v{vT}")
    A(f"v_and_b32 v{vR}, 31, v{vL}")
    A(f"v_lshrrev_b32 v{vHH}, 5, v{vL}")
    A(f"v_lshlrev_b32 v{vL16}, 4, v{vL}")
    A(f"s_and_b32 s{sT0}, s2, 7")
    A(f"s_lshr_b32 s{sT1}, s2, 3")
    A(f"s_and_b32 s{sRB}, s{sT0}, 1")
    A(f"s_lshl_b32 s{sRB}, s{sRB}, 3")
    A(f"s_and_b32 s{sT2}, s{sT1}, 7")
    A(f"s_add_u32 s{sRB}, s{sRB}, s{sT2}")
    A(f"s_lshr_b32 s{sCT}, s{sT0}, 1")
    A(f"s_lshl_b32 s{sCT}, s{sCT}, 2")
    A(f"s_lshr_b32 s{sT2}, s{sT1}, 3")
    A(f"s_add_u32 s{sCT}, s{sCT}, s{sT2}")
    A(f"s_and_b32 s{sNH}, s{sW}, 1")
    A(f"s_lshr_b32 s{sMT}, s{sW}, 1")
    A(f"s_mul_i32 s{sXOFF}, s{sRB}, {128*1280}")
    A(f"s_lshl_b32 s{sWOFF}, s{sCT}, 8")
    A(f"s_lshl_b32 s{sLDS1}, s{sW}, 10")
    A(f"s_mul_hi_u32 s{sT0}, s{sCT}, 0x33333334")
    A(f"s_mul_i32 s{sT0}, s{sT0}, 5")
    A(f"s_sub_u32 s{sCT5}, s{sCT}, s{sT0}")
    A(f"v_lshrrev_b32 v{vT}, 3, v{vL}")
    A(f"s_lshl_b32 s{sT0}, s{sW}, 3")
    A(f"v_add_u32 v{vT}, s{sT0}, v{vT}")
    A(f"v_lshrrev_b32 v{vT+1}, 1, v{vT}")
    A(f"v_xor_b32 v{vT+1}, v{vT+1}, v{vL}")
    A(f"v_and_b32 v{vT+1}, 7, v{vT+1}")
    A(f"v_lshlrev_b32 v{vT+1}, 4, v{vT+1}")
    A(f"v_mul_u32_u24 v{vT+2}, 1280, v{vT}")
    A(f"v_add_u32 v{vXD}, v{vT+2}, v{vT+1}")
    A(f"v_lshrrev_b32 v{vT}, 4, v{vL}")
    A(f"v_lshlrev_b32 v{vT+1}, 2, v{vT}")
    A(f"v_xor_b32 v{vT+1}, v{vT+1}, v{vL}")
    A(f"v_and_b32 v{vT+1}, 15, v{vT+1}")
    A(f"v_lshlrev_b32 v{vT+1}, 4, v{vT+1}")
    A(f"s_lshl_b32 s{sT0}, s{sW}, 2")
    A(f"v_add_u32 v{vT}, s{sT0}, v{vT}")
    A(f"v_mul_u32_u24 v{vT}, 3840, v{vT}")
    A(f"v_add_u32 v{vWD}, v{vT}, v{vT+1}")
    A("s_waitcnt lgkmcnt(0)")
    srd(A, sX, 4, X_BYTES)
    srd(A, sWA, 6, W_BYTES)
    srd(A, sWB, sP, W_BYTES)
    srd(A, sWS, sP + 2, WS_USED)
    srd(A, sOUT, sDBG, OUT_BYTES)
    A(f"s_mov_b32 s{sDBG}, s{sDBG+2}")
    A(f"s_and_b32 s{sDBG+1}, s{sDBG+3}, 0xffff")
    A(f"s_mov_b32 s{sDBG+2}, 256")
    A(f"s_mov_b32 s{sDBG+3}, 0x20000")
    A(f"s_cmp_eq_u32 s{sCT}, 15")
    A("s_cbranch_scc1 L_nodma")
    for b in range(2):
        for p in range(4):
            g_dma(A, b, p)
    A.label("L_nodma")
    A(f"s_or_b32 s{sT0}, s2, s{sW}")
    A(f"s_cmp_lg_u32 s{sT0}, 0")
    A("s_cbranch_scc1 L_nonce_done")
    A(f"s_memrealtime s[{sT4}:{sT5}]")
    A("s_waitcnt lgkmcnt(0)")
    A(f"s_or_b32 s{sT0}, s{sT4}, 1")
    A(f"v_mov_b32 v{vT}, s{sT0}")
    A(f"v_mov_b32 v{vT+1}, 0")
    A("s_mov_b64 exec, 1")
    A(f"buffer_store_dword v{vT}, v{vT+1}, s[{sDBG}:{sDBG+3}], 0 offen sc1")
    A("s_mov_b64 exec, -1")
    A.label("L_nonce_done")
    setup_phase1_reads(A)
    setup_phase2(A)
    A.stamp("issued")
    A(f"s_cmp_eq_u32 s{sCT}, 15")
    A("s_cbranch_scc1 L_spare")
    A(f"s_cmp_ge_u32 s{sCT}, 10")
    A("s_cbranch_scc1 L_vtile")
    if prof:
        A.stamps += ["blk0 landed", "gemm0", "epi0", "gemm1", "epi1"]
        if EXP.get("stampB"):
            A.stamps += ["b11 end", "b12 end", "b15 end", "b16 end"]
    gemm(A, True, "t")
    A("s_branch L_attn")
    A.label("L_vtile")
    gemm(A, False, "n")
    A.label("L_attn")
    A.vm_q, A.lds_q = [], []
    pattern_fill(A)
    dma_chunk(A, 3)
    A.lds_wait_all()
    A("s_barrier")
    A.stamp("attn start")
    rd_k01(A, 0)
    rd_k2(A, 0)
    b_consts(A)
    A.lds_wait_all()
    mf16(A, SA, K01, Q01, "0")
    mf8(A, SA, K2, Q2, v(SA, 16))
    A("s_nop 7")
    A("s_nop 5")
    max16(A, vT, SA, True)
    cross_half_max(A, vT, vT + 1)
    for i in range(16):
        A(f"v_sub_f32 v{NEGM+i}, 0, v{vT}")
    A("s_nop 1")
    mf16(A, SA, K01, Q01, v(NEGM, 16))
    mf8(A, SA, K2, Q2, v(SA, 16))
    rd_k01(A, 1)
    rd_k2(A, 1)
    rd_v(A, 0, 0)
    A("s_nop 7")
    A("s_nop 3")
    NT = 64
    sched = {}
    def at(t, half, fn):
        sched.setdefault((t, half), []).append(fn)
    fb_items = [(vFL, vF3, F1B, None), (vFL2, vF4, F1A, None)]
    pos = {}
    def issue(name, items):
        def f(A):
            pos[name] = poll_issue(A, items, name)
        return f
    at(13, 0, issue("f1b", fb_items))
    pre_barrier = {22: lambda A: poll_check(A, fb_items, pos["f1b"], "f1b"),
                   54: lambda A: poll_check(A, fo_items, pos["fb"], "fb")}
    at(22, 1, lambda A: A.vm(f"buffer_load_dword v{vG}, v{vGA}, {WS}, s{sGOFF} offen sc1", "g"))
    for i, f in enumerate(b_load_items()):
        at(25 + i // 2, i % 2, f)
    at(34, 1, b_unit)
    at(40, 0, lambda A: publish(A, sPUB, FLAGB, "stb"))
    fo_items = [(vFL, vFA, FLAGB, sFLG)]
    at(48, 0, issue("fb", fo_items))
    for k in range(10):
        at(55 + k // 2, k % 2, lambda A, k=k: oc_load(A, 1, k))
    for st in range(3):
        for p in range(3):
            i = 3 * st + p
            at(42 + i // 2, i % 2, lambda A, st=st, p=p: dma_w_piece(A, 1, st, p))
    for st in range(3, 5):
        for p in range(3):
            i = 3 * (st - 3) + p
            at(57 + i // 2, 1 - i % 2, lambda A, st=st, p=p: dma_w_piece(A, 1, st, p))
    for c in range(2, NCH - 2):
        for p in range(3):
            at(TPC * c - 1 + p // 2, 1 if p % 2 == 0 else 0, lambda A, c=c, p=p: dma_chunk_piece(A, c + 2, p))
    for t in range(NT):
        cur = SA if t % 2 == 0 else SB
        nxt = SB if t % 2 == 0 else SA
        if (t == 32 and not EXP.get("stampB")) or (EXP.get("stampB") and t in (21, 24)):
            A.stamp("t%d" % t)
        if t % TPC == TPC - 2 and t + 2 < NT:
            c = (t + 2) // TPC
            if c == 1:
                A.vm_wait(("c", 3))
            A.vm_wait(("c", c))
            if t in pre_barrier:
                pre_barrier[t](A)
            A("s_barrier")
            if c == 1:
                with Wave0(A, "pubb"):
                    publish(A, sF1, F1B)
        if t == 63:
            A.vm_wait(("w", 1, 4))
        for f in sched.get((t, 0), []):
            f(A)
        if t + 1 < NT:
            A.lds_wait(("k01", t + 1))
            mf16(A, nxt, K01, Q01, v(NEGM, 16))
            if t + 2 < NT:
                rd_k01(A, t + 2)
        exps(A, cur, 0)
        if t > 0:
            A.lds_wait(("v", t - 1, 1))
            mf16(A, O, V1, P + 4, v(O, 16))
        rd_v(A, t, 1)
        exps(A, cur, 1)
        for f in sched.get((t, 1), []):
            f(A)
        if t + 1 < NT:
            A.lds_wait(("k2", t + 1))
            mf8(A, nxt, K2, Q2, v(nxt, 16))
            if t + 2 < NT:
                rd_k2(A, t + 2)
        exps(A, cur, 2)
        A.lds_wait(("v", t, 0))
        mf16(A, O, V0, P, "0" if t == 0 else v(O, 16))
        if t + 1 < NT:
            rd_v(A, t + 1, 0)
        exps(A, cur, 3)
    A.lds_wait(("v", NT - 1, 1))
    A("s_nop 1")
    mf16(A, O, V1, P + 4, v(O, 16))
    A(f"v_add_u32 v{vT+5}, 0x10000, v{vWR}")
    A(f"v_add_u32 v{vT+6}, 0x20000, v{vWR}")
    A(f"v_mov_b32 v{vT+3}, {hex(f32bits(BIG))}")
    A("s_nop 7")
    A("s_nop 3")
    A.stamp("loop end")
    row_sum(A, O)
    A(f"v_mul_f32 v{vT+2}, 0, v{O}")
    for i in range(1, 12):
        A(f"v_fma_f32 v{vT+2}, v{O+i}, 0, v{vT+2}")
    A(f"v_add_f32 v{vT+2}, v{vT+2}, v{vT+1}")
    A(f"v_cmp_lt_f32 vcc, v{vT+2}, v{vT+3}")
    A("s_nop 4")
    A("s_cmp_eq_u64 vcc, exec")
    A("s_cbranch_scc0 L_fallback")
    A.label("L_finish")
    A.vm_wait("g")
    finish_tile(A, O, vG, False, vOST, sQ0, 0, "sta")
    A(f"v_add_u32 v{vT+5}, 0x10000, v{vWR}")
    A(f"v_add_u32 v{vT+6}, 0x20000, v{vWR}")
    A("s_barrier")
    A.stamp("ring free") if not EXP.get("stampB") else None
    wa = [(st, p) for st in range(3) for p in range(3)]

    def hook_b(k, kg):
        if k < 9:
            st, p = wa[k]
            dma_w_piece(A, 0, st, p)
        if k == 7:
            publish(A, sPUB, FLAGA, "sta")
    outproj(A, 1, True, hook_b)
    A.stamp("b part") if not EXP.get("stampB") else None
    A("s_barrier")
    for st in range(3, 5):
        for p in range(3):
            dma_w_piece(A, 0, st, p)
    fa_items = [(vFL, vFA, FLAGA, sFLG)]
    pfa = poll_issue(A, fa_items, "fa")
    poll_check(A, fa_items, pfa, "fa")
    A("s_barrier")
    A.stamp("flags a") if not EXP.get("stampB") else None
    for k in range(10):
        oc_load(A, 0, k)
    A.vm_wait(("w", 0, 4))
    A("s_barrier")
    outproj(A, 0, False)
    A.stamp("a part") if not EXP.get("stampB") else None
    A(f"s_and_b32 s{sT0}, s{sW}, 3")
    A(f"s_mul_i32 s{sT0}, s{sT0}, 5120")
    A(f"v_add_u32 v{vT}, s{sT0}, v{vL16}")
    A(f"s_cmp_eq_u32 s{sKG}, 0")
    A("s_cbranch_scc1 L_red_a")
    A("s_nop 5")
    for nt in range(5):
        A(f"ds_write_b128 v{vT}, {v(ACC+4*nt,4)} offset:{nt*1024}")
    A("s_waitcnt lgkmcnt(0)")
    A("s_barrier")
    A("s_endpgm")
    A.label("L_red_a")
    A("s_barrier")
    A.lds_q = []
    for nt in range(5):
        A.lds(f"ds_read_b128 {v(WF+4*nt,4)}, v{vT} offset:{nt*1024}", ("r", nt))
    for nt in range(5):
        A.lds_wait(("r", nt))
        for i in range(4):
            A(f"v_add_f32 v{ACC+4*nt+i}, v{ACC+4*nt+i}, v{WF+4*nt+i}")
        A(f"v_cvt_pk_bf16_f32 v{ACC+4*nt}, v{ACC+4*nt}, v{ACC+4*nt+1}")
        A(f"v_cvt_pk_bf16_f32 v{ACC+4*nt+1}, v{ACC+4*nt+2}, v{ACC+4*nt+3}")
        A.vm(f"buffer_store_dwordx2 {v(ACC+4*nt,2)}, v{vST}, s[{sOUT}:{sOUT+3}], s{sOUTO} offen offset:{nt*32}", "st")
    A.stamp("end")
    if prof and EXP.get("dbg"):
        with Wave0(A, "dbgout"):
            A(f"v_subrev_u32 v{vT}, s{sNONCE}, v{A.PROF_V}")
            A(f"v_subrev_u32 v{vT+1}, 16, v{vL}")
            A(f"v_lshlrev_b32 v{vT+1}, 2, v{vT+1}")
            if EXP["dbg"] == 2:
                A(f"v_sub_u32 v{vT}, 0x100000, v{vT}")
            A("s_mov_b32 exec_lo, 0xfffe0000")
            A("s_mov_b32 exec_hi, 0")
            A(f"buffer_atomic_umax v{vT}, v{vT+1}, s[{sDBG}:{sDBG+3}], 0 offen")
            A("s_mov_b64 exec, -1")
    A.stamp_flush(0, sWS, PROF, vT)
    A("s_endpgm")
    fallback(A)
    spare(A)
    A.label("L_end")
    A("s_endpgm")
    kernel_footer(A, NAME, NV, 96)
    gen.stamps = getattr(A, "stamps", [])
    return A.text()

if __name__ == "__main__":
    print(gen())
```

```python
import sys, json
import kf
from layout import *
HDR = open("gated_mix__softmax_full_mha__sliding_local_dilated__prompt.s.ref").read().split("; Override launch")[0]
def build(prof=False):
    out = HDR
    out += f"; @launch grid=(256,1,1) block=(512,1,1) lds={kf.LDS_BYTES}\n"
    out += '.amdgcn_target "amdgcn-amd-amdhsa--gfx950"\n'
    out += kf.gen(prof)
    return out
if __name__ == "__main__":
    path = sys.argv[1] if len(sys.argv) > 1 and not sys.argv[1].startswith("--") else "gated_mix__softmax_full_mha__sliding_local_dilated__prompt.s"
    prof = "--prof" in sys.argv
    for a in sys.argv:
        if a.startswith("--exp="):
            for kv in a[6:].split(","):
                if "=" in kv:
                    k, val = kv.split("="); kf.EXP[k] = int(val) if val.isdigit() else " " + val
                else:
                    kf.EXP[kv] = True
    text = build(prof)
    open(path, "w").write(text)
    if prof:
        json.dump([kf.gen.stamps], open(path + ".stamps.json", "w"))
    print("wrote", path)
```

```python
from asmlib import *
from layout import *

NAME = "gated_mix__softmax_full_mha__sliding_local_dilated__prompt_kernel"
EXP = {}
STAGE, NST, NB = 32768, 4, 20
SLOT = CHB
NSLOT = 4
TPC = CH // 32
NCH = S // CH
ONES = 4 * SLOT
LDS_BYTES = 8 * SLOT
WB_SLOT = [5, 6, 7, 0, 1]
WA_SLOT = [2, 3, 4, 5, 6]
BIG = 2.0 ** 64
SPIN_MAX = 1 << 16
sWS, sOUT = 8, 12
sW, sNONCE = 16, 17
sH, sQB, sKV, sLDSW, sSRC, sWSRC, sOCB, sFLG, sPUB, sOUTO, sKG, sQ0, sBT, sQT = range(18, 32)
sT0, sT1, sT2, sT3, sT4, sT5 = range(32, 38)
sM = 38
sLO20 = 40
sCNT = 42
sDBG = 44
sBA = 48
sX, sWA, sWB = 60, 64, 68
sRB, sCT, sMT, sNH, sXOFF, sWOFF, sLDS1, sCT5, sTP, sB16, sB8, sHS, sPS, sP2, sQS, sPI = range(72, 88)
sQOFF, sQOFF2, sGOFF, sF1 = 88, 89, 90, 91
sP = 92
vL, vR, vHH = 1, 2, 3
vK01, vK2, vV = 4, 8, 12
vL16, vG, vGB, vFL = 16, 17, 18, 19
vT = 20
SA, SB, NEGM, O, P = 28, 44, 60, 76, 92
Q01, Q2, K01, K2, V0, V1 = 100, 104, 108, 112, 116, 120
BQ01, BQ2, BK01, BK2, BKP01, BKP2 = 124, 128, 132, 136, 140, 144
BV0, BV1, BVP, BS0, BS1, BO, BP = 148, 152, 156, 160, 176, 192, 208
vBA = 220
vW0, vW1, vW2, vOC, vWR, vST, vFA = 225, 226, 227, 228, 229, 230, 231
vF1, vF2, vF3, vF4 = 232, 233, 234, 241
vFL2 = 235
vQA, vQA2, vGA = 236, 237, 238
vOST = 239
NV = 244
OCB, OCA, ACC, WF = 124, 164, 204, 28
G_ACC, G_XF, G_WF, G_P = 124, [156, 160], [[164, 168], [172, 176]], 180
vXR, vWR1, vXD, vWD, vA16, vA8 = 196, 204, 208, 209, 210, 211
WS = f"s[{sWS}:{sWS+3}]"


def st1():
    return " sc1"


def publish(A, soff_reg, base, tag=None):
    if tag is not None:
        A.vm_wait(tag)
    A(f"v_mov_b32 v{vT}, s{sNONCE}")
    A(f"v_mov_b32 v{vT+1}, 0")
    A(f"s_add_u32 s{sT0}, s{soff_reg}, {base}")
    A("s_mov_b64 exec, 1")
    A.vm(f"buffer_store_dword v{vT}, v{vT+1}, {WS}, s{sT0} offen sc1", "pub")
    A("s_mov_b64 exec, -1")


class Wave0:
    def __init__(self, A, name):
        self.A, self.name = A, name
    def __enter__(self):
        A = self.A
        A(f"s_cmp_lg_u32 s{sW}, 0")
        A(f"s_cbranch_scc1 L_w0_{self.name}")
        self.saved = (list(A.vm_q), A.vm_count)
    def __exit__(self, *a):
        A = self.A
        A.vm_q, A.vm_count = self.saved
        A.label(f"L_w0_{self.name}")


def _poll_loads(A, items):
    for (vdst, voff, base, soff_reg) in items:
        if soff_reg is None:
            A(f"s_mov_b32 s{sT0}, {base}")
        else:
            A(f"s_add_u32 s{sT0}, s{soff_reg}, {base}")
        A(f"buffer_load_dword v{vdst}, v{voff}, {WS}, s{sT0} offen sc1")


def poll_issue(A, items, name):
    with Wave0(A, name + "_i"):
        _poll_loads(A, items)
    return A.vm_count


def poll_check(A, items, pos, name, inv=False, drain=False):
    def compare():
        for i, (vdst, _, _, _) in enumerate(items):
            if i == 0:
                A(f"v_cmp_eq_u32 vcc, s{sNONCE}, v{vdst}")
            else:
                A(f"v_cmp_eq_u32 s[{sT4}:{sT5}], s{sNONCE}, v{vdst}")
                A("s_nop 3")
                A(f"s_and_b64 vcc, vcc, s[{sT4}:{sT5}]")
        A("s_nop 3")
        A("s_cmp_eq_u64 vcc, exec")
    with Wave0(A, name + "_c"):
        A(f"s_waitcnt vmcnt({A.vm_count - pos})")
        compare()
        A(f"s_cbranch_scc1 L_{name}_ok")
        A(f"s_mov_b32 s{sCNT}, 0")
        A.label(f"L_{name}_spin")
        A("s_sleep 8")
        _poll_loads(A, items)
        A(f"s_add_u32 s{sCNT}, s{sCNT}, 1")
        A(f"s_cmp_ge_u32 s{sCNT}, {SPIN_MAX}")
        A(f"s_cbranch_scc1 L_{name}_ok")
        A("s_waitcnt vmcnt(0)")
        compare()
        A(f"s_cbranch_scc0 L_{name}_spin")
        A.label(f"L_{name}_ok")
        if inv:
            A("buffer_inv sc1")
        if drain:
            A("s_waitcnt vmcnt(0)")


def nonce_issue(A):
    A(f"v_mov_b32 v{vT}, 0")
    A.vm(f"buffer_load_dword v{vFL}, v{vT}, s[{sDBG}:{sDBG+3}], 0 offen sc1", "nonce")


def nonce_check(A, name):
    A.vm_wait("nonce")
    A("s_nop 0")
    A(f"v_readfirstlane_b32 s{sNONCE}, v{vFL}")
    A("s_nop 3")
    A(f"s_cmp_lg_u32 s{sNONCE}, 0")
    A(f"s_cbranch_scc1 L_{name}_ok")
    A(f"s_mov_b32 s{sCNT}, 0")
    A.label(f"L_{name}_spin")
    A("s_sleep 1")
    A(f"v_mov_b32 v{vT}, 0")
    A(f"buffer_load_dword v{vFL}, v{vT}, s[{sDBG}:{sDBG+3}], 0 offen sc1")
    A(f"s_add_u32 s{sCNT}, s{sCNT}, 1")
    A(f"s_cmp_ge_u32 s{sCNT}, {SPIN_MAX}")
    A(f"s_cbranch_scc1 L_{name}_ok")
    A("s_waitcnt vmcnt(0)")
    A(f"v_readfirstlane_b32 s{sNONCE}, v{vFL}")
    A("s_nop 3")
    A(f"s_cmp_eq_u32 s{sNONCE}, 0")
    A(f"s_cbranch_scc1 L_{name}_spin")
    A.label(f"L_{name}_ok")


def g_dma(A, b, p):
    kb, st, t = b % 10, b % NST, p & 1
    A(f"s_add_u32 m0, s{sLDS1}, {st*STAGE + (p >> 1)*16384 + 8192*t}")
    if p < 2:
        A(f"s_add_u32 s{sT0}, s{sXOFF}, {kb*128 + t*81920}")
        A.vm(f"buffer_load_dwordx4 v{vXD}, s[{sX}:{sX+3}], s{sT0} offen lds", ("d", b))
    else:
        sw = sWA if b < 10 else sWB
        A(f"s_add_u32 s{sT0}, s{sWOFF}, {(kb*64 + 32*t) * 3840}")
        A.vm(f"buffer_load_dwordx4 v{vWD}, s[{sw}:{sw+3}], s{sT0} offen lds", ("d", b))


def g_reads(A, b, ks):
    st = b % NST
    hi, off, buf = st >> 1, (st & 1) * STAGE, ks & 1
    A.lds(f"ds_read_b128 {v(G_XF[buf],4)}, v{vXR + 2*ks + hi} offset:{off}", ("f", b, ks))
    for nt in range(2):
        for q in range(2):
            A.lds(f"ds_read_b64_tr_b16 {v(G_WF[buf][nt]+2*q,2)}, v{vWR1 + 2*nt + hi} offset:{off + ks*4096 + q*1024}", ("f", b, ks))


def g_mfma(A, b, ks, nt, tr):
    buf = ks & 1
    d = G_ACC + 16 * nt
    c = "0" if (b % 10 == 0 and ks == 0) else v(d, 16)
    a, bb = (G_WF[buf][nt], G_XF[buf]) if tr else (G_XF[buf], G_WF[buf][nt])
    A(f"v_mfma_f32_32x32x16_bf16 {v(d,16)}, {v(a,4)}, {v(bb,4)}, {c}")


def pack4(A, dst, src, scale):
    if scale:
        A(f"v_pk_mul_f32 {v(src,2)}, {v(src,2)}, v[{vT+2}:{vT+3}]")
        A(f"v_pk_mul_f32 {v(src+2,2)}, {v(src+2,2)}, v[{vT+2}:{vT+3}]")
    A(f"v_cvt_pk_bf16_f32 v{dst}, v{src}, v{src+1}")
    A(f"v_cvt_pk_bf16_f32 v{dst+1}, v{src+2}, v{src+3}")


def epi_t(A, isb, tag):
    n = f"{'b' if isb else 'a'}"
    A(f"s_lshl_b32 s{sTP}, s{sRB}, 7")
    A(f"s_lshl_b32 s{sT0}, s{sMT}, 5")
    A(f"s_add_u32 s{sTP}, s{sTP}, s{sT0}")
    if isb:
        A(f"s_lshr_b32 s{sTP}, s{sTP}, 1")
    A(f"s_cmp_lt_u32 s{sCT}, 5")
    A(f"s_cbranch_scc0 L_t{n}_k")
    A(f"s_mov_b32 s{sHS}, {QH}")
    A(f"s_mov_b32 s{sPS}, 32768")
    A(f"s_mov_b32 s{sP2}, 65536")
    A(f"s_mov_b32 s{sQS}, {hex(f32bits(QSCALE))}")
    A(f"s_lshl_b32 s{sB16}, s{sTP}, 4")
    A(f"s_lshl_b32 s{sB8}, s{sTP}, 3")
    A(f"s_mov_b32 s{sT0}, {QB if isb else QA}")
    A(f"s_mov_b32 s{sT1}, 16384")
    A(f"s_mov_b32 s{sT2}, 8192")
    A(f"s_branch L_t{n}_go")
    A.label(f"L_t{n}_k")
    A(f"s_mov_b32 s{sHS}, {KVH}")
    A(f"s_mov_b32 s{sPS}, 4096")
    A(f"s_mov_b32 s{sP2}, 8192")
    A(f"s_mov_b32 s{sQS}, 1.0")
    A(f"s_lshr_b32 s{sT0}, s{sTP}, 8")
    A(f"s_mul_i32 s{sT0}, s{sT0}, {CHB}")
    A(f"s_and_b32 s{sT1}, s{sTP}, 255")
    A(f"s_lshl_b32 s{sB16}, s{sT1}, 4")
    A(f"s_add_u32 s{sB16}, s{sB16}, s{sT0}")
    A(f"s_lshl_b32 s{sB8}, s{sT1}, 3")
    A(f"s_add_u32 s{sB8}, s{sB8}, s{sT0}")
    A(f"s_mov_b32 s{sT0}, {KVB if isb else KVA}")
    A(f"s_mov_b32 s{sT1}, {4*CHB}")
    A(f"s_mov_b32 s{sT2}, {4*CHB}")
    A.label(f"L_t{n}_go")
    A(f"s_add_u32 s{sB16}, s{sB16}, s{sT0}")
    A(f"s_add_u32 s{sB8}, s{sB8}, s{sT0}")
    A(f"s_add_u32 s{sB8}, s{sB8}, s{sP2}")
    if isb:
        A(f"v_and_b32 v{vT+4}, 1, v{vR}")
        A(f"v_lshrrev_b32 v{vT+5}, 1, v{vR}")
        A(f"v_mul_lo_u32 v{vT+6}, v{vT+4}, s{sT1}")
        A(f"v_lshl_add_u32 v{vT+6}, v{vT+5}, 4, v{vT+6}")
        A(f"v_lshl_add_u32 v{vA16}, v{vHH}, 3, v{vT+6}")
        A(f"v_mul_lo_u32 v{vT+6}, v{vT+4}, s{sT2}")
        A(f"v_lshl_add_u32 v{vT+6}, v{vT+5}, 3, v{vT+6}")
    else:
        A(f"v_lshlrev_b32 v{vT+6}, 4, v{vR}")
        A(f"v_lshl_add_u32 v{vA16}, v{vHH}, 3, v{vT+6}")
        A(f"v_lshlrev_b32 v{vT+6}, 3, v{vR}")
    A(f"v_mul_lo_u32 v{vT+7}, v{vHH}, s{sHS}")
    A(f"v_add_u32 v{vA8}, v{vT+6}, v{vT+7}")
    A(f"v_mov_b32 v{vT+2}, s{sQS}")
    A(f"v_mov_b32 v{vT+3}, s{sQS}")
    A(f"s_lshl_b32 s{sPI}, s{sCT5}, 4")
    A(f"s_lshl_b32 s{sT0}, s{sNH}, 3")
    A(f"s_add_u32 s{sPI}, s{sPI}, s{sT0}")
    g = 0
    for nt in range(2):
        for j in range(4):
            reg = G_P + 2 * g
            A(f"s_add_u32 s{sT0}, s{sPI}, {4*nt + j}")
            A(f"s_mul_hi_u32 s{sT1}, s{sT0}, 0x33333334")
            A(f"s_mul_i32 s{sT2}, s{sT1}, 5")
            A(f"s_sub_u32 s{sT2}, s{sT0}, s{sT2}")
            A(f"s_lshl_b32 s{sT1}, s{sT1}, 1")
            pack4(A, reg, G_ACC + 16 * nt + 4 * j, True)
            A(f"s_cmp_eq_u32 s{sT2}, 2")
            A(f"s_cbranch_scc1 L_t{n}_mx{g}")
            A(f"s_cmp_ge_u32 s{sT2}, 3")
            A(f"s_cselect_b32 s{sT3}, 1, 0")
            A(f"s_add_u32 s{sT1}, s{sT1}, s{sT3}")
            A(f"s_mul_i32 s{sT3}, s{sT3}, 3")
            A(f"s_sub_u32 s{sT2}, s{sT2}, s{sT3}")
            A(f"s_mul_i32 s{sT1}, s{sT1}, s{sHS}")
            A(f"s_mul_i32 s{sT2}, s{sT2}, s{sPS}")
            A(f"s_add_u32 s{sT1}, s{sT1}, s{sT2}")
            A(f"s_add_u32 s{sT1}, s{sT1}, s{sB16}")
            A(f"buffer_store_dwordx2 {v(reg,2)}, v{vA16}, {WS}, s{sT1} offen sc1")
            A(f"s_branch L_t{n}_mxd{g}")
            A.label(f"L_t{n}_mx{g}")
            A(f"s_mul_i32 s{sT1}, s{sT1}, s{sHS}")
            A(f"s_add_u32 s{sT1}, s{sT1}, s{sB8}")
            A(f"buffer_store_dwordx2 {v(reg,2)}, v{vA8}, {WS}, s{sT1} offen sc1")
            A.label(f"L_t{n}_mxd{g}")
            A.vm_note(tag)
            g += 1


def epi_n(A, isb, tag):
    A(f"s_lshl_b32 s{sTP}, s{sRB}, 7")
    A(f"s_lshl_b32 s{sT0}, s{sMT}, 5")
    A(f"s_add_u32 s{sTP}, s{sTP}, s{sT0}")
    if isb:
        A(f"s_lshr_b32 s{sTP}, s{sTP}, 1")
    A(f"v_mul_u32_u24 v{vT+1}, 320, v{vHH}")
    A(f"s_lshl_b32 s{sT0}, s{sCT5}, 7")
    A(f"s_lshl_b32 s{sT1}, s{sNH}, 6")
    A(f"s_add_u32 s{sT0}, s{sT0}, s{sT1}")
    for nt in range(2):
        A(f"v_add_u32 v{vT+2}, s{sT0}, v{vR}")
        if nt:
            A(f"v_add_u32 v{vT+2}, 32, v{vT+2}")
        A(f"v_mul_u32_u24 v{vT+3}, 3277, v{vT+2}")
        A(f"v_lshrrev_b32 v{vT+3}, 16, v{vT+3}")
        A(f"v_mul_u32_u24 v{vT+4}, 20, v{vT+3}")
        A(f"v_sub_u32 v{vT+4}, v{vT+2}, v{vT+4}")
        A(f"v_mul_u32_u24 v{vT+3}, {KVH}, v{vT+3}")
        A(f"v_lshl_add_u32 v{vT+3}, v{vT+4}, 4, v{vT+3}")
        A(f"v_add_u32 v{vA16+nt}, v{vT+3}, v{vT+1}")
    A(f"s_lshr_b32 s{sT0}, s{sTP}, 8")
    A(f"s_mul_i32 s{sT0}, s{sT0}, {CHB}")
    A(f"s_and_b32 s{sT1}, s{sTP}, 255")
    A(f"s_lshr_b32 s{sT1}, s{sT1}, 4")
    A(f"s_mul_i32 s{sT1}, s{sT1}, 640")
    A(f"s_add_u32 s{sT0}, s{sT0}, s{sT1}")
    A(f"s_add_u32 s{sB16}, s{sT0}, {(KVB if isb else KVA) + 10240}")
    for nt in range(2):
        for a in range(2):
            reg = G_P + 4 * (2 * nt + a)
            src = G_ACC + 16 * nt
            if isb:
                for j in range(4):
                    A(f"v_cvt_pk_bf16_f32 v{reg+j}, v{src+4*j+a}, v{src+4*j+a+2}")
                A(f"s_add_u32 s{sT1}, s{sB16}, {a*4*CHB}")
            else:
                for p in range(4):
                    A(f"v_cvt_pk_bf16_f32 v{reg+p}, v{src+8*a+2*p}, v{src+8*a+2*p+1}")
                A(f"s_add_u32 s{sT1}, s{sB16}, {a*640}")
            A.vm(f"buffer_store_dwordx4 {v(reg,4)}, v{vA16+nt}, {WS}, s{sT1} offen sc1", tag)


def acquire_items():
    return [(vFL, vF1, F1A, None), (vFL2, vF2, F1A, None)]


def p2_loads(A):
    dma_chunk(A, 0)
    A.vm(f"buffer_load_dwordx4 {v(Q01,4)}, v{vQA}, {WS}, s{sQOFF} offen sc1", "q")
    A(f"v_mov_b32 v{Q2}, 0")
    A(f"v_mov_b32 v{Q2+1}, 0")
    A("s_mov_b32 exec_hi, 0")
    A.vm(f"buffer_load_dwordx2 {v(Q2,2)}, v{vQA2}, {WS}, s{sQOFF2} offen sc1", "q")
    A("s_mov_b32 exec_hi, -1")
    dma_chunk(A, 1)
    dma_chunk(A, 2)


def gemm(A, tr, n):
    A.vm_q = [("d", 0)] * 4 + [("d", 1)] * 4
    A.lds_q = []
    A.vm_wait(("d", 0))
    A("s_barrier")
    A.stamp("blk0 landed", 2)
    g_reads(A, 0, 0)
    if EXP.get("touch") == 2:
        l2_touch(A, n)
    pend = [(2, p) for p in range(4)] + [(3, p) for p in range(4)]
    for b in range(NB):
        for ks in range(4):
            last = ks == 3
            A.lds_wait(("f", b, ks)) if not last else A.lds_wait_all()
            g_mfma(A, b, ks, 0, tr)
            if not last:
                g_reads(A, b, ks + 1)
                for _ in range(3 if b == 0 else 2):
                    if pend:
                        g_dma(A, *pend.pop(0))
            g_mfma(A, b, ks, 1, tr)
            if last and b + 1 < NB:
                assert not pend
                if b == 12:
                    A.vm_wait("sa")
                if b == 16:
                    poll_check(A, acquire_items(), pos_f1, f"f1{n}")
                A.vm_wait(("d", b + 1))
                A("s_barrier")
                if EXP.get("stampB") and b in (11, 12, 15, 16):
                    A.stamp("", {11: 7, 12: 8, 15: 9, 16: 10}[b])
                g_reads(A, b + 1, 0)
                if b + NST < NB:
                    pend = [(b + NST, p) for p in range(4)]
                if b == 5:
                    nonce_issue(A)
                if b == 7:
                    nonce_check(A, f"nonce{n}")
                if b == 12:
                    with Wave0(A, f"puba{n}"):
                        publish(A, sF1, F1A)
                if b == 15:
                    pos_f1 = poll_issue(A, acquire_items(), f"f1{n}")
                if b == 17:
                    p2_loads(A)
        if b == 9 or b == 19:
            A.stamp("gemm%d" % (b // 10), 3 + 2 * (b // 10))
            A.lds_wait_all() if b == 9 else None
            A("s_nop 7")
            A("s_nop 7")
            (epi_t if tr else epi_n)(A, b == 19, "sa" if b == 9 else "sb")
            A.stamp("epi%d" % (b // 10), 4 + 2 * (b // 10))
    A.vm_wait("q")


def spare(A):
    sWO, sG = sWA, sWB
    A.label("L_spare")
    A.vm_q, A.lds_q = [], []
    A("s_load_dwordx2 s[4:5], s[0:1], 16")
    A("s_load_dwordx2 s[6:7], s[0:1], 40")
    A(f"s_load_dwordx2 s[{sP}:{sP+1}], s[0:1], 48")
    A("s_waitcnt lgkmcnt(0)")
    A(f"s_cmp_lt_u32 s{sRB}, 8")
    A("s_cbranch_scc1 L_sp_a")
    A("s_mov_b32 s4, s6")
    A("s_mov_b32 s5, s7")
    A.label("L_sp_a")
    srd(A, sWO, 4, WO_BYTES)
    srd(A, sG, sP, 1280)
    A(f"s_and_b32 s{sT1}, s{sRB}, 7")
    A(f"s_mul_i32 s{sT1}, s{sT1}, {80*1280}")
    A(f"s_add_u32 s{sT1}, s{sT1}, s{sLDS1}")
    for t in range(13):
        if t == 12:
            A(f"s_cmp_ge_u32 s{sW}, 4")
            A("s_cbranch_scc1 L_sp_dma_done")
        A(f"s_add_u32 m0, s{sLDS1}, {8192*t}")
        A(f"s_add_u32 s{sT0}, s{sT1}, {8192*t}")
        A(f"buffer_load_dwordx4 v{vL16}, s[{sWO}:{sWO+3}], s{sT0} offen lds")
    A.label("L_sp_dma_done")
    XG, GG = 28, 68
    A(f"v_lshrrev_b32 v{vT+1}, 2, v{vL}")
    A(f"s_lshl_b32 s{sT0}, s{sW}, 4")
    A(f"v_add_u32 v{vT+1}, s{sT0}, v{vT+1}")
    A(f"v_and_b32 v{vT+2}, 3, v{vL}")
    A(f"v_lshlrev_b32 v{vT+2}, 4, v{vT+2}")
    A(f"v_mul_u32_u24 v{vT+3}, 1280, v{vT+1}")
    A(f"v_add_u32 v{vT+3}, v{vT+3}, v{vT+2}")
    A(f"v_mov_b32 v{vT+4}, 0")
    for half in range(2):
        for i in range(10):
            A(f"buffer_load_dwordx4 {v(XG+4*i,4)}, v{vT+3}, s[{sX}:{sX+3}], s{sXOFF} offen offset:{(10*half+i)*64}")
            A(f"buffer_load_dwordx4 {v(GG+4*i,4)}, v{vT+2}, s[{sG}:{sG+3}], 0 offen offset:{(10*half+i)*64}")
        A("s_waitcnt vmcnt(0)")
        for i in range(40):
            A(f"v_dot2_f32_bf16 v{vT+4}, v{XG+i}, v{GG+i}, v{vT+4}")
    A("s_nop 2")
    A(f"v_add_f32_dpp v{vT+4}, v{vT+4}, v{vT+4} quad_perm:[1,0,3,2] row_mask:0xf bank_mask:0xf")
    A("s_nop 1")
    A(f"v_add_f32_dpp v{vT+4}, v{vT+4}, v{vT+4} quad_perm:[2,3,0,1] row_mask:0xf bank_mask:0xf")
    A(f"v_mul_f32 v{vT+4}, {hex(f32bits(-LOG2E))}, v{vT+4}")
    A(f"v_exp_f32 v{vT+4}, v{vT+4}")
    A("s_nop 0")
    A(f"v_add_f32 v{vT+4}, 1.0, v{vT+4}")
    A(f"v_rcp_f32 v{vT+4}, v{vT+4}")
    A(f"s_lshl_b32 s{sT0}, s{sRB}, 9")
    A(f"s_add_u32 s{sT0}, s{sT0}, {GATE}")
    A(f"v_lshlrev_b32 v{vT+1}, 2, v{vT+1}")
    A("s_mov_b32 exec_lo, 0x11111111")
    A("s_mov_b32 exec_hi, 0x11111111")
    A(f"buffer_store_dword v{vT+4}, v{vT+1}, {WS}, s{sT0} offen sc1")
    A("s_mov_b64 exec, -1")
    A("s_waitcnt vmcnt(0)")
    A("s_barrier")
    A(f"v_bfe_u32 v{vT+1}, v{vL}, 2, 2")
    A(f"v_mul_u32_u24 v{vT+1}, 1280, v{vT+1}")
    A(f"v_lshrrev_b32 v{vT+2}, 4, v{vL}")
    A(f"v_lshl_add_u32 v{vT+1}, v{vT+2}, 5, v{vT+1}")
    A(f"v_and_b32 v{vT+2}, 3, v{vL}")
    A(f"v_lshl_add_u32 v{vT+1}, v{vT+2}, 3, v{vT+1}")
    A(f"s_mul_i32 s{sT3}, s{sRB}, {10*10240}")
    A(f"s_add_u32 s{sT3}, s{sT3}, {WOT}")
    A(f"s_mov_b32 s{sT1}, s{sW}")
    A.label("L_sp_loop")
    A(f"s_mul_hi_u32 s{sT2}, s{sT1}, 0x1999999a")
    A(f"s_mul_i32 s{sT0}, s{sT2}, 10")
    A(f"s_sub_u32 s{sT0}, s{sT1}, s{sT0}")
    A(f"s_mul_i32 s{sT4}, s{sT2}, 10240")
    A(f"s_lshl_b32 s{sT5}, s{sT0}, 7")
    A(f"s_add_u32 s{sT4}, s{sT4}, s{sT5}")
    A(f"v_add_u32 v{vT+3}, s{sT4}, v{vT+1}")
    A(f"ds_read_b64_tr_b16 v[{XG}:{XG+1}], v{vT+3}")
    A(f"ds_read_b64_tr_b16 v[{XG+2}:{XG+3}], v{vT+3} offset:5120")
    A(f"s_mul_i32 s{sT4}, s{sT2}, 10240")
    A(f"s_lshl_b32 s{sT5}, s{sT0}, 10")
    A(f"s_add_u32 s{sT4}, s{sT4}, s{sT5}")
    A(f"s_add_u32 s{sT4}, s{sT4}, s{sT3}")
    A("s_waitcnt lgkmcnt(0)")
    A(f"buffer_store_dwordx4 {v(XG,4)}, v{vL16}, {WS}, s{sT4} offen sc1")
    A(f"s_add_u32 s{sT1}, s{sT1}, 8")
    A(f"s_cmp_lt_u32 s{sT1}, 100")
    A("s_nop 1")
    A("s_cbranch_scc1 L_sp_loop")
    nonce_issue(A)
    nonce_check(A, "noncesp")
    A("s_waitcnt vmcnt(0)")
    A("s_barrier")
    A.vm_q = []
    with Wave0(A, "pubsp"):
        publish(A, sF1, F1A)
    pos = poll_issue(A, acquire_items(), "f1sp")
    poll_check(A, acquire_items(), pos, "f1sp")
    A("s_barrier")
    A.vm_q = []
    p2_loads(A)
    A.vm_wait("q")
    for i in (2, 3, 4, 5, 6) + ((7, 8, 9, 10) if EXP.get("stampB") else ()):
        A.stamp("", i)
    A("s_branch L_attn")


def mf16(A, d, a, b, c):
    A(f"v_mfma_f32_32x32x16_bf16 {v(d,16)}, {v(a,4)}, {v(b,4)}, {c}")


def mf8(A, d, a, b, c):
    A(f"v_mfma_f32_32x32x8_bf16 {v(d,16)}, {v(a,2)}, {v(b,2)}, {c}")


def dma_chunk_piece(A, c, t):
    slot = c % NSLOT
    A(f"s_add_u32 m0, s{sLDSW}, {slot*SLOT + 1024*t}")
    A(f"s_add_u32 s{sT0}, s{sSRC}, {CHB*c + 1024*t}")
    if t == 2:
        A("s_mov_b32 exec_hi, 0")
    A.vm(f"buffer_load_dwordx4 v{vL16}, {WS}, s{sT0} offen sc1 lds", ("c", c))
    if t == 2:
        A("s_mov_b32 exec_hi, -1")


def dma_chunk(A, c):
    for t in range(3):
        dma_chunk_piece(A, c, t)


def dma_w_piece(A, part, st, t):
    slot = (WA_SLOT if part == 0 else WB_SLOT)[st]
    A(f"s_add_u32 m0, s{sLDSW}, {slot*SLOT + 1024*t}")
    A(f"s_add_u32 s{sT0}, s{sWSRC}, {(part*80 + 16*st)*10240}")
    if t == 2:
        A("s_mov_b32 exec_hi, 0")
    A.vm(f"buffer_load_dwordx4 v{(vW0, vW1, vW2)[t]}, {WS}, s{sT0} offen sc1 lds", ("w", part, st))
    if t == 2:
        A("s_mov_b32 exec_hi, -1")


def rd_k01(A, t):
    c, tt = t // TPC, t % TPC
    A.lds(f"ds_read_b128 {v(K01,4)}, v{vK01 + c % NSLOT} offset:{tt*512}", ("k01", t))


def rd_k2(A, t):
    c, tt = t // TPC, t % TPC
    A.lds(f"ds_read_b64 {v(K2,2)}, v{vK2 + c % NSLOT} offset:{8192 + tt*256}", ("k2", t))


def rd_v(A, t, a):
    c, tt = t // TPC, t % TPC
    A.lds(f"ds_read_b128 {v(V1 if a else V0,4)}, v{vV + c % NSLOT} offset:{(2*tt + a)*640}", ("v", t, a))


def exps(A, sreg, g, preg=P):
    for i in range(4):
        A(f"v_exp_f32 v{sreg+4*g+i}, v{sreg+4*g+i}")
    A(f"v_cvt_pk_bf16_f32 v{preg+2*g}, v{sreg+4*g}, v{sreg+4*g+1}")
    A(f"v_cvt_pk_bf16_f32 v{preg+2*g+1}, v{sreg+4*g+2}, v{sreg+4*g+3}")


def cross_half_max(A, reg, tmp):
    A(f"v_mov_b32 v{tmp}, v{reg}")
    A("s_nop 1")
    A(f"v_permlane32_swap_b32 v{reg}, v{tmp}")
    A("s_nop 1")
    A(f"v_max_f32 v{reg}, v{reg}, v{tmp}")


def max16(A, dst, src, first):
    if first:
        A(f"v_max3_f32 v{dst}, v{src}, v{src+1}, v{src+2}")
        rest = list(range(3, 16))
    else:
        rest = list(range(0, 16))
    while rest:
        if len(rest) >= 2:
            A(f"v_max3_f32 v{dst}, v{dst}, v{src+rest[0]}, v{src+rest[1]}")
            rest = rest[2:]
        else:
            A(f"v_max_f32 v{dst}, v{dst}, v{src+rest[0]}")
            rest = rest[1:]


def row_sum(A, oreg):
    A(f"v_mov_b32 v{vT}, v{oreg+8}")
    A(f"v_mov_b32 v{vT+1}, v{oreg+8}")
    A("s_nop 1")
    A(f"v_permlane32_swap_b32 v{vT}, v{vT+1}")


def finish_tile(A, oreg, gate, one_minus, vaddr, tok_sreg, chunk0, tag):
    A(f"v_rcp_f32 v{vT+2}, v{vT+1}")
    A(f"s_lshl_b32 s{sT0}, s{tok_sreg}, 4")
    A(f"s_add_u32 s{sT0}, s{sT0}, {OC + chunk0*32768}")
    if one_minus:
        A(f"v_sub_f32 v{vT}, 1.0, v{gate}")
        A(f"v_mul_f32 v{vT+2}, v{vT+2}, v{vT}")
    else:
        A(f"v_mul_f32 v{vT+2}, v{vT+2}, v{gate}")
    A(f"v_mov_b32 v{vT+3}, v{vT+2}")
    for j in range(3):
        A(f"v_pk_mul_f32 {v(oreg+4*j,2)}, {v(oreg+4*j,2)}, v[{vT+2}:{vT+3}]")
        A(f"v_pk_mul_f32 {v(oreg+4*j+2,2)}, {v(oreg+4*j+2,2)}, v[{vT+2}:{vT+3}]")
        A(f"v_cvt_pk_bf16_f32 v{oreg+4*j}, v{oreg+4*j}, v{oreg+4*j+1}")
        A(f"v_cvt_pk_bf16_f32 v{oreg+4*j+1}, v{oreg+4*j+2}, v{oreg+4*j+3}")
        if j == 2:
            A("s_mov_b32 exec_hi, 0")
        A.vm(f"buffer_store_dwordx2 {v(oreg+4*j,2)}, v{vaddr}, {WS}, s{sT0} offen sc1", tag)
        if j < 2:
            A(f"s_add_u32 s{sT0}, s{sT0}, 32768")
    A("s_mov_b64 exec, -1")


def oc_load(A, part, k):
    reg = OCA if part == 0 else OCB
    A(f"s_add_u32 s{sT0}, s{sOCB}, {(part*80 + 4*k)*32768}")
    A.vm(f"buffer_load_dwordx4 {v(reg+4*k,4)}, v{vOC}, {WS}, s{sT0} offen sc1", ("oc", part, k))


def outproj(A, part, first, hook=None):
    slots = WA_SLOT if part == 0 else WB_SLOT
    reg = OCA if part == 0 else OCB
    for kg in range(2):
        if kg == 0:
            A(f"s_cmp_eq_u32 s{sKG}, 1")
            A(f"s_cbranch_scc1 L_op{part}_g1")
            saved = (list(A.vm_q), list(A.lds_q))
        else:
            A.label(f"L_op{part}_g1")
            A.vm_q, A.lds_q = list(saved[0]), list(saved[1])
        seq = [(k, nt) for k in range(10) for nt in range(5)]

        def rd(i):
            k, nt = seq[i]
            kk = 10 * kg + k
            off = slots[kk // 4] * SLOT + (kk % 4) * 5120 + nt * 256
            areg = (vWR, vT + 5, vT + 6)[off >> 16]
            A.lds(f"ds_read_b128 {v(WF + (i % 8)*4,4)}, v{areg} offset:{off & 0xffff}", ("wf", i))

        LOOK = 5
        for i in range(LOOK):
            rd(i)
        for i, (k, nt) in enumerate(seq):
            if i + LOOK < len(seq):
                rd(i + LOOK)
            if nt == 0:
                A.vm_wait(("oc", part, k))
                if hook:
                    hook(k, kg)
            A.lds_wait(("wf", i))
            c = "0" if (first and k == 0) else v(ACC + 4*nt, 4)
            A(f"v_mfma_f32_16x16x32_bf16 {v(ACC+4*nt,4)}, {v(WF + (i % 8)*4,4)}, {v(reg+4*k,4)}, {c}")
        if kg == 0:
            end0 = (list(A.vm_q), list(A.lds_q))
            A(f"s_branch L_op{part}_done")
    A.label(f"L_op{part}_done")
    assert end0[0] == A.vm_q and end0[1] == A.lds_q


def keypos(kappa):
    return (kappa & 25) | ((kappa >> 1) & 1) << 2 | ((kappa >> 2) & 1) << 1


def band_mask(j, i, prev):
    m = 0
    for l in range(64):
        q, hh = l & 31, l >> 5
        key = keypos(8 * j + 4 * hh + i) - (32 if prev else 0)
        if 0 <= q - key <= 7:
            m |= 1 << l
    return m


def b_consts(A):
    A(f"v_cmp_eq_u32 vcc, 20, v{vR}")
    A(f"v_mov_b32 v{vT+6}, 0")
    A(f"v_mov_b32 v{vT+7}, 0x3f803f80")
    A(f"v_cndmask_b32 v{vT+6}, v{vT+6}, v{vT+7}, vcc")
    for base in (BV0, BV1, BVP):
        for i in range(4):
            A(f"v_mov_b32 v{base+i}, v{vT+6}")
    A(f"v_mov_b32 v{BQ2}, 0")
    A(f"v_mov_b32 v{BQ2+1}, 0")


def b_load_items():
    def mk(instr, pre=None):
        def f(A):
            if pre:
                A(pre)
            A.vm(instr, "b")
            if pre:
                A("s_mov_b64 exec, -1")
        return f
    lo20 = f"s_mov_b64 exec, s[{sLO20}:{sLO20+1}]"
    return [
        mk(f"buffer_load_dwordx4 {v(BQ01,4)}, v{vBA}, {WS}, s{sBA} offen sc1"),
        mk(f"buffer_load_dwordx4 {v(BK01,4)}, v{vBA+2}, {WS}, s{sBA+2} offen sc1"),
        mk(f"buffer_load_dwordx2 {v(BK2,2)}, v{vBA+3}, {WS}, s{sBA+3} offen sc1"),
        mk(f"buffer_load_dwordx4 {v(BKP01,4)}, v{vBA+2}, {WS}, s{sBA+5} offen sc1"),
        mk(f"buffer_load_dwordx2 {v(BKP2,2)}, v{vBA+3}, {WS}, s{sBA+6} offen sc1"),
        mk(f"buffer_load_dword v{vGB}, v{vBA+1}, {WS}, s{sBA+8} offen sc1"),
        mk(f"buffer_load_dwordx2 {v(BQ2,2)}, v{vBA+1}, {WS}, s{sBA+1} offen sc1", "s_mov_b32 exec_hi, 0"),
        mk(f"buffer_load_dwordx4 {v(BV0,4)}, v{vBA+4}, {WS}, s{sBA+4} offen sc1", lo20),
        mk(f"buffer_load_dwordx4 {v(BV1,4)}, v{vBA+4}, {WS}, s{sBA+4} offen offset:640 sc1", lo20),
        mk(f"buffer_load_dwordx4 {v(BVP,4)}, v{vBA+4}, {WS}, s{sBA+7} offen offset:640 sc1", lo20),
    ]


def b_unit(A):
    S0, S1 = BS0, BS1
    A.vm_wait("b")
    mf16(A, S0, BK01, BQ01, "0")
    mf16(A, S1, BKP01, BQ01, "0")
    mf8(A, S0, BK2, BQ2, v(S0, 16))
    mf8(A, S1, BKP2, BQ2, v(S1, 16))
    A(f"v_mov_b32 v{vT}, {hex(f32bits(-1e30))}")
    A(f"s_cmp_eq_u32 s{sQT}, 0")
    A(f"s_cselect_b32 s{sT3}, 0, -1")
    A("s_nop 7")
    A("s_nop 5")
    for j in range(4):
        for i in range(4):
            m = band_mask(j, i, False)
            A(f"s_mov_b32 s{sM}, {hex(m & 0xffffffff)}")
            A(f"s_mov_b32 s{sM+1}, {hex(m >> 32)}")
            A(f"v_cndmask_b32 v{S0+4*j+i}, v{vT}, v{S0+4*j+i}, s[{sM}:{sM+1}]")
    for i in range(4):
        m = band_mask(3, i, True)
        A(f"s_and_b32 s{sM}, s{sT3}, {hex(m & 0xffffffff)}")
        A(f"s_and_b32 s{sM+1}, s{sT3}, {hex(m >> 32)}")
        A(f"v_cndmask_b32 v{S1+12+i}, v{vT}, v{S1+12+i}, s[{sM}:{sM+1}]")
    max16(A, vT + 1, S0, True)
    A(f"v_max3_f32 v{vT+1}, v{vT+1}, v{S1+12}, v{S1+13}")
    A(f"v_max3_f32 v{vT+1}, v{vT+1}, v{S1+14}, v{S1+15}")
    cross_half_max(A, vT + 1, vT + 2)
    for r in list(range(S0, S0 + 16)) + list(range(S1 + 12, S1 + 16)):
        A(f"v_sub_f32 v{r}, v{r}, v{vT+1}")
    for g in range(4):
        exps(A, S0, g, BP)
    PP = BP + 8
    for i in range(4):
        A(f"v_exp_f32 v{S1+12+i}, v{S1+12+i}")
    A(f"v_mov_b32 v{PP}, 0")
    A(f"v_mov_b32 v{PP+1}, 0")
    A(f"v_cvt_pk_bf16_f32 v{PP+2}, v{S1+12}, v{S1+13}")
    A(f"v_cvt_pk_bf16_f32 v{PP+3}, v{S1+14}, v{S1+15}")
    A("s_nop 1")
    mf16(A, BO, BV0, BP, "0")
    mf16(A, BO, BV1, BP + 4, v(BO, 16))
    mf16(A, BO, BVP, PP, v(BO, 16))
    A("s_nop 7")
    A("s_nop 3")
    row_sum(A, BO)
    A("s_nop 1")
    finish_tile(A, BO, vGB, True, vOST + 1, sBT, 80, "stb")


def fallback(A):
    A.label("L_fallback")
    A("s_waitcnt vmcnt(0) lgkmcnt(0)")
    A(f"v_lshlrev_b32 v{vT+4}, 12, v{vHH}")
    A(f"v_lshl_add_u32 v{vT+4}, v{vR}, 4, v{vT+4}")
    A(f"v_lshlrev_b32 v{vT+5}, 3, v{vR}")
    A(f"v_mul_u32_u24 v{vT+6}, 320, v{vHH}")
    A(f"v_lshl_add_u32 v{vT+6}, v{vR}, 4, v{vT+6}")
    A(f"v_mov_b32 v{vT+7}, {hex(f32bits(-3.0e38))}")

    def tile_addr():
        A(f"s_lshr_b32 s{sT0}, s{sCNT}, 3")
        A(f"s_mul_i32 s{sT0}, s{sT0}, {CHB}")
        A(f"s_add_u32 s{sT0}, s{sT0}, s{sKV}")
        A(f"s_and_b32 s{sT3}, s{sCNT}, 7")
        A(f"s_lshl_b32 s{sT1}, s{sT3}, 9")
        A(f"s_add_u32 s{sT1}, s{sT1}, s{sT0}")
        A(f"s_lshl_b32 s{sT2}, s{sT3}, 8")
        A(f"s_add_u32 s{sT2}, s{sT2}, s{sT0}")
        A(f"s_add_u32 s{sT2}, s{sT2}, 8192")
        A(f"s_mul_i32 s{sT3}, s{sT3}, 1280")
        A(f"s_add_u32 s{sT3}, s{sT3}, s{sT0}")
        A(f"s_add_u32 s{sT3}, s{sT3}, 10240")

    A(f"s_mov_b32 s{sCNT}, 0")
    A.label("L_fb1")
    tile_addr()
    A(f"buffer_load_dwordx4 {v(K01,4)}, v{vT+4}, {WS}, s{sT1} offen sc1")
    A(f"buffer_load_dwordx2 {v(K2,2)}, v{vT+5}, {WS}, s{sT2} offen sc1")
    A("s_waitcnt vmcnt(0)")
    mf16(A, SA, K01, Q01, "0")
    mf8(A, SA, K2, Q2, v(SA, 16))
    A("s_nop 7")
    A("s_nop 7")
    max16(A, vT + 7, SA, False)
    A(f"s_add_u32 s{sCNT}, s{sCNT}, 1")
    A(f"s_cmp_lt_u32 s{sCNT}, 64")
    A("s_cbranch_scc1 L_fb1")
    cross_half_max(A, vT + 7, vT)
    for i in range(16):
        A(f"v_sub_f32 v{NEGM+i}, 0, v{vT+7}")
        A(f"v_mov_b32 v{O+i}, 0")
    A(f"v_cmp_eq_u32 vcc, 20, v{vR}")
    A(f"v_mov_b32 v{vT}, 0")
    A(f"v_mov_b32 v{vT+1}, 0x3f803f80")
    A(f"v_cndmask_b32 v{vT}, v{vT}, v{vT+1}, vcc")
    for i in range(4):
        A(f"v_mov_b32 v{V0+i}, v{vT}")
        A(f"v_mov_b32 v{V1+i}, v{vT}")
    A(f"s_mov_b32 s{sCNT}, 0")
    A.label("L_fb2")
    tile_addr()
    A(f"buffer_load_dwordx4 {v(K01,4)}, v{vT+4}, {WS}, s{sT1} offen sc1")
    A(f"buffer_load_dwordx2 {v(K2,2)}, v{vT+5}, {WS}, s{sT2} offen sc1")
    A(f"s_mov_b64 exec, s[{sLO20}:{sLO20+1}]")
    A(f"buffer_load_dwordx4 {v(V0,4)}, v{vT+6}, {WS}, s{sT3} offen sc1")
    A(f"buffer_load_dwordx4 {v(V1,4)}, v{vT+6}, {WS}, s{sT3} offen offset:640 sc1")
    A("s_mov_b64 exec, -1")
    A("s_waitcnt vmcnt(0)")
    mf16(A, SA, K01, Q01, v(NEGM, 16))
    mf8(A, SA, K2, Q2, v(SA, 16))
    A("s_nop 7")
    A("s_nop 7")
    for g in range(4):
        exps(A, SA, g)
    A("s_nop 1")
    mf16(A, O, V0, P, v(O, 16))
    mf16(A, O, V1, P + 4, v(O, 16))
    A(f"s_add_u32 s{sCNT}, s{sCNT}, 1")
    A(f"s_cmp_lt_u32 s{sCNT}, 64")
    A("s_cbranch_scc1 L_fb2")
    A("s_nop 7")
    A("s_nop 7")
    row_sum(A, O)
    A("s_nop 1")
    A("s_branch L_finish")


def l2_touch(A, n):
    D0 = G_P
    A(f"s_and_b32 s{sT0}, s{sRB}, 7")
    A(f"s_mul_i32 s{sT0}, s{sT0}, 80")
    A(f"s_lshl_b32 s{sT1}, s{sW}, 5")
    A(f"v_lshrrev_b32 v{vT}, 1, v{vL}")
    A(f"v_add_u32 v{vT}, s{sT1}, v{vT}")
    A(f"v_min_u32 v{vT}, 79, v{vT}")
    A(f"v_add_u32 v{vT}, s{sT0}, v{vT}")
    A(f"v_mul_u32_u24 v{vT}, 3840, v{vT}")
    A(f"v_and_b32 v{vT+1}, 1, v{vL}")
    A(f"v_lshl_add_u32 v{vT}, v{vT+1}, 7, v{vT}")
    A(f"s_and_b32 s{sT2}, s{sCT}, 3")
    A(f"s_lshl_b32 s{sT2}, s{sT2}, 5")
    A(f"s_sub_u32 s{sT3}, s{sW}, 3")
    A(f"s_lshl_b32 s{sT3}, s{sT3}, 6")
    A(f"v_add_u32 v{vT+2}, s{sT3}, v{vL}")
    A(f"v_mul_u32_u24 v{vT+3}, 6554, v{vT+2}")
    A(f"v_lshrrev_b32 v{vT+3}, 16, v{vT+3}")
    A(f"v_mul_u32_u24 v{vT+4}, 10, v{vT+3}")
    A(f"v_sub_u32 v{vT+4}, v{vT+2}, v{vT+4}")
    A(f"v_add_u32 v{vT+3}, s{sT2}, v{vT+3}")
    A(f"v_mul_u32_u24 v{vT+3}, 1280, v{vT+3}")
    A(f"v_lshl_add_u32 v{vT+3}, v{vT+4}, 7, v{vT+3}")
    A(f"s_cmp_ge_u32 s{sW}, 3")
    A(f"s_cbranch_scc1 L_touch_x{n}")
    A(f"buffer_load_dword v{D0}, v{vT}, s[{sWB}:{sWB+3}], s{sWOFF} offen")
    A(f"buffer_load_dword v{D0+1}, v{vT}, s[{sWA}:{sWA+3}], s{sWOFF} offen")
    A(f"s_branch L_touch_done{n}")
    A.label(f"L_touch_x{n}")
    A(f"buffer_load_dword v{D0}, v{vT+3}, s[{sX}:{sX+3}], s{sXOFF} offen")
    A.label(f"L_touch_done{n}")
    A.vm_note("touch")


def setup_phase1_reads(A):
    A(f"v_lshrrev_b32 v{vT+2}, 1, v{vR}")
    A(f"v_and_b32 v{vT+2}, 7, v{vT+2}")
    A(f"v_xor_b32 v{vT+2}, v{vT+2}, v{vHH}")
    A(f"v_lshlrev_b32 v{vT+2}, 4, v{vT+2}")
    A(f"s_lshl_b32 s{sT0}, s{sMT}, 5")
    A(f"v_add_u32 v{vT+3}, s{sT0}, v{vR}")
    A(f"v_lshl_add_u32 v{vXR}, v{vT+3}, 7, v{vT+2}")
    for ks in range(1, 4):
        A(f"v_xor_b32 v{vXR+2*ks}, {ks*32}, v{vXR}")
    for ks in range(4):
        A(f"v_add_u32 v{vXR+2*ks+1}, 0x10000, v{vXR+2*ks}")
    A(f"v_bfe_u32 v{vT+2}, v{vL}, 2, 2")
    A(f"v_lshl_add_u32 v{vT+3}, v{vHH}, 3, v{vT+2}")
    A(f"v_lshlrev_b32 v{vT+3}, 8, v{vT+3}")
    A(f"v_bfe_u32 v{vT+4}, v{vL}, 4, 1")
    A(f"v_lshlrev_b32 v{vT+4}, 5, v{vT+4}")
    A(f"v_add_u32 v{vT+3}, v{vT+3}, v{vT+4}")
    A(f"v_and_b32 v{vT+4}, 3, v{vL}")
    A(f"v_lshlrev_b32 v{vT+4}, 3, v{vT+4}")
    A(f"v_add_u32 v{vT+3}, v{vT+3}, v{vT+4}")
    A(f"v_add_u32 v{vT+3}, 16384, v{vT+3}")
    for nt in range(2):
        A(f"s_lshl_b32 s{sT0}, s{sNH}, 1")
        A(f"s_add_u32 s{sT0}, s{sT0}, {nt}")
        A(f"v_xor_b32 v{vT+4}, s{sT0}, v{vT+2}")
        A(f"v_lshl_add_u32 v{vWR1+2*nt}, v{vT+4}, 6, v{vT+3}")
        A(f"v_add_u32 v{vWR1+2*nt+1}, 0x10000, v{vWR1+2*nt}")


def setup_phase2(A):
    A(f"s_lshl_b32 s{sF1}, s{sCT}, 4")
    A(f"s_add_u32 s{sF1}, s{sF1}, s{sRB}")
    A(f"s_lshl_b32 s{sF1}, s{sF1}, 2")
    A(f"s_and_b32 s{sT0}, s2, 7")
    A(f"s_lshl_b32 s{sT0}, s{sT0}, 2")
    A(f"s_lshr_b32 s{sT1}, s2, 3")
    A(f"s_and_b32 s{sT1}, s{sT1}, 3")
    A(f"s_add_u32 s{sH}, s{sT0}, s{sT1}")
    A(f"s_lshr_b32 s{sQB}, s2, 5")
    A(f"s_mul_i32 s{sKV}, s{sH}, {KVH}")
    A(f"s_add_u32 s{sKV}, s{sKV}, {KVA}")
    A(f"s_mul_i32 s{sLDSW}, s{sW}, 2560")
    A(f"s_add_u32 s{sSRC}, s{sKV}, s{sLDSW}")
    A(f"s_lshl_b32 s{sQ0}, s{sQB}, 8")
    A(f"s_lshl_b32 s{sT0}, s{sW}, 5")
    A(f"s_add_u32 s{sQ0}, s{sQ0}, s{sT0}")
    A(f"s_lshl_b32 s{sQT}, s{sQB}, 2")
    A(f"s_lshr_b32 s{sT0}, s{sW}, 1")
    A(f"s_add_u32 s{sQT}, s{sQT}, s{sT0}")
    A(f"s_and_b32 s{sT1}, s{sW}, 1")
    A(f"s_lshl_b32 s{sBT}, s{sQT}, 6")
    A(f"s_add_u32 s{sBT}, s{sBT}, s{sT1}")
    A(f"s_mov_b32 s{sLO20}, 0xfffff")
    A(f"s_mov_b32 s{sLO20+1}, 0xfffff")
    A(f"v_lshlrev_b32 v{vQA}, 15, v{vHH}")
    A(f"v_lshl_add_u32 v{vQA}, v{vR}, 4, v{vQA}")
    A(f"v_lshlrev_b32 v{vQA2}, 3, v{vR}")
    A(f"v_lshlrev_b32 v{vGA}, 2, v{vR}")
    A(f"s_mul_i32 s{sT1}, s{sH}, {QH}")
    A(f"s_lshl_b32 s{sQOFF}, s{sQ0}, 4")
    A(f"s_add_u32 s{sQOFF}, s{sQOFF}, s{sT1}")
    if QA:
        A(f"s_add_u32 s{sQOFF}, s{sQOFF}, {QA}")
    A(f"s_lshl_b32 s{sQOFF2}, s{sQ0}, 3")
    A(f"s_add_u32 s{sQOFF2}, s{sQOFF2}, s{sT1}")
    A(f"s_add_u32 s{sQOFF2}, s{sQOFF2}, {QA + 65536}")
    A(f"s_lshl_b32 s{sGOFF}, s{sQ0}, 2")
    A(f"s_add_u32 s{sGOFF}, s{sGOFF}, {GATE}")
    A(f"v_lshlrev_b32 v{vT}, 12, v{vHH}")
    A(f"v_lshl_add_u32 v{vT}, v{vR}, 4, v{vT}")
    A(f"v_lshlrev_b32 v{vT+1}, 3, v{vR}")
    A(f"v_mul_u32_u24 v{vT+2}, 320, v{vHH}")
    A(f"v_lshl_add_u32 v{vT+2}, v{vR}, 4, v{vT+2}")
    A(f"v_add_u32 v{vT+3}, {ONES}, v{vT+2}")
    A(f"v_cmp_gt_u32 vcc, 20, v{vR}")
    for sl in range(NSLOT):
        A(f"v_add_u32 v{vK01+sl}, {sl*SLOT}, v{vT}")
        A(f"v_add_u32 v{vK2+sl}, {sl*SLOT}, v{vT+1}")
        if EXP.get("kz"):
            A(f"v_add_u32 v{vT+5}, {ONES + 12288 - 8192}, v{vT+1}")
            A(f"v_cmp_eq_u32 s[{sT4}:{sT5}], 0, v{vHH}")
            A("s_nop 1")
            A(f"v_cndmask_b32 v{vK2+sl}, v{vT+5}, v{vK2+sl}, s[{sT4}:{sT5}]")
        A(f"v_add_u32 v{vT+4}, {sl*SLOT + 10240}, v{vT+2}")
        A(f"v_cndmask_b32 v{vV+sl}, v{vT+3}, v{vT+4}, vcc")
    A(f"s_mul_i32 s{sT0}, s{sH}, 5")
    A(f"v_add_u32 v{vT}, s{sT0}, v{vHH}")
    A(f"v_lshrrev_b32 v{vT+1}, 1, v{vT}")
    A(f"v_lshlrev_b32 v{vT+1}, 15, v{vT+1}")
    A(f"v_and_b32 v{vT}, 1, v{vT}")
    A(f"v_lshl_add_u32 v{vT+1}, v{vT}, 3, v{vT+1}")
    A(f"v_lshl_add_u32 v{vOST}, v{vR}, 4, v{vT+1}")
    A(f"v_lshl_add_u32 v{vOST+1}, v{vR}, 5, v{vT+1}")
    A(f"s_mul_i32 s{sT0}, s{sH}, 20")
    A(f"s_add_u32 s{sT1}, s{sT0}, 19")
    A(f"s_lshr_b32 s{sT0}, s{sT0}, 7")
    A(f"s_lshr_b32 s{sT1}, s{sT1}, 7")
    A(f"v_bfe_u32 v{vT}, v{vL}, 4, 1")
    A(f"s_sub_u32 s{sT2}, s{sT1}, s{sT0}")
    A(f"v_mul_u32_u24 v{vT+1}, s{sT2}, v{vT}")
    A(f"v_add_u32 v{vT+1}, s{sT0}, v{vT+1}")
    A(f"v_mul_u32_u24 v{vT+2}, 5, v{vHH}")
    A(f"v_add_u32 v{vT+2}, 5, v{vT+2}")
    A(f"v_add_u32 v{vT+2}, v{vT+2}, v{vT+1}")
    A(f"v_and_b32 v{vT+3}, 15, v{vL}")
    A(f"v_lshl_add_u32 v{vT+2}, v{vT+2}, 4, v{vT+3}")
    A(f"v_lshlrev_b32 v{vF1}, 2, v{vT+2}")
    A(f"v_add_u32 v{vT+2}, {15*16}, v{vT+3}")
    A(f"v_lshlrev_b32 v{vF4}, 2, v{vT+2}")
    A(f"v_and_b32 v{vT+4}, 1, v{vL}")
    A(f"s_lshl_b32 s{sT3}, s{sQB}, 1")
    A(f"v_add_u32 v{vT+4}, s{sT3}, v{vT+4}")
    A(f"v_lshl_add_u32 v{vT+4}, v{vT+1}, 4, v{vT+4}")
    A(f"v_lshlrev_b32 v{vF2}, 2, v{vT+4}")
    A(f"v_and_b32 v{vT}, 1, v{vL}")
    A(f"v_mul_u32_u24 v{vT+1}, s{sT2}, v{vT}")
    A(f"v_add_u32 v{vT+1}, s{sT0}, v{vT+1}")
    A(f"v_bfe_u32 v{vT+2}, v{vL}, 1, 2")
    A(f"v_min_u32 v{vT+2}, 2, v{vT+2}")
    A(f"v_mul_u32_u24 v{vT+2}, 5, v{vT+2}")
    A(f"v_add_u32 v{vT+1}, v{vT+1}, v{vT+2}")
    A(f"s_lshr_b32 s{sT3}, s{sQT}, 1")
    A(f"s_max_u32 s{sT4}, s{sQT}, 1")
    A(f"s_sub_u32 s{sT4}, s{sT4}, 1")
    A(f"s_lshr_b32 s{sT4}, s{sT4}, 1")
    A(f"s_sub_u32 s{sT4}, s{sT3}, s{sT4}")
    A(f"v_bfe_u32 v{vT+2}, v{vL}, 3, 1")
    A(f"v_mul_u32_u24 v{vT+2}, s{sT4}, v{vT+2}")
    A(f"v_sub_u32 v{vT+2}, s{sT3}, v{vT+2}")
    A(f"v_lshl_add_u32 v{vT+1}, v{vT+1}, 4, v{vT+2}")
    A(f"v_lshlrev_b32 v{vF3}, 2, v{vT+1}")
    A(f"v_lshlrev_b32 v{vBA}, 15, v{vHH}")
    A(f"v_lshl_add_u32 v{vBA}, v{vR}, 4, v{vBA}")
    A(f"v_lshlrev_b32 v{vBA+1}, 3, v{vR}")
    A(f"v_and_b32 v{vT+2}, 25, v{vR}")
    A(f"v_bfe_u32 v{vT+3}, v{vR}, 1, 1")
    A(f"v_lshl_or_b32 v{vT+2}, v{vT+3}, 2, v{vT+2}")
    A(f"v_bfe_u32 v{vT+3}, v{vR}, 2, 1")
    A(f"v_lshl_or_b32 v{vT+2}, v{vT+3}, 1, v{vT+2}")
    A(f"v_lshlrev_b32 v{vT+3}, 12, v{vHH}")
    A(f"v_lshl_add_u32 v{vBA+2}, v{vT+2}, 4, v{vT+3}")
    A(f"v_lshlrev_b32 v{vBA+3}, 3, v{vT+2}")
    A(f"v_mul_u32_u24 v{vT+4}, 320, v{vHH}")
    A(f"v_lshl_add_u32 v{vBA+4}, v{vR}, 4, v{vT+4}")
    A(f"s_and_b32 s{sT1}, s{sW}, 1")
    A(f"s_lshl_b32 s{sT1}, s{sT1}, 10")
    A(f"s_lshl_b32 s{sT0}, s{sQT}, 5")
    A(f"s_add_u32 s{sT2}, s{sT1}, s{sT0}")
    A(f"s_mul_i32 s{sT0}, s{sH}, {QH}")
    A(f"s_add_u32 s{sT0}, s{sT0}, {QB}")
    A(f"s_lshl_b32 s{sT1}, s{sT2}, 4")
    A(f"s_add_u32 s{sBA}, s{sT1}, s{sT0}")
    A(f"s_lshl_b32 s{sT1}, s{sT2}, 3")
    A(f"s_add_u32 s{sBA+1}, s{sT1}, s{sT0}")
    A(f"s_add_u32 s{sBA+1}, s{sBA+1}, 65536")
    for prev in range(2):
        if prev:
            A(f"s_cmp_eq_u32 s{sQT}, 0")
            A(f"s_cselect_b32 s{sT3}, 0, 32")
            A(f"s_sub_u32 s{sT2}, s{sT2}, s{sT3}")
        A(f"s_lshr_b32 s{sT0}, s{sT2}, 8")
        A(f"s_mul_i32 s{sT0}, s{sT0}, {CHB}")
        A(f"s_add_u32 s{sT0}, s{sT0}, s{sKV}")
        A(f"s_add_u32 s{sT0}, s{sT0}, {KVB - KVA}")
        A(f"s_and_b32 s{sT3}, s{sT2}, 255")
        o = sBA + 2 + 3 * prev
        A(f"s_lshl_b32 s{sT1}, s{sT3}, 4")
        A(f"s_add_u32 s{o}, s{sT1}, s{sT0}")
        A(f"s_lshl_b32 s{sT1}, s{sT3}, 3")
        A(f"s_add_u32 s{o+1}, s{sT1}, s{sT0}")
        A(f"s_add_u32 s{o+1}, s{o+1}, 8192")
        A(f"s_lshr_b32 s{sT1}, s{sT3}, 4")
        A(f"s_mul_i32 s{sT1}, s{sT1}, 640")
        A(f"s_add_u32 s{o+2}, s{sT1}, s{sT0}")
        A(f"s_add_u32 s{o+2}, s{o+2}, 10240")
    A(f"s_lshl_b32 s{sBA+8}, s{sBT}, 2")
    A(f"s_add_u32 s{sBA+8}, s{sBA+8}, {GATE}")
    sRT, sCO, sTG = sT1, sT2, sT3
    A(f"s_lshr_b32 s{sRT}, s{sH}, 3")
    A(f"s_lshl_b32 s{sT0}, s{sQB}, 2")
    A(f"s_add_u32 s{sRT}, s{sRT}, s{sT0}")
    A(f"s_and_b32 s{sCO}, s{sH}, 7")
    A(f"s_and_b32 s{sTG}, s{sW}, 3")
    A(f"s_lshr_b32 s{sKG}, s{sW}, 2")
    A(f"s_lshl_b32 s{sFLG}, s{sRT}, 8")
    A(f"s_mul_i32 s{sWSRC}, s{sW}, 20480")
    A(f"s_mul_i32 s{sT0}, s{sCO}, 1280")
    A(f"s_add_u32 s{sWSRC}, s{sWSRC}, s{sT0}")
    A(f"s_add_u32 s{sWSRC}, s{sWSRC}, {WOT}")
    A(f"s_lshl_b32 s{sRT}, s{sRT}, 6")
    A(f"s_lshl_b32 s{sTG}, s{sTG}, 4")
    A(f"s_add_u32 s{sRT}, s{sRT}, s{sTG}")
    A(f"s_mul_i32 s{sOUTO}, s{sRT}, 1280")
    A(f"s_mul_i32 s{sT0}, s{sCO}, 160")
    A(f"s_add_u32 s{sOUTO}, s{sOUTO}, s{sT0}")
    A(f"s_lshl_b32 s{sOCB}, s{sRT}, 4")
    A(f"s_mul_i32 s{sT0}, s{sKG}, {40*32768}")
    A(f"s_add_u32 s{sOCB}, s{sOCB}, s{sT0}")
    A(f"s_add_u32 s{sOCB}, s{sOCB}, {OC}")
    A(f"s_lshl_b32 s{sPUB}, s{sQT}, 6")
    A(f"s_lshl_b32 s{sT0}, s{sH}, 1")
    A(f"s_add_u32 s{sPUB}, s{sPUB}, s{sT0}")
    A(f"s_and_b32 s{sT0}, s{sW}, 1")
    A(f"s_add_u32 s{sPUB}, s{sPUB}, s{sT0}")
    A(f"s_lshl_b32 s{sPUB}, s{sPUB}, 2")
    A(f"v_lshlrev_b32 v{vFA}, 2, v{vL}")
    A(f"v_mov_b32 v{vW0}, v{vL16}")
    A(f"v_add_u32 v{vT}, 1024, v{vL16}")
    A(f"v_add_u32 v{vT+1}, {10240 - 256}, v{vL16}")
    A(f"v_cmp_gt_u32 vcc, 16, v{vL}")
    A(f"v_add_u32 v{vW2}, {10240 + 768}, v{vL16}")
    A(f"v_lshrrev_b32 v{vT+2}, 4, v{vL}")
    A(f"v_cndmask_b32 v{vW1}, v{vT+1}, v{vT}, vcc")
    A(f"v_and_b32 v{vT+3}, 15, v{vL}")
    A(f"v_lshlrev_b32 v{vT+4}, 15, v{vT+2}")
    A(f"v_lshl_add_u32 v{vOC}, v{vT+3}, 4, v{vT+4}")
    A(f"v_mul_u32_u24 v{vT+4}, 1280, v{vT+2}")
    A(f"v_lshl_add_u32 v{vWR}, v{vT+3}, 4, v{vT+4}")
    A(f"v_mul_u32_u24 v{vT+4}, 1280, v{vT+3}")
    A(f"v_lshl_add_u32 v{vST}, v{vT+2}, 3, v{vT+4}")


def pattern_fill(A):
    for r in range(2):
        A(f"v_add_u32 v{vT}, {512*r}, v0")
        A(f"v_mul_u32_u24 v{vT+1}, 3277, v{vT}")
        A(f"v_lshrrev_b32 v{vT+1}, 16, v{vT+1}")
        A(f"v_mul_u32_u24 v{vT+1}, 20, v{vT+1}")
        A(f"v_cmp_eq_u32 vcc, v{vT+1}, v{vT}")
        A(f"v_mov_b32 v{vT+4}, 0")
        A(f"v_mov_b32 v{vT+5}, 0x3f803f80")
        A(f"v_cndmask_b32 v{vT+4}, v{vT+4}, v{vT+5}, vcc")
        for i in range(1, 4):
            A(f"v_mov_b32 v{vT+4+i}, v{vT+4}")
        A(f"v_lshlrev_b32 v{vT}, 4, v{vT}")
        A(f"v_add_u32 v{vT}, {ONES}, v{vT}")
        if r == 1:
            A(f"s_cmp_ge_u32 s{sW}, 4")
            A("s_cbranch_scc1 L_pat_done")
        A(f"ds_write_b128 v{vT}, {v(vT+4,4)}")
    A.label("L_pat_done")
    if EXP.get("kz"):
        for i in range(4):
            A(f"v_mov_b32 v{vT+4+i}, 0")
        A(f"v_lshlrev_b32 v{vT}, 4, v0")
        A(f"v_add_u32 v{vT}, {ONES + 12288}, v{vT}")
        A(f"ds_write_b128 v{vT}, {v(vT+4,4)}")


def gen(prof=False):
    A = Asm()
    A.prof = prof
    kernel_header(A, NAME)
    A("s_cmp_ge_u32 s2, 256")
    A("s_cbranch_scc1 L_end")
    A.stamp("start")
    A("s_load_dwordx4 s[4:7], s[0:1], 0")
    A(f"s_load_dwordx2 s[{sP}:{sP+1}], s[0:1], 32")
    A(f"s_load_dwordx2 s[{sP+2}:{sP+3}], s[0:1], 72")
    A(f"s_load_dwordx4 s[{sDBG}:{sDBG+3}], s[0:1], 56")
    A(f"v_lshrrev_b32 v{vT}, 6, v0")
    A(f"v_and_b32 v{vL}, 63, v0")
    A(f"v_readfirstlane_b32 s{sW}, v{vT}")
    A(f"v_and_b32 v{vR}, 31, v{vL}")
    A(f"v_lshrrev_b32 v{vHH}, 5, v{vL}")
    A(f"v_lshlrev_b32 v{vL16}, 4, v{vL}")
    A(f"s_and_b32 s{sT0}, s2, 7")
    A(f"s_lshr_b32 s{sT1}, s2, 3")
    A(f"s_and_b32 s{sRB}, s{sT0}, 1")
    A(f"s_lshl_b32 s{sRB}, s{sRB}, 3")
    A(f"s_and_b32 s{sT2}, s{sT1}, 7")
    A(f"s_add_u32 s{sRB}, s{sRB}, s{sT2}")
    A(f"s_lshr_b32 s{sCT}, s{sT0}, 1")
    A(f"s_lshl_b32 s{sCT}, s{sCT}, 2")
    A(f"s_lshr_b32 s{sT2}, s{sT1}, 3")
    A(f"s_add_u32 s{sCT}, s{sCT}, s{sT2}")
    A(f"s_and_b32 s{sNH}, s{sW}, 1")
    A(f"s_lshr_b32 s{sMT}, s{sW}, 1")
    A(f"s_mul_i32 s{sXOFF}, s{sRB}, {128*1280}")
    A(f"s_lshl_b32 s{sWOFF}, s{sCT}, 8")
    A(f"s_lshl_b32 s{sLDS1}, s{sW}, 10")
    A(f"s_mul_hi_u32 s{sT0}, s{sCT}, 0x33333334")
    A(f"s_mul_i32 s{sT0}, s{sT0}, 5")
    A(f"s_sub_u32 s{sCT5}, s{sCT}, s{sT0}")
    A(f"v_lshrrev_b32 v{vT}, 3, v{vL}")
    A(f"s_lshl_b32 s{sT0}, s{sW}, 3")
    A(f"v_add_u32 v{vT}, s{sT0}, v{vT}")
    A(f"v_lshrrev_b32 v{vT+1}, 1, v{vT}")
    A(f"v_xor_b32 v{vT+1}, v{vT+1}, v{vL}")
    A(f"v_and_b32 v{vT+1}, 7, v{vT+1}")
    A(f"v_lshlrev_b32 v{vT+1}, 4, v{vT+1}")
    A(f"v_mul_u32_u24 v{vT+2}, 1280, v{vT}")
    A(f"v_add_u32 v{vXD}, v{vT+2}, v{vT+1}")
    A(f"v_lshrrev_b32 v{vT}, 4, v{vL}")
    A(f"v_lshlrev_b32 v{vT+1}, 2, v{vT}")
    A(f"v_xor_b32 v{vT+1}, v{vT+1}, v{vL}")
    A(f"v_and_b32 v{vT+1}, 15, v{vT+1}")
    A(f"v_lshlrev_b32 v{vT+1}, 4, v{vT+1}")
    A(f"s_lshl_b32 s{sT0}, s{sW}, 2")
    A(f"v_add_u32 v{vT}, s{sT0}, v{vT}")
    A(f"v_mul_u32_u24 v{vT}, 3840, v{vT}")
    A(f"v_add_u32 v{vWD}, v{vT}, v{vT+1}")
    A("s_waitcnt lgkmcnt(0)")
    srd(A, sX, 4, X_BYTES)
    srd(A, sWA, 6, W_BYTES)
    srd(A, sWB, sP, W_BYTES)
    srd(A, sWS, sP + 2, WS_USED)
    srd(A, sOUT, sDBG, OUT_BYTES)
    A(f"s_mov_b32 s{sDBG}, s{sDBG+2}")
    A(f"s_and_b32 s{sDBG+1}, s{sDBG+3}, 0xffff")
    A(f"s_mov_b32 s{sDBG+2}, 256")
    A(f"s_mov_b32 s{sDBG+3}, 0x20000")
    A(f"s_cmp_eq_u32 s{sCT}, 15")
    A("s_cbranch_scc1 L_nodma")
    for b in range(2):
        for p in range(4):
            g_dma(A, b, p)
    if EXP.get("touch") == 1:
        saved = (list(A.vm_q), A.vm_count)
        l2_touch(A, "e")
        A.vm_q, A.vm_count = saved
    A.label("L_nodma")
    A(f"s_or_b32 s{sT0}, s2, s{sW}")
    A(f"s_cmp_lg_u32 s{sT0}, 0")
    A("s_cbranch_scc1 L_nonce_done")
    A(f"s_memrealtime s[{sT4}:{sT5}]")
    A("s_waitcnt lgkmcnt(0)")
    A(f"s_or_b32 s{sT0}, s{sT4}, 1")
    A(f"v_mov_b32 v{vT}, s{sT0}")
    A(f"v_mov_b32 v{vT+1}, 0")
    A("s_mov_b64 exec, 1")
    A(f"buffer_store_dword v{vT}, v{vT+1}, s[{sDBG}:{sDBG+3}], 0 offen sc1")
    A("s_mov_b64 exec, -1")
    A.label("L_nonce_done")
    setup_phase1_reads(A)
    setup_phase2(A)
    A.stamp("issued")
    A(f"s_cmp_eq_u32 s{sCT}, 15")
    A("s_cbranch_scc1 L_spare")
    A(f"s_cmp_ge_u32 s{sCT}, 10")
    A("s_cbranch_scc1 L_vtile")
    if prof:
        A.stamps += ["blk0 landed", "gemm0", "epi0", "gemm1", "epi1"]
        if EXP.get("stampB"):
            A.stamps += ["b11 end", "b12 end", "b15 end", "b16 end"]
    gemm(A, True, "t")
    A("s_branch L_attn")
    A.label("L_vtile")
    gemm(A, False, "n")
    A.label("L_attn")
    A.vm_q, A.lds_q = [], []
    pattern_fill(A)
    dma_chunk(A, 3)
    A.lds_wait_all()
    A("s_barrier")
    A.stamp("attn start")
    rd_k01(A, 0)
    rd_k2(A, 0)
    b_consts(A)
    A.lds_wait_all()
    mf16(A, SA, K01, Q01, "0")
    mf8(A, SA, K2, Q2, v(SA, 16))
    A("s_nop 7")
    A("s_nop 5")
    max16(A, vT, SA, True)
    cross_half_max(A, vT, vT + 1)
    for i in range(16):
        A(f"v_sub_f32 v{NEGM+i}, 0, v{vT}")
    A("s_nop 1")
    mf16(A, SA, K01, Q01, v(NEGM, 16))
    mf8(A, SA, K2, Q2, v(SA, 16))
    rd_k01(A, 1)
    rd_k2(A, 1)
    rd_v(A, 0, 0)
    A("s_nop 7")
    A("s_nop 3")
    NT = 64
    sched = {}
    def at(t, half, fn):
        sched.setdefault((t, half), []).append(fn)
    fb_items = [(vFL, vF3, F1B, None), (vFL2, vF4, F1A, None)]
    pos = {}
    def issue(name, items):
        def f(A):
            pos[name] = poll_issue(A, items, name)
        return f
    at(13, 0, issue("f1b", fb_items))
    pre_barrier = {22: lambda A: poll_check(A, fb_items, pos["f1b"], "f1b"),
                   54: lambda A: poll_check(A, fo_items, pos["fb"], "fb")}
    at(22, 1, lambda A: A.vm(f"buffer_load_dword v{vG}, v{vGA}, {WS}, s{sGOFF} offen sc1", "g"))
    for i, f in enumerate(b_load_items()):
        at(25 + i // 2, i % 2, f)
    at(34, 1, b_unit)
    at(40, 0, lambda A: publish(A, sPUB, FLAGB, "stb"))
    fo_items = [(vFL, vFA, FLAGB, sFLG)]
    at(48, 0, issue("fb", fo_items))
    for k in range(10):
        at(55 + k // 2, k % 2, lambda A, k=k: oc_load(A, 1, k))
    for st in range(3):
        for p in range(3):
            i = 3 * st + p
            at(42 + i // 2, i % 2, lambda A, st=st, p=p: dma_w_piece(A, 1, st, p))
    for st in range(3, 5):
        for p in range(3):
            i = 3 * (st - 3) + p
            at(57 + i // 2, 1 - i % 2, lambda A, st=st, p=p: dma_w_piece(A, 1, st, p))
    for c in range(2, NCH - 2):
        for p in range(3):
            at(TPC * c - 1 + p // 2, 1 if p % 2 == 0 else 0, lambda A, c=c, p=p: dma_chunk_piece(A, c + 2, p))
    for t in range(NT):
        cur = SA if t % 2 == 0 else SB
        nxt = SB if t % 2 == 0 else SA
        if (t == 32 and not EXP.get("stampB")) or (EXP.get("stampB") and t in (21, 24)):
            A.stamp("t%d" % t)
        if t % TPC == TPC - 2 and t + 2 < NT:
            c = (t + 2) // TPC
            if c == 1:
                A.vm_wait(("c", 3))
            A.vm_wait(("c", c))
            if t in pre_barrier:
                pre_barrier[t](A)
            A("s_barrier")
            if c == 1:
                with Wave0(A, "pubb"):
                    publish(A, sF1, F1B)
        if t == 63:
            A.vm_wait(("w", 1, 4))
        for f in sched.get((t, 0), []):
            f(A)
        if t + 1 < NT:
            A.lds_wait(("k01", t + 1))
            mf16(A, nxt, K01, Q01, "0" if EXP.get("m0") else v(NEGM, 16))
            if t + 2 < NT:
                rd_k01(A, t + 2)
        exps(A, cur, 0)
        if t > 0:
            A.lds_wait(("v", t - 1, 1))
            mf16(A, O, V1, P + 4, v(O, 16))
        rd_v(A, t, 1)
        exps(A, cur, 1)
        for f in sched.get((t, 1), []):
            f(A)
        if t + 1 < NT:
            A.lds_wait(("k2", t + 1))
            mf8(A, nxt, K2, Q2, v(nxt, 16))
            if t + 2 < NT:
                rd_k2(A, t + 2)
        exps(A, cur, 2)
        A.lds_wait(("v", t, 0))
        mf16(A, O, V0, P, "0" if t == 0 else v(O, 16))
        if t + 1 < NT:
            rd_v(A, t + 1, 0)
        exps(A, cur, 3)
    A.lds_wait(("v", NT - 1, 1))
    A("s_nop 1")
    mf16(A, O, V1, P + 4, v(O, 16))
    A(f"v_add_u32 v{vT+5}, 0x10000, v{vWR}")
    A(f"v_add_u32 v{vT+6}, 0x20000, v{vWR}")
    A(f"v_mov_b32 v{vT+3}, {hex(f32bits(BIG))}")
    A("s_nop 7")
    A("s_nop 3")
    A.stamp("loop end")
    row_sum(A, O)
    A(f"v_mul_f32 v{vT+2}, 0, v{O}")
    for i in range(1, 12):
        A(f"v_fma_f32 v{vT+2}, v{O+i}, 0, v{vT+2}")
    A(f"v_add_f32 v{vT+2}, v{vT+2}, v{vT+1}")
    A(f"v_cmp_lt_f32 vcc, v{vT+2}, v{vT+3}")
    A("s_nop 4")
    A("s_cmp_eq_u64 vcc, exec")
    A("s_cbranch_scc0 L_fallback")
    A.label("L_finish")
    A.vm_wait("g")
    finish_tile(A, O, vG, False, vOST, sQ0, 0, "sta")
    A(f"v_add_u32 v{vT+5}, 0x10000, v{vWR}")
    A(f"v_add_u32 v{vT+6}, 0x20000, v{vWR}")
    A("s_barrier")
    A.stamp("ring free") if not EXP.get("stampB") else None
    wa = [(st, p) for st in range(3) for p in range(3)]

    def hook_b(k, kg):
        if k < 9:
            st, p = wa[k]
            dma_w_piece(A, 0, st, p)
        if k == 7:
            publish(A, sPUB, FLAGA, "sta")
    outproj(A, 1, True, hook_b)
    A.stamp("b part") if not EXP.get("stampB") else None
    A("s_barrier")
    for st in range(3, 5):
        for p in range(3):
            dma_w_piece(A, 0, st, p)
    fa_items = [(vFL, vFA, FLAGA, sFLG)]
    pfa = poll_issue(A, fa_items, "fa")
    poll_check(A, fa_items, pfa, "fa")
    A("s_barrier")
    A.stamp("flags a") if not EXP.get("stampB") else None
    for k in range(10):
        oc_load(A, 0, k)
    A.vm_wait(("w", 0, 4))
    A("s_barrier")
    outproj(A, 0, False)
    A.stamp("a part") if not EXP.get("stampB") else None
    A(f"s_and_b32 s{sT0}, s{sW}, 3")
    A(f"s_mul_i32 s{sT0}, s{sT0}, 5120")
    A(f"v_add_u32 v{vT}, s{sT0}, v{vL16}")
    A(f"s_cmp_eq_u32 s{sKG}, 0")
    A("s_cbranch_scc1 L_red_a")
    A("s_nop 5")
    for nt in range(5):
        A(f"ds_write_b128 v{vT}, {v(ACC+4*nt,4)} offset:{nt*1024}")
    A("s_waitcnt lgkmcnt(0)")
    A("s_barrier")
    A("s_endpgm")
    A.label("L_red_a")
    A("s_barrier")
    A.lds_q = []
    for nt in range(5):
        A.lds(f"ds_read_b128 {v(WF+4*nt,4)}, v{vT} offset:{nt*1024}", ("r", nt))
    for nt in range(5):
        A.lds_wait(("r", nt))
        for i in range(4):
            A(f"v_add_f32 v{ACC+4*nt+i}, v{ACC+4*nt+i}, v{WF+4*nt+i}")
        A(f"v_cvt_pk_bf16_f32 v{ACC+4*nt}, v{ACC+4*nt}, v{ACC+4*nt+1}")
        A(f"v_cvt_pk_bf16_f32 v{ACC+4*nt+1}, v{ACC+4*nt+2}, v{ACC+4*nt+3}")
        A.vm(f"buffer_store_dwordx2 {v(ACC+4*nt,2)}, v{vST}, s[{sOUT}:{sOUT+3}], s{sOUTO} offen offset:{nt*32}{EXP.get('outst','')}", "st")
    A.stamp("end")
    if prof and EXP.get("dbg"):
        with Wave0(A, "dbgout"):
            A(f"v_subrev_u32 v{vT}, s{sNONCE}, v{A.PROF_V}")
            A(f"v_subrev_u32 v{vT+1}, 16, v{vL}")
            A(f"v_lshlrev_b32 v{vT+1}, 2, v{vT+1}")
            if EXP["dbg"] == 2:
                A(f"v_sub_u32 v{vT}, 0x100000, v{vT}")
            A("s_mov_b32 exec_lo, 0xfffe0000")
            A("s_mov_b32 exec_hi, 0")
            A(f"buffer_atomic_umax v{vT}, v{vT+1}, s[{sDBG}:{sDBG+3}], 0 offen")
            A("s_mov_b64 exec, -1")
    A.stamp_flush(0, sWS, PROF, vT)
    A("s_endpgm")
    fallback(A)
    spare(A)
    A.label("L_end")
    A("s_endpgm")
    kernel_footer(A, NAME, NV, 96)
    gen.stamps = getattr(A, "stamps", [])
    return A.text()

if __name__ == "__main__":
    print(gen())
```

```python
from asmlib import *
from layout2 import *

NAME = "gated_mix__softmax_full_mha__sliding_local_dilated__prompt_kernel"
EXP = {}
STAGE, NST, NB = 32768, 5, 20
SLOT = CHB
NSLOT = 4
TPC = CH // 32
NCH = S // CH
ONES = 4 * SLOT
PAT_UNITS = 672
WBASE = ONES + PAT_UNITS * 16
WSTG = 20480
LDS_BYTES = 163840
WB_OFF = [WBASE, WBASE + WSTG, WBASE + 2 * WSTG, 0, SLOT]
WA_OFF = [2 * SLOT, 3 * SLOT, WBASE, WBASE + WSTG, WBASE + 2 * WSTG]
assert WBASE + 3 * WSTG <= LDS_BYTES
BIG = 2.0 ** 64
SPIN_MAX = 1 << 16
sWS, sOUT = 8, 12
sW, sNONCE = 16, 17
sH, sQB, sPA, sLDSW, sLDSW2, sWSRC, sOCB, sFLG, sPUB, sOUTO, sKG, sQ0, sBT, sQT = range(18, 32)
sT0, sT1, sT2, sT3, sT4, sT5 = range(32, 38)
sM = 38
sLO20 = 40
sCNT = 42
sP2L = 43
sDBG = 44
sBA = 48
sVH = 57
sX, sWA, sWB = 60, 64, 68
sRB, sCT, sMH, sNH, sXOFF, sWOFF, sLDS1, sCT5, sTP, sB16, sQS, sGI = range(72, 84)
sQOFF, sQOFF2, sGOFF, sF1 = 88, 89, 90, 91
sP = 92
vL, vR, vHH = 1, 2, 3
vK01, vK2, vV = 4, 8, 12
vL16, vG, vGB, vFL = 16, 17, 18, 19
vT = 20
SA, SB, NEGM, O, P = 28, 44, 60, 76, 92
Q01, Q2, K01, K2, V0, V1 = 100, 104, 108, 112, 116, 120
BQ01, BQ2, BK01, BK2, BKP01, BKP2 = 124, 128, 132, 136, 140, 144
BV0, BV1, BVP, BS0, BS1, BO, BP = 148, 152, 156, 160, 176, 192, 208
vBA = 220
vW0, vW1, vW2, vOC, vWR, vST, vFA = 225, 226, 227, 228, 229, 230, 231
vF1, vF2, vF3, vF4 = 232, 233, 234, 241
vFL2 = 235
vQA, vQA2, vGA = 236, 237, 238
vOST = 239
vXD, vWD = 242, 243
vCB, vCS = 244, 247
vCT = 250
NV = 252
OCB, OCA, ACC, WF = 124, 164, 204, 28
G_ACC = 124
G_F = 28
G_P = 188
vA16 = 76
vXR, vWR1 = 106, 118
WS = f"s[{sWS}:{sWS+3}]"


def st1():
    return " sc1"


def publish(A, soff_reg, base, tag=None):
    if tag is not None:
        A.vm_wait(tag)
    A(f"v_mov_b32 v{vT}, s{sNONCE}")
    A(f"v_mov_b32 v{vT+1}, 0")
    A(f"s_add_u32 s{sT0}, s{soff_reg}, {base}")
    A("s_mov_b64 exec, 1")
    A.vm(f"buffer_store_dword v{vT}, v{vT+1}, {WS}, s{sT0} offen sc1", "pub")
    A("s_mov_b64 exec, -1")


class Wave0:
    def __init__(self, A, name):
        self.A, self.name = A, name
    def __enter__(self):
        A = self.A
        A(f"s_cmp_lg_u32 s{sW}, 0")
        A(f"s_cbranch_scc1 L_w0_{self.name}")
        self.saved = (list(A.vm_q), A.vm_count)
    def __exit__(self, *a):
        A = self.A
        A.vm_q, A.vm_count = self.saved
        A.label(f"L_w0_{self.name}")


def _poll_loads(A, items):
    for (vdst, voff, base, soff_reg) in items:
        if soff_reg is None:
            A(f"s_mov_b32 s{sT0}, {base}")
        else:
            A(f"s_add_u32 s{sT0}, s{soff_reg}, {base}")
        A(f"buffer_load_dword v{vdst}, v{voff}, {WS}, s{sT0} offen sc1")


def poll_issue(A, items, name):
    with Wave0(A, name + "_i"):
        _poll_loads(A, items)
    return A.vm_count


def poll_check(A, items, pos, name, inv=False, drain=False):
    def compare():
        for i, (vdst, _, _, _) in enumerate(items):
            if i == 0:
                A(f"v_cmp_eq_u32 vcc, s{sNONCE}, v{vdst}")
            else:
                A(f"v_cmp_eq_u32 s[{sT4}:{sT5}], s{sNONCE}, v{vdst}")
                A("s_nop 3")
                A(f"s_and_b64 vcc, vcc, s[{sT4}:{sT5}]")
        A("s_nop 3")
        A("s_cmp_eq_u64 vcc, exec")
    with Wave0(A, name + "_c"):
        A(f"s_waitcnt vmcnt({A.vm_count - pos})")
        compare()
        A(f"s_cbranch_scc1 L_{name}_ok")
        A(f"s_mov_b32 s{sCNT}, 0")
        A.label(f"L_{name}_spin")
        A("s_sleep 2")
        _poll_loads(A, items)
        A(f"s_add_u32 s{sCNT}, s{sCNT}, 1")
        A(f"s_cmp_ge_u32 s{sCNT}, {SPIN_MAX}")
        A(f"s_cbranch_scc1 L_{name}_ok")
        A("s_waitcnt vmcnt(0)")
        compare()
        A(f"s_cbranch_scc0 L_{name}_spin")
        A.label(f"L_{name}_ok")
        if inv:
            A("buffer_inv sc1")
        if drain:
            A("s_waitcnt vmcnt(0)")


def nonce_issue(A):
    A(f"v_mov_b32 v{vT}, 0")
    A.vm(f"buffer_load_dword v{vFL}, v{vT}, s[{sDBG}:{sDBG+3}], 0 offen sc1", "nonce")


def nonce_check(A, name):
    A.vm_wait("nonce")
    A("s_nop 0")
    A(f"v_readfirstlane_b32 s{sNONCE}, v{vFL}")
    A("s_nop 3")
    A(f"s_cmp_lg_u32 s{sNONCE}, 0")
    A(f"s_cbranch_scc1 L_{name}_ok")
    A(f"s_mov_b32 s{sCNT}, 0")
    A.label(f"L_{name}_spin")
    A("s_sleep 1")
    A(f"v_mov_b32 v{vT}, 0")
    A(f"buffer_load_dword v{vFL}, v{vT}, s[{sDBG}:{sDBG+3}], 0 offen sc1")
    A(f"s_add_u32 s{sCNT}, s{sCNT}, 1")
    A(f"s_cmp_ge_u32 s{sCNT}, {SPIN_MAX}")
    A(f"s_cbranch_scc1 L_{name}_ok")
    A("s_waitcnt vmcnt(0)")
    A(f"v_readfirstlane_b32 s{sNONCE}, v{vFL}")
    A("s_nop 3")
    A(f"s_cmp_eq_u32 s{sNONCE}, 0")
    A(f"s_cbranch_scc1 L_{name}_spin")
    A.label(f"L_{name}_ok")


def g_dma(A, b, p):
    kb, st, t = b % 10, b % NST, p & 3
    A(f"s_add_u32 m0, s{sLDS1}, {st*STAGE + (p >> 2)*16384 + 4096*t}")
    if p < 4:
        A(f"s_add_u32 s{sT0}, s{sXOFF}, {kb*128 + t*40960}")
        A.vm(f"buffer_load_dwordx4 v{vXD}, s[{sX}:{sX+3}], s{sT0} offen lds", ("d", b))
    else:
        sw = sWA if b < 10 else sWB
        A(f"s_add_u32 s{sT0}, s{sWOFF}, {(kb*64 + 16*t) * 3840}")
        A.vm(f"buffer_load_dwordx4 v{vWD}, s[{sw}:{sw+3}], s{sT0} offen lds", ("d", b))


def g_acc(mt, nt):
    return G_ACC + 32 * mt + 16 * nt


def g_frag(s_, i):
    return G_F + 16 * (s_ % 3) + 4 * i


def g_read_list(s_):
    b, ks = divmod(s_, 4)
    st = b % NST
    base, off = st >> 1, (st & 1) * STAGE
    out = []
    for mt in range(2):
        out.append(f"ds_read_b128 {v(g_frag(s_, mt),4)}, v{vXR + 3*ks + base} offset:{off + mt*4096}")
    for nt in range(2):
        for q in range(2):
            out.append(f"ds_read_b64_tr_b16 {v(g_frag(s_, 2+nt)+2*q,2)}, v{vWR1 + 3*nt + base} offset:{off + 16384 + ks*4096 + q*1024}")
    return out


def g_reads(A, s_):
    for ins in g_read_list(s_):
        A.lds(ins, ("f", s_))


def g_step(A, s_, last, tr, extra=None):
    b, ks = divmod(s_, 4)
    A.lds_wait(("f", s_))
    nxt = g_read_list(s_ + 2) if s_ + 2 <= last else []
    for i, (mt, nt) in enumerate(((0, 0), (0, 1), (1, 0), (1, 1))):
        d = g_acc(mt, nt)
        c = "0" if (s_ % 40 == 0) else v(d, 16)
        x, w = g_frag(s_, mt), g_frag(s_, 2 + nt)
        a, bb = (w, x) if tr else (x, w)
        A(f"v_mfma_f32_32x32x16_bf16 {v(d,16)}, {v(a,4)}, {v(bb,4)}, {c}")
        for ins in nxt[2*i:2*i+2]:
            A.lds(ins, ("f", s_ + 2))
        if extra and i == 3:
            extra()


def epi_prepare(A, isb, tr, n):
    A(f"s_lshl_b32 s{sTP}, s{sRB}, 7")
    A(f"s_lshl_b32 s{sT0}, s{sMH}, 6")
    A(f"s_add_u32 s{sTP}, s{sTP}, s{sT0}")
    if isb:
        A(f"s_lshr_b32 s{sTP}, s{sTP}, 1")
    if tr:
        A(f"s_cmp_lt_u32 s{sCT}, 5")
        A(f"s_mov_b32 s{sT1}, {QB if isb else QA}")
        A(f"s_cselect_b32 s{sB16}, s{sT1}, {KB if isb else KA}")
        A(f"s_mov_b32 s{sT1}, {hex(f32bits(QSCALE))}")
        A(f"s_cselect_b32 s{sQS}, s{sT1}, 1.0")
        A(f"s_lshl_b32 s{sT0}, s{sCT5}, 1")
        A(f"s_add_u32 s{sT0}, s{sT0}, s{sNH}")
        A(f"s_lshl_b32 s{sT0}, s{sT0}, 18")
        A(f"s_add_u32 s{sB16}, s{sB16}, s{sT0}")
        A(f"s_lshl_b32 s{sT0}, s{sTP}, 4")
        A(f"s_add_u32 s{sB16}, s{sB16}, s{sT0}")
        A(f"v_lshlrev_b32 v{vA16}, 15, v{vHH}")
        if isb:
            A(f"v_and_b32 v{vT}, 1, v{vR}")
            A(f"v_lshl_add_u32 v{vA16}, v{vT}, 14, v{vA16}")
            A(f"v_lshrrev_b32 v{vT}, 1, v{vR}")
            A(f"v_lshl_add_u32 v{vA16}, v{vT}, 4, v{vA16}")
        else:
            A(f"v_lshl_add_u32 v{vA16}, v{vR}, 4, v{vA16}")
        A(f"v_mov_b32 v{vT+2}, s{sQS}")
        A(f"v_mov_b32 v{vT+3}, s{sQS}")
    else:
        A(f"v_mul_u32_u24 v{vT+1}, 320, v{vHH}")
        A(f"s_lshl_b32 s{sT0}, s{sCT5}, 7")
        A(f"s_lshl_b32 s{sT1}, s{sNH}, 6")
        A(f"s_add_u32 s{sT0}, s{sT0}, s{sT1}")
        for nt in range(2):
            A(f"v_add_u32 v{vT+2}, s{sT0}, v{vR}")
            if nt:
                A(f"v_add_u32 v{vT+2}, 32, v{vT+2}")
            A(f"v_mul_u32_u24 v{vT+3}, 3277, v{vT+2}")
            A(f"v_lshrrev_b32 v{vT+3}, 16, v{vT+3}")
            A(f"v_mul_u32_u24 v{vT+4}, 20, v{vT+3}")
            A(f"v_sub_u32 v{vT+4}, v{vT+2}, v{vT+4}")
            A(f"v_mul_u32_u24 v{vT+3}, {VH}, v{vT+3}")
            A(f"v_lshl_add_u32 v{vT+3}, v{vT+4}, 4, v{vT+3}")
            A(f"v_add_u32 v{vA16+nt}, v{vT+3}, v{vT+1}")
        A(f"s_lshr_b32 s{sT0}, s{sTP}, 4")
        A(f"s_mul_i32 s{sT0}, s{sT0}, 640")
        A(f"s_add_u32 s{sB16}, s{sT0}, {VB if isb else VA}")


def epi_group(A, isb, tr, g, tag):
    reg = G_P + 4 * g
    mt, nt, u = g >> 2, (g >> 1) & 1, g & 1
    src = g_acc(mt, nt)
    if tr:
        for jj in range(2):
            a = src + 4 * (2 * u + jj)
            A(f"v_pk_mul_f32 {v(a,2)}, {v(a,2)}, v[{vT+2}:{vT+3}]")
            A(f"v_pk_mul_f32 {v(a+2,2)}, {v(a+2,2)}, v[{vT+2}:{vT+3}]")
            A(f"v_cvt_pk_bf16_f32 v{reg+2*jj}, v{a}, v{a+1}")
            A(f"v_cvt_pk_bf16_f32 v{reg+2*jj+1}, v{a+2}, v{a+3}")
        A(f"s_add_u32 s{sT1}, s{sB16}, {(4*nt + 2*u)*PLANE + mt*(256 if isb else 512)}")
        A("s_nop 0")
        A(f"v_permlane32_swap_b32 v{reg}, v{reg+2}")
        A(f"v_permlane32_swap_b32 v{reg+1}, v{reg+3}")
        A.vm(f"buffer_store_dwordx4 {v(reg,4)}, v{vA16}, {WS}, s{sT1} offen sc1", tag)
    else:
        if isb:
            for j in range(4):
                A(f"v_cvt_pk_bf16_f32 v{reg+j}, v{src+4*j+u}, v{src+4*j+u+2}")
            A(f"s_add_u32 s{sT1}, s{sB16}, {mt*640 + u*64*640}")
        else:
            for p in range(4):
                A(f"v_cvt_pk_bf16_f32 v{reg+p}, v{src+8*u+2*p}, v{src+8*u+2*p+1}")
            A(f"s_add_u32 s{sT1}, s{sB16}, {(2*mt + u)*640}")
        A.vm(f"buffer_store_dwordx4 {v(reg,4)}, v{vA16+nt}, {WS}, s{sT1} offen sc1", tag)


def acquire_items():
    return [(vFL, vF1, F1A, None), (vFL2, vF2, F1A, None)]


def p2_load_items():
    def q01(A):
        A.vm(f"buffer_load_dwordx4 {v(Q01,4)}, v{vQA}, {WS}, s{sQOFF} offen sc1", "q")
    def q2(A):
        A(f"v_mov_b32 v{Q2}, 0")
        A(f"v_mov_b32 v{Q2+1}, 0")
        A("s_mov_b32 exec_hi, 0")
        A.vm(f"buffer_load_dwordx2 {v(Q2,2)}, v{vQA2}, {WS}, s{sQOFF2} offen sc1", "q")
        A("s_mov_b32 exec_hi, -1")
    items = [lambda A, p=p: dma_chunk_piece(A, 0, p) for p in range(3)] + [q01, q2]
    items += [lambda A, c=c, p=p: dma_chunk_piece(A, c, p) for c in (1, 2) for p in range(3)]
    return items


def gemm(A, tr, n):
    A.vm_q, A.lds_q = [], []
    A("s_barrier")
    A.stamp("blk0 landed", 2)
    g_reads(A, 0)
    g_reads(A, 1)
    for s_ in range(40):
        b, ks = divmod(s_, 4)
        if ks == 2:
            A("s_barrier")
        if s_ == 22:
            nonce_issue(A)
        if s_ == 30:
            nonce_check(A, f"nonce0{n}")
        g_step(A, s_, 39, tr)
    A.stamp("gemm0", 3)
    for p in range(8):
        g_dma(A, 13, p)
    epi_prepare(A, False, tr, n)
    A("s_nop 7")
    for b in range(10, 19):
        if b in (10, 11):
            for g in range(4 * (b - 10), 4 * (b - 10) + 4):
                epi_group(A, False, tr, g, "sa")
        if b == 11:
            A.stamp("epi0", 4)
        if b == 13:
            A.vm_wait("sa")
        if b == 18:
            poll_check(A, acquire_items(), pos_f1, f"f1{n}")
        if b + 1 >= 13:
            A.vm_wait(("d", b + 1))
        A("s_barrier")
        if EXP.get("stampB") and b in (10, 12, 14, 16):
            A.stamp("", {10: 7, 12: 8, 14: 9, 16: 10}[b])
        if b + 4 < NB:
            for p in range(8):
                g_dma(A, b + 4, p)
        if b == 13:
            with Wave0(A, f"puba{n}"):
                publish(A, sF1, F1A)
        if b == 16:
            pos_f1 = poll_issue(A, acquire_items(), f"f1{n}")
    for f in p2_load_items():
        f(A)
    A.stamp("gemm1", 5)
    A.stamp("epi1", 6)
    A.vm_wait("q")
    A("s_branch L_attn")
    A.label(f"L_g1{n}")
    A.vm_q, A.lds_q = [("d", 0)] * 8 + [("d", 1)] * 8 + [("d", 2)] * 8, []
    A.vm_wait(("d", 0))
    A("s_barrier")
    A.stamp("issued", 1)
    A.stamp("blk0 landed", 2)
    for p in range(8):
        g_dma(A, 3, p)
    for b in range(10):
        if b == 0:
            setup_phase1_reads(A)
        if 1 <= b <= 5:
            SETUP_P2[b - 1](A)
        if b == 6:
            nonce_issue(A)
        if b == 8:
            nonce_check(A, f"nonce1{n}")
        A.vm_wait(("d", b + 1))
        A("s_barrier")
        if b + 4 <= 12:
            for p in range(8):
                g_dma(A, b + 4, p)
    A.stamp("gemm0", 3)
    A.stamp("epi0", 4)
    g_reads(A, 40)
    g_reads(A, 41)
    pend = []
    for s_ in range(40, 80):
        b, ks = divmod(s_, 4)
        if ks == 2 and b + 1 < NB:
            if b + 1 <= 12:
                A.vm_wait(("d", b + 1))
            A("s_barrier")
            if EXP.get("stampB") and b in (10, 12, 14, 16):
                A.stamp("", {10: 7, 12: 8, 14: 9, 16: 10}[b])
            if b == 18:
                pend = p2_load_items()
        def extra():
            for _ in range(2):
                if pend:
                    pend.pop(0)(A)
        g_step(A, s_, 79, tr, extra)
    assert not pend
    A.stamp("gemm1", 5)
    epi_prepare(A, True, tr, n)
    A("s_nop 7")
    A("s_nop 3")
    for g in range(8):
        epi_group(A, True, tr, g, "sb")
    A.stamp("epi1", 6)
    A.vm_wait("q")


def spare(A):
    sWO, sG = sWA, sWB
    A.label("L_spare")
    A.vm_q, A.lds_q = [], []
    A("s_load_dwordx2 s[4:5], s[0:1], 16")
    A("s_load_dwordx2 s[6:7], s[0:1], 40")
    A(f"s_load_dwordx2 s[{sP}:{sP+1}], s[0:1], 48")
    A("s_waitcnt lgkmcnt(0)")
    A(f"s_cmp_lt_u32 s{sRB}, 8")
    A("s_cbranch_scc1 L_sp_a")
    A("s_mov_b32 s4, s6")
    A("s_mov_b32 s5, s7")
    A.label("L_sp_a")
    srd(A, sWO, 4, WO_BYTES)
    srd(A, sG, sP, 1280)
    A(f"s_and_b32 s{sT1}, s{sRB}, 7")
    A(f"s_mul_i32 s{sT1}, s{sT1}, {80*1280}")
    A(f"s_lshl_b32 s{sLDS1}, s{sW}, 10")
    A(f"s_add_u32 s{sT1}, s{sT1}, s{sLDS1}")
    for t in range(13):
        if t == 12:
            A(f"s_cmp_ge_u32 s{sW}, 4")
            A("s_cbranch_scc1 L_sp_dma_done")
        A(f"s_add_u32 m0, s{sLDS1}, {8192*t}")
        A(f"s_add_u32 s{sT0}, s{sT1}, {8192*t}")
        A(f"buffer_load_dwordx4 v{vL16}, s[{sWO}:{sWO+3}], s{sT0} offen lds")
    A.label("L_sp_dma_done")
    XG, GG = 28, 68
    A(f"v_lshrrev_b32 v{vT+1}, 2, v{vL}")
    A(f"s_lshl_b32 s{sT0}, s{sW}, 4")
    A(f"v_add_u32 v{vT+1}, s{sT0}, v{vT+1}")
    A(f"v_and_b32 v{vT+2}, 3, v{vL}")
    A(f"v_lshlrev_b32 v{vT+2}, 4, v{vT+2}")
    A(f"v_mul_u32_u24 v{vT+3}, 1280, v{vT+1}")
    A(f"v_add_u32 v{vT+3}, v{vT+3}, v{vT+2}")
    A(f"v_mov_b32 v{vT+4}, 0")
    for half in range(2):
        for i in range(10):
            A(f"buffer_load_dwordx4 {v(XG+4*i,4)}, v{vT+3}, s[{sX}:{sX+3}], s{sXOFF} offen offset:{(10*half+i)*64}")
            A(f"buffer_load_dwordx4 {v(GG+4*i,4)}, v{vT+2}, s[{sG}:{sG+3}], 0 offen offset:{(10*half+i)*64}")
        A("s_waitcnt vmcnt(0)")
        for i in range(40):
            A(f"v_dot2_f32_bf16 v{vT+4}, v{XG+i}, v{GG+i}, v{vT+4}")
    A("s_nop 2")
    A(f"v_add_f32_dpp v{vT+4}, v{vT+4}, v{vT+4} quad_perm:[1,0,3,2] row_mask:0xf bank_mask:0xf")
    A("s_nop 1")
    A(f"v_add_f32_dpp v{vT+4}, v{vT+4}, v{vT+4} quad_perm:[2,3,0,1] row_mask:0xf bank_mask:0xf")
    A(f"v_mul_f32 v{vT+4}, {hex(f32bits(-LOG2E))}, v{vT+4}")
    A(f"v_exp_f32 v{vT+4}, v{vT+4}")
    A("s_nop 0")
    A(f"v_add_f32 v{vT+4}, 1.0, v{vT+4}")
    A(f"v_rcp_f32 v{vT+4}, v{vT+4}")
    A(f"s_lshl_b32 s{sT0}, s{sRB}, 9")
    A(f"s_add_u32 s{sT0}, s{sT0}, {GATE}")
    A(f"v_lshlrev_b32 v{vT+1}, 2, v{vT+1}")
    A("s_mov_b32 exec_lo, 0x11111111")
    A("s_mov_b32 exec_hi, 0x11111111")
    A(f"buffer_store_dword v{vT+4}, v{vT+1}, {WS}, s{sT0} offen sc1")
    A("s_mov_b64 exec, -1")
    A("s_waitcnt vmcnt(0)")
    A("s_barrier")
    A(f"v_bfe_u32 v{vT+1}, v{vL}, 2, 2")
    A(f"v_mul_u32_u24 v{vT+1}, 1280, v{vT+1}")
    A(f"v_lshrrev_b32 v{vT+2}, 4, v{vL}")
    A(f"v_lshl_add_u32 v{vT+1}, v{vT+2}, 5, v{vT+1}")
    A(f"v_and_b32 v{vT+2}, 3, v{vL}")
    A(f"v_lshl_add_u32 v{vT+1}, v{vT+2}, 3, v{vT+1}")
    A(f"s_mul_i32 s{sT3}, s{sRB}, {10*10240}")
    A(f"s_add_u32 s{sT3}, s{sT3}, {WOT}")
    A(f"s_mov_b32 s{sT1}, s{sW}")
    A.label("L_sp_loop")
    A(f"s_mul_hi_u32 s{sT2}, s{sT1}, 0x1999999a")
    A(f"s_mul_i32 s{sT0}, s{sT2}, 10")
    A(f"s_sub_u32 s{sT0}, s{sT1}, s{sT0}")
    A(f"s_mul_i32 s{sT4}, s{sT2}, 10240")
    A(f"s_lshl_b32 s{sT5}, s{sT0}, 7")
    A(f"s_add_u32 s{sT4}, s{sT4}, s{sT5}")
    A(f"v_add_u32 v{vT+3}, s{sT4}, v{vT+1}")
    A(f"ds_read_b64_tr_b16 v[{XG}:{XG+1}], v{vT+3}")
    A(f"ds_read_b64_tr_b16 v[{XG+2}:{XG+3}], v{vT+3} offset:5120")
    A(f"s_mul_i32 s{sT4}, s{sT2}, 10240")
    A(f"s_lshl_b32 s{sT5}, s{sT0}, 10")
    A(f"s_add_u32 s{sT4}, s{sT4}, s{sT5}")
    A(f"s_add_u32 s{sT4}, s{sT4}, s{sT3}")
    A("s_waitcnt lgkmcnt(0)")
    A(f"buffer_store_dwordx4 {v(XG,4)}, v{vL16}, {WS}, s{sT4} offen sc1")
    A(f"s_add_u32 s{sT1}, s{sT1}, 8")
    A(f"s_cmp_lt_u32 s{sT1}, 100")
    A("s_nop 1")
    A("s_cbranch_scc1 L_sp_loop")
    nonce_issue(A)
    nonce_check(A, "noncesp")
    A("s_waitcnt vmcnt(0)")
    A("s_barrier")
    A.vm_q = []
    with Wave0(A, "pubsp"):
        publish(A, sF1, F1A)
    pos = poll_issue(A, acquire_items(), "f1sp")
    poll_check(A, acquire_items(), pos, "f1sp")
    A("s_barrier")
    A.vm_q = []
    for f in p2_load_items():
        f(A)
    A.vm_wait("q")
    for i in (2, 3, 4, 5, 6) + ((7, 8, 9, 10) if EXP.get("stampB") else ()):
        A.stamp("", i)
    A("s_branch L_attn")


def mf16(A, d, a, b, c):
    A(f"v_mfma_f32_32x32x16_bf16 {v(d,16)}, {v(a,4)}, {v(b,4)}, {c}")


def mf8(A, d, a, b, c):
    A(f"v_mfma_f32_32x32x8_bf16 {v(d,16)}, {v(a,2)}, {v(b,2)}, {c}")


def dma_chunk_piece(A, c, t):
    slot = c % NSLOT
    A(f"s_add_u32 m0, s{sLDSW}, {slot*SLOT + 1024*t}")
    A(f"v_mad_u32_u24 v{vCT}, v{vCS+t}, {c}, v{vCB+t}")
    if t == 2:
        A("s_mov_b32 exec_hi, 0xffff")
    A.vm(f"buffer_load_dwordx4 v{vCT}, {WS}, 0 offen sc1 lds", ("c", c))
    if t == 2:
        A("s_mov_b32 exec_hi, -1")


def dma_chunk(A, c):
    for t in range(3):
        dma_chunk_piece(A, c, t)


def dma_w_piece(A, part, st, t):
    off = (WA_OFF if part == 0 else WB_OFF)[st]
    A(f"s_add_u32 m0, s{sLDSW2}, {off + 1024*t}")
    A(f"s_add_u32 s{sT0}, s{sWSRC}, {(part*80 + 16*st)*10240}")
    if t == 2:
        A("s_mov_b32 exec_hi, 0")
    A.vm(f"buffer_load_dwordx4 v{(vW0, vW1, vW2)[t]}, {WS}, s{sT0} offen sc1 lds", ("w", part, st))
    if t == 2:
        A("s_mov_b32 exec_hi, -1")


def rd_k01(A, t):
    c, tt = t // TPC, t % TPC
    A.lds(f"ds_read_b128 {v(K01,4)}, v{vK01 + c % NSLOT} offset:{tt*512}", ("k01", t))


def rd_k2(A, t):
    c, tt = t // TPC, t % TPC
    A.lds(f"ds_read_b64 {v(K2,2)}, v{vK2 + c % NSLOT} offset:{8192 + tt*512}", ("k2", t))


def rd_v(A, t, a):
    c, tt = t // TPC, t % TPC
    A.lds(f"ds_read_b128 {v(V1 if a else V0,4)}, v{vV + c % NSLOT} offset:{(2*tt + a)*640}", ("v", t, a))


def exps(A, sreg, g, preg=P):
    for i in range(4):
        A(f"v_exp_f32 v{sreg+4*g+i}, v{sreg+4*g+i}")
    A(f"v_cvt_pk_bf16_f32 v{preg+2*g}, v{sreg+4*g}, v{sreg+4*g+1}")
    A(f"v_cvt_pk_bf16_f32 v{preg+2*g+1}, v{sreg+4*g+2}, v{sreg+4*g+3}")


def cross_half_max(A, reg, tmp):
    A(f"v_mov_b32 v{tmp}, v{reg}")
    A("s_nop 1")
    A(f"v_permlane32_swap_b32 v{reg}, v{tmp}")
    A("s_nop 1")
    A(f"v_max_f32 v{reg}, v{reg}, v{tmp}")


def max16(A, dst, src, first):
    if first:
        A(f"v_max3_f32 v{dst}, v{src}, v{src+1}, v{src+2}")
        rest = list(range(3, 16))
    else:
        rest = list(range(0, 16))
    while rest:
        if len(rest) >= 2:
            A(f"v_max3_f32 v{dst}, v{dst}, v{src+rest[0]}, v{src+rest[1]}")
            rest = rest[2:]
        else:
            A(f"v_max_f32 v{dst}, v{dst}, v{src+rest[0]}")
            rest = rest[1:]


def row_sum(A, oreg):
    A(f"v_mov_b32 v{vT}, v{oreg+8}")
    A(f"v_mov_b32 v{vT+1}, v{oreg+8}")
    A("s_nop 1")
    A(f"v_permlane32_swap_b32 v{vT}, v{vT+1}")


def finish_tile(A, oreg, gate, one_minus, vaddr, tok_sreg, chunk0, tag):
    A(f"v_rcp_f32 v{vT+2}, v{vT+1}")
    A(f"s_lshl_b32 s{sT0}, s{tok_sreg}, 4")
    A(f"s_add_u32 s{sT0}, s{sT0}, {OC + chunk0*32768}")
    if one_minus:
        A(f"v_sub_f32 v{vT}, 1.0, v{gate}")
        A(f"v_mul_f32 v{vT+2}, v{vT+2}, v{vT}")
    else:
        A(f"v_mul_f32 v{vT+2}, v{vT+2}, v{gate}")
    A(f"v_mov_b32 v{vT+3}, v{vT+2}")
    for j in range(3):
        A(f"v_pk_mul_f32 {v(oreg+4*j,2)}, {v(oreg+4*j,2)}, v[{vT+2}:{vT+3}]")
        A(f"v_pk_mul_f32 {v(oreg+4*j+2,2)}, {v(oreg+4*j+2,2)}, v[{vT+2}:{vT+3}]")
        A(f"v_cvt_pk_bf16_f32 v{oreg+4*j}, v{oreg+4*j}, v{oreg+4*j+1}")
        A(f"v_cvt_pk_bf16_f32 v{oreg+4*j+1}, v{oreg+4*j+2}, v{oreg+4*j+3}")
        if j == 2:
            A("s_mov_b32 exec_hi, 0")
        A.vm(f"buffer_store_dwordx2 {v(oreg+4*j,2)}, v{vaddr}, {WS}, s{sT0} offen sc1", tag)
        if j < 2:
            A(f"s_add_u32 s{sT0}, s{sT0}, 32768")
    A("s_mov_b64 exec, -1")


def oc_load(A, part, k):
    reg = OCA if part == 0 else OCB
    A(f"s_add_u32 s{sT0}, s{sOCB}, {(part*80 + 4*k)*32768}")
    A.vm(f"buffer_load_dwordx4 {v(reg+4*k,4)}, v{vOC}, {WS}, s{sT0} offen sc1", ("oc", part, k))


def outproj(A, part, first, hook=None):
    offs = WA_OFF if part == 0 else WB_OFF
    reg = OCA if part == 0 else OCB
    for kg in range(2):
        if kg == 0:
            A(f"s_cmp_eq_u32 s{sKG}, 1")
            A(f"s_cbranch_scc1 L_op{part}_g1")
            saved = (list(A.vm_q), list(A.lds_q))
        else:
            A.label(f"L_op{part}_g1")
            A.vm_q, A.lds_q = list(saved[0]), list(saved[1])
        seq = [(k, nt) for k in range(10) for nt in range(5)]

        def rd(i):
            k, nt = seq[i]
            kk = 10 * kg + k
            off = offs[kk // 4] + (kk % 4) * 5120 + nt * 256
            areg = (vWR, vT + 5, vT + 6)[off >> 16]
            A.lds(f"ds_read_b128 {v(WF + (i % 8)*4,4)}, v{areg} offset:{off & 0xffff}", ("wf", i))

        LOOK = 5
        for i in range(LOOK):
            rd(i)
        for i, (k, nt) in enumerate(seq):
            if i + LOOK < len(seq):
                rd(i + LOOK)
            if nt == 0:
                A.vm_wait(("oc", part, k))
                if hook:
                    hook(k, kg)
            A.lds_wait(("wf", i))
            c = "0" if (first and k == 0) else v(ACC + 4*nt, 4)
            A(f"v_mfma_f32_16x16x32_bf16 {v(ACC+4*nt,4)}, {v(WF + (i % 8)*4,4)}, {v(reg+4*k,4)}, {c}")
        if kg == 0:
            end0 = (list(A.vm_q), list(A.lds_q))
            A(f"s_branch L_op{part}_done")
    A.label(f"L_op{part}_done")
    assert end0[0] == A.vm_q and end0[1] == A.lds_q


def keypos(kappa):
    return (kappa & 25) | ((kappa >> 1) & 1) << 2 | ((kappa >> 2) & 1) << 1


def band_mask(j, i, prev):
    m = 0
    for l in range(64):
        q, hh = l & 31, l >> 5
        key = keypos(8 * j + 4 * hh + i) - (32 if prev else 0)
        if 0 <= q - key <= 7:
            m |= 1 << l
    return m


def b_consts(A):
    A(f"v_cmp_eq_u32 vcc, 20, v{vR}")
    A(f"v_mov_b32 v{vT+6}, 0")
    A(f"v_mov_b32 v{vT+7}, 0x3f803f80")
    A(f"v_cndmask_b32 v{vT+6}, v{vT+6}, v{vT+7}, vcc")
    for base in (BV0, BV1, BVP):
        for i in range(4):
            A(f"v_mov_b32 v{base+i}, v{vT+6}")
    A(f"v_mov_b32 v{BQ2}, 0")
    A(f"v_mov_b32 v{BQ2+1}, 0")


def b_load_items():
    def mk(instr, pre=None, gate=False):
        def f(A):
            if gate:
                A(f"v_lshlrev_b32 v{vCT}, 1, v{vGA}")
                A.vm(instr.replace(f"v{vGA},", f"v{vCT},"), "b")
                return
            if pre:
                A(pre)
            A.vm(instr, "b")
            if pre:
                A("s_mov_b64 exec, -1")
        return f
    lo20 = f"s_mov_b64 exec, s[{sLO20}:{sLO20+1}]"
    return [
        mk(f"buffer_load_dwordx4 {v(BQ01,4)}, v{vBA}, {WS}, s{sBA} offen sc1"),
        mk(f"buffer_load_dwordx4 {v(BK01,4)}, v{vBA+2}, {WS}, s{sBA+2} offen sc1"),
        mk(f"buffer_load_dwordx2 {v(BK2,2)}, v{vBA+3}, {WS}, s{sBA+3} offen sc1"),
        mk(f"buffer_load_dwordx4 {v(BKP01,4)}, v{vBA+2}, {WS}, s{sBA+5} offen sc1"),
        mk(f"buffer_load_dwordx2 {v(BKP2,2)}, v{vBA+3}, {WS}, s{sBA+6} offen sc1"),
        mk(f"buffer_load_dword v{vGB}, v{vGA}, {WS}, s{sBA+8} offen sc1", None, True),
        mk(f"buffer_load_dwordx2 {v(BQ2,2)}, v{vBA+1}, {WS}, s{sBA+1} offen sc1", "s_mov_b32 exec_hi, 0"),
        mk(f"buffer_load_dwordx4 {v(BV0,4)}, v{vBA+4}, {WS}, s{sBA+4} offen sc1", lo20),
        mk(f"buffer_load_dwordx4 {v(BV1,4)}, v{vBA+4}, {WS}, s{sBA+4} offen offset:640 sc1", lo20),
        mk(f"buffer_load_dwordx4 {v(BVP,4)}, v{vBA+4}, {WS}, s{sBA+7} offen offset:640 sc1", lo20),
    ]


def b_unit(A):
    S0, S1 = BS0, BS1
    A.vm_wait("b")
    mf16(A, S0, BK01, BQ01, "0")
    mf16(A, S1, BKP01, BQ01, "0")
    mf8(A, S0, BK2, BQ2, v(S0, 16))
    mf8(A, S1, BKP2, BQ2, v(S1, 16))
    A(f"v_mov_b32 v{vT}, {hex(f32bits(-1e30))}")
    A(f"s_cmp_eq_u32 s{sQT}, 0")
    A(f"s_cselect_b32 s{sT3}, 0, -1")
    A("s_nop 7")
    A("s_nop 5")
    for j in range(4):
        for i in range(4):
            m = band_mask(j, i, False)
            A(f"s_mov_b32 s{sM}, {hex(m & 0xffffffff)}")
            A(f"s_mov_b32 s{sM+1}, {hex(m >> 32)}")
            A(f"v_cndmask_b32 v{S0+4*j+i}, v{vT}, v{S0+4*j+i}, s[{sM}:{sM+1}]")
    for i in range(4):
        m = band_mask(3, i, True)
        A(f"s_and_b32 s{sM}, s{sT3}, {hex(m & 0xffffffff)}")
        A(f"s_and_b32 s{sM+1}, s{sT3}, {hex(m >> 32)}")
        A(f"v_cndmask_b32 v{S1+12+i}, v{vT}, v{S1+12+i}, s[{sM}:{sM+1}]")
    max16(A, vT + 1, S0, True)
    A(f"v_max3_f32 v{vT+1}, v{vT+1}, v{S1+12}, v{S1+13}")
    A(f"v_max3_f32 v{vT+1}, v{vT+1}, v{S1+14}, v{S1+15}")
    cross_half_max(A, vT + 1, vT + 2)
    for r in list(range(S0, S0 + 16)) + list(range(S1 + 12, S1 + 16)):
        A(f"v_sub_f32 v{r}, v{r}, v{vT+1}")
    for g in range(4):
        exps(A, S0, g, BP)
    PP = BP + 8
    for i in range(4):
        A(f"v_exp_f32 v{S1+12+i}, v{S1+12+i}")
    A(f"v_mov_b32 v{PP}, 0")
    A(f"v_mov_b32 v{PP+1}, 0")
    A(f"v_cvt_pk_bf16_f32 v{PP+2}, v{S1+12}, v{S1+13}")
    A(f"v_cvt_pk_bf16_f32 v{PP+3}, v{S1+14}, v{S1+15}")
    A("s_nop 1")
    mf16(A, BO, BV0, BP, "0")
    mf16(A, BO, BV1, BP + 4, v(BO, 16))
    mf16(A, BO, BVP, PP, v(BO, 16))
    A("s_nop 7")
    A("s_nop 3")
    row_sum(A, BO)
    A("s_nop 1")
    finish_tile(A, BO, vGB, True, vOST + 1, sBT, 80, "stb")


def fallback(A):
    A.label("L_fallback")
    A("s_waitcnt vmcnt(0) lgkmcnt(0)")
    A(f"v_lshlrev_b32 v{vT+4}, 15, v{vHH}")
    A(f"v_lshl_add_u32 v{vT+4}, v{vR}, 4, v{vT+4}")
    A(f"v_lshlrev_b32 v{vT+5}, 4, v{vR}")
    A(f"v_mul_u32_u24 v{vT+6}, 320, v{vHH}")
    A(f"v_lshl_add_u32 v{vT+6}, v{vR}, 4, v{vT+6}")
    A(f"v_mov_b32 v{vT+7}, {hex(f32bits(-3.0e38))}")

    def tile_addr():
        A(f"s_lshl_b32 s{sT0}, s{sCNT}, 9")
        A(f"s_lshl_b32 s{sT1}, s{sPA}, 15")
        A(f"s_add_u32 s{sT1}, s{sT1}, s{sT0}")
        A(f"s_add_u32 s{sT1}, s{sT1}, {KA}")
        A(f"s_lshl_b32 s{sT2}, s{sP2L}, 15")
        A(f"s_add_u32 s{sT2}, s{sT2}, s{sT0}")
        A(f"s_and_b32 s{sT3}, s{sH}, 1")
        A(f"s_lshl_b32 s{sT3}, s{sT3}, 3")
        A(f"s_add_u32 s{sT2}, s{sT2}, s{sT3}")
        A(f"s_add_u32 s{sT2}, s{sT2}, {KA}")
        A(f"s_mul_i32 s{sT3}, s{sCNT}, 1280")
        A(f"s_add_u32 s{sT3}, s{sT3}, s{sVH}")
        A(f"s_add_u32 s{sT3}, s{sT3}, {VA}")

    A(f"s_mov_b32 s{sCNT}, 0")
    A.label("L_fb1")
    tile_addr()
    A(f"buffer_load_dwordx4 {v(K01,4)}, v{vT+4}, {WS}, s{sT1} offen sc1")
    A(f"buffer_load_dwordx2 {v(K2,2)}, v{vT+5}, {WS}, s{sT2} offen sc1")
    A("s_waitcnt vmcnt(0)")
    mf16(A, SA, K01, Q01, "0")
    mf8(A, SA, K2, Q2, v(SA, 16))
    A("s_nop 7")
    A("s_nop 7")
    max16(A, vT + 7, SA, False)
    A(f"s_add_u32 s{sCNT}, s{sCNT}, 1")
    A(f"s_cmp_lt_u32 s{sCNT}, 64")
    A("s_cbranch_scc1 L_fb1")
    cross_half_max(A, vT + 7, vT)
    for i in range(16):
        A(f"v_sub_f32 v{NEGM+i}, 0, v{vT+7}")
        A(f"v_mov_b32 v{O+i}, 0")
    A(f"v_cmp_eq_u32 vcc, 20, v{vR}")
    A(f"v_mov_b32 v{vT}, 0")
    A(f"v_mov_b32 v{vT+1}, 0x3f803f80")
    A(f"v_cndmask_b32 v{vT}, v{vT}, v{vT+1}, vcc")
    for i in range(4):
        A(f"v_mov_b32 v{V0+i}, v{vT}")
        A(f"v_mov_b32 v{V1+i}, v{vT}")
    A(f"s_mov_b32 s{sCNT}, 0")
    A.label("L_fb2")
    tile_addr()
    A(f"buffer_load_dwordx4 {v(K01,4)}, v{vT+4}, {WS}, s{sT1} offen sc1")
    A(f"buffer_load_dwordx2 {v(K2,2)}, v{vT+5}, {WS}, s{sT2} offen sc1")
    A(f"s_mov_b64 exec, s[{sLO20}:{sLO20+1}]")
    A(f"buffer_load_dwordx4 {v(V0,4)}, v{vT+6}, {WS}, s{sT3} offen sc1")
    A(f"buffer_load_dwordx4 {v(V1,4)}, v{vT+6}, {WS}, s{sT3} offen offset:640 sc1")
    A("s_mov_b64 exec, -1")
    A("s_waitcnt vmcnt(0)")
    mf16(A, SA, K01, Q01, v(NEGM, 16))
    mf8(A, SA, K2, Q2, v(SA, 16))
    A("s_nop 7")
    A("s_nop 7")
    for g in range(4):
        exps(A, SA, g)
    A("s_nop 1")
    mf16(A, O, V0, P, v(O, 16))
    mf16(A, O, V1, P + 4, v(O, 16))
    A(f"s_add_u32 s{sCNT}, s{sCNT}, 1")
    A(f"s_cmp_lt_u32 s{sCNT}, 64")
    A("s_cbranch_scc1 L_fb2")
    A("s_nop 7")
    A("s_nop 7")
    row_sum(A, O)
    A("s_nop 1")
    A("s_branch L_finish")


def setup_phase1_reads(A):
    A(f"v_lshrrev_b32 v{vT+2}, 1, v{vR}")
    A(f"v_and_b32 v{vT+2}, 7, v{vT+2}")
    A(f"v_xor_b32 v{vT+2}, v{vT+2}, v{vHH}")
    A(f"v_lshlrev_b32 v{vT+2}, 4, v{vT+2}")
    A(f"s_lshl_b32 s{sT0}, s{sMH}, 6")
    A(f"v_add_u32 v{vT+3}, s{sT0}, v{vR}")
    A(f"v_lshl_add_u32 v{vXR}, v{vT+3}, 7, v{vT+2}")
    for ks in range(1, 4):
        A(f"v_xor_b32 v{vXR+3*ks}, {ks*32}, v{vXR}")
    for ks in range(4):
        A(f"v_add_u32 v{vXR+3*ks+1}, 0x10000, v{vXR+3*ks}")
        A(f"v_add_u32 v{vXR+3*ks+2}, 0x20000, v{vXR+3*ks}")
    A(f"v_bfe_u32 v{vT+2}, v{vL}, 2, 2")
    A(f"v_lshl_add_u32 v{vT+3}, v{vHH}, 3, v{vT+2}")
    A(f"v_lshlrev_b32 v{vT+3}, 8, v{vT+3}")
    A(f"v_bfe_u32 v{vT+4}, v{vL}, 4, 1")
    A(f"v_lshlrev_b32 v{vT+4}, 5, v{vT+4}")
    A(f"v_add_u32 v{vT+3}, v{vT+3}, v{vT+4}")
    A(f"v_and_b32 v{vT+4}, 3, v{vL}")
    A(f"v_lshlrev_b32 v{vT+4}, 3, v{vT+4}")
    A(f"v_add_u32 v{vT+3}, v{vT+3}, v{vT+4}")
    for nt in range(2):
        A(f"s_lshl_b32 s{sT0}, s{sNH}, 1")
        A(f"s_add_u32 s{sT0}, s{sT0}, {nt}")
        A(f"v_xor_b32 v{vT+4}, s{sT0}, v{vT+2}")
        A(f"v_lshl_add_u32 v{vWR1+3*nt}, v{vT+4}, 6, v{vT+3}")
        A(f"v_add_u32 v{vWR1+3*nt+1}, 0x10000, v{vWR1+3*nt}")
        A(f"v_add_u32 v{vWR1+3*nt+2}, 0x20000, v{vWR1+3*nt}")


def setup_p2_0(A):
    A(f"s_lshl_b32 s{sF1}, s{sCT}, 4")
    A(f"s_add_u32 s{sF1}, s{sF1}, s{sRB}")
    A(f"s_lshl_b32 s{sF1}, s{sF1}, 2")
    A(f"s_and_b32 s{sT0}, s2, 7")
    A(f"s_lshl_b32 s{sT0}, s{sT0}, 2")
    A(f"s_lshr_b32 s{sT1}, s2, 3")
    A(f"s_and_b32 s{sT1}, s{sT1}, 3")
    A(f"s_add_u32 s{sH}, s{sT0}, s{sT1}")
    A(f"s_lshr_b32 s{sQB}, s2, 5")
    A(f"s_lshr_b32 s{sT0}, s{sH}, 1")
    A(f"s_mul_i32 s{sT0}, s{sT0}, 5")
    A(f"s_add_u32 s{sP2L}, s{sT0}, 2")
    A(f"s_and_b32 s{sT1}, s{sH}, 1")
    A(f"s_mul_i32 s{sT1}, s{sT1}, 3")
    A(f"s_add_u32 s{sPA}, s{sT0}, s{sT1}")
    A(f"s_mul_i32 s{sVH}, s{sH}, {VH}")
    A(f"s_mul_i32 s{sLDSW}, s{sW}, 2816")
    A(f"s_mul_i32 s{sLDSW2}, s{sW}, 2560")
    A(f"s_lshl_b32 s{sQ0}, s{sQB}, 8")
    A(f"s_lshl_b32 s{sT0}, s{sW}, 5")
    A(f"s_add_u32 s{sQ0}, s{sQ0}, s{sT0}")
    A(f"s_lshl_b32 s{sQT}, s{sQB}, 2")
    A(f"s_lshr_b32 s{sT0}, s{sW}, 1")
    A(f"s_add_u32 s{sQT}, s{sQT}, s{sT0}")
    A(f"s_and_b32 s{sT1}, s{sW}, 1")
    A(f"s_lshl_b32 s{sBT}, s{sQT}, 6")
    A(f"s_add_u32 s{sBT}, s{sBT}, s{sT1}")
    A(f"s_mov_b32 s{sLO20}, 0xfffff")
    A(f"s_mov_b32 s{sLO20+1}, 0xfffff")
    A(f"v_lshlrev_b32 v{vQA}, 15, v{vHH}")
    A(f"v_lshl_add_u32 v{vQA}, v{vR}, 4, v{vQA}")
    A(f"v_lshlrev_b32 v{vQA2}, 4, v{vR}")
    A(f"v_lshlrev_b32 v{vGA}, 2, v{vR}")
    A(f"s_lshl_b32 s{sT0}, s{sQ0}, 4")
    A(f"s_lshl_b32 s{sQOFF}, s{sPA}, 15")
    A(f"s_add_u32 s{sQOFF}, s{sQOFF}, s{sT0}")
    if QA:
        A(f"s_add_u32 s{sQOFF}, s{sQOFF}, {QA}")
    A(f"s_lshl_b32 s{sQOFF2}, s{sP2L}, 15")
    A(f"s_add_u32 s{sQOFF2}, s{sQOFF2}, s{sT0}")
    A(f"s_and_b32 s{sT1}, s{sH}, 1")
    A(f"s_lshl_b32 s{sT1}, s{sT1}, 3")
    A(f"s_add_u32 s{sQOFF2}, s{sQOFF2}, s{sT1}")
    if QA:
        A(f"s_add_u32 s{sQOFF2}, s{sQOFF2}, {QA}")
    A(f"s_lshl_b32 s{sGOFF}, s{sQ0}, 2")
    A(f"s_add_u32 s{sGOFF}, s{sGOFF}, {GATE}")


def setup_p2_1(A):
    A(f"s_and_b32 s{sT1}, s{sH}, 1")
    A(f"s_lshl_b32 s{sT1}, s{sT1}, 3")
    A(f"v_lshlrev_b32 v{vT}, 12, v{vHH}")
    A(f"v_lshl_add_u32 v{vT}, v{vR}, 4, v{vT}")
    A(f"v_lshlrev_b32 v{vT+1}, 4, v{vR}")
    A(f"v_add_u32 v{vT+1}, s{sT1}, v{vT+1}")
    A(f"v_mul_u32_u24 v{vT+2}, 320, v{vHH}")
    A(f"v_lshl_add_u32 v{vT+2}, v{vR}, 4, v{vT+2}")
    A(f"v_add_u32 v{vT+3}, {ONES}, v{vT+2}")
    A(f"v_cmp_gt_u32 vcc, 20, v{vR}")
    for sl in range(NSLOT):
        A(f"v_add_u32 v{vK01+sl}, {sl*SLOT}, v{vT}")
        A(f"v_add_u32 v{vK2+sl}, {sl*SLOT}, v{vT+1}")
        A(f"v_add_u32 v{vT+4}, {sl*SLOT + 12288}, v{vT+2}")
        A(f"v_cndmask_b32 v{vV+sl}, v{vT+3}, v{vT+4}, vcc")
    A(f"s_lshl_b32 s{sT2}, s{sPA}, 15")
    A(f"s_add_u32 s{sT2}, s{sT2}, {KA}")
    A(f"s_lshl_b32 s{sT3}, s{sP2L}, 15")
    A(f"s_add_u32 s{sT3}, s{sT3}, {KA - 8192}")
    A(f"s_add_u32 s{sT4}, s{sVH}, {VA - 12288}")
    for t in range(3):
        A(f"v_add_u32 v{vT}, s{sLDSW}, v{vL16}")
        if t:
            A(f"v_add_u32 v{vT}, {1024*t}, v{vT}")
        A(f"v_lshrrev_b32 v{vT+1}, 12, v{vT}")
        A(f"v_and_b32 v{vT+2}, 4095, v{vT}")
        A(f"v_lshl_add_u32 v{vT+2}, v{vT+1}, 15, v{vT+2}")
        A(f"v_add_u32 v{vT+2}, s{sT2}, v{vT+2}")
        A(f"v_add_u32 v{vT+3}, s{sT3}, v{vT}")
        A(f"v_add_u32 v{vT+4}, s{sT4}, v{vT}")
        A(f"v_cmp_eq_u32 vcc, 2, v{vT+1}")
        A(f"v_mov_b32 v{vT+5}, 4096")
        A(f"v_mov_b32 v{vT+6}, 10240")
        A(f"v_cndmask_b32 v{vT+2}, v{vT+2}, v{vT+3}, vcc")
        A(f"v_cmp_le_u32 vcc, 3, v{vT+1}")
        A("s_nop 1")
        A(f"v_cndmask_b32 v{vCB+t}, v{vT+2}, v{vT+4}, vcc")
        A(f"v_cndmask_b32 v{vCS+t}, v{vT+5}, v{vT+6}, vcc")


def setup_p2_2(A):
    A(f"s_mul_i32 s{sT0}, s{sH}, 5")
    A(f"v_add_u32 v{vT}, s{sT0}, v{vHH}")
    A(f"v_lshrrev_b32 v{vT+1}, 1, v{vT}")
    A(f"v_lshlrev_b32 v{vT+1}, 15, v{vT+1}")
    A(f"v_and_b32 v{vT}, 1, v{vT}")
    A(f"v_lshl_add_u32 v{vT+1}, v{vT}, 3, v{vT+1}")
    A(f"v_lshl_add_u32 v{vOST}, v{vR}, 4, v{vT+1}")
    A(f"v_lshl_add_u32 v{vOST+1}, v{vR}, 5, v{vT+1}")
    A(f"s_mul_i32 s{sT0}, s{sH}, 20")
    A(f"s_add_u32 s{sT1}, s{sT0}, 19")
    A(f"s_lshr_b32 s{sT0}, s{sT0}, 7")
    A(f"s_lshr_b32 s{sT1}, s{sT1}, 7")
    A(f"v_bfe_u32 v{vT}, v{vL}, 4, 1")
    A(f"s_sub_u32 s{sT2}, s{sT1}, s{sT0}")
    A(f"v_mul_u32_u24 v{vT+1}, s{sT2}, v{vT}")
    A(f"v_add_u32 v{vT+1}, s{sT0}, v{vT+1}")
    A(f"v_mul_u32_u24 v{vT+2}, 5, v{vHH}")
    A(f"v_add_u32 v{vT+2}, 5, v{vT+2}")
    A(f"v_add_u32 v{vT+2}, v{vT+2}, v{vT+1}")
    A(f"v_and_b32 v{vT+3}, 15, v{vL}")
    A(f"v_lshl_add_u32 v{vT+2}, v{vT+2}, 4, v{vT+3}")
    A(f"v_lshlrev_b32 v{vF1}, 2, v{vT+2}")
    A(f"v_add_u32 v{vT+2}, {15*16}, v{vT+3}")
    A(f"v_lshlrev_b32 v{vF4}, 2, v{vT+2}")
    A(f"v_and_b32 v{vT+4}, 1, v{vL}")
    A(f"s_lshl_b32 s{sT3}, s{sQB}, 1")
    A(f"v_add_u32 v{vT+4}, s{sT3}, v{vT+4}")
    A(f"v_lshl_add_u32 v{vT+4}, v{vT+1}, 4, v{vT+4}")
    A(f"v_lshlrev_b32 v{vF2}, 2, v{vT+4}")
    A(f"v_and_b32 v{vT}, 1, v{vL}")
    A(f"v_mul_u32_u24 v{vT+1}, s{sT2}, v{vT}")
    A(f"v_add_u32 v{vT+1}, s{sT0}, v{vT+1}")
    A(f"v_bfe_u32 v{vT+2}, v{vL}, 1, 2")
    A(f"v_min_u32 v{vT+2}, 2, v{vT+2}")
    A(f"v_mul_u32_u24 v{vT+2}, 5, v{vT+2}")
    A(f"v_add_u32 v{vT+1}, v{vT+1}, v{vT+2}")
    A(f"s_lshr_b32 s{sT3}, s{sQT}, 1")
    A(f"s_max_u32 s{sT4}, s{sQT}, 1")
    A(f"s_sub_u32 s{sT4}, s{sT4}, 1")
    A(f"s_lshr_b32 s{sT4}, s{sT4}, 1")
    A(f"s_sub_u32 s{sT4}, s{sT3}, s{sT4}")
    A(f"v_bfe_u32 v{vT+2}, v{vL}, 3, 1")
    A(f"v_mul_u32_u24 v{vT+2}, s{sT4}, v{vT+2}")
    A(f"v_sub_u32 v{vT+2}, s{sT3}, v{vT+2}")
    A(f"v_lshl_add_u32 v{vT+1}, v{vT+1}, 4, v{vT+2}")
    A(f"v_lshlrev_b32 v{vF3}, 2, v{vT+1}")


def setup_p2_3(A):
    A(f"v_lshlrev_b32 v{vBA}, 15, v{vHH}")
    A(f"v_lshl_add_u32 v{vBA}, v{vR}, 4, v{vBA}")
    A(f"v_lshlrev_b32 v{vBA+1}, 4, v{vR}")
    A(f"v_and_b32 v{vT+2}, 25, v{vR}")
    A(f"v_bfe_u32 v{vT+3}, v{vR}, 1, 1")
    A(f"v_lshl_or_b32 v{vT+2}, v{vT+3}, 2, v{vT+2}")
    A(f"v_bfe_u32 v{vT+3}, v{vR}, 2, 1")
    A(f"v_lshl_or_b32 v{vT+2}, v{vT+3}, 1, v{vT+2}")
    A(f"v_lshlrev_b32 v{vT+3}, 15, v{vHH}")
    A(f"v_lshl_add_u32 v{vBA+2}, v{vT+2}, 4, v{vT+3}")
    A(f"v_lshlrev_b32 v{vBA+3}, 4, v{vT+2}")
    A(f"v_mul_u32_u24 v{vT+4}, 320, v{vHH}")
    A(f"v_lshl_add_u32 v{vBA+4}, v{vR}, 4, v{vT+4}")
    A(f"s_and_b32 s{sT1}, s{sW}, 1")
    A(f"s_lshl_b32 s{sT1}, s{sT1}, 10")
    A(f"s_lshl_b32 s{sT0}, s{sQT}, 5")
    A(f"s_add_u32 s{sT2}, s{sT1}, s{sT0}")
    A(f"s_lshl_b32 s{sT0}, s{sPA}, 15")
    A(f"s_lshl_b32 s{sT1}, s{sP2L}, 15")
    A(f"s_and_b32 s{sT3}, s{sH}, 1")
    A(f"s_lshl_b32 s{sT3}, s{sT3}, 3")
    A(f"s_add_u32 s{sT1}, s{sT1}, s{sT3}")
    for prev in range(2):
        if prev:
            A(f"s_cmp_eq_u32 s{sQT}, 0")
            A(f"s_cselect_b32 s{sT3}, 0, 32")
            A(f"s_sub_u32 s{sT2}, s{sT2}, s{sT3}")
        A(f"s_lshl_b32 s{sT3}, s{sT2}, 4")
        if not prev:
            A(f"s_add_u32 s{sBA}, s{sT3}, s{sT0}")
            A(f"s_add_u32 s{sBA}, s{sBA}, {QB}")
            A(f"s_add_u32 s{sBA+1}, s{sT3}, s{sT1}")
            A(f"s_add_u32 s{sBA+1}, s{sBA+1}, {QB}")
        o = sBA + 2 + 3 * prev
        A(f"s_add_u32 s{o}, s{sT3}, s{sT0}")
        A(f"s_add_u32 s{o}, s{o}, {KB}")
        A(f"s_add_u32 s{o+1}, s{sT3}, s{sT1}")
        A(f"s_add_u32 s{o+1}, s{o+1}, {KB}")
        A(f"s_lshr_b32 s{sT3}, s{sT2}, 4")
        A(f"s_mul_i32 s{sT3}, s{sT3}, 640")
        A(f"s_add_u32 s{o+2}, s{sT3}, s{sVH}")
        A(f"s_add_u32 s{o+2}, s{o+2}, {VB}")
    A(f"s_lshl_b32 s{sBA+8}, s{sBT}, 2")
    A(f"s_add_u32 s{sBA+8}, s{sBA+8}, {GATE}")


def setup_p2_4(A):
    sRT, sCO, sTG = sT1, sT2, sT3
    A(f"s_lshr_b32 s{sRT}, s{sH}, 3")
    A(f"s_lshl_b32 s{sT0}, s{sQB}, 2")
    A(f"s_add_u32 s{sRT}, s{sRT}, s{sT0}")
    A(f"s_and_b32 s{sCO}, s{sH}, 7")
    A(f"s_and_b32 s{sTG}, s{sW}, 3")
    A(f"s_lshr_b32 s{sKG}, s{sW}, 2")
    A(f"s_lshl_b32 s{sFLG}, s{sRT}, 8")
    A(f"s_mul_i32 s{sWSRC}, s{sW}, 20480")
    A(f"s_mul_i32 s{sT0}, s{sCO}, 1280")
    A(f"s_add_u32 s{sWSRC}, s{sWSRC}, s{sT0}")
    A(f"s_add_u32 s{sWSRC}, s{sWSRC}, {WOT}")
    A(f"s_lshl_b32 s{sRT}, s{sRT}, 6")
    A(f"s_lshl_b32 s{sTG}, s{sTG}, 4")
    A(f"s_add_u32 s{sRT}, s{sRT}, s{sTG}")
    A(f"s_mul_i32 s{sOUTO}, s{sRT}, 1280")
    A(f"s_mul_i32 s{sT0}, s{sCO}, 160")
    A(f"s_add_u32 s{sOUTO}, s{sOUTO}, s{sT0}")
    A(f"s_lshl_b32 s{sOCB}, s{sRT}, 4")
    A(f"s_mul_i32 s{sT0}, s{sKG}, {40*32768}")
    A(f"s_add_u32 s{sOCB}, s{sOCB}, s{sT0}")
    A(f"s_add_u32 s{sOCB}, s{sOCB}, {OC}")
    A(f"s_lshl_b32 s{sPUB}, s{sQT}, 6")
    A(f"s_lshl_b32 s{sT0}, s{sH}, 1")
    A(f"s_add_u32 s{sPUB}, s{sPUB}, s{sT0}")
    A(f"s_and_b32 s{sT0}, s{sW}, 1")
    A(f"s_add_u32 s{sPUB}, s{sPUB}, s{sT0}")
    A(f"s_lshl_b32 s{sPUB}, s{sPUB}, 2")
    A(f"v_lshlrev_b32 v{vFA}, 2, v{vL}")
    A(f"v_mov_b32 v{vW0}, v{vL16}")
    A(f"v_add_u32 v{vT}, 1024, v{vL16}")
    A(f"v_add_u32 v{vT+1}, {10240 - 256}, v{vL16}")
    A(f"v_cmp_gt_u32 vcc, 16, v{vL}")
    A(f"v_add_u32 v{vW2}, {10240 + 768}, v{vL16}")
    A(f"v_lshrrev_b32 v{vT+2}, 4, v{vL}")
    A(f"v_cndmask_b32 v{vW1}, v{vT+1}, v{vT}, vcc")
    A(f"v_and_b32 v{vT+3}, 15, v{vL}")
    A(f"v_lshlrev_b32 v{vT+4}, 15, v{vT+2}")
    A(f"v_lshl_add_u32 v{vOC}, v{vT+3}, 4, v{vT+4}")
    A(f"v_mul_u32_u24 v{vT+4}, 1280, v{vT+2}")
    A(f"v_lshl_add_u32 v{vWR}, v{vT+3}, 4, v{vT+4}")
    A(f"v_mul_u32_u24 v{vT+4}, 1280, v{vT+3}")
    A(f"v_lshl_add_u32 v{vST}, v{vT+2}, 3, v{vT+4}")


SETUP_P2 = [setup_p2_0, setup_p2_1, setup_p2_2, setup_p2_3, setup_p2_4]


def setup_phase2(A):
    for f in SETUP_P2:
        f(A)


def pattern_fill(A):
    for r in range(2):
        A(f"v_add_u32 v{vT}, {512*r}, v0")
        A(f"v_mul_u32_u24 v{vT+1}, 3277, v{vT}")
        A(f"v_lshrrev_b32 v{vT+1}, 16, v{vT+1}")
        A(f"v_mul_u32_u24 v{vT+1}, 20, v{vT+1}")
        A(f"v_cmp_eq_u32 vcc, v{vT+1}, v{vT}")
        A(f"v_mov_b32 v{vT+4}, 0")
        A(f"v_mov_b32 v{vT+5}, 0x3f803f80")
        A(f"v_cndmask_b32 v{vT+4}, v{vT+4}, v{vT+5}, vcc")
        for i in range(1, 4):
            A(f"v_mov_b32 v{vT+4+i}, v{vT+4}")
        if r == 1:
            A(f"v_cmp_gt_u32 vcc, {PAT_UNITS}, v{vT}")
        A(f"v_lshlrev_b32 v{vT}, 4, v{vT}")
        A(f"v_add_u32 v{vT}, {ONES}, v{vT}")
        if r == 1:
            A("s_and_saveexec_b64 s[%d:%d], vcc" % (sT4, sT5))
            A("s_cbranch_execz L_pat_done")
        A.lds(f"ds_write_b128 v{vT}, {v(vT+4,4)}", "pat")
    A.label("L_pat_done")
    A("s_mov_b64 exec, -1")


def gen(prof=False):
    A = Asm()
    A.prof = prof
    kernel_header(A, NAME)
    A("s_cmp_ge_u32 s2, 256")
    A("s_cbranch_scc1 L_end")
    A.stamp("start")
    A("s_load_dwordx4 s[4:7], s[0:1], 0")
    A(f"s_load_dwordx2 s[{sP}:{sP+1}], s[0:1], 32")
    A(f"s_load_dwordx2 s[{sP+2}:{sP+3}], s[0:1], 72")
    A(f"s_load_dwordx4 s[{sDBG}:{sDBG+3}], s[0:1], 56")
    A(f"v_lshrrev_b32 v{vT}, 6, v0")
    A(f"v_and_b32 v{vL}, 63, v0")
    A(f"v_readfirstlane_b32 s{sW}, v{vT}")
    A(f"v_and_b32 v{vR}, 31, v{vL}")
    A(f"v_lshrrev_b32 v{vHH}, 5, v{vL}")
    A(f"v_lshlrev_b32 v{vL16}, 4, v{vL}")
    A(f"s_and_b32 s{sT0}, s2, 7")
    A(f"s_lshr_b32 s{sT1}, s2, 3")
    A(f"s_and_b32 s{sRB}, s{sT0}, 1")
    A(f"s_lshl_b32 s{sRB}, s{sRB}, 3")
    A(f"s_and_b32 s{sT2}, s{sT1}, 7")
    A(f"s_add_u32 s{sRB}, s{sRB}, s{sT2}")
    A(f"s_lshr_b32 s{sCT}, s{sT0}, 1")
    A(f"s_lshl_b32 s{sCT}, s{sCT}, 2")
    A(f"s_lshr_b32 s{sT2}, s{sT1}, 3")
    A(f"s_add_u32 s{sCT}, s{sCT}, s{sT2}")
    A(f"s_and_b32 s{sGI}, s{sW}, 3")
    A(f"s_and_b32 s{sMH}, s{sGI}, 1")
    A(f"s_lshr_b32 s{sNH}, s{sGI}, 1")
    A(f"s_mul_i32 s{sXOFF}, s{sRB}, {128*1280}")
    A(f"s_lshl_b32 s{sWOFF}, s{sCT}, 8")
    A(f"s_lshl_b32 s{sLDS1}, s{sGI}, 10")
    A(f"s_mul_hi_u32 s{sT0}, s{sCT}, 0x33333334")
    A(f"s_mul_i32 s{sT0}, s{sT0}, 5")
    A(f"s_sub_u32 s{sCT5}, s{sCT}, s{sT0}")
    A(f"v_lshrrev_b32 v{vT}, 3, v{vL}")
    A(f"s_lshl_b32 s{sT0}, s{sGI}, 3")
    A(f"v_add_u32 v{vT}, s{sT0}, v{vT}")
    A(f"v_lshrrev_b32 v{vT+1}, 1, v{vT}")
    A(f"v_xor_b32 v{vT+1}, v{vT+1}, v{vL}")
    A(f"v_and_b32 v{vT+1}, 7, v{vT+1}")
    A(f"v_lshlrev_b32 v{vT+1}, 4, v{vT+1}")
    A(f"v_mul_u32_u24 v{vT+2}, 1280, v{vT}")
    A(f"v_add_u32 v{vXD}, v{vT+2}, v{vT+1}")
    A(f"v_lshrrev_b32 v{vT}, 4, v{vL}")
    A(f"v_lshlrev_b32 v{vT+1}, 2, v{vT}")
    A(f"v_xor_b32 v{vT+1}, v{vT+1}, v{vL}")
    A(f"v_and_b32 v{vT+1}, 15, v{vT+1}")
    A(f"v_lshlrev_b32 v{vT+1}, 4, v{vT+1}")
    A(f"s_lshl_b32 s{sT0}, s{sGI}, 2")
    A(f"v_add_u32 v{vT}, s{sT0}, v{vT}")
    A(f"v_mul_u32_u24 v{vT}, 3840, v{vT}")
    A(f"v_add_u32 v{vWD}, v{vT}, v{vT+1}")
    A("s_waitcnt lgkmcnt(0)")
    srd(A, sX, 4, X_BYTES)
    srd(A, sWA, 6, W_BYTES)
    srd(A, sWB, sP, W_BYTES)
    srd(A, sWS, sP + 2, WS_USED)
    srd(A, sOUT, sDBG, OUT_BYTES)
    A(f"s_mov_b32 s{sDBG}, s{sDBG+2}")
    A(f"s_and_b32 s{sDBG+1}, s{sDBG+3}, 0xffff")
    A(f"s_mov_b32 s{sDBG+2}, 256")
    A(f"s_mov_b32 s{sDBG+3}, 0x20000")
    A(f"s_cmp_eq_u32 s{sCT}, 15")
    A("s_cbranch_scc1 L_nodma")
    A(f"s_cmp_lt_u32 s{sW}, 4")
    A("s_cbranch_scc1 L_nodma")
    for b in range(3):
        for p in range(8):
            g_dma(A, b, p)
    A(f"s_cmp_ge_u32 s{sCT}, 10")
    A("s_cbranch_scc1 L_g1n")
    A("s_branch L_g1t")
    A.label("L_nodma")
    A(f"s_or_b32 s{sT0}, s2, s{sW}")
    A(f"s_cmp_lg_u32 s{sT0}, 0")
    A("s_cbranch_scc1 L_nonce_done")
    A(f"s_memrealtime s[{sT4}:{sT5}]")
    A("s_waitcnt lgkmcnt(0)")
    A(f"s_or_b32 s{sT0}, s{sT4}, 1")
    A(f"v_mov_b32 v{vT}, s{sT0}")
    A(f"v_mov_b32 v{vT+1}, 0")
    A("s_mov_b64 exec, 1")
    A(f"buffer_store_dword v{vT}, v{vT+1}, s[{sDBG}:{sDBG+3}], 0 offen sc1")
    A("s_mov_b64 exec, -1")
    A.label("L_nonce_done")
    setup_phase1_reads(A)
    setup_phase2(A)
    A.stamp("issued")
    A(f"s_cmp_eq_u32 s{sCT}, 15")
    A("s_cbranch_scc1 L_spare")
    A(f"s_cmp_ge_u32 s{sCT}, 10")
    A("s_cbranch_scc1 L_vtile")
    if prof:
        A.stamps += ["blk0 landed", "gemm0", "epi0", "gemm1", "epi1"]
        if EXP.get("stampB"):
            A.stamps += ["B10", "B12", "B14", "B16"]
    gemm(A, True, "t")
    A("s_branch L_attn")
    A.label("L_vtile")
    gemm(A, False, "n")
    A.label("L_attn")
    A.vm_q, A.lds_q = [], []
    A("s_barrier")
    A.stamp("attn start")
    rd_k01(A, 0)
    rd_k2(A, 0)
    dma_chunk(A, 3)
    pattern_fill(A)
    b_consts(A)
    A.lds_wait_all()
    mf16(A, SA, K01, Q01, "0")
    mf8(A, SA, K2, Q2, v(SA, 16))
    A("s_nop 7")
    A("s_nop 5")
    max16(A, vT, SA, True)
    cross_half_max(A, vT, vT + 1)
    for i in range(16):
        A(f"v_sub_f32 v{NEGM+i}, 0, v{vT}")
    A("s_nop 1")
    mf16(A, SA, K01, Q01, v(NEGM, 16))
    mf8(A, SA, K2, Q2, v(SA, 16))
    A("s_barrier")
    rd_k01(A, 1)
    rd_k2(A, 1)
    rd_v(A, 0, 0)
    A("s_nop 7")
    A("s_nop 3")
    NT = 64
    sched = {}
    def at(t, half, fn):
        sched.setdefault((t, half), []).append(fn)
    fb_items = [(vFL, vF3, F1B, None), (vFL2, vF4, F1A, None)]
    pos = {}
    def issue(name, items):
        def f(A):
            pos[name] = poll_issue(A, items, name)
        return f
    at(13, 0, issue("f1b", fb_items))
    pre_barrier = {22: lambda A: poll_check(A, fb_items, pos["f1b"], "f1b"),
                   54: lambda A: poll_check(A, fo_items, pos["fb"], "fb")}
    at(22, 1, lambda A: A.vm(f"buffer_load_dword v{vG}, v{vGA}, {WS}, s{sGOFF} offen sc1", "g"))
    for i, f in enumerate(b_load_items()):
        at(25 + i // 2, i % 2, f)
    at(34, 1, b_unit)
    at(40, 0, lambda A: publish(A, sPUB, FLAGB, "stb"))
    fo_items = [(vFL, vFA, FLAGB, sFLG)]
    at(48, 0, issue("fb", fo_items))
    for k in range(10):
        at(55 + k // 2, k % 2, lambda A, k=k: oc_load(A, 1, k))
    for st in range(3):
        for p in range(3):
            i = 3 * st + p
            at(42 + i // 2, i % 2, lambda A, st=st, p=p: dma_w_piece(A, 1, st, p))
    for st in range(3, 5):
        for p in range(3):
            i = 3 * (st - 3) + p
            at(57 + i // 2, 1 - i % 2, lambda A, st=st, p=p: dma_w_piece(A, 1, st, p))
    for c in range(2, NCH - 2):
        for p in range(3):
            at(TPC * c - 1 + p // 2, 1 if p % 2 == 0 else 0, lambda A, c=c, p=p: dma_chunk_piece(A, c + 2, p))
    for t in range(NT):
        cur = SA if t % 2 == 0 else SB
        nxt = SB if t % 2 == 0 else SA
        if (t == 32 and not EXP.get("stampB")) or (EXP.get("stampB") and t in (21, 24)):
            A.stamp("t%d" % t)
        if t % TPC == TPC - 2 and t + 2 < NT:
            c = (t + 2) // TPC
            if c == 1:
                A.vm_wait(("c", 3))
            A.vm_wait(("c", c))
            if t in pre_barrier:
                pre_barrier[t](A)
            A("s_barrier")
            if c == 1:
                with Wave0(A, "pubb"):
                    publish(A, sF1, F1B)
        if t == 63:
            A.vm_wait(("w", 1, 4))
        for f in sched.get((t, 0), []):
            f(A)
        if t + 1 < NT:
            A.lds_wait(("k01", t + 1))
            mf16(A, nxt, K01, Q01, "0" if EXP.get("m0") else v(NEGM, 16))
            if t + 2 < NT:
                rd_k01(A, t + 2)
        exps(A, cur, 0)
        if t > 0:
            A.lds_wait(("v", t - 1, 1))
            mf16(A, O, V1, P + 4, v(O, 16))
        rd_v(A, t, 1)
        exps(A, cur, 1)
        for f in sched.get((t, 1), []):
            f(A)
        if t + 1 < NT:
            A.lds_wait(("k2", t + 1))
            mf8(A, nxt, K2, Q2, v(nxt, 16))
            if t + 2 < NT:
                rd_k2(A, t + 2)
        exps(A, cur, 2)
        A.lds_wait(("v", t, 0))
        mf16(A, O, V0, P, "0" if t == 0 else v(O, 16))
        if t + 1 < NT:
            rd_v(A, t + 1, 0)
        exps(A, cur, 3)
    A.lds_wait(("v", NT - 1, 1))
    A("s_nop 1")
    mf16(A, O, V1, P + 4, v(O, 16))
    A(f"v_add_u32 v{vT+5}, 0x10000, v{vWR}")
    A(f"v_add_u32 v{vT+6}, 0x20000, v{vWR}")
    A(f"v_mov_b32 v{vT+3}, {hex(f32bits(BIG))}")
    A("s_nop 7")
    A("s_nop 3")
    A.stamp("loop end")
    row_sum(A, O)
    A(f"v_mul_f32 v{vT+2}, 0, v{O}")
    for i in range(1, 12):
        A(f"v_fma_f32 v{vT+2}, v{O+i}, 0, v{vT+2}")
    A(f"v_add_f32 v{vT+2}, v{vT+2}, v{vT+1}")
    A(f"v_cmp_lt_f32 vcc, v{vT+2}, v{vT+3}")
    A("s_nop 4")
    A("s_cmp_eq_u64 vcc, exec")
    A("s_cbranch_scc0 L_fallback")
    A.label("L_finish")
    A.vm_wait("g")
    finish_tile(A, O, vG, False, vOST, sQ0, 0, "sta")
    A(f"v_add_u32 v{vT+5}, 0x10000, v{vWR}")
    A(f"v_add_u32 v{vT+6}, 0x20000, v{vWR}")
    A("s_barrier")
    A.stamp("ring free") if not EXP.get("stampB") else None
    wa = [(st, p) for st in range(2) for p in range(3)]

    def hook_b(k, kg):
        if k < 6:
            st, p = wa[k]
            dma_w_piece(A, 0, st, p)
        if k == 7:
            publish(A, sPUB, FLAGA, "sta")
    outproj(A, 1, True, hook_b)
    A.stamp("b part") if not EXP.get("stampB") else None
    A("s_barrier")
    for st in range(2, 5):
        for p in range(3):
            dma_w_piece(A, 0, st, p)
    fa_items = [(vFL, vFA, FLAGA, sFLG)]
    pfa = poll_issue(A, fa_items, "fa")
    poll_check(A, fa_items, pfa, "fa")
    A("s_barrier")
    A.stamp("flags a") if not EXP.get("stampB") else None
    for k in range(10):
        oc_load(A, 0, k)
    A.vm_wait(("w", 0, 4))
    A("s_barrier")
    outproj(A, 0, False)
    A.stamp("a part") if not EXP.get("stampB") else None
    A(f"s_and_b32 s{sT0}, s{sW}, 3")
    A(f"s_mul_i32 s{sT0}, s{sT0}, 5120")
    A(f"v_add_u32 v{vT}, s{sT0}, v{vL16}")
    A(f"s_cmp_eq_u32 s{sKG}, 0")
    A("s_cbranch_scc1 L_red_a")
    A("s_nop 5")
    for nt in range(5):
        A(f"ds_write_b128 v{vT}, {v(ACC+4*nt,4)} offset:{nt*1024}")
    A("s_waitcnt lgkmcnt(0)")
    A("s_barrier")
    if prof:
        A.stamp("", len(A.stamps))
        A.stamp_flush(0, sWS, PROF, vT + 2)
    A("s_endpgm")
    A.label("L_red_a")
    A("s_barrier")
    A.lds_q = []
    for nt in range(5):
        A.lds(f"ds_read_b128 {v(WF+4*nt,4)}, v{vT} offset:{nt*1024}", ("r", nt))
    for nt in range(5):
        A.lds_wait(("r", nt))
        for i in range(4):
            A(f"v_add_f32 v{ACC+4*nt+i}, v{ACC+4*nt+i}, v{WF+4*nt+i}")
        A(f"v_cvt_pk_bf16_f32 v{ACC+4*nt}, v{ACC+4*nt}, v{ACC+4*nt+1}")
        A(f"v_cvt_pk_bf16_f32 v{ACC+4*nt+1}, v{ACC+4*nt+2}, v{ACC+4*nt+3}")
        A.vm(f"buffer_store_dwordx2 {v(ACC+4*nt,2)}, v{vST}, s[{sOUT}:{sOUT+3}], s{sOUTO} offen offset:{nt*32}{EXP.get('outst','')}", "st")
    A.stamp("end")
    if prof and EXP.get("dbg"):
        with Wave0(A, "dbgout"):
            A(f"v_subrev_u32 v{vT}, s{sNONCE}, v{A.PROF_V}")
            A(f"v_subrev_u32 v{vT+1}, 16, v{vL}")
            A(f"v_lshlrev_b32 v{vT+1}, 2, v{vT+1}")
            if EXP["dbg"] == 2:
                A(f"v_sub_u32 v{vT}, 0x100000, v{vT}")
            A("s_mov_b32 exec_lo, 0xfffe0000")
            A("s_mov_b32 exec_hi, 0")
            A(f"buffer_atomic_umax v{vT}, v{vT+1}, s[{sDBG}:{sDBG+3}], 0 offen")
            A("s_mov_b64 exec, -1")
    A.stamp_flush(0, sWS, PROF, vT)
    A("s_endpgm")
    fallback(A)
    spare(A)
    A.label("L_end")
    A("s_endpgm")
    kernel_footer(A, NAME, NV, 96)
    gen.stamps = getattr(A, "stamps", [])
    return A.text()

if __name__ == "__main__":
    print(gen())
```

```python
import struct
S, D, H, DH = 2048, 640, 32, 20
REG = 0x280000
PLANE = 32768
VH = 81920
QA, QB, KA, KB, VA, VB = (i * REG for i in range(6))
CH = 256
CHB = 22528
OC = 6 * REG
WOT = OC + 160 * 32768
GATE = WOT + 160 * 10240
FLAGA = GATE + 2048 * 4
FLAGB = FLAGA + 8192
F1A = FLAGB + 8192
F1B = F1A + 1024
PROF = F1B + 1024
WS_USED = PROF + 3 * 4096 * 128
X_BYTES = S * D * 2
W_BYTES = D * 3 * D * 2
WO_BYTES = D * D * 2
OUT_BYTES = S * D * 2
def f32bits(x):
    return struct.unpack("<I", struct.pack("<f", x))[0]
LOG2E = 1.4426950408889634
QSCALE = DH ** -0.5 * LOG2E
```

```python
import sys, json
import kf2 as kf
from layout2 import *
HDR = open("gated_mix__softmax_full_mha__sliding_local_dilated__prompt.s.ref").read().split("; Override launch")[0]
def build(prof=False):
    out = HDR
    out += f"; @launch grid=(256,1,1) block=(512,1,1) lds={kf.LDS_BYTES}\n"
    out += '.amdgcn_target "amdgcn-amd-amdhsa--gfx950"\n'
    out += kf.gen(prof)
    return out
if __name__ == "__main__":
    path = sys.argv[1] if len(sys.argv) > 1 and not sys.argv[1].startswith("--") else "gated_mix__softmax_full_mha__sliding_local_dilated__prompt.s"
    prof = "--prof" in sys.argv
    for a in sys.argv:
        if a.startswith("--exp="):
            for kv in a[6:].split(","):
                if "=" in kv:
                    k, val = kv.split("="); kf.EXP[k] = (val if k == "sl" else int(val)) if val.isdigit() else " " + val
                else:
                    kf.EXP[kv] = True
    text = build(prof)
    open(path, "w").write(text)
    if prof:
        json.dump([kf.gen.stamps], open(path + ".stamps.json", "w"))
    print("wrote", path)
```

```python
from asmlib import *
from layout2 import *

NAME = "gated_mix__softmax_full_mha__sliding_local_dilated__prompt_kernel"
EXP = {}
STAGE, NST, NB = 32768, 5, 20
SLOT = CHB
NSLOT = 4
TPC = CH // 32
NCH = S // CH
ONES = 4 * SLOT
PAT_UNITS = 672
WBASE = ONES + PAT_UNITS * 16
WSTG = 20480
LDS_BYTES = 163840
WB_OFF = [WBASE, WBASE + WSTG, WBASE + 2 * WSTG, 0, SLOT]
WA_OFF = [2 * SLOT, 3 * SLOT, WBASE, WBASE + WSTG, WBASE + 2 * WSTG]
assert WBASE + 3 * WSTG <= LDS_BYTES
BIG = 2.0 ** 64
SPIN_MAX = 1 << 16
sWS, sOUT = 8, 12
sW, sNONCE = 16, 17
sH, sQB, sPA, sLDSW, sLDSW2, sWSRC, sOCB, sFLG, sPUB, sOUTO, sKG, sQ0, sBT, sQT = range(18, 32)
sT0, sT1, sT2, sT3, sT4, sT5 = range(32, 38)
sM = 38
sLO20 = 40
sCNT = 42
sP2L = 43
sDBG = 44
sBA = 48
sVH = 57
sX, sWA, sWB = 60, 64, 68
sRB, sCT, sMH, sNH, sXOFF, sWOFF, sLDS1, sCT5, sTP, sB16, sQS, sGI = range(72, 84)
sQOFF, sQOFF2, sGOFF, sF1 = 88, 89, 90, 91
sP = 92
vL, vR, vHH = 1, 2, 3
vK01, vK2, vV = 4, 8, 12
vL16, vG, vGB, vFL = 16, 17, 18, 19
vT = 20
SA, SB, NEGM, O, P = 28, 44, 60, 76, 92
Q01, Q2, K01, K2, V0, V1 = 100, 104, 108, 112, 116, 120
BQ01, BQ2, BK01, BK2, BKP01, BKP2 = 124, 128, 132, 136, 140, 144
BV0, BV1, BVP, BS0, BS1, BO, BP = 148, 152, 156, 160, 176, 192, 208
vBA = 220
vW0, vW1, vW2, vOC, vWR, vST, vFA = 225, 226, 227, 228, 229, 230, 231
vF1, vF2, vF3, vF4 = 232, 233, 234, 241
vFL2 = 235
vQA, vQA2, vGA = 236, 237, 238
vOST = 252
vXD, vWD = 242, 243
vCB, vCS = 244, 247
vCT = 250
NV = 256
OCB, OCA, ACC, WF = 124, 164, 204, 28
G_ACC = 124
G_F = 28
G_P = 188
vA16 = 76
vXR, vWR1 = 106, 118
WS = f"s[{sWS}:{sWS+3}]"


def st1():
    return " sc1"


def publish(A, soff_reg, base, tag=None):
    if tag is not None:
        A.vm_wait(tag)
    A(f"v_mov_b32 v{vT}, s{sNONCE}")
    A(f"v_mov_b32 v{vT+1}, 0")
    A(f"s_add_u32 s{sT0}, s{soff_reg}, {base}")
    A("s_mov_b64 exec, 1")
    A.vm(f"buffer_store_dword v{vT}, v{vT+1}, {WS}, s{sT0} offen sc1", "pub")
    A("s_mov_b64 exec, -1")


class Wave0:
    def __init__(self, A, name):
        self.A, self.name = A, name
    def __enter__(self):
        A = self.A
        A(f"s_cmp_lg_u32 s{sW}, 0")
        A(f"s_cbranch_scc1 L_w0_{self.name}")
        self.saved = (list(A.vm_q), A.vm_count)
    def __exit__(self, *a):
        A = self.A
        A.vm_q, A.vm_count = self.saved
        A.label(f"L_w0_{self.name}")


def _poll_loads(A, items):
    for (vdst, voff, base, soff_reg) in items:
        if soff_reg is None:
            A(f"s_mov_b32 s{sT0}, {base}")
        else:
            A(f"s_add_u32 s{sT0}, s{soff_reg}, {base}")
        A(f"buffer_load_dword v{vdst}, v{voff}, {WS}, s{sT0} offen sc1")


def poll_issue(A, items, name):
    with Wave0(A, name + "_i"):
        _poll_loads(A, items)
    return A.vm_count


def poll_check(A, items, pos, name, inv=False, drain=False):
    def compare():
        for i, (vdst, _, _, _) in enumerate(items):
            if i == 0:
                A(f"v_cmp_eq_u32 vcc, s{sNONCE}, v{vdst}")
            else:
                A(f"v_cmp_eq_u32 s[{sT4}:{sT5}], s{sNONCE}, v{vdst}")
                A("s_nop 3")
                A(f"s_and_b64 vcc, vcc, s[{sT4}:{sT5}]")
        A("s_nop 3")
        A("s_cmp_eq_u64 vcc, exec")
    with Wave0(A, name + "_c"):
        A(f"s_waitcnt vmcnt({A.vm_count - pos})")
        compare()
        A(f"s_cbranch_scc1 L_{name}_ok")
        A(f"s_mov_b32 s{sCNT}, 0")
        A.label(f"L_{name}_spin")
        A("s_sleep 2")
        _poll_loads(A, items)
        A(f"s_add_u32 s{sCNT}, s{sCNT}, 1")
        A(f"s_cmp_ge_u32 s{sCNT}, {SPIN_MAX}")
        A(f"s_cbranch_scc1 L_{name}_ok")
        A("s_waitcnt vmcnt(0)")
        compare()
        A(f"s_cbranch_scc0 L_{name}_spin")
        A.label(f"L_{name}_ok")
        if inv:
            A("buffer_inv sc1")
        if drain:
            A("s_waitcnt vmcnt(0)")


def nonce_issue(A):
    A(f"v_mov_b32 v{vT}, 0")
    A.vm(f"buffer_load_dword v{vFL}, v{vT}, s[{sDBG}:{sDBG+3}], 0 offen sc1", "nonce")


def nonce_check(A, name):
    A.vm_wait("nonce")
    A("s_nop 0")
    A(f"v_readfirstlane_b32 s{sNONCE}, v{vFL}")
    A("s_nop 3")
    A(f"s_cmp_lg_u32 s{sNONCE}, 0")
    A(f"s_cbranch_scc1 L_{name}_ok")
    A(f"s_mov_b32 s{sCNT}, 0")
    A.label(f"L_{name}_spin")
    A("s_sleep 1")
    A(f"v_mov_b32 v{vT}, 0")
    A(f"buffer_load_dword v{vFL}, v{vT}, s[{sDBG}:{sDBG+3}], 0 offen sc1")
    A(f"s_add_u32 s{sCNT}, s{sCNT}, 1")
    A(f"s_cmp_ge_u32 s{sCNT}, {SPIN_MAX}")
    A(f"s_cbranch_scc1 L_{name}_ok")
    A("s_waitcnt vmcnt(0)")
    A(f"v_readfirstlane_b32 s{sNONCE}, v{vFL}")
    A("s_nop 3")
    A(f"s_cmp_eq_u32 s{sNONCE}, 0")
    A(f"s_cbranch_scc1 L_{name}_spin")
    A.label(f"L_{name}_ok")


def g_dma(A, b, p):
    kb, st, t = b % 10, b % NST, p & 3
    A(f"s_add_u32 m0, s{sLDS1}, {st*STAGE + (p >> 2)*16384 + 4096*t}")
    if p < 4:
        A(f"s_add_u32 s{sT0}, s{sXOFF}, {kb*128 + t*40960}")
        A.vm(f"buffer_load_dwordx4 v{vXD}, s[{sX}:{sX+3}], s{sT0} offen lds", ("d", b))
    else:
        sw = sWA if b < 10 else sWB
        A(f"s_add_u32 s{sT0}, s{sWOFF}, {(kb*64 + 16*t) * 3840}")
        A.vm(f"buffer_load_dwordx4 v{vWD}, s[{sw}:{sw+3}], s{sT0} offen lds", ("d", b))


def g_acc(mt, nt):
    return G_ACC + 32 * mt + 16 * nt


def g_frag(s_, i):
    return G_F + 16 * (s_ % 3) + 4 * i


def g_read_list(s_):
    b, ks = divmod(s_, 4)
    st = b % NST
    base, off = st >> 1, (st & 1) * STAGE
    out = []
    for mt in range(2):
        out.append(f"ds_read_b128 {v(g_frag(s_, mt),4)}, v{vXR + 3*ks + base} offset:{off + mt*4096}")
    for nt in range(2):
        for q in range(2):
            out.append(f"ds_read_b64_tr_b16 {v(g_frag(s_, 2+nt)+2*q,2)}, v{vWR1 + 3*nt + base} offset:{off + 16384 + ks*4096 + q*1024}")
    return out


def g_reads(A, s_):
    for ins in g_read_list(s_):
        A.lds(ins, ("f", s_))


def g_step(A, s_, last, tr, extra=None):
    b, ks = divmod(s_, 4)
    A.lds_wait(("f", s_))
    nxt = g_read_list(s_ + 2) if s_ + 2 <= last else []
    for i, (mt, nt) in enumerate(((0, 0), (0, 1), (1, 0), (1, 1))):
        d = g_acc(mt, nt)
        c = "0" if (s_ % 40 == 0) else v(d, 16)
        x, w = g_frag(s_, mt), g_frag(s_, 2 + nt)
        a, bb = (w, x) if tr else (x, w)
        A(f"v_mfma_f32_32x32x16_bf16 {v(d,16)}, {v(a,4)}, {v(bb,4)}, {c}")
        for ins in nxt[2*i:2*i+2]:
            A.lds(ins, ("f", s_ + 2))
        if extra and i == 3:
            extra()


def epi_prepare(A, isb, tr, n):
    A(f"s_lshl_b32 s{sTP}, s{sRB}, 7")
    A(f"s_lshl_b32 s{sT0}, s{sMH}, 6")
    A(f"s_add_u32 s{sTP}, s{sTP}, s{sT0}")
    if isb:
        A(f"s_lshr_b32 s{sTP}, s{sTP}, 1")
    if tr:
        A(f"s_cmp_lt_u32 s{sCT}, 5")
        A(f"s_mov_b32 s{sT1}, {QB if isb else QA}")
        A(f"s_cselect_b32 s{sB16}, s{sT1}, {KB if isb else KA}")
        A(f"s_mov_b32 s{sT1}, {hex(f32bits(QSCALE))}")
        A(f"s_cselect_b32 s{sQS}, s{sT1}, 1.0")
        A(f"s_lshl_b32 s{sT0}, s{sCT5}, 1")
        A(f"s_add_u32 s{sT0}, s{sT0}, s{sNH}")
        A(f"s_lshl_b32 s{sT0}, s{sT0}, 18")
        A(f"s_add_u32 s{sB16}, s{sB16}, s{sT0}")
        A(f"s_lshl_b32 s{sT0}, s{sTP}, 4")
        A(f"s_add_u32 s{sB16}, s{sB16}, s{sT0}")
        A(f"v_lshlrev_b32 v{vA16}, 15, v{vHH}")
        if isb:
            A(f"v_and_b32 v{vT}, 1, v{vR}")
            A(f"v_lshl_add_u32 v{vA16}, v{vT}, 14, v{vA16}")
            A(f"v_lshrrev_b32 v{vT}, 1, v{vR}")
            A(f"v_lshl_add_u32 v{vA16}, v{vT}, 4, v{vA16}")
        else:
            A(f"v_lshl_add_u32 v{vA16}, v{vR}, 4, v{vA16}")
        A(f"v_mov_b32 v{vT+2}, s{sQS}")
        A(f"v_mov_b32 v{vT+3}, s{sQS}")
    else:
        A(f"v_mul_u32_u24 v{vT+1}, 320, v{vHH}")
        A(f"s_lshl_b32 s{sT0}, s{sCT5}, 7")
        A(f"s_lshl_b32 s{sT1}, s{sNH}, 6")
        A(f"s_add_u32 s{sT0}, s{sT0}, s{sT1}")
        for nt in range(2):
            A(f"v_add_u32 v{vT+2}, s{sT0}, v{vR}")
            if nt:
                A(f"v_add_u32 v{vT+2}, 32, v{vT+2}")
            A(f"v_mul_u32_u24 v{vT+3}, 3277, v{vT+2}")
            A(f"v_lshrrev_b32 v{vT+3}, 16, v{vT+3}")
            A(f"v_mul_u32_u24 v{vT+4}, 20, v{vT+3}")
            A(f"v_sub_u32 v{vT+4}, v{vT+2}, v{vT+4}")
            A(f"v_mul_u32_u24 v{vT+3}, {VH}, v{vT+3}")
            A(f"v_lshl_add_u32 v{vT+3}, v{vT+4}, 4, v{vT+3}")
            A(f"v_add_u32 v{vA16+nt}, v{vT+3}, v{vT+1}")
        A(f"s_lshr_b32 s{sT0}, s{sTP}, 4")
        A(f"s_mul_i32 s{sT0}, s{sT0}, 640")
        A(f"s_add_u32 s{sB16}, s{sT0}, {VB if isb else VA}")


def epi_group(A, isb, tr, g, tag):
    reg = G_P + 4 * g
    mt, nt, u = g >> 2, (g >> 1) & 1, g & 1
    src = g_acc(mt, nt)
    if tr:
        for jj in range(2):
            a = src + 4 * (2 * u + jj)
            A(f"v_pk_mul_f32 {v(a,2)}, {v(a,2)}, v[{vT+2}:{vT+3}]")
            A(f"v_pk_mul_f32 {v(a+2,2)}, {v(a+2,2)}, v[{vT+2}:{vT+3}]")
            A(f"v_cvt_pk_bf16_f32 v{reg+2*jj}, v{a}, v{a+1}")
            A(f"v_cvt_pk_bf16_f32 v{reg+2*jj+1}, v{a+2}, v{a+3}")
        A(f"s_add_u32 s{sT1}, s{sB16}, {(4*nt + 2*u)*PLANE + mt*(256 if isb else 512)}")
        A("s_nop 0")
        A(f"v_permlane32_swap_b32 v{reg}, v{reg+2}")
        A(f"v_permlane32_swap_b32 v{reg+1}, v{reg+3}")
        A.vm(f"buffer_store_dwordx4 {v(reg,4)}, v{vA16}, {WS}, s{sT1} offen sc1", tag)
    else:
        if isb:
            for j in range(4):
                A(f"v_cvt_pk_bf16_f32 v{reg+j}, v{src+4*j+u}, v{src+4*j+u+2}")
            A(f"s_add_u32 s{sT1}, s{sB16}, {mt*640 + u*64*640}")
        else:
            for p in range(4):
                A(f"v_cvt_pk_bf16_f32 v{reg+p}, v{src+8*u+2*p}, v{src+8*u+2*p+1}")
            A(f"s_add_u32 s{sT1}, s{sB16}, {(2*mt + u)*640}")
        A.vm(f"buffer_store_dwordx4 {v(reg,4)}, v{vA16+nt}, {WS}, s{sT1} offen sc1", tag)


def acquire_items():
    return [(vFL, vF1, F1A, None), (vFL2, vF2, F1A, None)]


def p2_load_items():
    def q01(A):
        A.vm(f"buffer_load_dwordx4 {v(Q01,4)}, v{vQA}, {WS}, s{sQOFF} offen sc1", "q")
    def q2(A):
        A(f"v_mov_b32 v{Q2}, 0")
        A(f"v_mov_b32 v{Q2+1}, 0")
        A("s_mov_b32 exec_hi, 0")
        A.vm(f"buffer_load_dwordx2 {v(Q2,2)}, v{vQA2}, {WS}, s{sQOFF2} offen sc1", "q")
        A("s_mov_b32 exec_hi, -1")
    items = [lambda A, p=p: dma_chunk_piece(A, 0, p) for p in range(3)] + [q01, q2]
    items += [lambda A, c=c, p=p: dma_chunk_piece(A, c, p) for c in (1, 2) for p in range(3)]
    return items


def gemm(A, tr, n):
    A.vm_q, A.lds_q = [], []
    if EXP.get("tlb"):
        epi_prepare(A, False, tr, n)
        A(f"buffer_store_dword v{vL}, v{vA16}, {WS}, s{sB16} offen sc1")
    A("s_barrier")
    A.stamp("blk0 landed", 2)
    g_reads(A, 0)
    g_reads(A, 1)
    for s_ in range(40):
        b, ks = divmod(s_, 4)
        if ks == 2:
            A("s_barrier")
        if s_ == 22:
            nonce_issue(A)
        if s_ == 30:
            nonce_check(A, f"nonce0{n}")
        g_step(A, s_, 39, tr)
    A.stamp("gemm0", 3)
    slices = [int(ch) for ch in str(EXP.get("sl", "8"))]
    assert sum(slices) == 8
    PUB, POLL, CHK = EXP.get("pub", 12), EXP.get("poll", 15), 18
    for p in range(8):
        g_dma(A, 13, p)
    epi_prepare(A, False, tr, n)
    A("s_nop 7")
    A("s_nop 3")
    done = 0
    for b in range(10, 19):
        k = slices[b - 10] if b - 10 < len(slices) else 0
        for g in range(done, done + k):
            epi_group(A, False, tr, g, "sa")
        if k and done + k == 8:
            A.stamp("epi0", 4)
        done += k
        if b == PUB:
            A.vm_wait("sa")
        if b == CHK:
            poll_check(A, acquire_items(), pos_f1, f"f1{n}")
        if b + 1 >= 13:
            A.vm_wait(("d", b + 1))
        A("s_barrier")
        if EXP.get("stampB") and b in (10, 12, 14, 16):
            A.stamp("", {10: 7, 12: 8, 14: 9, 16: 10}[b])
        if b + 4 < NB:
            for p in range(8):
                g_dma(A, b + 4, p)
        if b == PUB:
            with Wave0(A, f"puba{n}"):
                publish(A, sF1, F1A)
        if b == POLL:
            pos_f1 = poll_issue(A, acquire_items(), f"f1{n}")
    for f in p2_load_items():
        f(A)
    A.stamp("gemm1", 5)
    A.stamp("epi1", 6)
    A.vm_wait("q")
    A("s_branch L_attn")
    A.label(f"L_g1{n}")
    A.vm_q, A.lds_q = [("d", 0)] * 8 + [("d", 1)] * 8 + [("d", 2)] * 8, []
    A.vm_wait(("d", 0))
    A("s_barrier")
    A.stamp("issued", 1)
    A.stamp("blk0 landed", 2)
    for p in range(8):
        g_dma(A, 3, p)
    for b in range(10):
        if b == 0:
            setup_phase1_reads(A)
        if 1 <= b <= 5:
            SETUP_P2[b - 1](A)
        if b == 6:
            if EXP.get("tlb"):
                epi_prepare(A, True, tr, n)
                A(f"buffer_store_dword v{vL}, v{vA16}, {WS}, s{sB16} offen sc1")
                A(f"s_lshl_b32 s{sT0}, s{sQ0}, 4")
                A(f"s_add_u32 s{sT0}, s{sT0}, {OC}")
                A(f"buffer_store_dword v{vL}, v{vOST}, {WS}, s{sT0} offen sc1")
                A(f"s_lshl_b32 s{sT0}, s{sBT}, 4")
                A(f"s_add_u32 s{sT0}, s{sT0}, {OC + 80*32768}")
                A(f"buffer_store_dword v{vL}, v{vOST+1}, {WS}, s{sT0} offen sc1")
            nonce_issue(A)
        if b == 8:
            nonce_check(A, f"nonce1{n}")
        A.vm_wait(("d", b + 1))
        A("s_barrier")
        if b + 4 <= 12:
            for p in range(8):
                g_dma(A, b + 4, p)
    A.stamp("gemm0", 3)
    A.stamp("epi0", 4)
    g_reads(A, 40)
    g_reads(A, 41)
    pend = []
    for s_ in range(40, 80):
        b, ks = divmod(s_, 4)
        if ks == 2 and b + 1 < NB:
            if b + 1 <= 12:
                A.vm_wait(("d", b + 1))
            A("s_barrier")
            if EXP.get("stampB") and b in (10, 12, 14, 16):
                A.stamp("", {10: 7, 12: 8, 14: 9, 16: 10}[b])
            if b == 18:
                pend = p2_load_items()
        def extra():
            for _ in range(2):
                if pend:
                    pend.pop(0)(A)
        g_step(A, s_, 79, tr, extra)
    assert not pend
    A.stamp("gemm1", 5)
    epi_prepare(A, True, tr, n)
    A("s_nop 7")
    A("s_nop 3")
    for g in range(8):
        epi_group(A, True, tr, g, "sb")
    A.stamp("epi1", 6)
    A.vm_wait("q")


def spare(A):
    sWO, sG = sWA, sWB
    A.label("L_spare")
    A.vm_q, A.lds_q = [], []
    A("s_load_dwordx2 s[4:5], s[0:1], 16")
    A("s_load_dwordx2 s[6:7], s[0:1], 40")
    A(f"s_load_dwordx2 s[{sP}:{sP+1}], s[0:1], 48")
    A("s_waitcnt lgkmcnt(0)")
    A(f"s_cmp_lt_u32 s{sRB}, 8")
    A("s_cbranch_scc1 L_sp_a")
    A("s_mov_b32 s4, s6")
    A("s_mov_b32 s5, s7")
    A.label("L_sp_a")
    srd(A, sWO, 4, WO_BYTES)
    srd(A, sG, sP, 1280)
    A(f"s_and_b32 s{sT1}, s{sRB}, 7")
    A(f"s_mul_i32 s{sT1}, s{sT1}, {80*1280}")
    A(f"s_lshl_b32 s{sLDS1}, s{sW}, 10")
    A(f"s_add_u32 s{sT1}, s{sT1}, s{sLDS1}")
    for t in range(13):
        if t == 12:
            A(f"s_cmp_ge_u32 s{sW}, 4")
            A("s_cbranch_scc1 L_sp_dma_done")
        A(f"s_add_u32 m0, s{sLDS1}, {8192*t}")
        A(f"s_add_u32 s{sT0}, s{sT1}, {8192*t}")
        A(f"buffer_load_dwordx4 v{vL16}, s[{sWO}:{sWO+3}], s{sT0} offen lds")
    A.label("L_sp_dma_done")
    XG, GG = 28, 68
    A(f"v_lshrrev_b32 v{vT+1}, 2, v{vL}")
    A(f"s_lshl_b32 s{sT0}, s{sW}, 4")
    A(f"v_add_u32 v{vT+1}, s{sT0}, v{vT+1}")
    A(f"v_and_b32 v{vT+2}, 3, v{vL}")
    A(f"v_lshlrev_b32 v{vT+2}, 4, v{vT+2}")
    A(f"v_mul_u32_u24 v{vT+3}, 1280, v{vT+1}")
    A(f"v_add_u32 v{vT+3}, v{vT+3}, v{vT+2}")
    A(f"v_mov_b32 v{vT+4}, 0")
    for half in range(2):
        for i in range(10):
            A(f"buffer_load_dwordx4 {v(XG+4*i,4)}, v{vT+3}, s[{sX}:{sX+3}], s{sXOFF} offen offset:{(10*half+i)*64}")
            A(f"buffer_load_dwordx4 {v(GG+4*i,4)}, v{vT+2}, s[{sG}:{sG+3}], 0 offen offset:{(10*half+i)*64}")
        A("s_waitcnt vmcnt(0)")
        for i in range(40):
            A(f"v_dot2_f32_bf16 v{vT+4}, v{XG+i}, v{GG+i}, v{vT+4}")
    A("s_nop 2")
    A(f"v_add_f32_dpp v{vT+4}, v{vT+4}, v{vT+4} quad_perm:[1,0,3,2] row_mask:0xf bank_mask:0xf")
    A("s_nop 1")
    A(f"v_add_f32_dpp v{vT+4}, v{vT+4}, v{vT+4} quad_perm:[2,3,0,1] row_mask:0xf bank_mask:0xf")
    A(f"v_mul_f32 v{vT+4}, {hex(f32bits(-LOG2E))}, v{vT+4}")
    A(f"v_exp_f32 v{vT+4}, v{vT+4}")
    A("s_nop 0")
    A(f"v_add_f32 v{vT+4}, 1.0, v{vT+4}")
    A(f"v_rcp_f32 v{vT+4}, v{vT+4}")
    A(f"s_lshl_b32 s{sT0}, s{sRB}, 9")
    A(f"s_add_u32 s{sT0}, s{sT0}, {GATE}")
    A(f"v_lshlrev_b32 v{vT+1}, 2, v{vT+1}")
    A("s_mov_b32 exec_lo, 0x11111111")
    A("s_mov_b32 exec_hi, 0x11111111")
    A(f"buffer_store_dword v{vT+4}, v{vT+1}, {WS}, s{sT0} offen sc1")
    A("s_mov_b64 exec, -1")
    A("s_waitcnt vmcnt(0)")
    A("s_barrier")
    A(f"v_bfe_u32 v{vT+1}, v{vL}, 2, 2")
    A(f"v_mul_u32_u24 v{vT+1}, 1280, v{vT+1}")
    A(f"v_lshrrev_b32 v{vT+2}, 4, v{vL}")
    A(f"v_lshl_add_u32 v{vT+1}, v{vT+2}, 5, v{vT+1}")
    A(f"v_and_b32 v{vT+2}, 3, v{vL}")
    A(f"v_lshl_add_u32 v{vT+1}, v{vT+2}, 3, v{vT+1}")
    A(f"s_mul_i32 s{sT3}, s{sRB}, {10*10240}")
    A(f"s_add_u32 s{sT3}, s{sT3}, {WOT}")
    A(f"s_mov_b32 s{sT1}, s{sW}")
    A.label("L_sp_loop")
    A(f"s_mul_hi_u32 s{sT2}, s{sT1}, 0x1999999a")
    A(f"s_mul_i32 s{sT0}, s{sT2}, 10")
    A(f"s_sub_u32 s{sT0}, s{sT1}, s{sT0}")
    A(f"s_mul_hi_u32 s{sCNT}, s{sT2}, 0x33333334")
    A(f"s_mul_i32 s{sT4}, s{sCNT}, 5")
    A(f"s_sub_u32 s{sT4}, s{sT2}, s{sT4}")
    A(f"s_mul_i32 s{sCNT}, s{sCNT}, 40")
    A(f"s_lshl_b32 s{sT5}, s{sT4}, 3")
    A(f"s_cmp_ge_u32 s{sT4}, 2")
    A(f"s_cselect_b32 s{sM}, 4, 0")
    A(f"s_add_u32 s{sT5}, s{sT5}, s{sM}")
    A(f"s_cmp_eq_u32 s{sT4}, 4")
    A(f"s_cselect_b32 s{sT5}, 16, s{sT5}")
    A(f"s_cselect_b32 s{sM}, 20, 4")
    A(f"s_add_u32 s{sT5}, s{sT5}, s{sCNT}")
    A(f"s_mul_i32 s{sT4}, s{sT5}, 1280")
    A(f"s_mul_i32 s{sM}, s{sM}, 1280")
    A(f"s_lshl_b32 s{sT5}, s{sT0}, 7")
    A(f"s_add_u32 s{sT4}, s{sT4}, s{sT5}")
    A(f"v_add_u32 v{vT+3}, s{sT4}, v{vT+1}")
    A(f"v_add_u32 v{vT+4}, s{sM}, v{vT+3}")
    A(f"ds_read_b64_tr_b16 v[{XG}:{XG+1}], v{vT+3}")
    A(f"ds_read_b64_tr_b16 v[{XG+2}:{XG+3}], v{vT+4}")
    A(f"s_mul_i32 s{sT4}, s{sT2}, 10240")
    A(f"s_lshl_b32 s{sT5}, s{sT0}, 10")
    A(f"s_add_u32 s{sT4}, s{sT4}, s{sT5}")
    A(f"s_add_u32 s{sT4}, s{sT4}, s{sT3}")
    A("s_waitcnt lgkmcnt(0)")
    A(f"buffer_store_dwordx4 {v(XG,4)}, v{vL16}, {WS}, s{sT4} offen sc1")
    A(f"s_add_u32 s{sT1}, s{sT1}, 8")
    A(f"s_cmp_lt_u32 s{sT1}, 100")
    A("s_nop 1")
    A("s_cbranch_scc1 L_sp_loop")
    nonce_issue(A)
    nonce_check(A, "noncesp")
    A("s_waitcnt vmcnt(0)")
    A("s_barrier")
    A.vm_q = []
    with Wave0(A, "pubsp"):
        publish(A, sF1, F1A)
    pos = poll_issue(A, acquire_items(), "f1sp")
    poll_check(A, acquire_items(), pos, "f1sp")
    A("s_barrier")
    A.vm_q = []
    for f in p2_load_items():
        f(A)
    A.vm_wait("q")
    for i in (2, 3, 4, 5, 6) + ((7, 8, 9, 10) if EXP.get("stampB") else ()):
        A.stamp("", i)
    A("s_branch L_attn")


def mf16(A, d, a, b, c):
    A(f"v_mfma_f32_32x32x16_bf16 {v(d,16)}, {v(a,4)}, {v(b,4)}, {c}")


def mf8(A, d, a, b, c):
    A(f"v_mfma_f32_32x32x8_bf16 {v(d,16)}, {v(a,2)}, {v(b,2)}, {c}")


def dma_chunk_piece(A, c, t):
    slot = c % NSLOT
    A(f"s_add_u32 m0, s{sLDSW}, {slot*SLOT + 1024*t}")
    A(f"v_mad_u32_u24 v{vCT}, v{vCS+t}, {c}, v{vCB+t}")
    if t == 2:
        A("s_mov_b32 exec_hi, 0xffff")
    A.vm(f"buffer_load_dwordx4 v{vCT}, {WS}, 0 offen sc1 lds", ("c", c))
    if t == 2:
        A("s_mov_b32 exec_hi, -1")


def dma_chunk(A, c):
    for t in range(3):
        dma_chunk_piece(A, c, t)


def dma_w_piece(A, part, st, t):
    off = (WA_OFF if part == 0 else WB_OFF)[st]
    A(f"s_add_u32 m0, s{sLDSW2}, {off + 1024*t}")
    A(f"s_add_u32 s{sT0}, s{sWSRC}, {(part*80 + 16*st)*10240}")
    if t == 2:
        A("s_mov_b32 exec_hi, 0")
    A.vm(f"buffer_load_dwordx4 v{(vW0, vW1, vW2)[t]}, {WS}, s{sT0} offen sc1 lds", ("w", part, st))
    if t == 2:
        A("s_mov_b32 exec_hi, -1")


def rd_k01(A, t):
    if EXP.get('halfrd') and t % 2 == 1:
        return
    c, tt = t // TPC, t % TPC
    A.lds(f"ds_read_b128 {v(K01,4)}, v{vK01 + c % NSLOT} offset:{tt*512}", ("k01", t))


def rd_k2(A, t):
    if EXP.get('halfrd') and t % 2 == 1:
        return
    c, tt = t // TPC, t % TPC
    A.lds(f"ds_read_b64 {v(K2,2)}, v{vK2 + c % NSLOT} offset:{8192 + tt*512}", ("k2", t))


def rd_v(A, t, a):
    if EXP.get('halfrd') and t % 2 == 1:
        return
    c, tt = t // TPC, t % TPC
    A.lds(f"ds_read_b128 {v(V1 if a else V0,4)}, v{vV + c % NSLOT} offset:{(2*tt + a)*640}", ("v", t, a))


def exps(A, sreg, g, preg=P):
    for i in range(4):
        A(f"v_exp_f32 v{sreg+4*g+i}, v{sreg+4*g+i}")
    A(f"v_cvt_pk_bf16_f32 v{preg+2*g}, v{sreg+4*g}, v{sreg+4*g+1}")
    A(f"v_cvt_pk_bf16_f32 v{preg+2*g+1}, v{sreg+4*g+2}, v{sreg+4*g+3}")


def cross_half_max(A, reg, tmp):
    A(f"v_mov_b32 v{tmp}, v{reg}")
    A("s_nop 1")
    A(f"v_permlane32_swap_b32 v{reg}, v{tmp}")
    A("s_nop 1")
    A(f"v_max_f32 v{reg}, v{reg}, v{tmp}")


def max16(A, dst, src, first):
    if first:
        A(f"v_max3_f32 v{dst}, v{src}, v{src+1}, v{src+2}")
        rest = list(range(3, 16))
    else:
        rest = list(range(0, 16))
    while rest:
        if len(rest) >= 2:
            A(f"v_max3_f32 v{dst}, v{dst}, v{src+rest[0]}, v{src+rest[1]}")
            rest = rest[2:]
        else:
            A(f"v_max_f32 v{dst}, v{dst}, v{src+rest[0]}")
            rest = rest[1:]


def row_sum(A, oreg):
    A(f"v_mov_b32 v{vT}, v{oreg+8}")
    A(f"v_mov_b32 v{vT+1}, v{oreg+8}")
    A("s_nop 1")
    A(f"v_permlane32_swap_b32 v{vT}, v{vT+1}")


def finish_tile(A, oreg, gate, one_minus, vaddr, tok_sreg, chunk0, tag):
    A(f"v_rcp_f32 v{vT+2}, v{vT+1}")
    A(f"s_lshl_b32 s{sT0}, s{tok_sreg}, 4")
    A(f"s_add_u32 s{sT0}, s{sT0}, {OC + chunk0*32768}")
    if one_minus:
        A(f"v_sub_f32 v{vT}, 1.0, v{gate}")
        A(f"v_mul_f32 v{vT+2}, v{vT+2}, v{vT}")
    else:
        A(f"v_mul_f32 v{vT+2}, v{vT+2}, v{gate}")
    A(f"v_mov_b32 v{vT+3}, v{vT+2}")
    for i in range(0, 12, 2):
        A(f"v_pk_mul_f32 {v(oreg+i,2)}, {v(oreg+i,2)}, v[{vT+2}:{vT+3}]")
    for i in range(4):
        A(f"v_cvt_pk_bf16_f32 v{oreg+i}, v{oreg+2*i}, v{oreg+2*i+1}")
    A(f"v_cvt_pk_bf16_f32 v{oreg+8}, v{oreg+8}, v{oreg+9}")
    A(f"v_cvt_pk_bf16_f32 v{oreg+9}, v{oreg+10}, v{oreg+11}")
    A(f"v_permlane32_swap_b32 v{oreg}, v{oreg+2}")
    A(f"v_permlane32_swap_b32 v{oreg+1}, v{oreg+3}")
    A.vm(f"buffer_store_dwordx4 {v(oreg,4)}, v{vaddr}, {WS}, s{sT0} offen sc1", tag)
    A("s_mov_b32 exec_hi, 0")
    A.vm(f"buffer_store_dwordx2 {v(oreg+8,2)}, v{vaddr+2}, {WS}, s{sT0} offen sc1", tag)
    A("s_mov_b64 exec, -1")


def oc_load(A, part, k):
    reg = OCA if part == 0 else OCB
    A(f"s_add_u32 s{sT0}, s{sOCB}, {(part*80 + 4*k)*32768}")
    A.vm(f"buffer_load_dwordx4 {v(reg+4*k,4)}, v{vOC}, {WS}, s{sT0} offen sc1", ("oc", part, k))


def outproj(A, part, first, hook=None):
    offs = WA_OFF if part == 0 else WB_OFF
    reg = OCA if part == 0 else OCB
    for kg in range(2):
        if kg == 0:
            A(f"s_cmp_eq_u32 s{sKG}, 1")
            A(f"s_cbranch_scc1 L_op{part}_g1")
            saved = (list(A.vm_q), list(A.lds_q))
        else:
            A.label(f"L_op{part}_g1")
            A.vm_q, A.lds_q = list(saved[0]), list(saved[1])
        seq = [(k, nt) for k in range(10) for nt in range(5)]

        def rd(i):
            k, nt = seq[i]
            kk = 10 * kg + k
            off = offs[kk // 4] + (kk % 4) * 5120 + nt * 256
            areg = (vWR, vT + 5, vT + 6)[off >> 16]
            A.lds(f"ds_read_b128 {v(WF + (i % 8)*4,4)}, v{areg} offset:{off & 0xffff}", ("wf", i))

        LOOK = 5
        for i in range(LOOK):
            rd(i)
        for i, (k, nt) in enumerate(seq):
            if i + LOOK < len(seq):
                rd(i + LOOK)
            if nt == 0:
                A.vm_wait(("oc", part, k))
                if hook:
                    hook(k, kg)
            A.lds_wait(("wf", i))
            c = "0" if (first and k == 0) else v(ACC + 4*nt, 4)
            A(f"v_mfma_f32_16x16x32_bf16 {v(ACC+4*nt,4)}, {v(WF + (i % 8)*4,4)}, {v(reg+4*k,4)}, {c}")
        if kg == 0:
            end0 = (list(A.vm_q), list(A.lds_q))
            A(f"s_branch L_op{part}_done")
    A.label(f"L_op{part}_done")
    assert end0[0] == A.vm_q and end0[1] == A.lds_q


def keypos(kappa):
    return (kappa & 25) | ((kappa >> 1) & 1) << 2 | ((kappa >> 2) & 1) << 1


def band_mask(j, i, prev):
    m = 0
    for l in range(64):
        q, hh = l & 31, l >> 5
        key = keypos(8 * j + 4 * hh + i) - (32 if prev else 0)
        if 0 <= q - key <= 7:
            m |= 1 << l
    return m


def b_consts(A):
    A(f"v_cmp_eq_u32 vcc, 20, v{vR}")
    A(f"v_mov_b32 v{vT+6}, 0")
    A(f"v_mov_b32 v{vT+7}, 0x3f803f80")
    A(f"v_cndmask_b32 v{vT+6}, v{vT+6}, v{vT+7}, vcc")
    for base in (BV0, BV1, BVP):
        for i in range(4):
            A(f"v_mov_b32 v{base+i}, v{vT+6}")
    A(f"v_mov_b32 v{BQ2}, 0")
    A(f"v_mov_b32 v{BQ2+1}, 0")


def b_load_items():
    def mk(instr, pre=None, gate=False):
        def f(A):
            if gate:
                A(f"v_lshlrev_b32 v{vCT}, 1, v{vGA}")
                A.vm(instr.replace(f"v{vGA},", f"v{vCT},"), "b")
                return
            if pre:
                A(pre)
            A.vm(instr, "b")
            if pre:
                A("s_mov_b64 exec, -1")
        return f
    lo20 = f"s_mov_b64 exec, s[{sLO20}:{sLO20+1}]"
    return [
        mk(f"buffer_load_dwordx4 {v(BQ01,4)}, v{vBA}, {WS}, s{sBA} offen sc1"),
        mk(f"buffer_load_dwordx4 {v(BK01,4)}, v{vBA+2}, {WS}, s{sBA+2} offen sc1"),
        mk(f"buffer_load_dwordx2 {v(BK2,2)}, v{vBA+3}, {WS}, s{sBA+3} offen sc1"),
        mk(f"buffer_load_dwordx4 {v(BKP01,4)}, v{vBA+2}, {WS}, s{sBA+5} offen sc1"),
        mk(f"buffer_load_dwordx2 {v(BKP2,2)}, v{vBA+3}, {WS}, s{sBA+6} offen sc1"),
        mk(f"buffer_load_dword v{vGB}, v{vGA}, {WS}, s{sBA+8} offen sc1", None, True),
        mk(f"buffer_load_dwordx2 {v(BQ2,2)}, v{vBA+1}, {WS}, s{sBA+1} offen sc1", "s_mov_b32 exec_hi, 0"),
        mk(f"buffer_load_dwordx4 {v(BV0,4)}, v{vBA+4}, {WS}, s{sBA+4} offen sc1", lo20),
        mk(f"buffer_load_dwordx4 {v(BV1,4)}, v{vBA+4}, {WS}, s{sBA+4} offen offset:640 sc1", lo20),
        mk(f"buffer_load_dwordx4 {v(BVP,4)}, v{vBA+4}, {WS}, s{sBA+7} offen offset:640 sc1", lo20),
    ]


def b_unit(A):
    S0, S1 = BS0, BS1
    A.vm_wait("b")
    mf16(A, S0, BK01, BQ01, "0")
    mf16(A, S1, BKP01, BQ01, "0")
    mf8(A, S0, BK2, BQ2, v(S0, 16))
    mf8(A, S1, BKP2, BQ2, v(S1, 16))
    A(f"v_mov_b32 v{vT}, {hex(f32bits(-1e30))}")
    A(f"s_cmp_eq_u32 s{sQT}, 0")
    A(f"s_cselect_b32 s{sT3}, 0, -1")
    A("s_nop 7")
    A("s_nop 5")
    for j in range(4):
        for i in range(4):
            m = band_mask(j, i, False)
            A(f"s_mov_b32 s{sM}, {hex(m & 0xffffffff)}")
            A(f"s_mov_b32 s{sM+1}, {hex(m >> 32)}")
            A(f"v_cndmask_b32 v{S0+4*j+i}, v{vT}, v{S0+4*j+i}, s[{sM}:{sM+1}]")
    for i in range(4):
        m = band_mask(3, i, True)
        A(f"s_and_b32 s{sM}, s{sT3}, {hex(m & 0xffffffff)}")
        A(f"s_and_b32 s{sM+1}, s{sT3}, {hex(m >> 32)}")
        A(f"v_cndmask_b32 v{S1+12+i}, v{vT}, v{S1+12+i}, s[{sM}:{sM+1}]")
    max16(A, vT + 1, S0, True)
    A(f"v_max3_f32 v{vT+1}, v{vT+1}, v{S1+12}, v{S1+13}")
    A(f"v_max3_f32 v{vT+1}, v{vT+1}, v{S1+14}, v{S1+15}")
    cross_half_max(A, vT + 1, vT + 2)
    for r in list(range(S0, S0 + 16)) + list(range(S1 + 12, S1 + 16)):
        A(f"v_sub_f32 v{r}, v{r}, v{vT+1}")
    for g in range(4):
        exps(A, S0, g, BP)
    PP = BP + 8
    for i in range(4):
        A(f"v_exp_f32 v{S1+12+i}, v{S1+12+i}")
    A(f"v_mov_b32 v{PP}, 0")
    A(f"v_mov_b32 v{PP+1}, 0")
    A(f"v_cvt_pk_bf16_f32 v{PP+2}, v{S1+12}, v{S1+13}")
    A(f"v_cvt_pk_bf16_f32 v{PP+3}, v{S1+14}, v{S1+15}")
    A("s_nop 1")
    mf16(A, BO, BV0, BP, "0")
    mf16(A, BO, BV1, BP + 4, v(BO, 16))
    mf16(A, BO, BVP, PP, v(BO, 16))
    A("s_nop 7")
    A("s_nop 3")
    row_sum(A, BO)
    A("s_nop 1")
    finish_tile(A, BO, vGB, True, vOST + 1, sBT, 80, "stb")


def fallback(A):
    A.label("L_fallback")
    A("s_waitcnt vmcnt(0) lgkmcnt(0)")
    A(f"v_lshlrev_b32 v{vT+4}, 15, v{vHH}")
    A(f"v_lshl_add_u32 v{vT+4}, v{vR}, 4, v{vT+4}")
    A(f"v_lshlrev_b32 v{vT+5}, 4, v{vR}")
    A(f"v_mul_u32_u24 v{vT+6}, 320, v{vHH}")
    A(f"v_lshl_add_u32 v{vT+6}, v{vR}, 4, v{vT+6}")
    A(f"v_mov_b32 v{vT+7}, {hex(f32bits(-3.0e38))}")

    def tile_addr():
        A(f"s_lshl_b32 s{sT0}, s{sCNT}, 9")
        A(f"s_lshl_b32 s{sT1}, s{sPA}, 15")
        A(f"s_add_u32 s{sT1}, s{sT1}, s{sT0}")
        A(f"s_add_u32 s{sT1}, s{sT1}, {KA}")
        A(f"s_lshl_b32 s{sT2}, s{sP2L}, 15")
        A(f"s_add_u32 s{sT2}, s{sT2}, s{sT0}")
        A(f"s_and_b32 s{sT3}, s{sH}, 1")
        A(f"s_lshl_b32 s{sT3}, s{sT3}, 3")
        A(f"s_add_u32 s{sT2}, s{sT2}, s{sT3}")
        A(f"s_add_u32 s{sT2}, s{sT2}, {KA}")
        A(f"s_mul_i32 s{sT3}, s{sCNT}, 1280")
        A(f"s_add_u32 s{sT3}, s{sT3}, s{sVH}")
        A(f"s_add_u32 s{sT3}, s{sT3}, {VA}")

    A(f"s_mov_b32 s{sCNT}, 0")
    A.label("L_fb1")
    tile_addr()
    A(f"buffer_load_dwordx4 {v(K01,4)}, v{vT+4}, {WS}, s{sT1} offen sc1")
    A(f"buffer_load_dwordx2 {v(K2,2)}, v{vT+5}, {WS}, s{sT2} offen sc1")
    A("s_waitcnt vmcnt(0)")
    mf16(A, SA, K01, Q01, "0")
    mf8(A, SA, K2, Q2, v(SA, 16))
    A("s_nop 7")
    A("s_nop 7")
    max16(A, vT + 7, SA, False)
    A(f"s_add_u32 s{sCNT}, s{sCNT}, 1")
    A(f"s_cmp_lt_u32 s{sCNT}, 64")
    A("s_cbranch_scc1 L_fb1")
    cross_half_max(A, vT + 7, vT)
    for i in range(16):
        A(f"v_sub_f32 v{NEGM+i}, 0, v{vT+7}")
        A(f"v_mov_b32 v{O+i}, 0")
    A(f"v_cmp_eq_u32 vcc, 20, v{vR}")
    A(f"v_mov_b32 v{vT}, 0")
    A(f"v_mov_b32 v{vT+1}, 0x3f803f80")
    A(f"v_cndmask_b32 v{vT}, v{vT}, v{vT+1}, vcc")
    for i in range(4):
        A(f"v_mov_b32 v{V0+i}, v{vT}")
        A(f"v_mov_b32 v{V1+i}, v{vT}")
    A(f"s_mov_b32 s{sCNT}, 0")
    A.label("L_fb2")
    tile_addr()
    A(f"buffer_load_dwordx4 {v(K01,4)}, v{vT+4}, {WS}, s{sT1} offen sc1")
    A(f"buffer_load_dwordx2 {v(K2,2)}, v{vT+5}, {WS}, s{sT2} offen sc1")
    A(f"s_mov_b64 exec, s[{sLO20}:{sLO20+1}]")
    A(f"buffer_load_dwordx4 {v(V0,4)}, v{vT+6}, {WS}, s{sT3} offen sc1")
    A(f"buffer_load_dwordx4 {v(V1,4)}, v{vT+6}, {WS}, s{sT3} offen offset:640 sc1")
    A("s_mov_b64 exec, -1")
    A("s_waitcnt vmcnt(0)")
    mf16(A, SA, K01, Q01, v(NEGM, 16))
    mf8(A, SA, K2, Q2, v(SA, 16))
    A("s_nop 7")
    A("s_nop 7")
    for g in range(4):
        exps(A, SA, g)
    A("s_nop 1")
    mf16(A, O, V0, P, v(O, 16))
    mf16(A, O, V1, P + 4, v(O, 16))
    A(f"s_add_u32 s{sCNT}, s{sCNT}, 1")
    A(f"s_cmp_lt_u32 s{sCNT}, 64")
    A("s_cbranch_scc1 L_fb2")
    A("s_nop 7")
    A("s_nop 7")
    row_sum(A, O)
    A("s_nop 1")
    A("s_branch L_finish")


def setup_phase1_reads(A):
    A(f"v_lshrrev_b32 v{vT+2}, 1, v{vR}")
    A(f"v_and_b32 v{vT+2}, 7, v{vT+2}")
    A(f"v_xor_b32 v{vT+2}, v{vT+2}, v{vHH}")
    A(f"v_lshlrev_b32 v{vT+2}, 4, v{vT+2}")
    A(f"s_lshl_b32 s{sT0}, s{sMH}, 6")
    A(f"v_add_u32 v{vT+3}, s{sT0}, v{vR}")
    A(f"v_lshl_add_u32 v{vXR}, v{vT+3}, 7, v{vT+2}")
    for ks in range(1, 4):
        A(f"v_xor_b32 v{vXR+3*ks}, {ks*32}, v{vXR}")
    for ks in range(4):
        A(f"v_add_u32 v{vXR+3*ks+1}, 0x10000, v{vXR+3*ks}")
        A(f"v_add_u32 v{vXR+3*ks+2}, 0x20000, v{vXR+3*ks}")
    A(f"v_bfe_u32 v{vT+2}, v{vL}, 2, 2")
    A(f"v_lshl_add_u32 v{vT+3}, v{vHH}, 3, v{vT+2}")
    A(f"v_lshlrev_b32 v{vT+3}, 8, v{vT+3}")
    A(f"v_bfe_u32 v{vT+4}, v{vL}, 4, 1")
    A(f"v_lshlrev_b32 v{vT+4}, 5, v{vT+4}")
    A(f"v_add_u32 v{vT+3}, v{vT+3}, v{vT+4}")
    A(f"v_and_b32 v{vT+4}, 3, v{vL}")
    A(f"v_lshlrev_b32 v{vT+4}, 3, v{vT+4}")
    A(f"v_add_u32 v{vT+3}, v{vT+3}, v{vT+4}")
    for nt in range(2):
        A(f"s_lshl_b32 s{sT0}, s{sNH}, 1")
        A(f"s_add_u32 s{sT0}, s{sT0}, {nt}")
        A(f"v_xor_b32 v{vT+4}, s{sT0}, v{vT+2}")
        A(f"v_lshl_add_u32 v{vWR1+3*nt}, v{vT+4}, 6, v{vT+3}")
        A(f"v_add_u32 v{vWR1+3*nt+1}, 0x10000, v{vWR1+3*nt}")
        A(f"v_add_u32 v{vWR1+3*nt+2}, 0x20000, v{vWR1+3*nt}")


def setup_p2_0(A):
    A(f"s_lshl_b32 s{sF1}, s{sCT}, 4")
    A(f"s_add_u32 s{sF1}, s{sF1}, s{sRB}")
    A(f"s_lshl_b32 s{sF1}, s{sF1}, 2")
    A(f"s_and_b32 s{sT0}, s2, 7")
    A(f"s_lshl_b32 s{sT0}, s{sT0}, 2")
    A(f"s_lshr_b32 s{sT1}, s2, 3")
    A(f"s_and_b32 s{sT1}, s{sT1}, 3")
    A(f"s_add_u32 s{sH}, s{sT0}, s{sT1}")
    A(f"s_lshr_b32 s{sQB}, s2, 5")
    A(f"s_lshr_b32 s{sT0}, s{sH}, 1")
    A(f"s_mul_i32 s{sT0}, s{sT0}, 5")
    A(f"s_add_u32 s{sP2L}, s{sT0}, 2")
    A(f"s_and_b32 s{sT1}, s{sH}, 1")
    A(f"s_mul_i32 s{sT1}, s{sT1}, 3")
    A(f"s_add_u32 s{sPA}, s{sT0}, s{sT1}")
    A(f"s_mul_i32 s{sVH}, s{sH}, {VH}")
    A(f"s_mul_i32 s{sLDSW}, s{sW}, 2816")
    A(f"s_mul_i32 s{sLDSW2}, s{sW}, 2560")
    A(f"s_lshl_b32 s{sQ0}, s{sQB}, 8")
    A(f"s_lshl_b32 s{sT0}, s{sW}, 5")
    A(f"s_add_u32 s{sQ0}, s{sQ0}, s{sT0}")
    A(f"s_lshl_b32 s{sQT}, s{sQB}, 2")
    A(f"s_lshr_b32 s{sT0}, s{sW}, 1")
    A(f"s_add_u32 s{sQT}, s{sQT}, s{sT0}")
    A(f"s_and_b32 s{sT1}, s{sW}, 1")
    A(f"s_lshl_b32 s{sBT}, s{sQT}, 6")
    A(f"s_add_u32 s{sBT}, s{sBT}, s{sT1}")
    A(f"s_mov_b32 s{sLO20}, 0xfffff")
    A(f"s_mov_b32 s{sLO20+1}, 0xfffff")
    A(f"v_lshlrev_b32 v{vQA}, 15, v{vHH}")
    A(f"v_lshl_add_u32 v{vQA}, v{vR}, 4, v{vQA}")
    A(f"v_lshlrev_b32 v{vQA2}, 4, v{vR}")
    A(f"v_lshlrev_b32 v{vGA}, 2, v{vR}")
    A(f"s_lshl_b32 s{sT0}, s{sQ0}, 4")
    A(f"s_lshl_b32 s{sQOFF}, s{sPA}, 15")
    A(f"s_add_u32 s{sQOFF}, s{sQOFF}, s{sT0}")
    if QA:
        A(f"s_add_u32 s{sQOFF}, s{sQOFF}, {QA}")
    A(f"s_lshl_b32 s{sQOFF2}, s{sP2L}, 15")
    A(f"s_add_u32 s{sQOFF2}, s{sQOFF2}, s{sT0}")
    A(f"s_and_b32 s{sT1}, s{sH}, 1")
    A(f"s_lshl_b32 s{sT1}, s{sT1}, 3")
    A(f"s_add_u32 s{sQOFF2}, s{sQOFF2}, s{sT1}")
    if QA:
        A(f"s_add_u32 s{sQOFF2}, s{sQOFF2}, {QA}")
    A(f"s_lshl_b32 s{sGOFF}, s{sQ0}, 2")
    A(f"s_add_u32 s{sGOFF}, s{sGOFF}, {GATE}")


def setup_p2_1(A):
    A(f"s_and_b32 s{sT1}, s{sH}, 1")
    A(f"s_lshl_b32 s{sT1}, s{sT1}, 3")
    A(f"v_lshlrev_b32 v{vT}, 12, v{vHH}")
    A(f"v_lshl_add_u32 v{vT}, v{vR}, 4, v{vT}")
    A(f"v_lshlrev_b32 v{vT+1}, 4, v{vR}")
    A(f"v_add_u32 v{vT+1}, s{sT1}, v{vT+1}")
    A(f"v_mul_u32_u24 v{vT+2}, 320, v{vHH}")
    A(f"v_lshl_add_u32 v{vT+2}, v{vR}, 4, v{vT+2}")
    A(f"v_add_u32 v{vT+3}, {ONES}, v{vT+2}")
    A(f"v_cmp_gt_u32 vcc, 20, v{vR}")
    for sl in range(NSLOT):
        A(f"v_add_u32 v{vK01+sl}, {sl*SLOT}, v{vT}")
        A(f"v_add_u32 v{vK2+sl}, {sl*SLOT}, v{vT+1}")
        A(f"v_add_u32 v{vT+4}, {sl*SLOT + 12288}, v{vT+2}")
        A(f"v_cndmask_b32 v{vV+sl}, v{vT+3}, v{vT+4}, vcc")
    A(f"s_lshl_b32 s{sT2}, s{sPA}, 15")
    A(f"s_add_u32 s{sT2}, s{sT2}, {KA}")
    A(f"s_lshl_b32 s{sT3}, s{sP2L}, 15")
    A(f"s_add_u32 s{sT3}, s{sT3}, {KA - 8192}")
    A(f"s_add_u32 s{sT4}, s{sVH}, {VA - 12288}")
    for t in range(3):
        A(f"v_add_u32 v{vT}, s{sLDSW}, v{vL16}")
        if t:
            A(f"v_add_u32 v{vT}, {1024*t}, v{vT}")
        A(f"v_lshrrev_b32 v{vT+1}, 12, v{vT}")
        A(f"v_and_b32 v{vT+2}, 4095, v{vT}")
        A(f"v_lshl_add_u32 v{vT+2}, v{vT+1}, 15, v{vT+2}")
        A(f"v_add_u32 v{vT+2}, s{sT2}, v{vT+2}")
        A(f"v_add_u32 v{vT+3}, s{sT3}, v{vT}")
        A(f"v_add_u32 v{vT+4}, s{sT4}, v{vT}")
        A(f"v_cmp_eq_u32 vcc, 2, v{vT+1}")
        A(f"v_mov_b32 v{vT+5}, 4096")
        A(f"v_mov_b32 v{vT+6}, 10240")
        A(f"v_cndmask_b32 v{vT+2}, v{vT+2}, v{vT+3}, vcc")
        A(f"v_cmp_le_u32 vcc, 3, v{vT+1}")
        A("s_nop 1")
        A(f"v_cndmask_b32 v{vCB+t}, v{vT+2}, v{vT+4}, vcc")
        A(f"v_cndmask_b32 v{vCS+t}, v{vT+5}, v{vT+6}, vcc")


def setup_p2_2(A):
    A(f"s_lshr_b32 s{sT0}, s{sH}, 1")
    A(f"s_mul_i32 s{sT0}, s{sT0}, 5")
    A(f"s_and_b32 s{sT1}, s{sH}, 1")
    A(f"s_lshl_b32 s{sT2}, s{sT1}, 1")
    A(f"s_add_u32 s{sT2}, s{sT2}, s{sT0}")
    A(f"v_add_u32 v{vT}, s{sT2}, v{vHH}")
    A(f"v_lshlrev_b32 v{vT}, 15, v{vT}")
    A(f"v_lshl_add_u32 v{vOST}, v{vR}, 4, v{vT}")
    A(f"v_lshl_add_u32 v{vOST+1}, v{vR}, 5, v{vT}")
    A(f"s_add_u32 s{sT0}, s{sT0}, 4")
    A(f"s_lshl_b32 s{sT0}, s{sT0}, 15")
    A(f"s_lshl_b32 s{sT1}, s{sT1}, 3")
    A(f"s_add_u32 s{sT0}, s{sT0}, s{sT1}")
    A(f"v_lshlrev_b32 v{vT}, 4, v{vR}")
    A(f"v_add_u32 v{vOST+2}, s{sT0}, v{vT}")
    A(f"v_lshlrev_b32 v{vT}, 5, v{vR}")
    A(f"v_add_u32 v{vOST+3}, s{sT0}, v{vT}")
    A(f"s_mul_i32 s{sT0}, s{sH}, 20")
    A(f"s_add_u32 s{sT1}, s{sT0}, 19")
    A(f"s_lshr_b32 s{sT0}, s{sT0}, 7")
    A(f"s_lshr_b32 s{sT1}, s{sT1}, 7")
    A(f"v_bfe_u32 v{vT}, v{vL}, 4, 1")
    A(f"s_sub_u32 s{sT2}, s{sT1}, s{sT0}")
    A(f"v_mul_u32_u24 v{vT+1}, s{sT2}, v{vT}")
    A(f"v_add_u32 v{vT+1}, s{sT0}, v{vT+1}")
    A(f"v_mul_u32_u24 v{vT+2}, 5, v{vHH}")
    A(f"v_add_u32 v{vT+2}, 5, v{vT+2}")
    A(f"v_add_u32 v{vT+2}, v{vT+2}, v{vT+1}")
    A(f"v_and_b32 v{vT+3}, 15, v{vL}")
    A(f"v_lshl_add_u32 v{vT+2}, v{vT+2}, 4, v{vT+3}")
    A(f"v_lshlrev_b32 v{vF1}, 2, v{vT+2}")
    A(f"v_add_u32 v{vT+2}, {15*16}, v{vT+3}")
    A(f"v_lshlrev_b32 v{vF4}, 2, v{vT+2}")
    A(f"v_and_b32 v{vT+4}, 1, v{vL}")
    A(f"s_lshl_b32 s{sT3}, s{sQB}, 1")
    A(f"v_add_u32 v{vT+4}, s{sT3}, v{vT+4}")
    A(f"v_lshl_add_u32 v{vT+4}, v{vT+1}, 4, v{vT+4}")
    A(f"v_lshlrev_b32 v{vF2}, 2, v{vT+4}")
    A(f"v_and_b32 v{vT}, 1, v{vL}")
    A(f"v_mul_u32_u24 v{vT+1}, s{sT2}, v{vT}")
    A(f"v_add_u32 v{vT+1}, s{sT0}, v{vT+1}")
    A(f"v_bfe_u32 v{vT+2}, v{vL}, 1, 2")
    A(f"v_min_u32 v{vT+2}, 2, v{vT+2}")
    A(f"v_mul_u32_u24 v{vT+2}, 5, v{vT+2}")
    A(f"v_add_u32 v{vT+1}, v{vT+1}, v{vT+2}")
    A(f"s_lshr_b32 s{sT3}, s{sQT}, 1")
    A(f"s_max_u32 s{sT4}, s{sQT}, 1")
    A(f"s_sub_u32 s{sT4}, s{sT4}, 1")
    A(f"s_lshr_b32 s{sT4}, s{sT4}, 1")
    A(f"s_sub_u32 s{sT4}, s{sT3}, s{sT4}")
    A(f"v_bfe_u32 v{vT+2}, v{vL}, 3, 1")
    A(f"v_mul_u32_u24 v{vT+2}, s{sT4}, v{vT+2}")
    A(f"v_sub_u32 v{vT+2}, s{sT3}, v{vT+2}")
    A(f"v_lshl_add_u32 v{vT+1}, v{vT+1}, 4, v{vT+2}")
    A(f"v_lshlrev_b32 v{vF3}, 2, v{vT+1}")


def setup_p2_3(A):
    A(f"v_lshlrev_b32 v{vBA}, 15, v{vHH}")
    A(f"v_lshl_add_u32 v{vBA}, v{vR}, 4, v{vBA}")
    A(f"v_lshlrev_b32 v{vBA+1}, 4, v{vR}")
    A(f"v_and_b32 v{vT+2}, 25, v{vR}")
    A(f"v_bfe_u32 v{vT+3}, v{vR}, 1, 1")
    A(f"v_lshl_or_b32 v{vT+2}, v{vT+3}, 2, v{vT+2}")
    A(f"v_bfe_u32 v{vT+3}, v{vR}, 2, 1")
    A(f"v_lshl_or_b32 v{vT+2}, v{vT+3}, 1, v{vT+2}")
    A(f"v_lshlrev_b32 v{vT+3}, 15, v{vHH}")
    A(f"v_lshl_add_u32 v{vBA+2}, v{vT+2}, 4, v{vT+3}")
    A(f"v_lshlrev_b32 v{vBA+3}, 4, v{vT+2}")
    A(f"v_mul_u32_u24 v{vT+4}, 320, v{vHH}")
    A(f"v_lshl_add_u32 v{vBA+4}, v{vR}, 4, v{vT+4}")
    A(f"s_and_b32 s{sT1}, s{sW}, 1")
    A(f"s_lshl_b32 s{sT1}, s{sT1}, 10")
    A(f"s_lshl_b32 s{sT0}, s{sQT}, 5")
    A(f"s_add_u32 s{sT2}, s{sT1}, s{sT0}")
    A(f"s_lshl_b32 s{sT0}, s{sPA}, 15")
    A(f"s_lshl_b32 s{sT1}, s{sP2L}, 15")
    A(f"s_and_b32 s{sT3}, s{sH}, 1")
    A(f"s_lshl_b32 s{sT3}, s{sT3}, 3")
    A(f"s_add_u32 s{sT1}, s{sT1}, s{sT3}")
    for prev in range(2):
        if prev:
            A(f"s_cmp_eq_u32 s{sQT}, 0")
            A(f"s_cselect_b32 s{sT3}, 0, 32")
            A(f"s_sub_u32 s{sT2}, s{sT2}, s{sT3}")
        A(f"s_lshl_b32 s{sT3}, s{sT2}, 4")
        if not prev:
            A(f"s_add_u32 s{sBA}, s{sT3}, s{sT0}")
            A(f"s_add_u32 s{sBA}, s{sBA}, {QB}")
            A(f"s_add_u32 s{sBA+1}, s{sT3}, s{sT1}")
            A(f"s_add_u32 s{sBA+1}, s{sBA+1}, {QB}")
        o = sBA + 2 + 3 * prev
        A(f"s_add_u32 s{o}, s{sT3}, s{sT0}")
        A(f"s_add_u32 s{o}, s{o}, {KB}")
        A(f"s_add_u32 s{o+1}, s{sT3}, s{sT1}")
        A(f"s_add_u32 s{o+1}, s{o+1}, {KB}")
        A(f"s_lshr_b32 s{sT3}, s{sT2}, 4")
        A(f"s_mul_i32 s{sT3}, s{sT3}, 640")
        A(f"s_add_u32 s{o+2}, s{sT3}, s{sVH}")
        A(f"s_add_u32 s{o+2}, s{o+2}, {VB}")
    A(f"s_lshl_b32 s{sBA+8}, s{sBT}, 2")
    A(f"s_add_u32 s{sBA+8}, s{sBA+8}, {GATE}")


def setup_p2_4(A):
    sRT, sCO, sTG = sT1, sT2, sT3
    A(f"s_lshr_b32 s{sRT}, s{sH}, 3")
    A(f"s_lshl_b32 s{sT0}, s{sQB}, 2")
    A(f"s_add_u32 s{sRT}, s{sRT}, s{sT0}")
    A(f"s_and_b32 s{sCO}, s{sH}, 7")
    A(f"s_and_b32 s{sTG}, s{sW}, 3")
    A(f"s_lshr_b32 s{sKG}, s{sW}, 2")
    A(f"s_lshl_b32 s{sFLG}, s{sRT}, 8")
    A(f"s_mul_i32 s{sWSRC}, s{sW}, 20480")
    A(f"s_mul_i32 s{sT0}, s{sCO}, 1280")
    A(f"s_add_u32 s{sWSRC}, s{sWSRC}, s{sT0}")
    A(f"s_add_u32 s{sWSRC}, s{sWSRC}, {WOT}")
    A(f"s_lshl_b32 s{sRT}, s{sRT}, 6")
    A(f"s_lshl_b32 s{sTG}, s{sTG}, 4")
    A(f"s_add_u32 s{sRT}, s{sRT}, s{sTG}")
    A(f"s_mul_i32 s{sOUTO}, s{sRT}, 1280")
    A(f"s_mul_i32 s{sT0}, s{sCO}, 160")
    A(f"s_add_u32 s{sOUTO}, s{sOUTO}, s{sT0}")
    A(f"s_lshl_b32 s{sOCB}, s{sRT}, 4")
    A(f"s_mul_i32 s{sT0}, s{sKG}, {40*32768}")
    A(f"s_add_u32 s{sOCB}, s{sOCB}, s{sT0}")
    A(f"s_add_u32 s{sOCB}, s{sOCB}, {OC}")
    A(f"s_lshl_b32 s{sPUB}, s{sQT}, 6")
    A(f"s_lshl_b32 s{sT0}, s{sH}, 1")
    A(f"s_add_u32 s{sPUB}, s{sPUB}, s{sT0}")
    A(f"s_and_b32 s{sT0}, s{sW}, 1")
    A(f"s_add_u32 s{sPUB}, s{sPUB}, s{sT0}")
    A(f"s_lshl_b32 s{sPUB}, s{sPUB}, 2")
    A(f"v_lshlrev_b32 v{vFA}, 2, v{vL}")
    A(f"v_mov_b32 v{vW0}, v{vL16}")
    A(f"v_add_u32 v{vT}, 1024, v{vL16}")
    A(f"v_add_u32 v{vT+1}, {10240 - 256}, v{vL16}")
    A(f"v_cmp_gt_u32 vcc, 16, v{vL}")
    A(f"v_add_u32 v{vW2}, {10240 + 768}, v{vL16}")
    A(f"v_lshrrev_b32 v{vT+2}, 4, v{vL}")
    A(f"v_cndmask_b32 v{vW1}, v{vT+1}, v{vT}, vcc")
    A(f"v_and_b32 v{vT+3}, 15, v{vL}")
    A(f"v_lshlrev_b32 v{vT+4}, 15, v{vT+2}")
    A(f"v_lshl_add_u32 v{vOC}, v{vT+3}, 4, v{vT+4}")
    A(f"v_mul_u32_u24 v{vT+4}, 1280, v{vT+2}")
    A(f"v_lshl_add_u32 v{vWR}, v{vT+3}, 4, v{vT+4}")
    A(f"v_mul_u32_u24 v{vT+4}, 1280, v{vT+3}")
    A(f"v_lshl_add_u32 v{vST}, v{vT+2}, 3, v{vT+4}")


SETUP_P2 = [setup_p2_0, setup_p2_1, setup_p2_2, setup_p2_3, setup_p2_4]


def setup_phase2(A):
    for f in SETUP_P2:
        f(A)


def pattern_fill(A):
    for r in range(2):
        A(f"v_add_u32 v{vT}, {512*r}, v0")
        A(f"v_mul_u32_u24 v{vT+1}, 3277, v{vT}")
        A(f"v_lshrrev_b32 v{vT+1}, 16, v{vT+1}")
        A(f"v_mul_u32_u24 v{vT+1}, 20, v{vT+1}")
        A(f"v_cmp_eq_u32 vcc, v{vT+1}, v{vT}")
        A(f"v_mov_b32 v{vT+4}, 0")
        A(f"v_mov_b32 v{vT+5}, 0x3f803f80")
        A(f"v_cndmask_b32 v{vT+4}, v{vT+4}, v{vT+5}, vcc")
        for i in range(1, 4):
            A(f"v_mov_b32 v{vT+4+i}, v{vT+4}")
        if r == 1:
            A(f"v_cmp_gt_u32 vcc, {PAT_UNITS}, v{vT}")
        A(f"v_lshlrev_b32 v{vT}, 4, v{vT}")
        A(f"v_add_u32 v{vT}, {ONES}, v{vT}")
        if r == 1:
            A("s_and_saveexec_b64 s[%d:%d], vcc" % (sT4, sT5))
            A("s_cbranch_execz L_pat_done")
        A.lds(f"ds_write_b128 v{vT}, {v(vT+4,4)}", "pat")
    A.label("L_pat_done")
    A("s_mov_b64 exec, -1")


def gen(prof=False):
    A = Asm()
    A.prof = prof
    A.PROF_V = 239
    kernel_header(A, NAME)
    A("s_cmp_ge_u32 s2, 256")
    A("s_cbranch_scc1 L_end")
    A.stamp("start")
    A("s_load_dwordx4 s[4:7], s[0:1], 0")
    A(f"s_load_dwordx2 s[{sP}:{sP+1}], s[0:1], 32")
    A(f"s_load_dwordx2 s[{sP+2}:{sP+3}], s[0:1], 72")
    A(f"s_load_dwordx4 s[{sDBG}:{sDBG+3}], s[0:1], 56")
    A(f"v_lshrrev_b32 v{vT}, 6, v0")
    A(f"v_and_b32 v{vL}, 63, v0")
    A(f"v_readfirstlane_b32 s{sW}, v{vT}")
    A(f"v_and_b32 v{vR}, 31, v{vL}")
    A(f"v_lshrrev_b32 v{vHH}, 5, v{vL}")
    A(f"v_lshlrev_b32 v{vL16}, 4, v{vL}")
    A(f"s_and_b32 s{sT0}, s2, 7")
    A(f"s_lshr_b32 s{sT1}, s2, 3")
    A(f"s_and_b32 s{sRB}, s{sT0}, 1")
    A(f"s_lshl_b32 s{sRB}, s{sRB}, 3")
    A(f"s_and_b32 s{sT2}, s{sT1}, 7")
    A(f"s_add_u32 s{sRB}, s{sRB}, s{sT2}")
    A(f"s_lshr_b32 s{sCT}, s{sT0}, 1")
    A(f"s_lshl_b32 s{sCT}, s{sCT}, 2")
    A(f"s_lshr_b32 s{sT2}, s{sT1}, 3")
    A(f"s_add_u32 s{sCT}, s{sCT}, s{sT2}")
    A(f"s_and_b32 s{sGI}, s{sW}, 3")
    A(f"s_and_b32 s{sMH}, s{sGI}, 1")
    A(f"s_lshr_b32 s{sNH}, s{sGI}, 1")
    A(f"s_mul_i32 s{sXOFF}, s{sRB}, {128*1280}")
    A(f"s_lshl_b32 s{sWOFF}, s{sCT}, 8")
    A(f"s_lshl_b32 s{sLDS1}, s{sGI}, 10")
    A(f"s_mul_hi_u32 s{sT0}, s{sCT}, 0x33333334")
    A(f"s_mul_i32 s{sT0}, s{sT0}, 5")
    A(f"s_sub_u32 s{sCT5}, s{sCT}, s{sT0}")
    A(f"v_lshrrev_b32 v{vT}, 3, v{vL}")
    A(f"s_lshl_b32 s{sT0}, s{sGI}, 3")
    A(f"v_add_u32 v{vT}, s{sT0}, v{vT}")
    A(f"v_lshrrev_b32 v{vT+1}, 1, v{vT}")
    A(f"v_xor_b32 v{vT+1}, v{vT+1}, v{vL}")
    A(f"v_and_b32 v{vT+1}, 7, v{vT+1}")
    A(f"v_lshlrev_b32 v{vT+1}, 4, v{vT+1}")
    A(f"v_mul_u32_u24 v{vT+2}, 1280, v{vT}")
    A(f"v_add_u32 v{vXD}, v{vT+2}, v{vT+1}")
    A(f"v_lshrrev_b32 v{vT}, 4, v{vL}")
    A(f"v_lshlrev_b32 v{vT+1}, 2, v{vT}")
    A(f"v_xor_b32 v{vT+1}, v{vT+1}, v{vL}")
    A(f"v_and_b32 v{vT+1}, 15, v{vT+1}")
    A(f"v_lshlrev_b32 v{vT+1}, 4, v{vT+1}")
    A(f"s_lshl_b32 s{sT0}, s{sGI}, 2")
    A(f"v_add_u32 v{vT}, s{sT0}, v{vT}")
    A(f"v_mul_u32_u24 v{vT}, 3840, v{vT}")
    A(f"v_add_u32 v{vWD}, v{vT}, v{vT+1}")
    A("s_waitcnt lgkmcnt(0)")
    srd(A, sX, 4, X_BYTES)
    srd(A, sWA, 6, W_BYTES)
    srd(A, sWB, sP, W_BYTES)
    srd(A, sWS, sP + 2, WS_USED)
    srd(A, sOUT, sDBG, OUT_BYTES)
    A(f"s_mov_b32 s{sDBG}, s{sDBG+2}")
    A(f"s_and_b32 s{sDBG+1}, s{sDBG+3}, 0xffff")
    A(f"s_mov_b32 s{sDBG+2}, 256")
    A(f"s_mov_b32 s{sDBG+3}, 0x20000")
    A(f"s_cmp_eq_u32 s{sCT}, 15")
    A("s_cbranch_scc1 L_nodma")
    A(f"s_cmp_lt_u32 s{sW}, 4")
    A("s_cbranch_scc1 L_nodma")
    for b in range(3):
        for p in range(8):
            g_dma(A, b, p)
    A(f"s_cmp_ge_u32 s{sCT}, 10")
    A("s_cbranch_scc1 L_g1n")
    A("s_branch L_g1t")
    A.label("L_nodma")
    A(f"s_or_b32 s{sT0}, s2, s{sW}")
    A(f"s_cmp_lg_u32 s{sT0}, 0")
    A("s_cbranch_scc1 L_nonce_done")
    A(f"s_memrealtime s[{sT4}:{sT5}]")
    A("s_waitcnt lgkmcnt(0)")
    A(f"s_or_b32 s{sT0}, s{sT4}, 1")
    A(f"v_mov_b32 v{vT}, s{sT0}")
    A(f"v_mov_b32 v{vT+1}, 0")
    A("s_mov_b64 exec, 1")
    A(f"buffer_store_dword v{vT}, v{vT+1}, s[{sDBG}:{sDBG+3}], 0 offen sc1")
    A("s_mov_b64 exec, -1")
    A.label("L_nonce_done")
    setup_phase1_reads(A)
    setup_phase2(A)
    A.stamp("issued")
    A(f"s_cmp_eq_u32 s{sCT}, 15")
    A("s_cbranch_scc1 L_spare")
    A(f"s_cmp_ge_u32 s{sCT}, 10")
    A("s_cbranch_scc1 L_vtile")
    if prof:
        A.stamps += ["blk0 landed", "gemm0", "epi0", "gemm1", "epi1"]
        if EXP.get("stampB"):
            A.stamps += ["B10", "B12", "B14", "B16"]
    gemm(A, True, "t")
    A("s_branch L_attn")
    A.label("L_vtile")
    gemm(A, False, "n")
    A.label("L_attn")
    A.vm_q, A.lds_q = [], []
    A("s_barrier")
    A.stamp("attn start")
    if EXP.get("prio") == 1:
        A(f"s_cmp_lt_u32 s{sW}, 4")
        A("s_cbranch_scc1 L_prio_done")
        A("s_setprio 1")
        A.label("L_prio_done")
    rd_k01(A, 0)
    rd_k2(A, 0)
    dma_chunk(A, 3)
    pattern_fill(A)
    b_consts(A)
    A.lds_wait_all()
    mf16(A, SA, K01, Q01, "0")
    mf8(A, SA, K2, Q2, v(SA, 16))
    A("s_nop 7")
    A("s_nop 5")
    max16(A, vT, SA, True)
    cross_half_max(A, vT, vT + 1)
    for i in range(16):
        A(f"v_sub_f32 v{NEGM+i}, 0, v{vT}")
    A("s_nop 1")
    mf16(A, SA, K01, Q01, v(NEGM, 16))
    mf8(A, SA, K2, Q2, v(SA, 16))
    A("s_barrier")
    rd_k01(A, 1)
    rd_k2(A, 1)
    rd_v(A, 0, 0)
    A("s_nop 7")
    A("s_nop 3")
    NT = 64
    sched = {}
    def at(t, half, fn):
        sched.setdefault((t, half), []).append(fn)
    fb_items = [(vFL, vF3, F1B, None), (vFL2, vF4, F1A, None)]
    pos = {}
    def issue(name, items):
        def f(A):
            pos[name] = poll_issue(A, items, name)
        return f
    at(13, 0, issue("f1b", fb_items))
    pre_barrier = {22: lambda A: poll_check(A, fb_items, pos["f1b"], "f1b"),
                   54: lambda A: poll_check(A, fo_items, pos["fb"], "fb")}
    at(22, 1, lambda A: A.vm(f"buffer_load_dword v{vG}, v{vGA}, {WS}, s{sGOFF} offen sc1", "g"))
    for i, f in enumerate(b_load_items()):
        at(25 + i // 2, i % 2, f)
    at(34, 1, b_unit)
    at(40, 0, lambda A: publish(A, sPUB, FLAGB, "stb"))
    fo_items = [(vFL, vFA, FLAGB, sFLG)]
    at(48, 0, issue("fb", fo_items))
    for k in range(10):
        at(55 + k // 2, k % 2, lambda A, k=k: oc_load(A, 1, k))
    for st in range(3):
        for p in range(3):
            i = 3 * st + p
            at(42 + i // 2, i % 2, lambda A, st=st, p=p: dma_w_piece(A, 1, st, p))
    for st in range(3, 5):
        for p in range(3):
            i = 3 * (st - 3) + p
            at(57 + i // 2, 1 - i % 2, lambda A, st=st, p=p: dma_w_piece(A, 1, st, p))
    for c in range(2, NCH - 2):
        for p in range(3):
            at(TPC * c - 1 + p // 2, 1 if p % 2 == 0 else 0, lambda A, c=c, p=p: dma_chunk_piece(A, c + 2, p))
    for t in range(NT):
        cur = SA if t % 2 == 0 else SB
        nxt = SB if t % 2 == 0 else SA
        if (t == 32 and not EXP.get("stampB")) or (EXP.get("stampB") and t in (21, 24)):
            A.stamp("t%d" % t)
        if t % TPC == TPC - 2 and t + 2 < NT:
            c = (t + 2) // TPC
            if c == 1:
                A.vm_wait(("c", 3))
            A.vm_wait(("c", c))
            if t in pre_barrier:
                pre_barrier[t](A)
            A("s_barrier")
            if c == 1:
                with Wave0(A, "pubb"):
                    publish(A, sF1, F1B)
        if EXP.get("prio") == 2 and t == 55:
            A(f"s_cmp_lt_u32 s{sW}, 4")
            A("s_cbranch_scc1 L_prio_done")
            A("s_setprio 1")
            A.label("L_prio_done")
        if EXP.get("prio") == 3 and t % 8 == 7:
            A(f"s_lshr_b32 s{sT0}, s{sW}, 2")
            A(f"s_cmp_eq_u32 s{sT0}, {(t // 8) % 2}")
            A(f"s_cbranch_scc1 L_prio_a{t}")
            A("s_setprio 0")
            A(f"s_branch L_prio_b{t}")
            A.label(f"L_prio_a{t}")
            A("s_setprio 1")
            A.label(f"L_prio_b{t}")
        if EXP.get("xbar") and t == EXP["xbar"]:
            A("s_barrier")
        if t == 63:
            A.vm_wait(("w", 1, 4))
        for f in sched.get((t, 0), []):
            f(A)
        if t + 1 < NT:
            A.lds_wait(("k01", t + 1))
            mf16(A, nxt, K01, Q01, "0" if EXP.get("m0") else v(NEGM, 16))
            if t + 2 < NT:
                rd_k01(A, t + 2)
        exps(A, cur, 0)
        if t > 0:
            A.lds_wait(("v", t - 1, 1))
            mf16(A, O, V1, P + 4, v(O, 16))
        rd_v(A, t, 1)
        exps(A, cur, 1)
        for f in sched.get((t, 1), []):
            f(A)
        if t + 1 < NT:
            A.lds_wait(("k2", t + 1))
            mf8(A, nxt, K2, Q2, v(nxt, 16))
            if t + 2 < NT:
                rd_k2(A, t + 2)
        exps(A, cur, 2)
        A.lds_wait(("v", t, 0))
        mf16(A, O, V0, P, "0" if t == 0 else v(O, 16))
        if t + 1 < NT:
            rd_v(A, t + 1, 0)
        exps(A, cur, 3)
    A.lds_wait(("v", NT - 1, 1))
    A("s_nop 1")
    mf16(A, O, V1, P + 4, v(O, 16))
    A(f"v_add_u32 v{vT+5}, 0x10000, v{vWR}")
    A(f"v_add_u32 v{vT+6}, 0x20000, v{vWR}")
    A(f"v_mov_b32 v{vT+3}, {hex(f32bits(BIG))}")
    A("s_nop 7")
    A("s_nop 3")
    A.stamp("loop end")
    row_sum(A, O)
    A(f"v_mul_f32 v{vT+2}, 0, v{O}")
    for i in range(1, 12):
        A(f"v_fma_f32 v{vT+2}, v{O+i}, 0, v{vT+2}")
    A(f"v_add_f32 v{vT+2}, v{vT+2}, v{vT+1}")
    A(f"v_cmp_lt_f32 vcc, v{vT+2}, v{vT+3}")
    A("s_nop 4")
    A("s_cmp_eq_u64 vcc, exec")
    A("s_cbranch_scc0 L_fallback")
    A.label("L_finish")
    A.vm_wait("g")
    finish_tile(A, O, vG, False, vOST, sQ0, 0, "sta")
    A(f"v_add_u32 v{vT+5}, 0x10000, v{vWR}")
    A(f"v_add_u32 v{vT+6}, 0x20000, v{vWR}")
    A("s_barrier")
    A.stamp("ring free") if not EXP.get("stampB") else None
    wa = [(st, p) for st in range(2) for p in range(3)]

    def hook_b(k, kg):
        if k < 6:
            st, p = wa[k]
            dma_w_piece(A, 0, st, p)
        if k == EXP.get("pubk", 1):
            publish(A, sPUB, FLAGA, "sta")
    outproj(A, 1, True, hook_b)
    A.stamp("b part") if not EXP.get("stampB") else None
    A("s_barrier")
    for st in range(2, 5):
        for p in range(3):
            dma_w_piece(A, 0, st, p)
    fa_items = [(vFL, vFA, FLAGA, sFLG)]
    pfa = poll_issue(A, fa_items, "fa")
    poll_check(A, fa_items, pfa, "fa")
    A("s_barrier")
    A.stamp("flags a") if not EXP.get("stampB") else None
    for k in range(10):
        oc_load(A, 0, k)
    A.vm_wait(("w", 0, 4))
    A("s_barrier")
    outproj(A, 0, False)
    A.stamp("a part") if not EXP.get("stampB") else None
    A(f"s_and_b32 s{sT0}, s{sW}, 3")
    A(f"s_mul_i32 s{sT0}, s{sT0}, 5120")
    A(f"v_add_u32 v{vT}, s{sT0}, v{vL16}")
    A(f"s_cmp_eq_u32 s{sKG}, 0")
    A("s_cbranch_scc1 L_red_a")
    A("s_nop 5")
    for nt in range(5):
        A(f"ds_write_b128 v{vT}, {v(ACC+4*nt,4)} offset:{nt*1024}")
    A("s_waitcnt lgkmcnt(0)")
    A("s_barrier")
    if prof:
        A.stamp("", len(A.stamps))
        A.stamp_flush(0, sWS, PROF, vT + 2)
    A("s_endpgm")
    A.label("L_red_a")
    A("s_barrier")
    A.lds_q = []
    for nt in range(5):
        A.lds(f"ds_read_b128 {v(WF+4*nt,4)}, v{vT} offset:{nt*1024}", ("r", nt))
    for nt in range(5):
        A.lds_wait(("r", nt))
        for i in range(4):
            A(f"v_add_f32 v{ACC+4*nt+i}, v{ACC+4*nt+i}, v{WF+4*nt+i}")
        A(f"v_cvt_pk_bf16_f32 v{ACC+4*nt}, v{ACC+4*nt}, v{ACC+4*nt+1}")
        A(f"v_cvt_pk_bf16_f32 v{ACC+4*nt+1}, v{ACC+4*nt+2}, v{ACC+4*nt+3}")
        A.vm(f"buffer_store_dwordx2 {v(ACC+4*nt,2)}, v{vST}, s[{sOUT}:{sOUT+3}], s{sOUTO} offen offset:{nt*32}{EXP.get('outst','')}", "st")
    A.stamp("end")
    if prof and EXP.get("dbg"):
        with Wave0(A, "dbgout"):
            A(f"v_subrev_u32 v{vT}, s{sNONCE}, v{A.PROF_V}")
            A(f"v_subrev_u32 v{vT+1}, 16, v{vL}")
            A(f"v_lshlrev_b32 v{vT+1}, 2, v{vT+1}")
            if EXP["dbg"] == 2:
                A(f"v_sub_u32 v{vT}, 0x100000, v{vT}")
            A("s_mov_b32 exec_lo, 0xfffe0000")
            A("s_mov_b32 exec_hi, 0")
            A(f"buffer_atomic_umax v{vT}, v{vT+1}, s[{sDBG}:{sDBG+3}], 0 offen")
            A("s_mov_b64 exec, -1")
    A.stamp_flush(0, sWS, PROF, vT)
    A("s_endpgm")
    fallback(A)
    spare(A)
    A.label("L_end")
    A("s_endpgm")
    kernel_footer(A, NAME, NV, 96)
    gen.stamps = getattr(A, "stamps", [])
    return A.text()

if __name__ == "__main__":
    print(gen())
```

```python
from asmlib import *
from layout2 import *

NAME = "gated_mix__softmax_full_mha__sliding_local_dilated__prompt_kernel"
EXP = {}
STAGE, NST, NB = 32768, 5, 20
SLOT = CHB
NSLOT = 4
TPC = CH // 32
NCH = S // CH
ONES = 4 * SLOT
PAT_UNITS = 672
WBASE = ONES + PAT_UNITS * 16
WSTG = 20480
LDS_BYTES = 163840
WB_OFF = [WBASE, WBASE + WSTG, WBASE + 2 * WSTG, 0, SLOT]
WA_OFF = [2 * SLOT, 3 * SLOT, WBASE, WBASE + WSTG, WBASE + 2 * WSTG]
assert WBASE + 3 * WSTG <= LDS_BYTES
BIG = 2.0 ** 64
SPIN_MAX = 1 << 16
sWS, sOUT = 8, 12
sW, sNONCE = 16, 17
sH, sQB, sPA, sLDSW, sLDSW2, sWSRC, sOCB, sFLG, sPUB, sOUTO, sKG, sQ0, sBT, sQT = range(18, 32)
sT0, sT1, sT2, sT3, sT4, sT5 = range(32, 38)
sM = 38
sLO20 = 40
sCNT = 42
sP2L = 43
sDBG = 44
sBA = 48
sVH = 57
sX, sWA, sWB = 60, 64, 68
sRB, sCT, sMH, sNH, sXOFF, sWOFF, sLDS1, sCT5, sTP, sB16, sQS, sGI = range(72, 84)
sQOFF, sQOFF2, sGOFF, sF1 = 88, 89, 90, 91
sP = 92
vL, vR, vHH = 1, 2, 3
vK01, vK2, vV = 4, 8, 12
vL16, vG, vGB, vFL = 16, 17, 18, 19
vT = 20
SA, SB, NEGM, O, P = 28, 44, 60, 76, 92
Q01, Q2, K01, K2, V0, V1 = 100, 104, 108, 112, 116, 120
BQ01, BQ2, BK01, BK2, BKP01, BKP2 = 124, 128, 132, 136, 140, 144
BV0, BV1, BVP, BS0, BS1, BO, BP = 148, 152, 156, 160, 176, 192, 208
vBA = 220
vW0, vW1, vW2, vOC, vWR, vST, vFA = 225, 226, 227, 228, 229, 230, 231
vF1, vF2, vF3, vF4 = 232, 233, 234, 241
vFL2 = 235
vQA, vQA2, vGA = 236, 237, 238
vOST = 252
vXD, vWD = 242, 243
vCB, vCS = 244, 247
vCT = 250
NV = 256
OCB, OCA, ACC, WF = 124, 164, 204, 28
G_ACC = 124
G_F = 28
G_P = 188
vA16 = 76
vXR, vWR1 = 106, 118
WS = f"s[{sWS}:{sWS+3}]"


def st1():
    return " sc1"


def publish(A, soff_reg, base, tag=None):
    if tag is not None:
        A.vm_wait(tag)
    A(f"v_mov_b32 v{vT}, s{sNONCE}")
    A(f"v_mov_b32 v{vT+1}, 0")
    A(f"s_add_u32 s{sT0}, s{soff_reg}, {base}")
    A("s_mov_b64 exec, 1")
    A.vm(f"buffer_store_dword v{vT}, v{vT+1}, {WS}, s{sT0} offen sc1", "pub")
    A("s_mov_b64 exec, -1")


class Wave0:
    def __init__(self, A, name):
        self.A, self.name = A, name
    def __enter__(self):
        A = self.A
        A(f"s_cmp_lg_u32 s{sW}, 0")
        A(f"s_cbranch_scc1 L_w0_{self.name}")
        self.saved = (list(A.vm_q), A.vm_count)
    def __exit__(self, *a):
        A = self.A
        A.vm_q, A.vm_count = self.saved
        A.label(f"L_w0_{self.name}")


def _poll_loads(A, items):
    for (vdst, voff, base, soff_reg) in items:
        if soff_reg is None:
            A(f"s_mov_b32 s{sT0}, {base}")
        else:
            A(f"s_add_u32 s{sT0}, s{soff_reg}, {base}")
        A(f"buffer_load_dword v{vdst}, v{voff}, {WS}, s{sT0} offen sc1")


def poll_issue(A, items, name):
    with Wave0(A, name + "_i"):
        _poll_loads(A, items)
    return A.vm_count


def poll_check(A, items, pos, name, inv=False, drain=False):
    def compare():
        for i, (vdst, _, _, _) in enumerate(items):
            if i == 0:
                A(f"v_cmp_eq_u32 vcc, s{sNONCE}, v{vdst}")
            else:
                A(f"v_cmp_eq_u32 s[{sT4}:{sT5}], s{sNONCE}, v{vdst}")
                A("s_nop 3")
                A(f"s_and_b64 vcc, vcc, s[{sT4}:{sT5}]")
        A("s_nop 3")
        A("s_cmp_eq_u64 vcc, exec")
    with Wave0(A, name + "_c"):
        A(f"s_waitcnt vmcnt({A.vm_count - pos})")
        compare()
        A(f"s_cbranch_scc1 L_{name}_ok")
        A(f"s_mov_b32 s{sCNT}, 0")
        A.label(f"L_{name}_spin")
        A("s_sleep 2")
        _poll_loads(A, items)
        A(f"s_add_u32 s{sCNT}, s{sCNT}, 1")
        A(f"s_cmp_ge_u32 s{sCNT}, {SPIN_MAX}")
        A(f"s_cbranch_scc1 L_{name}_ok")
        A("s_waitcnt vmcnt(0)")
        compare()
        A(f"s_cbranch_scc0 L_{name}_spin")
        A.label(f"L_{name}_ok")
        if inv:
            A("buffer_inv sc1")
        if drain:
            A("s_waitcnt vmcnt(0)")


def nonce_issue(A):
    A(f"v_mov_b32 v{vT}, 0")
    A.vm(f"buffer_load_dword v{vFL}, v{vT}, s[{sDBG}:{sDBG+3}], 0 offen sc1", "nonce")


def nonce_check(A, name):
    A.vm_wait("nonce")
    A("s_nop 0")
    A(f"v_readfirstlane_b32 s{sNONCE}, v{vFL}")
    A("s_nop 3")
    A(f"s_cmp_lg_u32 s{sNONCE}, 0")
    A(f"s_cbranch_scc1 L_{name}_ok")
    A(f"s_mov_b32 s{sCNT}, 0")
    A.label(f"L_{name}_spin")
    A("s_sleep 1")
    A(f"v_mov_b32 v{vT}, 0")
    A(f"buffer_load_dword v{vFL}, v{vT}, s[{sDBG}:{sDBG+3}], 0 offen sc1")
    A(f"s_add_u32 s{sCNT}, s{sCNT}, 1")
    A(f"s_cmp_ge_u32 s{sCNT}, {SPIN_MAX}")
    A(f"s_cbranch_scc1 L_{name}_ok")
    A("s_waitcnt vmcnt(0)")
    A(f"v_readfirstlane_b32 s{sNONCE}, v{vFL}")
    A("s_nop 3")
    A(f"s_cmp_eq_u32 s{sNONCE}, 0")
    A(f"s_cbranch_scc1 L_{name}_spin")
    A.label(f"L_{name}_ok")


def g_dma(A, b, p):
    kb, st, t = b % 10, b % NST, p & 3
    A(f"s_add_u32 m0, s{sLDS1}, {st*STAGE + (p >> 2)*16384 + 4096*t}")
    if p < 4:
        A(f"s_add_u32 s{sT0}, s{sXOFF}, {kb*128 + t*40960}")
        A.vm(f"buffer_load_dwordx4 v{vXD}, s[{sX}:{sX+3}], s{sT0} offen lds", ("d", b))
    else:
        sw = sWA if b < 10 else sWB
        A(f"s_add_u32 s{sT0}, s{sWOFF}, {(kb*64 + 16*t) * 3840}")
        A.vm(f"buffer_load_dwordx4 v{vWD}, s[{sw}:{sw+3}], s{sT0} offen lds", ("d", b))


def g_acc(mt, nt):
    return G_ACC + 32 * mt + 16 * nt


def g_frag(s_, i):
    return G_F + 16 * (s_ % 3) + 4 * i


def g_read_list(s_):
    b, ks = divmod(s_, 4)
    st = b % NST
    base, off = st >> 1, (st & 1) * STAGE
    out = []
    for mt in range(2):
        out.append(f"ds_read_b128 {v(g_frag(s_, mt),4)}, v{vXR + 3*ks + base} offset:{off + mt*4096}")
    for nt in range(2):
        for q in range(2):
            out.append(f"ds_read_b64_tr_b16 {v(g_frag(s_, 2+nt)+2*q,2)}, v{vWR1 + 3*nt + base} offset:{off + 16384 + ks*4096 + q*1024}")
    return out


def g_reads(A, s_):
    for ins in g_read_list(s_):
        A.lds(ins, ("f", s_))


def g_step(A, s_, last, tr, extra=None):
    b, ks = divmod(s_, 4)
    A.lds_wait(("f", s_))
    nxt = g_read_list(s_ + 2) if s_ + 2 <= last else []
    for i, (mt, nt) in enumerate(((0, 0), (0, 1), (1, 0), (1, 1))):
        d = g_acc(mt, nt)
        c = "0" if (s_ % 40 == 0) else v(d, 16)
        x, w = g_frag(s_, mt), g_frag(s_, 2 + nt)
        a, bb = (w, x) if tr else (x, w)
        A(f"v_mfma_f32_32x32x16_bf16 {v(d,16)}, {v(a,4)}, {v(bb,4)}, {c}")
        for ins in nxt[2*i:2*i+2]:
            A.lds(ins, ("f", s_ + 2))
        if extra and i == 3:
            extra()


def epi_prepare(A, isb, tr, n):
    A(f"s_lshl_b32 s{sTP}, s{sRB}, 7")
    A(f"s_lshl_b32 s{sT0}, s{sMH}, 6")
    A(f"s_add_u32 s{sTP}, s{sTP}, s{sT0}")
    if isb:
        A(f"s_lshr_b32 s{sTP}, s{sTP}, 1")
    if tr:
        A(f"s_cmp_lt_u32 s{sCT}, 5")
        A(f"s_mov_b32 s{sT1}, {QB if isb else QA}")
        A(f"s_cselect_b32 s{sB16}, s{sT1}, {KB if isb else KA}")
        A(f"s_mov_b32 s{sT1}, {hex(f32bits(QSCALE))}")
        A(f"s_cselect_b32 s{sQS}, s{sT1}, 1.0")
        A(f"s_lshl_b32 s{sT0}, s{sCT5}, 1")
        A(f"s_add_u32 s{sT0}, s{sT0}, s{sNH}")
        A(f"s_lshl_b32 s{sT0}, s{sT0}, 18")
        A(f"s_add_u32 s{sB16}, s{sB16}, s{sT0}")
        A(f"s_lshl_b32 s{sT0}, s{sTP}, 4")
        A(f"s_add_u32 s{sB16}, s{sB16}, s{sT0}")
        A(f"v_lshlrev_b32 v{vA16}, 15, v{vHH}")
        if isb:
            A(f"v_and_b32 v{vT}, 1, v{vR}")
            A(f"v_lshl_add_u32 v{vA16}, v{vT}, 14, v{vA16}")
            A(f"v_lshrrev_b32 v{vT}, 1, v{vR}")
            A(f"v_lshl_add_u32 v{vA16}, v{vT}, 4, v{vA16}")
        else:
            A(f"v_lshl_add_u32 v{vA16}, v{vR}, 4, v{vA16}")
        A(f"v_mov_b32 v{vT+2}, s{sQS}")
        A(f"v_mov_b32 v{vT+3}, s{sQS}")
    else:
        A(f"v_mul_u32_u24 v{vT+1}, 320, v{vHH}")
        A(f"s_lshl_b32 s{sT0}, s{sCT5}, 7")
        A(f"s_lshl_b32 s{sT1}, s{sNH}, 6")
        A(f"s_add_u32 s{sT0}, s{sT0}, s{sT1}")
        for nt in range(2):
            A(f"v_add_u32 v{vT+2}, s{sT0}, v{vR}")
            if nt:
                A(f"v_add_u32 v{vT+2}, 32, v{vT+2}")
            A(f"v_mul_u32_u24 v{vT+3}, 3277, v{vT+2}")
            A(f"v_lshrrev_b32 v{vT+3}, 16, v{vT+3}")
            A(f"v_mul_u32_u24 v{vT+4}, 20, v{vT+3}")
            A(f"v_sub_u32 v{vT+4}, v{vT+2}, v{vT+4}")
            A(f"v_mul_u32_u24 v{vT+3}, {VH}, v{vT+3}")
            A(f"v_lshl_add_u32 v{vT+3}, v{vT+4}, 4, v{vT+3}")
            A(f"v_add_u32 v{vA16+nt}, v{vT+3}, v{vT+1}")
        A(f"s_lshr_b32 s{sT0}, s{sTP}, 4")
        A(f"s_mul_i32 s{sT0}, s{sT0}, 640")
        A(f"s_add_u32 s{sB16}, s{sT0}, {VB if isb else VA}")


def epi_group(A, isb, tr, g, tag):
    reg = G_P + 4 * g
    mt, nt, u = g >> 2, (g >> 1) & 1, g & 1
    src = g_acc(mt, nt)
    if tr:
        for jj in range(2):
            a = src + 4 * (2 * u + jj)
            A(f"v_pk_mul_f32 {v(a,2)}, {v(a,2)}, v[{vT+2}:{vT+3}]")
            A(f"v_pk_mul_f32 {v(a+2,2)}, {v(a+2,2)}, v[{vT+2}:{vT+3}]")
            A(f"v_cvt_pk_bf16_f32 v{reg+2*jj}, v{a}, v{a+1}")
            A(f"v_cvt_pk_bf16_f32 v{reg+2*jj+1}, v{a+2}, v{a+3}")
        A(f"s_add_u32 s{sT1}, s{sB16}, {(4*nt + 2*u)*PLANE + mt*(256 if isb else 512)}")
        A("s_nop 0")
        A(f"v_permlane32_swap_b32 v{reg}, v{reg+2}")
        A(f"v_permlane32_swap_b32 v{reg+1}, v{reg+3}")
        A.vm(f"buffer_store_dwordx4 {v(reg,4)}, v{vA16}, {WS}, s{sT1} offen sc1", tag)
    else:
        if isb:
            for j in range(4):
                A(f"v_cvt_pk_bf16_f32 v{reg+j}, v{src+4*j+u}, v{src+4*j+u+2}")
            A(f"s_add_u32 s{sT1}, s{sB16}, {mt*640 + u*64*640}")
        else:
            for p in range(4):
                A(f"v_cvt_pk_bf16_f32 v{reg+p}, v{src+8*u+2*p}, v{src+8*u+2*p+1}")
            A(f"s_add_u32 s{sT1}, s{sB16}, {(2*mt + u)*640}")
        A.vm(f"buffer_store_dwordx4 {v(reg,4)}, v{vA16+nt}, {WS}, s{sT1} offen sc1", tag)


def acquire_items():
    return [(vFL, vF1, F1A, None), (vFL2, vF2, F1A, None)]


def p2_load_items():
    def q01(A):
        A.vm(f"buffer_load_dwordx4 {v(Q01,4)}, v{vQA}, {WS}, s{sQOFF} offen sc1", "q")
    def q2(A):
        A(f"v_mov_b32 v{Q2}, 0")
        A(f"v_mov_b32 v{Q2+1}, 0")
        A("s_mov_b32 exec_hi, 0")
        A.vm(f"buffer_load_dwordx2 {v(Q2,2)}, v{vQA2}, {WS}, s{sQOFF2} offen sc1", "q")
        A("s_mov_b32 exec_hi, -1")
    items = [lambda A, p=p: dma_chunk_piece(A, 0, p) for p in range(3)] + [q01, q2]
    items += [lambda A, c=c, p=p: dma_chunk_piece(A, c, p) for c in (1, 2) for p in range(3)]
    return items


def gemm(A, tr, n):
    A.vm_q, A.lds_q = [], []
    if EXP.get("tlb"):
        epi_prepare(A, False, tr, n)
        A(f"buffer_store_dword v{vL}, v{vA16}, {WS}, s{sB16} offen sc1")
    A("s_barrier")
    A.stamp("blk0 landed", 2)
    g_reads(A, 0)
    g_reads(A, 1)
    for s_ in range(40):
        b, ks = divmod(s_, 4)
        if ks == 2:
            A("s_barrier")
        if s_ == 22:
            nonce_issue(A)
        if s_ == 30:
            nonce_check(A, f"nonce0{n}")
        g_step(A, s_, 39, tr)
    A.stamp("gemm0", 3)
    slices = [int(ch) for ch in str(EXP.get("sl", "8"))]
    assert sum(slices) == 8
    PUB, POLL, CHK = EXP.get("pub", 12), EXP.get("poll", 15), 18
    for p in range(8):
        g_dma(A, 13, p)
    epi_prepare(A, False, tr, n)
    A("s_nop 7")
    A("s_nop 3")
    done = 0
    for b in range(10, 19):
        k = slices[b - 10] if b - 10 < len(slices) else 0
        for g in range(done, done + k):
            epi_group(A, False, tr, g, "sa")
        if k and done + k == 8:
            A.stamp("epi0", 4)
        done += k
        if b == PUB:
            A.vm_wait("sa")
        if b == CHK:
            poll_check(A, acquire_items(), pos_f1, f"f1{n}")
        if b + 1 >= 13:
            A.vm_wait(("d", b + 1))
        A("s_barrier")
        if EXP.get("stampB") and b in (10, 12, 14, 16):
            A.stamp("", {10: 7, 12: 8, 14: 9, 16: 10}[b])
        if b + 4 < NB:
            for p in range(8):
                g_dma(A, b + 4, p)
        if b == PUB:
            with Wave0(A, f"puba{n}"):
                publish(A, sF1, F1A)
        if b == POLL:
            pos_f1 = poll_issue(A, acquire_items(), f"f1{n}")
    for f in p2_load_items():
        f(A)
    A.stamp("gemm1", 5)
    A.stamp("epi1", 6)
    A.vm_wait("q")
    A("s_branch L_attn")
    A.label(f"L_g1{n}")
    A.vm_q, A.lds_q = [("d", 0)] * 8 + [("d", 1)] * 8 + [("d", 2)] * 8, []
    A.vm_wait(("d", 0))
    A("s_barrier")
    A.stamp("issued", 1)
    A.stamp("blk0 landed", 2)
    for p in range(8):
        g_dma(A, 3, p)
    for b in range(10):
        if b == 0:
            setup_phase1_reads(A)
        if 1 <= b <= 5:
            SETUP_P2[b - 1](A)
        if b == 6:
            if EXP.get("tlb"):
                epi_prepare(A, True, tr, n)
                A(f"buffer_store_dword v{vL}, v{vA16}, {WS}, s{sB16} offen sc1")
                A(f"s_lshl_b32 s{sT0}, s{sQ0}, 4")
                A(f"s_add_u32 s{sT0}, s{sT0}, {OC}")
                A(f"buffer_store_dword v{vL}, v{vOST}, {WS}, s{sT0} offen sc1")
                A(f"s_lshl_b32 s{sT0}, s{sBT}, 4")
                A(f"s_add_u32 s{sT0}, s{sT0}, {OC + 80*32768}")
                A(f"buffer_store_dword v{vL}, v{vOST+1}, {WS}, s{sT0} offen sc1")
            nonce_issue(A)
        if b == 8:
            nonce_check(A, f"nonce1{n}")
        A.vm_wait(("d", b + 1))
        A("s_barrier")
        if b + 4 <= 12:
            for p in range(8):
                g_dma(A, b + 4, p)
    A.stamp("gemm0", 3)
    A.stamp("epi0", 4)
    g_reads(A, 40)
    g_reads(A, 41)
    pend = []
    for s_ in range(40, 80):
        b, ks = divmod(s_, 4)
        if ks == 2 and b + 1 < NB:
            if b + 1 <= 12:
                A.vm_wait(("d", b + 1))
            A("s_barrier")
            if EXP.get("stampB") and b in (10, 12, 14, 16):
                A.stamp("", {10: 7, 12: 8, 14: 9, 16: 10}[b])
            if b == 18:
                pend = p2_load_items()
        def extra():
            for _ in range(2):
                if pend:
                    pend.pop(0)(A)
        g_step(A, s_, 79, tr, extra)
    assert not pend
    A.stamp("gemm1", 5)
    epi_prepare(A, True, tr, n)
    A("s_nop 7")
    A("s_nop 3")
    for g in range(8):
        epi_group(A, True, tr, g, "sb")
    A.stamp("epi1", 6)
    A.vm_wait("q")


def spare(A):
    sWO, sG = sWA, sWB
    A.label("L_spare")
    A.vm_q, A.lds_q = [], []
    A("s_load_dwordx2 s[4:5], s[0:1], 16")
    A("s_load_dwordx2 s[6:7], s[0:1], 40")
    A(f"s_load_dwordx2 s[{sP}:{sP+1}], s[0:1], 48")
    A("s_waitcnt lgkmcnt(0)")
    A(f"s_cmp_lt_u32 s{sRB}, 8")
    A("s_cbranch_scc1 L_sp_a")
    A("s_mov_b32 s4, s6")
    A("s_mov_b32 s5, s7")
    A.label("L_sp_a")
    srd(A, sWO, 4, WO_BYTES)
    srd(A, sG, sP, 1280)
    A(f"s_and_b32 s{sT1}, s{sRB}, 7")
    A(f"s_mul_i32 s{sT1}, s{sT1}, {80*1280}")
    A(f"s_lshl_b32 s{sLDS1}, s{sW}, 10")
    A(f"s_add_u32 s{sT1}, s{sT1}, s{sLDS1}")
    for t in range(13):
        if t == 12:
            A(f"s_cmp_ge_u32 s{sW}, 4")
            A("s_cbranch_scc1 L_sp_dma_done")
        A(f"s_add_u32 m0, s{sLDS1}, {8192*t}")
        A(f"s_add_u32 s{sT0}, s{sT1}, {8192*t}")
        A(f"buffer_load_dwordx4 v{vL16}, s[{sWO}:{sWO+3}], s{sT0} offen lds")
    A.label("L_sp_dma_done")
    XG, GG = 28, 68
    A(f"v_lshrrev_b32 v{vT+1}, 2, v{vL}")
    A(f"s_lshl_b32 s{sT0}, s{sW}, 4")
    A(f"v_add_u32 v{vT+1}, s{sT0}, v{vT+1}")
    A(f"v_and_b32 v{vT+2}, 3, v{vL}")
    A(f"v_lshlrev_b32 v{vT+2}, 4, v{vT+2}")
    A(f"v_mul_u32_u24 v{vT+3}, 1280, v{vT+1}")
    A(f"v_add_u32 v{vT+3}, v{vT+3}, v{vT+2}")
    A(f"v_mov_b32 v{vT+4}, 0")
    for half in range(2):
        for i in range(10):
            A(f"buffer_load_dwordx4 {v(XG+4*i,4)}, v{vT+3}, s[{sX}:{sX+3}], s{sXOFF} offen offset:{(10*half+i)*64}")
            A(f"buffer_load_dwordx4 {v(GG+4*i,4)}, v{vT+2}, s[{sG}:{sG+3}], 0 offen offset:{(10*half+i)*64}")
        A("s_waitcnt vmcnt(0)")
        for i in range(40):
            A(f"v_dot2_f32_bf16 v{vT+4}, v{XG+i}, v{GG+i}, v{vT+4}")
    A("s_nop 2")
    A(f"v_add_f32_dpp v{vT+4}, v{vT+4}, v{vT+4} quad_perm:[1,0,3,2] row_mask:0xf bank_mask:0xf")
    A("s_nop 1")
    A(f"v_add_f32_dpp v{vT+4}, v{vT+4}, v{vT+4} quad_perm:[2,3,0,1] row_mask:0xf bank_mask:0xf")
    A(f"v_mul_f32 v{vT+4}, {hex(f32bits(-LOG2E))}, v{vT+4}")
    A(f"v_exp_f32 v{vT+4}, v{vT+4}")
    A("s_nop 0")
    A(f"v_add_f32 v{vT+4}, 1.0, v{vT+4}")
    A(f"v_rcp_f32 v{vT+4}, v{vT+4}")
    A(f"s_lshl_b32 s{sT0}, s{sRB}, 9")
    A(f"s_add_u32 s{sT0}, s{sT0}, {GATE}")
    A(f"v_lshlrev_b32 v{vT+1}, 2, v{vT+1}")
    A("s_mov_b32 exec_lo, 0x11111111")
    A("s_mov_b32 exec_hi, 0x11111111")
    A(f"buffer_store_dword v{vT+4}, v{vT+1}, {WS}, s{sT0} offen sc1")
    A("s_mov_b64 exec, -1")
    A("s_waitcnt vmcnt(0)")
    A("s_barrier")
    A(f"v_bfe_u32 v{vT+1}, v{vL}, 2, 2")
    A(f"v_mul_u32_u24 v{vT+1}, 1280, v{vT+1}")
    A(f"v_lshrrev_b32 v{vT+2}, 4, v{vL}")
    A(f"v_lshl_add_u32 v{vT+1}, v{vT+2}, 5, v{vT+1}")
    A(f"v_and_b32 v{vT+2}, 3, v{vL}")
    A(f"v_lshl_add_u32 v{vT+1}, v{vT+2}, 3, v{vT+1}")
    A(f"s_mul_i32 s{sT3}, s{sRB}, {10*10240}")
    A(f"s_add_u32 s{sT3}, s{sT3}, {WOT}")
    A(f"s_mov_b32 s{sT1}, s{sW}")
    A.label("L_sp_loop")
    A(f"s_mul_hi_u32 s{sT2}, s{sT1}, 0x1999999a")
    A(f"s_mul_i32 s{sT0}, s{sT2}, 10")
    A(f"s_sub_u32 s{sT0}, s{sT1}, s{sT0}")
    A(f"s_mul_hi_u32 s{sCNT}, s{sT2}, 0x33333334")
    A(f"s_mul_i32 s{sT4}, s{sCNT}, 5")
    A(f"s_sub_u32 s{sT4}, s{sT2}, s{sT4}")
    A(f"s_mul_i32 s{sCNT}, s{sCNT}, 40")
    A(f"s_lshl_b32 s{sT5}, s{sT4}, 3")
    A(f"s_cmp_ge_u32 s{sT4}, 2")
    A(f"s_cselect_b32 s{sM}, 4, 0")
    A(f"s_add_u32 s{sT5}, s{sT5}, s{sM}")
    A(f"s_cmp_eq_u32 s{sT4}, 4")
    A(f"s_cselect_b32 s{sT5}, 16, s{sT5}")
    A(f"s_cselect_b32 s{sM}, 20, 4")
    A(f"s_add_u32 s{sT5}, s{sT5}, s{sCNT}")
    A(f"s_mul_i32 s{sT4}, s{sT5}, 1280")
    A(f"s_mul_i32 s{sM}, s{sM}, 1280")
    A(f"s_lshl_b32 s{sT5}, s{sT0}, 7")
    A(f"s_add_u32 s{sT4}, s{sT4}, s{sT5}")
    A(f"v_add_u32 v{vT+3}, s{sT4}, v{vT+1}")
    A(f"v_add_u32 v{vT+4}, s{sM}, v{vT+3}")
    A(f"ds_read_b64_tr_b16 v[{XG}:{XG+1}], v{vT+3}")
    A(f"ds_read_b64_tr_b16 v[{XG+2}:{XG+3}], v{vT+4}")
    A(f"s_mul_i32 s{sT4}, s{sT2}, 10240")
    A(f"s_lshl_b32 s{sT5}, s{sT0}, 10")
    A(f"s_add_u32 s{sT4}, s{sT4}, s{sT5}")
    A(f"s_add_u32 s{sT4}, s{sT4}, s{sT3}")
    A("s_waitcnt lgkmcnt(0)")
    A(f"buffer_store_dwordx4 {v(XG,4)}, v{vL16}, {WS}, s{sT4} offen sc1")
    A(f"s_add_u32 s{sT1}, s{sT1}, 8")
    A(f"s_cmp_lt_u32 s{sT1}, 100")
    A("s_nop 1")
    A("s_cbranch_scc1 L_sp_loop")
    nonce_issue(A)
    nonce_check(A, "noncesp")
    A("s_waitcnt vmcnt(0)")
    A("s_barrier")
    A.vm_q = []
    with Wave0(A, "pubsp"):
        publish(A, sF1, F1A)
    pos = poll_issue(A, acquire_items(), "f1sp")
    poll_check(A, acquire_items(), pos, "f1sp")
    A("s_barrier")
    A.vm_q = []
    for f in p2_load_items():
        f(A)
    A.vm_wait("q")
    for i in (2, 3, 4, 5, 6) + ((7, 8, 9, 10) if EXP.get("stampB") else ()):
        A.stamp("", i)
    A("s_branch L_attn")


def mf16(A, d, a, b, c):
    A(f"v_mfma_f32_32x32x16_bf16 {v(d,16)}, {v(a,4)}, {v(b,4)}, {c}")


def mf8(A, d, a, b, c):
    A(f"v_mfma_f32_32x32x8_bf16 {v(d,16)}, {v(a,2)}, {v(b,2)}, {c}")


def dma_chunk_piece(A, c, t):
    slot = c % NSLOT
    A(f"s_add_u32 m0, s{sLDSW}, {slot*SLOT + 1024*t}")
    A(f"v_mad_u32_u24 v{vCT}, v{vCS+t}, {c}, v{vCB+t}")
    if t == 2:
        A("s_mov_b32 exec_hi, 0xffff")
    A.vm(f"buffer_load_dwordx4 v{vCT}, {WS}, 0 offen sc1 lds", ("c", c))
    if t == 2:
        A("s_mov_b32 exec_hi, -1")


def dma_chunk(A, c):
    for t in range(3):
        dma_chunk_piece(A, c, t)


def dma_w_piece(A, part, st, t):
    off = (WA_OFF if part == 0 else WB_OFF)[st]
    A(f"s_add_u32 m0, s{sLDSW2}, {off + 1024*t}")
    A(f"s_add_u32 s{sT0}, s{sWSRC}, {(part*80 + 16*st)*10240}")
    if t == 2:
        A("s_mov_b32 exec_hi, 0")
    A.vm(f"buffer_load_dwordx4 v{(vW0, vW1, vW2)[t]}, {WS}, s{sT0} offen sc1 lds", ("w", part, st))
    if t == 2:
        A("s_mov_b32 exec_hi, -1")


def rd_k01(A, t):
    if EXP.get('halfrd') and t % 2 == 1:
        return
    c, tt = t // TPC, t % TPC
    A.lds(f"ds_read_b128 {v(K01,4)}, v{vK01 + c % NSLOT} offset:{tt*512}", ("k01", t))


def rd_k2(A, t):
    if EXP.get('halfrd') and t % 2 == 1:
        return
    c, tt = t // TPC, t % TPC
    A.lds(f"ds_read_b64 {v(K2,2)}, v{vK2 + c % NSLOT} offset:{8192 + tt*512}", ("k2", t))


def rd_v(A, t, a):
    if EXP.get('halfrd') and t % 2 == 1:
        return
    c, tt = t // TPC, t % TPC
    A.lds(f"ds_read_b128 {v(V1 if a else V0,4)}, v{vV + c % NSLOT} offset:{(2*tt + a)*640}", ("v", t, a))


def exps(A, sreg, g, preg=P):
    for i in range(4):
        A(f"v_exp_f32 v{sreg+4*g+i}, v{sreg+4*g+i}")
    A(f"v_cvt_pk_bf16_f32 v{preg+2*g}, v{sreg+4*g}, v{sreg+4*g+1}")
    A(f"v_cvt_pk_bf16_f32 v{preg+2*g+1}, v{sreg+4*g+2}, v{sreg+4*g+3}")


def cross_half_max(A, reg, tmp):
    A(f"v_mov_b32 v{tmp}, v{reg}")
    A("s_nop 1")
    A(f"v_permlane32_swap_b32 v{reg}, v{tmp}")
    A("s_nop 1")
    A(f"v_max_f32 v{reg}, v{reg}, v{tmp}")


def max16(A, dst, src, first):
    if first:
        A(f"v_max3_f32 v{dst}, v{src}, v{src+1}, v{src+2}")
        rest = list(range(3, 16))
    else:
        rest = list(range(0, 16))
    while rest:
        if len(rest) >= 2:
            A(f"v_max3_f32 v{dst}, v{dst}, v{src+rest[0]}, v{src+rest[1]}")
            rest = rest[2:]
        else:
            A(f"v_max_f32 v{dst}, v{dst}, v{src+rest[0]}")
            rest = rest[1:]


def row_sum(A, oreg):
    A(f"v_mov_b32 v{vT}, v{oreg+8}")
    A(f"v_mov_b32 v{vT+1}, v{oreg+8}")
    A("s_nop 1")
    A(f"v_permlane32_swap_b32 v{vT}, v{vT+1}")


def finish_tile(A, oreg, gate, one_minus, vaddr, tok_sreg, chunk0, tag):
    A(f"v_rcp_f32 v{vT+2}, v{vT+1}")
    A(f"s_lshl_b32 s{sT0}, s{tok_sreg}, 4")
    A(f"s_add_u32 s{sT0}, s{sT0}, {OC + chunk0*32768}")
    if one_minus:
        A(f"v_sub_f32 v{vT}, 1.0, v{gate}")
        A(f"v_mul_f32 v{vT+2}, v{vT+2}, v{vT}")
    else:
        A(f"v_mul_f32 v{vT+2}, v{vT+2}, v{gate}")
    A(f"v_mov_b32 v{vT+3}, v{vT+2}")
    for i in range(0, 12, 2):
        A(f"v_pk_mul_f32 {v(oreg+i,2)}, {v(oreg+i,2)}, v[{vT+2}:{vT+3}]")
    for i in range(4):
        A(f"v_cvt_pk_bf16_f32 v{oreg+i}, v{oreg+2*i}, v{oreg+2*i+1}")
    A(f"v_cvt_pk_bf16_f32 v{oreg+8}, v{oreg+8}, v{oreg+9}")
    A(f"v_cvt_pk_bf16_f32 v{oreg+9}, v{oreg+10}, v{oreg+11}")
    A(f"v_permlane32_swap_b32 v{oreg}, v{oreg+2}")
    A(f"v_permlane32_swap_b32 v{oreg+1}, v{oreg+3}")
    A.vm(f"buffer_store_dwordx4 {v(oreg,4)}, v{vaddr}, {WS}, s{sT0} offen sc1", tag)
    A("s_mov_b32 exec_hi, 0")
    A.vm(f"buffer_store_dwordx2 {v(oreg+8,2)}, v{vaddr+2}, {WS}, s{sT0} offen sc1", tag)
    A("s_mov_b64 exec, -1")


def oc_load(A, part, k):
    reg = OCA if part == 0 else OCB
    A(f"s_add_u32 s{sT0}, s{sOCB}, {(part*80 + 4*k)*32768}")
    A.vm(f"buffer_load_dwordx4 {v(reg+4*k,4)}, v{vOC}, {WS}, s{sT0} offen sc1", ("oc", part, k))


def outproj(A, part, first, hook=None):
    offs = WA_OFF if part == 0 else WB_OFF
    reg = OCA if part == 0 else OCB
    for kg in range(2):
        if kg == 0:
            A(f"s_cmp_eq_u32 s{sKG}, 1")
            A(f"s_cbranch_scc1 L_op{part}_g1")
            saved = (list(A.vm_q), list(A.lds_q))
        else:
            A.label(f"L_op{part}_g1")
            A.vm_q, A.lds_q = list(saved[0]), list(saved[1])
        seq = [(k, nt) for k in range(10) for nt in range(5)]

        def rd(i):
            k, nt = seq[i]
            kk = 10 * kg + k
            off = offs[kk // 4] + (kk % 4) * 5120 + nt * 256
            areg = (vWR, vT + 5, vT + 6)[off >> 16]
            A.lds(f"ds_read_b128 {v(WF + (i % 8)*4,4)}, v{areg} offset:{off & 0xffff}", ("wf", i))

        LOOK = 5
        for i in range(LOOK):
            rd(i)
        for i, (k, nt) in enumerate(seq):
            if i + LOOK < len(seq):
                rd(i + LOOK)
            if nt == 0:
                A.vm_wait(("oc", part, k))
                if hook:
                    hook(k, kg)
            A.lds_wait(("wf", i))
            c = "0" if (first and k == 0) else v(ACC + 4*nt, 4)
            A(f"v_mfma_f32_16x16x32_bf16 {v(ACC+4*nt,4)}, {v(WF + (i % 8)*4,4)}, {v(reg+4*k,4)}, {c}")
        if kg == 0:
            end0 = (list(A.vm_q), list(A.lds_q))
            A(f"s_branch L_op{part}_done")
    A.label(f"L_op{part}_done")
    assert end0[0] == A.vm_q and end0[1] == A.lds_q


def keypos(kappa):
    return (kappa & 25) | ((kappa >> 1) & 1) << 2 | ((kappa >> 2) & 1) << 1


def band_mask(j, i, prev):
    m = 0
    for l in range(64):
        q, hh = l & 31, l >> 5
        key = keypos(8 * j + 4 * hh + i) - (32 if prev else 0)
        if 0 <= q - key <= 7:
            m |= 1 << l
    return m


def b_consts(A):
    A(f"v_cmp_eq_u32 vcc, 20, v{vR}")
    A(f"v_mov_b32 v{vT+6}, 0")
    A(f"v_mov_b32 v{vT+7}, 0x3f803f80")
    A(f"v_cndmask_b32 v{vT+6}, v{vT+6}, v{vT+7}, vcc")
    for base in (BV0, BV1, BVP):
        for i in range(4):
            A(f"v_mov_b32 v{base+i}, v{vT+6}")
    A(f"v_mov_b32 v{BQ2}, 0")
    A(f"v_mov_b32 v{BQ2+1}, 0")


def b_load_items():
    def mk(instr, pre=None, gate=False):
        def f(A):
            if gate:
                A(f"v_lshlrev_b32 v{vCT}, 1, v{vGA}")
                A.vm(instr.replace(f"v{vGA},", f"v{vCT},"), "b")
                return
            if pre:
                A(pre)
            A.vm(instr, "b")
            if pre:
                A("s_mov_b64 exec, -1")
        return f
    lo20 = f"s_mov_b64 exec, s[{sLO20}:{sLO20+1}]"
    return [
        mk(f"buffer_load_dwordx4 {v(BQ01,4)}, v{vBA}, {WS}, s{sBA} offen sc1"),
        mk(f"buffer_load_dwordx4 {v(BK01,4)}, v{vBA+2}, {WS}, s{sBA+2} offen sc1"),
        mk(f"buffer_load_dwordx2 {v(BK2,2)}, v{vBA+3}, {WS}, s{sBA+3} offen sc1"),
        mk(f"buffer_load_dwordx4 {v(BKP01,4)}, v{vBA+2}, {WS}, s{sBA+5} offen sc1"),
        mk(f"buffer_load_dwordx2 {v(BKP2,2)}, v{vBA+3}, {WS}, s{sBA+6} offen sc1"),
        mk(f"buffer_load_dword v{vGB}, v{vGA}, {WS}, s{sBA+8} offen sc1", None, True),
        mk(f"buffer_load_dwordx2 {v(BQ2,2)}, v{vBA+1}, {WS}, s{sBA+1} offen sc1", "s_mov_b32 exec_hi, 0"),
        mk(f"buffer_load_dwordx4 {v(BV0,4)}, v{vBA+4}, {WS}, s{sBA+4} offen sc1", lo20),
        mk(f"buffer_load_dwordx4 {v(BV1,4)}, v{vBA+4}, {WS}, s{sBA+4} offen offset:640 sc1", lo20),
        mk(f"buffer_load_dwordx4 {v(BVP,4)}, v{vBA+4}, {WS}, s{sBA+7} offen offset:640 sc1", lo20),
    ]


def b_unit(A):
    S0, S1 = BS0, BS1
    A.vm_wait("b")
    mf16(A, S0, BK01, BQ01, "0")
    mf16(A, S1, BKP01, BQ01, "0")
    mf8(A, S0, BK2, BQ2, v(S0, 16))
    mf8(A, S1, BKP2, BQ2, v(S1, 16))
    A(f"v_mov_b32 v{vT}, {hex(f32bits(-1e30))}")
    A(f"s_cmp_eq_u32 s{sQT}, 0")
    A(f"s_cselect_b32 s{sT3}, 0, -1")
    A("s_nop 7")
    A("s_nop 5")
    for j in range(4):
        for i in range(4):
            m = band_mask(j, i, False)
            A(f"s_mov_b32 s{sM}, {hex(m & 0xffffffff)}")
            A(f"s_mov_b32 s{sM+1}, {hex(m >> 32)}")
            A(f"v_cndmask_b32 v{S0+4*j+i}, v{vT}, v{S0+4*j+i}, s[{sM}:{sM+1}]")
    for i in range(4):
        m = band_mask(3, i, True)
        A(f"s_and_b32 s{sM}, s{sT3}, {hex(m & 0xffffffff)}")
        A(f"s_and_b32 s{sM+1}, s{sT3}, {hex(m >> 32)}")
        A(f"v_cndmask_b32 v{S1+12+i}, v{vT}, v{S1+12+i}, s[{sM}:{sM+1}]")
    max16(A, vT + 1, S0, True)
    A(f"v_max3_f32 v{vT+1}, v{vT+1}, v{S1+12}, v{S1+13}")
    A(f"v_max3_f32 v{vT+1}, v{vT+1}, v{S1+14}, v{S1+15}")
    cross_half_max(A, vT + 1, vT + 2)
    for r in list(range(S0, S0 + 16)) + list(range(S1 + 12, S1 + 16)):
        A(f"v_sub_f32 v{r}, v{r}, v{vT+1}")
    for g in range(4):
        exps(A, S0, g, BP)
    PP = BP + 8
    for i in range(4):
        A(f"v_exp_f32 v{S1+12+i}, v{S1+12+i}")
    A(f"v_mov_b32 v{PP}, 0")
    A(f"v_mov_b32 v{PP+1}, 0")
    A(f"v_cvt_pk_bf16_f32 v{PP+2}, v{S1+12}, v{S1+13}")
    A(f"v_cvt_pk_bf16_f32 v{PP+3}, v{S1+14}, v{S1+15}")
    A("s_nop 1")
    mf16(A, BO, BV0, BP, "0")
    mf16(A, BO, BV1, BP + 4, v(BO, 16))
    mf16(A, BO, BVP, PP, v(BO, 16))
    A("s_nop 7")
    A("s_nop 3")
    row_sum(A, BO)
    A("s_nop 1")
    finish_tile(A, BO, vGB, True, vOST + 1, sBT, 80, "stb")


def fallback(A):
    A.label("L_fallback")
    A("s_waitcnt vmcnt(0) lgkmcnt(0)")
    A(f"v_lshlrev_b32 v{vT+4}, 15, v{vHH}")
    A(f"v_lshl_add_u32 v{vT+4}, v{vR}, 4, v{vT+4}")
    A(f"v_lshlrev_b32 v{vT+5}, 4, v{vR}")
    A(f"v_mul_u32_u24 v{vT+6}, 320, v{vHH}")
    A(f"v_lshl_add_u32 v{vT+6}, v{vR}, 4, v{vT+6}")
    A(f"v_mov_b32 v{vT+7}, {hex(f32bits(-3.0e38))}")

    def tile_addr():
        A(f"s_lshl_b32 s{sT0}, s{sCNT}, 9")
        A(f"s_lshl_b32 s{sT1}, s{sPA}, 15")
        A(f"s_add_u32 s{sT1}, s{sT1}, s{sT0}")
        A(f"s_add_u32 s{sT1}, s{sT1}, {KA}")
        A(f"s_lshl_b32 s{sT2}, s{sP2L}, 15")
        A(f"s_add_u32 s{sT2}, s{sT2}, s{sT0}")
        A(f"s_and_b32 s{sT3}, s{sH}, 1")
        A(f"s_lshl_b32 s{sT3}, s{sT3}, 3")
        A(f"s_add_u32 s{sT2}, s{sT2}, s{sT3}")
        A(f"s_add_u32 s{sT2}, s{sT2}, {KA}")
        A(f"s_mul_i32 s{sT3}, s{sCNT}, 1280")
        A(f"s_add_u32 s{sT3}, s{sT3}, s{sVH}")
        A(f"s_add_u32 s{sT3}, s{sT3}, {VA}")

    A(f"s_mov_b32 s{sCNT}, 0")
    A.label("L_fb1")
    tile_addr()
    A(f"buffer_load_dwordx4 {v(K01,4)}, v{vT+4}, {WS}, s{sT1} offen sc1")
    A(f"buffer_load_dwordx2 {v(K2,2)}, v{vT+5}, {WS}, s{sT2} offen sc1")
    A("s_waitcnt vmcnt(0)")
    mf16(A, SA, K01, Q01, "0")
    mf8(A, SA, K2, Q2, v(SA, 16))
    A("s_nop 7")
    A("s_nop 7")
    max16(A, vT + 7, SA, False)
    A(f"s_add_u32 s{sCNT}, s{sCNT}, 1")
    A(f"s_cmp_lt_u32 s{sCNT}, 64")
    A("s_cbranch_scc1 L_fb1")
    cross_half_max(A, vT + 7, vT)
    for i in range(16):
        A(f"v_sub_f32 v{NEGM+i}, 0, v{vT+7}")
        A(f"v_mov_b32 v{O+i}, 0")
    A(f"v_cmp_eq_u32 vcc, 20, v{vR}")
    A(f"v_mov_b32 v{vT}, 0")
    A(f"v_mov_b32 v{vT+1}, 0x3f803f80")
    A(f"v_cndmask_b32 v{vT}, v{vT}, v{vT+1}, vcc")
    for i in range(4):
        A(f"v_mov_b32 v{V0+i}, v{vT}")
        A(f"v_mov_b32 v{V1+i}, v{vT}")
    A(f"s_mov_b32 s{sCNT}, 0")
    A.label("L_fb2")
    tile_addr()
    A(f"buffer_load_dwordx4 {v(K01,4)}, v{vT+4}, {WS}, s{sT1} offen sc1")
    A(f"buffer_load_dwordx2 {v(K2,2)}, v{vT+5}, {WS}, s{sT2} offen sc1")
    A(f"s_mov_b64 exec, s[{sLO20}:{sLO20+1}]")
    A(f"buffer_load_dwordx4 {v(V0,4)}, v{vT+6}, {WS}, s{sT3} offen sc1")
    A(f"buffer_load_dwordx4 {v(V1,4)}, v{vT+6}, {WS}, s{sT3} offen offset:640 sc1")
    A("s_mov_b64 exec, -1")
    A("s_waitcnt vmcnt(0)")
    mf16(A, SA, K01, Q01, v(NEGM, 16))
    mf8(A, SA, K2, Q2, v(SA, 16))
    A("s_nop 7")
    A("s_nop 7")
    for g in range(4):
        exps(A, SA, g)
    A("s_nop 1")
    mf16(A, O, V0, P, v(O, 16))
    mf16(A, O, V1, P + 4, v(O, 16))
    A(f"s_add_u32 s{sCNT}, s{sCNT}, 1")
    A(f"s_cmp_lt_u32 s{sCNT}, 64")
    A("s_cbranch_scc1 L_fb2")
    A("s_nop 7")
    A("s_nop 7")
    row_sum(A, O)
    A("s_nop 1")
    A("s_branch L_finish")


def setup_phase1_reads(A):
    A(f"v_lshrrev_b32 v{vT+2}, 1, v{vR}")
    A(f"v_and_b32 v{vT+2}, 7, v{vT+2}")
    A(f"v_xor_b32 v{vT+2}, v{vT+2}, v{vHH}")
    A(f"v_lshlrev_b32 v{vT+2}, 4, v{vT+2}")
    A(f"s_lshl_b32 s{sT0}, s{sMH}, 6")
    A(f"v_add_u32 v{vT+3}, s{sT0}, v{vR}")
    A(f"v_lshl_add_u32 v{vXR}, v{vT+3}, 7, v{vT+2}")
    for ks in range(1, 4):
        A(f"v_xor_b32 v{vXR+3*ks}, {ks*32}, v{vXR}")
    for ks in range(4):
        A(f"v_add_u32 v{vXR+3*ks+1}, 0x10000, v{vXR+3*ks}")
        A(f"v_add_u32 v{vXR+3*ks+2}, 0x20000, v{vXR+3*ks}")
    A(f"v_bfe_u32 v{vT+2}, v{vL}, 2, 2")
    A(f"v_lshl_add_u32 v{vT+3}, v{vHH}, 3, v{vT+2}")
    A(f"v_lshlrev_b32 v{vT+3}, 8, v{vT+3}")
    A(f"v_bfe_u32 v{vT+4}, v{vL}, 4, 1")
    A(f"v_lshlrev_b32 v{vT+4}, 5, v{vT+4}")
    A(f"v_add_u32 v{vT+3}, v{vT+3}, v{vT+4}")
    A(f"v_and_b32 v{vT+4}, 3, v{vL}")
    A(f"v_lshlrev_b32 v{vT+4}, 3, v{vT+4}")
    A(f"v_add_u32 v{vT+3}, v{vT+3}, v{vT+4}")
    for nt in range(2):
        A(f"s_lshl_b32 s{sT0}, s{sNH}, 1")
        A(f"s_add_u32 s{sT0}, s{sT0}, {nt}")
        A(f"v_xor_b32 v{vT+4}, s{sT0}, v{vT+2}")
        A(f"v_lshl_add_u32 v{vWR1+3*nt}, v{vT+4}, 6, v{vT+3}")
        A(f"v_add_u32 v{vWR1+3*nt+1}, 0x10000, v{vWR1+3*nt}")
        A(f"v_add_u32 v{vWR1+3*nt+2}, 0x20000, v{vWR1+3*nt}")


def setup_p2_0(A):
    A(f"s_lshl_b32 s{sF1}, s{sCT}, 4")
    A(f"s_add_u32 s{sF1}, s{sF1}, s{sRB}")
    A(f"s_lshl_b32 s{sF1}, s{sF1}, 2")
    A(f"s_and_b32 s{sT0}, s2, 7")
    A(f"s_lshl_b32 s{sT0}, s{sT0}, 2")
    A(f"s_lshr_b32 s{sT1}, s2, 3")
    A(f"s_and_b32 s{sT1}, s{sT1}, 3")
    A(f"s_add_u32 s{sH}, s{sT0}, s{sT1}")
    A(f"s_lshr_b32 s{sQB}, s2, 5")
    A(f"s_lshr_b32 s{sT0}, s{sH}, 1")
    A(f"s_mul_i32 s{sT0}, s{sT0}, 5")
    A(f"s_add_u32 s{sP2L}, s{sT0}, 2")
    A(f"s_and_b32 s{sT1}, s{sH}, 1")
    A(f"s_mul_i32 s{sT1}, s{sT1}, 3")
    A(f"s_add_u32 s{sPA}, s{sT0}, s{sT1}")
    A(f"s_mul_i32 s{sVH}, s{sH}, {VH}")
    A(f"s_mul_i32 s{sLDSW}, s{sW}, 2816")
    A(f"s_mul_i32 s{sLDSW2}, s{sW}, 2560")
    A(f"s_lshl_b32 s{sQ0}, s{sQB}, 8")
    A(f"s_lshl_b32 s{sT0}, s{sW}, 5")
    A(f"s_add_u32 s{sQ0}, s{sQ0}, s{sT0}")
    A(f"s_lshl_b32 s{sQT}, s{sQB}, 2")
    A(f"s_lshr_b32 s{sT0}, s{sW}, 1")
    A(f"s_add_u32 s{sQT}, s{sQT}, s{sT0}")
    A(f"s_and_b32 s{sT1}, s{sW}, 1")
    A(f"s_lshl_b32 s{sBT}, s{sQT}, 6")
    A(f"s_add_u32 s{sBT}, s{sBT}, s{sT1}")
    A(f"s_mov_b32 s{sLO20}, 0xfffff")
    A(f"s_mov_b32 s{sLO20+1}, 0xfffff")
    A(f"v_lshlrev_b32 v{vQA}, 15, v{vHH}")
    A(f"v_lshl_add_u32 v{vQA}, v{vR}, 4, v{vQA}")
    A(f"v_lshlrev_b32 v{vQA2}, 4, v{vR}")
    A(f"v_lshlrev_b32 v{vGA}, 2, v{vR}")
    A(f"s_lshl_b32 s{sT0}, s{sQ0}, 4")
    A(f"s_lshl_b32 s{sQOFF}, s{sPA}, 15")
    A(f"s_add_u32 s{sQOFF}, s{sQOFF}, s{sT0}")
    if QA:
        A(f"s_add_u32 s{sQOFF}, s{sQOFF}, {QA}")
    A(f"s_lshl_b32 s{sQOFF2}, s{sP2L}, 15")
    A(f"s_add_u32 s{sQOFF2}, s{sQOFF2}, s{sT0}")
    A(f"s_and_b32 s{sT1}, s{sH}, 1")
    A(f"s_lshl_b32 s{sT1}, s{sT1}, 3")
    A(f"s_add_u32 s{sQOFF2}, s{sQOFF2}, s{sT1}")
    if QA:
        A(f"s_add_u32 s{sQOFF2}, s{sQOFF2}, {QA}")
    A(f"s_lshl_b32 s{sGOFF}, s{sQ0}, 2")
    A(f"s_add_u32 s{sGOFF}, s{sGOFF}, {GATE}")


def setup_p2_1(A):
    A(f"s_and_b32 s{sT1}, s{sH}, 1")
    A(f"s_lshl_b32 s{sT1}, s{sT1}, 3")
    A(f"v_lshlrev_b32 v{vT}, 12, v{vHH}")
    A(f"v_lshl_add_u32 v{vT}, v{vR}, 4, v{vT}")
    A(f"v_lshlrev_b32 v{vT+1}, 4, v{vR}")
    A(f"v_add_u32 v{vT+1}, s{sT1}, v{vT+1}")
    A(f"v_mul_u32_u24 v{vT+2}, 320, v{vHH}")
    A(f"v_lshl_add_u32 v{vT+2}, v{vR}, 4, v{vT+2}")
    A(f"v_add_u32 v{vT+3}, {ONES}, v{vT+2}")
    A(f"v_cmp_gt_u32 vcc, 20, v{vR}")
    for sl in range(NSLOT):
        A(f"v_add_u32 v{vK01+sl}, {sl*SLOT}, v{vT}")
        A(f"v_add_u32 v{vK2+sl}, {sl*SLOT}, v{vT+1}")
        A(f"v_add_u32 v{vT+4}, {sl*SLOT + 12288}, v{vT+2}")
        A(f"v_cndmask_b32 v{vV+sl}, v{vT+3}, v{vT+4}, vcc")
    A(f"s_lshl_b32 s{sT2}, s{sPA}, 15")
    A(f"s_add_u32 s{sT2}, s{sT2}, {KA}")
    A(f"s_lshl_b32 s{sT3}, s{sP2L}, 15")
    A(f"s_add_u32 s{sT3}, s{sT3}, {KA - 8192}")
    A(f"s_add_u32 s{sT4}, s{sVH}, {VA - 12288}")
    for t in range(3):
        A(f"v_add_u32 v{vT}, s{sLDSW}, v{vL16}")
        if t:
            A(f"v_add_u32 v{vT}, {1024*t}, v{vT}")
        A(f"v_lshrrev_b32 v{vT+1}, 12, v{vT}")
        A(f"v_and_b32 v{vT+2}, 4095, v{vT}")
        A(f"v_lshl_add_u32 v{vT+2}, v{vT+1}, 15, v{vT+2}")
        A(f"v_add_u32 v{vT+2}, s{sT2}, v{vT+2}")
        A(f"v_add_u32 v{vT+3}, s{sT3}, v{vT}")
        A(f"v_add_u32 v{vT+4}, s{sT4}, v{vT}")
        A(f"v_cmp_eq_u32 vcc, 2, v{vT+1}")
        A(f"v_mov_b32 v{vT+5}, 4096")
        A(f"v_mov_b32 v{vT+6}, 10240")
        A(f"v_cndmask_b32 v{vT+2}, v{vT+2}, v{vT+3}, vcc")
        A(f"v_cmp_le_u32 vcc, 3, v{vT+1}")
        A("s_nop 1")
        A(f"v_cndmask_b32 v{vCB+t}, v{vT+2}, v{vT+4}, vcc")
        A(f"v_cndmask_b32 v{vCS+t}, v{vT+5}, v{vT+6}, vcc")


def setup_p2_2(A):
    A(f"s_lshr_b32 s{sT0}, s{sH}, 1")
    A(f"s_mul_i32 s{sT0}, s{sT0}, 5")
    A(f"s_and_b32 s{sT1}, s{sH}, 1")
    A(f"s_lshl_b32 s{sT2}, s{sT1}, 1")
    A(f"s_add_u32 s{sT2}, s{sT2}, s{sT0}")
    A(f"v_add_u32 v{vT}, s{sT2}, v{vHH}")
    A(f"v_lshlrev_b32 v{vT}, 15, v{vT}")
    A(f"v_lshl_add_u32 v{vOST}, v{vR}, 4, v{vT}")
    A(f"v_lshl_add_u32 v{vOST+1}, v{vR}, 5, v{vT}")
    A(f"s_add_u32 s{sT0}, s{sT0}, 4")
    A(f"s_lshl_b32 s{sT0}, s{sT0}, 15")
    A(f"s_lshl_b32 s{sT1}, s{sT1}, 3")
    A(f"s_add_u32 s{sT0}, s{sT0}, s{sT1}")
    A(f"v_lshlrev_b32 v{vT}, 4, v{vR}")
    A(f"v_add_u32 v{vOST+2}, s{sT0}, v{vT}")
    A(f"v_lshlrev_b32 v{vT}, 5, v{vR}")
    A(f"v_add_u32 v{vOST+3}, s{sT0}, v{vT}")
    A(f"s_mul_i32 s{sT0}, s{sH}, 20")
    A(f"s_add_u32 s{sT1}, s{sT0}, 19")
    A(f"s_lshr_b32 s{sT0}, s{sT0}, 7")
    A(f"s_lshr_b32 s{sT1}, s{sT1}, 7")
    A(f"v_bfe_u32 v{vT}, v{vL}, 4, 1")
    A(f"s_sub_u32 s{sT2}, s{sT1}, s{sT0}")
    A(f"v_mul_u32_u24 v{vT+1}, s{sT2}, v{vT}")
    A(f"v_add_u32 v{vT+1}, s{sT0}, v{vT+1}")
    A(f"v_mul_u32_u24 v{vT+2}, 5, v{vHH}")
    A(f"v_add_u32 v{vT+2}, 5, v{vT+2}")
    A(f"v_add_u32 v{vT+2}, v{vT+2}, v{vT+1}")
    A(f"v_and_b32 v{vT+3}, 15, v{vL}")
    A(f"v_lshl_add_u32 v{vT+2}, v{vT+2}, 4, v{vT+3}")
    A(f"v_lshlrev_b32 v{vF1}, 2, v{vT+2}")
    A(f"v_add_u32 v{vT+2}, {15*16}, v{vT+3}")
    A(f"v_lshlrev_b32 v{vF4}, 2, v{vT+2}")
    A(f"v_and_b32 v{vT+4}, 1, v{vL}")
    A(f"s_lshl_b32 s{sT3}, s{sQB}, 1")
    A(f"v_add_u32 v{vT+4}, s{sT3}, v{vT+4}")
    A(f"v_lshl_add_u32 v{vT+4}, v{vT+1}, 4, v{vT+4}")
    A(f"v_lshlrev_b32 v{vF2}, 2, v{vT+4}")
    A(f"v_and_b32 v{vT}, 1, v{vL}")
    A(f"v_mul_u32_u24 v{vT+1}, s{sT2}, v{vT}")
    A(f"v_add_u32 v{vT+1}, s{sT0}, v{vT+1}")
    A(f"v_bfe_u32 v{vT+2}, v{vL}, 1, 2")
    A(f"v_min_u32 v{vT+2}, 2, v{vT+2}")
    A(f"v_mul_u32_u24 v{vT+2}, 5, v{vT+2}")
    A(f"v_add_u32 v{vT+1}, v{vT+1}, v{vT+2}")
    A(f"s_lshr_b32 s{sT3}, s{sQT}, 1")
    A(f"s_max_u32 s{sT4}, s{sQT}, 1")
    A(f"s_sub_u32 s{sT4}, s{sT4}, 1")
    A(f"s_lshr_b32 s{sT4}, s{sT4}, 1")
    A(f"s_sub_u32 s{sT4}, s{sT3}, s{sT4}")
    A(f"v_bfe_u32 v{vT+2}, v{vL}, 3, 1")
    A(f"v_mul_u32_u24 v{vT+2}, s{sT4}, v{vT+2}")
    A(f"v_sub_u32 v{vT+2}, s{sT3}, v{vT+2}")
    A(f"v_lshl_add_u32 v{vT+1}, v{vT+1}, 4, v{vT+2}")
    A(f"v_lshlrev_b32 v{vF3}, 2, v{vT+1}")


def setup_p2_3(A):
    A(f"v_lshlrev_b32 v{vBA}, 15, v{vHH}")
    A(f"v_lshl_add_u32 v{vBA}, v{vR}, 4, v{vBA}")
    A(f"v_lshlrev_b32 v{vBA+1}, 4, v{vR}")
    A(f"v_and_b32 v{vT+2}, 25, v{vR}")
    A(f"v_bfe_u32 v{vT+3}, v{vR}, 1, 1")
    A(f"v_lshl_or_b32 v{vT+2}, v{vT+3}, 2, v{vT+2}")
    A(f"v_bfe_u32 v{vT+3}, v{vR}, 2, 1")
    A(f"v_lshl_or_b32 v{vT+2}, v{vT+3}, 1, v{vT+2}")
    A(f"v_lshlrev_b32 v{vT+3}, 15, v{vHH}")
    A(f"v_lshl_add_u32 v{vBA+2}, v{vT+2}, 4, v{vT+3}")
    A(f"v_lshlrev_b32 v{vBA+3}, 4, v{vT+2}")
    A(f"v_mul_u32_u24 v{vT+4}, 320, v{vHH}")
    A(f"v_lshl_add_u32 v{vBA+4}, v{vR}, 4, v{vT+4}")
    A(f"s_and_b32 s{sT1}, s{sW}, 1")
    A(f"s_lshl_b32 s{sT1}, s{sT1}, 10")
    A(f"s_lshl_b32 s{sT0}, s{sQT}, 5")
    A(f"s_add_u32 s{sT2}, s{sT1}, s{sT0}")
    A(f"s_lshl_b32 s{sT0}, s{sPA}, 15")
    A(f"s_lshl_b32 s{sT1}, s{sP2L}, 15")
    A(f"s_and_b32 s{sT3}, s{sH}, 1")
    A(f"s_lshl_b32 s{sT3}, s{sT3}, 3")
    A(f"s_add_u32 s{sT1}, s{sT1}, s{sT3}")
    for prev in range(2):
        if prev:
            A(f"s_cmp_eq_u32 s{sQT}, 0")
            A(f"s_cselect_b32 s{sT3}, 0, 32")
            A(f"s_sub_u32 s{sT2}, s{sT2}, s{sT3}")
        A(f"s_lshl_b32 s{sT3}, s{sT2}, 4")
        if not prev:
            A(f"s_add_u32 s{sBA}, s{sT3}, s{sT0}")
            A(f"s_add_u32 s{sBA}, s{sBA}, {QB}")
            A(f"s_add_u32 s{sBA+1}, s{sT3}, s{sT1}")
            A(f"s_add_u32 s{sBA+1}, s{sBA+1}, {QB}")
        o = sBA + 2 + 3 * prev
        A(f"s_add_u32 s{o}, s{sT3}, s{sT0}")
        A(f"s_add_u32 s{o}, s{o}, {KB}")
        A(f"s_add_u32 s{o+1}, s{sT3}, s{sT1}")
        A(f"s_add_u32 s{o+1}, s{o+1}, {KB}")
        A(f"s_lshr_b32 s{sT3}, s{sT2}, 4")
        A(f"s_mul_i32 s{sT3}, s{sT3}, 640")
        A(f"s_add_u32 s{o+2}, s{sT3}, s{sVH}")
        A(f"s_add_u32 s{o+2}, s{o+2}, {VB}")
    A(f"s_lshl_b32 s{sBA+8}, s{sBT}, 2")
    A(f"s_add_u32 s{sBA+8}, s{sBA+8}, {GATE}")


def setup_p2_4(A):
    sRT, sCO, sTG = sT1, sT2, sT3
    A(f"s_lshr_b32 s{sRT}, s{sH}, 3")
    A(f"s_lshl_b32 s{sT0}, s{sQB}, 2")
    A(f"s_add_u32 s{sRT}, s{sRT}, s{sT0}")
    A(f"s_and_b32 s{sCO}, s{sH}, 7")
    A(f"s_and_b32 s{sTG}, s{sW}, 3")
    A(f"s_lshr_b32 s{sKG}, s{sW}, 2")
    A(f"s_lshl_b32 s{sFLG}, s{sRT}, 8")
    A(f"s_mul_i32 s{sWSRC}, s{sW}, 20480")
    A(f"s_mul_i32 s{sT0}, s{sCO}, 1280")
    A(f"s_add_u32 s{sWSRC}, s{sWSRC}, s{sT0}")
    A(f"s_add_u32 s{sWSRC}, s{sWSRC}, {WOT}")
    A(f"s_lshl_b32 s{sRT}, s{sRT}, 6")
    A(f"s_lshl_b32 s{sTG}, s{sTG}, 4")
    A(f"s_add_u32 s{sRT}, s{sRT}, s{sTG}")
    A(f"s_mul_i32 s{sOUTO}, s{sRT}, 1280")
    A(f"s_mul_i32 s{sT0}, s{sCO}, 160")
    A(f"s_add_u32 s{sOUTO}, s{sOUTO}, s{sT0}")
    A(f"s_lshl_b32 s{sOCB}, s{sRT}, 4")
    A(f"s_mul_i32 s{sT0}, s{sKG}, {40*32768}")
    A(f"s_add_u32 s{sOCB}, s{sOCB}, s{sT0}")
    A(f"s_add_u32 s{sOCB}, s{sOCB}, {OC}")
    A(f"s_lshl_b32 s{sPUB}, s{sQT}, 6")
    A(f"s_lshl_b32 s{sT0}, s{sH}, 1")
    A(f"s_add_u32 s{sPUB}, s{sPUB}, s{sT0}")
    A(f"s_and_b32 s{sT0}, s{sW}, 1")
    A(f"s_add_u32 s{sPUB}, s{sPUB}, s{sT0}")
    A(f"s_lshl_b32 s{sPUB}, s{sPUB}, 2")
    A(f"v_lshlrev_b32 v{vFA}, 2, v{vL}")
    A(f"v_mov_b32 v{vW0}, v{vL16}")
    A(f"v_add_u32 v{vT}, 1024, v{vL16}")
    A(f"v_add_u32 v{vT+1}, {10240 - 256}, v{vL16}")
    A(f"v_cmp_gt_u32 vcc, 16, v{vL}")
    A(f"v_add_u32 v{vW2}, {10240 + 768}, v{vL16}")
    A(f"v_lshrrev_b32 v{vT+2}, 4, v{vL}")
    A(f"v_cndmask_b32 v{vW1}, v{vT+1}, v{vT}, vcc")
    A(f"v_and_b32 v{vT+3}, 15, v{vL}")
    A(f"v_lshlrev_b32 v{vT+4}, 15, v{vT+2}")
    A(f"v_lshl_add_u32 v{vOC}, v{vT+3}, 4, v{vT+4}")
    A(f"v_mul_u32_u24 v{vT+4}, 1280, v{vT+2}")
    A(f"v_lshl_add_u32 v{vWR}, v{vT+3}, 4, v{vT+4}")
    A(f"v_mul_u32_u24 v{vT+4}, 1280, v{vT+3}")
    A(f"v_lshl_add_u32 v{vST}, v{vT+2}, 3, v{vT+4}")


SETUP_P2 = [setup_p2_0, setup_p2_1, setup_p2_2, setup_p2_3, setup_p2_4]


def setup_phase2(A):
    for f in SETUP_P2:
        f(A)


def pattern_fill(A):
    for r in range(2):
        A(f"v_add_u32 v{vT}, {512*r}, v0")
        A(f"v_mul_u32_u24 v{vT+1}, 3277, v{vT}")
        A(f"v_lshrrev_b32 v{vT+1}, 16, v{vT+1}")
        A(f"v_mul_u32_u24 v{vT+1}, 20, v{vT+1}")
        A(f"v_cmp_eq_u32 vcc, v{vT+1}, v{vT}")
        A(f"v_mov_b32 v{vT+4}, 0")
        A(f"v_mov_b32 v{vT+5}, 0x3f803f80")
        A(f"v_cndmask_b32 v{vT+4}, v{vT+4}, v{vT+5}, vcc")
        for i in range(1, 4):
            A(f"v_mov_b32 v{vT+4+i}, v{vT+4}")
        if r == 1:
            A(f"v_cmp_gt_u32 vcc, {PAT_UNITS}, v{vT}")
        A(f"v_lshlrev_b32 v{vT}, 4, v{vT}")
        A(f"v_add_u32 v{vT}, {ONES}, v{vT}")
        if r == 1:
            A("s_and_saveexec_b64 s[%d:%d], vcc" % (sT4, sT5))
            A("s_cbranch_execz L_pat_done")
        A.lds(f"ds_write_b128 v{vT}, {v(vT+4,4)}", "pat")
    A.label("L_pat_done")
    A("s_mov_b64 exec, -1")


def gen(prof=False):
    A = Asm()
    A.prof = prof
    A.PROF_V = 239
    kernel_header(A, NAME)
    A("s_cmp_ge_u32 s2, 256")
    A("s_cbranch_scc1 L_end")
    A.stamp("start")
    A("s_load_dwordx4 s[4:7], s[0:1], 0")
    A(f"s_load_dwordx2 s[{sP}:{sP+1}], s[0:1], 32")
    A(f"s_load_dwordx2 s[{sP+2}:{sP+3}], s[0:1], 72")
    A(f"s_load_dwordx4 s[{sDBG}:{sDBG+3}], s[0:1], 56")
    A(f"v_lshrrev_b32 v{vT}, 6, v0")
    A(f"v_and_b32 v{vL}, 63, v0")
    A(f"v_readfirstlane_b32 s{sW}, v{vT}")
    A(f"v_and_b32 v{vR}, 31, v{vL}")
    A(f"v_lshrrev_b32 v{vHH}, 5, v{vL}")
    A(f"v_lshlrev_b32 v{vL16}, 4, v{vL}")
    A(f"s_and_b32 s{sT0}, s2, 7")
    A(f"s_lshr_b32 s{sT1}, s2, 3")
    A(f"s_and_b32 s{sRB}, s{sT0}, 1")
    A(f"s_lshl_b32 s{sRB}, s{sRB}, 3")
    A(f"s_and_b32 s{sT2}, s{sT1}, 7")
    A(f"s_add_u32 s{sRB}, s{sRB}, s{sT2}")
    A(f"s_lshr_b32 s{sCT}, s{sT0}, 1")
    A(f"s_lshl_b32 s{sCT}, s{sCT}, 2")
    A(f"s_lshr_b32 s{sT2}, s{sT1}, 3")
    A(f"s_add_u32 s{sCT}, s{sCT}, s{sT2}")
    A(f"s_and_b32 s{sGI}, s{sW}, 3")
    A(f"s_and_b32 s{sMH}, s{sGI}, 1")
    A(f"s_lshr_b32 s{sNH}, s{sGI}, 1")
    A(f"s_mul_i32 s{sXOFF}, s{sRB}, {128*1280}")
    A(f"s_lshl_b32 s{sWOFF}, s{sCT}, 8")
    A(f"s_lshl_b32 s{sLDS1}, s{sGI}, 10")
    A(f"s_mul_hi_u32 s{sT0}, s{sCT}, 0x33333334")
    A(f"s_mul_i32 s{sT0}, s{sT0}, 5")
    A(f"s_sub_u32 s{sCT5}, s{sCT}, s{sT0}")
    A(f"v_lshrrev_b32 v{vT}, 3, v{vL}")
    A(f"s_lshl_b32 s{sT0}, s{sGI}, 3")
    A(f"v_add_u32 v{vT}, s{sT0}, v{vT}")
    A(f"v_lshrrev_b32 v{vT+1}, 1, v{vT}")
    A(f"v_xor_b32 v{vT+1}, v{vT+1}, v{vL}")
    A(f"v_and_b32 v{vT+1}, 7, v{vT+1}")
    A(f"v_lshlrev_b32 v{vT+1}, 4, v{vT+1}")
    A(f"v_mul_u32_u24 v{vT+2}, 1280, v{vT}")
    A(f"v_add_u32 v{vXD}, v{vT+2}, v{vT+1}")
    A(f"v_lshrrev_b32 v{vT}, 4, v{vL}")
    A(f"v_lshlrev_b32 v{vT+1}, 2, v{vT}")
    A(f"v_xor_b32 v{vT+1}, v{vT+1}, v{vL}")
    A(f"v_and_b32 v{vT+1}, 15, v{vT+1}")
    A(f"v_lshlrev_b32 v{vT+1}, 4, v{vT+1}")
    A(f"s_lshl_b32 s{sT0}, s{sGI}, 2")
    A(f"v_add_u32 v{vT}, s{sT0}, v{vT}")
    A(f"v_mul_u32_u24 v{vT}, 3840, v{vT}")
    A(f"v_add_u32 v{vWD}, v{vT}, v{vT+1}")
    A("s_waitcnt lgkmcnt(0)")
    srd(A, sX, 4, X_BYTES)
    srd(A, sWA, 6, W_BYTES)
    srd(A, sWB, sP, W_BYTES)
    srd(A, sWS, sP + 2, WS_USED)
    srd(A, sOUT, sDBG, OUT_BYTES)
    A(f"s_mov_b32 s{sDBG}, s{sDBG+2}")
    A(f"s_and_b32 s{sDBG+1}, s{sDBG+3}, 0xffff")
    A(f"s_mov_b32 s{sDBG+2}, 256")
    A(f"s_mov_b32 s{sDBG+3}, 0x20000")
    A(f"s_cmp_eq_u32 s{sCT}, 15")
    A("s_cbranch_scc1 L_nodma")
    A(f"s_cmp_lt_u32 s{sW}, 4")
    A("s_cbranch_scc1 L_nodma")
    for b in range(3):
        for p in range(8):
            g_dma(A, b, p)
    A(f"s_cmp_ge_u32 s{sCT}, 10")
    A("s_cbranch_scc1 L_g1n")
    A("s_branch L_g1t")
    A.label("L_nodma")
    A(f"s_or_b32 s{sT0}, s2, s{sW}")
    A(f"s_cmp_lg_u32 s{sT0}, 0")
    A("s_cbranch_scc1 L_nonce_done")
    A(f"s_memrealtime s[{sT4}:{sT5}]")
    A("s_waitcnt lgkmcnt(0)")
    A(f"s_or_b32 s{sT0}, s{sT4}, 1")
    A(f"v_mov_b32 v{vT}, s{sT0}")
    A(f"v_mov_b32 v{vT+1}, 0")
    A("s_mov_b64 exec, 1")
    A(f"buffer_store_dword v{vT}, v{vT+1}, s[{sDBG}:{sDBG+3}], 0 offen sc1")
    A("s_mov_b64 exec, -1")
    A.label("L_nonce_done")
    if EXP.get("cpf"):
        A(f"s_lshr_b32 s{sT1}, s2, 3")
        A(f"s_cmp_ge_u32 s{sT1}, 8")
        A("s_cbranch_scc1 L_cpf_done")
        A(f"s_cmp_lg_u32 s{sW}, {EXP['cpf'] - 1}")
        A("s_cbranch_scc1 L_cpf_done")
        A(f"s_getpc_b64 s[{sT4}:{sT5}]")
        A.label("L_cpf_pc")
        A(f"s_sub_u32 s{sT4}, s{sT4}, L_cpf_pc - {NAME}")
        A(f"s_subb_u32 s{sT5}, s{sT5}, 0")
        A(f"s_lshl_b32 s{sT1}, s{sT1}, 13")
        A(f"v_lshlrev_b32 v{vT}, 7, v{vL}")
        A(f"v_add_u32 v{vT}, s{sT1}, v{vT}")
        A(f"v_min_u32 v{vT}, L_end - {NAME}, v{vT}")
        A(f"global_load_dword v{vT+1}, v{vT}, s[{sT4}:{sT5}]")
        A.label("L_cpf_done")
    setup_phase1_reads(A)
    setup_phase2(A)
    A.stamp("issued")
    A(f"s_cmp_eq_u32 s{sCT}, 15")
    A("s_cbranch_scc1 L_spare")
    A(f"s_cmp_ge_u32 s{sCT}, 10")
    A("s_cbranch_scc1 L_vtile")
    if prof:
        A.stamps += ["blk0 landed", "gemm0", "epi0", "gemm1", "epi1"]
        if EXP.get("stampB"):
            A.stamps += ["B10", "B12", "B14", "B16"]
    gemm(A, True, "t")
    A("s_branch L_attn")
    A.label("L_vtile")
    gemm(A, False, "n")
    A.label("L_attn")
    A.vm_q, A.lds_q = [], []
    A("s_barrier")
    A.stamp("attn start")
    if EXP.get("prio") == 1:
        A(f"s_cmp_lt_u32 s{sW}, 4")
        A("s_cbranch_scc1 L_prio_done")
        A("s_setprio 1")
        A.label("L_prio_done")
    rd_k01(A, 0)
    rd_k2(A, 0)
    dma_chunk(A, 3)
    pattern_fill(A)
    b_consts(A)
    A.lds_wait_all()
    mf16(A, SA, K01, Q01, "0")
    mf8(A, SA, K2, Q2, v(SA, 16))
    A("s_nop 7")
    A("s_nop 5")
    max16(A, vT, SA, True)
    cross_half_max(A, vT, vT + 1)
    for i in range(16):
        A(f"v_sub_f32 v{NEGM+i}, 0, v{vT}")
    A("s_nop 1")
    mf16(A, SA, K01, Q01, v(NEGM, 16))
    mf8(A, SA, K2, Q2, v(SA, 16))
    A("s_barrier")
    rd_k01(A, 1)
    rd_k2(A, 1)
    rd_v(A, 0, 0)
    A("s_nop 7")
    A("s_nop 3")
    NT = 64
    sched = {}
    def at(t, half, fn):
        sched.setdefault((t, half), []).append(fn)
    fb_items = [(vFL, vF3, F1B, None), (vFL2, vF4, F1A, None)]
    pos = {}
    def issue(name, items):
        def f(A):
            pos[name] = poll_issue(A, items, name)
        return f
    at(13, 0, issue("f1b", fb_items))
    pre_barrier = {22: lambda A: poll_check(A, fb_items, pos["f1b"], "f1b"),
                   54: lambda A: poll_check(A, fo_items, pos["fb"], "fb")}
    at(22, 1, lambda A: A.vm(f"buffer_load_dword v{vG}, v{vGA}, {WS}, s{sGOFF} offen sc1", "g"))
    for i, f in enumerate(b_load_items()):
        at(25 + i // 2, i % 2, f)
    at(34, 1, b_unit)
    at(40, 0, lambda A: publish(A, sPUB, FLAGB, "stb"))
    fo_items = [(vFL, vFA, FLAGB, sFLG)]
    at(48, 0, issue("fb", fo_items))
    for k in range(10):
        at(55 + k // 2, k % 2, lambda A, k=k: oc_load(A, 1, k))
    for st in range(3):
        for p in range(3):
            i = 3 * st + p
            at(42 + i // 2, i % 2, lambda A, st=st, p=p: dma_w_piece(A, 1, st, p))
    for st in range(3, 5):
        for p in range(3):
            i = 3 * (st - 3) + p
            at(57 + i // 2, 1 - i % 2, lambda A, st=st, p=p: dma_w_piece(A, 1, st, p))
    for c in range(2, NCH - 2):
        for p in range(3):
            at(TPC * c - 1 + p // 2, 1 if p % 2 == 0 else 0, lambda A, c=c, p=p: dma_chunk_piece(A, c + 2, p))
    for t in range(NT):
        cur = SA if t % 2 == 0 else SB
        nxt = SB if t % 2 == 0 else SA
        if (t == 32 and not EXP.get("stampB")) or (EXP.get("stampB") and t in (21, 24)):
            A.stamp("t%d" % t)
        if t % TPC == TPC - 2 and t + 2 < NT:
            c = (t + 2) // TPC
            if c == 1:
                A.vm_wait(("c", 3))
            A.vm_wait(("c", c))
            if t in pre_barrier:
                pre_barrier[t](A)
            A("s_barrier")
            if c == 1:
                with Wave0(A, "pubb"):
                    publish(A, sF1, F1B)
        if EXP.get("prio") == 2 and t == 55:
            A(f"s_cmp_lt_u32 s{sW}, 4")
            A("s_cbranch_scc1 L_prio_done")
            A("s_setprio 1")
            A.label("L_prio_done")
        if EXP.get("prio") == 3 and t % 8 == 7:
            A(f"s_lshr_b32 s{sT0}, s{sW}, 2")
            A(f"s_cmp_eq_u32 s{sT0}, {(t // 8) % 2}")
            A(f"s_cbranch_scc1 L_prio_a{t}")
            A("s_setprio 0")
            A(f"s_branch L_prio_b{t}")
            A.label(f"L_prio_a{t}")
            A("s_setprio 1")
            A.label(f"L_prio_b{t}")
        if EXP.get("xbar") and t == EXP["xbar"]:
            A("s_barrier")
        if t == 63:
            A.vm_wait(("w", 1, 4))
        for f in sched.get((t, 0), []):
            f(A)
        if t + 1 < NT:
            A.lds_wait(("k01", t + 1))
            mf16(A, nxt, K01, Q01, "0" if EXP.get("m0") else v(NEGM, 16))
            if t + 2 < NT:
                rd_k01(A, t + 2)
        exps(A, cur, 0)
        if t > 0:
            A.lds_wait(("v", t - 1, 1))
            mf16(A, O, V1, P + 4, v(O, 16))
        rd_v(A, t, 1)
        exps(A, cur, 1)
        for f in sched.get((t, 1), []):
            f(A)
        if t + 1 < NT:
            A.lds_wait(("k2", t + 1))
            mf8(A, nxt, K2, Q2, v(nxt, 16))
            if t + 2 < NT:
                rd_k2(A, t + 2)
        exps(A, cur, 2)
        A.lds_wait(("v", t, 0))
        mf16(A, O, V0, P, "0" if t == 0 else v(O, 16))
        if t + 1 < NT:
            rd_v(A, t + 1, 0)
        exps(A, cur, 3)
    A.lds_wait(("v", NT - 1, 1))
    A("s_nop 1")
    mf16(A, O, V1, P + 4, v(O, 16))
    A(f"v_add_u32 v{vT+5}, 0x10000, v{vWR}")
    A(f"v_add_u32 v{vT+6}, 0x20000, v{vWR}")
    A(f"v_mov_b32 v{vT+3}, {hex(f32bits(BIG))}")
    A("s_nop 7")
    A("s_nop 3")
    A.stamp("loop end")
    row_sum(A, O)
    A(f"v_mul_f32 v{vT+2}, 0, v{O}")
    for i in range(1, 12):
        A(f"v_fma_f32 v{vT+2}, v{O+i}, 0, v{vT+2}")
    A(f"v_add_f32 v{vT+2}, v{vT+2}, v{vT+1}")
    A(f"v_cmp_lt_f32 vcc, v{vT+2}, v{vT+3}")
    A("s_nop 4")
    A("s_cmp_eq_u64 vcc, exec")
    A("s_cbranch_scc0 L_fallback")
    A.label("L_finish")
    A.vm_wait("g")
    finish_tile(A, O, vG, False, vOST, sQ0, 0, "sta")
    A(f"v_add_u32 v{vT+5}, 0x10000, v{vWR}")
    A(f"v_add_u32 v{vT+6}, 0x20000, v{vWR}")
    A("s_barrier")
    A.stamp("ring free") if not EXP.get("stampB") else None
    wa = [(st, p) for st in range(2) for p in range(3)]

    def hook_b(k, kg):
        if k < 6:
            st, p = wa[k]
            dma_w_piece(A, 0, st, p)
        if k == EXP.get("pubk", 1):
            publish(A, sPUB, FLAGA, "sta")
    outproj(A, 1, True, hook_b)
    A.stamp("b part") if not EXP.get("stampB") else None
    A("s_barrier")
    for st in range(2, 5):
        for p in range(3):
            dma_w_piece(A, 0, st, p)
    fa_items = [(vFL, vFA, FLAGA, sFLG)]
    pfa = poll_issue(A, fa_items, "fa")
    poll_check(A, fa_items, pfa, "fa")
    A("s_barrier")
    A.stamp("flags a") if not EXP.get("stampB") else None
    for k in range(10):
        oc_load(A, 0, k)
    A.vm_wait(("w", 0, 4))
    A("s_barrier")
    outproj(A, 0, False)
    A.stamp("a part") if not EXP.get("stampB") else None
    A(f"s_and_b32 s{sT0}, s{sW}, 3")
    A(f"s_mul_i32 s{sT0}, s{sT0}, 5120")
    A(f"v_add_u32 v{vT}, s{sT0}, v{vL16}")
    A(f"s_cmp_eq_u32 s{sKG}, 0")
    A("s_cbranch_scc1 L_red_a")
    A("s_nop 5")
    for nt in range(5):
        A(f"ds_write_b128 v{vT}, {v(ACC+4*nt,4)} offset:{nt*1024}")
    A("s_waitcnt lgkmcnt(0)")
    A("s_barrier")
    if prof:
        A.stamp("", len(A.stamps))
        A.stamp_flush(0, sWS, PROF, vT + 2)
    A("s_endpgm")
    A.label("L_red_a")
    A("s_barrier")
    A.lds_q = []
    for nt in range(5):
        A.lds(f"ds_read_b128 {v(WF+4*nt,4)}, v{vT} offset:{nt*1024}", ("r", nt))
    for nt in range(5):
        A.lds_wait(("r", nt))
        for i in range(4):
            A(f"v_add_f32 v{ACC+4*nt+i}, v{ACC+4*nt+i}, v{WF+4*nt+i}")
        A(f"v_cvt_pk_bf16_f32 v{ACC+4*nt}, v{ACC+4*nt}, v{ACC+4*nt+1}")
        A(f"v_cvt_pk_bf16_f32 v{ACC+4*nt+1}, v{ACC+4*nt+2}, v{ACC+4*nt+3}")
        A.vm(f"buffer_store_dwordx2 {v(ACC+4*nt,2)}, v{vST}, s[{sOUT}:{sOUT+3}], s{sOUTO} offen offset:{nt*32}{EXP.get('outst','')}", "st")
    A.stamp("end")
    if prof and EXP.get("dbg"):
        with Wave0(A, "dbgout"):
            A(f"v_subrev_u32 v{vT}, s{sNONCE}, v{A.PROF_V}")
            A(f"v_subrev_u32 v{vT+1}, 16, v{vL}")
            A(f"v_lshlrev_b32 v{vT+1}, 2, v{vT+1}")
            if EXP["dbg"] == 2:
                A(f"v_sub_u32 v{vT}, 0x100000, v{vT}")
            A("s_mov_b32 exec_lo, 0xfffe0000")
            A("s_mov_b32 exec_hi, 0")
            A(f"buffer_atomic_umax v{vT}, v{vT+1}, s[{sDBG}:{sDBG+3}], 0 offen")
            A("s_mov_b64 exec, -1")
    A.stamp_flush(0, sWS, PROF, vT)
    A("s_endpgm")
    fallback(A)
    spare(A)
    A.label("L_end")
    A("s_endpgm")
    kernel_footer(A, NAME, NV, 96)
    gen.stamps = getattr(A, "stamps", [])
    return A.text()

if __name__ == "__main__":
    print(gen())
```

```python
from asmlib import *
from layout2 import *

NAME = "gated_mix__softmax_full_mha__sliding_local_dilated__prompt_kernel"
EXP = {}
STAGE, NST, NB = 32768, 5, 20
SLOT = CHB
NSLOT = 4
TPC = CH // 32
NCH = S // CH
ONES = 4 * SLOT
PAT_UNITS = 672
WBASE = ONES + PAT_UNITS * 16
WSTG = 20480
LDS_BYTES = 163840
WB_OFF = [WBASE, WBASE + WSTG, WBASE + 2 * WSTG, 0, SLOT]
WA_OFF = [2 * SLOT, 3 * SLOT, WBASE, WBASE + WSTG, WBASE + 2 * WSTG]
assert WBASE + 3 * WSTG <= LDS_BYTES
BIG = 2.0 ** 64
SPIN_MAX = 1 << 16
sWS, sOUT = 8, 12
sW, sNONCE = 16, 17
sH, sQB, sPA, sLDSW, sLDSW2, sWSRC, sOCB, sFLG, sPUB, sOUTO, sKG, sQ0, sBT, sQT = range(18, 32)
sT0, sT1, sT2, sT3, sT4, sT5 = range(32, 38)
sM = 38
sLO20 = 40
sCNT = 42
sP2L = 43
sDBG = 44
sBA = 48
sVH = 57
sX, sWA, sWB = 60, 64, 68
sRB, sCT, sMH, sNH, sXOFF, sWOFF, sLDS1, sCT5, sTP, sB16, sQS, sGI = range(72, 84)
sQOFF, sQOFF2, sGOFF, sF1 = 88, 89, 90, 91
sP = 92
vL, vR, vHH = 1, 2, 3
vK01, vK2, vV = 4, 8, 12
vL16, vG, vGB, vFL = 16, 17, 18, 19
vT = 20
SA, SB, NEGM, O, P = 28, 44, 60, 76, 92
Q01, Q2, K01, K2, V0, V1 = 100, 104, 108, 112, 116, 120
BQ01, BQ2, BK01, BK2, BKP01, BKP2 = 124, 128, 132, 136, 140, 144
BV0, BV1, BVP, BS0, BS1, BO, BP = 148, 152, 156, 160, 176, 192, 208
vBA = 220
vW0, vW1, vW2, vOC, vWR, vST, vFA = 225, 226, 227, 228, 229, 230, 231
vF1, vF2, vF3, vF4 = 232, 233, 234, 241
vFL2 = 235
vQA, vQA2, vGA = 236, 237, 238
vOST = 252
vXD, vWD = 242, 243
vCB, vCS = 244, 247
vCT = 250
NV = 256
OCB, OCA, ACC, WF = 124, 164, 204, 28
G_ACC = 124
G_F = 28
G_P = 188
vA16 = 76
vXR, vWR1 = 106, 118
WS = f"s[{sWS}:{sWS+3}]"


def st1():
    return " sc1"


def publish(A, soff_reg, base, tag=None):
    if tag is not None:
        A.vm_wait(tag)
    A(f"v_mov_b32 v{vT}, s{sNONCE}")
    A(f"v_mov_b32 v{vT+1}, 0")
    A(f"s_add_u32 s{sT0}, s{soff_reg}, {base}")
    A("s_mov_b64 exec, 1")
    A.vm(f"buffer_store_dword v{vT}, v{vT+1}, {WS}, s{sT0} offen sc1", "pub")
    A("s_mov_b64 exec, -1")


class Wave0:
    def __init__(self, A, name):
        self.A, self.name = A, name
    def __enter__(self):
        A = self.A
        A(f"s_cmp_lg_u32 s{sW}, 0")
        A(f"s_cbranch_scc1 L_w0_{self.name}")
        self.saved = (list(A.vm_q), A.vm_count)
    def __exit__(self, *a):
        A = self.A
        A.vm_q, A.vm_count = self.saved
        A.label(f"L_w0_{self.name}")


def _poll_loads(A, items):
    for (vdst, voff, base, soff_reg) in items:
        if soff_reg is None:
            A(f"s_mov_b32 s{sT0}, {base}")
        else:
            A(f"s_add_u32 s{sT0}, s{soff_reg}, {base}")
        A(f"buffer_load_dword v{vdst}, v{voff}, {WS}, s{sT0} offen sc1")


def poll_issue(A, items, name):
    with Wave0(A, name + "_i"):
        _poll_loads(A, items)
    return A.vm_count


def poll_check(A, items, pos, name, inv=False, drain=False):
    def compare():
        for i, (vdst, _, _, _) in enumerate(items):
            if i == 0:
                A(f"v_cmp_eq_u32 vcc, s{sNONCE}, v{vdst}")
            else:
                A(f"v_cmp_eq_u32 s[{sT4}:{sT5}], s{sNONCE}, v{vdst}")
                A("s_nop 3")
                A(f"s_and_b64 vcc, vcc, s[{sT4}:{sT5}]")
        A("s_nop 3")
        A("s_cmp_eq_u64 vcc, exec")
    with Wave0(A, name + "_c"):
        A(f"s_waitcnt vmcnt({A.vm_count - pos})")
        compare()
        A(f"s_cbranch_scc1 L_{name}_ok")
        A(f"s_mov_b32 s{sCNT}, 0")
        A.label(f"L_{name}_spin")
        A("s_sleep 2")
        _poll_loads(A, items)
        A(f"s_add_u32 s{sCNT}, s{sCNT}, 1")
        A(f"s_cmp_ge_u32 s{sCNT}, {SPIN_MAX}")
        A(f"s_cbranch_scc1 L_{name}_ok")
        A("s_waitcnt vmcnt(0)")
        compare()
        A(f"s_cbranch_scc0 L_{name}_spin")
        A.label(f"L_{name}_ok")
        if inv:
            A("buffer_inv sc1")
        if drain:
            A("s_waitcnt vmcnt(0)")


def poll_tight(A, base, soff_reg, voff, name):
    regs = [vFL, vFL2, vT + 2, vT + 3]
    with Wave0(A, name):
        A(f"s_add_u32 s{sT1}, s{soff_reg}, {base}")
        for r in regs:
            A(f"buffer_load_dword v{r}, v{voff}, {WS}, s{sT1} offen sc1")
            A("s_sleep 1")
        A(f"s_mov_b32 s{sCNT}, 0")
        A.label(f"L_{name}_spin")
        for r in regs:
            A("s_waitcnt vmcnt(3)")
            A(f"v_cmp_eq_u32 vcc, s{sNONCE}, v{r}")
            A("s_nop 3")
            A("s_cmp_eq_u64 vcc, exec")
            A(f"s_cbranch_scc1 L_{name}_ok")
            A(f"buffer_load_dword v{r}, v{voff}, {WS}, s{sT1} offen sc1")
        A(f"s_add_u32 s{sCNT}, s{sCNT}, 1")
        A(f"s_cmp_lt_u32 s{sCNT}, {SPIN_MAX}")
        A(f"s_cbranch_scc1 L_{name}_spin")
        A.label(f"L_{name}_ok")


def nonce_issue(A):
    A(f"v_mov_b32 v{vT}, 0")
    A.vm(f"buffer_load_dword v{vFL}, v{vT}, s[{sDBG}:{sDBG+3}], 0 offen sc1", "nonce")


def nonce_check(A, name):
    A.vm_wait("nonce")
    A("s_nop 0")
    A(f"v_readfirstlane_b32 s{sNONCE}, v{vFL}")
    A("s_nop 3")
    A(f"s_cmp_lg_u32 s{sNONCE}, 0")
    A(f"s_cbranch_scc1 L_{name}_ok")
    A(f"s_mov_b32 s{sCNT}, 0")
    A.label(f"L_{name}_spin")
    A("s_sleep 1")
    A(f"v_mov_b32 v{vT}, 0")
    A(f"buffer_load_dword v{vFL}, v{vT}, s[{sDBG}:{sDBG+3}], 0 offen sc1")
    A(f"s_add_u32 s{sCNT}, s{sCNT}, 1")
    A(f"s_cmp_ge_u32 s{sCNT}, {SPIN_MAX}")
    A(f"s_cbranch_scc1 L_{name}_ok")
    A("s_waitcnt vmcnt(0)")
    A(f"v_readfirstlane_b32 s{sNONCE}, v{vFL}")
    A("s_nop 3")
    A(f"s_cmp_eq_u32 s{sNONCE}, 0")
    A(f"s_cbranch_scc1 L_{name}_spin")
    A.label(f"L_{name}_ok")


def g_dma(A, b, p):
    kb, st, t = b % 10, b % NST, p & 3
    A(f"s_add_u32 m0, s{sLDS1}, {st*STAGE + (p >> 2)*16384 + 4096*t}")
    if p < 4:
        A(f"s_add_u32 s{sT0}, s{sXOFF}, {kb*128 + t*40960}")
        A.vm(f"buffer_load_dwordx4 v{vXD}, s[{sX}:{sX+3}], s{sT0} offen lds", ("d", b))
    else:
        sw = sWA if b < 10 else sWB
        A(f"s_add_u32 s{sT0}, s{sWOFF}, {(kb*64 + 16*t) * 3840}")
        A.vm(f"buffer_load_dwordx4 v{vWD}, s[{sw}:{sw+3}], s{sT0} offen lds", ("d", b))


def g_acc(mt, nt):
    return G_ACC + 32 * mt + 16 * nt


def g_frag(s_, i):
    return G_F + 16 * (s_ % 3) + 4 * i


def g_read_list(s_):
    b, ks = divmod(s_, 4)
    st = b % NST
    base, off = st >> 1, (st & 1) * STAGE
    out = []
    for mt in range(2):
        out.append(f"ds_read_b128 {v(g_frag(s_, mt),4)}, v{vXR + 3*ks + base} offset:{off + mt*4096}")
    for nt in range(2):
        for q in range(2):
            out.append(f"ds_read_b64_tr_b16 {v(g_frag(s_, 2+nt)+2*q,2)}, v{vWR1 + 3*nt + base} offset:{off + 16384 + ks*4096 + q*1024}")
    return out


def g_reads(A, s_):
    for ins in g_read_list(s_):
        A.lds(ins, ("f", s_))


def g_step(A, s_, last, tr, extra=None):
    b, ks = divmod(s_, 4)
    A.lds_wait(("f", s_))
    nxt = g_read_list(s_ + 2) if s_ + 2 <= last else []
    for i, (mt, nt) in enumerate(((0, 0), (0, 1), (1, 0), (1, 1))):
        d = g_acc(mt, nt)
        c = "0" if (s_ % 40 == 0) else v(d, 16)
        x, w = g_frag(s_, mt), g_frag(s_, 2 + nt)
        a, bb = (w, x) if tr else (x, w)
        A(f"v_mfma_f32_32x32x16_bf16 {v(d,16)}, {v(a,4)}, {v(bb,4)}, {c}")
        for ins in nxt[2*i:2*i+2]:
            A.lds(ins, ("f", s_ + 2))
        if extra and i == 3:
            extra()


def epi_prepare(A, isb, tr, n):
    A(f"s_lshl_b32 s{sTP}, s{sRB}, 7")
    A(f"s_lshl_b32 s{sT0}, s{sMH}, 6")
    A(f"s_add_u32 s{sTP}, s{sTP}, s{sT0}")
    if isb:
        A(f"s_lshr_b32 s{sTP}, s{sTP}, 1")
    if tr:
        A(f"s_cmp_lt_u32 s{sCT}, 5")
        A(f"s_mov_b32 s{sT1}, {QB if isb else QA}")
        A(f"s_cselect_b32 s{sB16}, s{sT1}, {KB if isb else KA}")
        A(f"s_mov_b32 s{sT1}, {hex(f32bits(QSCALE))}")
        A(f"s_cselect_b32 s{sQS}, s{sT1}, 1.0")
        A(f"s_lshl_b32 s{sT0}, s{sCT5}, 1")
        A(f"s_add_u32 s{sT0}, s{sT0}, s{sNH}")
        A(f"s_lshl_b32 s{sT0}, s{sT0}, 18")
        A(f"s_add_u32 s{sB16}, s{sB16}, s{sT0}")
        A(f"s_lshl_b32 s{sT0}, s{sTP}, 4")
        A(f"s_add_u32 s{sB16}, s{sB16}, s{sT0}")
        A(f"v_lshlrev_b32 v{vA16}, 15, v{vHH}")
        if isb:
            A(f"v_and_b32 v{vT}, 1, v{vR}")
            A(f"v_lshl_add_u32 v{vA16}, v{vT}, 14, v{vA16}")
            A(f"v_lshrrev_b32 v{vT}, 1, v{vR}")
            A(f"v_lshl_add_u32 v{vA16}, v{vT}, 4, v{vA16}")
        else:
            A(f"v_lshl_add_u32 v{vA16}, v{vR}, 4, v{vA16}")
        A(f"v_mov_b32 v{vT+2}, s{sQS}")
        A(f"v_mov_b32 v{vT+3}, s{sQS}")
    else:
        A(f"v_mul_u32_u24 v{vT+1}, 320, v{vHH}")
        A(f"s_lshl_b32 s{sT0}, s{sCT5}, 7")
        A(f"s_lshl_b32 s{sT1}, s{sNH}, 6")
        A(f"s_add_u32 s{sT0}, s{sT0}, s{sT1}")
        for nt in range(2):
            A(f"v_add_u32 v{vT+2}, s{sT0}, v{vR}")
            if nt:
                A(f"v_add_u32 v{vT+2}, 32, v{vT+2}")
            A(f"v_mul_u32_u24 v{vT+3}, 3277, v{vT+2}")
            A(f"v_lshrrev_b32 v{vT+3}, 16, v{vT+3}")
            A(f"v_mul_u32_u24 v{vT+4}, 20, v{vT+3}")
            A(f"v_sub_u32 v{vT+4}, v{vT+2}, v{vT+4}")
            A(f"v_mul_u32_u24 v{vT+3}, {VH}, v{vT+3}")
            A(f"v_lshl_add_u32 v{vT+3}, v{vT+4}, 4, v{vT+3}")
            A(f"v_add_u32 v{vA16+nt}, v{vT+3}, v{vT+1}")
        A(f"s_lshr_b32 s{sT0}, s{sTP}, 4")
        A(f"s_mul_i32 s{sT0}, s{sT0}, 640")
        A(f"s_add_u32 s{sB16}, s{sT0}, {VB if isb else VA}")


def epi_group(A, isb, tr, g, tag):
    reg = G_P + 4 * g
    mt, nt, u = g >> 2, (g >> 1) & 1, g & 1
    src = g_acc(mt, nt)
    if tr:
        for jj in range(2):
            a = src + 4 * (2 * u + jj)
            A(f"v_pk_mul_f32 {v(a,2)}, {v(a,2)}, v[{vT+2}:{vT+3}]")
            A(f"v_pk_mul_f32 {v(a+2,2)}, {v(a+2,2)}, v[{vT+2}:{vT+3}]")
            A(f"v_cvt_pk_bf16_f32 v{reg+2*jj}, v{a}, v{a+1}")
            A(f"v_cvt_pk_bf16_f32 v{reg+2*jj+1}, v{a+2}, v{a+3}")
        A(f"s_add_u32 s{sT1}, s{sB16}, {(4*nt + 2*u)*PLANE + mt*(256 if isb else 512)}")
        A("s_nop 0")
        A(f"v_permlane32_swap_b32 v{reg}, v{reg+2}")
        A(f"v_permlane32_swap_b32 v{reg+1}, v{reg+3}")
        A.vm(f"buffer_store_dwordx4 {v(reg,4)}, v{vA16}, {WS}, s{sT1} offen sc1", tag)
    else:
        if isb:
            for j in range(4):
                A(f"v_cvt_pk_bf16_f32 v{reg+j}, v{src+4*j+u}, v{src+4*j+u+2}")
            A(f"s_add_u32 s{sT1}, s{sB16}, {mt*640 + u*64*640}")
        else:
            for p in range(4):
                A(f"v_cvt_pk_bf16_f32 v{reg+p}, v{src+8*u+2*p}, v{src+8*u+2*p+1}")
            A(f"s_add_u32 s{sT1}, s{sB16}, {(2*mt + u)*640}")
        A.vm(f"buffer_store_dwordx4 {v(reg,4)}, v{vA16+nt}, {WS}, s{sT1} offen sc1", tag)


def acquire_items():
    return [(vFL, vF1, F1A, None), (vFL2, vF2, F1A, None)]


def p2_load_items():
    def q01(A):
        A.vm(f"buffer_load_dwordx4 {v(Q01,4)}, v{vQA}, {WS}, s{sQOFF} offen sc1", "q")
    def q2(A):
        A(f"v_mov_b32 v{Q2}, 0")
        A(f"v_mov_b32 v{Q2+1}, 0")
        A("s_mov_b32 exec_hi, 0")
        A.vm(f"buffer_load_dwordx2 {v(Q2,2)}, v{vQA2}, {WS}, s{sQOFF2} offen sc1", "q")
        A("s_mov_b32 exec_hi, -1")
    items = [lambda A, p=p: dma_chunk_piece(A, 0, p) for p in range(3)] + [q01, q2]
    items += [lambda A, c=c, p=p: dma_chunk_piece(A, c, p) for c in (1, 2) for p in range(3)]
    return items


def gemm(A, tr, n):
    A.vm_q, A.lds_q = [], []
    if EXP.get("tlb"):
        epi_prepare(A, False, tr, n)
        A(f"buffer_store_dword v{vL}, v{vA16}, {WS}, s{sB16} offen sc1")
    A("s_barrier")
    A.stamp("blk0 landed", 2)
    g_reads(A, 0)
    g_reads(A, 1)
    for s_ in range(40):
        b, ks = divmod(s_, 4)
        if ks == 2:
            A("s_barrier")
        if EXP.get("twb") is not None and s_ == EXP["twb"]:
            touch_wb(A, n)
        if s_ == 22:
            nonce_issue(A)
        if s_ == 30:
            nonce_check(A, f"nonce0{n}")
        g_step(A, s_, 39, tr)
    A.stamp("gemm0", 3)
    slices = [int(ch) for ch in str(EXP.get("sl", "8"))]
    assert sum(slices) == 8
    PUB, POLL, CHK = EXP.get("pub", 12), EXP.get("poll", 15), 18
    for p in range(8):
        g_dma(A, 13, p)
    epi_prepare(A, False, tr, n)
    A("s_nop 7")
    A("s_nop 3")
    done = 0
    for b in range(10, 19):
        k = slices[b - 10] if b - 10 < len(slices) else 0
        for g in range(done, done + k):
            epi_group(A, False, tr, g, "sa")
        if k and done + k == 8:
            A.stamp("epi0", 4)
        done += k
        if b == PUB:
            A.vm_wait("sa")
        if b == CHK:
            poll_check(A, acquire_items(), pos_f1, f"f1{n}")
        if b + 1 >= 13:
            A.vm_wait(("d", b + 1))
        A("s_barrier")
        if EXP.get("stampB") and b in (10, 12, 14, 16):
            A.stamp("", {10: 7, 12: 8, 14: 9, 16: 10}[b])
        if b + 4 < NB:
            for p in range(8):
                g_dma(A, b + 4, p)
        if b == PUB:
            with Wave0(A, f"puba{n}"):
                publish(A, sF1, F1A)
        if b == POLL:
            pos_f1 = poll_issue(A, acquire_items(), f"f1{n}")
    for f in p2_load_items():
        f(A)
    A.stamp("gemm1", 5)
    A.stamp("epi1", 6)
    A.vm_wait("q")
    A("s_branch L_attn")
    A.label(f"L_g1{n}")
    A.vm_q, A.lds_q = [("d", 0)] * 8 + [("d", 1)] * 8 + [("d", 2)] * 8, []
    A.vm_wait(("d", 0))
    A("s_barrier")
    A.stamp("issued", 1)
    A.stamp("blk0 landed", 2)
    for p in range(8):
        g_dma(A, 3, p)
    for b in range(10):
        if b == 0:
            setup_phase1_reads(A)
        if 1 <= b <= 5:
            SETUP_P2[b - 1](A)
        if b == 6:
            if EXP.get("tlb"):
                epi_prepare(A, True, tr, n)
                A(f"buffer_store_dword v{vL}, v{vA16}, {WS}, s{sB16} offen sc1")
                A(f"s_lshl_b32 s{sT0}, s{sQ0}, 4")
                A(f"s_add_u32 s{sT0}, s{sT0}, {OC}")
                A(f"buffer_store_dword v{vL}, v{vOST}, {WS}, s{sT0} offen sc1")
                A(f"s_lshl_b32 s{sT0}, s{sBT}, 4")
                A(f"s_add_u32 s{sT0}, s{sT0}, {OC + 80*32768}")
                A(f"buffer_store_dword v{vL}, v{vOST+1}, {WS}, s{sT0} offen sc1")
            nonce_issue(A)
        if b == 8:
            nonce_check(A, f"nonce1{n}")
        A.vm_wait(("d", b + 1))
        A("s_barrier")
        if b + 4 <= 12:
            for p in range(8):
                g_dma(A, b + 4, p)
    A.stamp("gemm0", 3)
    A.stamp("epi0", 4)
    g_reads(A, 40)
    g_reads(A, 41)
    pend = []
    for s_ in range(40, 80):
        b, ks = divmod(s_, 4)
        if ks == 2 and b + 1 < NB:
            if b + 1 <= 12:
                A.vm_wait(("d", b + 1))
            A("s_barrier")
            if EXP.get("stampB") and b in (10, 12, 14, 16):
                A.stamp("", {10: 7, 12: 8, 14: 9, 16: 10}[b])
            if b == 18:
                pend = p2_load_items()
        def extra():
            for _ in range(2):
                if pend:
                    pend.pop(0)(A)
        g_step(A, s_, 79, tr, extra)
    assert not pend
    A.stamp("gemm1", 5)
    epi_prepare(A, True, tr, n)
    A("s_nop 7")
    A("s_nop 3")
    for g in range(8):
        epi_group(A, True, tr, g, "sb")
    A.stamp("epi1", 6)
    A.vm_wait("q")


def spare(A):
    sWO, sG = sWA, sWB
    A.label("L_spare")
    A.vm_q, A.lds_q = [], []
    A("s_load_dwordx2 s[4:5], s[0:1], 16")
    A("s_load_dwordx2 s[6:7], s[0:1], 40")
    A(f"s_load_dwordx2 s[{sP}:{sP+1}], s[0:1], 48")
    A("s_waitcnt lgkmcnt(0)")
    A(f"s_cmp_lt_u32 s{sRB}, 8")
    A("s_cbranch_scc1 L_sp_a")
    A("s_mov_b32 s4, s6")
    A("s_mov_b32 s5, s7")
    A.label("L_sp_a")
    srd(A, sWO, 4, WO_BYTES)
    srd(A, sG, sP, 1280)
    A(f"s_and_b32 s{sT1}, s{sRB}, 7")
    A(f"s_mul_i32 s{sT1}, s{sT1}, {80*1280}")
    A(f"s_lshl_b32 s{sLDS1}, s{sW}, 10")
    A(f"s_add_u32 s{sT1}, s{sT1}, s{sLDS1}")
    for t in range(13):
        if t == 12:
            A(f"s_cmp_ge_u32 s{sW}, 4")
            A("s_cbranch_scc1 L_sp_dma_done")
        A(f"s_add_u32 m0, s{sLDS1}, {8192*t}")
        A(f"s_add_u32 s{sT0}, s{sT1}, {8192*t}")
        A(f"buffer_load_dwordx4 v{vL16}, s[{sWO}:{sWO+3}], s{sT0} offen lds")
    A.label("L_sp_dma_done")
    XG, GG = 28, 68
    A(f"v_lshrrev_b32 v{vT+1}, 2, v{vL}")
    A(f"s_lshl_b32 s{sT0}, s{sW}, 4")
    A(f"v_add_u32 v{vT+1}, s{sT0}, v{vT+1}")
    A(f"v_and_b32 v{vT+2}, 3, v{vL}")
    A(f"v_lshlrev_b32 v{vT+2}, 4, v{vT+2}")
    A(f"v_mul_u32_u24 v{vT+3}, 1280, v{vT+1}")
    A(f"v_add_u32 v{vT+3}, v{vT+3}, v{vT+2}")
    A(f"v_mov_b32 v{vT+4}, 0")
    for half in range(2):
        for i in range(10):
            A(f"buffer_load_dwordx4 {v(XG+4*i,4)}, v{vT+3}, s[{sX}:{sX+3}], s{sXOFF} offen offset:{(10*half+i)*64}")
            A(f"buffer_load_dwordx4 {v(GG+4*i,4)}, v{vT+2}, s[{sG}:{sG+3}], 0 offen offset:{(10*half+i)*64}")
        A("s_waitcnt vmcnt(0)")
        for i in range(40):
            A(f"v_dot2_f32_bf16 v{vT+4}, v{XG+i}, v{GG+i}, v{vT+4}")
    A("s_nop 2")
    A(f"v_add_f32_dpp v{vT+4}, v{vT+4}, v{vT+4} quad_perm:[1,0,3,2] row_mask:0xf bank_mask:0xf")
    A("s_nop 1")
    A(f"v_add_f32_dpp v{vT+4}, v{vT+4}, v{vT+4} quad_perm:[2,3,0,1] row_mask:0xf bank_mask:0xf")
    A(f"v_mul_f32 v{vT+4}, {hex(f32bits(-LOG2E))}, v{vT+4}")
    A(f"v_exp_f32 v{vT+4}, v{vT+4}")
    A("s_nop 0")
    A(f"v_add_f32 v{vT+4}, 1.0, v{vT+4}")
    A(f"v_rcp_f32 v{vT+4}, v{vT+4}")
    A(f"s_lshl_b32 s{sT0}, s{sRB}, 9")
    A(f"s_add_u32 s{sT0}, s{sT0}, {GATE}")
    A(f"v_lshlrev_b32 v{vT+1}, 2, v{vT+1}")
    A("s_mov_b32 exec_lo, 0x11111111")
    A("s_mov_b32 exec_hi, 0x11111111")
    A(f"buffer_store_dword v{vT+4}, v{vT+1}, {WS}, s{sT0} offen sc1")
    A("s_mov_b64 exec, -1")
    A("s_waitcnt vmcnt(0)")
    A("s_barrier")
    A(f"v_bfe_u32 v{vT+1}, v{vL}, 2, 2")
    A(f"v_mul_u32_u24 v{vT+1}, 1280, v{vT+1}")
    A(f"v_lshrrev_b32 v{vT+2}, 4, v{vL}")
    A(f"v_lshl_add_u32 v{vT+1}, v{vT+2}, 5, v{vT+1}")
    A(f"v_and_b32 v{vT+2}, 3, v{vL}")
    A(f"v_lshl_add_u32 v{vT+1}, v{vT+2}, 3, v{vT+1}")
    A(f"s_mul_i32 s{sT3}, s{sRB}, {10*10240}")
    A(f"s_add_u32 s{sT3}, s{sT3}, {WOT}")
    A(f"s_mov_b32 s{sT1}, s{sW}")
    A.label("L_sp_loop")
    A(f"s_mul_hi_u32 s{sT2}, s{sT1}, 0x1999999a")
    A(f"s_mul_i32 s{sT0}, s{sT2}, 10")
    A(f"s_sub_u32 s{sT0}, s{sT1}, s{sT0}")
    A(f"s_mul_hi_u32 s{sCNT}, s{sT2}, 0x33333334")
    A(f"s_mul_i32 s{sT4}, s{sCNT}, 5")
    A(f"s_sub_u32 s{sT4}, s{sT2}, s{sT4}")
    A(f"s_mul_i32 s{sCNT}, s{sCNT}, 40")
    A(f"s_lshl_b32 s{sT5}, s{sT4}, 3")
    A(f"s_cmp_ge_u32 s{sT4}, 2")
    A(f"s_cselect_b32 s{sM}, 4, 0")
    A(f"s_add_u32 s{sT5}, s{sT5}, s{sM}")
    A(f"s_cmp_eq_u32 s{sT4}, 4")
    A(f"s_cselect_b32 s{sT5}, 16, s{sT5}")
    A(f"s_cselect_b32 s{sM}, 20, 4")
    A(f"s_add_u32 s{sT5}, s{sT5}, s{sCNT}")
    A(f"s_mul_i32 s{sT4}, s{sT5}, 1280")
    A(f"s_mul_i32 s{sM}, s{sM}, 1280")
    A(f"s_lshl_b32 s{sT5}, s{sT0}, 7")
    A(f"s_add_u32 s{sT4}, s{sT4}, s{sT5}")
    A(f"v_add_u32 v{vT+3}, s{sT4}, v{vT+1}")
    A(f"v_add_u32 v{vT+4}, s{sM}, v{vT+3}")
    A(f"ds_read_b64_tr_b16 v[{XG}:{XG+1}], v{vT+3}")
    A(f"ds_read_b64_tr_b16 v[{XG+2}:{XG+3}], v{vT+4}")
    A(f"s_mul_i32 s{sT4}, s{sT2}, 10240")
    A(f"s_lshl_b32 s{sT5}, s{sT0}, 10")
    A(f"s_add_u32 s{sT4}, s{sT4}, s{sT5}")
    A(f"s_add_u32 s{sT4}, s{sT4}, s{sT3}")
    A("s_waitcnt lgkmcnt(0)")
    A(f"buffer_store_dwordx4 {v(XG,4)}, v{vL16}, {WS}, s{sT4} offen sc1")
    A(f"s_add_u32 s{sT1}, s{sT1}, 8")
    A(f"s_cmp_lt_u32 s{sT1}, 100")
    A("s_nop 1")
    A("s_cbranch_scc1 L_sp_loop")
    nonce_issue(A)
    nonce_check(A, "noncesp")
    A("s_waitcnt vmcnt(0)")
    A("s_barrier")
    A.vm_q = []
    with Wave0(A, "pubsp"):
        publish(A, sF1, F1A)
    pos = poll_issue(A, acquire_items(), "f1sp")
    poll_check(A, acquire_items(), pos, "f1sp")
    A("s_barrier")
    A.vm_q = []
    for f in p2_load_items():
        f(A)
    A.vm_wait("q")
    for i in (2, 3, 4, 5, 6) + ((7, 8, 9, 10) if EXP.get("stampB") else ()):
        A.stamp("", i)
    A("s_branch L_attn")


def mf16(A, d, a, b, c):
    A(f"v_mfma_f32_32x32x16_bf16 {v(d,16)}, {v(a,4)}, {v(b,4)}, {c}")


def mf8(A, d, a, b, c):
    A(f"v_mfma_f32_32x32x8_bf16 {v(d,16)}, {v(a,2)}, {v(b,2)}, {c}")


def dma_chunk_piece(A, c, t):
    slot = c % NSLOT
    A(f"s_add_u32 m0, s{sLDSW}, {slot*SLOT + 1024*t}")
    A(f"v_mad_u32_u24 v{vCT}, v{vCS+t}, {c}, v{vCB+t}")
    if t == 2:
        A("s_mov_b32 exec_hi, 0xffff")
    A.vm(f"buffer_load_dwordx4 v{vCT}, {WS}, 0 offen sc1 lds", ("c", c))
    if t == 2:
        A("s_mov_b32 exec_hi, -1")


def dma_chunk(A, c):
    for t in range(3):
        dma_chunk_piece(A, c, t)


def dma_w_piece(A, part, st, t):
    off = (WA_OFF if part == 0 else WB_OFF)[st]
    A(f"s_add_u32 m0, s{sLDSW2}, {off + 1024*t}")
    A(f"s_add_u32 s{sT0}, s{sWSRC}, {(part*80 + 16*st)*10240}")
    if t == 2:
        A("s_mov_b32 exec_hi, 0")
    A.vm(f"buffer_load_dwordx4 v{(vW0, vW1, vW2)[t]}, {WS}, s{sT0} offen sc1 lds", ("w", part, st))
    if t == 2:
        A("s_mov_b32 exec_hi, -1")


def rd_k01(A, t):
    if EXP.get('halfrd') and t % 2 == 1:
        return
    c, tt = t // TPC, t % TPC
    A.lds(f"ds_read_b128 {v(K01,4)}, v{vK01 + c % NSLOT} offset:{tt*512}", ("k01", t))


def rd_k2(A, t):
    if EXP.get('halfrd') and t % 2 == 1:
        return
    c, tt = t // TPC, t % TPC
    A.lds(f"ds_read_b64 {v(K2,2)}, v{vK2 + c % NSLOT} offset:{8192 + tt*512}", ("k2", t))


def rd_v(A, t, a):
    if EXP.get('halfrd') and t % 2 == 1:
        return
    c, tt = t // TPC, t % TPC
    A.lds(f"ds_read_b128 {v(V1 if a else V0,4)}, v{vV + c % NSLOT} offset:{(2*tt + a)*640}", ("v", t, a))


def exps(A, sreg, g, preg=P):
    for i in range(4):
        A(f"v_exp_f32 v{sreg+4*g+i}, v{sreg+4*g+i}")
    A(f"v_cvt_pk_bf16_f32 v{preg+2*g}, v{sreg+4*g}, v{sreg+4*g+1}")
    A(f"v_cvt_pk_bf16_f32 v{preg+2*g+1}, v{sreg+4*g+2}, v{sreg+4*g+3}")


def cross_half_max(A, reg, tmp):
    A(f"v_mov_b32 v{tmp}, v{reg}")
    A("s_nop 1")
    A(f"v_permlane32_swap_b32 v{reg}, v{tmp}")
    A("s_nop 1")
    A(f"v_max_f32 v{reg}, v{reg}, v{tmp}")


def max16(A, dst, src, first):
    if first:
        A(f"v_max3_f32 v{dst}, v{src}, v{src+1}, v{src+2}")
        rest = list(range(3, 16))
    else:
        rest = list(range(0, 16))
    while rest:
        if len(rest) >= 2:
            A(f"v_max3_f32 v{dst}, v{dst}, v{src+rest[0]}, v{src+rest[1]}")
            rest = rest[2:]
        else:
            A(f"v_max_f32 v{dst}, v{dst}, v{src+rest[0]}")
            rest = rest[1:]


def row_sum(A, oreg):
    A(f"v_mov_b32 v{vT}, v{oreg+8}")
    A(f"v_mov_b32 v{vT+1}, v{oreg+8}")
    A("s_nop 1")
    A(f"v_permlane32_swap_b32 v{vT}, v{vT+1}")


def finish_tile(A, oreg, gate, one_minus, vaddr, tok_sreg, chunk0, tag):
    A(f"v_rcp_f32 v{vT+2}, v{vT+1}")
    A(f"s_lshl_b32 s{sT0}, s{tok_sreg}, 4")
    A(f"s_add_u32 s{sT0}, s{sT0}, {OC + chunk0*32768}")
    if one_minus:
        A(f"v_sub_f32 v{vT}, 1.0, v{gate}")
        A(f"v_mul_f32 v{vT+2}, v{vT+2}, v{vT}")
    else:
        A(f"v_mul_f32 v{vT+2}, v{vT+2}, v{gate}")
    A(f"v_mov_b32 v{vT+3}, v{vT+2}")
    for i in range(0, 12, 2):
        A(f"v_pk_mul_f32 {v(oreg+i,2)}, {v(oreg+i,2)}, v[{vT+2}:{vT+3}]")
    for i in range(4):
        A(f"v_cvt_pk_bf16_f32 v{oreg+i}, v{oreg+2*i}, v{oreg+2*i+1}")
    A(f"v_cvt_pk_bf16_f32 v{oreg+8}, v{oreg+8}, v{oreg+9}")
    A(f"v_cvt_pk_bf16_f32 v{oreg+9}, v{oreg+10}, v{oreg+11}")
    A(f"v_permlane32_swap_b32 v{oreg}, v{oreg+2}")
    A(f"v_permlane32_swap_b32 v{oreg+1}, v{oreg+3}")
    A.vm(f"buffer_store_dwordx4 {v(oreg,4)}, v{vaddr}, {WS}, s{sT0} offen sc1", tag)
    A("s_mov_b32 exec_hi, 0")
    A.vm(f"buffer_store_dwordx2 {v(oreg+8,2)}, v{vaddr+2}, {WS}, s{sT0} offen sc1", tag)
    A("s_mov_b64 exec, -1")


def oc_load(A, part, k):
    reg = OCA if part == 0 else OCB
    A(f"s_add_u32 s{sT0}, s{sOCB}, {(part*80 + 4*k)*32768}")
    A.vm(f"buffer_load_dwordx4 {v(reg+4*k,4)}, v{vOC}, {WS}, s{sT0} offen sc1", ("oc", part, k))


def outproj(A, part, first, hook=None):
    offs = WA_OFF if part == 0 else WB_OFF
    reg = OCA if part == 0 else OCB
    for kg in range(2):
        if kg == 0:
            A(f"s_cmp_eq_u32 s{sKG}, 1")
            A(f"s_cbranch_scc1 L_op{part}_g1")
            saved = (list(A.vm_q), list(A.lds_q))
        else:
            A.label(f"L_op{part}_g1")
            A.vm_q, A.lds_q = list(saved[0]), list(saved[1])
        seq = [(k, nt) for k in range(10) for nt in range(5)]

        def rd(i):
            k, nt = seq[i]
            kk = 10 * kg + k
            off = offs[kk // 4] + (kk % 4) * 5120 + nt * 256
            areg = (vWR, vT + 5, vT + 6)[off >> 16]
            A.lds(f"ds_read_b128 {v(WF + (i % 8)*4,4)}, v{areg} offset:{off & 0xffff}", ("wf", i))

        LOOK = 5
        for i in range(LOOK):
            rd(i)
        for i, (k, nt) in enumerate(seq):
            if i + LOOK < len(seq):
                rd(i + LOOK)
            if nt == 0:
                A.vm_wait(("oc", part, k))
                if hook:
                    hook(k, kg)
            A.lds_wait(("wf", i))
            c = "0" if (first and k == 0) else v(ACC + 4*nt, 4)
            A(f"v_mfma_f32_16x16x32_bf16 {v(ACC+4*nt,4)}, {v(WF + (i % 8)*4,4)}, {v(reg+4*k,4)}, {c}")
        if kg == 0:
            end0 = (list(A.vm_q), list(A.lds_q))
            A(f"s_branch L_op{part}_done")
    A.label(f"L_op{part}_done")
    assert end0[0] == A.vm_q and end0[1] == A.lds_q


def keypos(kappa):
    return (kappa & 25) | ((kappa >> 1) & 1) << 2 | ((kappa >> 2) & 1) << 1


def band_mask(j, i, prev):
    m = 0
    for l in range(64):
        q, hh = l & 31, l >> 5
        key = keypos(8 * j + 4 * hh + i) - (32 if prev else 0)
        if 0 <= q - key <= 7:
            m |= 1 << l
    return m


def b_consts(A):
    A(f"v_cmp_eq_u32 vcc, 20, v{vR}")
    A(f"v_mov_b32 v{vT+6}, 0")
    A(f"v_mov_b32 v{vT+7}, 0x3f803f80")
    A(f"v_cndmask_b32 v{vT+6}, v{vT+6}, v{vT+7}, vcc")
    for base in (BV0, BV1, BVP):
        for i in range(4):
            A(f"v_mov_b32 v{base+i}, v{vT+6}")
    A(f"v_mov_b32 v{BQ2}, 0")
    A(f"v_mov_b32 v{BQ2+1}, 0")


def b_load_items():
    def mk(instr, pre=None, gate=False):
        def f(A):
            if gate:
                A(f"v_lshlrev_b32 v{vCT}, 1, v{vGA}")
                A.vm(instr.replace(f"v{vGA},", f"v{vCT},"), "b")
                return
            if pre:
                A(pre)
            A.vm(instr, "b")
            if pre:
                A("s_mov_b64 exec, -1")
        return f
    lo20 = f"s_mov_b64 exec, s[{sLO20}:{sLO20+1}]"
    return [
        mk(f"buffer_load_dwordx4 {v(BQ01,4)}, v{vBA}, {WS}, s{sBA} offen sc1"),
        mk(f"buffer_load_dwordx4 {v(BK01,4)}, v{vBA+2}, {WS}, s{sBA+2} offen sc1"),
        mk(f"buffer_load_dwordx2 {v(BK2,2)}, v{vBA+3}, {WS}, s{sBA+3} offen sc1"),
        mk(f"buffer_load_dwordx4 {v(BKP01,4)}, v{vBA+2}, {WS}, s{sBA+5} offen sc1"),
        mk(f"buffer_load_dwordx2 {v(BKP2,2)}, v{vBA+3}, {WS}, s{sBA+6} offen sc1"),
        mk(f"buffer_load_dword v{vGB}, v{vGA}, {WS}, s{sBA+8} offen sc1", None, True),
        mk(f"buffer_load_dwordx2 {v(BQ2,2)}, v{vBA+1}, {WS}, s{sBA+1} offen sc1", "s_mov_b32 exec_hi, 0"),
        mk(f"buffer_load_dwordx4 {v(BV0,4)}, v{vBA+4}, {WS}, s{sBA+4} offen sc1", lo20),
        mk(f"buffer_load_dwordx4 {v(BV1,4)}, v{vBA+4}, {WS}, s{sBA+4} offen offset:640 sc1", lo20),
        mk(f"buffer_load_dwordx4 {v(BVP,4)}, v{vBA+4}, {WS}, s{sBA+7} offen offset:640 sc1", lo20),
    ]


def b_unit(A):
    S0, S1 = BS0, BS1
    A.vm_wait("b")
    mf16(A, S0, BK01, BQ01, "0")
    mf16(A, S1, BKP01, BQ01, "0")
    mf8(A, S0, BK2, BQ2, v(S0, 16))
    mf8(A, S1, BKP2, BQ2, v(S1, 16))
    A(f"v_mov_b32 v{vT}, {hex(f32bits(-1e30))}")
    A(f"s_cmp_eq_u32 s{sQT}, 0")
    A(f"s_cselect_b32 s{sT3}, 0, -1")
    A("s_nop 7")
    A("s_nop 5")
    for j in range(4):
        for i in range(4):
            m = band_mask(j, i, False)
            A(f"s_mov_b32 s{sM}, {hex(m & 0xffffffff)}")
            A(f"s_mov_b32 s{sM+1}, {hex(m >> 32)}")
            A(f"v_cndmask_b32 v{S0+4*j+i}, v{vT}, v{S0+4*j+i}, s[{sM}:{sM+1}]")
    for i in range(4):
        m = band_mask(3, i, True)
        A(f"s_and_b32 s{sM}, s{sT3}, {hex(m & 0xffffffff)}")
        A(f"s_and_b32 s{sM+1}, s{sT3}, {hex(m >> 32)}")
        A(f"v_cndmask_b32 v{S1+12+i}, v{vT}, v{S1+12+i}, s[{sM}:{sM+1}]")
    max16(A, vT + 1, S0, True)
    A(f"v_max3_f32 v{vT+1}, v{vT+1}, v{S1+12}, v{S1+13}")
    A(f"v_max3_f32 v{vT+1}, v{vT+1}, v{S1+14}, v{S1+15}")
    cross_half_max(A, vT + 1, vT + 2)
    for r in list(range(S0, S0 + 16)) + list(range(S1 + 12, S1 + 16)):
        A(f"v_sub_f32 v{r}, v{r}, v{vT+1}")
    for g in range(4):
        exps(A, S0, g, BP)
    PP = BP + 8
    for i in range(4):
        A(f"v_exp_f32 v{S1+12+i}, v{S1+12+i}")
    A(f"v_mov_b32 v{PP}, 0")
    A(f"v_mov_b32 v{PP+1}, 0")
    A(f"v_cvt_pk_bf16_f32 v{PP+2}, v{S1+12}, v{S1+13}")
    A(f"v_cvt_pk_bf16_f32 v{PP+3}, v{S1+14}, v{S1+15}")
    A("s_nop 1")
    mf16(A, BO, BV0, BP, "0")
    mf16(A, BO, BV1, BP + 4, v(BO, 16))
    mf16(A, BO, BVP, PP, v(BO, 16))
    A("s_nop 7")
    A("s_nop 3")
    row_sum(A, BO)
    A("s_nop 1")
    finish_tile(A, BO, vGB, True, vOST + 1, sBT, 80, "stb")


def fallback(A):
    A.label("L_fallback")
    A("s_waitcnt vmcnt(0) lgkmcnt(0)")
    A(f"v_lshlrev_b32 v{vT+4}, 15, v{vHH}")
    A(f"v_lshl_add_u32 v{vT+4}, v{vR}, 4, v{vT+4}")
    A(f"v_lshlrev_b32 v{vT+5}, 4, v{vR}")
    A(f"v_mul_u32_u24 v{vT+6}, 320, v{vHH}")
    A(f"v_lshl_add_u32 v{vT+6}, v{vR}, 4, v{vT+6}")
    A(f"v_mov_b32 v{vT+7}, {hex(f32bits(-3.0e38))}")

    def tile_addr():
        A(f"s_lshl_b32 s{sT0}, s{sCNT}, 9")
        A(f"s_lshl_b32 s{sT1}, s{sPA}, 15")
        A(f"s_add_u32 s{sT1}, s{sT1}, s{sT0}")
        A(f"s_add_u32 s{sT1}, s{sT1}, {KA}")
        A(f"s_lshl_b32 s{sT2}, s{sP2L}, 15")
        A(f"s_add_u32 s{sT2}, s{sT2}, s{sT0}")
        A(f"s_and_b32 s{sT3}, s{sH}, 1")
        A(f"s_lshl_b32 s{sT3}, s{sT3}, 3")
        A(f"s_add_u32 s{sT2}, s{sT2}, s{sT3}")
        A(f"s_add_u32 s{sT2}, s{sT2}, {KA}")
        A(f"s_mul_i32 s{sT3}, s{sCNT}, 1280")
        A(f"s_add_u32 s{sT3}, s{sT3}, s{sVH}")
        A(f"s_add_u32 s{sT3}, s{sT3}, {VA}")

    A(f"s_mov_b32 s{sCNT}, 0")
    A.label("L_fb1")
    tile_addr()
    A(f"buffer_load_dwordx4 {v(K01,4)}, v{vT+4}, {WS}, s{sT1} offen sc1")
    A(f"buffer_load_dwordx2 {v(K2,2)}, v{vT+5}, {WS}, s{sT2} offen sc1")
    A("s_waitcnt vmcnt(0)")
    mf16(A, SA, K01, Q01, "0")
    mf8(A, SA, K2, Q2, v(SA, 16))
    A("s_nop 7")
    A("s_nop 7")
    max16(A, vT + 7, SA, False)
    A(f"s_add_u32 s{sCNT}, s{sCNT}, 1")
    A(f"s_cmp_lt_u32 s{sCNT}, 64")
    A("s_cbranch_scc1 L_fb1")
    cross_half_max(A, vT + 7, vT)
    for i in range(16):
        A(f"v_sub_f32 v{NEGM+i}, 0, v{vT+7}")
        A(f"v_mov_b32 v{O+i}, 0")
    A(f"v_cmp_eq_u32 vcc, 20, v{vR}")
    A(f"v_mov_b32 v{vT}, 0")
    A(f"v_mov_b32 v{vT+1}, 0x3f803f80")
    A(f"v_cndmask_b32 v{vT}, v{vT}, v{vT+1}, vcc")
    for i in range(4):
        A(f"v_mov_b32 v{V0+i}, v{vT}")
        A(f"v_mov_b32 v{V1+i}, v{vT}")
    A(f"s_mov_b32 s{sCNT}, 0")
    A.label("L_fb2")
    tile_addr()
    A(f"buffer_load_dwordx4 {v(K01,4)}, v{vT+4}, {WS}, s{sT1} offen sc1")
    A(f"buffer_load_dwordx2 {v(K2,2)}, v{vT+5}, {WS}, s{sT2} offen sc1")
    A(f"s_mov_b64 exec, s[{sLO20}:{sLO20+1}]")
    A(f"buffer_load_dwordx4 {v(V0,4)}, v{vT+6}, {WS}, s{sT3} offen sc1")
    A(f"buffer_load_dwordx4 {v(V1,4)}, v{vT+6}, {WS}, s{sT3} offen offset:640 sc1")
    A("s_mov_b64 exec, -1")
    A("s_waitcnt vmcnt(0)")
    mf16(A, SA, K01, Q01, v(NEGM, 16))
    mf8(A, SA, K2, Q2, v(SA, 16))
    A("s_nop 7")
    A("s_nop 7")
    for g in range(4):
        exps(A, SA, g)
    A("s_nop 1")
    mf16(A, O, V0, P, v(O, 16))
    mf16(A, O, V1, P + 4, v(O, 16))
    A(f"s_add_u32 s{sCNT}, s{sCNT}, 1")
    A(f"s_cmp_lt_u32 s{sCNT}, 64")
    A("s_cbranch_scc1 L_fb2")
    A("s_nop 7")
    A("s_nop 7")
    row_sum(A, O)
    A("s_nop 1")
    A("s_branch L_finish")


def touch_wb(A, n):
    A(f"s_cmp_ge_u32 s{sW}, 3")
    A(f"s_cbranch_scc1 L_twb{n}")
    A(f"s_and_b32 s{sT0}, s{sRB}, 7")
    A(f"s_mul_i32 s{sT0}, s{sT0}, 80")
    A(f"s_lshl_b32 s{sT1}, s{sW}, 5")
    A(f"v_lshrrev_b32 v{vT}, 1, v{vL}")
    A(f"v_add_u32 v{vT}, s{sT1}, v{vT}")
    A(f"v_min_u32 v{vT}, 79, v{vT}")
    A(f"v_add_u32 v{vT}, s{sT0}, v{vT}")
    A(f"v_mul_u32_u24 v{vT}, 3840, v{vT}")
    A(f"v_and_b32 v{vT+1}, 1, v{vL}")
    A(f"v_lshl_add_u32 v{vT}, v{vT+1}, 7, v{vT}")
    A(f"buffer_load_dword v{G_P}, v{vT}, s[{sWB}:{sWB+3}], s{sWOFF} offen")
    A.label(f"L_twb{n}")


def setup_phase1_reads(A):
    A(f"v_lshrrev_b32 v{vT+2}, 1, v{vR}")
    A(f"v_and_b32 v{vT+2}, 7, v{vT+2}")
    A(f"v_xor_b32 v{vT+2}, v{vT+2}, v{vHH}")
    A(f"v_lshlrev_b32 v{vT+2}, 4, v{vT+2}")
    A(f"s_lshl_b32 s{sT0}, s{sMH}, 6")
    A(f"v_add_u32 v{vT+3}, s{sT0}, v{vR}")
    A(f"v_lshl_add_u32 v{vXR}, v{vT+3}, 7, v{vT+2}")
    for ks in range(1, 4):
        A(f"v_xor_b32 v{vXR+3*ks}, {ks*32}, v{vXR}")
    for ks in range(4):
        A(f"v_add_u32 v{vXR+3*ks+1}, 0x10000, v{vXR+3*ks}")
        A(f"v_add_u32 v{vXR+3*ks+2}, 0x20000, v{vXR+3*ks}")
    A(f"v_bfe_u32 v{vT+2}, v{vL}, 2, 2")
    A(f"v_lshl_add_u32 v{vT+3}, v{vHH}, 3, v{vT+2}")
    A(f"v_lshlrev_b32 v{vT+3}, 8, v{vT+3}")
    A(f"v_bfe_u32 v{vT+4}, v{vL}, 4, 1")
    A(f"v_lshlrev_b32 v{vT+4}, 5, v{vT+4}")
    A(f"v_add_u32 v{vT+3}, v{vT+3}, v{vT+4}")
    A(f"v_and_b32 v{vT+4}, 3, v{vL}")
    A(f"v_lshlrev_b32 v{vT+4}, 3, v{vT+4}")
    A(f"v_add_u32 v{vT+3}, v{vT+3}, v{vT+4}")
    for nt in range(2):
        A(f"s_lshl_b32 s{sT0}, s{sNH}, 1")
        A(f"s_add_u32 s{sT0}, s{sT0}, {nt}")
        A(f"v_xor_b32 v{vT+4}, s{sT0}, v{vT+2}")
        A(f"v_lshl_add_u32 v{vWR1+3*nt}, v{vT+4}, 6, v{vT+3}")
        A(f"v_add_u32 v{vWR1+3*nt+1}, 0x10000, v{vWR1+3*nt}")
        A(f"v_add_u32 v{vWR1+3*nt+2}, 0x20000, v{vWR1+3*nt}")


def setup_p2_0(A):
    A(f"s_lshl_b32 s{sF1}, s{sCT}, 4")
    A(f"s_add_u32 s{sF1}, s{sF1}, s{sRB}")
    A(f"s_lshl_b32 s{sF1}, s{sF1}, 2")
    A(f"s_and_b32 s{sT0}, s2, 7")
    A(f"s_lshl_b32 s{sT0}, s{sT0}, 2")
    A(f"s_lshr_b32 s{sT1}, s2, 3")
    A(f"s_and_b32 s{sT1}, s{sT1}, 3")
    A(f"s_add_u32 s{sH}, s{sT0}, s{sT1}")
    A(f"s_lshr_b32 s{sQB}, s2, 5")
    A(f"s_lshr_b32 s{sT0}, s{sH}, 1")
    A(f"s_mul_i32 s{sT0}, s{sT0}, 5")
    A(f"s_add_u32 s{sP2L}, s{sT0}, 2")
    A(f"s_and_b32 s{sT1}, s{sH}, 1")
    A(f"s_mul_i32 s{sT1}, s{sT1}, 3")
    A(f"s_add_u32 s{sPA}, s{sT0}, s{sT1}")
    A(f"s_mul_i32 s{sVH}, s{sH}, {VH}")
    A(f"s_mul_i32 s{sLDSW}, s{sW}, 2816")
    A(f"s_mul_i32 s{sLDSW2}, s{sW}, 2560")
    A(f"s_lshl_b32 s{sQ0}, s{sQB}, 8")
    A(f"s_lshl_b32 s{sT0}, s{sW}, 5")
    A(f"s_add_u32 s{sQ0}, s{sQ0}, s{sT0}")
    A(f"s_lshl_b32 s{sQT}, s{sQB}, 2")
    A(f"s_lshr_b32 s{sT0}, s{sW}, 1")
    A(f"s_add_u32 s{sQT}, s{sQT}, s{sT0}")
    A(f"s_and_b32 s{sT1}, s{sW}, 1")
    A(f"s_lshl_b32 s{sBT}, s{sQT}, 6")
    A(f"s_add_u32 s{sBT}, s{sBT}, s{sT1}")
    A(f"s_mov_b32 s{sLO20}, 0xfffff")
    A(f"s_mov_b32 s{sLO20+1}, 0xfffff")
    A(f"v_lshlrev_b32 v{vQA}, 15, v{vHH}")
    A(f"v_lshl_add_u32 v{vQA}, v{vR}, 4, v{vQA}")
    A(f"v_lshlrev_b32 v{vQA2}, 4, v{vR}")
    A(f"v_lshlrev_b32 v{vGA}, 2, v{vR}")
    A(f"s_lshl_b32 s{sT0}, s{sQ0}, 4")
    A(f"s_lshl_b32 s{sQOFF}, s{sPA}, 15")
    A(f"s_add_u32 s{sQOFF}, s{sQOFF}, s{sT0}")
    if QA:
        A(f"s_add_u32 s{sQOFF}, s{sQOFF}, {QA}")
    A(f"s_lshl_b32 s{sQOFF2}, s{sP2L}, 15")
    A(f"s_add_u32 s{sQOFF2}, s{sQOFF2}, s{sT0}")
    A(f"s_and_b32 s{sT1}, s{sH}, 1")
    A(f"s_lshl_b32 s{sT1}, s{sT1}, 3")
    A(f"s_add_u32 s{sQOFF2}, s{sQOFF2}, s{sT1}")
    if QA:
        A(f"s_add_u32 s{sQOFF2}, s{sQOFF2}, {QA}")
    A(f"s_lshl_b32 s{sGOFF}, s{sQ0}, 2")
    A(f"s_add_u32 s{sGOFF}, s{sGOFF}, {GATE}")


def setup_p2_1(A):
    A(f"s_and_b32 s{sT1}, s{sH}, 1")
    A(f"s_lshl_b32 s{sT1}, s{sT1}, 3")
    A(f"v_lshlrev_b32 v{vT}, 12, v{vHH}")
    A(f"v_lshl_add_u32 v{vT}, v{vR}, 4, v{vT}")
    A(f"v_lshlrev_b32 v{vT+1}, 4, v{vR}")
    A(f"v_add_u32 v{vT+1}, s{sT1}, v{vT+1}")
    A(f"v_mul_u32_u24 v{vT+2}, 320, v{vHH}")
    A(f"v_lshl_add_u32 v{vT+2}, v{vR}, 4, v{vT+2}")
    A(f"v_add_u32 v{vT+3}, {ONES}, v{vT+2}")
    A(f"v_cmp_gt_u32 vcc, 20, v{vR}")
    for sl in range(NSLOT):
        A(f"v_add_u32 v{vK01+sl}, {sl*SLOT}, v{vT}")
        A(f"v_add_u32 v{vK2+sl}, {sl*SLOT}, v{vT+1}")
        A(f"v_add_u32 v{vT+4}, {sl*SLOT + 12288}, v{vT+2}")
        A(f"v_cndmask_b32 v{vV+sl}, v{vT+3}, v{vT+4}, vcc")
    A(f"s_lshl_b32 s{sT2}, s{sPA}, 15")
    A(f"s_add_u32 s{sT2}, s{sT2}, {KA}")
    A(f"s_lshl_b32 s{sT3}, s{sP2L}, 15")
    A(f"s_add_u32 s{sT3}, s{sT3}, {KA - 8192}")
    A(f"s_add_u32 s{sT4}, s{sVH}, {VA - 12288}")
    for t in range(3):
        A(f"v_add_u32 v{vT}, s{sLDSW}, v{vL16}")
        if t:
            A(f"v_add_u32 v{vT}, {1024*t}, v{vT}")
        A(f"v_lshrrev_b32 v{vT+1}, 12, v{vT}")
        A(f"v_and_b32 v{vT+2}, 4095, v{vT}")
        A(f"v_lshl_add_u32 v{vT+2}, v{vT+1}, 15, v{vT+2}")
        A(f"v_add_u32 v{vT+2}, s{sT2}, v{vT+2}")
        A(f"v_add_u32 v{vT+3}, s{sT3}, v{vT}")
        A(f"v_add_u32 v{vT+4}, s{sT4}, v{vT}")
        A(f"v_cmp_eq_u32 vcc, 2, v{vT+1}")
        A(f"v_mov_b32 v{vT+5}, 4096")
        A(f"v_mov_b32 v{vT+6}, 10240")
        A(f"v_cndmask_b32 v{vT+2}, v{vT+2}, v{vT+3}, vcc")
        A(f"v_cmp_le_u32 vcc, 3, v{vT+1}")
        A("s_nop 1")
        A(f"v_cndmask_b32 v{vCB+t}, v{vT+2}, v{vT+4}, vcc")
        A(f"v_cndmask_b32 v{vCS+t}, v{vT+5}, v{vT+6}, vcc")


def setup_p2_2(A):
    A(f"s_lshr_b32 s{sT0}, s{sH}, 1")
    A(f"s_mul_i32 s{sT0}, s{sT0}, 5")
    A(f"s_and_b32 s{sT1}, s{sH}, 1")
    A(f"s_lshl_b32 s{sT2}, s{sT1}, 1")
    A(f"s_add_u32 s{sT2}, s{sT2}, s{sT0}")
    A(f"v_add_u32 v{vT}, s{sT2}, v{vHH}")
    A(f"v_lshlrev_b32 v{vT}, 15, v{vT}")
    A(f"v_lshl_add_u32 v{vOST}, v{vR}, 4, v{vT}")
    A(f"v_lshl_add_u32 v{vOST+1}, v{vR}, 5, v{vT}")
    A(f"s_add_u32 s{sT0}, s{sT0}, 4")
    A(f"s_lshl_b32 s{sT0}, s{sT0}, 15")
    A(f"s_lshl_b32 s{sT1}, s{sT1}, 3")
    A(f"s_add_u32 s{sT0}, s{sT0}, s{sT1}")
    A(f"v_lshlrev_b32 v{vT}, 4, v{vR}")
    A(f"v_add_u32 v{vOST+2}, s{sT0}, v{vT}")
    A(f"v_lshlrev_b32 v{vT}, 5, v{vR}")
    A(f"v_add_u32 v{vOST+3}, s{sT0}, v{vT}")
    A(f"s_mul_i32 s{sT0}, s{sH}, 20")
    A(f"s_add_u32 s{sT1}, s{sT0}, 19")
    A(f"s_lshr_b32 s{sT0}, s{sT0}, 7")
    A(f"s_lshr_b32 s{sT1}, s{sT1}, 7")
    A(f"v_bfe_u32 v{vT}, v{vL}, 4, 1")
    A(f"s_sub_u32 s{sT2}, s{sT1}, s{sT0}")
    A(f"v_mul_u32_u24 v{vT+1}, s{sT2}, v{vT}")
    A(f"v_add_u32 v{vT+1}, s{sT0}, v{vT+1}")
    A(f"v_mul_u32_u24 v{vT+2}, 5, v{vHH}")
    A(f"v_add_u32 v{vT+2}, 5, v{vT+2}")
    A(f"v_add_u32 v{vT+2}, v{vT+2}, v{vT+1}")
    A(f"v_and_b32 v{vT+3}, 15, v{vL}")
    A(f"v_lshl_add_u32 v{vT+2}, v{vT+2}, 4, v{vT+3}")
    A(f"v_lshlrev_b32 v{vF1}, 2, v{vT+2}")
    A(f"v_add_u32 v{vT+2}, {15*16}, v{vT+3}")
    A(f"v_lshlrev_b32 v{vF4}, 2, v{vT+2}")
    A(f"v_and_b32 v{vT+4}, 1, v{vL}")
    A(f"s_lshl_b32 s{sT3}, s{sQB}, 1")
    A(f"v_add_u32 v{vT+4}, s{sT3}, v{vT+4}")
    A(f"v_lshl_add_u32 v{vT+4}, v{vT+1}, 4, v{vT+4}")
    A(f"v_lshlrev_b32 v{vF2}, 2, v{vT+4}")
    A(f"v_and_b32 v{vT}, 1, v{vL}")
    A(f"v_mul_u32_u24 v{vT+1}, s{sT2}, v{vT}")
    A(f"v_add_u32 v{vT+1}, s{sT0}, v{vT+1}")
    A(f"v_bfe_u32 v{vT+2}, v{vL}, 1, 2")
    A(f"v_min_u32 v{vT+2}, 2, v{vT+2}")
    A(f"v_mul_u32_u24 v{vT+2}, 5, v{vT+2}")
    A(f"v_add_u32 v{vT+1}, v{vT+1}, v{vT+2}")
    A(f"s_lshr_b32 s{sT3}, s{sQT}, 1")
    A(f"s_max_u32 s{sT4}, s{sQT}, 1")
    A(f"s_sub_u32 s{sT4}, s{sT4}, 1")
    A(f"s_lshr_b32 s{sT4}, s{sT4}, 1")
    A(f"s_sub_u32 s{sT4}, s{sT3}, s{sT4}")
    A(f"v_bfe_u32 v{vT+2}, v{vL}, 3, 1")
    A(f"v_mul_u32_u24 v{vT+2}, s{sT4}, v{vT+2}")
    A(f"v_sub_u32 v{vT+2}, s{sT3}, v{vT+2}")
    A(f"v_lshl_add_u32 v{vT+1}, v{vT+1}, 4, v{vT+2}")
    A(f"v_lshlrev_b32 v{vF3}, 2, v{vT+1}")


def setup_p2_3(A):
    A(f"v_lshlrev_b32 v{vBA}, 15, v{vHH}")
    A(f"v_lshl_add_u32 v{vBA}, v{vR}, 4, v{vBA}")
    A(f"v_lshlrev_b32 v{vBA+1}, 4, v{vR}")
    A(f"v_and_b32 v{vT+2}, 25, v{vR}")
    A(f"v_bfe_u32 v{vT+3}, v{vR}, 1, 1")
    A(f"v_lshl_or_b32 v{vT+2}, v{vT+3}, 2, v{vT+2}")
    A(f"v_bfe_u32 v{vT+3}, v{vR}, 2, 1")
    A(f"v_lshl_or_b32 v{vT+2}, v{vT+3}, 1, v{vT+2}")
    A(f"v_lshlrev_b32 v{vT+3}, 15, v{vHH}")
    A(f"v_lshl_add_u32 v{vBA+2}, v{vT+2}, 4, v{vT+3}")
    A(f"v_lshlrev_b32 v{vBA+3}, 4, v{vT+2}")
    A(f"v_mul_u32_u24 v{vT+4}, 320, v{vHH}")
    A(f"v_lshl_add_u32 v{vBA+4}, v{vR}, 4, v{vT+4}")
    A(f"s_and_b32 s{sT1}, s{sW}, 1")
    A(f"s_lshl_b32 s{sT1}, s{sT1}, 10")
    A(f"s_lshl_b32 s{sT0}, s{sQT}, 5")
    A(f"s_add_u32 s{sT2}, s{sT1}, s{sT0}")
    A(f"s_lshl_b32 s{sT0}, s{sPA}, 15")
    A(f"s_lshl_b32 s{sT1}, s{sP2L}, 15")
    A(f"s_and_b32 s{sT3}, s{sH}, 1")
    A(f"s_lshl_b32 s{sT3}, s{sT3}, 3")
    A(f"s_add_u32 s{sT1}, s{sT1}, s{sT3}")
    for prev in range(2):
        if prev:
            A(f"s_cmp_eq_u32 s{sQT}, 0")
            A(f"s_cselect_b32 s{sT3}, 0, 32")
            A(f"s_sub_u32 s{sT2}, s{sT2}, s{sT3}")
        A(f"s_lshl_b32 s{sT3}, s{sT2}, 4")
        if not prev:
            A(f"s_add_u32 s{sBA}, s{sT3}, s{sT0}")
            A(f"s_add_u32 s{sBA}, s{sBA}, {QB}")
            A(f"s_add_u32 s{sBA+1}, s{sT3}, s{sT1}")
            A(f"s_add_u32 s{sBA+1}, s{sBA+1}, {QB}")
        o = sBA + 2 + 3 * prev
        A(f"s_add_u32 s{o}, s{sT3}, s{sT0}")
        A(f"s_add_u32 s{o}, s{o}, {KB}")
        A(f"s_add_u32 s{o+1}, s{sT3}, s{sT1}")
        A(f"s_add_u32 s{o+1}, s{o+1}, {KB}")
        A(f"s_lshr_b32 s{sT3}, s{sT2}, 4")
        A(f"s_mul_i32 s{sT3}, s{sT3}, 640")
        A(f"s_add_u32 s{o+2}, s{sT3}, s{sVH}")
        A(f"s_add_u32 s{o+2}, s{o+2}, {VB}")
    A(f"s_lshl_b32 s{sBA+8}, s{sBT}, 2")
    A(f"s_add_u32 s{sBA+8}, s{sBA+8}, {GATE}")


def setup_p2_4(A):
    sRT, sCO, sTG = sT1, sT2, sT3
    A(f"s_lshr_b32 s{sRT}, s{sH}, 3")
    A(f"s_lshl_b32 s{sT0}, s{sQB}, 2")
    A(f"s_add_u32 s{sRT}, s{sRT}, s{sT0}")
    A(f"s_and_b32 s{sCO}, s{sH}, 7")
    A(f"s_and_b32 s{sTG}, s{sW}, 3")
    A(f"s_lshr_b32 s{sKG}, s{sW}, 2")
    A(f"s_lshl_b32 s{sFLG}, s{sRT}, 8")
    A(f"s_mul_i32 s{sWSRC}, s{sW}, 20480")
    A(f"s_mul_i32 s{sT0}, s{sCO}, 1280")
    A(f"s_add_u32 s{sWSRC}, s{sWSRC}, s{sT0}")
    A(f"s_add_u32 s{sWSRC}, s{sWSRC}, {WOT}")
    A(f"s_lshl_b32 s{sRT}, s{sRT}, 6")
    A(f"s_lshl_b32 s{sTG}, s{sTG}, 4")
    A(f"s_add_u32 s{sRT}, s{sRT}, s{sTG}")
    A(f"s_mul_i32 s{sOUTO}, s{sRT}, 1280")
    A(f"s_mul_i32 s{sT0}, s{sCO}, 160")
    A(f"s_add_u32 s{sOUTO}, s{sOUTO}, s{sT0}")
    A(f"s_lshl_b32 s{sOCB}, s{sRT}, 4")
    A(f"s_mul_i32 s{sT0}, s{sKG}, {40*32768}")
    A(f"s_add_u32 s{sOCB}, s{sOCB}, s{sT0}")
    A(f"s_add_u32 s{sOCB}, s{sOCB}, {OC}")
    A(f"s_lshl_b32 s{sPUB}, s{sQT}, 6")
    A(f"s_lshl_b32 s{sT0}, s{sH}, 1")
    A(f"s_add_u32 s{sPUB}, s{sPUB}, s{sT0}")
    A(f"s_and_b32 s{sT0}, s{sW}, 1")
    A(f"s_add_u32 s{sPUB}, s{sPUB}, s{sT0}")
    A(f"s_lshl_b32 s{sPUB}, s{sPUB}, 2")
    A(f"v_lshlrev_b32 v{vFA}, 2, v{vL}")
    A(f"v_mov_b32 v{vW0}, v{vL16}")
    A(f"v_add_u32 v{vT}, 1024, v{vL16}")
    A(f"v_add_u32 v{vT+1}, {10240 - 256}, v{vL16}")
    A(f"v_cmp_gt_u32 vcc, 16, v{vL}")
    A(f"v_add_u32 v{vW2}, {10240 + 768}, v{vL16}")
    A(f"v_lshrrev_b32 v{vT+2}, 4, v{vL}")
    A(f"v_cndmask_b32 v{vW1}, v{vT+1}, v{vT}, vcc")
    A(f"v_and_b32 v{vT+3}, 15, v{vL}")
    A(f"v_lshlrev_b32 v{vT+4}, 15, v{vT+2}")
    A(f"v_lshl_add_u32 v{vOC}, v{vT+3}, 4, v{vT+4}")
    A(f"v_mul_u32_u24 v{vT+4}, 1280, v{vT+2}")
    A(f"v_lshl_add_u32 v{vWR}, v{vT+3}, 4, v{vT+4}")
    A(f"v_mul_u32_u24 v{vT+4}, 1280, v{vT+3}")
    A(f"v_lshl_add_u32 v{vST}, v{vT+2}, 3, v{vT+4}")


SETUP_P2 = [setup_p2_0, setup_p2_1, setup_p2_2, setup_p2_3, setup_p2_4]


def setup_phase2(A):
    for f in SETUP_P2:
        f(A)


def pattern_fill(A):
    for r in range(2):
        A(f"v_add_u32 v{vT}, {512*r}, v0")
        A(f"v_mul_u32_u24 v{vT+1}, 3277, v{vT}")
        A(f"v_lshrrev_b32 v{vT+1}, 16, v{vT+1}")
        A(f"v_mul_u32_u24 v{vT+1}, 20, v{vT+1}")
        A(f"v_cmp_eq_u32 vcc, v{vT+1}, v{vT}")
        A(f"v_mov_b32 v{vT+4}, 0")
        A(f"v_mov_b32 v{vT+5}, 0x3f803f80")
        A(f"v_cndmask_b32 v{vT+4}, v{vT+4}, v{vT+5}, vcc")
        for i in range(1, 4):
            A(f"v_mov_b32 v{vT+4+i}, v{vT+4}")
        if r == 1:
            A(f"v_cmp_gt_u32 vcc, {PAT_UNITS}, v{vT}")
        A(f"v_lshlrev_b32 v{vT}, 4, v{vT}")
        A(f"v_add_u32 v{vT}, {ONES}, v{vT}")
        if r == 1:
            A("s_and_saveexec_b64 s[%d:%d], vcc" % (sT4, sT5))
            A("s_cbranch_execz L_pat_done")
        A.lds(f"ds_write_b128 v{vT}, {v(vT+4,4)}", "pat")
    A.label("L_pat_done")
    A("s_mov_b64 exec, -1")


def gen(prof=False):
    A = Asm()
    A.prof = prof
    A.PROF_V = 239
    kernel_header(A, NAME)
    A("s_cmp_ge_u32 s2, 256")
    A("s_cbranch_scc1 L_end")
    A.stamp("start")
    A("s_load_dwordx4 s[4:7], s[0:1], 0")
    A(f"s_load_dwordx2 s[{sP}:{sP+1}], s[0:1], 32")
    A(f"s_load_dwordx2 s[{sP+2}:{sP+3}], s[0:1], 72")
    A(f"s_load_dwordx4 s[{sDBG}:{sDBG+3}], s[0:1], 56")
    A(f"v_lshrrev_b32 v{vT}, 6, v0")
    A(f"v_and_b32 v{vL}, 63, v0")
    A(f"v_readfirstlane_b32 s{sW}, v{vT}")
    A(f"v_and_b32 v{vR}, 31, v{vL}")
    A(f"v_lshrrev_b32 v{vHH}, 5, v{vL}")
    A(f"v_lshlrev_b32 v{vL16}, 4, v{vL}")
    A(f"s_and_b32 s{sT0}, s2, 7")
    A(f"s_lshr_b32 s{sT1}, s2, 3")
    A(f"s_and_b32 s{sRB}, s{sT0}, 1")
    A(f"s_lshl_b32 s{sRB}, s{sRB}, 3")
    A(f"s_and_b32 s{sT2}, s{sT1}, 7")
    A(f"s_add_u32 s{sRB}, s{sRB}, s{sT2}")
    A(f"s_lshr_b32 s{sCT}, s{sT0}, 1")
    A(f"s_lshl_b32 s{sCT}, s{sCT}, 2")
    A(f"s_lshr_b32 s{sT2}, s{sT1}, 3")
    A(f"s_add_u32 s{sCT}, s{sCT}, s{sT2}")
    A(f"s_and_b32 s{sGI}, s{sW}, 3")
    A(f"s_and_b32 s{sMH}, s{sGI}, 1")
    A(f"s_lshr_b32 s{sNH}, s{sGI}, 1")
    A(f"s_mul_i32 s{sXOFF}, s{sRB}, {128*1280}")
    A(f"s_lshl_b32 s{sWOFF}, s{sCT}, 8")
    A(f"s_lshl_b32 s{sLDS1}, s{sGI}, 10")
    A(f"s_mul_hi_u32 s{sT0}, s{sCT}, 0x33333334")
    A(f"s_mul_i32 s{sT0}, s{sT0}, 5")
    A(f"s_sub_u32 s{sCT5}, s{sCT}, s{sT0}")
    A(f"v_lshrrev_b32 v{vT}, 3, v{vL}")
    A(f"s_lshl_b32 s{sT0}, s{sGI}, 3")
    A(f"v_add_u32 v{vT}, s{sT0}, v{vT}")
    A(f"v_lshrrev_b32 v{vT+1}, 1, v{vT}")
    A(f"v_xor_b32 v{vT+1}, v{vT+1}, v{vL}")
    A(f"v_and_b32 v{vT+1}, 7, v{vT+1}")
    A(f"v_lshlrev_b32 v{vT+1}, 4, v{vT+1}")
    A(f"v_mul_u32_u24 v{vT+2}, 1280, v{vT}")
    A(f"v_add_u32 v{vXD}, v{vT+2}, v{vT+1}")
    A(f"v_lshrrev_b32 v{vT}, 4, v{vL}")
    A(f"v_lshlrev_b32 v{vT+1}, 2, v{vT}")
    A(f"v_xor_b32 v{vT+1}, v{vT+1}, v{vL}")
    A(f"v_and_b32 v{vT+1}, 15, v{vT+1}")
    A(f"v_lshlrev_b32 v{vT+1}, 4, v{vT+1}")
    A(f"s_lshl_b32 s{sT0}, s{sGI}, 2")
    A(f"v_add_u32 v{vT}, s{sT0}, v{vT}")
    A(f"v_mul_u32_u24 v{vT}, 3840, v{vT}")
    A(f"v_add_u32 v{vWD}, v{vT}, v{vT+1}")
    A("s_waitcnt lgkmcnt(0)")
    srd(A, sX, 4, X_BYTES)
    srd(A, sWA, 6, W_BYTES)
    srd(A, sWB, sP, W_BYTES)
    srd(A, sWS, sP + 2, WS_USED)
    srd(A, sOUT, sDBG, OUT_BYTES)
    A(f"s_mov_b32 s{sDBG}, s{sDBG+2}")
    A(f"s_and_b32 s{sDBG+1}, s{sDBG+3}, 0xffff")
    A(f"s_mov_b32 s{sDBG+2}, 256")
    A(f"s_mov_b32 s{sDBG+3}, 0x20000")
    A(f"s_cmp_eq_u32 s{sCT}, 15")
    A("s_cbranch_scc1 L_nodma")
    A(f"s_cmp_lt_u32 s{sW}, 4")
    A("s_cbranch_scc1 L_nodma")
    for b in range(3):
        for p in range(8):
            g_dma(A, b, p)
    A(f"s_cmp_ge_u32 s{sCT}, 10")
    A("s_cbranch_scc1 L_g1n")
    A("s_branch L_g1t")
    A.label("L_nodma")
    A(f"s_or_b32 s{sT0}, s2, s{sW}")
    A(f"s_cmp_lg_u32 s{sT0}, 0")
    A("s_cbranch_scc1 L_nonce_done")
    A(f"s_memrealtime s[{sT4}:{sT5}]")
    A("s_waitcnt lgkmcnt(0)")
    A(f"s_or_b32 s{sT0}, s{sT4}, 1")
    A(f"v_mov_b32 v{vT}, s{sT0}")
    A(f"v_mov_b32 v{vT+1}, 0")
    A("s_mov_b64 exec, 1")
    A(f"buffer_store_dword v{vT}, v{vT+1}, s[{sDBG}:{sDBG+3}], 0 offen sc1")
    A("s_mov_b64 exec, -1")
    A.label("L_nonce_done")
    if EXP.get("cpf"):
        A(f"s_lshr_b32 s{sT1}, s2, 3")
        A(f"s_cmp_ge_u32 s{sT1}, 8")
        A("s_cbranch_scc1 L_cpf_done")
        A(f"s_cmp_lg_u32 s{sW}, {EXP['cpf'] - 1}")
        A("s_cbranch_scc1 L_cpf_done")
        A(f"s_getpc_b64 s[{sT4}:{sT5}]")
        A.label("L_cpf_pc")
        A(f"s_sub_u32 s{sT4}, s{sT4}, L_cpf_pc - {NAME}")
        A(f"s_subb_u32 s{sT5}, s{sT5}, 0")
        A(f"s_lshl_b32 s{sT1}, s{sT1}, 13")
        A(f"v_lshlrev_b32 v{vT}, 7, v{vL}")
        A(f"v_add_u32 v{vT}, s{sT1}, v{vT}")
        A(f"v_min_u32 v{vT}, L_end - {NAME}, v{vT}")
        A(f"global_load_dword v{G_P}, v{vT}, s[{sT4}:{sT5}]")
        A.label("L_cpf_done")
    setup_phase1_reads(A)
    setup_phase2(A)
    A.stamp("issued")
    A(f"s_cmp_eq_u32 s{sCT}, 15")
    A("s_cbranch_scc1 L_spare")
    A(f"s_cmp_ge_u32 s{sCT}, 10")
    A("s_cbranch_scc1 L_vtile")
    if prof:
        A.stamps += ["blk0 landed", "gemm0", "epi0", "gemm1", "epi1"]
        if EXP.get("stampB"):
            A.stamps += ["B10", "B12", "B14", "B16"]
    gemm(A, True, "t")
    A("s_branch L_attn")
    A.label("L_vtile")
    gemm(A, False, "n")
    A.label("L_attn")
    A.vm_q, A.lds_q = [], []
    A("s_barrier")
    A.stamp("attn start")
    if EXP.get("prio") == 1:
        A(f"s_cmp_lt_u32 s{sW}, 4")
        A("s_cbranch_scc1 L_prio_done")
        A("s_setprio 1")
        A.label("L_prio_done")
    rd_k01(A, 0)
    rd_k2(A, 0)
    dma_chunk(A, 3)
    pattern_fill(A)
    b_consts(A)
    A.lds_wait_all()
    mf16(A, SA, K01, Q01, "0")
    mf8(A, SA, K2, Q2, v(SA, 16))
    A("s_nop 7")
    A("s_nop 5")
    max16(A, vT, SA, True)
    cross_half_max(A, vT, vT + 1)
    for i in range(16):
        A(f"v_sub_f32 v{NEGM+i}, 0, v{vT}")
    A("s_nop 1")
    mf16(A, SA, K01, Q01, v(NEGM, 16))
    mf8(A, SA, K2, Q2, v(SA, 16))
    A("s_barrier")
    rd_k01(A, 1)
    rd_k2(A, 1)
    rd_v(A, 0, 0)
    A("s_nop 7")
    A("s_nop 3")
    NT = 64
    sched = {}
    def at(t, half, fn):
        sched.setdefault((t, half), []).append(fn)
    fb_items = [(vFL, vF3, F1B, None), (vFL2, vF4, F1A, None)]
    pos = {}
    def issue(name, items):
        def f(A):
            pos[name] = poll_issue(A, items, name)
        return f
    at(13, 0, issue("f1b", fb_items))
    pre_barrier = {22: lambda A: poll_check(A, fb_items, pos["f1b"], "f1b"),
                   54: lambda A: poll_check(A, fo_items, pos["fb"], "fb")}
    at(22, 1, lambda A: A.vm(f"buffer_load_dword v{vG}, v{vGA}, {WS}, s{sGOFF} offen sc1", "g"))
    for i, f in enumerate(b_load_items()):
        at(25 + i // 2, i % 2, f)
    at(34, 1, b_unit)
    at(40, 0, lambda A: publish(A, sPUB, FLAGB, "stb"))
    fo_items = [(vFL, vFA, FLAGB, sFLG)]
    at(48, 0, issue("fb", fo_items))
    for k in range(10):
        at(55 + k // 2, k % 2, lambda A, k=k: oc_load(A, 1, k))
    for st in range(3):
        for p in range(3):
            i = 3 * st + p
            at(42 + i // 2, i % 2, lambda A, st=st, p=p: dma_w_piece(A, 1, st, p))
    for st in range(3, 5):
        for p in range(3):
            i = 3 * (st - 3) + p
            at(57 + i // 2, 1 - i % 2, lambda A, st=st, p=p: dma_w_piece(A, 1, st, p))
    for c in range(2, NCH - 2):
        for p in range(3):
            at(TPC * c - 1 + p // 2, 1 if p % 2 == 0 else 0, lambda A, c=c, p=p: dma_chunk_piece(A, c + 2, p))
    for t in range(NT):
        cur = SA if t % 2 == 0 else SB
        nxt = SB if t % 2 == 0 else SA
        if (t == 32 and not EXP.get("stampB")) or (EXP.get("stampB") and t in (21, 24)):
            A.stamp("t%d" % t)
        if t % TPC == TPC - 2 and t + 2 < NT:
            c = (t + 2) // TPC
            if c == 1:
                A.vm_wait(("c", 3))
            A.vm_wait(("c", c))
            if t in pre_barrier:
                pre_barrier[t](A)
            A("s_barrier")
            if c == 1:
                with Wave0(A, "pubb"):
                    publish(A, sF1, F1B)
        if EXP.get("prio") == 2 and t == 55:
            A(f"s_cmp_lt_u32 s{sW}, 4")
            A("s_cbranch_scc1 L_prio_done")
            A("s_setprio 1")
            A.label("L_prio_done")
        if EXP.get("prio") == 3 and t % 8 == 7:
            A(f"s_lshr_b32 s{sT0}, s{sW}, 2")
            A(f"s_cmp_eq_u32 s{sT0}, {(t // 8) % 2}")
            A(f"s_cbranch_scc1 L_prio_a{t}")
            A("s_setprio 0")
            A(f"s_branch L_prio_b{t}")
            A.label(f"L_prio_a{t}")
            A("s_setprio 1")
            A.label(f"L_prio_b{t}")
        if EXP.get("xbar") and t == EXP["xbar"]:
            A("s_barrier")
        if t == 63:
            A.vm_wait(("w", 1, 4))
        for f in sched.get((t, 0), []):
            f(A)
        if t + 1 < NT:
            A.lds_wait(("k01", t + 1))
            mf16(A, nxt, K01, Q01, "0" if EXP.get("m0") else v(NEGM, 16))
            if t + 2 < NT:
                rd_k01(A, t + 2)
        exps(A, cur, 0)
        if t > 0:
            A.lds_wait(("v", t - 1, 1))
            mf16(A, O, V1, P + 4, v(O, 16))
        rd_v(A, t, 1)
        exps(A, cur, 1)
        for f in sched.get((t, 1), []):
            f(A)
        if t + 1 < NT:
            A.lds_wait(("k2", t + 1))
            mf8(A, nxt, K2, Q2, v(nxt, 16))
            if t + 2 < NT:
                rd_k2(A, t + 2)
        exps(A, cur, 2)
        A.lds_wait(("v", t, 0))
        mf16(A, O, V0, P, "0" if t == 0 else v(O, 16))
        if t + 1 < NT:
            rd_v(A, t + 1, 0)
        exps(A, cur, 3)
    A.lds_wait(("v", NT - 1, 1))
    A("s_nop 1")
    mf16(A, O, V1, P + 4, v(O, 16))
    A(f"v_add_u32 v{vT+5}, 0x10000, v{vWR}")
    A(f"v_add_u32 v{vT+6}, 0x20000, v{vWR}")
    A(f"v_mov_b32 v{vT+3}, {hex(f32bits(BIG))}")
    A("s_nop 7")
    A("s_nop 3")
    A.stamp("loop end")
    row_sum(A, O)
    A(f"v_mul_f32 v{vT+2}, 0, v{O}")
    for i in range(1, 12):
        A(f"v_fma_f32 v{vT+2}, v{O+i}, 0, v{vT+2}")
    A(f"v_add_f32 v{vT+2}, v{vT+2}, v{vT+1}")
    A(f"v_cmp_lt_f32 vcc, v{vT+2}, v{vT+3}")
    A("s_nop 4")
    A("s_cmp_eq_u64 vcc, exec")
    A("s_cbranch_scc0 L_fallback")
    A.label("L_finish")
    A.vm_wait("g")
    finish_tile(A, O, vG, False, vOST, sQ0, 0, "sta")
    A(f"v_add_u32 v{vT+5}, 0x10000, v{vWR}")
    A(f"v_add_u32 v{vT+6}, 0x20000, v{vWR}")
    A("s_barrier")
    A.stamp("ring free") if not EXP.get("stampB") else None
    wa = [(st, p) for st in range(2) for p in range(3)]

    def hook_b(k, kg):
        if k < 6:
            st, p = wa[k]
            dma_w_piece(A, 0, st, p)
        if k == EXP.get("pubk", 1):
            publish(A, sPUB, FLAGA, "sta")
    outproj(A, 1, True, hook_b)
    A.stamp("b part") if not EXP.get("stampB") else None
    A("s_barrier")
    for st in range(2, 5):
        for p in range(3):
            dma_w_piece(A, 0, st, p)
    if EXP.get("notight"):
        fa_items = [(vFL, vFA, FLAGA, sFLG)]
        pfa = poll_issue(A, fa_items, "fa")
        poll_check(A, fa_items, pfa, "fa")
    else:
        poll_tight(A, FLAGA, sFLG, vFA, "fa")
    A("s_barrier")
    A.stamp("flags a") if not EXP.get("stampB") else None
    for k in range(10):
        oc_load(A, 0, k)
    A.vm_wait(("w", 0, 4))
    A("s_barrier")
    outproj(A, 0, False)
    A.stamp("a part") if not EXP.get("stampB") else None
    A(f"s_and_b32 s{sT0}, s{sW}, 3")
    A(f"s_mul_i32 s{sT0}, s{sT0}, 5120")
    A(f"v_add_u32 v{vT}, s{sT0}, v{vL16}")
    A(f"s_cmp_eq_u32 s{sKG}, 0")
    A("s_cbranch_scc1 L_red_a")

    def finish_out(tiles):
        A.lds_q = []
        for nt in tiles:
            A.lds(f"ds_read_b128 {v(WF+4*nt,4)}, v{vT} offset:{nt*1024}", ("r", nt))
        for nt in tiles:
            A.lds_wait(("r", nt))
            for i in range(4):
                A(f"v_add_f32 v{ACC+4*nt+i}, v{ACC+4*nt+i}, v{WF+4*nt+i}")
            A(f"v_cvt_pk_bf16_f32 v{ACC+4*nt}, v{ACC+4*nt}, v{ACC+4*nt+1}")
            A(f"v_cvt_pk_bf16_f32 v{ACC+4*nt+1}, v{ACC+4*nt+2}, v{ACC+4*nt+3}")
            A.vm(f"buffer_store_dwordx2 {v(ACC+4*nt,2)}, v{vST}, s[{sOUT}:{sOUT+3}], s{sOUTO} offen offset:{nt*32}{EXP.get('outst','')}", "st")

    A("s_nop 5")
    for nt in range(3):
        A(f"ds_write_b128 v{vT}, {v(ACC+4*nt,4)} offset:{nt*1024}")
    A("s_waitcnt lgkmcnt(0)")
    A("s_barrier")
    finish_out((3, 4))
    if prof:
        A.stamp("", len(A.stamps))
        A.stamp_flush(0, sWS, PROF, vT + 2)
    A("s_endpgm")
    A.label("L_red_a")
    A("s_nop 5")
    for nt in (3, 4):
        A(f"ds_write_b128 v{vT}, {v(ACC+4*nt,4)} offset:{nt*1024}")
    A("s_waitcnt lgkmcnt(0)")
    A("s_barrier")
    finish_out((0, 1, 2))
    A.stamp("end")
    if prof and EXP.get("dbg"):
        with Wave0(A, "dbgout"):
            A(f"v_subrev_u32 v{vT}, s{sNONCE}, v{A.PROF_V}")
            A(f"v_subrev_u32 v{vT+1}, 16, v{vL}")
            A(f"v_lshlrev_b32 v{vT+1}, 2, v{vT+1}")
            if EXP["dbg"] == 2:
                A(f"v_sub_u32 v{vT}, 0x100000, v{vT}")
            A("s_mov_b32 exec_lo, 0xfffe0000")
            A("s_mov_b32 exec_hi, 0")
            A(f"buffer_atomic_umax v{vT}, v{vT+1}, s[{sDBG}:{sDBG+3}], 0 offen")
            A("s_mov_b64 exec, -1")
    A.stamp_flush(0, sWS, PROF, vT)
    A("s_endpgm")
    fallback(A)
    spare(A)
    A.label("L_end")
    A("s_endpgm")
    kernel_footer(A, NAME, NV, 96)
    gen.stamps = getattr(A, "stamps", [])
    return A.text()

if __name__ == "__main__":
    print(gen())
```

```python
from asmlib import *
from layout2 import *

NAME = "gated_mix__softmax_full_mha__sliding_local_dilated__prompt_kernel"
EXP = {}
STAGE, NST, NB = 32768, 5, 20
SLOT = CHB
NSLOT = 4
TPC = CH // 32
NCH = S // CH
ONES = 4 * SLOT
PAT_UNITS = 672
WBASE = ONES + PAT_UNITS * 16
WSTG = 20480
LDS_BYTES = 163840
WB_OFF = [WBASE, WBASE + WSTG, WBASE + 2 * WSTG, 0, SLOT]
WA_OFF = [2 * SLOT, 3 * SLOT, WBASE, WBASE + WSTG, WBASE + 2 * WSTG]
assert WBASE + 3 * WSTG <= LDS_BYTES
BIG = 2.0 ** 64
SPIN_MAX = 1 << 16
sWS, sOUT = 8, 12
sW, sNONCE = 16, 17
sH, sQB, sPA, sLDSW, sLDSW2, sWSRC, sOCB, sFLG, sPUB, sOUTO, sKG, sQ0, sBT, sQT = range(18, 32)
sT0, sT1, sT2, sT3, sT4, sT5 = range(32, 38)
sM = 38
sLO20 = 40
sCNT = 42
sP2L = 43
sDBG = 44
sBA = 48
sVH = 57
sX, sWA, sWB = 60, 64, 68
sRB, sCT, sMH, sNH, sXOFF, sWOFF, sLDS1, sCT5, sTP, sB16, sQS, sGI = range(72, 84)
sQOFF, sQOFF2, sGOFF, sF1 = 88, 89, 90, 91
sP = 92
vL, vR, vHH = 1, 2, 3
vK01, vK2, vV = 4, 8, 12
vL16, vG, vGB, vFL = 16, 17, 18, 19
vT = 20
SA, SB, NEGM, O, P = 28, 44, 60, 76, 92
Q01, Q2, K01, K2, V0, V1 = 100, 104, 108, 112, 116, 120
BQ01, BQ2, BK01, BK2, BKP01, BKP2 = 124, 128, 132, 136, 140, 144
BV0, BV1, BVP, BS0, BS1, BO, BP = 148, 152, 156, 160, 176, 192, 208
vBA = 220
vW0, vW1, vW2, vOC, vWR, vST, vFA = 225, 226, 227, 228, 229, 230, 231
vF1, vF2, vF3, vF4 = 232, 233, 234, 241
vFL2 = 235
vQA, vQA2, vGA = 236, 237, 238
vOST = 252
vXD, vWD = 242, 243
vCB, vCS = 244, 247
vCT = 250
NV = 256
OCB, OCA, ACC, WF = 124, 164, 204, 28
G_ACC = 124
G_F = 28
G_P = 188
vA16 = 76
vXR, vWR1 = 106, 118
WS = f"s[{sWS}:{sWS+3}]"


def st1():
    return " sc1"


def publish(A, soff_reg, base, tag=None):
    if tag is not None:
        A.vm_wait(tag)
    A(f"v_mov_b32 v{vT}, s{sNONCE}")
    A(f"v_mov_b32 v{vT+1}, 0")
    A(f"s_add_u32 s{sT0}, s{soff_reg}, {base}")
    A("s_mov_b64 exec, 1")
    A.vm(f"buffer_store_dword v{vT}, v{vT+1}, {WS}, s{sT0} offen sc1", "pub")
    A("s_mov_b64 exec, -1")


class Wave0:
    def __init__(self, A, name):
        self.A, self.name = A, name
    def __enter__(self):
        A = self.A
        A(f"s_cmp_lg_u32 s{sW}, 0")
        A(f"s_cbranch_scc1 L_w0_{self.name}")
        self.saved = (list(A.vm_q), A.vm_count)
    def __exit__(self, *a):
        A = self.A
        A.vm_q, A.vm_count = self.saved
        A.label(f"L_w0_{self.name}")


def _poll_loads(A, items):
    for (vdst, voff, base, soff_reg) in items:
        if soff_reg is None:
            A(f"s_mov_b32 s{sT0}, {base}")
        else:
            A(f"s_add_u32 s{sT0}, s{soff_reg}, {base}")
        A(f"buffer_load_dword v{vdst}, v{voff}, {WS}, s{sT0} offen sc1")


def poll_issue(A, items, name):
    with Wave0(A, name + "_i"):
        _poll_loads(A, items)
    return A.vm_count


def poll_check(A, items, pos, name, inv=False, drain=False):
    def compare():
        for i, (vdst, _, _, _) in enumerate(items):
            if i == 0:
                A(f"v_cmp_eq_u32 vcc, s{sNONCE}, v{vdst}")
            else:
                A(f"v_cmp_eq_u32 s[{sT4}:{sT5}], s{sNONCE}, v{vdst}")
                A("s_nop 3")
                A(f"s_and_b64 vcc, vcc, s[{sT4}:{sT5}]")
        A("s_nop 3")
        A("s_cmp_eq_u64 vcc, exec")
    with Wave0(A, name + "_c"):
        A(f"s_waitcnt vmcnt({A.vm_count - pos})")
        compare()
        A(f"s_cbranch_scc1 L_{name}_ok")
        A(f"s_mov_b32 s{sCNT}, 0")
        A.label(f"L_{name}_spin")
        A("s_sleep 2")
        _poll_loads(A, items)
        A(f"s_add_u32 s{sCNT}, s{sCNT}, 1")
        A(f"s_cmp_ge_u32 s{sCNT}, {SPIN_MAX}")
        A(f"s_cbranch_scc1 L_{name}_ok")
        A("s_waitcnt vmcnt(0)")
        compare()
        A(f"s_cbranch_scc0 L_{name}_spin")
        A.label(f"L_{name}_ok")
        if inv:
            A("buffer_inv sc1")
        if drain:
            A("s_waitcnt vmcnt(0)")


def poll_tight(A, base, soff_reg, voff, name):
    regs = [vFL, vFL2, vT + 2, vT + 3]
    with Wave0(A, name):
        A(f"s_add_u32 s{sT1}, s{soff_reg}, {base}")
        for r in regs:
            A(f"buffer_load_dword v{r}, v{voff}, {WS}, s{sT1} offen sc1")
            A("s_sleep 1")
        A(f"s_mov_b32 s{sCNT}, 0")
        A.label(f"L_{name}_spin")
        for r in regs:
            A("s_waitcnt vmcnt(3)")
            A(f"v_cmp_eq_u32 vcc, s{sNONCE}, v{r}")
            A("s_nop 3")
            A("s_cmp_eq_u64 vcc, exec")
            A(f"s_cbranch_scc1 L_{name}_ok")
            A(f"buffer_load_dword v{r}, v{voff}, {WS}, s{sT1} offen sc1")
        A(f"s_add_u32 s{sCNT}, s{sCNT}, 1")
        A(f"s_cmp_lt_u32 s{sCNT}, {SPIN_MAX}")
        A(f"s_cbranch_scc1 L_{name}_spin")
        A.label(f"L_{name}_ok")


def nonce_issue(A):
    A(f"v_mov_b32 v{vT}, 0")
    A.vm(f"buffer_load_dword v{vFL}, v{vT}, s[{sDBG}:{sDBG+3}], 0 offen sc1", "nonce")


def nonce_check(A, name):
    A.vm_wait("nonce")
    A("s_nop 0")
    A(f"v_readfirstlane_b32 s{sNONCE}, v{vFL}")
    A("s_nop 3")
    A(f"s_cmp_lg_u32 s{sNONCE}, 0")
    A(f"s_cbranch_scc1 L_{name}_ok")
    A(f"s_mov_b32 s{sCNT}, 0")
    A.label(f"L_{name}_spin")
    A("s_sleep 1")
    A(f"v_mov_b32 v{vT}, 0")
    A(f"buffer_load_dword v{vFL}, v{vT}, s[{sDBG}:{sDBG+3}], 0 offen sc1")
    A(f"s_add_u32 s{sCNT}, s{sCNT}, 1")
    A(f"s_cmp_ge_u32 s{sCNT}, {SPIN_MAX}")
    A(f"s_cbranch_scc1 L_{name}_ok")
    A("s_waitcnt vmcnt(0)")
    A(f"v_readfirstlane_b32 s{sNONCE}, v{vFL}")
    A("s_nop 3")
    A(f"s_cmp_eq_u32 s{sNONCE}, 0")
    A(f"s_cbranch_scc1 L_{name}_spin")
    A.label(f"L_{name}_ok")


def g_dma(A, b, p):
    kb, st, t = b % 10, b % NST, p & 3
    A(f"s_add_u32 m0, s{sLDS1}, {st*STAGE + (p >> 2)*16384 + 4096*t}")
    if p < 4:
        A(f"s_add_u32 s{sT0}, s{sXOFF}, {kb*128 + t*40960}")
        A.vm(f"buffer_load_dwordx4 v{vXD}, s[{sX}:{sX+3}], s{sT0} offen lds", ("d", b))
    else:
        sw = sWA if b < 10 else sWB
        A(f"s_add_u32 s{sT0}, s{sWOFF}, {(kb*64 + 16*t) * 3840}")
        A.vm(f"buffer_load_dwordx4 v{vWD}, s[{sw}:{sw+3}], s{sT0} offen lds", ("d", b))


def g_acc(mt, nt):
    return G_ACC + 32 * mt + 16 * nt


def g_frag(s_, i):
    return G_F + 16 * (s_ % 3) + 4 * i


def g_read_list(s_):
    b, ks = divmod(s_, 4)
    st = b % NST
    base, off = st >> 1, (st & 1) * STAGE
    out = []
    for mt in range(2):
        out.append(f"ds_read_b128 {v(g_frag(s_, mt),4)}, v{vXR + 3*ks + base} offset:{off + mt*4096}")
    for nt in range(2):
        for q in range(2):
            out.append(f"ds_read_b64_tr_b16 {v(g_frag(s_, 2+nt)+2*q,2)}, v{vWR1 + 3*nt + base} offset:{off + 16384 + ks*4096 + q*1024}")
    return out


def g_reads(A, s_):
    for ins in g_read_list(s_):
        A.lds(ins, ("f", s_))


def g_step(A, s_, last, tr, extra=None):
    b, ks = divmod(s_, 4)
    A.lds_wait(("f", s_))
    nxt = g_read_list(s_ + 2) if s_ + 2 <= last else []
    for i, (mt, nt) in enumerate(((0, 0), (0, 1), (1, 0), (1, 1))):
        d = g_acc(mt, nt)
        c = "0" if (s_ % 40 == 0) else v(d, 16)
        x, w = g_frag(s_, mt), g_frag(s_, 2 + nt)
        a, bb = (w, x) if tr else (x, w)
        A(f"v_mfma_f32_32x32x16_bf16 {v(d,16)}, {v(a,4)}, {v(bb,4)}, {c}")
        for ins in nxt[2*i:2*i+2]:
            A.lds(ins, ("f", s_ + 2))
        if extra and i == 3:
            extra()


def epi_prepare(A, isb, tr, n):
    A(f"s_lshl_b32 s{sTP}, s{sRB}, 7")
    A(f"s_lshl_b32 s{sT0}, s{sMH}, 6")
    A(f"s_add_u32 s{sTP}, s{sTP}, s{sT0}")
    if isb:
        A(f"s_lshr_b32 s{sTP}, s{sTP}, 1")
    if tr:
        A(f"s_cmp_lt_u32 s{sCT}, 5")
        A(f"s_mov_b32 s{sT1}, {QB if isb else QA}")
        A(f"s_cselect_b32 s{sB16}, s{sT1}, {KB if isb else KA}")
        A(f"s_mov_b32 s{sT1}, {hex(f32bits(QSCALE))}")
        A(f"s_cselect_b32 s{sQS}, s{sT1}, 1.0")
        A(f"s_lshl_b32 s{sT0}, s{sCT5}, 1")
        A(f"s_add_u32 s{sT0}, s{sT0}, s{sNH}")
        A(f"s_lshl_b32 s{sT0}, s{sT0}, 18")
        A(f"s_add_u32 s{sB16}, s{sB16}, s{sT0}")
        A(f"s_lshl_b32 s{sT0}, s{sTP}, 4")
        A(f"s_add_u32 s{sB16}, s{sB16}, s{sT0}")
        A(f"v_lshlrev_b32 v{vA16}, 15, v{vHH}")
        if isb:
            A(f"v_and_b32 v{vT}, 1, v{vR}")
            A(f"v_lshl_add_u32 v{vA16}, v{vT}, 14, v{vA16}")
            A(f"v_lshrrev_b32 v{vT}, 1, v{vR}")
            A(f"v_lshl_add_u32 v{vA16}, v{vT}, 4, v{vA16}")
        else:
            A(f"v_lshl_add_u32 v{vA16}, v{vR}, 4, v{vA16}")
        A(f"v_mov_b32 v{vT+2}, s{sQS}")
        A(f"v_mov_b32 v{vT+3}, s{sQS}")
    else:
        A(f"v_mul_u32_u24 v{vT+1}, 320, v{vHH}")
        A(f"s_lshl_b32 s{sT0}, s{sCT5}, 7")
        A(f"s_lshl_b32 s{sT1}, s{sNH}, 6")
        A(f"s_add_u32 s{sT0}, s{sT0}, s{sT1}")
        for nt in range(2):
            A(f"v_add_u32 v{vT+2}, s{sT0}, v{vR}")
            if nt:
                A(f"v_add_u32 v{vT+2}, 32, v{vT+2}")
            A(f"v_mul_u32_u24 v{vT+3}, 3277, v{vT+2}")
            A(f"v_lshrrev_b32 v{vT+3}, 16, v{vT+3}")
            A(f"v_mul_u32_u24 v{vT+4}, 20, v{vT+3}")
            A(f"v_sub_u32 v{vT+4}, v{vT+2}, v{vT+4}")
            A(f"v_mul_u32_u24 v{vT+3}, {VH}, v{vT+3}")
            A(f"v_lshl_add_u32 v{vT+3}, v{vT+4}, 4, v{vT+3}")
            A(f"v_add_u32 v{vA16+nt}, v{vT+3}, v{vT+1}")
        A(f"s_lshr_b32 s{sT0}, s{sTP}, 4")
        A(f"s_mul_i32 s{sT0}, s{sT0}, 640")
        A(f"s_add_u32 s{sB16}, s{sT0}, {VB if isb else VA}")


def epi_group(A, isb, tr, g, tag):
    reg = G_P + 4 * g
    mt, nt, u = g >> 2, (g >> 1) & 1, g & 1
    src = g_acc(mt, nt)
    if tr:
        for jj in range(2):
            a = src + 4 * (2 * u + jj)
            A(f"v_pk_mul_f32 {v(a,2)}, {v(a,2)}, v[{vT+2}:{vT+3}]")
            A(f"v_pk_mul_f32 {v(a+2,2)}, {v(a+2,2)}, v[{vT+2}:{vT+3}]")
            A(f"v_cvt_pk_bf16_f32 v{reg+2*jj}, v{a}, v{a+1}")
            A(f"v_cvt_pk_bf16_f32 v{reg+2*jj+1}, v{a+2}, v{a+3}")
        A(f"s_add_u32 s{sT1}, s{sB16}, {(4*nt + 2*u)*PLANE + mt*(256 if isb else 512)}")
        A("s_nop 0")
        A(f"v_permlane32_swap_b32 v{reg}, v{reg+2}")
        A(f"v_permlane32_swap_b32 v{reg+1}, v{reg+3}")
        A.vm(f"buffer_store_dwordx4 {v(reg,4)}, v{vA16}, {WS}, s{sT1} offen sc1", tag)
    else:
        if isb:
            for j in range(4):
                A(f"v_cvt_pk_bf16_f32 v{reg+j}, v{src+4*j+u}, v{src+4*j+u+2}")
            A(f"s_add_u32 s{sT1}, s{sB16}, {mt*640 + u*64*640}")
        else:
            for p in range(4):
                A(f"v_cvt_pk_bf16_f32 v{reg+p}, v{src+8*u+2*p}, v{src+8*u+2*p+1}")
            A(f"s_add_u32 s{sT1}, s{sB16}, {(2*mt + u)*640}")
        A.vm(f"buffer_store_dwordx4 {v(reg,4)}, v{vA16+nt}, {WS}, s{sT1} offen sc1", tag)


def acquire_items():
    return [(vFL, vF1, F1A, None), (vFL2, vF2, F1A, None)]


def p2_load_items():
    def q01(A):
        A.vm(f"buffer_load_dwordx4 {v(Q01,4)}, v{vQA}, {WS}, s{sQOFF} offen sc1", "q")
    def q2(A):
        A(f"v_mov_b32 v{Q2}, 0")
        A(f"v_mov_b32 v{Q2+1}, 0")
        A("s_mov_b32 exec_hi, 0")
        A.vm(f"buffer_load_dwordx2 {v(Q2,2)}, v{vQA2}, {WS}, s{sQOFF2} offen sc1", "q")
        A("s_mov_b32 exec_hi, -1")
    items = [lambda A, p=p: dma_chunk_piece(A, 0, p) for p in range(3)] + [q01, q2]
    items += [lambda A, c=c, p=p: dma_chunk_piece(A, c, p) for c in (1, 2) for p in range(3)]
    return items


def gemm(A, tr, n):
    A.vm_q, A.lds_q = [], []
    if EXP.get("twa") == 99:
        touch_a(A, n)
    if EXP.get("twb") == 99:
        touch_wb(A, n)
    if EXP.get("tlb"):
        epi_prepare(A, False, tr, n)
        A(f"buffer_store_dword v{vL}, v{vA16}, {WS}, s{sB16} offen sc1")
    A("s_barrier")
    A.stamp("blk0 landed", 2)
    g_reads(A, 0)
    g_reads(A, 1)
    for s_ in range(40):
        b, ks = divmod(s_, 4)
        if ks == 2:
            A("s_barrier")
            if EXP.get("stampA") and b in (0, 2, 4, 6):
                A.stamp("", {0: 7, 2: 8, 4: 9, 6: 10}[b])
        if EXP.get("twa") is not None and s_ == EXP["twa"]:
            touch_a(A, n)
        if EXP.get("twb") is not None and s_ == EXP["twb"]:
            touch_wb(A, n)
        if s_ == 22:
            nonce_issue(A)
        if s_ == 30:
            nonce_check(A, f"nonce0{n}")
        g_step(A, s_, 39, tr)
    A.stamp("gemm0", 3)
    slices = [int(ch) for ch in str(EXP.get("sl", "8"))]
    assert sum(slices) == 8
    PUB, POLL, CHK = EXP.get("pub", 12), EXP.get("poll", 15), 18
    for p in range(8):
        g_dma(A, 13, p)
    epi_prepare(A, False, tr, n)
    A("s_nop 7")
    A("s_nop 3")
    done = 0
    for b in range(10, 19):
        k = slices[b - 10] if b - 10 < len(slices) else 0
        for g in range(done, done + k):
            epi_group(A, False, tr, g, "sa")
        if k and done + k == 8:
            A.stamp("epi0", 4)
        done += k
        if b == PUB:
            A.vm_wait("sa")
        if b == CHK:
            poll_check(A, acquire_items(), pos_f1, f"f1{n}")
        if b + 1 >= 13:
            A.vm_wait(("d", b + 1))
        A("s_barrier")
        if EXP.get("stampB") and b in (10, 12, 14, 16):
            A.stamp("", {10: 7, 12: 8, 14: 9, 16: 10}[b])
        if b + 4 < NB:
            for p in range(8):
                g_dma(A, b + 4, p)
        if b == PUB:
            with Wave0(A, f"puba{n}"):
                publish(A, sF1, F1A)
        if b == POLL:
            pos_f1 = poll_issue(A, acquire_items(), f"f1{n}")
    for f in p2_load_items():
        f(A)
    A.stamp("gemm1", 5)
    A.stamp("epi1", 6)
    A.vm_wait("q")
    A("s_branch L_attn")
    A.label(f"L_g1{n}")
    A.vm_q, A.lds_q = [("d", 0)] * 8 + [("d", 1)] * 8 + [("d", 2)] * 8, []
    A.vm_wait(("d", 0))
    A("s_barrier")
    A.stamp("issued", 1)
    A.stamp("blk0 landed", 2)
    for p in range(8):
        g_dma(A, 3, p)
    for b in range(10):
        if b == 0:
            setup_phase1_reads(A)
        if 1 <= b <= 5:
            SETUP_P2[b - 1](A)
        if b == 6:
            if EXP.get("tlb"):
                epi_prepare(A, True, tr, n)
                A(f"buffer_store_dword v{vL}, v{vA16}, {WS}, s{sB16} offen sc1")
                A(f"s_lshl_b32 s{sT0}, s{sQ0}, 4")
                A(f"s_add_u32 s{sT0}, s{sT0}, {OC}")
                A(f"buffer_store_dword v{vL}, v{vOST}, {WS}, s{sT0} offen sc1")
                A(f"s_lshl_b32 s{sT0}, s{sBT}, 4")
                A(f"s_add_u32 s{sT0}, s{sT0}, {OC + 80*32768}")
                A(f"buffer_store_dword v{vL}, v{vOST+1}, {WS}, s{sT0} offen sc1")
            nonce_issue(A)
        if b == 8:
            nonce_check(A, f"nonce1{n}")
        A.vm_wait(("d", b + 1))
        A("s_barrier")
        if EXP.get("stampA") and b in (0, 2, 4, 6):
            A.stamp("", {0: 7, 2: 8, 4: 9, 6: 10}[b])
        if b + 4 <= 12:
            for p in range(8):
                g_dma(A, b + 4, p)
    A.stamp("gemm0", 3)
    A.stamp("epi0", 4)
    g_reads(A, 40)
    g_reads(A, 41)
    pend = []
    for s_ in range(40, 80):
        b, ks = divmod(s_, 4)
        if ks == 2 and b + 1 < NB:
            if b + 1 <= 12:
                A.vm_wait(("d", b + 1))
            A("s_barrier")
            if EXP.get("stampB") and b in (10, 12, 14, 16):
                A.stamp("", {10: 7, 12: 8, 14: 9, 16: 10}[b])
            if b == 18:
                pend = p2_load_items()
        def extra():
            for _ in range(2):
                if pend:
                    pend.pop(0)(A)
        g_step(A, s_, 79, tr, extra)
    assert not pend
    A.stamp("gemm1", 5)
    epi_prepare(A, True, tr, n)
    A("s_nop 7")
    A("s_nop 3")
    for g in range(8):
        epi_group(A, True, tr, g, "sb")
    A.stamp("epi1", 6)
    A.vm_wait("q")


def spare(A):
    sWO, sG = sWA, sWB
    A.label("L_spare")
    A.vm_q, A.lds_q = [], []
    A("s_load_dwordx2 s[4:5], s[0:1], 16")
    A("s_load_dwordx2 s[6:7], s[0:1], 40")
    A(f"s_load_dwordx2 s[{sP}:{sP+1}], s[0:1], 48")
    A("s_waitcnt lgkmcnt(0)")
    A(f"s_cmp_lt_u32 s{sRB}, 8")
    A("s_cbranch_scc1 L_sp_a")
    A("s_mov_b32 s4, s6")
    A("s_mov_b32 s5, s7")
    A.label("L_sp_a")
    srd(A, sWO, 4, WO_BYTES)
    srd(A, sG, sP, 1280)
    A(f"s_and_b32 s{sT1}, s{sRB}, 7")
    A(f"s_mul_i32 s{sT1}, s{sT1}, {80*1280}")
    A(f"s_lshl_b32 s{sLDS1}, s{sW}, 10")
    A(f"s_add_u32 s{sT1}, s{sT1}, s{sLDS1}")
    for t in range(13):
        if t == 12:
            A(f"s_cmp_ge_u32 s{sW}, 4")
            A("s_cbranch_scc1 L_sp_dma_done")
        A(f"s_add_u32 m0, s{sLDS1}, {8192*t}")
        A(f"s_add_u32 s{sT0}, s{sT1}, {8192*t}")
        A(f"buffer_load_dwordx4 v{vL16}, s[{sWO}:{sWO+3}], s{sT0} offen lds")
    A.label("L_sp_dma_done")
    XG, GG = 28, 68
    A(f"v_lshrrev_b32 v{vT+1}, 2, v{vL}")
    A(f"s_lshl_b32 s{sT0}, s{sW}, 4")
    A(f"v_add_u32 v{vT+1}, s{sT0}, v{vT+1}")
    A(f"v_and_b32 v{vT+2}, 3, v{vL}")
    A(f"v_lshlrev_b32 v{vT+2}, 4, v{vT+2}")
    A(f"v_mul_u32_u24 v{vT+3}, 1280, v{vT+1}")
    A(f"v_add_u32 v{vT+3}, v{vT+3}, v{vT+2}")
    A(f"v_mov_b32 v{vT+4}, 0")
    for half in range(2):
        for i in range(10):
            A(f"buffer_load_dwordx4 {v(XG+4*i,4)}, v{vT+3}, s[{sX}:{sX+3}], s{sXOFF} offen offset:{(10*half+i)*64}")
            A(f"buffer_load_dwordx4 {v(GG+4*i,4)}, v{vT+2}, s[{sG}:{sG+3}], 0 offen offset:{(10*half+i)*64}")
        A("s_waitcnt vmcnt(0)")
        for i in range(40):
            A(f"v_dot2_f32_bf16 v{vT+4}, v{XG+i}, v{GG+i}, v{vT+4}")
    A("s_nop 2")
    A(f"v_add_f32_dpp v{vT+4}, v{vT+4}, v{vT+4} quad_perm:[1,0,3,2] row_mask:0xf bank_mask:0xf")
    A("s_nop 1")
    A(f"v_add_f32_dpp v{vT+4}, v{vT+4}, v{vT+4} quad_perm:[2,3,0,1] row_mask:0xf bank_mask:0xf")
    A(f"v_mul_f32 v{vT+4}, {hex(f32bits(-LOG2E))}, v{vT+4}")
    A(f"v_exp_f32 v{vT+4}, v{vT+4}")
    A("s_nop 0")
    A(f"v_add_f32 v{vT+4}, 1.0, v{vT+4}")
    A(f"v_rcp_f32 v{vT+4}, v{vT+4}")
    A(f"s_lshl_b32 s{sT0}, s{sRB}, 9")
    A(f"s_add_u32 s{sT0}, s{sT0}, {GATE}")
    A(f"v_lshlrev_b32 v{vT+1}, 2, v{vT+1}")
    A("s_mov_b32 exec_lo, 0x11111111")
    A("s_mov_b32 exec_hi, 0x11111111")
    A(f"buffer_store_dword v{vT+4}, v{vT+1}, {WS}, s{sT0} offen sc1")
    A("s_mov_b64 exec, -1")
    A("s_waitcnt vmcnt(0)")
    A("s_barrier")
    A(f"v_bfe_u32 v{vT+1}, v{vL}, 2, 2")
    A(f"v_mul_u32_u24 v{vT+1}, 1280, v{vT+1}")
    A(f"v_lshrrev_b32 v{vT+2}, 4, v{vL}")
    A(f"v_lshl_add_u32 v{vT+1}, v{vT+2}, 5, v{vT+1}")
    A(f"v_and_b32 v{vT+2}, 3, v{vL}")
    A(f"v_lshl_add_u32 v{vT+1}, v{vT+2}, 3, v{vT+1}")
    A(f"s_mul_i32 s{sT3}, s{sRB}, {10*10240}")
    A(f"s_add_u32 s{sT3}, s{sT3}, {WOT}")
    A(f"s_mov_b32 s{sT1}, s{sW}")
    A.label("L_sp_loop")
    A(f"s_mul_hi_u32 s{sT2}, s{sT1}, 0x1999999a")
    A(f"s_mul_i32 s{sT0}, s{sT2}, 10")
    A(f"s_sub_u32 s{sT0}, s{sT1}, s{sT0}")
    A(f"s_mul_hi_u32 s{sCNT}, s{sT2}, 0x33333334")
    A(f"s_mul_i32 s{sT4}, s{sCNT}, 5")
    A(f"s_sub_u32 s{sT4}, s{sT2}, s{sT4}")
    A(f"s_mul_i32 s{sCNT}, s{sCNT}, 40")
    A(f"s_lshl_b32 s{sT5}, s{sT4}, 3")
    A(f"s_cmp_ge_u32 s{sT4}, 2")
    A(f"s_cselect_b32 s{sM}, 4, 0")
    A(f"s_add_u32 s{sT5}, s{sT5}, s{sM}")
    A(f"s_cmp_eq_u32 s{sT4}, 4")
    A(f"s_cselect_b32 s{sT5}, 16, s{sT5}")
    A(f"s_cselect_b32 s{sM}, 20, 4")
    A(f"s_add_u32 s{sT5}, s{sT5}, s{sCNT}")
    A(f"s_mul_i32 s{sT4}, s{sT5}, 1280")
    A(f"s_mul_i32 s{sM}, s{sM}, 1280")
    A(f"s_lshl_b32 s{sT5}, s{sT0}, 7")
    A(f"s_add_u32 s{sT4}, s{sT4}, s{sT5}")
    A(f"v_add_u32 v{vT+3}, s{sT4}, v{vT+1}")
    A(f"v_add_u32 v{vT+4}, s{sM}, v{vT+3}")
    A(f"ds_read_b64_tr_b16 v[{XG}:{XG+1}], v{vT+3}")
    A(f"ds_read_b64_tr_b16 v[{XG+2}:{XG+3}], v{vT+4}")
    A(f"s_mul_i32 s{sT4}, s{sT2}, 10240")
    A(f"s_lshl_b32 s{sT5}, s{sT0}, 10")
    A(f"s_add_u32 s{sT4}, s{sT4}, s{sT5}")
    A(f"s_add_u32 s{sT4}, s{sT4}, s{sT3}")
    A("s_waitcnt lgkmcnt(0)")
    A(f"buffer_store_dwordx4 {v(XG,4)}, v{vL16}, {WS}, s{sT4} offen sc1")
    A(f"s_add_u32 s{sT1}, s{sT1}, 8")
    A(f"s_cmp_lt_u32 s{sT1}, 100")
    A("s_nop 1")
    A("s_cbranch_scc1 L_sp_loop")
    nonce_issue(A)
    nonce_check(A, "noncesp")
    A("s_waitcnt vmcnt(0)")
    A("s_barrier")
    A.vm_q = []
    with Wave0(A, "pubsp"):
        publish(A, sF1, F1A)
    pos = poll_issue(A, acquire_items(), "f1sp")
    poll_check(A, acquire_items(), pos, "f1sp")
    A("s_barrier")
    A.vm_q = []
    for f in p2_load_items():
        f(A)
    A.vm_wait("q")
    for i in (2, 3, 4, 5, 6) + ((7, 8, 9, 10) if (EXP.get("stampB") or EXP.get("stampA")) else ()):
        A.stamp("", i)
    A("s_branch L_attn")


def mf16(A, d, a, b, c):
    A(f"v_mfma_f32_32x32x16_bf16 {v(d,16)}, {v(a,4)}, {v(b,4)}, {c}")


def mf8(A, d, a, b, c):
    A(f"v_mfma_f32_32x32x8_bf16 {v(d,16)}, {v(a,2)}, {v(b,2)}, {c}")


def dma_chunk_piece(A, c, t):
    slot = c % NSLOT
    A(f"s_add_u32 m0, s{sLDSW}, {slot*SLOT + 1024*t}")
    A(f"v_mad_u32_u24 v{vCT}, v{vCS+t}, {c}, v{vCB+t}")
    if t == 2:
        A("s_mov_b32 exec_hi, 0xffff")
    A.vm(f"buffer_load_dwordx4 v{vCT}, {WS}, 0 offen sc1 lds", ("c", c))
    if t == 2:
        A("s_mov_b32 exec_hi, -1")


def dma_chunk(A, c):
    for t in range(3):
        dma_chunk_piece(A, c, t)


def dma_w_piece(A, part, st, t):
    off = (WA_OFF if part == 0 else WB_OFF)[st]
    A(f"s_add_u32 m0, s{sLDSW2}, {off + 1024*t}")
    A(f"s_add_u32 s{sT0}, s{sWSRC}, {(part*80 + 16*st)*10240}")
    if t == 2:
        A("s_mov_b32 exec_hi, 0")
    A.vm(f"buffer_load_dwordx4 v{(vW0, vW1, vW2)[t]}, {WS}, s{sT0} offen sc1 lds", ("w", part, st))
    if t == 2:
        A("s_mov_b32 exec_hi, -1")


def rd_k01(A, t):
    if EXP.get('halfrd') and t % 2 == 1:
        return
    c, tt = t // TPC, t % TPC
    A.lds(f"ds_read_b128 {v(K01,4)}, v{vK01 + c % NSLOT} offset:{tt*512}", ("k01", t))


def rd_k2(A, t):
    if EXP.get('halfrd') and t % 2 == 1:
        return
    c, tt = t // TPC, t % TPC
    A.lds(f"ds_read_b64 {v(K2,2)}, v{vK2 + c % NSLOT} offset:{8192 + tt*512}", ("k2", t))


def rd_v(A, t, a):
    if EXP.get('halfrd') and t % 2 == 1:
        return
    c, tt = t // TPC, t % TPC
    A.lds(f"ds_read_b128 {v(V1 if a else V0,4)}, v{vV + c % NSLOT} offset:{(2*tt + a)*640}", ("v", t, a))


def exps(A, sreg, g, preg=P):
    for i in range(4):
        A(f"v_exp_f32 v{sreg+4*g+i}, v{sreg+4*g+i}")
    A(f"v_cvt_pk_bf16_f32 v{preg+2*g}, v{sreg+4*g}, v{sreg+4*g+1}")
    A(f"v_cvt_pk_bf16_f32 v{preg+2*g+1}, v{sreg+4*g+2}, v{sreg+4*g+3}")


def cross_half_max(A, reg, tmp):
    A(f"v_mov_b32 v{tmp}, v{reg}")
    A("s_nop 1")
    A(f"v_permlane32_swap_b32 v{reg}, v{tmp}")
    A("s_nop 1")
    A(f"v_max_f32 v{reg}, v{reg}, v{tmp}")


def max16(A, dst, src, first):
    if first:
        A(f"v_max3_f32 v{dst}, v{src}, v{src+1}, v{src+2}")
        rest = list(range(3, 16))
    else:
        rest = list(range(0, 16))
    while rest:
        if len(rest) >= 2:
            A(f"v_max3_f32 v{dst}, v{dst}, v{src+rest[0]}, v{src+rest[1]}")
            rest = rest[2:]
        else:
            A(f"v_max_f32 v{dst}, v{dst}, v{src+rest[0]}")
            rest = rest[1:]


def row_sum(A, oreg):
    A(f"v_mov_b32 v{vT}, v{oreg+8}")
    A(f"v_mov_b32 v{vT+1}, v{oreg+8}")
    A("s_nop 1")
    A(f"v_permlane32_swap_b32 v{vT}, v{vT+1}")


def finish_tile(A, oreg, gate, one_minus, vaddr, tok_sreg, chunk0, tag):
    A(f"v_rcp_f32 v{vT+2}, v{vT+1}")
    A(f"s_lshl_b32 s{sT0}, s{tok_sreg}, 4")
    A(f"s_add_u32 s{sT0}, s{sT0}, {OC + chunk0*32768}")
    if one_minus:
        A(f"v_sub_f32 v{vT}, 1.0, v{gate}")
        A(f"v_mul_f32 v{vT+2}, v{vT+2}, v{vT}")
    else:
        A(f"v_mul_f32 v{vT+2}, v{vT+2}, v{gate}")
    A(f"v_mov_b32 v{vT+3}, v{vT+2}")
    for i in range(0, 12, 2):
        A(f"v_pk_mul_f32 {v(oreg+i,2)}, {v(oreg+i,2)}, v[{vT+2}:{vT+3}]")
    for i in range(4):
        A(f"v_cvt_pk_bf16_f32 v{oreg+i}, v{oreg+2*i}, v{oreg+2*i+1}")
    A(f"v_cvt_pk_bf16_f32 v{oreg+8}, v{oreg+8}, v{oreg+9}")
    A(f"v_cvt_pk_bf16_f32 v{oreg+9}, v{oreg+10}, v{oreg+11}")
    A(f"v_permlane32_swap_b32 v{oreg}, v{oreg+2}")
    A(f"v_permlane32_swap_b32 v{oreg+1}, v{oreg+3}")
    A.vm(f"buffer_store_dwordx4 {v(oreg,4)}, v{vaddr}, {WS}, s{sT0} offen sc1", tag)
    A("s_mov_b32 exec_hi, 0")
    A.vm(f"buffer_store_dwordx2 {v(oreg+8,2)}, v{vaddr+2}, {WS}, s{sT0} offen sc1", tag)
    A("s_mov_b64 exec, -1")


def oc_load(A, part, k):
    reg = OCA if part == 0 else OCB
    A(f"s_add_u32 s{sT0}, s{sOCB}, {(part*80 + 4*k)*32768}")
    A.vm(f"buffer_load_dwordx4 {v(reg+4*k,4)}, v{vOC}, {WS}, s{sT0} offen sc1", ("oc", part, k))


def outproj(A, part, first, hook=None):
    offs = WA_OFF if part == 0 else WB_OFF
    reg = OCA if part == 0 else OCB
    for kg in range(2):
        if kg == 0:
            A(f"s_cmp_eq_u32 s{sKG}, 1")
            A(f"s_cbranch_scc1 L_op{part}_g1")
            saved = (list(A.vm_q), list(A.lds_q))
        else:
            A.label(f"L_op{part}_g1")
            A.vm_q, A.lds_q = list(saved[0]), list(saved[1])
        seq = [(k, nt) for k in range(10) for nt in range(5)]

        def rd(i):
            k, nt = seq[i]
            kk = 10 * kg + k
            off = offs[kk // 4] + (kk % 4) * 5120 + nt * 256
            areg = (vWR, vT + 5, vT + 6)[off >> 16]
            A.lds(f"ds_read_b128 {v(WF + (i % 8)*4,4)}, v{areg} offset:{off & 0xffff}", ("wf", i))

        LOOK = 5
        for i in range(LOOK):
            rd(i)
        for i, (k, nt) in enumerate(seq):
            if i + LOOK < len(seq):
                rd(i + LOOK)
            if nt == 0:
                A.vm_wait(("oc", part, k))
                if hook:
                    hook(k, kg)
            A.lds_wait(("wf", i))
            c = "0" if (first and k == 0) else v(ACC + 4*nt, 4)
            A(f"v_mfma_f32_16x16x32_bf16 {v(ACC+4*nt,4)}, {v(WF + (i % 8)*4,4)}, {v(reg+4*k,4)}, {c}")
        if kg == 0:
            end0 = (list(A.vm_q), list(A.lds_q))
            A(f"s_branch L_op{part}_done")
    A.label(f"L_op{part}_done")
    assert end0[0] == A.vm_q and end0[1] == A.lds_q


def keypos(kappa):
    return (kappa & 25) | ((kappa >> 1) & 1) << 2 | ((kappa >> 2) & 1) << 1


def band_mask(j, i, prev):
    m = 0
    for l in range(64):
        q, hh = l & 31, l >> 5
        key = keypos(8 * j + 4 * hh + i) - (32 if prev else 0)
        if 0 <= q - key <= 7:
            m |= 1 << l
    return m


def b_consts(A):
    A(f"v_cmp_eq_u32 vcc, 20, v{vR}")
    A(f"v_mov_b32 v{vT+6}, 0")
    A(f"v_mov_b32 v{vT+7}, 0x3f803f80")
    A(f"v_cndmask_b32 v{vT+6}, v{vT+6}, v{vT+7}, vcc")
    for base in (BV0, BV1, BVP):
        for i in range(4):
            A(f"v_mov_b32 v{base+i}, v{vT+6}")
    A(f"v_mov_b32 v{BQ2}, 0")
    A(f"v_mov_b32 v{BQ2+1}, 0")


def b_load_items():
    def mk(instr, pre=None, gate=False):
        def f(A):
            if gate:
                A(f"v_lshlrev_b32 v{vCT}, 1, v{vGA}")
                A.vm(instr.replace(f"v{vGA},", f"v{vCT},"), "b")
                return
            if pre:
                A(pre)
            A.vm(instr, "b")
            if pre:
                A("s_mov_b64 exec, -1")
        return f
    lo20 = f"s_mov_b64 exec, s[{sLO20}:{sLO20+1}]"
    return [
        mk(f"buffer_load_dwordx4 {v(BQ01,4)}, v{vBA}, {WS}, s{sBA} offen sc1"),
        mk(f"buffer_load_dwordx4 {v(BK01,4)}, v{vBA+2}, {WS}, s{sBA+2} offen sc1"),
        mk(f"buffer_load_dwordx2 {v(BK2,2)}, v{vBA+3}, {WS}, s{sBA+3} offen sc1"),
        mk(f"buffer_load_dwordx4 {v(BKP01,4)}, v{vBA+2}, {WS}, s{sBA+5} offen sc1"),
        mk(f"buffer_load_dwordx2 {v(BKP2,2)}, v{vBA+3}, {WS}, s{sBA+6} offen sc1"),
        mk(f"buffer_load_dword v{vGB}, v{vGA}, {WS}, s{sBA+8} offen sc1", None, True),
        mk(f"buffer_load_dwordx2 {v(BQ2,2)}, v{vBA+1}, {WS}, s{sBA+1} offen sc1", "s_mov_b32 exec_hi, 0"),
        mk(f"buffer_load_dwordx4 {v(BV0,4)}, v{vBA+4}, {WS}, s{sBA+4} offen sc1", lo20),
        mk(f"buffer_load_dwordx4 {v(BV1,4)}, v{vBA+4}, {WS}, s{sBA+4} offen offset:640 sc1", lo20),
        mk(f"buffer_load_dwordx4 {v(BVP,4)}, v{vBA+4}, {WS}, s{sBA+7} offen offset:640 sc1", lo20),
    ]


def b_unit(A):
    S0, S1 = BS0, BS1
    A.vm_wait("b")
    mf16(A, S0, BK01, BQ01, "0")
    mf16(A, S1, BKP01, BQ01, "0")
    mf8(A, S0, BK2, BQ2, v(S0, 16))
    mf8(A, S1, BKP2, BQ2, v(S1, 16))
    A(f"v_mov_b32 v{vT}, {hex(f32bits(-1e30))}")
    A(f"s_cmp_eq_u32 s{sQT}, 0")
    A(f"s_cselect_b32 s{sT3}, 0, -1")
    A("s_nop 7")
    A("s_nop 5")
    for j in range(4):
        for i in range(4):
            m = band_mask(j, i, False)
            A(f"s_mov_b32 s{sM}, {hex(m & 0xffffffff)}")
            A(f"s_mov_b32 s{sM+1}, {hex(m >> 32)}")
            A(f"v_cndmask_b32 v{S0+4*j+i}, v{vT}, v{S0+4*j+i}, s[{sM}:{sM+1}]")
    for i in range(4):
        m = band_mask(3, i, True)
        A(f"s_and_b32 s{sM}, s{sT3}, {hex(m & 0xffffffff)}")
        A(f"s_and_b32 s{sM+1}, s{sT3}, {hex(m >> 32)}")
        A(f"v_cndmask_b32 v{S1+12+i}, v{vT}, v{S1+12+i}, s[{sM}:{sM+1}]")
    max16(A, vT + 1, S0, True)
    A(f"v_max3_f32 v{vT+1}, v{vT+1}, v{S1+12}, v{S1+13}")
    A(f"v_max3_f32 v{vT+1}, v{vT+1}, v{S1+14}, v{S1+15}")
    cross_half_max(A, vT + 1, vT + 2)
    for r in list(range(S0, S0 + 16)) + list(range(S1 + 12, S1 + 16)):
        A(f"v_sub_f32 v{r}, v{r}, v{vT+1}")
    for g in range(4):
        exps(A, S0, g, BP)
    PP = BP + 8
    for i in range(4):
        A(f"v_exp_f32 v{S1+12+i}, v{S1+12+i}")
    A(f"v_mov_b32 v{PP}, 0")
    A(f"v_mov_b32 v{PP+1}, 0")
    A(f"v_cvt_pk_bf16_f32 v{PP+2}, v{S1+12}, v{S1+13}")
    A(f"v_cvt_pk_bf16_f32 v{PP+3}, v{S1+14}, v{S1+15}")
    A("s_nop 1")
    mf16(A, BO, BV0, BP, "0")
    mf16(A, BO, BV1, BP + 4, v(BO, 16))
    mf16(A, BO, BVP, PP, v(BO, 16))
    A("s_nop 7")
    A("s_nop 3")
    row_sum(A, BO)
    A("s_nop 1")
    finish_tile(A, BO, vGB, True, vOST + 1, sBT, 80, "stb")


def fallback(A):
    A.label("L_fallback")
    A("s_waitcnt vmcnt(0) lgkmcnt(0)")
    A(f"v_lshlrev_b32 v{vT+4}, 15, v{vHH}")
    A(f"v_lshl_add_u32 v{vT+4}, v{vR}, 4, v{vT+4}")
    A(f"v_lshlrev_b32 v{vT+5}, 4, v{vR}")
    A(f"v_mul_u32_u24 v{vT+6}, 320, v{vHH}")
    A(f"v_lshl_add_u32 v{vT+6}, v{vR}, 4, v{vT+6}")
    A(f"v_mov_b32 v{vT+7}, {hex(f32bits(-3.0e38))}")

    def tile_addr():
        A(f"s_lshl_b32 s{sT0}, s{sCNT}, 9")
        A(f"s_lshl_b32 s{sT1}, s{sPA}, 15")
        A(f"s_add_u32 s{sT1}, s{sT1}, s{sT0}")
        A(f"s_add_u32 s{sT1}, s{sT1}, {KA}")
        A(f"s_lshl_b32 s{sT2}, s{sP2L}, 15")
        A(f"s_add_u32 s{sT2}, s{sT2}, s{sT0}")
        A(f"s_and_b32 s{sT3}, s{sH}, 1")
        A(f"s_lshl_b32 s{sT3}, s{sT3}, 3")
        A(f"s_add_u32 s{sT2}, s{sT2}, s{sT3}")
        A(f"s_add_u32 s{sT2}, s{sT2}, {KA}")
        A(f"s_mul_i32 s{sT3}, s{sCNT}, 1280")
        A(f"s_add_u32 s{sT3}, s{sT3}, s{sVH}")
        A(f"s_add_u32 s{sT3}, s{sT3}, {VA}")

    A(f"s_mov_b32 s{sCNT}, 0")
    A.label("L_fb1")
    tile_addr()
    A(f"buffer_load_dwordx4 {v(K01,4)}, v{vT+4}, {WS}, s{sT1} offen sc1")
    A(f"buffer_load_dwordx2 {v(K2,2)}, v{vT+5}, {WS}, s{sT2} offen sc1")
    A("s_waitcnt vmcnt(0)")
    mf16(A, SA, K01, Q01, "0")
    mf8(A, SA, K2, Q2, v(SA, 16))
    A("s_nop 7")
    A("s_nop 7")
    max16(A, vT + 7, SA, False)
    A(f"s_add_u32 s{sCNT}, s{sCNT}, 1")
    A(f"s_cmp_lt_u32 s{sCNT}, 64")
    A("s_cbranch_scc1 L_fb1")
    cross_half_max(A, vT + 7, vT)
    for i in range(16):
        A(f"v_sub_f32 v{NEGM+i}, 0, v{vT+7}")
        A(f"v_mov_b32 v{O+i}, 0")
    A(f"v_cmp_eq_u32 vcc, 20, v{vR}")
    A(f"v_mov_b32 v{vT}, 0")
    A(f"v_mov_b32 v{vT+1}, 0x3f803f80")
    A(f"v_cndmask_b32 v{vT}, v{vT}, v{vT+1}, vcc")
    for i in range(4):
        A(f"v_mov_b32 v{V0+i}, v{vT}")
        A(f"v_mov_b32 v{V1+i}, v{vT}")
    A(f"s_mov_b32 s{sCNT}, 0")
    A.label("L_fb2")
    tile_addr()
    A(f"buffer_load_dwordx4 {v(K01,4)}, v{vT+4}, {WS}, s{sT1} offen sc1")
    A(f"buffer_load_dwordx2 {v(K2,2)}, v{vT+5}, {WS}, s{sT2} offen sc1")
    A(f"s_mov_b64 exec, s[{sLO20}:{sLO20+1}]")
    A(f"buffer_load_dwordx4 {v(V0,4)}, v{vT+6}, {WS}, s{sT3} offen sc1")
    A(f"buffer_load_dwordx4 {v(V1,4)}, v{vT+6}, {WS}, s{sT3} offen offset:640 sc1")
    A("s_mov_b64 exec, -1")
    A("s_waitcnt vmcnt(0)")
    mf16(A, SA, K01, Q01, v(NEGM, 16))
    mf8(A, SA, K2, Q2, v(SA, 16))
    A("s_nop 7")
    A("s_nop 7")
    for g in range(4):
        exps(A, SA, g)
    A("s_nop 1")
    mf16(A, O, V0, P, v(O, 16))
    mf16(A, O, V1, P + 4, v(O, 16))
    A(f"s_add_u32 s{sCNT}, s{sCNT}, 1")
    A(f"s_cmp_lt_u32 s{sCNT}, 64")
    A("s_cbranch_scc1 L_fb2")
    A("s_nop 7")
    A("s_nop 7")
    row_sum(A, O)
    A("s_nop 1")
    A("s_branch L_finish")


def touch_chip(A, which):
    A(f"s_and_b32 s{sT1}, s{sW}, 1")
    A(f"s_lshl_b32 s{sT1}, s{sT1}, 6")
    A(f"v_add_u32 v{vT}, s{sT1}, v{vL}")
    A(f"s_cmp_ge_u32 s{sW}, 2")
    A(f"s_cbranch_scc1 L_tc_w{which}")
    if "x" in which:
        A(f"v_min_u32 v{vT}, 79, v{vT}")
        A(f"v_lshlrev_b32 v{vT}, 7, v{vT}")
        A(f"s_mul_i32 s{sT0}, s2, 10240")
        A(f"buffer_load_dword v{G_P+1}, v{vT}, s[{sX}:{sX+3}], s{sT0} offen")
    A(f"s_branch L_tc_done{which}")
    A.label(f"L_tc_w{which}")
    A(f"v_min_u32 v{vT}, 74, v{vT}")
    A(f"v_lshlrev_b32 v{vT}, 7, v{vT}")
    A(f"s_mul_i32 s{sT0}, s2, 9600")
    if "a" in which:
        A(f"buffer_load_dword v{G_P+2}, v{vT}, s[{sWA}:{sWA+3}], s{sT0} offen")
    if "b" in which:
        A(f"buffer_load_dword v{G_P+3}, v{vT}, s[{sWB}:{sWB+3}], s{sT0} offen")
    A.label(f"L_tc_done{which}")


def touch_wb(A, n):
    A(f"s_cmp_ge_u32 s{sW}, 3")
    A(f"s_cbranch_scc1 L_twb{n}")
    A(f"s_and_b32 s{sT0}, s{sRB}, 7")
    A(f"s_mul_i32 s{sT0}, s{sT0}, 80")
    A(f"s_lshl_b32 s{sT1}, s{sW}, 5")
    A(f"v_lshrrev_b32 v{vT}, 1, v{vL}")
    A(f"v_add_u32 v{vT}, s{sT1}, v{vT}")
    A(f"v_min_u32 v{vT}, 79, v{vT}")
    A(f"v_add_u32 v{vT}, s{sT0}, v{vT}")
    A(f"v_mul_u32_u24 v{vT}, 3840, v{vT}")
    A(f"v_and_b32 v{vT+1}, 1, v{vL}")
    A(f"v_lshl_add_u32 v{vT}, v{vT+1}, 7, v{vT}")
    A(f"buffer_load_dword v{G_P}, v{vT}, s[{sWB}:{sWB+3}], s{sWOFF} offen")
    A.label(f"L_twb{n}")


def touch_a(A, n):
    A(f"v_mul_u32_u24 v{vT}, 37, v{vL}")
    A(f"v_lshrrev_b32 v{vT}, 8, v{vT}")
    A(f"v_mul_u32_u24 v{vT+1}, 7, v{vT}")
    A(f"v_sub_u32 v{vT+1}, v{vL}, v{vT+1}")
    A(f"v_min_u32 v{vT}, 7, v{vT}")
    A(f"s_and_b32 s{sT0}, s{sCT}, 3")
    A(f"s_lshl_b32 s{sT0}, s{sT0}, 2")
    A(f"s_add_u32 s{sT0}, s{sT0}, s{sW}")
    A(f"s_lshl_b32 s{sT0}, s{sT0}, 3")
    A(f"v_add_u32 v{vT}, s{sT0}, v{vT}")
    A(f"v_mul_u32_u24 v{vT}, 1280, v{vT}")
    A(f"v_lshl_add_u32 v{vT}, v{vT+1}, 7, v{vT}")
    A(f"v_add_u32 v{vT}, 384, v{vT}")
    A(f"buffer_load_dword v{G_P+1}, v{vT}, s[{sX}:{sX+3}], s{sXOFF} offen")
    A(f"s_cmp_ge_u32 s{sW}, 2")
    A(f"s_cbranch_scc1 L_twa{n}")
    A(f"s_and_b32 s{sT0}, s{sRB}, 7")
    A(f"s_mul_i32 s{sT0}, s{sT0}, 56")
    A(f"s_mul_i32 s{sT1}, s{sW}, 28")
    A(f"s_add_u32 s{sT0}, s{sT0}, s{sT1}")
    A(f"s_add_u32 s{sT0}, s{sT0}, 192")
    A(f"v_lshrrev_b32 v{vT}, 1, v{vL}")
    A(f"v_min_u32 v{vT}, 27, v{vT}")
    A(f"v_add_u32 v{vT}, s{sT0}, v{vT}")
    A(f"v_mul_u32_u24 v{vT}, 3840, v{vT}")
    A(f"v_and_b32 v{vT+1}, 1, v{vL}")
    A(f"v_lshl_add_u32 v{vT}, v{vT+1}, 7, v{vT}")
    A(f"buffer_load_dword v{G_P+2}, v{vT}, s[{sWA}:{sWA+3}], s{sWOFF} offen")
    A.label(f"L_twa{n}")


def setup_phase1_reads(A):
    A(f"v_lshrrev_b32 v{vT+2}, 1, v{vR}")
    A(f"v_and_b32 v{vT+2}, 7, v{vT+2}")
    A(f"v_xor_b32 v{vT+2}, v{vT+2}, v{vHH}")
    A(f"v_lshlrev_b32 v{vT+2}, 4, v{vT+2}")
    A(f"s_lshl_b32 s{sT0}, s{sMH}, 6")
    A(f"v_add_u32 v{vT+3}, s{sT0}, v{vR}")
    A(f"v_lshl_add_u32 v{vXR}, v{vT+3}, 7, v{vT+2}")
    for ks in range(1, 4):
        A(f"v_xor_b32 v{vXR+3*ks}, {ks*32}, v{vXR}")
    for ks in range(4):
        A(f"v_add_u32 v{vXR+3*ks+1}, 0x10000, v{vXR+3*ks}")
        A(f"v_add_u32 v{vXR+3*ks+2}, 0x20000, v{vXR+3*ks}")
    A(f"v_bfe_u32 v{vT+2}, v{vL}, 2, 2")
    A(f"v_lshl_add_u32 v{vT+3}, v{vHH}, 3, v{vT+2}")
    A(f"v_lshlrev_b32 v{vT+3}, 8, v{vT+3}")
    A(f"v_bfe_u32 v{vT+4}, v{vL}, 4, 1")
    A(f"v_lshlrev_b32 v{vT+4}, 5, v{vT+4}")
    A(f"v_add_u32 v{vT+3}, v{vT+3}, v{vT+4}")
    A(f"v_and_b32 v{vT+4}, 3, v{vL}")
    A(f"v_lshlrev_b32 v{vT+4}, 3, v{vT+4}")
    A(f"v_add_u32 v{vT+3}, v{vT+3}, v{vT+4}")
    for nt in range(2):
        A(f"s_lshl_b32 s{sT0}, s{sNH}, 1")
        A(f"s_add_u32 s{sT0}, s{sT0}, {nt}")
        A(f"v_xor_b32 v{vT+4}, s{sT0}, v{vT+2}")
        A(f"v_lshl_add_u32 v{vWR1+3*nt}, v{vT+4}, 6, v{vT+3}")
        A(f"v_add_u32 v{vWR1+3*nt+1}, 0x10000, v{vWR1+3*nt}")
        A(f"v_add_u32 v{vWR1+3*nt+2}, 0x20000, v{vWR1+3*nt}")


def setup_p2_0(A):
    A(f"s_lshl_b32 s{sF1}, s{sCT}, 4")
    A(f"s_add_u32 s{sF1}, s{sF1}, s{sRB}")
    A(f"s_lshl_b32 s{sF1}, s{sF1}, 2")
    A(f"s_and_b32 s{sT0}, s2, 7")
    A(f"s_lshl_b32 s{sT0}, s{sT0}, 2")
    A(f"s_lshr_b32 s{sT1}, s2, 3")
    A(f"s_and_b32 s{sT1}, s{sT1}, 3")
    A(f"s_add_u32 s{sH}, s{sT0}, s{sT1}")
    A(f"s_lshr_b32 s{sQB}, s2, 5")
    A(f"s_lshr_b32 s{sT0}, s{sH}, 1")
    A(f"s_mul_i32 s{sT0}, s{sT0}, 5")
    A(f"s_add_u32 s{sP2L}, s{sT0}, 2")
    A(f"s_and_b32 s{sT1}, s{sH}, 1")
    A(f"s_mul_i32 s{sT1}, s{sT1}, 3")
    A(f"s_add_u32 s{sPA}, s{sT0}, s{sT1}")
    A(f"s_mul_i32 s{sVH}, s{sH}, {VH}")
    A(f"s_mul_i32 s{sLDSW}, s{sW}, 2816")
    A(f"s_mul_i32 s{sLDSW2}, s{sW}, 2560")
    A(f"s_lshl_b32 s{sQ0}, s{sQB}, 8")
    A(f"s_lshl_b32 s{sT0}, s{sW}, 5")
    A(f"s_add_u32 s{sQ0}, s{sQ0}, s{sT0}")
    A(f"s_lshl_b32 s{sQT}, s{sQB}, 2")
    A(f"s_lshr_b32 s{sT0}, s{sW}, 1")
    A(f"s_add_u32 s{sQT}, s{sQT}, s{sT0}")
    A(f"s_and_b32 s{sT1}, s{sW}, 1")
    A(f"s_lshl_b32 s{sBT}, s{sQT}, 6")
    A(f"s_add_u32 s{sBT}, s{sBT}, s{sT1}")
    A(f"s_mov_b32 s{sLO20}, 0xfffff")
    A(f"s_mov_b32 s{sLO20+1}, 0xfffff")
    A(f"v_lshlrev_b32 v{vQA}, 15, v{vHH}")
    A(f"v_lshl_add_u32 v{vQA}, v{vR}, 4, v{vQA}")
    A(f"v_lshlrev_b32 v{vQA2}, 4, v{vR}")
    A(f"v_lshlrev_b32 v{vGA}, 2, v{vR}")
    A(f"s_lshl_b32 s{sT0}, s{sQ0}, 4")
    A(f"s_lshl_b32 s{sQOFF}, s{sPA}, 15")
    A(f"s_add_u32 s{sQOFF}, s{sQOFF}, s{sT0}")
    if QA:
        A(f"s_add_u32 s{sQOFF}, s{sQOFF}, {QA}")
    A(f"s_lshl_b32 s{sQOFF2}, s{sP2L}, 15")
    A(f"s_add_u32 s{sQOFF2}, s{sQOFF2}, s{sT0}")
    A(f"s_and_b32 s{sT1}, s{sH}, 1")
    A(f"s_lshl_b32 s{sT1}, s{sT1}, 3")
    A(f"s_add_u32 s{sQOFF2}, s{sQOFF2}, s{sT1}")
    if QA:
        A(f"s_add_u32 s{sQOFF2}, s{sQOFF2}, {QA}")
    A(f"s_lshl_b32 s{sGOFF}, s{sQ0}, 2")
    A(f"s_add_u32 s{sGOFF}, s{sGOFF}, {GATE}")


def setup_p2_1(A):
    A(f"s_and_b32 s{sT1}, s{sH}, 1")
    A(f"s_lshl_b32 s{sT1}, s{sT1}, 3")
    A(f"v_lshlrev_b32 v{vT}, 12, v{vHH}")
    A(f"v_lshl_add_u32 v{vT}, v{vR}, 4, v{vT}")
    A(f"v_lshlrev_b32 v{vT+1}, 4, v{vR}")
    A(f"v_add_u32 v{vT+1}, s{sT1}, v{vT+1}")
    A(f"v_mul_u32_u24 v{vT+2}, 320, v{vHH}")
    A(f"v_lshl_add_u32 v{vT+2}, v{vR}, 4, v{vT+2}")
    A(f"v_add_u32 v{vT+3}, {ONES}, v{vT+2}")
    A(f"v_cmp_gt_u32 vcc, 20, v{vR}")
    for sl in range(NSLOT):
        A(f"v_add_u32 v{vK01+sl}, {sl*SLOT}, v{vT}")
        A(f"v_add_u32 v{vK2+sl}, {sl*SLOT}, v{vT+1}")
        A(f"v_add_u32 v{vT+4}, {sl*SLOT + 12288}, v{vT+2}")
        A(f"v_cndmask_b32 v{vV+sl}, v{vT+3}, v{vT+4}, vcc")
    A(f"s_lshl_b32 s{sT2}, s{sPA}, 15")
    A(f"s_add_u32 s{sT2}, s{sT2}, {KA}")
    A(f"s_lshl_b32 s{sT3}, s{sP2L}, 15")
    A(f"s_add_u32 s{sT3}, s{sT3}, {KA - 8192}")
    A(f"s_add_u32 s{sT4}, s{sVH}, {VA - 12288}")
    for t in range(3):
        A(f"v_add_u32 v{vT}, s{sLDSW}, v{vL16}")
        if t:
            A(f"v_add_u32 v{vT}, {1024*t}, v{vT}")
        A(f"v_lshrrev_b32 v{vT+1}, 12, v{vT}")
        A(f"v_and_b32 v{vT+2}, 4095, v{vT}")
        A(f"v_lshl_add_u32 v{vT+2}, v{vT+1}, 15, v{vT+2}")
        A(f"v_add_u32 v{vT+2}, s{sT2}, v{vT+2}")
        A(f"v_add_u32 v{vT+3}, s{sT3}, v{vT}")
        A(f"v_add_u32 v{vT+4}, s{sT4}, v{vT}")
        A(f"v_cmp_eq_u32 vcc, 2, v{vT+1}")
        A(f"v_mov_b32 v{vT+5}, 4096")
        A(f"v_mov_b32 v{vT+6}, 10240")
        A(f"v_cndmask_b32 v{vT+2}, v{vT+2}, v{vT+3}, vcc")
        A(f"v_cmp_le_u32 vcc, 3, v{vT+1}")
        A("s_nop 1")
        A(f"v_cndmask_b32 v{vCB+t}, v{vT+2}, v{vT+4}, vcc")
        A(f"v_cndmask_b32 v{vCS+t}, v{vT+5}, v{vT+6}, vcc")


def setup_p2_2(A):
    A(f"s_lshr_b32 s{sT0}, s{sH}, 1")
    A(f"s_mul_i32 s{sT0}, s{sT0}, 5")
    A(f"s_and_b32 s{sT1}, s{sH}, 1")
    A(f"s_lshl_b32 s{sT2}, s{sT1}, 1")
    A(f"s_add_u32 s{sT2}, s{sT2}, s{sT0}")
    A(f"v_add_u32 v{vT}, s{sT2}, v{vHH}")
    A(f"v_lshlrev_b32 v{vT}, 15, v{vT}")
    A(f"v_lshl_add_u32 v{vOST}, v{vR}, 4, v{vT}")
    A(f"v_lshl_add_u32 v{vOST+1}, v{vR}, 5, v{vT}")
    A(f"s_add_u32 s{sT0}, s{sT0}, 4")
    A(f"s_lshl_b32 s{sT0}, s{sT0}, 15")
    A(f"s_lshl_b32 s{sT1}, s{sT1}, 3")
    A(f"s_add_u32 s{sT0}, s{sT0}, s{sT1}")
    A(f"v_lshlrev_b32 v{vT}, 4, v{vR}")
    A(f"v_add_u32 v{vOST+2}, s{sT0}, v{vT}")
    A(f"v_lshlrev_b32 v{vT}, 5, v{vR}")
    A(f"v_add_u32 v{vOST+3}, s{sT0}, v{vT}")
    A(f"s_mul_i32 s{sT0}, s{sH}, 20")
    A(f"s_add_u32 s{sT1}, s{sT0}, 19")
    A(f"s_lshr_b32 s{sT0}, s{sT0}, 7")
    A(f"s_lshr_b32 s{sT1}, s{sT1}, 7")
    A(f"v_bfe_u32 v{vT}, v{vL}, 4, 1")
    A(f"s_sub_u32 s{sT2}, s{sT1}, s{sT0}")
    A(f"v_mul_u32_u24 v{vT+1}, s{sT2}, v{vT}")
    A(f"v_add_u32 v{vT+1}, s{sT0}, v{vT+1}")
    A(f"v_mul_u32_u24 v{vT+2}, 5, v{vHH}")
    A(f"v_add_u32 v{vT+2}, 5, v{vT+2}")
    A(f"v_add_u32 v{vT+2}, v{vT+2}, v{vT+1}")
    A(f"v_and_b32 v{vT+3}, 15, v{vL}")
    A(f"v_lshl_add_u32 v{vT+2}, v{vT+2}, 4, v{vT+3}")
    A(f"v_lshlrev_b32 v{vF1}, 2, v{vT+2}")
    A(f"v_add_u32 v{vT+2}, {15*16}, v{vT+3}")
    A(f"v_lshlrev_b32 v{vF4}, 2, v{vT+2}")
    A(f"v_and_b32 v{vT+4}, 1, v{vL}")
    A(f"s_lshl_b32 s{sT3}, s{sQB}, 1")
    A(f"v_add_u32 v{vT+4}, s{sT3}, v{vT+4}")
    A(f"v_lshl_add_u32 v{vT+4}, v{vT+1}, 4, v{vT+4}")
    A(f"v_lshlrev_b32 v{vF2}, 2, v{vT+4}")
    A(f"v_and_b32 v{vT}, 1, v{vL}")
    A(f"v_mul_u32_u24 v{vT+1}, s{sT2}, v{vT}")
    A(f"v_add_u32 v{vT+1}, s{sT0}, v{vT+1}")
    A(f"v_bfe_u32 v{vT+2}, v{vL}, 1, 2")
    A(f"v_min_u32 v{vT+2}, 2, v{vT+2}")
    A(f"v_mul_u32_u24 v{vT+2}, 5, v{vT+2}")
    A(f"v_add_u32 v{vT+1}, v{vT+1}, v{vT+2}")
    A(f"s_lshr_b32 s{sT3}, s{sQT}, 1")
    A(f"s_max_u32 s{sT4}, s{sQT}, 1")
    A(f"s_sub_u32 s{sT4}, s{sT4}, 1")
    A(f"s_lshr_b32 s{sT4}, s{sT4}, 1")
    A(f"s_sub_u32 s{sT4}, s{sT3}, s{sT4}")
    A(f"v_bfe_u32 v{vT+2}, v{vL}, 3, 1")
    A(f"v_mul_u32_u24 v{vT+2}, s{sT4}, v{vT+2}")
    A(f"v_sub_u32 v{vT+2}, s{sT3}, v{vT+2}")
    A(f"v_lshl_add_u32 v{vT+1}, v{vT+1}, 4, v{vT+2}")
    A(f"v_lshlrev_b32 v{vF3}, 2, v{vT+1}")


def setup_p2_3(A):
    A(f"v_lshlrev_b32 v{vBA}, 15, v{vHH}")
    A(f"v_lshl_add_u32 v{vBA}, v{vR}, 4, v{vBA}")
    A(f"v_lshlrev_b32 v{vBA+1}, 4, v{vR}")
    A(f"v_and_b32 v{vT+2}, 25, v{vR}")
    A(f"v_bfe_u32 v{vT+3}, v{vR}, 1, 1")
    A(f"v_lshl_or_b32 v{vT+2}, v{vT+3}, 2, v{vT+2}")
    A(f"v_bfe_u32 v{vT+3}, v{vR}, 2, 1")
    A(f"v_lshl_or_b32 v{vT+2}, v{vT+3}, 1, v{vT+2}")
    A(f"v_lshlrev_b32 v{vT+3}, 15, v{vHH}")
    A(f"v_lshl_add_u32 v{vBA+2}, v{vT+2}, 4, v{vT+3}")
    A(f"v_lshlrev_b32 v{vBA+3}, 4, v{vT+2}")
    A(f"v_mul_u32_u24 v{vT+4}, 320, v{vHH}")
    A(f"v_lshl_add_u32 v{vBA+4}, v{vR}, 4, v{vT+4}")
    A(f"s_and_b32 s{sT1}, s{sW}, 1")
    A(f"s_lshl_b32 s{sT1}, s{sT1}, 10")
    A(f"s_lshl_b32 s{sT0}, s{sQT}, 5")
    A(f"s_add_u32 s{sT2}, s{sT1}, s{sT0}")
    A(f"s_lshl_b32 s{sT0}, s{sPA}, 15")
    A(f"s_lshl_b32 s{sT1}, s{sP2L}, 15")
    A(f"s_and_b32 s{sT3}, s{sH}, 1")
    A(f"s_lshl_b32 s{sT3}, s{sT3}, 3")
    A(f"s_add_u32 s{sT1}, s{sT1}, s{sT3}")
    for prev in range(2):
        if prev:
            A(f"s_cmp_eq_u32 s{sQT}, 0")
            A(f"s_cselect_b32 s{sT3}, 0, 32")
            A(f"s_sub_u32 s{sT2}, s{sT2}, s{sT3}")
        A(f"s_lshl_b32 s{sT3}, s{sT2}, 4")
        if not prev:
            A(f"s_add_u32 s{sBA}, s{sT3}, s{sT0}")
            A(f"s_add_u32 s{sBA}, s{sBA}, {QB}")
            A(f"s_add_u32 s{sBA+1}, s{sT3}, s{sT1}")
            A(f"s_add_u32 s{sBA+1}, s{sBA+1}, {QB}")
        o = sBA + 2 + 3 * prev
        A(f"s_add_u32 s{o}, s{sT3}, s{sT0}")
        A(f"s_add_u32 s{o}, s{o}, {KB}")
        A(f"s_add_u32 s{o+1}, s{sT3}, s{sT1}")
        A(f"s_add_u32 s{o+1}, s{o+1}, {KB}")
        A(f"s_lshr_b32 s{sT3}, s{sT2}, 4")
        A(f"s_mul_i32 s{sT3}, s{sT3}, 640")
        A(f"s_add_u32 s{o+2}, s{sT3}, s{sVH}")
        A(f"s_add_u32 s{o+2}, s{o+2}, {VB}")
    A(f"s_lshl_b32 s{sBA+8}, s{sBT}, 2")
    A(f"s_add_u32 s{sBA+8}, s{sBA+8}, {GATE}")


def setup_p2_4(A):
    sRT, sCO, sTG = sT1, sT2, sT3
    A(f"s_lshr_b32 s{sRT}, s{sH}, 3")
    A(f"s_lshl_b32 s{sT0}, s{sQB}, 2")
    A(f"s_add_u32 s{sRT}, s{sRT}, s{sT0}")
    A(f"s_and_b32 s{sCO}, s{sH}, 7")
    A(f"s_and_b32 s{sTG}, s{sW}, 3")
    A(f"s_lshr_b32 s{sKG}, s{sW}, 2")
    A(f"s_lshl_b32 s{sFLG}, s{sRT}, 8")
    A(f"s_mul_i32 s{sWSRC}, s{sW}, 20480")
    A(f"s_mul_i32 s{sT0}, s{sCO}, 1280")
    A(f"s_add_u32 s{sWSRC}, s{sWSRC}, s{sT0}")
    A(f"s_add_u32 s{sWSRC}, s{sWSRC}, {WOT}")
    A(f"s_lshl_b32 s{sRT}, s{sRT}, 6")
    A(f"s_lshl_b32 s{sTG}, s{sTG}, 4")
    A(f"s_add_u32 s{sRT}, s{sRT}, s{sTG}")
    A(f"s_mul_i32 s{sOUTO}, s{sRT}, 1280")
    A(f"s_mul_i32 s{sT0}, s{sCO}, 160")
    A(f"s_add_u32 s{sOUTO}, s{sOUTO}, s{sT0}")
    A(f"s_lshl_b32 s{sOCB}, s{sRT}, 4")
    A(f"s_mul_i32 s{sT0}, s{sKG}, {40*32768}")
    A(f"s_add_u32 s{sOCB}, s{sOCB}, s{sT0}")
    A(f"s_add_u32 s{sOCB}, s{sOCB}, {OC}")
    A(f"s_lshl_b32 s{sPUB}, s{sQT}, 6")
    A(f"s_lshl_b32 s{sT0}, s{sH}, 1")
    A(f"s_add_u32 s{sPUB}, s{sPUB}, s{sT0}")
    A(f"s_and_b32 s{sT0}, s{sW}, 1")
    A(f"s_add_u32 s{sPUB}, s{sPUB}, s{sT0}")
    A(f"s_lshl_b32 s{sPUB}, s{sPUB}, 2")
    A(f"v_lshlrev_b32 v{vFA}, 2, v{vL}")
    A(f"v_mov_b32 v{vW0}, v{vL16}")
    A(f"v_add_u32 v{vT}, 1024, v{vL16}")
    A(f"v_add_u32 v{vT+1}, {10240 - 256}, v{vL16}")
    A(f"v_cmp_gt_u32 vcc, 16, v{vL}")
    A(f"v_add_u32 v{vW2}, {10240 + 768}, v{vL16}")
    A(f"v_lshrrev_b32 v{vT+2}, 4, v{vL}")
    A(f"v_cndmask_b32 v{vW1}, v{vT+1}, v{vT}, vcc")
    A(f"v_and_b32 v{vT+3}, 15, v{vL}")
    A(f"v_lshlrev_b32 v{vT+4}, 15, v{vT+2}")
    A(f"v_lshl_add_u32 v{vOC}, v{vT+3}, 4, v{vT+4}")
    A(f"v_mul_u32_u24 v{vT+4}, 1280, v{vT+2}")
    A(f"v_lshl_add_u32 v{vWR}, v{vT+3}, 4, v{vT+4}")
    A(f"v_mul_u32_u24 v{vT+4}, 1280, v{vT+3}")
    A(f"v_lshl_add_u32 v{vST}, v{vT+2}, 3, v{vT+4}")


SETUP_P2 = [setup_p2_0, setup_p2_1, setup_p2_2, setup_p2_3, setup_p2_4]


def setup_phase2(A):
    for f in SETUP_P2:
        f(A)


def pattern_fill(A):
    for r in range(2):
        A(f"v_add_u32 v{vT}, {512*r}, v0")
        A(f"v_mul_u32_u24 v{vT+1}, 3277, v{vT}")
        A(f"v_lshrrev_b32 v{vT+1}, 16, v{vT+1}")
        A(f"v_mul_u32_u24 v{vT+1}, 20, v{vT+1}")
        A(f"v_cmp_eq_u32 vcc, v{vT+1}, v{vT}")
        A(f"v_mov_b32 v{vT+4}, 0")
        A(f"v_mov_b32 v{vT+5}, 0x3f803f80")
        A(f"v_cndmask_b32 v{vT+4}, v{vT+4}, v{vT+5}, vcc")
        for i in range(1, 4):
            A(f"v_mov_b32 v{vT+4+i}, v{vT+4}")
        if r == 1:
            A(f"v_cmp_gt_u32 vcc, {PAT_UNITS}, v{vT}")
        A(f"v_lshlrev_b32 v{vT}, 4, v{vT}")
        A(f"v_add_u32 v{vT}, {ONES}, v{vT}")
        if r == 1:
            A("s_and_saveexec_b64 s[%d:%d], vcc" % (sT4, sT5))
            A("s_cbranch_execz L_pat_done")
        A.lds(f"ds_write_b128 v{vT}, {v(vT+4,4)}", "pat")
    A.label("L_pat_done")
    A("s_mov_b64 exec, -1")


def gen(prof=False):
    A = Asm()
    A.prof = prof
    A.PROF_V = 239
    kernel_header(A, NAME)
    A("s_cmp_ge_u32 s2, 256")
    A("s_cbranch_scc1 L_end")
    A.stamp("start")
    A("s_load_dwordx4 s[4:7], s[0:1], 0")
    A(f"s_load_dwordx2 s[{sP}:{sP+1}], s[0:1], 32")
    A(f"s_load_dwordx2 s[{sP+2}:{sP+3}], s[0:1], 72")
    A(f"s_load_dwordx4 s[{sDBG}:{sDBG+3}], s[0:1], 56")
    A(f"v_lshrrev_b32 v{vT}, 6, v0")
    A(f"v_and_b32 v{vL}, 63, v0")
    A(f"v_readfirstlane_b32 s{sW}, v{vT}")
    A(f"v_and_b32 v{vR}, 31, v{vL}")
    A(f"v_lshrrev_b32 v{vHH}, 5, v{vL}")
    A(f"v_lshlrev_b32 v{vL16}, 4, v{vL}")
    A(f"s_and_b32 s{sT0}, s2, 7")
    A(f"s_lshr_b32 s{sT1}, s2, 3")
    A(f"s_and_b32 s{sRB}, s{sT0}, 1")
    A(f"s_lshl_b32 s{sRB}, s{sRB}, 3")
    A(f"s_and_b32 s{sT2}, s{sT1}, 7")
    A(f"s_add_u32 s{sRB}, s{sRB}, s{sT2}")
    A(f"s_lshr_b32 s{sCT}, s{sT0}, 1")
    A(f"s_lshl_b32 s{sCT}, s{sCT}, 2")
    A(f"s_lshr_b32 s{sT2}, s{sT1}, 3")
    A(f"s_add_u32 s{sCT}, s{sCT}, s{sT2}")
    A(f"s_and_b32 s{sGI}, s{sW}, 3")
    A(f"s_and_b32 s{sMH}, s{sGI}, 1")
    A(f"s_lshr_b32 s{sNH}, s{sGI}, 1")
    A(f"s_mul_i32 s{sXOFF}, s{sRB}, {128*1280}")
    A(f"s_lshl_b32 s{sWOFF}, s{sCT}, 8")
    A(f"s_lshl_b32 s{sLDS1}, s{sGI}, 10")
    A(f"s_mul_hi_u32 s{sT0}, s{sCT}, 0x33333334")
    A(f"s_mul_i32 s{sT0}, s{sT0}, 5")
    A(f"s_sub_u32 s{sCT5}, s{sCT}, s{sT0}")
    A(f"v_lshrrev_b32 v{vT}, 3, v{vL}")
    A(f"s_lshl_b32 s{sT0}, s{sGI}, 3")
    A(f"v_add_u32 v{vT}, s{sT0}, v{vT}")
    A(f"v_lshrrev_b32 v{vT+1}, 1, v{vT}")
    A(f"v_xor_b32 v{vT+1}, v{vT+1}, v{vL}")
    A(f"v_and_b32 v{vT+1}, 7, v{vT+1}")
    A(f"v_lshlrev_b32 v{vT+1}, 4, v{vT+1}")
    A(f"v_mul_u32_u24 v{vT+2}, 1280, v{vT}")
    A(f"v_add_u32 v{vXD}, v{vT+2}, v{vT+1}")
    A(f"v_lshrrev_b32 v{vT}, 4, v{vL}")
    A(f"v_lshlrev_b32 v{vT+1}, 2, v{vT}")
    A(f"v_xor_b32 v{vT+1}, v{vT+1}, v{vL}")
    A(f"v_and_b32 v{vT+1}, 15, v{vT+1}")
    A(f"v_lshlrev_b32 v{vT+1}, 4, v{vT+1}")
    A(f"s_lshl_b32 s{sT0}, s{sGI}, 2")
    A(f"v_add_u32 v{vT}, s{sT0}, v{vT}")
    A(f"v_mul_u32_u24 v{vT}, 3840, v{vT}")
    A(f"v_add_u32 v{vWD}, v{vT}, v{vT+1}")
    A("s_waitcnt lgkmcnt(0)")
    srd(A, sX, 4, X_BYTES)
    srd(A, sWA, 6, W_BYTES)
    srd(A, sWB, sP, W_BYTES)
    srd(A, sWS, sP + 2, WS_USED)
    srd(A, sOUT, sDBG, OUT_BYTES)
    A(f"s_mov_b32 s{sDBG}, s{sDBG+2}")
    A(f"s_and_b32 s{sDBG+1}, s{sDBG+3}, 0xffff")
    A(f"s_mov_b32 s{sDBG+2}, 256")
    A(f"s_mov_b32 s{sDBG+3}, 0x20000")
    A(f"s_cmp_eq_u32 s{sCT}, 15")
    A("s_cbranch_scc1 L_nodma")
    A(f"s_cmp_lt_u32 s{sW}, 4")
    A("s_cbranch_scc1 L_nodma")
    for b in range(3):
        for p in range(8):
            g_dma(A, b, p)
    A(f"s_cmp_ge_u32 s{sCT}, 10")
    A("s_cbranch_scc1 L_g1n")
    A("s_branch L_g1t")
    A.label("L_nodma")
    if EXP.get("tchip"):
        touch_chip(A, {1: "xab", 2: "xa", 3: "b"}[EXP["tchip"]])
    A(f"s_or_b32 s{sT0}, s2, s{sW}")
    A(f"s_cmp_lg_u32 s{sT0}, 0")
    A("s_cbranch_scc1 L_nonce_done")
    A(f"s_memrealtime s[{sT4}:{sT5}]")
    A("s_waitcnt lgkmcnt(0)")
    A(f"s_or_b32 s{sT0}, s{sT4}, 1")
    A(f"v_mov_b32 v{vT}, s{sT0}")
    A(f"v_mov_b32 v{vT+1}, 0")
    A("s_mov_b64 exec, 1")
    A(f"buffer_store_dword v{vT}, v{vT+1}, s[{sDBG}:{sDBG+3}], 0 offen sc1")
    A("s_mov_b64 exec, -1")
    A.label("L_nonce_done")
    if EXP.get("cpf"):
        A(f"s_lshr_b32 s{sT1}, s2, 3")
        A(f"s_cmp_ge_u32 s{sT1}, 8")
        A("s_cbranch_scc1 L_cpf_done")
        A(f"s_cmp_lg_u32 s{sW}, {EXP['cpf'] - 1}")
        A("s_cbranch_scc1 L_cpf_done")
        A(f"s_getpc_b64 s[{sT4}:{sT5}]")
        A.label("L_cpf_pc")
        A(f"s_sub_u32 s{sT4}, s{sT4}, L_cpf_pc - {NAME}")
        A(f"s_subb_u32 s{sT5}, s{sT5}, 0")
        A(f"s_lshl_b32 s{sT1}, s{sT1}, 13")
        A(f"v_lshlrev_b32 v{vT}, 7, v{vL}")
        A(f"v_add_u32 v{vT}, s{sT1}, v{vT}")
        A(f"v_min_u32 v{vT}, L_end - {NAME}, v{vT}")
        A(f"global_load_dword v{G_P}, v{vT}, s[{sT4}:{sT5}]")
        A.label("L_cpf_done")
    setup_phase1_reads(A)
    setup_phase2(A)
    A.stamp("issued")
    A(f"s_cmp_eq_u32 s{sCT}, 15")
    A("s_cbranch_scc1 L_spare")
    A(f"s_cmp_ge_u32 s{sCT}, 10")
    A("s_cbranch_scc1 L_vtile")
    if prof:
        A.stamps += ["blk0 landed", "gemm0", "epi0", "gemm1", "epi1"]
        if EXP.get("stampB"):
            A.stamps += ["B10", "B12", "B14", "B16"]
        if EXP.get("stampA"):
            A.stamps += ["B0", "B2", "B4", "B6"]
    gemm(A, True, "t")
    A("s_branch L_attn")
    A.label("L_vtile")
    gemm(A, False, "n")
    A.label("L_attn")
    A.vm_q, A.lds_q = [], []
    A("s_barrier")
    A.stamp("attn start")
    if EXP.get("prio") == 1:
        A(f"s_cmp_lt_u32 s{sW}, 4")
        A("s_cbranch_scc1 L_prio_done")
        A("s_setprio 1")
        A.label("L_prio_done")
    rd_k01(A, 0)
    rd_k2(A, 0)
    dma_chunk(A, 3)
    pattern_fill(A)
    b_consts(A)
    A.lds_wait_all()
    mf16(A, SA, K01, Q01, "0")
    mf8(A, SA, K2, Q2, v(SA, 16))
    A("s_nop 7")
    A("s_nop 5")
    max16(A, vT, SA, True)
    cross_half_max(A, vT, vT + 1)
    for i in range(16):
        A(f"v_sub_f32 v{NEGM+i}, 0, v{vT}")
    A("s_nop 1")
    mf16(A, SA, K01, Q01, v(NEGM, 16))
    mf8(A, SA, K2, Q2, v(SA, 16))
    A("s_barrier")
    rd_k01(A, 1)
    rd_k2(A, 1)
    rd_v(A, 0, 0)
    A("s_nop 7")
    A("s_nop 3")
    NT = 64
    sched = {}
    def at(t, half, fn):
        sched.setdefault((t, half), []).append(fn)
    fb_items = [(vFL, vF3, F1B, None), (vFL2, vF4, F1A, None)]
    pos = {}
    def issue(name, items):
        def f(A):
            pos[name] = poll_issue(A, items, name)
        return f
    at(13, 0, issue("f1b", fb_items))
    pre_barrier = {22: lambda A: poll_check(A, fb_items, pos["f1b"], "f1b"),
                   54: lambda A: poll_check(A, fo_items, pos["fb"], "fb")}
    at(22, 1, lambda A: A.vm(f"buffer_load_dword v{vG}, v{vGA}, {WS}, s{sGOFF} offen sc1", "g"))
    for i, f in enumerate(b_load_items()):
        at(25 + i // 2, i % 2, f)
    at(34, 1, b_unit)
    at(40, 0, lambda A: publish(A, sPUB, FLAGB, "stb"))
    fo_items = [(vFL, vFA, FLAGB, sFLG)]
    at(48, 0, issue("fb", fo_items))
    for k in range(10):
        at(55 + k // 2, k % 2, lambda A, k=k: oc_load(A, 1, k))
    for st in range(3):
        for p in range(3):
            i = 3 * st + p
            at(42 + i // 2, i % 2, lambda A, st=st, p=p: dma_w_piece(A, 1, st, p))
    for st in range(3, 5):
        for p in range(3):
            i = 3 * (st - 3) + p
            at(57 + i // 2, 1 - i % 2, lambda A, st=st, p=p: dma_w_piece(A, 1, st, p))
    for c in range(2, NCH - 2):
        for p in range(3):
            at(TPC * c - 1 + p // 2, 1 if p % 2 == 0 else 0, lambda A, c=c, p=p: dma_chunk_piece(A, c + 2, p))
    for t in range(NT):
        cur = SA if t % 2 == 0 else SB
        nxt = SB if t % 2 == 0 else SA
        if (t == 32 and not (EXP.get("stampB") or EXP.get("stampA"))) or (EXP.get("stampB") and t in (21, 24)):
            A.stamp("t%d" % t)
        if t % TPC == TPC - 2 and t + 2 < NT:
            c = (t + 2) // TPC
            if c == 1:
                A.vm_wait(("c", 3))
            A.vm_wait(("c", c))
            if t in pre_barrier:
                pre_barrier[t](A)
            A("s_barrier")
            if c == 1:
                with Wave0(A, "pubb"):
                    publish(A, sF1, F1B)
        if EXP.get("prio") == 2 and t == 55:
            A(f"s_cmp_lt_u32 s{sW}, 4")
            A("s_cbranch_scc1 L_prio_done")
            A("s_setprio 1")
            A.label("L_prio_done")
        if EXP.get("prio") == 3 and t % 8 == 7:
            A(f"s_lshr_b32 s{sT0}, s{sW}, 2")
            A(f"s_cmp_eq_u32 s{sT0}, {(t // 8) % 2}")
            A(f"s_cbranch_scc1 L_prio_a{t}")
            A("s_setprio 0")
            A(f"s_branch L_prio_b{t}")
            A.label(f"L_prio_a{t}")
            A("s_setprio 1")
            A.label(f"L_prio_b{t}")
        if EXP.get("xbar") and t == EXP["xbar"]:
            A("s_barrier")
        if t == 63:
            A.vm_wait(("w", 1, 4))
        for f in sched.get((t, 0), []):
            f(A)
        if t + 1 < NT:
            A.lds_wait(("k01", t + 1))
            mf16(A, nxt, K01, Q01, "0" if EXP.get("m0") else v(NEGM, 16))
            if t + 2 < NT:
                rd_k01(A, t + 2)
        exps(A, cur, 0)
        if t > 0:
            A.lds_wait(("v", t - 1, 1))
            mf16(A, O, V1, P + 4, v(O, 16))
        rd_v(A, t, 1)
        exps(A, cur, 1)
        for f in sched.get((t, 1), []):
            f(A)
        if t + 1 < NT:
            A.lds_wait(("k2", t + 1))
            mf8(A, nxt, K2, Q2, v(nxt, 16))
            if t + 2 < NT:
                rd_k2(A, t + 2)
        exps(A, cur, 2)
        A.lds_wait(("v", t, 0))
        mf16(A, O, V0, P, "0" if t == 0 else v(O, 16))
        if t + 1 < NT:
            rd_v(A, t + 1, 0)
        exps(A, cur, 3)
    A.lds_wait(("v", NT - 1, 1))
    A("s_nop 1")
    mf16(A, O, V1, P + 4, v(O, 16))
    A(f"v_add_u32 v{vT+5}, 0x10000, v{vWR}")
    A(f"v_add_u32 v{vT+6}, 0x20000, v{vWR}")
    A(f"v_mov_b32 v{vT+3}, {hex(f32bits(BIG))}")
    A("s_nop 7")
    A("s_nop 3")
    A.stamp("loop end")
    row_sum(A, O)
    A(f"v_mul_f32 v{vT+2}, 0, v{O}")
    for i in range(1, 12):
        A(f"v_fma_f32 v{vT+2}, v{O+i}, 0, v{vT+2}")
    A(f"v_add_f32 v{vT+2}, v{vT+2}, v{vT+1}")
    A(f"v_cmp_lt_f32 vcc, v{vT+2}, v{vT+3}")
    A("s_nop 4")
    A("s_cmp_eq_u64 vcc, exec")
    A("s_cbranch_scc0 L_fallback")
    A.label("L_finish")
    A.vm_wait("g")
    finish_tile(A, O, vG, False, vOST, sQ0, 0, "sta")
    A(f"v_add_u32 v{vT+5}, 0x10000, v{vWR}")
    A(f"v_add_u32 v{vT+6}, 0x20000, v{vWR}")
    A("s_barrier")
    A.stamp("ring free") if not (EXP.get("stampB") or EXP.get("stampA")) else None
    wa = [(st, p) for st in range(2) for p in range(3)]

    def hook_b(k, kg):
        if k < 6:
            st, p = wa[k]
            dma_w_piece(A, 0, st, p)
        if k == EXP.get("pubk", 1):
            publish(A, sPUB, FLAGA, "sta")
    outproj(A, 1, True, hook_b)
    A.stamp("b part") if not (EXP.get("stampB") or EXP.get("stampA")) else None
    A("s_barrier")
    for st in range(2, 5):
        for p in range(3):
            dma_w_piece(A, 0, st, p)
    if EXP.get("notight"):
        fa_items = [(vFL, vFA, FLAGA, sFLG)]
        pfa = poll_issue(A, fa_items, "fa")
        poll_check(A, fa_items, pfa, "fa")
    else:
        poll_tight(A, FLAGA, sFLG, vFA, "fa")
    A("s_barrier")
    A.stamp("flags a") if not (EXP.get("stampB") or EXP.get("stampA")) else None
    for k in range(10):
        oc_load(A, 0, k)
    A.vm_wait(("w", 0, 4))
    A("s_barrier")
    outproj(A, 0, False)
    A.stamp("a part") if not (EXP.get("stampB") or EXP.get("stampA")) else None
    A(f"s_and_b32 s{sT0}, s{sW}, 3")
    A(f"s_mul_i32 s{sT0}, s{sT0}, 5120")
    A(f"v_add_u32 v{vT}, s{sT0}, v{vL16}")
    A(f"s_cmp_eq_u32 s{sKG}, 0")
    A("s_cbranch_scc1 L_red_a")

    def finish_out(tiles):
        A.lds_q = []
        for nt in tiles:
            A.lds(f"ds_read_b128 {v(WF+4*nt,4)}, v{vT} offset:{nt*1024}", ("r", nt))
        for nt in tiles:
            A.lds_wait(("r", nt))
            for i in range(4):
                A(f"v_add_f32 v{ACC+4*nt+i}, v{ACC+4*nt+i}, v{WF+4*nt+i}")
            A(f"v_cvt_pk_bf16_f32 v{ACC+4*nt}, v{ACC+4*nt}, v{ACC+4*nt+1}")
            A(f"v_cvt_pk_bf16_f32 v{ACC+4*nt+1}, v{ACC+4*nt+2}, v{ACC+4*nt+3}")
            A.vm(f"buffer_store_dwordx2 {v(ACC+4*nt,2)}, v{vST}, s[{sOUT}:{sOUT+3}], s{sOUTO} offen offset:{nt*32}{EXP.get('outst','')}", "st")

    A("s_nop 5")
    for nt in range(3):
        A(f"ds_write_b128 v{vT}, {v(ACC+4*nt,4)} offset:{nt*1024}")
    A("s_waitcnt lgkmcnt(0)")
    A("s_barrier")
    finish_out((3, 4))
    if prof:
        A.stamp("", len(A.stamps))
        A.stamp_flush(0, sWS, PROF, vT + 2)
    A("s_endpgm")
    A.label("L_red_a")
    A("s_nop 5")
    for nt in (3, 4):
        A(f"ds_write_b128 v{vT}, {v(ACC+4*nt,4)} offset:{nt*1024}")
    A("s_waitcnt lgkmcnt(0)")
    A("s_barrier")
    finish_out((0, 1, 2))
    A.stamp("end")
    if prof and EXP.get("dbg"):
        with Wave0(A, "dbgout"):
            A(f"v_subrev_u32 v{vT}, s{sNONCE}, v{A.PROF_V}")
            A(f"v_subrev_u32 v{vT+1}, 16, v{vL}")
            A(f"v_lshlrev_b32 v{vT+1}, 2, v{vT+1}")
            if EXP["dbg"] == 2:
                A(f"v_sub_u32 v{vT}, 0x100000, v{vT}")
            A("s_mov_b32 exec_lo, 0xfffe0000")
            A("s_mov_b32 exec_hi, 0")
            A(f"buffer_atomic_umax v{vT}, v{vT+1}, s[{sDBG}:{sDBG+3}], 0 offen")
            A("s_mov_b64 exec, -1")
    A.stamp_flush(0, sWS, PROF, vT)
    A("s_endpgm")
    fallback(A)
    spare(A)
    A.label("L_end")
    A("s_endpgm")
    kernel_footer(A, NAME, NV, 96)
    gen.stamps = getattr(A, "stamps", [])
    return A.text()

if __name__ == "__main__":
    print(gen())
```

```python
from asmlib import *
from layout2 import *

NAME = "gated_mix__softmax_full_mha__sliding_local_dilated__prompt_kernel"
EXP = {}
STAGE, NST, NB = 32768, 5, 20
SLOT = CHB
NSLOT = 4
TPC = CH // 32
NCH = S // CH
ONES = 4 * SLOT
PAT_UNITS = 672
WBASE = ONES + PAT_UNITS * 16
WSTG = 20480
LDS_BYTES = 163840
WB_OFF = [WBASE, WBASE + WSTG, WBASE + 2 * WSTG, 0, SLOT]
WA_OFF = [2 * SLOT, 3 * SLOT, WBASE, WBASE + WSTG, WBASE + 2 * WSTG]
assert WBASE + 3 * WSTG <= LDS_BYTES
BIG = 2.0 ** 64
SPIN_MAX = 1 << 16
sWS, sOUT = 8, 12
sW, sNONCE = 16, 17
sH, sQB, sPA, sLDSW, sLDSW2, sWSRC, sOCB, sFLG, sPUB, sOUTO, sKG, sQ0, sBT, sQT = range(18, 32)
sT0, sT1, sT2, sT3, sT4, sT5 = range(32, 38)
sM = 38
sLO20 = 40
sCNT = 42
sP2L = 43
sDBG = 44
sBA = 48
sVH = 57
sX, sWA, sWB = 60, 64, 68
sRB, sCT, sMH, sNH, sXOFF, sWOFF, sLDS1, sCT5, sTP, sB16, sQS, sGI = range(72, 84)
sQOFF, sQOFF2, sGOFF, sF1 = 88, 89, 90, 91
sP = 92
vL, vR, vHH = 1, 2, 3
vK01, vK2, vV = 4, 8, 12
vL16, vG, vGB, vFL = 16, 17, 18, 19
vT = 20
SA, SB, NEGM, O, P = 28, 44, 60, 76, 92
Q01, Q2, K01, K2, V0, V1 = 100, 104, 108, 112, 116, 120
BQ01, BQ2, BK01, BK2, BKP01, BKP2 = 124, 128, 132, 136, 140, 144
BV0, BV1, BVP, BS0, BS1, BO, BP = 148, 152, 156, 160, 176, 192, 208
vBA = 220
vW0, vW1, vW2, vOC, vWR, vST, vFA = 225, 226, 227, 228, 229, 230, 231
vF1, vF2, vF3, vF4 = 232, 233, 234, 241
vFL2 = 235
vQA, vQA2, vGA = 236, 237, 238
vOST = 252
vXD, vWD = 242, 243
vCB, vCS = 244, 247
vCT = 250
NV = 256
OCB, OCA, ACC, WF = 124, 164, 204, 28
G_ACC = 124
G_F = 28
G_P = 188
vA16 = 76
vXR, vWR1 = 106, 118
WS = f"s[{sWS}:{sWS+3}]"


def st1():
    return " sc1"


def publish(A, soff_reg, base, tag=None):
    if tag is not None:
        A.vm_wait(tag)
    A(f"v_mov_b32 v{vT}, s{sNONCE}")
    A(f"v_mov_b32 v{vT+1}, 0")
    A(f"s_add_u32 s{sT0}, s{soff_reg}, {base}")
    A("s_mov_b64 exec, 1")
    A.vm(f"buffer_store_dword v{vT}, v{vT+1}, {WS}, s{sT0} offen sc1", "pub")
    A("s_mov_b64 exec, -1")


class Wave0:
    def __init__(self, A, name):
        self.A, self.name = A, name
    def __enter__(self):
        A = self.A
        A(f"s_cmp_lg_u32 s{sW}, 0")
        A(f"s_cbranch_scc1 L_w0_{self.name}")
        self.saved = (list(A.vm_q), A.vm_count)
    def __exit__(self, *a):
        A = self.A
        A.vm_q, A.vm_count = self.saved
        A.label(f"L_w0_{self.name}")


def _poll_loads(A, items):
    for (vdst, voff, base, soff_reg) in items:
        if soff_reg is None:
            A(f"s_mov_b32 s{sT0}, {base}")
        else:
            A(f"s_add_u32 s{sT0}, s{soff_reg}, {base}")
        A(f"buffer_load_dword v{vdst}, v{voff}, {WS}, s{sT0} offen sc1")


def poll_issue(A, items, name):
    with Wave0(A, name + "_i"):
        _poll_loads(A, items)
    return A.vm_count


def poll_check(A, items, pos, name, inv=False, drain=False):
    def compare():
        for i, (vdst, _, _, _) in enumerate(items):
            if i == 0:
                A(f"v_cmp_eq_u32 vcc, s{sNONCE}, v{vdst}")
            else:
                A(f"v_cmp_eq_u32 s[{sT4}:{sT5}], s{sNONCE}, v{vdst}")
                A("s_nop 3")
                A(f"s_and_b64 vcc, vcc, s[{sT4}:{sT5}]")
        A("s_nop 3")
        A("s_cmp_eq_u64 vcc, exec")
    with Wave0(A, name + "_c"):
        A(f"s_waitcnt vmcnt({A.vm_count - pos})")
        compare()
        A(f"s_cbranch_scc1 L_{name}_ok")
        A(f"s_mov_b32 s{sCNT}, 0")
        A.label(f"L_{name}_spin")
        A("s_sleep 2")
        _poll_loads(A, items)
        A(f"s_add_u32 s{sCNT}, s{sCNT}, 1")
        A(f"s_cmp_ge_u32 s{sCNT}, {SPIN_MAX}")
        A(f"s_cbranch_scc1 L_{name}_ok")
        A("s_waitcnt vmcnt(0)")
        compare()
        A(f"s_cbranch_scc0 L_{name}_spin")
        A.label(f"L_{name}_ok")
        if inv:
            A("buffer_inv sc1")
        if drain:
            A("s_waitcnt vmcnt(0)")


def poll_tight(A, base, soff_reg, voff, name):
    regs = [vFL, vFL2, vT + 2, vT + 3]
    with Wave0(A, name):
        A(f"s_add_u32 s{sT1}, s{soff_reg}, {base}")
        for r in regs:
            A(f"buffer_load_dword v{r}, v{voff}, {WS}, s{sT1} offen sc1")
            A("s_sleep 1")
        A(f"s_mov_b32 s{sCNT}, 0")
        A.label(f"L_{name}_spin")
        for r in regs:
            A("s_waitcnt vmcnt(3)")
            A(f"v_cmp_eq_u32 vcc, s{sNONCE}, v{r}")
            A("s_nop 3")
            A("s_cmp_eq_u64 vcc, exec")
            A(f"s_cbranch_scc1 L_{name}_ok")
            A(f"buffer_load_dword v{r}, v{voff}, {WS}, s{sT1} offen sc1")
        A(f"s_add_u32 s{sCNT}, s{sCNT}, 1")
        A(f"s_cmp_lt_u32 s{sCNT}, {SPIN_MAX}")
        A(f"s_cbranch_scc1 L_{name}_spin")
        A.label(f"L_{name}_ok")


def nonce_issue(A):
    A(f"v_mov_b32 v{vT}, 0")
    A.vm(f"buffer_load_dword v{vFL}, v{vT}, s[{sDBG}:{sDBG+3}], 0 offen sc1", "nonce")


def nonce_check(A, name):
    A.vm_wait("nonce")
    A("s_nop 0")
    A(f"v_readfirstlane_b32 s{sNONCE}, v{vFL}")
    A("s_nop 3")
    A(f"s_cmp_lg_u32 s{sNONCE}, 0")
    A(f"s_cbranch_scc1 L_{name}_ok")
    A(f"s_mov_b32 s{sCNT}, 0")
    A.label(f"L_{name}_spin")
    A("s_sleep 1")
    A(f"v_mov_b32 v{vT}, 0")
    A(f"buffer_load_dword v{vFL}, v{vT}, s[{sDBG}:{sDBG+3}], 0 offen sc1")
    A(f"s_add_u32 s{sCNT}, s{sCNT}, 1")
    A(f"s_cmp_ge_u32 s{sCNT}, {SPIN_MAX}")
    A(f"s_cbranch_scc1 L_{name}_ok")
    A("s_waitcnt vmcnt(0)")
    A(f"v_readfirstlane_b32 s{sNONCE}, v{vFL}")
    A("s_nop 3")
    A(f"s_cmp_eq_u32 s{sNONCE}, 0")
    A(f"s_cbranch_scc1 L_{name}_spin")
    A.label(f"L_{name}_ok")


def g_dma(A, b, p):
    kb, st, t = b % 10, b % NST, p & 3
    A(f"s_add_u32 m0, s{sLDS1}, {st*STAGE + (p >> 2)*16384 + 4096*t}")
    if p < 4:
        A(f"s_add_u32 s{sT0}, s{sXOFF}, {kb*128 + t*40960}")
        A.vm(f"buffer_load_dwordx4 v{vXD}, s[{sX}:{sX+3}], s{sT0} offen lds", ("d", b))
    else:
        sw = sWA if b < 10 else sWB
        A(f"s_add_u32 s{sT0}, s{sWOFF}, {(kb*64 + 16*t) * 3840}")
        A.vm(f"buffer_load_dwordx4 v{vWD}, s[{sw}:{sw+3}], s{sT0} offen lds", ("d", b))


def g_acc(mt, nt):
    return G_ACC + 32 * mt + 16 * nt


def g_frag(s_, i):
    return G_F + 16 * (s_ % 3) + 4 * i


def g_read_list(s_):
    b, ks = divmod(s_, 4)
    st = b % NST
    base, off = st >> 1, (st & 1) * STAGE
    out = []
    for mt in range(2):
        out.append(f"ds_read_b128 {v(g_frag(s_, mt),4)}, v{vXR + 3*ks + base} offset:{off + mt*4096}")
    for nt in range(2):
        for q in range(2):
            out.append(f"ds_read_b64_tr_b16 {v(g_frag(s_, 2+nt)+2*q,2)}, v{vWR1 + 3*nt + base} offset:{off + 16384 + ks*4096 + q*1024}")
    return out


def g_reads(A, s_):
    for ins in g_read_list(s_):
        A.lds(ins, ("f", s_))


def g_step(A, s_, last, tr, extra=None):
    b, ks = divmod(s_, 4)
    A.lds_wait(("f", s_))
    nxt = g_read_list(s_ + 2) if s_ + 2 <= last else []
    for i, (mt, nt) in enumerate(((0, 0), (0, 1), (1, 0), (1, 1))):
        d = g_acc(mt, nt)
        c = "0" if (s_ % 40 == 0) else v(d, 16)
        x, w = g_frag(s_, mt), g_frag(s_, 2 + nt)
        a, bb = (w, x) if tr else (x, w)
        A(f"v_mfma_f32_32x32x16_bf16 {v(d,16)}, {v(a,4)}, {v(bb,4)}, {c}")
        for ins in nxt[2*i:2*i+2]:
            A.lds(ins, ("f", s_ + 2))
        if extra and i == 3:
            extra()


def epi_prepare(A, isb, tr, n):
    A(f"s_lshl_b32 s{sTP}, s{sRB}, 7")
    A(f"s_lshl_b32 s{sT0}, s{sMH}, 6")
    A(f"s_add_u32 s{sTP}, s{sTP}, s{sT0}")
    if isb:
        A(f"s_lshr_b32 s{sTP}, s{sTP}, 1")
    if tr:
        A(f"s_cmp_lt_u32 s{sCT}, 5")
        A(f"s_mov_b32 s{sT1}, {QB if isb else QA}")
        A(f"s_cselect_b32 s{sB16}, s{sT1}, {KB if isb else KA}")
        A(f"s_mov_b32 s{sT1}, {hex(f32bits(QSCALE))}")
        A(f"s_cselect_b32 s{sQS}, s{sT1}, 1.0")
        A(f"s_lshl_b32 s{sT0}, s{sCT5}, 1")
        A(f"s_add_u32 s{sT0}, s{sT0}, s{sNH}")
        A(f"s_lshl_b32 s{sT0}, s{sT0}, 18")
        A(f"s_add_u32 s{sB16}, s{sB16}, s{sT0}")
        A(f"s_lshl_b32 s{sT0}, s{sTP}, 4")
        A(f"s_add_u32 s{sB16}, s{sB16}, s{sT0}")
        A(f"v_lshlrev_b32 v{vA16}, 15, v{vHH}")
        if isb:
            A(f"v_and_b32 v{vT}, 1, v{vR}")
            A(f"v_lshl_add_u32 v{vA16}, v{vT}, 14, v{vA16}")
            A(f"v_lshrrev_b32 v{vT}, 1, v{vR}")
            A(f"v_lshl_add_u32 v{vA16}, v{vT}, 4, v{vA16}")
        else:
            A(f"v_lshl_add_u32 v{vA16}, v{vR}, 4, v{vA16}")
        A(f"v_mov_b32 v{vT+2}, s{sQS}")
        A(f"v_mov_b32 v{vT+3}, s{sQS}")
    else:
        A(f"v_mul_u32_u24 v{vT+1}, 320, v{vHH}")
        A(f"s_lshl_b32 s{sT0}, s{sCT5}, 7")
        A(f"s_lshl_b32 s{sT1}, s{sNH}, 6")
        A(f"s_add_u32 s{sT0}, s{sT0}, s{sT1}")
        for nt in range(2):
            A(f"v_add_u32 v{vT+2}, s{sT0}, v{vR}")
            if nt:
                A(f"v_add_u32 v{vT+2}, 32, v{vT+2}")
            A(f"v_mul_u32_u24 v{vT+3}, 3277, v{vT+2}")
            A(f"v_lshrrev_b32 v{vT+3}, 16, v{vT+3}")
            A(f"v_mul_u32_u24 v{vT+4}, 20, v{vT+3}")
            A(f"v_sub_u32 v{vT+4}, v{vT+2}, v{vT+4}")
            A(f"v_mul_u32_u24 v{vT+3}, {VH}, v{vT+3}")
            A(f"v_lshl_add_u32 v{vT+3}, v{vT+4}, 4, v{vT+3}")
            A(f"v_add_u32 v{vA16+nt}, v{vT+3}, v{vT+1}")
        A(f"s_lshr_b32 s{sT0}, s{sTP}, 4")
        A(f"s_mul_i32 s{sT0}, s{sT0}, 640")
        A(f"s_add_u32 s{sB16}, s{sT0}, {VB if isb else VA}")


def epi_group(A, isb, tr, g, tag):
    reg = G_P + 4 * g
    mt, nt, u = g >> 2, (g >> 1) & 1, g & 1
    src = g_acc(mt, nt)
    if tr:
        for jj in range(2):
            a = src + 4 * (2 * u + jj)
            A(f"v_pk_mul_f32 {v(a,2)}, {v(a,2)}, v[{vT+2}:{vT+3}]")
            A(f"v_pk_mul_f32 {v(a+2,2)}, {v(a+2,2)}, v[{vT+2}:{vT+3}]")
            A(f"v_cvt_pk_bf16_f32 v{reg+2*jj}, v{a}, v{a+1}")
            A(f"v_cvt_pk_bf16_f32 v{reg+2*jj+1}, v{a+2}, v{a+3}")
        A(f"s_add_u32 s{sT1}, s{sB16}, {(4*nt + 2*u)*PLANE + mt*(256 if isb else 512)}")
        A("s_nop 0")
        A(f"v_permlane32_swap_b32 v{reg}, v{reg+2}")
        A(f"v_permlane32_swap_b32 v{reg+1}, v{reg+3}")
        A.vm(f"buffer_store_dwordx4 {v(reg,4)}, v{vA16}, {WS}, s{sT1} offen sc1", tag)
    else:
        if isb:
            for j in range(4):
                A(f"v_cvt_pk_bf16_f32 v{reg+j}, v{src+4*j+u}, v{src+4*j+u+2}")
            A(f"s_add_u32 s{sT1}, s{sB16}, {mt*640 + u*64*640}")
        else:
            for p in range(4):
                A(f"v_cvt_pk_bf16_f32 v{reg+p}, v{src+8*u+2*p}, v{src+8*u+2*p+1}")
            A(f"s_add_u32 s{sT1}, s{sB16}, {(2*mt + u)*640}")
        A.vm(f"buffer_store_dwordx4 {v(reg,4)}, v{vA16+nt}, {WS}, s{sT1} offen sc1", tag)


def acquire_items():
    return [(vFL, vF1, F1A, None), (vFL2, vF2, F1A, None)]


def p2_load_items():
    def q01(A):
        A.vm(f"buffer_load_dwordx4 {v(Q01,4)}, v{vQA}, {WS}, s{sQOFF} offen sc1", "q")
    def q2(A):
        A(f"v_mov_b32 v{Q2}, 0")
        A(f"v_mov_b32 v{Q2+1}, 0")
        A("s_mov_b32 exec_hi, 0")
        A.vm(f"buffer_load_dwordx2 {v(Q2,2)}, v{vQA2}, {WS}, s{sQOFF2} offen sc1", "q")
        A("s_mov_b32 exec_hi, -1")
    items = [lambda A, p=p: dma_chunk_piece(A, 0, p) for p in range(3)] + [q01, q2]
    items += [lambda A, c=c, p=p: dma_chunk_piece(A, c, p) for c in (1, 2) for p in range(3)]
    return items


def gemm(A, tr, n):
    A.vm_q, A.lds_q = [], []
    if EXP.get("twa") == 99:
        touch_a(A, n)
    if EXP.get("twb") == 99:
        touch_wb(A, n)
    if EXP.get("tcb") == 99:
        touch_chip_b(A, n)
    if EXP.get("tlb"):
        epi_prepare(A, False, tr, n)
        A(f"buffer_store_dword v{vL}, v{vA16}, {WS}, s{sB16} offen sc1")
    A("s_barrier")
    A.stamp("blk0 landed", 2)
    g_reads(A, 0)
    g_reads(A, 1)
    for s_ in range(40):
        b, ks = divmod(s_, 4)
        if ks == 2:
            A("s_barrier")
            if EXP.get("stampA") and b in (0, 2, 4, 6):
                A.stamp("", {0: 7, 2: 8, 4: 9, 6: 10}[b])
        if EXP.get("twa") is not None and s_ == EXP["twa"]:
            touch_a(A, n)
        if s_ == EXP.get("twb", 77):
            touch_wb(A, n)
        if EXP.get("tcb") is not None and s_ == EXP["tcb"]:
            touch_chip_b(A, n)
        if EXP.get("tcw") is not None and s_ == EXP["tcw"]:
            touch_chip_wide(A, "b", n)
        if s_ == 22:
            nonce_issue(A)
        if s_ == 30:
            nonce_check(A, f"nonce0{n}")
        g_step(A, s_, 39, tr)
    A.stamp("gemm0", 3)
    slices = [int(ch) for ch in str(EXP.get("sl", "8"))]
    assert sum(slices) == 8
    PUB, POLL, CHK = EXP.get("pub", 12), EXP.get("poll", 15), 18
    for p in range(8):
        g_dma(A, 13, p)
    epi_prepare(A, False, tr, n)
    A("s_nop 7")
    A("s_nop 3")
    done = 0
    for b in range(10, 19):
        k = slices[b - 10] if b - 10 < len(slices) else 0
        for g in range(done, done + k):
            epi_group(A, False, tr, g, "sa")
        if k and done + k == 8:
            A.stamp("epi0", 4)
        done += k
        if b == PUB:
            A.vm_wait("sa")
        if b == CHK:
            poll_check(A, acquire_items(), pos_f1, f"f1{n}")
        if b + 1 >= 13:
            A.vm_wait(("d", b + 1))
        A("s_barrier")
        if EXP.get("stampB") and b in (10, 12, 14, 16):
            A.stamp("", {10: 7, 12: 8, 14: 9, 16: 10}[b])
        if b + 4 < NB:
            for p in range(8):
                g_dma(A, b + 4, p)
        if b == PUB:
            with Wave0(A, f"puba{n}"):
                publish(A, sF1, F1A)
        if b == POLL:
            pos_f1 = poll_issue(A, acquire_items(), f"f1{n}")
    for f in p2_load_items():
        f(A)
    A.stamp("gemm1", 5)
    A.stamp("epi1", 6)
    A.vm_wait("q")
    A("s_branch L_attn")
    A.label(f"L_g1{n}")
    A.vm_q, A.lds_q = [("d", 0)] * 8 + [("d", 1)] * 8 + [("d", 2)] * 8, []
    A.vm_wait(("d", 0))
    A("s_barrier")
    A.stamp("issued", 1)
    A.stamp("blk0 landed", 2)
    for p in range(8):
        g_dma(A, 3, p)
    for b in range(10):
        if b == 0:
            setup_phase1_reads(A)
        if 1 <= b <= 5:
            SETUP_P2[b - 1](A)
        if b == 6:
            if EXP.get("tlb"):
                epi_prepare(A, True, tr, n)
                A(f"buffer_store_dword v{vL}, v{vA16}, {WS}, s{sB16} offen sc1")
                A(f"s_lshl_b32 s{sT0}, s{sQ0}, 4")
                A(f"s_add_u32 s{sT0}, s{sT0}, {OC}")
                A(f"buffer_store_dword v{vL}, v{vOST}, {WS}, s{sT0} offen sc1")
                A(f"s_lshl_b32 s{sT0}, s{sBT}, 4")
                A(f"s_add_u32 s{sT0}, s{sT0}, {OC + 80*32768}")
                A(f"buffer_store_dword v{vL}, v{vOST+1}, {WS}, s{sT0} offen sc1")
            nonce_issue(A)
        if b == 8:
            nonce_check(A, f"nonce1{n}")
        A.vm_wait(("d", b + 1))
        A("s_barrier")
        if EXP.get("stampA") and b in (0, 2, 4, 6):
            A.stamp("", {0: 7, 2: 8, 4: 9, 6: 10}[b])
        if b + 4 <= 12:
            for p in range(8):
                g_dma(A, b + 4, p)
    A.stamp("gemm0", 3)
    A.stamp("epi0", 4)
    g_reads(A, 40)
    g_reads(A, 41)
    pend = []
    for s_ in range(40, 80):
        b, ks = divmod(s_, 4)
        if ks == 2 and b + 1 < NB:
            if b + 1 <= 12:
                A.vm_wait(("d", b + 1))
            A("s_barrier")
            if EXP.get("stampB") and b in (10, 12, 14, 16):
                A.stamp("", {10: 7, 12: 8, 14: 9, 16: 10}[b])
            if b == 18:
                pend = p2_load_items()
        def extra():
            for _ in range(2):
                if pend:
                    pend.pop(0)(A)
        g_step(A, s_, 79, tr, extra)
    assert not pend
    A.stamp("gemm1", 5)
    epi_prepare(A, True, tr, n)
    A("s_nop 7")
    A("s_nop 3")
    for g in range(8):
        epi_group(A, True, tr, g, "sb")
    A.stamp("epi1", 6)
    A.vm_wait("q")


def spare(A):
    sWO, sG = sWA, sWB
    A.label("L_spare")
    A.vm_q, A.lds_q = [], []
    if EXP.get("spb", 0):
        A(f"s_mul_i32 s{sT0}, s{sRB}, 153600")
        A(f"s_lshl_b32 s{sT1}, s{sW}, 10")
        A(f"s_add_u32 s{sT0}, s{sT0}, s{sT1}")
        A(f"s_add_u32 s{sT2}, s{sRB}, 1")
        A(f"s_mul_i32 s{sT2}, s{sT2}, 153600")
        for i in range(19):
            A(f"s_add_u32 s{sT1}, s{sT0}, {8192*i}")
            if i == 18:
                A(f"s_sub_u32 s{sT2}, s{sT2}, 1024")
                A(f"s_min_u32 s{sT1}, s{sT1}, s{sT2}")
            A(f"buffer_load_dwordx4 {v(124 + 4*i, 4)}, v{vL16}, s[{sWB}:{sWB+3}], s{sT1} offen")
    A("s_load_dwordx2 s[4:5], s[0:1], 16")
    A("s_load_dwordx2 s[6:7], s[0:1], 40")
    A(f"s_load_dwordx2 s[{sP}:{sP+1}], s[0:1], 48")
    A("s_waitcnt lgkmcnt(0)")
    A(f"s_cmp_lt_u32 s{sRB}, 8")
    A("s_cbranch_scc1 L_sp_a")
    A("s_mov_b32 s4, s6")
    A("s_mov_b32 s5, s7")
    A.label("L_sp_a")
    srd(A, sWO, 4, WO_BYTES)
    srd(A, sG, sP, 1280)
    A(f"s_and_b32 s{sT1}, s{sRB}, 7")
    A(f"s_mul_i32 s{sT1}, s{sT1}, {80*1280}")
    A(f"s_lshl_b32 s{sLDS1}, s{sW}, 10")
    A(f"s_add_u32 s{sT1}, s{sT1}, s{sLDS1}")
    for t in range(13):
        if t == 12:
            A(f"s_cmp_ge_u32 s{sW}, 4")
            A("s_cbranch_scc1 L_sp_dma_done")
        A(f"s_add_u32 m0, s{sLDS1}, {8192*t}")
        A(f"s_add_u32 s{sT0}, s{sT1}, {8192*t}")
        A(f"buffer_load_dwordx4 v{vL16}, s[{sWO}:{sWO+3}], s{sT0} offen lds")
    A.label("L_sp_dma_done")
    GW = 102400
    A(f"s_cmp_ge_u32 s{sW}, 2")
    A("s_cbranch_scc1 L_sp_gw_done")
    A(f"s_add_u32 m0, s{sLDS1}, {GW}")
    A("s_nop 0")
    A(f"buffer_load_dwordx4 v{vL16}, s[{sG}:{sG+3}], s{sLDS1} offen lds")
    A.label("L_sp_gw_done")
    A.stamp("", 2)
    XG = 28
    A(f"v_lshrrev_b32 v{vT+1}, 2, v{vL}")
    A(f"s_lshl_b32 s{sT0}, s{sW}, 4")
    A(f"v_add_u32 v{vT+1}, s{sT0}, v{vT+1}")
    A(f"v_and_b32 v{vT+2}, 3, v{vL}")
    A(f"v_lshlrev_b32 v{vT+2}, 4, v{vT+2}")
    A(f"v_mul_u32_u24 v{vT+3}, 1280, v{vT+1}")
    A(f"v_add_u32 v{vT+3}, v{vT+3}, v{vT+2}")
    A(f"v_mov_b32 v{vT+4}, 0")
    for i in range(20):
        A(f"buffer_load_dwordx4 {v(XG+4*i,4)}, v{vT+3}, s[{sX}:{sX+3}], s{sXOFF} offen offset:{i*64}")
    A(f"v_add_u32 v{vT+2}, {GW}, v{vT+2}")
    A("s_waitcnt vmcnt(0)")
    A("s_barrier")
    A.lds_q = []
    GG = 108
    for i in range(3):
        A.lds(f"ds_read_b128 {v(GG+4*i,4)}, v{vT+2} offset:{i*64}", ("gw", i))
    for i in range(20):
        if i + 3 < 20:
            A.lds(f"ds_read_b128 {v(GG+4*((i+3) % 4),4)}, v{vT+2} offset:{(i+3)*64}", ("gw", i + 3))
        A.lds_wait(("gw", i))
        for k in range(4):
            A(f"v_dot2_f32_bf16 v{vT+4}, v{XG+4*i+k}, v{GG+4*(i % 4)+k}, v{vT+4}")
    A("s_nop 2")
    A(f"v_add_f32_dpp v{vT+4}, v{vT+4}, v{vT+4} quad_perm:[1,0,3,2] row_mask:0xf bank_mask:0xf")
    A("s_nop 1")
    A(f"v_add_f32_dpp v{vT+4}, v{vT+4}, v{vT+4} quad_perm:[2,3,0,1] row_mask:0xf bank_mask:0xf")
    A(f"v_mul_f32 v{vT+4}, {hex(f32bits(-LOG2E))}, v{vT+4}")
    A(f"v_exp_f32 v{vT+4}, v{vT+4}")
    A("s_nop 0")
    A(f"v_add_f32 v{vT+4}, 1.0, v{vT+4}")
    A(f"v_rcp_f32 v{vT+4}, v{vT+4}")
    A(f"s_lshl_b32 s{sT0}, s{sRB}, 9")
    A(f"s_add_u32 s{sT0}, s{sT0}, {GATE}")
    A(f"v_lshlrev_b32 v{vT+1}, 2, v{vT+1}")
    A("s_mov_b32 exec_lo, 0x11111111")
    A("s_mov_b32 exec_hi, 0x11111111")
    A(f"buffer_store_dword v{vT+4}, v{vT+1}, {WS}, s{sT0} offen sc1")
    A("s_mov_b64 exec, -1")
    A.stamp("", 3)
    A.stamp("", 4)
    A(f"v_bfe_u32 v{vT+1}, v{vL}, 2, 2")
    A(f"v_mul_u32_u24 v{vT+1}, 1280, v{vT+1}")
    A(f"v_lshrrev_b32 v{vT+2}, 4, v{vL}")
    A(f"v_lshl_add_u32 v{vT+1}, v{vT+2}, 5, v{vT+1}")
    A(f"v_and_b32 v{vT+2}, 3, v{vL}")
    A(f"v_lshl_add_u32 v{vT+1}, v{vT+2}, 3, v{vT+1}")
    A(f"s_mul_i32 s{sT3}, s{sRB}, {10*10240}")
    A(f"s_add_u32 s{sT3}, s{sT3}, {WOT}")
    A(f"s_mov_b32 s{sT1}, s{sW}")
    A.label("L_sp_loop")
    A(f"s_mul_hi_u32 s{sT2}, s{sT1}, 0x1999999a")
    A(f"s_mul_i32 s{sT0}, s{sT2}, 10")
    A(f"s_sub_u32 s{sT0}, s{sT1}, s{sT0}")
    A(f"s_mul_hi_u32 s{sCNT}, s{sT2}, 0x33333334")
    A(f"s_mul_i32 s{sT4}, s{sCNT}, 5")
    A(f"s_sub_u32 s{sT4}, s{sT2}, s{sT4}")
    A(f"s_mul_i32 s{sCNT}, s{sCNT}, 40")
    A(f"s_lshl_b32 s{sT5}, s{sT4}, 3")
    A(f"s_cmp_ge_u32 s{sT4}, 2")
    A(f"s_cselect_b32 s{sM}, 4, 0")
    A(f"s_add_u32 s{sT5}, s{sT5}, s{sM}")
    A(f"s_cmp_eq_u32 s{sT4}, 4")
    A(f"s_cselect_b32 s{sT5}, 16, s{sT5}")
    A(f"s_cselect_b32 s{sM}, 20, 4")
    A(f"s_add_u32 s{sT5}, s{sT5}, s{sCNT}")
    A(f"s_mul_i32 s{sT4}, s{sT5}, 1280")
    A(f"s_mul_i32 s{sM}, s{sM}, 1280")
    A(f"s_lshl_b32 s{sT5}, s{sT0}, 7")
    A(f"s_add_u32 s{sT4}, s{sT4}, s{sT5}")
    A(f"v_add_u32 v{vT+3}, s{sT4}, v{vT+1}")
    A(f"v_add_u32 v{vT+4}, s{sM}, v{vT+3}")
    A(f"ds_read_b64_tr_b16 v[{XG}:{XG+1}], v{vT+3}")
    A(f"ds_read_b64_tr_b16 v[{XG+2}:{XG+3}], v{vT+4}")
    A(f"s_mul_i32 s{sT4}, s{sT2}, 10240")
    A(f"s_lshl_b32 s{sT5}, s{sT0}, 10")
    A(f"s_add_u32 s{sT4}, s{sT4}, s{sT5}")
    A(f"s_add_u32 s{sT4}, s{sT4}, s{sT3}")
    A("s_waitcnt lgkmcnt(0)")
    A(f"buffer_store_dwordx4 {v(XG,4)}, v{vL16}, {WS}, s{sT4} offen sc1")
    A(f"s_add_u32 s{sT1}, s{sT1}, 8")
    A(f"s_cmp_lt_u32 s{sT1}, 100")
    A("s_nop 1")
    A("s_cbranch_scc1 L_sp_loop")
    A.stamp("", 5)
    nonce_issue(A)
    nonce_check(A, "noncesp")
    A("s_waitcnt vmcnt(0)")
    A("s_barrier")
    A.vm_q = []
    with Wave0(A, "pubsp"):
        publish(A, sF1, F1A)
    pos = poll_issue(A, acquire_items(), "f1sp")
    poll_check(A, acquire_items(), pos, "f1sp")
    A("s_barrier")
    A.vm_q = []
    for f in p2_load_items():
        f(A)
    A.vm_wait("q")
    for i in (6,) + ((7, 8, 9, 10) if (EXP.get("stampB") or EXP.get("stampA")) else ()):
        A.stamp("", i)
    A("s_branch L_attn")


def mf16(A, d, a, b, c):
    A(f"v_mfma_f32_32x32x16_bf16 {v(d,16)}, {v(a,4)}, {v(b,4)}, {c}")


def mf8(A, d, a, b, c):
    A(f"v_mfma_f32_32x32x8_bf16 {v(d,16)}, {v(a,2)}, {v(b,2)}, {c}")


def dma_chunk_piece(A, c, t):
    slot = c % NSLOT
    A(f"s_add_u32 m0, s{sLDSW}, {slot*SLOT + 1024*t}")
    A(f"v_mad_u32_u24 v{vCT}, v{vCS+t}, {c}, v{vCB+t}")
    if t == 2:
        A("s_mov_b32 exec_hi, 0xffff")
    A.vm(f"buffer_load_dwordx4 v{vCT}, {WS}, 0 offen sc1 lds", ("c", c))
    if t == 2:
        A("s_mov_b32 exec_hi, -1")


def dma_chunk(A, c):
    for t in range(3):
        dma_chunk_piece(A, c, t)


def dma_w_piece(A, part, st, t):
    off = (WA_OFF if part == 0 else WB_OFF)[st]
    A(f"s_add_u32 m0, s{sLDSW2}, {off + 1024*t}")
    A(f"s_add_u32 s{sT0}, s{sWSRC}, {(part*80 + 16*st)*10240}")
    if t == 2:
        A("s_mov_b32 exec_hi, 0")
    A.vm(f"buffer_load_dwordx4 v{(vW0, vW1, vW2)[t]}, {WS}, s{sT0} offen sc1 lds", ("w", part, st))
    if t == 2:
        A("s_mov_b32 exec_hi, -1")


def rd_k01(A, t):
    if EXP.get('halfrd') and t % 2 == 1:
        return
    c, tt = t // TPC, t % TPC
    A.lds(f"ds_read_b128 {v(K01,4)}, v{vK01 + c % NSLOT} offset:{tt*512}", ("k01", t))


def rd_k2(A, t):
    if EXP.get('halfrd') and t % 2 == 1:
        return
    c, tt = t // TPC, t % TPC
    A.lds(f"ds_read_b64 {v(K2,2)}, v{vK2 + c % NSLOT} offset:{8192 + tt*512}", ("k2", t))


def rd_v(A, t, a):
    if EXP.get('halfrd') and t % 2 == 1:
        return
    c, tt = t // TPC, t % TPC
    A.lds(f"ds_read_b128 {v(V1 if a else V0,4)}, v{vV + c % NSLOT} offset:{(2*tt + a)*640}", ("v", t, a))


def exps(A, sreg, g, preg=P):
    for i in range(4):
        A(f"v_exp_f32 v{sreg+4*g+i}, v{sreg+4*g+i}")
    A(f"v_cvt_pk_bf16_f32 v{preg+2*g}, v{sreg+4*g}, v{sreg+4*g+1}")
    A(f"v_cvt_pk_bf16_f32 v{preg+2*g+1}, v{sreg+4*g+2}, v{sreg+4*g+3}")


def cross_half_max(A, reg, tmp):
    A(f"v_mov_b32 v{tmp}, v{reg}")
    A("s_nop 1")
    A(f"v_permlane32_swap_b32 v{reg}, v{tmp}")
    A("s_nop 1")
    A(f"v_max_f32 v{reg}, v{reg}, v{tmp}")


def max16(A, dst, src, first):
    if first:
        A(f"v_max3_f32 v{dst}, v{src}, v{src+1}, v{src+2}")
        rest = list(range(3, 16))
    else:
        rest = list(range(0, 16))
    while rest:
        if len(rest) >= 2:
            A(f"v_max3_f32 v{dst}, v{dst}, v{src+rest[0]}, v{src+rest[1]}")
            rest = rest[2:]
        else:
            A(f"v_max_f32 v{dst}, v{dst}, v{src+rest[0]}")
            rest = rest[1:]


def row_sum(A, oreg):
    A(f"v_mov_b32 v{vT}, v{oreg+8}")
    A(f"v_mov_b32 v{vT+1}, v{oreg+8}")
    A("s_nop 1")
    A(f"v_permlane32_swap_b32 v{vT}, v{vT+1}")


def finish_tile(A, oreg, gate, one_minus, vaddr, tok_sreg, chunk0, tag):
    A(f"v_rcp_f32 v{vT+2}, v{vT+1}")
    A(f"s_lshl_b32 s{sT0}, s{tok_sreg}, 4")
    A(f"s_add_u32 s{sT0}, s{sT0}, {OC + chunk0*32768}")
    if one_minus:
        A(f"v_sub_f32 v{vT}, 1.0, v{gate}")
        A(f"v_mul_f32 v{vT+2}, v{vT+2}, v{vT}")
    else:
        A(f"v_mul_f32 v{vT+2}, v{vT+2}, v{gate}")
    A(f"v_mov_b32 v{vT+3}, v{vT+2}")
    for i in range(0, 12, 2):
        A(f"v_pk_mul_f32 {v(oreg+i,2)}, {v(oreg+i,2)}, v[{vT+2}:{vT+3}]")
    for i in range(4):
        A(f"v_cvt_pk_bf16_f32 v{oreg+i}, v{oreg+2*i}, v{oreg+2*i+1}")
    A(f"v_cvt_pk_bf16_f32 v{oreg+8}, v{oreg+8}, v{oreg+9}")
    A(f"v_cvt_pk_bf16_f32 v{oreg+9}, v{oreg+10}, v{oreg+11}")
    A(f"v_permlane32_swap_b32 v{oreg}, v{oreg+2}")
    A(f"v_permlane32_swap_b32 v{oreg+1}, v{oreg+3}")
    A.vm(f"buffer_store_dwordx4 {v(oreg,4)}, v{vaddr}, {WS}, s{sT0} offen sc1", tag)
    A("s_mov_b32 exec_hi, 0")
    A.vm(f"buffer_store_dwordx2 {v(oreg+8,2)}, v{vaddr+2}, {WS}, s{sT0} offen sc1", tag)
    A("s_mov_b64 exec, -1")


def oc_load(A, part, k):
    reg = OCA if part == 0 else OCB
    A(f"s_add_u32 s{sT0}, s{sOCB}, {(part*80 + 4*k)*32768}")
    A.vm(f"buffer_load_dwordx4 {v(reg+4*k,4)}, v{vOC}, {WS}, s{sT0} offen sc1", ("oc", part, k))


def outproj(A, part, first, hook=None):
    offs = WA_OFF if part == 0 else WB_OFF
    reg = OCA if part == 0 else OCB
    for kg in range(2):
        if kg == 0:
            A(f"s_cmp_eq_u32 s{sKG}, 1")
            A(f"s_cbranch_scc1 L_op{part}_g1")
            saved = (list(A.vm_q), list(A.lds_q))
        else:
            A.label(f"L_op{part}_g1")
            A.vm_q, A.lds_q = list(saved[0]), list(saved[1])
        seq = [(k, nt) for k in range(10) for nt in range(5)]

        def rd(i):
            k, nt = seq[i]
            kk = 10 * kg + k
            off = offs[kk // 4] + (kk % 4) * 5120 + nt * 256
            areg = (vWR, vT + 5, vT + 6)[off >> 16]
            A.lds(f"ds_read_b128 {v(WF + (i % 8)*4,4)}, v{areg} offset:{off & 0xffff}", ("wf", i))

        LOOK = 5
        for i in range(LOOK):
            rd(i)
        for i, (k, nt) in enumerate(seq):
            if i + LOOK < len(seq):
                rd(i + LOOK)
            if nt == 0:
                A.vm_wait(("oc", part, k))
                if hook:
                    hook(k, kg)
            A.lds_wait(("wf", i))
            c = "0" if (first and k == 0) else v(ACC + 4*nt, 4)
            A(f"v_mfma_f32_16x16x32_bf16 {v(ACC+4*nt,4)}, {v(WF + (i % 8)*4,4)}, {v(reg+4*k,4)}, {c}")
        if kg == 0:
            end0 = (list(A.vm_q), list(A.lds_q))
            A(f"s_branch L_op{part}_done")
    A.label(f"L_op{part}_done")
    assert end0[0] == A.vm_q and end0[1] == A.lds_q


def keypos(kappa):
    return (kappa & 25) | ((kappa >> 1) & 1) << 2 | ((kappa >> 2) & 1) << 1


def band_mask(j, i, prev):
    m = 0
    for l in range(64):
        q, hh = l & 31, l >> 5
        key = keypos(8 * j + 4 * hh + i) - (32 if prev else 0)
        if 0 <= q - key <= 7:
            m |= 1 << l
    return m


def b_consts(A):
    A(f"v_cmp_eq_u32 vcc, 20, v{vR}")
    A(f"v_mov_b32 v{vT+6}, 0")
    A(f"v_mov_b32 v{vT+7}, 0x3f803f80")
    A(f"v_cndmask_b32 v{vT+6}, v{vT+6}, v{vT+7}, vcc")
    for base in (BV0, BV1, BVP):
        for i in range(4):
            A(f"v_mov_b32 v{base+i}, v{vT+6}")
    A(f"v_mov_b32 v{BQ2}, 0")
    A(f"v_mov_b32 v{BQ2+1}, 0")


def b_load_items():
    def mk(instr, pre=None, gate=False):
        def f(A):
            if gate:
                A(f"v_lshlrev_b32 v{vCT}, 1, v{vGA}")
                A.vm(instr.replace(f"v{vGA},", f"v{vCT},"), "b")
                return
            if pre:
                A(pre)
            A.vm(instr, "b")
            if pre:
                A("s_mov_b64 exec, -1")
        return f
    lo20 = f"s_mov_b64 exec, s[{sLO20}:{sLO20+1}]"
    return [
        mk(f"buffer_load_dwordx4 {v(BQ01,4)}, v{vBA}, {WS}, s{sBA} offen sc1"),
        mk(f"buffer_load_dwordx4 {v(BK01,4)}, v{vBA+2}, {WS}, s{sBA+2} offen sc1"),
        mk(f"buffer_load_dwordx2 {v(BK2,2)}, v{vBA+3}, {WS}, s{sBA+3} offen sc1"),
        mk(f"buffer_load_dwordx4 {v(BKP01,4)}, v{vBA+2}, {WS}, s{sBA+5} offen sc1"),
        mk(f"buffer_load_dwordx2 {v(BKP2,2)}, v{vBA+3}, {WS}, s{sBA+6} offen sc1"),
        mk(f"buffer_load_dword v{vGB}, v{vGA}, {WS}, s{sBA+8} offen sc1", None, True),
        mk(f"buffer_load_dwordx2 {v(BQ2,2)}, v{vBA+1}, {WS}, s{sBA+1} offen sc1", "s_mov_b32 exec_hi, 0"),
        mk(f"buffer_load_dwordx4 {v(BV0,4)}, v{vBA+4}, {WS}, s{sBA+4} offen sc1", lo20),
        mk(f"buffer_load_dwordx4 {v(BV1,4)}, v{vBA+4}, {WS}, s{sBA+4} offen offset:640 sc1", lo20),
        mk(f"buffer_load_dwordx4 {v(BVP,4)}, v{vBA+4}, {WS}, s{sBA+7} offen offset:640 sc1", lo20),
    ]


def b_unit(A):
    S0, S1 = BS0, BS1
    A.vm_wait("b")
    mf16(A, S0, BK01, BQ01, "0")
    mf16(A, S1, BKP01, BQ01, "0")
    mf8(A, S0, BK2, BQ2, v(S0, 16))
    mf8(A, S1, BKP2, BQ2, v(S1, 16))
    A(f"v_mov_b32 v{vT}, {hex(f32bits(-1e30))}")
    A(f"s_cmp_eq_u32 s{sQT}, 0")
    A(f"s_cselect_b32 s{sT3}, 0, -1")
    A("s_nop 7")
    A("s_nop 5")
    for j in range(4):
        for i in range(4):
            m = band_mask(j, i, False)
            A(f"s_mov_b32 s{sM}, {hex(m & 0xffffffff)}")
            A(f"s_mov_b32 s{sM+1}, {hex(m >> 32)}")
            A(f"v_cndmask_b32 v{S0+4*j+i}, v{vT}, v{S0+4*j+i}, s[{sM}:{sM+1}]")
    for i in range(4):
        m = band_mask(3, i, True)
        A(f"s_and_b32 s{sM}, s{sT3}, {hex(m & 0xffffffff)}")
        A(f"s_and_b32 s{sM+1}, s{sT3}, {hex(m >> 32)}")
        A(f"v_cndmask_b32 v{S1+12+i}, v{vT}, v{S1+12+i}, s[{sM}:{sM+1}]")
    max16(A, vT + 1, S0, True)
    A(f"v_max3_f32 v{vT+1}, v{vT+1}, v{S1+12}, v{S1+13}")
    A(f"v_max3_f32 v{vT+1}, v{vT+1}, v{S1+14}, v{S1+15}")
    cross_half_max(A, vT + 1, vT + 2)
    for r in list(range(S0, S0 + 16)) + list(range(S1 + 12, S1 + 16)):
        A(f"v_sub_f32 v{r}, v{r}, v{vT+1}")
    for g in range(4):
        exps(A, S0, g, BP)
    PP = BP + 8
    for i in range(4):
        A(f"v_exp_f32 v{S1+12+i}, v{S1+12+i}")
    A(f"v_mov_b32 v{PP}, 0")
    A(f"v_mov_b32 v{PP+1}, 0")
    A(f"v_cvt_pk_bf16_f32 v{PP+2}, v{S1+12}, v{S1+13}")
    A(f"v_cvt_pk_bf16_f32 v{PP+3}, v{S1+14}, v{S1+15}")
    A("s_nop 1")
    mf16(A, BO, BV0, BP, "0")
    mf16(A, BO, BV1, BP + 4, v(BO, 16))
    mf16(A, BO, BVP, PP, v(BO, 16))
    A("s_nop 7")
    A("s_nop 3")
    row_sum(A, BO)
    A("s_nop 1")
    finish_tile(A, BO, vGB, True, vOST + 1, sBT, 80, "stb")


def fallback(A):
    A.label("L_fallback")
    A("s_waitcnt vmcnt(0) lgkmcnt(0)")
    A(f"v_lshlrev_b32 v{vT+4}, 15, v{vHH}")
    A(f"v_lshl_add_u32 v{vT+4}, v{vR}, 4, v{vT+4}")
    A(f"v_lshlrev_b32 v{vT+5}, 4, v{vR}")
    A(f"v_mul_u32_u24 v{vT+6}, 320, v{vHH}")
    A(f"v_lshl_add_u32 v{vT+6}, v{vR}, 4, v{vT+6}")
    A(f"v_mov_b32 v{vT+7}, {hex(f32bits(-3.0e38))}")

    def tile_addr():
        A(f"s_lshl_b32 s{sT0}, s{sCNT}, 9")
        A(f"s_lshl_b32 s{sT1}, s{sPA}, 15")
        A(f"s_add_u32 s{sT1}, s{sT1}, s{sT0}")
        A(f"s_add_u32 s{sT1}, s{sT1}, {KA}")
        A(f"s_lshl_b32 s{sT2}, s{sP2L}, 15")
        A(f"s_add_u32 s{sT2}, s{sT2}, s{sT0}")
        A(f"s_and_b32 s{sT3}, s{sH}, 1")
        A(f"s_lshl_b32 s{sT3}, s{sT3}, 3")
        A(f"s_add_u32 s{sT2}, s{sT2}, s{sT3}")
        A(f"s_add_u32 s{sT2}, s{sT2}, {KA}")
        A(f"s_mul_i32 s{sT3}, s{sCNT}, 1280")
        A(f"s_add_u32 s{sT3}, s{sT3}, s{sVH}")
        A(f"s_add_u32 s{sT3}, s{sT3}, {VA}")

    A(f"s_mov_b32 s{sCNT}, 0")
    A.label("L_fb1")
    tile_addr()
    A(f"buffer_load_dwordx4 {v(K01,4)}, v{vT+4}, {WS}, s{sT1} offen sc1")
    A(f"buffer_load_dwordx2 {v(K2,2)}, v{vT+5}, {WS}, s{sT2} offen sc1")
    A("s_waitcnt vmcnt(0)")
    mf16(A, SA, K01, Q01, "0")
    mf8(A, SA, K2, Q2, v(SA, 16))
    A("s_nop 7")
    A("s_nop 7")
    max16(A, vT + 7, SA, False)
    A(f"s_add_u32 s{sCNT}, s{sCNT}, 1")
    A(f"s_cmp_lt_u32 s{sCNT}, 64")
    A("s_cbranch_scc1 L_fb1")
    cross_half_max(A, vT + 7, vT)
    for i in range(16):
        A(f"v_sub_f32 v{NEGM+i}, 0, v{vT+7}")
        A(f"v_mov_b32 v{O+i}, 0")
    A(f"v_cmp_eq_u32 vcc, 20, v{vR}")
    A(f"v_mov_b32 v{vT}, 0")
    A(f"v_mov_b32 v{vT+1}, 0x3f803f80")
    A(f"v_cndmask_b32 v{vT}, v{vT}, v{vT+1}, vcc")
    for i in range(4):
        A(f"v_mov_b32 v{V0+i}, v{vT}")
        A(f"v_mov_b32 v{V1+i}, v{vT}")
    A(f"s_mov_b32 s{sCNT}, 0")
    A.label("L_fb2")
    tile_addr()
    A(f"buffer_load_dwordx4 {v(K01,4)}, v{vT+4}, {WS}, s{sT1} offen sc1")
    A(f"buffer_load_dwordx2 {v(K2,2)}, v{vT+5}, {WS}, s{sT2} offen sc1")
    A(f"s_mov_b64 exec, s[{sLO20}:{sLO20+1}]")
    A(f"buffer_load_dwordx4 {v(V0,4)}, v{vT+6}, {WS}, s{sT3} offen sc1")
    A(f"buffer_load_dwordx4 {v(V1,4)}, v{vT+6}, {WS}, s{sT3} offen offset:640 sc1")
    A("s_mov_b64 exec, -1")
    A("s_waitcnt vmcnt(0)")
    mf16(A, SA, K01, Q01, v(NEGM, 16))
    mf8(A, SA, K2, Q2, v(SA, 16))
    A("s_nop 7")
    A("s_nop 7")
    for g in range(4):
        exps(A, SA, g)
    A("s_nop 1")
    mf16(A, O, V0, P, v(O, 16))
    mf16(A, O, V1, P + 4, v(O, 16))
    A(f"s_add_u32 s{sCNT}, s{sCNT}, 1")
    A(f"s_cmp_lt_u32 s{sCNT}, 64")
    A("s_cbranch_scc1 L_fb2")
    A("s_nop 7")
    A("s_nop 7")
    row_sum(A, O)
    A("s_nop 1")
    A("s_branch L_finish")


def touch_chip(A, which):
    A(f"s_and_b32 s{sT1}, s{sW}, 1")
    A(f"s_lshl_b32 s{sT1}, s{sT1}, 6")
    A(f"v_add_u32 v{vT}, s{sT1}, v{vL}")
    A(f"s_cmp_ge_u32 s{sW}, 2")
    A(f"s_cbranch_scc1 L_tc_w{which}")
    if "x" in which:
        A(f"v_min_u32 v{vT}, 79, v{vT}")
        A(f"v_lshlrev_b32 v{vT}, 7, v{vT}")
        A(f"s_mul_i32 s{sT0}, s2, 10240")
        A(f"buffer_load_dword v{G_P+1}, v{vT}, s[{sX}:{sX+3}], s{sT0} offen")
    A(f"s_branch L_tc_done{which}")
    A.label(f"L_tc_w{which}")
    A(f"v_min_u32 v{vT}, 74, v{vT}")
    A(f"v_lshlrev_b32 v{vT}, 7, v{vT}")
    A(f"s_mul_i32 s{sT0}, s2, 9600")
    if "a" in which:
        A(f"buffer_load_dword v{G_P+2}, v{vT}, s[{sWA}:{sWA+3}], s{sT0} offen")
    if "b" in which:
        A(f"buffer_load_dword v{G_P+3}, v{vT}, s[{sWB}:{sWB+3}], s{sT0} offen")
    A.label(f"L_tc_done{which}")


def touch_chip_wide(A, which, tag):
    A(f"s_cmp_ge_u32 s{sW}, 4")
    A(f"s_cbranch_scc1 L_tcw{tag}")
    A(f"s_lshl_b32 s{sT1}, s{sW}, 10")
    A(f"v_add_u32 v{vT}, s{sT1}, v{vL16}")
    k = 0
    for name, srd_, size in (("x", sX, 10240), ("a", sWA, 9600), ("b", sWB, 9600)):
        if name not in which:
            continue
        A(f"s_mul_i32 s{sT0}, s2, {size}")
        for i in range(3):
            A(f"v_add_u32 v{vT+1}, {4096*i}, v{vT}")
            A(f"v_min_u32 v{vT+1}, {size - 16}, v{vT+1}")
            A(f"buffer_load_dwordx4 {v(G_P + 4*k, 4)}, v{vT+1}, s[{srd_}:{srd_+3}], s{sT0} offen")
            k += 1
    A.label(f"L_tcw{tag}")


def touch_chip_b(A, n):
    A(f"s_cmp_ge_u32 s{sW}, 2")
    A(f"s_cbranch_scc1 L_tcb{n}")
    A(f"s_lshl_b32 s{sT1}, s{sW}, 6")
    A(f"v_add_u32 v{vT}, s{sT1}, v{vL}")
    A(f"v_min_u32 v{vT}, 74, v{vT}")
    A(f"v_lshlrev_b32 v{vT}, 7, v{vT}")
    A(f"s_mul_i32 s{sT0}, s2, 9600")
    A(f"buffer_load_dword v{G_P+3}, v{vT}, s[{sWB}:{sWB+3}], s{sT0} offen")
    A.label(f"L_tcb{n}")


def touch_wb(A, n):
    A(f"s_cmp_ge_u32 s{sW}, 3")
    A(f"s_cbranch_scc1 L_twb{n}")
    A(f"s_and_b32 s{sT0}, s{sRB}, 7")
    A(f"s_mul_i32 s{sT0}, s{sT0}, 80")
    A(f"s_lshl_b32 s{sT1}, s{sW}, 5")
    A(f"v_lshrrev_b32 v{vT}, 1, v{vL}")
    A(f"v_add_u32 v{vT}, s{sT1}, v{vT}")
    A(f"v_min_u32 v{vT}, 79, v{vT}")
    A(f"v_add_u32 v{vT}, s{sT0}, v{vT}")
    A(f"v_mul_u32_u24 v{vT}, 3840, v{vT}")
    A(f"v_and_b32 v{vT+1}, 1, v{vL}")
    A(f"v_lshl_add_u32 v{vT}, v{vT+1}, 7, v{vT}")
    A(f"buffer_load_dword v{G_P}, v{vT}, s[{sWB}:{sWB+3}], s{sWOFF} offen")
    A.label(f"L_twb{n}")


def touch_a(A, n):
    A(f"v_mul_u32_u24 v{vT}, 37, v{vL}")
    A(f"v_lshrrev_b32 v{vT}, 8, v{vT}")
    A(f"v_mul_u32_u24 v{vT+1}, 7, v{vT}")
    A(f"v_sub_u32 v{vT+1}, v{vL}, v{vT+1}")
    A(f"v_min_u32 v{vT}, 7, v{vT}")
    A(f"s_and_b32 s{sT0}, s{sCT}, 3")
    A(f"s_lshl_b32 s{sT0}, s{sT0}, 2")
    A(f"s_add_u32 s{sT0}, s{sT0}, s{sW}")
    A(f"s_lshl_b32 s{sT0}, s{sT0}, 3")
    A(f"v_add_u32 v{vT}, s{sT0}, v{vT}")
    A(f"v_mul_u32_u24 v{vT}, 1280, v{vT}")
    A(f"v_lshl_add_u32 v{vT}, v{vT+1}, 7, v{vT}")
    A(f"v_add_u32 v{vT}, 384, v{vT}")
    A(f"buffer_load_dword v{G_P+1}, v{vT}, s[{sX}:{sX+3}], s{sXOFF} offen")
    A(f"s_cmp_ge_u32 s{sW}, 2")
    A(f"s_cbranch_scc1 L_twa{n}")
    A(f"s_and_b32 s{sT0}, s{sRB}, 7")
    A(f"s_mul_i32 s{sT0}, s{sT0}, 56")
    A(f"s_mul_i32 s{sT1}, s{sW}, 28")
    A(f"s_add_u32 s{sT0}, s{sT0}, s{sT1}")
    A(f"s_add_u32 s{sT0}, s{sT0}, 192")
    A(f"v_lshrrev_b32 v{vT}, 1, v{vL}")
    A(f"v_min_u32 v{vT}, 27, v{vT}")
    A(f"v_add_u32 v{vT}, s{sT0}, v{vT}")
    A(f"v_mul_u32_u24 v{vT}, 3840, v{vT}")
    A(f"v_and_b32 v{vT+1}, 1, v{vL}")
    A(f"v_lshl_add_u32 v{vT}, v{vT+1}, 7, v{vT}")
    A(f"buffer_load_dword v{G_P+2}, v{vT}, s[{sWA}:{sWA+3}], s{sWOFF} offen")
    A.label(f"L_twa{n}")


def setup_phase1_reads(A):
    A(f"v_lshrrev_b32 v{vT+2}, 1, v{vR}")
    A(f"v_and_b32 v{vT+2}, 7, v{vT+2}")
    A(f"v_xor_b32 v{vT+2}, v{vT+2}, v{vHH}")
    A(f"v_lshlrev_b32 v{vT+2}, 4, v{vT+2}")
    A(f"s_lshl_b32 s{sT0}, s{sMH}, 6")
    A(f"v_add_u32 v{vT+3}, s{sT0}, v{vR}")
    A(f"v_lshl_add_u32 v{vXR}, v{vT+3}, 7, v{vT+2}")
    for ks in range(1, 4):
        A(f"v_xor_b32 v{vXR+3*ks}, {ks*32}, v{vXR}")
    for ks in range(4):
        A(f"v_add_u32 v{vXR+3*ks+1}, 0x10000, v{vXR+3*ks}")
        A(f"v_add_u32 v{vXR+3*ks+2}, 0x20000, v{vXR+3*ks}")
    A(f"v_bfe_u32 v{vT+2}, v{vL}, 2, 2")
    A(f"v_lshl_add_u32 v{vT+3}, v{vHH}, 3, v{vT+2}")
    A(f"v_lshlrev_b32 v{vT+3}, 8, v{vT+3}")
    A(f"v_bfe_u32 v{vT+4}, v{vL}, 4, 1")
    A(f"v_lshlrev_b32 v{vT+4}, 5, v{vT+4}")
    A(f"v_add_u32 v{vT+3}, v{vT+3}, v{vT+4}")
    A(f"v_and_b32 v{vT+4}, 3, v{vL}")
    A(f"v_lshlrev_b32 v{vT+4}, 3, v{vT+4}")
    A(f"v_add_u32 v{vT+3}, v{vT+3}, v{vT+4}")
    for nt in range(2):
        A(f"s_lshl_b32 s{sT0}, s{sNH}, 1")
        A(f"s_add_u32 s{sT0}, s{sT0}, {nt}")
        A(f"v_xor_b32 v{vT+4}, s{sT0}, v{vT+2}")
        A(f"v_lshl_add_u32 v{vWR1+3*nt}, v{vT+4}, 6, v{vT+3}")
        A(f"v_add_u32 v{vWR1+3*nt+1}, 0x10000, v{vWR1+3*nt}")
        A(f"v_add_u32 v{vWR1+3*nt+2}, 0x20000, v{vWR1+3*nt}")


def setup_p2_0(A):
    A(f"s_lshl_b32 s{sF1}, s{sCT}, 4")
    A(f"s_add_u32 s{sF1}, s{sF1}, s{sRB}")
    A(f"s_lshl_b32 s{sF1}, s{sF1}, 2")
    A(f"s_and_b32 s{sT0}, s2, 7")
    A(f"s_lshl_b32 s{sT0}, s{sT0}, 2")
    A(f"s_lshr_b32 s{sT1}, s2, 3")
    A(f"s_and_b32 s{sT1}, s{sT1}, 3")
    A(f"s_add_u32 s{sH}, s{sT0}, s{sT1}")
    A(f"s_lshr_b32 s{sQB}, s2, 5")
    A(f"s_lshr_b32 s{sT0}, s{sH}, 1")
    A(f"s_mul_i32 s{sT0}, s{sT0}, 5")
    A(f"s_add_u32 s{sP2L}, s{sT0}, 2")
    A(f"s_and_b32 s{sT1}, s{sH}, 1")
    A(f"s_mul_i32 s{sT1}, s{sT1}, 3")
    A(f"s_add_u32 s{sPA}, s{sT0}, s{sT1}")
    A(f"s_mul_i32 s{sVH}, s{sH}, {VH}")
    A(f"s_mul_i32 s{sLDSW}, s{sW}, 2816")
    A(f"s_mul_i32 s{sLDSW2}, s{sW}, 2560")
    A(f"s_lshl_b32 s{sQ0}, s{sQB}, 8")
    A(f"s_lshl_b32 s{sT0}, s{sW}, 5")
    A(f"s_add_u32 s{sQ0}, s{sQ0}, s{sT0}")
    A(f"s_lshl_b32 s{sQT}, s{sQB}, 2")
    A(f"s_lshr_b32 s{sT0}, s{sW}, 1")
    A(f"s_add_u32 s{sQT}, s{sQT}, s{sT0}")
    A(f"s_and_b32 s{sT1}, s{sW}, 1")
    A(f"s_lshl_b32 s{sBT}, s{sQT}, 6")
    A(f"s_add_u32 s{sBT}, s{sBT}, s{sT1}")
    A(f"s_mov_b32 s{sLO20}, 0xfffff")
    A(f"s_mov_b32 s{sLO20+1}, 0xfffff")
    A(f"v_lshlrev_b32 v{vQA}, 15, v{vHH}")
    A(f"v_lshl_add_u32 v{vQA}, v{vR}, 4, v{vQA}")
    A(f"v_lshlrev_b32 v{vQA2}, 4, v{vR}")
    A(f"v_lshlrev_b32 v{vGA}, 2, v{vR}")
    A(f"s_lshl_b32 s{sT0}, s{sQ0}, 4")
    A(f"s_lshl_b32 s{sQOFF}, s{sPA}, 15")
    A(f"s_add_u32 s{sQOFF}, s{sQOFF}, s{sT0}")
    if QA:
        A(f"s_add_u32 s{sQOFF}, s{sQOFF}, {QA}")
    A(f"s_lshl_b32 s{sQOFF2}, s{sP2L}, 15")
    A(f"s_add_u32 s{sQOFF2}, s{sQOFF2}, s{sT0}")
    A(f"s_and_b32 s{sT1}, s{sH}, 1")
    A(f"s_lshl_b32 s{sT1}, s{sT1}, 3")
    A(f"s_add_u32 s{sQOFF2}, s{sQOFF2}, s{sT1}")
    if QA:
        A(f"s_add_u32 s{sQOFF2}, s{sQOFF2}, {QA}")
    A(f"s_lshl_b32 s{sGOFF}, s{sQ0}, 2")
    A(f"s_add_u32 s{sGOFF}, s{sGOFF}, {GATE}")


def setup_p2_1(A):
    A(f"s_and_b32 s{sT1}, s{sH}, 1")
    A(f"s_lshl_b32 s{sT1}, s{sT1}, 3")
    A(f"v_lshlrev_b32 v{vT}, 12, v{vHH}")
    A(f"v_lshl_add_u32 v{vT}, v{vR}, 4, v{vT}")
    A(f"v_lshlrev_b32 v{vT+1}, 4, v{vR}")
    A(f"v_add_u32 v{vT+1}, s{sT1}, v{vT+1}")
    A(f"v_mul_u32_u24 v{vT+2}, 320, v{vHH}")
    A(f"v_lshl_add_u32 v{vT+2}, v{vR}, 4, v{vT+2}")
    A(f"v_add_u32 v{vT+3}, {ONES}, v{vT+2}")
    A(f"v_cmp_gt_u32 vcc, 20, v{vR}")
    for sl in range(NSLOT):
        A(f"v_add_u32 v{vK01+sl}, {sl*SLOT}, v{vT}")
        A(f"v_add_u32 v{vK2+sl}, {sl*SLOT}, v{vT+1}")
        A(f"v_add_u32 v{vT+4}, {sl*SLOT + 12288}, v{vT+2}")
        A(f"v_cndmask_b32 v{vV+sl}, v{vT+3}, v{vT+4}, vcc")
    A(f"s_lshl_b32 s{sT2}, s{sPA}, 15")
    A(f"s_add_u32 s{sT2}, s{sT2}, {KA}")
    A(f"s_lshl_b32 s{sT3}, s{sP2L}, 15")
    A(f"s_add_u32 s{sT3}, s{sT3}, {KA - 8192}")
    A(f"s_add_u32 s{sT4}, s{sVH}, {VA - 12288}")
    for t in range(3):
        A(f"v_add_u32 v{vT}, s{sLDSW}, v{vL16}")
        if t:
            A(f"v_add_u32 v{vT}, {1024*t}, v{vT}")
        A(f"v_lshrrev_b32 v{vT+1}, 12, v{vT}")
        A(f"v_and_b32 v{vT+2}, 4095, v{vT}")
        A(f"v_lshl_add_u32 v{vT+2}, v{vT+1}, 15, v{vT+2}")
        A(f"v_add_u32 v{vT+2}, s{sT2}, v{vT+2}")
        A(f"v_add_u32 v{vT+3}, s{sT3}, v{vT}")
        A(f"v_add_u32 v{vT+4}, s{sT4}, v{vT}")
        A(f"v_cmp_eq_u32 vcc, 2, v{vT+1}")
        A(f"v_mov_b32 v{vT+5}, 4096")
        A(f"v_mov_b32 v{vT+6}, 10240")
        A(f"v_cndmask_b32 v{vT+2}, v{vT+2}, v{vT+3}, vcc")
        A(f"v_cmp_le_u32 vcc, 3, v{vT+1}")
        A("s_nop 1")
        A(f"v_cndmask_b32 v{vCB+t}, v{vT+2}, v{vT+4}, vcc")
        A(f"v_cndmask_b32 v{vCS+t}, v{vT+5}, v{vT+6}, vcc")


def setup_p2_2(A):
    A(f"s_lshr_b32 s{sT0}, s{sH}, 1")
    A(f"s_mul_i32 s{sT0}, s{sT0}, 5")
    A(f"s_and_b32 s{sT1}, s{sH}, 1")
    A(f"s_lshl_b32 s{sT2}, s{sT1}, 1")
    A(f"s_add_u32 s{sT2}, s{sT2}, s{sT0}")
    A(f"v_add_u32 v{vT}, s{sT2}, v{vHH}")
    A(f"v_lshlrev_b32 v{vT}, 15, v{vT}")
    A(f"v_lshl_add_u32 v{vOST}, v{vR}, 4, v{vT}")
    A(f"v_lshl_add_u32 v{vOST+1}, v{vR}, 5, v{vT}")
    A(f"s_add_u32 s{sT0}, s{sT0}, 4")
    A(f"s_lshl_b32 s{sT0}, s{sT0}, 15")
    A(f"s_lshl_b32 s{sT1}, s{sT1}, 3")
    A(f"s_add_u32 s{sT0}, s{sT0}, s{sT1}")
    A(f"v_lshlrev_b32 v{vT}, 4, v{vR}")
    A(f"v_add_u32 v{vOST+2}, s{sT0}, v{vT}")
    A(f"v_lshlrev_b32 v{vT}, 5, v{vR}")
    A(f"v_add_u32 v{vOST+3}, s{sT0}, v{vT}")
    A(f"s_mul_i32 s{sT0}, s{sH}, 20")
    A(f"s_add_u32 s{sT1}, s{sT0}, 19")
    A(f"s_lshr_b32 s{sT0}, s{sT0}, 7")
    A(f"s_lshr_b32 s{sT1}, s{sT1}, 7")
    A(f"v_bfe_u32 v{vT}, v{vL}, 4, 1")
    A(f"s_sub_u32 s{sT2}, s{sT1}, s{sT0}")
    A(f"v_mul_u32_u24 v{vT+1}, s{sT2}, v{vT}")
    A(f"v_add_u32 v{vT+1}, s{sT0}, v{vT+1}")
    A(f"v_mul_u32_u24 v{vT+2}, 5, v{vHH}")
    A(f"v_add_u32 v{vT+2}, 5, v{vT+2}")
    A(f"v_add_u32 v{vT+2}, v{vT+2}, v{vT+1}")
    A(f"v_and_b32 v{vT+3}, 15, v{vL}")
    A(f"v_lshl_add_u32 v{vT+2}, v{vT+2}, 4, v{vT+3}")
    A(f"v_lshlrev_b32 v{vF1}, 2, v{vT+2}")
    A(f"v_add_u32 v{vT+2}, {15*16}, v{vT+3}")
    A(f"v_lshlrev_b32 v{vF4}, 2, v{vT+2}")
    A(f"v_and_b32 v{vT+4}, 1, v{vL}")
    A(f"s_lshl_b32 s{sT3}, s{sQB}, 1")
    A(f"v_add_u32 v{vT+4}, s{sT3}, v{vT+4}")
    A(f"v_lshl_add_u32 v{vT+4}, v{vT+1}, 4, v{vT+4}")
    A(f"v_lshlrev_b32 v{vF2}, 2, v{vT+4}")
    A(f"v_and_b32 v{vT}, 1, v{vL}")
    A(f"v_mul_u32_u24 v{vT+1}, s{sT2}, v{vT}")
    A(f"v_add_u32 v{vT+1}, s{sT0}, v{vT+1}")
    A(f"v_bfe_u32 v{vT+2}, v{vL}, 1, 2")
    A(f"v_min_u32 v{vT+2}, 2, v{vT+2}")
    A(f"v_mul_u32_u24 v{vT+2}, 5, v{vT+2}")
    A(f"v_add_u32 v{vT+1}, v{vT+1}, v{vT+2}")
    A(f"s_lshr_b32 s{sT3}, s{sQT}, 1")
    A(f"s_max_u32 s{sT4}, s{sQT}, 1")
    A(f"s_sub_u32 s{sT4}, s{sT4}, 1")
    A(f"s_lshr_b32 s{sT4}, s{sT4}, 1")
    A(f"s_sub_u32 s{sT4}, s{sT3}, s{sT4}")
    A(f"v_bfe_u32 v{vT+2}, v{vL}, 3, 1")
    A(f"v_mul_u32_u24 v{vT+2}, s{sT4}, v{vT+2}")
    A(f"v_sub_u32 v{vT+2}, s{sT3}, v{vT+2}")
    A(f"v_lshl_add_u32 v{vT+1}, v{vT+1}, 4, v{vT+2}")
    A(f"v_lshlrev_b32 v{vF3}, 2, v{vT+1}")


def setup_p2_3(A):
    A(f"v_lshlrev_b32 v{vBA}, 15, v{vHH}")
    A(f"v_lshl_add_u32 v{vBA}, v{vR}, 4, v{vBA}")
    A(f"v_lshlrev_b32 v{vBA+1}, 4, v{vR}")
    A(f"v_and_b32 v{vT+2}, 25, v{vR}")
    A(f"v_bfe_u32 v{vT+3}, v{vR}, 1, 1")
    A(f"v_lshl_or_b32 v{vT+2}, v{vT+3}, 2, v{vT+2}")
    A(f"v_bfe_u32 v{vT+3}, v{vR}, 2, 1")
    A(f"v_lshl_or_b32 v{vT+2}, v{vT+3}, 1, v{vT+2}")
    A(f"v_lshlrev_b32 v{vT+3}, 15, v{vHH}")
    A(f"v_lshl_add_u32 v{vBA+2}, v{vT+2}, 4, v{vT+3}")
    A(f"v_lshlrev_b32 v{vBA+3}, 4, v{vT+2}")
    A(f"v_mul_u32_u24 v{vT+4}, 320, v{vHH}")
    A(f"v_lshl_add_u32 v{vBA+4}, v{vR}, 4, v{vT+4}")
    A(f"s_and_b32 s{sT1}, s{sW}, 1")
    A(f"s_lshl_b32 s{sT1}, s{sT1}, 10")
    A(f"s_lshl_b32 s{sT0}, s{sQT}, 5")
    A(f"s_add_u32 s{sT2}, s{sT1}, s{sT0}")
    A(f"s_lshl_b32 s{sT0}, s{sPA}, 15")
    A(f"s_lshl_b32 s{sT1}, s{sP2L}, 15")
    A(f"s_and_b32 s{sT3}, s{sH}, 1")
    A(f"s_lshl_b32 s{sT3}, s{sT3}, 3")
    A(f"s_add_u32 s{sT1}, s{sT1}, s{sT3}")
    for prev in range(2):
        if prev:
            A(f"s_cmp_eq_u32 s{sQT}, 0")
            A(f"s_cselect_b32 s{sT3}, 0, 32")
            A(f"s_sub_u32 s{sT2}, s{sT2}, s{sT3}")
        A(f"s_lshl_b32 s{sT3}, s{sT2}, 4")
        if not prev:
            A(f"s_add_u32 s{sBA}, s{sT3}, s{sT0}")
            A(f"s_add_u32 s{sBA}, s{sBA}, {QB}")
            A(f"s_add_u32 s{sBA+1}, s{sT3}, s{sT1}")
            A(f"s_add_u32 s{sBA+1}, s{sBA+1}, {QB}")
        o = sBA + 2 + 3 * prev
        A(f"s_add_u32 s{o}, s{sT3}, s{sT0}")
        A(f"s_add_u32 s{o}, s{o}, {KB}")
        A(f"s_add_u32 s{o+1}, s{sT3}, s{sT1}")
        A(f"s_add_u32 s{o+1}, s{o+1}, {KB}")
        A(f"s_lshr_b32 s{sT3}, s{sT2}, 4")
        A(f"s_mul_i32 s{sT3}, s{sT3}, 640")
        A(f"s_add_u32 s{o+2}, s{sT3}, s{sVH}")
        A(f"s_add_u32 s{o+2}, s{o+2}, {VB}")
    A(f"s_lshl_b32 s{sBA+8}, s{sBT}, 2")
    A(f"s_add_u32 s{sBA+8}, s{sBA+8}, {GATE}")


def setup_p2_4(A):
    sRT, sCO, sTG = sT1, sT2, sT3
    A(f"s_lshr_b32 s{sRT}, s{sH}, 3")
    A(f"s_lshl_b32 s{sT0}, s{sQB}, 2")
    A(f"s_add_u32 s{sRT}, s{sRT}, s{sT0}")
    A(f"s_and_b32 s{sCO}, s{sH}, 7")
    A(f"s_and_b32 s{sTG}, s{sW}, 3")
    A(f"s_lshr_b32 s{sKG}, s{sW}, 2")
    A(f"s_lshl_b32 s{sFLG}, s{sRT}, 8")
    A(f"s_mul_i32 s{sWSRC}, s{sW}, 20480")
    A(f"s_mul_i32 s{sT0}, s{sCO}, 1280")
    A(f"s_add_u32 s{sWSRC}, s{sWSRC}, s{sT0}")
    A(f"s_add_u32 s{sWSRC}, s{sWSRC}, {WOT}")
    A(f"s_lshl_b32 s{sRT}, s{sRT}, 6")
    A(f"s_lshl_b32 s{sTG}, s{sTG}, 4")
    A(f"s_add_u32 s{sRT}, s{sRT}, s{sTG}")
    A(f"s_mul_i32 s{sOUTO}, s{sRT}, 1280")
    A(f"s_mul_i32 s{sT0}, s{sCO}, 160")
    A(f"s_add_u32 s{sOUTO}, s{sOUTO}, s{sT0}")
    A(f"s_lshl_b32 s{sOCB}, s{sRT}, 4")
    A(f"s_mul_i32 s{sT0}, s{sKG}, {40*32768}")
    A(f"s_add_u32 s{sOCB}, s{sOCB}, s{sT0}")
    A(f"s_add_u32 s{sOCB}, s{sOCB}, {OC}")
    A(f"s_lshl_b32 s{sPUB}, s{sQT}, 6")
    A(f"s_lshl_b32 s{sT0}, s{sH}, 1")
    A(f"s_add_u32 s{sPUB}, s{sPUB}, s{sT0}")
    A(f"s_and_b32 s{sT0}, s{sW}, 1")
    A(f"s_add_u32 s{sPUB}, s{sPUB}, s{sT0}")
    A(f"s_lshl_b32 s{sPUB}, s{sPUB}, 2")
    A(f"v_lshlrev_b32 v{vFA}, 2, v{vL}")
    A(f"v_mov_b32 v{vW0}, v{vL16}")
    A(f"v_add_u32 v{vT}, 1024, v{vL16}")
    A(f"v_add_u32 v{vT+1}, {10240 - 256}, v{vL16}")
    A(f"v_cmp_gt_u32 vcc, 16, v{vL}")
    A(f"v_add_u32 v{vW2}, {10240 + 768}, v{vL16}")
    A(f"v_lshrrev_b32 v{vT+2}, 4, v{vL}")
    A(f"v_cndmask_b32 v{vW1}, v{vT+1}, v{vT}, vcc")
    A(f"v_and_b32 v{vT+3}, 15, v{vL}")
    A(f"v_lshlrev_b32 v{vT+4}, 15, v{vT+2}")
    A(f"v_lshl_add_u32 v{vOC}, v{vT+3}, 4, v{vT+4}")
    A(f"v_mul_u32_u24 v{vT+4}, 1280, v{vT+2}")
    A(f"v_lshl_add_u32 v{vWR}, v{vT+3}, 4, v{vT+4}")
    A(f"v_mul_u32_u24 v{vT+4}, 1280, v{vT+3}")
    A(f"v_lshl_add_u32 v{vST}, v{vT+2}, 3, v{vT+4}")


SETUP_P2 = [setup_p2_0, setup_p2_1, setup_p2_2, setup_p2_3, setup_p2_4]


def setup_phase2(A):
    for f in SETUP_P2:
        f(A)


def pattern_fill(A):
    for r in range(2):
        A(f"v_add_u32 v{vT}, {512*r}, v0")
        A(f"v_mul_u32_u24 v{vT+1}, 3277, v{vT}")
        A(f"v_lshrrev_b32 v{vT+1}, 16, v{vT+1}")
        A(f"v_mul_u32_u24 v{vT+1}, 20, v{vT+1}")
        A(f"v_cmp_eq_u32 vcc, v{vT+1}, v{vT}")
        A(f"v_mov_b32 v{vT+4}, 0")
        A(f"v_mov_b32 v{vT+5}, 0x3f803f80")
        A(f"v_cndmask_b32 v{vT+4}, v{vT+4}, v{vT+5}, vcc")
        for i in range(1, 4):
            A(f"v_mov_b32 v{vT+4+i}, v{vT+4}")
        if r == 1:
            A(f"v_cmp_gt_u32 vcc, {PAT_UNITS}, v{vT}")
        A(f"v_lshlrev_b32 v{vT}, 4, v{vT}")
        A(f"v_add_u32 v{vT}, {ONES}, v{vT}")
        if r == 1:
            A("s_and_saveexec_b64 s[%d:%d], vcc" % (sT4, sT5))
            A("s_cbranch_execz L_pat_done")
        A.lds(f"ds_write_b128 v{vT}, {v(vT+4,4)}", "pat")
    A.label("L_pat_done")
    A("s_mov_b64 exec, -1")


def gen(prof=False):
    A = Asm()
    A.prof = prof
    A.PROF_V = 239
    kernel_header(A, NAME)
    A("s_cmp_ge_u32 s2, 256")
    A("s_cbranch_scc1 L_end")
    A.stamp("start")
    A("s_load_dwordx4 s[4:7], s[0:1], 0")
    A(f"s_load_dwordx2 s[{sP}:{sP+1}], s[0:1], 32")
    A(f"s_load_dwordx2 s[{sP+2}:{sP+3}], s[0:1], 72")
    A(f"s_load_dwordx4 s[{sDBG}:{sDBG+3}], s[0:1], 56")
    A(f"v_lshrrev_b32 v{vT}, 6, v0")
    A(f"v_and_b32 v{vL}, 63, v0")
    A(f"v_readfirstlane_b32 s{sW}, v{vT}")
    A(f"v_and_b32 v{vR}, 31, v{vL}")
    A(f"v_lshrrev_b32 v{vHH}, 5, v{vL}")
    A(f"v_lshlrev_b32 v{vL16}, 4, v{vL}")
    A(f"s_and_b32 s{sT0}, s2, 7")
    A(f"s_lshr_b32 s{sT1}, s2, 3")
    A(f"s_and_b32 s{sRB}, s{sT0}, 1")
    A(f"s_lshl_b32 s{sRB}, s{sRB}, 3")
    A(f"s_and_b32 s{sT2}, s{sT1}, 7")
    A(f"s_add_u32 s{sRB}, s{sRB}, s{sT2}")
    A(f"s_lshr_b32 s{sCT}, s{sT0}, 1")
    A(f"s_lshl_b32 s{sCT}, s{sCT}, 2")
    A(f"s_lshr_b32 s{sT2}, s{sT1}, 3")
    A(f"s_add_u32 s{sCT}, s{sCT}, s{sT2}")
    A(f"s_and_b32 s{sGI}, s{sW}, 3")
    A(f"s_and_b32 s{sMH}, s{sGI}, 1")
    A(f"s_lshr_b32 s{sNH}, s{sGI}, 1")
    A(f"s_mul_i32 s{sXOFF}, s{sRB}, {128*1280}")
    A(f"s_lshl_b32 s{sWOFF}, s{sCT}, 8")
    A(f"s_lshl_b32 s{sLDS1}, s{sGI}, 10")
    A(f"s_mul_hi_u32 s{sT0}, s{sCT}, 0x33333334")
    A(f"s_mul_i32 s{sT0}, s{sT0}, 5")
    A(f"s_sub_u32 s{sCT5}, s{sCT}, s{sT0}")
    A(f"v_lshrrev_b32 v{vT}, 3, v{vL}")
    A(f"s_lshl_b32 s{sT0}, s{sGI}, 3")
    A(f"v_add_u32 v{vT}, s{sT0}, v{vT}")
    A(f"v_lshrrev_b32 v{vT+1}, 1, v{vT}")
    A(f"v_xor_b32 v{vT+1}, v{vT+1}, v{vL}")
    A(f"v_and_b32 v{vT+1}, 7, v{vT+1}")
    A(f"v_lshlrev_b32 v{vT+1}, 4, v{vT+1}")
    A(f"v_mul_u32_u24 v{vT+2}, 1280, v{vT}")
    A(f"v_add_u32 v{vXD}, v{vT+2}, v{vT+1}")
    A(f"v_lshrrev_b32 v{vT}, 4, v{vL}")
    A(f"v_lshlrev_b32 v{vT+1}, 2, v{vT}")
    A(f"v_xor_b32 v{vT+1}, v{vT+1}, v{vL}")
    A(f"v_and_b32 v{vT+1}, 15, v{vT+1}")
    A(f"v_lshlrev_b32 v{vT+1}, 4, v{vT+1}")
    A(f"s_lshl_b32 s{sT0}, s{sGI}, 2")
    A(f"v_add_u32 v{vT}, s{sT0}, v{vT}")
    A(f"v_mul_u32_u24 v{vT}, 3840, v{vT}")
    A(f"v_add_u32 v{vWD}, v{vT}, v{vT+1}")
    if EXP.get("stampP"):
        A("s_memtime s[96:97]")
        A("s_memrealtime s[98:99]")
    A("s_waitcnt lgkmcnt(0)")
    if EXP.get("stampP"):
        A(f"v_writelane_b32 v{A.PROF_V}, s96, 14")
        A(f"v_writelane_b32 v{A.PROF_V}, s98, 30")
        A.stamp("", 15)
    srd(A, sX, 4, X_BYTES)
    srd(A, sWA, 6, W_BYTES)
    srd(A, sWB, sP, W_BYTES)
    srd(A, sWS, sP + 2, WS_USED)
    srd(A, sOUT, sDBG, OUT_BYTES)
    A(f"s_mov_b32 s{sDBG}, s{sDBG+2}")
    A(f"s_and_b32 s{sDBG+1}, s{sDBG+3}, 0xffff")
    A(f"s_mov_b32 s{sDBG+2}, 256")
    A(f"s_mov_b32 s{sDBG+3}, 0x20000")
    A(f"s_cmp_eq_u32 s{sCT}, 15")
    A("s_cbranch_scc1 L_nodma")
    A(f"s_cmp_lt_u32 s{sW}, 4")
    A("s_cbranch_scc1 L_nodma")
    for b in range(3):
        for p in range(8):
            g_dma(A, b, p)
    A(f"s_cmp_ge_u32 s{sCT}, 10")
    A("s_cbranch_scc1 L_g1n")
    A("s_branch L_g1t")
    A.label("L_nodma")
    if EXP.get("tchip", 2) in (1, 2, 3):
        touch_chip(A, {1: "xab", 2: "xa", 3: "b"}[EXP.get("tchip", 2)])
    if EXP.get("tchip") == 6:
        touch_chip_wide(A, "xa", "e")
    if EXP.get("tchip") == 7:
        touch_chip_wide(A, "ax", "e")
    A(f"s_or_b32 s{sT0}, s2, s{sW}")
    A(f"s_cmp_lg_u32 s{sT0}, 0")
    A("s_cbranch_scc1 L_nonce_done")
    A(f"s_memrealtime s[{sT4}:{sT5}]")
    A("s_waitcnt lgkmcnt(0)")
    A(f"s_or_b32 s{sT0}, s{sT4}, 1")
    A(f"v_mov_b32 v{vT}, s{sT0}")
    A(f"v_mov_b32 v{vT+1}, 0")
    A("s_mov_b64 exec, 1")
    A(f"buffer_store_dword v{vT}, v{vT+1}, s[{sDBG}:{sDBG+3}], 0 offen sc1")
    A("s_mov_b64 exec, -1")
    A.label("L_nonce_done")
    if EXP.get("cpf"):
        A(f"s_lshr_b32 s{sT1}, s2, 3")
        A(f"s_cmp_ge_u32 s{sT1}, 8")
        A("s_cbranch_scc1 L_cpf_done")
        A(f"s_cmp_lg_u32 s{sW}, {EXP['cpf'] - 1}")
        A("s_cbranch_scc1 L_cpf_done")
        A(f"s_getpc_b64 s[{sT4}:{sT5}]")
        A.label("L_cpf_pc")
        A(f"s_sub_u32 s{sT4}, s{sT4}, L_cpf_pc - {NAME}")
        A(f"s_subb_u32 s{sT5}, s{sT5}, 0")
        A(f"s_lshl_b32 s{sT1}, s{sT1}, 13")
        A(f"v_lshlrev_b32 v{vT}, 7, v{vL}")
        A(f"v_add_u32 v{vT}, s{sT1}, v{vT}")
        A(f"v_min_u32 v{vT}, L_end - {NAME}, v{vT}")
        A(f"global_load_dword v{G_P}, v{vT}, s[{sT4}:{sT5}]")
        A.label("L_cpf_done")
    if EXP.get("tchip") == 5:
        setup_phase1_reads(A)
        touch_chip(A, "xa")
        setup_phase2(A)
    else:
        setup_phase1_reads(A)
        setup_phase2(A)
    if EXP.get("tchip") == 4:
        touch_chip(A, "xa")
    A.stamp("issued")
    A(f"s_cmp_eq_u32 s{sCT}, 15")
    A("s_cbranch_scc1 L_spare")
    A(f"s_cmp_ge_u32 s{sCT}, 10")
    A("s_cbranch_scc1 L_vtile")
    if prof:
        A.stamps += ["blk0 landed", "gemm0", "epi0", "gemm1", "epi1"]
        if EXP.get("stampB"):
            A.stamps += ["B10", "B12", "B14", "B16"]
        if EXP.get("stampA"):
            A.stamps += ["B0", "B2", "B4", "B6"]
    gemm(A, True, "t")
    A("s_branch L_attn")
    A.label("L_vtile")
    gemm(A, False, "n")
    A.label("L_attn")
    A.vm_q, A.lds_q = [], []
    A("s_barrier")
    A.stamp("attn start")
    if EXP.get("prio") == 1:
        A(f"s_cmp_lt_u32 s{sW}, 4")
        A("s_cbranch_scc1 L_prio_done")
        A("s_setprio 1")
        A.label("L_prio_done")
    rd_k01(A, 0)
    rd_k2(A, 0)
    dma_chunk(A, 3)
    pattern_fill(A)
    b_consts(A)
    A.lds_wait_all()
    mf16(A, SA, K01, Q01, "0")
    mf8(A, SA, K2, Q2, v(SA, 16))
    A("s_nop 7")
    A("s_nop 5")
    max16(A, vT, SA, True)
    cross_half_max(A, vT, vT + 1)
    for i in range(16):
        A(f"v_sub_f32 v{NEGM+i}, 0, v{vT}")
    A("s_nop 1")
    mf16(A, SA, K01, Q01, v(NEGM, 16))
    mf8(A, SA, K2, Q2, v(SA, 16))
    A("s_barrier")
    rd_k01(A, 1)
    rd_k2(A, 1)
    rd_v(A, 0, 0)
    A("s_nop 7")
    A("s_nop 3")
    NT = 64
    sched = {}
    def at(t, half, fn):
        sched.setdefault((t, half), []).append(fn)
    fb_items = [(vFL, vF3, F1B, None), (vFL2, vF4, F1A, None)]
    pos = {}
    def issue(name, items):
        def f(A):
            pos[name] = poll_issue(A, items, name)
        return f
    at(13, 0, issue("f1b", fb_items))
    pre_barrier = {22: lambda A: poll_check(A, fb_items, pos["f1b"], "f1b"),
                   54: lambda A: poll_check(A, fo_items, pos["fb"], "fb")}
    at(22, 1, lambda A: A.vm(f"buffer_load_dword v{vG}, v{vGA}, {WS}, s{sGOFF} offen sc1", "g"))
    for i, f in enumerate(b_load_items()):
        at(25 + i // 2, i % 2, f)
    at(34, 1, b_unit)
    at(40, 0, lambda A: publish(A, sPUB, FLAGB, "stb"))
    fo_items = [(vFL, vFA, FLAGB, sFLG)]
    at(48, 0, issue("fb", fo_items))
    for k in range(10):
        at(55 + k // 2, k % 2, lambda A, k=k: oc_load(A, 1, k))
    for st in range(3):
        for p in range(3):
            i = 3 * st + p
            at(42 + i // 2, i % 2, lambda A, st=st, p=p: dma_w_piece(A, 1, st, p))
    for st in range(3, 5):
        for p in range(3):
            i = 3 * (st - 3) + p
            at(57 + i // 2, 1 - i % 2, lambda A, st=st, p=p: dma_w_piece(A, 1, st, p))
    for c in range(2, NCH - 2):
        for p in range(3):
            at(TPC * c - 1 + p // 2, 1 if p % 2 == 0 else 0, lambda A, c=c, p=p: dma_chunk_piece(A, c + 2, p))
    for t in range(NT):
        cur = SA if t % 2 == 0 else SB
        nxt = SB if t % 2 == 0 else SA
        if (t == 32 and not (EXP.get("stampB") or EXP.get("stampA"))) or (EXP.get("stampB") and t in (21, 24)):
            A.stamp("t%d" % t)
        if t % TPC == TPC - 2 and t + 2 < NT:
            c = (t + 2) // TPC
            if c == 1:
                A.vm_wait(("c", 3))
            A.vm_wait(("c", c))
            if t in pre_barrier:
                pre_barrier[t](A)
            A("s_barrier")
            if c == 1:
                with Wave0(A, "pubb"):
                    publish(A, sF1, F1B)
        if EXP.get("prio") == 2 and t == 55:
            A(f"s_cmp_lt_u32 s{sW}, 4")
            A("s_cbranch_scc1 L_prio_done")
            A("s_setprio 1")
            A.label("L_prio_done")
        if EXP.get("prio") == 3 and t % 8 == 7:
            A(f"s_lshr_b32 s{sT0}, s{sW}, 2")
            A(f"s_cmp_eq_u32 s{sT0}, {(t // 8) % 2}")
            A(f"s_cbranch_scc1 L_prio_a{t}")
            A("s_setprio 0")
            A(f"s_branch L_prio_b{t}")
            A.label(f"L_prio_a{t}")
            A("s_setprio 1")
            A.label(f"L_prio_b{t}")
        if EXP.get("xbar") and t == EXP["xbar"]:
            A("s_barrier")
        if t == 63:
            A.vm_wait(("w", 1, 4))
        for f in sched.get((t, 0), []):
            f(A)
        if t + 1 < NT:
            A.lds_wait(("k01", t + 1))
            mf16(A, nxt, K01, Q01, "0" if EXP.get("m0") else v(NEGM, 16))
            if t + 2 < NT:
                rd_k01(A, t + 2)
        exps(A, cur, 0)
        if t > 0:
            A.lds_wait(("v", t - 1, 1))
            mf16(A, O, V1, P + 4, v(O, 16))
        rd_v(A, t, 1)
        exps(A, cur, 1)
        for f in sched.get((t, 1), []):
            f(A)
        if t + 1 < NT:
            A.lds_wait(("k2", t + 1))
            mf8(A, nxt, K2, Q2, v(nxt, 16))
            if t + 2 < NT:
                rd_k2(A, t + 2)
        exps(A, cur, 2)
        A.lds_wait(("v", t, 0))
        mf16(A, O, V0, P, "0" if t == 0 else v(O, 16))
        if t + 1 < NT:
            rd_v(A, t + 1, 0)
        exps(A, cur, 3)
    A.lds_wait(("v", NT - 1, 1))
    A("s_nop 1")
    mf16(A, O, V1, P + 4, v(O, 16))
    A(f"v_add_u32 v{vT+5}, 0x10000, v{vWR}")
    A(f"v_add_u32 v{vT+6}, 0x20000, v{vWR}")
    A(f"v_mov_b32 v{vT+3}, {hex(f32bits(BIG))}")
    A("s_nop 7")
    A("s_nop 3")
    A.stamp("loop end")
    row_sum(A, O)
    A(f"v_mul_f32 v{vT+2}, 0, v{O}")
    for i in range(1, 12):
        A(f"v_fma_f32 v{vT+2}, v{O+i}, 0, v{vT+2}")
    A(f"v_add_f32 v{vT+2}, v{vT+2}, v{vT+1}")
    A(f"v_cmp_lt_f32 vcc, v{vT+2}, v{vT+3}")
    A("s_nop 4")
    A("s_cmp_eq_u64 vcc, exec")
    A("s_cbranch_scc0 L_fallback")
    A.label("L_finish")
    A.vm_wait("g")
    finish_tile(A, O, vG, False, vOST, sQ0, 0, "sta")
    A(f"v_add_u32 v{vT+5}, 0x10000, v{vWR}")
    A(f"v_add_u32 v{vT+6}, 0x20000, v{vWR}")
    A("s_barrier")
    A.stamp("ring free") if not (EXP.get("stampB") or EXP.get("stampA")) else None
    wa = [(st, p) for st in range(2) for p in range(3)]

    def hook_b(k, kg):
        if k < 6:
            st, p = wa[k]
            dma_w_piece(A, 0, st, p)
        if k == EXP.get("pubk", 1):
            publish(A, sPUB, FLAGA, "sta")
    outproj(A, 1, True, hook_b)
    A.stamp("b part") if not (EXP.get("stampB") or EXP.get("stampA")) else None
    A("s_barrier")
    for st in range(2, 5):
        for p in range(3):
            dma_w_piece(A, 0, st, p)
    if EXP.get("notight"):
        fa_items = [(vFL, vFA, FLAGA, sFLG)]
        pfa = poll_issue(A, fa_items, "fa")
        poll_check(A, fa_items, pfa, "fa")
    else:
        poll_tight(A, FLAGA, sFLG, vFA, "fa")
    A("s_barrier")
    A.stamp("flags a") if not (EXP.get("stampB") or EXP.get("stampA")) else None
    for k in range(10):
        oc_load(A, 0, k)
    A.vm_wait(("w", 0, 4))
    A("s_barrier")
    outproj(A, 0, False)
    A.stamp("a part") if not (EXP.get("stampB") or EXP.get("stampA")) else None
    A(f"s_and_b32 s{sT0}, s{sW}, 3")
    A(f"s_mul_i32 s{sT0}, s{sT0}, 5120")
    A(f"v_add_u32 v{vT}, s{sT0}, v{vL16}")
    A(f"s_cmp_eq_u32 s{sKG}, 0")
    A("s_cbranch_scc1 L_red_a")

    def finish_out(tiles):
        A.lds_q = []
        for nt in tiles:
            A.lds(f"ds_read_b128 {v(WF+4*nt,4)}, v{vT} offset:{nt*1024}", ("r", nt))
        for nt in tiles:
            A.lds_wait(("r", nt))
            for i in range(4):
                A(f"v_add_f32 v{ACC+4*nt+i}, v{ACC+4*nt+i}, v{WF+4*nt+i}")
            A(f"v_cvt_pk_bf16_f32 v{ACC+4*nt}, v{ACC+4*nt}, v{ACC+4*nt+1}")
            A(f"v_cvt_pk_bf16_f32 v{ACC+4*nt+1}, v{ACC+4*nt+2}, v{ACC+4*nt+3}")
            A.vm(f"buffer_store_dwordx2 {v(ACC+4*nt,2)}, v{vST}, s[{sOUT}:{sOUT+3}], s{sOUTO} offen offset:{nt*32}{EXP.get('outst','')}", "st")

    A("s_nop 5")
    for nt in range(3):
        A(f"ds_write_b128 v{vT}, {v(ACC+4*nt,4)} offset:{nt*1024}")
    A("s_waitcnt lgkmcnt(0)")
    A("s_barrier")
    finish_out((3, 4))
    if prof:
        A.stamp("", len(A.stamps))
        A.stamp_flush(0, sWS, PROF, vT + 2)
    A("s_endpgm")
    A.label("L_red_a")
    A("s_nop 5")
    for nt in (3, 4):
        A(f"ds_write_b128 v{vT}, {v(ACC+4*nt,4)} offset:{nt*1024}")
    A("s_waitcnt lgkmcnt(0)")
    A("s_barrier")
    finish_out((0, 1, 2))
    A.stamp("end")
    if prof and EXP.get("dbg"):
        with Wave0(A, "dbgout"):
            A(f"v_subrev_u32 v{vT}, s{sNONCE}, v{A.PROF_V}")
            A(f"v_subrev_u32 v{vT+1}, 16, v{vL}")
            A(f"v_lshlrev_b32 v{vT+1}, 2, v{vT+1}")
            if EXP["dbg"] == 2:
                A(f"v_sub_u32 v{vT}, 0x100000, v{vT}")
            A("s_mov_b32 exec_lo, 0xfffe0000")
            A("s_mov_b32 exec_hi, 0")
            A(f"buffer_atomic_umax v{vT}, v{vT+1}, s[{sDBG}:{sDBG+3}], 0 offen")
            A("s_mov_b64 exec, -1")
    A.stamp_flush(0, sWS, PROF, vT)
    A("s_endpgm")
    fallback(A)
    spare(A)
    A.label("L_end")
    A("s_endpgm")
    kernel_footer(A, NAME, NV, 96)
    gen.stamps = getattr(A, "stamps", [])
    if prof and EXP.get("stampP"):
        assert len(gen.stamps) == 14, len(gen.stamps)
        gen.stamps = gen.stamps + ["pre-kernarg", "kernarg"]
    return A.text()

if __name__ == "__main__":
    print(gen())
```

```python
from asmlib import *
from layout2 import *

NAME = "gated_mix__softmax_full_mha__sliding_local_dilated__prompt_kernel"
EXP = {}
STAGE, NST, NB = 32768, 5, 20
SLOT = CHB
NSLOT = 4
TPC = CH // 32
NCH = S // CH
ONES = 4 * SLOT
PAT_UNITS = 672
WBASE = ONES + PAT_UNITS * 16
WSTG = 20480
LDS_BYTES = 163840
WB_OFF = [WBASE, WBASE + WSTG, WBASE + 2 * WSTG, 0, SLOT]
WA_OFF = [2 * SLOT, 3 * SLOT, WBASE, WBASE + WSTG, WBASE + 2 * WSTG]
assert WBASE + 3 * WSTG <= LDS_BYTES
BIG = 2.0 ** 64
SPIN_MAX = 1 << 16
sWS, sOUT = 8, 12
sW, sNONCE = 16, 17
sH, sQB, sPA, sLDSW, sLDSW2, sWSRC, sOCB, sFLG, sPUB, sOUTO, sKG, sQ0, sBT, sQT = range(18, 32)
sT0, sT1, sT2, sT3, sT4, sT5 = range(32, 38)
sM = 38
sLO20 = 40
sCNT = 42
sP2L = 43
sDBG = 44
sBA = 48
sVH = 57
sX, sWA, sWB = 60, 64, 68
sRB, sCT, sMH, sNH, sXOFF, sWOFF, sLDS1, sCT5, sTP, sB16, sQS, sGI = range(72, 84)
sQOFF, sQOFF2, sGOFF, sF1 = 88, 89, 90, 91
sP = 92
vL, vR, vHH = 1, 2, 3
vK01, vK2, vV = 4, 8, 12
vL16, vG, vGB, vFL = 16, 17, 18, 19
vT = 20
SA, SB, NEGM, O, P = 28, 44, 60, 76, 92
Q01, Q2, K01, K2, V0, V1 = 100, 104, 108, 112, 116, 120
BQ01, BQ2, BK01, BK2, BKP01, BKP2 = 124, 128, 132, 136, 140, 144
BV0, BV1, BVP, BS0, BS1, BO, BP = 148, 152, 156, 160, 176, 192, 208
vBA = 220
vW0, vW1, vW2, vOC, vWR, vST, vFA = 225, 226, 227, 228, 229, 230, 231
vF1, vF2, vF3, vF4 = 232, 233, 234, 241
vFL2 = 235
vQA, vQA2, vGA = 236, 237, 238
vOST = 252
vXD, vWD = 242, 243
vCB, vCS = 244, 247
vCT = 250
NV = 256
OCB, OCA, ACC, WF = 124, 164, 204, 28
G_ACC = 124
G_F = 28
G_P = 188
vA16 = 76
vXR, vWR1 = 106, 118
WS = f"s[{sWS}:{sWS+3}]"


def st1():
    return " sc1"


def publish(A, soff_reg, base, tag=None):
    if tag is not None:
        A.vm_wait(tag)
    A(f"v_mov_b32 v{vT}, s{sNONCE}")
    A(f"v_mov_b32 v{vT+1}, 0")
    A(f"s_add_u32 s{sT0}, s{soff_reg}, {base}")
    A("s_mov_b64 exec, 1")
    A.vm(f"buffer_store_dword v{vT}, v{vT+1}, {WS}, s{sT0} offen sc1", "pub")
    A("s_mov_b64 exec, -1")


class Wave0:
    def __init__(self, A, name):
        self.A, self.name = A, name
    def __enter__(self):
        A = self.A
        A(f"s_cmp_lg_u32 s{sW}, 0")
        A(f"s_cbranch_scc1 L_w0_{self.name}")
        self.saved = (list(A.vm_q), A.vm_count)
    def __exit__(self, *a):
        A = self.A
        A.vm_q, A.vm_count = self.saved
        A.label(f"L_w0_{self.name}")


def _poll_loads(A, items):
    for (vdst, voff, base, soff_reg) in items:
        if soff_reg is None:
            A(f"s_mov_b32 s{sT0}, {base}")
        else:
            A(f"s_add_u32 s{sT0}, s{soff_reg}, {base}")
        A(f"buffer_load_dword v{vdst}, v{voff}, {WS}, s{sT0} offen sc1")


def poll_issue(A, items, name):
    with Wave0(A, name + "_i"):
        _poll_loads(A, items)
    return A.vm_count


def poll_check(A, items, pos, name, inv=False, drain=False):
    def compare():
        for i, (vdst, _, _, _) in enumerate(items):
            if i == 0:
                A(f"v_cmp_eq_u32 vcc, s{sNONCE}, v{vdst}")
            else:
                A(f"v_cmp_eq_u32 s[{sT4}:{sT5}], s{sNONCE}, v{vdst}")
                A("s_nop 3")
                A(f"s_and_b64 vcc, vcc, s[{sT4}:{sT5}]")
        A("s_nop 3")
        A("s_cmp_eq_u64 vcc, exec")
    with Wave0(A, name + "_c"):
        A(f"s_waitcnt vmcnt({A.vm_count - pos})")
        compare()
        A(f"s_cbranch_scc1 L_{name}_ok")
        A(f"s_mov_b32 s{sCNT}, 0")
        A.label(f"L_{name}_spin")
        A("s_sleep 2")
        _poll_loads(A, items)
        A(f"s_add_u32 s{sCNT}, s{sCNT}, 1")
        A(f"s_cmp_ge_u32 s{sCNT}, {SPIN_MAX}")
        A(f"s_cbranch_scc1 L_{name}_ok")
        A("s_waitcnt vmcnt(0)")
        compare()
        A(f"s_cbranch_scc0 L_{name}_spin")
        A.label(f"L_{name}_ok")
        if inv:
            A("buffer_inv sc1")
        if drain:
            A("s_waitcnt vmcnt(0)")


def poll_tight(A, base, soff_reg, voff, name):
    regs = [vFL, vFL2, vT + 2, vT + 3]
    with Wave0(A, name):
        A(f"s_add_u32 s{sT1}, s{soff_reg}, {base}")
        for r in regs:
            A(f"buffer_load_dword v{r}, v{voff}, {WS}, s{sT1} offen sc1")
            A("s_sleep 1")
        A(f"s_mov_b32 s{sCNT}, 0")
        A.label(f"L_{name}_spin")
        for r in regs:
            A("s_waitcnt vmcnt(3)")
            A(f"v_cmp_eq_u32 vcc, s{sNONCE}, v{r}")
            A("s_nop 3")
            A("s_cmp_eq_u64 vcc, exec")
            A(f"s_cbranch_scc1 L_{name}_ok")
            A(f"buffer_load_dword v{r}, v{voff}, {WS}, s{sT1} offen sc1")
        A(f"s_add_u32 s{sCNT}, s{sCNT}, 1")
        A(f"s_cmp_lt_u32 s{sCNT}, {SPIN_MAX}")
        A(f"s_cbranch_scc1 L_{name}_spin")
        A.label(f"L_{name}_ok")


def nonce_issue(A):
    A(f"v_mov_b32 v{vT}, 0")
    A.vm(f"buffer_load_dword v{vFL}, v{vT}, s[{sDBG}:{sDBG+3}], 0 offen sc1", "nonce")


def nonce_check(A, name):
    A.vm_wait("nonce")
    A("s_nop 0")
    A(f"v_readfirstlane_b32 s{sNONCE}, v{vFL}")
    A("s_nop 3")
    A(f"s_cmp_lg_u32 s{sNONCE}, 0")
    A(f"s_cbranch_scc1 L_{name}_ok")
    A(f"s_mov_b32 s{sCNT}, 0")
    A.label(f"L_{name}_spin")
    A("s_sleep 1")
    A(f"v_mov_b32 v{vT}, 0")
    A(f"buffer_load_dword v{vFL}, v{vT}, s[{sDBG}:{sDBG+3}], 0 offen sc1")
    A(f"s_add_u32 s{sCNT}, s{sCNT}, 1")
    A(f"s_cmp_ge_u32 s{sCNT}, {SPIN_MAX}")
    A(f"s_cbranch_scc1 L_{name}_ok")
    A("s_waitcnt vmcnt(0)")
    A(f"v_readfirstlane_b32 s{sNONCE}, v{vFL}")
    A("s_nop 3")
    A(f"s_cmp_eq_u32 s{sNONCE}, 0")
    A(f"s_cbranch_scc1 L_{name}_spin")
    A.label(f"L_{name}_ok")


def g_dma(A, b, p):
    kb, st, t = b % 10, b % NST, p & 3
    A(f"s_add_u32 m0, s{sLDS1}, {st*STAGE + (p >> 2)*16384 + 4096*t}")
    if p < 4:
        A(f"s_add_u32 s{sT0}, s{sXOFF}, {kb*128 + t*40960}")
        A.vm(f"buffer_load_dwordx4 v{vXD}, s[{sX}:{sX+3}], s{sT0} offen lds", ("d", b))
    else:
        sw = sWA if b < 10 else sWB
        A(f"s_add_u32 s{sT0}, s{sWOFF}, {(kb*64 + 16*t) * 3840}")
        A.vm(f"buffer_load_dwordx4 v{vWD}, s[{sw}:{sw+3}], s{sT0} offen lds", ("d", b))


def g_acc(mt, nt):
    return G_ACC + 32 * mt + 16 * nt


def g_frag(s_, i):
    return G_F + 16 * (s_ % 3) + 4 * i


def g_read_list(s_):
    b, ks = divmod(s_, 4)
    st = b % NST
    base, off = st >> 1, (st & 1) * STAGE
    out = []
    for mt in range(2):
        out.append(f"ds_read_b128 {v(g_frag(s_, mt),4)}, v{vXR + 3*ks + base} offset:{off + mt*4096}")
    for nt in range(2):
        for q in range(2):
            out.append(f"ds_read_b64_tr_b16 {v(g_frag(s_, 2+nt)+2*q,2)}, v{vWR1 + 3*nt + base} offset:{off + 16384 + ks*4096 + q*1024}")
    return out


def g_reads(A, s_):
    for ins in g_read_list(s_):
        A.lds(ins, ("f", s_))


def g_step(A, s_, last, tr, extra=None):
    b, ks = divmod(s_, 4)
    A.lds_wait(("f", s_))
    nxt = g_read_list(s_ + 2) if s_ + 2 <= last else []
    for i, (mt, nt) in enumerate(((0, 0), (0, 1), (1, 0), (1, 1))):
        d = g_acc(mt, nt)
        c = "0" if (s_ % 40 == 0) else v(d, 16)
        x, w = g_frag(s_, mt), g_frag(s_, 2 + nt)
        a, bb = (w, x) if tr else (x, w)
        A(f"v_mfma_f32_32x32x16_bf16 {v(d,16)}, {v(a,4)}, {v(bb,4)}, {c}")
        for ins in nxt[2*i:2*i+2]:
            A.lds(ins, ("f", s_ + 2))
        if extra and i == 3:
            extra()


def epi_prepare(A, isb, tr, n):
    A(f"s_lshl_b32 s{sTP}, s{sRB}, 7")
    A(f"s_lshl_b32 s{sT0}, s{sMH}, 6")
    A(f"s_add_u32 s{sTP}, s{sTP}, s{sT0}")
    if isb:
        A(f"s_lshr_b32 s{sTP}, s{sTP}, 1")
    if tr:
        A(f"s_cmp_lt_u32 s{sCT}, 5")
        A(f"s_mov_b32 s{sT1}, {QB if isb else QA}")
        A(f"s_cselect_b32 s{sB16}, s{sT1}, {KB if isb else KA}")
        A(f"s_mov_b32 s{sT1}, {hex(f32bits(QSCALE))}")
        A(f"s_cselect_b32 s{sQS}, s{sT1}, 1.0")
        A(f"s_lshl_b32 s{sT0}, s{sCT5}, 1")
        A(f"s_add_u32 s{sT0}, s{sT0}, s{sNH}")
        A(f"s_lshl_b32 s{sT0}, s{sT0}, 18")
        A(f"s_add_u32 s{sB16}, s{sB16}, s{sT0}")
        A(f"s_lshl_b32 s{sT0}, s{sTP}, 4")
        A(f"s_add_u32 s{sB16}, s{sB16}, s{sT0}")
        A(f"v_lshlrev_b32 v{vA16}, 15, v{vHH}")
        if isb:
            A(f"v_and_b32 v{vT}, 1, v{vR}")
            A(f"v_lshl_add_u32 v{vA16}, v{vT}, 14, v{vA16}")
            A(f"v_lshrrev_b32 v{vT}, 1, v{vR}")
            A(f"v_lshl_add_u32 v{vA16}, v{vT}, 4, v{vA16}")
        else:
            A(f"v_lshl_add_u32 v{vA16}, v{vR}, 4, v{vA16}")
        A(f"v_mov_b32 v{vT+2}, s{sQS}")
        A(f"v_mov_b32 v{vT+3}, s{sQS}")
    else:
        A(f"v_mul_u32_u24 v{vT+1}, 320, v{vHH}")
        A(f"s_lshl_b32 s{sT0}, s{sCT5}, 7")
        A(f"s_lshl_b32 s{sT1}, s{sNH}, 6")
        A(f"s_add_u32 s{sT0}, s{sT0}, s{sT1}")
        for nt in range(2):
            A(f"v_add_u32 v{vT+2}, s{sT0}, v{vR}")
            if nt:
                A(f"v_add_u32 v{vT+2}, 32, v{vT+2}")
            A(f"v_mul_u32_u24 v{vT+3}, 3277, v{vT+2}")
            A(f"v_lshrrev_b32 v{vT+3}, 16, v{vT+3}")
            A(f"v_mul_u32_u24 v{vT+4}, 20, v{vT+3}")
            A(f"v_sub_u32 v{vT+4}, v{vT+2}, v{vT+4}")
            A(f"v_mul_u32_u24 v{vT+3}, {VH}, v{vT+3}")
            A(f"v_lshl_add_u32 v{vT+3}, v{vT+4}, 4, v{vT+3}")
            A(f"v_add_u32 v{vA16+nt}, v{vT+3}, v{vT+1}")
        A(f"s_lshr_b32 s{sT0}, s{sTP}, 4")
        A(f"s_mul_i32 s{sT0}, s{sT0}, 640")
        A(f"s_add_u32 s{sB16}, s{sT0}, {VB if isb else VA}")


def epi_group(A, isb, tr, g, tag):
    reg = G_P + 4 * g
    mt, nt, u = g >> 2, (g >> 1) & 1, g & 1
    src = g_acc(mt, nt)
    if tr:
        for jj in range(2):
            a = src + 4 * (2 * u + jj)
            A(f"v_pk_mul_f32 {v(a,2)}, {v(a,2)}, v[{vT+2}:{vT+3}]")
            A(f"v_pk_mul_f32 {v(a+2,2)}, {v(a+2,2)}, v[{vT+2}:{vT+3}]")
            A(f"v_cvt_pk_bf16_f32 v{reg+2*jj}, v{a}, v{a+1}")
            A(f"v_cvt_pk_bf16_f32 v{reg+2*jj+1}, v{a+2}, v{a+3}")
        A(f"s_add_u32 s{sT1}, s{sB16}, {(4*nt + 2*u)*PLANE + mt*(256 if isb else 512)}")
        A("s_nop 0")
        A(f"v_permlane32_swap_b32 v{reg}, v{reg+2}")
        A(f"v_permlane32_swap_b32 v{reg+1}, v{reg+3}")
        A.vm(f"buffer_store_dwordx4 {v(reg,4)}, v{vA16}, {WS}, s{sT1} offen sc1", tag)
    else:
        if isb:
            for j in range(4):
                A(f"v_cvt_pk_bf16_f32 v{reg+j}, v{src+4*j+u}, v{src+4*j+u+2}")
            A(f"s_add_u32 s{sT1}, s{sB16}, {mt*640 + u*64*640}")
        else:
            for p in range(4):
                A(f"v_cvt_pk_bf16_f32 v{reg+p}, v{src+8*u+2*p}, v{src+8*u+2*p+1}")
            A(f"s_add_u32 s{sT1}, s{sB16}, {(2*mt + u)*640}")
        A.vm(f"buffer_store_dwordx4 {v(reg,4)}, v{vA16+nt}, {WS}, s{sT1} offen sc1", tag)


def acquire_items():
    return [(vFL, vF1, F1A, None), (vFL2, vF2, F1A, None)]


def p2_load_items():
    def q01(A):
        A.vm(f"buffer_load_dwordx4 {v(Q01,4)}, v{vQA}, {WS}, s{sQOFF} offen sc1", "q")
    def q2(A):
        A(f"v_mov_b32 v{Q2}, 0")
        A(f"v_mov_b32 v{Q2+1}, 0")
        A("s_mov_b32 exec_hi, 0")
        A.vm(f"buffer_load_dwordx2 {v(Q2,2)}, v{vQA2}, {WS}, s{sQOFF2} offen sc1", "q")
        A("s_mov_b32 exec_hi, -1")
    items = [lambda A, p=p: dma_chunk_piece(A, 0, p) for p in range(3)] + [q01, q2]
    items += [lambda A, c=c, p=p: dma_chunk_piece(A, c, p) for c in (1, 2) for p in range(3)]
    return items


def gemm(A, tr, n):
    A.vm_q, A.lds_q = [], []
    if EXP.get("twa") == 99:
        touch_a(A, n)
    if EXP.get("twb") == 99:
        touch_wb(A, n)
    if EXP.get("tcb") == 99:
        touch_chip_b(A, n)
    if EXP.get("tlb"):
        epi_prepare(A, False, tr, n)
        A(f"buffer_store_dword v{vL}, v{vA16}, {WS}, s{sB16} offen sc1")
    A("s_barrier")
    A.stamp("blk0 landed", 2)
    g_reads(A, 0)
    g_reads(A, 1)
    for s_ in range(40):
        b, ks = divmod(s_, 4)
        if ks == 2:
            A("s_barrier")
            if EXP.get("stampA") and b in (0, 2, 4, 6):
                A.stamp("", {0: 7, 2: 8, 4: 9, 6: 10}[b])
        if EXP.get("twa") is not None and s_ == EXP["twa"]:
            touch_a(A, n)
        if s_ == EXP.get("twb", 77):
            touch_wb(A, n)
        if EXP.get("tcb") is not None and s_ == EXP["tcb"]:
            touch_chip_b(A, n)
        if EXP.get("tcw") is not None and s_ == EXP["tcw"]:
            touch_chip_wide(A, "b", n)
        if s_ == 22:
            nonce_issue(A)
        if s_ == 30:
            nonce_check(A, f"nonce0{n}")
        g_step(A, s_, 39, tr)
    A.stamp("gemm0", 3)
    slices = [int(ch) for ch in str(EXP.get("sl", "8"))]
    assert sum(slices) == 8
    PUB, POLL, CHK = EXP.get("pub", 12), EXP.get("poll", 15), 18
    for p in range(8):
        g_dma(A, 13, p)
    epi_prepare(A, False, tr, n)
    A("s_nop 7")
    A("s_nop 3")
    done = 0
    for b in range(10, 19):
        k = slices[b - 10] if b - 10 < len(slices) else 0
        for g in range(done, done + k):
            epi_group(A, False, tr, g, "sa")
        if k and done + k == 8:
            A.stamp("epi0", 4)
        done += k
        if b == PUB:
            A.vm_wait("sa")
        if b == CHK:
            poll_check(A, acquire_items(), pos_f1, f"f1{n}")
        if b + 1 >= 13:
            A.vm_wait(("d", b + 1))
        A("s_barrier")
        if EXP.get("stampB") and b in (10, 12, 14, 16):
            A.stamp("", {10: 7, 12: 8, 14: 9, 16: 10}[b])
        if b + 4 < NB:
            for p in range(8):
                g_dma(A, b + 4, p)
        if b == PUB:
            with Wave0(A, f"puba{n}"):
                publish(A, sF1, F1A)
        if b == POLL:
            pos_f1 = poll_issue(A, acquire_items(), f"f1{n}")
    for f in p2_load_items():
        f(A)
    A.stamp("gemm1", 5)
    A.stamp("epi1", 6)
    A.vm_wait("q")
    A("s_branch L_attn")
    A.label(f"L_g1{n}")
    A.vm_q, A.lds_q = [("d", 0)] * 8 + [("d", 1)] * 8 + [("d", 2)] * 8, []
    A.vm_wait(("d", 0))
    A("s_barrier")
    A.stamp("issued", 1)
    A.stamp("blk0 landed", 2)
    for p in range(8):
        g_dma(A, 3, p)
    for b in range(10):
        if b == 0:
            setup_phase1_reads(A)
        if 1 <= b <= 5:
            SETUP_P2[b - 1](A)
        if b == 6:
            if EXP.get("tlb"):
                epi_prepare(A, True, tr, n)
                A(f"buffer_store_dword v{vL}, v{vA16}, {WS}, s{sB16} offen sc1")
                A(f"s_lshl_b32 s{sT0}, s{sQ0}, 4")
                A(f"s_add_u32 s{sT0}, s{sT0}, {OC}")
                A(f"buffer_store_dword v{vL}, v{vOST}, {WS}, s{sT0} offen sc1")
                A(f"s_lshl_b32 s{sT0}, s{sBT}, 4")
                A(f"s_add_u32 s{sT0}, s{sT0}, {OC + 80*32768}")
                A(f"buffer_store_dword v{vL}, v{vOST+1}, {WS}, s{sT0} offen sc1")
            nonce_issue(A)
        if b == 8:
            nonce_check(A, f"nonce1{n}")
        A.vm_wait(("d", b + 1))
        A("s_barrier")
        if EXP.get("stampA") and b in (0, 2, 4, 6):
            A.stamp("", {0: 7, 2: 8, 4: 9, 6: 10}[b])
        if b + 4 <= 12:
            for p in range(8):
                g_dma(A, b + 4, p)
    A.stamp("gemm0", 3)
    A.stamp("epi0", 4)
    g_reads(A, 40)
    g_reads(A, 41)
    pend = []
    for s_ in range(40, 80):
        b, ks = divmod(s_, 4)
        if ks == 2 and b + 1 < NB:
            if b + 1 <= 12:
                A.vm_wait(("d", b + 1))
            A("s_barrier")
            if EXP.get("stampB") and b in (10, 12, 14, 16):
                A.stamp("", {10: 7, 12: 8, 14: 9, 16: 10}[b])
            if b == 18:
                pend = p2_load_items()
        def extra():
            for _ in range(2):
                if pend:
                    pend.pop(0)(A)
        g_step(A, s_, 79, tr, extra)
    assert not pend
    A.stamp("gemm1", 5)
    epi_prepare(A, True, tr, n)
    A("s_nop 7")
    A("s_nop 3")
    for g in range(8):
        epi_group(A, True, tr, g, "sb")
    A.stamp("epi1", 6)
    A.vm_wait("q")


def spare(A):
    sWO, sG = sWA, sWB
    A.label("L_spare")
    A.vm_q, A.lds_q = [], []
    if EXP.get("spb", 0):
        A(f"s_mul_i32 s{sT0}, s{sRB}, 153600")
        A(f"s_lshl_b32 s{sT1}, s{sW}, 10")
        A(f"s_add_u32 s{sT0}, s{sT0}, s{sT1}")
        A(f"s_add_u32 s{sT2}, s{sRB}, 1")
        A(f"s_mul_i32 s{sT2}, s{sT2}, 153600")
        for i in range(19):
            A(f"s_add_u32 s{sT1}, s{sT0}, {8192*i}")
            if i == 18:
                A(f"s_sub_u32 s{sT2}, s{sT2}, 1024")
                A(f"s_min_u32 s{sT1}, s{sT1}, s{sT2}")
            A(f"buffer_load_dwordx4 {v(124 + 4*i, 4)}, v{vL16}, s[{sWB}:{sWB+3}], s{sT1} offen")
    A("s_load_dwordx2 s[4:5], s[0:1], 16")
    A("s_load_dwordx2 s[6:7], s[0:1], 40")
    A(f"s_load_dwordx2 s[{sP}:{sP+1}], s[0:1], 48")
    A("s_waitcnt lgkmcnt(0)")
    A(f"s_cmp_lt_u32 s{sRB}, 8")
    A("s_cbranch_scc1 L_sp_a")
    A("s_mov_b32 s4, s6")
    A("s_mov_b32 s5, s7")
    A.label("L_sp_a")
    srd(A, sWO, 4, WO_BYTES)
    srd(A, sG, sP, 1280)
    A(f"s_and_b32 s{sT1}, s{sRB}, 7")
    A(f"s_mul_i32 s{sT1}, s{sT1}, {80*1280}")
    A(f"s_lshl_b32 s{sLDS1}, s{sW}, 10")
    A(f"s_add_u32 s{sT1}, s{sT1}, s{sLDS1}")
    for t in range(13):
        if t == 12:
            A(f"s_cmp_ge_u32 s{sW}, 4")
            A("s_cbranch_scc1 L_sp_dma_done")
        A(f"s_add_u32 m0, s{sLDS1}, {8192*t}")
        A(f"s_add_u32 s{sT0}, s{sT1}, {8192*t}")
        A(f"buffer_load_dwordx4 v{vL16}, s[{sWO}:{sWO+3}], s{sT0} offen lds")
    A.label("L_sp_dma_done")
    GW = 102400
    A(f"s_cmp_ge_u32 s{sW}, 2")
    A("s_cbranch_scc1 L_sp_gw_done")
    A(f"s_add_u32 m0, s{sLDS1}, {GW}")
    A("s_nop 0")
    A(f"buffer_load_dwordx4 v{vL16}, s[{sG}:{sG+3}], s{sLDS1} offen lds")
    A.label("L_sp_gw_done")
    A.stamp("", 2)
    XG = 28
    A(f"v_lshrrev_b32 v{vT+1}, 2, v{vL}")
    A(f"s_lshl_b32 s{sT0}, s{sW}, 4")
    A(f"v_add_u32 v{vT+1}, s{sT0}, v{vT+1}")
    A(f"v_and_b32 v{vT+2}, 3, v{vL}")
    A(f"v_lshlrev_b32 v{vT+2}, 4, v{vT+2}")
    A(f"v_mul_u32_u24 v{vT+3}, 1280, v{vT+1}")
    A(f"v_add_u32 v{vT+3}, v{vT+3}, v{vT+2}")
    A(f"v_mov_b32 v{vT+4}, 0")
    for i in range(20):
        A(f"buffer_load_dwordx4 {v(XG+4*i,4)}, v{vT+3}, s[{sX}:{sX+3}], s{sXOFF} offen offset:{i*64}")
    A(f"v_add_u32 v{vT+2}, {GW}, v{vT+2}")
    A("s_waitcnt vmcnt(0)")
    A("s_barrier")
    A.lds_q = []
    GG = 108
    for i in range(3):
        A.lds(f"ds_read_b128 {v(GG+4*i,4)}, v{vT+2} offset:{i*64}", ("gw", i))
    for i in range(20):
        if i + 3 < 20:
            A.lds(f"ds_read_b128 {v(GG+4*((i+3) % 4),4)}, v{vT+2} offset:{(i+3)*64}", ("gw", i + 3))
        A.lds_wait(("gw", i))
        for k in range(4):
            A(f"v_dot2_f32_bf16 v{vT+4}, v{XG+4*i+k}, v{GG+4*(i % 4)+k}, v{vT+4}")
    A("s_nop 2")
    A(f"v_add_f32_dpp v{vT+4}, v{vT+4}, v{vT+4} quad_perm:[1,0,3,2] row_mask:0xf bank_mask:0xf")
    A("s_nop 1")
    A(f"v_add_f32_dpp v{vT+4}, v{vT+4}, v{vT+4} quad_perm:[2,3,0,1] row_mask:0xf bank_mask:0xf")
    A(f"v_mul_f32 v{vT+4}, {hex(f32bits(-LOG2E))}, v{vT+4}")
    A(f"v_exp_f32 v{vT+4}, v{vT+4}")
    A("s_nop 0")
    A(f"v_add_f32 v{vT+4}, 1.0, v{vT+4}")
    A(f"v_rcp_f32 v{vT+4}, v{vT+4}")
    A(f"s_lshl_b32 s{sT0}, s{sRB}, 9")
    A(f"s_add_u32 s{sT0}, s{sT0}, {GATE}")
    A(f"v_lshlrev_b32 v{vT+1}, 2, v{vT+1}")
    A("s_mov_b32 exec_lo, 0x11111111")
    A("s_mov_b32 exec_hi, 0x11111111")
    A(f"buffer_store_dword v{vT+4}, v{vT+1}, {WS}, s{sT0} offen sc1")
    A("s_mov_b64 exec, -1")
    A.stamp("", 3)
    A.stamp("", 4)
    A(f"v_bfe_u32 v{vT+1}, v{vL}, 2, 2")
    A(f"v_mul_u32_u24 v{vT+1}, 1280, v{vT+1}")
    A(f"v_lshrrev_b32 v{vT+2}, 4, v{vL}")
    A(f"v_lshl_add_u32 v{vT+1}, v{vT+2}, 5, v{vT+1}")
    A(f"v_and_b32 v{vT+2}, 3, v{vL}")
    A(f"v_lshl_add_u32 v{vT+1}, v{vT+2}, 3, v{vT+1}")
    A(f"s_mul_i32 s{sT3}, s{sRB}, {10*10240}")
    A(f"s_add_u32 s{sT3}, s{sT3}, {WOT}")
    A(f"s_mov_b32 s{sT1}, s{sW}")
    A.label("L_sp_loop")
    A(f"s_mul_hi_u32 s{sT2}, s{sT1}, 0x1999999a")
    A(f"s_mul_i32 s{sT0}, s{sT2}, 10")
    A(f"s_sub_u32 s{sT0}, s{sT1}, s{sT0}")
    A(f"s_mul_hi_u32 s{sCNT}, s{sT2}, 0x33333334")
    A(f"s_mul_i32 s{sT4}, s{sCNT}, 5")
    A(f"s_sub_u32 s{sT4}, s{sT2}, s{sT4}")
    A(f"s_mul_i32 s{sCNT}, s{sCNT}, 40")
    A(f"s_lshl_b32 s{sT5}, s{sT4}, 3")
    A(f"s_cmp_ge_u32 s{sT4}, 2")
    A(f"s_cselect_b32 s{sM}, 4, 0")
    A(f"s_add_u32 s{sT5}, s{sT5}, s{sM}")
    A(f"s_cmp_eq_u32 s{sT4}, 4")
    A(f"s_cselect_b32 s{sT5}, 16, s{sT5}")
    A(f"s_cselect_b32 s{sM}, 20, 4")
    A(f"s_add_u32 s{sT5}, s{sT5}, s{sCNT}")
    A(f"s_mul_i32 s{sT4}, s{sT5}, 1280")
    A(f"s_mul_i32 s{sM}, s{sM}, 1280")
    A(f"s_lshl_b32 s{sT5}, s{sT0}, 7")
    A(f"s_add_u32 s{sT4}, s{sT4}, s{sT5}")
    A(f"v_add_u32 v{vT+3}, s{sT4}, v{vT+1}")
    A(f"v_add_u32 v{vT+4}, s{sM}, v{vT+3}")
    A(f"ds_read_b64_tr_b16 v[{XG}:{XG+1}], v{vT+3}")
    A(f"ds_read_b64_tr_b16 v[{XG+2}:{XG+3}], v{vT+4}")
    A(f"s_mul_i32 s{sT4}, s{sT2}, 10240")
    A(f"s_lshl_b32 s{sT5}, s{sT0}, 10")
    A(f"s_add_u32 s{sT4}, s{sT4}, s{sT5}")
    A(f"s_add_u32 s{sT4}, s{sT4}, s{sT3}")
    A("s_waitcnt lgkmcnt(0)")
    A(f"buffer_store_dwordx4 {v(XG,4)}, v{vL16}, {WS}, s{sT4} offen sc1")
    A(f"s_add_u32 s{sT1}, s{sT1}, 8")
    A(f"s_cmp_lt_u32 s{sT1}, 100")
    A("s_nop 1")
    A("s_cbranch_scc1 L_sp_loop")
    A.stamp("", 5)
    nonce_issue(A)
    nonce_check(A, "noncesp")
    A("s_waitcnt vmcnt(0)")
    A("s_barrier")
    A.vm_q = []
    with Wave0(A, "pubsp"):
        publish(A, sF1, F1A)
    pos = poll_issue(A, acquire_items(), "f1sp")
    poll_check(A, acquire_items(), pos, "f1sp")
    A("s_barrier")
    A.vm_q = []
    for f in p2_load_items():
        f(A)
    A.vm_wait("q")
    for i in (6,) + ((7, 8, 9, 10) if (EXP.get("stampB") or EXP.get("stampA")) else ()):
        A.stamp("", i)
    A("s_branch L_attn")


def mf16(A, d, a, b, c):
    A(f"v_mfma_f32_32x32x16_bf16 {v(d,16)}, {v(a,4)}, {v(b,4)}, {c}")


def mf8(A, d, a, b, c):
    A(f"v_mfma_f32_32x32x8_bf16 {v(d,16)}, {v(a,2)}, {v(b,2)}, {c}")


def dma_chunk_piece(A, c, t):
    slot = c % NSLOT
    A(f"s_add_u32 m0, s{sLDSW}, {slot*SLOT + 1024*t}")
    A(f"v_mad_u32_u24 v{vCT}, v{vCS+t}, {c}, v{vCB+t}")
    if t == 2:
        A("s_mov_b32 exec_hi, 0xffff")
    A.vm(f"buffer_load_dwordx4 v{vCT}, {WS}, 0 offen sc1 lds", ("c", c))
    if t == 2:
        A("s_mov_b32 exec_hi, -1")


def dma_chunk(A, c):
    for t in range(3):
        dma_chunk_piece(A, c, t)


def dma_w_piece(A, part, st, t):
    off = (WA_OFF if part == 0 else WB_OFF)[st]
    A(f"s_add_u32 m0, s{sLDSW2}, {off + 1024*t}")
    A(f"s_add_u32 s{sT0}, s{sWSRC}, {(part*80 + 16*st)*10240}")
    if t == 2:
        A("s_mov_b32 exec_hi, 0")
    A.vm(f"buffer_load_dwordx4 v{(vW0, vW1, vW2)[t]}, {WS}, s{sT0} offen sc1 lds", ("w", part, st))
    if t == 2:
        A("s_mov_b32 exec_hi, -1")


def rd_k01(A, t):
    if EXP.get('halfrd') and t % 2 == 1:
        return
    c, tt = t // TPC, t % TPC
    A.lds(f"ds_read_b128 {v(K01,4)}, v{vK01 + c % NSLOT} offset:{tt*512}", ("k01", t))


def rd_k2(A, t):
    if EXP.get('halfrd') and t % 2 == 1:
        return
    c, tt = t // TPC, t % TPC
    A.lds(f"ds_read_b64 {v(K2,2)}, v{vK2 + c % NSLOT} offset:{8192 + tt*512}", ("k2", t))


def rd_v(A, t, a):
    if EXP.get('halfrd') and t % 2 == 1:
        return
    c, tt = t // TPC, t % TPC
    A.lds(f"ds_read_b128 {v(V1 if a else V0,4)}, v{vV + c % NSLOT} offset:{(2*tt + a)*640}", ("v", t, a))


def exps(A, sreg, g, preg=P):
    for i in range(4):
        A(f"v_exp_f32 v{sreg+4*g+i}, v{sreg+4*g+i}")
    A(f"v_cvt_pk_bf16_f32 v{preg+2*g}, v{sreg+4*g}, v{sreg+4*g+1}")
    A(f"v_cvt_pk_bf16_f32 v{preg+2*g+1}, v{sreg+4*g+2}, v{sreg+4*g+3}")


def cross_half_max(A, reg, tmp):
    A(f"v_mov_b32 v{tmp}, v{reg}")
    A("s_nop 1")
    A(f"v_permlane32_swap_b32 v{reg}, v{tmp}")
    A("s_nop 1")
    A(f"v_max_f32 v{reg}, v{reg}, v{tmp}")


def max16(A, dst, src, first):
    if first:
        A(f"v_max3_f32 v{dst}, v{src}, v{src+1}, v{src+2}")
        rest = list(range(3, 16))
    else:
        rest = list(range(0, 16))
    while rest:
        if len(rest) >= 2:
            A(f"v_max3_f32 v{dst}, v{dst}, v{src+rest[0]}, v{src+rest[1]}")
            rest = rest[2:]
        else:
            A(f"v_max_f32 v{dst}, v{dst}, v{src+rest[0]}")
            rest = rest[1:]


def row_sum(A, oreg):
    A(f"v_mov_b32 v{vT}, v{oreg+8}")
    A(f"v_mov_b32 v{vT+1}, v{oreg+8}")
    A("s_nop 1")
    A(f"v_permlane32_swap_b32 v{vT}, v{vT+1}")


def finish_tile(A, oreg, gate, one_minus, vaddr, tok_sreg, chunk0, tag):
    A(f"v_rcp_f32 v{vT+2}, v{vT+1}")
    A(f"s_lshl_b32 s{sT0}, s{tok_sreg}, 4")
    A(f"s_add_u32 s{sT0}, s{sT0}, {OC + chunk0*32768}")
    if one_minus:
        A(f"v_sub_f32 v{vT}, 1.0, v{gate}")
        A(f"v_mul_f32 v{vT+2}, v{vT+2}, v{vT}")
    else:
        A(f"v_mul_f32 v{vT+2}, v{vT+2}, v{gate}")
    A(f"v_mov_b32 v{vT+3}, v{vT+2}")
    for i in range(0, 12, 2):
        A(f"v_pk_mul_f32 {v(oreg+i,2)}, {v(oreg+i,2)}, v[{vT+2}:{vT+3}]")
    for i in range(4):
        A(f"v_cvt_pk_bf16_f32 v{oreg+i}, v{oreg+2*i}, v{oreg+2*i+1}")
    A(f"v_cvt_pk_bf16_f32 v{oreg+8}, v{oreg+8}, v{oreg+9}")
    A(f"v_cvt_pk_bf16_f32 v{oreg+9}, v{oreg+10}, v{oreg+11}")
    A(f"v_permlane32_swap_b32 v{oreg}, v{oreg+2}")
    A(f"v_permlane32_swap_b32 v{oreg+1}, v{oreg+3}")
    A.vm(f"buffer_store_dwordx4 {v(oreg,4)}, v{vaddr}, {WS}, s{sT0} offen sc1", tag)
    A("s_mov_b32 exec_hi, 0")
    A.vm(f"buffer_store_dwordx2 {v(oreg+8,2)}, v{vaddr+2}, {WS}, s{sT0} offen sc1", tag)
    A("s_mov_b64 exec, -1")


def oc_load(A, part, k):
    reg = OCA if part == 0 else OCB
    A(f"s_add_u32 s{sT0}, s{sOCB}, {(part*80 + 4*k)*32768}")
    A.vm(f"buffer_load_dwordx4 {v(reg+4*k,4)}, v{vOC}, {WS}, s{sT0} offen sc1", ("oc", part, k))


def outproj(A, part, first, hook=None):
    offs = WA_OFF if part == 0 else WB_OFF
    reg = OCA if part == 0 else OCB
    for kg in range(2):
        if kg == 0:
            A(f"s_cmp_eq_u32 s{sKG}, 1")
            A(f"s_cbranch_scc1 L_op{part}_g1")
            saved = (list(A.vm_q), list(A.lds_q))
        else:
            A.label(f"L_op{part}_g1")
            A.vm_q, A.lds_q = list(saved[0]), list(saved[1])
        seq = [(k, nt) for k in range(10) for nt in range(5)]

        def rd(i):
            k, nt = seq[i]
            kk = 10 * kg + k
            off = offs[kk // 4] + (kk % 4) * 5120 + nt * 256
            areg = (vWR, vT + 5, vT + 6)[off >> 16]
            A.lds(f"ds_read_b128 {v(WF + (i % 8)*4,4)}, v{areg} offset:{off & 0xffff}", ("wf", i))

        LOOK = 5
        for i in range(LOOK):
            rd(i)
        for i, (k, nt) in enumerate(seq):
            if i + LOOK < len(seq):
                rd(i + LOOK)
            if nt == 0:
                A.vm_wait(("oc", part, k))
                if hook:
                    hook(k, kg)
            A.lds_wait(("wf", i))
            c = "0" if (first and k == 0) else v(ACC + 4*nt, 4)
            A(f"v_mfma_f32_16x16x32_bf16 {v(ACC+4*nt,4)}, {v(WF + (i % 8)*4,4)}, {v(reg+4*k,4)}, {c}")
        if kg == 0:
            end0 = (list(A.vm_q), list(A.lds_q))
            A(f"s_branch L_op{part}_done")
    A.label(f"L_op{part}_done")
    assert end0[0] == A.vm_q and end0[1] == A.lds_q


def keypos(kappa):
    return (kappa & 25) | ((kappa >> 1) & 1) << 2 | ((kappa >> 2) & 1) << 1


def band_mask(j, i, prev):
    m = 0
    for l in range(64):
        q, hh = l & 31, l >> 5
        key = keypos(8 * j + 4 * hh + i) - (32 if prev else 0)
        if 0 <= q - key <= 7:
            m |= 1 << l
    return m


def b_consts(A):
    A(f"v_cmp_eq_u32 vcc, 20, v{vR}")
    A(f"v_mov_b32 v{vT+6}, 0")
    A(f"v_mov_b32 v{vT+7}, 0x3f803f80")
    A(f"v_cndmask_b32 v{vT+6}, v{vT+6}, v{vT+7}, vcc")
    for base in (BV0, BV1, BVP):
        for i in range(4):
            A(f"v_mov_b32 v{base+i}, v{vT+6}")
    A(f"v_mov_b32 v{BQ2}, 0")
    A(f"v_mov_b32 v{BQ2+1}, 0")


def b_load_items():
    def mk(instr, pre=None, gate=False):
        def f(A):
            if gate:
                A(f"v_lshlrev_b32 v{vCT}, 1, v{vGA}")
                A.vm(instr.replace(f"v{vGA},", f"v{vCT},"), "b")
                return
            if pre:
                A(pre)
            A.vm(instr, "b")
            if pre:
                A("s_mov_b64 exec, -1")
        return f
    lo20 = f"s_mov_b64 exec, s[{sLO20}:{sLO20+1}]"
    return [
        mk(f"buffer_load_dwordx4 {v(BQ01,4)}, v{vBA}, {WS}, s{sBA} offen sc1"),
        mk(f"buffer_load_dwordx4 {v(BK01,4)}, v{vBA+2}, {WS}, s{sBA+2} offen sc1"),
        mk(f"buffer_load_dwordx2 {v(BK2,2)}, v{vBA+3}, {WS}, s{sBA+3} offen sc1"),
        mk(f"buffer_load_dwordx4 {v(BKP01,4)}, v{vBA+2}, {WS}, s{sBA+5} offen sc1"),
        mk(f"buffer_load_dwordx2 {v(BKP2,2)}, v{vBA+3}, {WS}, s{sBA+6} offen sc1"),
        mk(f"buffer_load_dword v{vGB}, v{vGA}, {WS}, s{sBA+8} offen sc1", None, True),
        mk(f"buffer_load_dwordx2 {v(BQ2,2)}, v{vBA+1}, {WS}, s{sBA+1} offen sc1", "s_mov_b32 exec_hi, 0"),
        mk(f"buffer_load_dwordx4 {v(BV0,4)}, v{vBA+4}, {WS}, s{sBA+4} offen sc1", lo20),
        mk(f"buffer_load_dwordx4 {v(BV1,4)}, v{vBA+4}, {WS}, s{sBA+4} offen offset:640 sc1", lo20),
        mk(f"buffer_load_dwordx4 {v(BVP,4)}, v{vBA+4}, {WS}, s{sBA+7} offen offset:640 sc1", lo20),
    ]


def b_unit(A):
    S0, S1 = BS0, BS1
    A.vm_wait("b")
    mf16(A, S0, BK01, BQ01, "0")
    mf16(A, S1, BKP01, BQ01, "0")
    mf8(A, S0, BK2, BQ2, v(S0, 16))
    mf8(A, S1, BKP2, BQ2, v(S1, 16))
    A(f"v_mov_b32 v{vT}, {hex(f32bits(-1e30))}")
    A(f"s_cmp_eq_u32 s{sQT}, 0")
    A(f"s_cselect_b32 s{sT3}, 0, -1")
    A("s_nop 7")
    A("s_nop 5")
    for j in range(4):
        for i in range(4):
            m = band_mask(j, i, False)
            A(f"s_mov_b32 s{sM}, {hex(m & 0xffffffff)}")
            A(f"s_mov_b32 s{sM+1}, {hex(m >> 32)}")
            A(f"v_cndmask_b32 v{S0+4*j+i}, v{vT}, v{S0+4*j+i}, s[{sM}:{sM+1}]")
    for i in range(4):
        m = band_mask(3, i, True)
        A(f"s_and_b32 s{sM}, s{sT3}, {hex(m & 0xffffffff)}")
        A(f"s_and_b32 s{sM+1}, s{sT3}, {hex(m >> 32)}")
        A(f"v_cndmask_b32 v{S1+12+i}, v{vT}, v{S1+12+i}, s[{sM}:{sM+1}]")
    max16(A, vT + 1, S0, True)
    A(f"v_max3_f32 v{vT+1}, v{vT+1}, v{S1+12}, v{S1+13}")
    A(f"v_max3_f32 v{vT+1}, v{vT+1}, v{S1+14}, v{S1+15}")
    cross_half_max(A, vT + 1, vT + 2)
    for r in list(range(S0, S0 + 16)) + list(range(S1 + 12, S1 + 16)):
        A(f"v_sub_f32 v{r}, v{r}, v{vT+1}")
    for g in range(4):
        exps(A, S0, g, BP)
    PP = BP + 8
    for i in range(4):
        A(f"v_exp_f32 v{S1+12+i}, v{S1+12+i}")
    A(f"v_mov_b32 v{PP}, 0")
    A(f"v_mov_b32 v{PP+1}, 0")
    A(f"v_cvt_pk_bf16_f32 v{PP+2}, v{S1+12}, v{S1+13}")
    A(f"v_cvt_pk_bf16_f32 v{PP+3}, v{S1+14}, v{S1+15}")
    A("s_nop 1")
    mf16(A, BO, BV0, BP, "0")
    mf16(A, BO, BV1, BP + 4, v(BO, 16))
    mf16(A, BO, BVP, PP, v(BO, 16))
    A("s_nop 7")
    A("s_nop 3")
    row_sum(A, BO)
    A("s_nop 1")
    finish_tile(A, BO, vGB, True, vOST + 1, sBT, 80, "stb")


def fallback(A):
    A.label("L_fallback")
    A("s_waitcnt vmcnt(0) lgkmcnt(0)")
    A(f"v_lshlrev_b32 v{vT+4}, 15, v{vHH}")
    A(f"v_lshl_add_u32 v{vT+4}, v{vR}, 4, v{vT+4}")
    A(f"v_lshlrev_b32 v{vT+5}, 4, v{vR}")
    A(f"v_mul_u32_u24 v{vT+6}, 320, v{vHH}")
    A(f"v_lshl_add_u32 v{vT+6}, v{vR}, 4, v{vT+6}")
    A(f"v_mov_b32 v{vT+7}, {hex(f32bits(-3.0e38))}")

    def tile_addr():
        A(f"s_lshl_b32 s{sT0}, s{sCNT}, 9")
        A(f"s_lshl_b32 s{sT1}, s{sPA}, 15")
        A(f"s_add_u32 s{sT1}, s{sT1}, s{sT0}")
        A(f"s_add_u32 s{sT1}, s{sT1}, {KA}")
        A(f"s_lshl_b32 s{sT2}, s{sP2L}, 15")
        A(f"s_add_u32 s{sT2}, s{sT2}, s{sT0}")
        A(f"s_and_b32 s{sT3}, s{sH}, 1")
        A(f"s_lshl_b32 s{sT3}, s{sT3}, 3")
        A(f"s_add_u32 s{sT2}, s{sT2}, s{sT3}")
        A(f"s_add_u32 s{sT2}, s{sT2}, {KA}")
        A(f"s_mul_i32 s{sT3}, s{sCNT}, 1280")
        A(f"s_add_u32 s{sT3}, s{sT3}, s{sVH}")
        A(f"s_add_u32 s{sT3}, s{sT3}, {VA}")

    A(f"s_mov_b32 s{sCNT}, 0")
    A.label("L_fb1")
    tile_addr()
    A(f"buffer_load_dwordx4 {v(K01,4)}, v{vT+4}, {WS}, s{sT1} offen sc1")
    A(f"buffer_load_dwordx2 {v(K2,2)}, v{vT+5}, {WS}, s{sT2} offen sc1")
    A("s_waitcnt vmcnt(0)")
    mf16(A, SA, K01, Q01, "0")
    mf8(A, SA, K2, Q2, v(SA, 16))
    A("s_nop 7")
    A("s_nop 7")
    max16(A, vT + 7, SA, False)
    A(f"s_add_u32 s{sCNT}, s{sCNT}, 1")
    A(f"s_cmp_lt_u32 s{sCNT}, 64")
    A("s_cbranch_scc1 L_fb1")
    cross_half_max(A, vT + 7, vT)
    for i in range(16):
        A(f"v_sub_f32 v{NEGM+i}, 0, v{vT+7}")
        A(f"v_mov_b32 v{O+i}, 0")
    A(f"v_cmp_eq_u32 vcc, 20, v{vR}")
    A(f"v_mov_b32 v{vT}, 0")
    A(f"v_mov_b32 v{vT+1}, 0x3f803f80")
    A(f"v_cndmask_b32 v{vT}, v{vT}, v{vT+1}, vcc")
    for i in range(4):
        A(f"v_mov_b32 v{V0+i}, v{vT}")
        A(f"v_mov_b32 v{V1+i}, v{vT}")
    A(f"s_mov_b32 s{sCNT}, 0")
    A.label("L_fb2")
    tile_addr()
    A(f"buffer_load_dwordx4 {v(K01,4)}, v{vT+4}, {WS}, s{sT1} offen sc1")
    A(f"buffer_load_dwordx2 {v(K2,2)}, v{vT+5}, {WS}, s{sT2} offen sc1")
    A(f"s_mov_b64 exec, s[{sLO20}:{sLO20+1}]")
    A(f"buffer_load_dwordx4 {v(V0,4)}, v{vT+6}, {WS}, s{sT3} offen sc1")
    A(f"buffer_load_dwordx4 {v(V1,4)}, v{vT+6}, {WS}, s{sT3} offen offset:640 sc1")
    A("s_mov_b64 exec, -1")
    A("s_waitcnt vmcnt(0)")
    mf16(A, SA, K01, Q01, v(NEGM, 16))
    mf8(A, SA, K2, Q2, v(SA, 16))
    A("s_nop 7")
    A("s_nop 7")
    for g in range(4):
        exps(A, SA, g)
    A("s_nop 1")
    mf16(A, O, V0, P, v(O, 16))
    mf16(A, O, V1, P + 4, v(O, 16))
    A(f"s_add_u32 s{sCNT}, s{sCNT}, 1")
    A(f"s_cmp_lt_u32 s{sCNT}, 64")
    A("s_cbranch_scc1 L_fb2")
    A("s_nop 7")
    A("s_nop 7")
    row_sum(A, O)
    A("s_nop 1")
    A("s_branch L_finish")


def touch_chip(A, which):
    A(f"s_and_b32 s{sT1}, s{sW}, 1")
    A(f"s_lshl_b32 s{sT1}, s{sT1}, 6")
    A(f"v_add_u32 v{vT}, s{sT1}, v{vL}")
    A(f"s_cmp_ge_u32 s{sW}, 2")
    A(f"s_cbranch_scc1 L_tc_w{which}")
    if "x" in which:
        A(f"v_min_u32 v{vT}, 79, v{vT}")
        A(f"v_lshlrev_b32 v{vT}, 7, v{vT}")
        A(f"s_mul_i32 s{sT0}, s2, 10240")
        A(f"buffer_load_dword v{G_P+1}, v{vT}, s[{sX}:{sX+3}], s{sT0} offen")
    A(f"s_branch L_tc_done{which}")
    A.label(f"L_tc_w{which}")
    A(f"v_min_u32 v{vT}, 74, v{vT}")
    A(f"v_lshlrev_b32 v{vT}, 7, v{vT}")
    A(f"s_mul_i32 s{sT0}, s2, 9600")
    if "a" in which:
        A(f"buffer_load_dword v{G_P+2}, v{vT}, s[{sWA}:{sWA+3}], s{sT0} offen")
    if "b" in which:
        A(f"buffer_load_dword v{G_P+3}, v{vT}, s[{sWB}:{sWB+3}], s{sT0} offen")
    A.label(f"L_tc_done{which}")


def touch_chip_wide(A, which, tag):
    A(f"s_cmp_ge_u32 s{sW}, 4")
    A(f"s_cbranch_scc1 L_tcw{tag}")
    A(f"s_lshl_b32 s{sT1}, s{sW}, 10")
    A(f"v_add_u32 v{vT}, s{sT1}, v{vL16}")
    k = 0
    for name, srd_, size in (("x", sX, 10240), ("a", sWA, 9600), ("b", sWB, 9600)):
        if name not in which:
            continue
        A(f"s_mul_i32 s{sT0}, s2, {size}")
        for i in range(3):
            A(f"v_add_u32 v{vT+1}, {4096*i}, v{vT}")
            A(f"v_min_u32 v{vT+1}, {size - 16}, v{vT+1}")
            A(f"buffer_load_dwordx4 {v(G_P + 4*k, 4)}, v{vT+1}, s[{srd_}:{srd_+3}], s{sT0} offen")
            k += 1
    A.label(f"L_tcw{tag}")


def touch_chip_b(A, n):
    A(f"s_cmp_ge_u32 s{sW}, 2")
    A(f"s_cbranch_scc1 L_tcb{n}")
    A(f"s_lshl_b32 s{sT1}, s{sW}, 6")
    A(f"v_add_u32 v{vT}, s{sT1}, v{vL}")
    A(f"v_min_u32 v{vT}, 74, v{vT}")
    A(f"v_lshlrev_b32 v{vT}, 7, v{vT}")
    A(f"s_mul_i32 s{sT0}, s2, 9600")
    A(f"buffer_load_dword v{G_P+3}, v{vT}, s[{sWB}:{sWB+3}], s{sT0} offen")
    A.label(f"L_tcb{n}")


def touch_wb(A, n):
    A(f"s_cmp_ge_u32 s{sW}, 3")
    A(f"s_cbranch_scc1 L_twb{n}")
    A(f"s_and_b32 s{sT0}, s{sRB}, 7")
    A(f"s_mul_i32 s{sT0}, s{sT0}, 80")
    A(f"s_lshl_b32 s{sT1}, s{sW}, 5")
    A(f"v_lshrrev_b32 v{vT}, 1, v{vL}")
    A(f"v_add_u32 v{vT}, s{sT1}, v{vT}")
    A(f"v_min_u32 v{vT}, 79, v{vT}")
    A(f"v_add_u32 v{vT}, s{sT0}, v{vT}")
    A(f"v_mul_u32_u24 v{vT}, 3840, v{vT}")
    A(f"v_and_b32 v{vT+1}, 1, v{vL}")
    A(f"v_lshl_add_u32 v{vT}, v{vT+1}, 7, v{vT}")
    A(f"buffer_load_dword v{G_P}, v{vT}, s[{sWB}:{sWB+3}], s{sWOFF} offen")
    A.label(f"L_twb{n}")


def touch_a(A, n):
    A(f"v_mul_u32_u24 v{vT}, 37, v{vL}")
    A(f"v_lshrrev_b32 v{vT}, 8, v{vT}")
    A(f"v_mul_u32_u24 v{vT+1}, 7, v{vT}")
    A(f"v_sub_u32 v{vT+1}, v{vL}, v{vT+1}")
    A(f"v_min_u32 v{vT}, 7, v{vT}")
    A(f"s_and_b32 s{sT0}, s{sCT}, 3")
    A(f"s_lshl_b32 s{sT0}, s{sT0}, 2")
    A(f"s_add_u32 s{sT0}, s{sT0}, s{sW}")
    A(f"s_lshl_b32 s{sT0}, s{sT0}, 3")
    A(f"v_add_u32 v{vT}, s{sT0}, v{vT}")
    A(f"v_mul_u32_u24 v{vT}, 1280, v{vT}")
    A(f"v_lshl_add_u32 v{vT}, v{vT+1}, 7, v{vT}")
    A(f"v_add_u32 v{vT}, 384, v{vT}")
    A(f"buffer_load_dword v{G_P+1}, v{vT}, s[{sX}:{sX+3}], s{sXOFF} offen")
    A(f"s_cmp_ge_u32 s{sW}, 2")
    A(f"s_cbranch_scc1 L_twa{n}")
    A(f"s_and_b32 s{sT0}, s{sRB}, 7")
    A(f"s_mul_i32 s{sT0}, s{sT0}, 56")
    A(f"s_mul_i32 s{sT1}, s{sW}, 28")
    A(f"s_add_u32 s{sT0}, s{sT0}, s{sT1}")
    A(f"s_add_u32 s{sT0}, s{sT0}, 192")
    A(f"v_lshrrev_b32 v{vT}, 1, v{vL}")
    A(f"v_min_u32 v{vT}, 27, v{vT}")
    A(f"v_add_u32 v{vT}, s{sT0}, v{vT}")
    A(f"v_mul_u32_u24 v{vT}, 3840, v{vT}")
    A(f"v_and_b32 v{vT+1}, 1, v{vL}")
    A(f"v_lshl_add_u32 v{vT}, v{vT+1}, 7, v{vT}")
    A(f"buffer_load_dword v{G_P+2}, v{vT}, s[{sWA}:{sWA+3}], s{sWOFF} offen")
    A.label(f"L_twa{n}")


def setup_phase1_reads(A):
    A(f"v_lshrrev_b32 v{vT+2}, 1, v{vR}")
    A(f"v_and_b32 v{vT+2}, 7, v{vT+2}")
    A(f"v_xor_b32 v{vT+2}, v{vT+2}, v{vHH}")
    A(f"v_lshlrev_b32 v{vT+2}, 4, v{vT+2}")
    A(f"s_lshl_b32 s{sT0}, s{sMH}, 6")
    A(f"v_add_u32 v{vT+3}, s{sT0}, v{vR}")
    A(f"v_lshl_add_u32 v{vXR}, v{vT+3}, 7, v{vT+2}")
    for ks in range(1, 4):
        A(f"v_xor_b32 v{vXR+3*ks}, {ks*32}, v{vXR}")
    for ks in range(4):
        A(f"v_add_u32 v{vXR+3*ks+1}, 0x10000, v{vXR+3*ks}")
        A(f"v_add_u32 v{vXR+3*ks+2}, 0x20000, v{vXR+3*ks}")
    A(f"v_bfe_u32 v{vT+2}, v{vL}, 2, 2")
    A(f"v_lshl_add_u32 v{vT+3}, v{vHH}, 3, v{vT+2}")
    A(f"v_lshlrev_b32 v{vT+3}, 8, v{vT+3}")
    A(f"v_bfe_u32 v{vT+4}, v{vL}, 4, 1")
    A(f"v_lshlrev_b32 v{vT+4}, 5, v{vT+4}")
    A(f"v_add_u32 v{vT+3}, v{vT+3}, v{vT+4}")
    A(f"v_and_b32 v{vT+4}, 3, v{vL}")
    A(f"v_lshlrev_b32 v{vT+4}, 3, v{vT+4}")
    A(f"v_add_u32 v{vT+3}, v{vT+3}, v{vT+4}")
    for nt in range(2):
        A(f"s_lshl_b32 s{sT0}, s{sNH}, 1")
        A(f"s_add_u32 s{sT0}, s{sT0}, {nt}")
        A(f"v_xor_b32 v{vT+4}, s{sT0}, v{vT+2}")
        A(f"v_lshl_add_u32 v{vWR1+3*nt}, v{vT+4}, 6, v{vT+3}")
        A(f"v_add_u32 v{vWR1+3*nt+1}, 0x10000, v{vWR1+3*nt}")
        A(f"v_add_u32 v{vWR1+3*nt+2}, 0x20000, v{vWR1+3*nt}")


def setup_p2_0(A):
    A(f"s_lshl_b32 s{sF1}, s{sCT}, 4")
    A(f"s_add_u32 s{sF1}, s{sF1}, s{sRB}")
    A(f"s_lshl_b32 s{sF1}, s{sF1}, 2")
    A(f"s_and_b32 s{sT0}, s2, 7")
    A(f"s_lshl_b32 s{sT0}, s{sT0}, 2")
    A(f"s_lshr_b32 s{sT1}, s2, 3")
    A(f"s_and_b32 s{sT1}, s{sT1}, 3")
    A(f"s_add_u32 s{sH}, s{sT0}, s{sT1}")
    A(f"s_lshr_b32 s{sQB}, s2, 5")
    A(f"s_lshr_b32 s{sT0}, s{sH}, 1")
    A(f"s_mul_i32 s{sT0}, s{sT0}, 5")
    A(f"s_add_u32 s{sP2L}, s{sT0}, 2")
    A(f"s_and_b32 s{sT1}, s{sH}, 1")
    A(f"s_mul_i32 s{sT1}, s{sT1}, 3")
    A(f"s_add_u32 s{sPA}, s{sT0}, s{sT1}")
    A(f"s_mul_i32 s{sVH}, s{sH}, {VH}")
    A(f"s_mul_i32 s{sLDSW}, s{sW}, 2816")
    A(f"s_mul_i32 s{sLDSW2}, s{sW}, 2560")
    A(f"s_lshl_b32 s{sQ0}, s{sQB}, 8")
    A(f"s_lshl_b32 s{sT0}, s{sW}, 5")
    A(f"s_add_u32 s{sQ0}, s{sQ0}, s{sT0}")
    A(f"s_lshl_b32 s{sQT}, s{sQB}, 2")
    A(f"s_lshr_b32 s{sT0}, s{sW}, 1")
    A(f"s_add_u32 s{sQT}, s{sQT}, s{sT0}")
    A(f"s_and_b32 s{sT1}, s{sW}, 1")
    A(f"s_lshl_b32 s{sBT}, s{sQT}, 6")
    A(f"s_add_u32 s{sBT}, s{sBT}, s{sT1}")
    A(f"s_mov_b32 s{sLO20}, 0xfffff")
    A(f"s_mov_b32 s{sLO20+1}, 0xfffff")
    A(f"v_lshlrev_b32 v{vQA}, 15, v{vHH}")
    A(f"v_lshl_add_u32 v{vQA}, v{vR}, 4, v{vQA}")
    A(f"v_lshlrev_b32 v{vQA2}, 4, v{vR}")
    A(f"v_lshlrev_b32 v{vGA}, 2, v{vR}")
    A(f"s_lshl_b32 s{sT0}, s{sQ0}, 4")
    A(f"s_lshl_b32 s{sQOFF}, s{sPA}, 15")
    A(f"s_add_u32 s{sQOFF}, s{sQOFF}, s{sT0}")
    if QA:
        A(f"s_add_u32 s{sQOFF}, s{sQOFF}, {QA}")
    A(f"s_lshl_b32 s{sQOFF2}, s{sP2L}, 15")
    A(f"s_add_u32 s{sQOFF2}, s{sQOFF2}, s{sT0}")
    A(f"s_and_b32 s{sT1}, s{sH}, 1")
    A(f"s_lshl_b32 s{sT1}, s{sT1}, 3")
    A(f"s_add_u32 s{sQOFF2}, s{sQOFF2}, s{sT1}")
    if QA:
        A(f"s_add_u32 s{sQOFF2}, s{sQOFF2}, {QA}")
    A(f"s_lshl_b32 s{sGOFF}, s{sQ0}, 2")
    A(f"s_add_u32 s{sGOFF}, s{sGOFF}, {GATE}")


def setup_p2_1(A):
    A(f"s_and_b32 s{sT1}, s{sH}, 1")
    A(f"s_lshl_b32 s{sT1}, s{sT1}, 3")
    A(f"v_lshlrev_b32 v{vT}, 12, v{vHH}")
    A(f"v_lshl_add_u32 v{vT}, v{vR}, 4, v{vT}")
    A(f"v_lshlrev_b32 v{vT+1}, 4, v{vR}")
    A(f"v_add_u32 v{vT+1}, s{sT1}, v{vT+1}")
    A(f"v_mul_u32_u24 v{vT+2}, 320, v{vHH}")
    A(f"v_lshl_add_u32 v{vT+2}, v{vR}, 4, v{vT+2}")
    A(f"v_add_u32 v{vT+3}, {ONES}, v{vT+2}")
    A(f"v_cmp_gt_u32 vcc, 20, v{vR}")
    for sl in range(NSLOT):
        A(f"v_add_u32 v{vK01+sl}, {sl*SLOT}, v{vT}")
        A(f"v_add_u32 v{vK2+sl}, {sl*SLOT}, v{vT+1}")
        A(f"v_add_u32 v{vT+4}, {sl*SLOT + 12288}, v{vT+2}")
        A(f"v_cndmask_b32 v{vV+sl}, v{vT+3}, v{vT+4}, vcc")
    A(f"s_lshl_b32 s{sT2}, s{sPA}, 15")
    A(f"s_add_u32 s{sT2}, s{sT2}, {KA}")
    A(f"s_lshl_b32 s{sT3}, s{sP2L}, 15")
    A(f"s_add_u32 s{sT3}, s{sT3}, {KA - 8192}")
    A(f"s_add_u32 s{sT4}, s{sVH}, {VA - 12288}")
    for t in range(3):
        A(f"v_add_u32 v{vT}, s{sLDSW}, v{vL16}")
        if t:
            A(f"v_add_u32 v{vT}, {1024*t}, v{vT}")
        A(f"v_lshrrev_b32 v{vT+1}, 12, v{vT}")
        A(f"v_and_b32 v{vT+2}, 4095, v{vT}")
        A(f"v_lshl_add_u32 v{vT+2}, v{vT+1}, 15, v{vT+2}")
        A(f"v_add_u32 v{vT+2}, s{sT2}, v{vT+2}")
        A(f"v_add_u32 v{vT+3}, s{sT3}, v{vT}")
        A(f"v_add_u32 v{vT+4}, s{sT4}, v{vT}")
        A(f"v_cmp_eq_u32 vcc, 2, v{vT+1}")
        A(f"v_mov_b32 v{vT+5}, 4096")
        A(f"v_mov_b32 v{vT+6}, 10240")
        A(f"v_cndmask_b32 v{vT+2}, v{vT+2}, v{vT+3}, vcc")
        A(f"v_cmp_le_u32 vcc, 3, v{vT+1}")
        A("s_nop 1")
        A(f"v_cndmask_b32 v{vCB+t}, v{vT+2}, v{vT+4}, vcc")
        A(f"v_cndmask_b32 v{vCS+t}, v{vT+5}, v{vT+6}, vcc")


def setup_p2_2(A):
    A(f"s_lshr_b32 s{sT0}, s{sH}, 1")
    A(f"s_mul_i32 s{sT0}, s{sT0}, 5")
    A(f"s_and_b32 s{sT1}, s{sH}, 1")
    A(f"s_lshl_b32 s{sT2}, s{sT1}, 1")
    A(f"s_add_u32 s{sT2}, s{sT2}, s{sT0}")
    A(f"v_add_u32 v{vT}, s{sT2}, v{vHH}")
    A(f"v_lshlrev_b32 v{vT}, 15, v{vT}")
    A(f"v_lshl_add_u32 v{vOST}, v{vR}, 4, v{vT}")
    A(f"v_lshl_add_u32 v{vOST+1}, v{vR}, 5, v{vT}")
    A(f"s_add_u32 s{sT0}, s{sT0}, 4")
    A(f"s_lshl_b32 s{sT0}, s{sT0}, 15")
    A(f"s_lshl_b32 s{sT1}, s{sT1}, 3")
    A(f"s_add_u32 s{sT0}, s{sT0}, s{sT1}")
    A(f"v_lshlrev_b32 v{vT}, 4, v{vR}")
    A(f"v_add_u32 v{vOST+2}, s{sT0}, v{vT}")
    A(f"v_lshlrev_b32 v{vT}, 5, v{vR}")
    A(f"v_add_u32 v{vOST+3}, s{sT0}, v{vT}")
    A(f"s_mul_i32 s{sT0}, s{sH}, 20")
    A(f"s_add_u32 s{sT1}, s{sT0}, 19")
    A(f"s_lshr_b32 s{sT0}, s{sT0}, 7")
    A(f"s_lshr_b32 s{sT1}, s{sT1}, 7")
    A(f"v_bfe_u32 v{vT}, v{vL}, 4, 1")
    A(f"s_sub_u32 s{sT2}, s{sT1}, s{sT0}")
    A(f"v_mul_u32_u24 v{vT+1}, s{sT2}, v{vT}")
    A(f"v_add_u32 v{vT+1}, s{sT0}, v{vT+1}")
    A(f"v_mul_u32_u24 v{vT+2}, 5, v{vHH}")
    A(f"v_add_u32 v{vT+2}, 5, v{vT+2}")
    A(f"v_add_u32 v{vT+2}, v{vT+2}, v{vT+1}")
    A(f"v_and_b32 v{vT+3}, 15, v{vL}")
    A(f"v_lshl_add_u32 v{vT+2}, v{vT+2}, 4, v{vT+3}")
    A(f"v_lshlrev_b32 v{vF1}, 2, v{vT+2}")
    A(f"v_add_u32 v{vT+2}, {15*16}, v{vT+3}")
    A(f"v_lshlrev_b32 v{vF4}, 2, v{vT+2}")
    A(f"v_and_b32 v{vT+4}, 1, v{vL}")
    A(f"s_lshl_b32 s{sT3}, s{sQB}, 1")
    A(f"v_add_u32 v{vT+4}, s{sT3}, v{vT+4}")
    A(f"v_lshl_add_u32 v{vT+4}, v{vT+1}, 4, v{vT+4}")
    A(f"v_lshlrev_b32 v{vF2}, 2, v{vT+4}")
    A(f"v_and_b32 v{vT}, 1, v{vL}")
    A(f"v_mul_u32_u24 v{vT+1}, s{sT2}, v{vT}")
    A(f"v_add_u32 v{vT+1}, s{sT0}, v{vT+1}")
    A(f"v_bfe_u32 v{vT+2}, v{vL}, 1, 2")
    A(f"v_min_u32 v{vT+2}, 2, v{vT+2}")
    A(f"v_mul_u32_u24 v{vT+2}, 5, v{vT+2}")
    A(f"v_add_u32 v{vT+1}, v{vT+1}, v{vT+2}")
    A(f"s_lshr_b32 s{sT3}, s{sQT}, 1")
    A(f"s_max_u32 s{sT4}, s{sQT}, 1")
    A(f"s_sub_u32 s{sT4}, s{sT4}, 1")
    A(f"s_lshr_b32 s{sT4}, s{sT4}, 1")
    A(f"s_sub_u32 s{sT4}, s{sT3}, s{sT4}")
    A(f"v_bfe_u32 v{vT+2}, v{vL}, 3, 1")
    A(f"v_mul_u32_u24 v{vT+2}, s{sT4}, v{vT+2}")
    A(f"v_sub_u32 v{vT+2}, s{sT3}, v{vT+2}")
    A(f"v_lshl_add_u32 v{vT+1}, v{vT+1}, 4, v{vT+2}")
    A(f"v_lshlrev_b32 v{vF3}, 2, v{vT+1}")


def setup_p2_3(A):
    A(f"v_lshlrev_b32 v{vBA}, 15, v{vHH}")
    A(f"v_lshl_add_u32 v{vBA}, v{vR}, 4, v{vBA}")
    A(f"v_lshlrev_b32 v{vBA+1}, 4, v{vR}")
    A(f"v_and_b32 v{vT+2}, 25, v{vR}")
    A(f"v_bfe_u32 v{vT+3}, v{vR}, 1, 1")
    A(f"v_lshl_or_b32 v{vT+2}, v{vT+3}, 2, v{vT+2}")
    A(f"v_bfe_u32 v{vT+3}, v{vR}, 2, 1")
    A(f"v_lshl_or_b32 v{vT+2}, v{vT+3}, 1, v{vT+2}")
    A(f"v_lshlrev_b32 v{vT+3}, 15, v{vHH}")
    A(f"v_lshl_add_u32 v{vBA+2}, v{vT+2}, 4, v{vT+3}")
    A(f"v_lshlrev_b32 v{vBA+3}, 4, v{vT+2}")
    A(f"v_mul_u32_u24 v{vT+4}, 320, v{vHH}")
    A(f"v_lshl_add_u32 v{vBA+4}, v{vR}, 4, v{vT+4}")
    A(f"s_and_b32 s{sT1}, s{sW}, 1")
    A(f"s_lshl_b32 s{sT1}, s{sT1}, 10")
    A(f"s_lshl_b32 s{sT0}, s{sQT}, 5")
    A(f"s_add_u32 s{sT2}, s{sT1}, s{sT0}")
    A(f"s_lshl_b32 s{sT0}, s{sPA}, 15")
    A(f"s_lshl_b32 s{sT1}, s{sP2L}, 15")
    A(f"s_and_b32 s{sT3}, s{sH}, 1")
    A(f"s_lshl_b32 s{sT3}, s{sT3}, 3")
    A(f"s_add_u32 s{sT1}, s{sT1}, s{sT3}")
    for prev in range(2):
        if prev:
            A(f"s_cmp_eq_u32 s{sQT}, 0")
            A(f"s_cselect_b32 s{sT3}, 0, 32")
            A(f"s_sub_u32 s{sT2}, s{sT2}, s{sT3}")
        A(f"s_lshl_b32 s{sT3}, s{sT2}, 4")
        if not prev:
            A(f"s_add_u32 s{sBA}, s{sT3}, s{sT0}")
            A(f"s_add_u32 s{sBA}, s{sBA}, {QB}")
            A(f"s_add_u32 s{sBA+1}, s{sT3}, s{sT1}")
            A(f"s_add_u32 s{sBA+1}, s{sBA+1}, {QB}")
        o = sBA + 2 + 3 * prev
        A(f"s_add_u32 s{o}, s{sT3}, s{sT0}")
        A(f"s_add_u32 s{o}, s{o}, {KB}")
        A(f"s_add_u32 s{o+1}, s{sT3}, s{sT1}")
        A(f"s_add_u32 s{o+1}, s{o+1}, {KB}")
        A(f"s_lshr_b32 s{sT3}, s{sT2}, 4")
        A(f"s_mul_i32 s{sT3}, s{sT3}, 640")
        A(f"s_add_u32 s{o+2}, s{sT3}, s{sVH}")
        A(f"s_add_u32 s{o+2}, s{o+2}, {VB}")
    A(f"s_lshl_b32 s{sBA+8}, s{sBT}, 2")
    A(f"s_add_u32 s{sBA+8}, s{sBA+8}, {GATE}")


def setup_p2_4(A):
    sRT, sCO, sTG = sT1, sT2, sT3
    A(f"s_lshr_b32 s{sRT}, s{sH}, 3")
    A(f"s_lshl_b32 s{sT0}, s{sQB}, 2")
    A(f"s_add_u32 s{sRT}, s{sRT}, s{sT0}")
    A(f"s_and_b32 s{sCO}, s{sH}, 7")
    A(f"s_and_b32 s{sTG}, s{sW}, 3")
    A(f"s_lshr_b32 s{sKG}, s{sW}, 2")
    A(f"s_lshl_b32 s{sFLG}, s{sRT}, 8")
    A(f"s_mul_i32 s{sWSRC}, s{sW}, 20480")
    A(f"s_mul_i32 s{sT0}, s{sCO}, 1280")
    A(f"s_add_u32 s{sWSRC}, s{sWSRC}, s{sT0}")
    A(f"s_add_u32 s{sWSRC}, s{sWSRC}, {WOT}")
    A(f"s_lshl_b32 s{sRT}, s{sRT}, 6")
    A(f"s_lshl_b32 s{sTG}, s{sTG}, 4")
    A(f"s_add_u32 s{sRT}, s{sRT}, s{sTG}")
    A(f"s_mul_i32 s{sOUTO}, s{sRT}, 1280")
    A(f"s_mul_i32 s{sT0}, s{sCO}, 160")
    A(f"s_add_u32 s{sOUTO}, s{sOUTO}, s{sT0}")
    A(f"s_lshl_b32 s{sOCB}, s{sRT}, 4")
    A(f"s_mul_i32 s{sT0}, s{sKG}, {40*32768}")
    A(f"s_add_u32 s{sOCB}, s{sOCB}, s{sT0}")
    A(f"s_add_u32 s{sOCB}, s{sOCB}, {OC}")
    A(f"s_lshl_b32 s{sPUB}, s{sQT}, 6")
    A(f"s_lshl_b32 s{sT0}, s{sH}, 1")
    A(f"s_add_u32 s{sPUB}, s{sPUB}, s{sT0}")
    A(f"s_and_b32 s{sT0}, s{sW}, 1")
    A(f"s_add_u32 s{sPUB}, s{sPUB}, s{sT0}")
    A(f"s_lshl_b32 s{sPUB}, s{sPUB}, 2")
    A(f"v_lshlrev_b32 v{vFA}, 2, v{vL}")
    A(f"v_mov_b32 v{vW0}, v{vL16}")
    A(f"v_add_u32 v{vT}, 1024, v{vL16}")
    A(f"v_add_u32 v{vT+1}, {10240 - 256}, v{vL16}")
    A(f"v_cmp_gt_u32 vcc, 16, v{vL}")
    A(f"v_add_u32 v{vW2}, {10240 + 768}, v{vL16}")
    A(f"v_lshrrev_b32 v{vT+2}, 4, v{vL}")
    A(f"v_cndmask_b32 v{vW1}, v{vT+1}, v{vT}, vcc")
    A(f"v_and_b32 v{vT+3}, 15, v{vL}")
    A(f"v_lshlrev_b32 v{vT+4}, 15, v{vT+2}")
    A(f"v_lshl_add_u32 v{vOC}, v{vT+3}, 4, v{vT+4}")
    A(f"v_mul_u32_u24 v{vT+4}, 1280, v{vT+2}")
    A(f"v_lshl_add_u32 v{vWR}, v{vT+3}, 4, v{vT+4}")
    A(f"v_mul_u32_u24 v{vT+4}, 1280, v{vT+3}")
    A(f"v_lshl_add_u32 v{vST}, v{vT+2}, 3, v{vT+4}")


SETUP_P2 = [setup_p2_0, setup_p2_1, setup_p2_2, setup_p2_3, setup_p2_4]


def setup_phase2(A):
    for f in SETUP_P2:
        f(A)


def pattern_fill(A):
    for r in range(2):
        A(f"v_add_u32 v{vT}, {512*r}, v0")
        A(f"v_mul_u32_u24 v{vT+1}, 3277, v{vT}")
        A(f"v_lshrrev_b32 v{vT+1}, 16, v{vT+1}")
        A(f"v_mul_u32_u24 v{vT+1}, 20, v{vT+1}")
        A(f"v_cmp_eq_u32 vcc, v{vT+1}, v{vT}")
        A(f"v_mov_b32 v{vT+4}, 0")
        A(f"v_mov_b32 v{vT+5}, 0x3f803f80")
        A(f"v_cndmask_b32 v{vT+4}, v{vT+4}, v{vT+5}, vcc")
        for i in range(1, 4):
            A(f"v_mov_b32 v{vT+4+i}, v{vT+4}")
        if r == 1:
            A(f"v_cmp_gt_u32 vcc, {PAT_UNITS}, v{vT}")
        A(f"v_lshlrev_b32 v{vT}, 4, v{vT}")
        A(f"v_add_u32 v{vT}, {ONES}, v{vT}")
        if r == 1:
            A("s_and_saveexec_b64 s[%d:%d], vcc" % (sT4, sT5))
            A("s_cbranch_execz L_pat_done")
        A.lds(f"ds_write_b128 v{vT}, {v(vT+4,4)}", "pat")
    A.label("L_pat_done")
    A("s_mov_b64 exec, -1")


def gen(prof=False):
    A = Asm()
    A.prof = prof
    A.PROF_V = 239
    kernel_header(A, NAME)
    A("s_cmp_ge_u32 s2, 256")
    A("s_cbranch_scc1 L_end")
    A.stamp("start")
    A("s_load_dwordx4 s[4:7], s[0:1], 0")
    A(f"s_load_dwordx2 s[{sP}:{sP+1}], s[0:1], 32")
    A(f"s_load_dwordx2 s[{sP+2}:{sP+3}], s[0:1], 72")
    A(f"s_load_dwordx4 s[{sDBG}:{sDBG+3}], s[0:1], 56")
    A(f"v_lshrrev_b32 v{vT}, 6, v0")
    A(f"v_and_b32 v{vL}, 63, v0")
    A(f"v_readfirstlane_b32 s{sW}, v{vT}")
    A(f"v_and_b32 v{vR}, 31, v{vL}")
    A(f"v_lshrrev_b32 v{vHH}, 5, v{vL}")
    A(f"v_lshlrev_b32 v{vL16}, 4, v{vL}")
    A(f"s_and_b32 s{sT0}, s2, 7")
    A(f"s_lshr_b32 s{sT1}, s2, 3")
    A(f"s_and_b32 s{sRB}, s{sT0}, 1")
    A(f"s_lshl_b32 s{sRB}, s{sRB}, 3")
    A(f"s_and_b32 s{sT2}, s{sT1}, 7")
    A(f"s_add_u32 s{sRB}, s{sRB}, s{sT2}")
    A(f"s_lshr_b32 s{sCT}, s{sT0}, 1")
    A(f"s_lshl_b32 s{sCT}, s{sCT}, 2")
    A(f"s_lshr_b32 s{sT2}, s{sT1}, 3")
    A(f"s_add_u32 s{sCT}, s{sCT}, s{sT2}")
    A(f"s_and_b32 s{sGI}, s{sW}, 3")
    A(f"s_and_b32 s{sMH}, s{sGI}, 1")
    A(f"s_lshr_b32 s{sNH}, s{sGI}, 1")
    A(f"s_mul_i32 s{sXOFF}, s{sRB}, {128*1280}")
    A(f"s_lshl_b32 s{sWOFF}, s{sCT}, 8")
    A(f"s_lshl_b32 s{sLDS1}, s{sGI}, 10")
    A(f"s_mul_hi_u32 s{sT0}, s{sCT}, 0x33333334")
    A(f"s_mul_i32 s{sT0}, s{sT0}, 5")
    A(f"s_sub_u32 s{sCT5}, s{sCT}, s{sT0}")
    A(f"v_lshrrev_b32 v{vT}, 3, v{vL}")
    A(f"s_lshl_b32 s{sT0}, s{sGI}, 3")
    A(f"v_add_u32 v{vT}, s{sT0}, v{vT}")
    A(f"v_lshrrev_b32 v{vT+1}, 1, v{vT}")
    A(f"v_xor_b32 v{vT+1}, v{vT+1}, v{vL}")
    A(f"v_and_b32 v{vT+1}, 7, v{vT+1}")
    A(f"v_lshlrev_b32 v{vT+1}, 4, v{vT+1}")
    A(f"v_mul_u32_u24 v{vT+2}, 1280, v{vT}")
    A(f"v_add_u32 v{vXD}, v{vT+2}, v{vT+1}")
    A(f"v_lshrrev_b32 v{vT}, 4, v{vL}")
    A(f"v_lshlrev_b32 v{vT+1}, 2, v{vT}")
    A(f"v_xor_b32 v{vT+1}, v{vT+1}, v{vL}")
    A(f"v_and_b32 v{vT+1}, 15, v{vT+1}")
    A(f"v_lshlrev_b32 v{vT+1}, 4, v{vT+1}")
    A(f"s_lshl_b32 s{sT0}, s{sGI}, 2")
    A(f"v_add_u32 v{vT}, s{sT0}, v{vT}")
    A(f"v_mul_u32_u24 v{vT}, 3840, v{vT}")
    A(f"v_add_u32 v{vWD}, v{vT}, v{vT+1}")
    if EXP.get("stampP"):
        A("s_memtime s[96:97]")
        A("s_memrealtime s[98:99]")
    A("s_waitcnt lgkmcnt(0)")
    if EXP.get("stampP"):
        A(f"v_writelane_b32 v{A.PROF_V}, s96, 14")
        A(f"v_writelane_b32 v{A.PROF_V}, s98, 30")
        A.stamp("", 15)
    srd(A, sX, 4, X_BYTES)
    srd(A, sWA, 6, W_BYTES)
    srd(A, sWB, sP, W_BYTES)
    srd(A, sWS, sP + 2, WS_USED)
    srd(A, sOUT, sDBG, OUT_BYTES)
    A(f"s_mov_b32 s{sDBG}, s{sDBG+2}")
    A(f"s_and_b32 s{sDBG+1}, s{sDBG+3}, 0xffff")
    A(f"s_mov_b32 s{sDBG+2}, 256")
    A(f"s_mov_b32 s{sDBG+3}, 0x20000")
    A(f"s_cmp_eq_u32 s{sCT}, 15")
    A("s_cbranch_scc1 L_nodma")
    A(f"s_cmp_lt_u32 s{sW}, 4")
    A("s_cbranch_scc1 L_nodma")
    for b in range(3):
        for p in range(8):
            g_dma(A, b, p)
    A(f"s_cmp_ge_u32 s{sCT}, 10")
    A("s_cbranch_scc1 L_g1n")
    A("s_branch L_g1t")
    A.label("L_nodma")
    if EXP.get("tchip", 1) in (1, 2, 3):
        touch_chip(A, {1: "xab", 2: "xa", 3: "b"}[EXP.get("tchip", 1)])
    if EXP.get("tchip") == 6:
        touch_chip_wide(A, "xa", "e")
    if EXP.get("tchip") == 7:
        touch_chip_wide(A, "ax", "e")
    A(f"s_or_b32 s{sT0}, s2, s{sW}")
    A(f"s_cmp_lg_u32 s{sT0}, 0")
    A("s_cbranch_scc1 L_nonce_done")
    A(f"s_memrealtime s[{sT4}:{sT5}]")
    A("s_waitcnt lgkmcnt(0)")
    A(f"s_or_b32 s{sT0}, s{sT4}, 1")
    A(f"v_mov_b32 v{vT}, s{sT0}")
    A(f"v_mov_b32 v{vT+1}, 0")
    A("s_mov_b64 exec, 1")
    A(f"buffer_store_dword v{vT}, v{vT+1}, s[{sDBG}:{sDBG+3}], 0 offen sc1")
    A("s_mov_b64 exec, -1")
    A.label("L_nonce_done")
    if EXP.get("cpf"):
        A(f"s_lshr_b32 s{sT1}, s2, 3")
        A(f"s_cmp_ge_u32 s{sT1}, 8")
        A("s_cbranch_scc1 L_cpf_done")
        A(f"s_cmp_lg_u32 s{sW}, {EXP['cpf'] - 1}")
        A("s_cbranch_scc1 L_cpf_done")
        A(f"s_getpc_b64 s[{sT4}:{sT5}]")
        A.label("L_cpf_pc")
        A(f"s_sub_u32 s{sT4}, s{sT4}, L_cpf_pc - {NAME}")
        A(f"s_subb_u32 s{sT5}, s{sT5}, 0")
        A(f"s_lshl_b32 s{sT1}, s{sT1}, 13")
        A(f"v_lshlrev_b32 v{vT}, 7, v{vL}")
        A(f"v_add_u32 v{vT}, s{sT1}, v{vT}")
        A(f"v_min_u32 v{vT}, L_end - {NAME}, v{vT}")
        A(f"global_load_dword v{G_P}, v{vT}, s[{sT4}:{sT5}]")
        A.label("L_cpf_done")
    if EXP.get("tchip") in (5, 9):
        setup_phase1_reads(A)
        touch_chip(A, "xa" if EXP["tchip"] == 5 else "xab")
        setup_phase2(A)
    else:
        setup_phase1_reads(A)
        setup_phase2(A)
    if EXP.get("tchip") == 4:
        touch_chip(A, "xa")
    if EXP.get("tchip") == 8:
        touch_chip(A, "xab")
    A.stamp("issued")
    A(f"s_cmp_eq_u32 s{sCT}, 15")
    A("s_cbranch_scc1 L_spare")
    A(f"s_cmp_ge_u32 s{sCT}, 10")
    A("s_cbranch_scc1 L_vtile")
    if prof:
        A.stamps += ["blk0 landed", "gemm0", "epi0", "gemm1", "epi1"]
        if EXP.get("stampB"):
            A.stamps += ["B10", "B12", "B14", "B16"]
        if EXP.get("stampA"):
            A.stamps += ["B0", "B2", "B4", "B6"]
    gemm(A, True, "t")
    A("s_branch L_attn")
    A.label("L_vtile")
    gemm(A, False, "n")
    A.label("L_attn")
    A.vm_q, A.lds_q = [], []
    A("s_barrier")
    A.stamp("attn start")
    if EXP.get("prio") == 1:
        A(f"s_cmp_lt_u32 s{sW}, 4")
        A("s_cbranch_scc1 L_prio_done")
        A("s_setprio 1")
        A.label("L_prio_done")
    rd_k01(A, 0)
    rd_k2(A, 0)
    dma_chunk(A, 3)
    pattern_fill(A)
    b_consts(A)
    A.lds_wait_all()
    mf16(A, SA, K01, Q01, "0")
    mf8(A, SA, K2, Q2, v(SA, 16))
    A("s_nop 7")
    A("s_nop 5")
    max16(A, vT, SA, True)
    cross_half_max(A, vT, vT + 1)
    for i in range(16):
        A(f"v_sub_f32 v{NEGM+i}, 0, v{vT}")
    A("s_nop 1")
    mf16(A, SA, K01, Q01, v(NEGM, 16))
    mf8(A, SA, K2, Q2, v(SA, 16))
    A("s_barrier")
    rd_k01(A, 1)
    rd_k2(A, 1)
    rd_v(A, 0, 0)
    A("s_nop 7")
    A("s_nop 3")
    NT = 64
    sched = {}
    def at(t, half, fn):
        sched.setdefault((t, half), []).append(fn)
    fb_items = [(vFL, vF3, F1B, None), (vFL2, vF4, F1A, None)]
    pos = {}
    def issue(name, items):
        def f(A):
            pos[name] = poll_issue(A, items, name)
        return f
    at(13, 0, issue("f1b", fb_items))
    pre_barrier = {22: lambda A: poll_check(A, fb_items, pos["f1b"], "f1b"),
                   54: lambda A: poll_check(A, fo_items, pos["fb"], "fb")}
    at(22, 1, lambda A: A.vm(f"buffer_load_dword v{vG}, v{vGA}, {WS}, s{sGOFF} offen sc1", "g"))
    for i, f in enumerate(b_load_items()):
        at(25 + i // 2, i % 2, f)
    at(34, 1, b_unit)
    at(40, 0, lambda A: publish(A, sPUB, FLAGB, "stb"))
    fo_items = [(vFL, vFA, FLAGB, sFLG)]
    at(48, 0, issue("fb", fo_items))
    for k in range(10):
        at(55 + k // 2, k % 2, lambda A, k=k: oc_load(A, 1, k))
    for st in range(3):
        for p in range(3):
            i = 3 * st + p
            at(42 + i // 2, i % 2, lambda A, st=st, p=p: dma_w_piece(A, 1, st, p))
    for st in range(3, 5):
        for p in range(3):
            i = 3 * (st - 3) + p
            at(57 + i // 2, 1 - i % 2, lambda A, st=st, p=p: dma_w_piece(A, 1, st, p))
    for c in range(2, NCH - 2):
        for p in range(3):
            at(TPC * c - 1 + p // 2, 1 if p % 2 == 0 else 0, lambda A, c=c, p=p: dma_chunk_piece(A, c + 2, p))
    for t in range(NT):
        cur = SA if t % 2 == 0 else SB
        nxt = SB if t % 2 == 0 else SA
        if (t == 32 and not (EXP.get("stampB") or EXP.get("stampA"))) or (EXP.get("stampB") and t in (21, 24)):
            A.stamp("t%d" % t)
        if t % TPC == TPC - 2 and t + 2 < NT:
            c = (t + 2) // TPC
            if c == 1:
                A.vm_wait(("c", 3))
            A.vm_wait(("c", c))
            if t in pre_barrier:
                pre_barrier[t](A)
            A("s_barrier")
            if c == 1:
                with Wave0(A, "pubb"):
                    publish(A, sF1, F1B)
        if EXP.get("prio") == 2 and t == 55:
            A(f"s_cmp_lt_u32 s{sW}, 4")
            A("s_cbranch_scc1 L_prio_done")
            A("s_setprio 1")
            A.label("L_prio_done")
        if EXP.get("prio") == 3 and t % 8 == 7:
            A(f"s_lshr_b32 s{sT0}, s{sW}, 2")
            A(f"s_cmp_eq_u32 s{sT0}, {(t // 8) % 2}")
            A(f"s_cbranch_scc1 L_prio_a{t}")
            A("s_setprio 0")
            A(f"s_branch L_prio_b{t}")
            A.label(f"L_prio_a{t}")
            A("s_setprio 1")
            A.label(f"L_prio_b{t}")
        if EXP.get("xbar") and t == EXP["xbar"]:
            A("s_barrier")
        if t == 63:
            A.vm_wait(("w", 1, 4))
        for f in sched.get((t, 0), []):
            f(A)
        if t + 1 < NT:
            A.lds_wait(("k01", t + 1))
            mf16(A, nxt, K01, Q01, "0" if EXP.get("m0") else v(NEGM, 16))
            if t + 2 < NT:
                rd_k01(A, t + 2)
        exps(A, cur, 0)
        if t > 0:
            A.lds_wait(("v", t - 1, 1))
            mf16(A, O, V1, P + 4, v(O, 16))
        rd_v(A, t, 1)
        exps(A, cur, 1)
        for f in sched.get((t, 1), []):
            f(A)
        if t + 1 < NT:
            A.lds_wait(("k2", t + 1))
            mf8(A, nxt, K2, Q2, v(nxt, 16))
            if t + 2 < NT:
                rd_k2(A, t + 2)
        exps(A, cur, 2)
        A.lds_wait(("v", t, 0))
        mf16(A, O, V0, P, "0" if t == 0 else v(O, 16))
        if t + 1 < NT:
            rd_v(A, t + 1, 0)
        exps(A, cur, 3)
    A.lds_wait(("v", NT - 1, 1))
    A("s_nop 1")
    mf16(A, O, V1, P + 4, v(O, 16))
    A(f"v_add_u32 v{vT+5}, 0x10000, v{vWR}")
    A(f"v_add_u32 v{vT+6}, 0x20000, v{vWR}")
    A(f"v_mov_b32 v{vT+3}, {hex(f32bits(BIG))}")
    A("s_nop 7")
    A("s_nop 3")
    A.stamp("loop end")
    row_sum(A, O)
    A(f"v_mul_f32 v{vT+2}, 0, v{O}")
    for i in range(1, 12):
        A(f"v_fma_f32 v{vT+2}, v{O+i}, 0, v{vT+2}")
    A(f"v_add_f32 v{vT+2}, v{vT+2}, v{vT+1}")
    A(f"v_cmp_lt_f32 vcc, v{vT+2}, v{vT+3}")
    A("s_nop 4")
    A("s_cmp_eq_u64 vcc, exec")
    A("s_cbranch_scc0 L_fallback")
    A.label("L_finish")
    A.vm_wait("g")
    finish_tile(A, O, vG, False, vOST, sQ0, 0, "sta")
    A(f"v_add_u32 v{vT+5}, 0x10000, v{vWR}")
    A(f"v_add_u32 v{vT+6}, 0x20000, v{vWR}")
    A("s_barrier")
    A.stamp("ring free") if not (EXP.get("stampB") or EXP.get("stampA")) else None
    wa = [(st, p) for st in range(2) for p in range(3)]

    def hook_b(k, kg):
        if k < 6:
            st, p = wa[k]
            dma_w_piece(A, 0, st, p)
        if k == EXP.get("pubk", 1):
            publish(A, sPUB, FLAGA, "sta")
    outproj(A, 1, True, hook_b)
    A.stamp("b part") if not (EXP.get("stampB") or EXP.get("stampA")) else None
    A("s_barrier")
    for st in range(2, 5):
        for p in range(3):
            dma_w_piece(A, 0, st, p)
    if EXP.get("notight"):
        fa_items = [(vFL, vFA, FLAGA, sFLG)]
        pfa = poll_issue(A, fa_items, "fa")
        poll_check(A, fa_items, pfa, "fa")
    else:
        poll_tight(A, FLAGA, sFLG, vFA, "fa")
    A("s_barrier")
    A.stamp("flags a") if not (EXP.get("stampB") or EXP.get("stampA")) else None
    for k in range(10):
        oc_load(A, 0, k)
    A.vm_wait(("w", 0, 4))
    A("s_barrier")
    outproj(A, 0, False)
    A.stamp("a part") if not (EXP.get("stampB") or EXP.get("stampA")) else None
    A(f"s_and_b32 s{sT0}, s{sW}, 3")
    A(f"s_mul_i32 s{sT0}, s{sT0}, 5120")
    A(f"v_add_u32 v{vT}, s{sT0}, v{vL16}")
    A(f"s_cmp_eq_u32 s{sKG}, 0")
    A("s_cbranch_scc1 L_red_a")

    def finish_out(tiles):
        A.lds_q = []
        for nt in tiles:
            A.lds(f"ds_read_b128 {v(WF+4*nt,4)}, v{vT} offset:{nt*1024}", ("r", nt))
        for nt in tiles:
            A.lds_wait(("r", nt))
            for i in range(4):
                A(f"v_add_f32 v{ACC+4*nt+i}, v{ACC+4*nt+i}, v{WF+4*nt+i}")
            A(f"v_cvt_pk_bf16_f32 v{ACC+4*nt}, v{ACC+4*nt}, v{ACC+4*nt+1}")
            A(f"v_cvt_pk_bf16_f32 v{ACC+4*nt+1}, v{ACC+4*nt+2}, v{ACC+4*nt+3}")
            A.vm(f"buffer_store_dwordx2 {v(ACC+4*nt,2)}, v{vST}, s[{sOUT}:{sOUT+3}], s{sOUTO} offen offset:{nt*32}{EXP.get('outst','')}", "st")

    A("s_nop 5")
    for nt in range(3):
        A(f"ds_write_b128 v{vT}, {v(ACC+4*nt,4)} offset:{nt*1024}")
    A("s_waitcnt lgkmcnt(0)")
    A("s_barrier")
    finish_out((3, 4))
    if prof:
        A.stamp("", len(A.stamps))
        A.stamp_flush(0, sWS, PROF, vT + 2)
    A("s_endpgm")
    A.label("L_red_a")
    A("s_nop 5")
    for nt in (3, 4):
        A(f"ds_write_b128 v{vT}, {v(ACC+4*nt,4)} offset:{nt*1024}")
    A("s_waitcnt lgkmcnt(0)")
    A("s_barrier")
    finish_out((0, 1, 2))
    A.stamp("end")
    if prof and EXP.get("dbg"):
        with Wave0(A, "dbgout"):
            A(f"v_subrev_u32 v{vT}, s{sNONCE}, v{A.PROF_V}")
            A(f"v_subrev_u32 v{vT+1}, 16, v{vL}")
            A(f"v_lshlrev_b32 v{vT+1}, 2, v{vT+1}")
            if EXP["dbg"] == 2:
                A(f"v_sub_u32 v{vT}, 0x100000, v{vT}")
            A("s_mov_b32 exec_lo, 0xfffe0000")
            A("s_mov_b32 exec_hi, 0")
            A(f"buffer_atomic_umax v{vT}, v{vT+1}, s[{sDBG}:{sDBG+3}], 0 offen")
            A("s_mov_b64 exec, -1")
    A.stamp_flush(0, sWS, PROF, vT)
    A("s_endpgm")
    fallback(A)
    spare(A)
    A.label("L_end")
    A("s_endpgm")
    kernel_footer(A, NAME, NV, 96)
    gen.stamps = getattr(A, "stamps", [])
    if prof and EXP.get("stampP"):
        assert len(gen.stamps) == 14, len(gen.stamps)
        gen.stamps = gen.stamps + ["pre-kernarg", "kernarg"]
    return A.text()

if __name__ == "__main__":
    print(gen())
```

```python
class Asm:
    def __init__(self):
        self.lines = []
        self.lds_q = []
        self.vm_q = []

    def __call__(self, text):
        for ln in text.split("\n"):
            ln = ln.rstrip()
            if ln.strip():
                self.lines.append(ln if ln.endswith(":") or ln.startswith(".") or ln.startswith(";") else "    " + ln.strip())

    prof = False
    PROF_S = 64
    PROF_V = 255
    PROF_T = 96
    def stamp(self, name=None, idx=None):
        if not self.prof:
            return
        if not hasattr(self, "stamps"):
            self.stamps = []
        if idx is None:
            idx = len(self.stamps)
            self.stamps.append(name or str(idx))
        assert idx < 16
        t = self.PROF_T
        self(f"s_memtime s[{t}:{t+1}]")
        self(f"s_memrealtime s[{t+2}:{t+3}]")
        self.lds_wait_all()
        self(f"v_writelane_b32 v{self.PROF_V}, s{t}, {idx}")
        self(f"v_writelane_b32 v{self.PROF_V}, s{t+2}, {16+idx}")

    def stamp_flush(self, kidx, srd_reg, prof_off, tmpv):
        if not self.prof:
            return
        t = self.PROF_T
        self("s_mov_b64 exec, -1")
        self(f"v_lshrrev_b32 v{tmpv+1}, 6, v0")
        self(f"s_lshl_b32 s{t}, s2, 4")
        self(f"s_add_u32 s{t}, s{t}, {kidx*4096}")
        self(f"v_add_u32 v{tmpv+1}, s{t}, v{tmpv+1}")
        self(f"v_lshlrev_b32 v{tmpv+1}, 7, v{tmpv+1}")
        self(f"v_and_b32 v{tmpv+2}, 63, v0")
        self(f"v_lshl_add_u32 v{tmpv+1}, v{tmpv+2}, 2, v{tmpv+1}")
        self(f"s_mov_b32 s{t}, {prof_off}")
        self("s_mov_b32 exec_hi, 0")
        self(f"buffer_store_dword v{self.PROF_V}, v{tmpv+1}, s[{srd_reg}:{srd_reg+3}], s{t} offen")
        self("s_mov_b64 exec, -1")

    def label(self, name):
        self.lines.append(name + ":")

    def comment(self, c):
        self.lines.append("    ; " + c)

    def text(self):
        return "\n".join(self.lines) + "\n"

    def lds(self, instr, tag=None):
        self(instr)
        self.lds_q.append(tag)

    def lds_wait(self, *tags):
        idx = -1
        for t in tags:
            if t in self.lds_q:
                idx = max(idx, len(self.lds_q) - 1 - self.lds_q[::-1].index(t))
        if idx < 0:
            return
        n = len(self.lds_q) - 1 - idx
        assert n <= 15, n
        self(f"s_waitcnt lgkmcnt({n})")
        self.lds_q = self.lds_q[idx + 1:]

    def lds_wait_all(self):
        self("s_waitcnt lgkmcnt(0)")
        self.lds_q = []

    vm_counts = None

    @staticmethod
    def vm_class(instr):
        if "store" in instr or "atomic" in instr:
            return "S"
        return "D" if instr.rstrip().endswith(" lds") else "L"

    def _count(self, cls):
        if self.vm_counts is None:
            self.vm_counts = {"L": 0, "D": 0, "S": 0}
        self.vm_counts[cls] += 1

    def vm_note(self, tag, cls):
        self.vm_q.append((tag, cls))
        self._count(cls)

    def vm(self, instr, tag=None):
        self(instr)
        self.vm_note(tag, self.vm_class(instr))
        assert len(self.vm_q) <= 63, "vmcnt overflow"

    def vm_set(self, items):
        self.vm_q = list(items)

    def vm_pos(self, cls):
        return (self.vm_counts or {}).get(cls, 0)

    def _retire(self, n):
        keep, seen = [], {}
        for e in reversed(self.vm_q):
            seen[e[1]] = seen.get(e[1], 0) + 1
            if seen[e[1]] <= n:
                keep.append(e)
        self.vm_q = keep[::-1]

    def vm_wait(self, *tags):
        n = None
        for t in tags:
            idx = [i for i, e in enumerate(self.vm_q) if e[0] == t]
            if not idx:
                continue
            last = idx[-1]
            cls = self.vm_q[last][1]
            assert all(self.vm_q[i][1] == cls for i in idx), t
            younger = sum(1 for e in self.vm_q[last + 1:] if e[1] == cls)
            n = younger if n is None else min(n, younger)
        if n is None:
            return
        self(f"s_waitcnt vmcnt({n})")
        self._retire(n)

    def vm_wait_all(self):
        self("s_waitcnt vmcnt(0)")
        self.vm_q = []


def v(a, n=1):
    return f"v{a}" if n == 1 else f"v[{a}:{a+n-1}]"


def s(a, n=1):
    return f"s{a}" if n == 1 else f"s[{a}:{a+n-1}]"


def srd(A, sreg, ptr_lo, nbytes):
    A(f"s_mov_b32 s{sreg}, s{ptr_lo}")
    A(f"s_and_b32 s{sreg+1}, s{ptr_lo+1}, 0xffff")
    A(f"s_mov_b32 s{sreg+2}, {nbytes}")
    A(f"s_mov_b32 s{sreg+3}, 0x20000")


def kernel_header(A, name):
    A.lines.append(".text")
    A.lines.append(f".globl {name}")
    A.lines.append(".p2align 8")
    A.lines.append(f".type {name},@function")
    A.lines.append(f"{name}:")


def kernel_footer(A, name, nvgpr, nsgpr=96):
    if A.prof:
        nsgpr, nvgpr = 100, 256
    acc = (nvgpr + 3) // 4 * 4
    A.lines += [
        '.section .rodata,"a"',
        ".p2align 6",
        f".amdhsa_kernel {name}",
        f"  .amdhsa_next_free_vgpr {nvgpr}",
        f"  .amdhsa_next_free_sgpr {nsgpr}",
        f"  .amdhsa_accum_offset {acc}",
        "  .amdhsa_group_segment_fixed_size 0",
        "  .amdhsa_kernarg_size 80",
        "  .amdhsa_user_sgpr_count 2",
        "  .amdhsa_user_sgpr_kernarg_segment_ptr 1",
        "  .amdhsa_system_sgpr_workgroup_id_x 1",
        "  .amdhsa_float_denorm_mode_32 3",
        ".end_amdhsa_kernel",
    ]


def _unused_prefetch_code(A, start_label, end_label, sreg, vtmp, wave_sreg, tag="pf"):
    here = f"L_pf_{start_label}"
    A(f"s_getpc_b64 s[{sreg}:{sreg+1}]")
    A.label(here)
    A(f"s_sub_u32 s{sreg}, s{sreg}, {here} - {start_label}")
    A(f"s_subb_u32 s{sreg+1}, s{sreg+1}, 0")
    A(f"v_and_b32 v{vtmp}, 63, v0")
    A(f"v_lshlrev_b32 v{vtmp}, 7, v{vtmp}")
    A(f"s_lshl_b32 s{sreg+2}, s{wave_sreg}, 13")
    A(f"v_add_u32 v{vtmp}, s{sreg+2}, v{vtmp}")
    A(f"v_min_u32 v{vtmp}, {end_label} - {start_label} - 4, v{vtmp}")
    A.vm(f"global_load_dword v{vtmp+1}, v{vtmp}, s[{sreg}:{sreg+1}]", tag)
```

```python
from asmlib import *
from layout2 import *

NAME = "gated_mix__softmax_full_mha__sliding_local_dilated__prompt_kernel"
EXP = {}
STAGE, NST, NB = 32768, 5, 20
SLOT = CHB
NSLOT = 4
TPC = CH // 32
NCH = S // CH
ONES = 4 * SLOT
PAT_UNITS = 672
WBASE = ONES + PAT_UNITS * 16
WSTG = 20480
LDS_BYTES = 163840
WB_OFF = [WBASE, WBASE + WSTG, WBASE + 2 * WSTG, 0, SLOT]
WA_OFF = [2 * SLOT, 3 * SLOT, WBASE, WBASE + WSTG, WBASE + 2 * WSTG]
assert WBASE + 3 * WSTG <= LDS_BYTES
BIG = 2.0 ** 64
SPIN_MAX = 1 << 16
sWS, sOUT = 8, 12
sW, sNONCE = 16, 17
sH, sQB, sPA, sLDSW, sLDSW2, sWSRC, sOCB, sFLG, sPUB, sOUTO, sKG, sQ0, sBT, sQT = range(18, 32)
sT0, sT1, sT2, sT3, sT4, sT5 = range(32, 38)
sM = 38
sLO20 = 40
sCNT = 42
sP2L = 43
sDBG = 44
sBA = 48
sVH = 57
sX, sWA, sWB = 60, 64, 68
sRB, sCT, sMH, sNH, sXOFF, sWOFF, sLDS1, sCT5, sTP, sB16, sQS, sGI = range(72, 84)
sQOFF, sQOFF2, sGOFF, sF1 = 88, 89, 90, 91
sP = 92
vL, vR, vHH = 1, 2, 3
vK01, vK2, vV = 4, 8, 12
vL16, vG, vGB, vFL = 16, 17, 18, 19
vT = 20
SA, SB, NEGM, O, P = 28, 44, 60, 76, 92
Q01, Q2, K01, K2, V0, V1 = 100, 104, 108, 112, 116, 120
BQ01, BQ2, BK01, BK2, BKP01, BKP2 = 124, 128, 132, 136, 140, 144
BV0, BV1, BVP, BS0, BS1, BO, BP = 148, 152, 156, 160, 176, 192, 208
vBA = 220
vW0, vW1, vW2, vOC, vWR, vST, vFA = 225, 226, 227, 228, 229, 230, 231
vF1, vF2, vF3, vF4 = 232, 233, 234, 241
vFL2 = 235
vQA, vQA2, vGA = 236, 237, 238
vOST = 252
vXD, vWD = 242, 243
vCB, vCS = 244, 247
vCT = 250
NV = 256
OCB, OCA, ACC, WF = 124, 164, 204, 28
G_ACC = 124
G_F = 28
G_P = 188
vA16 = 76
vXR, vWR1 = 106, 118
WS = f"s[{sWS}:{sWS+3}]"


def st1():
    return " sc1"


def publish(A, soff_reg, base, tag=None):
    if tag is not None:
        A.vm_wait(tag)
    A(f"v_mov_b32 v{vT}, s{sNONCE}")
    A(f"v_mov_b32 v{vT+1}, 0")
    A(f"s_add_u32 s{sT0}, s{soff_reg}, {base}")
    A("s_mov_b64 exec, 1")
    A.vm(f"buffer_store_dword v{vT}, v{vT+1}, {WS}, s{sT0} offen sc1", "pub")
    A("s_mov_b64 exec, -1")


_jit_n = [0]
def jitter(A, per_wave=False):
    if not EXP.get("jit"):
        return
    _jit_n[0] += 1
    k = _jit_n[0]
    A(f"s_mul_i32 s96, s2, {(2654435761 * (k + EXP['jit'])) & 0x7fffffff | 1}")
    if per_wave:
        A(f"s_mul_i32 s97, s{sW}, {(40503 * (k + 7)) | 1}")
        A("s_add_u32 s96, s96, s97")
    A("s_lshr_b32 s96, s96, 20")
    A("s_and_b32 s96, s96, 15")
    A("s_cmp_lt_u32 s96, 12")
    A(f"s_cbranch_scc1 L_jit{k}_done")
    A("s_and_b32 s96, s96, 3")
    A("s_add_u32 s96, s96, 1")
    A.label(f"L_jit{k}")
    A("s_sleep 32")
    A("s_sub_u32 s96, s96, 1")
    A("s_cmp_lg_u32 s96, 0")
    A(f"s_cbranch_scc1 L_jit{k}")
    A.label(f"L_jit{k}_done")


class Wave0:
    def __init__(self, A, name):
        self.A, self.name = A, name
    def __enter__(self):
        A = self.A
        A(f"s_cmp_lg_u32 s{sW}, 0")
        A(f"s_cbranch_scc1 L_w0_{self.name}")
        self.saved = (list(A.vm_q), dict(A.vm_counts or {}))
    def __exit__(self, *a):
        A = self.A
        A.vm_q, A.vm_counts = self.saved[0], (self.saved[1] or None)
        A.label(f"L_w0_{self.name}")


def _poll_loads(A, items):
    for (vdst, voff, base, soff_reg) in items:
        if soff_reg is None:
            A(f"s_mov_b32 s{sT0}, {base}")
        else:
            A(f"s_add_u32 s{sT0}, s{soff_reg}, {base}")
        A(f"buffer_load_dword v{vdst}, v{voff}, {WS}, s{sT0} offen sc1")


def poll_issue(A, items, name):
    with Wave0(A, name + "_i"):
        _poll_loads(A, items)
    return A.vm_pos("L")


def poll_check(A, items, pos, name, inv=False, drain=False):
    def compare():
        for i, (vdst, _, _, _) in enumerate(items):
            if i == 0:
                A(f"v_cmp_eq_u32 vcc, s{sNONCE}, v{vdst}")
            else:
                A(f"v_cmp_eq_u32 s[{sT4}:{sT5}], s{sNONCE}, v{vdst}")
                A("s_nop 3")
                A(f"s_and_b64 vcc, vcc, s[{sT4}:{sT5}]")
        A("s_nop 3")
        A("s_cmp_eq_u64 vcc, exec")
    with Wave0(A, name + "_c"):
        A(f"s_waitcnt vmcnt({A.vm_pos('L') - pos})")
        compare()
        A(f"s_cbranch_scc1 L_{name}_ok")
        A(f"s_mov_b32 s{sCNT}, 0")
        A.label(f"L_{name}_spin")
        A("s_sleep 2")
        _poll_loads(A, items)
        A(f"s_add_u32 s{sCNT}, s{sCNT}, 1")
        A(f"s_cmp_ge_u32 s{sCNT}, {SPIN_MAX}")
        A(f"s_cbranch_scc1 L_{name}_ok")
        A("s_waitcnt vmcnt(0)")
        compare()
        A(f"s_cbranch_scc0 L_{name}_spin")
        A.label(f"L_{name}_ok")
        if inv:
            A("buffer_inv sc1")
        if drain:
            A("s_waitcnt vmcnt(0)")


def poll_tight(A, base, soff_reg, voff, name):
    regs = [vFL, vFL2, vT + 2, vT + 3]
    with Wave0(A, name):
        A(f"s_add_u32 s{sT1}, s{soff_reg}, {base}")
        for r in regs:
            A(f"buffer_load_dword v{r}, v{voff}, {WS}, s{sT1} offen sc1")
            A("s_sleep 1")
        A(f"s_mov_b32 s{sCNT}, 0")
        A.label(f"L_{name}_spin")
        for r in regs:
            A("s_waitcnt vmcnt(3)")
            A(f"v_cmp_eq_u32 vcc, s{sNONCE}, v{r}")
            A("s_nop 3")
            A("s_cmp_eq_u64 vcc, exec")
            A(f"s_cbranch_scc1 L_{name}_ok")
            A(f"buffer_load_dword v{r}, v{voff}, {WS}, s{sT1} offen sc1")
        A(f"s_add_u32 s{sCNT}, s{sCNT}, 1")
        A(f"s_cmp_lt_u32 s{sCNT}, {SPIN_MAX}")
        A(f"s_cbranch_scc1 L_{name}_spin")
        A.label(f"L_{name}_ok")


def nonce_issue(A):
    A(f"v_mov_b32 v{vT}, 0")
    A.vm(f"buffer_load_dword v{vFL}, v{vT}, s[{sDBG}:{sDBG+3}], 0 offen sc1", "nonce")


def nonce_check(A, name):
    A.vm_wait("nonce")
    A("s_nop 0")
    A(f"v_readfirstlane_b32 s{sNONCE}, v{vFL}")
    nonce_verify(A, name)


def nonce_verify(A, name):
    A("s_nop 3")
    A(f"s_cmp_lg_u32 s{sNONCE}, 0")
    A(f"s_cbranch_scc1 L_{name}_ok")
    A(f"s_mov_b32 s{sCNT}, 0")
    A.label(f"L_{name}_spin")
    A("s_sleep 1")
    A(f"v_mov_b32 v{vT}, 0")
    A(f"buffer_load_dword v{vFL}, v{vT}, s[{sDBG}:{sDBG+3}], 0 offen sc1")
    A(f"s_add_u32 s{sCNT}, s{sCNT}, 1")
    A(f"s_cmp_ge_u32 s{sCNT}, {SPIN_MAX}")
    A(f"s_cbranch_scc1 L_{name}_ok")
    A("s_waitcnt vmcnt(0)")
    A(f"v_readfirstlane_b32 s{sNONCE}, v{vFL}")
    A("s_nop 3")
    A(f"s_cmp_eq_u32 s{sNONCE}, 0")
    A(f"s_cbranch_scc1 L_{name}_spin")
    A.label(f"L_{name}_ok")


def g_dma(A, b, p):
    kb, st, t = b % 10, b % NST, p & 3
    A(f"s_add_u32 m0, s{sLDS1}, {st*STAGE + (p >> 2)*16384 + 4096*t}")
    if p < 4:
        A(f"s_add_u32 s{sT0}, s{sXOFF}, {kb*128 + t*40960}")
        A.vm(f"buffer_load_dwordx4 v{vXD}, s[{sX}:{sX+3}], s{sT0} offen lds", ("d", b))
    else:
        sw = sWA if b < 10 else sWB
        A(f"s_add_u32 s{sT0}, s{sWOFF}, {(kb*64 + 16*t) * 3840}")
        A.vm(f"buffer_load_dwordx4 v{vWD}, s[{sw}:{sw+3}], s{sT0} offen lds", ("d", b))


def g_acc(mt, nt):
    return G_ACC + 32 * mt + 16 * nt


def g_frag(s_, i):
    return G_F + 16 * (s_ % 3) + 4 * i


def g_read_list(s_):
    b, ks = divmod(s_, 4)
    st = b % NST
    base, off = st >> 1, (st & 1) * STAGE
    out = []
    for mt in range(2):
        out.append(f"ds_read_b128 {v(g_frag(s_, mt),4)}, v{vXR + 3*ks + base} offset:{off + mt*4096}")
    for nt in range(2):
        for q in range(2):
            out.append(f"ds_read_b64_tr_b16 {v(g_frag(s_, 2+nt)+2*q,2)}, v{vWR1 + 3*nt + base} offset:{off + 16384 + ks*4096 + q*1024}")
    return out


def g_reads(A, s_):
    for ins in g_read_list(s_):
        A.lds(ins, ("f", s_))


def g_step(A, s_, last, tr, extra=None):
    b, ks = divmod(s_, 4)
    A.lds_wait(("f", s_))
    nxt = g_read_list(s_ + 2) if s_ + 2 <= last else []
    for i, (mt, nt) in enumerate(((0, 0), (0, 1), (1, 0), (1, 1))):
        d = g_acc(mt, nt)
        c = "0" if (s_ % 40 == 0) else v(d, 16)
        x, w = g_frag(s_, mt), g_frag(s_, 2 + nt)
        a, bb = (w, x) if tr else (x, w)
        A(f"v_mfma_f32_32x32x16_bf16 {v(d,16)}, {v(a,4)}, {v(bb,4)}, {c}")
        for ins in nxt[2*i:2*i+2]:
            A.lds(ins, ("f", s_ + 2))
        if extra and i == 3:
            extra()


def epi_prepare(A, isb, tr, n):
    A(f"s_lshl_b32 s{sTP}, s{sRB}, 7")
    A(f"s_lshl_b32 s{sT0}, s{sMH}, 6")
    A(f"s_add_u32 s{sTP}, s{sTP}, s{sT0}")
    if isb:
        A(f"s_lshr_b32 s{sTP}, s{sTP}, 1")
    if tr:
        A(f"s_cmp_lt_u32 s{sCT}, 5")
        A(f"s_mov_b32 s{sT1}, {QB if isb else QA}")
        A(f"s_cselect_b32 s{sB16}, s{sT1}, {KB if isb else KA}")
        A(f"s_mov_b32 s{sT1}, {hex(f32bits(QSCALE))}")
        A(f"s_cselect_b32 s{sQS}, s{sT1}, 1.0")
        A(f"s_lshl_b32 s{sT0}, s{sCT5}, 1")
        A(f"s_add_u32 s{sT0}, s{sT0}, s{sNH}")
        A(f"s_lshl_b32 s{sT0}, s{sT0}, 18")
        A(f"s_add_u32 s{sB16}, s{sB16}, s{sT0}")
        A(f"s_lshl_b32 s{sT0}, s{sTP}, 4")
        A(f"s_add_u32 s{sB16}, s{sB16}, s{sT0}")
        A(f"v_lshlrev_b32 v{vA16}, 15, v{vHH}")
        if isb:
            A(f"v_and_b32 v{vT}, 1, v{vR}")
            A(f"v_lshl_add_u32 v{vA16}, v{vT}, 14, v{vA16}")
            A(f"v_lshrrev_b32 v{vT}, 1, v{vR}")
            A(f"v_lshl_add_u32 v{vA16}, v{vT}, 4, v{vA16}")
        else:
            A(f"v_lshl_add_u32 v{vA16}, v{vR}, 4, v{vA16}")
        A(f"v_mov_b32 v{vT+2}, s{sQS}")
        A(f"v_mov_b32 v{vT+3}, s{sQS}")
    else:
        A(f"v_mul_u32_u24 v{vT+1}, 320, v{vHH}")
        A(f"s_lshl_b32 s{sT0}, s{sCT5}, 7")
        A(f"s_lshl_b32 s{sT1}, s{sNH}, 6")
        A(f"s_add_u32 s{sT0}, s{sT0}, s{sT1}")
        for nt in range(2):
            A(f"v_add_u32 v{vT+2}, s{sT0}, v{vR}")
            if nt:
                A(f"v_add_u32 v{vT+2}, 32, v{vT+2}")
            A(f"v_mul_u32_u24 v{vT+3}, 3277, v{vT+2}")
            A(f"v_lshrrev_b32 v{vT+3}, 16, v{vT+3}")
            A(f"v_mul_u32_u24 v{vT+4}, 20, v{vT+3}")
            A(f"v_sub_u32 v{vT+4}, v{vT+2}, v{vT+4}")
            A(f"v_mul_u32_u24 v{vT+3}, {VH}, v{vT+3}")
            A(f"v_lshl_add_u32 v{vT+3}, v{vT+4}, 4, v{vT+3}")
            A(f"v_add_u32 v{vA16+nt}, v{vT+3}, v{vT+1}")
        A(f"s_lshr_b32 s{sT0}, s{sTP}, 4")
        A(f"s_mul_i32 s{sT0}, s{sT0}, 640")
        A(f"s_add_u32 s{sB16}, s{sT0}, {VB if isb else VA}")


def epi_group(A, isb, tr, g, tag):
    reg = G_P + 4 * g
    mt, nt, u = g >> 2, (g >> 1) & 1, g & 1
    src = g_acc(mt, nt)
    if tr:
        for jj in range(2):
            a = src + 4 * (2 * u + jj)
            A(f"v_pk_mul_f32 {v(a,2)}, {v(a,2)}, v[{vT+2}:{vT+3}]")
            A(f"v_pk_mul_f32 {v(a+2,2)}, {v(a+2,2)}, v[{vT+2}:{vT+3}]")
            A(f"v_cvt_pk_bf16_f32 v{reg+2*jj}, v{a}, v{a+1}")
            A(f"v_cvt_pk_bf16_f32 v{reg+2*jj+1}, v{a+2}, v{a+3}")
        A(f"s_add_u32 s{sT1}, s{sB16}, {(4*nt + 2*u)*PLANE + mt*(256 if isb else 512)}")
        A("s_nop 0")
        A(f"v_permlane32_swap_b32 v{reg}, v{reg+2}")
        A(f"v_permlane32_swap_b32 v{reg+1}, v{reg+3}")
        A.vm(f"buffer_store_dwordx4 {v(reg,4)}, v{vA16}, {WS}, s{sT1} offen sc1", tag)
    else:
        if isb:
            for j in range(4):
                A(f"v_cvt_pk_bf16_f32 v{reg+j}, v{src+4*j+u}, v{src+4*j+u+2}")
            A(f"s_add_u32 s{sT1}, s{sB16}, {mt*640 + u*64*640}")
        else:
            for p in range(4):
                A(f"v_cvt_pk_bf16_f32 v{reg+p}, v{src+8*u+2*p}, v{src+8*u+2*p+1}")
            A(f"s_add_u32 s{sT1}, s{sB16}, {(2*mt + u)*640}")
        A.vm(f"buffer_store_dwordx4 {v(reg,4)}, v{vA16+nt}, {WS}, s{sT1} offen sc1", tag)


def acquire_items():
    return [(vFL, vF1, F1A, None), (vFL2, vF2, F1A, None)]


def p2_load_items():
    def q01(A):
        A.vm(f"buffer_load_dwordx4 {v(Q01,4)}, v{vQA}, {WS}, s{sQOFF} offen sc1", "q")
    def q2(A):
        A(f"v_mov_b32 v{Q2}, 0")
        A(f"v_mov_b32 v{Q2+1}, 0")
        A("s_mov_b32 exec_hi, 0")
        A.vm(f"buffer_load_dwordx2 {v(Q2,2)}, v{vQA2}, {WS}, s{sQOFF2} offen sc1", "q")
        A("s_mov_b32 exec_hi, -1")
    first = [lambda A, p=p: dma_chunk_piece(A, 0, p) for p in range(3)] + [q01, q2]
    rest = [lambda A, c=c, p=p: dma_chunk_piece(A, c, p) for c in (1, 2) for p in range(3)]
    return first, rest


def gemm(A, tr, n):
    A.vm_q, A.lds_q = [], []
    if EXP.get("twa") == 99:
        touch_a(A, n)
    if EXP.get("twb") == 99:
        touch_wb(A, n)
    if EXP.get("tcb") == 99:
        touch_chip_b(A, n)
    if EXP.get("tlb"):
        epi_prepare(A, False, tr, n)
        A(f"buffer_store_dword v{vL}, v{vA16}, {WS}, s{sB16} offen sc1")
    A("s_barrier")
    A.stamp("blk0 landed", 2)
    g_reads(A, 0)
    g_reads(A, 1)
    for s_ in range(40):
        b, ks = divmod(s_, 4)
        if ks == 2:
            A("s_barrier")
            if EXP.get("stampA") and b in (0, 2, 4, 6):
                A.stamp("", {0: 7, 2: 8, 4: 9, 6: 10}[b])
        if EXP.get("twa") is not None and s_ == EXP["twa"]:
            touch_a(A, n)
        if s_ == EXP.get("twb", 77):
            touch_wb(A, n)
        if EXP.get("tcb") is not None and s_ == EXP["tcb"]:
            touch_chip_b(A, n)
        if EXP.get("tcw") is not None and s_ == EXP["tcw"]:
            touch_chip_wide(A, "b", n)
        if s_ == 22:
            nonce_issue(A)
        if s_ == 30:
            nonce_check(A, f"nonce0{n}")
        g_step(A, s_, 39, tr)
    A.stamp("gemm0", 3)
    jitter(A, True)
    slices = [int(ch) for ch in str(EXP.get("sl", "8"))]
    assert sum(slices) == 8
    PUB, POLL, CHK = EXP.get("pub", 12), EXP.get("poll", 15), 18
    for p in range(8):
        g_dma(A, 13, p)
    epi_prepare(A, False, tr, n)
    A("s_nop 7")
    A("s_nop 3")
    done = 0
    for b in range(10, 19):
        k = slices[b - 10] if b - 10 < len(slices) else 0
        for g in range(done, done + k):
            epi_group(A, False, tr, g, "sa")
        if k and done + k == 8:
            A.stamp("epi0", 4)
        done += k
        if b == CHK:
            poll_check(A, acquire_items(), pos_f1, f"f1{n}")
        if b + 1 >= 13:
            A.vm_wait(("d", b + 1))
        A("s_barrier")
        if EXP.get("stampB") and b in (10, 12, 14, 16):
            A.stamp("", {10: 7, 12: 8, 14: 9, 16: 10}[b])
        if b == PUB - 1:
            A.vm_wait("sa")
        if b + 4 < NB:
            for p in range(8):
                g_dma(A, b + 4, p)
        if b == PUB:
            with Wave0(A, f"puba{n}"):
                publish(A, sF1, F1A)
        if b == POLL:
            pos_f1 = poll_issue(A, acquire_items(), f"f1{n}")
    first, rest = p2_load_items()
    for f in first + rest:
        f(A)
    A.stamp("gemm1", 5)
    A.stamp("epi1", 6)
    A.vm_wait("q", ("c", 0))
    A("s_branch L_attn")
    A.label(f"L_g1{n}")
    A.vm_set([(("d", b), "D") for b in range(3) for _ in range(8)])
    A.lds_q = []
    A.vm_wait(("d", 0))
    A("s_barrier")
    A.stamp("issued", 1)
    A.stamp("blk0 landed", 2)
    for p in range(8):
        g_dma(A, 3, p)
    for b in range(10):
        if b == 0:
            setup_phase1_reads(A)
        if 1 <= b <= 5:
            SETUP_P2[b - 1](A)
        if b == 6 and EXP.get("tlb"):
            if EXP.get("tlb"):
                epi_prepare(A, True, tr, n)
                A(f"buffer_store_dword v{vL}, v{vA16}, {WS}, s{sB16} offen sc1")
                A(f"s_lshl_b32 s{sT0}, s{sQ0}, 4")
                A(f"s_add_u32 s{sT0}, s{sT0}, {OC}")
                A(f"buffer_store_dword v{vL}, v{vOST}, {WS}, s{sT0} offen sc1")
                A(f"s_lshl_b32 s{sT0}, s{sBT}, 4")
                A(f"s_add_u32 s{sT0}, s{sT0}, {OC + 80*32768}")
                A(f"buffer_store_dword v{vL}, v{vOST+1}, {WS}, s{sT0} offen sc1")
        A.vm_wait(("d", b + 1))
        A("s_barrier")
        if EXP.get("stampA") and b in (0, 2, 4, 6):
            A.stamp("", {0: 7, 2: 8, 4: 9, 6: 10}[b])
        if b + 4 <= 12:
            for p in range(8):
                g_dma(A, b + 4, p)
    A.stamp("gemm0", 3)
    A.stamp("epi0", 4)
    g_reads(A, 40)
    g_reads(A, 41)
    pend = []
    for s_ in range(40, 80):
        b, ks = divmod(s_, 4)
        if ks == 2 and b + 1 < NB:
            if b + 1 <= 12:
                A.vm_wait(("d", b + 1))
            A("s_barrier")
            if EXP.get("stampB") and b in (10, 12, 14, 16):
                A.stamp("", {10: 7, 12: 8, 14: 9, 16: 10}[b])
            if b == 18:
                first, rest = p2_load_items()
                pend = first + [nonce_issue]
        def extra():
            for _ in range(2):
                if pend:
                    pend.pop(0)(A)
        g_step(A, s_, 79, tr, extra)
    assert not pend
    A.stamp("gemm1", 5)
    jitter(A, True)
    A.vm_wait("q", "nonce", ("c", 0))
    A("s_nop 0")
    A(f"v_readfirstlane_b32 s{sNONCE}, v{vFL}")
    for f in rest:
        f(A)
    epi_prepare(A, True, tr, n)
    A("s_nop 7")
    A("s_nop 3")
    for g in range(8):
        epi_group(A, True, tr, g, "sb")
    A.stamp("epi1", 6)
    nonce_verify(A, f"nonce1{n}")


def spare(A):
    sWO, sG = sWA, sWB
    A.label("L_spare")
    A.vm_q, A.lds_q = [], []
    jitter(A)
    jitter(A)
    if EXP.get("spb", 0):
        A(f"s_mul_i32 s{sT0}, s{sRB}, 153600")
        A(f"s_lshl_b32 s{sT1}, s{sW}, 10")
        A(f"s_add_u32 s{sT0}, s{sT0}, s{sT1}")
        A(f"s_add_u32 s{sT2}, s{sRB}, 1")
        A(f"s_mul_i32 s{sT2}, s{sT2}, 153600")
        for i in range(19):
            A(f"s_add_u32 s{sT1}, s{sT0}, {8192*i}")
            if i == 18:
                A(f"s_sub_u32 s{sT2}, s{sT2}, 1024")
                A(f"s_min_u32 s{sT1}, s{sT1}, s{sT2}")
            A(f"buffer_load_dwordx4 {v(124 + 4*i, 4)}, v{vL16}, s[{sWB}:{sWB+3}], s{sT1} offen")
    A("s_load_dwordx2 s[4:5], s[0:1], 16")
    A("s_load_dwordx2 s[6:7], s[0:1], 40")
    A(f"s_load_dwordx2 s[{sP}:{sP+1}], s[0:1], 48")
    A("s_waitcnt lgkmcnt(0)")
    A(f"s_cmp_lt_u32 s{sRB}, 8")
    A("s_cbranch_scc1 L_sp_a")
    A("s_mov_b32 s4, s6")
    A("s_mov_b32 s5, s7")
    A.label("L_sp_a")
    srd(A, sWO, 4, WO_BYTES)
    srd(A, sG, sP, 1280)
    A(f"s_and_b32 s{sT1}, s{sRB}, 7")
    A(f"s_mul_i32 s{sT1}, s{sT1}, {80*1280}")
    A(f"s_lshl_b32 s{sLDS1}, s{sW}, 10")
    A(f"s_add_u32 s{sT1}, s{sT1}, s{sLDS1}")
    for t in range(13):
        if t == 12:
            A(f"s_cmp_ge_u32 s{sW}, 4")
            A("s_cbranch_scc1 L_sp_dma_done")
        A(f"s_add_u32 m0, s{sLDS1}, {8192*t}")
        A(f"s_add_u32 s{sT0}, s{sT1}, {8192*t}")
        A(f"buffer_load_dwordx4 v{vL16}, s[{sWO}:{sWO+3}], s{sT0} offen lds")
    A.label("L_sp_dma_done")
    GW = 102400
    A(f"s_cmp_ge_u32 s{sW}, 2")
    A("s_cbranch_scc1 L_sp_gw_done")
    A(f"s_add_u32 m0, s{sLDS1}, {GW}")
    A("s_nop 0")
    A(f"buffer_load_dwordx4 v{vL16}, s[{sG}:{sG+3}], s{sLDS1} offen lds")
    A.label("L_sp_gw_done")
    A.stamp("", 2)
    XG = 28
    A(f"v_lshrrev_b32 v{vT+1}, 2, v{vL}")
    A(f"s_lshl_b32 s{sT0}, s{sW}, 4")
    A(f"v_add_u32 v{vT+1}, s{sT0}, v{vT+1}")
    A(f"v_and_b32 v{vT+2}, 3, v{vL}")
    A(f"v_lshlrev_b32 v{vT+2}, 4, v{vT+2}")
    A(f"v_mul_u32_u24 v{vT+3}, 1280, v{vT+1}")
    A(f"v_add_u32 v{vT+3}, v{vT+3}, v{vT+2}")
    A(f"v_mov_b32 v{vT+4}, 0")
    for i in range(20):
        A(f"buffer_load_dwordx4 {v(XG+4*i,4)}, v{vT+3}, s[{sX}:{sX+3}], s{sXOFF} offen offset:{i*64}")
    A(f"v_add_u32 v{vT+2}, {GW}, v{vT+2}")
    A("s_waitcnt vmcnt(0)")
    A("s_barrier")
    A.lds_q = []
    GG = 108
    for i in range(3):
        A.lds(f"ds_read_b128 {v(GG+4*i,4)}, v{vT+2} offset:{i*64}", ("gw", i))
    for i in range(20):
        if i + 3 < 20:
            A.lds(f"ds_read_b128 {v(GG+4*((i+3) % 4),4)}, v{vT+2} offset:{(i+3)*64}", ("gw", i + 3))
        A.lds_wait(("gw", i))
        for k in range(4):
            A(f"v_dot2_f32_bf16 v{vT+4}, v{XG+4*i+k}, v{GG+4*(i % 4)+k}, v{vT+4}")
    A("s_nop 2")
    A(f"v_add_f32_dpp v{vT+4}, v{vT+4}, v{vT+4} quad_perm:[1,0,3,2] row_mask:0xf bank_mask:0xf")
    A("s_nop 1")
    A(f"v_add_f32_dpp v{vT+4}, v{vT+4}, v{vT+4} quad_perm:[2,3,0,1] row_mask:0xf bank_mask:0xf")
    A(f"v_mul_f32 v{vT+4}, {hex(f32bits(-LOG2E))}, v{vT+4}")
    A(f"v_exp_f32 v{vT+4}, v{vT+4}")
    A("s_nop 0")
    A(f"v_add_f32 v{vT+4}, 1.0, v{vT+4}")
    A(f"v_rcp_f32 v{vT+4}, v{vT+4}")
    A(f"s_lshl_b32 s{sT0}, s{sRB}, 9")
    A(f"s_add_u32 s{sT0}, s{sT0}, {GATE}")
    A(f"v_lshlrev_b32 v{vT+1}, 2, v{vT+1}")
    A("s_mov_b32 exec_lo, 0x11111111")
    A("s_mov_b32 exec_hi, 0x11111111")
    A(f"buffer_store_dword v{vT+4}, v{vT+1}, {WS}, s{sT0} offen sc1")
    A("s_mov_b64 exec, -1")
    A.stamp("", 3)
    A.stamp("", 4)
    A(f"v_bfe_u32 v{vT+1}, v{vL}, 2, 2")
    A(f"v_mul_u32_u24 v{vT+1}, 1280, v{vT+1}")
    A(f"v_lshrrev_b32 v{vT+2}, 4, v{vL}")
    A(f"v_lshl_add_u32 v{vT+1}, v{vT+2}, 5, v{vT+1}")
    A(f"v_and_b32 v{vT+2}, 3, v{vL}")
    A(f"v_lshl_add_u32 v{vT+1}, v{vT+2}, 3, v{vT+1}")
    A(f"s_mul_i32 s{sT3}, s{sRB}, {10*10240}")
    A(f"s_add_u32 s{sT3}, s{sT3}, {WOT}")
    A(f"s_mov_b32 s{sT1}, s{sW}")
    A.label("L_sp_loop")
    A(f"s_mul_hi_u32 s{sT2}, s{sT1}, 0x1999999a")
    A(f"s_mul_i32 s{sT0}, s{sT2}, 10")
    A(f"s_sub_u32 s{sT0}, s{sT1}, s{sT0}")
    A(f"s_mul_hi_u32 s{sCNT}, s{sT2}, 0x33333334")
    A(f"s_mul_i32 s{sT4}, s{sCNT}, 5")
    A(f"s_sub_u32 s{sT4}, s{sT2}, s{sT4}")
    A(f"s_mul_i32 s{sCNT}, s{sCNT}, 40")
    A(f"s_lshl_b32 s{sT5}, s{sT4}, 3")
    A(f"s_cmp_ge_u32 s{sT4}, 2")
    A(f"s_cselect_b32 s{sM}, 4, 0")
    A(f"s_add_u32 s{sT5}, s{sT5}, s{sM}")
    A(f"s_cmp_eq_u32 s{sT4}, 4")
    A(f"s_cselect_b32 s{sT5}, 16, s{sT5}")
    A(f"s_cselect_b32 s{sM}, 20, 4")
    A(f"s_add_u32 s{sT5}, s{sT5}, s{sCNT}")
    A(f"s_mul_i32 s{sT4}, s{sT5}, 1280")
    A(f"s_mul_i32 s{sM}, s{sM}, 1280")
    A(f"s_lshl_b32 s{sT5}, s{sT0}, 7")
    A(f"s_add_u32 s{sT4}, s{sT4}, s{sT5}")
    A(f"v_add_u32 v{vT+3}, s{sT4}, v{vT+1}")
    A(f"v_add_u32 v{vT+4}, s{sM}, v{vT+3}")
    A(f"ds_read_b64_tr_b16 v[{XG}:{XG+1}], v{vT+3}")
    A(f"ds_read_b64_tr_b16 v[{XG+2}:{XG+3}], v{vT+4}")
    A(f"s_mul_i32 s{sT4}, s{sT2}, 10240")
    A(f"s_lshl_b32 s{sT5}, s{sT0}, 10")
    A(f"s_add_u32 s{sT4}, s{sT4}, s{sT5}")
    A(f"s_add_u32 s{sT4}, s{sT4}, s{sT3}")
    A("s_waitcnt lgkmcnt(0)")
    A(f"buffer_store_dwordx4 {v(XG,4)}, v{vL16}, {WS}, s{sT4} offen sc1")
    A(f"s_add_u32 s{sT1}, s{sT1}, 8")
    A(f"s_cmp_lt_u32 s{sT1}, 100")
    A("s_nop 1")
    A("s_cbranch_scc1 L_sp_loop")
    A.stamp("", 5)
    nonce_issue(A)
    nonce_check(A, "noncesp")
    A("s_waitcnt vmcnt(0)")
    A("s_barrier")
    A.vm_q = []
    with Wave0(A, "pubsp"):
        publish(A, sF1, F1A)
    pos = poll_issue(A, acquire_items(), "f1sp")
    poll_check(A, acquire_items(), pos, "f1sp")
    A("s_barrier")
    A.vm_q = []
    first, rest = p2_load_items()
    for f in first + rest:
        f(A)
    A.vm_wait("q", ("c", 0))
    for i in (6,) + ((7, 8, 9, 10) if (EXP.get("stampB") or EXP.get("stampA")) else ()):
        A.stamp("", i)
    A("s_branch L_attn")


def mf16(A, d, a, b, c):
    A(f"v_mfma_f32_32x32x16_bf16 {v(d,16)}, {v(a,4)}, {v(b,4)}, {c}")


def mf8(A, d, a, b, c):
    A(f"v_mfma_f32_32x32x8_bf16 {v(d,16)}, {v(a,2)}, {v(b,2)}, {c}")


def dma_chunk_piece(A, c, t):
    slot = c % NSLOT
    A(f"s_add_u32 m0, s{sLDSW}, {slot*SLOT + 1024*t}")
    A(f"v_mad_u32_u24 v{vCT}, v{vCS+t}, {c}, v{vCB+t}")
    if t == 2:
        A("s_mov_b32 exec_hi, 0xffff")
    A.vm(f"buffer_load_dwordx4 v{vCT}, {WS}, 0 offen sc1 lds", ("c", c))
    if t == 2:
        A("s_mov_b32 exec_hi, -1")


def dma_chunk(A, c):
    for t in range(3):
        dma_chunk_piece(A, c, t)


def dma_w_piece(A, part, st, t):
    off = (WA_OFF if part == 0 else WB_OFF)[st]
    A(f"s_add_u32 m0, s{sLDSW2}, {off + 1024*t}")
    A(f"s_add_u32 s{sT0}, s{sWSRC}, {(part*80 + 16*st)*10240}")
    if t == 2:
        A("s_mov_b32 exec_hi, 0")
    A.vm(f"buffer_load_dwordx4 v{(vW0, vW1, vW2)[t]}, {WS}, s{sT0} offen sc1 lds", ("w", part, st))
    if t == 2:
        A("s_mov_b32 exec_hi, -1")


def rd_k01(A, t):
    if EXP.get('halfrd') and t % 2 == 1:
        return
    c, tt = t // TPC, t % TPC
    A.lds(f"ds_read_b128 {v(K01,4)}, v{vK01 + c % NSLOT} offset:{tt*512}", ("k01", t))


def rd_k2(A, t):
    if EXP.get('halfrd') and t % 2 == 1:
        return
    c, tt = t // TPC, t % TPC
    A.lds(f"ds_read_b64 {v(K2,2)}, v{vK2 + c % NSLOT} offset:{8192 + tt*512}", ("k2", t))


def rd_v(A, t, a):
    if EXP.get('halfrd') and t % 2 == 1:
        return
    c, tt = t // TPC, t % TPC
    A.lds(f"ds_read_b128 {v(V1 if a else V0,4)}, v{vV + c % NSLOT} offset:{(2*tt + a)*640}", ("v", t, a))


def exps(A, sreg, g, preg=P):
    for i in range(4):
        A(f"v_exp_f32 v{sreg+4*g+i}, v{sreg+4*g+i}")
    A(f"v_cvt_pk_bf16_f32 v{preg+2*g}, v{sreg+4*g}, v{sreg+4*g+1}")
    A(f"v_cvt_pk_bf16_f32 v{preg+2*g+1}, v{sreg+4*g+2}, v{sreg+4*g+3}")


def cross_half_max(A, reg, tmp):
    A(f"v_mov_b32 v{tmp}, v{reg}")
    A("s_nop 1")
    A(f"v_permlane32_swap_b32 v{reg}, v{tmp}")
    A("s_nop 1")
    A(f"v_max_f32 v{reg}, v{reg}, v{tmp}")


def max16(A, dst, src, first):
    if first:
        A(f"v_max3_f32 v{dst}, v{src}, v{src+1}, v{src+2}")
        rest = list(range(3, 16))
    else:
        rest = list(range(0, 16))
    while rest:
        if len(rest) >= 2:
            A(f"v_max3_f32 v{dst}, v{dst}, v{src+rest[0]}, v{src+rest[1]}")
            rest = rest[2:]
        else:
            A(f"v_max_f32 v{dst}, v{dst}, v{src+rest[0]}")
            rest = rest[1:]


def row_sum(A, oreg):
    A(f"v_mov_b32 v{vT}, v{oreg+8}")
    A(f"v_mov_b32 v{vT+1}, v{oreg+8}")
    A("s_nop 1")
    A(f"v_permlane32_swap_b32 v{vT}, v{vT+1}")


def finish_tile(A, oreg, gate, one_minus, vaddr, tok_sreg, chunk0, tag):
    A(f"v_rcp_f32 v{vT+2}, v{vT+1}")
    A(f"s_lshl_b32 s{sT0}, s{tok_sreg}, 4")
    A(f"s_add_u32 s{sT0}, s{sT0}, {OC + chunk0*32768}")
    if one_minus:
        A(f"v_sub_f32 v{vT}, 1.0, v{gate}")
        A(f"v_mul_f32 v{vT+2}, v{vT+2}, v{vT}")
    else:
        A(f"v_mul_f32 v{vT+2}, v{vT+2}, v{gate}")
    A(f"v_mov_b32 v{vT+3}, v{vT+2}")
    for i in range(0, 12, 2):
        A(f"v_pk_mul_f32 {v(oreg+i,2)}, {v(oreg+i,2)}, v[{vT+2}:{vT+3}]")
    for i in range(4):
        A(f"v_cvt_pk_bf16_f32 v{oreg+i}, v{oreg+2*i}, v{oreg+2*i+1}")
    A(f"v_cvt_pk_bf16_f32 v{oreg+8}, v{oreg+8}, v{oreg+9}")
    A(f"v_cvt_pk_bf16_f32 v{oreg+9}, v{oreg+10}, v{oreg+11}")
    A(f"v_permlane32_swap_b32 v{oreg}, v{oreg+2}")
    A(f"v_permlane32_swap_b32 v{oreg+1}, v{oreg+3}")
    A.vm(f"buffer_store_dwordx4 {v(oreg,4)}, v{vaddr}, {WS}, s{sT0} offen sc1", tag)
    A("s_mov_b32 exec_hi, 0")
    A.vm(f"buffer_store_dwordx2 {v(oreg+8,2)}, v{vaddr+2}, {WS}, s{sT0} offen sc1", tag)
    A("s_mov_b64 exec, -1")


def oc_load(A, part, k):
    reg = OCA if part == 0 else OCB
    A(f"s_add_u32 s{sT0}, s{sOCB}, {(part*80 + 4*k)*32768}")
    A.vm(f"buffer_load_dwordx4 {v(reg+4*k,4)}, v{vOC}, {WS}, s{sT0} offen sc1", ("oc", part, k))


def outproj(A, part, first, hook=None):
    offs = WA_OFF if part == 0 else WB_OFF
    reg = OCA if part == 0 else OCB
    for kg in range(2):
        if kg == 0:
            A(f"s_cmp_eq_u32 s{sKG}, 1")
            A(f"s_cbranch_scc1 L_op{part}_g1")
            saved = (list(A.vm_q), list(A.lds_q))
        else:
            A.label(f"L_op{part}_g1")
            A.vm_q, A.lds_q = list(saved[0]), list(saved[1])
        seq = [(k, nt) for k in range(10) for nt in range(5)]

        def rd(i):
            k, nt = seq[i]
            kk = 10 * kg + k
            off = offs[kk // 4] + (kk % 4) * 5120 + nt * 256
            areg = (vWR, vT + 5, vT + 6)[off >> 16]
            A.lds(f"ds_read_b128 {v(WF + (i % 8)*4,4)}, v{areg} offset:{off & 0xffff}", ("wf", i))

        LOOK = 5
        for i in range(LOOK):
            rd(i)
        for i, (k, nt) in enumerate(seq):
            if i + LOOK < len(seq):
                rd(i + LOOK)
            if nt == 0:
                A.vm_wait(("oc", part, k))
                if hook:
                    hook(k, kg)
            A.lds_wait(("wf", i))
            c = "0" if (first and k == 0) else v(ACC + 4*nt, 4)
            A(f"v_mfma_f32_16x16x32_bf16 {v(ACC+4*nt,4)}, {v(WF + (i % 8)*4,4)}, {v(reg+4*k,4)}, {c}")
        if kg == 0:
            end0 = (list(A.vm_q), list(A.lds_q))
            A(f"s_branch L_op{part}_done")
    A.label(f"L_op{part}_done")
    assert end0[0] == A.vm_q and end0[1] == A.lds_q


def keypos(kappa):
    return (kappa & 25) | ((kappa >> 1) & 1) << 2 | ((kappa >> 2) & 1) << 1


def band_mask(j, i, prev):
    m = 0
    for l in range(64):
        q, hh = l & 31, l >> 5
        key = keypos(8 * j + 4 * hh + i) - (32 if prev else 0)
        if 0 <= q - key <= 7:
            m |= 1 << l
    return m


def b_consts(A):
    A(f"v_cmp_eq_u32 vcc, 20, v{vR}")
    A(f"v_mov_b32 v{vT+6}, 0")
    A(f"v_mov_b32 v{vT+7}, 0x3f803f80")
    A(f"v_cndmask_b32 v{vT+6}, v{vT+6}, v{vT+7}, vcc")
    for base in (BV0, BV1, BVP):
        for i in range(4):
            A(f"v_mov_b32 v{base+i}, v{vT+6}")
    A(f"v_mov_b32 v{BQ2}, 0")
    A(f"v_mov_b32 v{BQ2+1}, 0")


def b_load_items():
    def mk(instr, pre=None, gate=False):
        def f(A):
            if gate:
                A(f"v_lshlrev_b32 v{vCT}, 1, v{vGA}")
                A.vm(instr.replace(f"v{vGA},", f"v{vCT},"), "b")
                return
            if pre:
                A(pre)
            A.vm(instr, "b")
            if pre:
                A("s_mov_b64 exec, -1")
        return f
    lo20 = f"s_mov_b64 exec, s[{sLO20}:{sLO20+1}]"
    return [
        mk(f"buffer_load_dwordx4 {v(BQ01,4)}, v{vBA}, {WS}, s{sBA} offen sc1"),
        mk(f"buffer_load_dwordx4 {v(BK01,4)}, v{vBA+2}, {WS}, s{sBA+2} offen sc1"),
        mk(f"buffer_load_dwordx2 {v(BK2,2)}, v{vBA+3}, {WS}, s{sBA+3} offen sc1"),
        mk(f"buffer_load_dwordx4 {v(BKP01,4)}, v{vBA+2}, {WS}, s{sBA+5} offen sc1"),
        mk(f"buffer_load_dwordx2 {v(BKP2,2)}, v{vBA+3}, {WS}, s{sBA+6} offen sc1"),
        mk(f"buffer_load_dword v{vGB}, v{vGA}, {WS}, s{sBA+8} offen sc1", None, True),
        mk(f"buffer_load_dwordx2 {v(BQ2,2)}, v{vBA+1}, {WS}, s{sBA+1} offen sc1", "s_mov_b32 exec_hi, 0"),
        mk(f"buffer_load_dwordx4 {v(BV0,4)}, v{vBA+4}, {WS}, s{sBA+4} offen sc1", lo20),
        mk(f"buffer_load_dwordx4 {v(BV1,4)}, v{vBA+4}, {WS}, s{sBA+4} offen offset:640 sc1", lo20),
        mk(f"buffer_load_dwordx4 {v(BVP,4)}, v{vBA+4}, {WS}, s{sBA+7} offen offset:640 sc1", lo20),
    ]


def b_unit(A):
    S0, S1 = BS0, BS1
    jitter(A, True)
    A.vm_wait("b")
    mf16(A, S0, BK01, BQ01, "0")
    mf16(A, S1, BKP01, BQ01, "0")
    mf8(A, S0, BK2, BQ2, v(S0, 16))
    mf8(A, S1, BKP2, BQ2, v(S1, 16))
    A(f"v_mov_b32 v{vT}, {hex(f32bits(-1e30))}")
    A(f"s_cmp_eq_u32 s{sQT}, 0")
    A(f"s_cselect_b32 s{sT3}, 0, -1")
    A("s_nop 7")
    A("s_nop 5")
    for j in range(4):
        for i in range(4):
            m = band_mask(j, i, False)
            A(f"s_mov_b32 s{sM}, {hex(m & 0xffffffff)}")
            A(f"s_mov_b32 s{sM+1}, {hex(m >> 32)}")
            A(f"v_cndmask_b32 v{S0+4*j+i}, v{vT}, v{S0+4*j+i}, s[{sM}:{sM+1}]")
    for i in range(4):
        m = band_mask(3, i, True)
        A(f"s_and_b32 s{sM}, s{sT3}, {hex(m & 0xffffffff)}")
        A(f"s_and_b32 s{sM+1}, s{sT3}, {hex(m >> 32)}")
        A(f"v_cndmask_b32 v{S1+12+i}, v{vT}, v{S1+12+i}, s[{sM}:{sM+1}]")
    max16(A, vT + 1, S0, True)
    A(f"v_max3_f32 v{vT+1}, v{vT+1}, v{S1+12}, v{S1+13}")
    A(f"v_max3_f32 v{vT+1}, v{vT+1}, v{S1+14}, v{S1+15}")
    cross_half_max(A, vT + 1, vT + 2)
    for r in list(range(S0, S0 + 16)) + list(range(S1 + 12, S1 + 16)):
        A(f"v_sub_f32 v{r}, v{r}, v{vT+1}")
    for g in range(4):
        exps(A, S0, g, BP)
    PP = BP + 8
    for i in range(4):
        A(f"v_exp_f32 v{S1+12+i}, v{S1+12+i}")
    A(f"v_mov_b32 v{PP}, 0")
    A(f"v_mov_b32 v{PP+1}, 0")
    A(f"v_cvt_pk_bf16_f32 v{PP+2}, v{S1+12}, v{S1+13}")
    A(f"v_cvt_pk_bf16_f32 v{PP+3}, v{S1+14}, v{S1+15}")
    A("s_nop 1")
    mf16(A, BO, BV0, BP, "0")
    mf16(A, BO, BV1, BP + 4, v(BO, 16))
    mf16(A, BO, BVP, PP, v(BO, 16))
    A("s_nop 7")
    A("s_nop 3")
    row_sum(A, BO)
    A("s_nop 1")
    finish_tile(A, BO, vGB, True, vOST + 1, sBT, 80, "stb")


def fallback(A):
    A.label("L_fallback")
    A("s_waitcnt vmcnt(0) lgkmcnt(0)")
    A(f"v_lshlrev_b32 v{vT+4}, 15, v{vHH}")
    A(f"v_lshl_add_u32 v{vT+4}, v{vR}, 4, v{vT+4}")
    A(f"v_lshlrev_b32 v{vT+5}, 4, v{vR}")
    A(f"v_mul_u32_u24 v{vT+6}, 320, v{vHH}")
    A(f"v_lshl_add_u32 v{vT+6}, v{vR}, 4, v{vT+6}")
    A(f"v_mov_b32 v{vT+7}, {hex(f32bits(-3.0e38))}")

    def tile_addr():
        A(f"s_lshl_b32 s{sT0}, s{sCNT}, 9")
        A(f"s_lshl_b32 s{sT1}, s{sPA}, 15")
        A(f"s_add_u32 s{sT1}, s{sT1}, s{sT0}")
        A(f"s_add_u32 s{sT1}, s{sT1}, {KA}")
        A(f"s_lshl_b32 s{sT2}, s{sP2L}, 15")
        A(f"s_add_u32 s{sT2}, s{sT2}, s{sT0}")
        A(f"s_and_b32 s{sT3}, s{sH}, 1")
        A(f"s_lshl_b32 s{sT3}, s{sT3}, 3")
        A(f"s_add_u32 s{sT2}, s{sT2}, s{sT3}")
        A(f"s_add_u32 s{sT2}, s{sT2}, {KA}")
        A(f"s_mul_i32 s{sT3}, s{sCNT}, 1280")
        A(f"s_add_u32 s{sT3}, s{sT3}, s{sVH}")
        A(f"s_add_u32 s{sT3}, s{sT3}, {VA}")

    A(f"s_mov_b32 s{sCNT}, 0")
    A.label("L_fb1")
    tile_addr()
    A(f"buffer_load_dwordx4 {v(K01,4)}, v{vT+4}, {WS}, s{sT1} offen sc1")
    A(f"buffer_load_dwordx2 {v(K2,2)}, v{vT+5}, {WS}, s{sT2} offen sc1")
    A("s_waitcnt vmcnt(0)")
    mf16(A, SA, K01, Q01, "0")
    mf8(A, SA, K2, Q2, v(SA, 16))
    A("s_nop 7")
    A("s_nop 7")
    max16(A, vT + 7, SA, False)
    A(f"s_add_u32 s{sCNT}, s{sCNT}, 1")
    A(f"s_cmp_lt_u32 s{sCNT}, 64")
    A("s_cbranch_scc1 L_fb1")
    cross_half_max(A, vT + 7, vT)
    for i in range(16):
        A(f"v_sub_f32 v{NEGM+i}, 0, v{vT+7}")
        A(f"v_mov_b32 v{O+i}, 0")
    A(f"v_cmp_eq_u32 vcc, 20, v{vR}")
    A(f"v_mov_b32 v{vT}, 0")
    A(f"v_mov_b32 v{vT+1}, 0x3f803f80")
    A(f"v_cndmask_b32 v{vT}, v{vT}, v{vT+1}, vcc")
    for i in range(4):
        A(f"v_mov_b32 v{V0+i}, v{vT}")
        A(f"v_mov_b32 v{V1+i}, v{vT}")
    A(f"s_mov_b32 s{sCNT}, 0")
    A.label("L_fb2")
    tile_addr()
    A(f"buffer_load_dwordx4 {v(K01,4)}, v{vT+4}, {WS}, s{sT1} offen sc1")
    A(f"buffer_load_dwordx2 {v(K2,2)}, v{vT+5}, {WS}, s{sT2} offen sc1")
    A(f"s_mov_b64 exec, s[{sLO20}:{sLO20+1}]")
    A(f"buffer_load_dwordx4 {v(V0,4)}, v{vT+6}, {WS}, s{sT3} offen sc1")
    A(f"buffer_load_dwordx4 {v(V1,4)}, v{vT+6}, {WS}, s{sT3} offen offset:640 sc1")
    A("s_mov_b64 exec, -1")
    A("s_waitcnt vmcnt(0)")
    mf16(A, SA, K01, Q01, v(NEGM, 16))
    mf8(A, SA, K2, Q2, v(SA, 16))
    A("s_nop 7")
    A("s_nop 7")
    for g in range(4):
        exps(A, SA, g)
    A("s_nop 1")
    mf16(A, O, V0, P, v(O, 16))
    mf16(A, O, V1, P + 4, v(O, 16))
    A(f"s_add_u32 s{sCNT}, s{sCNT}, 1")
    A(f"s_cmp_lt_u32 s{sCNT}, 64")
    A("s_cbranch_scc1 L_fb2")
    A("s_nop 7")
    A("s_nop 7")
    row_sum(A, O)
    A("s_nop 1")
    A("s_branch L_finish")


def touch_chip(A, which):
    A(f"s_and_b32 s{sT1}, s{sW}, 1")
    A(f"s_lshl_b32 s{sT1}, s{sT1}, 6")
    A(f"v_add_u32 v{vT}, s{sT1}, v{vL}")
    A(f"s_cmp_ge_u32 s{sW}, 2")
    A(f"s_cbranch_scc1 L_tc_w{which}")
    if "x" in which:
        A(f"v_min_u32 v{vT}, 79, v{vT}")
        A(f"v_lshlrev_b32 v{vT}, 7, v{vT}")
        A(f"s_mul_i32 s{sT0}, s2, 10240")
        A(f"buffer_load_dword v{G_P+1}, v{vT}, s[{sX}:{sX+3}], s{sT0} offen")
    A(f"s_branch L_tc_done{which}")
    A.label(f"L_tc_w{which}")
    A(f"v_min_u32 v{vT}, 74, v{vT}")
    A(f"v_lshlrev_b32 v{vT}, 7, v{vT}")
    A(f"s_mul_i32 s{sT0}, s2, 9600")
    if "a" in which:
        A(f"buffer_load_dword v{G_P+2}, v{vT}, s[{sWA}:{sWA+3}], s{sT0} offen")
    if "b" in which:
        A(f"buffer_load_dword v{G_P+3}, v{vT}, s[{sWB}:{sWB+3}], s{sT0} offen")
    A.label(f"L_tc_done{which}")


def touch_chip_wide(A, which, tag):
    A(f"s_cmp_ge_u32 s{sW}, 4")
    A(f"s_cbranch_scc1 L_tcw{tag}")
    A(f"s_lshl_b32 s{sT1}, s{sW}, 10")
    A(f"v_add_u32 v{vT}, s{sT1}, v{vL16}")
    k = 0
    for name, srd_, size in (("x", sX, 10240), ("a", sWA, 9600), ("b", sWB, 9600)):
        if name not in which:
            continue
        A(f"s_mul_i32 s{sT0}, s2, {size}")
        for i in range(3):
            A(f"v_add_u32 v{vT+1}, {4096*i}, v{vT}")
            A(f"v_min_u32 v{vT+1}, {size - 16}, v{vT+1}")
            A(f"buffer_load_dwordx4 {v(G_P + 4*k, 4)}, v{vT+1}, s[{srd_}:{srd_+3}], s{sT0} offen")
            k += 1
    A.label(f"L_tcw{tag}")


def touch_chip_b(A, n):
    A(f"s_cmp_ge_u32 s{sW}, 2")
    A(f"s_cbranch_scc1 L_tcb{n}")
    A(f"s_lshl_b32 s{sT1}, s{sW}, 6")
    A(f"v_add_u32 v{vT}, s{sT1}, v{vL}")
    A(f"v_min_u32 v{vT}, 74, v{vT}")
    A(f"v_lshlrev_b32 v{vT}, 7, v{vT}")
    A(f"s_mul_i32 s{sT0}, s2, 9600")
    A(f"buffer_load_dword v{G_P+3}, v{vT}, s[{sWB}:{sWB+3}], s{sT0} offen")
    A.label(f"L_tcb{n}")


def touch_wb(A, n):
    A(f"s_cmp_ge_u32 s{sW}, 3")
    A(f"s_cbranch_scc1 L_twb{n}")
    A(f"s_and_b32 s{sT0}, s{sRB}, 7")
    A(f"s_mul_i32 s{sT0}, s{sT0}, 80")
    A(f"s_lshl_b32 s{sT1}, s{sW}, 5")
    A(f"v_lshrrev_b32 v{vT}, 1, v{vL}")
    A(f"v_add_u32 v{vT}, s{sT1}, v{vT}")
    A(f"v_min_u32 v{vT}, 79, v{vT}")
    A(f"v_add_u32 v{vT}, s{sT0}, v{vT}")
    A(f"v_mul_u32_u24 v{vT}, 3840, v{vT}")
    A(f"v_and_b32 v{vT+1}, 1, v{vL}")
    A(f"v_lshl_add_u32 v{vT}, v{vT+1}, 7, v{vT}")
    A(f"buffer_load_dword v{G_P}, v{vT}, s[{sWB}:{sWB+3}], s{sWOFF} offen")
    A.label(f"L_twb{n}")


def touch_a(A, n):
    A(f"v_mul_u32_u24 v{vT}, 37, v{vL}")
    A(f"v_lshrrev_b32 v{vT}, 8, v{vT}")
    A(f"v_mul_u32_u24 v{vT+1}, 7, v{vT}")
    A(f"v_sub_u32 v{vT+1}, v{vL}, v{vT+1}")
    A(f"v_min_u32 v{vT}, 7, v{vT}")
    A(f"s_and_b32 s{sT0}, s{sCT}, 3")
    A(f"s_lshl_b32 s{sT0}, s{sT0}, 2")
    A(f"s_add_u32 s{sT0}, s{sT0}, s{sW}")
    A(f"s_lshl_b32 s{sT0}, s{sT0}, 3")
    A(f"v_add_u32 v{vT}, s{sT0}, v{vT}")
    A(f"v_mul_u32_u24 v{vT}, 1280, v{vT}")
    A(f"v_lshl_add_u32 v{vT}, v{vT+1}, 7, v{vT}")
    A(f"v_add_u32 v{vT}, 384, v{vT}")
    A(f"buffer_load_dword v{G_P+1}, v{vT}, s[{sX}:{sX+3}], s{sXOFF} offen")
    A(f"s_cmp_ge_u32 s{sW}, 2")
    A(f"s_cbranch_scc1 L_twa{n}")
    A(f"s_and_b32 s{sT0}, s{sRB}, 7")
    A(f"s_mul_i32 s{sT0}, s{sT0}, 56")
    A(f"s_mul_i32 s{sT1}, s{sW}, 28")
    A(f"s_add_u32 s{sT0}, s{sT0}, s{sT1}")
    A(f"s_add_u32 s{sT0}, s{sT0}, 192")
    A(f"v_lshrrev_b32 v{vT}, 1, v{vL}")
    A(f"v_min_u32 v{vT}, 27, v{vT}")
    A(f"v_add_u32 v{vT}, s{sT0}, v{vT}")
    A(f"v_mul_u32_u24 v{vT}, 3840, v{vT}")
    A(f"v_and_b32 v{vT+1}, 1, v{vL}")
    A(f"v_lshl_add_u32 v{vT}, v{vT+1}, 7, v{vT}")
    A(f"buffer_load_dword v{G_P+2}, v{vT}, s[{sWA}:{sWA+3}], s{sWOFF} offen")
    A.label(f"L_twa{n}")


def setup_phase1_reads(A):
    A(f"v_lshrrev_b32 v{vT+2}, 1, v{vR}")
    A(f"v_and_b32 v{vT+2}, 7, v{vT+2}")
    A(f"v_xor_b32 v{vT+2}, v{vT+2}, v{vHH}")
    A(f"v_lshlrev_b32 v{vT+2}, 4, v{vT+2}")
    A(f"s_lshl_b32 s{sT0}, s{sMH}, 6")
    A(f"v_add_u32 v{vT+3}, s{sT0}, v{vR}")
    A(f"v_lshl_add_u32 v{vXR}, v{vT+3}, 7, v{vT+2}")
    for ks in range(1, 4):
        A(f"v_xor_b32 v{vXR+3*ks}, {ks*32}, v{vXR}")
    for ks in range(4):
        A(f"v_add_u32 v{vXR+3*ks+1}, 0x10000, v{vXR+3*ks}")
        A(f"v_add_u32 v{vXR+3*ks+2}, 0x20000, v{vXR+3*ks}")
    A(f"v_bfe_u32 v{vT+2}, v{vL}, 2, 2")
    A(f"v_lshl_add_u32 v{vT+3}, v{vHH}, 3, v{vT+2}")
    A(f"v_lshlrev_b32 v{vT+3}, 8, v{vT+3}")
    A(f"v_bfe_u32 v{vT+4}, v{vL}, 4, 1")
    A(f"v_lshlrev_b32 v{vT+4}, 5, v{vT+4}")
    A(f"v_add_u32 v{vT+3}, v{vT+3}, v{vT+4}")
    A(f"v_and_b32 v{vT+4}, 3, v{vL}")
    A(f"v_lshlrev_b32 v{vT+4}, 3, v{vT+4}")
    A(f"v_add_u32 v{vT+3}, v{vT+3}, v{vT+4}")
    for nt in range(2):
        A(f"s_lshl_b32 s{sT0}, s{sNH}, 1")
        A(f"s_add_u32 s{sT0}, s{sT0}, {nt}")
        A(f"v_xor_b32 v{vT+4}, s{sT0}, v{vT+2}")
        A(f"v_lshl_add_u32 v{vWR1+3*nt}, v{vT+4}, 6, v{vT+3}")
        A(f"v_add_u32 v{vWR1+3*nt+1}, 0x10000, v{vWR1+3*nt}")
        A(f"v_add_u32 v{vWR1+3*nt+2}, 0x20000, v{vWR1+3*nt}")


def setup_p2_0(A):
    A(f"s_lshl_b32 s{sF1}, s{sCT}, 4")
    A(f"s_add_u32 s{sF1}, s{sF1}, s{sRB}")
    A(f"s_lshl_b32 s{sF1}, s{sF1}, 2")
    A(f"s_and_b32 s{sT0}, s2, 7")
    A(f"s_lshl_b32 s{sT0}, s{sT0}, 2")
    A(f"s_lshr_b32 s{sT1}, s2, 3")
    A(f"s_and_b32 s{sT1}, s{sT1}, 3")
    A(f"s_add_u32 s{sH}, s{sT0}, s{sT1}")
    A(f"s_lshr_b32 s{sQB}, s2, 5")
    A(f"s_lshr_b32 s{sT0}, s{sH}, 1")
    A(f"s_mul_i32 s{sT0}, s{sT0}, 5")
    A(f"s_add_u32 s{sP2L}, s{sT0}, 2")
    A(f"s_and_b32 s{sT1}, s{sH}, 1")
    A(f"s_mul_i32 s{sT1}, s{sT1}, 3")
    A(f"s_add_u32 s{sPA}, s{sT0}, s{sT1}")
    A(f"s_mul_i32 s{sVH}, s{sH}, {VH}")
    A(f"s_mul_i32 s{sLDSW}, s{sW}, 2816")
    A(f"s_mul_i32 s{sLDSW2}, s{sW}, 2560")
    A(f"s_lshl_b32 s{sQ0}, s{sQB}, 8")
    A(f"s_lshl_b32 s{sT0}, s{sW}, 5")
    A(f"s_add_u32 s{sQ0}, s{sQ0}, s{sT0}")
    A(f"s_lshl_b32 s{sQT}, s{sQB}, 2")
    A(f"s_lshr_b32 s{sT0}, s{sW}, 1")
    A(f"s_add_u32 s{sQT}, s{sQT}, s{sT0}")
    A(f"s_and_b32 s{sT1}, s{sW}, 1")
    A(f"s_lshl_b32 s{sBT}, s{sQT}, 6")
    A(f"s_add_u32 s{sBT}, s{sBT}, s{sT1}")
    A(f"s_mov_b32 s{sLO20}, 0xfffff")
    A(f"s_mov_b32 s{sLO20+1}, 0xfffff")
    A(f"v_lshlrev_b32 v{vQA}, 15, v{vHH}")
    A(f"v_lshl_add_u32 v{vQA}, v{vR}, 4, v{vQA}")
    A(f"v_lshlrev_b32 v{vQA2}, 4, v{vR}")
    A(f"v_lshlrev_b32 v{vGA}, 2, v{vR}")
    A(f"s_lshl_b32 s{sT0}, s{sQ0}, 4")
    A(f"s_lshl_b32 s{sQOFF}, s{sPA}, 15")
    A(f"s_add_u32 s{sQOFF}, s{sQOFF}, s{sT0}")
    if QA:
        A(f"s_add_u32 s{sQOFF}, s{sQOFF}, {QA}")
    A(f"s_lshl_b32 s{sQOFF2}, s{sP2L}, 15")
    A(f"s_add_u32 s{sQOFF2}, s{sQOFF2}, s{sT0}")
    A(f"s_and_b32 s{sT1}, s{sH}, 1")
    A(f"s_lshl_b32 s{sT1}, s{sT1}, 3")
    A(f"s_add_u32 s{sQOFF2}, s{sQOFF2}, s{sT1}")
    if QA:
        A(f"s_add_u32 s{sQOFF2}, s{sQOFF2}, {QA}")
    A(f"s_lshl_b32 s{sGOFF}, s{sQ0}, 2")
    A(f"s_add_u32 s{sGOFF}, s{sGOFF}, {GATE}")


def setup_p2_1(A):
    A(f"s_and_b32 s{sT1}, s{sH}, 1")
    A(f"s_lshl_b32 s{sT1}, s{sT1}, 3")
    A(f"v_lshlrev_b32 v{vT}, 12, v{vHH}")
    A(f"v_lshl_add_u32 v{vT}, v{vR}, 4, v{vT}")
    A(f"v_lshlrev_b32 v{vT+1}, 4, v{vR}")
    A(f"v_add_u32 v{vT+1}, s{sT1}, v{vT+1}")
    A(f"v_mul_u32_u24 v{vT+2}, 320, v{vHH}")
    A(f"v_lshl_add_u32 v{vT+2}, v{vR}, 4, v{vT+2}")
    A(f"v_add_u32 v{vT+3}, {ONES}, v{vT+2}")
    A(f"v_cmp_gt_u32 vcc, 20, v{vR}")
    for sl in range(NSLOT):
        A(f"v_add_u32 v{vK01+sl}, {sl*SLOT}, v{vT}")
        A(f"v_add_u32 v{vK2+sl}, {sl*SLOT}, v{vT+1}")
        A(f"v_add_u32 v{vT+4}, {sl*SLOT + 12288}, v{vT+2}")
        A(f"v_cndmask_b32 v{vV+sl}, v{vT+3}, v{vT+4}, vcc")
    A(f"s_lshl_b32 s{sT2}, s{sPA}, 15")
    A(f"s_add_u32 s{sT2}, s{sT2}, {KA}")
    A(f"s_lshl_b32 s{sT3}, s{sP2L}, 15")
    A(f"s_add_u32 s{sT3}, s{sT3}, {KA - 8192}")
    A(f"s_add_u32 s{sT4}, s{sVH}, {VA - 12288}")
    for t in range(3):
        A(f"v_add_u32 v{vT}, s{sLDSW}, v{vL16}")
        if t:
            A(f"v_add_u32 v{vT}, {1024*t}, v{vT}")
        A(f"v_lshrrev_b32 v{vT+1}, 12, v{vT}")
        A(f"v_and_b32 v{vT+2}, 4095, v{vT}")
        A(f"v_lshl_add_u32 v{vT+2}, v{vT+1}, 15, v{vT+2}")
        A(f"v_add_u32 v{vT+2}, s{sT2}, v{vT+2}")
        A(f"v_add_u32 v{vT+3}, s{sT3}, v{vT}")
        A(f"v_add_u32 v{vT+4}, s{sT4}, v{vT}")
        A(f"v_cmp_eq_u32 vcc, 2, v{vT+1}")
        A(f"v_mov_b32 v{vT+5}, 4096")
        A(f"v_mov_b32 v{vT+6}, 10240")
        A(f"v_cndmask_b32 v{vT+2}, v{vT+2}, v{vT+3}, vcc")
        A(f"v_cmp_le_u32 vcc, 3, v{vT+1}")
        A("s_nop 1")
        A(f"v_cndmask_b32 v{vCB+t}, v{vT+2}, v{vT+4}, vcc")
        A(f"v_cndmask_b32 v{vCS+t}, v{vT+5}, v{vT+6}, vcc")


def setup_p2_2(A):
    A(f"s_lshr_b32 s{sT0}, s{sH}, 1")
    A(f"s_mul_i32 s{sT0}, s{sT0}, 5")
    A(f"s_and_b32 s{sT1}, s{sH}, 1")
    A(f"s_lshl_b32 s{sT2}, s{sT1}, 1")
    A(f"s_add_u32 s{sT2}, s{sT2}, s{sT0}")
    A(f"v_add_u32 v{vT}, s{sT2}, v{vHH}")
    A(f"v_lshlrev_b32 v{vT}, 15, v{vT}")
    A(f"v_lshl_add_u32 v{vOST}, v{vR}, 4, v{vT}")
    A(f"v_lshl_add_u32 v{vOST+1}, v{vR}, 5, v{vT}")
    A(f"s_add_u32 s{sT0}, s{sT0}, 4")
    A(f"s_lshl_b32 s{sT0}, s{sT0}, 15")
    A(f"s_lshl_b32 s{sT1}, s{sT1}, 3")
    A(f"s_add_u32 s{sT0}, s{sT0}, s{sT1}")
    A(f"v_lshlrev_b32 v{vT}, 4, v{vR}")
    A(f"v_add_u32 v{vOST+2}, s{sT0}, v{vT}")
    A(f"v_lshlrev_b32 v{vT}, 5, v{vR}")
    A(f"v_add_u32 v{vOST+3}, s{sT0}, v{vT}")
    A(f"s_mul_i32 s{sT0}, s{sH}, 20")
    A(f"s_add_u32 s{sT1}, s{sT0}, 19")
    A(f"s_lshr_b32 s{sT0}, s{sT0}, 7")
    A(f"s_lshr_b32 s{sT1}, s{sT1}, 7")
    A(f"v_bfe_u32 v{vT}, v{vL}, 4, 1")
    A(f"s_sub_u32 s{sT2}, s{sT1}, s{sT0}")
    A(f"v_mul_u32_u24 v{vT+1}, s{sT2}, v{vT}")
    A(f"v_add_u32 v{vT+1}, s{sT0}, v{vT+1}")
    A(f"v_mul_u32_u24 v{vT+2}, 5, v{vHH}")
    A(f"v_add_u32 v{vT+2}, 5, v{vT+2}")
    A(f"v_add_u32 v{vT+2}, v{vT+2}, v{vT+1}")
    A(f"v_and_b32 v{vT+3}, 15, v{vL}")
    A(f"v_lshl_add_u32 v{vT+2}, v{vT+2}, 4, v{vT+3}")
    A(f"v_lshlrev_b32 v{vF1}, 2, v{vT+2}")
    A(f"v_add_u32 v{vT+2}, {15*16}, v{vT+3}")
    A(f"v_lshlrev_b32 v{vF4}, 2, v{vT+2}")
    A(f"v_and_b32 v{vT+4}, 1, v{vL}")
    A(f"s_lshl_b32 s{sT3}, s{sQB}, 1")
    A(f"v_add_u32 v{vT+4}, s{sT3}, v{vT+4}")
    A(f"v_lshl_add_u32 v{vT+4}, v{vT+1}, 4, v{vT+4}")
    A(f"v_lshlrev_b32 v{vF2}, 2, v{vT+4}")
    A(f"v_and_b32 v{vT}, 1, v{vL}")
    A(f"v_mul_u32_u24 v{vT+1}, s{sT2}, v{vT}")
    A(f"v_add_u32 v{vT+1}, s{sT0}, v{vT+1}")
    A(f"v_bfe_u32 v{vT+2}, v{vL}, 1, 2")
    A(f"v_min_u32 v{vT+2}, 2, v{vT+2}")
    A(f"v_mul_u32_u24 v{vT+2}, 5, v{vT+2}")
    A(f"v_add_u32 v{vT+1}, v{vT+1}, v{vT+2}")
    A(f"s_lshl_b32 s{sT3}, s{sQB}, 1")
    A(f"v_bfe_u32 v{vT+2}, v{vL}, 3, 2")
    A(f"v_min_u32 v{vT+2}, 2, v{vT+2}")
    A(f"v_add_u32 v{vT+2}, s{sT3}, v{vT+2}")
    A(f"v_max_u32 v{vT+2}, 1, v{vT+2}")
    A(f"v_subrev_u32 v{vT+2}, 1, v{vT+2}")
    A(f"v_lshl_add_u32 v{vT+1}, v{vT+1}, 4, v{vT+2}")
    A(f"v_lshlrev_b32 v{vF3}, 2, v{vT+1}")


def setup_p2_3(A):
    A(f"v_lshlrev_b32 v{vBA}, 15, v{vHH}")
    A(f"v_lshl_add_u32 v{vBA}, v{vR}, 4, v{vBA}")
    A(f"v_lshlrev_b32 v{vBA+1}, 4, v{vR}")
    A(f"v_and_b32 v{vT+2}, 25, v{vR}")
    A(f"v_bfe_u32 v{vT+3}, v{vR}, 1, 1")
    A(f"v_lshl_or_b32 v{vT+2}, v{vT+3}, 2, v{vT+2}")
    A(f"v_bfe_u32 v{vT+3}, v{vR}, 2, 1")
    A(f"v_lshl_or_b32 v{vT+2}, v{vT+3}, 1, v{vT+2}")
    A(f"v_lshlrev_b32 v{vT+3}, 15, v{vHH}")
    A(f"v_lshl_add_u32 v{vBA+2}, v{vT+2}, 4, v{vT+3}")
    A(f"v_lshlrev_b32 v{vBA+3}, 4, v{vT+2}")
    A(f"v_mul_u32_u24 v{vT+4}, 320, v{vHH}")
    A(f"v_lshl_add_u32 v{vBA+4}, v{vR}, 4, v{vT+4}")
    A(f"s_and_b32 s{sT1}, s{sW}, 1")
    A(f"s_lshl_b32 s{sT1}, s{sT1}, 10")
    A(f"s_lshl_b32 s{sT0}, s{sQT}, 5")
    A(f"s_add_u32 s{sT2}, s{sT1}, s{sT0}")
    A(f"s_lshl_b32 s{sT0}, s{sPA}, 15")
    A(f"s_lshl_b32 s{sT1}, s{sP2L}, 15")
    A(f"s_and_b32 s{sT3}, s{sH}, 1")
    A(f"s_lshl_b32 s{sT3}, s{sT3}, 3")
    A(f"s_add_u32 s{sT1}, s{sT1}, s{sT3}")
    for prev in range(2):
        if prev:
            A(f"s_cmp_eq_u32 s{sQT}, 0")
            A(f"s_cselect_b32 s{sT3}, 0, 32")
            A(f"s_sub_u32 s{sT2}, s{sT2}, s{sT3}")
        A(f"s_lshl_b32 s{sT3}, s{sT2}, 4")
        if not prev:
            A(f"s_add_u32 s{sBA}, s{sT3}, s{sT0}")
            A(f"s_add_u32 s{sBA}, s{sBA}, {QB}")
            A(f"s_add_u32 s{sBA+1}, s{sT3}, s{sT1}")
            A(f"s_add_u32 s{sBA+1}, s{sBA+1}, {QB}")
        o = sBA + 2 + 3 * prev
        A(f"s_add_u32 s{o}, s{sT3}, s{sT0}")
        A(f"s_add_u32 s{o}, s{o}, {KB}")
        A(f"s_add_u32 s{o+1}, s{sT3}, s{sT1}")
        A(f"s_add_u32 s{o+1}, s{o+1}, {KB}")
        A(f"s_lshr_b32 s{sT3}, s{sT2}, 4")
        A(f"s_mul_i32 s{sT3}, s{sT3}, 640")
        A(f"s_add_u32 s{o+2}, s{sT3}, s{sVH}")
        A(f"s_add_u32 s{o+2}, s{o+2}, {VB}")
    A(f"s_lshl_b32 s{sBA+8}, s{sBT}, 2")
    A(f"s_add_u32 s{sBA+8}, s{sBA+8}, {GATE}")


def setup_p2_4(A):
    sRT, sCO, sTG = sT1, sT2, sT3
    A(f"s_lshr_b32 s{sRT}, s{sH}, 3")
    A(f"s_lshl_b32 s{sT0}, s{sQB}, 2")
    A(f"s_add_u32 s{sRT}, s{sRT}, s{sT0}")
    A(f"s_and_b32 s{sCO}, s{sH}, 7")
    A(f"s_and_b32 s{sTG}, s{sW}, 3")
    A(f"s_lshr_b32 s{sKG}, s{sW}, 2")
    A(f"s_lshl_b32 s{sFLG}, s{sRT}, 8")
    A(f"s_mul_i32 s{sWSRC}, s{sW}, 20480")
    A(f"s_mul_i32 s{sT0}, s{sCO}, 1280")
    A(f"s_add_u32 s{sWSRC}, s{sWSRC}, s{sT0}")
    A(f"s_add_u32 s{sWSRC}, s{sWSRC}, {WOT}")
    A(f"s_lshl_b32 s{sRT}, s{sRT}, 6")
    A(f"s_lshl_b32 s{sTG}, s{sTG}, 4")
    A(f"s_add_u32 s{sRT}, s{sRT}, s{sTG}")
    A(f"s_mul_i32 s{sOUTO}, s{sRT}, 1280")
    A(f"s_mul_i32 s{sT0}, s{sCO}, 160")
    A(f"s_add_u32 s{sOUTO}, s{sOUTO}, s{sT0}")
    A(f"s_lshl_b32 s{sOCB}, s{sRT}, 4")
    A(f"s_mul_i32 s{sT0}, s{sKG}, {40*32768}")
    A(f"s_add_u32 s{sOCB}, s{sOCB}, s{sT0}")
    A(f"s_add_u32 s{sOCB}, s{sOCB}, {OC}")
    A(f"s_lshl_b32 s{sPUB}, s{sQT}, 6")
    A(f"s_lshl_b32 s{sT0}, s{sH}, 1")
    A(f"s_add_u32 s{sPUB}, s{sPUB}, s{sT0}")
    A(f"s_and_b32 s{sT0}, s{sW}, 1")
    A(f"s_add_u32 s{sPUB}, s{sPUB}, s{sT0}")
    A(f"s_lshl_b32 s{sPUB}, s{sPUB}, 2")
    A(f"v_lshlrev_b32 v{vFA}, 2, v{vL}")
    A(f"v_mov_b32 v{vW0}, v{vL16}")
    A(f"v_add_u32 v{vT}, 1024, v{vL16}")
    A(f"v_add_u32 v{vT+1}, {10240 - 256}, v{vL16}")
    A(f"v_cmp_gt_u32 vcc, 16, v{vL}")
    A(f"v_add_u32 v{vW2}, {10240 + 768}, v{vL16}")
    A(f"v_lshrrev_b32 v{vT+2}, 4, v{vL}")
    A(f"v_cndmask_b32 v{vW1}, v{vT+1}, v{vT}, vcc")
    A(f"v_and_b32 v{vT+3}, 15, v{vL}")
    A(f"v_lshlrev_b32 v{vT+4}, 15, v{vT+2}")
    A(f"v_lshl_add_u32 v{vOC}, v{vT+3}, 4, v{vT+4}")
    A(f"v_mul_u32_u24 v{vT+4}, 1280, v{vT+2}")
    A(f"v_lshl_add_u32 v{vWR}, v{vT+3}, 4, v{vT+4}")
    A(f"v_mul_u32_u24 v{vT+4}, 1280, v{vT+3}")
    A(f"v_lshl_add_u32 v{vST}, v{vT+2}, 3, v{vT+4}")


SETUP_P2 = [setup_p2_0, setup_p2_1, setup_p2_2, setup_p2_3, setup_p2_4]


def setup_phase2(A):
    for f in SETUP_P2:
        f(A)


def pattern_fill(A):
    for r in range(2):
        A(f"v_add_u32 v{vT}, {512*r}, v0")
        A(f"v_mul_u32_u24 v{vT+1}, 3277, v{vT}")
        A(f"v_lshrrev_b32 v{vT+1}, 16, v{vT+1}")
        A(f"v_mul_u32_u24 v{vT+1}, 20, v{vT+1}")
        A(f"v_cmp_eq_u32 vcc, v{vT+1}, v{vT}")
        A(f"v_mov_b32 v{vT+4}, 0")
        A(f"v_mov_b32 v{vT+5}, 0x3f803f80")
        A(f"v_cndmask_b32 v{vT+4}, v{vT+4}, v{vT+5}, vcc")
        for i in range(1, 4):
            A(f"v_mov_b32 v{vT+4+i}, v{vT+4}")
        if r == 1:
            A(f"v_cmp_gt_u32 vcc, {PAT_UNITS}, v{vT}")
        A(f"v_lshlrev_b32 v{vT}, 4, v{vT}")
        A(f"v_add_u32 v{vT}, {ONES}, v{vT}")
        if r == 1:
            A("s_and_saveexec_b64 s[%d:%d], vcc" % (sT4, sT5))
            A("s_cbranch_execz L_pat_done")
        A.lds(f"ds_write_b128 v{vT}, {v(vT+4,4)}", "pat")
    A.label("L_pat_done")
    A("s_mov_b64 exec, -1")


def gen(prof=False):
    A = Asm()
    A.prof = prof
    A.PROF_V = 239
    kernel_header(A, NAME)
    A("s_cmp_ge_u32 s2, 256")
    A("s_cbranch_scc1 L_end")
    A.stamp("start")
    if EXP.get("jit"):
        A(f"s_mov_b32 s{sW}, 0")
        jitter(A)
    A("s_load_dwordx4 s[4:7], s[0:1], 0")
    A(f"s_load_dwordx2 s[{sP}:{sP+1}], s[0:1], 32")
    A(f"s_load_dwordx2 s[{sP+2}:{sP+3}], s[0:1], 72")
    A(f"s_load_dwordx4 s[{sDBG}:{sDBG+3}], s[0:1], 56")
    A(f"v_lshrrev_b32 v{vT}, 6, v0")
    A(f"v_and_b32 v{vL}, 63, v0")
    A(f"v_readfirstlane_b32 s{sW}, v{vT}")
    A(f"v_and_b32 v{vR}, 31, v{vL}")
    A(f"v_lshrrev_b32 v{vHH}, 5, v{vL}")
    A(f"v_lshlrev_b32 v{vL16}, 4, v{vL}")
    A(f"s_and_b32 s{sT0}, s2, 7")
    A(f"s_lshr_b32 s{sT1}, s2, 3")
    A(f"s_and_b32 s{sRB}, s{sT0}, 1")
    A(f"s_lshl_b32 s{sRB}, s{sRB}, 3")
    A(f"s_and_b32 s{sT2}, s{sT1}, 7")
    A(f"s_add_u32 s{sRB}, s{sRB}, s{sT2}")
    A(f"s_lshr_b32 s{sCT}, s{sT0}, 1")
    A(f"s_lshl_b32 s{sCT}, s{sCT}, 2")
    A(f"s_lshr_b32 s{sT2}, s{sT1}, 3")
    A(f"s_add_u32 s{sCT}, s{sCT}, s{sT2}")
    A(f"s_and_b32 s{sGI}, s{sW}, 3")
    A(f"s_and_b32 s{sMH}, s{sGI}, 1")
    A(f"s_lshr_b32 s{sNH}, s{sGI}, 1")
    A(f"s_mul_i32 s{sXOFF}, s{sRB}, {128*1280}")
    A(f"s_lshl_b32 s{sWOFF}, s{sCT}, 8")
    A(f"s_lshl_b32 s{sLDS1}, s{sGI}, 10")
    A(f"s_mul_hi_u32 s{sT0}, s{sCT}, 0x33333334")
    A(f"s_mul_i32 s{sT0}, s{sT0}, 5")
    A(f"s_sub_u32 s{sCT5}, s{sCT}, s{sT0}")
    A(f"v_lshrrev_b32 v{vT}, 3, v{vL}")
    A(f"s_lshl_b32 s{sT0}, s{sGI}, 3")
    A(f"v_add_u32 v{vT}, s{sT0}, v{vT}")
    A(f"v_lshrrev_b32 v{vT+1}, 1, v{vT}")
    A(f"v_xor_b32 v{vT+1}, v{vT+1}, v{vL}")
    A(f"v_and_b32 v{vT+1}, 7, v{vT+1}")
    A(f"v_lshlrev_b32 v{vT+1}, 4, v{vT+1}")
    A(f"v_mul_u32_u24 v{vT+2}, 1280, v{vT}")
    A(f"v_add_u32 v{vXD}, v{vT+2}, v{vT+1}")
    A(f"v_lshrrev_b32 v{vT}, 4, v{vL}")
    A(f"v_lshlrev_b32 v{vT+1}, 2, v{vT}")
    A(f"v_xor_b32 v{vT+1}, v{vT+1}, v{vL}")
    A(f"v_and_b32 v{vT+1}, 15, v{vT+1}")
    A(f"v_lshlrev_b32 v{vT+1}, 4, v{vT+1}")
    A(f"s_lshl_b32 s{sT0}, s{sGI}, 2")
    A(f"v_add_u32 v{vT}, s{sT0}, v{vT}")
    A(f"v_mul_u32_u24 v{vT}, 3840, v{vT}")
    A(f"v_add_u32 v{vWD}, v{vT}, v{vT+1}")
    if EXP.get("stampP"):
        A("s_memtime s[96:97]")
        A("s_memrealtime s[98:99]")
    A("s_waitcnt lgkmcnt(0)")
    if EXP.get("stampP"):
        A(f"v_writelane_b32 v{A.PROF_V}, s96, 14")
        A(f"v_writelane_b32 v{A.PROF_V}, s98, 30")
        A.stamp("", 15)
    srd(A, sX, 4, X_BYTES)
    srd(A, sWA, 6, W_BYTES)
    srd(A, sWB, sP, W_BYTES)
    srd(A, sWS, sP + 2, WS_USED)
    srd(A, sOUT, sDBG, OUT_BYTES)
    A(f"s_mov_b32 s{sDBG}, s{sDBG+2}")
    A(f"s_and_b32 s{sDBG+1}, s{sDBG+3}, 0xffff")
    A(f"s_mov_b32 s{sDBG+2}, 256")
    A(f"s_mov_b32 s{sDBG+3}, 0x20000")
    A(f"s_cmp_eq_u32 s{sCT}, 15")
    A("s_cbranch_scc1 L_nodma")
    A(f"s_cmp_lt_u32 s{sW}, 4")
    A("s_cbranch_scc1 L_nodma")
    for b in range(3):
        for p in range(8):
            g_dma(A, b, p)
    A(f"s_cmp_ge_u32 s{sCT}, 10")
    A("s_cbranch_scc1 L_g1n")
    A("s_branch L_g1t")
    A.label("L_nodma")
    if EXP.get("tchip", 1) in (1, 2, 3):
        touch_chip(A, {1: "xab", 2: "xa", 3: "b"}[EXP.get("tchip", 1)])
    if EXP.get("tchip") == 6:
        touch_chip_wide(A, "xa", "e")
    if EXP.get("tchip") == 7:
        touch_chip_wide(A, "ax", "e")
    A(f"s_or_b32 s{sT0}, s2, s{sW}")
    A(f"s_cmp_lg_u32 s{sT0}, 0")
    A("s_cbranch_scc1 L_nonce_done")
    A(f"s_memrealtime s[{sT4}:{sT5}]")
    A("s_waitcnt lgkmcnt(0)")
    A(f"s_or_b32 s{sT0}, s{sT4}, 1")
    A(f"v_mov_b32 v{vT}, s{sT0}")
    A(f"v_mov_b32 v{vT+1}, 0")
    A("s_mov_b64 exec, 1")
    A(f"buffer_store_dword v{vT}, v{vT+1}, s[{sDBG}:{sDBG+3}], 0 offen sc1")
    A("s_mov_b64 exec, -1")
    A.label("L_nonce_done")
    if EXP.get("cpf"):
        A(f"s_lshr_b32 s{sT1}, s2, 3")
        A(f"s_cmp_ge_u32 s{sT1}, 8")
        A("s_cbranch_scc1 L_cpf_done")
        A(f"s_cmp_lg_u32 s{sW}, {EXP['cpf'] - 1}")
        A("s_cbranch_scc1 L_cpf_done")
        A(f"s_getpc_b64 s[{sT4}:{sT5}]")
        A.label("L_cpf_pc")
        A(f"s_sub_u32 s{sT4}, s{sT4}, L_cpf_pc - {NAME}")
        A(f"s_subb_u32 s{sT5}, s{sT5}, 0")
        A(f"s_lshl_b32 s{sT1}, s{sT1}, 13")
        A(f"v_lshlrev_b32 v{vT}, 7, v{vL}")
        A(f"v_add_u32 v{vT}, s{sT1}, v{vT}")
        A(f"v_min_u32 v{vT}, L_end - {NAME}, v{vT}")
        A(f"global_load_dword v{G_P}, v{vT}, s[{sT4}:{sT5}]")
        A.label("L_cpf_done")
    if EXP.get("tchip") in (5, 9):
        setup_phase1_reads(A)
        touch_chip(A, "xa" if EXP["tchip"] == 5 else "xab")
        setup_phase2(A)
    else:
        setup_phase1_reads(A)
        setup_phase2(A)
    if EXP.get("tchip") == 4:
        touch_chip(A, "xa")
    if EXP.get("tchip") == 8:
        touch_chip(A, "xab")
    A.stamp("issued")
    A(f"s_cmp_eq_u32 s{sCT}, 15")
    A("s_cbranch_scc1 L_spare")
    A(f"s_cmp_ge_u32 s{sCT}, 10")
    A("s_cbranch_scc1 L_vtile")
    if prof:
        A.stamps += ["blk0 landed", "gemm0", "epi0", "gemm1", "epi1"]
        if EXP.get("stampB"):
            A.stamps += ["B10", "B12", "B14", "B16"]
        if EXP.get("stampA"):
            A.stamps += ["B0", "B2", "B4", "B6"]
    gemm(A, True, "t")
    A("s_branch L_attn")
    A.label("L_vtile")
    gemm(A, False, "n")
    A.label("L_attn")
    A.vm_q, A.lds_q = [], []
    jitter(A)
    A("s_barrier")
    A.stamp("attn start")
    if EXP.get("prio") == 1:
        A(f"s_cmp_lt_u32 s{sW}, 4")
        A("s_cbranch_scc1 L_prio_done")
        A("s_setprio 1")
        A.label("L_prio_done")
    rd_k01(A, 0)
    rd_k2(A, 0)
    dma_chunk(A, 3)
    pattern_fill(A)
    b_consts(A)
    A.lds_wait_all()
    mf16(A, SA, K01, Q01, "0")
    mf8(A, SA, K2, Q2, v(SA, 16))
    A("s_nop 7")
    A("s_nop 5")
    max16(A, vT, SA, True)
    cross_half_max(A, vT, vT + 1)
    for i in range(16):
        A(f"v_sub_f32 v{NEGM+i}, 0, v{vT}")
    A("s_nop 1")
    mf16(A, SA, K01, Q01, v(NEGM, 16))
    mf8(A, SA, K2, Q2, v(SA, 16))
    A("s_barrier")
    rd_k01(A, 1)
    rd_k2(A, 1)
    rd_v(A, 0, 0)
    A("s_nop 7")
    A("s_nop 3")
    NT = 64
    sched = {}
    def at(t, half, fn):
        sched.setdefault((t, half), []).append(fn)
    fb_items = [(vFL, vF3, F1B, None), (vFL2, vF4, F1A, None)]
    pos = {}
    def issue(name, items):
        def f(A):
            pos[name] = poll_issue(A, items, name)
        return f
    at(13, 0, issue("f1b", fb_items))
    pre_barrier = {22: lambda A: poll_check(A, fb_items, pos["f1b"], "f1b"),
                   54: lambda A: poll_check(A, fo_items, pos["fb"], "fb")}
    at(22, 1, lambda A: A.vm(f"buffer_load_dword v{vG}, v{vGA}, {WS}, s{sGOFF} offen sc1", "g"))
    for i, f in enumerate(b_load_items()):
        at(23 + i // 2, i % 2, f)
    at(31, 0, b_unit)
    at(38, 1, lambda A: publish(A, sPUB, FLAGB, "stb"))
    fo_items = [(vFL, vFA, FLAGB, sFLG)]
    at(48, 0, issue("fb", fo_items))
    for k in range(10):
        at(55 + k // 2, k % 2, lambda A, k=k: oc_load(A, 1, k))
    for st in range(3):
        for p in range(3):
            i = 3 * st + p
            at(42 + i // 2, i % 2, lambda A, st=st, p=p: dma_w_piece(A, 1, st, p))
    for st in range(3, 5):
        for p in range(3):
            i = 3 * (st - 3) + p
            at(57 + i // 2, 1 - i % 2, lambda A, st=st, p=p: dma_w_piece(A, 1, st, p))
    for c in range(2, NCH - 2):
        t0 = 32 if c == 4 else TPC * c - 1
        for p in range(3):
            at(t0 + (p + 1) // 2, (p + 1) % 2, lambda A, c=c, p=p: dma_chunk_piece(A, c + 2, p))
    for t in range(NT):
        cur = SA if t % 2 == 0 else SB
        nxt = SB if t % 2 == 0 else SA
        if (t == 32 and not (EXP.get("stampB") or EXP.get("stampA"))) or (EXP.get("stampB") and t in (21, 24)):
            A.stamp("t%d" % t)
        if t % TPC == TPC - 2 and t + 2 < NT:
            c = (t + 2) // TPC
            if c == 1:
                A.vm_wait_all()
            if c == 3:
                A.vm_wait(("c", 4))
            A.vm_wait(("c", c))
            if t in pre_barrier:
                pre_barrier[t](A)
            A("s_barrier")
            if c == 1:
                with Wave0(A, "pubb"):
                    publish(A, sF1, F1B)
        if EXP.get("prio") == 2 and t == 55:
            A(f"s_cmp_lt_u32 s{sW}, 4")
            A("s_cbranch_scc1 L_prio_done")
            A("s_setprio 1")
            A.label("L_prio_done")
        if EXP.get("prio") == 3 and t % 8 == 7:
            A(f"s_lshr_b32 s{sT0}, s{sW}, 2")
            A(f"s_cmp_eq_u32 s{sT0}, {(t // 8) % 2}")
            A(f"s_cbranch_scc1 L_prio_a{t}")
            A("s_setprio 0")
            A(f"s_branch L_prio_b{t}")
            A.label(f"L_prio_a{t}")
            A("s_setprio 1")
            A.label(f"L_prio_b{t}")
        if EXP.get("xbar") and t == EXP["xbar"]:
            A("s_barrier")
        if t == 63:
            A.vm_wait(("w", 1, 4))
        for f in sched.get((t, 0), []):
            f(A)
        if t + 1 < NT:
            A.lds_wait(("k01", t + 1))
            mf16(A, nxt, K01, Q01, "0" if EXP.get("m0") else v(NEGM, 16))
            if t + 2 < NT:
                rd_k01(A, t + 2)
        exps(A, cur, 0)
        if t > 0:
            A.lds_wait(("v", t - 1, 1))
            mf16(A, O, V1, P + 4, v(O, 16))
        rd_v(A, t, 1)
        exps(A, cur, 1)
        for f in sched.get((t, 1), []):
            f(A)
        if t + 1 < NT:
            A.lds_wait(("k2", t + 1))
            mf8(A, nxt, K2, Q2, v(nxt, 16))
            if t + 2 < NT:
                rd_k2(A, t + 2)
        exps(A, cur, 2)
        A.lds_wait(("v", t, 0))
        mf16(A, O, V0, P, "0" if t == 0 else v(O, 16))
        if t + 1 < NT:
            rd_v(A, t + 1, 0)
        exps(A, cur, 3)
    A.lds_wait(("v", NT - 1, 1))
    A("s_nop 1")
    mf16(A, O, V1, P + 4, v(O, 16))
    A(f"v_add_u32 v{vT+5}, 0x10000, v{vWR}")
    A(f"v_add_u32 v{vT+6}, 0x20000, v{vWR}")
    A(f"v_mov_b32 v{vT+3}, {hex(f32bits(BIG))}")
    A("s_nop 7")
    A("s_nop 3")
    A.stamp("loop end")
    row_sum(A, O)
    A(f"v_mul_f32 v{vT+2}, 0, v{O}")
    for i in range(1, 12):
        A(f"v_fma_f32 v{vT+2}, v{O+i}, 0, v{vT+2}")
    A(f"v_add_f32 v{vT+2}, v{vT+2}, v{vT+1}")
    A(f"v_cmp_lt_f32 vcc, v{vT+2}, v{vT+3}")
    A("s_nop 4")
    A("s_cmp_eq_u64 vcc, exec")
    A("s_cbranch_scc0 L_fallback")
    A.label("L_finish")
    jitter(A, True)
    A.vm_wait("g")
    finish_tile(A, O, vG, False, vOST, sQ0, 0, "sta")
    A(f"v_add_u32 v{vT+5}, 0x10000, v{vWR}")
    A(f"v_add_u32 v{vT+6}, 0x20000, v{vWR}")
    A("s_barrier")
    A.stamp("ring free") if not (EXP.get("stampB") or EXP.get("stampA")) else None
    wa = [(st, p) for st in range(2) for p in range(3)]

    def hook_b(k, kg):
        pk = EXP.get("pubk", 2)
        if k == pk:
            publish(A, sPUB, FLAGA, "sta")
        if pk <= k < pk + 6:
            st, p = wa[k - pk]
            dma_w_piece(A, 0, st, p)
    outproj(A, 1, True, hook_b)
    A.stamp("b part") if not (EXP.get("stampB") or EXP.get("stampA")) else None
    A("s_barrier")
    for st in range(2, 5):
        for p in range(3):
            dma_w_piece(A, 0, st, p)
    if EXP.get("notight"):
        fa_items = [(vFL, vFA, FLAGA, sFLG)]
        pfa = poll_issue(A, fa_items, "fa")
        poll_check(A, fa_items, pfa, "fa")
    else:
        poll_tight(A, FLAGA, sFLG, vFA, "fa")
    A.vm_wait(("w", 0, 4))
    A("s_barrier")
    A.stamp("flags a") if not (EXP.get("stampB") or EXP.get("stampA")) else None
    for k in range(10):
        oc_load(A, 0, k)
    outproj(A, 0, False)
    A.stamp("a part") if not (EXP.get("stampB") or EXP.get("stampA")) else None
    A(f"s_and_b32 s{sT0}, s{sW}, 3")
    A(f"s_mul_i32 s{sT0}, s{sT0}, 5120")
    A(f"v_add_u32 v{vT}, s{sT0}, v{vL16}")
    A(f"s_cmp_eq_u32 s{sKG}, 0")
    A("s_cbranch_scc1 L_red_a")

    def finish_out(tiles):
        A.lds_q = []
        for nt in tiles:
            A.lds(f"ds_read_b128 {v(WF+4*nt,4)}, v{vT} offset:{nt*1024}", ("r", nt))
        for nt in tiles:
            A.lds_wait(("r", nt))
            for i in range(4):
                A(f"v_add_f32 v{ACC+4*nt+i}, v{ACC+4*nt+i}, v{WF+4*nt+i}")
            A(f"v_cvt_pk_bf16_f32 v{ACC+4*nt}, v{ACC+4*nt}, v{ACC+4*nt+1}")
            A(f"v_cvt_pk_bf16_f32 v{ACC+4*nt+1}, v{ACC+4*nt+2}, v{ACC+4*nt+3}")
            A.vm(f"buffer_store_dwordx2 {v(ACC+4*nt,2)}, v{vST}, s[{sOUT}:{sOUT+3}], s{sOUTO} offen offset:{nt*32}{EXP.get('outst','')}", "st")

    A("s_nop 5")
    for nt in range(3):
        A(f"ds_write_b128 v{vT}, {v(ACC+4*nt,4)} offset:{nt*1024}")
    A("s_waitcnt lgkmcnt(0)")
    A("s_barrier")
    finish_out((3, 4))
    if prof:
        A.stamp("", len(A.stamps))
        A.stamp_flush(0, sWS, PROF, vT + 2)
    A("s_endpgm")
    A.label("L_red_a")
    A("s_nop 5")
    for nt in (3, 4):
        A(f"ds_write_b128 v{vT}, {v(ACC+4*nt,4)} offset:{nt*1024}")
    A("s_waitcnt lgkmcnt(0)")
    A("s_barrier")
    finish_out((0, 1, 2))
    A.stamp("end")
    if prof and EXP.get("dbg"):
        with Wave0(A, "dbgout"):
            A(f"v_subrev_u32 v{vT}, s{sNONCE}, v{A.PROF_V}")
            A(f"v_subrev_u32 v{vT+1}, 16, v{vL}")
            A(f"v_lshlrev_b32 v{vT+1}, 2, v{vT+1}")
            if EXP["dbg"] == 2:
                A(f"v_sub_u32 v{vT}, 0x100000, v{vT}")
            A("s_mov_b32 exec_lo, 0xfffe0000")
            A("s_mov_b32 exec_hi, 0")
            A(f"buffer_atomic_umax v{vT}, v{vT+1}, s[{sDBG}:{sDBG+3}], 0 offen")
            A("s_mov_b64 exec, -1")
    A.stamp_flush(0, sWS, PROF, vT)
    A("s_endpgm")
    fallback(A)
    spare(A)
    A.label("L_end")
    A("s_endpgm")
    kernel_footer(A, NAME, NV, 100 if EXP.get("jit") else 96)
    gen.stamps = getattr(A, "stamps", [])
    if prof and EXP.get("stampP"):
        assert len(gen.stamps) == 14, len(gen.stamps)
        gen.stamps = gen.stamps + ["pre-kernarg", "kernarg"]
    return A.text()

if __name__ == "__main__":
    print(gen())
```

```python
from asmlib import *
from layout2 import *

NAME = "gated_mix__softmax_full_mha__sliding_local_dilated__prompt_kernel"
EXP = {}
STAGE, NST, NB = 32768, 5, 20
SLOT = CHB
NSLOT = 4
TPC = CH // 32
NCH = S // CH
ONES = 4 * SLOT
PAT_UNITS = 672
WBASE = ONES + PAT_UNITS * 16
WSTG = 20480
LDS_BYTES = 163840
WB_OFF = [WBASE, WBASE + WSTG, WBASE + 2 * WSTG, 0, SLOT]
WA_OFF = [2 * SLOT, 3 * SLOT, WBASE, WBASE + WSTG, WBASE + 2 * WSTG]
assert WBASE + 3 * WSTG <= LDS_BYTES
BIG = 2.0 ** 64
SPIN_MAX = 1 << 16
sWS, sOUT = 8, 12
sW, sNONCE = 16, 17
sH, sQB, sPA, sLDSW, sLDSW2, sWSRC, sOCB, sFLG, sPUB, sOUTO, sKG, sQ0, sBT, sQT = range(18, 32)
sT0, sT1, sT2, sT3, sT4, sT5 = range(32, 38)
sM = 38
sLO20 = 40
sCNT = 42
sP2L = 43
sDBG = 44
sBA = 48
sVH = 57
sX, sWA, sWB = 60, 64, 68
sRB, sCT, sMH, sNH, sXOFF, sWOFF, sLDS1, sCT5, sTP, sB16, sQS, sGI = range(72, 84)
sQOFF, sQOFF2, sGOFF, sF1 = 88, 89, 90, 91
sP = 92
vL, vR, vHH = 1, 2, 3
vK01, vK2, vV = 4, 8, 12
vL16, vG, vGB, vFL = 16, 17, 18, 19
vT = 20
SA, SB, NEGM, O, P = 28, 44, 60, 76, 92
Q01, Q2, K01, K2, V0, V1 = 100, 104, 108, 112, 116, 120
BQ01, BQ2, BK01, BK2, BKP01, BKP2 = 124, 128, 132, 136, 140, 144
BV0, BV1, BVP, BS0, BS1, BO, BP = 148, 152, 156, 160, 176, 192, 208
vBA = 220
vW0, vW1, vW2, vOC, vWR, vST, vFA = 225, 226, 227, 228, 229, 230, 231
vF1, vF2, vF3, vF4 = 232, 233, 234, 241
vFL2 = 235
vQA, vQA2, vGA = 236, 237, 238
vOST = 252
vXD, vWD = 242, 243
vCB, vCS = 244, 247
vCT = 250
NV = 256
OCB, OCA, ACC, WF = 124, 164, 204, 28
G_ACC = 124
G_F = 28
G_P = 188
vA16 = 76
vXR, vWR1 = 106, 118
WS = f"s[{sWS}:{sWS+3}]"


def st1():
    return " sc1"


def publish(A, soff_reg, base, tag=None):
    if tag is not None:
        A.vm_wait(tag)
    A(f"v_mov_b32 v{vT}, s{sNONCE}")
    A(f"v_mov_b32 v{vT+1}, 0")
    A(f"s_add_u32 s{sT0}, s{soff_reg}, {base}")
    A("s_mov_b64 exec, 1")
    A.vm(f"buffer_store_dword v{vT}, v{vT+1}, {WS}, s{sT0} offen sc1", "pub")
    A("s_mov_b64 exec, -1")


_jit_n = [0]
def jitter(A, per_wave=False):
    if not EXP.get("jit"):
        return
    _jit_n[0] += 1
    k = _jit_n[0]
    A(f"s_mul_i32 s96, s2, {(2654435761 * (k + EXP['jit'])) & 0x7fffffff | 1}")
    if per_wave:
        A(f"s_mul_i32 s97, s{sW}, {(40503 * (k + 7)) | 1}")
        A("s_add_u32 s96, s96, s97")
    A("s_lshr_b32 s96, s96, 20")
    A("s_and_b32 s96, s96, 15")
    A("s_cmp_lt_u32 s96, 12")
    A(f"s_cbranch_scc1 L_jit{k}_done")
    A("s_and_b32 s96, s96, 3")
    A("s_add_u32 s96, s96, 1")
    A.label(f"L_jit{k}")
    A("s_sleep 32")
    A("s_sub_u32 s96, s96, 1")
    A("s_cmp_lg_u32 s96, 0")
    A(f"s_cbranch_scc1 L_jit{k}")
    A.label(f"L_jit{k}_done")


class Wave0:
    def __init__(self, A, name):
        self.A, self.name = A, name
    def __enter__(self):
        A = self.A
        A(f"s_cmp_lg_u32 s{sW}, 0")
        A(f"s_cbranch_scc1 L_w0_{self.name}")
        self.saved = (list(A.vm_q), dict(A.vm_counts or {}))
    def __exit__(self, *a):
        A = self.A
        A.vm_q, A.vm_counts = self.saved[0], (self.saved[1] or None)
        A.label(f"L_w0_{self.name}")


def _poll_loads(A, items):
    for (vdst, voff, base, soff_reg) in items:
        if soff_reg is None:
            A(f"s_mov_b32 s{sT0}, {base}")
        else:
            A(f"s_add_u32 s{sT0}, s{soff_reg}, {base}")
        A(f"buffer_load_dword v{vdst}, v{voff}, {WS}, s{sT0} offen sc1")


def poll_issue(A, items, name):
    with Wave0(A, name + "_i"):
        _poll_loads(A, items)
    return A.vm_pos("L")


def poll_check(A, items, pos, name, inv=False, drain=False):
    def compare():
        for i, (vdst, _, _, _) in enumerate(items):
            if i == 0:
                A(f"v_cmp_eq_u32 vcc, s{sNONCE}, v{vdst}")
            else:
                A(f"v_cmp_eq_u32 s[{sT4}:{sT5}], s{sNONCE}, v{vdst}")
                A("s_nop 3")
                A(f"s_and_b64 vcc, vcc, s[{sT4}:{sT5}]")
        A("s_nop 3")
        A("s_cmp_eq_u64 vcc, exec")
    with Wave0(A, name + "_c"):
        A(f"s_waitcnt vmcnt({A.vm_pos('L') - pos})")
        compare()
        A(f"s_cbranch_scc1 L_{name}_ok")
        A(f"s_mov_b32 s{sCNT}, 0")
        A.label(f"L_{name}_spin")
        A("s_sleep 2")
        _poll_loads(A, items)
        A(f"s_add_u32 s{sCNT}, s{sCNT}, 1")
        A(f"s_cmp_ge_u32 s{sCNT}, {SPIN_MAX}")
        A(f"s_cbranch_scc1 L_{name}_ok")
        A("s_waitcnt vmcnt(0)")
        compare()
        A(f"s_cbranch_scc0 L_{name}_spin")
        A.label(f"L_{name}_ok")
        if inv:
            A("buffer_inv sc1")
        if drain:
            A("s_waitcnt vmcnt(0)")


def poll_tight(A, base, soff_reg, voff, name):
    regs = [vFL, vFL2, vT + 2, vT + 3]
    with Wave0(A, name):
        A(f"s_add_u32 s{sT1}, s{soff_reg}, {base}")
        for r in regs:
            A(f"buffer_load_dword v{r}, v{voff}, {WS}, s{sT1} offen sc1")
            A("s_sleep 1")
        A(f"s_mov_b32 s{sCNT}, 0")
        A.label(f"L_{name}_spin")
        for r in regs:
            A("s_waitcnt vmcnt(3)")
            A(f"v_cmp_eq_u32 vcc, s{sNONCE}, v{r}")
            A("s_nop 3")
            A("s_cmp_eq_u64 vcc, exec")
            A(f"s_cbranch_scc1 L_{name}_ok")
            A(f"buffer_load_dword v{r}, v{voff}, {WS}, s{sT1} offen sc1")
        A(f"s_add_u32 s{sCNT}, s{sCNT}, 1")
        A(f"s_cmp_lt_u32 s{sCNT}, {SPIN_MAX}")
        A(f"s_cbranch_scc1 L_{name}_spin")
        A.label(f"L_{name}_ok")


def nonce_issue(A):
    A(f"v_mov_b32 v{vT}, 0")
    A.vm(f"buffer_load_dword v{vFL}, v{vT}, s[{sDBG}:{sDBG+3}], 0 offen sc1", "nonce")


def nonce_check(A, name):
    A.vm_wait("nonce")
    A("s_nop 0")
    A(f"v_readfirstlane_b32 s{sNONCE}, v{vFL}")
    nonce_verify(A, name)


def nonce_verify(A, name):
    A("s_nop 3")
    A(f"s_cmp_lg_u32 s{sNONCE}, 0")
    A(f"s_cbranch_scc1 L_{name}_ok")
    A(f"s_mov_b32 s{sCNT}, 0")
    A.label(f"L_{name}_spin")
    A("s_sleep 1")
    A(f"v_mov_b32 v{vT}, 0")
    A(f"buffer_load_dword v{vFL}, v{vT}, s[{sDBG}:{sDBG+3}], 0 offen sc1")
    A(f"s_add_u32 s{sCNT}, s{sCNT}, 1")
    A(f"s_cmp_ge_u32 s{sCNT}, {SPIN_MAX}")
    A(f"s_cbranch_scc1 L_{name}_ok")
    A("s_waitcnt vmcnt(0)")
    A(f"v_readfirstlane_b32 s{sNONCE}, v{vFL}")
    A("s_nop 3")
    A(f"s_cmp_eq_u32 s{sNONCE}, 0")
    A(f"s_cbranch_scc1 L_{name}_spin")
    A.label(f"L_{name}_ok")


def g_dma(A, b, p):
    kb, st, t = b % 10, b % NST, p & 3
    A(f"s_add_u32 m0, s{sLDS1}, {st*STAGE + (p >> 2)*16384 + 4096*t}")
    if p < 4:
        A(f"s_add_u32 s{sT0}, s{sXOFF}, {kb*128 + t*40960}")
        A.vm(f"buffer_load_dwordx4 v{vXD}, s[{sX}:{sX+3}], s{sT0} offen lds", ("d", b))
    else:
        sw = sWA if b < 10 else sWB
        A(f"s_add_u32 s{sT0}, s{sWOFF}, {(kb*64 + 16*t) * 3840}")
        A.vm(f"buffer_load_dwordx4 v{vWD}, s[{sw}:{sw+3}], s{sT0} offen lds", ("d", b))


def g_acc(mt, nt):
    return G_ACC + 32 * mt + 16 * nt


def g_frag(s_, i):
    return G_F + 16 * (s_ % 3) + 4 * i


def g_read_list(s_):
    b, ks = divmod(s_, 4)
    st = b % NST
    base, off = st >> 1, (st & 1) * STAGE
    out = []
    for mt in range(2):
        out.append(f"ds_read_b128 {v(g_frag(s_, mt),4)}, v{vXR + 3*ks + base} offset:{off + mt*4096}")
    for nt in range(2):
        for q in range(2):
            out.append(f"ds_read_b64_tr_b16 {v(g_frag(s_, 2+nt)+2*q,2)}, v{vWR1 + 3*nt + base} offset:{off + 16384 + ks*4096 + q*1024}")
    return out


def g_reads(A, s_):
    for ins in g_read_list(s_):
        A.lds(ins, ("f", s_))


def g_step(A, s_, last, tr, extra=None):
    b, ks = divmod(s_, 4)
    A.lds_wait(("f", s_))
    nxt = g_read_list(s_ + 2) if s_ + 2 <= last else []
    for i, (mt, nt) in enumerate(((0, 0), (0, 1), (1, 0), (1, 1))):
        d = g_acc(mt, nt)
        c = "0" if (s_ % 40 == 0) else v(d, 16)
        x, w = g_frag(s_, mt), g_frag(s_, 2 + nt)
        a, bb = (w, x) if tr else (x, w)
        A(f"v_mfma_f32_32x32x16_bf16 {v(d,16)}, {v(a,4)}, {v(bb,4)}, {c}")
        for ins in nxt[2*i:2*i+2]:
            A.lds(ins, ("f", s_ + 2))
        if extra and i == 3:
            extra()


def epi_prepare(A, isb, tr, n):
    A(f"s_lshl_b32 s{sTP}, s{sRB}, 7")
    A(f"s_lshl_b32 s{sT0}, s{sMH}, 6")
    A(f"s_add_u32 s{sTP}, s{sTP}, s{sT0}")
    if isb:
        A(f"s_lshr_b32 s{sTP}, s{sTP}, 1")
    if tr:
        A(f"s_cmp_lt_u32 s{sCT}, 5")
        A(f"s_mov_b32 s{sT1}, {QB if isb else QA}")
        A(f"s_cselect_b32 s{sB16}, s{sT1}, {KB if isb else KA}")
        A(f"s_mov_b32 s{sT1}, {hex(f32bits(QSCALE))}")
        A(f"s_cselect_b32 s{sQS}, s{sT1}, 1.0")
        A(f"s_lshl_b32 s{sT0}, s{sCT5}, 1")
        A(f"s_add_u32 s{sT0}, s{sT0}, s{sNH}")
        A(f"s_lshl_b32 s{sT0}, s{sT0}, 18")
        A(f"s_add_u32 s{sB16}, s{sB16}, s{sT0}")
        A(f"s_lshl_b32 s{sT0}, s{sTP}, 4")
        A(f"s_add_u32 s{sB16}, s{sB16}, s{sT0}")
        A(f"v_lshlrev_b32 v{vA16}, 15, v{vHH}")
        if isb:
            A(f"v_and_b32 v{vT}, 1, v{vR}")
            A(f"v_lshl_add_u32 v{vA16}, v{vT}, 14, v{vA16}")
            A(f"v_lshrrev_b32 v{vT}, 1, v{vR}")
            A(f"v_lshl_add_u32 v{vA16}, v{vT}, 4, v{vA16}")
        else:
            A(f"v_lshl_add_u32 v{vA16}, v{vR}, 4, v{vA16}")
        A(f"v_mov_b32 v{vT+2}, s{sQS}")
        A(f"v_mov_b32 v{vT+3}, s{sQS}")
    else:
        A(f"v_mul_u32_u24 v{vT+1}, 320, v{vHH}")
        A(f"s_lshl_b32 s{sT0}, s{sCT5}, 7")
        A(f"s_lshl_b32 s{sT1}, s{sNH}, 6")
        A(f"s_add_u32 s{sT0}, s{sT0}, s{sT1}")
        for nt in range(2):
            A(f"v_add_u32 v{vT+2}, s{sT0}, v{vR}")
            if nt:
                A(f"v_add_u32 v{vT+2}, 32, v{vT+2}")
            A(f"v_mul_u32_u24 v{vT+3}, 3277, v{vT+2}")
            A(f"v_lshrrev_b32 v{vT+3}, 16, v{vT+3}")
            A(f"v_mul_u32_u24 v{vT+4}, 20, v{vT+3}")
            A(f"v_sub_u32 v{vT+4}, v{vT+2}, v{vT+4}")
            A(f"v_mul_u32_u24 v{vT+3}, {VH}, v{vT+3}")
            A(f"v_lshl_add_u32 v{vT+3}, v{vT+4}, 4, v{vT+3}")
            A(f"v_add_u32 v{vA16+nt}, v{vT+3}, v{vT+1}")
        A(f"s_lshr_b32 s{sT0}, s{sTP}, 4")
        A(f"s_mul_i32 s{sT0}, s{sT0}, 640")
        A(f"s_add_u32 s{sB16}, s{sT0}, {VB if isb else VA}")


def epi_group(A, isb, tr, g, tag):
    reg = G_P + 4 * g
    mt, nt, u = g >> 2, (g >> 1) & 1, g & 1
    src = g_acc(mt, nt)
    if tr:
        for jj in range(2):
            a = src + 4 * (2 * u + jj)
            A(f"v_pk_mul_f32 {v(a,2)}, {v(a,2)}, v[{vT+2}:{vT+3}]")
            A(f"v_pk_mul_f32 {v(a+2,2)}, {v(a+2,2)}, v[{vT+2}:{vT+3}]")
            A(f"v_cvt_pk_bf16_f32 v{reg+2*jj}, v{a}, v{a+1}")
            A(f"v_cvt_pk_bf16_f32 v{reg+2*jj+1}, v{a+2}, v{a+3}")
        A(f"s_add_u32 s{sT1}, s{sB16}, {(4*nt + 2*u)*PLANE + mt*(256 if isb else 512)}")
        A("s_nop 0")
        A(f"v_permlane32_swap_b32 v{reg}, v{reg+2}")
        A(f"v_permlane32_swap_b32 v{reg+1}, v{reg+3}")
        A.vm(f"buffer_store_dwordx4 {v(reg,4)}, v{vA16}, {WS}, s{sT1} offen sc1", tag)
    else:
        if isb:
            for j in range(4):
                A(f"v_cvt_pk_bf16_f32 v{reg+j}, v{src+4*j+u}, v{src+4*j+u+2}")
            A(f"s_add_u32 s{sT1}, s{sB16}, {mt*640 + u*64*640}")
        else:
            for p in range(4):
                A(f"v_cvt_pk_bf16_f32 v{reg+p}, v{src+8*u+2*p}, v{src+8*u+2*p+1}")
            A(f"s_add_u32 s{sT1}, s{sB16}, {(2*mt + u)*640}")
        A.vm(f"buffer_store_dwordx4 {v(reg,4)}, v{vA16+nt}, {WS}, s{sT1} offen sc1", tag)


def acquire_items():
    return [(vFL, vF1, F1A, None), (vFL2, vF2, F1A, None)]


def p2_load_items():
    def q01(A):
        A.vm(f"buffer_load_dwordx4 {v(Q01,4)}, v{vQA}, {WS}, s{sQOFF} offen sc1", "q")
    def q2(A):
        A(f"v_mov_b32 v{Q2}, 0")
        A(f"v_mov_b32 v{Q2+1}, 0")
        A("s_mov_b32 exec_hi, 0")
        A.vm(f"buffer_load_dwordx2 {v(Q2,2)}, v{vQA2}, {WS}, s{sQOFF2} offen sc1", "q")
        A("s_mov_b32 exec_hi, -1")
    first = [lambda A, p=p: dma_chunk_piece(A, 0, p) for p in range(3)] + [q01, q2]
    rest = [lambda A, c=c, p=p: dma_chunk_piece(A, c, p) for c in (1, 2) for p in range(3)]
    return first, rest


def gemm(A, tr, n):
    A.vm_q, A.lds_q = [], []
    if EXP.get("twa") == 99:
        touch_a(A, n)
    if EXP.get("twb") == 99:
        touch_wb(A, n)
    if EXP.get("tcb") == 99:
        touch_chip_b(A, n)
    if EXP.get("tlb"):
        epi_prepare(A, False, tr, n)
        A(f"buffer_store_dword v{vL}, v{vA16}, {WS}, s{sB16} offen sc1")
    A("s_barrier")
    A.stamp("blk0 landed", 2)
    g_reads(A, 0)
    g_reads(A, 1)
    for s_ in range(40):
        b, ks = divmod(s_, 4)
        if ks == 2:
            A("s_barrier")
            if EXP.get("stampA") and b in (0, 2, 4, 6):
                A.stamp("", {0: 7, 2: 8, 4: 9, 6: 10}[b])
        if EXP.get("twa") is not None and s_ == EXP["twa"]:
            touch_a(A, n)
        if s_ == EXP.get("twb", 77):
            touch_wb(A, n)
        if EXP.get("tcb") is not None and s_ == EXP["tcb"]:
            touch_chip_b(A, n)
        if EXP.get("tcw") is not None and s_ == EXP["tcw"]:
            touch_chip_wide(A, "b", n)
        if s_ == 22:
            nonce_issue(A)
        if s_ == 30:
            nonce_check(A, f"nonce0{n}")
        g_step(A, s_, 39, tr)
    A.stamp("gemm0", 3)
    jitter(A, True)
    slices = [int(ch) for ch in str(EXP.get("sl", "8"))]
    assert sum(slices) == 8
    PUB, POLL, CHK = EXP.get("pub", 12), EXP.get("poll", 15), 18
    for p in range(8):
        g_dma(A, 13, p)
    epi_prepare(A, False, tr, n)
    A("s_nop 7")
    A("s_nop 3")
    done = 0
    for b in range(10, 19):
        k = slices[b - 10] if b - 10 < len(slices) else 0
        for g in range(done, done + k):
            epi_group(A, False, tr, g, "sa")
        if k and done + k == 8:
            A.stamp("epi0", 4)
        done += k
        if b == CHK:
            poll_check(A, acquire_items(), pos_f1, f"f1{n}")
        if b + 1 >= 13:
            A.vm_wait(("d", b + 1))
        A("s_barrier")
        if EXP.get("stampB") and b in (10, 12, 14, 16):
            A.stamp("", {10: 7, 12: 8, 14: 9, 16: 10}[b])
        if b == PUB - 1:
            A.vm_wait("sa")
        if b + 4 < NB:
            for p in range(8):
                g_dma(A, b + 4, p)
        if b == PUB:
            with Wave0(A, f"puba{n}"):
                publish(A, sF1, F1A)
        if b == POLL:
            pos_f1 = poll_issue(A, acquire_items(), f"f1{n}")
    first, rest = p2_load_items()
    for f in first + rest:
        f(A)
    A.stamp("gemm1", 5)
    A.stamp("epi1", 6)
    A.vm_wait("q", ("c", 0))
    A("s_branch L_attn")
    A.label(f"L_g1{n}")
    A.vm_set([(("d", b), "D") for b in range(3) for _ in range(8)])
    A.lds_q = []
    A.vm_wait(("d", 0))
    A("s_barrier")
    A.stamp("issued", 1)
    A.stamp("blk0 landed", 2)
    for p in range(8):
        g_dma(A, 3, p)
    for b in range(10):
        if b == 0:
            setup_phase1_reads(A)
        if 1 <= b <= 5:
            SETUP_P2[b - 1](A)
        if b == 6 and EXP.get("tlb"):
            if EXP.get("tlb"):
                epi_prepare(A, True, tr, n)
                A(f"buffer_store_dword v{vL}, v{vA16}, {WS}, s{sB16} offen sc1")
                A(f"s_lshl_b32 s{sT0}, s{sQ0}, 4")
                A(f"s_add_u32 s{sT0}, s{sT0}, {OC}")
                A(f"buffer_store_dword v{vL}, v{vOST}, {WS}, s{sT0} offen sc1")
                A(f"s_lshl_b32 s{sT0}, s{sBT}, 4")
                A(f"s_add_u32 s{sT0}, s{sT0}, {OC + 80*32768}")
                A(f"buffer_store_dword v{vL}, v{vOST+1}, {WS}, s{sT0} offen sc1")
        A.vm_wait(("d", b + 1))
        A("s_barrier")
        if EXP.get("stampA") and b in (0, 2, 4, 6):
            A.stamp("", {0: 7, 2: 8, 4: 9, 6: 10}[b])
        if b + 4 <= 12:
            for p in range(8):
                g_dma(A, b + 4, p)
    A.stamp("gemm0", 3)
    A.stamp("epi0", 4)
    g_reads(A, 40)
    g_reads(A, 41)
    pend = []
    for s_ in range(40, 80):
        b, ks = divmod(s_, 4)
        if ks == 2 and b + 1 < NB:
            if b + 1 <= 12:
                A.vm_wait(("d", b + 1))
            A("s_barrier")
            if EXP.get("stampB") and b in (10, 12, 14, 16):
                A.stamp("", {10: 7, 12: 8, 14: 9, 16: 10}[b])
            if b == 18:
                first, rest = p2_load_items()
                pend = first + [nonce_issue]
        def extra():
            for _ in range(2):
                if pend:
                    pend.pop(0)(A)
        g_step(A, s_, 79, tr, extra)
    assert not pend
    A.stamp("gemm1", 5)
    jitter(A, True)
    A.vm_wait("q", "nonce", ("c", 0))
    A("s_nop 0")
    A(f"v_readfirstlane_b32 s{sNONCE}, v{vFL}")
    for f in rest:
        f(A)
    epi_prepare(A, True, tr, n)
    A("s_nop 7")
    A("s_nop 3")
    for g in range(8):
        epi_group(A, True, tr, g, "sb")
    A.stamp("epi1", 6)
    nonce_verify(A, f"nonce1{n}")


def spare(A):
    sWO, sG = sWA, sWB
    A.label("L_spare")
    A.vm_q, A.lds_q = [], []
    jitter(A)
    jitter(A)
    if EXP.get("spb", 0):
        A(f"s_mul_i32 s{sT0}, s{sRB}, 153600")
        A(f"s_lshl_b32 s{sT1}, s{sW}, 10")
        A(f"s_add_u32 s{sT0}, s{sT0}, s{sT1}")
        A(f"s_add_u32 s{sT2}, s{sRB}, 1")
        A(f"s_mul_i32 s{sT2}, s{sT2}, 153600")
        for i in range(19):
            A(f"s_add_u32 s{sT1}, s{sT0}, {8192*i}")
            if i == 18:
                A(f"s_sub_u32 s{sT2}, s{sT2}, 1024")
                A(f"s_min_u32 s{sT1}, s{sT1}, s{sT2}")
            A(f"buffer_load_dwordx4 {v(124 + 4*i, 4)}, v{vL16}, s[{sWB}:{sWB+3}], s{sT1} offen")
    A("s_load_dwordx2 s[4:5], s[0:1], 16")
    A("s_load_dwordx2 s[6:7], s[0:1], 40")
    A(f"s_load_dwordx2 s[{sP}:{sP+1}], s[0:1], 48")
    A("s_waitcnt lgkmcnt(0)")
    A(f"s_cmp_lt_u32 s{sRB}, 8")
    A("s_cbranch_scc1 L_sp_a")
    A("s_mov_b32 s4, s6")
    A("s_mov_b32 s5, s7")
    A.label("L_sp_a")
    srd(A, sWO, 4, WO_BYTES)
    srd(A, sG, sP, 1280)
    A(f"s_and_b32 s{sT1}, s{sRB}, 7")
    A(f"s_mul_i32 s{sT1}, s{sT1}, {80*1280}")
    A(f"s_lshl_b32 s{sLDS1}, s{sW}, 10")
    A(f"s_add_u32 s{sT1}, s{sT1}, s{sLDS1}")
    for t in range(13):
        if t == 12:
            A(f"s_cmp_ge_u32 s{sW}, 4")
            A("s_cbranch_scc1 L_sp_dma_done")
        A(f"s_add_u32 m0, s{sLDS1}, {8192*t}")
        A(f"s_add_u32 s{sT0}, s{sT1}, {8192*t}")
        A(f"buffer_load_dwordx4 v{vL16}, s[{sWO}:{sWO+3}], s{sT0} offen lds")
    A.label("L_sp_dma_done")
    GW = 102400
    A(f"s_cmp_ge_u32 s{sW}, 2")
    A("s_cbranch_scc1 L_sp_gw_done")
    A(f"s_add_u32 m0, s{sLDS1}, {GW}")
    A("s_nop 0")
    A(f"buffer_load_dwordx4 v{vL16}, s[{sG}:{sG+3}], s{sLDS1} offen lds")
    A.label("L_sp_gw_done")
    A.stamp("", 2)
    XG = 28
    A(f"v_lshrrev_b32 v{vT+1}, 2, v{vL}")
    A(f"s_lshl_b32 s{sT0}, s{sW}, 4")
    A(f"v_add_u32 v{vT+1}, s{sT0}, v{vT+1}")
    A(f"v_and_b32 v{vT+2}, 3, v{vL}")
    A(f"v_lshlrev_b32 v{vT+2}, 4, v{vT+2}")
    A(f"v_mul_u32_u24 v{vT+3}, 1280, v{vT+1}")
    A(f"v_add_u32 v{vT+3}, v{vT+3}, v{vT+2}")
    A(f"v_mov_b32 v{vT+4}, 0")
    for i in range(20):
        A(f"buffer_load_dwordx4 {v(XG+4*i,4)}, v{vT+3}, s[{sX}:{sX+3}], s{sXOFF} offen offset:{i*64}")
    A(f"v_add_u32 v{vT+2}, {GW}, v{vT+2}")
    A("s_waitcnt vmcnt(0)")
    A("s_barrier")
    A.lds_q = []
    GG = 108
    for i in range(3):
        A.lds(f"ds_read_b128 {v(GG+4*i,4)}, v{vT+2} offset:{i*64}", ("gw", i))
    for i in range(20):
        if i + 3 < 20:
            A.lds(f"ds_read_b128 {v(GG+4*((i+3) % 4),4)}, v{vT+2} offset:{(i+3)*64}", ("gw", i + 3))
        A.lds_wait(("gw", i))
        for k in range(4):
            A(f"v_dot2_f32_bf16 v{vT+4}, v{XG+4*i+k}, v{GG+4*(i % 4)+k}, v{vT+4}")
    A("s_nop 2")
    A(f"v_add_f32_dpp v{vT+4}, v{vT+4}, v{vT+4} quad_perm:[1,0,3,2] row_mask:0xf bank_mask:0xf")
    A("s_nop 1")
    A(f"v_add_f32_dpp v{vT+4}, v{vT+4}, v{vT+4} quad_perm:[2,3,0,1] row_mask:0xf bank_mask:0xf")
    A(f"v_mul_f32 v{vT+4}, {hex(f32bits(-LOG2E))}, v{vT+4}")
    A(f"v_exp_f32 v{vT+4}, v{vT+4}")
    A("s_nop 0")
    A(f"v_add_f32 v{vT+4}, 1.0, v{vT+4}")
    A(f"v_rcp_f32 v{vT+4}, v{vT+4}")
    A(f"s_lshl_b32 s{sT0}, s{sRB}, 9")
    A(f"s_add_u32 s{sT0}, s{sT0}, {GATE}")
    A(f"v_lshlrev_b32 v{vT+1}, 2, v{vT+1}")
    A("s_mov_b32 exec_lo, 0x11111111")
    A("s_mov_b32 exec_hi, 0x11111111")
    A(f"buffer_store_dword v{vT+4}, v{vT+1}, {WS}, s{sT0} offen sc1")
    A("s_mov_b64 exec, -1")
    A.stamp("", 3)
    A.stamp("", 4)
    A(f"v_bfe_u32 v{vT+1}, v{vL}, 2, 2")
    A(f"v_mul_u32_u24 v{vT+1}, 1280, v{vT+1}")
    A(f"v_lshrrev_b32 v{vT+2}, 4, v{vL}")
    A(f"v_lshl_add_u32 v{vT+1}, v{vT+2}, 5, v{vT+1}")
    A(f"v_and_b32 v{vT+2}, 3, v{vL}")
    A(f"v_lshl_add_u32 v{vT+1}, v{vT+2}, 3, v{vT+1}")
    A(f"s_mul_i32 s{sT3}, s{sRB}, {10*10240}")
    A(f"s_add_u32 s{sT3}, s{sT3}, {WOT}")
    A(f"s_mov_b32 s{sT1}, s{sW}")
    A.label("L_sp_loop")
    A(f"s_mul_hi_u32 s{sT2}, s{sT1}, 0x1999999a")
    A(f"s_mul_i32 s{sT0}, s{sT2}, 10")
    A(f"s_sub_u32 s{sT0}, s{sT1}, s{sT0}")
    A(f"s_mul_hi_u32 s{sCNT}, s{sT2}, 0x33333334")
    A(f"s_mul_i32 s{sT4}, s{sCNT}, 5")
    A(f"s_sub_u32 s{sT4}, s{sT2}, s{sT4}")
    A(f"s_mul_i32 s{sCNT}, s{sCNT}, 40")
    A(f"s_lshl_b32 s{sT5}, s{sT4}, 3")
    A(f"s_cmp_ge_u32 s{sT4}, 2")
    A(f"s_cselect_b32 s{sM}, 4, 0")
    A(f"s_add_u32 s{sT5}, s{sT5}, s{sM}")
    A(f"s_cmp_eq_u32 s{sT4}, 4")
    A(f"s_cselect_b32 s{sT5}, 16, s{sT5}")
    A(f"s_cselect_b32 s{sM}, 20, 4")
    A(f"s_add_u32 s{sT5}, s{sT5}, s{sCNT}")
    A(f"s_mul_i32 s{sT4}, s{sT5}, 1280")
    A(f"s_mul_i32 s{sM}, s{sM}, 1280")
    A(f"s_lshl_b32 s{sT5}, s{sT0}, 7")
    A(f"s_add_u32 s{sT4}, s{sT4}, s{sT5}")
    A(f"v_add_u32 v{vT+3}, s{sT4}, v{vT+1}")
    A(f"v_add_u32 v{vT+4}, s{sM}, v{vT+3}")
    A(f"ds_read_b64_tr_b16 v[{XG}:{XG+1}], v{vT+3}")
    A(f"ds_read_b64_tr_b16 v[{XG+2}:{XG+3}], v{vT+4}")
    A(f"s_mul_i32 s{sT4}, s{sT2}, 10240")
    A(f"s_lshl_b32 s{sT5}, s{sT0}, 10")
    A(f"s_add_u32 s{sT4}, s{sT4}, s{sT5}")
    A(f"s_add_u32 s{sT4}, s{sT4}, s{sT3}")
    A("s_waitcnt lgkmcnt(0)")
    A(f"buffer_store_dwordx4 {v(XG,4)}, v{vL16}, {WS}, s{sT4} offen sc1")
    A(f"s_add_u32 s{sT1}, s{sT1}, 8")
    A(f"s_cmp_lt_u32 s{sT1}, 100")
    A("s_nop 1")
    A("s_cbranch_scc1 L_sp_loop")
    A.stamp("", 5)
    nonce_issue(A)
    nonce_check(A, "noncesp")
    A("s_waitcnt vmcnt(0)")
    A("s_barrier")
    A.vm_q = []
    with Wave0(A, "pubsp"):
        publish(A, sF1, F1A)
    pos = poll_issue(A, acquire_items(), "f1sp")
    poll_check(A, acquire_items(), pos, "f1sp")
    A("s_barrier")
    A.vm_q = []
    first, rest = p2_load_items()
    for f in first + rest:
        f(A)
    A.vm_wait("q", ("c", 0))
    for i in (6,) + ((7, 8, 9, 10) if (EXP.get("stampB") or EXP.get("stampA")) else ()):
        A.stamp("", i)
    A("s_branch L_attn")


def mf16(A, d, a, b, c):
    A(f"v_mfma_f32_32x32x16_bf16 {v(d,16)}, {v(a,4)}, {v(b,4)}, {c}")


def mf8(A, d, a, b, c):
    A(f"v_mfma_f32_32x32x8_bf16 {v(d,16)}, {v(a,2)}, {v(b,2)}, {c}")


def dma_chunk_piece(A, c, t):
    slot = c % NSLOT
    A(f"s_add_u32 m0, s{sLDSW}, {slot*SLOT + 1024*t}")
    A(f"v_mad_u32_u24 v{vCT}, v{vCS+t}, {c}, v{vCB+t}")
    if t == 2:
        A("s_mov_b32 exec_hi, 0xffff")
    A.vm(f"buffer_load_dwordx4 v{vCT}, {WS}, 0 offen sc1 lds", ("c", c))
    if t == 2:
        A("s_mov_b32 exec_hi, -1")


def dma_chunk(A, c):
    for t in range(3):
        dma_chunk_piece(A, c, t)


def dma_w_piece(A, part, st, t):
    off = (WA_OFF if part == 0 else WB_OFF)[st]
    A(f"s_add_u32 m0, s{sLDSW2}, {off + 1024*t}")
    A(f"s_add_u32 s{sT0}, s{sWSRC}, {(part*80 + 16*st)*10240}")
    if t == 2:
        A("s_mov_b32 exec_hi, 0")
    A.vm(f"buffer_load_dwordx4 v{(vW0, vW1, vW2)[t]}, {WS}, s{sT0} offen sc1 lds", ("w", part, st))
    if t == 2:
        A("s_mov_b32 exec_hi, -1")


def rd_k01(A, t):
    if EXP.get('halfrd') and t % 2 == 1:
        return
    c, tt = t // TPC, t % TPC
    A.lds(f"ds_read_b128 {v(K01,4)}, v{vK01 + c % NSLOT} offset:{tt*512}", ("k01", t))


def rd_k2(A, t):
    if EXP.get('halfrd') and t % 2 == 1:
        return
    c, tt = t // TPC, t % TPC
    A.lds(f"ds_read_b64 {v(K2,2)}, v{vK2 + c % NSLOT} offset:{8192 + tt*512}", ("k2", t))


def rd_v(A, t, a):
    if EXP.get('halfrd') and t % 2 == 1:
        return
    c, tt = t // TPC, t % TPC
    A.lds(f"ds_read_b128 {v(V1 if a else V0,4)}, v{vV + c % NSLOT} offset:{(2*tt + a)*640}", ("v", t, a))


def exps(A, sreg, g, preg=P):
    for i in range(4):
        A(f"v_exp_f32 v{sreg+4*g+i}, v{sreg+4*g+i}")
    A(f"v_cvt_pk_bf16_f32 v{preg+2*g}, v{sreg+4*g}, v{sreg+4*g+1}")
    A(f"v_cvt_pk_bf16_f32 v{preg+2*g+1}, v{sreg+4*g+2}, v{sreg+4*g+3}")


def cross_half_max(A, reg, tmp):
    A(f"v_mov_b32 v{tmp}, v{reg}")
    A("s_nop 1")
    A(f"v_permlane32_swap_b32 v{reg}, v{tmp}")
    A("s_nop 1")
    A(f"v_max_f32 v{reg}, v{reg}, v{tmp}")


def max16(A, dst, src, first):
    if first:
        A(f"v_max3_f32 v{dst}, v{src}, v{src+1}, v{src+2}")
        rest = list(range(3, 16))
    else:
        rest = list(range(0, 16))
    while rest:
        if len(rest) >= 2:
            A(f"v_max3_f32 v{dst}, v{dst}, v{src+rest[0]}, v{src+rest[1]}")
            rest = rest[2:]
        else:
            A(f"v_max_f32 v{dst}, v{dst}, v{src+rest[0]}")
            rest = rest[1:]


def row_sum(A, oreg):
    A(f"v_mov_b32 v{vT}, v{oreg+8}")
    A(f"v_mov_b32 v{vT+1}, v{oreg+8}")
    A("s_nop 1")
    A(f"v_permlane32_swap_b32 v{vT}, v{vT+1}")


def finish_tile(A, oreg, gate, one_minus, vaddr, tok_sreg, chunk0, tag):
    A(f"v_rcp_f32 v{vT+2}, v{vT+1}")
    A(f"s_lshl_b32 s{sT0}, s{tok_sreg}, 4")
    A(f"s_add_u32 s{sT0}, s{sT0}, {OC + chunk0*32768}")
    if one_minus:
        A(f"v_sub_f32 v{vT}, 1.0, v{gate}")
        A(f"v_mul_f32 v{vT+2}, v{vT+2}, v{vT}")
    else:
        A(f"v_mul_f32 v{vT+2}, v{vT+2}, v{gate}")
    A(f"v_mov_b32 v{vT+3}, v{vT+2}")
    for i in range(0, 12, 2):
        A(f"v_pk_mul_f32 {v(oreg+i,2)}, {v(oreg+i,2)}, v[{vT+2}:{vT+3}]")
    for i in range(4):
        A(f"v_cvt_pk_bf16_f32 v{oreg+i}, v{oreg+2*i}, v{oreg+2*i+1}")
    A(f"v_cvt_pk_bf16_f32 v{oreg+8}, v{oreg+8}, v{oreg+9}")
    A(f"v_cvt_pk_bf16_f32 v{oreg+9}, v{oreg+10}, v{oreg+11}")
    A(f"v_permlane32_swap_b32 v{oreg}, v{oreg+2}")
    A(f"v_permlane32_swap_b32 v{oreg+1}, v{oreg+3}")
    A.vm(f"buffer_store_dwordx4 {v(oreg,4)}, v{vaddr}, {WS}, s{sT0} offen sc1", tag)
    A("s_mov_b32 exec_hi, 0")
    A.vm(f"buffer_store_dwordx2 {v(oreg+8,2)}, v{vaddr+2}, {WS}, s{sT0} offen sc1", tag)
    A("s_mov_b64 exec, -1")


def oc_load(A, part, k):
    reg = OCA if part == 0 else OCB
    A(f"s_add_u32 s{sT0}, s{sOCB}, {(part*80 + 4*k)*32768}")
    A.vm(f"buffer_load_dwordx4 {v(reg+4*k,4)}, v{vOC}, {WS}, s{sT0} offen sc1", ("oc", part, k))


def outproj(A, part, first, hook=None):
    offs = WA_OFF if part == 0 else WB_OFF
    reg = OCA if part == 0 else OCB
    for kg in range(2):
        if kg == 0:
            A(f"s_cmp_eq_u32 s{sKG}, 1")
            A(f"s_cbranch_scc1 L_op{part}_g1")
            saved = (list(A.vm_q), list(A.lds_q))
        else:
            A.label(f"L_op{part}_g1")
            A.vm_q, A.lds_q = list(saved[0]), list(saved[1])
        seq = [(k, nt) for k in range(10) for nt in range(5)]

        def rd(i):
            k, nt = seq[i]
            kk = 10 * kg + k
            off = offs[kk // 4] + (kk % 4) * 5120 + nt * 256
            areg = (vWR, vT + 5, vT + 6)[off >> 16]
            A.lds(f"ds_read_b128 {v(WF + (i % 8)*4,4)}, v{areg} offset:{off & 0xffff}", ("wf", i))

        LOOK = 5
        for i in range(LOOK):
            rd(i)
        for i, (k, nt) in enumerate(seq):
            if i + LOOK < len(seq):
                rd(i + LOOK)
            if nt == 0:
                A.vm_wait(("oc", part, k))
                if hook:
                    hook(k, kg)
            A.lds_wait(("wf", i))
            c = "0" if (first and k == 0) else v(ACC + 4*nt, 4)
            A(f"v_mfma_f32_16x16x32_bf16 {v(ACC+4*nt,4)}, {v(WF + (i % 8)*4,4)}, {v(reg+4*k,4)}, {c}")
        if kg == 0:
            end0 = (list(A.vm_q), list(A.lds_q))
            A(f"s_branch L_op{part}_done")
    A.label(f"L_op{part}_done")
    assert end0[0] == A.vm_q and end0[1] == A.lds_q


def keypos(kappa):
    return (kappa & 25) | ((kappa >> 1) & 1) << 2 | ((kappa >> 2) & 1) << 1


def band_mask(j, i, prev):
    m = 0
    for l in range(64):
        q, hh = l & 31, l >> 5
        key = keypos(8 * j + 4 * hh + i) - (32 if prev else 0)
        if 0 <= q - key <= 7:
            m |= 1 << l
    return m


def b_consts(A):
    A(f"v_cmp_eq_u32 vcc, 20, v{vR}")
    A(f"v_mov_b32 v{vT+6}, 0")
    A(f"v_mov_b32 v{vT+7}, 0x3f803f80")
    A(f"v_cndmask_b32 v{vT+6}, v{vT+6}, v{vT+7}, vcc")
    for base in (BV0, BV1, BVP):
        for i in range(4):
            A(f"v_mov_b32 v{base+i}, v{vT+6}")
    A(f"v_mov_b32 v{BQ2}, 0")
    A(f"v_mov_b32 v{BQ2+1}, 0")


def b_load_items():
    def mk(instr, pre=None, gate=False):
        def f(A):
            if gate:
                A(f"v_lshlrev_b32 v{vCT}, 1, v{vGA}")
                A.vm(instr.replace(f"v{vGA},", f"v{vCT},"), "b")
                return
            if pre:
                A(pre)
            A.vm(instr, "b")
            if pre:
                A("s_mov_b64 exec, -1")
        return f
    lo20 = f"s_mov_b64 exec, s[{sLO20}:{sLO20+1}]"
    return [
        mk(f"buffer_load_dwordx4 {v(BQ01,4)}, v{vBA}, {WS}, s{sBA} offen sc1"),
        mk(f"buffer_load_dwordx4 {v(BK01,4)}, v{vBA+2}, {WS}, s{sBA+2} offen sc1"),
        mk(f"buffer_load_dwordx2 {v(BK2,2)}, v{vBA+3}, {WS}, s{sBA+3} offen sc1"),
        mk(f"buffer_load_dwordx4 {v(BKP01,4)}, v{vBA+2}, {WS}, s{sBA+5} offen sc1"),
        mk(f"buffer_load_dwordx2 {v(BKP2,2)}, v{vBA+3}, {WS}, s{sBA+6} offen sc1"),
        mk(f"buffer_load_dword v{vGB}, v{vGA}, {WS}, s{sBA+8} offen sc1", None, True),
        mk(f"buffer_load_dwordx2 {v(BQ2,2)}, v{vBA+1}, {WS}, s{sBA+1} offen sc1", "s_mov_b32 exec_hi, 0"),
        mk(f"buffer_load_dwordx4 {v(BV0,4)}, v{vBA+4}, {WS}, s{sBA+4} offen sc1", lo20),
        mk(f"buffer_load_dwordx4 {v(BV1,4)}, v{vBA+4}, {WS}, s{sBA+4} offen offset:640 sc1", lo20),
        mk(f"buffer_load_dwordx4 {v(BVP,4)}, v{vBA+4}, {WS}, s{sBA+7} offen offset:640 sc1", lo20),
    ]


def b_unit(A):
    S0, S1 = BS0, BS1
    jitter(A, True)
    A.vm_wait("b")
    mf16(A, S0, BK01, BQ01, "0")
    mf16(A, S1, BKP01, BQ01, "0")
    mf8(A, S0, BK2, BQ2, v(S0, 16))
    mf8(A, S1, BKP2, BQ2, v(S1, 16))
    A(f"v_mov_b32 v{vT}, {hex(f32bits(-1e30))}")
    A(f"s_cmp_eq_u32 s{sQT}, 0")
    A(f"s_cselect_b32 s{sT3}, 0, -1")
    A("s_nop 7")
    A("s_nop 5")
    for j in range(4):
        for i in range(4):
            m = band_mask(j, i, False)
            A(f"s_mov_b32 s{sM}, {hex(m & 0xffffffff)}")
            A(f"s_mov_b32 s{sM+1}, {hex(m >> 32)}")
            A(f"v_cndmask_b32 v{S0+4*j+i}, v{vT}, v{S0+4*j+i}, s[{sM}:{sM+1}]")
    for i in range(4):
        m = band_mask(3, i, True)
        A(f"s_and_b32 s{sM}, s{sT3}, {hex(m & 0xffffffff)}")
        A(f"s_and_b32 s{sM+1}, s{sT3}, {hex(m >> 32)}")
        A(f"v_cndmask_b32 v{S1+12+i}, v{vT}, v{S1+12+i}, s[{sM}:{sM+1}]")
    max16(A, vT + 1, S0, True)
    A(f"v_max3_f32 v{vT+1}, v{vT+1}, v{S1+12}, v{S1+13}")
    A(f"v_max3_f32 v{vT+1}, v{vT+1}, v{S1+14}, v{S1+15}")
    cross_half_max(A, vT + 1, vT + 2)
    for r in list(range(S0, S0 + 16)) + list(range(S1 + 12, S1 + 16)):
        A(f"v_sub_f32 v{r}, v{r}, v{vT+1}")
    for g in range(4):
        exps(A, S0, g, BP)
    PP = BP + 8
    for i in range(4):
        A(f"v_exp_f32 v{S1+12+i}, v{S1+12+i}")
    A(f"v_mov_b32 v{PP}, 0")
    A(f"v_mov_b32 v{PP+1}, 0")
    A(f"v_cvt_pk_bf16_f32 v{PP+2}, v{S1+12}, v{S1+13}")
    A(f"v_cvt_pk_bf16_f32 v{PP+3}, v{S1+14}, v{S1+15}")
    A("s_nop 1")
    mf16(A, BO, BV0, BP, "0")
    mf16(A, BO, BV1, BP + 4, v(BO, 16))
    mf16(A, BO, BVP, PP, v(BO, 16))
    A("s_nop 7")
    A("s_nop 3")
    row_sum(A, BO)
    A("s_nop 1")
    finish_tile(A, BO, vGB, True, vOST + 1, sBT, 80, "stb")


def fallback(A):
    A.label("L_fallback")
    A("s_waitcnt vmcnt(0) lgkmcnt(0)")
    A(f"v_lshlrev_b32 v{vT+4}, 15, v{vHH}")
    A(f"v_lshl_add_u32 v{vT+4}, v{vR}, 4, v{vT+4}")
    A(f"v_lshlrev_b32 v{vT+5}, 4, v{vR}")
    A(f"v_mul_u32_u24 v{vT+6}, 320, v{vHH}")
    A(f"v_lshl_add_u32 v{vT+6}, v{vR}, 4, v{vT+6}")
    A(f"v_mov_b32 v{vT+7}, {hex(f32bits(-3.0e38))}")

    def tile_addr():
        A(f"s_lshl_b32 s{sT0}, s{sCNT}, 9")
        A(f"s_lshl_b32 s{sT1}, s{sPA}, 15")
        A(f"s_add_u32 s{sT1}, s{sT1}, s{sT0}")
        A(f"s_add_u32 s{sT1}, s{sT1}, {KA}")
        A(f"s_lshl_b32 s{sT2}, s{sP2L}, 15")
        A(f"s_add_u32 s{sT2}, s{sT2}, s{sT0}")
        A(f"s_and_b32 s{sT3}, s{sH}, 1")
        A(f"s_lshl_b32 s{sT3}, s{sT3}, 3")
        A(f"s_add_u32 s{sT2}, s{sT2}, s{sT3}")
        A(f"s_add_u32 s{sT2}, s{sT2}, {KA}")
        A(f"s_mul_i32 s{sT3}, s{sCNT}, 1280")
        A(f"s_add_u32 s{sT3}, s{sT3}, s{sVH}")
        A(f"s_add_u32 s{sT3}, s{sT3}, {VA}")

    A(f"s_mov_b32 s{sCNT}, 0")
    A.label("L_fb1")
    tile_addr()
    A(f"buffer_load_dwordx4 {v(K01,4)}, v{vT+4}, {WS}, s{sT1} offen sc1")
    A(f"buffer_load_dwordx2 {v(K2,2)}, v{vT+5}, {WS}, s{sT2} offen sc1")
    A("s_waitcnt vmcnt(0)")
    mf16(A, SA, K01, Q01, "0")
    mf8(A, SA, K2, Q2, v(SA, 16))
    A("s_nop 7")
    A("s_nop 7")
    max16(A, vT + 7, SA, False)
    A(f"s_add_u32 s{sCNT}, s{sCNT}, 1")
    A(f"s_cmp_lt_u32 s{sCNT}, 64")
    A("s_cbranch_scc1 L_fb1")
    cross_half_max(A, vT + 7, vT)
    for i in range(16):
        A(f"v_sub_f32 v{NEGM+i}, 0, v{vT+7}")
        A(f"v_mov_b32 v{O+i}, 0")
    A(f"v_cmp_eq_u32 vcc, 20, v{vR}")
    A(f"v_mov_b32 v{vT}, 0")
    A(f"v_mov_b32 v{vT+1}, 0x3f803f80")
    A(f"v_cndmask_b32 v{vT}, v{vT}, v{vT+1}, vcc")
    for i in range(4):
        A(f"v_mov_b32 v{V0+i}, v{vT}")
        A(f"v_mov_b32 v{V1+i}, v{vT}")
    A(f"s_mov_b32 s{sCNT}, 0")
    A.label("L_fb2")
    tile_addr()
    A(f"buffer_load_dwordx4 {v(K01,4)}, v{vT+4}, {WS}, s{sT1} offen sc1")
    A(f"buffer_load_dwordx2 {v(K2,2)}, v{vT+5}, {WS}, s{sT2} offen sc1")
    A(f"s_mov_b64 exec, s[{sLO20}:{sLO20+1}]")
    A(f"buffer_load_dwordx4 {v(V0,4)}, v{vT+6}, {WS}, s{sT3} offen sc1")
    A(f"buffer_load_dwordx4 {v(V1,4)}, v{vT+6}, {WS}, s{sT3} offen offset:640 sc1")
    A("s_mov_b64 exec, -1")
    A("s_waitcnt vmcnt(0)")
    mf16(A, SA, K01, Q01, v(NEGM, 16))
    mf8(A, SA, K2, Q2, v(SA, 16))
    A("s_nop 7")
    A("s_nop 7")
    for g in range(4):
        exps(A, SA, g)
    A("s_nop 1")
    mf16(A, O, V0, P, v(O, 16))
    mf16(A, O, V1, P + 4, v(O, 16))
    A(f"s_add_u32 s{sCNT}, s{sCNT}, 1")
    A(f"s_cmp_lt_u32 s{sCNT}, 64")
    A("s_cbranch_scc1 L_fb2")
    A("s_nop 7")
    A("s_nop 7")
    row_sum(A, O)
    A("s_nop 1")
    A("s_branch L_finish")


def touch_chip(A, which):
    A(f"s_and_b32 s{sT1}, s{sW}, 1")
    A(f"s_lshl_b32 s{sT1}, s{sT1}, 6")
    A(f"v_add_u32 v{vT}, s{sT1}, v{vL}")
    A(f"s_cmp_ge_u32 s{sW}, 2")
    A(f"s_cbranch_scc1 L_tc_w{which}")
    if "x" in which:
        A(f"v_min_u32 v{vT}, 79, v{vT}")
        A(f"v_lshlrev_b32 v{vT}, 7, v{vT}")
        A(f"s_mul_i32 s{sT0}, s2, 10240")
        A(f"buffer_load_dword v{G_P+1}, v{vT}, s[{sX}:{sX+3}], s{sT0} offen")
    A(f"s_branch L_tc_done{which}")
    A.label(f"L_tc_w{which}")
    A(f"v_min_u32 v{vT}, 74, v{vT}")
    A(f"v_lshlrev_b32 v{vT}, 7, v{vT}")
    A(f"s_mul_i32 s{sT0}, s2, 9600")
    if "a" in which:
        A(f"buffer_load_dword v{G_P+2}, v{vT}, s[{sWA}:{sWA+3}], s{sT0} offen")
    if "b" in which:
        A(f"buffer_load_dword v{G_P+3}, v{vT}, s[{sWB}:{sWB+3}], s{sT0} offen")
    A.label(f"L_tc_done{which}")


def touch_phase(A, phase):
    L = f"L_tp{phase}"
    if phase < 2:
        k0, nk = (3, 3) if phase == 0 else (6, 4)
        wx, ww = (0, 1) if phase == 0 else (2, 3)
        A(f"s_cmp_lg_u32 s{sW}, {wx}")
        A(f"s_cbranch_scc1 {L}_w")
        if nk == 3:
            A(f"v_mul_u32_u24 v{vT}, 86, v{vL}")
            A(f"v_lshrrev_b32 v{vT}, 8, v{vT}")
        else:
            A(f"v_lshrrev_b32 v{vT}, 2, v{vL}")
        A(f"v_mul_u32_u24 v{vT+1}, {nk}, v{vT}")
        A(f"v_sub_u32 v{vT+1}, v{vL}, v{vT+1}")
        A(f"v_min_u32 v{vT}, 7, v{vT}")
        A(f"v_mul_u32_u24 v{vT}, 1280, v{vT}")
        A(f"v_lshl_add_u32 v{vT}, v{vT+1}, 7, v{vT}")
        A(f"s_mul_i32 s{sT0}, s2, 10240")
        A(f"s_add_u32 s{sT0}, s{sT0}, {128*k0}")
        A(f"buffer_load_dword v{G_P+1}, v{vT}, s[{sX}:{sX+3}], s{sT0} offen")
        A.label(f"{L}_w")
        per = 64 * nk * 30 // 256 + (1 if (64 * nk * 30) % 256 else 0)
        A(f"s_cmp_lg_u32 s{sW}, {ww}")
        A(f"s_cbranch_scc1 {L}_done")
        A(f"v_min_u32 v{vT}, {per - 1}, v{vL}")
        A(f"v_lshlrev_b32 v{vT}, 7, v{vT}")
        A(f"s_mul_i32 s{sT0}, s2, {64 * nk * 3840 // 256}")
        A(f"s_and_b32 s{sT0}, s{sT0}, 0xffffff80")
        A(f"s_add_u32 s{sT0}, s{sT0}, {64 * k0 * 3840}")
        A(f"buffer_load_dword v{G_P+2}, v{vT}, s[{sWA}:{sWA+3}], s{sT0} offen")
    else:
        A(f"s_cmp_ge_u32 s{sW}, 2")
        A(f"s_cbranch_scc1 {L}_done")
        A(f"s_lshl_b32 s{sT1}, s{sW}, 6")
        A(f"v_add_u32 v{vT}, s{sT1}, v{vL}")
        A(f"v_min_u32 v{vT}, 74, v{vT}")
        A(f"v_lshlrev_b32 v{vT}, 7, v{vT}")
        A(f"s_mul_i32 s{sT0}, s2, 9600")
        A(f"buffer_load_dword v{G_P+3}, v{vT}, s[{sWB}:{sWB+3}], s{sT0} offen")
    A.label(f"{L}_done")


def touch_chip_wide(A, which, tag):
    A(f"s_cmp_ge_u32 s{sW}, 4")
    A(f"s_cbranch_scc1 L_tcw{tag}")
    A(f"s_lshl_b32 s{sT1}, s{sW}, 10")
    A(f"v_add_u32 v{vT}, s{sT1}, v{vL16}")
    k = 0
    for name, srd_, size in (("x", sX, 10240), ("a", sWA, 9600), ("b", sWB, 9600)):
        if name not in which:
            continue
        A(f"s_mul_i32 s{sT0}, s2, {size}")
        for i in range(3):
            A(f"v_add_u32 v{vT+1}, {4096*i}, v{vT}")
            A(f"v_min_u32 v{vT+1}, {size - 16}, v{vT+1}")
            A(f"buffer_load_dwordx4 {v(G_P + 4*k, 4)}, v{vT+1}, s[{srd_}:{srd_+3}], s{sT0} offen")
            k += 1
    A.label(f"L_tcw{tag}")


def touch_chip_b(A, n):
    A(f"s_cmp_ge_u32 s{sW}, 2")
    A(f"s_cbranch_scc1 L_tcb{n}")
    A(f"s_lshl_b32 s{sT1}, s{sW}, 6")
    A(f"v_add_u32 v{vT}, s{sT1}, v{vL}")
    A(f"v_min_u32 v{vT}, 74, v{vT}")
    A(f"v_lshlrev_b32 v{vT}, 7, v{vT}")
    A(f"s_mul_i32 s{sT0}, s2, 9600")
    A(f"buffer_load_dword v{G_P+3}, v{vT}, s[{sWB}:{sWB+3}], s{sT0} offen")
    A.label(f"L_tcb{n}")


def touch_wb(A, n):
    A(f"s_cmp_ge_u32 s{sW}, 3")
    A(f"s_cbranch_scc1 L_twb{n}")
    A(f"s_and_b32 s{sT0}, s{sRB}, 7")
    A(f"s_mul_i32 s{sT0}, s{sT0}, 80")
    A(f"s_lshl_b32 s{sT1}, s{sW}, 5")
    A(f"v_lshrrev_b32 v{vT}, 1, v{vL}")
    A(f"v_add_u32 v{vT}, s{sT1}, v{vT}")
    A(f"v_min_u32 v{vT}, 79, v{vT}")
    A(f"v_add_u32 v{vT}, s{sT0}, v{vT}")
    A(f"v_mul_u32_u24 v{vT}, 3840, v{vT}")
    A(f"v_and_b32 v{vT+1}, 1, v{vL}")
    A(f"v_lshl_add_u32 v{vT}, v{vT+1}, 7, v{vT}")
    A(f"buffer_load_dword v{G_P}, v{vT}, s[{sWB}:{sWB+3}], s{sWOFF} offen")
    A.label(f"L_twb{n}")


def touch_a(A, n):
    A(f"v_mul_u32_u24 v{vT}, 37, v{vL}")
    A(f"v_lshrrev_b32 v{vT}, 8, v{vT}")
    A(f"v_mul_u32_u24 v{vT+1}, 7, v{vT}")
    A(f"v_sub_u32 v{vT+1}, v{vL}, v{vT+1}")
    A(f"v_min_u32 v{vT}, 7, v{vT}")
    A(f"s_and_b32 s{sT0}, s{sCT}, 3")
    A(f"s_lshl_b32 s{sT0}, s{sT0}, 2")
    A(f"s_add_u32 s{sT0}, s{sT0}, s{sW}")
    A(f"s_lshl_b32 s{sT0}, s{sT0}, 3")
    A(f"v_add_u32 v{vT}, s{sT0}, v{vT}")
    A(f"v_mul_u32_u24 v{vT}, 1280, v{vT}")
    A(f"v_lshl_add_u32 v{vT}, v{vT+1}, 7, v{vT}")
    A(f"v_add_u32 v{vT}, 384, v{vT}")
    A(f"buffer_load_dword v{G_P+1}, v{vT}, s[{sX}:{sX+3}], s{sXOFF} offen")
    A(f"s_cmp_ge_u32 s{sW}, 2")
    A(f"s_cbranch_scc1 L_twa{n}")
    A(f"s_and_b32 s{sT0}, s{sRB}, 7")
    A(f"s_mul_i32 s{sT0}, s{sT0}, 56")
    A(f"s_mul_i32 s{sT1}, s{sW}, 28")
    A(f"s_add_u32 s{sT0}, s{sT0}, s{sT1}")
    A(f"s_add_u32 s{sT0}, s{sT0}, 192")
    A(f"v_lshrrev_b32 v{vT}, 1, v{vL}")
    A(f"v_min_u32 v{vT}, 27, v{vT}")
    A(f"v_add_u32 v{vT}, s{sT0}, v{vT}")
    A(f"v_mul_u32_u24 v{vT}, 3840, v{vT}")
    A(f"v_and_b32 v{vT+1}, 1, v{vL}")
    A(f"v_lshl_add_u32 v{vT}, v{vT+1}, 7, v{vT}")
    A(f"buffer_load_dword v{G_P+2}, v{vT}, s[{sWA}:{sWA+3}], s{sWOFF} offen")
    A.label(f"L_twa{n}")


def setup_phase1_reads(A):
    A(f"v_lshrrev_b32 v{vT+2}, 1, v{vR}")
    A(f"v_and_b32 v{vT+2}, 7, v{vT+2}")
    A(f"v_xor_b32 v{vT+2}, v{vT+2}, v{vHH}")
    A(f"v_lshlrev_b32 v{vT+2}, 4, v{vT+2}")
    A(f"s_lshl_b32 s{sT0}, s{sMH}, 6")
    A(f"v_add_u32 v{vT+3}, s{sT0}, v{vR}")
    A(f"v_lshl_add_u32 v{vXR}, v{vT+3}, 7, v{vT+2}")
    for ks in range(1, 4):
        A(f"v_xor_b32 v{vXR+3*ks}, {ks*32}, v{vXR}")
    for ks in range(4):
        A(f"v_add_u32 v{vXR+3*ks+1}, 0x10000, v{vXR+3*ks}")
        A(f"v_add_u32 v{vXR+3*ks+2}, 0x20000, v{vXR+3*ks}")
    A(f"v_bfe_u32 v{vT+2}, v{vL}, 2, 2")
    A(f"v_lshl_add_u32 v{vT+3}, v{vHH}, 3, v{vT+2}")
    A(f"v_lshlrev_b32 v{vT+3}, 8, v{vT+3}")
    A(f"v_bfe_u32 v{vT+4}, v{vL}, 4, 1")
    A(f"v_lshlrev_b32 v{vT+4}, 5, v{vT+4}")
    A(f"v_add_u32 v{vT+3}, v{vT+3}, v{vT+4}")
    A(f"v_and_b32 v{vT+4}, 3, v{vL}")
    A(f"v_lshlrev_b32 v{vT+4}, 3, v{vT+4}")
    A(f"v_add_u32 v{vT+3}, v{vT+3}, v{vT+4}")
    for nt in range(2):
        A(f"s_lshl_b32 s{sT0}, s{sNH}, 1")
        A(f"s_add_u32 s{sT0}, s{sT0}, {nt}")
        A(f"v_xor_b32 v{vT+4}, s{sT0}, v{vT+2}")
        A(f"v_lshl_add_u32 v{vWR1+3*nt}, v{vT+4}, 6, v{vT+3}")
        A(f"v_add_u32 v{vWR1+3*nt+1}, 0x10000, v{vWR1+3*nt}")
        A(f"v_add_u32 v{vWR1+3*nt+2}, 0x20000, v{vWR1+3*nt}")


def setup_p2_0(A):
    A(f"s_lshl_b32 s{sF1}, s{sCT}, 4")
    A(f"s_add_u32 s{sF1}, s{sF1}, s{sRB}")
    A(f"s_lshl_b32 s{sF1}, s{sF1}, 2")
    A(f"s_and_b32 s{sT0}, s2, 7")
    A(f"s_lshl_b32 s{sT0}, s{sT0}, 2")
    A(f"s_lshr_b32 s{sT1}, s2, 3")
    A(f"s_and_b32 s{sT1}, s{sT1}, 3")
    A(f"s_add_u32 s{sH}, s{sT0}, s{sT1}")
    A(f"s_lshr_b32 s{sQB}, s2, 5")
    A(f"s_lshr_b32 s{sT0}, s{sH}, 1")
    A(f"s_mul_i32 s{sT0}, s{sT0}, 5")
    A(f"s_add_u32 s{sP2L}, s{sT0}, 2")
    A(f"s_and_b32 s{sT1}, s{sH}, 1")
    A(f"s_mul_i32 s{sT1}, s{sT1}, 3")
    A(f"s_add_u32 s{sPA}, s{sT0}, s{sT1}")
    A(f"s_mul_i32 s{sVH}, s{sH}, {VH}")
    A(f"s_mul_i32 s{sLDSW}, s{sW}, 2816")
    A(f"s_mul_i32 s{sLDSW2}, s{sW}, 2560")
    A(f"s_lshl_b32 s{sQ0}, s{sQB}, 8")
    A(f"s_lshl_b32 s{sT0}, s{sW}, 5")
    A(f"s_add_u32 s{sQ0}, s{sQ0}, s{sT0}")
    A(f"s_lshl_b32 s{sQT}, s{sQB}, 2")
    A(f"s_lshr_b32 s{sT0}, s{sW}, 1")
    A(f"s_add_u32 s{sQT}, s{sQT}, s{sT0}")
    A(f"s_and_b32 s{sT1}, s{sW}, 1")
    A(f"s_lshl_b32 s{sBT}, s{sQT}, 6")
    A(f"s_add_u32 s{sBT}, s{sBT}, s{sT1}")
    A(f"s_mov_b32 s{sLO20}, 0xfffff")
    A(f"s_mov_b32 s{sLO20+1}, 0xfffff")
    A(f"v_lshlrev_b32 v{vQA}, 15, v{vHH}")
    A(f"v_lshl_add_u32 v{vQA}, v{vR}, 4, v{vQA}")
    A(f"v_lshlrev_b32 v{vQA2}, 4, v{vR}")
    A(f"v_lshlrev_b32 v{vGA}, 2, v{vR}")
    A(f"s_lshl_b32 s{sT0}, s{sQ0}, 4")
    A(f"s_lshl_b32 s{sQOFF}, s{sPA}, 15")
    A(f"s_add_u32 s{sQOFF}, s{sQOFF}, s{sT0}")
    if QA:
        A(f"s_add_u32 s{sQOFF}, s{sQOFF}, {QA}")
    A(f"s_lshl_b32 s{sQOFF2}, s{sP2L}, 15")
    A(f"s_add_u32 s{sQOFF2}, s{sQOFF2}, s{sT0}")
    A(f"s_and_b32 s{sT1}, s{sH}, 1")
    A(f"s_lshl_b32 s{sT1}, s{sT1}, 3")
    A(f"s_add_u32 s{sQOFF2}, s{sQOFF2}, s{sT1}")
    if QA:
        A(f"s_add_u32 s{sQOFF2}, s{sQOFF2}, {QA}")
    A(f"s_lshl_b32 s{sGOFF}, s{sQ0}, 2")
    A(f"s_add_u32 s{sGOFF}, s{sGOFF}, {GATE}")


def setup_p2_1(A):
    A(f"s_and_b32 s{sT1}, s{sH}, 1")
    A(f"s_lshl_b32 s{sT1}, s{sT1}, 3")
    A(f"v_lshlrev_b32 v{vT}, 12, v{vHH}")
    A(f"v_lshl_add_u32 v{vT}, v{vR}, 4, v{vT}")
    A(f"v_lshlrev_b32 v{vT+1}, 4, v{vR}")
    A(f"v_add_u32 v{vT+1}, s{sT1}, v{vT+1}")
    A(f"v_mul_u32_u24 v{vT+2}, 320, v{vHH}")
    A(f"v_lshl_add_u32 v{vT+2}, v{vR}, 4, v{vT+2}")
    A(f"v_add_u32 v{vT+3}, {ONES}, v{vT+2}")
    A(f"v_cmp_gt_u32 vcc, 20, v{vR}")
    for sl in range(NSLOT):
        A(f"v_add_u32 v{vK01+sl}, {sl*SLOT}, v{vT}")
        A(f"v_add_u32 v{vK2+sl}, {sl*SLOT}, v{vT+1}")
        A(f"v_add_u32 v{vT+4}, {sl*SLOT + 12288}, v{vT+2}")
        A(f"v_cndmask_b32 v{vV+sl}, v{vT+3}, v{vT+4}, vcc")
    A(f"s_lshl_b32 s{sT2}, s{sPA}, 15")
    A(f"s_add_u32 s{sT2}, s{sT2}, {KA}")
    A(f"s_lshl_b32 s{sT3}, s{sP2L}, 15")
    A(f"s_add_u32 s{sT3}, s{sT3}, {KA - 8192}")
    A(f"s_add_u32 s{sT4}, s{sVH}, {VA - 12288}")
    for t in range(3):
        A(f"v_add_u32 v{vT}, s{sLDSW}, v{vL16}")
        if t:
            A(f"v_add_u32 v{vT}, {1024*t}, v{vT}")
        A(f"v_lshrrev_b32 v{vT+1}, 12, v{vT}")
        A(f"v_and_b32 v{vT+2}, 4095, v{vT}")
        A(f"v_lshl_add_u32 v{vT+2}, v{vT+1}, 15, v{vT+2}")
        A(f"v_add_u32 v{vT+2}, s{sT2}, v{vT+2}")
        A(f"v_add_u32 v{vT+3}, s{sT3}, v{vT}")
        A(f"v_add_u32 v{vT+4}, s{sT4}, v{vT}")
        A(f"v_cmp_eq_u32 vcc, 2, v{vT+1}")
        A(f"v_mov_b32 v{vT+5}, 4096")
        A(f"v_mov_b32 v{vT+6}, 10240")
        A(f"v_cndmask_b32 v{vT+2}, v{vT+2}, v{vT+3}, vcc")
        A(f"v_cmp_le_u32 vcc, 3, v{vT+1}")
        A("s_nop 1")
        A(f"v_cndmask_b32 v{vCB+t}, v{vT+2}, v{vT+4}, vcc")
        A(f"v_cndmask_b32 v{vCS+t}, v{vT+5}, v{vT+6}, vcc")


def setup_p2_2(A):
    A(f"s_lshr_b32 s{sT0}, s{sH}, 1")
    A(f"s_mul_i32 s{sT0}, s{sT0}, 5")
    A(f"s_and_b32 s{sT1}, s{sH}, 1")
    A(f"s_lshl_b32 s{sT2}, s{sT1}, 1")
    A(f"s_add_u32 s{sT2}, s{sT2}, s{sT0}")
    A(f"v_add_u32 v{vT}, s{sT2}, v{vHH}")
    A(f"v_lshlrev_b32 v{vT}, 15, v{vT}")
    A(f"v_lshl_add_u32 v{vOST}, v{vR}, 4, v{vT}")
    A(f"v_lshl_add_u32 v{vOST+1}, v{vR}, 5, v{vT}")
    A(f"s_add_u32 s{sT0}, s{sT0}, 4")
    A(f"s_lshl_b32 s{sT0}, s{sT0}, 15")
    A(f"s_lshl_b32 s{sT1}, s{sT1}, 3")
    A(f"s_add_u32 s{sT0}, s{sT0}, s{sT1}")
    A(f"v_lshlrev_b32 v{vT}, 4, v{vR}")
    A(f"v_add_u32 v{vOST+2}, s{sT0}, v{vT}")
    A(f"v_lshlrev_b32 v{vT}, 5, v{vR}")
    A(f"v_add_u32 v{vOST+3}, s{sT0}, v{vT}")
    A(f"s_mul_i32 s{sT0}, s{sH}, 20")
    A(f"s_add_u32 s{sT1}, s{sT0}, 19")
    A(f"s_lshr_b32 s{sT0}, s{sT0}, 7")
    A(f"s_lshr_b32 s{sT1}, s{sT1}, 7")
    A(f"v_bfe_u32 v{vT}, v{vL}, 4, 1")
    A(f"s_sub_u32 s{sT2}, s{sT1}, s{sT0}")
    A(f"v_mul_u32_u24 v{vT+1}, s{sT2}, v{vT}")
    A(f"v_add_u32 v{vT+1}, s{sT0}, v{vT+1}")
    A(f"v_mul_u32_u24 v{vT+2}, 5, v{vHH}")
    A(f"v_add_u32 v{vT+2}, 5, v{vT+2}")
    A(f"v_add_u32 v{vT+2}, v{vT+2}, v{vT+1}")
    A(f"v_and_b32 v{vT+3}, 15, v{vL}")
    A(f"v_lshl_add_u32 v{vT+2}, v{vT+2}, 4, v{vT+3}")
    A(f"v_lshlrev_b32 v{vF1}, 2, v{vT+2}")
    A(f"v_add_u32 v{vT+2}, {15*16}, v{vT+3}")
    A(f"v_lshlrev_b32 v{vF4}, 2, v{vT+2}")
    A(f"v_and_b32 v{vT+4}, 1, v{vL}")
    A(f"s_lshl_b32 s{sT3}, s{sQB}, 1")
    A(f"v_add_u32 v{vT+4}, s{sT3}, v{vT+4}")
    A(f"v_lshl_add_u32 v{vT+4}, v{vT+1}, 4, v{vT+4}")
    A(f"v_lshlrev_b32 v{vF2}, 2, v{vT+4}")
    A(f"v_and_b32 v{vT}, 1, v{vL}")
    A(f"v_mul_u32_u24 v{vT+1}, s{sT2}, v{vT}")
    A(f"v_add_u32 v{vT+1}, s{sT0}, v{vT+1}")
    A(f"v_bfe_u32 v{vT+2}, v{vL}, 1, 2")
    A(f"v_min_u32 v{vT+2}, 2, v{vT+2}")
    A(f"v_mul_u32_u24 v{vT+2}, 5, v{vT+2}")
    A(f"v_add_u32 v{vT+1}, v{vT+1}, v{vT+2}")
    A(f"s_lshl_b32 s{sT3}, s{sQB}, 1")
    A(f"v_bfe_u32 v{vT+2}, v{vL}, 3, 2")
    A(f"v_min_u32 v{vT+2}, 2, v{vT+2}")
    A(f"v_add_u32 v{vT+2}, s{sT3}, v{vT+2}")
    A(f"v_max_u32 v{vT+2}, 1, v{vT+2}")
    A(f"v_subrev_u32 v{vT+2}, 1, v{vT+2}")
    A(f"v_lshl_add_u32 v{vT+1}, v{vT+1}, 4, v{vT+2}")
    A(f"v_lshlrev_b32 v{vF3}, 2, v{vT+1}")


def setup_p2_3(A):
    A(f"v_lshlrev_b32 v{vBA}, 15, v{vHH}")
    A(f"v_lshl_add_u32 v{vBA}, v{vR}, 4, v{vBA}")
    A(f"v_lshlrev_b32 v{vBA+1}, 4, v{vR}")
    A(f"v_and_b32 v{vT+2}, 25, v{vR}")
    A(f"v_bfe_u32 v{vT+3}, v{vR}, 1, 1")
    A(f"v_lshl_or_b32 v{vT+2}, v{vT+3}, 2, v{vT+2}")
    A(f"v_bfe_u32 v{vT+3}, v{vR}, 2, 1")
    A(f"v_lshl_or_b32 v{vT+2}, v{vT+3}, 1, v{vT+2}")
    A(f"v_lshlrev_b32 v{vT+3}, 15, v{vHH}")
    A(f"v_lshl_add_u32 v{vBA+2}, v{vT+2}, 4, v{vT+3}")
    A(f"v_lshlrev_b32 v{vBA+3}, 4, v{vT+2}")
    A(f"v_mul_u32_u24 v{vT+4}, 320, v{vHH}")
    A(f"v_lshl_add_u32 v{vBA+4}, v{vR}, 4, v{vT+4}")
    A(f"s_and_b32 s{sT1}, s{sW}, 1")
    A(f"s_lshl_b32 s{sT1}, s{sT1}, 10")
    A(f"s_lshl_b32 s{sT0}, s{sQT}, 5")
    A(f"s_add_u32 s{sT2}, s{sT1}, s{sT0}")
    A(f"s_lshl_b32 s{sT0}, s{sPA}, 15")
    A(f"s_lshl_b32 s{sT1}, s{sP2L}, 15")
    A(f"s_and_b32 s{sT3}, s{sH}, 1")
    A(f"s_lshl_b32 s{sT3}, s{sT3}, 3")
    A(f"s_add_u32 s{sT1}, s{sT1}, s{sT3}")
    for prev in range(2):
        if prev:
            A(f"s_cmp_eq_u32 s{sQT}, 0")
            A(f"s_cselect_b32 s{sT3}, 0, 32")
            A(f"s_sub_u32 s{sT2}, s{sT2}, s{sT3}")
        A(f"s_lshl_b32 s{sT3}, s{sT2}, 4")
        if not prev:
            A(f"s_add_u32 s{sBA}, s{sT3}, s{sT0}")
            A(f"s_add_u32 s{sBA}, s{sBA}, {QB}")
            A(f"s_add_u32 s{sBA+1}, s{sT3}, s{sT1}")
            A(f"s_add_u32 s{sBA+1}, s{sBA+1}, {QB}")
        o = sBA + 2 + 3 * prev
        A(f"s_add_u32 s{o}, s{sT3}, s{sT0}")
        A(f"s_add_u32 s{o}, s{o}, {KB}")
        A(f"s_add_u32 s{o+1}, s{sT3}, s{sT1}")
        A(f"s_add_u32 s{o+1}, s{o+1}, {KB}")
        A(f"s_lshr_b32 s{sT3}, s{sT2}, 4")
        A(f"s_mul_i32 s{sT3}, s{sT3}, 640")
        A(f"s_add_u32 s{o+2}, s{sT3}, s{sVH}")
        A(f"s_add_u32 s{o+2}, s{o+2}, {VB}")
    A(f"s_lshl_b32 s{sBA+8}, s{sBT}, 2")
    A(f"s_add_u32 s{sBA+8}, s{sBA+8}, {GATE}")


def setup_p2_4(A):
    sRT, sCO, sTG = sT1, sT2, sT3
    A(f"s_lshr_b32 s{sRT}, s{sH}, 3")
    A(f"s_lshl_b32 s{sT0}, s{sQB}, 2")
    A(f"s_add_u32 s{sRT}, s{sRT}, s{sT0}")
    A(f"s_and_b32 s{sCO}, s{sH}, 7")
    A(f"s_and_b32 s{sTG}, s{sW}, 3")
    A(f"s_lshr_b32 s{sKG}, s{sW}, 2")
    A(f"s_lshl_b32 s{sFLG}, s{sRT}, 8")
    A(f"s_mul_i32 s{sWSRC}, s{sW}, 20480")
    A(f"s_mul_i32 s{sT0}, s{sCO}, 1280")
    A(f"s_add_u32 s{sWSRC}, s{sWSRC}, s{sT0}")
    A(f"s_add_u32 s{sWSRC}, s{sWSRC}, {WOT}")
    A(f"s_lshl_b32 s{sRT}, s{sRT}, 6")
    A(f"s_lshl_b32 s{sTG}, s{sTG}, 4")
    A(f"s_add_u32 s{sRT}, s{sRT}, s{sTG}")
    A(f"s_mul_i32 s{sOUTO}, s{sRT}, 1280")
    A(f"s_mul_i32 s{sT0}, s{sCO}, 160")
    A(f"s_add_u32 s{sOUTO}, s{sOUTO}, s{sT0}")
    A(f"s_lshl_b32 s{sOCB}, s{sRT}, 4")
    A(f"s_mul_i32 s{sT0}, s{sKG}, {40*32768}")
    A(f"s_add_u32 s{sOCB}, s{sOCB}, s{sT0}")
    A(f"s_add_u32 s{sOCB}, s{sOCB}, {OC}")
    A(f"s_lshl_b32 s{sPUB}, s{sQT}, 6")
    A(f"s_lshl_b32 s{sT0}, s{sH}, 1")
    A(f"s_add_u32 s{sPUB}, s{sPUB}, s{sT0}")
    A(f"s_and_b32 s{sT0}, s{sW}, 1")
    A(f"s_add_u32 s{sPUB}, s{sPUB}, s{sT0}")
    A(f"s_lshl_b32 s{sPUB}, s{sPUB}, 2")
    A(f"v_lshlrev_b32 v{vFA}, 2, v{vL}")
    A(f"v_mov_b32 v{vW0}, v{vL16}")
    A(f"v_add_u32 v{vT}, 1024, v{vL16}")
    A(f"v_add_u32 v{vT+1}, {10240 - 256}, v{vL16}")
    A(f"v_cmp_gt_u32 vcc, 16, v{vL}")
    A(f"v_add_u32 v{vW2}, {10240 + 768}, v{vL16}")
    A(f"v_lshrrev_b32 v{vT+2}, 4, v{vL}")
    A(f"v_cndmask_b32 v{vW1}, v{vT+1}, v{vT}, vcc")
    A(f"v_and_b32 v{vT+3}, 15, v{vL}")
    A(f"v_lshlrev_b32 v{vT+4}, 15, v{vT+2}")
    A(f"v_lshl_add_u32 v{vOC}, v{vT+3}, 4, v{vT+4}")
    A(f"v_mul_u32_u24 v{vT+4}, 1280, v{vT+2}")
    A(f"v_lshl_add_u32 v{vWR}, v{vT+3}, 4, v{vT+4}")
    A(f"v_mul_u32_u24 v{vT+4}, 1280, v{vT+3}")
    A(f"v_lshl_add_u32 v{vST}, v{vT+2}, 3, v{vT+4}")


SETUP_P2 = [setup_p2_0, setup_p2_1, setup_p2_2, setup_p2_3, setup_p2_4]


def setup_phase2(A):
    for f in SETUP_P2:
        f(A)


def pattern_fill(A):
    for r in range(2):
        A(f"v_add_u32 v{vT}, {512*r}, v0")
        A(f"v_mul_u32_u24 v{vT+1}, 3277, v{vT}")
        A(f"v_lshrrev_b32 v{vT+1}, 16, v{vT+1}")
        A(f"v_mul_u32_u24 v{vT+1}, 20, v{vT+1}")
        A(f"v_cmp_eq_u32 vcc, v{vT+1}, v{vT}")
        A(f"v_mov_b32 v{vT+4}, 0")
        A(f"v_mov_b32 v{vT+5}, 0x3f803f80")
        A(f"v_cndmask_b32 v{vT+4}, v{vT+4}, v{vT+5}, vcc")
        for i in range(1, 4):
            A(f"v_mov_b32 v{vT+4+i}, v{vT+4}")
        if r == 1:
            A(f"v_cmp_gt_u32 vcc, {PAT_UNITS}, v{vT}")
        A(f"v_lshlrev_b32 v{vT}, 4, v{vT}")
        A(f"v_add_u32 v{vT}, {ONES}, v{vT}")
        if r == 1:
            A("s_and_saveexec_b64 s[%d:%d], vcc" % (sT4, sT5))
            A("s_cbranch_execz L_pat_done")
        A.lds(f"ds_write_b128 v{vT}, {v(vT+4,4)}", "pat")
    A.label("L_pat_done")
    A("s_mov_b64 exec, -1")


def gen(prof=False):
    A = Asm()
    A.prof = prof
    A.PROF_V = 239
    kernel_header(A, NAME)
    A("s_cmp_ge_u32 s2, 256")
    A("s_cbranch_scc1 L_end")
    A.stamp("start")
    if EXP.get("jit"):
        A(f"s_mov_b32 s{sW}, 0")
        jitter(A)
    A("s_load_dwordx4 s[4:7], s[0:1], 0")
    A(f"s_load_dwordx2 s[{sP}:{sP+1}], s[0:1], 32")
    A(f"s_load_dwordx2 s[{sP+2}:{sP+3}], s[0:1], 72")
    A(f"s_load_dwordx4 s[{sDBG}:{sDBG+3}], s[0:1], 56")
    A(f"v_lshrrev_b32 v{vT}, 6, v0")
    A(f"v_and_b32 v{vL}, 63, v0")
    A(f"v_readfirstlane_b32 s{sW}, v{vT}")
    A(f"v_and_b32 v{vR}, 31, v{vL}")
    A(f"v_lshrrev_b32 v{vHH}, 5, v{vL}")
    A(f"v_lshlrev_b32 v{vL16}, 4, v{vL}")
    A(f"s_and_b32 s{sT0}, s2, 7")
    A(f"s_lshr_b32 s{sT1}, s2, 3")
    A(f"s_and_b32 s{sRB}, s{sT0}, 1")
    A(f"s_lshl_b32 s{sRB}, s{sRB}, 3")
    A(f"s_and_b32 s{sT2}, s{sT1}, 7")
    A(f"s_add_u32 s{sRB}, s{sRB}, s{sT2}")
    A(f"s_lshr_b32 s{sCT}, s{sT0}, 1")
    A(f"s_lshl_b32 s{sCT}, s{sCT}, 2")
    A(f"s_lshr_b32 s{sT2}, s{sT1}, 3")
    A(f"s_add_u32 s{sCT}, s{sCT}, s{sT2}")
    A(f"s_and_b32 s{sGI}, s{sW}, 3")
    A(f"s_and_b32 s{sMH}, s{sGI}, 1")
    A(f"s_lshr_b32 s{sNH}, s{sGI}, 1")
    A(f"s_mul_i32 s{sXOFF}, s{sRB}, {128*1280}")
    A(f"s_lshl_b32 s{sWOFF}, s{sCT}, 8")
    A(f"s_lshl_b32 s{sLDS1}, s{sGI}, 10")
    A(f"s_mul_hi_u32 s{sT0}, s{sCT}, 0x33333334")
    A(f"s_mul_i32 s{sT0}, s{sT0}, 5")
    A(f"s_sub_u32 s{sCT5}, s{sCT}, s{sT0}")
    A(f"v_lshrrev_b32 v{vT}, 3, v{vL}")
    A(f"s_lshl_b32 s{sT0}, s{sGI}, 3")
    A(f"v_add_u32 v{vT}, s{sT0}, v{vT}")
    A(f"v_lshrrev_b32 v{vT+1}, 1, v{vT}")
    A(f"v_xor_b32 v{vT+1}, v{vT+1}, v{vL}")
    A(f"v_and_b32 v{vT+1}, 7, v{vT+1}")
    A(f"v_lshlrev_b32 v{vT+1}, 4, v{vT+1}")
    A(f"v_mul_u32_u24 v{vT+2}, 1280, v{vT}")
    A(f"v_add_u32 v{vXD}, v{vT+2}, v{vT+1}")
    A(f"v_lshrrev_b32 v{vT}, 4, v{vL}")
    A(f"v_lshlrev_b32 v{vT+1}, 2, v{vT}")
    A(f"v_xor_b32 v{vT+1}, v{vT+1}, v{vL}")
    A(f"v_and_b32 v{vT+1}, 15, v{vT+1}")
    A(f"v_lshlrev_b32 v{vT+1}, 4, v{vT+1}")
    A(f"s_lshl_b32 s{sT0}, s{sGI}, 2")
    A(f"v_add_u32 v{vT}, s{sT0}, v{vT}")
    A(f"v_mul_u32_u24 v{vT}, 3840, v{vT}")
    A(f"v_add_u32 v{vWD}, v{vT}, v{vT+1}")
    if EXP.get("stampP"):
        A("s_memtime s[96:97]")
        A("s_memrealtime s[98:99]")
    A("s_waitcnt lgkmcnt(0)")
    if EXP.get("stampP"):
        A(f"v_writelane_b32 v{A.PROF_V}, s96, 14")
        A(f"v_writelane_b32 v{A.PROF_V}, s98, 30")
        A.stamp("", 15)
    srd(A, sX, 4, X_BYTES)
    srd(A, sWA, 6, W_BYTES)
    srd(A, sWB, sP, W_BYTES)
    srd(A, sWS, sP + 2, WS_USED)
    srd(A, sOUT, sDBG, OUT_BYTES)
    A(f"s_mov_b32 s{sDBG}, s{sDBG+2}")
    A(f"s_and_b32 s{sDBG+1}, s{sDBG+3}, 0xffff")
    A(f"s_mov_b32 s{sDBG+2}, 256")
    A(f"s_mov_b32 s{sDBG+3}, 0x20000")
    A(f"s_cmp_eq_u32 s{sCT}, 15")
    A("s_cbranch_scc1 L_nodma")
    A(f"s_cmp_lt_u32 s{sW}, 4")
    A("s_cbranch_scc1 L_nodma")
    for b in range(3):
        for p in range(8):
            g_dma(A, b, p)
    A(f"s_cmp_ge_u32 s{sCT}, 10")
    A("s_cbranch_scc1 L_g1n")
    A("s_branch L_g1t")
    A.label("L_nodma")
    if EXP.get("tchip", 1) in (1, 2, 3):
        touch_chip(A, {1: "xab", 2: "xa", 3: "b"}[EXP.get("tchip", 1)])
    if EXP.get("tchip") == 6:
        touch_chip_wide(A, "xa", "e")
    if EXP.get("tchip") == 7:
        touch_chip_wide(A, "ax", "e")
    A(f"s_or_b32 s{sT0}, s2, s{sW}")
    A(f"s_cmp_lg_u32 s{sT0}, 0")
    A("s_cbranch_scc1 L_nonce_done")
    A(f"s_memrealtime s[{sT4}:{sT5}]")
    A("s_waitcnt lgkmcnt(0)")
    A(f"s_or_b32 s{sT0}, s{sT4}, 1")
    A(f"v_mov_b32 v{vT}, s{sT0}")
    A(f"v_mov_b32 v{vT+1}, 0")
    A("s_mov_b64 exec, 1")
    A(f"buffer_store_dword v{vT}, v{vT+1}, s[{sDBG}:{sDBG+3}], 0 offen sc1")
    A("s_mov_b64 exec, -1")
    A.label("L_nonce_done")
    if EXP.get("cpf"):
        A(f"s_lshr_b32 s{sT1}, s2, 3")
        A(f"s_cmp_ge_u32 s{sT1}, 8")
        A("s_cbranch_scc1 L_cpf_done")
        A(f"s_cmp_lg_u32 s{sW}, {EXP['cpf'] - 1}")
        A("s_cbranch_scc1 L_cpf_done")
        A(f"s_getpc_b64 s[{sT4}:{sT5}]")
        A.label("L_cpf_pc")
        A(f"s_sub_u32 s{sT4}, s{sT4}, L_cpf_pc - {NAME}")
        A(f"s_subb_u32 s{sT5}, s{sT5}, 0")
        A(f"s_lshl_b32 s{sT1}, s{sT1}, 13")
        A(f"v_lshlrev_b32 v{vT}, 7, v{vL}")
        A(f"v_add_u32 v{vT}, s{sT1}, v{vT}")
        A(f"v_min_u32 v{vT}, L_end - {NAME}, v{vT}")
        A(f"global_load_dword v{G_P}, v{vT}, s[{sT4}:{sT5}]")
        A.label("L_cpf_done")
    if EXP.get("tchip") in (10, 11, 12):
        m = EXP["tchip"]
        if m == 10:
            touch_phase(A, 0)
        setup_phase1_reads(A)
        if m != 10:
            touch_phase(A, 0)
        for k, f in enumerate(SETUP_P2):
            if k == (1 if m != 12 else 2):
                touch_phase(A, 1)
            f(A)
        touch_phase(A, 2)
    elif EXP.get("tchip") in (5, 9):
        setup_phase1_reads(A)
        touch_chip(A, "xa" if EXP["tchip"] == 5 else "xab")
        setup_phase2(A)
    else:
        setup_phase1_reads(A)
        setup_phase2(A)
    if EXP.get("tchip") == 4:
        touch_chip(A, "xa")
    if EXP.get("tchip") == 8:
        touch_chip(A, "xab")
    A.stamp("issued")
    A(f"s_cmp_eq_u32 s{sCT}, 15")
    A("s_cbranch_scc1 L_spare")
    A(f"s_cmp_ge_u32 s{sCT}, 10")
    A("s_cbranch_scc1 L_vtile")
    if prof:
        A.stamps += ["blk0 landed", "gemm0", "epi0", "gemm1", "epi1"]
        if EXP.get("stampB"):
            A.stamps += ["B10", "B12", "B14", "B16"]
        if EXP.get("stampA"):
            A.stamps += ["B0", "B2", "B4", "B6"]
    gemm(A, True, "t")
    A("s_branch L_attn")
    A.label("L_vtile")
    gemm(A, False, "n")
    A.label("L_attn")
    A.vm_q, A.lds_q = [], []
    jitter(A)
    A("s_barrier")
    A.stamp("attn start")
    if EXP.get("prio") == 1:
        A(f"s_cmp_lt_u32 s{sW}, 4")
        A("s_cbranch_scc1 L_prio_done")
        A("s_setprio 1")
        A.label("L_prio_done")
    rd_k01(A, 0)
    rd_k2(A, 0)
    dma_chunk(A, 3)
    pattern_fill(A)
    b_consts(A)
    A.lds_wait_all()
    mf16(A, SA, K01, Q01, "0")
    mf8(A, SA, K2, Q2, v(SA, 16))
    A("s_nop 7")
    A("s_nop 5")
    max16(A, vT, SA, True)
    cross_half_max(A, vT, vT + 1)
    for i in range(16):
        A(f"v_sub_f32 v{NEGM+i}, 0, v{vT}")
    A("s_nop 1")
    mf16(A, SA, K01, Q01, v(NEGM, 16))
    mf8(A, SA, K2, Q2, v(SA, 16))
    A("s_barrier")
    rd_k01(A, 1)
    rd_k2(A, 1)
    rd_v(A, 0, 0)
    A("s_nop 7")
    A("s_nop 3")
    NT = 64
    sched = {}
    def at(t, half, fn):
        sched.setdefault((t, half), []).append(fn)
    fb_items = [(vFL, vF3, F1B, None), (vFL2, vF4, F1A, None)]
    pos = {}
    def issue(name, items):
        def f(A):
            pos[name] = poll_issue(A, items, name)
        return f
    at(13, 0, issue("f1b", fb_items))
    pre_barrier = {22: lambda A: poll_check(A, fb_items, pos["f1b"], "f1b"),
                   54: lambda A: poll_check(A, fo_items, pos["fb"], "fb")}
    at(22, 1, lambda A: A.vm(f"buffer_load_dword v{vG}, v{vGA}, {WS}, s{sGOFF} offen sc1", "g"))
    for i, f in enumerate(b_load_items()):
        at(23 + i // 2, i % 2, f)
    at(31, 0, b_unit)
    at(38, 1, lambda A: publish(A, sPUB, FLAGB, "stb"))
    fo_items = [(vFL, vFA, FLAGB, sFLG)]
    at(48, 0, issue("fb", fo_items))
    for k in range(10):
        at(55 + k // 2, k % 2, lambda A, k=k: oc_load(A, 1, k))
    for st in range(3):
        for p in range(3):
            i = 3 * st + p
            at(42 + i // 2, i % 2, lambda A, st=st, p=p: dma_w_piece(A, 1, st, p))
    for st in range(3, 5):
        for p in range(3):
            i = 3 * (st - 3) + p
            at(57 + i // 2, 1 - i % 2, lambda A, st=st, p=p: dma_w_piece(A, 1, st, p))
    for c in range(2, NCH - 2):
        t0 = 32 if c == 4 else TPC * c - 1
        for p in range(3):
            at(t0 + (p + 1) // 2, (p + 1) % 2, lambda A, c=c, p=p: dma_chunk_piece(A, c + 2, p))
    for t in range(NT):
        cur = SA if t % 2 == 0 else SB
        nxt = SB if t % 2 == 0 else SA
        if (t == 32 and not (EXP.get("stampB") or EXP.get("stampA"))) or (EXP.get("stampB") and t in (21, 24)):
            A.stamp("t%d" % t)
        if t % TPC == TPC - 2 and t + 2 < NT:
            c = (t + 2) // TPC
            if c == 1:
                A.vm_wait_all()
            if c == 3:
                A.vm_wait(("c", 4))
            A.vm_wait(("c", c))
            if t in pre_barrier:
                pre_barrier[t](A)
            A("s_barrier")
            if c == 1:
                with Wave0(A, "pubb"):
                    publish(A, sF1, F1B)
        if EXP.get("prio") == 2 and t == 55:
            A(f"s_cmp_lt_u32 s{sW}, 4")
            A("s_cbranch_scc1 L_prio_done")
            A("s_setprio 1")
            A.label("L_prio_done")
        if EXP.get("prio") == 3 and t % 8 == 7:
            A(f"s_lshr_b32 s{sT0}, s{sW}, 2")
            A(f"s_cmp_eq_u32 s{sT0}, {(t // 8) % 2}")
            A(f"s_cbranch_scc1 L_prio_a{t}")
            A("s_setprio 0")
            A(f"s_branch L_prio_b{t}")
            A.label(f"L_prio_a{t}")
            A("s_setprio 1")
            A.label(f"L_prio_b{t}")
        if EXP.get("xbar") and t == EXP["xbar"]:
            A("s_barrier")
        if t == 63:
            A.vm_wait(("w", 1, 4))
        for f in sched.get((t, 0), []):
            f(A)
        if t + 1 < NT:
            A.lds_wait(("k01", t + 1))
            mf16(A, nxt, K01, Q01, "0" if EXP.get("m0") else v(NEGM, 16))
            if t + 2 < NT:
                rd_k01(A, t + 2)
        exps(A, cur, 0)
        if t > 0:
            A.lds_wait(("v", t - 1, 1))
            mf16(A, O, V1, P + 4, v(O, 16))
        rd_v(A, t, 1)
        exps(A, cur, 1)
        for f in sched.get((t, 1), []):
            f(A)
        if t + 1 < NT:
            A.lds_wait(("k2", t + 1))
            mf8(A, nxt, K2, Q2, v(nxt, 16))
            if t + 2 < NT:
                rd_k2(A, t + 2)
        exps(A, cur, 2)
        A.lds_wait(("v", t, 0))
        mf16(A, O, V0, P, "0" if t == 0 else v(O, 16))
        if t + 1 < NT:
            rd_v(A, t + 1, 0)
        exps(A, cur, 3)
    A.lds_wait(("v", NT - 1, 1))
    A("s_nop 1")
    mf16(A, O, V1, P + 4, v(O, 16))
    A(f"v_add_u32 v{vT+5}, 0x10000, v{vWR}")
    A(f"v_add_u32 v{vT+6}, 0x20000, v{vWR}")
    A(f"v_mov_b32 v{vT+3}, {hex(f32bits(BIG))}")
    A("s_nop 7")
    A("s_nop 3")
    A.stamp("loop end")
    row_sum(A, O)
    A(f"v_mul_f32 v{vT+2}, 0, v{O}")
    for i in range(1, 12):
        A(f"v_fma_f32 v{vT+2}, v{O+i}, 0, v{vT+2}")
    A(f"v_add_f32 v{vT+2}, v{vT+2}, v{vT+1}")
    A(f"v_cmp_lt_f32 vcc, v{vT+2}, v{vT+3}")
    A("s_nop 4")
    A("s_cmp_eq_u64 vcc, exec")
    A("s_cbranch_scc0 L_fallback")
    A.label("L_finish")
    jitter(A, True)
    A.vm_wait("g")
    finish_tile(A, O, vG, False, vOST, sQ0, 0, "sta")
    A(f"v_add_u32 v{vT+5}, 0x10000, v{vWR}")
    A(f"v_add_u32 v{vT+6}, 0x20000, v{vWR}")
    A("s_barrier")
    A.stamp("ring free") if not (EXP.get("stampB") or EXP.get("stampA")) else None
    wa = [(st, p) for st in range(2) for p in range(3)]

    def hook_b(k, kg):
        pk = EXP.get("pubk", 2)
        if k == pk:
            publish(A, sPUB, FLAGA, "sta")
        if pk <= k < pk + 6:
            st, p = wa[k - pk]
            dma_w_piece(A, 0, st, p)
    outproj(A, 1, True, hook_b)
    A.stamp("b part") if not (EXP.get("stampB") or EXP.get("stampA")) else None
    A("s_barrier")
    for st in range(2, 5):
        for p in range(3):
            dma_w_piece(A, 0, st, p)
    if EXP.get("notight"):
        fa_items = [(vFL, vFA, FLAGA, sFLG)]
        pfa = poll_issue(A, fa_items, "fa")
        poll_check(A, fa_items, pfa, "fa")
    else:
        poll_tight(A, FLAGA, sFLG, vFA, "fa")
    A.vm_wait(("w", 0, 4))
    A("s_barrier")
    A.stamp("flags a") if not (EXP.get("stampB") or EXP.get("stampA")) else None
    for k in range(10):
        oc_load(A, 0, k)
    outproj(A, 0, False)
    A.stamp("a part") if not (EXP.get("stampB") or EXP.get("stampA")) else None
    A(f"s_and_b32 s{sT0}, s{sW}, 3")
    A(f"s_mul_i32 s{sT0}, s{sT0}, 5120")
    A(f"v_add_u32 v{vT}, s{sT0}, v{vL16}")
    A(f"s_cmp_eq_u32 s{sKG}, 0")
    A("s_cbranch_scc1 L_red_a")

    def finish_out(tiles):
        A.lds_q = []
        for nt in tiles:
            A.lds(f"ds_read_b128 {v(WF+4*nt,4)}, v{vT} offset:{nt*1024}", ("r", nt))
        for nt in tiles:
            A.lds_wait(("r", nt))
            for i in range(4):
                A(f"v_add_f32 v{ACC+4*nt+i}, v{ACC+4*nt+i}, v{WF+4*nt+i}")
            A(f"v_cvt_pk_bf16_f32 v{ACC+4*nt}, v{ACC+4*nt}, v{ACC+4*nt+1}")
            A(f"v_cvt_pk_bf16_f32 v{ACC+4*nt+1}, v{ACC+4*nt+2}, v{ACC+4*nt+3}")
            A.vm(f"buffer_store_dwordx2 {v(ACC+4*nt,2)}, v{vST}, s[{sOUT}:{sOUT+3}], s{sOUTO} offen offset:{nt*32}{EXP.get('outst','')}", "st")

    A("s_nop 5")
    for nt in range(3):
        A(f"ds_write_b128 v{vT}, {v(ACC+4*nt,4)} offset:{nt*1024}")
    A("s_waitcnt lgkmcnt(0)")
    A("s_barrier")
    finish_out((3, 4))
    if prof:
        A.stamp("", len(A.stamps))
        A.stamp_flush(0, sWS, PROF, vT + 2)
    A("s_endpgm")
    A.label("L_red_a")
    A("s_nop 5")
    for nt in (3, 4):
        A(f"ds_write_b128 v{vT}, {v(ACC+4*nt,4)} offset:{nt*1024}")
    A("s_waitcnt lgkmcnt(0)")
    A("s_barrier")
    finish_out((0, 1, 2))
    A.stamp("end")
    if prof and EXP.get("dbg"):
        with Wave0(A, "dbgout"):
            A(f"v_subrev_u32 v{vT}, s{sNONCE}, v{A.PROF_V}")
            A(f"v_subrev_u32 v{vT+1}, 16, v{vL}")
            A(f"v_lshlrev_b32 v{vT+1}, 2, v{vT+1}")
            if EXP["dbg"] == 2:
                A(f"v_sub_u32 v{vT}, 0x100000, v{vT}")
            A("s_mov_b32 exec_lo, 0xfffe0000")
            A("s_mov_b32 exec_hi, 0")
            A(f"buffer_atomic_umax v{vT}, v{vT+1}, s[{sDBG}:{sDBG+3}], 0 offen")
            A("s_mov_b64 exec, -1")
    A.stamp_flush(0, sWS, PROF, vT)
    A("s_endpgm")
    fallback(A)
    spare(A)
    A.label("L_end")
    A("s_endpgm")
    kernel_footer(A, NAME, NV, 100 if EXP.get("jit") else 96)
    gen.stamps = getattr(A, "stamps", [])
    if prof and EXP.get("stampP"):
        assert len(gen.stamps) == 14, len(gen.stamps)
        gen.stamps = gen.stamps + ["pre-kernarg", "kernarg"]
    return A.text()

if __name__ == "__main__":
    print(gen())
```

```python
from asmlib import *
from layout2 import *

NAME = "gated_mix__softmax_full_mha__sliding_local_dilated__prompt_kernel"
EXP = {}
STAGE, NST, NB = 32768, 5, 20
SLOT = CHB
NSLOT = 4
TPC = CH // 32
NCH = S // CH
ONES = 4 * SLOT
PAT_UNITS = 672
WBASE = ONES + PAT_UNITS * 16
WSTG = 20480
LDS_BYTES = 163840
WB_OFF = [WBASE, WBASE + WSTG, WBASE + 2 * WSTG, 0, SLOT]
WA_OFF = [2 * SLOT, 3 * SLOT, WBASE, WBASE + WSTG, WBASE + 2 * WSTG]
assert WBASE + 3 * WSTG <= LDS_BYTES
BIG = 2.0 ** 64
SPIN_MAX = 1 << 16
sWS, sOUT = 8, 12
sW, sNONCE = 16, 17
sH, sQB, sPA, sLDSW, sLDSW2, sWSRC, sOCB, sFLG, sPUB, sOUTO, sKG, sQ0, sBT, sQT = range(18, 32)
sT0, sT1, sT2, sT3, sT4, sT5 = range(32, 38)
sM = 38
sLO20 = 40
sCNT = 42
sP2L = 43
sDBG = 44
sBA = 48
sVH = 57
sX, sWA, sWB = 60, 64, 68
sRB, sCT, sMH, sNH, sXOFF, sWOFF, sLDS1, sCT5, sTP, sB16, sQS, sGI = range(72, 84)
sQOFF, sQOFF2, sGOFF, sF1 = 88, 89, 90, 91
sP = 92
vL, vR, vHH = 1, 2, 3
vK01, vK2, vV = 4, 8, 12
vL16, vG, vGB, vFL = 16, 17, 18, 19
vT = 20
SA, SB, NEGM, O, P = 28, 44, 60, 76, 92
Q01, Q2, K01, K2, V0, V1 = 100, 104, 108, 112, 116, 120
BQ01, BQ2, BK01, BK2, BKP01, BKP2 = 124, 128, 132, 136, 140, 144
BV0, BV1, BVP, BS0, BS1, BO, BP = 148, 152, 156, 160, 176, 192, 208
vBA = 220
vW0, vW1, vW2, vOC, vWR, vST, vFA = 225, 226, 227, 228, 229, 230, 231
vF1, vF2, vF3, vF4 = 232, 233, 234, 241
vFL2 = 235
vQA, vQA2, vGA = 236, 237, 238
vOST = 252
vXD, vWD = 242, 243
vCB, vCS = 244, 247
vCT = 250
NV = 256
OCB, OCA, ACC, WF = 124, 164, 204, 28
G_ACC = 124
G_F = 28
G_P = 188
vA16 = 76
vXR, vWR1 = 106, 118
WS = f"s[{sWS}:{sWS+3}]"


def st1():
    return " sc1"


def publish(A, soff_reg, base, tag=None):
    if tag is not None:
        A.vm_wait(tag)
    A(f"v_mov_b32 v{vT}, s{sNONCE}")
    A(f"v_mov_b32 v{vT+1}, 0")
    A(f"s_add_u32 s{sT0}, s{soff_reg}, {base}")
    A("s_mov_b64 exec, 1")
    A.vm(f"buffer_store_dword v{vT}, v{vT+1}, {WS}, s{sT0} offen sc1", "pub")
    A("s_mov_b64 exec, -1")


_jit_n = [0]
def jitter(A, per_wave=False):
    if not EXP.get("jit"):
        return
    _jit_n[0] += 1
    k = _jit_n[0]
    A(f"s_mul_i32 s96, s2, {(2654435761 * (k + EXP['jit'])) & 0x7fffffff | 1}")
    if per_wave:
        A(f"s_mul_i32 s97, s{sW}, {(40503 * (k + 7)) | 1}")
        A("s_add_u32 s96, s96, s97")
    A("s_lshr_b32 s96, s96, 20")
    A("s_and_b32 s96, s96, 15")
    A("s_cmp_lt_u32 s96, 12")
    A(f"s_cbranch_scc1 L_jit{k}_done")
    A("s_and_b32 s96, s96, 3")
    A("s_add_u32 s96, s96, 1")
    A.label(f"L_jit{k}")
    A("s_sleep 32")
    A("s_sub_u32 s96, s96, 1")
    A("s_cmp_lg_u32 s96, 0")
    A(f"s_cbranch_scc1 L_jit{k}")
    A.label(f"L_jit{k}_done")


class Wave0:
    def __init__(self, A, name):
        self.A, self.name = A, name
    def __enter__(self):
        A = self.A
        A(f"s_cmp_lg_u32 s{sW}, 0")
        A(f"s_cbranch_scc1 L_w0_{self.name}")
        self.saved = (list(A.vm_q), dict(A.vm_counts or {}))
    def __exit__(self, *a):
        A = self.A
        A.vm_q, A.vm_counts = self.saved[0], (self.saved[1] or None)
        A.label(f"L_w0_{self.name}")


def _poll_loads(A, items):
    for (vdst, voff, base, soff_reg) in items:
        if soff_reg is None:
            A(f"s_mov_b32 s{sT0}, {base}")
        else:
            A(f"s_add_u32 s{sT0}, s{soff_reg}, {base}")
        A(f"buffer_load_dword v{vdst}, v{voff}, {WS}, s{sT0} offen sc1")


def poll_issue(A, items, name):
    with Wave0(A, name + "_i"):
        _poll_loads(A, items)
    return A.vm_pos("L")


def poll_check(A, items, pos, name, inv=False, drain=False):
    def compare():
        for i, (vdst, _, _, _) in enumerate(items):
            if i == 0:
                A(f"v_cmp_eq_u32 vcc, s{sNONCE}, v{vdst}")
            else:
                A(f"v_cmp_eq_u32 s[{sT4}:{sT5}], s{sNONCE}, v{vdst}")
                A("s_nop 3")
                A(f"s_and_b64 vcc, vcc, s[{sT4}:{sT5}]")
        A("s_nop 3")
        A("s_cmp_eq_u64 vcc, exec")
    with Wave0(A, name + "_c"):
        A(f"s_waitcnt vmcnt({A.vm_pos('L') - pos})")
        compare()
        A(f"s_cbranch_scc1 L_{name}_ok")
        A(f"s_mov_b32 s{sCNT}, 0")
        A.label(f"L_{name}_spin")
        A("s_sleep 2")
        _poll_loads(A, items)
        A(f"s_add_u32 s{sCNT}, s{sCNT}, 1")
        A(f"s_cmp_ge_u32 s{sCNT}, {SPIN_MAX}")
        A(f"s_cbranch_scc1 L_{name}_ok")
        A("s_waitcnt vmcnt(0)")
        compare()
        A(f"s_cbranch_scc0 L_{name}_spin")
        A.label(f"L_{name}_ok")
        if inv:
            A("buffer_inv sc1")
        if drain:
            A("s_waitcnt vmcnt(0)")


def poll_tight(A, base, soff_reg, voff, name):
    regs = [vFL, vFL2, vT + 2, vT + 3]
    with Wave0(A, name):
        A(f"s_add_u32 s{sT1}, s{soff_reg}, {base}")
        for r in regs:
            A(f"buffer_load_dword v{r}, v{voff}, {WS}, s{sT1} offen sc1")
            A("s_sleep 1")
        A(f"s_mov_b32 s{sCNT}, 0")
        A.label(f"L_{name}_spin")
        for r in regs:
            A("s_waitcnt vmcnt(3)")
            A(f"v_cmp_eq_u32 vcc, s{sNONCE}, v{r}")
            A("s_nop 3")
            A("s_cmp_eq_u64 vcc, exec")
            A(f"s_cbranch_scc1 L_{name}_ok")
            A(f"buffer_load_dword v{r}, v{voff}, {WS}, s{sT1} offen sc1")
        A(f"s_add_u32 s{sCNT}, s{sCNT}, 1")
        A(f"s_cmp_lt_u32 s{sCNT}, {SPIN_MAX}")
        A(f"s_cbranch_scc1 L_{name}_spin")
        A.label(f"L_{name}_ok")


def nonce_issue(A):
    A(f"v_mov_b32 v{vT}, 0")
    A.vm(f"buffer_load_dword v{vFL}, v{vT}, s[{sDBG}:{sDBG+3}], 0 offen sc1", "nonce")


def nonce_check(A, name):
    A.vm_wait("nonce")
    A("s_nop 0")
    A(f"v_readfirstlane_b32 s{sNONCE}, v{vFL}")
    nonce_verify(A, name)


def nonce_verify(A, name):
    A("s_nop 3")
    A(f"s_cmp_lg_u32 s{sNONCE}, 0")
    A(f"s_cbranch_scc1 L_{name}_ok")
    A(f"s_mov_b32 s{sCNT}, 0")
    A.label(f"L_{name}_spin")
    A("s_sleep 1")
    A(f"v_mov_b32 v{vT}, 0")
    A(f"buffer_load_dword v{vFL}, v{vT}, s[{sDBG}:{sDBG+3}], 0 offen sc1")
    A(f"s_add_u32 s{sCNT}, s{sCNT}, 1")
    A(f"s_cmp_ge_u32 s{sCNT}, {SPIN_MAX}")
    A(f"s_cbranch_scc1 L_{name}_ok")
    A("s_waitcnt vmcnt(0)")
    A(f"v_readfirstlane_b32 s{sNONCE}, v{vFL}")
    A("s_nop 3")
    A(f"s_cmp_eq_u32 s{sNONCE}, 0")
    A(f"s_cbranch_scc1 L_{name}_spin")
    A.label(f"L_{name}_ok")


def g_dma(A, b, p):
    kb, st, t = b % 10, b % NST, p & 3
    A(f"s_add_u32 m0, s{sLDS1}, {st*STAGE + (p >> 2)*16384 + 4096*t}")
    if p < 4:
        A(f"s_add_u32 s{sT0}, s{sXOFF}, {kb*128 + t*40960}")
        A.vm(f"buffer_load_dwordx4 v{vXD}, s[{sX}:{sX+3}], s{sT0} offen lds", ("d", b))
    else:
        sw = sWA if b < 10 else sWB
        A(f"s_add_u32 s{sT0}, s{sWOFF}, {(kb*64 + 16*t) * 3840}")
        A.vm(f"buffer_load_dwordx4 v{vWD}, s[{sw}:{sw+3}], s{sT0} offen lds", ("d", b))


def g_acc(mt, nt):
    return G_ACC + 32 * mt + 16 * nt


def g_frag(s_, i):
    return G_F + 16 * (s_ % 3) + 4 * i


def g_read_list(s_):
    b, ks = divmod(s_, 4)
    st = b % NST
    base, off = st >> 1, (st & 1) * STAGE
    out = []
    for mt in range(2):
        out.append(f"ds_read_b128 {v(g_frag(s_, mt),4)}, v{vXR + 3*ks + base} offset:{off + mt*4096}")
    for nt in range(2):
        for q in range(2):
            out.append(f"ds_read_b64_tr_b16 {v(g_frag(s_, 2+nt)+2*q,2)}, v{vWR1 + 3*nt + base} offset:{off + 16384 + ks*4096 + q*1024}")
    return out


def g_reads(A, s_):
    for ins in g_read_list(s_):
        A.lds(ins, ("f", s_))


def g_step(A, s_, last, tr, extra=None):
    b, ks = divmod(s_, 4)
    A.lds_wait(("f", s_))
    nxt = g_read_list(s_ + 2) if s_ + 2 <= last else []
    for i, (mt, nt) in enumerate(((0, 0), (0, 1), (1, 0), (1, 1))):
        d = g_acc(mt, nt)
        c = "0" if (s_ % 40 == 0) else v(d, 16)
        x, w = g_frag(s_, mt), g_frag(s_, 2 + nt)
        a, bb = (w, x) if tr else (x, w)
        A(f"v_mfma_f32_32x32x16_bf16 {v(d,16)}, {v(a,4)}, {v(bb,4)}, {c}")
        for ins in nxt[2*i:2*i+2]:
            A.lds(ins, ("f", s_ + 2))
        if extra and i == 3:
            extra()


def epi_prepare(A, isb, tr, n):
    A(f"s_lshl_b32 s{sTP}, s{sRB}, 7")
    A(f"s_lshl_b32 s{sT0}, s{sMH}, 6")
    A(f"s_add_u32 s{sTP}, s{sTP}, s{sT0}")
    if isb:
        A(f"s_lshr_b32 s{sTP}, s{sTP}, 1")
    if tr:
        A(f"s_cmp_lt_u32 s{sCT}, 5")
        A(f"s_mov_b32 s{sT1}, {QB if isb else QA}")
        A(f"s_cselect_b32 s{sB16}, s{sT1}, {KB if isb else KA}")
        A(f"s_mov_b32 s{sT1}, {hex(f32bits(QSCALE))}")
        A(f"s_cselect_b32 s{sQS}, s{sT1}, 1.0")
        A(f"s_lshl_b32 s{sT0}, s{sCT5}, 1")
        A(f"s_add_u32 s{sT0}, s{sT0}, s{sNH}")
        A(f"s_lshl_b32 s{sT0}, s{sT0}, 18")
        A(f"s_add_u32 s{sB16}, s{sB16}, s{sT0}")
        A(f"s_lshl_b32 s{sT0}, s{sTP}, 4")
        A(f"s_add_u32 s{sB16}, s{sB16}, s{sT0}")
        A(f"v_lshlrev_b32 v{vA16}, 15, v{vHH}")
        if isb:
            A(f"v_and_b32 v{vT}, 1, v{vR}")
            A(f"v_lshl_add_u32 v{vA16}, v{vT}, 14, v{vA16}")
            A(f"v_lshrrev_b32 v{vT}, 1, v{vR}")
            A(f"v_lshl_add_u32 v{vA16}, v{vT}, 4, v{vA16}")
        else:
            A(f"v_lshl_add_u32 v{vA16}, v{vR}, 4, v{vA16}")
        A(f"v_mov_b32 v{vT+2}, s{sQS}")
        A(f"v_mov_b32 v{vT+3}, s{sQS}")
    else:
        A(f"v_mul_u32_u24 v{vT+1}, 320, v{vHH}")
        A(f"s_lshl_b32 s{sT0}, s{sCT5}, 7")
        A(f"s_lshl_b32 s{sT1}, s{sNH}, 6")
        A(f"s_add_u32 s{sT0}, s{sT0}, s{sT1}")
        for nt in range(2):
            A(f"v_add_u32 v{vT+2}, s{sT0}, v{vR}")
            if nt:
                A(f"v_add_u32 v{vT+2}, 32, v{vT+2}")
            A(f"v_mul_u32_u24 v{vT+3}, 3277, v{vT+2}")
            A(f"v_lshrrev_b32 v{vT+3}, 16, v{vT+3}")
            A(f"v_mul_u32_u24 v{vT+4}, 20, v{vT+3}")
            A(f"v_sub_u32 v{vT+4}, v{vT+2}, v{vT+4}")
            A(f"v_mul_u32_u24 v{vT+3}, {VH}, v{vT+3}")
            A(f"v_lshl_add_u32 v{vT+3}, v{vT+4}, 4, v{vT+3}")
            A(f"v_add_u32 v{vA16+nt}, v{vT+3}, v{vT+1}")
        A(f"s_lshr_b32 s{sT0}, s{sTP}, 4")
        A(f"s_mul_i32 s{sT0}, s{sT0}, 640")
        A(f"s_add_u32 s{sB16}, s{sT0}, {VB if isb else VA}")


def epi_group(A, isb, tr, g, tag):
    reg = G_P + 4 * g
    mt, nt, u = g >> 2, (g >> 1) & 1, g & 1
    src = g_acc(mt, nt)
    if tr:
        for jj in range(2):
            a = src + 4 * (2 * u + jj)
            A(f"v_pk_mul_f32 {v(a,2)}, {v(a,2)}, v[{vT+2}:{vT+3}]")
            A(f"v_pk_mul_f32 {v(a+2,2)}, {v(a+2,2)}, v[{vT+2}:{vT+3}]")
            A(f"v_cvt_pk_bf16_f32 v{reg+2*jj}, v{a}, v{a+1}")
            A(f"v_cvt_pk_bf16_f32 v{reg+2*jj+1}, v{a+2}, v{a+3}")
        A(f"s_add_u32 s{sT1}, s{sB16}, {(4*nt + 2*u)*PLANE + mt*(256 if isb else 512)}")
        A("s_nop 0")
        A(f"v_permlane32_swap_b32 v{reg}, v{reg+2}")
        A(f"v_permlane32_swap_b32 v{reg+1}, v{reg+3}")
        A.vm(f"buffer_store_dwordx4 {v(reg,4)}, v{vA16}, {WS}, s{sT1} offen sc1", tag)
    else:
        if isb:
            for j in range(4):
                A(f"v_cvt_pk_bf16_f32 v{reg+j}, v{src+4*j+u}, v{src+4*j+u+2}")
            A(f"s_add_u32 s{sT1}, s{sB16}, {mt*640 + u*64*640}")
        else:
            for p in range(4):
                A(f"v_cvt_pk_bf16_f32 v{reg+p}, v{src+8*u+2*p}, v{src+8*u+2*p+1}")
            A(f"s_add_u32 s{sT1}, s{sB16}, {(2*mt + u)*640}")
        A.vm(f"buffer_store_dwordx4 {v(reg,4)}, v{vA16+nt}, {WS}, s{sT1} offen sc1", tag)


def acquire_items():
    return [(vFL, vF1, F1A, None), (vFL2, vF2, F1A, None)]


def p2_load_items():
    def q01(A):
        A.vm(f"buffer_load_dwordx4 {v(Q01,4)}, v{vQA}, {WS}, s{sQOFF} offen sc1", "q")
    def q2(A):
        A(f"v_mov_b32 v{Q2}, 0")
        A(f"v_mov_b32 v{Q2+1}, 0")
        A("s_mov_b32 exec_hi, 0")
        A.vm(f"buffer_load_dwordx2 {v(Q2,2)}, v{vQA2}, {WS}, s{sQOFF2} offen sc1", "q")
        A("s_mov_b32 exec_hi, -1")
    first = [lambda A, p=p: dma_chunk_piece(A, 0, p) for p in range(3)] + [q01, q2]
    rest = [lambda A, c=c, p=p: dma_chunk_piece(A, c, p) for c in (1, 2) for p in range(3)]
    return first, rest


def gemm(A, tr, n):
    A.vm_q, A.lds_q = [], []
    if EXP.get("twa") == 99:
        touch_a(A, n)
    if EXP.get("twb") == 99:
        touch_wb(A, n)
    if EXP.get("tcb") == 99:
        touch_chip_b(A, n)
    if EXP.get("tlb"):
        epi_prepare(A, False, tr, n)
        A(f"buffer_store_dword v{vL}, v{vA16}, {WS}, s{sB16} offen sc1")
    A("s_barrier")
    A.stamp("blk0 landed", 2)
    g_reads(A, 0)
    g_reads(A, 1)
    for s_ in range(40):
        b, ks = divmod(s_, 4)
        if ks == 2:
            A("s_barrier")
            if EXP.get("stampA") and b in (0, 2, 4, 6):
                A.stamp("", {0: 7, 2: 8, 4: 9, 6: 10}[b])
        if EXP.get("twa") is not None and s_ == EXP["twa"]:
            touch_a(A, n)
        if s_ == EXP.get("twb", 77):
            touch_wb(A, n)
        if EXP.get("tcb") is not None and s_ == EXP["tcb"]:
            touch_chip_b(A, n)
        if EXP.get("tcw") is not None and s_ == EXP["tcw"]:
            touch_chip_wide(A, "b", n)
        if s_ == 22:
            nonce_issue(A)
        if s_ == 30:
            nonce_check(A, f"nonce0{n}")
        g_step(A, s_, 39, tr)
    A.stamp("gemm0", 3)
    jitter(A, True)
    slices = [int(ch) for ch in str(EXP.get("sl", "8"))]
    assert sum(slices) == 8
    PUB, POLL, CHK = EXP.get("pub", 12), EXP.get("poll", 15), 18
    for p in range(8):
        g_dma(A, 13, p)
    epi_prepare(A, False, tr, n)
    A("s_nop 7")
    A("s_nop 3")
    done = 0
    for b in range(10, 19):
        k = slices[b - 10] if b - 10 < len(slices) else 0
        for g in range(done, done + k):
            epi_group(A, False, tr, g, "sa")
        if k and done + k == 8:
            A.stamp("epi0", 4)
        done += k
        if b == CHK:
            poll_check(A, acquire_items(), pos_f1, f"f1{n}")
        if b + 1 >= 13:
            A.vm_wait(("d", b + 1))
        A("s_barrier")
        if EXP.get("stampB") and b in (10, 12, 14, 16):
            A.stamp("", {10: 7, 12: 8, 14: 9, 16: 10}[b])
        if b == PUB - 1:
            A.vm_wait("sa")
        if b + 4 < NB:
            for p in range(8):
                g_dma(A, b + 4, p)
        if b == PUB:
            with Wave0(A, f"puba{n}"):
                publish(A, sF1, F1A)
        if b == POLL:
            pos_f1 = poll_issue(A, acquire_items(), f"f1{n}")
    first, rest = p2_load_items()
    for f in first + rest:
        f(A)
    A.stamp("gemm1", 5)
    A.stamp("epi1", 6)
    A.vm_wait("q", ("c", 0))
    A("s_branch L_attn")
    A.label(f"L_g1{n}")
    A.vm_set([(("d", b), "D") for b in range(3) for _ in range(8)])
    A.lds_q = []
    A.vm_wait(("d", 0))
    A("s_barrier")
    A.stamp("issued", 1)
    A.stamp("blk0 landed", 2)
    for p in range(8):
        g_dma(A, 3, p)
    for b in range(10):
        if b == 0:
            setup_phase1_reads(A)
        if 1 <= b <= 5:
            SETUP_P2[b - 1](A)
        if b == 6 and EXP.get("tlb"):
            if EXP.get("tlb"):
                epi_prepare(A, True, tr, n)
                A(f"buffer_store_dword v{vL}, v{vA16}, {WS}, s{sB16} offen sc1")
                A(f"s_lshl_b32 s{sT0}, s{sQ0}, 4")
                A(f"s_add_u32 s{sT0}, s{sT0}, {OC}")
                A(f"buffer_store_dword v{vL}, v{vOST}, {WS}, s{sT0} offen sc1")
                A(f"s_lshl_b32 s{sT0}, s{sBT}, 4")
                A(f"s_add_u32 s{sT0}, s{sT0}, {OC + 80*32768}")
                A(f"buffer_store_dword v{vL}, v{vOST+1}, {WS}, s{sT0} offen sc1")
        A.vm_wait(("d", b + 1))
        A("s_barrier")
        if EXP.get("stampA") and b in (0, 2, 4, 6):
            A.stamp("", {0: 7, 2: 8, 4: 9, 6: 10}[b])
        if b + 4 <= 12:
            for p in range(8):
                g_dma(A, b + 4, p)
    A.stamp("gemm0", 3)
    A.stamp("epi0", 4)
    g_reads(A, 40)
    g_reads(A, 41)
    pend = []
    for s_ in range(40, 80):
        b, ks = divmod(s_, 4)
        if ks == 2 and b + 1 < NB:
            if b + 1 <= 12:
                A.vm_wait(("d", b + 1))
            A("s_barrier")
            if EXP.get("stampB") and b in (10, 12, 14, 16):
                A.stamp("", {10: 7, 12: 8, 14: 9, 16: 10}[b])
            if b == 18:
                first, rest = p2_load_items()
                pend = first + [nonce_issue]
        def extra():
            for _ in range(2):
                if pend:
                    pend.pop(0)(A)
        g_step(A, s_, 79, tr, extra)
    assert not pend
    A.stamp("gemm1", 5)
    jitter(A, True)
    A.vm_wait("q", "nonce", ("c", 0))
    A("s_nop 0")
    A(f"v_readfirstlane_b32 s{sNONCE}, v{vFL}")
    for f in rest:
        f(A)
    epi_prepare(A, True, tr, n)
    A("s_nop 7")
    A("s_nop 3")
    for g in range(8):
        epi_group(A, True, tr, g, "sb")
    A.stamp("epi1", 6)
    nonce_verify(A, f"nonce1{n}")


def spare(A):
    sWO, sG = sWA, sWB
    A.label("L_spare")
    A.vm_q, A.lds_q = [], []
    jitter(A)
    jitter(A)
    if EXP.get("spb", 0):
        A(f"s_mul_i32 s{sT0}, s{sRB}, 153600")
        A(f"s_lshl_b32 s{sT1}, s{sW}, 10")
        A(f"s_add_u32 s{sT0}, s{sT0}, s{sT1}")
        A(f"s_add_u32 s{sT2}, s{sRB}, 1")
        A(f"s_mul_i32 s{sT2}, s{sT2}, 153600")
        for i in range(19):
            A(f"s_add_u32 s{sT1}, s{sT0}, {8192*i}")
            if i == 18:
                A(f"s_sub_u32 s{sT2}, s{sT2}, 1024")
                A(f"s_min_u32 s{sT1}, s{sT1}, s{sT2}")
            A(f"buffer_load_dwordx4 {v(124 + 4*i, 4)}, v{vL16}, s[{sWB}:{sWB+3}], s{sT1} offen")
    A("s_load_dwordx2 s[4:5], s[0:1], 16")
    A("s_load_dwordx2 s[6:7], s[0:1], 40")
    A(f"s_load_dwordx2 s[{sP}:{sP+1}], s[0:1], 48")
    A("s_waitcnt lgkmcnt(0)")
    A(f"s_cmp_lt_u32 s{sRB}, 8")
    A("s_cbranch_scc1 L_sp_a")
    A("s_mov_b32 s4, s6")
    A("s_mov_b32 s5, s7")
    A.label("L_sp_a")
    srd(A, sWO, 4, WO_BYTES)
    srd(A, sG, sP, 1280)
    A(f"s_and_b32 s{sT1}, s{sRB}, 7")
    A(f"s_mul_i32 s{sT1}, s{sT1}, {80*1280}")
    A(f"s_lshl_b32 s{sLDS1}, s{sW}, 10")
    A(f"s_add_u32 s{sT1}, s{sT1}, s{sLDS1}")
    for t in range(13):
        if t == 12:
            A(f"s_cmp_ge_u32 s{sW}, 4")
            A("s_cbranch_scc1 L_sp_dma_done")
        A(f"s_add_u32 m0, s{sLDS1}, {8192*t}")
        A(f"s_add_u32 s{sT0}, s{sT1}, {8192*t}")
        A(f"buffer_load_dwordx4 v{vL16}, s[{sWO}:{sWO+3}], s{sT0} offen lds")
    A.label("L_sp_dma_done")
    GW = 102400
    A(f"s_cmp_ge_u32 s{sW}, 2")
    A("s_cbranch_scc1 L_sp_gw_done")
    A(f"s_add_u32 m0, s{sLDS1}, {GW}")
    A("s_nop 0")
    A(f"buffer_load_dwordx4 v{vL16}, s[{sG}:{sG+3}], s{sLDS1} offen lds")
    A.label("L_sp_gw_done")
    A.stamp("", 2)
    XG = 28
    A(f"v_lshrrev_b32 v{vT+1}, 2, v{vL}")
    A(f"s_lshl_b32 s{sT0}, s{sW}, 4")
    A(f"v_add_u32 v{vT+1}, s{sT0}, v{vT+1}")
    A(f"v_and_b32 v{vT+2}, 3, v{vL}")
    A(f"v_lshlrev_b32 v{vT+2}, 4, v{vT+2}")
    A(f"v_mul_u32_u24 v{vT+3}, 1280, v{vT+1}")
    A(f"v_add_u32 v{vT+3}, v{vT+3}, v{vT+2}")
    A(f"v_mov_b32 v{vT+4}, 0")
    for i in range(20):
        A(f"buffer_load_dwordx4 {v(XG+4*i,4)}, v{vT+3}, s[{sX}:{sX+3}], s{sXOFF} offen offset:{i*64}")
    A(f"v_add_u32 v{vT+2}, {GW}, v{vT+2}")
    A("s_waitcnt vmcnt(0)")
    A("s_barrier")
    A.lds_q = []
    GG = 108
    for i in range(3):
        A.lds(f"ds_read_b128 {v(GG+4*i,4)}, v{vT+2} offset:{i*64}", ("gw", i))
    for i in range(20):
        if i + 3 < 20:
            A.lds(f"ds_read_b128 {v(GG+4*((i+3) % 4),4)}, v{vT+2} offset:{(i+3)*64}", ("gw", i + 3))
        A.lds_wait(("gw", i))
        for k in range(4):
            A(f"v_dot2_f32_bf16 v{vT+4}, v{XG+4*i+k}, v{GG+4*(i % 4)+k}, v{vT+4}")
    A("s_nop 2")
    A(f"v_add_f32_dpp v{vT+4}, v{vT+4}, v{vT+4} quad_perm:[1,0,3,2] row_mask:0xf bank_mask:0xf")
    A("s_nop 1")
    A(f"v_add_f32_dpp v{vT+4}, v{vT+4}, v{vT+4} quad_perm:[2,3,0,1] row_mask:0xf bank_mask:0xf")
    A(f"v_mul_f32 v{vT+4}, {hex(f32bits(-LOG2E))}, v{vT+4}")
    A(f"v_exp_f32 v{vT+4}, v{vT+4}")
    A("s_nop 0")
    A(f"v_add_f32 v{vT+4}, 1.0, v{vT+4}")
    A(f"v_rcp_f32 v{vT+4}, v{vT+4}")
    A(f"s_lshl_b32 s{sT0}, s{sRB}, 9")
    A(f"s_add_u32 s{sT0}, s{sT0}, {GATE}")
    A(f"v_lshlrev_b32 v{vT+1}, 2, v{vT+1}")
    A("s_mov_b32 exec_lo, 0x11111111")
    A("s_mov_b32 exec_hi, 0x11111111")
    A(f"buffer_store_dword v{vT+4}, v{vT+1}, {WS}, s{sT0} offen sc1")
    A("s_mov_b64 exec, -1")
    A.stamp("", 3)
    A.stamp("", 4)
    A(f"v_bfe_u32 v{vT+1}, v{vL}, 2, 2")
    A(f"v_mul_u32_u24 v{vT+1}, 1280, v{vT+1}")
    A(f"v_lshrrev_b32 v{vT+2}, 4, v{vL}")
    A(f"v_lshl_add_u32 v{vT+1}, v{vT+2}, 5, v{vT+1}")
    A(f"v_and_b32 v{vT+2}, 3, v{vL}")
    A(f"v_lshl_add_u32 v{vT+1}, v{vT+2}, 3, v{vT+1}")
    A(f"s_mul_i32 s{sT3}, s{sRB}, {10*10240}")
    A(f"s_add_u32 s{sT3}, s{sT3}, {WOT}")
    A(f"s_mov_b32 s{sT1}, s{sW}")
    A.label("L_sp_loop")
    A(f"s_mul_hi_u32 s{sT2}, s{sT1}, 0x1999999a")
    A(f"s_mul_i32 s{sT0}, s{sT2}, 10")
    A(f"s_sub_u32 s{sT0}, s{sT1}, s{sT0}")
    A(f"s_mul_hi_u32 s{sCNT}, s{sT2}, 0x33333334")
    A(f"s_mul_i32 s{sT4}, s{sCNT}, 5")
    A(f"s_sub_u32 s{sT4}, s{sT2}, s{sT4}")
    A(f"s_mul_i32 s{sCNT}, s{sCNT}, 40")
    A(f"s_lshl_b32 s{sT5}, s{sT4}, 3")
    A(f"s_cmp_ge_u32 s{sT4}, 2")
    A(f"s_cselect_b32 s{sM}, 4, 0")
    A(f"s_add_u32 s{sT5}, s{sT5}, s{sM}")
    A(f"s_cmp_eq_u32 s{sT4}, 4")
    A(f"s_cselect_b32 s{sT5}, 16, s{sT5}")
    A(f"s_cselect_b32 s{sM}, 20, 4")
    A(f"s_add_u32 s{sT5}, s{sT5}, s{sCNT}")
    A(f"s_mul_i32 s{sT4}, s{sT5}, 1280")
    A(f"s_mul_i32 s{sM}, s{sM}, 1280")
    A(f"s_lshl_b32 s{sT5}, s{sT0}, 7")
    A(f"s_add_u32 s{sT4}, s{sT4}, s{sT5}")
    A(f"v_add_u32 v{vT+3}, s{sT4}, v{vT+1}")
    A(f"v_add_u32 v{vT+4}, s{sM}, v{vT+3}")
    A(f"ds_read_b64_tr_b16 v[{XG}:{XG+1}], v{vT+3}")
    A(f"ds_read_b64_tr_b16 v[{XG+2}:{XG+3}], v{vT+4}")
    A(f"s_mul_i32 s{sT4}, s{sT2}, 10240")
    A(f"s_lshl_b32 s{sT5}, s{sT0}, 10")
    A(f"s_add_u32 s{sT4}, s{sT4}, s{sT5}")
    A(f"s_add_u32 s{sT4}, s{sT4}, s{sT3}")
    A("s_waitcnt lgkmcnt(0)")
    A(f"buffer_store_dwordx4 {v(XG,4)}, v{vL16}, {WS}, s{sT4} offen sc1")
    A(f"s_add_u32 s{sT1}, s{sT1}, 8")
    A(f"s_cmp_lt_u32 s{sT1}, 100")
    A("s_nop 1")
    A("s_cbranch_scc1 L_sp_loop")
    A.stamp("", 5)
    nonce_issue(A)
    nonce_check(A, "noncesp")
    A("s_waitcnt vmcnt(0)")
    A("s_barrier")
    A.vm_q = []
    with Wave0(A, "pubsp"):
        publish(A, sF1, F1A)
    pos = poll_issue(A, acquire_items(), "f1sp")
    poll_check(A, acquire_items(), pos, "f1sp")
    A("s_barrier")
    A.vm_q = []
    first, rest = p2_load_items()
    for f in first + rest:
        f(A)
    A.vm_wait("q", ("c", 0))
    for i in (6,) + ((7, 8, 9, 10) if (EXP.get("stampB") or EXP.get("stampA")) else ()):
        A.stamp("", i)
    A("s_branch L_attn")


def mf16(A, d, a, b, c):
    A(f"v_mfma_f32_32x32x16_bf16 {v(d,16)}, {v(a,4)}, {v(b,4)}, {c}")


def mf8(A, d, a, b, c):
    A(f"v_mfma_f32_32x32x8_bf16 {v(d,16)}, {v(a,2)}, {v(b,2)}, {c}")


def dma_chunk_piece(A, c, t):
    slot = c % NSLOT
    A(f"s_add_u32 m0, s{sLDSW}, {slot*SLOT + 1024*t}")
    A(f"v_mad_u32_u24 v{vCT}, v{vCS+t}, {c}, v{vCB+t}")
    if t == 2:
        A("s_mov_b32 exec_hi, 0xffff")
    A.vm(f"buffer_load_dwordx4 v{vCT}, {WS}, 0 offen sc1 lds", ("c", c))
    if t == 2:
        A("s_mov_b32 exec_hi, -1")


def dma_chunk(A, c):
    for t in range(3):
        dma_chunk_piece(A, c, t)


def dma_w_piece(A, part, st, t):
    off = (WA_OFF if part == 0 else WB_OFF)[st]
    A(f"s_add_u32 m0, s{sLDSW2}, {off + 1024*t}")
    A(f"s_add_u32 s{sT0}, s{sWSRC}, {(part*80 + 16*st)*10240}")
    if t == 2:
        A("s_mov_b32 exec_hi, 0")
    A.vm(f"buffer_load_dwordx4 v{(vW0, vW1, vW2)[t]}, {WS}, s{sT0} offen sc1 lds", ("w", part, st))
    if t == 2:
        A("s_mov_b32 exec_hi, -1")


def rd_k01(A, t):
    if EXP.get('halfrd') and t % 2 == 1:
        return
    c, tt = t // TPC, t % TPC
    A.lds(f"ds_read_b128 {v(K01,4)}, v{vK01 + c % NSLOT} offset:{tt*512}", ("k01", t))


def rd_k2(A, t):
    if EXP.get('halfrd') and t % 2 == 1:
        return
    c, tt = t // TPC, t % TPC
    A.lds(f"ds_read_b64 {v(K2,2)}, v{vK2 + c % NSLOT} offset:{8192 + tt*512}", ("k2", t))


def rd_v(A, t, a):
    if EXP.get('halfrd') and t % 2 == 1:
        return
    c, tt = t // TPC, t % TPC
    A.lds(f"ds_read_b128 {v(V1 if a else V0,4)}, v{vV + c % NSLOT} offset:{(2*tt + a)*640}", ("v", t, a))


def exps(A, sreg, g, preg=P):
    for i in range(4):
        A(f"v_exp_f32 v{sreg+4*g+i}, v{sreg+4*g+i}")
    A(f"v_cvt_pk_bf16_f32 v{preg+2*g}, v{sreg+4*g}, v{sreg+4*g+1}")
    A(f"v_cvt_pk_bf16_f32 v{preg+2*g+1}, v{sreg+4*g+2}, v{sreg+4*g+3}")


def cross_half_max(A, reg, tmp):
    A(f"v_mov_b32 v{tmp}, v{reg}")
    A("s_nop 1")
    A(f"v_permlane32_swap_b32 v{reg}, v{tmp}")
    A("s_nop 1")
    A(f"v_max_f32 v{reg}, v{reg}, v{tmp}")


def max16(A, dst, src, first):
    if first:
        A(f"v_max3_f32 v{dst}, v{src}, v{src+1}, v{src+2}")
        rest = list(range(3, 16))
    else:
        rest = list(range(0, 16))
    while rest:
        if len(rest) >= 2:
            A(f"v_max3_f32 v{dst}, v{dst}, v{src+rest[0]}, v{src+rest[1]}")
            rest = rest[2:]
        else:
            A(f"v_max_f32 v{dst}, v{dst}, v{src+rest[0]}")
            rest = rest[1:]


def row_sum(A, oreg):
    A(f"v_mov_b32 v{vT}, v{oreg+8}")
    A(f"v_mov_b32 v{vT+1}, v{oreg+8}")
    A("s_nop 1")
    A(f"v_permlane32_swap_b32 v{vT}, v{vT+1}")


def finish_tile(A, oreg, gate, one_minus, vaddr, tok_sreg, chunk0, tag):
    A(f"v_rcp_f32 v{vT+2}, v{vT+1}")
    A(f"s_lshl_b32 s{sT0}, s{tok_sreg}, 4")
    A(f"s_add_u32 s{sT0}, s{sT0}, {OC + chunk0*32768}")
    if one_minus:
        A(f"v_sub_f32 v{vT}, 1.0, v{gate}")
        A(f"v_mul_f32 v{vT+2}, v{vT+2}, v{vT}")
    else:
        A(f"v_mul_f32 v{vT+2}, v{vT+2}, v{gate}")
    A(f"v_mov_b32 v{vT+3}, v{vT+2}")
    for i in range(0, 12, 2):
        A(f"v_pk_mul_f32 {v(oreg+i,2)}, {v(oreg+i,2)}, v[{vT+2}:{vT+3}]")
    for i in range(4):
        A(f"v_cvt_pk_bf16_f32 v{oreg+i}, v{oreg+2*i}, v{oreg+2*i+1}")
    A(f"v_cvt_pk_bf16_f32 v{oreg+8}, v{oreg+8}, v{oreg+9}")
    A(f"v_cvt_pk_bf16_f32 v{oreg+9}, v{oreg+10}, v{oreg+11}")
    A(f"v_permlane32_swap_b32 v{oreg}, v{oreg+2}")
    A(f"v_permlane32_swap_b32 v{oreg+1}, v{oreg+3}")
    A.vm(f"buffer_store_dwordx4 {v(oreg,4)}, v{vaddr}, {WS}, s{sT0} offen sc1", tag)
    A("s_mov_b32 exec_hi, 0")
    A.vm(f"buffer_store_dwordx2 {v(oreg+8,2)}, v{vaddr+2}, {WS}, s{sT0} offen sc1", tag)
    A("s_mov_b64 exec, -1")


def oc_load(A, part, k):
    reg = OCA if part == 0 else OCB
    A(f"s_add_u32 s{sT0}, s{sOCB}, {(part*80 + 4*k)*32768}")
    A.vm(f"buffer_load_dwordx4 {v(reg+4*k,4)}, v{vOC}, {WS}, s{sT0} offen sc1", ("oc", part, k))


def outproj(A, part, first, hook=None):
    offs = WA_OFF if part == 0 else WB_OFF
    reg = OCA if part == 0 else OCB
    for kg in range(2):
        if kg == 0:
            A(f"s_cmp_eq_u32 s{sKG}, 1")
            A(f"s_cbranch_scc1 L_op{part}_g1")
            saved = (list(A.vm_q), list(A.lds_q))
        else:
            A.label(f"L_op{part}_g1")
            A.vm_q, A.lds_q = list(saved[0]), list(saved[1])
        seq = [(k, nt) for k in range(10) for nt in range(5)]

        def rd(i):
            k, nt = seq[i]
            kk = 10 * kg + k
            off = offs[kk // 4] + (kk % 4) * 5120 + nt * 256
            areg = (vWR, vT + 5, vT + 6)[off >> 16]
            A.lds(f"ds_read_b128 {v(WF + (i % 8)*4,4)}, v{areg} offset:{off & 0xffff}", ("wf", i))

        LOOK = 5
        for i in range(LOOK):
            rd(i)
        for i, (k, nt) in enumerate(seq):
            if i + LOOK < len(seq):
                rd(i + LOOK)
            if nt == 0:
                A.vm_wait(("oc", part, k))
                if hook:
                    hook(k, kg)
            A.lds_wait(("wf", i))
            c = "0" if (first and k == 0) else v(ACC + 4*nt, 4)
            A(f"v_mfma_f32_16x16x32_bf16 {v(ACC+4*nt,4)}, {v(WF + (i % 8)*4,4)}, {v(reg+4*k,4)}, {c}")
        if kg == 0:
            end0 = (list(A.vm_q), list(A.lds_q))
            A(f"s_branch L_op{part}_done")
    A.label(f"L_op{part}_done")
    assert end0[0] == A.vm_q and end0[1] == A.lds_q


def keypos(kappa):
    return (kappa & 25) | ((kappa >> 1) & 1) << 2 | ((kappa >> 2) & 1) << 1


def band_mask(j, i, prev):
    m = 0
    for l in range(64):
        q, hh = l & 31, l >> 5
        key = keypos(8 * j + 4 * hh + i) - (32 if prev else 0)
        if 0 <= q - key <= 7:
            m |= 1 << l
    return m


def b_consts(A):
    A(f"v_cmp_eq_u32 vcc, 20, v{vR}")
    A(f"v_mov_b32 v{vT+6}, 0")
    A(f"v_mov_b32 v{vT+7}, 0x3f803f80")
    A(f"v_cndmask_b32 v{vT+6}, v{vT+6}, v{vT+7}, vcc")
    for base in (BV0, BV1, BVP):
        for i in range(4):
            A(f"v_mov_b32 v{base+i}, v{vT+6}")
    A(f"v_mov_b32 v{BQ2}, 0")
    A(f"v_mov_b32 v{BQ2+1}, 0")


def b_load_items():
    def mk(instr, pre=None, gate=False):
        def f(A):
            if gate:
                A(f"v_lshlrev_b32 v{vCT}, 1, v{vGA}")
                A.vm(instr.replace(f"v{vGA},", f"v{vCT},"), "b")
                return
            if pre:
                A(pre)
            A.vm(instr, "b")
            if pre:
                A("s_mov_b64 exec, -1")
        return f
    lo20 = f"s_mov_b64 exec, s[{sLO20}:{sLO20+1}]"
    return [
        mk(f"buffer_load_dwordx4 {v(BQ01,4)}, v{vBA}, {WS}, s{sBA} offen sc1"),
        mk(f"buffer_load_dwordx4 {v(BK01,4)}, v{vBA+2}, {WS}, s{sBA+2} offen sc1"),
        mk(f"buffer_load_dwordx2 {v(BK2,2)}, v{vBA+3}, {WS}, s{sBA+3} offen sc1"),
        mk(f"buffer_load_dwordx4 {v(BKP01,4)}, v{vBA+2}, {WS}, s{sBA+5} offen sc1"),
        mk(f"buffer_load_dwordx2 {v(BKP2,2)}, v{vBA+3}, {WS}, s{sBA+6} offen sc1"),
        mk(f"buffer_load_dword v{vGB}, v{vGA}, {WS}, s{sBA+8} offen sc1", None, True),
        mk(f"buffer_load_dwordx2 {v(BQ2,2)}, v{vBA+1}, {WS}, s{sBA+1} offen sc1", "s_mov_b32 exec_hi, 0"),
        mk(f"buffer_load_dwordx4 {v(BV0,4)}, v{vBA+4}, {WS}, s{sBA+4} offen sc1", lo20),
        mk(f"buffer_load_dwordx4 {v(BV1,4)}, v{vBA+4}, {WS}, s{sBA+4} offen offset:640 sc1", lo20),
        mk(f"buffer_load_dwordx4 {v(BVP,4)}, v{vBA+4}, {WS}, s{sBA+7} offen offset:640 sc1", lo20),
    ]


def b_unit(A):
    S0, S1 = BS0, BS1
    jitter(A, True)
    A.vm_wait("b")
    mf16(A, S0, BK01, BQ01, "0")
    mf16(A, S1, BKP01, BQ01, "0")
    mf8(A, S0, BK2, BQ2, v(S0, 16))
    mf8(A, S1, BKP2, BQ2, v(S1, 16))
    A(f"v_mov_b32 v{vT}, {hex(f32bits(-1e30))}")
    A(f"s_cmp_eq_u32 s{sQT}, 0")
    A(f"s_cselect_b32 s{sT3}, 0, -1")
    A("s_nop 7")
    A("s_nop 5")
    for j in range(4):
        for i in range(4):
            m = band_mask(j, i, False)
            A(f"s_mov_b32 s{sM}, {hex(m & 0xffffffff)}")
            A(f"s_mov_b32 s{sM+1}, {hex(m >> 32)}")
            A(f"v_cndmask_b32 v{S0+4*j+i}, v{vT}, v{S0+4*j+i}, s[{sM}:{sM+1}]")
    for i in range(4):
        m = band_mask(3, i, True)
        A(f"s_and_b32 s{sM}, s{sT3}, {hex(m & 0xffffffff)}")
        A(f"s_and_b32 s{sM+1}, s{sT3}, {hex(m >> 32)}")
        A(f"v_cndmask_b32 v{S1+12+i}, v{vT}, v{S1+12+i}, s[{sM}:{sM+1}]")
    max16(A, vT + 1, S0, True)
    A(f"v_max3_f32 v{vT+1}, v{vT+1}, v{S1+12}, v{S1+13}")
    A(f"v_max3_f32 v{vT+1}, v{vT+1}, v{S1+14}, v{S1+15}")
    cross_half_max(A, vT + 1, vT + 2)
    for r in list(range(S0, S0 + 16)) + list(range(S1 + 12, S1 + 16)):
        A(f"v_sub_f32 v{r}, v{r}, v{vT+1}")
    for g in range(4):
        exps(A, S0, g, BP)
    PP = BP + 8
    for i in range(4):
        A(f"v_exp_f32 v{S1+12+i}, v{S1+12+i}")
    A(f"v_mov_b32 v{PP}, 0")
    A(f"v_mov_b32 v{PP+1}, 0")
    A(f"v_cvt_pk_bf16_f32 v{PP+2}, v{S1+12}, v{S1+13}")
    A(f"v_cvt_pk_bf16_f32 v{PP+3}, v{S1+14}, v{S1+15}")
    A("s_nop 1")
    mf16(A, BO, BV0, BP, "0")
    mf16(A, BO, BV1, BP + 4, v(BO, 16))
    mf16(A, BO, BVP, PP, v(BO, 16))
    A("s_nop 7")
    A("s_nop 3")
    row_sum(A, BO)
    A("s_nop 1")
    finish_tile(A, BO, vGB, True, vOST + 1, sBT, 80, "stb")


def fallback(A):
    A.label("L_fallback")
    A("s_waitcnt vmcnt(0) lgkmcnt(0)")
    A(f"v_lshlrev_b32 v{vT+4}, 15, v{vHH}")
    A(f"v_lshl_add_u32 v{vT+4}, v{vR}, 4, v{vT+4}")
    A(f"v_lshlrev_b32 v{vT+5}, 4, v{vR}")
    A(f"v_mul_u32_u24 v{vT+6}, 320, v{vHH}")
    A(f"v_lshl_add_u32 v{vT+6}, v{vR}, 4, v{vT+6}")
    A(f"v_mov_b32 v{vT+7}, {hex(f32bits(-3.0e38))}")

    def tile_addr():
        A(f"s_lshl_b32 s{sT0}, s{sCNT}, 9")
        A(f"s_lshl_b32 s{sT1}, s{sPA}, 15")
        A(f"s_add_u32 s{sT1}, s{sT1}, s{sT0}")
        A(f"s_add_u32 s{sT1}, s{sT1}, {KA}")
        A(f"s_lshl_b32 s{sT2}, s{sP2L}, 15")
        A(f"s_add_u32 s{sT2}, s{sT2}, s{sT0}")
        A(f"s_and_b32 s{sT3}, s{sH}, 1")
        A(f"s_lshl_b32 s{sT3}, s{sT3}, 3")
        A(f"s_add_u32 s{sT2}, s{sT2}, s{sT3}")
        A(f"s_add_u32 s{sT2}, s{sT2}, {KA}")
        A(f"s_mul_i32 s{sT3}, s{sCNT}, 1280")
        A(f"s_add_u32 s{sT3}, s{sT3}, s{sVH}")
        A(f"s_add_u32 s{sT3}, s{sT3}, {VA}")

    A(f"s_mov_b32 s{sCNT}, 0")
    A.label("L_fb1")
    tile_addr()
    A(f"buffer_load_dwordx4 {v(K01,4)}, v{vT+4}, {WS}, s{sT1} offen sc1")
    A(f"buffer_load_dwordx2 {v(K2,2)}, v{vT+5}, {WS}, s{sT2} offen sc1")
    A("s_waitcnt vmcnt(0)")
    mf16(A, SA, K01, Q01, "0")
    mf8(A, SA, K2, Q2, v(SA, 16))
    A("s_nop 7")
    A("s_nop 7")
    max16(A, vT + 7, SA, False)
    A(f"s_add_u32 s{sCNT}, s{sCNT}, 1")
    A(f"s_cmp_lt_u32 s{sCNT}, 64")
    A("s_cbranch_scc1 L_fb1")
    cross_half_max(A, vT + 7, vT)
    for i in range(16):
        A(f"v_sub_f32 v{NEGM+i}, 0, v{vT+7}")
        A(f"v_mov_b32 v{O+i}, 0")
    A(f"v_cmp_eq_u32 vcc, 20, v{vR}")
    A(f"v_mov_b32 v{vT}, 0")
    A(f"v_mov_b32 v{vT+1}, 0x3f803f80")
    A(f"v_cndmask_b32 v{vT}, v{vT}, v{vT+1}, vcc")
    for i in range(4):
        A(f"v_mov_b32 v{V0+i}, v{vT}")
        A(f"v_mov_b32 v{V1+i}, v{vT}")
    A(f"s_mov_b32 s{sCNT}, 0")
    A.label("L_fb2")
    tile_addr()
    A(f"buffer_load_dwordx4 {v(K01,4)}, v{vT+4}, {WS}, s{sT1} offen sc1")
    A(f"buffer_load_dwordx2 {v(K2,2)}, v{vT+5}, {WS}, s{sT2} offen sc1")
    A(f"s_mov_b64 exec, s[{sLO20}:{sLO20+1}]")
    A(f"buffer_load_dwordx4 {v(V0,4)}, v{vT+6}, {WS}, s{sT3} offen sc1")
    A(f"buffer_load_dwordx4 {v(V1,4)}, v{vT+6}, {WS}, s{sT3} offen offset:640 sc1")
    A("s_mov_b64 exec, -1")
    A("s_waitcnt vmcnt(0)")
    mf16(A, SA, K01, Q01, v(NEGM, 16))
    mf8(A, SA, K2, Q2, v(SA, 16))
    A("s_nop 7")
    A("s_nop 7")
    for g in range(4):
        exps(A, SA, g)
    A("s_nop 1")
    mf16(A, O, V0, P, v(O, 16))
    mf16(A, O, V1, P + 4, v(O, 16))
    A(f"s_add_u32 s{sCNT}, s{sCNT}, 1")
    A(f"s_cmp_lt_u32 s{sCNT}, 64")
    A("s_cbranch_scc1 L_fb2")
    A("s_nop 7")
    A("s_nop 7")
    row_sum(A, O)
    A("s_nop 1")
    A("s_branch L_finish")


def touch_chip(A, which):
    A(f"s_and_b32 s{sT1}, s{sW}, 1")
    A(f"s_lshl_b32 s{sT1}, s{sT1}, 6")
    A(f"v_add_u32 v{vT}, s{sT1}, v{vL}")
    A(f"s_cmp_ge_u32 s{sW}, 2")
    A(f"s_cbranch_scc1 L_tc_w{which}")
    if "x" in which:
        A(f"v_min_u32 v{vT}, 79, v{vT}")
        A(f"v_lshlrev_b32 v{vT}, 7, v{vT}")
        A(f"s_mul_i32 s{sT0}, s2, 10240")
        A(f"buffer_load_dword v{G_P+1}, v{vT}, s[{sX}:{sX+3}], s{sT0} offen")
    A(f"s_branch L_tc_done{which}")
    A.label(f"L_tc_w{which}")
    A(f"v_min_u32 v{vT}, 74, v{vT}")
    A(f"v_lshlrev_b32 v{vT}, 7, v{vT}")
    A(f"s_mul_i32 s{sT0}, s2, 9600")
    if "a" in which:
        A(f"buffer_load_dword v{G_P+2}, v{vT}, s[{sWA}:{sWA+3}], s{sT0} offen")
    if "b" in which:
        A(f"buffer_load_dword v{G_P+3}, v{vT}, s[{sWB}:{sWB+3}], s{sT0} offen")
    A.label(f"L_tc_done{which}")


def touch_phase(A, phase):
    L = f"L_tp{phase}"
    if phase != 2:
        k0, nk = {0: (3, 3), 1: (6, 4), 3: (0, 3)}[phase]
        wx, ww = {0: (0, 1), 1: (2, 3), 3: (2, 3)}[phase]
        A(f"s_cmp_lg_u32 s{sW}, {wx}")
        A(f"s_cbranch_scc1 {L}_w")
        if nk == 3:
            A(f"v_mul_u32_u24 v{vT}, 86, v{vL}")
            A(f"v_lshrrev_b32 v{vT}, 8, v{vT}")
        else:
            A(f"v_lshrrev_b32 v{vT}, 2, v{vL}")
        A(f"v_mul_u32_u24 v{vT+1}, {nk}, v{vT}")
        A(f"v_sub_u32 v{vT+1}, v{vL}, v{vT+1}")
        A(f"v_min_u32 v{vT}, 7, v{vT}")
        A(f"v_mul_u32_u24 v{vT}, 1280, v{vT}")
        A(f"v_lshl_add_u32 v{vT}, v{vT+1}, 7, v{vT}")
        A(f"s_mul_i32 s{sT0}, s2, 10240")
        A(f"s_add_u32 s{sT0}, s{sT0}, {128*k0}")
        A(f"buffer_load_dword v{G_P+1}, v{vT}, s[{sX}:{sX+3}], s{sT0} offen")
        A.label(f"{L}_w")
        per = 64 * nk * 30 // 256 + (1 if (64 * nk * 30) % 256 else 0)
        A(f"s_cmp_lg_u32 s{sW}, {ww}")
        A(f"s_cbranch_scc1 {L}_done")
        A(f"v_min_u32 v{vT}, {per - 1}, v{vL}")
        A(f"v_lshlrev_b32 v{vT}, 7, v{vT}")
        A(f"s_mul_i32 s{sT0}, s2, {64 * nk * 3840 // 256}")
        A(f"s_and_b32 s{sT0}, s{sT0}, 0xffffff80")
        A(f"s_add_u32 s{sT0}, s{sT0}, {64 * k0 * 3840}")
        A(f"buffer_load_dword v{G_P+2}, v{vT}, s[{sWA}:{sWA+3}], s{sT0} offen")
    else:
        A(f"s_cmp_ge_u32 s{sW}, 2")
        A(f"s_cbranch_scc1 {L}_done")
        A(f"s_lshl_b32 s{sT1}, s{sW}, 6")
        A(f"v_add_u32 v{vT}, s{sT1}, v{vL}")
        A(f"v_min_u32 v{vT}, 74, v{vT}")
        A(f"v_lshlrev_b32 v{vT}, 7, v{vT}")
        A(f"s_mul_i32 s{sT0}, s2, 9600")
        A(f"buffer_load_dword v{G_P+3}, v{vT}, s[{sWB}:{sWB+3}], s{sT0} offen")
    A.label(f"{L}_done")


def touch_chip_wide(A, which, tag):
    A(f"s_cmp_ge_u32 s{sW}, 4")
    A(f"s_cbranch_scc1 L_tcw{tag}")
    A(f"s_lshl_b32 s{sT1}, s{sW}, 10")
    A(f"v_add_u32 v{vT}, s{sT1}, v{vL16}")
    k = 0
    for name, srd_, size in (("x", sX, 10240), ("a", sWA, 9600), ("b", sWB, 9600)):
        if name not in which:
            continue
        A(f"s_mul_i32 s{sT0}, s2, {size}")
        for i in range(3):
            A(f"v_add_u32 v{vT+1}, {4096*i}, v{vT}")
            A(f"v_min_u32 v{vT+1}, {size - 16}, v{vT+1}")
            A(f"buffer_load_dwordx4 {v(G_P + 4*k, 4)}, v{vT+1}, s[{srd_}:{srd_+3}], s{sT0} offen")
            k += 1
    A.label(f"L_tcw{tag}")


def touch_chip_b(A, n):
    A(f"s_cmp_ge_u32 s{sW}, 2")
    A(f"s_cbranch_scc1 L_tcb{n}")
    A(f"s_lshl_b32 s{sT1}, s{sW}, 6")
    A(f"v_add_u32 v{vT}, s{sT1}, v{vL}")
    A(f"v_min_u32 v{vT}, 74, v{vT}")
    A(f"v_lshlrev_b32 v{vT}, 7, v{vT}")
    A(f"s_mul_i32 s{sT0}, s2, 9600")
    A(f"buffer_load_dword v{G_P+3}, v{vT}, s[{sWB}:{sWB+3}], s{sT0} offen")
    A.label(f"L_tcb{n}")


def touch_wb(A, n):
    A(f"s_cmp_ge_u32 s{sW}, 3")
    A(f"s_cbranch_scc1 L_twb{n}")
    A(f"s_and_b32 s{sT0}, s{sRB}, 7")
    A(f"s_mul_i32 s{sT0}, s{sT0}, 80")
    A(f"s_lshl_b32 s{sT1}, s{sW}, 5")
    A(f"v_lshrrev_b32 v{vT}, 1, v{vL}")
    A(f"v_add_u32 v{vT}, s{sT1}, v{vT}")
    A(f"v_min_u32 v{vT}, 79, v{vT}")
    A(f"v_add_u32 v{vT}, s{sT0}, v{vT}")
    A(f"v_mul_u32_u24 v{vT}, 3840, v{vT}")
    A(f"v_and_b32 v{vT+1}, 1, v{vL}")
    A(f"v_lshl_add_u32 v{vT}, v{vT+1}, 7, v{vT}")
    A(f"buffer_load_dword v{G_P}, v{vT}, s[{sWB}:{sWB+3}], s{sWOFF} offen")
    A.label(f"L_twb{n}")


def touch_a(A, n):
    A(f"v_mul_u32_u24 v{vT}, 37, v{vL}")
    A(f"v_lshrrev_b32 v{vT}, 8, v{vT}")
    A(f"v_mul_u32_u24 v{vT+1}, 7, v{vT}")
    A(f"v_sub_u32 v{vT+1}, v{vL}, v{vT+1}")
    A(f"v_min_u32 v{vT}, 7, v{vT}")
    A(f"s_and_b32 s{sT0}, s{sCT}, 3")
    A(f"s_lshl_b32 s{sT0}, s{sT0}, 2")
    A(f"s_add_u32 s{sT0}, s{sT0}, s{sW}")
    A(f"s_lshl_b32 s{sT0}, s{sT0}, 3")
    A(f"v_add_u32 v{vT}, s{sT0}, v{vT}")
    A(f"v_mul_u32_u24 v{vT}, 1280, v{vT}")
    A(f"v_lshl_add_u32 v{vT}, v{vT+1}, 7, v{vT}")
    A(f"v_add_u32 v{vT}, 384, v{vT}")
    A(f"buffer_load_dword v{G_P+1}, v{vT}, s[{sX}:{sX+3}], s{sXOFF} offen")
    A(f"s_cmp_ge_u32 s{sW}, 2")
    A(f"s_cbranch_scc1 L_twa{n}")
    A(f"s_and_b32 s{sT0}, s{sRB}, 7")
    A(f"s_mul_i32 s{sT0}, s{sT0}, 56")
    A(f"s_mul_i32 s{sT1}, s{sW}, 28")
    A(f"s_add_u32 s{sT0}, s{sT0}, s{sT1}")
    A(f"s_add_u32 s{sT0}, s{sT0}, 192")
    A(f"v_lshrrev_b32 v{vT}, 1, v{vL}")
    A(f"v_min_u32 v{vT}, 27, v{vT}")
    A(f"v_add_u32 v{vT}, s{sT0}, v{vT}")
    A(f"v_mul_u32_u24 v{vT}, 3840, v{vT}")
    A(f"v_and_b32 v{vT+1}, 1, v{vL}")
    A(f"v_lshl_add_u32 v{vT}, v{vT+1}, 7, v{vT}")
    A(f"buffer_load_dword v{G_P+2}, v{vT}, s[{sWA}:{sWA+3}], s{sWOFF} offen")
    A.label(f"L_twa{n}")


def setup_phase1_reads(A):
    A(f"v_lshrrev_b32 v{vT+2}, 1, v{vR}")
    A(f"v_and_b32 v{vT+2}, 7, v{vT+2}")
    A(f"v_xor_b32 v{vT+2}, v{vT+2}, v{vHH}")
    A(f"v_lshlrev_b32 v{vT+2}, 4, v{vT+2}")
    A(f"s_lshl_b32 s{sT0}, s{sMH}, 6")
    A(f"v_add_u32 v{vT+3}, s{sT0}, v{vR}")
    A(f"v_lshl_add_u32 v{vXR}, v{vT+3}, 7, v{vT+2}")
    for ks in range(1, 4):
        A(f"v_xor_b32 v{vXR+3*ks}, {ks*32}, v{vXR}")
    for ks in range(4):
        A(f"v_add_u32 v{vXR+3*ks+1}, 0x10000, v{vXR+3*ks}")
        A(f"v_add_u32 v{vXR+3*ks+2}, 0x20000, v{vXR+3*ks}")
    A(f"v_bfe_u32 v{vT+2}, v{vL}, 2, 2")
    A(f"v_lshl_add_u32 v{vT+3}, v{vHH}, 3, v{vT+2}")
    A(f"v_lshlrev_b32 v{vT+3}, 8, v{vT+3}")
    A(f"v_bfe_u32 v{vT+4}, v{vL}, 4, 1")
    A(f"v_lshlrev_b32 v{vT+4}, 5, v{vT+4}")
    A(f"v_add_u32 v{vT+3}, v{vT+3}, v{vT+4}")
    A(f"v_and_b32 v{vT+4}, 3, v{vL}")
    A(f"v_lshlrev_b32 v{vT+4}, 3, v{vT+4}")
    A(f"v_add_u32 v{vT+3}, v{vT+3}, v{vT+4}")
    for nt in range(2):
        A(f"s_lshl_b32 s{sT0}, s{sNH}, 1")
        A(f"s_add_u32 s{sT0}, s{sT0}, {nt}")
        A(f"v_xor_b32 v{vT+4}, s{sT0}, v{vT+2}")
        A(f"v_lshl_add_u32 v{vWR1+3*nt}, v{vT+4}, 6, v{vT+3}")
        A(f"v_add_u32 v{vWR1+3*nt+1}, 0x10000, v{vWR1+3*nt}")
        A(f"v_add_u32 v{vWR1+3*nt+2}, 0x20000, v{vWR1+3*nt}")


def setup_p2_0(A):
    A(f"s_lshl_b32 s{sF1}, s{sCT}, 4")
    A(f"s_add_u32 s{sF1}, s{sF1}, s{sRB}")
    A(f"s_lshl_b32 s{sF1}, s{sF1}, 2")
    A(f"s_and_b32 s{sT0}, s2, 7")
    A(f"s_lshl_b32 s{sT0}, s{sT0}, 2")
    A(f"s_lshr_b32 s{sT1}, s2, 3")
    A(f"s_and_b32 s{sT1}, s{sT1}, 3")
    A(f"s_add_u32 s{sH}, s{sT0}, s{sT1}")
    A(f"s_lshr_b32 s{sQB}, s2, 5")
    A(f"s_lshr_b32 s{sT0}, s{sH}, 1")
    A(f"s_mul_i32 s{sT0}, s{sT0}, 5")
    A(f"s_add_u32 s{sP2L}, s{sT0}, 2")
    A(f"s_and_b32 s{sT1}, s{sH}, 1")
    A(f"s_mul_i32 s{sT1}, s{sT1}, 3")
    A(f"s_add_u32 s{sPA}, s{sT0}, s{sT1}")
    A(f"s_mul_i32 s{sVH}, s{sH}, {VH}")
    A(f"s_mul_i32 s{sLDSW}, s{sW}, 2816")
    A(f"s_mul_i32 s{sLDSW2}, s{sW}, 2560")
    A(f"s_lshl_b32 s{sQ0}, s{sQB}, 8")
    A(f"s_lshl_b32 s{sT0}, s{sW}, 5")
    A(f"s_add_u32 s{sQ0}, s{sQ0}, s{sT0}")
    A(f"s_lshl_b32 s{sQT}, s{sQB}, 2")
    A(f"s_lshr_b32 s{sT0}, s{sW}, 1")
    A(f"s_add_u32 s{sQT}, s{sQT}, s{sT0}")
    A(f"s_and_b32 s{sT1}, s{sW}, 1")
    A(f"s_lshl_b32 s{sBT}, s{sQT}, 6")
    A(f"s_add_u32 s{sBT}, s{sBT}, s{sT1}")
    A(f"s_mov_b32 s{sLO20}, 0xfffff")
    A(f"s_mov_b32 s{sLO20+1}, 0xfffff")
    A(f"v_lshlrev_b32 v{vQA}, 15, v{vHH}")
    A(f"v_lshl_add_u32 v{vQA}, v{vR}, 4, v{vQA}")
    A(f"v_lshlrev_b32 v{vQA2}, 4, v{vR}")
    A(f"v_lshlrev_b32 v{vGA}, 2, v{vR}")
    A(f"s_lshl_b32 s{sT0}, s{sQ0}, 4")
    A(f"s_lshl_b32 s{sQOFF}, s{sPA}, 15")
    A(f"s_add_u32 s{sQOFF}, s{sQOFF}, s{sT0}")
    if QA:
        A(f"s_add_u32 s{sQOFF}, s{sQOFF}, {QA}")
    A(f"s_lshl_b32 s{sQOFF2}, s{sP2L}, 15")
    A(f"s_add_u32 s{sQOFF2}, s{sQOFF2}, s{sT0}")
    A(f"s_and_b32 s{sT1}, s{sH}, 1")
    A(f"s_lshl_b32 s{sT1}, s{sT1}, 3")
    A(f"s_add_u32 s{sQOFF2}, s{sQOFF2}, s{sT1}")
    if QA:
        A(f"s_add_u32 s{sQOFF2}, s{sQOFF2}, {QA}")
    A(f"s_lshl_b32 s{sGOFF}, s{sQ0}, 2")
    A(f"s_add_u32 s{sGOFF}, s{sGOFF}, {GATE}")


def setup_p2_1(A):
    A(f"s_and_b32 s{sT1}, s{sH}, 1")
    A(f"s_lshl_b32 s{sT1}, s{sT1}, 3")
    A(f"v_lshlrev_b32 v{vT}, 12, v{vHH}")
    A(f"v_lshl_add_u32 v{vT}, v{vR}, 4, v{vT}")
    A(f"v_lshlrev_b32 v{vT+1}, 4, v{vR}")
    A(f"v_add_u32 v{vT+1}, s{sT1}, v{vT+1}")
    A(f"v_mul_u32_u24 v{vT+2}, 320, v{vHH}")
    A(f"v_lshl_add_u32 v{vT+2}, v{vR}, 4, v{vT+2}")
    A(f"v_add_u32 v{vT+3}, {ONES}, v{vT+2}")
    A(f"v_cmp_gt_u32 vcc, 20, v{vR}")
    for sl in range(NSLOT):
        A(f"v_add_u32 v{vK01+sl}, {sl*SLOT}, v{vT}")
        A(f"v_add_u32 v{vK2+sl}, {sl*SLOT}, v{vT+1}")
        A(f"v_add_u32 v{vT+4}, {sl*SLOT + 12288}, v{vT+2}")
        A(f"v_cndmask_b32 v{vV+sl}, v{vT+3}, v{vT+4}, vcc")
    A(f"s_lshl_b32 s{sT2}, s{sPA}, 15")
    A(f"s_add_u32 s{sT2}, s{sT2}, {KA}")
    A(f"s_lshl_b32 s{sT3}, s{sP2L}, 15")
    A(f"s_add_u32 s{sT3}, s{sT3}, {KA - 8192}")
    A(f"s_add_u32 s{sT4}, s{sVH}, {VA - 12288}")
    for t in range(3):
        A(f"v_add_u32 v{vT}, s{sLDSW}, v{vL16}")
        if t:
            A(f"v_add_u32 v{vT}, {1024*t}, v{vT}")
        A(f"v_lshrrev_b32 v{vT+1}, 12, v{vT}")
        A(f"v_and_b32 v{vT+2}, 4095, v{vT}")
        A(f"v_lshl_add_u32 v{vT+2}, v{vT+1}, 15, v{vT+2}")
        A(f"v_add_u32 v{vT+2}, s{sT2}, v{vT+2}")
        A(f"v_add_u32 v{vT+3}, s{sT3}, v{vT}")
        A(f"v_add_u32 v{vT+4}, s{sT4}, v{vT}")
        A(f"v_cmp_eq_u32 vcc, 2, v{vT+1}")
        A(f"v_mov_b32 v{vT+5}, 4096")
        A(f"v_mov_b32 v{vT+6}, 10240")
        A(f"v_cndmask_b32 v{vT+2}, v{vT+2}, v{vT+3}, vcc")
        A(f"v_cmp_le_u32 vcc, 3, v{vT+1}")
        A("s_nop 1")
        A(f"v_cndmask_b32 v{vCB+t}, v{vT+2}, v{vT+4}, vcc")
        A(f"v_cndmask_b32 v{vCS+t}, v{vT+5}, v{vT+6}, vcc")


def setup_p2_2(A):
    A(f"s_lshr_b32 s{sT0}, s{sH}, 1")
    A(f"s_mul_i32 s{sT0}, s{sT0}, 5")
    A(f"s_and_b32 s{sT1}, s{sH}, 1")
    A(f"s_lshl_b32 s{sT2}, s{sT1}, 1")
    A(f"s_add_u32 s{sT2}, s{sT2}, s{sT0}")
    A(f"v_add_u32 v{vT}, s{sT2}, v{vHH}")
    A(f"v_lshlrev_b32 v{vT}, 15, v{vT}")
    A(f"v_lshl_add_u32 v{vOST}, v{vR}, 4, v{vT}")
    A(f"v_lshl_add_u32 v{vOST+1}, v{vR}, 5, v{vT}")
    A(f"s_add_u32 s{sT0}, s{sT0}, 4")
    A(f"s_lshl_b32 s{sT0}, s{sT0}, 15")
    A(f"s_lshl_b32 s{sT1}, s{sT1}, 3")
    A(f"s_add_u32 s{sT0}, s{sT0}, s{sT1}")
    A(f"v_lshlrev_b32 v{vT}, 4, v{vR}")
    A(f"v_add_u32 v{vOST+2}, s{sT0}, v{vT}")
    A(f"v_lshlrev_b32 v{vT}, 5, v{vR}")
    A(f"v_add_u32 v{vOST+3}, s{sT0}, v{vT}")
    A(f"s_mul_i32 s{sT0}, s{sH}, 20")
    A(f"s_add_u32 s{sT1}, s{sT0}, 19")
    A(f"s_lshr_b32 s{sT0}, s{sT0}, 7")
    A(f"s_lshr_b32 s{sT1}, s{sT1}, 7")
    A(f"v_bfe_u32 v{vT}, v{vL}, 4, 1")
    A(f"s_sub_u32 s{sT2}, s{sT1}, s{sT0}")
    A(f"v_mul_u32_u24 v{vT+1}, s{sT2}, v{vT}")
    A(f"v_add_u32 v{vT+1}, s{sT0}, v{vT+1}")
    A(f"v_mul_u32_u24 v{vT+2}, 5, v{vHH}")
    A(f"v_add_u32 v{vT+2}, 5, v{vT+2}")
    A(f"v_add_u32 v{vT+2}, v{vT+2}, v{vT+1}")
    A(f"v_and_b32 v{vT+3}, 15, v{vL}")
    A(f"v_lshl_add_u32 v{vT+2}, v{vT+2}, 4, v{vT+3}")
    A(f"v_lshlrev_b32 v{vF1}, 2, v{vT+2}")
    A(f"v_add_u32 v{vT+2}, {15*16}, v{vT+3}")
    A(f"v_lshlrev_b32 v{vF4}, 2, v{vT+2}")
    A(f"v_and_b32 v{vT+4}, 1, v{vL}")
    A(f"s_lshl_b32 s{sT3}, s{sQB}, 1")
    A(f"v_add_u32 v{vT+4}, s{sT3}, v{vT+4}")
    A(f"v_lshl_add_u32 v{vT+4}, v{vT+1}, 4, v{vT+4}")
    A(f"v_lshlrev_b32 v{vF2}, 2, v{vT+4}")
    A(f"v_and_b32 v{vT}, 1, v{vL}")
    A(f"v_mul_u32_u24 v{vT+1}, s{sT2}, v{vT}")
    A(f"v_add_u32 v{vT+1}, s{sT0}, v{vT+1}")
    A(f"v_bfe_u32 v{vT+2}, v{vL}, 1, 2")
    A(f"v_min_u32 v{vT+2}, 2, v{vT+2}")
    A(f"v_mul_u32_u24 v{vT+2}, 5, v{vT+2}")
    A(f"v_add_u32 v{vT+1}, v{vT+1}, v{vT+2}")
    A(f"s_lshl_b32 s{sT3}, s{sQB}, 1")
    A(f"v_bfe_u32 v{vT+2}, v{vL}, 3, 2")
    A(f"v_min_u32 v{vT+2}, 2, v{vT+2}")
    A(f"v_add_u32 v{vT+2}, s{sT3}, v{vT+2}")
    A(f"v_max_u32 v{vT+2}, 1, v{vT+2}")
    A(f"v_subrev_u32 v{vT+2}, 1, v{vT+2}")
    A(f"v_lshl_add_u32 v{vT+1}, v{vT+1}, 4, v{vT+2}")
    A(f"v_lshlrev_b32 v{vF3}, 2, v{vT+1}")


def setup_p2_3(A):
    A(f"v_lshlrev_b32 v{vBA}, 15, v{vHH}")
    A(f"v_lshl_add_u32 v{vBA}, v{vR}, 4, v{vBA}")
    A(f"v_lshlrev_b32 v{vBA+1}, 4, v{vR}")
    A(f"v_and_b32 v{vT+2}, 25, v{vR}")
    A(f"v_bfe_u32 v{vT+3}, v{vR}, 1, 1")
    A(f"v_lshl_or_b32 v{vT+2}, v{vT+3}, 2, v{vT+2}")
    A(f"v_bfe_u32 v{vT+3}, v{vR}, 2, 1")
    A(f"v_lshl_or_b32 v{vT+2}, v{vT+3}, 1, v{vT+2}")
    A(f"v_lshlrev_b32 v{vT+3}, 15, v{vHH}")
    A(f"v_lshl_add_u32 v{vBA+2}, v{vT+2}, 4, v{vT+3}")
    A(f"v_lshlrev_b32 v{vBA+3}, 4, v{vT+2}")
    A(f"v_mul_u32_u24 v{vT+4}, 320, v{vHH}")
    A(f"v_lshl_add_u32 v{vBA+4}, v{vR}, 4, v{vT+4}")
    A(f"s_and_b32 s{sT1}, s{sW}, 1")
    A(f"s_lshl_b32 s{sT1}, s{sT1}, 10")
    A(f"s_lshl_b32 s{sT0}, s{sQT}, 5")
    A(f"s_add_u32 s{sT2}, s{sT1}, s{sT0}")
    A(f"s_lshl_b32 s{sT0}, s{sPA}, 15")
    A(f"s_lshl_b32 s{sT1}, s{sP2L}, 15")
    A(f"s_and_b32 s{sT3}, s{sH}, 1")
    A(f"s_lshl_b32 s{sT3}, s{sT3}, 3")
    A(f"s_add_u32 s{sT1}, s{sT1}, s{sT3}")
    for prev in range(2):
        if prev:
            A(f"s_cmp_eq_u32 s{sQT}, 0")
            A(f"s_cselect_b32 s{sT3}, 0, 32")
            A(f"s_sub_u32 s{sT2}, s{sT2}, s{sT3}")
        A(f"s_lshl_b32 s{sT3}, s{sT2}, 4")
        if not prev:
            A(f"s_add_u32 s{sBA}, s{sT3}, s{sT0}")
            A(f"s_add_u32 s{sBA}, s{sBA}, {QB}")
            A(f"s_add_u32 s{sBA+1}, s{sT3}, s{sT1}")
            A(f"s_add_u32 s{sBA+1}, s{sBA+1}, {QB}")
        o = sBA + 2 + 3 * prev
        A(f"s_add_u32 s{o}, s{sT3}, s{sT0}")
        A(f"s_add_u32 s{o}, s{o}, {KB}")
        A(f"s_add_u32 s{o+1}, s{sT3}, s{sT1}")
        A(f"s_add_u32 s{o+1}, s{o+1}, {KB}")
        A(f"s_lshr_b32 s{sT3}, s{sT2}, 4")
        A(f"s_mul_i32 s{sT3}, s{sT3}, 640")
        A(f"s_add_u32 s{o+2}, s{sT3}, s{sVH}")
        A(f"s_add_u32 s{o+2}, s{o+2}, {VB}")
    A(f"s_lshl_b32 s{sBA+8}, s{sBT}, 2")
    A(f"s_add_u32 s{sBA+8}, s{sBA+8}, {GATE}")


def setup_p2_4(A):
    sRT, sCO, sTG = sT1, sT2, sT3
    A(f"s_lshr_b32 s{sRT}, s{sH}, 3")
    A(f"s_lshl_b32 s{sT0}, s{sQB}, 2")
    A(f"s_add_u32 s{sRT}, s{sRT}, s{sT0}")
    A(f"s_and_b32 s{sCO}, s{sH}, 7")
    A(f"s_and_b32 s{sTG}, s{sW}, 3")
    A(f"s_lshr_b32 s{sKG}, s{sW}, 2")
    A(f"s_lshl_b32 s{sFLG}, s{sRT}, 8")
    A(f"s_mul_i32 s{sWSRC}, s{sW}, 20480")
    A(f"s_mul_i32 s{sT0}, s{sCO}, 1280")
    A(f"s_add_u32 s{sWSRC}, s{sWSRC}, s{sT0}")
    A(f"s_add_u32 s{sWSRC}, s{sWSRC}, {WOT}")
    A(f"s_lshl_b32 s{sRT}, s{sRT}, 6")
    A(f"s_lshl_b32 s{sTG}, s{sTG}, 4")
    A(f"s_add_u32 s{sRT}, s{sRT}, s{sTG}")
    A(f"s_mul_i32 s{sOUTO}, s{sRT}, 1280")
    A(f"s_mul_i32 s{sT0}, s{sCO}, 160")
    A(f"s_add_u32 s{sOUTO}, s{sOUTO}, s{sT0}")
    A(f"s_lshl_b32 s{sOCB}, s{sRT}, 4")
    A(f"s_mul_i32 s{sT0}, s{sKG}, {40*32768}")
    A(f"s_add_u32 s{sOCB}, s{sOCB}, s{sT0}")
    A(f"s_add_u32 s{sOCB}, s{sOCB}, {OC}")
    A(f"s_lshl_b32 s{sPUB}, s{sQT}, 6")
    A(f"s_lshl_b32 s{sT0}, s{sH}, 1")
    A(f"s_add_u32 s{sPUB}, s{sPUB}, s{sT0}")
    A(f"s_and_b32 s{sT0}, s{sW}, 1")
    A(f"s_add_u32 s{sPUB}, s{sPUB}, s{sT0}")
    A(f"s_lshl_b32 s{sPUB}, s{sPUB}, 2")
    A(f"v_lshlrev_b32 v{vFA}, 2, v{vL}")
    A(f"v_mov_b32 v{vW0}, v{vL16}")
    A(f"v_add_u32 v{vT}, 1024, v{vL16}")
    A(f"v_add_u32 v{vT+1}, {10240 - 256}, v{vL16}")
    A(f"v_cmp_gt_u32 vcc, 16, v{vL}")
    A(f"v_add_u32 v{vW2}, {10240 + 768}, v{vL16}")
    A(f"v_lshrrev_b32 v{vT+2}, 4, v{vL}")
    A(f"v_cndmask_b32 v{vW1}, v{vT+1}, v{vT}, vcc")
    A(f"v_and_b32 v{vT+3}, 15, v{vL}")
    A(f"v_lshlrev_b32 v{vT+4}, 15, v{vT+2}")
    A(f"v_lshl_add_u32 v{vOC}, v{vT+3}, 4, v{vT+4}")
    A(f"v_mul_u32_u24 v{vT+4}, 1280, v{vT+2}")
    A(f"v_lshl_add_u32 v{vWR}, v{vT+3}, 4, v{vT+4}")
    A(f"v_mul_u32_u24 v{vT+4}, 1280, v{vT+3}")
    A(f"v_lshl_add_u32 v{vST}, v{vT+2}, 3, v{vT+4}")


SETUP_P2 = [setup_p2_0, setup_p2_1, setup_p2_2, setup_p2_3, setup_p2_4]


def setup_phase2(A):
    for f in SETUP_P2:
        f(A)


def pattern_fill(A):
    for r in range(2):
        A(f"v_add_u32 v{vT}, {512*r}, v0")
        A(f"v_mul_u32_u24 v{vT+1}, 3277, v{vT}")
        A(f"v_lshrrev_b32 v{vT+1}, 16, v{vT+1}")
        A(f"v_mul_u32_u24 v{vT+1}, 20, v{vT+1}")
        A(f"v_cmp_eq_u32 vcc, v{vT+1}, v{vT}")
        A(f"v_mov_b32 v{vT+4}, 0")
        A(f"v_mov_b32 v{vT+5}, 0x3f803f80")
        A(f"v_cndmask_b32 v{vT+4}, v{vT+4}, v{vT+5}, vcc")
        for i in range(1, 4):
            A(f"v_mov_b32 v{vT+4+i}, v{vT+4}")
        if r == 1:
            A(f"v_cmp_gt_u32 vcc, {PAT_UNITS}, v{vT}")
        A(f"v_lshlrev_b32 v{vT}, 4, v{vT}")
        A(f"v_add_u32 v{vT}, {ONES}, v{vT}")
        if r == 1:
            A("s_and_saveexec_b64 s[%d:%d], vcc" % (sT4, sT5))
            A("s_cbranch_execz L_pat_done")
        A.lds(f"ds_write_b128 v{vT}, {v(vT+4,4)}", "pat")
    A.label("L_pat_done")
    A("s_mov_b64 exec, -1")


def gen(prof=False):
    A = Asm()
    A.prof = prof
    A.PROF_V = 239
    kernel_header(A, NAME)
    A("s_cmp_ge_u32 s2, 256")
    A("s_cbranch_scc1 L_end")
    A.stamp("start")
    if EXP.get("jit"):
        A(f"s_mov_b32 s{sW}, 0")
        jitter(A)
    A("s_load_dwordx4 s[4:7], s[0:1], 0")
    A(f"s_load_dwordx2 s[{sP}:{sP+1}], s[0:1], 32")
    A(f"s_load_dwordx2 s[{sP+2}:{sP+3}], s[0:1], 72")
    A(f"s_load_dwordx4 s[{sDBG}:{sDBG+3}], s[0:1], 56")
    A(f"v_lshrrev_b32 v{vT}, 6, v0")
    A(f"v_and_b32 v{vL}, 63, v0")
    A(f"v_readfirstlane_b32 s{sW}, v{vT}")
    A(f"v_and_b32 v{vR}, 31, v{vL}")
    A(f"v_lshrrev_b32 v{vHH}, 5, v{vL}")
    A(f"v_lshlrev_b32 v{vL16}, 4, v{vL}")
    A(f"s_and_b32 s{sT0}, s2, 7")
    A(f"s_lshr_b32 s{sT1}, s2, 3")
    A(f"s_and_b32 s{sRB}, s{sT0}, 1")
    A(f"s_lshl_b32 s{sRB}, s{sRB}, 3")
    A(f"s_and_b32 s{sT2}, s{sT1}, 7")
    A(f"s_add_u32 s{sRB}, s{sRB}, s{sT2}")
    A(f"s_lshr_b32 s{sCT}, s{sT0}, 1")
    A(f"s_lshl_b32 s{sCT}, s{sCT}, 2")
    A(f"s_lshr_b32 s{sT2}, s{sT1}, 3")
    A(f"s_add_u32 s{sCT}, s{sCT}, s{sT2}")
    A(f"s_and_b32 s{sGI}, s{sW}, 3")
    A(f"s_and_b32 s{sMH}, s{sGI}, 1")
    A(f"s_lshr_b32 s{sNH}, s{sGI}, 1")
    A(f"s_mul_i32 s{sXOFF}, s{sRB}, {128*1280}")
    A(f"s_lshl_b32 s{sWOFF}, s{sCT}, 8")
    A(f"s_lshl_b32 s{sLDS1}, s{sGI}, 10")
    A(f"s_mul_hi_u32 s{sT0}, s{sCT}, 0x33333334")
    A(f"s_mul_i32 s{sT0}, s{sT0}, 5")
    A(f"s_sub_u32 s{sCT5}, s{sCT}, s{sT0}")
    A(f"v_lshrrev_b32 v{vT}, 3, v{vL}")
    A(f"s_lshl_b32 s{sT0}, s{sGI}, 3")
    A(f"v_add_u32 v{vT}, s{sT0}, v{vT}")
    A(f"v_lshrrev_b32 v{vT+1}, 1, v{vT}")
    A(f"v_xor_b32 v{vT+1}, v{vT+1}, v{vL}")
    A(f"v_and_b32 v{vT+1}, 7, v{vT+1}")
    A(f"v_lshlrev_b32 v{vT+1}, 4, v{vT+1}")
    A(f"v_mul_u32_u24 v{vT+2}, 1280, v{vT}")
    A(f"v_add_u32 v{vXD}, v{vT+2}, v{vT+1}")
    A(f"v_lshrrev_b32 v{vT}, 4, v{vL}")
    A(f"v_lshlrev_b32 v{vT+1}, 2, v{vT}")
    A(f"v_xor_b32 v{vT+1}, v{vT+1}, v{vL}")
    A(f"v_and_b32 v{vT+1}, 15, v{vT+1}")
    A(f"v_lshlrev_b32 v{vT+1}, 4, v{vT+1}")
    A(f"s_lshl_b32 s{sT0}, s{sGI}, 2")
    A(f"v_add_u32 v{vT}, s{sT0}, v{vT}")
    A(f"v_mul_u32_u24 v{vT}, 3840, v{vT}")
    A(f"v_add_u32 v{vWD}, v{vT}, v{vT+1}")
    if EXP.get("stampP"):
        A("s_memtime s[96:97]")
        A("s_memrealtime s[98:99]")
    A("s_waitcnt lgkmcnt(0)")
    if EXP.get("stampP"):
        A(f"v_writelane_b32 v{A.PROF_V}, s96, 14")
        A(f"v_writelane_b32 v{A.PROF_V}, s98, 30")
        A.stamp("", 15)
    srd(A, sX, 4, X_BYTES)
    srd(A, sWA, 6, W_BYTES)
    srd(A, sWB, sP, W_BYTES)
    srd(A, sWS, sP + 2, WS_USED)
    srd(A, sOUT, sDBG, OUT_BYTES)
    A(f"s_mov_b32 s{sDBG}, s{sDBG+2}")
    A(f"s_and_b32 s{sDBG+1}, s{sDBG+3}, 0xffff")
    A(f"s_mov_b32 s{sDBG+2}, 256")
    A(f"s_mov_b32 s{sDBG+3}, 0x20000")
    A(f"s_cmp_eq_u32 s{sCT}, 15")
    A("s_cbranch_scc1 L_nodma")
    A(f"s_cmp_lt_u32 s{sW}, 4")
    A("s_cbranch_scc1 L_nodma")
    for b in range(3):
        for p in range(8):
            g_dma(A, b, p)
    A(f"s_cmp_ge_u32 s{sCT}, 10")
    A("s_cbranch_scc1 L_g1n")
    A("s_branch L_g1t")
    A.label("L_nodma")
    if EXP.get("tchip", 13) in (1, 2, 3):
        touch_chip(A, {1: "xab", 2: "xa", 3: "b"}[EXP["tchip"]])
    if EXP.get("tchip") == 6:
        touch_chip_wide(A, "xa", "e")
    if EXP.get("tchip") == 7:
        touch_chip_wide(A, "ax", "e")
    A(f"s_or_b32 s{sT0}, s2, s{sW}")
    A(f"s_cmp_lg_u32 s{sT0}, 0")
    A("s_cbranch_scc1 L_nonce_done")
    A(f"s_memrealtime s[{sT4}:{sT5}]")
    A("s_waitcnt lgkmcnt(0)")
    A(f"s_or_b32 s{sT0}, s{sT4}, 1")
    A(f"v_mov_b32 v{vT}, s{sT0}")
    A(f"v_mov_b32 v{vT+1}, 0")
    A("s_mov_b64 exec, 1")
    A(f"buffer_store_dword v{vT}, v{vT+1}, s[{sDBG}:{sDBG+3}], 0 offen sc1")
    A("s_mov_b64 exec, -1")
    A.label("L_nonce_done")
    if EXP.get("cpf"):
        A(f"s_lshr_b32 s{sT1}, s2, 3")
        A(f"s_cmp_ge_u32 s{sT1}, 8")
        A("s_cbranch_scc1 L_cpf_done")
        A(f"s_cmp_lg_u32 s{sW}, {EXP['cpf'] - 1}")
        A("s_cbranch_scc1 L_cpf_done")
        A(f"s_getpc_b64 s[{sT4}:{sT5}]")
        A.label("L_cpf_pc")
        A(f"s_sub_u32 s{sT4}, s{sT4}, L_cpf_pc - {NAME}")
        A(f"s_subb_u32 s{sT5}, s{sT5}, 0")
        A(f"s_lshl_b32 s{sT1}, s{sT1}, 13")
        A(f"v_lshlrev_b32 v{vT}, 7, v{vL}")
        A(f"v_add_u32 v{vT}, s{sT1}, v{vT}")
        A(f"v_min_u32 v{vT}, L_end - {NAME}, v{vT}")
        A(f"global_load_dword v{G_P}, v{vT}, s[{sT4}:{sT5}]")
        A.label("L_cpf_done")
    if EXP.get("tchip", 13) in (10, 11, 12, 13, 14):
        m = EXP.get("tchip", 13)
        if m in (13, 14):
            touch_phase(A, 3)
        if m in (10, 14):
            touch_phase(A, 0)
        setup_phase1_reads(A)
        if m not in (10, 14):
            touch_phase(A, 0)
        for k, f in enumerate(SETUP_P2):
            if k == (1 if m != 12 else 2):
                touch_phase(A, 1)
            f(A)
        touch_phase(A, 2)
    elif EXP.get("tchip") in (5, 9):
        setup_phase1_reads(A)
        touch_chip(A, "xa" if EXP["tchip"] == 5 else "xab")
        setup_phase2(A)
    else:
        setup_phase1_reads(A)
        setup_phase2(A)
    if EXP.get("tchip") == 4:
        touch_chip(A, "xa")
    if EXP.get("tchip") == 8:
        touch_chip(A, "xab")
    A.stamp("issued")
    A(f"s_cmp_eq_u32 s{sCT}, 15")
    A("s_cbranch_scc1 L_spare")
    A(f"s_cmp_ge_u32 s{sCT}, 10")
    A("s_cbranch_scc1 L_vtile")
    if prof:
        A.stamps += ["blk0 landed", "gemm0", "epi0", "gemm1", "epi1"]
        if EXP.get("stampB"):
            A.stamps += ["B10", "B12", "B14", "B16"]
        if EXP.get("stampA"):
            A.stamps += ["B0", "B2", "B4", "B6"]
    gemm(A, True, "t")
    A("s_branch L_attn")
    A.label("L_vtile")
    gemm(A, False, "n")
    A.label("L_attn")
    A.vm_q, A.lds_q = [], []
    jitter(A)
    A("s_barrier")
    A.stamp("attn start")
    if EXP.get("prio") == 1:
        A(f"s_cmp_lt_u32 s{sW}, 4")
        A("s_cbranch_scc1 L_prio_done")
        A("s_setprio 1")
        A.label("L_prio_done")
    rd_k01(A, 0)
    rd_k2(A, 0)
    dma_chunk(A, 3)
    pattern_fill(A)
    b_consts(A)
    A.lds_wait_all()
    mf16(A, SA, K01, Q01, "0")
    mf8(A, SA, K2, Q2, v(SA, 16))
    A("s_nop 7")
    A("s_nop 5")
    max16(A, vT, SA, True)
    cross_half_max(A, vT, vT + 1)
    for i in range(16):
        A(f"v_sub_f32 v{NEGM+i}, 0, v{vT}")
    A("s_nop 1")
    mf16(A, SA, K01, Q01, v(NEGM, 16))
    mf8(A, SA, K2, Q2, v(SA, 16))
    A("s_barrier")
    rd_k01(A, 1)
    rd_k2(A, 1)
    rd_v(A, 0, 0)
    A("s_nop 7")
    A("s_nop 3")
    NT = 64
    sched = {}
    def at(t, half, fn):
        sched.setdefault((t, half), []).append(fn)
    fb_items = [(vFL, vF3, F1B, None), (vFL2, vF4, F1A, None)]
    pos = {}
    def issue(name, items):
        def f(A):
            pos[name] = poll_issue(A, items, name)
        return f
    at(13, 0, issue("f1b", fb_items))
    pre_barrier = {22: lambda A: poll_check(A, fb_items, pos["f1b"], "f1b"),
                   54: lambda A: poll_check(A, fo_items, pos["fb"], "fb")}
    at(22, 1, lambda A: A.vm(f"buffer_load_dword v{vG}, v{vGA}, {WS}, s{sGOFF} offen sc1", "g"))
    for i, f in enumerate(b_load_items()):
        at(23 + i // 2, i % 2, f)
    at(31, 0, b_unit)
    at(38, 1, lambda A: publish(A, sPUB, FLAGB, "stb"))
    fo_items = [(vFL, vFA, FLAGB, sFLG)]
    at(48, 0, issue("fb", fo_items))
    for k in range(10):
        at(55 + k // 2, k % 2, lambda A, k=k: oc_load(A, 1, k))
    for st in range(3):
        for p in range(3):
            i = 3 * st + p
            at(42 + i // 2, i % 2, lambda A, st=st, p=p: dma_w_piece(A, 1, st, p))
    for st in range(3, 5):
        for p in range(3):
            i = 3 * (st - 3) + p
            at(57 + i // 2, 1 - i % 2, lambda A, st=st, p=p: dma_w_piece(A, 1, st, p))
    for c in range(2, NCH - 2):
        t0 = 32 if c == 4 else TPC * c - 1
        for p in range(3):
            at(t0 + (p + 1) // 2, (p + 1) % 2, lambda A, c=c, p=p: dma_chunk_piece(A, c + 2, p))
    for t in range(NT):
        cur = SA if t % 2 == 0 else SB
        nxt = SB if t % 2 == 0 else SA
        if (t == 32 and not (EXP.get("stampB") or EXP.get("stampA"))) or (EXP.get("stampB") and t in (21, 24)):
            A.stamp("t%d" % t)
        if t % TPC == TPC - 2 and t + 2 < NT:
            c = (t + 2) // TPC
            if c == 1:
                A.vm_wait_all()
            if c == 3:
                A.vm_wait(("c", 4))
            A.vm_wait(("c", c))
            if t in pre_barrier:
                pre_barrier[t](A)
            A("s_barrier")
            if c == 1:
                with Wave0(A, "pubb"):
                    publish(A, sF1, F1B)
        if EXP.get("prio") == 2 and t == 55:
            A(f"s_cmp_lt_u32 s{sW}, 4")
            A("s_cbranch_scc1 L_prio_done")
            A("s_setprio 1")
            A.label("L_prio_done")
        if EXP.get("prio") == 3 and t % 8 == 7:
            A(f"s_lshr_b32 s{sT0}, s{sW}, 2")
            A(f"s_cmp_eq_u32 s{sT0}, {(t // 8) % 2}")
            A(f"s_cbranch_scc1 L_prio_a{t}")
            A("s_setprio 0")
            A(f"s_branch L_prio_b{t}")
            A.label(f"L_prio_a{t}")
            A("s_setprio 1")
            A.label(f"L_prio_b{t}")
        if EXP.get("xbar") and t == EXP["xbar"]:
            A("s_barrier")
        if t == 63:
            A.vm_wait(("w", 1, 4))
        for f in sched.get((t, 0), []):
            f(A)
        if t + 1 < NT:
            A.lds_wait(("k01", t + 1))
            mf16(A, nxt, K01, Q01, "0" if EXP.get("m0") else v(NEGM, 16))
            if t + 2 < NT:
                rd_k01(A, t + 2)
        exps(A, cur, 0)
        if t > 0:
            A.lds_wait(("v", t - 1, 1))
            mf16(A, O, V1, P + 4, v(O, 16))
        rd_v(A, t, 1)
        exps(A, cur, 1)
        for f in sched.get((t, 1), []):
            f(A)
        if t + 1 < NT:
            A.lds_wait(("k2", t + 1))
            mf8(A, nxt, K2, Q2, v(nxt, 16))
            if t + 2 < NT:
                rd_k2(A, t + 2)
        exps(A, cur, 2)
        A.lds_wait(("v", t, 0))
        mf16(A, O, V0, P, "0" if t == 0 else v(O, 16))
        if t + 1 < NT:
            rd_v(A, t + 1, 0)
        exps(A, cur, 3)
    A.lds_wait(("v", NT - 1, 1))
    A("s_nop 1")
    mf16(A, O, V1, P + 4, v(O, 16))
    A(f"v_add_u32 v{vT+5}, 0x10000, v{vWR}")
    A(f"v_add_u32 v{vT+6}, 0x20000, v{vWR}")
    A(f"v_mov_b32 v{vT+3}, {hex(f32bits(BIG))}")
    A("s_nop 7")
    A("s_nop 3")
    A.stamp("loop end")
    row_sum(A, O)
    A(f"v_mul_f32 v{vT+2}, 0, v{O}")
    for i in range(1, 12):
        A(f"v_fma_f32 v{vT+2}, v{O+i}, 0, v{vT+2}")
    A(f"v_add_f32 v{vT+2}, v{vT+2}, v{vT+1}")
    A(f"v_cmp_lt_f32 vcc, v{vT+2}, v{vT+3}")
    A("s_nop 4")
    A("s_cmp_eq_u64 vcc, exec")
    A("s_cbranch_scc0 L_fallback")
    A.label("L_finish")
    jitter(A, True)
    A.vm_wait("g")
    finish_tile(A, O, vG, False, vOST, sQ0, 0, "sta")
    A(f"v_add_u32 v{vT+5}, 0x10000, v{vWR}")
    A(f"v_add_u32 v{vT+6}, 0x20000, v{vWR}")
    A("s_barrier")
    A.stamp("ring free") if not (EXP.get("stampB") or EXP.get("stampA")) else None
    wa = [(st, p) for st in range(2) for p in range(3)]

    def hook_b(k, kg):
        pk = EXP.get("pubk", 2)
        if k == pk:
            publish(A, sPUB, FLAGA, "sta")
        if pk <= k < pk + 6:
            st, p = wa[k - pk]
            dma_w_piece(A, 0, st, p)
    outproj(A, 1, True, hook_b)
    A.stamp("b part") if not (EXP.get("stampB") or EXP.get("stampA")) else None
    A("s_barrier")
    for st in range(2, 5):
        for p in range(3):
            dma_w_piece(A, 0, st, p)
    if EXP.get("notight"):
        fa_items = [(vFL, vFA, FLAGA, sFLG)]
        pfa = poll_issue(A, fa_items, "fa")
        poll_check(A, fa_items, pfa, "fa")
    else:
        poll_tight(A, FLAGA, sFLG, vFA, "fa")
    A.vm_wait(("w", 0, 4))
    A("s_barrier")
    A.stamp("flags a") if not (EXP.get("stampB") or EXP.get("stampA")) else None
    for k in range(10):
        oc_load(A, 0, k)
    outproj(A, 0, False)
    A.stamp("a part") if not (EXP.get("stampB") or EXP.get("stampA")) else None
    A(f"s_and_b32 s{sT0}, s{sW}, 3")
    A(f"s_mul_i32 s{sT0}, s{sT0}, 5120")
    A(f"v_add_u32 v{vT}, s{sT0}, v{vL16}")
    A(f"s_cmp_eq_u32 s{sKG}, 0")
    A("s_cbranch_scc1 L_red_a")

    def finish_out(tiles):
        A.lds_q = []
        for nt in tiles:
            A.lds(f"ds_read_b128 {v(WF+4*nt,4)}, v{vT} offset:{nt*1024}", ("r", nt))
        for nt in tiles:
            A.lds_wait(("r", nt))
            for i in range(4):
                A(f"v_add_f32 v{ACC+4*nt+i}, v{ACC+4*nt+i}, v{WF+4*nt+i}")
            A(f"v_cvt_pk_bf16_f32 v{ACC+4*nt}, v{ACC+4*nt}, v{ACC+4*nt+1}")
            A(f"v_cvt_pk_bf16_f32 v{ACC+4*nt+1}, v{ACC+4*nt+2}, v{ACC+4*nt+3}")
            A.vm(f"buffer_store_dwordx2 {v(ACC+4*nt,2)}, v{vST}, s[{sOUT}:{sOUT+3}], s{sOUTO} offen offset:{nt*32}{EXP.get('outst','')}", "st")

    A("s_nop 5")
    for nt in range(3):
        A(f"ds_write_b128 v{vT}, {v(ACC+4*nt,4)} offset:{nt*1024}")
    A("s_waitcnt lgkmcnt(0)")
    A("s_barrier")
    finish_out((3, 4))
    if prof:
        A.stamp("", len(A.stamps))
        A.stamp_flush(0, sWS, PROF, vT + 2)
    A("s_endpgm")
    A.label("L_red_a")
    A("s_nop 5")
    for nt in (3, 4):
        A(f"ds_write_b128 v{vT}, {v(ACC+4*nt,4)} offset:{nt*1024}")
    A("s_waitcnt lgkmcnt(0)")
    A("s_barrier")
    finish_out((0, 1, 2))
    A.stamp("end")
    if prof and EXP.get("dbg"):
        with Wave0(A, "dbgout"):
            A(f"v_subrev_u32 v{vT}, s{sNONCE}, v{A.PROF_V}")
            A(f"v_subrev_u32 v{vT+1}, 16, v{vL}")
            A(f"v_lshlrev_b32 v{vT+1}, 2, v{vT+1}")
            if EXP["dbg"] == 2:
                A(f"v_sub_u32 v{vT}, 0x100000, v{vT}")
            A("s_mov_b32 exec_lo, 0xfffe0000")
            A("s_mov_b32 exec_hi, 0")
            A(f"buffer_atomic_umax v{vT}, v{vT+1}, s[{sDBG}:{sDBG+3}], 0 offen")
            A("s_mov_b64 exec, -1")
    A.stamp_flush(0, sWS, PROF, vT)
    A("s_endpgm")
    fallback(A)
    spare(A)
    A.label("L_end")
    A("s_endpgm")
    kernel_footer(A, NAME, NV, 100 if EXP.get("jit") else 96)
    gen.stamps = getattr(A, "stamps", [])
    if prof and EXP.get("stampP"):
        assert len(gen.stamps) == 14, len(gen.stamps)
        gen.stamps = gen.stamps + ["pre-kernarg", "kernarg"]
    return A.text()

if __name__ == "__main__":
    print(gen())
```

```python
from asmlib import *
from layout2 import *

NAME = "gated_mix__softmax_full_mha__sliding_local_dilated__prompt_kernel"
EXP = {}
STAGE, NST, NB = 32768, 5, 20
SLOT = CHB
NSLOT = 4
TPC = CH // 32
NCH = S // CH
ONES = 4 * SLOT
PAT_UNITS = 336
assert ONES + PAT_UNITS * 16 <= 98304
WBASE = ONES + 672 * 16
WSTG = 20480
LDS_BYTES = 163840
WB_OFF = [WBASE, WBASE + WSTG, WBASE + 2 * WSTG, 0, SLOT]
WA_OFF = [2 * SLOT, 3 * SLOT, WBASE, WBASE + WSTG, WBASE + 2 * WSTG]
assert WBASE + 3 * WSTG <= LDS_BYTES
BIG = 2.0 ** 64
SPIN_MAX = 1 << 16
sWS, sOUT = 8, 12
sW, sNONCE = 16, 17
sH, sQB, sPA, sLDSW, sLDSW2, sWSRC, sOCB, sFLG, sPUB, sOUTO, sKG, sQ0, sBT, sQT = range(18, 32)
sT0, sT1, sT2, sT3, sT4, sT5 = range(32, 38)
sM = 38
sLO20 = 40
sCNT = 42
sP2L = 43
sDBG = 44
sBA = 48
sVH = 57
sX, sWA, sWB = 60, 64, 68
sRB, sCT, sMH, sNH, sXOFF, sWOFF, sLDS1, sCT5, sTP, sB16, sQS, sGI = range(72, 84)
sQOFF, sQOFF2, sGOFF, sF1 = 88, 89, 90, 91
sP = 92
vL, vR, vHH = 1, 2, 3
vK01, vK2, vV = 4, 8, 12
vL16, vG, vGB, vFL = 16, 17, 18, 19
vT = 20
SA, SB, NEGM, O, P = 28, 44, 60, 76, 92
Q01, Q2, K01, K2, V0, V1 = 100, 104, 108, 112, 116, 120
BQ01, BQ2, BK01, BK2, BKP01, BKP2 = 124, 128, 132, 136, 140, 144
BV0, BV1, BVP, BS0, BS1, BO, BP = 148, 152, 156, 160, 176, 192, 208
vBA = 220
vW0, vW1, vW2, vOC, vWR, vST, vFA = 225, 226, 227, 228, 229, 230, 231
vF1, vF2, vF3, vF4 = 232, 233, 234, 241
vV2 = [232, 233, 236, 237]
vFL2 = 235
vQA, vQA2, vGA = 236, 237, 238
vOST = 252
vXD, vWD = 242, 243
vCB, vCS = 244, 247
vCT = 250
NV = 256
OCB, OCA, ACC, WF = 124, 164, 204, 28
G_ACC = 124
G_F = 28
G_P = 188
vA16 = 76
vXR, vWR1 = 106, 118
WS = f"s[{sWS}:{sWS+3}]"


def st1():
    return " sc1"


def publish(A, soff_reg, base, tag=None):
    if tag is not None:
        A.vm_wait(tag)
    A(f"v_mov_b32 v{vT}, s{sNONCE}")
    A(f"v_mov_b32 v{vT+1}, 0")
    A(f"s_add_u32 s{sT0}, s{soff_reg}, {base}")
    A("s_mov_b64 exec, 1")
    A.vm(f"buffer_store_dword v{vT}, v{vT+1}, {WS}, s{sT0} offen sc1", "pub")
    A("s_mov_b64 exec, -1")


_jit_n = [0]
def jitter(A, per_wave=False):
    if not EXP.get("jit"):
        return
    _jit_n[0] += 1
    k = _jit_n[0]
    A(f"s_mul_i32 s96, s2, {(2654435761 * (k + EXP['jit'])) & 0x7fffffff | 1}")
    if per_wave:
        A(f"s_mul_i32 s97, s{sW}, {(40503 * (k + 7)) | 1}")
        A("s_add_u32 s96, s96, s97")
    A("s_lshr_b32 s96, s96, 20")
    A("s_and_b32 s96, s96, 15")
    A("s_cmp_lt_u32 s96, 12")
    A(f"s_cbranch_scc1 L_jit{k}_done")
    A("s_and_b32 s96, s96, 3")
    A("s_add_u32 s96, s96, 1")
    A.label(f"L_jit{k}")
    A("s_sleep 32")
    A("s_sub_u32 s96, s96, 1")
    A("s_cmp_lg_u32 s96, 0")
    A(f"s_cbranch_scc1 L_jit{k}")
    A.label(f"L_jit{k}_done")


class Wave0:
    def __init__(self, A, name):
        self.A, self.name = A, name
    def __enter__(self):
        A = self.A
        A(f"s_cmp_lg_u32 s{sW}, 0")
        A(f"s_cbranch_scc1 L_w0_{self.name}")
        self.saved = (list(A.vm_q), dict(A.vm_counts or {}))
    def __exit__(self, *a):
        A = self.A
        A.vm_q, A.vm_counts = self.saved[0], (self.saved[1] or None)
        A.label(f"L_w0_{self.name}")


def _poll_loads(A, items):
    for (vdst, voff, base, soff_reg) in items:
        if soff_reg is None:
            A(f"s_mov_b32 s{sT0}, {base}")
        else:
            A(f"s_add_u32 s{sT0}, s{soff_reg}, {base}")
        A(f"buffer_load_dword v{vdst}, v{voff}, {WS}, s{sT0} offen sc1")


def poll_issue(A, items, name):
    with Wave0(A, name + "_i"):
        _poll_loads(A, items)
    return A.vm_pos("L")


def poll_check(A, items, pos, name, inv=False, drain=False):
    def compare():
        for i, (vdst, _, _, _) in enumerate(items):
            if i == 0:
                A(f"v_cmp_eq_u32 vcc, s{sNONCE}, v{vdst}")
            else:
                A(f"v_cmp_eq_u32 s[{sT4}:{sT5}], s{sNONCE}, v{vdst}")
                A("s_nop 3")
                A(f"s_and_b64 vcc, vcc, s[{sT4}:{sT5}]")
        A("s_nop 3")
        A("s_cmp_eq_u64 vcc, exec")
    with Wave0(A, name + "_c"):
        A(f"s_waitcnt vmcnt({A.vm_pos('L') - pos})")
        compare()
        A(f"s_cbranch_scc1 L_{name}_ok")
        A(f"s_mov_b32 s{sCNT}, 0")
        A.label(f"L_{name}_spin")
        A("s_sleep 2")
        _poll_loads(A, items)
        A(f"s_add_u32 s{sCNT}, s{sCNT}, 1")
        A(f"s_cmp_ge_u32 s{sCNT}, {SPIN_MAX}")
        A(f"s_cbranch_scc1 L_{name}_ok")
        A("s_waitcnt vmcnt(0)")
        compare()
        A(f"s_cbranch_scc0 L_{name}_spin")
        A.label(f"L_{name}_ok")
        if inv:
            A("buffer_inv sc1")
        if drain:
            A("s_waitcnt vmcnt(0)")


def poll_tight(A, base, soff_reg, voff, name):
    regs = [vFL, vFL2, vT + 2, vT + 3]
    with Wave0(A, name):
        A(f"s_add_u32 s{sT1}, s{soff_reg}, {base}")
        for r in regs:
            A(f"buffer_load_dword v{r}, v{voff}, {WS}, s{sT1} offen sc1")
            A("s_sleep 1")
        A(f"s_mov_b32 s{sCNT}, 0")
        A.label(f"L_{name}_spin")
        for r in regs:
            A("s_waitcnt vmcnt(3)")
            A(f"v_cmp_eq_u32 vcc, s{sNONCE}, v{r}")
            A("s_nop 3")
            A("s_cmp_eq_u64 vcc, exec")
            A(f"s_cbranch_scc1 L_{name}_ok")
            A(f"buffer_load_dword v{r}, v{voff}, {WS}, s{sT1} offen sc1")
        A(f"s_add_u32 s{sCNT}, s{sCNT}, 1")
        A(f"s_cmp_lt_u32 s{sCNT}, {SPIN_MAX}")
        A(f"s_cbranch_scc1 L_{name}_spin")
        A.label(f"L_{name}_ok")


def nonce_issue(A):
    A(f"v_mov_b32 v{vT}, 0")
    A.vm(f"buffer_load_dword v{vFL}, v{vT}, s[{sDBG}:{sDBG+3}], 0 offen sc1", "nonce")


def nonce_check(A, name):
    A.vm_wait("nonce")
    A("s_nop 0")
    A(f"v_readfirstlane_b32 s{sNONCE}, v{vFL}")
    nonce_verify(A, name)


def nonce_verify(A, name):
    A("s_nop 3")
    A(f"s_cmp_lg_u32 s{sNONCE}, 0")
    A(f"s_cbranch_scc1 L_{name}_ok")
    A(f"s_mov_b32 s{sCNT}, 0")
    A.label(f"L_{name}_spin")
    A("s_sleep 1")
    A(f"v_mov_b32 v{vT}, 0")
    A(f"buffer_load_dword v{vFL}, v{vT}, s[{sDBG}:{sDBG+3}], 0 offen sc1")
    A(f"s_add_u32 s{sCNT}, s{sCNT}, 1")
    A(f"s_cmp_ge_u32 s{sCNT}, {SPIN_MAX}")
    A(f"s_cbranch_scc1 L_{name}_ok")
    A("s_waitcnt vmcnt(0)")
    A(f"v_readfirstlane_b32 s{sNONCE}, v{vFL}")
    A("s_nop 3")
    A(f"s_cmp_eq_u32 s{sNONCE}, 0")
    A(f"s_cbranch_scc1 L_{name}_spin")
    A.label(f"L_{name}_ok")


def g_dma(A, b, p):
    kb, st, t = b % 10, b % NST, p & 3
    A(f"s_add_u32 m0, s{sLDS1}, {st*STAGE + (p >> 2)*16384 + 4096*t}")
    if p < 4:
        A(f"s_add_u32 s{sT0}, s{sXOFF}, {kb*128 + t*40960}")
        A.vm(f"buffer_load_dwordx4 v{vXD}, s[{sX}:{sX+3}], s{sT0} offen lds", ("d", b))
    else:
        sw = sWA if b < 10 else sWB
        A(f"s_add_u32 s{sT0}, s{sWOFF}, {(kb*64 + 16*t) * 3840}")
        A.vm(f"buffer_load_dwordx4 v{vWD}, s[{sw}:{sw+3}], s{sT0} offen lds", ("d", b))


def g_acc(mt, nt):
    return G_ACC + 32 * mt + 16 * nt


def g_frag(s_, i):
    return G_F + 16 * (s_ % 3) + 4 * i


def g_read_list(s_):
    b, ks = divmod(s_, 4)
    st = b % NST
    base, off = st >> 1, (st & 1) * STAGE
    out = []
    for mt in range(2):
        out.append(f"ds_read_b128 {v(g_frag(s_, mt),4)}, v{vXR + 3*ks + base} offset:{off + mt*4096}")
    for nt in range(2):
        for q in range(2):
            out.append(f"ds_read_b64_tr_b16 {v(g_frag(s_, 2+nt)+2*q,2)}, v{vWR1 + 3*nt + base} offset:{off + 16384 + ks*4096 + q*1024}")
    return out


def g_reads(A, s_):
    for ins in g_read_list(s_):
        A.lds(ins, ("f", s_))


def g_step(A, s_, last, tr, extra=None):
    b, ks = divmod(s_, 4)
    A.lds_wait(("f", s_))
    nxt = g_read_list(s_ + 2) if s_ + 2 <= last else []
    for i, (mt, nt) in enumerate(((0, 0), (0, 1), (1, 0), (1, 1))):
        d = g_acc(mt, nt)
        c = "0" if (s_ % 40 == 0) else v(d, 16)
        x, w = g_frag(s_, mt), g_frag(s_, 2 + nt)
        a, bb = (w, x) if tr else (x, w)
        A(f"v_mfma_f32_32x32x16_bf16 {v(d,16)}, {v(a,4)}, {v(bb,4)}, {c}")
        for ins in nxt[2*i:2*i+2]:
            A.lds(ins, ("f", s_ + 2))
        if extra and i == 3:
            extra()


def epi_prepare(A, isb, tr, n):
    A(f"s_lshl_b32 s{sTP}, s{sRB}, 7")
    A(f"s_lshl_b32 s{sT0}, s{sMH}, 6")
    A(f"s_add_u32 s{sTP}, s{sTP}, s{sT0}")
    if isb:
        A(f"s_lshr_b32 s{sTP}, s{sTP}, 1")
    if tr:
        A(f"s_cmp_lt_u32 s{sCT}, 5")
        A(f"s_mov_b32 s{sT1}, {QB if isb else QA}")
        A(f"s_cselect_b32 s{sB16}, s{sT1}, {KB if isb else KA}")
        A(f"s_mov_b32 s{sT1}, {hex(f32bits(QSCALE))}")
        A(f"s_cselect_b32 s{sQS}, s{sT1}, 1.0")
        A(f"s_lshl_b32 s{sT0}, s{sCT5}, 1")
        A(f"s_add_u32 s{sT0}, s{sT0}, s{sNH}")
        A(f"s_lshl_b32 s{sT0}, s{sT0}, 18")
        A(f"s_add_u32 s{sB16}, s{sB16}, s{sT0}")
        A(f"s_lshl_b32 s{sT0}, s{sTP}, 4")
        A(f"s_add_u32 s{sB16}, s{sB16}, s{sT0}")
        A(f"v_lshlrev_b32 v{vA16}, 15, v{vHH}")
        if isb:
            A(f"v_and_b32 v{vT}, 1, v{vR}")
            A(f"v_lshl_add_u32 v{vA16}, v{vT}, 14, v{vA16}")
            A(f"v_lshrrev_b32 v{vT}, 1, v{vR}")
            A(f"v_lshl_add_u32 v{vA16}, v{vT}, 4, v{vA16}")
        else:
            A(f"v_lshl_add_u32 v{vA16}, v{vR}, 4, v{vA16}")
        A(f"v_mov_b32 v{vT+2}, s{sQS}")
        A(f"v_mov_b32 v{vT+3}, s{sQS}")
    else:
        A(f"v_mul_u32_u24 v{vT+1}, 320, v{vHH}")
        A(f"s_lshl_b32 s{sT0}, s{sCT5}, 7")
        A(f"s_lshl_b32 s{sT1}, s{sNH}, 6")
        A(f"s_add_u32 s{sT0}, s{sT0}, s{sT1}")
        for nt in range(2):
            A(f"v_add_u32 v{vT+2}, s{sT0}, v{vR}")
            if nt:
                A(f"v_add_u32 v{vT+2}, 32, v{vT+2}")
            A(f"v_mul_u32_u24 v{vT+3}, 3277, v{vT+2}")
            A(f"v_lshrrev_b32 v{vT+3}, 16, v{vT+3}")
            A(f"v_mul_u32_u24 v{vT+4}, 20, v{vT+3}")
            A(f"v_sub_u32 v{vT+4}, v{vT+2}, v{vT+4}")
            A(f"v_mul_u32_u24 v{vT+3}, {VH}, v{vT+3}")
            A(f"v_lshl_add_u32 v{vT+3}, v{vT+4}, 4, v{vT+3}")
            A(f"v_add_u32 v{vA16+nt}, v{vT+3}, v{vT+1}")
        A(f"s_lshr_b32 s{sT0}, s{sTP}, 4")
        A(f"s_mul_i32 s{sT0}, s{sT0}, 640")
        A(f"s_add_u32 s{sB16}, s{sT0}, {VB if isb else VA}")


def epi_group(A, isb, tr, g, tag):
    reg = G_P + 4 * g
    mt, nt, u = g >> 2, (g >> 1) & 1, g & 1
    src = g_acc(mt, nt)
    if tr:
        for jj in range(2):
            a = src + 4 * (2 * u + jj)
            A(f"v_pk_mul_f32 {v(a,2)}, {v(a,2)}, v[{vT+2}:{vT+3}]")
            A(f"v_pk_mul_f32 {v(a+2,2)}, {v(a+2,2)}, v[{vT+2}:{vT+3}]")
            A(f"v_cvt_pk_bf16_f32 v{reg+2*jj}, v{a}, v{a+1}")
            A(f"v_cvt_pk_bf16_f32 v{reg+2*jj+1}, v{a+2}, v{a+3}")
        A(f"s_add_u32 s{sT1}, s{sB16}, {(4*nt + 2*u)*PLANE + mt*(256 if isb else 512)}")
        A("s_nop 0")
        A(f"v_permlane32_swap_b32 v{reg}, v{reg+2}")
        A(f"v_permlane32_swap_b32 v{reg+1}, v{reg+3}")
        A.vm(f"buffer_store_dwordx4 {v(reg,4)}, v{vA16}, {WS}, s{sT1} offen sc1", tag)
    else:
        if isb:
            for j in range(4):
                A(f"v_cvt_pk_bf16_f32 v{reg+j}, v{src+4*j+u}, v{src+4*j+u+2}")
            A(f"s_add_u32 s{sT1}, s{sB16}, {mt*640 + u*64*640}")
        else:
            for p in range(4):
                A(f"v_cvt_pk_bf16_f32 v{reg+p}, v{src+8*u+2*p}, v{src+8*u+2*p+1}")
            A(f"s_add_u32 s{sT1}, s{sB16}, {(2*mt + u)*640}")
        A.vm(f"buffer_store_dwordx4 {v(reg,4)}, v{vA16+nt}, {WS}, s{sT1} offen sc1", tag)


def acquire_items():
    return [(vFL, vF1, F1A, None), (vFL2, vF2, F1A, None)]


def p2_load_items():
    def q01(A):
        A.vm(f"buffer_load_dwordx4 {v(Q01,4)}, v{vQA}, {WS}, s{sQOFF} offen sc1", "q")
    def q2(A):
        A(f"v_mov_b32 v{Q2}, 0")
        A(f"v_mov_b32 v{Q2+1}, 0")
        A("s_mov_b32 exec_hi, 0")
        A.vm(f"buffer_load_dwordx2 {v(Q2,2)}, v{vQA2}, {WS}, s{sQOFF2} offen sc1", "q")
        A("s_mov_b32 exec_hi, -1")
    first = [lambda A, p=p: dma_chunk_piece(A, 0, p) for p in range(3)] + [q01, q2]
    rest = [lambda A, c=c, p=p: dma_chunk_piece(A, c, p) for c in (1, 2) for p in range(3)]
    return first, rest


def gemm(A, tr, n):
    A.vm_q, A.lds_q = [], []
    if EXP.get("twa") == 99:
        touch_a(A, n)
    if EXP.get("twb") == 99:
        touch_wb(A, n)
    if EXP.get("tcb") == 99:
        touch_chip_b(A, n)
    if EXP.get("tlb"):
        epi_prepare(A, False, tr, n)
        A(f"buffer_store_dword v{vL}, v{vA16}, {WS}, s{sB16} offen sc1")
    A("s_barrier")
    A.stamp("blk0 landed", 2)
    g_reads(A, 0)
    g_reads(A, 1)
    for s_ in range(40):
        b, ks = divmod(s_, 4)
        if ks == 2:
            A("s_barrier")
            if EXP.get("stampA") and b in (0, 2, 4, 6):
                A.stamp("", {0: 7, 2: 8, 4: 9, 6: 10}[b])
        if EXP.get("twa") is not None and s_ == EXP["twa"]:
            touch_a(A, n)
        if s_ == EXP.get("twb", 77):
            touch_wb(A, n)
        if EXP.get("tcb") is not None and s_ == EXP["tcb"]:
            touch_chip_b(A, n)
        if EXP.get("tcw") is not None and s_ == EXP["tcw"]:
            touch_chip_wide(A, "b", n)
        if s_ == 22:
            nonce_issue(A)
        if s_ == 30:
            nonce_check(A, f"nonce0{n}")
        g_step(A, s_, 39, tr)
    A.stamp("gemm0", 3)
    jitter(A, True)
    slices = [int(ch) for ch in str(EXP.get("sl", "8"))]
    assert sum(slices) == 8
    PUB, POLL, CHK = EXP.get("pub", 12), EXP.get("poll", 15), 18
    for p in range(8):
        g_dma(A, 13, p)
    epi_prepare(A, False, tr, n)
    A("s_nop 7")
    A("s_nop 3")
    done = 0
    for b in range(10, 19):
        k = slices[b - 10] if b - 10 < len(slices) else 0
        for g in range(done, done + k):
            epi_group(A, False, tr, g, "sa")
        if k and done + k == 8:
            A.stamp("epi0", 4)
        done += k
        if b == CHK:
            poll_check(A, acquire_items(), pos_f1, f"f1{n}")
        if b + 1 >= 13:
            A.vm_wait(("d", b + 1))
        A("s_barrier")
        if EXP.get("stampB") and b in (10, 12, 14, 16):
            A.stamp("", {10: 7, 12: 8, 14: 9, 16: 10}[b])
        if b == PUB - 1:
            A.vm_wait("sa")
        if b + 4 < NB:
            for p in range(8):
                g_dma(A, b + 4, p)
        if b == PUB:
            with Wave0(A, f"puba{n}"):
                publish(A, sF1, F1A)
        if b == POLL:
            pos_f1 = poll_issue(A, acquire_items(), f"f1{n}")
    first, rest = p2_load_items()
    for f in first + rest:
        f(A)
    A.stamp("gemm1", 5)
    pattern_fill(A, n)
    A.stamp("epi1", 6)
    A.vm_wait("q", ("c", 0))
    A("s_barrier")
    A("s_branch L_attn")
    A.label(f"L_g1{n}")
    A.vm_set([(("d", b), "D") for b in range(3) for _ in range(8)])
    A.lds_q = []
    A.vm_wait(("d", 0))
    A("s_barrier")
    A.stamp("issued", 1)
    A.stamp("blk0 landed", 2)
    for p in range(8):
        g_dma(A, 3, p)
    for b in range(10):
        if b == 0:
            setup_phase1_reads(A)
        if 1 <= b <= 5:
            SETUP_P2[b - 1](A)
        if b == 6 and EXP.get("tlb"):
            if EXP.get("tlb"):
                epi_prepare(A, True, tr, n)
                A(f"buffer_store_dword v{vL}, v{vA16}, {WS}, s{sB16} offen sc1")
                A(f"s_lshl_b32 s{sT0}, s{sQ0}, 4")
                A(f"s_add_u32 s{sT0}, s{sT0}, {OC}")
                A(f"buffer_store_dword v{vL}, v{vOST}, {WS}, s{sT0} offen sc1")
                A(f"s_lshl_b32 s{sT0}, s{sBT}, 4")
                A(f"s_add_u32 s{sT0}, s{sT0}, {OC + 80*32768}")
                A(f"buffer_store_dword v{vL}, v{vOST+1}, {WS}, s{sT0} offen sc1")
        A.vm_wait(("d", b + 1))
        A("s_barrier")
        if EXP.get("stampA") and b in (0, 2, 4, 6):
            A.stamp("", {0: 7, 2: 8, 4: 9, 6: 10}[b])
        if b + 4 <= 12:
            for p in range(8):
                g_dma(A, b + 4, p)
    A.stamp("gemm0", 3)
    A.stamp("epi0", 4)
    g_reads(A, 40)
    g_reads(A, 41)
    pend = []
    for s_ in range(40, 80):
        b, ks = divmod(s_, 4)
        if ks == 2 and b + 1 < NB:
            if b + 1 <= 12:
                A.vm_wait(("d", b + 1))
            A("s_barrier")
            if EXP.get("stampB") and b in (10, 12, 14, 16):
                A.stamp("", {10: 7, 12: 8, 14: 9, 16: 10}[b])
            if b == 18:
                first, rest = p2_load_items()
                pend = first + [nonce_issue]
        def extra():
            for _ in range(2):
                if pend:
                    pend.pop(0)(A)
        g_step(A, s_, 79, tr, extra)
    assert not pend
    A.stamp("gemm1", 5)
    jitter(A, True)
    A.vm_wait("q", "nonce", ("c", 0))
    A("s_nop 0")
    A(f"v_readfirstlane_b32 s{sNONCE}, v{vFL}")
    A("s_barrier")
    for f in rest:
        f(A)
    epi_prepare(A, True, tr, n)
    A("s_nop 7")
    A("s_nop 3")
    for g in range(8):
        epi_group(A, True, tr, g, "sb")
    A.stamp("epi1", 6)
    nonce_verify(A, f"nonce1{n}")


def spare(A):
    sWO, sG = sWA, sWB
    A.label("L_spare")
    A.vm_q, A.lds_q = [], []
    jitter(A)
    jitter(A)
    if EXP.get("spb", 0):
        A(f"s_mul_i32 s{sT0}, s{sRB}, 153600")
        A(f"s_lshl_b32 s{sT1}, s{sW}, 10")
        A(f"s_add_u32 s{sT0}, s{sT0}, s{sT1}")
        A(f"s_add_u32 s{sT2}, s{sRB}, 1")
        A(f"s_mul_i32 s{sT2}, s{sT2}, 153600")
        for i in range(19):
            A(f"s_add_u32 s{sT1}, s{sT0}, {8192*i}")
            if i == 18:
                A(f"s_sub_u32 s{sT2}, s{sT2}, 1024")
                A(f"s_min_u32 s{sT1}, s{sT1}, s{sT2}")
            A(f"buffer_load_dwordx4 {v(124 + 4*i, 4)}, v{vL16}, s[{sWB}:{sWB+3}], s{sT1} offen")
    A("s_load_dwordx2 s[4:5], s[0:1], 16")
    A("s_load_dwordx2 s[6:7], s[0:1], 40")
    A(f"s_load_dwordx2 s[{sP}:{sP+1}], s[0:1], 48")
    A("s_waitcnt lgkmcnt(0)")
    A(f"s_cmp_lt_u32 s{sRB}, 8")
    A("s_cbranch_scc1 L_sp_a")
    A("s_mov_b32 s4, s6")
    A("s_mov_b32 s5, s7")
    A.label("L_sp_a")
    srd(A, sWO, 4, WO_BYTES)
    srd(A, sG, sP, 1280)
    A(f"s_and_b32 s{sT1}, s{sRB}, 7")
    A(f"s_mul_i32 s{sT1}, s{sT1}, {80*1280}")
    A(f"s_lshl_b32 s{sLDS1}, s{sW}, 10")
    A(f"s_add_u32 s{sT1}, s{sT1}, s{sLDS1}")
    for t in range(13):
        if t == 12:
            A(f"s_cmp_ge_u32 s{sW}, 4")
            A("s_cbranch_scc1 L_sp_dma_done")
        A(f"s_add_u32 m0, s{sLDS1}, {8192*t}")
        A(f"s_add_u32 s{sT0}, s{sT1}, {8192*t}")
        A(f"buffer_load_dwordx4 v{vL16}, s[{sWO}:{sWO+3}], s{sT0} offen lds")
    A.label("L_sp_dma_done")
    GW = 102400
    A(f"s_cmp_ge_u32 s{sW}, 2")
    A("s_cbranch_scc1 L_sp_gw_done")
    A(f"s_add_u32 m0, s{sLDS1}, {GW}")
    A("s_nop 0")
    A(f"buffer_load_dwordx4 v{vL16}, s[{sG}:{sG+3}], s{sLDS1} offen lds")
    A.label("L_sp_gw_done")
    A.stamp("", 2)
    XG = 28
    A(f"v_lshrrev_b32 v{vT+1}, 2, v{vL}")
    A(f"s_lshl_b32 s{sT0}, s{sW}, 4")
    A(f"v_add_u32 v{vT+1}, s{sT0}, v{vT+1}")
    A(f"v_and_b32 v{vT+2}, 3, v{vL}")
    A(f"v_lshlrev_b32 v{vT+2}, 4, v{vT+2}")
    A(f"v_mul_u32_u24 v{vT+3}, 1280, v{vT+1}")
    A(f"v_add_u32 v{vT+3}, v{vT+3}, v{vT+2}")
    A(f"v_mov_b32 v{vT+4}, 0")
    for i in range(20):
        A(f"buffer_load_dwordx4 {v(XG+4*i,4)}, v{vT+3}, s[{sX}:{sX+3}], s{sXOFF} offen offset:{i*64}")
    A(f"v_add_u32 v{vT+2}, {GW}, v{vT+2}")
    A("s_waitcnt vmcnt(0)")
    A("s_barrier")
    A.lds_q = []
    GG = 108
    for i in range(3):
        A.lds(f"ds_read_b128 {v(GG+4*i,4)}, v{vT+2} offset:{i*64}", ("gw", i))
    for i in range(20):
        if i + 3 < 20:
            A.lds(f"ds_read_b128 {v(GG+4*((i+3) % 4),4)}, v{vT+2} offset:{(i+3)*64}", ("gw", i + 3))
        A.lds_wait(("gw", i))
        for k in range(4):
            A(f"v_dot2_f32_bf16 v{vT+4}, v{XG+4*i+k}, v{GG+4*(i % 4)+k}, v{vT+4}")
    A("s_nop 2")
    A(f"v_add_f32_dpp v{vT+4}, v{vT+4}, v{vT+4} quad_perm:[1,0,3,2] row_mask:0xf bank_mask:0xf")
    A("s_nop 1")
    A(f"v_add_f32_dpp v{vT+4}, v{vT+4}, v{vT+4} quad_perm:[2,3,0,1] row_mask:0xf bank_mask:0xf")
    A(f"v_mul_f32 v{vT+4}, {hex(f32bits(-LOG2E))}, v{vT+4}")
    A(f"v_exp_f32 v{vT+4}, v{vT+4}")
    A("s_nop 0")
    A(f"v_add_f32 v{vT+4}, 1.0, v{vT+4}")
    A(f"v_rcp_f32 v{vT+4}, v{vT+4}")
    A(f"s_lshl_b32 s{sT0}, s{sRB}, 9")
    A(f"s_add_u32 s{sT0}, s{sT0}, {GATE}")
    A(f"v_lshlrev_b32 v{vT+1}, 2, v{vT+1}")
    A("s_mov_b32 exec_lo, 0x11111111")
    A("s_mov_b32 exec_hi, 0x11111111")
    A(f"buffer_store_dword v{vT+4}, v{vT+1}, {WS}, s{sT0} offen sc1")
    A("s_mov_b64 exec, -1")
    A.stamp("", 3)
    A.stamp("", 4)
    A(f"v_bfe_u32 v{vT+1}, v{vL}, 2, 2")
    A(f"v_mul_u32_u24 v{vT+1}, 1280, v{vT+1}")
    A(f"v_lshrrev_b32 v{vT+2}, 4, v{vL}")
    A(f"v_lshl_add_u32 v{vT+1}, v{vT+2}, 5, v{vT+1}")
    A(f"v_and_b32 v{vT+2}, 3, v{vL}")
    A(f"v_lshl_add_u32 v{vT+1}, v{vT+2}, 3, v{vT+1}")
    A(f"s_mul_i32 s{sT3}, s{sRB}, {10*10240}")
    A(f"s_add_u32 s{sT3}, s{sT3}, {WOT}")
    A(f"s_mov_b32 s{sT1}, s{sW}")
    A.label("L_sp_loop")
    A(f"s_mul_hi_u32 s{sT2}, s{sT1}, 0x1999999a")
    A(f"s_mul_i32 s{sT0}, s{sT2}, 10")
    A(f"s_sub_u32 s{sT0}, s{sT1}, s{sT0}")
    A(f"s_mul_hi_u32 s{sCNT}, s{sT2}, 0x33333334")
    A(f"s_mul_i32 s{sT4}, s{sCNT}, 5")
    A(f"s_sub_u32 s{sT4}, s{sT2}, s{sT4}")
    A(f"s_mul_i32 s{sCNT}, s{sCNT}, 40")
    A(f"s_lshl_b32 s{sT5}, s{sT4}, 3")
    A(f"s_cmp_ge_u32 s{sT4}, 2")
    A(f"s_cselect_b32 s{sM}, 4, 0")
    A(f"s_add_u32 s{sT5}, s{sT5}, s{sM}")
    A(f"s_cmp_eq_u32 s{sT4}, 4")
    A(f"s_cselect_b32 s{sT5}, 16, s{sT5}")
    A(f"s_cselect_b32 s{sM}, 20, 4")
    A(f"s_add_u32 s{sT5}, s{sT5}, s{sCNT}")
    A(f"s_mul_i32 s{sT4}, s{sT5}, 1280")
    A(f"s_mul_i32 s{sM}, s{sM}, 1280")
    A(f"s_lshl_b32 s{sT5}, s{sT0}, 7")
    A(f"s_add_u32 s{sT4}, s{sT4}, s{sT5}")
    A(f"v_add_u32 v{vT+3}, s{sT4}, v{vT+1}")
    A(f"v_add_u32 v{vT+4}, s{sM}, v{vT+3}")
    A(f"ds_read_b64_tr_b16 v[{XG}:{XG+1}], v{vT+3}")
    A(f"ds_read_b64_tr_b16 v[{XG+2}:{XG+3}], v{vT+4}")
    A(f"s_mul_i32 s{sT4}, s{sT2}, 10240")
    A(f"s_lshl_b32 s{sT5}, s{sT0}, 10")
    A(f"s_add_u32 s{sT4}, s{sT4}, s{sT5}")
    A(f"s_add_u32 s{sT4}, s{sT4}, s{sT3}")
    A("s_waitcnt lgkmcnt(0)")
    A(f"buffer_store_dwordx4 {v(XG,4)}, v{vL16}, {WS}, s{sT4} offen sc1")
    A(f"s_add_u32 s{sT1}, s{sT1}, 8")
    A(f"s_cmp_lt_u32 s{sT1}, 100")
    A("s_nop 1")
    A("s_cbranch_scc1 L_sp_loop")
    A.stamp("", 5)
    nonce_issue(A)
    nonce_check(A, "noncesp")
    A("s_waitcnt vmcnt(0)")
    A("s_barrier")
    A.vm_q = []
    with Wave0(A, "pubsp"):
        publish(A, sF1, F1A)
    pos = poll_issue(A, acquire_items(), "f1sp")
    poll_check(A, acquire_items(), pos, "f1sp")
    A("s_barrier")
    A.vm_q = []
    first, rest = p2_load_items()
    for f in first + rest:
        f(A)
    A(f"s_cmp_ge_u32 s{sW}, 4")
    A("s_cbranch_scc1 L_sp_nopat")
    pattern_fill(A, "sp")
    A.label("L_sp_nopat")
    A.vm_wait("q", ("c", 0))
    A("s_barrier")
    for i in (6,) + ((7, 8, 9, 10) if (EXP.get("stampB") or EXP.get("stampA")) else ()):
        A.stamp("", i)
    A("s_branch L_attn")


def mf16(A, d, a, b, c):
    A(f"v_mfma_f32_32x32x16_bf16 {v(d,16)}, {v(a,4)}, {v(b,4)}, {c}")


def mf8(A, d, a, b, c):
    A(f"v_mfma_f32_32x32x8_bf16 {v(d,16)}, {v(a,2)}, {v(b,2)}, {c}")


def dma_chunk_piece(A, c, t):
    slot = c % NSLOT
    A(f"s_add_u32 m0, s{sLDSW}, {slot*SLOT + 1024*t}")
    A(f"v_mad_u32_u24 v{vCT}, v{vCS+t}, {c}, v{vCB+t}")
    if t == 2:
        A("s_mov_b32 exec_hi, 0xffff")
    A.vm(f"buffer_load_dwordx4 v{vCT}, {WS}, 0 offen sc1 lds", ("c", c))
    if t == 2:
        A("s_mov_b32 exec_hi, -1")


def dma_chunk(A, c):
    for t in range(3):
        dma_chunk_piece(A, c, t)


def dma_w_piece(A, part, st, t):
    off = (WA_OFF if part == 0 else WB_OFF)[st]
    A(f"s_add_u32 m0, s{sLDSW2}, {off + 1024*t}")
    A(f"s_add_u32 s{sT0}, s{sWSRC}, {(part*80 + 16*st)*10240}")
    if t == 2:
        A("s_mov_b32 exec_hi, 0")
    A.vm(f"buffer_load_dwordx4 v{(vW0, vW1, vW2)[t]}, {WS}, s{sT0} offen sc1 lds", ("w", part, st))
    if t == 2:
        A("s_mov_b32 exec_hi, -1")


def rd_k01(A, t):
    if EXP.get('halfrd') and t % 2 == 1:
        return
    c, tt = t // TPC, t % TPC
    A.lds(f"ds_read_b128 {v(K01,4)}, v{vK01 + c % NSLOT} offset:{tt*512}", ("k01", t))


def rd_k2(A, t):
    if EXP.get('halfrd') and t % 2 == 1:
        return
    c, tt = t // TPC, t % TPC
    A.lds(f"ds_read_b64 {v(K2,2)}, v{vK2 + c % NSLOT} offset:{8192 + tt*512}", ("k2", t))


def rd_v(A, t, a):
    if EXP.get('halfrd') and t % 2 == 1:
        return
    c, tt = t // TPC, t % TPC
    areg = vV + c % NSLOT if tt < 4 else vV2[c % NSLOT]
    A.lds(f"ds_read_b128 {v(V1 if a else V0,4)}, v{areg} offset:{(2*(tt % 4) + a)*640}", ("v", t, a))


def exps(A, sreg, g, preg=P):
    for i in range(4):
        A(f"v_exp_f32 v{sreg+4*g+i}, v{sreg+4*g+i}")
    A(f"v_cvt_pk_bf16_f32 v{preg+2*g}, v{sreg+4*g}, v{sreg+4*g+1}")
    A(f"v_cvt_pk_bf16_f32 v{preg+2*g+1}, v{sreg+4*g+2}, v{sreg+4*g+3}")


def cross_half_max(A, reg, tmp):
    A(f"v_mov_b32 v{tmp}, v{reg}")
    A("s_nop 1")
    A(f"v_permlane32_swap_b32 v{reg}, v{tmp}")
    A("s_nop 1")
    A(f"v_max_f32 v{reg}, v{reg}, v{tmp}")


def max16(A, dst, src, first):
    if first:
        A(f"v_max3_f32 v{dst}, v{src}, v{src+1}, v{src+2}")
        rest = list(range(3, 16))
    else:
        rest = list(range(0, 16))
    while rest:
        if len(rest) >= 2:
            A(f"v_max3_f32 v{dst}, v{dst}, v{src+rest[0]}, v{src+rest[1]}")
            rest = rest[2:]
        else:
            A(f"v_max_f32 v{dst}, v{dst}, v{src+rest[0]}")
            rest = rest[1:]


def row_sum(A, oreg):
    A(f"v_mov_b32 v{vT}, v{oreg+8}")
    A(f"v_mov_b32 v{vT+1}, v{oreg+8}")
    A("s_nop 1")
    A(f"v_permlane32_swap_b32 v{vT}, v{vT+1}")


def finish_tile(A, oreg, gate, one_minus, vaddr, tok_sreg, chunk0, tag):
    A(f"v_rcp_f32 v{vT+2}, v{vT+1}")
    A(f"s_lshl_b32 s{sT0}, s{tok_sreg}, 4")
    A(f"s_add_u32 s{sT0}, s{sT0}, {OC + chunk0*32768}")
    if one_minus:
        A(f"v_sub_f32 v{vT}, 1.0, v{gate}")
        A(f"v_mul_f32 v{vT+2}, v{vT+2}, v{vT}")
    else:
        A(f"v_mul_f32 v{vT+2}, v{vT+2}, v{gate}")
    A(f"v_mov_b32 v{vT+3}, v{vT+2}")
    for i in range(0, 12, 2):
        A(f"v_pk_mul_f32 {v(oreg+i,2)}, {v(oreg+i,2)}, v[{vT+2}:{vT+3}]")
    for i in range(4):
        A(f"v_cvt_pk_bf16_f32 v{oreg+i}, v{oreg+2*i}, v{oreg+2*i+1}")
    A(f"v_cvt_pk_bf16_f32 v{oreg+8}, v{oreg+8}, v{oreg+9}")
    A(f"v_cvt_pk_bf16_f32 v{oreg+9}, v{oreg+10}, v{oreg+11}")
    A(f"v_permlane32_swap_b32 v{oreg}, v{oreg+2}")
    A(f"v_permlane32_swap_b32 v{oreg+1}, v{oreg+3}")
    A.vm(f"buffer_store_dwordx4 {v(oreg,4)}, v{vaddr}, {WS}, s{sT0} offen sc1", tag)
    A("s_mov_b32 exec_hi, 0")
    A.vm(f"buffer_store_dwordx2 {v(oreg+8,2)}, v{vaddr+2}, {WS}, s{sT0} offen sc1", tag)
    A("s_mov_b64 exec, -1")


def oc_load(A, part, k):
    reg = OCA if part == 0 else OCB
    A(f"s_add_u32 s{sT0}, s{sOCB}, {(part*80 + 4*k)*32768}")
    A.vm(f"buffer_load_dwordx4 {v(reg+4*k,4)}, v{vOC}, {WS}, s{sT0} offen sc1", ("oc", part, k))


def outproj(A, part, first, hook=None):
    offs = WA_OFF if part == 0 else WB_OFF
    reg = OCA if part == 0 else OCB
    for kg in range(2):
        if kg == 0:
            A(f"s_cmp_eq_u32 s{sKG}, 1")
            A(f"s_cbranch_scc1 L_op{part}_g1")
            saved = (list(A.vm_q), list(A.lds_q))
        else:
            A.label(f"L_op{part}_g1")
            A.vm_q, A.lds_q = list(saved[0]), list(saved[1])
        seq = [(k, nt) for k in range(10) for nt in range(5)]

        def rd(i):
            k, nt = seq[i]
            kk = 10 * kg + k
            off = offs[kk // 4] + (kk % 4) * 5120 + nt * 256
            areg = (vWR, vT + 5, vT + 6)[off >> 16]
            A.lds(f"ds_read_b128 {v(WF + (i % 8)*4,4)}, v{areg} offset:{off & 0xffff}", ("wf", i))

        LOOK = 5
        for i in range(LOOK):
            rd(i)
        for i, (k, nt) in enumerate(seq):
            if i + LOOK < len(seq):
                rd(i + LOOK)
            if nt == 0:
                A.vm_wait(("oc", part, k))
                if hook:
                    hook(k, kg)
            A.lds_wait(("wf", i))
            c = "0" if (first and k == 0) else v(ACC + 4*nt, 4)
            A(f"v_mfma_f32_16x16x32_bf16 {v(ACC+4*nt,4)}, {v(WF + (i % 8)*4,4)}, {v(reg+4*k,4)}, {c}")
        if kg == 0:
            end0 = (list(A.vm_q), list(A.lds_q))
            A(f"s_branch L_op{part}_done")
    A.label(f"L_op{part}_done")
    assert end0[0] == A.vm_q and end0[1] == A.lds_q


def keypos(kappa):
    return (kappa & 25) | ((kappa >> 1) & 1) << 2 | ((kappa >> 2) & 1) << 1


def band_mask(j, i, prev):
    m = 0
    for l in range(64):
        q, hh = l & 31, l >> 5
        key = keypos(8 * j + 4 * hh + i) - (32 if prev else 0)
        if 0 <= q - key <= 7:
            m |= 1 << l
    return m


def b_consts(A):
    A(f"v_cmp_eq_u32 vcc, 20, v{vR}")
    A(f"v_mov_b32 v{vT+6}, 0")
    A(f"v_mov_b32 v{vT+7}, 0x3f803f80")
    A(f"v_cndmask_b32 v{vT+6}, v{vT+6}, v{vT+7}, vcc")
    for base in (BV0, BV1, BVP):
        for i in range(4):
            A(f"v_mov_b32 v{base+i}, v{vT+6}")
    A(f"v_mov_b32 v{BQ2}, 0")
    A(f"v_mov_b32 v{BQ2+1}, 0")


def b_load_items():
    def mk(instr, pre=None, gate=False):
        def f(A):
            if gate:
                A(f"v_lshlrev_b32 v{vCT}, 1, v{vGA}")
                A.vm(instr.replace(f"v{vGA},", f"v{vCT},"), "b")
                return
            if pre:
                A(pre)
            A.vm(instr, "b")
            if pre:
                A("s_mov_b64 exec, -1")
        return f
    lo20 = f"s_mov_b64 exec, s[{sLO20}:{sLO20+1}]"
    return [
        mk(f"buffer_load_dwordx4 {v(BQ01,4)}, v{vBA}, {WS}, s{sBA} offen sc1"),
        mk(f"buffer_load_dwordx4 {v(BK01,4)}, v{vBA+2}, {WS}, s{sBA+2} offen sc1"),
        mk(f"buffer_load_dwordx2 {v(BK2,2)}, v{vBA+3}, {WS}, s{sBA+3} offen sc1"),
        mk(f"buffer_load_dwordx4 {v(BKP01,4)}, v{vBA+2}, {WS}, s{sBA+5} offen sc1"),
        mk(f"buffer_load_dwordx2 {v(BKP2,2)}, v{vBA+3}, {WS}, s{sBA+6} offen sc1"),
        mk(f"buffer_load_dword v{vGB}, v{vGA}, {WS}, s{sBA+8} offen sc1", None, True),
        mk(f"buffer_load_dwordx2 {v(BQ2,2)}, v{vBA+1}, {WS}, s{sBA+1} offen sc1", "s_mov_b32 exec_hi, 0"),
        mk(f"buffer_load_dwordx4 {v(BV0,4)}, v{vBA+4}, {WS}, s{sBA+4} offen sc1", lo20),
        mk(f"buffer_load_dwordx4 {v(BV1,4)}, v{vBA+4}, {WS}, s{sBA+4} offen offset:640 sc1", lo20),
        mk(f"buffer_load_dwordx4 {v(BVP,4)}, v{vBA+4}, {WS}, s{sBA+7} offen offset:640 sc1", lo20),
    ]


def b_unit(A):
    S0, S1 = BS0, BS1
    jitter(A, True)
    A.vm_wait("b")
    mf16(A, S0, BK01, BQ01, "0")
    mf16(A, S1, BKP01, BQ01, "0")
    mf8(A, S0, BK2, BQ2, v(S0, 16))
    mf8(A, S1, BKP2, BQ2, v(S1, 16))
    A(f"v_mov_b32 v{vT}, {hex(f32bits(-1e30))}")
    A(f"s_cmp_eq_u32 s{sQT}, 0")
    A(f"s_cselect_b32 s{sT3}, 0, -1")
    A("s_nop 7")
    A("s_nop 5")
    for j in range(4):
        for i in range(4):
            m = band_mask(j, i, False)
            A(f"s_mov_b32 s{sM}, {hex(m & 0xffffffff)}")
            A(f"s_mov_b32 s{sM+1}, {hex(m >> 32)}")
            A(f"v_cndmask_b32 v{S0+4*j+i}, v{vT}, v{S0+4*j+i}, s[{sM}:{sM+1}]")
    for i in range(4):
        m = band_mask(3, i, True)
        A(f"s_and_b32 s{sM}, s{sT3}, {hex(m & 0xffffffff)}")
        A(f"s_and_b32 s{sM+1}, s{sT3}, {hex(m >> 32)}")
        A(f"v_cndmask_b32 v{S1+12+i}, v{vT}, v{S1+12+i}, s[{sM}:{sM+1}]")
    max16(A, vT + 1, S0, True)
    A(f"v_max3_f32 v{vT+1}, v{vT+1}, v{S1+12}, v{S1+13}")
    A(f"v_max3_f32 v{vT+1}, v{vT+1}, v{S1+14}, v{S1+15}")
    cross_half_max(A, vT + 1, vT + 2)
    for r in list(range(S0, S0 + 16)) + list(range(S1 + 12, S1 + 16)):
        A(f"v_sub_f32 v{r}, v{r}, v{vT+1}")
    for g in range(4):
        exps(A, S0, g, BP)
    PP = BP + 8
    for i in range(4):
        A(f"v_exp_f32 v{S1+12+i}, v{S1+12+i}")
    A(f"v_mov_b32 v{PP}, 0")
    A(f"v_mov_b32 v{PP+1}, 0")
    A(f"v_cvt_pk_bf16_f32 v{PP+2}, v{S1+12}, v{S1+13}")
    A(f"v_cvt_pk_bf16_f32 v{PP+3}, v{S1+14}, v{S1+15}")
    A("s_nop 1")
    mf16(A, BO, BV0, BP, "0")
    mf16(A, BO, BV1, BP + 4, v(BO, 16))
    mf16(A, BO, BVP, PP, v(BO, 16))
    A("s_nop 7")
    A("s_nop 3")
    row_sum(A, BO)
    A("s_nop 1")
    finish_tile(A, BO, vGB, True, vOST + 1, sBT, 80, "stb")


def fallback(A):
    A.label("L_fallback")
    A("s_waitcnt vmcnt(0) lgkmcnt(0)")
    A(f"v_lshlrev_b32 v{vT+4}, 15, v{vHH}")
    A(f"v_lshl_add_u32 v{vT+4}, v{vR}, 4, v{vT+4}")
    A(f"v_lshlrev_b32 v{vT+5}, 4, v{vR}")
    A(f"v_mul_u32_u24 v{vT+6}, 320, v{vHH}")
    A(f"v_lshl_add_u32 v{vT+6}, v{vR}, 4, v{vT+6}")
    A(f"v_mov_b32 v{vT+7}, {hex(f32bits(-3.0e38))}")

    def tile_addr():
        A(f"s_lshl_b32 s{sT0}, s{sCNT}, 9")
        A(f"s_lshl_b32 s{sT1}, s{sPA}, 15")
        A(f"s_add_u32 s{sT1}, s{sT1}, s{sT0}")
        A(f"s_add_u32 s{sT1}, s{sT1}, {KA}")
        A(f"s_lshl_b32 s{sT2}, s{sP2L}, 15")
        A(f"s_add_u32 s{sT2}, s{sT2}, s{sT0}")
        A(f"s_and_b32 s{sT3}, s{sH}, 1")
        A(f"s_lshl_b32 s{sT3}, s{sT3}, 3")
        A(f"s_add_u32 s{sT2}, s{sT2}, s{sT3}")
        A(f"s_add_u32 s{sT2}, s{sT2}, {KA}")
        A(f"s_mul_i32 s{sT3}, s{sCNT}, 1280")
        A(f"s_add_u32 s{sT3}, s{sT3}, s{sVH}")
        A(f"s_add_u32 s{sT3}, s{sT3}, {VA}")

    A(f"s_mov_b32 s{sCNT}, 0")
    A.label("L_fb1")
    tile_addr()
    A(f"buffer_load_dwordx4 {v(K01,4)}, v{vT+4}, {WS}, s{sT1} offen sc1")
    A(f"buffer_load_dwordx2 {v(K2,2)}, v{vT+5}, {WS}, s{sT2} offen sc1")
    A("s_waitcnt vmcnt(0)")
    mf16(A, SA, K01, Q01, "0")
    mf8(A, SA, K2, Q2, v(SA, 16))
    A("s_nop 7")
    A("s_nop 7")
    max16(A, vT + 7, SA, False)
    A(f"s_add_u32 s{sCNT}, s{sCNT}, 1")
    A(f"s_cmp_lt_u32 s{sCNT}, 64")
    A("s_cbranch_scc1 L_fb1")
    cross_half_max(A, vT + 7, vT)
    for i in range(16):
        A(f"v_sub_f32 v{NEGM+i}, 0, v{vT+7}")
        A(f"v_mov_b32 v{O+i}, 0")
    A(f"v_cmp_eq_u32 vcc, 20, v{vR}")
    A(f"v_mov_b32 v{vT}, 0")
    A(f"v_mov_b32 v{vT+1}, 0x3f803f80")
    A(f"v_cndmask_b32 v{vT}, v{vT}, v{vT+1}, vcc")
    for i in range(4):
        A(f"v_mov_b32 v{V0+i}, v{vT}")
        A(f"v_mov_b32 v{V1+i}, v{vT}")
    A(f"s_mov_b32 s{sCNT}, 0")
    A.label("L_fb2")
    tile_addr()
    A(f"buffer_load_dwordx4 {v(K01,4)}, v{vT+4}, {WS}, s{sT1} offen sc1")
    A(f"buffer_load_dwordx2 {v(K2,2)}, v{vT+5}, {WS}, s{sT2} offen sc1")
    A(f"s_mov_b64 exec, s[{sLO20}:{sLO20+1}]")
    A(f"buffer_load_dwordx4 {v(V0,4)}, v{vT+6}, {WS}, s{sT3} offen sc1")
    A(f"buffer_load_dwordx4 {v(V1,4)}, v{vT+6}, {WS}, s{sT3} offen offset:640 sc1")
    A("s_mov_b64 exec, -1")
    A("s_waitcnt vmcnt(0)")
    mf16(A, SA, K01, Q01, v(NEGM, 16))
    mf8(A, SA, K2, Q2, v(SA, 16))
    A("s_nop 7")
    A("s_nop 7")
    for g in range(4):
        exps(A, SA, g)
    A("s_nop 1")
    mf16(A, O, V0, P, v(O, 16))
    mf16(A, O, V1, P + 4, v(O, 16))
    A(f"s_add_u32 s{sCNT}, s{sCNT}, 1")
    A(f"s_cmp_lt_u32 s{sCNT}, 64")
    A("s_cbranch_scc1 L_fb2")
    A("s_nop 7")
    A("s_nop 7")
    row_sum(A, O)
    A("s_nop 1")
    A("s_branch L_finish")


def touch_chip(A, which):
    A(f"s_and_b32 s{sT1}, s{sW}, 1")
    A(f"s_lshl_b32 s{sT1}, s{sT1}, 6")
    A(f"v_add_u32 v{vT}, s{sT1}, v{vL}")
    A(f"s_cmp_ge_u32 s{sW}, 2")
    A(f"s_cbranch_scc1 L_tc_w{which}")
    if "x" in which:
        A(f"v_min_u32 v{vT}, 79, v{vT}")
        A(f"v_lshlrev_b32 v{vT}, 7, v{vT}")
        A(f"s_mul_i32 s{sT0}, s2, 10240")
        A(f"buffer_load_dword v{G_P+1}, v{vT}, s[{sX}:{sX+3}], s{sT0} offen")
    A(f"s_branch L_tc_done{which}")
    A.label(f"L_tc_w{which}")
    A(f"v_min_u32 v{vT}, 74, v{vT}")
    A(f"v_lshlrev_b32 v{vT}, 7, v{vT}")
    A(f"s_mul_i32 s{sT0}, s2, 9600")
    if "a" in which:
        A(f"buffer_load_dword v{G_P+2}, v{vT}, s[{sWA}:{sWA+3}], s{sT0} offen")
    if "b" in which:
        A(f"buffer_load_dword v{G_P+3}, v{vT}, s[{sWB}:{sWB+3}], s{sT0} offen")
    A.label(f"L_tc_done{which}")


def touch_phase(A, phase):
    L = f"L_tp{phase}"
    if phase != 2:
        k0, nk = {0: (3, 3), 1: (6, 4), 3: (0, 3)}[phase]
        wx, ww = {0: (0, 1), 1: (2, 3), 3: (2, 3)}[phase]
        A(f"s_cmp_lg_u32 s{sW}, {wx}")
        A(f"s_cbranch_scc1 {L}_w")
        if nk == 3:
            A(f"v_mul_u32_u24 v{vT}, 86, v{vL}")
            A(f"v_lshrrev_b32 v{vT}, 8, v{vT}")
        else:
            A(f"v_lshrrev_b32 v{vT}, 2, v{vL}")
        A(f"v_mul_u32_u24 v{vT+1}, {nk}, v{vT}")
        A(f"v_sub_u32 v{vT+1}, v{vL}, v{vT+1}")
        A(f"v_min_u32 v{vT}, 7, v{vT}")
        A(f"v_mul_u32_u24 v{vT}, 1280, v{vT}")
        A(f"v_lshl_add_u32 v{vT}, v{vT+1}, 7, v{vT}")
        A(f"s_mul_i32 s{sT0}, s2, 10240")
        A(f"s_add_u32 s{sT0}, s{sT0}, {128*k0}")
        A(f"buffer_load_dword v{G_P+1}, v{vT}, s[{sX}:{sX+3}], s{sT0} offen")
        A.label(f"{L}_w")
        per = 64 * nk * 30 // 256 + (1 if (64 * nk * 30) % 256 else 0)
        A(f"s_cmp_lg_u32 s{sW}, {ww}")
        A(f"s_cbranch_scc1 {L}_done")
        A(f"v_min_u32 v{vT}, {per - 1}, v{vL}")
        A(f"v_lshlrev_b32 v{vT}, 7, v{vT}")
        A(f"s_mul_i32 s{sT0}, s2, {64 * nk * 3840 // 256}")
        A(f"s_and_b32 s{sT0}, s{sT0}, 0xffffff80")
        A(f"s_add_u32 s{sT0}, s{sT0}, {64 * k0 * 3840}")
        A(f"buffer_load_dword v{G_P+2}, v{vT}, s[{sWA}:{sWA+3}], s{sT0} offen")
    else:
        A(f"s_cmp_ge_u32 s{sW}, 2")
        A(f"s_cbranch_scc1 {L}_done")
        A(f"s_lshl_b32 s{sT1}, s{sW}, 6")
        A(f"v_add_u32 v{vT}, s{sT1}, v{vL}")
        A(f"v_min_u32 v{vT}, 74, v{vT}")
        A(f"v_lshlrev_b32 v{vT}, 7, v{vT}")
        A(f"s_mul_i32 s{sT0}, s2, 9600")
        A(f"buffer_load_dword v{G_P+3}, v{vT}, s[{sWB}:{sWB+3}], s{sT0} offen")
    A.label(f"{L}_done")


def touch_xcd_first(A):
    A(f"s_cmp_eq_u32 s{sW}, 7")
    A("s_cbranch_scc1 L_txf_done")
    A(f"s_sub_u32 s{sT1}, s{sW}, 4")
    A(f"s_and_b32 s{sT0}, s{sCT}, 3")
    A(f"s_lshl_b32 s{sT0}, s{sT0}, 5")
    A(f"v_add_u32 v{vT}, s{sT0}, v{vR}")
    A(f"v_mul_u32_u24 v{vT}, 1280, v{vT}")
    A(f"s_lshl_b32 s{sT0}, s{sT1}, 7")
    A(f"s_add_u32 s{sT0}, s{sT0}, s{sXOFF}")
    A(f"buffer_load_dword v{G_P}, v{vT}, s[{sX}:{sX+3}], s{sT0} offen")
    A(f"s_and_b32 s{sT0}, s{sRB}, 7")
    A(f"s_lshl_b32 s{sT0}, s{sT0}, 3")
    A(f"s_lshl_b32 s{sT1}, s{sT1}, 6")
    A(f"s_add_u32 s{sT0}, s{sT0}, s{sT1}")
    A(f"v_bfe_u32 v{vT}, v{vL}, 1, 3")
    A(f"v_add_u32 v{vT}, s{sT0}, v{vT}")
    A(f"v_mul_u32_u24 v{vT}, 3840, v{vT}")
    A(f"v_and_b32 v{vT+1}, 1, v{vL}")
    A(f"v_lshl_add_u32 v{vT}, v{vT+1}, 7, v{vT}")
    A(f"buffer_load_dword v{G_P+1}, v{vT}, s[{sWA}:{sWA+3}], s{sWOFF} offen")
    A.label("L_txf_done")


def touch_chip_wide(A, which, tag):
    A(f"s_cmp_ge_u32 s{sW}, 4")
    A(f"s_cbranch_scc1 L_tcw{tag}")
    A(f"s_lshl_b32 s{sT1}, s{sW}, 10")
    A(f"v_add_u32 v{vT}, s{sT1}, v{vL16}")
    k = 0
    for name, srd_, size in (("x", sX, 10240), ("a", sWA, 9600), ("b", sWB, 9600)):
        if name not in which:
            continue
        A(f"s_mul_i32 s{sT0}, s2, {size}")
        for i in range(3):
            A(f"v_add_u32 v{vT+1}, {4096*i}, v{vT}")
            A(f"v_min_u32 v{vT+1}, {size - 16}, v{vT+1}")
            A(f"buffer_load_dwordx4 {v(G_P + 4*k, 4)}, v{vT+1}, s[{srd_}:{srd_+3}], s{sT0} offen")
            k += 1
    A.label(f"L_tcw{tag}")


def touch_chip_b(A, n):
    A(f"s_cmp_ge_u32 s{sW}, 2")
    A(f"s_cbranch_scc1 L_tcb{n}")
    A(f"s_lshl_b32 s{sT1}, s{sW}, 6")
    A(f"v_add_u32 v{vT}, s{sT1}, v{vL}")
    A(f"v_min_u32 v{vT}, 74, v{vT}")
    A(f"v_lshlrev_b32 v{vT}, 7, v{vT}")
    A(f"s_mul_i32 s{sT0}, s2, 9600")
    A(f"buffer_load_dword v{G_P+3}, v{vT}, s[{sWB}:{sWB+3}], s{sT0} offen")
    A.label(f"L_tcb{n}")


def touch_wb(A, n):
    A(f"s_cmp_ge_u32 s{sW}, 3")
    A(f"s_cbranch_scc1 L_twb{n}")
    A(f"s_and_b32 s{sT0}, s{sRB}, 7")
    A(f"s_mul_i32 s{sT0}, s{sT0}, 80")
    A(f"s_lshl_b32 s{sT1}, s{sW}, 5")
    A(f"v_lshrrev_b32 v{vT}, 1, v{vL}")
    A(f"v_add_u32 v{vT}, s{sT1}, v{vT}")
    A(f"v_min_u32 v{vT}, 79, v{vT}")
    A(f"v_add_u32 v{vT}, s{sT0}, v{vT}")
    A(f"v_mul_u32_u24 v{vT}, 3840, v{vT}")
    A(f"v_and_b32 v{vT+1}, 1, v{vL}")
    A(f"v_lshl_add_u32 v{vT}, v{vT+1}, 7, v{vT}")
    A(f"buffer_load_dword v{G_P}, v{vT}, s[{sWB}:{sWB+3}], s{sWOFF} offen")
    A.label(f"L_twb{n}")


def touch_a(A, n):
    A(f"v_mul_u32_u24 v{vT}, 37, v{vL}")
    A(f"v_lshrrev_b32 v{vT}, 8, v{vT}")
    A(f"v_mul_u32_u24 v{vT+1}, 7, v{vT}")
    A(f"v_sub_u32 v{vT+1}, v{vL}, v{vT+1}")
    A(f"v_min_u32 v{vT}, 7, v{vT}")
    A(f"s_and_b32 s{sT0}, s{sCT}, 3")
    A(f"s_lshl_b32 s{sT0}, s{sT0}, 2")
    A(f"s_add_u32 s{sT0}, s{sT0}, s{sW}")
    A(f"s_lshl_b32 s{sT0}, s{sT0}, 3")
    A(f"v_add_u32 v{vT}, s{sT0}, v{vT}")
    A(f"v_mul_u32_u24 v{vT}, 1280, v{vT}")
    A(f"v_lshl_add_u32 v{vT}, v{vT+1}, 7, v{vT}")
    A(f"v_add_u32 v{vT}, 384, v{vT}")
    A(f"buffer_load_dword v{G_P+1}, v{vT}, s[{sX}:{sX+3}], s{sXOFF} offen")
    A(f"s_cmp_ge_u32 s{sW}, 2")
    A(f"s_cbranch_scc1 L_twa{n}")
    A(f"s_and_b32 s{sT0}, s{sRB}, 7")
    A(f"s_mul_i32 s{sT0}, s{sT0}, 56")
    A(f"s_mul_i32 s{sT1}, s{sW}, 28")
    A(f"s_add_u32 s{sT0}, s{sT0}, s{sT1}")
    A(f"s_add_u32 s{sT0}, s{sT0}, 192")
    A(f"v_lshrrev_b32 v{vT}, 1, v{vL}")
    A(f"v_min_u32 v{vT}, 27, v{vT}")
    A(f"v_add_u32 v{vT}, s{sT0}, v{vT}")
    A(f"v_mul_u32_u24 v{vT}, 3840, v{vT}")
    A(f"v_and_b32 v{vT+1}, 1, v{vL}")
    A(f"v_lshl_add_u32 v{vT}, v{vT+1}, 7, v{vT}")
    A(f"buffer_load_dword v{G_P+2}, v{vT}, s[{sWA}:{sWA+3}], s{sWOFF} offen")
    A.label(f"L_twa{n}")


def setup_phase1_reads(A):
    A(f"v_lshrrev_b32 v{vT+2}, 1, v{vR}")
    A(f"v_and_b32 v{vT+2}, 7, v{vT+2}")
    A(f"v_xor_b32 v{vT+2}, v{vT+2}, v{vHH}")
    A(f"v_lshlrev_b32 v{vT+2}, 4, v{vT+2}")
    A(f"s_lshl_b32 s{sT0}, s{sMH}, 6")
    A(f"v_add_u32 v{vT+3}, s{sT0}, v{vR}")
    A(f"v_lshl_add_u32 v{vXR}, v{vT+3}, 7, v{vT+2}")
    for ks in range(1, 4):
        A(f"v_xor_b32 v{vXR+3*ks}, {ks*32}, v{vXR}")
    for ks in range(4):
        A(f"v_add_u32 v{vXR+3*ks+1}, 0x10000, v{vXR+3*ks}")
        A(f"v_add_u32 v{vXR+3*ks+2}, 0x20000, v{vXR+3*ks}")
    A(f"v_bfe_u32 v{vT+2}, v{vL}, 2, 2")
    A(f"v_lshl_add_u32 v{vT+3}, v{vHH}, 3, v{vT+2}")
    A(f"v_lshlrev_b32 v{vT+3}, 8, v{vT+3}")
    A(f"v_bfe_u32 v{vT+4}, v{vL}, 4, 1")
    A(f"v_lshlrev_b32 v{vT+4}, 5, v{vT+4}")
    A(f"v_add_u32 v{vT+3}, v{vT+3}, v{vT+4}")
    A(f"v_and_b32 v{vT+4}, 3, v{vL}")
    A(f"v_lshlrev_b32 v{vT+4}, 3, v{vT+4}")
    A(f"v_add_u32 v{vT+3}, v{vT+3}, v{vT+4}")
    for nt in range(2):
        A(f"s_lshl_b32 s{sT0}, s{sNH}, 1")
        A(f"s_add_u32 s{sT0}, s{sT0}, {nt}")
        A(f"v_xor_b32 v{vT+4}, s{sT0}, v{vT+2}")
        A(f"v_lshl_add_u32 v{vWR1+3*nt}, v{vT+4}, 6, v{vT+3}")
        A(f"v_add_u32 v{vWR1+3*nt+1}, 0x10000, v{vWR1+3*nt}")
        A(f"v_add_u32 v{vWR1+3*nt+2}, 0x20000, v{vWR1+3*nt}")


def setup_p2_0(A):
    A(f"s_lshl_b32 s{sF1}, s{sCT}, 4")
    A(f"s_add_u32 s{sF1}, s{sF1}, s{sRB}")
    A(f"s_lshl_b32 s{sF1}, s{sF1}, 2")
    A(f"s_and_b32 s{sT0}, s2, 7")
    A(f"s_lshl_b32 s{sT0}, s{sT0}, 2")
    A(f"s_lshr_b32 s{sT1}, s2, 3")
    A(f"s_and_b32 s{sT1}, s{sT1}, 3")
    A(f"s_add_u32 s{sH}, s{sT0}, s{sT1}")
    A(f"s_lshr_b32 s{sQB}, s2, 5")
    A(f"s_lshr_b32 s{sT0}, s{sH}, 1")
    A(f"s_mul_i32 s{sT0}, s{sT0}, 5")
    A(f"s_add_u32 s{sP2L}, s{sT0}, 2")
    A(f"s_and_b32 s{sT1}, s{sH}, 1")
    A(f"s_mul_i32 s{sT1}, s{sT1}, 3")
    A(f"s_add_u32 s{sPA}, s{sT0}, s{sT1}")
    A(f"s_mul_i32 s{sVH}, s{sH}, {VH}")
    A(f"s_mul_i32 s{sLDSW}, s{sW}, 2816")
    A(f"s_mul_i32 s{sLDSW2}, s{sW}, 2560")
    A(f"s_lshl_b32 s{sQ0}, s{sQB}, 8")
    A(f"s_lshl_b32 s{sT0}, s{sW}, 5")
    A(f"s_add_u32 s{sQ0}, s{sQ0}, s{sT0}")
    A(f"s_lshl_b32 s{sQT}, s{sQB}, 2")
    A(f"s_lshr_b32 s{sT0}, s{sW}, 1")
    A(f"s_add_u32 s{sQT}, s{sQT}, s{sT0}")
    A(f"s_and_b32 s{sT1}, s{sW}, 1")
    A(f"s_lshl_b32 s{sBT}, s{sQT}, 6")
    A(f"s_add_u32 s{sBT}, s{sBT}, s{sT1}")
    A(f"s_mov_b32 s{sLO20}, 0xfffff")
    A(f"s_mov_b32 s{sLO20+1}, 0xfffff")
    A(f"v_lshlrev_b32 v{vQA}, 15, v{vHH}")
    A(f"v_lshl_add_u32 v{vQA}, v{vR}, 4, v{vQA}")
    A(f"v_lshlrev_b32 v{vQA2}, 4, v{vR}")
    A(f"v_lshlrev_b32 v{vGA}, 2, v{vR}")
    A(f"s_lshl_b32 s{sT0}, s{sQ0}, 4")
    A(f"s_lshl_b32 s{sQOFF}, s{sPA}, 15")
    A(f"s_add_u32 s{sQOFF}, s{sQOFF}, s{sT0}")
    if QA:
        A(f"s_add_u32 s{sQOFF}, s{sQOFF}, {QA}")
    A(f"s_lshl_b32 s{sQOFF2}, s{sP2L}, 15")
    A(f"s_add_u32 s{sQOFF2}, s{sQOFF2}, s{sT0}")
    A(f"s_and_b32 s{sT1}, s{sH}, 1")
    A(f"s_lshl_b32 s{sT1}, s{sT1}, 3")
    A(f"s_add_u32 s{sQOFF2}, s{sQOFF2}, s{sT1}")
    if QA:
        A(f"s_add_u32 s{sQOFF2}, s{sQOFF2}, {QA}")
    A(f"s_lshl_b32 s{sGOFF}, s{sQ0}, 2")
    A(f"s_add_u32 s{sGOFF}, s{sGOFF}, {GATE}")


def setup_p2_1(A):
    A(f"s_and_b32 s{sT1}, s{sH}, 1")
    A(f"s_lshl_b32 s{sT1}, s{sT1}, 3")
    A(f"v_lshlrev_b32 v{vT}, 12, v{vHH}")
    A(f"v_lshl_add_u32 v{vT}, v{vR}, 4, v{vT}")
    A(f"v_lshlrev_b32 v{vT+1}, 4, v{vR}")
    A(f"v_add_u32 v{vT+1}, s{sT1}, v{vT+1}")
    A(f"v_mul_u32_u24 v{vT+2}, 320, v{vHH}")
    A(f"v_lshl_add_u32 v{vT+2}, v{vR}, 4, v{vT+2}")
    A(f"v_add_u32 v{vT+3}, {ONES}, v{vT+2}")
    A(f"v_cmp_gt_u32 vcc, 20, v{vR}")
    for sl in range(NSLOT):
        A(f"v_add_u32 v{vK01+sl}, {sl*SLOT}, v{vT}")
        A(f"v_add_u32 v{vK2+sl}, {sl*SLOT}, v{vT+1}")
        A(f"v_add_u32 v{vT+4}, {sl*SLOT + 12288}, v{vT+2}")
        A(f"v_cndmask_b32 v{vV+sl}, v{vT+3}, v{vT+4}, vcc")
    A(f"s_lshl_b32 s{sT2}, s{sPA}, 15")
    A(f"s_add_u32 s{sT2}, s{sT2}, {KA}")
    A(f"s_lshl_b32 s{sT3}, s{sP2L}, 15")
    A(f"s_add_u32 s{sT3}, s{sT3}, {KA - 8192}")
    A(f"s_add_u32 s{sT4}, s{sVH}, {VA - 12288}")
    for t in range(3):
        A(f"v_add_u32 v{vT}, s{sLDSW}, v{vL16}")
        if t:
            A(f"v_add_u32 v{vT}, {1024*t}, v{vT}")
        A(f"v_lshrrev_b32 v{vT+1}, 12, v{vT}")
        A(f"v_and_b32 v{vT+2}, 4095, v{vT}")
        A(f"v_lshl_add_u32 v{vT+2}, v{vT+1}, 15, v{vT+2}")
        A(f"v_add_u32 v{vT+2}, s{sT2}, v{vT+2}")
        A(f"v_add_u32 v{vT+3}, s{sT3}, v{vT}")
        A(f"v_add_u32 v{vT+4}, s{sT4}, v{vT}")
        A(f"v_cmp_eq_u32 vcc, 2, v{vT+1}")
        A(f"v_mov_b32 v{vT+5}, 4096")
        A(f"v_mov_b32 v{vT+6}, 10240")
        A(f"v_cndmask_b32 v{vT+2}, v{vT+2}, v{vT+3}, vcc")
        A(f"v_cmp_le_u32 vcc, 3, v{vT+1}")
        A("s_nop 1")
        A(f"v_cndmask_b32 v{vCB+t}, v{vT+2}, v{vT+4}, vcc")
        A(f"v_cndmask_b32 v{vCS+t}, v{vT+5}, v{vT+6}, vcc")


def setup_p2_2(A):
    A(f"s_lshr_b32 s{sT0}, s{sH}, 1")
    A(f"s_mul_i32 s{sT0}, s{sT0}, 5")
    A(f"s_and_b32 s{sT1}, s{sH}, 1")
    A(f"s_lshl_b32 s{sT2}, s{sT1}, 1")
    A(f"s_add_u32 s{sT2}, s{sT2}, s{sT0}")
    A(f"v_add_u32 v{vT}, s{sT2}, v{vHH}")
    A(f"v_lshlrev_b32 v{vT}, 15, v{vT}")
    A(f"v_lshl_add_u32 v{vOST}, v{vR}, 4, v{vT}")
    A(f"v_lshl_add_u32 v{vOST+1}, v{vR}, 5, v{vT}")
    A(f"s_add_u32 s{sT0}, s{sT0}, 4")
    A(f"s_lshl_b32 s{sT0}, s{sT0}, 15")
    A(f"s_lshl_b32 s{sT1}, s{sT1}, 3")
    A(f"s_add_u32 s{sT0}, s{sT0}, s{sT1}")
    A(f"v_lshlrev_b32 v{vT}, 4, v{vR}")
    A(f"v_add_u32 v{vOST+2}, s{sT0}, v{vT}")
    A(f"v_lshlrev_b32 v{vT}, 5, v{vR}")
    A(f"v_add_u32 v{vOST+3}, s{sT0}, v{vT}")
    A(f"s_mul_i32 s{sT0}, s{sH}, 20")
    A(f"s_add_u32 s{sT1}, s{sT0}, 19")
    A(f"s_lshr_b32 s{sT0}, s{sT0}, 7")
    A(f"s_lshr_b32 s{sT1}, s{sT1}, 7")
    A(f"v_bfe_u32 v{vT}, v{vL}, 4, 1")
    A(f"s_sub_u32 s{sT2}, s{sT1}, s{sT0}")
    A(f"v_mul_u32_u24 v{vT+1}, s{sT2}, v{vT}")
    A(f"v_add_u32 v{vT+1}, s{sT0}, v{vT+1}")
    A(f"v_mul_u32_u24 v{vT+2}, 5, v{vHH}")
    A(f"v_add_u32 v{vT+2}, 5, v{vT+2}")
    A(f"v_add_u32 v{vT+2}, v{vT+2}, v{vT+1}")
    A(f"v_and_b32 v{vT+3}, 15, v{vL}")
    A(f"v_lshl_add_u32 v{vT+2}, v{vT+2}, 4, v{vT+3}")
    A(f"v_lshlrev_b32 v{vF1}, 2, v{vT+2}")
    A(f"v_add_u32 v{vT+2}, {15*16}, v{vT+3}")
    A(f"v_lshlrev_b32 v{vF4}, 2, v{vT+2}")
    A(f"v_and_b32 v{vT+4}, 1, v{vL}")
    A(f"s_lshl_b32 s{sT3}, s{sQB}, 1")
    A(f"v_add_u32 v{vT+4}, s{sT3}, v{vT+4}")
    A(f"v_lshl_add_u32 v{vT+4}, v{vT+1}, 4, v{vT+4}")
    A(f"v_lshlrev_b32 v{vF2}, 2, v{vT+4}")
    A(f"v_and_b32 v{vT}, 1, v{vL}")
    A(f"v_mul_u32_u24 v{vT+1}, s{sT2}, v{vT}")
    A(f"v_add_u32 v{vT+1}, s{sT0}, v{vT+1}")
    A(f"v_bfe_u32 v{vT+2}, v{vL}, 1, 2")
    A(f"v_min_u32 v{vT+2}, 2, v{vT+2}")
    A(f"v_mul_u32_u24 v{vT+2}, 5, v{vT+2}")
    A(f"v_add_u32 v{vT+1}, v{vT+1}, v{vT+2}")
    A(f"s_lshl_b32 s{sT3}, s{sQB}, 1")
    A(f"v_bfe_u32 v{vT+2}, v{vL}, 3, 2")
    A(f"v_min_u32 v{vT+2}, 2, v{vT+2}")
    A(f"v_add_u32 v{vT+2}, s{sT3}, v{vT+2}")
    A(f"v_max_u32 v{vT+2}, 1, v{vT+2}")
    A(f"v_subrev_u32 v{vT+2}, 1, v{vT+2}")
    A(f"v_lshl_add_u32 v{vT+1}, v{vT+1}, 4, v{vT+2}")
    A(f"v_lshlrev_b32 v{vF3}, 2, v{vT+1}")


def setup_p2_3(A):
    A(f"v_lshlrev_b32 v{vBA}, 15, v{vHH}")
    A(f"v_lshl_add_u32 v{vBA}, v{vR}, 4, v{vBA}")
    A(f"v_lshlrev_b32 v{vBA+1}, 4, v{vR}")
    A(f"v_and_b32 v{vT+2}, 25, v{vR}")
    A(f"v_bfe_u32 v{vT+3}, v{vR}, 1, 1")
    A(f"v_lshl_or_b32 v{vT+2}, v{vT+3}, 2, v{vT+2}")
    A(f"v_bfe_u32 v{vT+3}, v{vR}, 2, 1")
    A(f"v_lshl_or_b32 v{vT+2}, v{vT+3}, 1, v{vT+2}")
    A(f"v_lshlrev_b32 v{vT+3}, 15, v{vHH}")
    A(f"v_lshl_add_u32 v{vBA+2}, v{vT+2}, 4, v{vT+3}")
    A(f"v_lshlrev_b32 v{vBA+3}, 4, v{vT+2}")
    A(f"v_mul_u32_u24 v{vT+4}, 320, v{vHH}")
    A(f"v_lshl_add_u32 v{vBA+4}, v{vR}, 4, v{vT+4}")
    A(f"s_and_b32 s{sT1}, s{sW}, 1")
    A(f"s_lshl_b32 s{sT1}, s{sT1}, 10")
    A(f"s_lshl_b32 s{sT0}, s{sQT}, 5")
    A(f"s_add_u32 s{sT2}, s{sT1}, s{sT0}")
    A(f"s_lshl_b32 s{sT0}, s{sPA}, 15")
    A(f"s_lshl_b32 s{sT1}, s{sP2L}, 15")
    A(f"s_and_b32 s{sT3}, s{sH}, 1")
    A(f"s_lshl_b32 s{sT3}, s{sT3}, 3")
    A(f"s_add_u32 s{sT1}, s{sT1}, s{sT3}")
    for prev in range(2):
        if prev:
            A(f"s_cmp_eq_u32 s{sQT}, 0")
            A(f"s_cselect_b32 s{sT3}, 0, 32")
            A(f"s_sub_u32 s{sT2}, s{sT2}, s{sT3}")
        A(f"s_lshl_b32 s{sT3}, s{sT2}, 4")
        if not prev:
            A(f"s_add_u32 s{sBA}, s{sT3}, s{sT0}")
            A(f"s_add_u32 s{sBA}, s{sBA}, {QB}")
            A(f"s_add_u32 s{sBA+1}, s{sT3}, s{sT1}")
            A(f"s_add_u32 s{sBA+1}, s{sBA+1}, {QB}")
        o = sBA + 2 + 3 * prev
        A(f"s_add_u32 s{o}, s{sT3}, s{sT0}")
        A(f"s_add_u32 s{o}, s{o}, {KB}")
        A(f"s_add_u32 s{o+1}, s{sT3}, s{sT1}")
        A(f"s_add_u32 s{o+1}, s{o+1}, {KB}")
        A(f"s_lshr_b32 s{sT3}, s{sT2}, 4")
        A(f"s_mul_i32 s{sT3}, s{sT3}, 640")
        A(f"s_add_u32 s{o+2}, s{sT3}, s{sVH}")
        A(f"s_add_u32 s{o+2}, s{o+2}, {VB}")
    A(f"s_lshl_b32 s{sBA+8}, s{sBT}, 2")
    A(f"s_add_u32 s{sBA+8}, s{sBA+8}, {GATE}")


def setup_p2_4(A):
    sRT, sCO, sTG = sT1, sT2, sT3
    A(f"s_lshr_b32 s{sRT}, s{sH}, 3")
    A(f"s_lshl_b32 s{sT0}, s{sQB}, 2")
    A(f"s_add_u32 s{sRT}, s{sRT}, s{sT0}")
    A(f"s_and_b32 s{sCO}, s{sH}, 7")
    A(f"s_and_b32 s{sTG}, s{sW}, 3")
    A(f"s_lshr_b32 s{sKG}, s{sW}, 2")
    A(f"s_lshl_b32 s{sFLG}, s{sRT}, 8")
    A(f"s_mul_i32 s{sWSRC}, s{sW}, 20480")
    A(f"s_mul_i32 s{sT0}, s{sCO}, 1280")
    A(f"s_add_u32 s{sWSRC}, s{sWSRC}, s{sT0}")
    A(f"s_add_u32 s{sWSRC}, s{sWSRC}, {WOT}")
    A(f"s_lshl_b32 s{sRT}, s{sRT}, 6")
    A(f"s_lshl_b32 s{sTG}, s{sTG}, 4")
    A(f"s_add_u32 s{sRT}, s{sRT}, s{sTG}")
    A(f"s_mul_i32 s{sOUTO}, s{sRT}, 1280")
    A(f"s_mul_i32 s{sT0}, s{sCO}, 160")
    A(f"s_add_u32 s{sOUTO}, s{sOUTO}, s{sT0}")
    A(f"s_lshl_b32 s{sOCB}, s{sRT}, 4")
    A(f"s_mul_i32 s{sT0}, s{sKG}, {40*32768}")
    A(f"s_add_u32 s{sOCB}, s{sOCB}, s{sT0}")
    A(f"s_add_u32 s{sOCB}, s{sOCB}, {OC}")
    A(f"s_lshl_b32 s{sPUB}, s{sQT}, 6")
    A(f"s_lshl_b32 s{sT0}, s{sH}, 1")
    A(f"s_add_u32 s{sPUB}, s{sPUB}, s{sT0}")
    A(f"s_and_b32 s{sT0}, s{sW}, 1")
    A(f"s_add_u32 s{sPUB}, s{sPUB}, s{sT0}")
    A(f"s_lshl_b32 s{sPUB}, s{sPUB}, 2")
    A(f"v_lshlrev_b32 v{vFA}, 2, v{vL}")
    A(f"v_mov_b32 v{vW0}, v{vL16}")
    A(f"v_add_u32 v{vT}, 1024, v{vL16}")
    A(f"v_add_u32 v{vT+1}, {10240 - 256}, v{vL16}")
    A(f"v_cmp_gt_u32 vcc, 16, v{vL}")
    A(f"v_add_u32 v{vW2}, {10240 + 768}, v{vL16}")
    A(f"v_lshrrev_b32 v{vT+2}, 4, v{vL}")
    A(f"v_cndmask_b32 v{vW1}, v{vT+1}, v{vT}, vcc")
    A(f"v_and_b32 v{vT+3}, 15, v{vL}")
    A(f"v_lshlrev_b32 v{vT+4}, 15, v{vT+2}")
    A(f"v_lshl_add_u32 v{vOC}, v{vT+3}, 4, v{vT+4}")
    A(f"v_mul_u32_u24 v{vT+4}, 1280, v{vT+2}")
    A(f"v_lshl_add_u32 v{vWR}, v{vT+3}, 4, v{vT+4}")
    A(f"v_mul_u32_u24 v{vT+4}, 1280, v{vT+3}")
    A(f"v_lshl_add_u32 v{vST}, v{vT+2}, 3, v{vT+4}")


SETUP_P2 = [setup_p2_0, setup_p2_1, setup_p2_2, setup_p2_3, setup_p2_4]


def setup_phase2(A):
    for f in SETUP_P2:
        f(A)


def pattern_fill(A, n):
    for r in range(2):
        A(f"v_and_b32 v{vT}, 255, v0")
        if r:
            A(f"v_add_u32 v{vT}, 256, v{vT}")
        A(f"v_mul_u32_u24 v{vT+1}, 3277, v{vT}")
        A(f"v_lshrrev_b32 v{vT+1}, 16, v{vT+1}")
        A(f"v_mul_u32_u24 v{vT+1}, 20, v{vT+1}")
        A(f"v_cmp_eq_u32 vcc, v{vT+1}, v{vT}")
        A(f"v_mov_b32 v{vT+4}, 0")
        A(f"v_mov_b32 v{vT+5}, 0x3f803f80")
        A(f"v_cndmask_b32 v{vT+4}, v{vT+4}, v{vT+5}, vcc")
        for i in range(1, 4):
            A(f"v_mov_b32 v{vT+4+i}, v{vT+4}")
        if r == 1:
            A(f"v_cmp_gt_u32 vcc, {PAT_UNITS}, v{vT}")
        A(f"v_lshlrev_b32 v{vT}, 4, v{vT}")
        A(f"v_add_u32 v{vT}, {ONES}, v{vT}")
        if r == 1:
            A("s_and_saveexec_b64 s[%d:%d], vcc" % (sT4, sT5))
            A(f"s_cbranch_execz L_pat_done{n}")
        A(f"ds_write_b128 v{vT}, {v(vT+4,4)}")
    A.label(f"L_pat_done{n}")
    A("s_mov_b64 exec, -1")
    A.lds_wait_all()


def gen(prof=False):
    A = Asm()
    A.prof = prof
    A.PROF_V = 239
    kernel_header(A, NAME)
    A("s_cmp_ge_u32 s2, 256")
    A("s_cbranch_scc1 L_end")
    A.stamp("start")
    if EXP.get("jit"):
        A(f"s_mov_b32 s{sW}, 0")
        jitter(A)
    A("s_load_dwordx4 s[4:7], s[0:1], 0")
    A(f"s_load_dwordx2 s[{sP}:{sP+1}], s[0:1], 32")
    A(f"s_load_dwordx2 s[{sP+2}:{sP+3}], s[0:1], 72")
    A(f"s_load_dwordx4 s[{sDBG}:{sDBG+3}], s[0:1], 56")
    A(f"v_lshrrev_b32 v{vT}, 6, v0")
    A(f"v_and_b32 v{vL}, 63, v0")
    A(f"v_readfirstlane_b32 s{sW}, v{vT}")
    A(f"v_and_b32 v{vR}, 31, v{vL}")
    A(f"v_lshrrev_b32 v{vHH}, 5, v{vL}")
    A(f"v_lshlrev_b32 v{vL16}, 4, v{vL}")
    A(f"s_and_b32 s{sT0}, s2, 7")
    A(f"s_lshr_b32 s{sT1}, s2, 3")
    A(f"s_and_b32 s{sRB}, s{sT0}, 1")
    A(f"s_lshl_b32 s{sRB}, s{sRB}, 3")
    A(f"s_and_b32 s{sT2}, s{sT1}, 7")
    A(f"s_add_u32 s{sRB}, s{sRB}, s{sT2}")
    A(f"s_lshr_b32 s{sCT}, s{sT0}, 1")
    A(f"s_lshl_b32 s{sCT}, s{sCT}, 2")
    A(f"s_lshr_b32 s{sT2}, s{sT1}, 3")
    A(f"s_add_u32 s{sCT}, s{sCT}, s{sT2}")
    A(f"s_and_b32 s{sGI}, s{sW}, 3")
    A(f"s_and_b32 s{sMH}, s{sGI}, 1")
    A(f"s_lshr_b32 s{sNH}, s{sGI}, 1")
    A(f"s_mul_i32 s{sXOFF}, s{sRB}, {128*1280}")
    A(f"s_lshl_b32 s{sWOFF}, s{sCT}, 8")
    A(f"s_lshl_b32 s{sLDS1}, s{sGI}, 10")
    A(f"s_mul_hi_u32 s{sT0}, s{sCT}, 0x33333334")
    A(f"s_mul_i32 s{sT0}, s{sT0}, 5")
    A(f"s_sub_u32 s{sCT5}, s{sCT}, s{sT0}")
    A(f"v_lshrrev_b32 v{vT}, 3, v{vL}")
    A(f"s_lshl_b32 s{sT0}, s{sGI}, 3")
    A(f"v_add_u32 v{vT}, s{sT0}, v{vT}")
    A(f"v_lshrrev_b32 v{vT+1}, 1, v{vT}")
    A(f"v_xor_b32 v{vT+1}, v{vT+1}, v{vL}")
    A(f"v_and_b32 v{vT+1}, 7, v{vT+1}")
    A(f"v_lshlrev_b32 v{vT+1}, 4, v{vT+1}")
    A(f"v_mul_u32_u24 v{vT+2}, 1280, v{vT}")
    A(f"v_add_u32 v{vXD}, v{vT+2}, v{vT+1}")
    A(f"v_lshrrev_b32 v{vT}, 4, v{vL}")
    A(f"v_lshlrev_b32 v{vT+1}, 2, v{vT}")
    A(f"v_xor_b32 v{vT+1}, v{vT+1}, v{vL}")
    A(f"v_and_b32 v{vT+1}, 15, v{vT+1}")
    A(f"v_lshlrev_b32 v{vT+1}, 4, v{vT+1}")
    A(f"s_lshl_b32 s{sT0}, s{sGI}, 2")
    A(f"v_add_u32 v{vT}, s{sT0}, v{vT}")
    A(f"v_mul_u32_u24 v{vT}, 3840, v{vT}")
    A(f"v_add_u32 v{vWD}, v{vT}, v{vT+1}")
    if EXP.get("stampP"):
        A("s_memtime s[96:97]")
        A("s_memrealtime s[98:99]")
    A("s_waitcnt lgkmcnt(0)")
    if EXP.get("stampP"):
        A(f"v_writelane_b32 v{A.PROF_V}, s96, 14")
        A(f"v_writelane_b32 v{A.PROF_V}, s98, 30")
        A.stamp("", 15)
    srd(A, sX, 4, X_BYTES)
    srd(A, sWA, 6, W_BYTES)
    srd(A, sWB, sP, W_BYTES)
    srd(A, sWS, sP + 2, WS_USED)
    srd(A, sOUT, sDBG, OUT_BYTES)
    A(f"s_mov_b32 s{sDBG}, s{sDBG+2}")
    A(f"s_and_b32 s{sDBG+1}, s{sDBG+3}, 0xffff")
    A(f"s_mov_b32 s{sDBG+2}, 256")
    A(f"s_mov_b32 s{sDBG+3}, 0x20000")
    A(f"s_cmp_eq_u32 s{sCT}, 15")
    A("s_cbranch_scc1 L_nodma")
    A(f"s_cmp_lt_u32 s{sW}, 4")
    A("s_cbranch_scc1 L_nodma")
    if EXP.get("txf"):
        touch_xcd_first(A)
    for b in range(3):
        for p in range(8):
            g_dma(A, b, p)
    A(f"s_cmp_ge_u32 s{sCT}, 10")
    A("s_cbranch_scc1 L_g1n")
    A("s_branch L_g1t")
    A.label("L_nodma")
    if EXP.get("tchip", 13) in (1, 2, 3):
        touch_chip(A, {1: "xab", 2: "xa", 3: "b"}[EXP["tchip"]])
    if EXP.get("tchip") == 6:
        touch_chip_wide(A, "xa", "e")
    if EXP.get("tchip") == 7:
        touch_chip_wide(A, "ax", "e")
    A(f"s_or_b32 s{sT0}, s2, s{sW}")
    A(f"s_cmp_lg_u32 s{sT0}, 0")
    A("s_cbranch_scc1 L_nonce_done")
    A(f"s_memrealtime s[{sT4}:{sT5}]")
    A("s_waitcnt lgkmcnt(0)")
    A(f"s_or_b32 s{sT0}, s{sT4}, 1")
    A(f"v_mov_b32 v{vT}, s{sT0}")
    A(f"v_mov_b32 v{vT+1}, 0")
    A("s_mov_b64 exec, 1")
    A(f"buffer_store_dword v{vT}, v{vT+1}, s[{sDBG}:{sDBG+3}], 0 offen sc1")
    A("s_mov_b64 exec, -1")
    A.label("L_nonce_done")
    if EXP.get("cpf"):
        A(f"s_lshr_b32 s{sT1}, s2, 3")
        A(f"s_cmp_ge_u32 s{sT1}, 8")
        A("s_cbranch_scc1 L_cpf_done")
        A(f"s_cmp_lg_u32 s{sW}, {EXP['cpf'] - 1}")
        A("s_cbranch_scc1 L_cpf_done")
        A(f"s_getpc_b64 s[{sT4}:{sT5}]")
        A.label("L_cpf_pc")
        A(f"s_sub_u32 s{sT4}, s{sT4}, L_cpf_pc - {NAME}")
        A(f"s_subb_u32 s{sT5}, s{sT5}, 0")
        A(f"s_lshl_b32 s{sT1}, s{sT1}, 13")
        A(f"v_lshlrev_b32 v{vT}, 7, v{vL}")
        A(f"v_add_u32 v{vT}, s{sT1}, v{vT}")
        A(f"v_min_u32 v{vT}, L_end - {NAME}, v{vT}")
        A(f"global_load_dword v{G_P}, v{vT}, s[{sT4}:{sT5}]")
        A.label("L_cpf_done")
    if EXP.get("tchip", 13) in (10, 11, 12, 13, 14):
        m = EXP.get("tchip", 13)
        if m in (13, 14):
            touch_phase(A, 3)
        if m in (10, 14):
            touch_phase(A, 0)
        setup_phase1_reads(A)
        if m not in (10, 14):
            touch_phase(A, 0)
        for k, f in enumerate(SETUP_P2):
            if k == (1 if m != 12 else 2):
                touch_phase(A, 1)
            f(A)
        touch_phase(A, 2)
    elif EXP.get("tchip") in (5, 9):
        setup_phase1_reads(A)
        touch_chip(A, "xa" if EXP["tchip"] == 5 else "xab")
        setup_phase2(A)
    else:
        setup_phase1_reads(A)
        setup_phase2(A)
    if EXP.get("tchip") == 4:
        touch_chip(A, "xa")
    if EXP.get("tchip") == 8:
        touch_chip(A, "xab")
    A.stamp("issued")
    A(f"s_cmp_eq_u32 s{sCT}, 15")
    A("s_cbranch_scc1 L_spare")
    A(f"s_cmp_ge_u32 s{sCT}, 10")
    A("s_cbranch_scc1 L_vtile")
    if prof:
        A.stamps += ["blk0 landed", "gemm0", "epi0", "gemm1", "epi1"]
        if EXP.get("stampB"):
            A.stamps += ["B10", "B12", "B14", "B16"]
        if EXP.get("stampA"):
            A.stamps += ["B0", "B2", "B4", "B6"]
    gemm(A, True, "t")
    A("s_branch L_attn")
    A.label("L_vtile")
    gemm(A, False, "n")
    A.label("L_attn")
    A.vm_q, A.lds_q = [], []
    jitter(A)
    A.stamp("attn start")
    if EXP.get("prio") == 1:
        A(f"s_cmp_lt_u32 s{sW}, 4")
        A("s_cbranch_scc1 L_prio_done")
        A("s_setprio 1")
        A.label("L_prio_done")
    rd_k01(A, 0)
    rd_k2(A, 0)
    dma_chunk(A, 3)
    A(f"v_cmp_gt_u32 vcc, 20, v{vR}")
    A(f"v_mov_b32 v{vT}, 0")
    A(f"v_mov_b32 v{vT+1}, 5120")
    A(f"v_cndmask_b32 v{vT}, v{vT}, v{vT+1}, vcc")
    for sl in range(NSLOT):
        A(f"v_add_u32 v{vV2[sl]}, v{vV+sl}, v{vT}")
    b_consts(A)
    A.lds_wait_all()
    mf16(A, SA, K01, Q01, "0")
    mf8(A, SA, K2, Q2, v(SA, 16))
    A("s_nop 7")
    A("s_nop 5")
    max16(A, vT, SA, True)
    cross_half_max(A, vT, vT + 1)
    for i in range(16):
        A(f"v_sub_f32 v{NEGM+i}, 0, v{vT}")
    A("s_nop 1")
    mf16(A, SA, K01, Q01, v(NEGM, 16))
    mf8(A, SA, K2, Q2, v(SA, 16))
    rd_k01(A, 1)
    rd_k2(A, 1)
    rd_v(A, 0, 0)
    A("s_nop 7")
    A("s_nop 3")
    NT = 64
    sched = {}
    def at(t, half, fn):
        sched.setdefault((t, half), []).append(fn)
    fb_items = [(vFL, vF3, F1B, None), (vFL2, vF4, F1A, None)]
    pos = {}
    def issue(name, items):
        def f(A):
            pos[name] = poll_issue(A, items, name)
        return f
    at(13, 0, issue("f1b", fb_items))
    pre_barrier = {22: lambda A: poll_check(A, fb_items, pos["f1b"], "f1b"),
                   54: lambda A: poll_check(A, fo_items, pos["fb"], "fb")}
    at(22, 1, lambda A: A.vm(f"buffer_load_dword v{vG}, v{vGA}, {WS}, s{sGOFF} offen sc1", "g"))
    for i, f in enumerate(b_load_items()):
        at(23 + i // 2, i % 2, f)
    at(31, 0, b_unit)
    at(38, 1, lambda A: publish(A, sPUB, FLAGB, "stb"))
    fo_items = [(vFL, vFA, FLAGB, sFLG)]
    at(48, 0, issue("fb", fo_items))
    for k in range(10):
        at(55 + k // 2, k % 2, lambda A, k=k: oc_load(A, 1, k))
    for st in range(3):
        for p in range(3):
            i = 3 * st + p
            at(42 + i // 2, i % 2, lambda A, st=st, p=p: dma_w_piece(A, 1, st, p))
    for st in range(3, 5):
        for p in range(3):
            i = 3 * (st - 3) + p
            at(57 + i // 2, 1 - i % 2, lambda A, st=st, p=p: dma_w_piece(A, 1, st, p))
    for c in range(2, NCH - 2):
        t0 = 32 if c == 4 else TPC * c - 1
        for p in range(3):
            at(t0 + (p + 1) // 2, (p + 1) % 2, lambda A, c=c, p=p: dma_chunk_piece(A, c + 2, p))
    for t in range(NT):
        cur = SA if t % 2 == 0 else SB
        nxt = SB if t % 2 == 0 else SA
        if (t == 32 and not (EXP.get("stampB") or EXP.get("stampA"))) or (EXP.get("stampB") and t in (21, 24)):
            A.stamp("t%d" % t)
        if t % TPC == TPC - 2 and t + 2 < NT:
            c = (t + 2) // TPC
            if c == 1:
                A.vm_wait_all()
            if c == 3:
                A.vm_wait(("c", 4))
            A.vm_wait(("c", c))
            if t in pre_barrier:
                pre_barrier[t](A)
            A("s_barrier")
            if c == 1:
                with Wave0(A, "pubb"):
                    publish(A, sF1, F1B)
        if EXP.get("prio") == 2 and t == 55:
            A(f"s_cmp_lt_u32 s{sW}, 4")
            A("s_cbranch_scc1 L_prio_done")
            A("s_setprio 1")
            A.label("L_prio_done")
        if EXP.get("prio") == 3 and t % 8 == 7:
            A(f"s_lshr_b32 s{sT0}, s{sW}, 2")
            A(f"s_cmp_eq_u32 s{sT0}, {(t // 8) % 2}")
            A(f"s_cbranch_scc1 L_prio_a{t}")
            A("s_setprio 0")
            A(f"s_branch L_prio_b{t}")
            A.label(f"L_prio_a{t}")
            A("s_setprio 1")
            A.label(f"L_prio_b{t}")
        if EXP.get("xbar") and t == EXP["xbar"]:
            A("s_barrier")
        if t == 63:
            A.vm_wait(("w", 1, 4))
        for f in sched.get((t, 0), []):
            f(A)
        if t + 1 < NT:
            A.lds_wait(("k01", t + 1))
            mf16(A, nxt, K01, Q01, "0" if EXP.get("m0") else v(NEGM, 16))
            if t + 2 < NT:
                rd_k01(A, t + 2)
        exps(A, cur, 0)
        if t > 0:
            A.lds_wait(("v", t - 1, 1))
            mf16(A, O, V1, P + 4, v(O, 16))
        rd_v(A, t, 1)
        exps(A, cur, 1)
        for f in sched.get((t, 1), []):
            f(A)
        if t + 1 < NT:
            A.lds_wait(("k2", t + 1))
            mf8(A, nxt, K2, Q2, v(nxt, 16))
            if t + 2 < NT:
                rd_k2(A, t + 2)
        exps(A, cur, 2)
        A.lds_wait(("v", t, 0))
        mf16(A, O, V0, P, "0" if t == 0 else v(O, 16))
        if t + 1 < NT:
            rd_v(A, t + 1, 0)
        exps(A, cur, 3)
    A.lds_wait(("v", NT - 1, 1))
    A("s_nop 1")
    mf16(A, O, V1, P + 4, v(O, 16))
    A(f"v_add_u32 v{vT+5}, 0x10000, v{vWR}")
    A(f"v_add_u32 v{vT+6}, 0x20000, v{vWR}")
    A(f"v_mov_b32 v{vT+3}, {hex(f32bits(BIG))}")
    A("s_nop 7")
    A("s_nop 3")
    A.stamp("loop end")
    row_sum(A, O)
    A(f"v_mul_f32 v{vT+2}, 0, v{O}")
    for i in range(1, 12):
        A(f"v_fma_f32 v{vT+2}, v{O+i}, 0, v{vT+2}")
    A(f"v_add_f32 v{vT+2}, v{vT+2}, v{vT+1}")
    A(f"v_cmp_lt_f32 vcc, v{vT+2}, v{vT+3}")
    A("s_nop 4")
    A("s_cmp_eq_u64 vcc, exec")
    A("s_cbranch_scc0 L_fallback")
    A.label("L_finish")
    jitter(A, True)
    A.vm_wait("g")
    finish_tile(A, O, vG, False, vOST, sQ0, 0, "sta")
    A(f"v_add_u32 v{vT+5}, 0x10000, v{vWR}")
    A(f"v_add_u32 v{vT+6}, 0x20000, v{vWR}")
    A("s_barrier")
    A.stamp("ring free") if not (EXP.get("stampB") or EXP.get("stampA")) else None
    wa = [(st, p) for st in range(2) for p in range(3)]

    def hook_b(k, kg):
        pk = EXP.get("pubk", 2)
        if k == pk:
            publish(A, sPUB, FLAGA, "sta")
        if pk <= k < pk + 6:
            st, p = wa[k - pk]
            dma_w_piece(A, 0, st, p)
    outproj(A, 1, True, hook_b)
    A.stamp("b part") if not (EXP.get("stampB") or EXP.get("stampA")) else None
    A("s_barrier")
    for st in range(2, 5):
        for p in range(3):
            dma_w_piece(A, 0, st, p)
    if EXP.get("notight"):
        fa_items = [(vFL, vFA, FLAGA, sFLG)]
        pfa = poll_issue(A, fa_items, "fa")
        poll_check(A, fa_items, pfa, "fa")
    else:
        poll_tight(A, FLAGA, sFLG, vFA, "fa")
    A.vm_wait(("w", 0, 4))
    A("s_barrier")
    A.stamp("flags a") if not (EXP.get("stampB") or EXP.get("stampA")) else None
    for k in range(10):
        oc_load(A, 0, k)
    outproj(A, 0, False)
    A.stamp("a part") if not (EXP.get("stampB") or EXP.get("stampA")) else None
    A(f"s_and_b32 s{sT0}, s{sW}, 3")
    A(f"s_mul_i32 s{sT0}, s{sT0}, 5120")
    A(f"v_add_u32 v{vT}, s{sT0}, v{vL16}")
    A(f"s_cmp_eq_u32 s{sKG}, 0")
    A("s_cbranch_scc1 L_red_a")

    def finish_out(tiles):
        A.lds_q = []
        for nt in tiles:
            A.lds(f"ds_read_b128 {v(WF+4*nt,4)}, v{vT} offset:{nt*1024}", ("r", nt))
        for nt in tiles:
            A.lds_wait(("r", nt))
            for i in range(4):
                A(f"v_add_f32 v{ACC+4*nt+i}, v{ACC+4*nt+i}, v{WF+4*nt+i}")
            A(f"v_cvt_pk_bf16_f32 v{ACC+4*nt}, v{ACC+4*nt}, v{ACC+4*nt+1}")
            A(f"v_cvt_pk_bf16_f32 v{ACC+4*nt+1}, v{ACC+4*nt+2}, v{ACC+4*nt+3}")
            A.vm(f"buffer_store_dwordx2 {v(ACC+4*nt,2)}, v{vST}, s[{sOUT}:{sOUT+3}], s{sOUTO} offen offset:{nt*32}{EXP.get('outst','')}", "st")

    A("s_nop 5")
    for nt in range(3):
        A(f"ds_write_b128 v{vT}, {v(ACC+4*nt,4)} offset:{nt*1024}")
    A("s_waitcnt lgkmcnt(0)")
    A("s_barrier")
    finish_out((3, 4))
    if prof:
        A.stamp("", len(A.stamps))
        A.stamp_flush(0, sWS, PROF, vT + 2)
    A("s_endpgm")
    A.label("L_red_a")
    A("s_nop 5")
    for nt in (3, 4):
        A(f"ds_write_b128 v{vT}, {v(ACC+4*nt,4)} offset:{nt*1024}")
    A("s_waitcnt lgkmcnt(0)")
    A("s_barrier")
    finish_out((0, 1, 2))
    A.stamp("end")
    if prof and EXP.get("dbg"):
        with Wave0(A, "dbgout"):
            A(f"v_subrev_u32 v{vT}, s{sNONCE}, v{A.PROF_V}")
            A(f"v_subrev_u32 v{vT+1}, 16, v{vL}")
            A(f"v_lshlrev_b32 v{vT+1}, 2, v{vT+1}")
            if EXP["dbg"] == 2:
                A(f"v_sub_u32 v{vT}, 0x100000, v{vT}")
            A("s_mov_b32 exec_lo, 0xfffe0000")
            A("s_mov_b32 exec_hi, 0")
            A(f"buffer_atomic_umax v{vT}, v{vT+1}, s[{sDBG}:{sDBG+3}], 0 offen")
            A("s_mov_b64 exec, -1")
    A.stamp_flush(0, sWS, PROF, vT)
    A("s_endpgm")
    fallback(A)
    spare(A)
    A.label("L_end")
    A("s_endpgm")
    kernel_footer(A, NAME, NV, 100 if EXP.get("jit") else 96)
    gen.stamps = getattr(A, "stamps", [])
    if prof and EXP.get("stampP"):
        assert len(gen.stamps) == 14, len(gen.stamps)
        gen.stamps = gen.stamps + ["pre-kernarg", "kernarg"]
    return A.text()

if __name__ == "__main__":
    print(gen())
```

```python
from asmlib import *
from layout2 import *

NAME = "gated_mix__softmax_full_mha__sliding_local_dilated__prompt_kernel"
EXP = {}
STAGE, NST, NB = 32768, 5, 20
SLOT = CHB
NSLOT = 4
TPC = CH // 32
NCH = S // CH
ONES = 4 * SLOT
PAT_UNITS = 336
assert ONES + PAT_UNITS * 16 <= 98304
WBASE = ONES + 672 * 16
WSTG = 20480
LDS_BYTES = 163840
WB_OFF = [WBASE, WBASE + WSTG, WBASE + 2 * WSTG, 0, SLOT]
WA_OFF = [2 * SLOT, 3 * SLOT, WBASE, WBASE + WSTG, WBASE + 2 * WSTG]
assert WBASE + 3 * WSTG <= LDS_BYTES
BIG = 2.0 ** 64
SPIN_MAX = 1 << 16
sWS, sOUT = 8, 12
sW, sNONCE = 16, 17
sH, sQB, sPA, sLDSW, sLDSW2, sWSRC, sOCB, sFLG, sPUB, sOUTO, sKG, sQ0, sBT, sQT = range(18, 32)
sT0, sT1, sT2, sT3, sT4, sT5 = range(32, 38)
sM = 38
sLO20 = 40
sCNT = 42
sP2L = 43
sDBG = 44
sBA = 48
sVH = 57
sX, sWA, sWB = 60, 64, 68
sRB, sCT, sMH, sNH, sXOFF, sWOFF, sLDS1, sCT5, sTP, sB16, sQS, sGI = range(72, 84)
sQOFF, sQOFF2, sGOFF, sF1 = 88, 89, 90, 91
sDEF, sDEFON = 60, 84
vDEF = [241, 234]
sP = 92
vL, vR, vHH = 1, 2, 3
vK01, vK2, vV = 4, 8, 12
vL16, vG, vGB, vFL = 16, 17, 18, 19
vT = 20
SA, SB, NEGM, O, P = 28, 44, 60, 76, 92
Q01, Q2, K01, K2, V0, V1 = 100, 104, 108, 112, 116, 120
BQ01, BQ2, BK01, BK2, BKP01, BKP2 = 124, 128, 132, 136, 140, 144
BV0, BV1, BVP, BS0, BS1, BO, BP = 148, 152, 156, 160, 176, 192, 208
vBA = 220
vW0, vW1, vW2, vOC, vWR, vST, vFA = 225, 226, 227, 228, 229, 230, 231
vF1, vF2, vF3, vF4 = 232, 233, 234, 241
vV2 = [232, 233, 236, 237]
vFL2 = 235
vQA, vQA2, vGA = 236, 237, 238
vOST = 252
vXD, vWD = 242, 243
vCB, vCS = 244, 247
vCT = 250
NV = 256
OCB, OCA, ACC, WF = 124, 164, 204, 28
G_ACC = 124
G_F = 28
G_P = 188
vA16 = 76
vXR, vWR1 = 106, 118
WS = f"s[{sWS}:{sWS+3}]"


def st1():
    return " sc1"


def publish(A, soff_reg, base, tag=None):
    if tag is not None:
        A.vm_wait(tag)
    A(f"v_mov_b32 v{vT}, s{sNONCE}")
    A(f"v_mov_b32 v{vT+1}, 0")
    A(f"s_add_u32 s{sT0}, s{soff_reg}, {base}")
    A("s_mov_b64 exec, 1")
    A.vm(f"buffer_store_dword v{vT}, v{vT+1}, {WS}, s{sT0} offen sc1", "pub")
    A("s_mov_b64 exec, -1")


_jit_n = [0]
def jitter(A, per_wave=False):
    if not EXP.get("jit"):
        return
    _jit_n[0] += 1
    k = _jit_n[0]
    A(f"s_mul_i32 s96, s2, {(2654435761 * (k + EXP['jit'])) & 0x7fffffff | 1}")
    if per_wave:
        A(f"s_mul_i32 s97, s{sW}, {(40503 * (k + 7)) | 1}")
        A("s_add_u32 s96, s96, s97")
    A("s_lshr_b32 s96, s96, 20")
    A("s_and_b32 s96, s96, 15")
    A("s_cmp_lt_u32 s96, 12")
    A(f"s_cbranch_scc1 L_jit{k}_done")
    A("s_and_b32 s96, s96, 3")
    A("s_add_u32 s96, s96, 1")
    A.label(f"L_jit{k}")
    A("s_sleep 32")
    A("s_sub_u32 s96, s96, 1")
    A("s_cmp_lg_u32 s96, 0")
    A(f"s_cbranch_scc1 L_jit{k}")
    A.label(f"L_jit{k}_done")


class Wave0:
    def __init__(self, A, name):
        self.A, self.name = A, name
    def __enter__(self):
        A = self.A
        A(f"s_cmp_lg_u32 s{sW}, 0")
        A(f"s_cbranch_scc1 L_w0_{self.name}")
        self.saved = (list(A.vm_q), dict(A.vm_counts or {}))
    def __exit__(self, *a):
        A = self.A
        A.vm_q, A.vm_counts = self.saved[0], (self.saved[1] or None)
        A.label(f"L_w0_{self.name}")


def _poll_loads(A, items):
    for (vdst, voff, base, soff_reg) in items:
        if soff_reg is None:
            A(f"s_mov_b32 s{sT0}, {base}")
        else:
            A(f"s_add_u32 s{sT0}, s{soff_reg}, {base}")
        A(f"buffer_load_dword v{vdst}, v{voff}, {WS}, s{sT0} offen sc1")


def poll_issue(A, items, name):
    with Wave0(A, name + "_i"):
        _poll_loads(A, items)
    return A.vm_pos("L")


def poll_check(A, items, pos, name, inv=False, drain=False):
    def compare():
        for i, (vdst, _, _, _) in enumerate(items):
            if i == 0:
                A(f"v_cmp_eq_u32 vcc, s{sNONCE}, v{vdst}")
            else:
                A(f"v_cmp_eq_u32 s[{sT4}:{sT5}], s{sNONCE}, v{vdst}")
                A("s_nop 3")
                A(f"s_and_b64 vcc, vcc, s[{sT4}:{sT5}]")
        A("s_nop 3")
        A("s_cmp_eq_u64 vcc, exec")
    with Wave0(A, name + "_c"):
        A(f"s_waitcnt vmcnt({A.vm_pos('L') - pos})")
        compare()
        A(f"s_cbranch_scc1 L_{name}_ok")
        A(f"s_mov_b32 s{sCNT}, 0")
        A.label(f"L_{name}_spin")
        A("s_sleep 2")
        _poll_loads(A, items)
        A(f"s_add_u32 s{sCNT}, s{sCNT}, 1")
        A(f"s_cmp_ge_u32 s{sCNT}, {SPIN_MAX}")
        A(f"s_cbranch_scc1 L_{name}_ok")
        A("s_waitcnt vmcnt(0)")
        compare()
        A(f"s_cbranch_scc0 L_{name}_spin")
        A.label(f"L_{name}_ok")
        if inv:
            A("buffer_inv sc1")
        if drain:
            A("s_waitcnt vmcnt(0)")


def poll_tight(A, base, soff_reg, voff, name):
    regs = [vFL, vFL2, vT + 2, vT + 3]
    with Wave0(A, name):
        A(f"s_add_u32 s{sT1}, s{soff_reg}, {base}")
        for r in regs:
            A(f"buffer_load_dword v{r}, v{voff}, {WS}, s{sT1} offen sc1")
            A("s_sleep 1")
        A(f"s_mov_b32 s{sCNT}, 0")
        A.label(f"L_{name}_spin")
        for r in regs:
            A("s_waitcnt vmcnt(3)")
            A(f"v_cmp_eq_u32 vcc, s{sNONCE}, v{r}")
            A("s_nop 3")
            A("s_cmp_eq_u64 vcc, exec")
            A(f"s_cbranch_scc1 L_{name}_ok")
            A(f"buffer_load_dword v{r}, v{voff}, {WS}, s{sT1} offen sc1")
        A(f"s_add_u32 s{sCNT}, s{sCNT}, 1")
        A(f"s_cmp_lt_u32 s{sCNT}, {SPIN_MAX}")
        A(f"s_cbranch_scc1 L_{name}_spin")
        A.label(f"L_{name}_ok")


def nonce_issue(A):
    A(f"v_mov_b32 v{vT}, 0")
    A.vm(f"buffer_load_dword v{vFL}, v{vT}, s[{sDBG}:{sDBG+3}], 0 offen sc1", "nonce")


def nonce_check(A, name):
    A.vm_wait("nonce")
    A("s_nop 0")
    A(f"v_readfirstlane_b32 s{sNONCE}, v{vFL}")
    nonce_verify(A, name)


def nonce_verify(A, name):
    A("s_nop 3")
    A(f"s_cmp_lg_u32 s{sNONCE}, 0")
    A(f"s_cbranch_scc1 L_{name}_ok")
    A(f"s_mov_b32 s{sCNT}, 0")
    A.label(f"L_{name}_spin")
    A("s_sleep 1")
    A(f"v_mov_b32 v{vT}, 0")
    A(f"buffer_load_dword v{vFL}, v{vT}, s[{sDBG}:{sDBG+3}], 0 offen sc1")
    A(f"s_add_u32 s{sCNT}, s{sCNT}, 1")
    A(f"s_cmp_ge_u32 s{sCNT}, {SPIN_MAX}")
    A(f"s_cbranch_scc1 L_{name}_ok")
    A("s_waitcnt vmcnt(0)")
    A(f"v_readfirstlane_b32 s{sNONCE}, v{vFL}")
    A("s_nop 3")
    A(f"s_cmp_eq_u32 s{sNONCE}, 0")
    A(f"s_cbranch_scc1 L_{name}_spin")
    A.label(f"L_{name}_ok")


def g_dma(A, b, p):
    kb, st, t = b % 10, b % NST, p & 3
    A(f"s_add_u32 m0, s{sLDS1}, {st*STAGE + (p >> 2)*16384 + 4096*t}")
    if p < 4:
        A(f"s_add_u32 s{sT0}, s{sXOFF}, {kb*128 + t*40960}")
        A.vm(f"buffer_load_dwordx4 v{vXD}, s[{sX}:{sX+3}], s{sT0} offen lds", ("d", b))
    else:
        sw = sWA if b < 10 else sWB
        A(f"s_add_u32 s{sT0}, s{sWOFF}, {(kb*64 + 16*t) * 3840}")
        A.vm(f"buffer_load_dwordx4 v{vWD}, s[{sw}:{sw+3}], s{sT0} offen lds", ("d", b))


def g_acc(mt, nt):
    return G_ACC + 32 * mt + 16 * nt


def g_frag(s_, i):
    return G_F + 16 * (s_ % 3) + 4 * i


def g_read_list(s_):
    b, ks = divmod(s_, 4)
    st = b % NST
    base, off = st >> 1, (st & 1) * STAGE
    out = []
    for mt in range(2):
        out.append(f"ds_read_b128 {v(g_frag(s_, mt),4)}, v{vXR + 3*ks + base} offset:{off + mt*4096}")
    for nt in range(2):
        for q in range(2):
            out.append(f"ds_read_b64_tr_b16 {v(g_frag(s_, 2+nt)+2*q,2)}, v{vWR1 + 3*nt + base} offset:{off + 16384 + ks*4096 + q*1024}")
    return out


def g_reads(A, s_):
    for ins in g_read_list(s_):
        A.lds(ins, ("f", s_))


def g_step(A, s_, last, tr, extra=None):
    b, ks = divmod(s_, 4)
    A.lds_wait(("f", s_))
    nxt = g_read_list(s_ + 2) if s_ + 2 <= last else []
    for i, (mt, nt) in enumerate(((0, 0), (0, 1), (1, 0), (1, 1))):
        d = g_acc(mt, nt)
        c = "0" if (s_ % 40 == 0) else v(d, 16)
        x, w = g_frag(s_, mt), g_frag(s_, 2 + nt)
        a, bb = (w, x) if tr else (x, w)
        A(f"v_mfma_f32_32x32x16_bf16 {v(d,16)}, {v(a,4)}, {v(bb,4)}, {c}")
        for ins in nxt[2*i:2*i+2]:
            A.lds(ins, ("f", s_ + 2))
        if extra and i == 3:
            extra()


def epi_prepare(A, isb, tr, n):
    A(f"s_lshl_b32 s{sTP}, s{sRB}, 7")
    A(f"s_lshl_b32 s{sT0}, s{sMH}, 6")
    A(f"s_add_u32 s{sTP}, s{sTP}, s{sT0}")
    if isb:
        A(f"s_lshr_b32 s{sTP}, s{sTP}, 1")
    if tr:
        A(f"s_cmp_lt_u32 s{sCT}, 5")
        A(f"s_mov_b32 s{sT1}, {QB if isb else QA}")
        A(f"s_cselect_b32 s{sB16}, s{sT1}, {KB if isb else KA}")
        A(f"s_mov_b32 s{sT1}, {hex(f32bits(QSCALE))}")
        A(f"s_cselect_b32 s{sQS}, s{sT1}, 1.0")
        A(f"s_lshl_b32 s{sT0}, s{sCT5}, 1")
        A(f"s_add_u32 s{sT0}, s{sT0}, s{sNH}")
        A(f"s_lshl_b32 s{sT0}, s{sT0}, 18")
        A(f"s_add_u32 s{sB16}, s{sB16}, s{sT0}")
        A(f"s_lshl_b32 s{sT0}, s{sTP}, 4")
        A(f"s_add_u32 s{sB16}, s{sB16}, s{sT0}")
        A(f"v_lshlrev_b32 v{vA16}, 15, v{vHH}")
        if isb:
            A(f"v_and_b32 v{vT}, 1, v{vR}")
            A(f"v_lshl_add_u32 v{vA16}, v{vT}, 14, v{vA16}")
            A(f"v_lshrrev_b32 v{vT}, 1, v{vR}")
            A(f"v_lshl_add_u32 v{vA16}, v{vT}, 4, v{vA16}")
        else:
            A(f"v_lshl_add_u32 v{vA16}, v{vR}, 4, v{vA16}")
        A(f"v_mov_b32 v{vT+2}, s{sQS}")
        A(f"v_mov_b32 v{vT+3}, s{sQS}")
    else:
        A(f"v_mul_u32_u24 v{vT+1}, 320, v{vHH}")
        A(f"s_lshl_b32 s{sT0}, s{sCT5}, 7")
        A(f"s_lshl_b32 s{sT1}, s{sNH}, 6")
        A(f"s_add_u32 s{sT0}, s{sT0}, s{sT1}")
        for nt in range(2):
            A(f"v_add_u32 v{vT+2}, s{sT0}, v{vR}")
            if nt:
                A(f"v_add_u32 v{vT+2}, 32, v{vT+2}")
            A(f"v_mul_u32_u24 v{vT+3}, 3277, v{vT+2}")
            A(f"v_lshrrev_b32 v{vT+3}, 16, v{vT+3}")
            A(f"v_mul_u32_u24 v{vT+4}, 20, v{vT+3}")
            A(f"v_sub_u32 v{vT+4}, v{vT+2}, v{vT+4}")
            A(f"v_mul_u32_u24 v{vT+3}, {VH}, v{vT+3}")
            A(f"v_lshl_add_u32 v{vT+3}, v{vT+4}, 4, v{vT+3}")
            A(f"v_add_u32 v{vA16+nt}, v{vT+3}, v{vT+1}")
        A(f"s_lshr_b32 s{sT0}, s{sTP}, 4")
        A(f"s_mul_i32 s{sT0}, s{sT0}, 640")
        A(f"s_add_u32 s{sB16}, s{sT0}, {VB if isb else VA}")


def epi_group(A, isb, tr, g, tag, defer=False):
    reg = G_P + 4 * g
    mt, nt, u = g >> 2, (g >> 1) & 1, g & 1
    src = g_acc(mt, nt)
    if tr:
        for jj in range(2):
            a = src + 4 * (2 * u + jj)
            A(f"v_pk_mul_f32 {v(a,2)}, {v(a,2)}, v[{vT+2}:{vT+3}]")
            A(f"v_pk_mul_f32 {v(a+2,2)}, {v(a+2,2)}, v[{vT+2}:{vT+3}]")
            A(f"v_cvt_pk_bf16_f32 v{reg+2*jj}, v{a}, v{a+1}")
            A(f"v_cvt_pk_bf16_f32 v{reg+2*jj+1}, v{a+2}, v{a+3}")
        A(f"s_add_u32 s{sT1}, s{sB16}, {(4*nt + 2*u)*PLANE + mt*(256 if isb else 512)}")
        A("s_nop 0")
        A(f"v_permlane32_swap_b32 v{reg}, v{reg+2}")
        A(f"v_permlane32_swap_b32 v{reg+1}, v{reg+3}")
        if defer:
            A(f"s_mov_b32 s{sDEF+g}, s{sT1}")
        else:
            A.vm(f"buffer_store_dwordx4 {v(reg,4)}, v{vA16}, {WS}, s{sT1} offen sc1", tag)
    else:
        if isb:
            for j in range(4):
                A(f"v_cvt_pk_bf16_f32 v{reg+j}, v{src+4*j+u}, v{src+4*j+u+2}")
            A(f"s_add_u32 s{sT1}, s{sB16}, {mt*640 + u*64*640}")
        else:
            for p in range(4):
                A(f"v_cvt_pk_bf16_f32 v{reg+p}, v{src+8*u+2*p}, v{src+8*u+2*p+1}")
            A(f"s_add_u32 s{sT1}, s{sB16}, {(2*mt + u)*640}")
        if defer:
            A(f"s_mov_b32 s{sDEF+g}, s{sT1}")
        else:
            A.vm(f"buffer_store_dwordx4 {v(reg,4)}, v{vA16+nt}, {WS}, s{sT1} offen sc1", tag)


def acquire_items():
    return [(vFL, vF1, F1A, None), (vFL2, vF2, F1A, None)]


def p2_load_items():
    def q01(A):
        A.vm(f"buffer_load_dwordx4 {v(Q01,4)}, v{vQA}, {WS}, s{sQOFF} offen sc1", "q")
    def q2(A):
        A(f"v_mov_b32 v{Q2}, 0")
        A(f"v_mov_b32 v{Q2+1}, 0")
        A("s_mov_b32 exec_hi, 0")
        A.vm(f"buffer_load_dwordx2 {v(Q2,2)}, v{vQA2}, {WS}, s{sQOFF2} offen sc1", "q")
        A("s_mov_b32 exec_hi, -1")
    first = [lambda A, p=p: dma_chunk_piece(A, 0, p) for p in range(3)] + [q01, q2]
    rest = [lambda A, c=c, p=p: dma_chunk_piece(A, c, p) for c in (1, 2) for p in range(3)]
    return first, rest


def gemm(A, tr, n):
    A.vm_q, A.lds_q = [], []
    if EXP.get("twa") == 99:
        touch_a(A, n)
    if EXP.get("twb") == 99:
        touch_wb(A, n)
    if EXP.get("tcb") == 99:
        touch_chip_b(A, n)
    if EXP.get("tlb"):
        epi_prepare(A, False, tr, n)
        A(f"buffer_store_dword v{vL}, v{vA16}, {WS}, s{sB16} offen sc1")
    A("s_barrier")
    A.stamp("blk0 landed", 2)
    g_reads(A, 0)
    g_reads(A, 1)
    for s_ in range(40):
        b, ks = divmod(s_, 4)
        if ks == 2:
            A("s_barrier")
            if EXP.get("stampA") and b in (0, 2, 4, 6):
                A.stamp("", {0: 7, 2: 8, 4: 9, 6: 10}[b])
        if EXP.get("twa") is not None and s_ == EXP["twa"]:
            touch_a(A, n)
        if s_ == EXP.get("twb", 77):
            touch_wb(A, n)
        if EXP.get("tcb") is not None and s_ == EXP["tcb"]:
            touch_chip_b(A, n)
        if EXP.get("tcw") is not None and s_ == EXP["tcw"]:
            touch_chip_wide(A, "b", n)
        if s_ == 22:
            nonce_issue(A)
        if s_ == 30:
            nonce_check(A, f"nonce0{n}")
        g_step(A, s_, 39, tr)
    A.stamp("gemm0", 3)
    jitter(A, True)
    slices = [int(ch) for ch in str(EXP.get("sl", "8"))]
    assert sum(slices) == 8
    PUB, POLL, CHK = EXP.get("pub", 12), EXP.get("poll", 15), 18
    for p in range(8):
        g_dma(A, 13, p)
    epi_prepare(A, False, tr, n)
    A("s_nop 7")
    A("s_nop 3")
    done = 0
    for b in range(10, 19):
        k = slices[b - 10] if b - 10 < len(slices) else 0
        for g in range(done, done + k):
            epi_group(A, False, tr, g, "sa")
        if k and done + k == 8:
            A.stamp("epi0", 4)
        done += k
        if b == CHK:
            poll_check(A, acquire_items(), pos_f1, f"f1{n}")
        if b + 1 >= 13:
            A.vm_wait(("d", b + 1))
        A("s_barrier")
        if EXP.get("stampB") and b in (10, 12, 14, 16):
            A.stamp("", {10: 7, 12: 8, 14: 9, 16: 10}[b])
        if b == PUB - 1:
            A.vm_wait("sa")
        if b + 4 < NB:
            for p in range(8):
                g_dma(A, b + 4, p)
        if b == PUB:
            with Wave0(A, f"puba{n}"):
                publish(A, sF1, F1A)
        if b == POLL:
            pos_f1 = poll_issue(A, acquire_items(), f"f1{n}")
    first, rest = p2_load_items()
    for f in first + rest:
        f(A)
    A.stamp("gemm1", 5)
    pattern_fill(A, n)
    A.stamp("epi1", 6)
    A.vm_wait("q", ("c", 0))
    A("s_barrier")
    A("s_branch L_attn")
    A.label(f"L_g1{n}")
    A.vm_set([(("d", b), "D") for b in range(3) for _ in range(8)])
    A.lds_q = []
    A.vm_wait(("d", 0))
    A("s_barrier")
    A.stamp("issued", 1)
    A.stamp("blk0 landed", 2)
    for p in range(8):
        g_dma(A, 3, p)
    for b in range(10):
        if b == 0:
            setup_phase1_reads(A)
        if 1 <= b <= 5:
            SETUP_P2[b - 1](A)
        if b == 6 and EXP.get("tlb"):
            if EXP.get("tlb"):
                epi_prepare(A, True, tr, n)
                A(f"buffer_store_dword v{vL}, v{vA16}, {WS}, s{sB16} offen sc1")
                A(f"s_lshl_b32 s{sT0}, s{sQ0}, 4")
                A(f"s_add_u32 s{sT0}, s{sT0}, {OC}")
                A(f"buffer_store_dword v{vL}, v{vOST}, {WS}, s{sT0} offen sc1")
                A(f"s_lshl_b32 s{sT0}, s{sBT}, 4")
                A(f"s_add_u32 s{sT0}, s{sT0}, {OC + 80*32768}")
                A(f"buffer_store_dword v{vL}, v{vOST+1}, {WS}, s{sT0} offen sc1")
        A.vm_wait(("d", b + 1))
        A("s_barrier")
        if EXP.get("stampA") and b in (0, 2, 4, 6):
            A.stamp("", {0: 7, 2: 8, 4: 9, 6: 10}[b])
        if b + 4 <= 12:
            for p in range(8):
                g_dma(A, b + 4, p)
    A.stamp("gemm0", 3)
    A.stamp("epi0", 4)
    if EXP.get("pprio", 1):
        A("s_setprio 1")
    g_reads(A, 40)
    g_reads(A, 41)
    pend = []
    for s_ in range(40, 80):
        b, ks = divmod(s_, 4)
        if ks == 2 and b + 1 < NB:
            if b + 1 <= 12:
                A.vm_wait(("d", b + 1))
            A("s_barrier")
            if EXP.get("stampB") and b in (10, 12, 14, 16):
                A.stamp("", {10: 7, 12: 8, 14: 9, 16: 10}[b])
            if b == 18:
                first, rest = p2_load_items()
                pend = first + [nonce_issue]
        def extra():
            for _ in range(2):
                if pend:
                    pend.pop(0)(A)
        g_step(A, s_, 79, tr, extra)
    assert not pend
    if EXP.get("pprio", 1):
        A("s_setprio 0")
    A.stamp("gemm1", 5)
    jitter(A, True)
    A.vm_wait("q", "nonce", ("c", 0))
    A("s_nop 0")
    A(f"v_readfirstlane_b32 s{sNONCE}, v{vFL}")
    A("s_barrier")
    for f in rest:
        f(A)
    epi_prepare(A, True, tr, n)
    A("s_nop 7")
    A("s_nop 3")
    defer = bool(EXP.get("defer", 0))
    for g in range(8):
        epi_group(A, True, tr, g, "sb", defer)
    if defer:
        A(f"v_mov_b32 v{vDEF[0]}, v{vA16}")
        A(f"v_mov_b32 v{vDEF[1]}, v{vA16 + (0 if tr else 1)}")
        A(f"s_mov_b32 s{sDEFON}, 1")
    A.stamp("epi1", 6)
    nonce_verify(A, f"nonce1{n}")


def spare(A):
    sWO, sG = sWA, sWB
    A.label("L_spare")
    A.vm_q, A.lds_q = [], []
    jitter(A)
    jitter(A)
    if EXP.get("spb", 0):
        A(f"s_mul_i32 s{sT0}, s{sRB}, 153600")
        A(f"s_lshl_b32 s{sT1}, s{sW}, 10")
        A(f"s_add_u32 s{sT0}, s{sT0}, s{sT1}")
        A(f"s_add_u32 s{sT2}, s{sRB}, 1")
        A(f"s_mul_i32 s{sT2}, s{sT2}, 153600")
        for i in range(19):
            A(f"s_add_u32 s{sT1}, s{sT0}, {8192*i}")
            if i == 18:
                A(f"s_sub_u32 s{sT2}, s{sT2}, 1024")
                A(f"s_min_u32 s{sT1}, s{sT1}, s{sT2}")
            A(f"buffer_load_dwordx4 {v(124 + 4*i, 4)}, v{vL16}, s[{sWB}:{sWB+3}], s{sT1} offen")
    A("s_load_dwordx2 s[4:5], s[0:1], 16")
    A("s_load_dwordx2 s[6:7], s[0:1], 40")
    A(f"s_load_dwordx2 s[{sP}:{sP+1}], s[0:1], 48")
    A("s_waitcnt lgkmcnt(0)")
    A(f"s_cmp_lt_u32 s{sRB}, 8")
    A("s_cbranch_scc1 L_sp_a")
    A("s_mov_b32 s4, s6")
    A("s_mov_b32 s5, s7")
    A.label("L_sp_a")
    srd(A, sWO, 4, WO_BYTES)
    srd(A, sG, sP, 1280)
    A(f"s_and_b32 s{sT1}, s{sRB}, 7")
    A(f"s_mul_i32 s{sT1}, s{sT1}, {80*1280}")
    A(f"s_lshl_b32 s{sLDS1}, s{sW}, 10")
    A(f"s_add_u32 s{sT1}, s{sT1}, s{sLDS1}")
    for t in range(13):
        if t == 12:
            A(f"s_cmp_ge_u32 s{sW}, 4")
            A("s_cbranch_scc1 L_sp_dma_done")
        A(f"s_add_u32 m0, s{sLDS1}, {8192*t}")
        A(f"s_add_u32 s{sT0}, s{sT1}, {8192*t}")
        A(f"buffer_load_dwordx4 v{vL16}, s[{sWO}:{sWO+3}], s{sT0} offen lds")
    A.label("L_sp_dma_done")
    GW = 102400
    A(f"s_cmp_ge_u32 s{sW}, 2")
    A("s_cbranch_scc1 L_sp_gw_done")
    A(f"s_add_u32 m0, s{sLDS1}, {GW}")
    A("s_nop 0")
    A(f"buffer_load_dwordx4 v{vL16}, s[{sG}:{sG+3}], s{sLDS1} offen lds")
    A.label("L_sp_gw_done")
    A.stamp("", 2)
    XG = 28
    A(f"v_lshrrev_b32 v{vT+1}, 2, v{vL}")
    A(f"s_lshl_b32 s{sT0}, s{sW}, 4")
    A(f"v_add_u32 v{vT+1}, s{sT0}, v{vT+1}")
    A(f"v_and_b32 v{vT+2}, 3, v{vL}")
    A(f"v_lshlrev_b32 v{vT+2}, 4, v{vT+2}")
    A(f"v_mul_u32_u24 v{vT+3}, 1280, v{vT+1}")
    A(f"v_add_u32 v{vT+3}, v{vT+3}, v{vT+2}")
    A(f"v_mov_b32 v{vT+4}, 0")
    for i in range(20):
        A(f"buffer_load_dwordx4 {v(XG+4*i,4)}, v{vT+3}, s[{sX}:{sX+3}], s{sXOFF} offen offset:{i*64}")
    A(f"v_add_u32 v{vT+2}, {GW}, v{vT+2}")
    A("s_waitcnt vmcnt(0)")
    A("s_barrier")
    A.lds_q = []
    GG = 108
    for i in range(3):
        A.lds(f"ds_read_b128 {v(GG+4*i,4)}, v{vT+2} offset:{i*64}", ("gw", i))
    for i in range(20):
        if i + 3 < 20:
            A.lds(f"ds_read_b128 {v(GG+4*((i+3) % 4),4)}, v{vT+2} offset:{(i+3)*64}", ("gw", i + 3))
        A.lds_wait(("gw", i))
        for k in range(4):
            A(f"v_dot2_f32_bf16 v{vT+4}, v{XG+4*i+k}, v{GG+4*(i % 4)+k}, v{vT+4}")
    A("s_nop 2")
    A(f"v_add_f32_dpp v{vT+4}, v{vT+4}, v{vT+4} quad_perm:[1,0,3,2] row_mask:0xf bank_mask:0xf")
    A("s_nop 1")
    A(f"v_add_f32_dpp v{vT+4}, v{vT+4}, v{vT+4} quad_perm:[2,3,0,1] row_mask:0xf bank_mask:0xf")
    A(f"v_mul_f32 v{vT+4}, {hex(f32bits(-LOG2E))}, v{vT+4}")
    A(f"v_exp_f32 v{vT+4}, v{vT+4}")
    A("s_nop 0")
    A(f"v_add_f32 v{vT+4}, 1.0, v{vT+4}")
    A(f"v_rcp_f32 v{vT+4}, v{vT+4}")
    A(f"s_lshl_b32 s{sT0}, s{sRB}, 9")
    A(f"s_add_u32 s{sT0}, s{sT0}, {GATE}")
    A(f"v_lshlrev_b32 v{vT+1}, 2, v{vT+1}")
    A("s_mov_b32 exec_lo, 0x11111111")
    A("s_mov_b32 exec_hi, 0x11111111")
    A(f"buffer_store_dword v{vT+4}, v{vT+1}, {WS}, s{sT0} offen sc1")
    A("s_mov_b64 exec, -1")
    A.stamp("", 3)
    A.stamp("", 4)
    A(f"v_bfe_u32 v{vT+1}, v{vL}, 2, 2")
    A(f"v_mul_u32_u24 v{vT+1}, 1280, v{vT+1}")
    A(f"v_lshrrev_b32 v{vT+2}, 4, v{vL}")
    A(f"v_lshl_add_u32 v{vT+1}, v{vT+2}, 5, v{vT+1}")
    A(f"v_and_b32 v{vT+2}, 3, v{vL}")
    A(f"v_lshl_add_u32 v{vT+1}, v{vT+2}, 3, v{vT+1}")
    A(f"s_mul_i32 s{sT3}, s{sRB}, {10*10240}")
    A(f"s_add_u32 s{sT3}, s{sT3}, {WOT}")
    A(f"s_mov_b32 s{sT1}, s{sW}")
    A.label("L_sp_loop")
    A(f"s_mul_hi_u32 s{sT2}, s{sT1}, 0x1999999a")
    A(f"s_mul_i32 s{sT0}, s{sT2}, 10")
    A(f"s_sub_u32 s{sT0}, s{sT1}, s{sT0}")
    A(f"s_mul_hi_u32 s{sCNT}, s{sT2}, 0x33333334")
    A(f"s_mul_i32 s{sT4}, s{sCNT}, 5")
    A(f"s_sub_u32 s{sT4}, s{sT2}, s{sT4}")
    A(f"s_mul_i32 s{sCNT}, s{sCNT}, 40")
    A(f"s_lshl_b32 s{sT5}, s{sT4}, 3")
    A(f"s_cmp_ge_u32 s{sT4}, 2")
    A(f"s_cselect_b32 s{sM}, 4, 0")
    A(f"s_add_u32 s{sT5}, s{sT5}, s{sM}")
    A(f"s_cmp_eq_u32 s{sT4}, 4")
    A(f"s_cselect_b32 s{sT5}, 16, s{sT5}")
    A(f"s_cselect_b32 s{sM}, 20, 4")
    A(f"s_add_u32 s{sT5}, s{sT5}, s{sCNT}")
    A(f"s_mul_i32 s{sT4}, s{sT5}, 1280")
    A(f"s_mul_i32 s{sM}, s{sM}, 1280")
    A(f"s_lshl_b32 s{sT5}, s{sT0}, 7")
    A(f"s_add_u32 s{sT4}, s{sT4}, s{sT5}")
    A(f"v_add_u32 v{vT+3}, s{sT4}, v{vT+1}")
    A(f"v_add_u32 v{vT+4}, s{sM}, v{vT+3}")
    A(f"ds_read_b64_tr_b16 v[{XG}:{XG+1}], v{vT+3}")
    A(f"ds_read_b64_tr_b16 v[{XG+2}:{XG+3}], v{vT+4}")
    A(f"s_mul_i32 s{sT4}, s{sT2}, 10240")
    A(f"s_lshl_b32 s{sT5}, s{sT0}, 10")
    A(f"s_add_u32 s{sT4}, s{sT4}, s{sT5}")
    A(f"s_add_u32 s{sT4}, s{sT4}, s{sT3}")
    A("s_waitcnt lgkmcnt(0)")
    A(f"buffer_store_dwordx4 {v(XG,4)}, v{vL16}, {WS}, s{sT4} offen sc1")
    A(f"s_add_u32 s{sT1}, s{sT1}, 8")
    A(f"s_cmp_lt_u32 s{sT1}, 100")
    A("s_nop 1")
    A("s_cbranch_scc1 L_sp_loop")
    A.stamp("", 5)
    nonce_issue(A)
    nonce_check(A, "noncesp")
    A("s_waitcnt vmcnt(0)")
    A("s_barrier")
    A.vm_q = []
    with Wave0(A, "pubsp"):
        publish(A, sF1, F1A)
    pos = poll_issue(A, acquire_items(), "f1sp")
    poll_check(A, acquire_items(), pos, "f1sp")
    A("s_barrier")
    A.vm_q = []
    first, rest = p2_load_items()
    for f in first + rest:
        f(A)
    A(f"s_cmp_ge_u32 s{sW}, 4")
    A("s_cbranch_scc1 L_sp_nopat")
    pattern_fill(A, "sp")
    A.label("L_sp_nopat")
    A.vm_wait("q", ("c", 0))
    A("s_barrier")
    for i in (6,) + ((7, 8, 9, 10) if (EXP.get("stampB") or EXP.get("stampA")) else ()):
        A.stamp("", i)
    A("s_branch L_attn")


def mf16(A, d, a, b, c):
    A(f"v_mfma_f32_32x32x16_bf16 {v(d,16)}, {v(a,4)}, {v(b,4)}, {c}")


def mf8(A, d, a, b, c):
    A(f"v_mfma_f32_32x32x8_bf16 {v(d,16)}, {v(a,2)}, {v(b,2)}, {c}")


def dma_chunk_piece(A, c, t):
    slot = c % NSLOT
    A(f"s_add_u32 m0, s{sLDSW}, {slot*SLOT + 1024*t}")
    A(f"v_mad_u32_u24 v{vCT}, v{vCS+t}, {c}, v{vCB+t}")
    if t == 2:
        A("s_mov_b32 exec_hi, 0xffff")
    A.vm(f"buffer_load_dwordx4 v{vCT}, {WS}, 0 offen sc1 lds", ("c", c))
    if t == 2:
        A("s_mov_b32 exec_hi, -1")


def dma_chunk(A, c):
    for t in range(3):
        dma_chunk_piece(A, c, t)


def dma_w_piece(A, part, st, t):
    off = (WA_OFF if part == 0 else WB_OFF)[st]
    A(f"s_add_u32 m0, s{sLDSW2}, {off + 1024*t}")
    A(f"s_add_u32 s{sT0}, s{sWSRC}, {(part*80 + 16*st)*10240}")
    if t == 2:
        A("s_mov_b32 exec_hi, 0")
    A.vm(f"buffer_load_dwordx4 v{(vW0, vW1, vW2)[t]}, {WS}, s{sT0} offen sc1 lds", ("w", part, st))
    if t == 2:
        A("s_mov_b32 exec_hi, -1")


def rd_k01(A, t):
    if EXP.get('halfrd') and t % 2 == 1:
        return
    c, tt = t // TPC, t % TPC
    A.lds(f"ds_read_b128 {v(K01,4)}, v{vK01 + c % NSLOT} offset:{tt*512}", ("k01", t))


def rd_k2(A, t):
    if EXP.get('halfrd') and t % 2 == 1:
        return
    c, tt = t // TPC, t % TPC
    A.lds(f"ds_read_b64 {v(K2,2)}, v{vK2 + c % NSLOT} offset:{8192 + tt*512}", ("k2", t))


def rd_v(A, t, a):
    if EXP.get('halfrd') and t % 2 == 1:
        return
    c, tt = t // TPC, t % TPC
    areg = vV + c % NSLOT if tt < 4 else vV2[c % NSLOT]
    A.lds(f"ds_read_b128 {v(V1 if a else V0,4)}, v{areg} offset:{(2*(tt % 4) + a)*640}", ("v", t, a))


def exps(A, sreg, g, preg=P):
    for i in range(4):
        A(f"v_exp_f32 v{sreg+4*g+i}, v{sreg+4*g+i}")
    A(f"v_cvt_pk_bf16_f32 v{preg+2*g}, v{sreg+4*g}, v{sreg+4*g+1}")
    A(f"v_cvt_pk_bf16_f32 v{preg+2*g+1}, v{sreg+4*g+2}, v{sreg+4*g+3}")


def cross_half_max(A, reg, tmp):
    A(f"v_mov_b32 v{tmp}, v{reg}")
    A("s_nop 1")
    A(f"v_permlane32_swap_b32 v{reg}, v{tmp}")
    A("s_nop 1")
    A(f"v_max_f32 v{reg}, v{reg}, v{tmp}")


def max16(A, dst, src, first):
    if first:
        A(f"v_max3_f32 v{dst}, v{src}, v{src+1}, v{src+2}")
        rest = list(range(3, 16))
    else:
        rest = list(range(0, 16))
    while rest:
        if len(rest) >= 2:
            A(f"v_max3_f32 v{dst}, v{dst}, v{src+rest[0]}, v{src+rest[1]}")
            rest = rest[2:]
        else:
            A(f"v_max_f32 v{dst}, v{dst}, v{src+rest[0]}")
            rest = rest[1:]


def row_sum(A, oreg):
    A(f"v_mov_b32 v{vT}, v{oreg+8}")
    A(f"v_mov_b32 v{vT+1}, v{oreg+8}")
    A("s_nop 1")
    A(f"v_permlane32_swap_b32 v{vT}, v{vT+1}")


def finish_tile(A, oreg, gate, one_minus, vaddr, tok_sreg, chunk0, tag):
    A(f"v_rcp_f32 v{vT+2}, v{vT+1}")
    A(f"s_lshl_b32 s{sT0}, s{tok_sreg}, 4")
    A(f"s_add_u32 s{sT0}, s{sT0}, {OC + chunk0*32768}")
    if one_minus:
        A(f"v_sub_f32 v{vT}, 1.0, v{gate}")
        A(f"v_mul_f32 v{vT+2}, v{vT+2}, v{vT}")
    else:
        A(f"v_mul_f32 v{vT+2}, v{vT+2}, v{gate}")
    A(f"v_mov_b32 v{vT+3}, v{vT+2}")
    for i in range(0, 12, 2):
        A(f"v_pk_mul_f32 {v(oreg+i,2)}, {v(oreg+i,2)}, v[{vT+2}:{vT+3}]")
    for i in range(4):
        A(f"v_cvt_pk_bf16_f32 v{oreg+i}, v{oreg+2*i}, v{oreg+2*i+1}")
    A(f"v_cvt_pk_bf16_f32 v{oreg+8}, v{oreg+8}, v{oreg+9}")
    A(f"v_cvt_pk_bf16_f32 v{oreg+9}, v{oreg+10}, v{oreg+11}")
    A(f"v_permlane32_swap_b32 v{oreg}, v{oreg+2}")
    A(f"v_permlane32_swap_b32 v{oreg+1}, v{oreg+3}")
    A.vm(f"buffer_store_dwordx4 {v(oreg,4)}, v{vaddr}, {WS}, s{sT0} offen sc1", tag)
    A("s_mov_b32 exec_hi, 0")
    A.vm(f"buffer_store_dwordx2 {v(oreg+8,2)}, v{vaddr+2}, {WS}, s{sT0} offen sc1", tag)
    A("s_mov_b64 exec, -1")


def oc_load(A, part, k):
    reg = OCA if part == 0 else OCB
    A(f"s_add_u32 s{sT0}, s{sOCB}, {(part*80 + 4*k)*32768}")
    A.vm(f"buffer_load_dwordx4 {v(reg+4*k,4)}, v{vOC}, {WS}, s{sT0} offen sc1", ("oc", part, k))


def outproj(A, part, first, hook=None):
    offs = WA_OFF if part == 0 else WB_OFF
    reg = OCA if part == 0 else OCB
    for kg in range(2):
        if kg == 0:
            A(f"s_cmp_eq_u32 s{sKG}, 1")
            A(f"s_cbranch_scc1 L_op{part}_g1")
            saved = (list(A.vm_q), list(A.lds_q))
        else:
            A.label(f"L_op{part}_g1")
            A.vm_q, A.lds_q = list(saved[0]), list(saved[1])
        seq = [(k, nt) for k in range(10) for nt in range(5)]

        def rd(i):
            k, nt = seq[i]
            kk = 10 * kg + k
            off = offs[kk // 4] + (kk % 4) * 5120 + nt * 256
            areg = (vWR, vT + 5, vT + 6)[off >> 16]
            A.lds(f"ds_read_b128 {v(WF + (i % 8)*4,4)}, v{areg} offset:{off & 0xffff}", ("wf", i))

        LOOK = 5
        for i in range(LOOK):
            rd(i)
        for i, (k, nt) in enumerate(seq):
            if i + LOOK < len(seq):
                rd(i + LOOK)
            if nt == 0:
                A.vm_wait(("oc", part, k))
                if hook:
                    hook(k, kg)
            A.lds_wait(("wf", i))
            c = "0" if (first and k == 0) else v(ACC + 4*nt, 4)
            A(f"v_mfma_f32_16x16x32_bf16 {v(ACC+4*nt,4)}, {v(WF + (i % 8)*4,4)}, {v(reg+4*k,4)}, {c}")
        if kg == 0:
            end0 = (list(A.vm_q), list(A.lds_q))
            A(f"s_branch L_op{part}_done")
    A.label(f"L_op{part}_done")
    assert end0[0] == A.vm_q and end0[1] == A.lds_q


def keypos(kappa):
    return (kappa & 25) | ((kappa >> 1) & 1) << 2 | ((kappa >> 2) & 1) << 1


def band_mask(j, i, prev):
    m = 0
    for l in range(64):
        q, hh = l & 31, l >> 5
        key = keypos(8 * j + 4 * hh + i) - (32 if prev else 0)
        if 0 <= q - key <= 7:
            m |= 1 << l
    return m


def b_consts(A):
    A(f"v_cmp_eq_u32 vcc, 20, v{vR}")
    A(f"v_mov_b32 v{vT+6}, 0")
    A(f"v_mov_b32 v{vT+7}, 0x3f803f80")
    A(f"v_cndmask_b32 v{vT+6}, v{vT+6}, v{vT+7}, vcc")
    for base in (BV0, BV1, BVP):
        for i in range(4):
            A(f"v_mov_b32 v{base+i}, v{vT+6}")
    A(f"v_mov_b32 v{BQ2}, 0")
    A(f"v_mov_b32 v{BQ2+1}, 0")


def b_load_items():
    def mk(instr, pre=None, gate=False):
        def f(A):
            if gate:
                A(f"v_lshlrev_b32 v{vCT}, 1, v{vGA}")
                A.vm(instr.replace(f"v{vGA},", f"v{vCT},"), "b")
                return
            if pre:
                A(pre)
            A.vm(instr, "b")
            if pre:
                A("s_mov_b64 exec, -1")
        return f
    lo20 = f"s_mov_b64 exec, s[{sLO20}:{sLO20+1}]"
    return [
        mk(f"buffer_load_dwordx4 {v(BQ01,4)}, v{vBA}, {WS}, s{sBA} offen sc1"),
        mk(f"buffer_load_dwordx4 {v(BK01,4)}, v{vBA+2}, {WS}, s{sBA+2} offen sc1"),
        mk(f"buffer_load_dwordx2 {v(BK2,2)}, v{vBA+3}, {WS}, s{sBA+3} offen sc1"),
        mk(f"buffer_load_dwordx4 {v(BKP01,4)}, v{vBA+2}, {WS}, s{sBA+5} offen sc1"),
        mk(f"buffer_load_dwordx2 {v(BKP2,2)}, v{vBA+3}, {WS}, s{sBA+6} offen sc1"),
        mk(f"buffer_load_dword v{vGB}, v{vGA}, {WS}, s{sBA+8} offen sc1", None, True),
        mk(f"buffer_load_dwordx2 {v(BQ2,2)}, v{vBA+1}, {WS}, s{sBA+1} offen sc1", "s_mov_b32 exec_hi, 0"),
        mk(f"buffer_load_dwordx4 {v(BV0,4)}, v{vBA+4}, {WS}, s{sBA+4} offen sc1", lo20),
        mk(f"buffer_load_dwordx4 {v(BV1,4)}, v{vBA+4}, {WS}, s{sBA+4} offen offset:640 sc1", lo20),
        mk(f"buffer_load_dwordx4 {v(BVP,4)}, v{vBA+4}, {WS}, s{sBA+7} offen offset:640 sc1", lo20),
    ]


def b_unit(A):
    S0, S1 = BS0, BS1
    jitter(A, True)
    A.vm_wait("b")
    mf16(A, S0, BK01, BQ01, "0")
    mf16(A, S1, BKP01, BQ01, "0")
    mf8(A, S0, BK2, BQ2, v(S0, 16))
    mf8(A, S1, BKP2, BQ2, v(S1, 16))
    A(f"v_mov_b32 v{vT}, {hex(f32bits(-1e30))}")
    A(f"s_cmp_eq_u32 s{sQT}, 0")
    A(f"s_cselect_b32 s{sT3}, 0, -1")
    A("s_nop 7")
    A("s_nop 5")
    for j in range(4):
        for i in range(4):
            m = band_mask(j, i, False)
            A(f"s_mov_b32 s{sM}, {hex(m & 0xffffffff)}")
            A(f"s_mov_b32 s{sM+1}, {hex(m >> 32)}")
            A(f"v_cndmask_b32 v{S0+4*j+i}, v{vT}, v{S0+4*j+i}, s[{sM}:{sM+1}]")
    for i in range(4):
        m = band_mask(3, i, True)
        A(f"s_and_b32 s{sM}, s{sT3}, {hex(m & 0xffffffff)}")
        A(f"s_and_b32 s{sM+1}, s{sT3}, {hex(m >> 32)}")
        A(f"v_cndmask_b32 v{S1+12+i}, v{vT}, v{S1+12+i}, s[{sM}:{sM+1}]")
    max16(A, vT + 1, S0, True)
    A(f"v_max3_f32 v{vT+1}, v{vT+1}, v{S1+12}, v{S1+13}")
    A(f"v_max3_f32 v{vT+1}, v{vT+1}, v{S1+14}, v{S1+15}")
    cross_half_max(A, vT + 1, vT + 2)
    for r in list(range(S0, S0 + 16)) + list(range(S1 + 12, S1 + 16)):
        A(f"v_sub_f32 v{r}, v{r}, v{vT+1}")
    for g in range(4):
        exps(A, S0, g, BP)
    PP = BP + 8
    for i in range(4):
        A(f"v_exp_f32 v{S1+12+i}, v{S1+12+i}")
    A(f"v_mov_b32 v{PP}, 0")
    A(f"v_mov_b32 v{PP+1}, 0")
    A(f"v_cvt_pk_bf16_f32 v{PP+2}, v{S1+12}, v{S1+13}")
    A(f"v_cvt_pk_bf16_f32 v{PP+3}, v{S1+14}, v{S1+15}")
    A("s_nop 1")
    mf16(A, BO, BV0, BP, "0")
    mf16(A, BO, BV1, BP + 4, v(BO, 16))
    mf16(A, BO, BVP, PP, v(BO, 16))
    A("s_nop 7")
    A("s_nop 3")
    row_sum(A, BO)
    A("s_nop 1")
    finish_tile(A, BO, vGB, True, vOST + 1, sBT, 80, "stb")


def fallback(A):
    A.label("L_fallback")
    A("s_waitcnt vmcnt(0) lgkmcnt(0)")
    A(f"v_lshlrev_b32 v{vT+4}, 15, v{vHH}")
    A(f"v_lshl_add_u32 v{vT+4}, v{vR}, 4, v{vT+4}")
    A(f"v_lshlrev_b32 v{vT+5}, 4, v{vR}")
    A(f"v_mul_u32_u24 v{vT+6}, 320, v{vHH}")
    A(f"v_lshl_add_u32 v{vT+6}, v{vR}, 4, v{vT+6}")
    A(f"v_mov_b32 v{vT+7}, {hex(f32bits(-3.0e38))}")

    def tile_addr():
        A(f"s_lshl_b32 s{sT0}, s{sCNT}, 9")
        A(f"s_lshl_b32 s{sT1}, s{sPA}, 15")
        A(f"s_add_u32 s{sT1}, s{sT1}, s{sT0}")
        A(f"s_add_u32 s{sT1}, s{sT1}, {KA}")
        A(f"s_lshl_b32 s{sT2}, s{sP2L}, 15")
        A(f"s_add_u32 s{sT2}, s{sT2}, s{sT0}")
        A(f"s_and_b32 s{sT3}, s{sH}, 1")
        A(f"s_lshl_b32 s{sT3}, s{sT3}, 3")
        A(f"s_add_u32 s{sT2}, s{sT2}, s{sT3}")
        A(f"s_add_u32 s{sT2}, s{sT2}, {KA}")
        A(f"s_mul_i32 s{sT3}, s{sCNT}, 1280")
        A(f"s_add_u32 s{sT3}, s{sT3}, s{sVH}")
        A(f"s_add_u32 s{sT3}, s{sT3}, {VA}")

    A(f"s_mov_b32 s{sCNT}, 0")
    A.label("L_fb1")
    tile_addr()
    A(f"buffer_load_dwordx4 {v(K01,4)}, v{vT+4}, {WS}, s{sT1} offen sc1")
    A(f"buffer_load_dwordx2 {v(K2,2)}, v{vT+5}, {WS}, s{sT2} offen sc1")
    A("s_waitcnt vmcnt(0)")
    mf16(A, SA, K01, Q01, "0")
    mf8(A, SA, K2, Q2, v(SA, 16))
    A("s_nop 7")
    A("s_nop 7")
    max16(A, vT + 7, SA, False)
    A(f"s_add_u32 s{sCNT}, s{sCNT}, 1")
    A(f"s_cmp_lt_u32 s{sCNT}, 64")
    A("s_cbranch_scc1 L_fb1")
    cross_half_max(A, vT + 7, vT)
    for i in range(16):
        A(f"v_sub_f32 v{NEGM+i}, 0, v{vT+7}")
        A(f"v_mov_b32 v{O+i}, 0")
    A(f"v_cmp_eq_u32 vcc, 20, v{vR}")
    A(f"v_mov_b32 v{vT}, 0")
    A(f"v_mov_b32 v{vT+1}, 0x3f803f80")
    A(f"v_cndmask_b32 v{vT}, v{vT}, v{vT+1}, vcc")
    for i in range(4):
        A(f"v_mov_b32 v{V0+i}, v{vT}")
        A(f"v_mov_b32 v{V1+i}, v{vT}")
    A(f"s_mov_b32 s{sCNT}, 0")
    A.label("L_fb2")
    tile_addr()
    A(f"buffer_load_dwordx4 {v(K01,4)}, v{vT+4}, {WS}, s{sT1} offen sc1")
    A(f"buffer_load_dwordx2 {v(K2,2)}, v{vT+5}, {WS}, s{sT2} offen sc1")
    A(f"s_mov_b64 exec, s[{sLO20}:{sLO20+1}]")
    A(f"buffer_load_dwordx4 {v(V0,4)}, v{vT+6}, {WS}, s{sT3} offen sc1")
    A(f"buffer_load_dwordx4 {v(V1,4)}, v{vT+6}, {WS}, s{sT3} offen offset:640 sc1")
    A("s_mov_b64 exec, -1")
    A("s_waitcnt vmcnt(0)")
    mf16(A, SA, K01, Q01, v(NEGM, 16))
    mf8(A, SA, K2, Q2, v(SA, 16))
    A("s_nop 7")
    A("s_nop 7")
    for g in range(4):
        exps(A, SA, g)
    A("s_nop 1")
    mf16(A, O, V0, P, v(O, 16))
    mf16(A, O, V1, P + 4, v(O, 16))
    A(f"s_add_u32 s{sCNT}, s{sCNT}, 1")
    A(f"s_cmp_lt_u32 s{sCNT}, 64")
    A("s_cbranch_scc1 L_fb2")
    A("s_nop 7")
    A("s_nop 7")
    row_sum(A, O)
    A("s_nop 1")
    A("s_branch L_finish")


def touch_chip(A, which):
    A(f"s_and_b32 s{sT1}, s{sW}, 1")
    A(f"s_lshl_b32 s{sT1}, s{sT1}, 6")
    A(f"v_add_u32 v{vT}, s{sT1}, v{vL}")
    A(f"s_cmp_ge_u32 s{sW}, 2")
    A(f"s_cbranch_scc1 L_tc_w{which}")
    if "x" in which:
        A(f"v_min_u32 v{vT}, 79, v{vT}")
        A(f"v_lshlrev_b32 v{vT}, 7, v{vT}")
        A(f"s_mul_i32 s{sT0}, s2, 10240")
        A(f"buffer_load_dword v{G_P+1}, v{vT}, s[{sX}:{sX+3}], s{sT0} offen")
    A(f"s_branch L_tc_done{which}")
    A.label(f"L_tc_w{which}")
    A(f"v_min_u32 v{vT}, 74, v{vT}")
    A(f"v_lshlrev_b32 v{vT}, 7, v{vT}")
    A(f"s_mul_i32 s{sT0}, s2, 9600")
    if "a" in which:
        A(f"buffer_load_dword v{G_P+2}, v{vT}, s[{sWA}:{sWA+3}], s{sT0} offen")
    if "b" in which:
        A(f"buffer_load_dword v{G_P+3}, v{vT}, s[{sWB}:{sWB+3}], s{sT0} offen")
    A.label(f"L_tc_done{which}")


def touch_phase(A, phase):
    L = f"L_tp{phase}"
    if phase != 2:
        k0, nk = {0: (3, 3), 1: (6, 4), 3: (0, 3)}[phase]
        wx, ww = {0: (0, 1), 1: (2, 3), 3: (2, 3)}[phase]
        A(f"s_cmp_lg_u32 s{sW}, {wx}")
        A(f"s_cbranch_scc1 {L}_w")
        if nk == 3:
            A(f"v_mul_u32_u24 v{vT}, 86, v{vL}")
            A(f"v_lshrrev_b32 v{vT}, 8, v{vT}")
        else:
            A(f"v_lshrrev_b32 v{vT}, 2, v{vL}")
        A(f"v_mul_u32_u24 v{vT+1}, {nk}, v{vT}")
        A(f"v_sub_u32 v{vT+1}, v{vL}, v{vT+1}")
        A(f"v_min_u32 v{vT}, 7, v{vT}")
        A(f"v_mul_u32_u24 v{vT}, 1280, v{vT}")
        A(f"v_lshl_add_u32 v{vT}, v{vT+1}, 7, v{vT}")
        A(f"s_mul_i32 s{sT0}, s2, 10240")
        A(f"s_add_u32 s{sT0}, s{sT0}, {128*k0}")
        A(f"buffer_load_dword v{G_P+1}, v{vT}, s[{sX}:{sX+3}], s{sT0} offen")
        A.label(f"{L}_w")
        per = 64 * nk * 30 // 256 + (1 if (64 * nk * 30) % 256 else 0)
        A(f"s_cmp_lg_u32 s{sW}, {ww}")
        A(f"s_cbranch_scc1 {L}_done")
        A(f"v_min_u32 v{vT}, {per - 1}, v{vL}")
        A(f"v_lshlrev_b32 v{vT}, 7, v{vT}")
        A(f"s_mul_i32 s{sT0}, s2, {64 * nk * 3840 // 256}")
        A(f"s_and_b32 s{sT0}, s{sT0}, 0xffffff80")
        A(f"s_add_u32 s{sT0}, s{sT0}, {64 * k0 * 3840}")
        A(f"buffer_load_dword v{G_P+2}, v{vT}, s[{sWA}:{sWA+3}], s{sT0} offen")
    else:
        A(f"s_cmp_ge_u32 s{sW}, 2")
        A(f"s_cbranch_scc1 {L}_done")
        A(f"s_lshl_b32 s{sT1}, s{sW}, 6")
        A(f"v_add_u32 v{vT}, s{sT1}, v{vL}")
        A(f"v_min_u32 v{vT}, 74, v{vT}")
        A(f"v_lshlrev_b32 v{vT}, 7, v{vT}")
        A(f"s_mul_i32 s{sT0}, s2, 9600")
        A(f"buffer_load_dword v{G_P+3}, v{vT}, s[{sWB}:{sWB+3}], s{sT0} offen")
    A.label(f"{L}_done")


def touch_xcd_first(A):
    A(f"s_cmp_eq_u32 s{sW}, 7")
    A("s_cbranch_scc1 L_txf_done")
    A(f"s_sub_u32 s{sT1}, s{sW}, 4")
    A(f"s_and_b32 s{sT0}, s{sCT}, 3")
    A(f"s_lshl_b32 s{sT0}, s{sT0}, 5")
    A(f"v_add_u32 v{vT}, s{sT0}, v{vR}")
    A(f"v_mul_u32_u24 v{vT}, 1280, v{vT}")
    A(f"s_lshl_b32 s{sT0}, s{sT1}, 7")
    A(f"s_add_u32 s{sT0}, s{sT0}, s{sXOFF}")
    A(f"buffer_load_dword v{G_P}, v{vT}, s[{sX}:{sX+3}], s{sT0} offen")
    A(f"s_and_b32 s{sT0}, s{sRB}, 7")
    A(f"s_lshl_b32 s{sT0}, s{sT0}, 3")
    A(f"s_lshl_b32 s{sT1}, s{sT1}, 6")
    A(f"s_add_u32 s{sT0}, s{sT0}, s{sT1}")
    A(f"v_bfe_u32 v{vT}, v{vL}, 1, 3")
    A(f"v_add_u32 v{vT}, s{sT0}, v{vT}")
    A(f"v_mul_u32_u24 v{vT}, 3840, v{vT}")
    A(f"v_and_b32 v{vT+1}, 1, v{vL}")
    A(f"v_lshl_add_u32 v{vT}, v{vT+1}, 7, v{vT}")
    A(f"buffer_load_dword v{G_P+1}, v{vT}, s[{sWA}:{sWA+3}], s{sWOFF} offen")
    A.label("L_txf_done")


def touch_chip_wide(A, which, tag):
    A(f"s_cmp_ge_u32 s{sW}, 4")
    A(f"s_cbranch_scc1 L_tcw{tag}")
    A(f"s_lshl_b32 s{sT1}, s{sW}, 10")
    A(f"v_add_u32 v{vT}, s{sT1}, v{vL16}")
    k = 0
    for name, srd_, size in (("x", sX, 10240), ("a", sWA, 9600), ("b", sWB, 9600)):
        if name not in which:
            continue
        A(f"s_mul_i32 s{sT0}, s2, {size}")
        for i in range(3):
            A(f"v_add_u32 v{vT+1}, {4096*i}, v{vT}")
            A(f"v_min_u32 v{vT+1}, {size - 16}, v{vT+1}")
            A(f"buffer_load_dwordx4 {v(G_P + 4*k, 4)}, v{vT+1}, s[{srd_}:{srd_+3}], s{sT0} offen")
            k += 1
    A.label(f"L_tcw{tag}")


def touch_chip_b(A, n):
    A(f"s_cmp_ge_u32 s{sW}, 2")
    A(f"s_cbranch_scc1 L_tcb{n}")
    A(f"s_lshl_b32 s{sT1}, s{sW}, 6")
    A(f"v_add_u32 v{vT}, s{sT1}, v{vL}")
    A(f"v_min_u32 v{vT}, 74, v{vT}")
    A(f"v_lshlrev_b32 v{vT}, 7, v{vT}")
    A(f"s_mul_i32 s{sT0}, s2, 9600")
    A(f"buffer_load_dword v{G_P+3}, v{vT}, s[{sWB}:{sWB+3}], s{sT0} offen")
    A.label(f"L_tcb{n}")


def touch_wb(A, n):
    A(f"s_cmp_ge_u32 s{sW}, 3")
    A(f"s_cbranch_scc1 L_twb{n}")
    A(f"s_and_b32 s{sT0}, s{sRB}, 7")
    A(f"s_mul_i32 s{sT0}, s{sT0}, 80")
    A(f"s_lshl_b32 s{sT1}, s{sW}, 5")
    A(f"v_lshrrev_b32 v{vT}, 1, v{vL}")
    A(f"v_add_u32 v{vT}, s{sT1}, v{vT}")
    A(f"v_min_u32 v{vT}, 79, v{vT}")
    A(f"v_add_u32 v{vT}, s{sT0}, v{vT}")
    A(f"v_mul_u32_u24 v{vT}, 3840, v{vT}")
    A(f"v_and_b32 v{vT+1}, 1, v{vL}")
    A(f"v_lshl_add_u32 v{vT}, v{vT+1}, 7, v{vT}")
    A(f"buffer_load_dword v{G_P}, v{vT}, s[{sWB}:{sWB+3}], s{sWOFF} offen")
    A.label(f"L_twb{n}")


def touch_a(A, n):
    A(f"v_mul_u32_u24 v{vT}, 37, v{vL}")
    A(f"v_lshrrev_b32 v{vT}, 8, v{vT}")
    A(f"v_mul_u32_u24 v{vT+1}, 7, v{vT}")
    A(f"v_sub_u32 v{vT+1}, v{vL}, v{vT+1}")
    A(f"v_min_u32 v{vT}, 7, v{vT}")
    A(f"s_and_b32 s{sT0}, s{sCT}, 3")
    A(f"s_lshl_b32 s{sT0}, s{sT0}, 2")
    A(f"s_add_u32 s{sT0}, s{sT0}, s{sW}")
    A(f"s_lshl_b32 s{sT0}, s{sT0}, 3")
    A(f"v_add_u32 v{vT}, s{sT0}, v{vT}")
    A(f"v_mul_u32_u24 v{vT}, 1280, v{vT}")
    A(f"v_lshl_add_u32 v{vT}, v{vT+1}, 7, v{vT}")
    A(f"v_add_u32 v{vT}, 384, v{vT}")
    A(f"buffer_load_dword v{G_P+1}, v{vT}, s[{sX}:{sX+3}], s{sXOFF} offen")
    A(f"s_cmp_ge_u32 s{sW}, 2")
    A(f"s_cbranch_scc1 L_twa{n}")
    A(f"s_and_b32 s{sT0}, s{sRB}, 7")
    A(f"s_mul_i32 s{sT0}, s{sT0}, 56")
    A(f"s_mul_i32 s{sT1}, s{sW}, 28")
    A(f"s_add_u32 s{sT0}, s{sT0}, s{sT1}")
    A(f"s_add_u32 s{sT0}, s{sT0}, 192")
    A(f"v_lshrrev_b32 v{vT}, 1, v{vL}")
    A(f"v_min_u32 v{vT}, 27, v{vT}")
    A(f"v_add_u32 v{vT}, s{sT0}, v{vT}")
    A(f"v_mul_u32_u24 v{vT}, 3840, v{vT}")
    A(f"v_and_b32 v{vT+1}, 1, v{vL}")
    A(f"v_lshl_add_u32 v{vT}, v{vT+1}, 7, v{vT}")
    A(f"buffer_load_dword v{G_P+2}, v{vT}, s[{sWA}:{sWA+3}], s{sWOFF} offen")
    A.label(f"L_twa{n}")


def setup_phase1_reads(A):
    A(f"v_lshrrev_b32 v{vT+2}, 1, v{vR}")
    A(f"v_and_b32 v{vT+2}, 7, v{vT+2}")
    A(f"v_xor_b32 v{vT+2}, v{vT+2}, v{vHH}")
    A(f"v_lshlrev_b32 v{vT+2}, 4, v{vT+2}")
    A(f"s_lshl_b32 s{sT0}, s{sMH}, 6")
    A(f"v_add_u32 v{vT+3}, s{sT0}, v{vR}")
    A(f"v_lshl_add_u32 v{vXR}, v{vT+3}, 7, v{vT+2}")
    for ks in range(1, 4):
        A(f"v_xor_b32 v{vXR+3*ks}, {ks*32}, v{vXR}")
    for ks in range(4):
        A(f"v_add_u32 v{vXR+3*ks+1}, 0x10000, v{vXR+3*ks}")
        A(f"v_add_u32 v{vXR+3*ks+2}, 0x20000, v{vXR+3*ks}")
    A(f"v_bfe_u32 v{vT+2}, v{vL}, 2, 2")
    A(f"v_lshl_add_u32 v{vT+3}, v{vHH}, 3, v{vT+2}")
    A(f"v_lshlrev_b32 v{vT+3}, 8, v{vT+3}")
    A(f"v_bfe_u32 v{vT+4}, v{vL}, 4, 1")
    A(f"v_lshlrev_b32 v{vT+4}, 5, v{vT+4}")
    A(f"v_add_u32 v{vT+3}, v{vT+3}, v{vT+4}")
    A(f"v_and_b32 v{vT+4}, 3, v{vL}")
    A(f"v_lshlrev_b32 v{vT+4}, 3, v{vT+4}")
    A(f"v_add_u32 v{vT+3}, v{vT+3}, v{vT+4}")
    for nt in range(2):
        A(f"s_lshl_b32 s{sT0}, s{sNH}, 1")
        A(f"s_add_u32 s{sT0}, s{sT0}, {nt}")
        A(f"v_xor_b32 v{vT+4}, s{sT0}, v{vT+2}")
        A(f"v_lshl_add_u32 v{vWR1+3*nt}, v{vT+4}, 6, v{vT+3}")
        A(f"v_add_u32 v{vWR1+3*nt+1}, 0x10000, v{vWR1+3*nt}")
        A(f"v_add_u32 v{vWR1+3*nt+2}, 0x20000, v{vWR1+3*nt}")


def setup_p2_0(A):
    A(f"s_lshl_b32 s{sF1}, s{sCT}, 4")
    A(f"s_add_u32 s{sF1}, s{sF1}, s{sRB}")
    A(f"s_lshl_b32 s{sF1}, s{sF1}, 2")
    A(f"s_and_b32 s{sT0}, s2, 7")
    A(f"s_lshl_b32 s{sT0}, s{sT0}, 2")
    A(f"s_lshr_b32 s{sT1}, s2, 3")
    A(f"s_and_b32 s{sT1}, s{sT1}, 3")
    A(f"s_add_u32 s{sH}, s{sT0}, s{sT1}")
    A(f"s_lshr_b32 s{sQB}, s2, 5")
    A(f"s_lshr_b32 s{sT0}, s{sH}, 1")
    A(f"s_mul_i32 s{sT0}, s{sT0}, 5")
    A(f"s_add_u32 s{sP2L}, s{sT0}, 2")
    A(f"s_and_b32 s{sT1}, s{sH}, 1")
    A(f"s_mul_i32 s{sT1}, s{sT1}, 3")
    A(f"s_add_u32 s{sPA}, s{sT0}, s{sT1}")
    A(f"s_mul_i32 s{sVH}, s{sH}, {VH}")
    A(f"s_mul_i32 s{sLDSW}, s{sW}, 2816")
    A(f"s_mul_i32 s{sLDSW2}, s{sW}, 2560")
    A(f"s_lshl_b32 s{sQ0}, s{sQB}, 8")
    A(f"s_lshl_b32 s{sT0}, s{sW}, 5")
    A(f"s_add_u32 s{sQ0}, s{sQ0}, s{sT0}")
    A(f"s_lshl_b32 s{sQT}, s{sQB}, 2")
    A(f"s_lshr_b32 s{sT0}, s{sW}, 1")
    A(f"s_add_u32 s{sQT}, s{sQT}, s{sT0}")
    A(f"s_and_b32 s{sT1}, s{sW}, 1")
    A(f"s_lshl_b32 s{sBT}, s{sQT}, 6")
    A(f"s_add_u32 s{sBT}, s{sBT}, s{sT1}")
    A(f"s_mov_b32 s{sLO20}, 0xfffff")
    A(f"s_mov_b32 s{sLO20+1}, 0xfffff")
    A(f"v_lshlrev_b32 v{vQA}, 15, v{vHH}")
    A(f"v_lshl_add_u32 v{vQA}, v{vR}, 4, v{vQA}")
    A(f"v_lshlrev_b32 v{vQA2}, 4, v{vR}")
    A(f"v_lshlrev_b32 v{vGA}, 2, v{vR}")
    A(f"s_lshl_b32 s{sT0}, s{sQ0}, 4")
    A(f"s_lshl_b32 s{sQOFF}, s{sPA}, 15")
    A(f"s_add_u32 s{sQOFF}, s{sQOFF}, s{sT0}")
    if QA:
        A(f"s_add_u32 s{sQOFF}, s{sQOFF}, {QA}")
    A(f"s_lshl_b32 s{sQOFF2}, s{sP2L}, 15")
    A(f"s_add_u32 s{sQOFF2}, s{sQOFF2}, s{sT0}")
    A(f"s_and_b32 s{sT1}, s{sH}, 1")
    A(f"s_lshl_b32 s{sT1}, s{sT1}, 3")
    A(f"s_add_u32 s{sQOFF2}, s{sQOFF2}, s{sT1}")
    if QA:
        A(f"s_add_u32 s{sQOFF2}, s{sQOFF2}, {QA}")
    A(f"s_lshl_b32 s{sGOFF}, s{sQ0}, 2")
    A(f"s_add_u32 s{sGOFF}, s{sGOFF}, {GATE}")


def setup_p2_1(A):
    A(f"s_and_b32 s{sT1}, s{sH}, 1")
    A(f"s_lshl_b32 s{sT1}, s{sT1}, 3")
    A(f"v_lshlrev_b32 v{vT}, 12, v{vHH}")
    A(f"v_lshl_add_u32 v{vT}, v{vR}, 4, v{vT}")
    A(f"v_lshlrev_b32 v{vT+1}, 4, v{vR}")
    A(f"v_add_u32 v{vT+1}, s{sT1}, v{vT+1}")
    A(f"v_mul_u32_u24 v{vT+2}, 320, v{vHH}")
    A(f"v_lshl_add_u32 v{vT+2}, v{vR}, 4, v{vT+2}")
    A(f"v_add_u32 v{vT+3}, {ONES}, v{vT+2}")
    A(f"v_cmp_gt_u32 vcc, 20, v{vR}")
    for sl in range(NSLOT):
        A(f"v_add_u32 v{vK01+sl}, {sl*SLOT}, v{vT}")
        A(f"v_add_u32 v{vK2+sl}, {sl*SLOT}, v{vT+1}")
        A(f"v_add_u32 v{vT+4}, {sl*SLOT + 12288}, v{vT+2}")
        A(f"v_cndmask_b32 v{vV+sl}, v{vT+3}, v{vT+4}, vcc")
    A(f"s_lshl_b32 s{sT2}, s{sPA}, 15")
    A(f"s_add_u32 s{sT2}, s{sT2}, {KA}")
    A(f"s_lshl_b32 s{sT3}, s{sP2L}, 15")
    A(f"s_add_u32 s{sT3}, s{sT3}, {KA - 8192}")
    A(f"s_add_u32 s{sT4}, s{sVH}, {VA - 12288}")
    for t in range(3):
        A(f"v_add_u32 v{vT}, s{sLDSW}, v{vL16}")
        if t:
            A(f"v_add_u32 v{vT}, {1024*t}, v{vT}")
        A(f"v_lshrrev_b32 v{vT+1}, 12, v{vT}")
        A(f"v_and_b32 v{vT+2}, 4095, v{vT}")
        A(f"v_lshl_add_u32 v{vT+2}, v{vT+1}, 15, v{vT+2}")
        A(f"v_add_u32 v{vT+2}, s{sT2}, v{vT+2}")
        A(f"v_add_u32 v{vT+3}, s{sT3}, v{vT}")
        A(f"v_add_u32 v{vT+4}, s{sT4}, v{vT}")
        A(f"v_cmp_eq_u32 vcc, 2, v{vT+1}")
        A(f"v_mov_b32 v{vT+5}, 4096")
        A(f"v_mov_b32 v{vT+6}, 10240")
        A(f"v_cndmask_b32 v{vT+2}, v{vT+2}, v{vT+3}, vcc")
        A(f"v_cmp_le_u32 vcc, 3, v{vT+1}")
        A("s_nop 1")
        A(f"v_cndmask_b32 v{vCB+t}, v{vT+2}, v{vT+4}, vcc")
        A(f"v_cndmask_b32 v{vCS+t}, v{vT+5}, v{vT+6}, vcc")


def setup_p2_2(A):
    A(f"s_lshr_b32 s{sT0}, s{sH}, 1")
    A(f"s_mul_i32 s{sT0}, s{sT0}, 5")
    A(f"s_and_b32 s{sT1}, s{sH}, 1")
    A(f"s_lshl_b32 s{sT2}, s{sT1}, 1")
    A(f"s_add_u32 s{sT2}, s{sT2}, s{sT0}")
    A(f"v_add_u32 v{vT}, s{sT2}, v{vHH}")
    A(f"v_lshlrev_b32 v{vT}, 15, v{vT}")
    A(f"v_lshl_add_u32 v{vOST}, v{vR}, 4, v{vT}")
    A(f"v_lshl_add_u32 v{vOST+1}, v{vR}, 5, v{vT}")
    A(f"s_add_u32 s{sT0}, s{sT0}, 4")
    A(f"s_lshl_b32 s{sT0}, s{sT0}, 15")
    A(f"s_lshl_b32 s{sT1}, s{sT1}, 3")
    A(f"s_add_u32 s{sT0}, s{sT0}, s{sT1}")
    A(f"v_lshlrev_b32 v{vT}, 4, v{vR}")
    A(f"v_add_u32 v{vOST+2}, s{sT0}, v{vT}")
    A(f"v_lshlrev_b32 v{vT}, 5, v{vR}")
    A(f"v_add_u32 v{vOST+3}, s{sT0}, v{vT}")
    A(f"s_mul_i32 s{sT0}, s{sH}, 20")
    A(f"s_add_u32 s{sT1}, s{sT0}, 19")
    A(f"s_lshr_b32 s{sT0}, s{sT0}, 7")
    A(f"s_lshr_b32 s{sT1}, s{sT1}, 7")
    A(f"v_bfe_u32 v{vT}, v{vL}, 4, 1")
    A(f"s_sub_u32 s{sT2}, s{sT1}, s{sT0}")
    A(f"v_mul_u32_u24 v{vT+1}, s{sT2}, v{vT}")
    A(f"v_add_u32 v{vT+1}, s{sT0}, v{vT+1}")
    A(f"v_mul_u32_u24 v{vT+2}, 5, v{vHH}")
    A(f"v_add_u32 v{vT+2}, 5, v{vT+2}")
    A(f"v_add_u32 v{vT+2}, v{vT+2}, v{vT+1}")
    A(f"v_and_b32 v{vT+3}, 15, v{vL}")
    A(f"v_lshl_add_u32 v{vT+2}, v{vT+2}, 4, v{vT+3}")
    A(f"v_lshlrev_b32 v{vF1}, 2, v{vT+2}")
    A(f"v_add_u32 v{vT+2}, {15*16}, v{vT+3}")
    A(f"v_lshlrev_b32 v{vF4}, 2, v{vT+2}")
    A(f"v_and_b32 v{vT+4}, 1, v{vL}")
    A(f"s_lshl_b32 s{sT3}, s{sQB}, 1")
    A(f"v_add_u32 v{vT+4}, s{sT3}, v{vT+4}")
    A(f"v_lshl_add_u32 v{vT+4}, v{vT+1}, 4, v{vT+4}")
    A(f"v_lshlrev_b32 v{vF2}, 2, v{vT+4}")
    A(f"v_and_b32 v{vT}, 1, v{vL}")
    A(f"v_mul_u32_u24 v{vT+1}, s{sT2}, v{vT}")
    A(f"v_add_u32 v{vT+1}, s{sT0}, v{vT+1}")
    A(f"v_bfe_u32 v{vT+2}, v{vL}, 1, 2")
    A(f"v_min_u32 v{vT+2}, 2, v{vT+2}")
    A(f"v_mul_u32_u24 v{vT+2}, 5, v{vT+2}")
    A(f"v_add_u32 v{vT+1}, v{vT+1}, v{vT+2}")
    A(f"s_lshl_b32 s{sT3}, s{sQB}, 1")
    A(f"v_bfe_u32 v{vT+2}, v{vL}, 3, 2")
    A(f"v_min_u32 v{vT+2}, 2, v{vT+2}")
    A(f"v_add_u32 v{vT+2}, s{sT3}, v{vT+2}")
    A(f"v_max_u32 v{vT+2}, 1, v{vT+2}")
    A(f"v_subrev_u32 v{vT+2}, 1, v{vT+2}")
    A(f"v_lshl_add_u32 v{vT+1}, v{vT+1}, 4, v{vT+2}")
    A(f"v_lshlrev_b32 v{vF3}, 2, v{vT+1}")


def setup_p2_3(A):
    A(f"v_lshlrev_b32 v{vBA}, 15, v{vHH}")
    A(f"v_lshl_add_u32 v{vBA}, v{vR}, 4, v{vBA}")
    A(f"v_lshlrev_b32 v{vBA+1}, 4, v{vR}")
    A(f"v_and_b32 v{vT+2}, 25, v{vR}")
    A(f"v_bfe_u32 v{vT+3}, v{vR}, 1, 1")
    A(f"v_lshl_or_b32 v{vT+2}, v{vT+3}, 2, v{vT+2}")
    A(f"v_bfe_u32 v{vT+3}, v{vR}, 2, 1")
    A(f"v_lshl_or_b32 v{vT+2}, v{vT+3}, 1, v{vT+2}")
    A(f"v_lshlrev_b32 v{vT+3}, 15, v{vHH}")
    A(f"v_lshl_add_u32 v{vBA+2}, v{vT+2}, 4, v{vT+3}")
    A(f"v_lshlrev_b32 v{vBA+3}, 4, v{vT+2}")
    A(f"v_mul_u32_u24 v{vT+4}, 320, v{vHH}")
    A(f"v_lshl_add_u32 v{vBA+4}, v{vR}, 4, v{vT+4}")
    A(f"s_and_b32 s{sT1}, s{sW}, 1")
    A(f"s_lshl_b32 s{sT1}, s{sT1}, 10")
    A(f"s_lshl_b32 s{sT0}, s{sQT}, 5")
    A(f"s_add_u32 s{sT2}, s{sT1}, s{sT0}")
    A(f"s_lshl_b32 s{sT0}, s{sPA}, 15")
    A(f"s_lshl_b32 s{sT1}, s{sP2L}, 15")
    A(f"s_and_b32 s{sT3}, s{sH}, 1")
    A(f"s_lshl_b32 s{sT3}, s{sT3}, 3")
    A(f"s_add_u32 s{sT1}, s{sT1}, s{sT3}")
    for prev in range(2):
        if prev:
            A(f"s_cmp_eq_u32 s{sQT}, 0")
            A(f"s_cselect_b32 s{sT3}, 0, 32")
            A(f"s_sub_u32 s{sT2}, s{sT2}, s{sT3}")
        A(f"s_lshl_b32 s{sT3}, s{sT2}, 4")
        if not prev:
            A(f"s_add_u32 s{sBA}, s{sT3}, s{sT0}")
            A(f"s_add_u32 s{sBA}, s{sBA}, {QB}")
            A(f"s_add_u32 s{sBA+1}, s{sT3}, s{sT1}")
            A(f"s_add_u32 s{sBA+1}, s{sBA+1}, {QB}")
        o = sBA + 2 + 3 * prev
        A(f"s_add_u32 s{o}, s{sT3}, s{sT0}")
        A(f"s_add_u32 s{o}, s{o}, {KB}")
        A(f"s_add_u32 s{o+1}, s{sT3}, s{sT1}")
        A(f"s_add_u32 s{o+1}, s{o+1}, {KB}")
        A(f"s_lshr_b32 s{sT3}, s{sT2}, 4")
        A(f"s_mul_i32 s{sT3}, s{sT3}, 640")
        A(f"s_add_u32 s{o+2}, s{sT3}, s{sVH}")
        A(f"s_add_u32 s{o+2}, s{o+2}, {VB}")
    A(f"s_lshl_b32 s{sBA+8}, s{sBT}, 2")
    A(f"s_add_u32 s{sBA+8}, s{sBA+8}, {GATE}")


def setup_p2_4(A):
    sRT, sCO, sTG = sT1, sT2, sT3
    A(f"s_lshr_b32 s{sRT}, s{sH}, 3")
    A(f"s_lshl_b32 s{sT0}, s{sQB}, 2")
    A(f"s_add_u32 s{sRT}, s{sRT}, s{sT0}")
    A(f"s_and_b32 s{sCO}, s{sH}, 7")
    A(f"s_and_b32 s{sTG}, s{sW}, 3")
    A(f"s_lshr_b32 s{sKG}, s{sW}, 2")
    A(f"s_lshl_b32 s{sFLG}, s{sRT}, 8")
    A(f"s_mul_i32 s{sWSRC}, s{sW}, 20480")
    A(f"s_mul_i32 s{sT0}, s{sCO}, 1280")
    A(f"s_add_u32 s{sWSRC}, s{sWSRC}, s{sT0}")
    A(f"s_add_u32 s{sWSRC}, s{sWSRC}, {WOT}")
    A(f"s_lshl_b32 s{sRT}, s{sRT}, 6")
    A(f"s_lshl_b32 s{sTG}, s{sTG}, 4")
    A(f"s_add_u32 s{sRT}, s{sRT}, s{sTG}")
    A(f"s_mul_i32 s{sOUTO}, s{sRT}, 1280")
    A(f"s_mul_i32 s{sT0}, s{sCO}, 160")
    A(f"s_add_u32 s{sOUTO}, s{sOUTO}, s{sT0}")
    A(f"s_lshl_b32 s{sOCB}, s{sRT}, 4")
    A(f"s_mul_i32 s{sT0}, s{sKG}, {40*32768}")
    A(f"s_add_u32 s{sOCB}, s{sOCB}, s{sT0}")
    A(f"s_add_u32 s{sOCB}, s{sOCB}, {OC}")
    A(f"s_lshl_b32 s{sPUB}, s{sQT}, 6")
    A(f"s_lshl_b32 s{sT0}, s{sH}, 1")
    A(f"s_add_u32 s{sPUB}, s{sPUB}, s{sT0}")
    A(f"s_and_b32 s{sT0}, s{sW}, 1")
    A(f"s_add_u32 s{sPUB}, s{sPUB}, s{sT0}")
    A(f"s_lshl_b32 s{sPUB}, s{sPUB}, 2")
    A(f"v_lshlrev_b32 v{vFA}, 2, v{vL}")
    A(f"v_mov_b32 v{vW0}, v{vL16}")
    A(f"v_add_u32 v{vT}, 1024, v{vL16}")
    A(f"v_add_u32 v{vT+1}, {10240 - 256}, v{vL16}")
    A(f"v_cmp_gt_u32 vcc, 16, v{vL}")
    A(f"v_add_u32 v{vW2}, {10240 + 768}, v{vL16}")
    A(f"v_lshrrev_b32 v{vT+2}, 4, v{vL}")
    A(f"v_cndmask_b32 v{vW1}, v{vT+1}, v{vT}, vcc")
    A(f"v_and_b32 v{vT+3}, 15, v{vL}")
    A(f"v_lshlrev_b32 v{vT+4}, 15, v{vT+2}")
    A(f"v_lshl_add_u32 v{vOC}, v{vT+3}, 4, v{vT+4}")
    A(f"v_mul_u32_u24 v{vT+4}, 1280, v{vT+2}")
    A(f"v_lshl_add_u32 v{vWR}, v{vT+3}, 4, v{vT+4}")
    A(f"v_mul_u32_u24 v{vT+4}, 1280, v{vT+3}")
    A(f"v_lshl_add_u32 v{vST}, v{vT+2}, 3, v{vT+4}")


SETUP_P2 = [setup_p2_0, setup_p2_1, setup_p2_2, setup_p2_3, setup_p2_4]


def setup_phase2(A):
    for f in SETUP_P2:
        f(A)


def pattern_fill(A, n):
    for r in range(2):
        A(f"v_and_b32 v{vT}, 255, v0")
        if r:
            A(f"v_add_u32 v{vT}, 256, v{vT}")
        A(f"v_mul_u32_u24 v{vT+1}, 3277, v{vT}")
        A(f"v_lshrrev_b32 v{vT+1}, 16, v{vT+1}")
        A(f"v_mul_u32_u24 v{vT+1}, 20, v{vT+1}")
        A(f"v_cmp_eq_u32 vcc, v{vT+1}, v{vT}")
        A(f"v_mov_b32 v{vT+4}, 0")
        A(f"v_mov_b32 v{vT+5}, 0x3f803f80")
        A(f"v_cndmask_b32 v{vT+4}, v{vT+4}, v{vT+5}, vcc")
        for i in range(1, 4):
            A(f"v_mov_b32 v{vT+4+i}, v{vT+4}")
        if r == 1:
            A(f"v_cmp_gt_u32 vcc, {PAT_UNITS}, v{vT}")
        A(f"v_lshlrev_b32 v{vT}, 4, v{vT}")
        A(f"v_add_u32 v{vT}, {ONES}, v{vT}")
        if r == 1:
            A("s_and_saveexec_b64 s[%d:%d], vcc" % (sT4, sT5))
            A(f"s_cbranch_execz L_pat_done{n}")
        A(f"ds_write_b128 v{vT}, {v(vT+4,4)}")
    A.label(f"L_pat_done{n}")
    A("s_mov_b64 exec, -1")
    A.lds_wait_all()


def gen(prof=False):
    A = Asm()
    A.prof = prof
    A.PROF_V = 239
    kernel_header(A, NAME)
    A("s_cmp_ge_u32 s2, 256")
    A("s_cbranch_scc1 L_end")
    A.stamp("start")
    if EXP.get("jit"):
        A(f"s_mov_b32 s{sW}, 0")
        jitter(A)
    A("s_load_dwordx4 s[4:7], s[0:1], 0")
    A(f"s_load_dwordx2 s[{sP}:{sP+1}], s[0:1], 32")
    A(f"s_load_dwordx2 s[{sP+2}:{sP+3}], s[0:1], 72")
    A(f"s_load_dwordx4 s[{sDBG}:{sDBG+3}], s[0:1], 56")
    A(f"v_lshrrev_b32 v{vT}, 6, v0")
    A(f"v_and_b32 v{vL}, 63, v0")
    A(f"v_readfirstlane_b32 s{sW}, v{vT}")
    A(f"v_and_b32 v{vR}, 31, v{vL}")
    A(f"v_lshrrev_b32 v{vHH}, 5, v{vL}")
    A(f"v_lshlrev_b32 v{vL16}, 4, v{vL}")
    A(f"s_and_b32 s{sT0}, s2, 7")
    A(f"s_lshr_b32 s{sT1}, s2, 3")
    A(f"s_and_b32 s{sRB}, s{sT0}, 1")
    A(f"s_lshl_b32 s{sRB}, s{sRB}, 3")
    A(f"s_and_b32 s{sT2}, s{sT1}, 7")
    A(f"s_add_u32 s{sRB}, s{sRB}, s{sT2}")
    A(f"s_lshr_b32 s{sCT}, s{sT0}, 1")
    A(f"s_lshl_b32 s{sCT}, s{sCT}, 2")
    A(f"s_lshr_b32 s{sT2}, s{sT1}, 3")
    A(f"s_add_u32 s{sCT}, s{sCT}, s{sT2}")
    if EXP.get("defer", 0):
        A(f"s_mov_b32 s{sDEFON}, 0")
    A(f"s_and_b32 s{sGI}, s{sW}, 3")
    A(f"s_and_b32 s{sMH}, s{sGI}, 1")
    A(f"s_lshr_b32 s{sNH}, s{sGI}, 1")
    A(f"s_mul_i32 s{sXOFF}, s{sRB}, {128*1280}")
    A(f"s_lshl_b32 s{sWOFF}, s{sCT}, 8")
    A(f"s_lshl_b32 s{sLDS1}, s{sGI}, 10")
    A(f"s_mul_hi_u32 s{sT0}, s{sCT}, 0x33333334")
    A(f"s_mul_i32 s{sT0}, s{sT0}, 5")
    A(f"s_sub_u32 s{sCT5}, s{sCT}, s{sT0}")
    A(f"v_lshrrev_b32 v{vT}, 3, v{vL}")
    A(f"s_lshl_b32 s{sT0}, s{sGI}, 3")
    A(f"v_add_u32 v{vT}, s{sT0}, v{vT}")
    A(f"v_lshrrev_b32 v{vT+1}, 1, v{vT}")
    A(f"v_xor_b32 v{vT+1}, v{vT+1}, v{vL}")
    A(f"v_and_b32 v{vT+1}, 7, v{vT+1}")
    A(f"v_lshlrev_b32 v{vT+1}, 4, v{vT+1}")
    A(f"v_mul_u32_u24 v{vT+2}, 1280, v{vT}")
    A(f"v_add_u32 v{vXD}, v{vT+2}, v{vT+1}")
    A(f"v_lshrrev_b32 v{vT}, 4, v{vL}")
    A(f"v_lshlrev_b32 v{vT+1}, 2, v{vT}")
    A(f"v_xor_b32 v{vT+1}, v{vT+1}, v{vL}")
    A(f"v_and_b32 v{vT+1}, 15, v{vT+1}")
    A(f"v_lshlrev_b32 v{vT+1}, 4, v{vT+1}")
    A(f"s_lshl_b32 s{sT0}, s{sGI}, 2")
    A(f"v_add_u32 v{vT}, s{sT0}, v{vT}")
    A(f"v_mul_u32_u24 v{vT}, 3840, v{vT}")
    A(f"v_add_u32 v{vWD}, v{vT}, v{vT+1}")
    if EXP.get("stampP"):
        A("s_memtime s[96:97]")
        A("s_memrealtime s[98:99]")
    A("s_waitcnt lgkmcnt(0)")
    if EXP.get("stampP"):
        A(f"v_writelane_b32 v{A.PROF_V}, s96, 14")
        A(f"v_writelane_b32 v{A.PROF_V}, s98, 30")
        A.stamp("", 15)
    srd(A, sX, 4, X_BYTES)
    srd(A, sWA, 6, W_BYTES)
    srd(A, sWB, sP, W_BYTES)
    srd(A, sWS, sP + 2, WS_USED)
    srd(A, sOUT, sDBG, OUT_BYTES)
    A(f"s_mov_b32 s{sDBG}, s{sDBG+2}")
    A(f"s_and_b32 s{sDBG+1}, s{sDBG+3}, 0xffff")
    A(f"s_mov_b32 s{sDBG+2}, 256")
    A(f"s_mov_b32 s{sDBG+3}, 0x20000")
    A(f"s_cmp_eq_u32 s{sCT}, 15")
    A("s_cbranch_scc1 L_nodma")
    A(f"s_cmp_lt_u32 s{sW}, 4")
    A("s_cbranch_scc1 L_nodma")
    if EXP.get("txf"):
        touch_xcd_first(A)
    for b in range(3):
        for p in range(8):
            g_dma(A, b, p)
    A(f"s_cmp_ge_u32 s{sCT}, 10")
    A("s_cbranch_scc1 L_g1n")
    A("s_branch L_g1t")
    A.label("L_nodma")
    if EXP.get("tchip", 13) in (1, 2, 3):
        touch_chip(A, {1: "xab", 2: "xa", 3: "b"}[EXP["tchip"]])
    if EXP.get("tchip") == 6:
        touch_chip_wide(A, "xa", "e")
    if EXP.get("tchip") == 7:
        touch_chip_wide(A, "ax", "e")
    A(f"s_or_b32 s{sT0}, s2, s{sW}")
    A(f"s_cmp_lg_u32 s{sT0}, 0")
    A("s_cbranch_scc1 L_nonce_done")
    A(f"s_memrealtime s[{sT4}:{sT5}]")
    A("s_waitcnt lgkmcnt(0)")
    A(f"s_or_b32 s{sT0}, s{sT4}, 1")
    A(f"v_mov_b32 v{vT}, s{sT0}")
    A(f"v_mov_b32 v{vT+1}, 0")
    A("s_mov_b64 exec, 1")
    A(f"buffer_store_dword v{vT}, v{vT+1}, s[{sDBG}:{sDBG+3}], 0 offen sc1")
    A("s_mov_b64 exec, -1")
    A.label("L_nonce_done")
    if EXP.get("cpf"):
        A(f"s_lshr_b32 s{sT1}, s2, 3")
        A(f"s_cmp_ge_u32 s{sT1}, 8")
        A("s_cbranch_scc1 L_cpf_done")
        A(f"s_cmp_lg_u32 s{sW}, {EXP['cpf'] - 1}")
        A("s_cbranch_scc1 L_cpf_done")
        A(f"s_getpc_b64 s[{sT4}:{sT5}]")
        A.label("L_cpf_pc")
        A(f"s_sub_u32 s{sT4}, s{sT4}, L_cpf_pc - {NAME}")
        A(f"s_subb_u32 s{sT5}, s{sT5}, 0")
        A(f"s_lshl_b32 s{sT1}, s{sT1}, 13")
        A(f"v_lshlrev_b32 v{vT}, 7, v{vL}")
        A(f"v_add_u32 v{vT}, s{sT1}, v{vT}")
        A(f"v_min_u32 v{vT}, L_end - {NAME}, v{vT}")
        A(f"global_load_dword v{G_P}, v{vT}, s[{sT4}:{sT5}]")
        A.label("L_cpf_done")
    if EXP.get("tchip", 13) in (10, 11, 12, 13, 14):
        m = EXP.get("tchip", 13)
        if m in (13, 14):
            touch_phase(A, 3)
        if m in (10, 14):
            touch_phase(A, 0)
        setup_phase1_reads(A)
        if m not in (10, 14):
            touch_phase(A, 0)
        for k, f in enumerate(SETUP_P2):
            if k == (1 if m != 12 else 2):
                touch_phase(A, 1)
            f(A)
        touch_phase(A, 2)
    elif EXP.get("tchip") in (5, 9):
        setup_phase1_reads(A)
        touch_chip(A, "xa" if EXP["tchip"] == 5 else "xab")
        setup_phase2(A)
    else:
        setup_phase1_reads(A)
        setup_phase2(A)
    if EXP.get("tchip") == 4:
        touch_chip(A, "xa")
    if EXP.get("tchip") == 8:
        touch_chip(A, "xab")
    A.stamp("issued")
    A(f"s_cmp_eq_u32 s{sCT}, 15")
    A("s_cbranch_scc1 L_spare")
    A(f"s_cmp_ge_u32 s{sCT}, 10")
    A("s_cbranch_scc1 L_vtile")
    if prof:
        A.stamps += ["blk0 landed", "gemm0", "epi0", "gemm1", "epi1"]
        if EXP.get("stampB"):
            A.stamps += ["B10", "B12", "B14", "B16"]
        if EXP.get("stampA"):
            A.stamps += ["B0", "B2", "B4", "B6"]
    gemm(A, True, "t")
    A("s_branch L_attn")
    A.label("L_vtile")
    gemm(A, False, "n")
    A.label("L_attn")
    A.vm_q, A.lds_q = [], []
    jitter(A)
    A.stamp("attn start")
    if EXP.get("prio") == 1:
        A(f"s_cmp_lt_u32 s{sW}, 4")
        A("s_cbranch_scc1 L_prio_done")
        A("s_setprio 1")
        A.label("L_prio_done")
    rd_k01(A, 0)
    rd_k2(A, 0)
    dma_chunk(A, 3)
    A(f"v_cmp_gt_u32 vcc, 20, v{vR}")
    A(f"v_mov_b32 v{vT}, 0")
    A(f"v_mov_b32 v{vT+1}, 5120")
    A(f"v_cndmask_b32 v{vT}, v{vT}, v{vT+1}, vcc")
    for sl in range(NSLOT):
        A(f"v_add_u32 v{vV2[sl]}, v{vV+sl}, v{vT}")
    b_consts(A)
    A.lds_wait_all()
    mf16(A, SA, K01, Q01, "0")
    mf8(A, SA, K2, Q2, v(SA, 16))
    A("s_nop 7")
    A("s_nop 5")
    max16(A, vT, SA, True)
    cross_half_max(A, vT, vT + 1)
    for i in range(16):
        A(f"v_sub_f32 v{NEGM+i}, 0, v{vT}")
    A("s_nop 1")
    mf16(A, SA, K01, Q01, v(NEGM, 16))
    mf8(A, SA, K2, Q2, v(SA, 16))
    rd_k01(A, 1)
    rd_k2(A, 1)
    rd_v(A, 0, 0)
    A("s_nop 7")
    A("s_nop 3")
    NT = 64
    sched = {}
    def at(t, half, fn):
        sched.setdefault((t, half), []).append(fn)
    fb_items = [(vFL, vF3, F1B, None), (vFL2, vF4, F1A, None)]
    pos = {}
    def issue(name, items):
        def f(A):
            pos[name] = poll_issue(A, items, name)
        return f
    if EXP.get("defer", 0):
        def deferred(g):
            def f(A):
                A(f"s_cmp_eq_u32 s{sDEFON}, 0")
                A(f"s_cbranch_scc1 L_def{g}")
                A(f"buffer_store_dwordx4 {v(G_P + 4*g, 4)}, v{vDEF[(g >> 1) & 1]}, {WS}, s{sDEF+g} offen sc1")
                A.label(f"L_def{g}")
            return f
        for g in range(8):
            at(6 + (g + 1), 0, deferred(g)) if g < 7 else at(13, 1, deferred(g))
        T_PUB1B, T_POLL1B, T_CHK1B = 22, 25, 30
        T_G, T_BL, T_BU, T_WB, T_PUBB, T_C7, T_POLLB = (30, 1), 31, 39, 40, 47, 47, 51
    else:
        T_PUB1B, T_POLL1B, T_CHK1B = 6, 13, 22
        T_G, T_BL, T_BU, T_WB, T_PUBB, T_C7, T_POLLB = (22, 1), 23, 31, 42, 38, 39, 48
    at(T_POLL1B, 0, issue("f1b", fb_items))
    fo_items = [(vFL, vFA, FLAGB, sFLG)]
    pre_barrier = {T_CHK1B: lambda A: poll_check(A, fb_items, pos["f1b"], "f1b"),
                   54: lambda A: poll_check(A, fo_items, pos["fb"], "fb")}
    at(T_G[0], T_G[1], lambda A: A.vm(f"buffer_load_dword v{vG}, v{vGA}, {WS}, s{sGOFF} offen sc1", "g"))
    for i, f in enumerate(b_load_items()):
        at(T_BL + i // 2, i % 2, f)
    at(T_BU, 0, b_unit)
    at(T_PUBB, 0 if EXP.get("defer", 0) else 1, lambda A: publish(A, sPUB, FLAGB, "stb"))
    at(T_POLLB, 0, issue("fb", fo_items))
    for k in range(10):
        at(55 + k // 2, k % 2, lambda A, k=k: oc_load(A, 1, k))
    for st in range(3):
        for p in range(3):
            i = 3 * st + p
            at(T_WB + i // 2, i % 2, lambda A, st=st, p=p: dma_w_piece(A, 1, st, p))
    for st in range(3, 5):
        for p in range(3):
            i = 3 * (st - 3) + p
            at(57 + i // 2, 1 - i % 2, lambda A, st=st, p=p: dma_w_piece(A, 1, st, p))
    for c in range(2, NCH - 2):
        t0 = TPC * c - 1
        if c == 4:
            t0 = 31 if EXP.get("defer", 0) else 32
        if c == 5:
            t0 = T_C7
        for p in range(3):
            at(t0 + (p + 1) // 2, (p + 1) % 2, lambda A, c=c, p=p: dma_chunk_piece(A, c + 2, p))
    for t in range(NT):
        cur = SA if t % 2 == 0 else SB
        nxt = SB if t % 2 == 0 else SA
        if (t == 32 and not (EXP.get("stampB") or EXP.get("stampA"))) or (EXP.get("stampB") and t in (21, 24)):
            A.stamp("t%d" % t)
        if t % TPC == TPC - 2 and t + 2 < NT:
            c = (t + 2) // TPC
            if c == 1:
                A.vm_wait_all()
            if c == 3:
                A.vm_wait_all()
            A.vm_wait(("c", c))
            if t in pre_barrier:
                pre_barrier[t](A)
            A("s_barrier")
            if t == T_PUB1B:
                with Wave0(A, "pubb"):
                    publish(A, sF1, F1B)
        if EXP.get("prio") == 2 and t == 55:
            A(f"s_cmp_lt_u32 s{sW}, 4")
            A("s_cbranch_scc1 L_prio_done")
            A("s_setprio 1")
            A.label("L_prio_done")
        if EXP.get("prio") == 3 and t % 8 == 7:
            A(f"s_lshr_b32 s{sT0}, s{sW}, 2")
            A(f"s_cmp_eq_u32 s{sT0}, {(t // 8) % 2}")
            A(f"s_cbranch_scc1 L_prio_a{t}")
            A("s_setprio 0")
            A(f"s_branch L_prio_b{t}")
            A.label(f"L_prio_a{t}")
            A("s_setprio 1")
            A.label(f"L_prio_b{t}")
        if EXP.get("xbar") and t == EXP["xbar"]:
            A("s_barrier")
        if t == 63:
            A.vm_wait(("w", 1, 4))
        for f in sched.get((t, 0), []):
            f(A)
        if t + 1 < NT:
            A.lds_wait(("k01", t + 1))
            mf16(A, nxt, K01, Q01, "0" if EXP.get("m0") else v(NEGM, 16))
            if t + 2 < NT:
                rd_k01(A, t + 2)
        exps(A, cur, 0)
        if t > 0:
            A.lds_wait(("v", t - 1, 1))
            mf16(A, O, V1, P + 4, v(O, 16))
        rd_v(A, t, 1)
        exps(A, cur, 1)
        for f in sched.get((t, 1), []):
            f(A)
        if t + 1 < NT:
            A.lds_wait(("k2", t + 1))
            mf8(A, nxt, K2, Q2, v(nxt, 16))
            if t + 2 < NT:
                rd_k2(A, t + 2)
        exps(A, cur, 2)
        A.lds_wait(("v", t, 0))
        mf16(A, O, V0, P, "0" if t == 0 else v(O, 16))
        if t + 1 < NT:
            rd_v(A, t + 1, 0)
        exps(A, cur, 3)
    A.lds_wait(("v", NT - 1, 1))
    A("s_nop 1")
    mf16(A, O, V1, P + 4, v(O, 16))
    A(f"v_add_u32 v{vT+5}, 0x10000, v{vWR}")
    A(f"v_add_u32 v{vT+6}, 0x20000, v{vWR}")
    A(f"v_mov_b32 v{vT+3}, {hex(f32bits(BIG))}")
    A("s_nop 7")
    A("s_nop 3")
    A.stamp("loop end")
    row_sum(A, O)
    A(f"v_mul_f32 v{vT+2}, 0, v{O}")
    for i in range(1, 12):
        A(f"v_fma_f32 v{vT+2}, v{O+i}, 0, v{vT+2}")
    A(f"v_add_f32 v{vT+2}, v{vT+2}, v{vT+1}")
    A(f"v_cmp_lt_f32 vcc, v{vT+2}, v{vT+3}")
    A("s_nop 4")
    A("s_cmp_eq_u64 vcc, exec")
    A("s_cbranch_scc0 L_fallback")
    A.label("L_finish")
    jitter(A, True)
    A.vm_wait("g")
    finish_tile(A, O, vG, False, vOST, sQ0, 0, "sta")
    A(f"v_add_u32 v{vT+5}, 0x10000, v{vWR}")
    A(f"v_add_u32 v{vT+6}, 0x20000, v{vWR}")
    A("s_barrier")
    A.stamp("ring free") if not (EXP.get("stampB") or EXP.get("stampA")) else None
    wa = [(st, p) for st in range(2) for p in range(3)]

    def hook_b(k, kg):
        pk = EXP.get("pubk", 2)
        if k == pk:
            publish(A, sPUB, FLAGA, "sta")
        if pk <= k < pk + 6:
            st, p = wa[k - pk]
            dma_w_piece(A, 0, st, p)
    outproj(A, 1, True, hook_b)
    A.stamp("b part") if not (EXP.get("stampB") or EXP.get("stampA")) else None
    A("s_barrier")
    for st in range(2, 5):
        for p in range(3):
            dma_w_piece(A, 0, st, p)
    if EXP.get("notight"):
        fa_items = [(vFL, vFA, FLAGA, sFLG)]
        pfa = poll_issue(A, fa_items, "fa")
        poll_check(A, fa_items, pfa, "fa")
    else:
        poll_tight(A, FLAGA, sFLG, vFA, "fa")
    A.vm_wait(("w", 0, 4))
    A("s_barrier")
    A.stamp("flags a") if not (EXP.get("stampB") or EXP.get("stampA")) else None
    for k in range(10):
        oc_load(A, 0, k)
    outproj(A, 0, False)
    A.stamp("a part") if not (EXP.get("stampB") or EXP.get("stampA")) else None
    A(f"s_and_b32 s{sT0}, s{sW}, 3")
    A(f"s_mul_i32 s{sT0}, s{sT0}, 5120")
    A(f"v_add_u32 v{vT}, s{sT0}, v{vL16}")
    A(f"s_cmp_eq_u32 s{sKG}, 0")
    A("s_cbranch_scc1 L_red_a")

    def finish_out(tiles):
        A.lds_q = []
        for nt in tiles:
            A.lds(f"ds_read_b128 {v(WF+4*nt,4)}, v{vT} offset:{nt*1024}", ("r", nt))
        for nt in tiles:
            A.lds_wait(("r", nt))
            for i in range(4):
                A(f"v_add_f32 v{ACC+4*nt+i}, v{ACC+4*nt+i}, v{WF+4*nt+i}")
            A(f"v_cvt_pk_bf16_f32 v{ACC+4*nt}, v{ACC+4*nt}, v{ACC+4*nt+1}")
            A(f"v_cvt_pk_bf16_f32 v{ACC+4*nt+1}, v{ACC+4*nt+2}, v{ACC+4*nt+3}")
            A.vm(f"buffer_store_dwordx2 {v(ACC+4*nt,2)}, v{vST}, s[{sOUT}:{sOUT+3}], s{sOUTO} offen offset:{nt*32}{EXP.get('outst','')}", "st")

    A("s_nop 5")
    for nt in range(3):
        A(f"ds_write_b128 v{vT}, {v(ACC+4*nt,4)} offset:{nt*1024}")
    A("s_waitcnt lgkmcnt(0)")
    A("s_barrier")
    finish_out((3, 4))
    if prof:
        A.stamp("", len(A.stamps))
        A.stamp_flush(0, sWS, PROF, vT + 2)
    A("s_endpgm")
    A.label("L_red_a")
    A("s_nop 5")
    for nt in (3, 4):
        A(f"ds_write_b128 v{vT}, {v(ACC+4*nt,4)} offset:{nt*1024}")
    A("s_waitcnt lgkmcnt(0)")
    A("s_barrier")
    finish_out((0, 1, 2))
    A.stamp("end")
    if prof and EXP.get("dbg"):
        with Wave0(A, "dbgout"):
            A(f"v_subrev_u32 v{vT}, s{sNONCE}, v{A.PROF_V}")
            A(f"v_subrev_u32 v{vT+1}, 16, v{vL}")
            A(f"v_lshlrev_b32 v{vT+1}, 2, v{vT+1}")
            if EXP["dbg"] == 2:
                A(f"v_sub_u32 v{vT}, 0x100000, v{vT}")
            A("s_mov_b32 exec_lo, 0xfffe0000")
            A("s_mov_b32 exec_hi, 0")
            A(f"buffer_atomic_umax v{vT}, v{vT+1}, s[{sDBG}:{sDBG+3}], 0 offen")
            A("s_mov_b64 exec, -1")
    A.stamp_flush(0, sWS, PROF, vT)
    A("s_endpgm")
    fallback(A)
    spare(A)
    A.label("L_end")
    A("s_endpgm")
    kernel_footer(A, NAME, NV, 100 if EXP.get("jit") else 96)
    gen.stamps = getattr(A, "stamps", [])
    if prof and EXP.get("stampP"):
        assert len(gen.stamps) == 14, len(gen.stamps)
        gen.stamps = gen.stamps + ["pre-kernarg", "kernarg"]
    return A.text()

if __name__ == "__main__":
    print(gen())
```

```python
from asmlib import *
from layout2 import *

NAME = "gated_mix__softmax_full_mha__sliding_local_dilated__prompt_kernel"
DOC = """; ---------------------------------------------------------------------------------------------
;
;
; ---------------------------------------------------------------------------------------------
"""
EXP = {}
STAGE, NST, NB = 32768, 5, 20
SLOT = CHB
NSLOT = 4
TPC = CH // 32
NCH = S // CH
ONES = 4 * SLOT
PAT_UNITS = 336
assert ONES + PAT_UNITS * 16 <= 98304
WBASE = ONES + 672 * 16
WSTG = 20480
LDS_BYTES = 163840
WB_OFF = [WBASE, WBASE + WSTG, WBASE + 2 * WSTG, 0, SLOT]
WA_OFF = [2 * SLOT, 3 * SLOT, WBASE, WBASE + WSTG, WBASE + 2 * WSTG]
assert WBASE + 3 * WSTG <= LDS_BYTES
BIG = 2.0 ** 64
SPIN_MAX = 1 << 16
sWS, sOUT = 8, 12
sW, sNONCE = 16, 17
sH, sQB, sPA, sLDSW, sLDSW2, sWSRC, sOCB, sFLG, sPUB, sOUTO, sKG, sQ0, sBT, sQT = range(18, 32)
sT0, sT1, sT2, sT3, sT4, sT5 = range(32, 38)
sM = 38
sLO20 = 40
sCNT = 42
sP2L = 43
sDBG = 44
sBA = 48
sVH = 57
sX, sWA, sWB = 60, 64, 68
sRB, sCT, sMH, sNH, sXOFF, sWOFF, sLDS1, sCT5, sTP, sB16, sQS, sGI = range(72, 84)
sQOFF, sQOFF2, sGOFF, sF1 = 88, 89, 90, 91
sDEF, sDEFON = 60, 84
vDEF = [241, 234]
sP = 92
vL, vR, vHH = 1, 2, 3
vK01, vK2, vV = 4, 8, 12
vL16, vG, vGB, vFL = 16, 17, 18, 19
vT = 20
SA, SB, NEGM, O, P = 28, 44, 60, 76, 92
Q01, Q2, K01, K2, V0, V1 = 100, 104, 108, 112, 116, 120
BQ01, BQ2, BK01, BK2, BKP01, BKP2 = 124, 128, 132, 136, 140, 144
BV0, BV1, BVP, BS0, BS1, BO, BP = 148, 152, 156, 160, 176, 192, 208
vBA = 220
vW0, vW1, vW2, vOC, vWR, vST, vFA = 225, 226, 227, 228, 229, 230, 231
vF1, vF2, vF3, vF4 = 232, 233, 234, 241
vV2 = [232, 233, 236, 237]
vFL2 = 235
vQA, vQA2, vGA = 236, 237, 238
vOST = 252
vXD, vWD = 242, 243
vCB, vCS = 244, 247
vCT = 250
NV = 256
OCB, OCA, ACC, WF = 124, 164, 204, 28
G_ACC = 124
G_F = 28
G_P = 188
vA16 = 76
vXR, vWR1 = 106, 118
WS = f"s[{sWS}:{sWS+3}]"


def st1():
    return " sc1"


def publish(A, soff_reg, base, tag=None):
    if tag is not None:
        A.vm_wait(tag)
    A(f"v_mov_b32 v{vT}, s{sNONCE}")
    A(f"v_mov_b32 v{vT+1}, 0")
    A(f"s_add_u32 s{sT0}, s{soff_reg}, {base}")
    A("s_mov_b64 exec, 1")
    A.vm(f"buffer_store_dword v{vT}, v{vT+1}, {WS}, s{sT0} offen sc1", "pub")
    A("s_mov_b64 exec, -1")


_jit_n = [0]
def jitter(A, per_wave=False):
    if not EXP.get("jit"):
        return
    _jit_n[0] += 1
    k = _jit_n[0]
    A(f"s_mul_i32 s96, s2, {(2654435761 * (k + EXP['jit'])) & 0x7fffffff | 1}")
    if per_wave:
        A(f"s_mul_i32 s97, s{sW}, {(40503 * (k + 7)) | 1}")
        A("s_add_u32 s96, s96, s97")
    A("s_lshr_b32 s96, s96, 20")
    A("s_and_b32 s96, s96, 15")
    A("s_cmp_lt_u32 s96, 12")
    A(f"s_cbranch_scc1 L_jit{k}_done")
    A("s_and_b32 s96, s96, 3")
    A("s_add_u32 s96, s96, 1")
    A.label(f"L_jit{k}")
    A("s_sleep 32")
    A("s_sub_u32 s96, s96, 1")
    A("s_cmp_lg_u32 s96, 0")
    A(f"s_cbranch_scc1 L_jit{k}")
    A.label(f"L_jit{k}_done")


class Wave0:
    def __init__(self, A, name):
        self.A, self.name = A, name
    def __enter__(self):
        A = self.A
        A(f"s_cmp_lg_u32 s{sW}, 0")
        A(f"s_cbranch_scc1 L_w0_{self.name}")
        self.saved = (list(A.vm_q), dict(A.vm_counts or {}))
    def __exit__(self, *a):
        A = self.A
        A.vm_q, A.vm_counts = self.saved[0], (self.saved[1] or None)
        A.label(f"L_w0_{self.name}")


def _poll_loads(A, items):
    for (vdst, voff, base, soff_reg) in items:
        if soff_reg is None:
            A(f"s_mov_b32 s{sT0}, {base}")
        else:
            A(f"s_add_u32 s{sT0}, s{soff_reg}, {base}")
        A(f"buffer_load_dword v{vdst}, v{voff}, {WS}, s{sT0} offen sc1")


def poll_issue(A, items, name):
    with Wave0(A, name + "_i"):
        _poll_loads(A, items)
    return A.vm_pos("L")


def poll_check(A, items, pos, name, inv=False, drain=False):
    def compare():
        for i, (vdst, _, _, _) in enumerate(items):
            if i == 0:
                A(f"v_cmp_eq_u32 vcc, s{sNONCE}, v{vdst}")
            else:
                A(f"v_cmp_eq_u32 s[{sT4}:{sT5}], s{sNONCE}, v{vdst}")
                A("s_nop 3")
                A(f"s_and_b64 vcc, vcc, s[{sT4}:{sT5}]")
        A("s_nop 3")
        A("s_cmp_eq_u64 vcc, exec")
    with Wave0(A, name + "_c"):
        A(f"s_waitcnt vmcnt({A.vm_pos('L') - pos})")
        compare()
        A(f"s_cbranch_scc1 L_{name}_ok")
        A(f"s_mov_b32 s{sCNT}, 0")
        A.label(f"L_{name}_spin")
        A("s_sleep 2")
        _poll_loads(A, items)
        A(f"s_add_u32 s{sCNT}, s{sCNT}, 1")
        A(f"s_cmp_ge_u32 s{sCNT}, {SPIN_MAX}")
        A(f"s_cbranch_scc1 L_{name}_ok")
        A("s_waitcnt vmcnt(0)")
        compare()
        A(f"s_cbranch_scc0 L_{name}_spin")
        A.label(f"L_{name}_ok")
        if inv:
            A("buffer_inv sc1")
        if drain:
            A("s_waitcnt vmcnt(0)")


def poll_tight(A, base, soff_reg, voff, name):
    regs = [vFL, vFL2, vT + 2, vT + 3]
    with Wave0(A, name):
        A(f"s_add_u32 s{sT1}, s{soff_reg}, {base}")
        for r in regs:
            A(f"buffer_load_dword v{r}, v{voff}, {WS}, s{sT1} offen sc1")
            A("s_sleep 1")
        A(f"s_mov_b32 s{sCNT}, 0")
        A.label(f"L_{name}_spin")
        for r in regs:
            A("s_waitcnt vmcnt(3)")
            A(f"v_cmp_eq_u32 vcc, s{sNONCE}, v{r}")
            A("s_nop 3")
            A("s_cmp_eq_u64 vcc, exec")
            A(f"s_cbranch_scc1 L_{name}_ok")
            A(f"buffer_load_dword v{r}, v{voff}, {WS}, s{sT1} offen sc1")
        A(f"s_add_u32 s{sCNT}, s{sCNT}, 1")
        A(f"s_cmp_lt_u32 s{sCNT}, {SPIN_MAX}")
        A(f"s_cbranch_scc1 L_{name}_spin")
        A.label(f"L_{name}_ok")


def nonce_issue(A):
    A(f"v_mov_b32 v{vT}, 0")
    A.vm(f"buffer_load_dword v{vFL}, v{vT}, s[{sDBG}:{sDBG+3}], 0 offen sc1", "nonce")


def nonce_check(A, name):
    A.vm_wait("nonce")
    A("s_nop 0")
    A(f"v_readfirstlane_b32 s{sNONCE}, v{vFL}")
    nonce_verify(A, name)


def nonce_verify(A, name):
    A("s_nop 3")
    A(f"s_cmp_lg_u32 s{sNONCE}, 0")
    A(f"s_cbranch_scc1 L_{name}_ok")
    A(f"s_mov_b32 s{sCNT}, 0")
    A.label(f"L_{name}_spin")
    A("s_sleep 1")
    A(f"v_mov_b32 v{vT}, 0")
    A(f"buffer_load_dword v{vFL}, v{vT}, s[{sDBG}:{sDBG+3}], 0 offen sc1")
    A(f"s_add_u32 s{sCNT}, s{sCNT}, 1")
    A(f"s_cmp_ge_u32 s{sCNT}, {SPIN_MAX}")
    A(f"s_cbranch_scc1 L_{name}_ok")
    A("s_waitcnt vmcnt(0)")
    A(f"v_readfirstlane_b32 s{sNONCE}, v{vFL}")
    A("s_nop 3")
    A(f"s_cmp_eq_u32 s{sNONCE}, 0")
    A(f"s_cbranch_scc1 L_{name}_spin")
    A.label(f"L_{name}_ok")


def g_dma(A, b, p):
    kb, st, t = b % 10, b % NST, p & 3
    A(f"s_add_u32 m0, s{sLDS1}, {st*STAGE + (p >> 2)*16384 + 4096*t}")
    if p < 4:
        A(f"s_add_u32 s{sT0}, s{sXOFF}, {kb*128 + t*40960}")
        A.vm(f"buffer_load_dwordx4 v{vXD}, s[{sX}:{sX+3}], s{sT0} offen lds", ("d", b))
    else:
        sw = sWA if b < 10 else sWB
        A(f"s_add_u32 s{sT0}, s{sWOFF}, {(kb*64 + 16*t) * 3840}")
        A.vm(f"buffer_load_dwordx4 v{vWD}, s[{sw}:{sw+3}], s{sT0} offen lds", ("d", b))


def g_acc(mt, nt):
    return G_ACC + 32 * mt + 16 * nt


def g_frag(s_, i):
    return G_F + 16 * (s_ % 3) + 4 * i


def g_read_list(s_):
    b, ks = divmod(s_, 4)
    st = b % NST
    base, off = st >> 1, (st & 1) * STAGE
    out = []
    for mt in range(2):
        out.append(f"ds_read_b128 {v(g_frag(s_, mt),4)}, v{vXR + 3*ks + base} offset:{off + mt*4096}")
    for nt in range(2):
        for q in range(2):
            out.append(f"ds_read_b64_tr_b16 {v(g_frag(s_, 2+nt)+2*q,2)}, v{vWR1 + 3*nt + base} offset:{off + 16384 + ks*4096 + q*1024}")
    return out


def g_reads(A, s_):
    for ins in g_read_list(s_):
        A.lds(ins, ("f", s_))


def g_step(A, s_, last, tr, extra=None):
    b, ks = divmod(s_, 4)
    A.lds_wait(("f", s_))
    nxt = g_read_list(s_ + 2) if s_ + 2 <= last else []
    for i, (mt, nt) in enumerate(((0, 0), (0, 1), (1, 0), (1, 1))):
        d = g_acc(mt, nt)
        c = "0" if (s_ % 40 == 0) else v(d, 16)
        x, w = g_frag(s_, mt), g_frag(s_, 2 + nt)
        a, bb = (w, x) if tr else (x, w)
        A(f"v_mfma_f32_32x32x16_bf16 {v(d,16)}, {v(a,4)}, {v(bb,4)}, {c}")
        for ins in nxt[2*i:2*i+2]:
            A.lds(ins, ("f", s_ + 2))
        if extra and i == 3:
            extra()


def epi_prepare(A, isb, tr, n):
    A(f"s_lshl_b32 s{sTP}, s{sRB}, 7")
    A(f"s_lshl_b32 s{sT0}, s{sMH}, 6")
    A(f"s_add_u32 s{sTP}, s{sTP}, s{sT0}")
    if isb:
        A(f"s_lshr_b32 s{sTP}, s{sTP}, 1")
    if tr:
        A(f"s_cmp_lt_u32 s{sCT}, 5")
        A(f"s_mov_b32 s{sT1}, {QB if isb else QA}")
        A(f"s_cselect_b32 s{sB16}, s{sT1}, {KB if isb else KA}")
        A(f"s_mov_b32 s{sT1}, {hex(f32bits(QSCALE))}")
        A(f"s_cselect_b32 s{sQS}, s{sT1}, 1.0")
        A(f"s_lshl_b32 s{sT0}, s{sCT5}, 1")
        A(f"s_add_u32 s{sT0}, s{sT0}, s{sNH}")
        A(f"s_lshl_b32 s{sT0}, s{sT0}, 18")
        A(f"s_add_u32 s{sB16}, s{sB16}, s{sT0}")
        A(f"s_lshl_b32 s{sT0}, s{sTP}, 4")
        A(f"s_add_u32 s{sB16}, s{sB16}, s{sT0}")
        A(f"v_lshlrev_b32 v{vA16}, 15, v{vHH}")
        if isb:
            A(f"v_and_b32 v{vT}, 1, v{vR}")
            A(f"v_lshl_add_u32 v{vA16}, v{vT}, 14, v{vA16}")
            A(f"v_lshrrev_b32 v{vT}, 1, v{vR}")
            A(f"v_lshl_add_u32 v{vA16}, v{vT}, 4, v{vA16}")
        else:
            A(f"v_lshl_add_u32 v{vA16}, v{vR}, 4, v{vA16}")
        A(f"v_mov_b32 v{vT+2}, s{sQS}")
        A(f"v_mov_b32 v{vT+3}, s{sQS}")
    else:
        A(f"v_mul_u32_u24 v{vT+1}, 320, v{vHH}")
        A(f"s_lshl_b32 s{sT0}, s{sCT5}, 7")
        A(f"s_lshl_b32 s{sT1}, s{sNH}, 6")
        A(f"s_add_u32 s{sT0}, s{sT0}, s{sT1}")
        for nt in range(2):
            A(f"v_add_u32 v{vT+2}, s{sT0}, v{vR}")
            if nt:
                A(f"v_add_u32 v{vT+2}, 32, v{vT+2}")
            A(f"v_mul_u32_u24 v{vT+3}, 3277, v{vT+2}")
            A(f"v_lshrrev_b32 v{vT+3}, 16, v{vT+3}")
            A(f"v_mul_u32_u24 v{vT+4}, 20, v{vT+3}")
            A(f"v_sub_u32 v{vT+4}, v{vT+2}, v{vT+4}")
            A(f"v_mul_u32_u24 v{vT+3}, {VH}, v{vT+3}")
            A(f"v_lshl_add_u32 v{vT+3}, v{vT+4}, 4, v{vT+3}")
            A(f"v_add_u32 v{vA16+nt}, v{vT+3}, v{vT+1}")
        A(f"s_lshr_b32 s{sT0}, s{sTP}, 4")
        A(f"s_mul_i32 s{sT0}, s{sT0}, 640")
        A(f"s_add_u32 s{sB16}, s{sT0}, {VB if isb else VA}")


def epi_group(A, isb, tr, g, tag, defer=False):
    reg = G_P + 4 * g
    mt, nt, u = g >> 2, (g >> 1) & 1, g & 1
    src = g_acc(mt, nt)
    if tr:
        for jj in range(2):
            a = src + 4 * (2 * u + jj)
            A(f"v_pk_mul_f32 {v(a,2)}, {v(a,2)}, v[{vT+2}:{vT+3}]")
            A(f"v_pk_mul_f32 {v(a+2,2)}, {v(a+2,2)}, v[{vT+2}:{vT+3}]")
            A(f"v_cvt_pk_bf16_f32 v{reg+2*jj}, v{a}, v{a+1}")
            A(f"v_cvt_pk_bf16_f32 v{reg+2*jj+1}, v{a+2}, v{a+3}")
        A(f"s_add_u32 s{sT1}, s{sB16}, {(4*nt + 2*u)*PLANE + mt*(256 if isb else 512)}")
        A("s_nop 0")
        A(f"v_permlane32_swap_b32 v{reg}, v{reg+2}")
        A(f"v_permlane32_swap_b32 v{reg+1}, v{reg+3}")
        if defer:
            A(f"s_mov_b32 s{sDEF+g}, s{sT1}")
        else:
            A.vm(f"buffer_store_dwordx4 {v(reg,4)}, v{vA16}, {WS}, s{sT1} offen sc1", tag)
    else:
        if isb:
            for j in range(4):
                A(f"v_cvt_pk_bf16_f32 v{reg+j}, v{src+4*j+u}, v{src+4*j+u+2}")
            A(f"s_add_u32 s{sT1}, s{sB16}, {mt*640 + u*64*640}")
        else:
            for p in range(4):
                A(f"v_cvt_pk_bf16_f32 v{reg+p}, v{src+8*u+2*p}, v{src+8*u+2*p+1}")
            A(f"s_add_u32 s{sT1}, s{sB16}, {(2*mt + u)*640}")
        if defer:
            A(f"s_mov_b32 s{sDEF+g}, s{sT1}")
        else:
            A.vm(f"buffer_store_dwordx4 {v(reg,4)}, v{vA16+nt}, {WS}, s{sT1} offen sc1", tag)


def acquire_items():
    return [(vFL, vF1, F1A, None), (vFL2, vF2, F1A, None)]


def p2_load_items():
    def q01(A):
        A.vm(f"buffer_load_dwordx4 {v(Q01,4)}, v{vQA}, {WS}, s{sQOFF} offen sc1", "q")
    def q2(A):
        A(f"v_mov_b32 v{Q2}, 0")
        A(f"v_mov_b32 v{Q2+1}, 0")
        A("s_mov_b32 exec_hi, 0")
        A.vm(f"buffer_load_dwordx2 {v(Q2,2)}, v{vQA2}, {WS}, s{sQOFF2} offen sc1", "q")
        A("s_mov_b32 exec_hi, -1")
    first = [lambda A, p=p: dma_chunk_piece(A, 0, p) for p in range(3)] + [q01, q2]
    rest = [lambda A, c=c, p=p: dma_chunk_piece(A, c, p) for c in (1, 2) for p in range(3)]
    return first, rest


def gemm(A, tr, n):
    A.comment("---- phase 1, waves 0-3: compute branch A, then load and store")
    A.vm_q, A.lds_q = [], []
    if EXP.get("twa") == 99:
        touch_a(A, n)
    if EXP.get("twb") == 99:
        touch_wb(A, n)
    if EXP.get("tcb") == 99:
        touch_chip_b(A, n)
    if EXP.get("tlb"):
        epi_prepare(A, False, tr, n)
        A(f"buffer_store_dword v{vL}, v{vA16}, {WS}, s{sB16} offen sc1")
    A("s_barrier")
    A.stamp("blk0 landed", 2)
    g_reads(A, 0)
    g_reads(A, 1)
    for s_ in range(40):
        b, ks = divmod(s_, 4)
        if ks == 2:
            A("s_barrier")
            if EXP.get("stampA") and b in (0, 2, 4, 6):
                A.stamp("", {0: 7, 2: 8, 4: 9, 6: 10}[b])
        if EXP.get("twa") is not None and s_ == EXP["twa"]:
            touch_a(A, n)
        if s_ == EXP.get("twb", 77):
            touch_wb(A, n)
        if EXP.get("tcb") is not None and s_ == EXP["tcb"]:
            touch_chip_b(A, n)
        if EXP.get("tcw") is not None and s_ == EXP["tcw"]:
            touch_chip_wide(A, "b", n)
        if s_ == 22:
            nonce_issue(A)
        if s_ == 30:
            nonce_check(A, f"nonce0{n}")
        g_step(A, s_, 39, tr)
    A.stamp("gemm0", 3)
    jitter(A, True)
    slices = [int(ch) for ch in str(EXP.get("sl", "8"))]
    assert sum(slices) == 8
    PUB, POLL, CHK = EXP.get("pub", 12), EXP.get("poll", 15), 18
    for p in range(8):
        g_dma(A, 13, p)
    epi_prepare(A, False, tr, n)
    A("s_nop 7")
    A("s_nop 3")
    done = 0
    for b in range(10, 19):
        k = slices[b - 10] if b - 10 < len(slices) else 0
        for g in range(done, done + k):
            epi_group(A, False, tr, g, "sa")
        if k and done + k == 8:
            A.stamp("epi0", 4)
        done += k
        if b == CHK:
            poll_check(A, acquire_items(), pos_f1, f"f1{n}")
        if b + 1 >= 13:
            A.vm_wait(("d", b + 1))
        A("s_barrier")
        if EXP.get("stampB") and b in (10, 12, 14, 16):
            A.stamp("", {10: 7, 12: 8, 14: 9, 16: 10}[b])
        if b == PUB - 1:
            A.vm_wait("sa")
        if b + 4 < NB:
            for p in range(8):
                g_dma(A, b + 4, p)
        if b == PUB:
            with Wave0(A, f"puba{n}"):
                publish(A, sF1, F1A)
        if b == POLL:
            pos_f1 = poll_issue(A, acquire_items(), f"f1{n}")
    first, rest = p2_load_items()
    for f in first + rest:
        f(A)
    A.stamp("gemm1", 5)
    pattern_fill(A, n)
    A.stamp("epi1", 6)
    A.vm_wait("q", ("c", 0))
    A("s_barrier")
    A("s_branch L_attn")
    A.label(f"L_g1{n}")
    A.vm_set([(("d", b), "D") for b in range(3) for _ in range(8)])
    A.lds_q = []
    A.vm_wait(("d", 0))
    A("s_barrier")
    A.stamp("issued", 1)
    A.stamp("blk0 landed", 2)
    for p in range(8):
        g_dma(A, 3, p)
    for b in range(10):
        if b == 0:
            setup_phase1_reads(A)
        if 1 <= b <= 5:
            SETUP_P2[b - 1](A)
        if b == 6 and EXP.get("tlb"):
            if EXP.get("tlb"):
                epi_prepare(A, True, tr, n)
                A(f"buffer_store_dword v{vL}, v{vA16}, {WS}, s{sB16} offen sc1")
                A(f"s_lshl_b32 s{sT0}, s{sQ0}, 4")
                A(f"s_add_u32 s{sT0}, s{sT0}, {OC}")
                A(f"buffer_store_dword v{vL}, v{vOST}, {WS}, s{sT0} offen sc1")
                A(f"s_lshl_b32 s{sT0}, s{sBT}, 4")
                A(f"s_add_u32 s{sT0}, s{sT0}, {OC + 80*32768}")
                A(f"buffer_store_dword v{vL}, v{vOST+1}, {WS}, s{sT0} offen sc1")
        A.vm_wait(("d", b + 1))
        A("s_barrier")
        if EXP.get("stampA") and b in (0, 2, 4, 6):
            A.stamp("", {0: 7, 2: 8, 4: 9, 6: 10}[b])
        if b + 4 <= 12:
            for p in range(8):
                g_dma(A, b + 4, p)
    A.stamp("gemm0", 3)
    A.stamp("epi0", 4)
    if EXP.get("pprio", 1):
        A("s_setprio 1")
    g_reads(A, 40)
    g_reads(A, 41)
    pend = []
    for s_ in range(40, 80):
        b, ks = divmod(s_, 4)
        if ks == 2 and b + 1 < NB:
            if b + 1 <= 12:
                A.vm_wait(("d", b + 1))
            A("s_barrier")
            if EXP.get("stampB") and b in (10, 12, 14, 16):
                A.stamp("", {10: 7, 12: 8, 14: 9, 16: 10}[b])
            if b == 18:
                first, rest = p2_load_items()
                pend = first + [nonce_issue]
        def extra():
            for _ in range(2):
                if pend:
                    pend.pop(0)(A)
        g_step(A, s_, 79, tr, extra)
    assert not pend
    if EXP.get("pprio", 1):
        A("s_setprio 0")
    A.stamp("gemm1", 5)
    jitter(A, True)
    A.vm_wait("q", "nonce", ("c", 0))
    A("s_nop 0")
    A(f"v_readfirstlane_b32 s{sNONCE}, v{vFL}")
    A("s_barrier")
    for f in rest:
        f(A)
    epi_prepare(A, True, tr, n)
    A("s_nop 7")
    A("s_nop 3")
    defer = bool(EXP.get("defer", 0))
    for g in range(8):
        epi_group(A, True, tr, g, "sb", defer)
    if defer:
        A(f"v_mov_b32 v{vDEF[0]}, v{vA16}")
        A(f"v_mov_b32 v{vDEF[1]}, v{vA16 + (0 if tr else 1)}")
        A(f"s_mov_b32 s{sDEFON}, 1")
    A.stamp("epi1", 6)
    nonce_verify(A, f"nonce1{n}")


def spare(A):
    sWO, sG = sWA, sWB
    A.label("L_spare")
    A.vm_q, A.lds_q = [], []
    jitter(A)
    jitter(A)
    if EXP.get("spb", 0):
        A(f"s_mul_i32 s{sT0}, s{sRB}, 153600")
        A(f"s_lshl_b32 s{sT1}, s{sW}, 10")
        A(f"s_add_u32 s{sT0}, s{sT0}, s{sT1}")
        A(f"s_add_u32 s{sT2}, s{sRB}, 1")
        A(f"s_mul_i32 s{sT2}, s{sT2}, 153600")
        for i in range(19):
            A(f"s_add_u32 s{sT1}, s{sT0}, {8192*i}")
            if i == 18:
                A(f"s_sub_u32 s{sT2}, s{sT2}, 1024")
                A(f"s_min_u32 s{sT1}, s{sT1}, s{sT2}")
            A(f"buffer_load_dwordx4 {v(124 + 4*i, 4)}, v{vL16}, s[{sWB}:{sWB+3}], s{sT1} offen")
    A("s_load_dwordx2 s[4:5], s[0:1], 16")
    A("s_load_dwordx2 s[6:7], s[0:1], 40")
    A(f"s_load_dwordx2 s[{sP}:{sP+1}], s[0:1], 48")
    A("s_waitcnt lgkmcnt(0)")
    A(f"s_cmp_lt_u32 s{sRB}, 8")
    A("s_cbranch_scc1 L_sp_a")
    A("s_mov_b32 s4, s6")
    A("s_mov_b32 s5, s7")
    A.label("L_sp_a")
    srd(A, sWO, 4, WO_BYTES)
    srd(A, sG, sP, 1280)
    A(f"s_and_b32 s{sT1}, s{sRB}, 7")
    A(f"s_mul_i32 s{sT1}, s{sT1}, {80*1280}")
    A(f"s_lshl_b32 s{sLDS1}, s{sW}, 10")
    A(f"s_add_u32 s{sT1}, s{sT1}, s{sLDS1}")
    for t in range(13):
        if t == 12:
            A(f"s_cmp_ge_u32 s{sW}, 4")
            A("s_cbranch_scc1 L_sp_dma_done")
        A(f"s_add_u32 m0, s{sLDS1}, {8192*t}")
        A(f"s_add_u32 s{sT0}, s{sT1}, {8192*t}")
        A(f"buffer_load_dwordx4 v{vL16}, s[{sWO}:{sWO+3}], s{sT0} offen lds")
    A.label("L_sp_dma_done")
    GW = 102400
    A(f"s_cmp_ge_u32 s{sW}, 2")
    A("s_cbranch_scc1 L_sp_gw_done")
    A(f"s_add_u32 m0, s{sLDS1}, {GW}")
    A("s_nop 0")
    A(f"buffer_load_dwordx4 v{vL16}, s[{sG}:{sG+3}], s{sLDS1} offen lds")
    A.label("L_sp_gw_done")
    A.stamp("", 2)
    XG = 28
    A(f"v_lshrrev_b32 v{vT+1}, 2, v{vL}")
    A(f"s_lshl_b32 s{sT0}, s{sW}, 4")
    A(f"v_add_u32 v{vT+1}, s{sT0}, v{vT+1}")
    A(f"v_and_b32 v{vT+2}, 3, v{vL}")
    A(f"v_lshlrev_b32 v{vT+2}, 4, v{vT+2}")
    A(f"v_mul_u32_u24 v{vT+3}, 1280, v{vT+1}")
    A(f"v_add_u32 v{vT+3}, v{vT+3}, v{vT+2}")
    A(f"v_mov_b32 v{vT+4}, 0")
    for i in range(20):
        A(f"buffer_load_dwordx4 {v(XG+4*i,4)}, v{vT+3}, s[{sX}:{sX+3}], s{sXOFF} offen offset:{i*64}")
    A(f"v_add_u32 v{vT+2}, {GW}, v{vT+2}")
    A("s_waitcnt vmcnt(0)")
    A("s_barrier")
    A.lds_q = []
    GG = 108
    for i in range(3):
        A.lds(f"ds_read_b128 {v(GG+4*i,4)}, v{vT+2} offset:{i*64}", ("gw", i))
    for i in range(20):
        if i + 3 < 20:
            A.lds(f"ds_read_b128 {v(GG+4*((i+3) % 4),4)}, v{vT+2} offset:{(i+3)*64}", ("gw", i + 3))
        A.lds_wait(("gw", i))
        for k in range(4):
            A(f"v_dot2_f32_bf16 v{vT+4}, v{XG+4*i+k}, v{GG+4*(i % 4)+k}, v{vT+4}")
    A("s_nop 2")
    A(f"v_add_f32_dpp v{vT+4}, v{vT+4}, v{vT+4} quad_perm:[1,0,3,2] row_mask:0xf bank_mask:0xf")
    A("s_nop 1")
    A(f"v_add_f32_dpp v{vT+4}, v{vT+4}, v{vT+4} quad_perm:[2,3,0,1] row_mask:0xf bank_mask:0xf")
    A(f"v_mul_f32 v{vT+4}, {hex(f32bits(-LOG2E))}, v{vT+4}")
    A(f"v_exp_f32 v{vT+4}, v{vT+4}")
    A("s_nop 0")
    A(f"v_add_f32 v{vT+4}, 1.0, v{vT+4}")
    A(f"v_rcp_f32 v{vT+4}, v{vT+4}")
    A(f"s_lshl_b32 s{sT0}, s{sRB}, 9")
    A(f"s_add_u32 s{sT0}, s{sT0}, {GATE}")
    A(f"v_lshlrev_b32 v{vT+1}, 2, v{vT+1}")
    A("s_mov_b32 exec_lo, 0x11111111")
    A("s_mov_b32 exec_hi, 0x11111111")
    A(f"buffer_store_dword v{vT+4}, v{vT+1}, {WS}, s{sT0} offen sc1")
    A("s_mov_b64 exec, -1")
    A.stamp("", 3)
    A.stamp("", 4)
    A(f"v_bfe_u32 v{vT+1}, v{vL}, 2, 2")
    A(f"v_mul_u32_u24 v{vT+1}, 1280, v{vT+1}")
    A(f"v_lshrrev_b32 v{vT+2}, 4, v{vL}")
    A(f"v_lshl_add_u32 v{vT+1}, v{vT+2}, 5, v{vT+1}")
    A(f"v_and_b32 v{vT+2}, 3, v{vL}")
    A(f"v_lshl_add_u32 v{vT+1}, v{vT+2}, 3, v{vT+1}")
    A(f"s_mul_i32 s{sT3}, s{sRB}, {10*10240}")
    A(f"s_add_u32 s{sT3}, s{sT3}, {WOT}")
    A(f"s_mov_b32 s{sT1}, s{sW}")
    A.label("L_sp_loop")
    A(f"s_mul_hi_u32 s{sT2}, s{sT1}, 0x1999999a")
    A(f"s_mul_i32 s{sT0}, s{sT2}, 10")
    A(f"s_sub_u32 s{sT0}, s{sT1}, s{sT0}")
    A(f"s_mul_hi_u32 s{sCNT}, s{sT2}, 0x33333334")
    A(f"s_mul_i32 s{sT4}, s{sCNT}, 5")
    A(f"s_sub_u32 s{sT4}, s{sT2}, s{sT4}")
    A(f"s_mul_i32 s{sCNT}, s{sCNT}, 40")
    A(f"s_lshl_b32 s{sT5}, s{sT4}, 3")
    A(f"s_cmp_ge_u32 s{sT4}, 2")
    A(f"s_cselect_b32 s{sM}, 4, 0")
    A(f"s_add_u32 s{sT5}, s{sT5}, s{sM}")
    A(f"s_cmp_eq_u32 s{sT4}, 4")
    A(f"s_cselect_b32 s{sT5}, 16, s{sT5}")
    A(f"s_cselect_b32 s{sM}, 20, 4")
    A(f"s_add_u32 s{sT5}, s{sT5}, s{sCNT}")
    A(f"s_mul_i32 s{sT4}, s{sT5}, 1280")
    A(f"s_mul_i32 s{sM}, s{sM}, 1280")
    A(f"s_lshl_b32 s{sT5}, s{sT0}, 7")
    A(f"s_add_u32 s{sT4}, s{sT4}, s{sT5}")
    A(f"v_add_u32 v{vT+3}, s{sT4}, v{vT+1}")
    A(f"v_add_u32 v{vT+4}, s{sM}, v{vT+3}")
    A(f"ds_read_b64_tr_b16 v[{XG}:{XG+1}], v{vT+3}")
    A(f"ds_read_b64_tr_b16 v[{XG+2}:{XG+3}], v{vT+4}")
    A(f"s_mul_i32 s{sT4}, s{sT2}, 10240")
    A(f"s_lshl_b32 s{sT5}, s{sT0}, 10")
    A(f"s_add_u32 s{sT4}, s{sT4}, s{sT5}")
    A(f"s_add_u32 s{sT4}, s{sT4}, s{sT3}")
    A("s_waitcnt lgkmcnt(0)")
    A(f"buffer_store_dwordx4 {v(XG,4)}, v{vL16}, {WS}, s{sT4} offen sc1")
    A(f"s_add_u32 s{sT1}, s{sT1}, 8")
    A(f"s_cmp_lt_u32 s{sT1}, 100")
    A("s_nop 1")
    A("s_cbranch_scc1 L_sp_loop")
    A.stamp("", 5)
    nonce_issue(A)
    nonce_check(A, "noncesp")
    A("s_waitcnt vmcnt(0)")
    A("s_barrier")
    A.vm_q = []
    with Wave0(A, "pubsp"):
        publish(A, sF1, F1A)
    pos = poll_issue(A, acquire_items(), "f1sp")
    poll_check(A, acquire_items(), pos, "f1sp")
    A("s_barrier")
    A.vm_q = []
    first, rest = p2_load_items()
    for f in first + rest:
        f(A)
    A(f"s_cmp_ge_u32 s{sW}, 4")
    A("s_cbranch_scc1 L_sp_nopat")
    pattern_fill(A, "sp")
    A.label("L_sp_nopat")
    A.vm_wait("q", ("c", 0))
    A("s_barrier")
    for i in (6,) + ((7, 8, 9, 10) if (EXP.get("stampB") or EXP.get("stampA")) else ()):
        A.stamp("", i)
    A("s_branch L_attn")


def mf16(A, d, a, b, c):
    A(f"v_mfma_f32_32x32x16_bf16 {v(d,16)}, {v(a,4)}, {v(b,4)}, {c}")


def mf8(A, d, a, b, c):
    A(f"v_mfma_f32_32x32x8_bf16 {v(d,16)}, {v(a,2)}, {v(b,2)}, {c}")


def dma_chunk_piece(A, c, t):
    slot = c % NSLOT
    A(f"s_add_u32 m0, s{sLDSW}, {slot*SLOT + 1024*t}")
    A(f"v_mad_u32_u24 v{vCT}, v{vCS+t}, {c}, v{vCB+t}")
    if t == 2:
        A("s_mov_b32 exec_hi, 0xffff")
    A.vm(f"buffer_load_dwordx4 v{vCT}, {WS}, 0 offen sc1 lds", ("c", c))
    if t == 2:
        A("s_mov_b32 exec_hi, -1")


def dma_chunk(A, c):
    for t in range(3):
        dma_chunk_piece(A, c, t)


def dma_w_piece(A, part, st, t):
    off = (WA_OFF if part == 0 else WB_OFF)[st]
    A(f"s_add_u32 m0, s{sLDSW2}, {off + 1024*t}")
    A(f"s_add_u32 s{sT0}, s{sWSRC}, {(part*80 + 16*st)*10240}")
    if t == 2:
        A("s_mov_b32 exec_hi, 0")
    A.vm(f"buffer_load_dwordx4 v{(vW0, vW1, vW2)[t]}, {WS}, s{sT0} offen sc1 lds", ("w", part, st))
    if t == 2:
        A("s_mov_b32 exec_hi, -1")


def rd_k01(A, t):
    if EXP.get('halfrd') and t % 2 == 1:
        return
    c, tt = t // TPC, t % TPC
    A.lds(f"ds_read_b128 {v(K01,4)}, v{vK01 + c % NSLOT} offset:{tt*512}", ("k01", t))


def rd_k2(A, t):
    if EXP.get('halfrd') and t % 2 == 1:
        return
    c, tt = t // TPC, t % TPC
    A.lds(f"ds_read_b64 {v(K2,2)}, v{vK2 + c % NSLOT} offset:{8192 + tt*512}", ("k2", t))


def rd_v(A, t, a):
    if EXP.get('halfrd') and t % 2 == 1:
        return
    c, tt = t // TPC, t % TPC
    areg = vV + c % NSLOT if tt < 4 else vV2[c % NSLOT]
    A.lds(f"ds_read_b128 {v(V1 if a else V0,4)}, v{areg} offset:{(2*(tt % 4) + a)*640}", ("v", t, a))


def exps(A, sreg, g, preg=P):
    for i in range(4):
        A(f"v_exp_f32 v{sreg+4*g+i}, v{sreg+4*g+i}")
    A(f"v_cvt_pk_bf16_f32 v{preg+2*g}, v{sreg+4*g}, v{sreg+4*g+1}")
    A(f"v_cvt_pk_bf16_f32 v{preg+2*g+1}, v{sreg+4*g+2}, v{sreg+4*g+3}")


def cross_half_max(A, reg, tmp):
    A(f"v_mov_b32 v{tmp}, v{reg}")
    A("s_nop 1")
    A(f"v_permlane32_swap_b32 v{reg}, v{tmp}")
    A("s_nop 1")
    A(f"v_max_f32 v{reg}, v{reg}, v{tmp}")


def max16(A, dst, src, first):
    if first:
        A(f"v_max3_f32 v{dst}, v{src}, v{src+1}, v{src+2}")
        rest = list(range(3, 16))
    else:
        rest = list(range(0, 16))
    while rest:
        if len(rest) >= 2:
            A(f"v_max3_f32 v{dst}, v{dst}, v{src+rest[0]}, v{src+rest[1]}")
            rest = rest[2:]
        else:
            A(f"v_max_f32 v{dst}, v{dst}, v{src+rest[0]}")
            rest = rest[1:]


def row_sum(A, oreg):
    A(f"v_mov_b32 v{vT}, v{oreg+8}")
    A(f"v_mov_b32 v{vT+1}, v{oreg+8}")
    A("s_nop 1")
    A(f"v_permlane32_swap_b32 v{vT}, v{vT+1}")


def finish_tile(A, oreg, gate, one_minus, vaddr, tok_sreg, chunk0, tag):
    A(f"v_rcp_f32 v{vT+2}, v{vT+1}")
    A(f"s_lshl_b32 s{sT0}, s{tok_sreg}, 4")
    A(f"s_add_u32 s{sT0}, s{sT0}, {OC + chunk0*32768}")
    if one_minus:
        A(f"v_sub_f32 v{vT}, 1.0, v{gate}")
        A(f"v_mul_f32 v{vT+2}, v{vT+2}, v{vT}")
    else:
        A(f"v_mul_f32 v{vT+2}, v{vT+2}, v{gate}")
    A(f"v_mov_b32 v{vT+3}, v{vT+2}")
    for i in range(0, 12, 2):
        A(f"v_pk_mul_f32 {v(oreg+i,2)}, {v(oreg+i,2)}, v[{vT+2}:{vT+3}]")
    for i in range(4):
        A(f"v_cvt_pk_bf16_f32 v{oreg+i}, v{oreg+2*i}, v{oreg+2*i+1}")
    A(f"v_cvt_pk_bf16_f32 v{oreg+8}, v{oreg+8}, v{oreg+9}")
    A(f"v_cvt_pk_bf16_f32 v{oreg+9}, v{oreg+10}, v{oreg+11}")
    A(f"v_permlane32_swap_b32 v{oreg}, v{oreg+2}")
    A(f"v_permlane32_swap_b32 v{oreg+1}, v{oreg+3}")
    A.vm(f"buffer_store_dwordx4 {v(oreg,4)}, v{vaddr}, {WS}, s{sT0} offen sc1", tag)
    A("s_mov_b32 exec_hi, 0")
    A.vm(f"buffer_store_dwordx2 {v(oreg+8,2)}, v{vaddr+2}, {WS}, s{sT0} offen sc1", tag)
    A("s_mov_b64 exec, -1")


def oc_load(A, part, k):
    reg = OCA if part == 0 else OCB
    A(f"s_add_u32 s{sT0}, s{sOCB}, {(part*80 + 4*k)*32768}")
    A.vm(f"buffer_load_dwordx4 {v(reg+4*k,4)}, v{vOC}, {WS}, s{sT0} offen sc1", ("oc", part, k))


def outproj(A, part, first, hook=None):
    offs = WA_OFF if part == 0 else WB_OFF
    reg = OCA if part == 0 else OCB
    for kg in range(2):
        if kg == 0:
            A(f"s_cmp_eq_u32 s{sKG}, 1")
            A(f"s_cbranch_scc1 L_op{part}_g1")
            saved = (list(A.vm_q), list(A.lds_q))
        else:
            A.label(f"L_op{part}_g1")
            A.vm_q, A.lds_q = list(saved[0]), list(saved[1])
        seq = [(k, nt) for k in range(10) for nt in range(5)]

        def rd(i):
            k, nt = seq[i]
            kk = 10 * kg + k
            off = offs[kk // 4] + (kk % 4) * 5120 + nt * 256
            areg = (vWR, vT + 5, vT + 6)[off >> 16]
            A.lds(f"ds_read_b128 {v(WF + (i % 8)*4,4)}, v{areg} offset:{off & 0xffff}", ("wf", i))

        LOOK = 5
        for i in range(LOOK):
            rd(i)
        for i, (k, nt) in enumerate(seq):
            if i + LOOK < len(seq):
                rd(i + LOOK)
            if nt == 0:
                A.vm_wait(("oc", part, k))
                if hook:
                    hook(k, kg)
            A.lds_wait(("wf", i))
            c = "0" if (first and k == 0) else v(ACC + 4*nt, 4)
            A(f"v_mfma_f32_16x16x32_bf16 {v(ACC+4*nt,4)}, {v(WF + (i % 8)*4,4)}, {v(reg+4*k,4)}, {c}")
        if kg == 0:
            end0 = (list(A.vm_q), list(A.lds_q))
            A(f"s_branch L_op{part}_done")
    A.label(f"L_op{part}_done")
    assert end0[0] == A.vm_q and end0[1] == A.lds_q


def keypos(kappa):
    return (kappa & 25) | ((kappa >> 1) & 1) << 2 | ((kappa >> 2) & 1) << 1


def band_mask(j, i, prev):
    m = 0
    for l in range(64):
        q, hh = l & 31, l >> 5
        key = keypos(8 * j + 4 * hh + i) - (32 if prev else 0)
        if 0 <= q - key <= 7:
            m |= 1 << l
    return m


def b_consts(A):
    A(f"v_cmp_eq_u32 vcc, 20, v{vR}")
    A(f"v_mov_b32 v{vT+6}, 0")
    A(f"v_mov_b32 v{vT+7}, 0x3f803f80")
    A(f"v_cndmask_b32 v{vT+6}, v{vT+6}, v{vT+7}, vcc")
    for base in (BV0, BV1, BVP):
        for i in range(4):
            A(f"v_mov_b32 v{base+i}, v{vT+6}")
    A(f"v_mov_b32 v{BQ2}, 0")
    A(f"v_mov_b32 v{BQ2+1}, 0")


def b_load_items():
    def mk(instr, pre=None, gate=False):
        def f(A):
            if gate:
                A(f"v_lshlrev_b32 v{vCT}, 1, v{vGA}")
                A.vm(instr.replace(f"v{vGA},", f"v{vCT},"), "b")
                return
            if pre:
                A(pre)
            A.vm(instr, "b")
            if pre:
                A("s_mov_b64 exec, -1")
        return f
    lo20 = f"s_mov_b64 exec, s[{sLO20}:{sLO20+1}]"
    return [
        mk(f"buffer_load_dwordx4 {v(BQ01,4)}, v{vBA}, {WS}, s{sBA} offen sc1"),
        mk(f"buffer_load_dwordx4 {v(BK01,4)}, v{vBA+2}, {WS}, s{sBA+2} offen sc1"),
        mk(f"buffer_load_dwordx2 {v(BK2,2)}, v{vBA+3}, {WS}, s{sBA+3} offen sc1"),
        mk(f"buffer_load_dwordx4 {v(BKP01,4)}, v{vBA+2}, {WS}, s{sBA+5} offen sc1"),
        mk(f"buffer_load_dwordx2 {v(BKP2,2)}, v{vBA+3}, {WS}, s{sBA+6} offen sc1"),
        mk(f"buffer_load_dword v{vGB}, v{vGA}, {WS}, s{sBA+8} offen sc1", None, True),
        mk(f"buffer_load_dwordx2 {v(BQ2,2)}, v{vBA+1}, {WS}, s{sBA+1} offen sc1", "s_mov_b32 exec_hi, 0"),
        mk(f"buffer_load_dwordx4 {v(BV0,4)}, v{vBA+4}, {WS}, s{sBA+4} offen sc1", lo20),
        mk(f"buffer_load_dwordx4 {v(BV1,4)}, v{vBA+4}, {WS}, s{sBA+4} offen offset:640 sc1", lo20),
        mk(f"buffer_load_dwordx4 {v(BVP,4)}, v{vBA+4}, {WS}, s{sBA+7} offen offset:640 sc1", lo20),
    ]


def b_unit(A):
    S0, S1 = BS0, BS1
    jitter(A, True)
    A.vm_wait("b")
    mf16(A, S0, BK01, BQ01, "0")
    mf16(A, S1, BKP01, BQ01, "0")
    mf8(A, S0, BK2, BQ2, v(S0, 16))
    mf8(A, S1, BKP2, BQ2, v(S1, 16))
    A(f"v_mov_b32 v{vT}, {hex(f32bits(-1e30))}")
    A(f"s_cmp_eq_u32 s{sQT}, 0")
    A(f"s_cselect_b32 s{sT3}, 0, -1")
    A("s_nop 7")
    A("s_nop 5")
    for j in range(4):
        for i in range(4):
            m = band_mask(j, i, False)
            A(f"s_mov_b32 s{sM}, {hex(m & 0xffffffff)}")
            A(f"s_mov_b32 s{sM+1}, {hex(m >> 32)}")
            A(f"v_cndmask_b32 v{S0+4*j+i}, v{vT}, v{S0+4*j+i}, s[{sM}:{sM+1}]")
    for i in range(4):
        m = band_mask(3, i, True)
        A(f"s_and_b32 s{sM}, s{sT3}, {hex(m & 0xffffffff)}")
        A(f"s_and_b32 s{sM+1}, s{sT3}, {hex(m >> 32)}")
        A(f"v_cndmask_b32 v{S1+12+i}, v{vT}, v{S1+12+i}, s[{sM}:{sM+1}]")
    max16(A, vT + 1, S0, True)
    A(f"v_max3_f32 v{vT+1}, v{vT+1}, v{S1+12}, v{S1+13}")
    A(f"v_max3_f32 v{vT+1}, v{vT+1}, v{S1+14}, v{S1+15}")
    cross_half_max(A, vT + 1, vT + 2)
    for r in list(range(S0, S0 + 16)) + list(range(S1 + 12, S1 + 16)):
        A(f"v_sub_f32 v{r}, v{r}, v{vT+1}")
    for g in range(4):
        exps(A, S0, g, BP)
    PP = BP + 8
    for i in range(4):
        A(f"v_exp_f32 v{S1+12+i}, v{S1+12+i}")
    A(f"v_mov_b32 v{PP}, 0")
    A(f"v_mov_b32 v{PP+1}, 0")
    A(f"v_cvt_pk_bf16_f32 v{PP+2}, v{S1+12}, v{S1+13}")
    A(f"v_cvt_pk_bf16_f32 v{PP+3}, v{S1+14}, v{S1+15}")
    A("s_nop 1")
    mf16(A, BO, BV0, BP, "0")
    mf16(A, BO, BV1, BP + 4, v(BO, 16))
    mf16(A, BO, BVP, PP, v(BO, 16))
    A("s_nop 7")
    A("s_nop 3")
    row_sum(A, BO)
    A("s_nop 1")
    finish_tile(A, BO, vGB, True, vOST + 1, sBT, 80, "stb")


def fallback(A):
    A.comment("---- fallback: two-pass softmax with the true row max")
    A.label("L_fallback")
    A("s_waitcnt vmcnt(0) lgkmcnt(0)")
    A(f"v_lshlrev_b32 v{vT+4}, 15, v{vHH}")
    A(f"v_lshl_add_u32 v{vT+4}, v{vR}, 4, v{vT+4}")
    A(f"v_lshlrev_b32 v{vT+5}, 4, v{vR}")
    A(f"v_mul_u32_u24 v{vT+6}, 320, v{vHH}")
    A(f"v_lshl_add_u32 v{vT+6}, v{vR}, 4, v{vT+6}")
    A(f"v_mov_b32 v{vT+7}, {hex(f32bits(-3.0e38))}")

    def tile_addr():
        A(f"s_lshl_b32 s{sT0}, s{sCNT}, 9")
        A(f"s_lshl_b32 s{sT1}, s{sPA}, 15")
        A(f"s_add_u32 s{sT1}, s{sT1}, s{sT0}")
        A(f"s_add_u32 s{sT1}, s{sT1}, {KA}")
        A(f"s_lshl_b32 s{sT2}, s{sP2L}, 15")
        A(f"s_add_u32 s{sT2}, s{sT2}, s{sT0}")
        A(f"s_and_b32 s{sT3}, s{sH}, 1")
        A(f"s_lshl_b32 s{sT3}, s{sT3}, 3")
        A(f"s_add_u32 s{sT2}, s{sT2}, s{sT3}")
        A(f"s_add_u32 s{sT2}, s{sT2}, {KA}")
        A(f"s_mul_i32 s{sT3}, s{sCNT}, 1280")
        A(f"s_add_u32 s{sT3}, s{sT3}, s{sVH}")
        A(f"s_add_u32 s{sT3}, s{sT3}, {VA}")

    A(f"s_mov_b32 s{sCNT}, 0")
    A.label("L_fb1")
    tile_addr()
    A(f"buffer_load_dwordx4 {v(K01,4)}, v{vT+4}, {WS}, s{sT1} offen sc1")
    A(f"buffer_load_dwordx2 {v(K2,2)}, v{vT+5}, {WS}, s{sT2} offen sc1")
    A("s_waitcnt vmcnt(0)")
    mf16(A, SA, K01, Q01, "0")
    mf8(A, SA, K2, Q2, v(SA, 16))
    A("s_nop 7")
    A("s_nop 7")
    max16(A, vT + 7, SA, False)
    A(f"s_add_u32 s{sCNT}, s{sCNT}, 1")
    A(f"s_cmp_lt_u32 s{sCNT}, 64")
    A("s_cbranch_scc1 L_fb1")
    cross_half_max(A, vT + 7, vT)
    for i in range(16):
        A(f"v_sub_f32 v{NEGM+i}, 0, v{vT+7}")
        A(f"v_mov_b32 v{O+i}, 0")
    A(f"v_cmp_eq_u32 vcc, 20, v{vR}")
    A(f"v_mov_b32 v{vT}, 0")
    A(f"v_mov_b32 v{vT+1}, 0x3f803f80")
    A(f"v_cndmask_b32 v{vT}, v{vT}, v{vT+1}, vcc")
    for i in range(4):
        A(f"v_mov_b32 v{V0+i}, v{vT}")
        A(f"v_mov_b32 v{V1+i}, v{vT}")
    A(f"s_mov_b32 s{sCNT}, 0")
    A.label("L_fb2")
    tile_addr()
    A(f"buffer_load_dwordx4 {v(K01,4)}, v{vT+4}, {WS}, s{sT1} offen sc1")
    A(f"buffer_load_dwordx2 {v(K2,2)}, v{vT+5}, {WS}, s{sT2} offen sc1")
    A(f"s_mov_b64 exec, s[{sLO20}:{sLO20+1}]")
    A(f"buffer_load_dwordx4 {v(V0,4)}, v{vT+6}, {WS}, s{sT3} offen sc1")
    A(f"buffer_load_dwordx4 {v(V1,4)}, v{vT+6}, {WS}, s{sT3} offen offset:640 sc1")
    A("s_mov_b64 exec, -1")
    A("s_waitcnt vmcnt(0)")
    mf16(A, SA, K01, Q01, v(NEGM, 16))
    mf8(A, SA, K2, Q2, v(SA, 16))
    A("s_nop 7")
    A("s_nop 7")
    for g in range(4):
        exps(A, SA, g)
    A("s_nop 1")
    mf16(A, O, V0, P, v(O, 16))
    mf16(A, O, V1, P + 4, v(O, 16))
    A(f"s_add_u32 s{sCNT}, s{sCNT}, 1")
    A(f"s_cmp_lt_u32 s{sCNT}, 64")
    A("s_cbranch_scc1 L_fb2")
    A("s_nop 7")
    A("s_nop 7")
    row_sum(A, O)
    A("s_nop 1")
    A("s_branch L_finish")


def touch_chip(A, which):
    A(f"s_and_b32 s{sT1}, s{sW}, 1")
    A(f"s_lshl_b32 s{sT1}, s{sT1}, 6")
    A(f"v_add_u32 v{vT}, s{sT1}, v{vL}")
    A(f"s_cmp_ge_u32 s{sW}, 2")
    A(f"s_cbranch_scc1 L_tc_w{which}")
    if "x" in which:
        A(f"v_min_u32 v{vT}, 79, v{vT}")
        A(f"v_lshlrev_b32 v{vT}, 7, v{vT}")
        A(f"s_mul_i32 s{sT0}, s2, 10240")
        A(f"buffer_load_dword v{G_P+1}, v{vT}, s[{sX}:{sX+3}], s{sT0} offen")
    A(f"s_branch L_tc_done{which}")
    A.label(f"L_tc_w{which}")
    A(f"v_min_u32 v{vT}, 74, v{vT}")
    A(f"v_lshlrev_b32 v{vT}, 7, v{vT}")
    A(f"s_mul_i32 s{sT0}, s2, 9600")
    if "a" in which:
        A(f"buffer_load_dword v{G_P+2}, v{vT}, s[{sWA}:{sWA+3}], s{sT0} offen")
    if "b" in which:
        A(f"buffer_load_dword v{G_P+3}, v{vT}, s[{sWB}:{sWB+3}], s{sT0} offen")
    A.label(f"L_tc_done{which}")


def touch_phase(A, phase):
    L = f"L_tp{phase}"
    if phase != 2:
        k0, nk = {0: (3, 3), 1: (6, 4), 3: (0, 3)}[phase]
        wx, ww = {0: (0, 1), 1: (2, 3), 3: (2, 3)}[phase]
        A(f"s_cmp_lg_u32 s{sW}, {wx}")
        A(f"s_cbranch_scc1 {L}_w")
        if nk == 3:
            A(f"v_mul_u32_u24 v{vT}, 86, v{vL}")
            A(f"v_lshrrev_b32 v{vT}, 8, v{vT}")
        else:
            A(f"v_lshrrev_b32 v{vT}, 2, v{vL}")
        A(f"v_mul_u32_u24 v{vT+1}, {nk}, v{vT}")
        A(f"v_sub_u32 v{vT+1}, v{vL}, v{vT+1}")
        A(f"v_min_u32 v{vT}, 7, v{vT}")
        A(f"v_mul_u32_u24 v{vT}, 1280, v{vT}")
        A(f"v_lshl_add_u32 v{vT}, v{vT+1}, 7, v{vT}")
        A(f"s_mul_i32 s{sT0}, s2, 10240")
        A(f"s_add_u32 s{sT0}, s{sT0}, {128*k0}")
        A(f"buffer_load_dword v{G_P+1}, v{vT}, s[{sX}:{sX+3}], s{sT0} offen")
        A.label(f"{L}_w")
        per = 64 * nk * 30 // 256 + (1 if (64 * nk * 30) % 256 else 0)
        A(f"s_cmp_lg_u32 s{sW}, {ww}")
        A(f"s_cbranch_scc1 {L}_done")
        A(f"v_min_u32 v{vT}, {per - 1}, v{vL}")
        A(f"v_lshlrev_b32 v{vT}, 7, v{vT}")
        A(f"s_mul_i32 s{sT0}, s2, {64 * nk * 3840 // 256}")
        A(f"s_and_b32 s{sT0}, s{sT0}, 0xffffff80")
        A(f"s_add_u32 s{sT0}, s{sT0}, {64 * k0 * 3840}")
        A(f"buffer_load_dword v{G_P+2}, v{vT}, s[{sWA}:{sWA+3}], s{sT0} offen")
    else:
        A(f"s_cmp_ge_u32 s{sW}, 2")
        A(f"s_cbranch_scc1 {L}_done")
        A(f"s_lshl_b32 s{sT1}, s{sW}, 6")
        A(f"v_add_u32 v{vT}, s{sT1}, v{vL}")
        A(f"v_min_u32 v{vT}, 74, v{vT}")
        A(f"v_lshlrev_b32 v{vT}, 7, v{vT}")
        A(f"s_mul_i32 s{sT0}, s2, 9600")
        A(f"buffer_load_dword v{G_P+3}, v{vT}, s[{sWB}:{sWB+3}], s{sT0} offen")
    A.label(f"{L}_done")


def touch_xcd_first(A):
    A(f"s_cmp_eq_u32 s{sW}, 7")
    A("s_cbranch_scc1 L_txf_done")
    A(f"s_sub_u32 s{sT1}, s{sW}, 4")
    A(f"s_and_b32 s{sT0}, s{sCT}, 3")
    A(f"s_lshl_b32 s{sT0}, s{sT0}, 5")
    A(f"v_add_u32 v{vT}, s{sT0}, v{vR}")
    A(f"v_mul_u32_u24 v{vT}, 1280, v{vT}")
    A(f"s_lshl_b32 s{sT0}, s{sT1}, 7")
    A(f"s_add_u32 s{sT0}, s{sT0}, s{sXOFF}")
    A(f"buffer_load_dword v{G_P}, v{vT}, s[{sX}:{sX+3}], s{sT0} offen")
    A(f"s_and_b32 s{sT0}, s{sRB}, 7")
    A(f"s_lshl_b32 s{sT0}, s{sT0}, 3")
    A(f"s_lshl_b32 s{sT1}, s{sT1}, 6")
    A(f"s_add_u32 s{sT0}, s{sT0}, s{sT1}")
    A(f"v_bfe_u32 v{vT}, v{vL}, 1, 3")
    A(f"v_add_u32 v{vT}, s{sT0}, v{vT}")
    A(f"v_mul_u32_u24 v{vT}, 3840, v{vT}")
    A(f"v_and_b32 v{vT+1}, 1, v{vL}")
    A(f"v_lshl_add_u32 v{vT}, v{vT+1}, 7, v{vT}")
    A(f"buffer_load_dword v{G_P+1}, v{vT}, s[{sWA}:{sWA+3}], s{sWOFF} offen")
    A.label("L_txf_done")


def touch_chip_wide(A, which, tag):
    A(f"s_cmp_ge_u32 s{sW}, 4")
    A(f"s_cbranch_scc1 L_tcw{tag}")
    A(f"s_lshl_b32 s{sT1}, s{sW}, 10")
    A(f"v_add_u32 v{vT}, s{sT1}, v{vL16}")
    k = 0
    for name, srd_, size in (("x", sX, 10240), ("a", sWA, 9600), ("b", sWB, 9600)):
        if name not in which:
            continue
        A(f"s_mul_i32 s{sT0}, s2, {size}")
        for i in range(3):
            A(f"v_add_u32 v{vT+1}, {4096*i}, v{vT}")
            A(f"v_min_u32 v{vT+1}, {size - 16}, v{vT+1}")
            A(f"buffer_load_dwordx4 {v(G_P + 4*k, 4)}, v{vT+1}, s[{srd_}:{srd_+3}], s{sT0} offen")
            k += 1
    A.label(f"L_tcw{tag}")


def touch_chip_b(A, n):
    A(f"s_cmp_ge_u32 s{sW}, 2")
    A(f"s_cbranch_scc1 L_tcb{n}")
    A(f"s_lshl_b32 s{sT1}, s{sW}, 6")
    A(f"v_add_u32 v{vT}, s{sT1}, v{vL}")
    A(f"v_min_u32 v{vT}, 74, v{vT}")
    A(f"v_lshlrev_b32 v{vT}, 7, v{vT}")
    A(f"s_mul_i32 s{sT0}, s2, 9600")
    A(f"buffer_load_dword v{G_P+3}, v{vT}, s[{sWB}:{sWB+3}], s{sT0} offen")
    A.label(f"L_tcb{n}")


def touch_wb(A, n):
    A(f"s_cmp_ge_u32 s{sW}, 3")
    A(f"s_cbranch_scc1 L_twb{n}")
    A(f"s_and_b32 s{sT0}, s{sRB}, 7")
    A(f"s_mul_i32 s{sT0}, s{sT0}, 80")
    A(f"s_lshl_b32 s{sT1}, s{sW}, 5")
    A(f"v_lshrrev_b32 v{vT}, 1, v{vL}")
    A(f"v_add_u32 v{vT}, s{sT1}, v{vT}")
    A(f"v_min_u32 v{vT}, 79, v{vT}")
    A(f"v_add_u32 v{vT}, s{sT0}, v{vT}")
    A(f"v_mul_u32_u24 v{vT}, 3840, v{vT}")
    A(f"v_and_b32 v{vT+1}, 1, v{vL}")
    A(f"v_lshl_add_u32 v{vT}, v{vT+1}, 7, v{vT}")
    A(f"buffer_load_dword v{G_P}, v{vT}, s[{sWB}:{sWB+3}], s{sWOFF} offen")
    A.label(f"L_twb{n}")


def touch_a(A, n):
    A(f"v_mul_u32_u24 v{vT}, 37, v{vL}")
    A(f"v_lshrrev_b32 v{vT}, 8, v{vT}")
    A(f"v_mul_u32_u24 v{vT+1}, 7, v{vT}")
    A(f"v_sub_u32 v{vT+1}, v{vL}, v{vT+1}")
    A(f"v_min_u32 v{vT}, 7, v{vT}")
    A(f"s_and_b32 s{sT0}, s{sCT}, 3")
    A(f"s_lshl_b32 s{sT0}, s{sT0}, 2")
    A(f"s_add_u32 s{sT0}, s{sT0}, s{sW}")
    A(f"s_lshl_b32 s{sT0}, s{sT0}, 3")
    A(f"v_add_u32 v{vT}, s{sT0}, v{vT}")
    A(f"v_mul_u32_u24 v{vT}, 1280, v{vT}")
    A(f"v_lshl_add_u32 v{vT}, v{vT+1}, 7, v{vT}")
    A(f"v_add_u32 v{vT}, 384, v{vT}")
    A(f"buffer_load_dword v{G_P+1}, v{vT}, s[{sX}:{sX+3}], s{sXOFF} offen")
    A(f"s_cmp_ge_u32 s{sW}, 2")
    A(f"s_cbranch_scc1 L_twa{n}")
    A(f"s_and_b32 s{sT0}, s{sRB}, 7")
    A(f"s_mul_i32 s{sT0}, s{sT0}, 56")
    A(f"s_mul_i32 s{sT1}, s{sW}, 28")
    A(f"s_add_u32 s{sT0}, s{sT0}, s{sT1}")
    A(f"s_add_u32 s{sT0}, s{sT0}, 192")
    A(f"v_lshrrev_b32 v{vT}, 1, v{vL}")
    A(f"v_min_u32 v{vT}, 27, v{vT}")
    A(f"v_add_u32 v{vT}, s{sT0}, v{vT}")
    A(f"v_mul_u32_u24 v{vT}, 3840, v{vT}")
    A(f"v_and_b32 v{vT+1}, 1, v{vL}")
    A(f"v_lshl_add_u32 v{vT}, v{vT+1}, 7, v{vT}")
    A(f"buffer_load_dword v{G_P+2}, v{vT}, s[{sWA}:{sWA+3}], s{sWOFF} offen")
    A.label(f"L_twa{n}")


def setup_phase1_reads(A):
    A(f"v_lshrrev_b32 v{vT+2}, 1, v{vR}")
    A(f"v_and_b32 v{vT+2}, 7, v{vT+2}")
    A(f"v_xor_b32 v{vT+2}, v{vT+2}, v{vHH}")
    A(f"v_lshlrev_b32 v{vT+2}, 4, v{vT+2}")
    A(f"s_lshl_b32 s{sT0}, s{sMH}, 6")
    A(f"v_add_u32 v{vT+3}, s{sT0}, v{vR}")
    A(f"v_lshl_add_u32 v{vXR}, v{vT+3}, 7, v{vT+2}")
    for ks in range(1, 4):
        A(f"v_xor_b32 v{vXR+3*ks}, {ks*32}, v{vXR}")
    for ks in range(4):
        A(f"v_add_u32 v{vXR+3*ks+1}, 0x10000, v{vXR+3*ks}")
        A(f"v_add_u32 v{vXR+3*ks+2}, 0x20000, v{vXR+3*ks}")
    A(f"v_bfe_u32 v{vT+2}, v{vL}, 2, 2")
    A(f"v_lshl_add_u32 v{vT+3}, v{vHH}, 3, v{vT+2}")
    A(f"v_lshlrev_b32 v{vT+3}, 8, v{vT+3}")
    A(f"v_bfe_u32 v{vT+4}, v{vL}, 4, 1")
    A(f"v_lshlrev_b32 v{vT+4}, 5, v{vT+4}")
    A(f"v_add_u32 v{vT+3}, v{vT+3}, v{vT+4}")
    A(f"v_and_b32 v{vT+4}, 3, v{vL}")
    A(f"v_lshlrev_b32 v{vT+4}, 3, v{vT+4}")
    A(f"v_add_u32 v{vT+3}, v{vT+3}, v{vT+4}")
    for nt in range(2):
        A(f"s_lshl_b32 s{sT0}, s{sNH}, 1")
        A(f"s_add_u32 s{sT0}, s{sT0}, {nt}")
        A(f"v_xor_b32 v{vT+4}, s{sT0}, v{vT+2}")
        A(f"v_lshl_add_u32 v{vWR1+3*nt}, v{vT+4}, 6, v{vT+3}")
        A(f"v_add_u32 v{vWR1+3*nt+1}, 0x10000, v{vWR1+3*nt}")
        A(f"v_add_u32 v{vWR1+3*nt+2}, 0x20000, v{vWR1+3*nt}")


def setup_p2_0(A):
    A(f"s_lshl_b32 s{sF1}, s{sCT}, 4")
    A(f"s_add_u32 s{sF1}, s{sF1}, s{sRB}")
    A(f"s_lshl_b32 s{sF1}, s{sF1}, 2")
    A(f"s_and_b32 s{sT0}, s2, 7")
    A(f"s_lshl_b32 s{sT0}, s{sT0}, 2")
    A(f"s_lshr_b32 s{sT1}, s2, 3")
    A(f"s_and_b32 s{sT1}, s{sT1}, 3")
    A(f"s_add_u32 s{sH}, s{sT0}, s{sT1}")
    A(f"s_lshr_b32 s{sQB}, s2, 5")
    A(f"s_lshr_b32 s{sT0}, s{sH}, 1")
    A(f"s_mul_i32 s{sT0}, s{sT0}, 5")
    A(f"s_add_u32 s{sP2L}, s{sT0}, 2")
    A(f"s_and_b32 s{sT1}, s{sH}, 1")
    A(f"s_mul_i32 s{sT1}, s{sT1}, 3")
    A(f"s_add_u32 s{sPA}, s{sT0}, s{sT1}")
    A(f"s_mul_i32 s{sVH}, s{sH}, {VH}")
    A(f"s_mul_i32 s{sLDSW}, s{sW}, 2816")
    A(f"s_mul_i32 s{sLDSW2}, s{sW}, 2560")
    A(f"s_lshl_b32 s{sQ0}, s{sQB}, 8")
    A(f"s_lshl_b32 s{sT0}, s{sW}, 5")
    A(f"s_add_u32 s{sQ0}, s{sQ0}, s{sT0}")
    A(f"s_lshl_b32 s{sQT}, s{sQB}, 2")
    A(f"s_lshr_b32 s{sT0}, s{sW}, 1")
    A(f"s_add_u32 s{sQT}, s{sQT}, s{sT0}")
    A(f"s_and_b32 s{sT1}, s{sW}, 1")
    A(f"s_lshl_b32 s{sBT}, s{sQT}, 6")
    A(f"s_add_u32 s{sBT}, s{sBT}, s{sT1}")
    A(f"s_mov_b32 s{sLO20}, 0xfffff")
    A(f"s_mov_b32 s{sLO20+1}, 0xfffff")
    A(f"v_lshlrev_b32 v{vQA}, 15, v{vHH}")
    A(f"v_lshl_add_u32 v{vQA}, v{vR}, 4, v{vQA}")
    A(f"v_lshlrev_b32 v{vQA2}, 4, v{vR}")
    A(f"v_lshlrev_b32 v{vGA}, 2, v{vR}")
    A(f"s_lshl_b32 s{sT0}, s{sQ0}, 4")
    A(f"s_lshl_b32 s{sQOFF}, s{sPA}, 15")
    A(f"s_add_u32 s{sQOFF}, s{sQOFF}, s{sT0}")
    if QA:
        A(f"s_add_u32 s{sQOFF}, s{sQOFF}, {QA}")
    A(f"s_lshl_b32 s{sQOFF2}, s{sP2L}, 15")
    A(f"s_add_u32 s{sQOFF2}, s{sQOFF2}, s{sT0}")
    A(f"s_and_b32 s{sT1}, s{sH}, 1")
    A(f"s_lshl_b32 s{sT1}, s{sT1}, 3")
    A(f"s_add_u32 s{sQOFF2}, s{sQOFF2}, s{sT1}")
    if QA:
        A(f"s_add_u32 s{sQOFF2}, s{sQOFF2}, {QA}")
    A(f"s_lshl_b32 s{sGOFF}, s{sQ0}, 2")
    A(f"s_add_u32 s{sGOFF}, s{sGOFF}, {GATE}")


def setup_p2_1(A):
    A(f"s_and_b32 s{sT1}, s{sH}, 1")
    A(f"s_lshl_b32 s{sT1}, s{sT1}, 3")
    A(f"v_lshlrev_b32 v{vT}, 12, v{vHH}")
    A(f"v_lshl_add_u32 v{vT}, v{vR}, 4, v{vT}")
    A(f"v_lshlrev_b32 v{vT+1}, 4, v{vR}")
    A(f"v_add_u32 v{vT+1}, s{sT1}, v{vT+1}")
    A(f"v_mul_u32_u24 v{vT+2}, 320, v{vHH}")
    A(f"v_lshl_add_u32 v{vT+2}, v{vR}, 4, v{vT+2}")
    A(f"v_add_u32 v{vT+3}, {ONES}, v{vT+2}")
    A(f"v_cmp_gt_u32 vcc, 20, v{vR}")
    for sl in range(NSLOT):
        A(f"v_add_u32 v{vK01+sl}, {sl*SLOT}, v{vT}")
        A(f"v_add_u32 v{vK2+sl}, {sl*SLOT}, v{vT+1}")
        A(f"v_add_u32 v{vT+4}, {sl*SLOT + 12288}, v{vT+2}")
        A(f"v_cndmask_b32 v{vV+sl}, v{vT+3}, v{vT+4}, vcc")
    A(f"s_lshl_b32 s{sT2}, s{sPA}, 15")
    A(f"s_add_u32 s{sT2}, s{sT2}, {KA}")
    A(f"s_lshl_b32 s{sT3}, s{sP2L}, 15")
    A(f"s_add_u32 s{sT3}, s{sT3}, {KA - 8192}")
    A(f"s_add_u32 s{sT4}, s{sVH}, {VA - 12288}")
    for t in range(3):
        A(f"v_add_u32 v{vT}, s{sLDSW}, v{vL16}")
        if t:
            A(f"v_add_u32 v{vT}, {1024*t}, v{vT}")
        A(f"v_lshrrev_b32 v{vT+1}, 12, v{vT}")
        A(f"v_and_b32 v{vT+2}, 4095, v{vT}")
        A(f"v_lshl_add_u32 v{vT+2}, v{vT+1}, 15, v{vT+2}")
        A(f"v_add_u32 v{vT+2}, s{sT2}, v{vT+2}")
        A(f"v_add_u32 v{vT+3}, s{sT3}, v{vT}")
        A(f"v_add_u32 v{vT+4}, s{sT4}, v{vT}")
        A(f"v_cmp_eq_u32 vcc, 2, v{vT+1}")
        A(f"v_mov_b32 v{vT+5}, 4096")
        A(f"v_mov_b32 v{vT+6}, 10240")
        A(f"v_cndmask_b32 v{vT+2}, v{vT+2}, v{vT+3}, vcc")
        A(f"v_cmp_le_u32 vcc, 3, v{vT+1}")
        A("s_nop 1")
        A(f"v_cndmask_b32 v{vCB+t}, v{vT+2}, v{vT+4}, vcc")
        A(f"v_cndmask_b32 v{vCS+t}, v{vT+5}, v{vT+6}, vcc")


def setup_p2_2(A):
    A(f"s_lshr_b32 s{sT0}, s{sH}, 1")
    A(f"s_mul_i32 s{sT0}, s{sT0}, 5")
    A(f"s_and_b32 s{sT1}, s{sH}, 1")
    A(f"s_lshl_b32 s{sT2}, s{sT1}, 1")
    A(f"s_add_u32 s{sT2}, s{sT2}, s{sT0}")
    A(f"v_add_u32 v{vT}, s{sT2}, v{vHH}")
    A(f"v_lshlrev_b32 v{vT}, 15, v{vT}")
    A(f"v_lshl_add_u32 v{vOST}, v{vR}, 4, v{vT}")
    A(f"v_lshl_add_u32 v{vOST+1}, v{vR}, 5, v{vT}")
    A(f"s_add_u32 s{sT0}, s{sT0}, 4")
    A(f"s_lshl_b32 s{sT0}, s{sT0}, 15")
    A(f"s_lshl_b32 s{sT1}, s{sT1}, 3")
    A(f"s_add_u32 s{sT0}, s{sT0}, s{sT1}")
    A(f"v_lshlrev_b32 v{vT}, 4, v{vR}")
    A(f"v_add_u32 v{vOST+2}, s{sT0}, v{vT}")
    A(f"v_lshlrev_b32 v{vT}, 5, v{vR}")
    A(f"v_add_u32 v{vOST+3}, s{sT0}, v{vT}")
    A(f"s_mul_i32 s{sT0}, s{sH}, 20")
    A(f"s_add_u32 s{sT1}, s{sT0}, 19")
    A(f"s_lshr_b32 s{sT0}, s{sT0}, 7")
    A(f"s_lshr_b32 s{sT1}, s{sT1}, 7")
    A(f"v_bfe_u32 v{vT}, v{vL}, 4, 1")
    A(f"s_sub_u32 s{sT2}, s{sT1}, s{sT0}")
    A(f"v_mul_u32_u24 v{vT+1}, s{sT2}, v{vT}")
    A(f"v_add_u32 v{vT+1}, s{sT0}, v{vT+1}")
    A(f"v_mul_u32_u24 v{vT+2}, 5, v{vHH}")
    A(f"v_add_u32 v{vT+2}, 5, v{vT+2}")
    A(f"v_add_u32 v{vT+2}, v{vT+2}, v{vT+1}")
    A(f"v_and_b32 v{vT+3}, 15, v{vL}")
    A(f"v_lshl_add_u32 v{vT+2}, v{vT+2}, 4, v{vT+3}")
    A(f"v_lshlrev_b32 v{vF1}, 2, v{vT+2}")
    A(f"v_add_u32 v{vT+2}, {15*16}, v{vT+3}")
    A(f"v_lshlrev_b32 v{vF4}, 2, v{vT+2}")
    A(f"v_and_b32 v{vT+4}, 1, v{vL}")
    A(f"s_lshl_b32 s{sT3}, s{sQB}, 1")
    A(f"v_add_u32 v{vT+4}, s{sT3}, v{vT+4}")
    A(f"v_lshl_add_u32 v{vT+4}, v{vT+1}, 4, v{vT+4}")
    A(f"v_lshlrev_b32 v{vF2}, 2, v{vT+4}")
    A(f"v_and_b32 v{vT}, 1, v{vL}")
    A(f"v_mul_u32_u24 v{vT+1}, s{sT2}, v{vT}")
    A(f"v_add_u32 v{vT+1}, s{sT0}, v{vT+1}")
    A(f"v_bfe_u32 v{vT+2}, v{vL}, 1, 2")
    A(f"v_min_u32 v{vT+2}, 2, v{vT+2}")
    A(f"v_mul_u32_u24 v{vT+2}, 5, v{vT+2}")
    A(f"v_add_u32 v{vT+1}, v{vT+1}, v{vT+2}")
    A(f"s_lshl_b32 s{sT3}, s{sQB}, 1")
    A(f"v_bfe_u32 v{vT+2}, v{vL}, 3, 2")
    A(f"v_min_u32 v{vT+2}, 2, v{vT+2}")
    A(f"v_add_u32 v{vT+2}, s{sT3}, v{vT+2}")
    A(f"v_max_u32 v{vT+2}, 1, v{vT+2}")
    A(f"v_subrev_u32 v{vT+2}, 1, v{vT+2}")
    A(f"v_lshl_add_u32 v{vT+1}, v{vT+1}, 4, v{vT+2}")
    A(f"v_lshlrev_b32 v{vF3}, 2, v{vT+1}")


def setup_p2_3(A):
    A(f"v_lshlrev_b32 v{vBA}, 15, v{vHH}")
    A(f"v_lshl_add_u32 v{vBA}, v{vR}, 4, v{vBA}")
    A(f"v_lshlrev_b32 v{vBA+1}, 4, v{vR}")
    A(f"v_and_b32 v{vT+2}, 25, v{vR}")
    A(f"v_bfe_u32 v{vT+3}, v{vR}, 1, 1")
    A(f"v_lshl_or_b32 v{vT+2}, v{vT+3}, 2, v{vT+2}")
    A(f"v_bfe_u32 v{vT+3}, v{vR}, 2, 1")
    A(f"v_lshl_or_b32 v{vT+2}, v{vT+3}, 1, v{vT+2}")
    A(f"v_lshlrev_b32 v{vT+3}, 15, v{vHH}")
    A(f"v_lshl_add_u32 v{vBA+2}, v{vT+2}, 4, v{vT+3}")
    A(f"v_lshlrev_b32 v{vBA+3}, 4, v{vT+2}")
    A(f"v_mul_u32_u24 v{vT+4}, 320, v{vHH}")
    A(f"v_lshl_add_u32 v{vBA+4}, v{vR}, 4, v{vT+4}")
    A(f"s_and_b32 s{sT1}, s{sW}, 1")
    A(f"s_lshl_b32 s{sT1}, s{sT1}, 10")
    A(f"s_lshl_b32 s{sT0}, s{sQT}, 5")
    A(f"s_add_u32 s{sT2}, s{sT1}, s{sT0}")
    A(f"s_lshl_b32 s{sT0}, s{sPA}, 15")
    A(f"s_lshl_b32 s{sT1}, s{sP2L}, 15")
    A(f"s_and_b32 s{sT3}, s{sH}, 1")
    A(f"s_lshl_b32 s{sT3}, s{sT3}, 3")
    A(f"s_add_u32 s{sT1}, s{sT1}, s{sT3}")
    for prev in range(2):
        if prev:
            A(f"s_cmp_eq_u32 s{sQT}, 0")
            A(f"s_cselect_b32 s{sT3}, 0, 32")
            A(f"s_sub_u32 s{sT2}, s{sT2}, s{sT3}")
        A(f"s_lshl_b32 s{sT3}, s{sT2}, 4")
        if not prev:
            A(f"s_add_u32 s{sBA}, s{sT3}, s{sT0}")
            A(f"s_add_u32 s{sBA}, s{sBA}, {QB}")
            A(f"s_add_u32 s{sBA+1}, s{sT3}, s{sT1}")
            A(f"s_add_u32 s{sBA+1}, s{sBA+1}, {QB}")
        o = sBA + 2 + 3 * prev
        A(f"s_add_u32 s{o}, s{sT3}, s{sT0}")
        A(f"s_add_u32 s{o}, s{o}, {KB}")
        A(f"s_add_u32 s{o+1}, s{sT3}, s{sT1}")
        A(f"s_add_u32 s{o+1}, s{o+1}, {KB}")
        A(f"s_lshr_b32 s{sT3}, s{sT2}, 4")
        A(f"s_mul_i32 s{sT3}, s{sT3}, 640")
        A(f"s_add_u32 s{o+2}, s{sT3}, s{sVH}")
        A(f"s_add_u32 s{o+2}, s{o+2}, {VB}")
    A(f"s_lshl_b32 s{sBA+8}, s{sBT}, 2")
    A(f"s_add_u32 s{sBA+8}, s{sBA+8}, {GATE}")


def setup_p2_4(A):
    sRT, sCO, sTG = sT1, sT2, sT3
    A(f"s_lshr_b32 s{sRT}, s{sH}, 3")
    A(f"s_lshl_b32 s{sT0}, s{sQB}, 2")
    A(f"s_add_u32 s{sRT}, s{sRT}, s{sT0}")
    A(f"s_and_b32 s{sCO}, s{sH}, 7")
    A(f"s_and_b32 s{sTG}, s{sW}, 3")
    A(f"s_lshr_b32 s{sKG}, s{sW}, 2")
    A(f"s_lshl_b32 s{sFLG}, s{sRT}, 8")
    A(f"s_mul_i32 s{sWSRC}, s{sW}, 20480")
    A(f"s_mul_i32 s{sT0}, s{sCO}, 1280")
    A(f"s_add_u32 s{sWSRC}, s{sWSRC}, s{sT0}")
    A(f"s_add_u32 s{sWSRC}, s{sWSRC}, {WOT}")
    A(f"s_lshl_b32 s{sRT}, s{sRT}, 6")
    A(f"s_lshl_b32 s{sTG}, s{sTG}, 4")
    A(f"s_add_u32 s{sRT}, s{sRT}, s{sTG}")
    A(f"s_mul_i32 s{sOUTO}, s{sRT}, 1280")
    A(f"s_mul_i32 s{sT0}, s{sCO}, 160")
    A(f"s_add_u32 s{sOUTO}, s{sOUTO}, s{sT0}")
    A(f"s_lshl_b32 s{sOCB}, s{sRT}, 4")
    A(f"s_mul_i32 s{sT0}, s{sKG}, {40*32768}")
    A(f"s_add_u32 s{sOCB}, s{sOCB}, s{sT0}")
    A(f"s_add_u32 s{sOCB}, s{sOCB}, {OC}")
    A(f"s_lshl_b32 s{sPUB}, s{sQT}, 6")
    A(f"s_lshl_b32 s{sT0}, s{sH}, 1")
    A(f"s_add_u32 s{sPUB}, s{sPUB}, s{sT0}")
    A(f"s_and_b32 s{sT0}, s{sW}, 1")
    A(f"s_add_u32 s{sPUB}, s{sPUB}, s{sT0}")
    A(f"s_lshl_b32 s{sPUB}, s{sPUB}, 2")
    A(f"v_lshlrev_b32 v{vFA}, 2, v{vL}")
    A(f"v_mov_b32 v{vW0}, v{vL16}")
    A(f"v_add_u32 v{vT}, 1024, v{vL16}")
    A(f"v_add_u32 v{vT+1}, {10240 - 256}, v{vL16}")
    A(f"v_cmp_gt_u32 vcc, 16, v{vL}")
    A(f"v_add_u32 v{vW2}, {10240 + 768}, v{vL16}")
    A(f"v_lshrrev_b32 v{vT+2}, 4, v{vL}")
    A(f"v_cndmask_b32 v{vW1}, v{vT+1}, v{vT}, vcc")
    A(f"v_and_b32 v{vT+3}, 15, v{vL}")
    A(f"v_lshlrev_b32 v{vT+4}, 15, v{vT+2}")
    A(f"v_lshl_add_u32 v{vOC}, v{vT+3}, 4, v{vT+4}")
    A(f"v_mul_u32_u24 v{vT+4}, 1280, v{vT+2}")
    A(f"v_lshl_add_u32 v{vWR}, v{vT+3}, 4, v{vT+4}")
    A(f"v_mul_u32_u24 v{vT+4}, 1280, v{vT+3}")
    A(f"v_lshl_add_u32 v{vST}, v{vT+2}, 3, v{vT+4}")


SETUP_P2 = [setup_p2_0, setup_p2_1, setup_p2_2, setup_p2_3, setup_p2_4]


def setup_phase2(A):
    for f in SETUP_P2:
        f(A)


def pattern_fill(A, n):
    for r in range(2):
        A(f"v_and_b32 v{vT}, 255, v0")
        if r:
            A(f"v_add_u32 v{vT}, 256, v{vT}")
        A(f"v_mul_u32_u24 v{vT+1}, 3277, v{vT}")
        A(f"v_lshrrev_b32 v{vT+1}, 16, v{vT+1}")
        A(f"v_mul_u32_u24 v{vT+1}, 20, v{vT+1}")
        A(f"v_cmp_eq_u32 vcc, v{vT+1}, v{vT}")
        A(f"v_mov_b32 v{vT+4}, 0")
        A(f"v_mov_b32 v{vT+5}, 0x3f803f80")
        A(f"v_cndmask_b32 v{vT+4}, v{vT+4}, v{vT+5}, vcc")
        for i in range(1, 4):
            A(f"v_mov_b32 v{vT+4+i}, v{vT+4}")
        if r == 1:
            A(f"v_cmp_gt_u32 vcc, {PAT_UNITS}, v{vT}")
        A(f"v_lshlrev_b32 v{vT}, 4, v{vT}")
        A(f"v_add_u32 v{vT}, {ONES}, v{vT}")
        if r == 1:
            A("s_and_saveexec_b64 s[%d:%d], vcc" % (sT4, sT5))
            A(f"s_cbranch_execz L_pat_done{n}")
        A(f"ds_write_b128 v{vT}, {v(vT+4,4)}")
    A.label(f"L_pat_done{n}")
    A("s_mov_b64 exec, -1")
    A.lds_wait_all()


def gen(prof=False):
    A = Asm()
    A.prof = prof
    A.PROF_V = 239
    A.lines.append(DOC.rstrip())
    kernel_header(A, NAME)
    A("s_cmp_ge_u32 s2, 256")
    A("s_cbranch_scc1 L_end")
    A.stamp("start")
    if EXP.get("jit"):
        A(f"s_mov_b32 s{sW}, 0")
        jitter(A)
    A("s_load_dwordx4 s[4:7], s[0:1], 0")
    A(f"s_load_dwordx2 s[{sP}:{sP+1}], s[0:1], 32")
    A(f"s_load_dwordx2 s[{sP+2}:{sP+3}], s[0:1], 72")
    A(f"s_load_dwordx4 s[{sDBG}:{sDBG+3}], s[0:1], 56")
    A(f"v_lshrrev_b32 v{vT}, 6, v0")
    A(f"v_and_b32 v{vL}, 63, v0")
    A(f"v_readfirstlane_b32 s{sW}, v{vT}")
    A(f"v_and_b32 v{vR}, 31, v{vL}")
    A(f"v_lshrrev_b32 v{vHH}, 5, v{vL}")
    A(f"v_lshlrev_b32 v{vL16}, 4, v{vL}")
    A(f"s_and_b32 s{sT0}, s2, 7")
    A(f"s_lshr_b32 s{sT1}, s2, 3")
    A(f"s_and_b32 s{sRB}, s{sT0}, 1")
    A(f"s_lshl_b32 s{sRB}, s{sRB}, 3")
    A(f"s_and_b32 s{sT2}, s{sT1}, 7")
    A(f"s_add_u32 s{sRB}, s{sRB}, s{sT2}")
    A(f"s_lshr_b32 s{sCT}, s{sT0}, 1")
    A(f"s_lshl_b32 s{sCT}, s{sCT}, 2")
    A(f"s_lshr_b32 s{sT2}, s{sT1}, 3")
    A(f"s_add_u32 s{sCT}, s{sCT}, s{sT2}")
    if EXP.get("defer", 0):
        A(f"s_mov_b32 s{sDEFON}, 0")
    A(f"s_and_b32 s{sGI}, s{sW}, 3")
    A(f"s_and_b32 s{sMH}, s{sGI}, 1")
    A(f"s_lshr_b32 s{sNH}, s{sGI}, 1")
    A(f"s_mul_i32 s{sXOFF}, s{sRB}, {128*1280}")
    A(f"s_lshl_b32 s{sWOFF}, s{sCT}, 8")
    A(f"s_lshl_b32 s{sLDS1}, s{sGI}, 10")
    A(f"s_mul_hi_u32 s{sT0}, s{sCT}, 0x33333334")
    A(f"s_mul_i32 s{sT0}, s{sT0}, 5")
    A(f"s_sub_u32 s{sCT5}, s{sCT}, s{sT0}")
    A(f"v_lshrrev_b32 v{vT}, 3, v{vL}")
    A(f"s_lshl_b32 s{sT0}, s{sGI}, 3")
    A(f"v_add_u32 v{vT}, s{sT0}, v{vT}")
    A(f"v_lshrrev_b32 v{vT+1}, 1, v{vT}")
    A(f"v_xor_b32 v{vT+1}, v{vT+1}, v{vL}")
    A(f"v_and_b32 v{vT+1}, 7, v{vT+1}")
    A(f"v_lshlrev_b32 v{vT+1}, 4, v{vT+1}")
    A(f"v_mul_u32_u24 v{vT+2}, 1280, v{vT}")
    A(f"v_add_u32 v{vXD}, v{vT+2}, v{vT+1}")
    A(f"v_lshrrev_b32 v{vT}, 4, v{vL}")
    A(f"v_lshlrev_b32 v{vT+1}, 2, v{vT}")
    A(f"v_xor_b32 v{vT+1}, v{vT+1}, v{vL}")
    A(f"v_and_b32 v{vT+1}, 15, v{vT+1}")
    A(f"v_lshlrev_b32 v{vT+1}, 4, v{vT+1}")
    A(f"s_lshl_b32 s{sT0}, s{sGI}, 2")
    A(f"v_add_u32 v{vT}, s{sT0}, v{vT}")
    A(f"v_mul_u32_u24 v{vT}, 3840, v{vT}")
    A(f"v_add_u32 v{vWD}, v{vT}, v{vT+1}")
    if EXP.get("stampP"):
        A("s_memtime s[96:97]")
        A("s_memrealtime s[98:99]")
    A("s_waitcnt lgkmcnt(0)")
    if EXP.get("stampP"):
        A(f"v_writelane_b32 v{A.PROF_V}, s96, 14")
        A(f"v_writelane_b32 v{A.PROF_V}, s98, 30")
        A.stamp("", 15)
    srd(A, sX, 4, X_BYTES)
    srd(A, sWA, 6, W_BYTES)
    srd(A, sWB, sP, W_BYTES)
    srd(A, sWS, sP + 2, WS_USED)
    srd(A, sOUT, sDBG, OUT_BYTES)
    A(f"s_mov_b32 s{sDBG}, s{sDBG+2}")
    A(f"s_and_b32 s{sDBG+1}, s{sDBG+3}, 0xffff")
    A(f"s_mov_b32 s{sDBG+2}, 256")
    A(f"s_mov_b32 s{sDBG+3}, 0x20000")
    A(f"s_cmp_eq_u32 s{sCT}, 15")
    A("s_cbranch_scc1 L_nodma")
    A(f"s_cmp_lt_u32 s{sW}, 4")
    A("s_cbranch_scc1 L_nodma")
    if EXP.get("txf"):
        touch_xcd_first(A)
    for b in range(3):
        for p in range(8):
            g_dma(A, b, p)
    A(f"s_cmp_ge_u32 s{sCT}, 10")
    A("s_cbranch_scc1 L_g1n")
    A("s_branch L_g1t")
    A.label("L_nodma")
    if EXP.get("tchip", 13) in (1, 2, 3):
        touch_chip(A, {1: "xab", 2: "xa", 3: "b"}[EXP["tchip"]])
    if EXP.get("tchip") == 6:
        touch_chip_wide(A, "xa", "e")
    if EXP.get("tchip") == 7:
        touch_chip_wide(A, "ax", "e")
    A(f"s_or_b32 s{sT0}, s2, s{sW}")
    A(f"s_cmp_lg_u32 s{sT0}, 0")
    A("s_cbranch_scc1 L_nonce_done")
    A(f"s_memrealtime s[{sT4}:{sT5}]")
    A("s_waitcnt lgkmcnt(0)")
    A(f"s_or_b32 s{sT0}, s{sT4}, 1")
    A(f"v_mov_b32 v{vT}, s{sT0}")
    A(f"v_mov_b32 v{vT+1}, 0")
    A("s_mov_b64 exec, 1")
    A(f"buffer_store_dword v{vT}, v{vT+1}, s[{sDBG}:{sDBG+3}], 0 offen sc1")
    A("s_mov_b64 exec, -1")
    A.label("L_nonce_done")
    if EXP.get("cpf"):
        A(f"s_lshr_b32 s{sT1}, s2, 3")
        A(f"s_cmp_ge_u32 s{sT1}, 8")
        A("s_cbranch_scc1 L_cpf_done")
        A(f"s_cmp_lg_u32 s{sW}, {EXP['cpf'] - 1}")
        A("s_cbranch_scc1 L_cpf_done")
        A(f"s_getpc_b64 s[{sT4}:{sT5}]")
        A.label("L_cpf_pc")
        A(f"s_sub_u32 s{sT4}, s{sT4}, L_cpf_pc - {NAME}")
        A(f"s_subb_u32 s{sT5}, s{sT5}, 0")
        A(f"s_lshl_b32 s{sT1}, s{sT1}, 13")
        A(f"v_lshlrev_b32 v{vT}, 7, v{vL}")
        A(f"v_add_u32 v{vT}, s{sT1}, v{vT}")
        A(f"v_min_u32 v{vT}, L_end - {NAME}, v{vT}")
        A(f"global_load_dword v{G_P}, v{vT}, s[{sT4}:{sT5}]")
        A.label("L_cpf_done")
    if EXP.get("tchip", 13) in (10, 11, 12, 13, 14):
        m = EXP.get("tchip", 13)
        if m in (13, 14):
            touch_phase(A, 3)
        if m in (10, 14):
            touch_phase(A, 0)
        setup_phase1_reads(A)
        if m not in (10, 14):
            touch_phase(A, 0)
        for k, f in enumerate(SETUP_P2):
            if k == (1 if m != 12 else 2):
                touch_phase(A, 1)
            f(A)
        touch_phase(A, 2)
    elif EXP.get("tchip") in (5, 9):
        setup_phase1_reads(A)
        touch_chip(A, "xa" if EXP["tchip"] == 5 else "xab")
        setup_phase2(A)
    else:
        setup_phase1_reads(A)
        setup_phase2(A)
    if EXP.get("tchip") == 4:
        touch_chip(A, "xa")
    if EXP.get("tchip") == 8:
        touch_chip(A, "xab")
    A.stamp("issued")
    A(f"s_cmp_eq_u32 s{sCT}, 15")
    A("s_cbranch_scc1 L_spare")
    A(f"s_cmp_ge_u32 s{sCT}, 10")
    A("s_cbranch_scc1 L_vtile")
    if prof:
        A.stamps += ["blk0 landed", "gemm0", "epi0", "gemm1", "epi1"]
        if EXP.get("stampB"):
            A.stamps += ["B10", "B12", "B14", "B16"]
        if EXP.get("stampA"):
            A.stamps += ["B0", "B2", "B4", "B6"]
    gemm(A, True, "t")
    A("s_branch L_attn")
    A.label("L_vtile")
    gemm(A, False, "n")
    A.label("L_attn")
    A.vm_q, A.lds_q = [], []
    jitter(A)
    A.stamp("attn start")
    if EXP.get("prio") == 1:
        A(f"s_cmp_lt_u32 s{sW}, 4")
        A("s_cbranch_scc1 L_prio_done")
        A("s_setprio 1")
        A.label("L_prio_done")
    rd_k01(A, 0)
    rd_k2(A, 0)
    dma_chunk(A, 3)
    A(f"v_cmp_gt_u32 vcc, 20, v{vR}")
    A(f"v_mov_b32 v{vT}, 0")
    A(f"v_mov_b32 v{vT+1}, 5120")
    A(f"v_cndmask_b32 v{vT}, v{vT}, v{vT+1}, vcc")
    for sl in range(NSLOT):
        A(f"v_add_u32 v{vV2[sl]}, v{vV+sl}, v{vT}")
    b_consts(A)
    A.lds_wait_all()
    mf16(A, SA, K01, Q01, "0")
    mf8(A, SA, K2, Q2, v(SA, 16))
    A("s_nop 7")
    A("s_nop 5")
    max16(A, vT, SA, True)
    cross_half_max(A, vT, vT + 1)
    for i in range(16):
        A(f"v_sub_f32 v{NEGM+i}, 0, v{vT}")
    A("s_nop 1")
    mf16(A, SA, K01, Q01, v(NEGM, 16))
    mf8(A, SA, K2, Q2, v(SA, 16))
    rd_k01(A, 1)
    rd_k2(A, 1)
    rd_v(A, 0, 0)
    A("s_nop 7")
    A("s_nop 3")
    NT = 64
    sched = {}
    def at(t, half, fn):
        sched.setdefault((t, half), []).append(fn)
    fb_items = [(vFL, vF3, F1B, None), (vFL2, vF4, F1A, None)]
    pos = {}
    def issue(name, items):
        def f(A):
            pos[name] = poll_issue(A, items, name)
        return f
    if EXP.get("defer", 0):
        def deferred(g):
            def f(A):
                A(f"s_cmp_eq_u32 s{sDEFON}, 0")
                A(f"s_cbranch_scc1 L_def{g}")
                A(f"buffer_store_dwordx4 {v(G_P + 4*g, 4)}, v{vDEF[(g >> 1) & 1]}, {WS}, s{sDEF+g} offen sc1")
                A.label(f"L_def{g}")
            return f
        for g in range(8):
            at(6 + (g + 1), 0, deferred(g)) if g < 7 else at(13, 1, deferred(g))
        T_PUB1B, T_POLL1B, T_CHK1B = 22, 25, 30
        T_G, T_BL, T_BU, T_WB, T_PUBB, T_C7, T_POLLB = (30, 1), 31, 39, 40, 47, 47, 51
    else:
        T_PUB1B, T_POLL1B, T_CHK1B = 6, 13, 22
        T_G, T_BL, T_BU, T_WB, T_PUBB, T_C7, T_POLLB = (22, 1), 23, 31, 42, 38, 39, 48
    at(T_POLL1B, 0, issue("f1b", fb_items))
    fo_items = [(vFL, vFA, FLAGB, sFLG)]
    pre_barrier = {T_CHK1B: lambda A: poll_check(A, fb_items, pos["f1b"], "f1b"),
                   54: lambda A: poll_check(A, fo_items, pos["fb"], "fb")}
    at(T_G[0], T_G[1], lambda A: A.vm(f"buffer_load_dword v{vG}, v{vGA}, {WS}, s{sGOFF} offen sc1", "g"))
    for i, f in enumerate(b_load_items()):
        at(T_BL + i // 2, i % 2, f)
    at(T_BU, 0, b_unit)
    at(T_PUBB, 0 if EXP.get("defer", 0) else 1, lambda A: publish(A, sPUB, FLAGB, "stb"))
    at(T_POLLB, 0, issue("fb", fo_items))
    for k in range(10):
        at(55 + k // 2, k % 2, lambda A, k=k: oc_load(A, 1, k))
    for st in range(3):
        for p in range(3):
            i = 3 * st + p
            at(T_WB + i // 2, i % 2, lambda A, st=st, p=p: dma_w_piece(A, 1, st, p))
    for st in range(3, 5):
        for p in range(3):
            i = 3 * (st - 3) + p
            at(57 + i // 2, 1 - i % 2, lambda A, st=st, p=p: dma_w_piece(A, 1, st, p))
    for c in range(2, NCH - 2):
        t0 = TPC * c - 1
        if c == 4:
            t0 = 31 if EXP.get("defer", 0) else 32
        if c == 5:
            t0 = T_C7
        for p in range(3):
            at(t0 + (p + 1) // 2, (p + 1) % 2, lambda A, c=c, p=p: dma_chunk_piece(A, c + 2, p))
    for t in range(NT):
        cur = SA if t % 2 == 0 else SB
        nxt = SB if t % 2 == 0 else SA
        if (t == 32 and not (EXP.get("stampB") or EXP.get("stampA"))) or (EXP.get("stampB") and t in (21, 24)):
            A.stamp("t%d" % t)
        if t % TPC == TPC - 2 and t + 2 < NT:
            c = (t + 2) // TPC
            if c == 1:
                A.vm_wait_all()
            if c == 3:
                A.vm_wait_all()
            A.vm_wait(("c", c))
            if t in pre_barrier:
                pre_barrier[t](A)
            A("s_barrier")
            if t == T_PUB1B:
                with Wave0(A, "pubb"):
                    publish(A, sF1, F1B)
        if EXP.get("prio") == 2 and t == 55:
            A(f"s_cmp_lt_u32 s{sW}, 4")
            A("s_cbranch_scc1 L_prio_done")
            A("s_setprio 1")
            A.label("L_prio_done")
        if EXP.get("prio") == 3 and t % 8 == 7:
            A(f"s_lshr_b32 s{sT0}, s{sW}, 2")
            A(f"s_cmp_eq_u32 s{sT0}, {(t // 8) % 2}")
            A(f"s_cbranch_scc1 L_prio_a{t}")
            A("s_setprio 0")
            A(f"s_branch L_prio_b{t}")
            A.label(f"L_prio_a{t}")
            A("s_setprio 1")
            A.label(f"L_prio_b{t}")
        if EXP.get("xbar") and t == EXP["xbar"]:
            A("s_barrier")
        if t == 63:
            A.vm_wait(("w", 1, 4))
        for f in sched.get((t, 0), []):
            f(A)
        if t + 1 < NT:
            A.lds_wait(("k01", t + 1))
            mf16(A, nxt, K01, Q01, "0" if EXP.get("m0") else v(NEGM, 16))
            if t + 2 < NT:
                rd_k01(A, t + 2)
        exps(A, cur, 0)
        if t > 0:
            A.lds_wait(("v", t - 1, 1))
            mf16(A, O, V1, P + 4, v(O, 16))
        rd_v(A, t, 1)
        exps(A, cur, 1)
        for f in sched.get((t, 1), []):
            f(A)
        if t + 1 < NT:
            A.lds_wait(("k2", t + 1))
            mf8(A, nxt, K2, Q2, v(nxt, 16))
            if t + 2 < NT:
                rd_k2(A, t + 2)
        exps(A, cur, 2)
        A.lds_wait(("v", t, 0))
        mf16(A, O, V0, P, "0" if t == 0 else v(O, 16))
        if t + 1 < NT:
            rd_v(A, t + 1, 0)
        exps(A, cur, 3)
    A.lds_wait(("v", NT - 1, 1))
    A("s_nop 1")
    mf16(A, O, V1, P + 4, v(O, 16))
    A(f"v_add_u32 v{vT+5}, 0x10000, v{vWR}")
    A(f"v_add_u32 v{vT+6}, 0x20000, v{vWR}")
    A(f"v_mov_b32 v{vT+3}, {hex(f32bits(BIG))}")
    A("s_nop 7")
    A("s_nop 3")
    A.stamp("loop end")
    row_sum(A, O)
    A(f"v_mul_f32 v{vT+2}, 0, v{O}")
    for i in range(1, 12):
        A(f"v_fma_f32 v{vT+2}, v{O+i}, 0, v{vT+2}")
    A(f"v_add_f32 v{vT+2}, v{vT+2}, v{vT+1}")
    A(f"v_cmp_lt_f32 vcc, v{vT+2}, v{vT+3}")
    A("s_nop 4")
    A("s_cmp_eq_u64 vcc, exec")
    A("s_cbranch_scc0 L_fallback")
    A.label("L_finish")
    jitter(A, True)
    A.vm_wait("g")
    finish_tile(A, O, vG, False, vOST, sQ0, 0, "sta")
    A(f"v_add_u32 v{vT+5}, 0x10000, v{vWR}")
    A(f"v_add_u32 v{vT+6}, 0x20000, v{vWR}")
    A("s_barrier")
    A.stamp("ring free") if not (EXP.get("stampB") or EXP.get("stampA")) else None
    wa = [(st, p) for st in range(2) for p in range(3)]

    def hook_b(k, kg):
        pk = EXP.get("pubk", 2)
        if k == pk:
            publish(A, sPUB, FLAGA, "sta")
        if pk <= k < pk + 6:
            st, p = wa[k - pk]
            dma_w_piece(A, 0, st, p)
    outproj(A, 1, True, hook_b)
    A.stamp("b part") if not (EXP.get("stampB") or EXP.get("stampA")) else None
    A("s_barrier")
    for st in range(2, 5):
        for p in range(3):
            dma_w_piece(A, 0, st, p)
    if EXP.get("notight"):
        fa_items = [(vFL, vFA, FLAGA, sFLG)]
        pfa = poll_issue(A, fa_items, "fa")
        poll_check(A, fa_items, pfa, "fa")
    else:
        poll_tight(A, FLAGA, sFLG, vFA, "fa")
    A.vm_wait(("w", 0, 4))
    A("s_barrier")
    A.stamp("flags a") if not (EXP.get("stampB") or EXP.get("stampA")) else None
    for k in range(10):
        oc_load(A, 0, k)
    outproj(A, 0, False)
    A.stamp("a part") if not (EXP.get("stampB") or EXP.get("stampA")) else None
    A(f"s_and_b32 s{sT0}, s{sW}, 3")
    A(f"s_mul_i32 s{sT0}, s{sT0}, 5120")
    A(f"v_add_u32 v{vT}, s{sT0}, v{vL16}")
    A(f"s_cmp_eq_u32 s{sKG}, 0")
    A("s_cbranch_scc1 L_red_a")

    def finish_out(tiles):
        A.lds_q = []
        for nt in tiles:
            A.lds(f"ds_read_b128 {v(WF+4*nt,4)}, v{vT} offset:{nt*1024}", ("r", nt))
        for nt in tiles:
            A.lds_wait(("r", nt))
            for i in range(4):
                A(f"v_add_f32 v{ACC+4*nt+i}, v{ACC+4*nt+i}, v{WF+4*nt+i}")
            A(f"v_cvt_pk_bf16_f32 v{ACC+4*nt}, v{ACC+4*nt}, v{ACC+4*nt+1}")
            A(f"v_cvt_pk_bf16_f32 v{ACC+4*nt+1}, v{ACC+4*nt+2}, v{ACC+4*nt+3}")
            A.vm(f"buffer_store_dwordx2 {v(ACC+4*nt,2)}, v{vST}, s[{sOUT}:{sOUT+3}], s{sOUTO} offen offset:{nt*32}{EXP.get('outst','')}", "st")

    A("s_nop 5")
    for nt in range(3):
        A(f"ds_write_b128 v{vT}, {v(ACC+4*nt,4)} offset:{nt*1024}")
    A("s_waitcnt lgkmcnt(0)")
    A("s_barrier")
    finish_out((3, 4))
    if prof:
        A.stamp("", len(A.stamps))
        A.stamp_flush(0, sWS, PROF, vT + 2)
    A("s_endpgm")
    A.label("L_red_a")
    A("s_nop 5")
    for nt in (3, 4):
        A(f"ds_write_b128 v{vT}, {v(ACC+4*nt,4)} offset:{nt*1024}")
    A("s_waitcnt lgkmcnt(0)")
    A("s_barrier")
    finish_out((0, 1, 2))
    A.stamp("end")
    if prof and EXP.get("dbg"):
        with Wave0(A, "dbgout"):
            A(f"v_subrev_u32 v{vT}, s{sNONCE}, v{A.PROF_V}")
            A(f"v_subrev_u32 v{vT+1}, 16, v{vL}")
            A(f"v_lshlrev_b32 v{vT+1}, 2, v{vT+1}")
            if EXP["dbg"] == 2:
                A(f"v_sub_u32 v{vT}, 0x100000, v{vT}")
            A("s_mov_b32 exec_lo, 0xfffe0000")
            A("s_mov_b32 exec_hi, 0")
            A(f"buffer_atomic_umax v{vT}, v{vT+1}, s[{sDBG}:{sDBG+3}], 0 offen")
            A("s_mov_b64 exec, -1")
    A.stamp_flush(0, sWS, PROF, vT)
    A("s_endpgm")
    fallback(A)
    spare(A)
    A.label("L_end")
    A("s_endpgm")
    kernel_footer(A, NAME, NV, 100 if EXP.get("jit") else 96)
    gen.stamps = getattr(A, "stamps", [])
    if prof and EXP.get("stampP"):
        assert len(gen.stamps) == 14, len(gen.stamps)
        gen.stamps = gen.stamps + ["pre-kernarg", "kernarg"]
    return A.text()

if __name__ == "__main__":
    print(gen())
```

```python
from asmlib import *
from layout2 import *

NAME = "gated_mix__softmax_full_mha__sliding_local_dilated__prompt_kernel"
DOC = """; ---------------------------------------------------------------------------------------------
;
;
; ---------------------------------------------------------------------------------------------
"""
EXP = {}
STAGE, NST, NB = 32768, 5, 20
SLOT = CHB
NSLOT = 4
TPC = CH // 32
NCH = S // CH
ONES = 4 * SLOT
PAT_UNITS = 336
assert ONES + PAT_UNITS * 16 <= 98304
WBASE = ONES + 672 * 16
WSTG = 20480
LDS_BYTES = 163840
WB_OFF = [WBASE, WBASE + WSTG, WBASE + 2 * WSTG, 0, SLOT]
WA_OFF = [2 * SLOT, 3 * SLOT, WBASE, WBASE + WSTG, WBASE + 2 * WSTG]
assert WBASE + 3 * WSTG <= LDS_BYTES
BIG = 2.0 ** 64
SPIN_MAX = 1 << 16
sWS, sOUT = 8, 12
sW, sNONCE = 16, 17
sH, sQB, sPA, sLDSW, sLDSW2, sWSRC, sOCB, sFLG, sPUB, sOUTO, sKG, sQ0, sBT, sQT = range(18, 32)
sT0, sT1, sT2, sT3, sT4, sT5 = range(32, 38)
sM = 38
sLO20 = 40
sCNT = 42
sP2L = 43
sDBG = 44
sBA = 48
sVH = 57
sX, sWA, sWB = 60, 64, 68
sRB, sCT, sMH, sNH, sXOFF, sWOFF, sLDS1, sCT5, sTP, sB16, sQS, sGI = range(72, 84)
sQOFF, sQOFF2, sGOFF, sF1 = 88, 89, 90, 91
sDEF, sDEFON = 60, 84
vDEF = [241, 234]
sP = 92
vL, vR, vHH = 1, 2, 3
vK01, vK2, vV = 4, 8, 12
vL16, vG, vGB, vFL = 16, 17, 18, 19
vT = 20
SA, SB, NEGM, O, P = 28, 44, 60, 76, 92
Q01, Q2, K01, K2, V0, V1 = 100, 104, 108, 112, 116, 120
BQ01, BQ2, BK01, BK2, BKP01, BKP2 = 124, 128, 132, 136, 140, 144
BV0, BV1, BVP, BS0, BS1, BO, BP = 148, 152, 156, 160, 176, 192, 208
vBA = 220
vW0, vW1, vW2, vOC, vWR, vST, vFA = 225, 226, 227, 228, 229, 230, 231
vF1, vF2, vF3, vF4 = 232, 233, 234, 241
vV2 = [232, 233, 236, 237]
vFL2 = 235
vQA, vQA2, vGA = 236, 237, 238
vOST = 252
vXD, vWD = 242, 243
vCB, vCS = 244, 247
vCT = 250
NV = 256
OCB, OCA, ACC, WF = 124, 164, 204, 28
G_ACC = 124
G_F = 28
G_P = 188
vA16 = 76
vXR, vWR1 = 106, 118
WS = f"s[{sWS}:{sWS+3}]"


def st1():
    return " sc1"


def publish(A, soff_reg, base, tag=None):
    if tag is not None:
        A.vm_wait(tag)
    A(f"v_mov_b32 v{vT}, s{sNONCE}")
    A(f"v_mov_b32 v{vT+1}, 0")
    A(f"s_add_u32 s{sT0}, s{soff_reg}, {base}")
    A("s_mov_b64 exec, 1")
    A.vm(f"buffer_store_dword v{vT}, v{vT+1}, {WS}, s{sT0} offen sc1", "pub")
    A("s_mov_b64 exec, -1")


_jit_n = [0]
def jitter(A, per_wave=False):
    if not EXP.get("jit"):
        return
    _jit_n[0] += 1
    k = _jit_n[0]
    A(f"s_mul_i32 s96, s2, {(2654435761 * (k + EXP['jit'])) & 0x7fffffff | 1}")
    if per_wave:
        A(f"s_mul_i32 s97, s{sW}, {(40503 * (k + 7)) | 1}")
        A("s_add_u32 s96, s96, s97")
    A("s_lshr_b32 s96, s96, 20")
    A("s_and_b32 s96, s96, 15")
    A("s_cmp_lt_u32 s96, 12")
    A(f"s_cbranch_scc1 L_jit{k}_done")
    A("s_and_b32 s96, s96, 3")
    A("s_add_u32 s96, s96, 1")
    A.label(f"L_jit{k}")
    A("s_sleep 32")
    A("s_sub_u32 s96, s96, 1")
    A("s_cmp_lg_u32 s96, 0")
    A(f"s_cbranch_scc1 L_jit{k}")
    A.label(f"L_jit{k}_done")


class Wave0:
    def __init__(self, A, name):
        self.A, self.name = A, name
    def __enter__(self):
        A = self.A
        A(f"s_cmp_lg_u32 s{sW}, 0")
        A(f"s_cbranch_scc1 L_w0_{self.name}")
        self.saved = (list(A.vm_q), dict(A.vm_counts or {}))
    def __exit__(self, *a):
        A = self.A
        A.vm_q, A.vm_counts = self.saved[0], (self.saved[1] or None)
        A.label(f"L_w0_{self.name}")


def _poll_loads(A, items):
    for (vdst, voff, base, soff_reg) in items:
        if soff_reg is None:
            A(f"s_mov_b32 s{sT0}, {base}")
        else:
            A(f"s_add_u32 s{sT0}, s{soff_reg}, {base}")
        A(f"buffer_load_dword v{vdst}, v{voff}, {WS}, s{sT0} offen sc1")


def poll_issue(A, items, name):
    with Wave0(A, name + "_i"):
        _poll_loads(A, items)
    return A.vm_pos("L")


def poll_check(A, items, pos, name, inv=False, drain=False):
    def compare():
        for i, (vdst, _, _, _) in enumerate(items):
            if i == 0:
                A(f"v_cmp_eq_u32 vcc, s{sNONCE}, v{vdst}")
            else:
                A(f"v_cmp_eq_u32 s[{sT4}:{sT5}], s{sNONCE}, v{vdst}")
                A("s_nop 3")
                A(f"s_and_b64 vcc, vcc, s[{sT4}:{sT5}]")
        A("s_nop 3")
        A("s_cmp_eq_u64 vcc, exec")
    with Wave0(A, name + "_c"):
        A(f"s_waitcnt vmcnt({A.vm_pos('L') - pos})")
        compare()
        A(f"s_cbranch_scc1 L_{name}_ok")
        A(f"s_mov_b32 s{sCNT}, 0")
        A.label(f"L_{name}_spin")
        A("s_sleep 2")
        _poll_loads(A, items)
        A(f"s_add_u32 s{sCNT}, s{sCNT}, 1")
        A(f"s_cmp_ge_u32 s{sCNT}, {SPIN_MAX}")
        A(f"s_cbranch_scc1 L_{name}_ok")
        A("s_waitcnt vmcnt(0)")
        compare()
        A(f"s_cbranch_scc0 L_{name}_spin")
        A.label(f"L_{name}_ok")
        if inv:
            A("buffer_inv sc1")
        if drain:
            A("s_waitcnt vmcnt(0)")


def poll_tight(A, base, soff_reg, voff, name):
    regs = [vFL, vFL2, vT + 2, vT + 3]
    with Wave0(A, name):
        A(f"s_add_u32 s{sT1}, s{soff_reg}, {base}")
        for r in regs:
            A(f"buffer_load_dword v{r}, v{voff}, {WS}, s{sT1} offen sc1")
            A("s_sleep 1")
        A(f"s_mov_b32 s{sCNT}, 0")
        A.label(f"L_{name}_spin")
        for r in regs:
            A("s_waitcnt vmcnt(3)")
            A(f"v_cmp_eq_u32 vcc, s{sNONCE}, v{r}")
            A("s_nop 3")
            A("s_cmp_eq_u64 vcc, exec")
            A(f"s_cbranch_scc1 L_{name}_ok")
            A(f"buffer_load_dword v{r}, v{voff}, {WS}, s{sT1} offen sc1")
        A(f"s_add_u32 s{sCNT}, s{sCNT}, 1")
        A(f"s_cmp_lt_u32 s{sCNT}, {SPIN_MAX}")
        A(f"s_cbranch_scc1 L_{name}_spin")
        A.label(f"L_{name}_ok")


def nonce_issue(A):
    A(f"v_mov_b32 v{vT}, 0")
    A.vm(f"buffer_load_dword v{vFL}, v{vT}, s[{sDBG}:{sDBG+3}], 0 offen sc1", "nonce")


def nonce_check(A, name):
    A.vm_wait("nonce")
    A("s_nop 0")
    A(f"v_readfirstlane_b32 s{sNONCE}, v{vFL}")
    nonce_verify(A, name)


def nonce_verify(A, name):
    A("s_nop 3")
    A(f"s_cmp_lg_u32 s{sNONCE}, 0")
    A(f"s_cbranch_scc1 L_{name}_ok")
    A(f"s_mov_b32 s{sCNT}, 0")
    A.label(f"L_{name}_spin")
    A("s_sleep 1")
    A(f"v_mov_b32 v{vT}, 0")
    A(f"buffer_load_dword v{vFL}, v{vT}, s[{sDBG}:{sDBG+3}], 0 offen sc1")
    A(f"s_add_u32 s{sCNT}, s{sCNT}, 1")
    A(f"s_cmp_ge_u32 s{sCNT}, {SPIN_MAX}")
    A(f"s_cbranch_scc1 L_{name}_ok")
    A("s_waitcnt vmcnt(0)")
    A(f"v_readfirstlane_b32 s{sNONCE}, v{vFL}")
    A("s_nop 3")
    A(f"s_cmp_eq_u32 s{sNONCE}, 0")
    A(f"s_cbranch_scc1 L_{name}_spin")
    A.label(f"L_{name}_ok")


def g_dma(A, b, p):
    kb, st, t = b % 10, b % NST, p & 3
    A(f"s_add_u32 m0, s{sLDS1}, {st*STAGE + (p >> 2)*16384 + 4096*t}")
    if p < 4:
        A(f"s_add_u32 s{sT0}, s{sXOFF}, {kb*128 + t*40960}")
        A.vm(f"buffer_load_dwordx4 v{vXD}, s[{sX}:{sX+3}], s{sT0} offen lds", ("d", b))
    else:
        sw = sWA if b < 10 else sWB
        A(f"s_add_u32 s{sT0}, s{sWOFF}, {(kb*64 + 16*t) * 3840}")
        A.vm(f"buffer_load_dwordx4 v{vWD}, s[{sw}:{sw+3}], s{sT0} offen lds", ("d", b))


def g_acc(mt, nt):
    return G_ACC + 32 * mt + 16 * nt


def g_frag(s_, i):
    return G_F + 16 * (s_ % 3) + 4 * i


def g_read_list(s_):
    b, ks = divmod(s_, 4)
    st = b % NST
    base, off = st >> 1, (st & 1) * STAGE
    out = []
    for mt in range(2):
        out.append(f"ds_read_b128 {v(g_frag(s_, mt),4)}, v{vXR + 3*ks + base} offset:{off + mt*4096}")
    for nt in range(2):
        for q in range(2):
            out.append(f"ds_read_b64_tr_b16 {v(g_frag(s_, 2+nt)+2*q,2)}, v{vWR1 + 3*nt + base} offset:{off + 16384 + ks*4096 + q*1024}")
    return out


def g_reads(A, s_):
    for ins in g_read_list(s_):
        A.lds(ins, ("f", s_))


def g_step(A, s_, last, tr, extra=None):
    b, ks = divmod(s_, 4)
    A.lds_wait(("f", s_))
    nxt = g_read_list(s_ + 2) if s_ + 2 <= last else []
    for i, (mt, nt) in enumerate(((0, 0), (0, 1), (1, 0), (1, 1))):
        d = g_acc(mt, nt)
        c = "0" if (s_ % 40 == 0) else v(d, 16)
        x, w = g_frag(s_, mt), g_frag(s_, 2 + nt)
        a, bb = (w, x) if tr else (x, w)
        A(f"v_mfma_f32_32x32x16_bf16 {v(d,16)}, {v(a,4)}, {v(bb,4)}, {c}")
        for ins in nxt[2*i:2*i+2]:
            A.lds(ins, ("f", s_ + 2))
        if extra and i == 3:
            extra()


def epi_prepare(A, isb, tr, n):
    A(f"s_lshl_b32 s{sTP}, s{sRB}, 7")
    A(f"s_lshl_b32 s{sT0}, s{sMH}, 6")
    A(f"s_add_u32 s{sTP}, s{sTP}, s{sT0}")
    if isb:
        A(f"s_lshr_b32 s{sTP}, s{sTP}, 1")
    if tr:
        A(f"s_cmp_lt_u32 s{sCT}, 5")
        A(f"s_mov_b32 s{sT1}, {QB if isb else QA}")
        A(f"s_cselect_b32 s{sB16}, s{sT1}, {KB if isb else KA}")
        A(f"s_mov_b32 s{sT1}, {hex(f32bits(QSCALE))}")
        A(f"s_cselect_b32 s{sQS}, s{sT1}, 1.0")
        A(f"s_lshl_b32 s{sT0}, s{sCT5}, 1")
        A(f"s_add_u32 s{sT0}, s{sT0}, s{sNH}")
        A(f"s_lshl_b32 s{sT0}, s{sT0}, 18")
        A(f"s_add_u32 s{sB16}, s{sB16}, s{sT0}")
        A(f"s_lshl_b32 s{sT0}, s{sTP}, 4")
        A(f"s_add_u32 s{sB16}, s{sB16}, s{sT0}")
        A(f"v_lshlrev_b32 v{vA16}, 15, v{vHH}")
        if isb:
            A(f"v_and_b32 v{vT}, 1, v{vR}")
            A(f"v_lshl_add_u32 v{vA16}, v{vT}, 14, v{vA16}")
            A(f"v_lshrrev_b32 v{vT}, 1, v{vR}")
            A(f"v_lshl_add_u32 v{vA16}, v{vT}, 4, v{vA16}")
        else:
            A(f"v_lshl_add_u32 v{vA16}, v{vR}, 4, v{vA16}")
        A(f"v_mov_b32 v{vT+2}, s{sQS}")
        A(f"v_mov_b32 v{vT+3}, s{sQS}")
    else:
        A(f"v_mul_u32_u24 v{vT+1}, 320, v{vHH}")
        A(f"s_lshl_b32 s{sT0}, s{sCT5}, 7")
        A(f"s_lshl_b32 s{sT1}, s{sNH}, 6")
        A(f"s_add_u32 s{sT0}, s{sT0}, s{sT1}")
        for nt in range(2):
            A(f"v_add_u32 v{vT+2}, s{sT0}, v{vR}")
            if nt:
                A(f"v_add_u32 v{vT+2}, 32, v{vT+2}")
            A(f"v_mul_u32_u24 v{vT+3}, 3277, v{vT+2}")
            A(f"v_lshrrev_b32 v{vT+3}, 16, v{vT+3}")
            A(f"v_mul_u32_u24 v{vT+4}, 20, v{vT+3}")
            A(f"v_sub_u32 v{vT+4}, v{vT+2}, v{vT+4}")
            A(f"v_mul_u32_u24 v{vT+3}, {VH}, v{vT+3}")
            A(f"v_lshl_add_u32 v{vT+3}, v{vT+4}, 4, v{vT+3}")
            A(f"v_add_u32 v{vA16+nt}, v{vT+3}, v{vT+1}")
        A(f"s_lshr_b32 s{sT0}, s{sTP}, 4")
        A(f"s_mul_i32 s{sT0}, s{sT0}, 640")
        A(f"s_add_u32 s{sB16}, s{sT0}, {VB if isb else VA}")


def epi_group(A, isb, tr, g, tag, defer=False):
    reg = G_P + 4 * g
    mt, nt, u = g >> 2, (g >> 1) & 1, g & 1
    src = g_acc(mt, nt)
    if tr:
        for jj in range(2):
            a = src + 4 * (2 * u + jj)
            A(f"v_pk_mul_f32 {v(a,2)}, {v(a,2)}, v[{vT+2}:{vT+3}]")
            A(f"v_pk_mul_f32 {v(a+2,2)}, {v(a+2,2)}, v[{vT+2}:{vT+3}]")
            A(f"v_cvt_pk_bf16_f32 v{reg+2*jj}, v{a}, v{a+1}")
            A(f"v_cvt_pk_bf16_f32 v{reg+2*jj+1}, v{a+2}, v{a+3}")
        A(f"s_add_u32 s{sT1}, s{sB16}, {(4*nt + 2*u)*PLANE + mt*(256 if isb else 512)}")
        A("s_nop 0")
        A(f"v_permlane32_swap_b32 v{reg}, v{reg+2}")
        A(f"v_permlane32_swap_b32 v{reg+1}, v{reg+3}")
        if defer:
            A(f"s_mov_b32 s{sDEF+g}, s{sT1}")
        else:
            A.vm(f"buffer_store_dwordx4 {v(reg,4)}, v{vA16}, {WS}, s{sT1} offen sc1", tag)
    else:
        if isb:
            for j in range(4):
                A(f"v_cvt_pk_bf16_f32 v{reg+j}, v{src+4*j+u}, v{src+4*j+u+2}")
            A(f"s_add_u32 s{sT1}, s{sB16}, {mt*640 + u*64*640}")
        else:
            for p in range(4):
                A(f"v_cvt_pk_bf16_f32 v{reg+p}, v{src+8*u+2*p}, v{src+8*u+2*p+1}")
            A(f"s_add_u32 s{sT1}, s{sB16}, {(2*mt + u)*640}")
        if defer:
            A(f"s_mov_b32 s{sDEF+g}, s{sT1}")
        else:
            A.vm(f"buffer_store_dwordx4 {v(reg,4)}, v{vA16+nt}, {WS}, s{sT1} offen sc1", tag)


def acquire_items():
    return [(vFL, vF1, F1A, None), (vFL2, vF2, F1A, None)]


def p2_load_items():
    def q01(A):
        A.vm(f"buffer_load_dwordx4 {v(Q01,4)}, v{vQA}, {WS}, s{sQOFF} offen sc1", "q")
    def q2(A):
        A(f"v_mov_b32 v{Q2}, 0")
        A(f"v_mov_b32 v{Q2+1}, 0")
        A("s_mov_b32 exec_hi, 0")
        A.vm(f"buffer_load_dwordx2 {v(Q2,2)}, v{vQA2}, {WS}, s{sQOFF2} offen sc1", "q")
        A("s_mov_b32 exec_hi, -1")
    first = [lambda A, p=p: dma_chunk_piece(A, 0, p) for p in range(3)] + [q01, q2]
    rest = [lambda A, c=c, p=p: dma_chunk_piece(A, c, p) for c in (1, 2) for p in range(3)]
    return first, rest


def gemm(A, tr, n):
    A.comment("---- phase 1, waves 0-3: compute branch A, then load and store")
    A.vm_q, A.lds_q = [], []
    if EXP.get("twa") == 99:
        touch_a(A, n)
    if EXP.get("twb") == 99:
        touch_wb(A, n)
    if EXP.get("tcb") == 99:
        touch_chip_b(A, n)
    if EXP.get("tlb"):
        epi_prepare(A, False, tr, n)
        A(f"buffer_store_dword v{vL}, v{vA16}, {WS}, s{sB16} offen sc1")
    A("s_barrier")
    A.stamp("blk0 landed", 2)
    g_reads(A, 0)
    g_reads(A, 1)
    for s_ in range(40):
        b, ks = divmod(s_, 4)
        if ks == 2:
            A("s_barrier")
            if EXP.get("stampA") and b in (0, 2, 4, 6):
                A.stamp("", {0: 7, 2: 8, 4: 9, 6: 10}[b])
        if EXP.get("twa") is not None and s_ == EXP["twa"]:
            touch_a(A, n)
        if s_ == EXP.get("twb", 77):
            touch_wb(A, n)
        if EXP.get("tcb") is not None and s_ == EXP["tcb"]:
            touch_chip_b(A, n)
        if EXP.get("tcw") is not None and s_ == EXP["tcw"]:
            touch_chip_wide(A, "b", n)
        if s_ == 22:
            nonce_issue(A)
        if s_ == 30:
            nonce_check(A, f"nonce0{n}")
        g_step(A, s_, 39, tr)
    A.stamp("gemm0", 3)
    jitter(A, True)
    slices = [int(ch) for ch in str(EXP.get("sl", "8"))]
    assert sum(slices) == 8
    PUB, POLL, CHK = EXP.get("pub", 12), EXP.get("poll", 15), 18
    for p in range(8):
        g_dma(A, 13, p)
    epi_prepare(A, False, tr, n)
    A("s_nop 7")
    A("s_nop 3")
    done = 0
    for b in range(10, 19):
        k = slices[b - 10] if b - 10 < len(slices) else 0
        for g in range(done, done + k):
            epi_group(A, False, tr, g, "sa")
        if k and done + k == 8:
            A.stamp("epi0", 4)
        done += k
        if b == CHK:
            poll_check(A, acquire_items(), pos_f1, f"f1{n}")
        if b + 1 >= 13:
            A.vm_wait(("d", b + 1))
        A("s_barrier")
        if EXP.get("stampB") and b in (10, 12, 14, 16):
            A.stamp("", {10: 7, 12: 8, 14: 9, 16: 10}[b])
        if b == PUB - 1:
            A.vm_wait("sa")
        if b + 4 < NB:
            for p in range(8):
                g_dma(A, b + 4, p)
        if b == PUB:
            with Wave0(A, f"puba{n}"):
                publish(A, sF1, F1A)
        if b == POLL:
            pos_f1 = poll_issue(A, acquire_items(), f"f1{n}")
    first, rest = p2_load_items()
    for f in first + rest:
        f(A)
    A.stamp("gemm1", 5)
    pattern_fill(A, n)
    A.stamp("epi1", 6)
    A.vm_wait("q", ("c", 0))
    A("s_barrier")
    A("s_branch L_attn")
    A.label(f"L_g1{n}")
    A.vm_set([(("d", b), "D") for b in range(3) for _ in range(8)])
    A.lds_q = []
    A.vm_wait(("d", 0))
    A("s_barrier")
    A.stamp("issued", 1)
    A.stamp("blk0 landed", 2)
    for p in range(8):
        g_dma(A, 3, p)
    for b in range(10):
        if b == 0:
            setup_phase1_reads(A)
        if 1 <= b <= 5:
            SETUP_P2[b - 1](A)
        if b == 6 and EXP.get("tlb"):
            if EXP.get("tlb"):
                epi_prepare(A, True, tr, n)
                A(f"buffer_store_dword v{vL}, v{vA16}, {WS}, s{sB16} offen sc1")
                A(f"s_lshl_b32 s{sT0}, s{sQ0}, 4")
                A(f"s_add_u32 s{sT0}, s{sT0}, {OC}")
                A(f"buffer_store_dword v{vL}, v{vOST}, {WS}, s{sT0} offen sc1")
                A(f"s_lshl_b32 s{sT0}, s{sBT}, 4")
                A(f"s_add_u32 s{sT0}, s{sT0}, {OC + 80*32768}")
                A(f"buffer_store_dword v{vL}, v{vOST+1}, {WS}, s{sT0} offen sc1")
        A.vm_wait(("d", b + 1))
        A("s_barrier")
        if EXP.get("stampA") and b in (0, 2, 4, 6):
            A.stamp("", {0: 7, 2: 8, 4: 9, 6: 10}[b])
        if b + 4 <= 12:
            for p in range(8):
                g_dma(A, b + 4, p)
    A.stamp("gemm0", 3)
    A.stamp("epi0", 4)
    if EXP.get("pprio", 1):
        A("s_setprio 1")
    g_reads(A, 40)
    g_reads(A, 41)
    pend = []
    for s_ in range(40, 80):
        b, ks = divmod(s_, 4)
        if ks == 2 and b + 1 < NB:
            if b + 1 <= 12:
                A.vm_wait(("d", b + 1))
            A("s_barrier")
            if EXP.get("stampB") and b in (10, 12, 14, 16):
                A.stamp("", {10: 7, 12: 8, 14: 9, 16: 10}[b])
            if b == 18:
                first, rest = p2_load_items()
                pend = first + [nonce_issue]
        def extra():
            for _ in range(2):
                if pend:
                    pend.pop(0)(A)
        g_step(A, s_, 79, tr, extra)
    assert not pend
    if EXP.get("pprio", 1):
        A("s_setprio 0")
    A.stamp("gemm1", 5)
    jitter(A, True)
    A.vm_wait("q", "nonce", ("c", 0))
    A("s_nop 0")
    A(f"v_readfirstlane_b32 s{sNONCE}, v{vFL}")
    A("s_barrier")
    for f in rest:
        f(A)
    epi_prepare(A, True, tr, n)
    A("s_nop 7")
    A("s_nop 3")
    defer = bool(EXP.get("defer", 0))
    for g in range(8):
        epi_group(A, True, tr, g, "sb", defer)
    if defer:
        A(f"v_mov_b32 v{vDEF[0]}, v{vA16}")
        A(f"v_mov_b32 v{vDEF[1]}, v{vA16 + (0 if tr else 1)}")
        A(f"s_mov_b32 s{sDEFON}, 1")
    A.stamp("epi1", 6)
    nonce_verify(A, f"nonce1{n}")


def spare(A):
    sWO, sG = sWA, sWB
    A.label("L_spare")
    A.vm_q, A.lds_q = [], []
    jitter(A)
    jitter(A)
    if EXP.get("spb", 0):
        A(f"s_mul_i32 s{sT0}, s{sRB}, 153600")
        A(f"s_lshl_b32 s{sT1}, s{sW}, 10")
        A(f"s_add_u32 s{sT0}, s{sT0}, s{sT1}")
        A(f"s_add_u32 s{sT2}, s{sRB}, 1")
        A(f"s_mul_i32 s{sT2}, s{sT2}, 153600")
        for i in range(19):
            A(f"s_add_u32 s{sT1}, s{sT0}, {8192*i}")
            if i == 18:
                A(f"s_sub_u32 s{sT2}, s{sT2}, 1024")
                A(f"s_min_u32 s{sT1}, s{sT1}, s{sT2}")
            A(f"buffer_load_dwordx4 {v(124 + 4*i, 4)}, v{vL16}, s[{sWB}:{sWB+3}], s{sT1} offen")
    A("s_load_dwordx2 s[4:5], s[0:1], 16")
    A("s_load_dwordx2 s[6:7], s[0:1], 40")
    A(f"s_load_dwordx2 s[{sP}:{sP+1}], s[0:1], 48")
    A("s_waitcnt lgkmcnt(0)")
    A(f"s_cmp_lt_u32 s{sRB}, 8")
    A("s_cbranch_scc1 L_sp_a")
    A("s_mov_b32 s4, s6")
    A("s_mov_b32 s5, s7")
    A.label("L_sp_a")
    srd(A, sWO, 4, WO_BYTES)
    srd(A, sG, sP, 1280)
    A(f"s_and_b32 s{sT1}, s{sRB}, 7")
    A(f"s_mul_i32 s{sT1}, s{sT1}, {80*1280}")
    A(f"s_lshl_b32 s{sLDS1}, s{sW}, 10")
    A(f"s_add_u32 s{sT1}, s{sT1}, s{sLDS1}")
    for t in range(13):
        if t == 12:
            A(f"s_cmp_ge_u32 s{sW}, 4")
            A("s_cbranch_scc1 L_sp_dma_done")
        A(f"s_add_u32 m0, s{sLDS1}, {8192*t}")
        A(f"s_add_u32 s{sT0}, s{sT1}, {8192*t}")
        A(f"buffer_load_dwordx4 v{vL16}, s[{sWO}:{sWO+3}], s{sT0} offen lds")
    A.label("L_sp_dma_done")
    GW = 102400
    A(f"s_cmp_ge_u32 s{sW}, 2")
    A("s_cbranch_scc1 L_sp_gw_done")
    A(f"s_add_u32 m0, s{sLDS1}, {GW}")
    A("s_nop 0")
    A(f"buffer_load_dwordx4 v{vL16}, s[{sG}:{sG+3}], s{sLDS1} offen lds")
    A.label("L_sp_gw_done")
    A.stamp("", 2)
    XG = 28
    A(f"v_lshrrev_b32 v{vT+1}, 2, v{vL}")
    A(f"s_lshl_b32 s{sT0}, s{sW}, 4")
    A(f"v_add_u32 v{vT+1}, s{sT0}, v{vT+1}")
    A(f"v_and_b32 v{vT+2}, 3, v{vL}")
    A(f"v_lshlrev_b32 v{vT+2}, 4, v{vT+2}")
    A(f"v_mul_u32_u24 v{vT+3}, 1280, v{vT+1}")
    A(f"v_add_u32 v{vT+3}, v{vT+3}, v{vT+2}")
    A(f"v_mov_b32 v{vT+4}, 0")
    for i in range(20):
        A(f"buffer_load_dwordx4 {v(XG+4*i,4)}, v{vT+3}, s[{sX}:{sX+3}], s{sXOFF} offen offset:{i*64}")
    A(f"v_add_u32 v{vT+2}, {GW}, v{vT+2}")
    A("s_waitcnt vmcnt(0)")
    A("s_barrier")
    A.lds_q = []
    GG = 108
    for i in range(3):
        A.lds(f"ds_read_b128 {v(GG+4*i,4)}, v{vT+2} offset:{i*64}", ("gw", i))
    for i in range(20):
        if i + 3 < 20:
            A.lds(f"ds_read_b128 {v(GG+4*((i+3) % 4),4)}, v{vT+2} offset:{(i+3)*64}", ("gw", i + 3))
        A.lds_wait(("gw", i))
        for k in range(4):
            A(f"v_dot2_f32_bf16 v{vT+4}, v{XG+4*i+k}, v{GG+4*(i % 4)+k}, v{vT+4}")
    A("s_nop 2")
    A(f"v_add_f32_dpp v{vT+4}, v{vT+4}, v{vT+4} quad_perm:[1,0,3,2] row_mask:0xf bank_mask:0xf")
    A("s_nop 1")
    A(f"v_add_f32_dpp v{vT+4}, v{vT+4}, v{vT+4} quad_perm:[2,3,0,1] row_mask:0xf bank_mask:0xf")
    A(f"v_mul_f32 v{vT+4}, {hex(f32bits(-LOG2E))}, v{vT+4}")
    A(f"v_exp_f32 v{vT+4}, v{vT+4}")
    A("s_nop 0")
    A(f"v_add_f32 v{vT+4}, 1.0, v{vT+4}")
    A(f"v_rcp_f32 v{vT+4}, v{vT+4}")
    A(f"s_lshl_b32 s{sT0}, s{sRB}, 9")
    A(f"s_add_u32 s{sT0}, s{sT0}, {GATE}")
    A(f"v_lshlrev_b32 v{vT+1}, 2, v{vT+1}")
    A("s_mov_b32 exec_lo, 0x11111111")
    A("s_mov_b32 exec_hi, 0x11111111")
    A(f"buffer_store_dword v{vT+4}, v{vT+1}, {WS}, s{sT0} offen sc1")
    A("s_mov_b64 exec, -1")
    A.stamp("", 3)
    A.stamp("", 4)
    A(f"v_bfe_u32 v{vT+1}, v{vL}, 2, 2")
    A(f"v_mul_u32_u24 v{vT+1}, 1280, v{vT+1}")
    A(f"v_lshrrev_b32 v{vT+2}, 4, v{vL}")
    A(f"v_lshl_add_u32 v{vT+1}, v{vT+2}, 5, v{vT+1}")
    A(f"v_and_b32 v{vT+2}, 3, v{vL}")
    A(f"v_lshl_add_u32 v{vT+1}, v{vT+2}, 3, v{vT+1}")
    A(f"s_mul_i32 s{sT3}, s{sRB}, {10*10240}")
    A(f"s_add_u32 s{sT3}, s{sT3}, {WOT}")
    A(f"s_mov_b32 s{sT1}, s{sW}")
    A.label("L_sp_loop")
    A(f"s_mul_hi_u32 s{sT2}, s{sT1}, 0x1999999a")
    A(f"s_mul_i32 s{sT0}, s{sT2}, 10")
    A(f"s_sub_u32 s{sT0}, s{sT1}, s{sT0}")
    A(f"s_mul_hi_u32 s{sCNT}, s{sT2}, 0x33333334")
    A(f"s_mul_i32 s{sT4}, s{sCNT}, 5")
    A(f"s_sub_u32 s{sT4}, s{sT2}, s{sT4}")
    A(f"s_mul_i32 s{sCNT}, s{sCNT}, 40")
    A(f"s_lshl_b32 s{sT5}, s{sT4}, 3")
    A(f"s_cmp_ge_u32 s{sT4}, 2")
    A(f"s_cselect_b32 s{sM}, 4, 0")
    A(f"s_add_u32 s{sT5}, s{sT5}, s{sM}")
    A(f"s_cmp_eq_u32 s{sT4}, 4")
    A(f"s_cselect_b32 s{sT5}, 16, s{sT5}")
    A(f"s_cselect_b32 s{sM}, 20, 4")
    A(f"s_add_u32 s{sT5}, s{sT5}, s{sCNT}")
    A(f"s_mul_i32 s{sT4}, s{sT5}, 1280")
    A(f"s_mul_i32 s{sM}, s{sM}, 1280")
    A(f"s_lshl_b32 s{sT5}, s{sT0}, 7")
    A(f"s_add_u32 s{sT4}, s{sT4}, s{sT5}")
    A(f"v_add_u32 v{vT+3}, s{sT4}, v{vT+1}")
    A(f"v_add_u32 v{vT+4}, s{sM}, v{vT+3}")
    A(f"ds_read_b64_tr_b16 v[{XG}:{XG+1}], v{vT+3}")
    A(f"ds_read_b64_tr_b16 v[{XG+2}:{XG+3}], v{vT+4}")
    A(f"s_mul_i32 s{sT4}, s{sT2}, 10240")
    A(f"s_lshl_b32 s{sT5}, s{sT0}, 10")
    A(f"s_add_u32 s{sT4}, s{sT4}, s{sT5}")
    A(f"s_add_u32 s{sT4}, s{sT4}, s{sT3}")
    A("s_waitcnt lgkmcnt(0)")
    A(f"buffer_store_dwordx4 {v(XG,4)}, v{vL16}, {WS}, s{sT4} offen sc1")
    A(f"s_add_u32 s{sT1}, s{sT1}, 8")
    A(f"s_cmp_lt_u32 s{sT1}, 100")
    A("s_nop 1")
    A("s_cbranch_scc1 L_sp_loop")
    A.stamp("", 5)
    nonce_issue(A)
    nonce_check(A, "noncesp")
    A("s_waitcnt vmcnt(0)")
    A("s_barrier")
    A.vm_q = []
    with Wave0(A, "pubsp"):
        publish(A, sF1, F1A)
    pos = poll_issue(A, acquire_items(), "f1sp")
    poll_check(A, acquire_items(), pos, "f1sp")
    A("s_barrier")
    A.vm_q = []
    first, rest = p2_load_items()
    for f in first + rest:
        f(A)
    A(f"s_cmp_ge_u32 s{sW}, 4")
    A("s_cbranch_scc1 L_sp_nopat")
    pattern_fill(A, "sp")
    A.label("L_sp_nopat")
    A.vm_wait("q", ("c", 0))
    A("s_barrier")
    for i in (6,) + ((7, 8, 9, 10) if (EXP.get("stampB") or EXP.get("stampA")) else ()):
        A.stamp("", i)
    A("s_branch L_attn")


def mf16(A, d, a, b, c):
    A(f"v_mfma_f32_32x32x16_bf16 {v(d,16)}, {v(a,4)}, {v(b,4)}, {c}")


def mf8(A, d, a, b, c):
    A(f"v_mfma_f32_32x32x8_bf16 {v(d,16)}, {v(a,2)}, {v(b,2)}, {c}")


def dma_chunk_piece(A, c, t):
    slot = c % NSLOT
    A(f"s_add_u32 m0, s{sLDSW}, {slot*SLOT + 1024*t}")
    A(f"v_mad_u32_u24 v{vCT}, v{vCS+t}, {c}, v{vCB+t}")
    if t == 2:
        A("s_mov_b32 exec_hi, 0xffff")
    A.vm(f"buffer_load_dwordx4 v{vCT}, {WS}, 0 offen sc1 lds", ("c", c))
    if t == 2:
        A("s_mov_b32 exec_hi, -1")


def dma_chunk(A, c):
    for t in range(3):
        dma_chunk_piece(A, c, t)


def dma_w_piece(A, part, st, t):
    off = (WA_OFF if part == 0 else WB_OFF)[st]
    A(f"s_add_u32 m0, s{sLDSW2}, {off + 1024*t}")
    A(f"s_add_u32 s{sT0}, s{sWSRC}, {(part*80 + 16*st)*10240}")
    if t == 2:
        A("s_mov_b32 exec_hi, 0")
    A.vm(f"buffer_load_dwordx4 v{(vW0, vW1, vW2)[t]}, {WS}, s{sT0} offen sc1 lds", ("w", part, st))
    if t == 2:
        A("s_mov_b32 exec_hi, -1")


def rd_k01(A, t):
    if EXP.get('halfrd') and t % 2 == 1:
        return
    c, tt = t // TPC, t % TPC
    A.lds(f"ds_read_b128 {v(K01,4)}, v{vK01 + c % NSLOT} offset:{tt*512}", ("k01", t))


def rd_k2(A, t):
    if EXP.get('halfrd') and t % 2 == 1:
        return
    c, tt = t // TPC, t % TPC
    A.lds(f"ds_read_b64 {v(K2,2)}, v{vK2 + c % NSLOT} offset:{8192 + tt*512}", ("k2", t))


def rd_v(A, t, a):
    if EXP.get('halfrd') and t % 2 == 1:
        return
    c, tt = t // TPC, t % TPC
    areg = vV + c % NSLOT if tt < 4 else vV2[c % NSLOT]
    A.lds(f"ds_read_b128 {v(V1 if a else V0,4)}, v{areg} offset:{(2*(tt % 4) + a)*640}", ("v", t, a))


def exps(A, sreg, g, preg=P):
    for i in range(4):
        A(f"v_exp_f32 v{sreg+4*g+i}, v{sreg+4*g+i}")
    A(f"v_cvt_pk_bf16_f32 v{preg+2*g}, v{sreg+4*g}, v{sreg+4*g+1}")
    A(f"v_cvt_pk_bf16_f32 v{preg+2*g+1}, v{sreg+4*g+2}, v{sreg+4*g+3}")


def cross_half_max(A, reg, tmp):
    A(f"v_mov_b32 v{tmp}, v{reg}")
    A("s_nop 1")
    A(f"v_permlane32_swap_b32 v{reg}, v{tmp}")
    A("s_nop 1")
    A(f"v_max_f32 v{reg}, v{reg}, v{tmp}")


def max16(A, dst, src, first):
    if first:
        A(f"v_max3_f32 v{dst}, v{src}, v{src+1}, v{src+2}")
        rest = list(range(3, 16))
    else:
        rest = list(range(0, 16))
    while rest:
        if len(rest) >= 2:
            A(f"v_max3_f32 v{dst}, v{dst}, v{src+rest[0]}, v{src+rest[1]}")
            rest = rest[2:]
        else:
            A(f"v_max_f32 v{dst}, v{dst}, v{src+rest[0]}")
            rest = rest[1:]


def row_sum(A, oreg):
    A(f"v_mov_b32 v{vT}, v{oreg+8}")
    A(f"v_mov_b32 v{vT+1}, v{oreg+8}")
    A("s_nop 1")
    A(f"v_permlane32_swap_b32 v{vT}, v{vT+1}")


def finish_tile(A, oreg, gate, one_minus, vaddr, tok_sreg, chunk0, tag):
    A(f"v_rcp_f32 v{vT+2}, v{vT+1}")
    A(f"s_lshl_b32 s{sT0}, s{tok_sreg}, 4")
    A(f"s_add_u32 s{sT0}, s{sT0}, {OC + chunk0*32768}")
    if one_minus:
        A(f"v_sub_f32 v{vT}, 1.0, v{gate}")
        A(f"v_mul_f32 v{vT+2}, v{vT+2}, v{vT}")
    else:
        A(f"v_mul_f32 v{vT+2}, v{vT+2}, v{gate}")
    A(f"v_mov_b32 v{vT+3}, v{vT+2}")
    for i in range(0, 12, 2):
        A(f"v_pk_mul_f32 {v(oreg+i,2)}, {v(oreg+i,2)}, v[{vT+2}:{vT+3}]")
    for i in range(4):
        A(f"v_cvt_pk_bf16_f32 v{oreg+i}, v{oreg+2*i}, v{oreg+2*i+1}")
    A(f"v_cvt_pk_bf16_f32 v{oreg+8}, v{oreg+8}, v{oreg+9}")
    A(f"v_cvt_pk_bf16_f32 v{oreg+9}, v{oreg+10}, v{oreg+11}")
    A(f"v_permlane32_swap_b32 v{oreg}, v{oreg+2}")
    A(f"v_permlane32_swap_b32 v{oreg+1}, v{oreg+3}")
    A.vm(f"buffer_store_dwordx4 {v(oreg,4)}, v{vaddr}, {WS}, s{sT0} offen sc1", tag)
    A("s_mov_b32 exec_hi, 0")
    A.vm(f"buffer_store_dwordx2 {v(oreg+8,2)}, v{vaddr+2}, {WS}, s{sT0} offen sc1", tag)
    A("s_mov_b64 exec, -1")


def oc_load(A, part, k):
    reg = OCA if part == 0 else OCB
    A(f"s_add_u32 s{sT0}, s{sOCB}, {(part*80 + 4*k)*32768}")
    A.vm(f"buffer_load_dwordx4 {v(reg+4*k,4)}, v{vOC}, {WS}, s{sT0} offen sc1", ("oc", part, k))


def outproj(A, part, first, hook=None):
    offs = WA_OFF if part == 0 else WB_OFF
    reg = OCA if part == 0 else OCB
    for kg in range(2):
        if kg == 0:
            A(f"s_cmp_eq_u32 s{sKG}, 1")
            A(f"s_cbranch_scc1 L_op{part}_g1")
            saved = (list(A.vm_q), list(A.lds_q))
        else:
            A.label(f"L_op{part}_g1")
            A.vm_q, A.lds_q = list(saved[0]), list(saved[1])
        seq = [(k, nt) for k in range(10) for nt in range(5)]

        def rd(i):
            k, nt = seq[i]
            kk = 10 * kg + k
            off = offs[kk // 4] + (kk % 4) * 5120 + nt * 256
            areg = (vWR, vT + 5, vT + 6)[off >> 16]
            A.lds(f"ds_read_b128 {v(WF + (i % 8)*4,4)}, v{areg} offset:{off & 0xffff}", ("wf", i))

        LOOK = 5
        for i in range(LOOK):
            rd(i)
        for i, (k, nt) in enumerate(seq):
            if i + LOOK < len(seq):
                rd(i + LOOK)
            if nt == 0:
                A.vm_wait(("oc", part, k))
                if hook:
                    hook(k, kg)
            A.lds_wait(("wf", i))
            c = "0" if (first and k == 0) else v(ACC + 4*nt, 4)
            A(f"v_mfma_f32_16x16x32_bf16 {v(ACC+4*nt,4)}, {v(WF + (i % 8)*4,4)}, {v(reg+4*k,4)}, {c}")
        if kg == 0:
            end0 = (list(A.vm_q), list(A.lds_q))
            A(f"s_branch L_op{part}_done")
    A.label(f"L_op{part}_done")
    assert end0[0] == A.vm_q and end0[1] == A.lds_q


def keypos(kappa):
    return (kappa & 25) | ((kappa >> 1) & 1) << 2 | ((kappa >> 2) & 1) << 1


def band_mask(j, i, prev):
    m = 0
    for l in range(64):
        q, hh = l & 31, l >> 5
        key = keypos(8 * j + 4 * hh + i) - (32 if prev else 0)
        if 0 <= q - key <= 7:
            m |= 1 << l
    return m


def b_consts(A):
    A(f"v_cmp_eq_u32 vcc, 20, v{vR}")
    A(f"v_mov_b32 v{vT+6}, 0")
    A(f"v_mov_b32 v{vT+7}, 0x3f803f80")
    A(f"v_cndmask_b32 v{vT+6}, v{vT+6}, v{vT+7}, vcc")
    for base in (BV0, BV1, BVP):
        for i in range(4):
            A(f"v_mov_b32 v{base+i}, v{vT+6}")
    A(f"v_mov_b32 v{BQ2}, 0")
    A(f"v_mov_b32 v{BQ2+1}, 0")


def b_load_items():
    def mk(instr, pre=None, gate=False):
        def f(A):
            if gate:
                A(f"v_lshlrev_b32 v{vCT}, 1, v{vGA}")
                A.vm(instr.replace(f"v{vGA},", f"v{vCT},"), "b")
                return
            if pre:
                A(pre)
            A.vm(instr, "b")
            if pre:
                A("s_mov_b64 exec, -1")
        return f
    lo20 = f"s_mov_b64 exec, s[{sLO20}:{sLO20+1}]"
    return [
        mk(f"buffer_load_dwordx4 {v(BQ01,4)}, v{vBA}, {WS}, s{sBA} offen sc1"),
        mk(f"buffer_load_dwordx4 {v(BK01,4)}, v{vBA+2}, {WS}, s{sBA+2} offen sc1"),
        mk(f"buffer_load_dwordx2 {v(BK2,2)}, v{vBA+3}, {WS}, s{sBA+3} offen sc1"),
        mk(f"buffer_load_dwordx4 {v(BKP01,4)}, v{vBA+2}, {WS}, s{sBA+5} offen sc1"),
        mk(f"buffer_load_dwordx2 {v(BKP2,2)}, v{vBA+3}, {WS}, s{sBA+6} offen sc1"),
        mk(f"buffer_load_dword v{vGB}, v{vGA}, {WS}, s{sBA+8} offen sc1", None, True),
        mk(f"buffer_load_dwordx2 {v(BQ2,2)}, v{vBA+1}, {WS}, s{sBA+1} offen sc1", "s_mov_b32 exec_hi, 0"),
        mk(f"buffer_load_dwordx4 {v(BV0,4)}, v{vBA+4}, {WS}, s{sBA+4} offen sc1", lo20),
        mk(f"buffer_load_dwordx4 {v(BV1,4)}, v{vBA+4}, {WS}, s{sBA+4} offen offset:640 sc1", lo20),
        mk(f"buffer_load_dwordx4 {v(BVP,4)}, v{vBA+4}, {WS}, s{sBA+7} offen offset:640 sc1", lo20),
    ]


def b_unit(A):
    S0, S1 = BS0, BS1
    jitter(A, True)
    A.vm_wait("b")
    mf16(A, S0, BK01, BQ01, "0")
    mf16(A, S1, BKP01, BQ01, "0")
    mf8(A, S0, BK2, BQ2, v(S0, 16))
    mf8(A, S1, BKP2, BQ2, v(S1, 16))
    A(f"v_mov_b32 v{vT}, {hex(f32bits(-1e30))}")
    A(f"s_cmp_eq_u32 s{sQT}, 0")
    A(f"s_cselect_b32 s{sT3}, 0, -1")
    A("s_nop 7")
    A("s_nop 5")
    for j in range(4):
        for i in range(4):
            m = band_mask(j, i, False)
            A(f"s_mov_b32 s{sM}, {hex(m & 0xffffffff)}")
            A(f"s_mov_b32 s{sM+1}, {hex(m >> 32)}")
            A(f"v_cndmask_b32 v{S0+4*j+i}, v{vT}, v{S0+4*j+i}, s[{sM}:{sM+1}]")
    for i in range(4):
        m = band_mask(3, i, True)
        A(f"s_and_b32 s{sM}, s{sT3}, {hex(m & 0xffffffff)}")
        A(f"s_and_b32 s{sM+1}, s{sT3}, {hex(m >> 32)}")
        A(f"v_cndmask_b32 v{S1+12+i}, v{vT}, v{S1+12+i}, s[{sM}:{sM+1}]")
    max16(A, vT + 1, S0, True)
    A(f"v_max3_f32 v{vT+1}, v{vT+1}, v{S1+12}, v{S1+13}")
    A(f"v_max3_f32 v{vT+1}, v{vT+1}, v{S1+14}, v{S1+15}")
    cross_half_max(A, vT + 1, vT + 2)
    for r in list(range(S0, S0 + 16)) + list(range(S1 + 12, S1 + 16)):
        A(f"v_sub_f32 v{r}, v{r}, v{vT+1}")
    for g in range(4):
        exps(A, S0, g, BP)
    PP = BP + 8
    for i in range(4):
        A(f"v_exp_f32 v{S1+12+i}, v{S1+12+i}")
    A(f"v_mov_b32 v{PP}, 0")
    A(f"v_mov_b32 v{PP+1}, 0")
    A(f"v_cvt_pk_bf16_f32 v{PP+2}, v{S1+12}, v{S1+13}")
    A(f"v_cvt_pk_bf16_f32 v{PP+3}, v{S1+14}, v{S1+15}")
    A("s_nop 1")
    mf16(A, BO, BV0, BP, "0")
    mf16(A, BO, BV1, BP + 4, v(BO, 16))
    mf16(A, BO, BVP, PP, v(BO, 16))
    A("s_nop 7")
    A("s_nop 3")
    row_sum(A, BO)
    A("s_nop 1")
    finish_tile(A, BO, vGB, True, vOST + 1, sBT, 80, "stb")


def fallback(A):
    A.comment("---- fallback: two-pass softmax with the true row max")
    A.label("L_fallback")
    A("s_waitcnt vmcnt(0) lgkmcnt(0)")
    A(f"v_lshlrev_b32 v{vT+4}, 15, v{vHH}")
    A(f"v_lshl_add_u32 v{vT+4}, v{vR}, 4, v{vT+4}")
    A(f"v_lshlrev_b32 v{vT+5}, 4, v{vR}")
    A(f"v_mul_u32_u24 v{vT+6}, 320, v{vHH}")
    A(f"v_lshl_add_u32 v{vT+6}, v{vR}, 4, v{vT+6}")
    A(f"v_mov_b32 v{vT+7}, {hex(f32bits(-3.0e38))}")

    def tile_addr():
        A(f"s_lshl_b32 s{sT0}, s{sCNT}, 9")
        A(f"s_lshl_b32 s{sT1}, s{sPA}, 15")
        A(f"s_add_u32 s{sT1}, s{sT1}, s{sT0}")
        A(f"s_add_u32 s{sT1}, s{sT1}, {KA}")
        A(f"s_lshl_b32 s{sT2}, s{sP2L}, 15")
        A(f"s_add_u32 s{sT2}, s{sT2}, s{sT0}")
        A(f"s_and_b32 s{sT3}, s{sH}, 1")
        A(f"s_lshl_b32 s{sT3}, s{sT3}, 3")
        A(f"s_add_u32 s{sT2}, s{sT2}, s{sT3}")
        A(f"s_add_u32 s{sT2}, s{sT2}, {KA}")
        A(f"s_mul_i32 s{sT3}, s{sCNT}, 1280")
        A(f"s_add_u32 s{sT3}, s{sT3}, s{sVH}")
        A(f"s_add_u32 s{sT3}, s{sT3}, {VA}")

    A(f"s_mov_b32 s{sCNT}, 0")
    A.label("L_fb1")
    tile_addr()
    A(f"buffer_load_dwordx4 {v(K01,4)}, v{vT+4}, {WS}, s{sT1} offen sc1")
    A(f"buffer_load_dwordx2 {v(K2,2)}, v{vT+5}, {WS}, s{sT2} offen sc1")
    A("s_waitcnt vmcnt(0)")
    mf16(A, SA, K01, Q01, "0")
    mf8(A, SA, K2, Q2, v(SA, 16))
    A("s_nop 7")
    A("s_nop 7")
    max16(A, vT + 7, SA, False)
    A(f"s_add_u32 s{sCNT}, s{sCNT}, 1")
    A(f"s_cmp_lt_u32 s{sCNT}, 64")
    A("s_cbranch_scc1 L_fb1")
    cross_half_max(A, vT + 7, vT)
    for i in range(16):
        A(f"v_sub_f32 v{NEGM+i}, 0, v{vT+7}")
        A(f"v_mov_b32 v{O+i}, 0")
    A(f"v_cmp_eq_u32 vcc, 20, v{vR}")
    A(f"v_mov_b32 v{vT}, 0")
    A(f"v_mov_b32 v{vT+1}, 0x3f803f80")
    A(f"v_cndmask_b32 v{vT}, v{vT}, v{vT+1}, vcc")
    for i in range(4):
        A(f"v_mov_b32 v{V0+i}, v{vT}")
        A(f"v_mov_b32 v{V1+i}, v{vT}")
    A(f"s_mov_b32 s{sCNT}, 0")
    A.label("L_fb2")
    tile_addr()
    A(f"buffer_load_dwordx4 {v(K01,4)}, v{vT+4}, {WS}, s{sT1} offen sc1")
    A(f"buffer_load_dwordx2 {v(K2,2)}, v{vT+5}, {WS}, s{sT2} offen sc1")
    A(f"s_mov_b64 exec, s[{sLO20}:{sLO20+1}]")
    A(f"buffer_load_dwordx4 {v(V0,4)}, v{vT+6}, {WS}, s{sT3} offen sc1")
    A(f"buffer_load_dwordx4 {v(V1,4)}, v{vT+6}, {WS}, s{sT3} offen offset:640 sc1")
    A("s_mov_b64 exec, -1")
    A("s_waitcnt vmcnt(0)")
    mf16(A, SA, K01, Q01, v(NEGM, 16))
    mf8(A, SA, K2, Q2, v(SA, 16))
    A("s_nop 7")
    A("s_nop 7")
    for g in range(4):
        exps(A, SA, g)
    A("s_nop 1")
    mf16(A, O, V0, P, v(O, 16))
    mf16(A, O, V1, P + 4, v(O, 16))
    A(f"s_add_u32 s{sCNT}, s{sCNT}, 1")
    A(f"s_cmp_lt_u32 s{sCNT}, 64")
    A("s_cbranch_scc1 L_fb2")
    A("s_nop 7")
    A("s_nop 7")
    row_sum(A, O)
    A("s_nop 1")
    A("s_branch L_finish")


def touch_chip(A, which):
    A(f"s_and_b32 s{sT1}, s{sW}, 1")
    A(f"s_lshl_b32 s{sT1}, s{sT1}, 6")
    A(f"v_add_u32 v{vT}, s{sT1}, v{vL}")
    A(f"s_cmp_ge_u32 s{sW}, 2")
    A(f"s_cbranch_scc1 L_tc_w{which}")
    if "x" in which:
        A(f"v_min_u32 v{vT}, 79, v{vT}")
        A(f"v_lshlrev_b32 v{vT}, 7, v{vT}")
        A(f"s_mul_i32 s{sT0}, s2, 10240")
        A(f"buffer_load_dword v{G_P+1}, v{vT}, s[{sX}:{sX+3}], s{sT0} offen")
    A(f"s_branch L_tc_done{which}")
    A.label(f"L_tc_w{which}")
    A(f"v_min_u32 v{vT}, 74, v{vT}")
    A(f"v_lshlrev_b32 v{vT}, 7, v{vT}")
    A(f"s_mul_i32 s{sT0}, s2, 9600")
    if "a" in which:
        A(f"buffer_load_dword v{G_P+2}, v{vT}, s[{sWA}:{sWA+3}], s{sT0} offen")
    if "b" in which:
        A(f"buffer_load_dword v{G_P+3}, v{vT}, s[{sWB}:{sWB+3}], s{sT0} offen")
    A.label(f"L_tc_done{which}")


def touch_phase(A, phase):
    L = f"L_tp{phase}"
    if phase != 2:
        k0, nk = {0: (3, 3), 1: (6, 4), 3: (0, 3)}[phase]
        wx, ww = {0: (0, 1), 1: (2, 3), 3: (2, 3)}[phase]
        A(f"s_cmp_lg_u32 s{sW}, {wx}")
        A(f"s_cbranch_scc1 {L}_w")
        if nk == 3:
            A(f"v_mul_u32_u24 v{vT}, 86, v{vL}")
            A(f"v_lshrrev_b32 v{vT}, 8, v{vT}")
        else:
            A(f"v_lshrrev_b32 v{vT}, 2, v{vL}")
        A(f"v_mul_u32_u24 v{vT+1}, {nk}, v{vT}")
        A(f"v_sub_u32 v{vT+1}, v{vL}, v{vT+1}")
        A(f"v_min_u32 v{vT}, 7, v{vT}")
        A(f"v_mul_u32_u24 v{vT}, 1280, v{vT}")
        A(f"v_lshl_add_u32 v{vT}, v{vT+1}, 7, v{vT}")
        A(f"s_mul_i32 s{sT0}, s2, 10240")
        A(f"s_add_u32 s{sT0}, s{sT0}, {128*k0}")
        A(f"buffer_load_dword v{G_P+1}, v{vT}, s[{sX}:{sX+3}], s{sT0} offen")
        A.label(f"{L}_w")
        per = 64 * nk * 30 // 256 + (1 if (64 * nk * 30) % 256 else 0)
        A(f"s_cmp_lg_u32 s{sW}, {ww}")
        A(f"s_cbranch_scc1 {L}_done")
        A(f"v_min_u32 v{vT}, {per - 1}, v{vL}")
        A(f"v_lshlrev_b32 v{vT}, 7, v{vT}")
        A(f"s_mul_i32 s{sT0}, s2, {64 * nk * 3840 // 256}")
        A(f"s_and_b32 s{sT0}, s{sT0}, 0xffffff80")
        A(f"s_add_u32 s{sT0}, s{sT0}, {64 * k0 * 3840}")
        A(f"buffer_load_dword v{G_P+2}, v{vT}, s[{sWA}:{sWA+3}], s{sT0} offen")
    else:
        A(f"s_cmp_ge_u32 s{sW}, 2")
        A(f"s_cbranch_scc1 {L}_done")
        A(f"s_lshl_b32 s{sT1}, s{sW}, 6")
        A(f"v_add_u32 v{vT}, s{sT1}, v{vL}")
        A(f"v_min_u32 v{vT}, 74, v{vT}")
        A(f"v_lshlrev_b32 v{vT}, 7, v{vT}")
        A(f"s_mul_i32 s{sT0}, s2, 9600")
        A(f"buffer_load_dword v{G_P+3}, v{vT}, s[{sWB}:{sWB+3}], s{sT0} offen")
    A.label(f"{L}_done")


def touch_xcd_first(A):
    A(f"s_cmp_eq_u32 s{sW}, 7")
    A("s_cbranch_scc1 L_txf_done")
    A(f"s_sub_u32 s{sT1}, s{sW}, 4")
    A(f"s_and_b32 s{sT0}, s{sCT}, 3")
    A(f"s_lshl_b32 s{sT0}, s{sT0}, 5")
    A(f"v_add_u32 v{vT}, s{sT0}, v{vR}")
    A(f"v_mul_u32_u24 v{vT}, 1280, v{vT}")
    A(f"s_lshl_b32 s{sT0}, s{sT1}, 7")
    A(f"s_add_u32 s{sT0}, s{sT0}, s{sXOFF}")
    A(f"buffer_load_dword v{G_P}, v{vT}, s[{sX}:{sX+3}], s{sT0} offen")
    A(f"s_and_b32 s{sT0}, s{sRB}, 7")
    A(f"s_lshl_b32 s{sT0}, s{sT0}, 3")
    A(f"s_lshl_b32 s{sT1}, s{sT1}, 6")
    A(f"s_add_u32 s{sT0}, s{sT0}, s{sT1}")
    A(f"v_bfe_u32 v{vT}, v{vL}, 1, 3")
    A(f"v_add_u32 v{vT}, s{sT0}, v{vT}")
    A(f"v_mul_u32_u24 v{vT}, 3840, v{vT}")
    A(f"v_and_b32 v{vT+1}, 1, v{vL}")
    A(f"v_lshl_add_u32 v{vT}, v{vT+1}, 7, v{vT}")
    A(f"buffer_load_dword v{G_P+1}, v{vT}, s[{sWA}:{sWA+3}], s{sWOFF} offen")
    A.label("L_txf_done")
    if EXP.get("txf") == 2:
        A("s_waitcnt vmcnt(0)")


def touch_chip_wide(A, which, tag):
    A(f"s_cmp_ge_u32 s{sW}, 4")
    A(f"s_cbranch_scc1 L_tcw{tag}")
    A(f"s_lshl_b32 s{sT1}, s{sW}, 10")
    A(f"v_add_u32 v{vT}, s{sT1}, v{vL16}")
    k = 0
    for name, srd_, size in (("x", sX, 10240), ("a", sWA, 9600), ("b", sWB, 9600)):
        if name not in which:
            continue
        A(f"s_mul_i32 s{sT0}, s2, {size}")
        for i in range(3):
            A(f"v_add_u32 v{vT+1}, {4096*i}, v{vT}")
            A(f"v_min_u32 v{vT+1}, {size - 16}, v{vT+1}")
            A(f"buffer_load_dwordx4 {v(G_P + 4*k, 4)}, v{vT+1}, s[{srd_}:{srd_+3}], s{sT0} offen")
            k += 1
    A.label(f"L_tcw{tag}")


def touch_chip_b(A, n):
    A(f"s_cmp_ge_u32 s{sW}, 2")
    A(f"s_cbranch_scc1 L_tcb{n}")
    A(f"s_lshl_b32 s{sT1}, s{sW}, 6")
    A(f"v_add_u32 v{vT}, s{sT1}, v{vL}")
    A(f"v_min_u32 v{vT}, 74, v{vT}")
    A(f"v_lshlrev_b32 v{vT}, 7, v{vT}")
    A(f"s_mul_i32 s{sT0}, s2, 9600")
    A(f"buffer_load_dword v{G_P+3}, v{vT}, s[{sWB}:{sWB+3}], s{sT0} offen")
    A.label(f"L_tcb{n}")


def touch_wb(A, n):
    A(f"s_cmp_ge_u32 s{sW}, 3")
    A(f"s_cbranch_scc1 L_twb{n}")
    A(f"s_and_b32 s{sT0}, s{sRB}, 7")
    A(f"s_mul_i32 s{sT0}, s{sT0}, 80")
    A(f"s_lshl_b32 s{sT1}, s{sW}, 5")
    A(f"v_lshrrev_b32 v{vT}, 1, v{vL}")
    A(f"v_add_u32 v{vT}, s{sT1}, v{vT}")
    A(f"v_min_u32 v{vT}, 79, v{vT}")
    A(f"v_add_u32 v{vT}, s{sT0}, v{vT}")
    A(f"v_mul_u32_u24 v{vT}, 3840, v{vT}")
    A(f"v_and_b32 v{vT+1}, 1, v{vL}")
    A(f"v_lshl_add_u32 v{vT}, v{vT+1}, 7, v{vT}")
    A(f"buffer_load_dword v{G_P}, v{vT}, s[{sWB}:{sWB+3}], s{sWOFF} offen")
    A.label(f"L_twb{n}")


def touch_a(A, n):
    A(f"v_mul_u32_u24 v{vT}, 37, v{vL}")
    A(f"v_lshrrev_b32 v{vT}, 8, v{vT}")
    A(f"v_mul_u32_u24 v{vT+1}, 7, v{vT}")
    A(f"v_sub_u32 v{vT+1}, v{vL}, v{vT+1}")
    A(f"v_min_u32 v{vT}, 7, v{vT}")
    A(f"s_and_b32 s{sT0}, s{sCT}, 3")
    A(f"s_lshl_b32 s{sT0}, s{sT0}, 2")
    A(f"s_add_u32 s{sT0}, s{sT0}, s{sW}")
    A(f"s_lshl_b32 s{sT0}, s{sT0}, 3")
    A(f"v_add_u32 v{vT}, s{sT0}, v{vT}")
    A(f"v_mul_u32_u24 v{vT}, 1280, v{vT}")
    A(f"v_lshl_add_u32 v{vT}, v{vT+1}, 7, v{vT}")
    A(f"v_add_u32 v{vT}, 384, v{vT}")
    A(f"buffer_load_dword v{G_P+1}, v{vT}, s[{sX}:{sX+3}], s{sXOFF} offen")
    A(f"s_cmp_ge_u32 s{sW}, 2")
    A(f"s_cbranch_scc1 L_twa{n}")
    A(f"s_and_b32 s{sT0}, s{sRB}, 7")
    A(f"s_mul_i32 s{sT0}, s{sT0}, 56")
    A(f"s_mul_i32 s{sT1}, s{sW}, 28")
    A(f"s_add_u32 s{sT0}, s{sT0}, s{sT1}")
    A(f"s_add_u32 s{sT0}, s{sT0}, 192")
    A(f"v_lshrrev_b32 v{vT}, 1, v{vL}")
    A(f"v_min_u32 v{vT}, 27, v{vT}")
    A(f"v_add_u32 v{vT}, s{sT0}, v{vT}")
    A(f"v_mul_u32_u24 v{vT}, 3840, v{vT}")
    A(f"v_and_b32 v{vT+1}, 1, v{vL}")
    A(f"v_lshl_add_u32 v{vT}, v{vT+1}, 7, v{vT}")
    A(f"buffer_load_dword v{G_P+2}, v{vT}, s[{sWA}:{sWA+3}], s{sWOFF} offen")
    A.label(f"L_twa{n}")


def setup_phase1_reads(A):
    A(f"v_lshrrev_b32 v{vT+2}, 1, v{vR}")
    A(f"v_and_b32 v{vT+2}, 7, v{vT+2}")
    A(f"v_xor_b32 v{vT+2}, v{vT+2}, v{vHH}")
    A(f"v_lshlrev_b32 v{vT+2}, 4, v{vT+2}")
    A(f"s_lshl_b32 s{sT0}, s{sMH}, 6")
    A(f"v_add_u32 v{vT+3}, s{sT0}, v{vR}")
    A(f"v_lshl_add_u32 v{vXR}, v{vT+3}, 7, v{vT+2}")
    for ks in range(1, 4):
        A(f"v_xor_b32 v{vXR+3*ks}, {ks*32}, v{vXR}")
    for ks in range(4):
        A(f"v_add_u32 v{vXR+3*ks+1}, 0x10000, v{vXR+3*ks}")
        A(f"v_add_u32 v{vXR+3*ks+2}, 0x20000, v{vXR+3*ks}")
    A(f"v_bfe_u32 v{vT+2}, v{vL}, 2, 2")
    A(f"v_lshl_add_u32 v{vT+3}, v{vHH}, 3, v{vT+2}")
    A(f"v_lshlrev_b32 v{vT+3}, 8, v{vT+3}")
    A(f"v_bfe_u32 v{vT+4}, v{vL}, 4, 1")
    A(f"v_lshlrev_b32 v{vT+4}, 5, v{vT+4}")
    A(f"v_add_u32 v{vT+3}, v{vT+3}, v{vT+4}")
    A(f"v_and_b32 v{vT+4}, 3, v{vL}")
    A(f"v_lshlrev_b32 v{vT+4}, 3, v{vT+4}")
    A(f"v_add_u32 v{vT+3}, v{vT+3}, v{vT+4}")
    for nt in range(2):
        A(f"s_lshl_b32 s{sT0}, s{sNH}, 1")
        A(f"s_add_u32 s{sT0}, s{sT0}, {nt}")
        A(f"v_xor_b32 v{vT+4}, s{sT0}, v{vT+2}")
        A(f"v_lshl_add_u32 v{vWR1+3*nt}, v{vT+4}, 6, v{vT+3}")
        A(f"v_add_u32 v{vWR1+3*nt+1}, 0x10000, v{vWR1+3*nt}")
        A(f"v_add_u32 v{vWR1+3*nt+2}, 0x20000, v{vWR1+3*nt}")


def setup_p2_0(A):
    A(f"s_lshl_b32 s{sF1}, s{sCT}, 4")
    A(f"s_add_u32 s{sF1}, s{sF1}, s{sRB}")
    A(f"s_lshl_b32 s{sF1}, s{sF1}, 2")
    A(f"s_and_b32 s{sT0}, s2, 7")
    A(f"s_lshl_b32 s{sT0}, s{sT0}, 2")
    A(f"s_lshr_b32 s{sT1}, s2, 3")
    A(f"s_and_b32 s{sT1}, s{sT1}, 3")
    A(f"s_add_u32 s{sH}, s{sT0}, s{sT1}")
    A(f"s_lshr_b32 s{sQB}, s2, 5")
    A(f"s_lshr_b32 s{sT0}, s{sH}, 1")
    A(f"s_mul_i32 s{sT0}, s{sT0}, 5")
    A(f"s_add_u32 s{sP2L}, s{sT0}, 2")
    A(f"s_and_b32 s{sT1}, s{sH}, 1")
    A(f"s_mul_i32 s{sT1}, s{sT1}, 3")
    A(f"s_add_u32 s{sPA}, s{sT0}, s{sT1}")
    A(f"s_mul_i32 s{sVH}, s{sH}, {VH}")
    A(f"s_mul_i32 s{sLDSW}, s{sW}, 2816")
    A(f"s_mul_i32 s{sLDSW2}, s{sW}, 2560")
    A(f"s_lshl_b32 s{sQ0}, s{sQB}, 8")
    A(f"s_lshl_b32 s{sT0}, s{sW}, 5")
    A(f"s_add_u32 s{sQ0}, s{sQ0}, s{sT0}")
    A(f"s_lshl_b32 s{sQT}, s{sQB}, 2")
    A(f"s_lshr_b32 s{sT0}, s{sW}, 1")
    A(f"s_add_u32 s{sQT}, s{sQT}, s{sT0}")
    A(f"s_and_b32 s{sT1}, s{sW}, 1")
    A(f"s_lshl_b32 s{sBT}, s{sQT}, 6")
    A(f"s_add_u32 s{sBT}, s{sBT}, s{sT1}")
    A(f"s_mov_b32 s{sLO20}, 0xfffff")
    A(f"s_mov_b32 s{sLO20+1}, 0xfffff")
    A(f"v_lshlrev_b32 v{vQA}, 15, v{vHH}")
    A(f"v_lshl_add_u32 v{vQA}, v{vR}, 4, v{vQA}")
    A(f"v_lshlrev_b32 v{vQA2}, 4, v{vR}")
    A(f"v_lshlrev_b32 v{vGA}, 2, v{vR}")
    A(f"s_lshl_b32 s{sT0}, s{sQ0}, 4")
    A(f"s_lshl_b32 s{sQOFF}, s{sPA}, 15")
    A(f"s_add_u32 s{sQOFF}, s{sQOFF}, s{sT0}")
    if QA:
        A(f"s_add_u32 s{sQOFF}, s{sQOFF}, {QA}")
    A(f"s_lshl_b32 s{sQOFF2}, s{sP2L}, 15")
    A(f"s_add_u32 s{sQOFF2}, s{sQOFF2}, s{sT0}")
    A(f"s_and_b32 s{sT1}, s{sH}, 1")
    A(f"s_lshl_b32 s{sT1}, s{sT1}, 3")
    A(f"s_add_u32 s{sQOFF2}, s{sQOFF2}, s{sT1}")
    if QA:
        A(f"s_add_u32 s{sQOFF2}, s{sQOFF2}, {QA}")
    A(f"s_lshl_b32 s{sGOFF}, s{sQ0}, 2")
    A(f"s_add_u32 s{sGOFF}, s{sGOFF}, {GATE}")


def setup_p2_1(A):
    A(f"s_and_b32 s{sT1}, s{sH}, 1")
    A(f"s_lshl_b32 s{sT1}, s{sT1}, 3")
    A(f"v_lshlrev_b32 v{vT}, 12, v{vHH}")
    A(f"v_lshl_add_u32 v{vT}, v{vR}, 4, v{vT}")
    A(f"v_lshlrev_b32 v{vT+1}, 4, v{vR}")
    A(f"v_add_u32 v{vT+1}, s{sT1}, v{vT+1}")
    A(f"v_mul_u32_u24 v{vT+2}, 320, v{vHH}")
    A(f"v_lshl_add_u32 v{vT+2}, v{vR}, 4, v{vT+2}")
    A(f"v_add_u32 v{vT+3}, {ONES}, v{vT+2}")
    A(f"v_cmp_gt_u32 vcc, 20, v{vR}")
    for sl in range(NSLOT):
        A(f"v_add_u32 v{vK01+sl}, {sl*SLOT}, v{vT}")
        A(f"v_add_u32 v{vK2+sl}, {sl*SLOT}, v{vT+1}")
        A(f"v_add_u32 v{vT+4}, {sl*SLOT + 12288}, v{vT+2}")
        A(f"v_cndmask_b32 v{vV+sl}, v{vT+3}, v{vT+4}, vcc")
    A(f"s_lshl_b32 s{sT2}, s{sPA}, 15")
    A(f"s_add_u32 s{sT2}, s{sT2}, {KA}")
    A(f"s_lshl_b32 s{sT3}, s{sP2L}, 15")
    A(f"s_add_u32 s{sT3}, s{sT3}, {KA - 8192}")
    A(f"s_add_u32 s{sT4}, s{sVH}, {VA - 12288}")
    for t in range(3):
        A(f"v_add_u32 v{vT}, s{sLDSW}, v{vL16}")
        if t:
            A(f"v_add_u32 v{vT}, {1024*t}, v{vT}")
        A(f"v_lshrrev_b32 v{vT+1}, 12, v{vT}")
        A(f"v_and_b32 v{vT+2}, 4095, v{vT}")
        A(f"v_lshl_add_u32 v{vT+2}, v{vT+1}, 15, v{vT+2}")
        A(f"v_add_u32 v{vT+2}, s{sT2}, v{vT+2}")
        A(f"v_add_u32 v{vT+3}, s{sT3}, v{vT}")
        A(f"v_add_u32 v{vT+4}, s{sT4}, v{vT}")
        A(f"v_cmp_eq_u32 vcc, 2, v{vT+1}")
        A(f"v_mov_b32 v{vT+5}, 4096")
        A(f"v_mov_b32 v{vT+6}, 10240")
        A(f"v_cndmask_b32 v{vT+2}, v{vT+2}, v{vT+3}, vcc")
        A(f"v_cmp_le_u32 vcc, 3, v{vT+1}")
        A("s_nop 1")
        A(f"v_cndmask_b32 v{vCB+t}, v{vT+2}, v{vT+4}, vcc")
        A(f"v_cndmask_b32 v{vCS+t}, v{vT+5}, v{vT+6}, vcc")


def setup_p2_2(A):
    A(f"s_lshr_b32 s{sT0}, s{sH}, 1")
    A(f"s_mul_i32 s{sT0}, s{sT0}, 5")
    A(f"s_and_b32 s{sT1}, s{sH}, 1")
    A(f"s_lshl_b32 s{sT2}, s{sT1}, 1")
    A(f"s_add_u32 s{sT2}, s{sT2}, s{sT0}")
    A(f"v_add_u32 v{vT}, s{sT2}, v{vHH}")
    A(f"v_lshlrev_b32 v{vT}, 15, v{vT}")
    A(f"v_lshl_add_u32 v{vOST}, v{vR}, 4, v{vT}")
    A(f"v_lshl_add_u32 v{vOST+1}, v{vR}, 5, v{vT}")
    A(f"s_add_u32 s{sT0}, s{sT0}, 4")
    A(f"s_lshl_b32 s{sT0}, s{sT0}, 15")
    A(f"s_lshl_b32 s{sT1}, s{sT1}, 3")
    A(f"s_add_u32 s{sT0}, s{sT0}, s{sT1}")
    A(f"v_lshlrev_b32 v{vT}, 4, v{vR}")
    A(f"v_add_u32 v{vOST+2}, s{sT0}, v{vT}")
    A(f"v_lshlrev_b32 v{vT}, 5, v{vR}")
    A(f"v_add_u32 v{vOST+3}, s{sT0}, v{vT}")
    A(f"s_mul_i32 s{sT0}, s{sH}, 20")
    A(f"s_add_u32 s{sT1}, s{sT0}, 19")
    A(f"s_lshr_b32 s{sT0}, s{sT0}, 7")
    A(f"s_lshr_b32 s{sT1}, s{sT1}, 7")
    A(f"v_bfe_u32 v{vT}, v{vL}, 4, 1")
    A(f"s_sub_u32 s{sT2}, s{sT1}, s{sT0}")
    A(f"v_mul_u32_u24 v{vT+1}, s{sT2}, v{vT}")
    A(f"v_add_u32 v{vT+1}, s{sT0}, v{vT+1}")
    A(f"v_mul_u32_u24 v{vT+2}, 5, v{vHH}")
    A(f"v_add_u32 v{vT+2}, 5, v{vT+2}")
    A(f"v_add_u32 v{vT+2}, v{vT+2}, v{vT+1}")
    A(f"v_and_b32 v{vT+3}, 15, v{vL}")
    A(f"v_lshl_add_u32 v{vT+2}, v{vT+2}, 4, v{vT+3}")
    A(f"v_lshlrev_b32 v{vF1}, 2, v{vT+2}")
    A(f"v_add_u32 v{vT+2}, {15*16}, v{vT+3}")
    A(f"v_lshlrev_b32 v{vF4}, 2, v{vT+2}")
    A(f"v_and_b32 v{vT+4}, 1, v{vL}")
    A(f"s_lshl_b32 s{sT3}, s{sQB}, 1")
    A(f"v_add_u32 v{vT+4}, s{sT3}, v{vT+4}")
    A(f"v_lshl_add_u32 v{vT+4}, v{vT+1}, 4, v{vT+4}")
    A(f"v_lshlrev_b32 v{vF2}, 2, v{vT+4}")
    A(f"v_and_b32 v{vT}, 1, v{vL}")
    A(f"v_mul_u32_u24 v{vT+1}, s{sT2}, v{vT}")
    A(f"v_add_u32 v{vT+1}, s{sT0}, v{vT+1}")
    A(f"v_bfe_u32 v{vT+2}, v{vL}, 1, 2")
    A(f"v_min_u32 v{vT+2}, 2, v{vT+2}")
    A(f"v_mul_u32_u24 v{vT+2}, 5, v{vT+2}")
    A(f"v_add_u32 v{vT+1}, v{vT+1}, v{vT+2}")
    A(f"s_lshl_b32 s{sT3}, s{sQB}, 1")
    A(f"v_bfe_u32 v{vT+2}, v{vL}, 3, 2")
    A(f"v_min_u32 v{vT+2}, 2, v{vT+2}")
    A(f"v_add_u32 v{vT+2}, s{sT3}, v{vT+2}")
    A(f"v_max_u32 v{vT+2}, 1, v{vT+2}")
    A(f"v_subrev_u32 v{vT+2}, 1, v{vT+2}")
    A(f"v_lshl_add_u32 v{vT+1}, v{vT+1}, 4, v{vT+2}")
    A(f"v_lshlrev_b32 v{vF3}, 2, v{vT+1}")


def setup_p2_3(A):
    A(f"v_lshlrev_b32 v{vBA}, 15, v{vHH}")
    A(f"v_lshl_add_u32 v{vBA}, v{vR}, 4, v{vBA}")
    A(f"v_lshlrev_b32 v{vBA+1}, 4, v{vR}")
    A(f"v_and_b32 v{vT+2}, 25, v{vR}")
    A(f"v_bfe_u32 v{vT+3}, v{vR}, 1, 1")
    A(f"v_lshl_or_b32 v{vT+2}, v{vT+3}, 2, v{vT+2}")
    A(f"v_bfe_u32 v{vT+3}, v{vR}, 2, 1")
    A(f"v_lshl_or_b32 v{vT+2}, v{vT+3}, 1, v{vT+2}")
    A(f"v_lshlrev_b32 v{vT+3}, 15, v{vHH}")
    A(f"v_lshl_add_u32 v{vBA+2}, v{vT+2}, 4, v{vT+3}")
    A(f"v_lshlrev_b32 v{vBA+3}, 4, v{vT+2}")
    A(f"v_mul_u32_u24 v{vT+4}, 320, v{vHH}")
    A(f"v_lshl_add_u32 v{vBA+4}, v{vR}, 4, v{vT+4}")
    A(f"s_and_b32 s{sT1}, s{sW}, 1")
    A(f"s_lshl_b32 s{sT1}, s{sT1}, 10")
    A(f"s_lshl_b32 s{sT0}, s{sQT}, 5")
    A(f"s_add_u32 s{sT2}, s{sT1}, s{sT0}")
    A(f"s_lshl_b32 s{sT0}, s{sPA}, 15")
    A(f"s_lshl_b32 s{sT1}, s{sP2L}, 15")
    A(f"s_and_b32 s{sT3}, s{sH}, 1")
    A(f"s_lshl_b32 s{sT3}, s{sT3}, 3")
    A(f"s_add_u32 s{sT1}, s{sT1}, s{sT3}")
    for prev in range(2):
        if prev:
            A(f"s_cmp_eq_u32 s{sQT}, 0")
            A(f"s_cselect_b32 s{sT3}, 0, 32")
            A(f"s_sub_u32 s{sT2}, s{sT2}, s{sT3}")
        A(f"s_lshl_b32 s{sT3}, s{sT2}, 4")
        if not prev:
            A(f"s_add_u32 s{sBA}, s{sT3}, s{sT0}")
            A(f"s_add_u32 s{sBA}, s{sBA}, {QB}")
            A(f"s_add_u32 s{sBA+1}, s{sT3}, s{sT1}")
            A(f"s_add_u32 s{sBA+1}, s{sBA+1}, {QB}")
        o = sBA + 2 + 3 * prev
        A(f"s_add_u32 s{o}, s{sT3}, s{sT0}")
        A(f"s_add_u32 s{o}, s{o}, {KB}")
        A(f"s_add_u32 s{o+1}, s{sT3}, s{sT1}")
        A(f"s_add_u32 s{o+1}, s{o+1}, {KB}")
        A(f"s_lshr_b32 s{sT3}, s{sT2}, 4")
        A(f"s_mul_i32 s{sT3}, s{sT3}, 640")
        A(f"s_add_u32 s{o+2}, s{sT3}, s{sVH}")
        A(f"s_add_u32 s{o+2}, s{o+2}, {VB}")
    A(f"s_lshl_b32 s{sBA+8}, s{sBT}, 2")
    A(f"s_add_u32 s{sBA+8}, s{sBA+8}, {GATE}")


def setup_p2_4(A):
    sRT, sCO, sTG = sT1, sT2, sT3
    A(f"s_lshr_b32 s{sRT}, s{sH}, 3")
    A(f"s_lshl_b32 s{sT0}, s{sQB}, 2")
    A(f"s_add_u32 s{sRT}, s{sRT}, s{sT0}")
    A(f"s_and_b32 s{sCO}, s{sH}, 7")
    A(f"s_and_b32 s{sTG}, s{sW}, 3")
    A(f"s_lshr_b32 s{sKG}, s{sW}, 2")
    A(f"s_lshl_b32 s{sFLG}, s{sRT}, 8")
    A(f"s_mul_i32 s{sWSRC}, s{sW}, 20480")
    A(f"s_mul_i32 s{sT0}, s{sCO}, 1280")
    A(f"s_add_u32 s{sWSRC}, s{sWSRC}, s{sT0}")
    A(f"s_add_u32 s{sWSRC}, s{sWSRC}, {WOT}")
    A(f"s_lshl_b32 s{sRT}, s{sRT}, 6")
    A(f"s_lshl_b32 s{sTG}, s{sTG}, 4")
    A(f"s_add_u32 s{sRT}, s{sRT}, s{sTG}")
    A(f"s_mul_i32 s{sOUTO}, s{sRT}, 1280")
    A(f"s_mul_i32 s{sT0}, s{sCO}, 160")
    A(f"s_add_u32 s{sOUTO}, s{sOUTO}, s{sT0}")
    A(f"s_lshl_b32 s{sOCB}, s{sRT}, 4")
    A(f"s_mul_i32 s{sT0}, s{sKG}, {40*32768}")
    A(f"s_add_u32 s{sOCB}, s{sOCB}, s{sT0}")
    A(f"s_add_u32 s{sOCB}, s{sOCB}, {OC}")
    A(f"s_lshl_b32 s{sPUB}, s{sQT}, 6")
    A(f"s_lshl_b32 s{sT0}, s{sH}, 1")
    A(f"s_add_u32 s{sPUB}, s{sPUB}, s{sT0}")
    A(f"s_and_b32 s{sT0}, s{sW}, 1")
    A(f"s_add_u32 s{sPUB}, s{sPUB}, s{sT0}")
    A(f"s_lshl_b32 s{sPUB}, s{sPUB}, 2")
    A(f"v_lshlrev_b32 v{vFA}, 2, v{vL}")
    A(f"v_mov_b32 v{vW0}, v{vL16}")
    A(f"v_add_u32 v{vT}, 1024, v{vL16}")
    A(f"v_add_u32 v{vT+1}, {10240 - 256}, v{vL16}")
    A(f"v_cmp_gt_u32 vcc, 16, v{vL}")
    A(f"v_add_u32 v{vW2}, {10240 + 768}, v{vL16}")
    A(f"v_lshrrev_b32 v{vT+2}, 4, v{vL}")
    A(f"v_cndmask_b32 v{vW1}, v{vT+1}, v{vT}, vcc")
    A(f"v_and_b32 v{vT+3}, 15, v{vL}")
    A(f"v_lshlrev_b32 v{vT+4}, 15, v{vT+2}")
    A(f"v_lshl_add_u32 v{vOC}, v{vT+3}, 4, v{vT+4}")
    A(f"v_mul_u32_u24 v{vT+4}, 1280, v{vT+2}")
    A(f"v_lshl_add_u32 v{vWR}, v{vT+3}, 4, v{vT+4}")
    A(f"v_mul_u32_u24 v{vT+4}, 1280, v{vT+3}")
    A(f"v_lshl_add_u32 v{vST}, v{vT+2}, 3, v{vT+4}")


SETUP_P2 = [setup_p2_0, setup_p2_1, setup_p2_2, setup_p2_3, setup_p2_4]


def setup_phase2(A):
    for f in SETUP_P2:
        f(A)


def pattern_fill(A, n):
    for r in range(2):
        A(f"v_and_b32 v{vT}, 255, v0")
        if r:
            A(f"v_add_u32 v{vT}, 256, v{vT}")
        A(f"v_mul_u32_u24 v{vT+1}, 3277, v{vT}")
        A(f"v_lshrrev_b32 v{vT+1}, 16, v{vT+1}")
        A(f"v_mul_u32_u24 v{vT+1}, 20, v{vT+1}")
        A(f"v_cmp_eq_u32 vcc, v{vT+1}, v{vT}")
        A(f"v_mov_b32 v{vT+4}, 0")
        A(f"v_mov_b32 v{vT+5}, 0x3f803f80")
        A(f"v_cndmask_b32 v{vT+4}, v{vT+4}, v{vT+5}, vcc")
        for i in range(1, 4):
            A(f"v_mov_b32 v{vT+4+i}, v{vT+4}")
        if r == 1:
            A(f"v_cmp_gt_u32 vcc, {PAT_UNITS}, v{vT}")
        A(f"v_lshlrev_b32 v{vT}, 4, v{vT}")
        A(f"v_add_u32 v{vT}, {ONES}, v{vT}")
        if r == 1:
            A("s_and_saveexec_b64 s[%d:%d], vcc" % (sT4, sT5))
            A(f"s_cbranch_execz L_pat_done{n}")
        A(f"ds_write_b128 v{vT}, {v(vT+4,4)}")
    A.label(f"L_pat_done{n}")
    A("s_mov_b64 exec, -1")
    A.lds_wait_all()


def gen(prof=False):
    A = Asm()
    A.prof = prof
    A.PROF_V = 239
    A.lines.append(DOC.rstrip())
    kernel_header(A, NAME)
    A("s_cmp_ge_u32 s2, 256")
    A("s_cbranch_scc1 L_end")
    A.stamp("start")
    if EXP.get("jit"):
        A(f"s_mov_b32 s{sW}, 0")
        jitter(A)
    A("s_load_dwordx4 s[4:7], s[0:1], 0")
    A(f"s_load_dwordx2 s[{sP}:{sP+1}], s[0:1], 32")
    A(f"s_load_dwordx2 s[{sP+2}:{sP+3}], s[0:1], 72")
    A(f"s_load_dwordx4 s[{sDBG}:{sDBG+3}], s[0:1], 56")
    A(f"v_lshrrev_b32 v{vT}, 6, v0")
    A(f"v_and_b32 v{vL}, 63, v0")
    A(f"v_readfirstlane_b32 s{sW}, v{vT}")
    A(f"v_and_b32 v{vR}, 31, v{vL}")
    A(f"v_lshrrev_b32 v{vHH}, 5, v{vL}")
    A(f"v_lshlrev_b32 v{vL16}, 4, v{vL}")
    A(f"s_and_b32 s{sT0}, s2, 7")
    A(f"s_lshr_b32 s{sT1}, s2, 3")
    A(f"s_and_b32 s{sRB}, s{sT0}, 1")
    A(f"s_lshl_b32 s{sRB}, s{sRB}, 3")
    A(f"s_and_b32 s{sT2}, s{sT1}, 7")
    A(f"s_add_u32 s{sRB}, s{sRB}, s{sT2}")
    A(f"s_lshr_b32 s{sCT}, s{sT0}, 1")
    A(f"s_lshl_b32 s{sCT}, s{sCT}, 2")
    A(f"s_lshr_b32 s{sT2}, s{sT1}, 3")
    A(f"s_add_u32 s{sCT}, s{sCT}, s{sT2}")
    if EXP.get("defer", 0):
        A(f"s_mov_b32 s{sDEFON}, 0")
    A(f"s_and_b32 s{sGI}, s{sW}, 3")
    A(f"s_and_b32 s{sMH}, s{sGI}, 1")
    A(f"s_lshr_b32 s{sNH}, s{sGI}, 1")
    A(f"s_mul_i32 s{sXOFF}, s{sRB}, {128*1280}")
    A(f"s_lshl_b32 s{sWOFF}, s{sCT}, 8")
    A(f"s_lshl_b32 s{sLDS1}, s{sGI}, 10")
    A(f"s_mul_hi_u32 s{sT0}, s{sCT}, 0x33333334")
    A(f"s_mul_i32 s{sT0}, s{sT0}, 5")
    A(f"s_sub_u32 s{sCT5}, s{sCT}, s{sT0}")
    A(f"v_lshrrev_b32 v{vT}, 3, v{vL}")
    A(f"s_lshl_b32 s{sT0}, s{sGI}, 3")
    A(f"v_add_u32 v{vT}, s{sT0}, v{vT}")
    A(f"v_lshrrev_b32 v{vT+1}, 1, v{vT}")
    A(f"v_xor_b32 v{vT+1}, v{vT+1}, v{vL}")
    A(f"v_and_b32 v{vT+1}, 7, v{vT+1}")
    A(f"v_lshlrev_b32 v{vT+1}, 4, v{vT+1}")
    A(f"v_mul_u32_u24 v{vT+2}, 1280, v{vT}")
    A(f"v_add_u32 v{vXD}, v{vT+2}, v{vT+1}")
    A(f"v_lshrrev_b32 v{vT}, 4, v{vL}")
    A(f"v_lshlrev_b32 v{vT+1}, 2, v{vT}")
    A(f"v_xor_b32 v{vT+1}, v{vT+1}, v{vL}")
    A(f"v_and_b32 v{vT+1}, 15, v{vT+1}")
    A(f"v_lshlrev_b32 v{vT+1}, 4, v{vT+1}")
    A(f"s_lshl_b32 s{sT0}, s{sGI}, 2")
    A(f"v_add_u32 v{vT}, s{sT0}, v{vT}")
    A(f"v_mul_u32_u24 v{vT}, 3840, v{vT}")
    A(f"v_add_u32 v{vWD}, v{vT}, v{vT+1}")
    if EXP.get("stampP"):
        A("s_memtime s[96:97]")
        A("s_memrealtime s[98:99]")
    A("s_waitcnt lgkmcnt(0)")
    if EXP.get("stampP"):
        A(f"v_writelane_b32 v{A.PROF_V}, s96, 14")
        A(f"v_writelane_b32 v{A.PROF_V}, s98, 30")
        A.stamp("", 15)
    srd(A, sX, 4, X_BYTES)
    srd(A, sWA, 6, W_BYTES)
    srd(A, sWB, sP, W_BYTES)
    srd(A, sWS, sP + 2, WS_USED)
    srd(A, sOUT, sDBG, OUT_BYTES)
    A(f"s_mov_b32 s{sDBG}, s{sDBG+2}")
    A(f"s_and_b32 s{sDBG+1}, s{sDBG+3}, 0xffff")
    A(f"s_mov_b32 s{sDBG+2}, 256")
    A(f"s_mov_b32 s{sDBG+3}, 0x20000")
    A(f"s_cmp_eq_u32 s{sCT}, 15")
    A("s_cbranch_scc1 L_nodma")
    A(f"s_cmp_lt_u32 s{sW}, 4")
    A("s_cbranch_scc1 L_nodma")
    if EXP.get("txf"):
        touch_xcd_first(A)
    for b in range(3):
        for p in range(8):
            g_dma(A, b, p)
    A(f"s_cmp_ge_u32 s{sCT}, 10")
    A("s_cbranch_scc1 L_g1n")
    A("s_branch L_g1t")
    A.label("L_nodma")
    if EXP.get("tchip", 13) in (1, 2, 3):
        touch_chip(A, {1: "xab", 2: "xa", 3: "b"}[EXP["tchip"]])
    if EXP.get("tchip") == 6:
        touch_chip_wide(A, "xa", "e")
    if EXP.get("tchip") == 7:
        touch_chip_wide(A, "ax", "e")
    A(f"s_or_b32 s{sT0}, s2, s{sW}")
    A(f"s_cmp_lg_u32 s{sT0}, 0")
    A("s_cbranch_scc1 L_nonce_done")
    A(f"s_memrealtime s[{sT4}:{sT5}]")
    A("s_waitcnt lgkmcnt(0)")
    A(f"s_or_b32 s{sT0}, s{sT4}, 1")
    A(f"v_mov_b32 v{vT}, s{sT0}")
    A(f"v_mov_b32 v{vT+1}, 0")
    A("s_mov_b64 exec, 1")
    A(f"buffer_store_dword v{vT}, v{vT+1}, s[{sDBG}:{sDBG+3}], 0 offen sc1")
    A("s_mov_b64 exec, -1")
    A.label("L_nonce_done")
    if EXP.get("cpf"):
        A(f"s_lshr_b32 s{sT1}, s2, 3")
        A(f"s_cmp_ge_u32 s{sT1}, 8")
        A("s_cbranch_scc1 L_cpf_done")
        A(f"s_cmp_lg_u32 s{sW}, {EXP['cpf'] - 1}")
        A("s_cbranch_scc1 L_cpf_done")
        A(f"s_getpc_b64 s[{sT4}:{sT5}]")
        A.label("L_cpf_pc")
        A(f"s_sub_u32 s{sT4}, s{sT4}, L_cpf_pc - {NAME}")
        A(f"s_subb_u32 s{sT5}, s{sT5}, 0")
        A(f"s_lshl_b32 s{sT1}, s{sT1}, 13")
        A(f"v_lshlrev_b32 v{vT}, 7, v{vL}")
        A(f"v_add_u32 v{vT}, s{sT1}, v{vT}")
        A(f"v_min_u32 v{vT}, L_end - {NAME}, v{vT}")
        A(f"global_load_dword v{G_P}, v{vT}, s[{sT4}:{sT5}]")
        A.label("L_cpf_done")
    if EXP.get("tchip", 13) == 15:
        touch_phase(A, 3)
        setup_phase1_reads(A)
        setup_phase2(A)
        touch_phase(A, 0)
        touch_phase(A, 1)
        touch_phase(A, 2)
    elif EXP.get("tchip", 13) == 16:
        touch_phase(A, 3)
        setup_phase1_reads(A)
        for k, f in enumerate(SETUP_P2):
            if k == 2:
                touch_phase(A, 0)
            f(A)
        touch_phase(A, 1)
        touch_phase(A, 2)
    elif EXP.get("tchip", 13) in (10, 11, 12, 13, 14):
        m = EXP.get("tchip", 13)
        if m in (13, 14):
            touch_phase(A, 3)
        if m in (10, 14):
            touch_phase(A, 0)
        setup_phase1_reads(A)
        if m not in (10, 14):
            touch_phase(A, 0)
        for k, f in enumerate(SETUP_P2):
            if k == (1 if m != 12 else 2):
                touch_phase(A, 1)
            f(A)
        touch_phase(A, 2)
    elif EXP.get("tchip") in (5, 9):
        setup_phase1_reads(A)
        touch_chip(A, "xa" if EXP["tchip"] == 5 else "xab")
        setup_phase2(A)
    else:
        setup_phase1_reads(A)
        setup_phase2(A)
    if EXP.get("tchip") == 4:
        touch_chip(A, "xa")
    if EXP.get("tchip") == 8:
        touch_chip(A, "xab")
    A.stamp("issued")
    A(f"s_cmp_eq_u32 s{sCT}, 15")
    A("s_cbranch_scc1 L_spare")
    A(f"s_cmp_ge_u32 s{sCT}, 10")
    A("s_cbranch_scc1 L_vtile")
    if prof:
        A.stamps += ["blk0 landed", "gemm0", "epi0", "gemm1", "epi1"]
        if EXP.get("stampB"):
            A.stamps += ["B10", "B12", "B14", "B16"]
        if EXP.get("stampA"):
            A.stamps += ["B0", "B2", "B4", "B6"]
    gemm(A, True, "t")
    A("s_branch L_attn")
    A.label("L_vtile")
    gemm(A, False, "n")
    A.label("L_attn")
    A.vm_q, A.lds_q = [], []
    jitter(A)
    A.stamp("attn start")
    if EXP.get("prio") == 1:
        A(f"s_cmp_lt_u32 s{sW}, 4")
        A("s_cbranch_scc1 L_prio_done")
        A("s_setprio 1")
        A.label("L_prio_done")
    rd_k01(A, 0)
    rd_k2(A, 0)
    dma_chunk(A, 3)
    A(f"v_cmp_gt_u32 vcc, 20, v{vR}")
    A(f"v_mov_b32 v{vT}, 0")
    A(f"v_mov_b32 v{vT+1}, 5120")
    A(f"v_cndmask_b32 v{vT}, v{vT}, v{vT+1}, vcc")
    for sl in range(NSLOT):
        A(f"v_add_u32 v{vV2[sl]}, v{vV+sl}, v{vT}")
    b_consts(A)
    A.lds_wait_all()
    mf16(A, SA, K01, Q01, "0")
    mf8(A, SA, K2, Q2, v(SA, 16))
    A("s_nop 7")
    A("s_nop 5")
    max16(A, vT, SA, True)
    cross_half_max(A, vT, vT + 1)
    for i in range(16):
        A(f"v_sub_f32 v{NEGM+i}, 0, v{vT}")
    A("s_nop 1")
    mf16(A, SA, K01, Q01, v(NEGM, 16))
    mf8(A, SA, K2, Q2, v(SA, 16))
    rd_k01(A, 1)
    rd_k2(A, 1)
    rd_v(A, 0, 0)
    A("s_nop 7")
    A("s_nop 3")
    NT = 64
    sched = {}
    def at(t, half, fn):
        sched.setdefault((t, half), []).append(fn)
    fb_items = [(vFL, vF3, F1B, None), (vFL2, vF4, F1A, None)]
    pos = {}
    def issue(name, items):
        def f(A):
            pos[name] = poll_issue(A, items, name)
        return f
    if EXP.get("defer", 0):
        def deferred(g):
            def f(A):
                A(f"s_cmp_eq_u32 s{sDEFON}, 0")
                A(f"s_cbranch_scc1 L_def{g}")
                A(f"buffer_store_dwordx4 {v(G_P + 4*g, 4)}, v{vDEF[(g >> 1) & 1]}, {WS}, s{sDEF+g} offen sc1")
                A.label(f"L_def{g}")
            return f
        for g in range(8):
            at(6 + (g + 1), 0, deferred(g)) if g < 7 else at(13, 1, deferred(g))
        T_PUB1B, T_POLL1B, T_CHK1B = 22, 25, 30
        T_G, T_BL, T_BU, T_WB, T_PUBB, T_C7, T_POLLB = (30, 1), 31, 39, 40, 47, 47, 51
    else:
        T_PUB1B, T_POLL1B, T_CHK1B = 6, 13, 22
        T_G, T_BL, T_BU, T_WB, T_PUBB, T_C7, T_POLLB = (22, 1), 23, 31, 42, 38, 39, 48
    at(T_POLL1B, 0, issue("f1b", fb_items))
    fo_items = [(vFL, vFA, FLAGB, sFLG)]
    pre_barrier = {T_CHK1B: lambda A: poll_check(A, fb_items, pos["f1b"], "f1b"),
                   54: lambda A: poll_check(A, fo_items, pos["fb"], "fb")}
    at(T_G[0], T_G[1], lambda A: A.vm(f"buffer_load_dword v{vG}, v{vGA}, {WS}, s{sGOFF} offen sc1", "g"))
    for i, f in enumerate(b_load_items()):
        at(T_BL + i // 2, i % 2, f)
    at(T_BU, 0, b_unit)
    at(T_PUBB, 0 if EXP.get("defer", 0) else 1, lambda A: publish(A, sPUB, FLAGB, "stb"))
    at(T_POLLB, 0, issue("fb", fo_items))
    for k in range(10):
        at(55 + k // 2, k % 2, lambda A, k=k: oc_load(A, 1, k))
    for st in range(3):
        for p in range(3):
            i = 3 * st + p
            at(T_WB + i // 2, i % 2, lambda A, st=st, p=p: dma_w_piece(A, 1, st, p))
    for st in range(3, 5):
        for p in range(3):
            i = 3 * (st - 3) + p
            at(57 + i // 2, 1 - i % 2, lambda A, st=st, p=p: dma_w_piece(A, 1, st, p))
    for c in range(2, NCH - 2):
        t0 = TPC * c - 1
        if c == 4:
            t0 = 31 if EXP.get("defer", 0) else 32
        if c == 5:
            t0 = T_C7
        for p in range(3):
            at(t0 + (p + 1) // 2, (p + 1) % 2, lambda A, c=c, p=p: dma_chunk_piece(A, c + 2, p))
    for t in range(NT):
        cur = SA if t % 2 == 0 else SB
        nxt = SB if t % 2 == 0 else SA
        if (t == 32 and not (EXP.get("stampB") or EXP.get("stampA"))) or (EXP.get("stampB") and t in (21, 24)):
            A.stamp("t%d" % t)
        if t % TPC == TPC - 2 and t + 2 < NT:
            c = (t + 2) // TPC
            if c == 1:
                A.vm_wait_all()
            if c == 3:
                A.vm_wait_all()
            A.vm_wait(("c", c))
            if t in pre_barrier:
                pre_barrier[t](A)
            A("s_barrier")
            if t == T_PUB1B:
                with Wave0(A, "pubb"):
                    publish(A, sF1, F1B)
        if EXP.get("prio") == 2 and t == 55:
            A(f"s_cmp_lt_u32 s{sW}, 4")
            A("s_cbranch_scc1 L_prio_done")
            A("s_setprio 1")
            A.label("L_prio_done")
        if EXP.get("prio") == 3 and t % 8 == 7:
            A(f"s_lshr_b32 s{sT0}, s{sW}, 2")
            A(f"s_cmp_eq_u32 s{sT0}, {(t // 8) % 2}")
            A(f"s_cbranch_scc1 L_prio_a{t}")
            A("s_setprio 0")
            A(f"s_branch L_prio_b{t}")
            A.label(f"L_prio_a{t}")
            A("s_setprio 1")
            A.label(f"L_prio_b{t}")
        if EXP.get("xbar") and t == EXP["xbar"]:
            A("s_barrier")
        if t == 63:
            A.vm_wait(("w", 1, 4))
        for f in sched.get((t, 0), []):
            f(A)
        if t + 1 < NT:
            A.lds_wait(("k01", t + 1))
            mf16(A, nxt, K01, Q01, "0" if EXP.get("m0") else v(NEGM, 16))
            if t + 2 < NT:
                rd_k01(A, t + 2)
        exps(A, cur, 0)
        if t > 0:
            A.lds_wait(("v", t - 1, 1))
            mf16(A, O, V1, P + 4, v(O, 16))
        rd_v(A, t, 1)
        exps(A, cur, 1)
        for f in sched.get((t, 1), []):
            f(A)
        if t + 1 < NT:
            A.lds_wait(("k2", t + 1))
            mf8(A, nxt, K2, Q2, v(nxt, 16))
            if t + 2 < NT:
                rd_k2(A, t + 2)
        exps(A, cur, 2)
        A.lds_wait(("v", t, 0))
        mf16(A, O, V0, P, "0" if t == 0 else v(O, 16))
        if t + 1 < NT:
            rd_v(A, t + 1, 0)
        exps(A, cur, 3)
    A.lds_wait(("v", NT - 1, 1))
    A("s_nop 1")
    mf16(A, O, V1, P + 4, v(O, 16))
    A(f"v_add_u32 v{vT+5}, 0x10000, v{vWR}")
    A(f"v_add_u32 v{vT+6}, 0x20000, v{vWR}")
    A(f"v_mov_b32 v{vT+3}, {hex(f32bits(BIG))}")
    A("s_nop 7")
    A("s_nop 3")
    A.stamp("loop end")
    row_sum(A, O)
    A(f"v_mul_f32 v{vT+2}, 0, v{O}")
    for i in range(1, 12):
        A(f"v_fma_f32 v{vT+2}, v{O+i}, 0, v{vT+2}")
    A(f"v_add_f32 v{vT+2}, v{vT+2}, v{vT+1}")
    A(f"v_cmp_lt_f32 vcc, v{vT+2}, v{vT+3}")
    A("s_nop 4")
    A("s_cmp_eq_u64 vcc, exec")
    A("s_cbranch_scc0 L_fallback")
    A.label("L_finish")
    jitter(A, True)
    A.vm_wait("g")
    finish_tile(A, O, vG, False, vOST, sQ0, 0, "sta")
    A(f"v_add_u32 v{vT+5}, 0x10000, v{vWR}")
    A(f"v_add_u32 v{vT+6}, 0x20000, v{vWR}")
    A("s_barrier")
    A.stamp("ring free") if not (EXP.get("stampB") or EXP.get("stampA")) else None
    wa = [(st, p) for st in range(2) for p in range(3)]

    def hook_b(k, kg):
        pk = EXP.get("pubk", 2)
        if k == pk:
            publish(A, sPUB, FLAGA, "sta")
        if pk <= k < pk + 6:
            st, p = wa[k - pk]
            dma_w_piece(A, 0, st, p)
    outproj(A, 1, True, hook_b)
    A.stamp("b part") if not (EXP.get("stampB") or EXP.get("stampA")) else None
    A("s_barrier")
    for st in range(2, 5):
        for p in range(3):
            dma_w_piece(A, 0, st, p)
    if EXP.get("notight"):
        fa_items = [(vFL, vFA, FLAGA, sFLG)]
        pfa = poll_issue(A, fa_items, "fa")
        poll_check(A, fa_items, pfa, "fa")
    else:
        poll_tight(A, FLAGA, sFLG, vFA, "fa")
    A.vm_wait(("w", 0, 4))
    A("s_barrier")
    A.stamp("flags a") if not (EXP.get("stampB") or EXP.get("stampA")) else None
    for k in range(10):
        oc_load(A, 0, k)
    outproj(A, 0, False)
    A.stamp("a part") if not (EXP.get("stampB") or EXP.get("stampA")) else None
    A(f"s_and_b32 s{sT0}, s{sW}, 3")
    A(f"s_mul_i32 s{sT0}, s{sT0}, 5120")
    A(f"v_add_u32 v{vT}, s{sT0}, v{vL16}")
    A(f"s_cmp_eq_u32 s{sKG}, 0")
    A("s_cbranch_scc1 L_red_a")

    def finish_out(tiles):
        A.lds_q = []
        for nt in tiles:
            A.lds(f"ds_read_b128 {v(WF+4*nt,4)}, v{vT} offset:{nt*1024}", ("r", nt))
        for nt in tiles:
            A.lds_wait(("r", nt))
            for i in range(4):
                A(f"v_add_f32 v{ACC+4*nt+i}, v{ACC+4*nt+i}, v{WF+4*nt+i}")
            A(f"v_cvt_pk_bf16_f32 v{ACC+4*nt}, v{ACC+4*nt}, v{ACC+4*nt+1}")
            A(f"v_cvt_pk_bf16_f32 v{ACC+4*nt+1}, v{ACC+4*nt+2}, v{ACC+4*nt+3}")
            A.vm(f"buffer_store_dwordx2 {v(ACC+4*nt,2)}, v{vST}, s[{sOUT}:{sOUT+3}], s{sOUTO} offen offset:{nt*32}{EXP.get('outst','')}", "st")

    A("s_nop 5")
    for nt in range(3):
        A(f"ds_write_b128 v{vT}, {v(ACC+4*nt,4)} offset:{nt*1024}")
    A("s_waitcnt lgkmcnt(0)")
    A("s_barrier")
    finish_out((3, 4))
    if prof:
        A.stamp("", len(A.stamps))
        A.stamp_flush(0, sWS, PROF, vT + 2)
    A("s_endpgm")
    A.label("L_red_a")
    A("s_nop 5")
    for nt in (3, 4):
        A(f"ds_write_b128 v{vT}, {v(ACC+4*nt,4)} offset:{nt*1024}")
    A("s_waitcnt lgkmcnt(0)")
    A("s_barrier")
    finish_out((0, 1, 2))
    A.stamp("end")
    if prof and EXP.get("dbg"):
        with Wave0(A, "dbgout"):
            A(f"v_subrev_u32 v{vT}, s{sNONCE}, v{A.PROF_V}")
            A(f"v_subrev_u32 v{vT+1}, 16, v{vL}")
            A(f"v_lshlrev_b32 v{vT+1}, 2, v{vT+1}")
            if EXP["dbg"] == 2:
                A(f"v_sub_u32 v{vT}, 0x100000, v{vT}")
            A("s_mov_b32 exec_lo, 0xfffe0000")
            A("s_mov_b32 exec_hi, 0")
            A(f"buffer_atomic_umax v{vT}, v{vT+1}, s[{sDBG}:{sDBG+3}], 0 offen")
            A("s_mov_b64 exec, -1")
    A.stamp_flush(0, sWS, PROF, vT)
    A("s_endpgm")
    fallback(A)
    spare(A)
    A.label("L_end")
    A("s_endpgm")
    kernel_footer(A, NAME, NV, 100 if EXP.get("jit") else 96)
    gen.stamps = getattr(A, "stamps", [])
    if prof and EXP.get("stampP"):
        assert len(gen.stamps) == 14, len(gen.stamps)
        gen.stamps = gen.stamps + ["pre-kernarg", "kernarg"]
    return A.text()

if __name__ == "__main__":
    print(gen())
```

```python
from asmlib import *
from layout2 import *

NAME = "gated_mix__softmax_full_mha__sliding_local_dilated__prompt_kernel"
DOC = """; ---------------------------------------------------------------------------------------------
;
;
; ---------------------------------------------------------------------------------------------
"""
EXP = {}
STAGE, NST, NB = 32768, 5, 20
SLOT = CHB
NSLOT = 4
TPC = CH // 32
NCH = S // CH
ONES = 4 * SLOT
PAT_UNITS = 336
assert ONES + PAT_UNITS * 16 <= 98304
WBASE = ONES + 672 * 16
WSTG = 20480
LDS_BYTES = 163840
WB_OFF = [WBASE, WBASE + WSTG, WBASE + 2 * WSTG, 0, SLOT]
WA_OFF = [2 * SLOT, 3 * SLOT, WBASE, WBASE + WSTG, WBASE + 2 * WSTG]
assert WBASE + 3 * WSTG <= LDS_BYTES
BIG = 2.0 ** 64
SPIN_MAX = 1 << 16
sWS, sOUT = 8, 12
sW, sNONCE = 16, 17
sH, sQB, sPA, sLDSW, sLDSW2, sWSRC, sOCB, sFLG, sPUB, sOUTO, sKG, sQ0, sBT, sQT = range(18, 32)
sT0, sT1, sT2, sT3, sT4, sT5 = range(32, 38)
sM = 38
sLO20 = 40
sCNT = 42
sP2L = 43
sDBG = 44
sBA = 48
sVH = 57
sX, sWA, sWB = 60, 64, 68
sRB, sCT, sMH, sNH, sXOFF, sWOFF, sLDS1, sCT5, sTP, sB16, sQS, sGI = range(72, 84)
sQOFF, sQOFF2, sGOFF, sF1 = 88, 89, 90, 91
sDEF, sDEFON = 60, 84
vDEF = [241, 234]
sP = 92
vL, vR, vHH = 1, 2, 3
vK01, vK2, vV = 4, 8, 12
vL16, vG, vGB, vFL = 16, 17, 18, 19
vT = 20
SA, SB, NEGM, O, P = 28, 44, 60, 76, 92
Q01, Q2, K01, K2, V0, V1 = 100, 104, 108, 112, 116, 120
BQ01, BQ2, BK01, BK2, BKP01, BKP2 = 124, 128, 132, 136, 140, 144
BV0, BV1, BVP, BS0, BS1, BO, BP = 148, 152, 156, 160, 176, 192, 208
vBA = 220
vW0, vW1, vW2, vOC, vWR, vST, vFA = 225, 226, 227, 228, 229, 230, 231
vF1, vF2, vF3, vF4 = 232, 233, 234, 241
vV2 = [232, 233, 236, 237]
vFL2 = 235
vQA, vQA2, vGA = 236, 237, 238
vOST = 252
vXD, vWD = 242, 243
vCB, vCS = 244, 247
vCT = 250
NV = 256
OCB, OCA, ACC, WF = 124, 164, 204, 28
G_ACC = 124
G_F = 28
G_P = 188
vA16 = 76
vXR, vWR1 = 106, 118
WS = f"s[{sWS}:{sWS+3}]"


def st1():
    return " sc1"


def publish(A, soff_reg, base, tag=None):
    if tag is not None:
        A.vm_wait(tag)
    A(f"v_mov_b32 v{vT}, s{sNONCE}")
    A(f"v_mov_b32 v{vT+1}, 0")
    A(f"s_add_u32 s{sT0}, s{soff_reg}, {base}")
    A("s_mov_b64 exec, 1")
    A.vm(f"buffer_store_dword v{vT}, v{vT+1}, {WS}, s{sT0} offen sc1", "pub")
    A("s_mov_b64 exec, -1")


_jit_n = [0]
def jitter(A, per_wave=False):
    if not EXP.get("jit"):
        return
    _jit_n[0] += 1
    k = _jit_n[0]
    A(f"s_mul_i32 s96, s2, {(2654435761 * (k + EXP['jit'])) & 0x7fffffff | 1}")
    if per_wave:
        A(f"s_mul_i32 s97, s{sW}, {(40503 * (k + 7)) | 1}")
        A("s_add_u32 s96, s96, s97")
    A("s_lshr_b32 s96, s96, 20")
    A("s_and_b32 s96, s96, 15")
    A("s_cmp_lt_u32 s96, 12")
    A(f"s_cbranch_scc1 L_jit{k}_done")
    A("s_and_b32 s96, s96, 3")
    A("s_add_u32 s96, s96, 1")
    A.label(f"L_jit{k}")
    A("s_sleep 32")
    A("s_sub_u32 s96, s96, 1")
    A("s_cmp_lg_u32 s96, 0")
    A(f"s_cbranch_scc1 L_jit{k}")
    A.label(f"L_jit{k}_done")


class Wave0:
    def __init__(self, A, name):
        self.A, self.name = A, name
    def __enter__(self):
        A = self.A
        A(f"s_cmp_lg_u32 s{sW}, 0")
        A(f"s_cbranch_scc1 L_w0_{self.name}")
        self.saved = (list(A.vm_q), dict(A.vm_counts or {}))
    def __exit__(self, *a):
        A = self.A
        A.vm_q, A.vm_counts = self.saved[0], (self.saved[1] or None)
        A.label(f"L_w0_{self.name}")


def _poll_loads(A, items):
    for (vdst, voff, base, soff_reg) in items:
        if soff_reg is None:
            A(f"s_mov_b32 s{sT0}, {base}")
        else:
            A(f"s_add_u32 s{sT0}, s{soff_reg}, {base}")
        A(f"buffer_load_dword v{vdst}, v{voff}, {WS}, s{sT0} offen sc1")


def poll_issue(A, items, name):
    with Wave0(A, name + "_i"):
        _poll_loads(A, items)
    return A.vm_pos("L")


def poll_check(A, items, pos, name, inv=False, drain=False):
    def compare():
        for i, (vdst, _, _, _) in enumerate(items):
            if i == 0:
                A(f"v_cmp_eq_u32 vcc, s{sNONCE}, v{vdst}")
            else:
                A(f"v_cmp_eq_u32 s[{sT4}:{sT5}], s{sNONCE}, v{vdst}")
                A("s_nop 3")
                A(f"s_and_b64 vcc, vcc, s[{sT4}:{sT5}]")
        A("s_nop 3")
        A("s_cmp_eq_u64 vcc, exec")
    with Wave0(A, name + "_c"):
        A(f"s_waitcnt vmcnt({A.vm_pos('L') - pos})")
        compare()
        A(f"s_cbranch_scc1 L_{name}_ok")
        A(f"s_mov_b32 s{sCNT}, 0")
        A.label(f"L_{name}_spin")
        A("s_sleep 2")
        _poll_loads(A, items)
        A(f"s_add_u32 s{sCNT}, s{sCNT}, 1")
        A(f"s_cmp_ge_u32 s{sCNT}, {SPIN_MAX}")
        A(f"s_cbranch_scc1 L_{name}_ok")
        A("s_waitcnt vmcnt(0)")
        compare()
        A(f"s_cbranch_scc0 L_{name}_spin")
        A.label(f"L_{name}_ok")
        if inv:
            A("buffer_inv sc1")
        if drain:
            A("s_waitcnt vmcnt(0)")


def poll_tight(A, base, soff_reg, voff, name):
    regs = [vFL, vFL2, vT + 2, vT + 3]
    with Wave0(A, name):
        A(f"s_add_u32 s{sT1}, s{soff_reg}, {base}")
        for r in regs:
            A(f"buffer_load_dword v{r}, v{voff}, {WS}, s{sT1} offen sc1")
            A("s_sleep 1")
        A(f"s_mov_b32 s{sCNT}, 0")
        A.label(f"L_{name}_spin")
        for r in regs:
            A("s_waitcnt vmcnt(3)")
            A(f"v_cmp_eq_u32 vcc, s{sNONCE}, v{r}")
            A("s_nop 3")
            A("s_cmp_eq_u64 vcc, exec")
            A(f"s_cbranch_scc1 L_{name}_ok")
            A(f"buffer_load_dword v{r}, v{voff}, {WS}, s{sT1} offen sc1")
        A(f"s_add_u32 s{sCNT}, s{sCNT}, 1")
        A(f"s_cmp_lt_u32 s{sCNT}, {SPIN_MAX}")
        A(f"s_cbranch_scc1 L_{name}_spin")
        A.label(f"L_{name}_ok")


def nonce_issue(A):
    A(f"v_mov_b32 v{vT}, 0")
    A.vm(f"buffer_load_dword v{vFL}, v{vT}, s[{sDBG}:{sDBG+3}], 0 offen sc1", "nonce")


def nonce_check(A, name):
    A.vm_wait("nonce")
    A("s_nop 0")
    A(f"v_readfirstlane_b32 s{sNONCE}, v{vFL}")
    nonce_verify(A, name)


def nonce_verify(A, name):
    A("s_nop 3")
    A(f"s_cmp_lg_u32 s{sNONCE}, 0")
    A(f"s_cbranch_scc1 L_{name}_ok")
    A(f"s_mov_b32 s{sCNT}, 0")
    A.label(f"L_{name}_spin")
    A("s_sleep 1")
    A(f"v_mov_b32 v{vT}, 0")
    A(f"buffer_load_dword v{vFL}, v{vT}, s[{sDBG}:{sDBG+3}], 0 offen sc1")
    A(f"s_add_u32 s{sCNT}, s{sCNT}, 1")
    A(f"s_cmp_ge_u32 s{sCNT}, {SPIN_MAX}")
    A(f"s_cbranch_scc1 L_{name}_ok")
    A("s_waitcnt vmcnt(0)")
    A(f"v_readfirstlane_b32 s{sNONCE}, v{vFL}")
    A("s_nop 3")
    A(f"s_cmp_eq_u32 s{sNONCE}, 0")
    A(f"s_cbranch_scc1 L_{name}_spin")
    A.label(f"L_{name}_ok")


def g_dma(A, b, p):
    kb, st, t = b % 10, b % NST, p & 3
    A(f"s_add_u32 m0, s{sLDS1}, {st*STAGE + (p >> 2)*16384 + 4096*t}")
    if p < 4:
        A(f"s_add_u32 s{sT0}, s{sXOFF}, {kb*128 + t*40960}")
        A.vm(f"buffer_load_dwordx4 v{vXD}, s[{sX}:{sX+3}], s{sT0} offen lds", ("d", b))
    else:
        sw = sWA if b < 10 else sWB
        A(f"s_add_u32 s{sT0}, s{sWOFF}, {(kb*64 + 16*t) * 3840}")
        A.vm(f"buffer_load_dwordx4 v{vWD}, s[{sw}:{sw+3}], s{sT0} offen lds", ("d", b))


def g_acc(mt, nt):
    return G_ACC + 32 * mt + 16 * nt


def g_frag(s_, i):
    return G_F + 16 * (s_ % 3) + 4 * i


def g_read_list(s_):
    b, ks = divmod(s_, 4)
    st = b % NST
    base, off = st >> 1, (st & 1) * STAGE
    out = []
    for mt in range(2):
        out.append(f"ds_read_b128 {v(g_frag(s_, mt),4)}, v{vXR + 3*ks + base} offset:{off + mt*4096}")
    for nt in range(2):
        for q in range(2):
            out.append(f"ds_read_b64_tr_b16 {v(g_frag(s_, 2+nt)+2*q,2)}, v{vWR1 + 3*nt + base} offset:{off + 16384 + ks*4096 + q*1024}")
    return out


def g_reads(A, s_):
    for ins in g_read_list(s_):
        A.lds(ins, ("f", s_))


def g_step(A, s_, last, tr, extra=None):
    b, ks = divmod(s_, 4)
    A.lds_wait(("f", s_))
    nxt = g_read_list(s_ + 2) if s_ + 2 <= last else []
    for i, (mt, nt) in enumerate(((0, 0), (0, 1), (1, 0), (1, 1))):
        d = g_acc(mt, nt)
        c = "0" if (s_ % 40 == 0) else v(d, 16)
        x, w = g_frag(s_, mt), g_frag(s_, 2 + nt)
        a, bb = (w, x) if tr else (x, w)
        A(f"v_mfma_f32_32x32x16_bf16 {v(d,16)}, {v(a,4)}, {v(bb,4)}, {c}")
        for ins in nxt[2*i:2*i+2]:
            A.lds(ins, ("f", s_ + 2))
        if extra and i == 3:
            extra()


def epi_prepare(A, isb, tr, n):
    A(f"s_lshl_b32 s{sTP}, s{sRB}, 7")
    A(f"s_lshl_b32 s{sT0}, s{sMH}, 6")
    A(f"s_add_u32 s{sTP}, s{sTP}, s{sT0}")
    if isb:
        A(f"s_lshr_b32 s{sTP}, s{sTP}, 1")
    if tr:
        A(f"s_cmp_lt_u32 s{sCT}, 5")
        A(f"s_mov_b32 s{sT1}, {QB if isb else QA}")
        A(f"s_cselect_b32 s{sB16}, s{sT1}, {KB if isb else KA}")
        A(f"s_mov_b32 s{sT1}, {hex(f32bits(QSCALE))}")
        A(f"s_cselect_b32 s{sQS}, s{sT1}, 1.0")
        A(f"s_lshl_b32 s{sT0}, s{sCT5}, 1")
        A(f"s_add_u32 s{sT0}, s{sT0}, s{sNH}")
        A(f"s_lshl_b32 s{sT0}, s{sT0}, 18")
        A(f"s_add_u32 s{sB16}, s{sB16}, s{sT0}")
        A(f"s_lshl_b32 s{sT0}, s{sTP}, 4")
        A(f"s_add_u32 s{sB16}, s{sB16}, s{sT0}")
        A(f"v_lshlrev_b32 v{vA16}, 15, v{vHH}")
        if isb:
            A(f"v_and_b32 v{vT}, 1, v{vR}")
            A(f"v_lshl_add_u32 v{vA16}, v{vT}, 14, v{vA16}")
            A(f"v_lshrrev_b32 v{vT}, 1, v{vR}")
            A(f"v_lshl_add_u32 v{vA16}, v{vT}, 4, v{vA16}")
        else:
            A(f"v_lshl_add_u32 v{vA16}, v{vR}, 4, v{vA16}")
        A(f"v_mov_b32 v{vT+2}, s{sQS}")
        A(f"v_mov_b32 v{vT+3}, s{sQS}")
    else:
        A(f"v_mul_u32_u24 v{vT+1}, 320, v{vHH}")
        A(f"s_lshl_b32 s{sT0}, s{sCT5}, 7")
        A(f"s_lshl_b32 s{sT1}, s{sNH}, 6")
        A(f"s_add_u32 s{sT0}, s{sT0}, s{sT1}")
        for nt in range(2):
            A(f"v_add_u32 v{vT+2}, s{sT0}, v{vR}")
            if nt:
                A(f"v_add_u32 v{vT+2}, 32, v{vT+2}")
            A(f"v_mul_u32_u24 v{vT+3}, 3277, v{vT+2}")
            A(f"v_lshrrev_b32 v{vT+3}, 16, v{vT+3}")
            A(f"v_mul_u32_u24 v{vT+4}, 20, v{vT+3}")
            A(f"v_sub_u32 v{vT+4}, v{vT+2}, v{vT+4}")
            A(f"v_mul_u32_u24 v{vT+3}, {VH}, v{vT+3}")
            A(f"v_lshl_add_u32 v{vT+3}, v{vT+4}, 4, v{vT+3}")
            A(f"v_add_u32 v{vA16+nt}, v{vT+3}, v{vT+1}")
        A(f"s_lshr_b32 s{sT0}, s{sTP}, 4")
        A(f"s_mul_i32 s{sT0}, s{sT0}, 640")
        A(f"s_add_u32 s{sB16}, s{sT0}, {VB if isb else VA}")


def epi_group(A, isb, tr, g, tag, defer=False):
    reg = G_P + 4 * g
    mt, nt, u = g >> 2, (g >> 1) & 1, g & 1
    src = g_acc(mt, nt)
    if tr:
        for jj in range(2):
            a = src + 4 * (2 * u + jj)
            A(f"v_pk_mul_f32 {v(a,2)}, {v(a,2)}, v[{vT+2}:{vT+3}]")
            A(f"v_pk_mul_f32 {v(a+2,2)}, {v(a+2,2)}, v[{vT+2}:{vT+3}]")
            A(f"v_cvt_pk_bf16_f32 v{reg+2*jj}, v{a}, v{a+1}")
            A(f"v_cvt_pk_bf16_f32 v{reg+2*jj+1}, v{a+2}, v{a+3}")
        A(f"s_add_u32 s{sT1}, s{sB16}, {(4*nt + 2*u)*PLANE + mt*(256 if isb else 512)}")
        A("s_nop 0")
        A(f"v_permlane32_swap_b32 v{reg}, v{reg+2}")
        A(f"v_permlane32_swap_b32 v{reg+1}, v{reg+3}")
        if defer:
            A(f"s_mov_b32 s{sDEF+g}, s{sT1}")
        else:
            A.vm(f"buffer_store_dwordx4 {v(reg,4)}, v{vA16}, {WS}, s{sT1} offen sc1", tag)
    else:
        if isb:
            for j in range(4):
                A(f"v_cvt_pk_bf16_f32 v{reg+j}, v{src+4*j+u}, v{src+4*j+u+2}")
            A(f"s_add_u32 s{sT1}, s{sB16}, {mt*640 + u*64*640}")
        else:
            for p in range(4):
                A(f"v_cvt_pk_bf16_f32 v{reg+p}, v{src+8*u+2*p}, v{src+8*u+2*p+1}")
            A(f"s_add_u32 s{sT1}, s{sB16}, {(2*mt + u)*640}")
        if defer:
            A(f"s_mov_b32 s{sDEF+g}, s{sT1}")
        else:
            A.vm(f"buffer_store_dwordx4 {v(reg,4)}, v{vA16+nt}, {WS}, s{sT1} offen sc1", tag)


def acquire_items():
    return [(vFL, vF1, F1A, None), (vFL2, vF2, F1A, None)]


def p2_load_items():
    def q01(A):
        A.vm(f"buffer_load_dwordx4 {v(Q01,4)}, v{vQA}, {WS}, s{sQOFF} offen sc1", "q")
    def q2(A):
        A(f"v_mov_b32 v{Q2}, 0")
        A(f"v_mov_b32 v{Q2+1}, 0")
        A("s_mov_b32 exec_hi, 0")
        A.vm(f"buffer_load_dwordx2 {v(Q2,2)}, v{vQA2}, {WS}, s{sQOFF2} offen sc1", "q")
        A("s_mov_b32 exec_hi, -1")
    first = [lambda A, p=p: dma_chunk_piece(A, 0, p) for p in range(3)] + [q01, q2]
    rest = [lambda A, c=c, p=p: dma_chunk_piece(A, c, p) for c in (1, 2) for p in range(3)]
    return first, rest


def gemm(A, tr, n):
    A.comment("---- phase 1, waves 0-3: compute branch A, then load and store")
    A.vm_q, A.lds_q = [], []
    if EXP.get("twa") == 99:
        touch_a(A, n)
    if EXP.get("twb") == 99:
        touch_wb(A, n)
    if EXP.get("tcb") == 99:
        touch_chip_b(A, n)
    if EXP.get("tlb"):
        epi_prepare(A, False, tr, n)
        A(f"buffer_store_dword v{vL}, v{vA16}, {WS}, s{sB16} offen sc1")
    A("s_barrier")
    A.stamp("blk0 landed", 2)
    g_reads(A, 0)
    g_reads(A, 1)
    for s_ in range(40):
        b, ks = divmod(s_, 4)
        if ks == 2:
            A("s_barrier")
            if EXP.get("stampA") and b in (0, 2, 4, 6):
                A.stamp("", {0: 7, 2: 8, 4: 9, 6: 10}[b])
        if EXP.get("twa") is not None and s_ == EXP["twa"]:
            touch_a(A, n)
        if s_ == EXP.get("twb", 77):
            touch_wb(A, n)
        if EXP.get("tcb") is not None and s_ == EXP["tcb"]:
            touch_chip_b(A, n)
        if EXP.get("tcw") is not None and s_ == EXP["tcw"]:
            touch_chip_wide(A, "b", n)
        if s_ == 22:
            nonce_issue(A)
        if s_ == 30:
            nonce_check(A, f"nonce0{n}")
        g_step(A, s_, 39, tr)
    A.stamp("gemm0", 3)
    jitter(A, True)
    slices = [int(ch) for ch in str(EXP.get("sl", "8"))]
    assert sum(slices) == 8
    PUB, POLL, CHK = EXP.get("pub", 12), EXP.get("poll", 15), 18
    for p in range(8):
        g_dma(A, 13, p)
    epi_prepare(A, False, tr, n)
    A("s_nop 7")
    A("s_nop 3")
    done = 0
    for b in range(10, 19):
        k = slices[b - 10] if b - 10 < len(slices) else 0
        for g in range(done, done + k):
            epi_group(A, False, tr, g, "sa")
        if k and done + k == 8:
            A.stamp("epi0", 4)
        done += k
        if b == CHK:
            poll_check(A, acquire_items(), pos_f1, f"f1{n}")
        if b + 1 >= 13:
            A.vm_wait(("d", b + 1))
        A("s_barrier")
        if EXP.get("stampB") and b in (10, 12, 14, 16):
            A.stamp("", {10: 7, 12: 8, 14: 9, 16: 10}[b])
        if b == PUB - 1:
            A.vm_wait("sa")
        if b + 4 < NB:
            for p in range(8):
                g_dma(A, b + 4, p)
        if b == PUB:
            with Wave0(A, f"puba{n}"):
                publish(A, sF1, F1A)
        if b == POLL:
            pos_f1 = poll_issue(A, acquire_items(), f"f1{n}")
    first, rest = p2_load_items()
    for f in first + rest:
        f(A)
    A.stamp("gemm1", 5)
    pattern_fill(A, n)
    A.stamp("epi1", 6)
    A.vm_wait("q", ("c", 0))
    A("s_barrier")
    A("s_branch L_attn")
    A.label(f"L_g1{n}")
    A.vm_set([(("d", b), "D") for b in range(3) for _ in range(8)])
    A.lds_q = []
    A.vm_wait(("d", 0))
    A("s_barrier")
    A.stamp("issued", 1)
    A.stamp("blk0 landed", 2)
    for p in range(8):
        g_dma(A, 3, p)
    for b in range(10):
        if b == 0:
            setup_phase1_reads(A)
        if 1 <= b <= 5:
            SETUP_P2[b - 1](A)
        if b == 6 and EXP.get("tlb"):
            if EXP.get("tlb"):
                epi_prepare(A, True, tr, n)
                A(f"buffer_store_dword v{vL}, v{vA16}, {WS}, s{sB16} offen sc1")
                A(f"s_lshl_b32 s{sT0}, s{sQ0}, 4")
                A(f"s_add_u32 s{sT0}, s{sT0}, {OC}")
                A(f"buffer_store_dword v{vL}, v{vOST}, {WS}, s{sT0} offen sc1")
                A(f"s_lshl_b32 s{sT0}, s{sBT}, 4")
                A(f"s_add_u32 s{sT0}, s{sT0}, {OC + 80*32768}")
                A(f"buffer_store_dword v{vL}, v{vOST+1}, {WS}, s{sT0} offen sc1")
        A.vm_wait(("d", b + 1))
        A("s_barrier")
        if EXP.get("stampA") and b in (0, 2, 4, 6):
            A.stamp("", {0: 7, 2: 8, 4: 9, 6: 10}[b])
        if b + 4 <= 12:
            for p in range(8):
                g_dma(A, b + 4, p)
    A.stamp("gemm0", 3)
    A.stamp("epi0", 4)
    if EXP.get("pprio", 1):
        A("s_setprio 1")
    g_reads(A, 40)
    g_reads(A, 41)
    pend = []
    for s_ in range(40, 80):
        b, ks = divmod(s_, 4)
        if ks == 2 and b + 1 < NB:
            if b + 1 <= 12:
                A.vm_wait(("d", b + 1))
            A("s_barrier")
            if EXP.get("stampB") and b in (10, 12, 14, 16):
                A.stamp("", {10: 7, 12: 8, 14: 9, 16: 10}[b])
            if b == 18:
                first, rest = p2_load_items()
                pend = first + [nonce_issue]
        def extra():
            for _ in range(2):
                if pend:
                    pend.pop(0)(A)
        g_step(A, s_, 79, tr, extra)
    assert not pend
    if EXP.get("pprio", 1):
        A("s_setprio 0")
    A.stamp("gemm1", 5)
    jitter(A, True)
    A.vm_wait("q", "nonce", ("c", 0))
    A("s_nop 0")
    A(f"v_readfirstlane_b32 s{sNONCE}, v{vFL}")
    A("s_barrier")
    for f in rest:
        f(A)
    epi_prepare(A, True, tr, n)
    A("s_nop 7")
    A("s_nop 3")
    defer = bool(EXP.get("defer", 0))
    for g in range(8):
        epi_group(A, True, tr, g, "sb", defer)
    if defer:
        A(f"v_mov_b32 v{vDEF[0]}, v{vA16}")
        A(f"v_mov_b32 v{vDEF[1]}, v{vA16 + (0 if tr else 1)}")
        A(f"s_mov_b32 s{sDEFON}, 1")
    A.stamp("epi1", 6)
    nonce_verify(A, f"nonce1{n}")


def spare(A):
    sWO, sG = sWA, sWB
    A.label("L_spare")
    A.vm_q, A.lds_q = [], []
    jitter(A)
    jitter(A)
    if EXP.get("spb", 0):
        A(f"s_mul_i32 s{sT0}, s{sRB}, 153600")
        A(f"s_lshl_b32 s{sT1}, s{sW}, 10")
        A(f"s_add_u32 s{sT0}, s{sT0}, s{sT1}")
        A(f"s_add_u32 s{sT2}, s{sRB}, 1")
        A(f"s_mul_i32 s{sT2}, s{sT2}, 153600")
        for i in range(19):
            A(f"s_add_u32 s{sT1}, s{sT0}, {8192*i}")
            if i == 18:
                A(f"s_sub_u32 s{sT2}, s{sT2}, 1024")
                A(f"s_min_u32 s{sT1}, s{sT1}, s{sT2}")
            A(f"buffer_load_dwordx4 {v(124 + 4*i, 4)}, v{vL16}, s[{sWB}:{sWB+3}], s{sT1} offen")
    A("s_load_dwordx2 s[4:5], s[0:1], 16")
    A("s_load_dwordx2 s[6:7], s[0:1], 40")
    A(f"s_load_dwordx2 s[{sP}:{sP+1}], s[0:1], 48")
    A("s_waitcnt lgkmcnt(0)")
    A(f"s_cmp_lt_u32 s{sRB}, 8")
    A("s_cbranch_scc1 L_sp_a")
    A("s_mov_b32 s4, s6")
    A("s_mov_b32 s5, s7")
    A.label("L_sp_a")
    srd(A, sWO, 4, WO_BYTES)
    srd(A, sG, sP, 1280)
    A(f"s_and_b32 s{sT1}, s{sRB}, 7")
    A(f"s_mul_i32 s{sT1}, s{sT1}, {80*1280}")
    A(f"s_lshl_b32 s{sLDS1}, s{sW}, 10")
    A(f"s_add_u32 s{sT1}, s{sT1}, s{sLDS1}")
    for t in range(13):
        if t == 12:
            A(f"s_cmp_ge_u32 s{sW}, 4")
            A("s_cbranch_scc1 L_sp_dma_done")
        A(f"s_add_u32 m0, s{sLDS1}, {8192*t}")
        A(f"s_add_u32 s{sT0}, s{sT1}, {8192*t}")
        A(f"buffer_load_dwordx4 v{vL16}, s[{sWO}:{sWO+3}], s{sT0} offen lds")
    A.label("L_sp_dma_done")
    GW = 102400
    A(f"s_cmp_ge_u32 s{sW}, 2")
    A("s_cbranch_scc1 L_sp_gw_done")
    A(f"s_add_u32 m0, s{sLDS1}, {GW}")
    A("s_nop 0")
    A(f"buffer_load_dwordx4 v{vL16}, s[{sG}:{sG+3}], s{sLDS1} offen lds")
    A.label("L_sp_gw_done")
    A.stamp("", 2)
    XG = 28
    A(f"v_lshrrev_b32 v{vT+1}, 2, v{vL}")
    A(f"s_lshl_b32 s{sT0}, s{sW}, 4")
    A(f"v_add_u32 v{vT+1}, s{sT0}, v{vT+1}")
    A(f"v_and_b32 v{vT+2}, 3, v{vL}")
    A(f"v_lshlrev_b32 v{vT+2}, 4, v{vT+2}")
    A(f"v_mul_u32_u24 v{vT+3}, 1280, v{vT+1}")
    A(f"v_add_u32 v{vT+3}, v{vT+3}, v{vT+2}")
    A(f"v_mov_b32 v{vT+4}, 0")
    for i in range(20):
        A(f"buffer_load_dwordx4 {v(XG+4*i,4)}, v{vT+3}, s[{sX}:{sX+3}], s{sXOFF} offen offset:{i*64}")
    A(f"v_add_u32 v{vT+2}, {GW}, v{vT+2}")
    A("s_waitcnt vmcnt(0)")
    A("s_barrier")
    A.lds_q = []
    GG = 108
    for i in range(3):
        A.lds(f"ds_read_b128 {v(GG+4*i,4)}, v{vT+2} offset:{i*64}", ("gw", i))
    for i in range(20):
        if i + 3 < 20:
            A.lds(f"ds_read_b128 {v(GG+4*((i+3) % 4),4)}, v{vT+2} offset:{(i+3)*64}", ("gw", i + 3))
        A.lds_wait(("gw", i))
        for k in range(4):
            A(f"v_dot2_f32_bf16 v{vT+4}, v{XG+4*i+k}, v{GG+4*(i % 4)+k}, v{vT+4}")
    A("s_nop 2")
    A(f"v_add_f32_dpp v{vT+4}, v{vT+4}, v{vT+4} quad_perm:[1,0,3,2] row_mask:0xf bank_mask:0xf")
    A("s_nop 1")
    A(f"v_add_f32_dpp v{vT+4}, v{vT+4}, v{vT+4} quad_perm:[2,3,0,1] row_mask:0xf bank_mask:0xf")
    A(f"v_mul_f32 v{vT+4}, {hex(f32bits(-LOG2E))}, v{vT+4}")
    A(f"v_exp_f32 v{vT+4}, v{vT+4}")
    A("s_nop 0")
    A(f"v_add_f32 v{vT+4}, 1.0, v{vT+4}")
    A(f"v_rcp_f32 v{vT+4}, v{vT+4}")
    A(f"s_lshl_b32 s{sT0}, s{sRB}, 9")
    A(f"s_add_u32 s{sT0}, s{sT0}, {GATE}")
    A(f"v_lshlrev_b32 v{vT+1}, 2, v{vT+1}")
    A("s_mov_b32 exec_lo, 0x11111111")
    A("s_mov_b32 exec_hi, 0x11111111")
    A(f"buffer_store_dword v{vT+4}, v{vT+1}, {WS}, s{sT0} offen sc1")
    A("s_mov_b64 exec, -1")
    A.stamp("", 3)
    A.stamp("", 4)
    A(f"v_bfe_u32 v{vT+1}, v{vL}, 2, 2")
    A(f"v_mul_u32_u24 v{vT+1}, 1280, v{vT+1}")
    A(f"v_lshrrev_b32 v{vT+2}, 4, v{vL}")
    A(f"v_lshl_add_u32 v{vT+1}, v{vT+2}, 5, v{vT+1}")
    A(f"v_and_b32 v{vT+2}, 3, v{vL}")
    A(f"v_lshl_add_u32 v{vT+1}, v{vT+2}, 3, v{vT+1}")
    A(f"s_mul_i32 s{sT3}, s{sRB}, {10*10240}")
    A(f"s_add_u32 s{sT3}, s{sT3}, {WOT}")
    A(f"s_mov_b32 s{sT1}, s{sW}")
    A.label("L_sp_loop")
    A(f"s_mul_hi_u32 s{sT2}, s{sT1}, 0x1999999a")
    A(f"s_mul_i32 s{sT0}, s{sT2}, 10")
    A(f"s_sub_u32 s{sT0}, s{sT1}, s{sT0}")
    A(f"s_mul_hi_u32 s{sCNT}, s{sT2}, 0x33333334")
    A(f"s_mul_i32 s{sT4}, s{sCNT}, 5")
    A(f"s_sub_u32 s{sT4}, s{sT2}, s{sT4}")
    A(f"s_mul_i32 s{sCNT}, s{sCNT}, 40")
    A(f"s_lshl_b32 s{sT5}, s{sT4}, 3")
    A(f"s_cmp_ge_u32 s{sT4}, 2")
    A(f"s_cselect_b32 s{sM}, 4, 0")
    A(f"s_add_u32 s{sT5}, s{sT5}, s{sM}")
    A(f"s_cmp_eq_u32 s{sT4}, 4")
    A(f"s_cselect_b32 s{sT5}, 16, s{sT5}")
    A(f"s_cselect_b32 s{sM}, 20, 4")
    A(f"s_add_u32 s{sT5}, s{sT5}, s{sCNT}")
    A(f"s_mul_i32 s{sT4}, s{sT5}, 1280")
    A(f"s_mul_i32 s{sM}, s{sM}, 1280")
    A(f"s_lshl_b32 s{sT5}, s{sT0}, 7")
    A(f"s_add_u32 s{sT4}, s{sT4}, s{sT5}")
    A(f"v_add_u32 v{vT+3}, s{sT4}, v{vT+1}")
    A(f"v_add_u32 v{vT+4}, s{sM}, v{vT+3}")
    A(f"ds_read_b64_tr_b16 v[{XG}:{XG+1}], v{vT+3}")
    A(f"ds_read_b64_tr_b16 v[{XG+2}:{XG+3}], v{vT+4}")
    A(f"s_mul_i32 s{sT4}, s{sT2}, 10240")
    A(f"s_lshl_b32 s{sT5}, s{sT0}, 10")
    A(f"s_add_u32 s{sT4}, s{sT4}, s{sT5}")
    A(f"s_add_u32 s{sT4}, s{sT4}, s{sT3}")
    A("s_waitcnt lgkmcnt(0)")
    A(f"buffer_store_dwordx4 {v(XG,4)}, v{vL16}, {WS}, s{sT4} offen sc1")
    A(f"s_add_u32 s{sT1}, s{sT1}, 8")
    A(f"s_cmp_lt_u32 s{sT1}, 100")
    A("s_nop 1")
    A("s_cbranch_scc1 L_sp_loop")
    A.stamp("", 5)
    nonce_issue(A)
    nonce_check(A, "noncesp")
    A("s_waitcnt vmcnt(0)")
    A("s_barrier")
    A.vm_q = []
    with Wave0(A, "pubsp"):
        publish(A, sF1, F1A)
    pos = poll_issue(A, acquire_items(), "f1sp")
    poll_check(A, acquire_items(), pos, "f1sp")
    A("s_barrier")
    A.vm_q = []
    first, rest = p2_load_items()
    for f in first + rest:
        f(A)
    A(f"s_cmp_ge_u32 s{sW}, 4")
    A("s_cbranch_scc1 L_sp_nopat")
    pattern_fill(A, "sp")
    A.label("L_sp_nopat")
    A.vm_wait("q", ("c", 0))
    A("s_barrier")
    for i in (6,) + ((7, 8, 9, 10) if (EXP.get("stampB") or EXP.get("stampA")) else ()):
        A.stamp("", i)
    A("s_branch L_attn")


def mf16(A, d, a, b, c):
    A(f"v_mfma_f32_32x32x16_bf16 {v(d,16)}, {v(a,4)}, {v(b,4)}, {c}")


def mf8(A, d, a, b, c):
    A(f"v_mfma_f32_32x32x8_bf16 {v(d,16)}, {v(a,2)}, {v(b,2)}, {c}")


def dma_chunk_piece(A, c, t):
    slot = c % NSLOT
    A(f"s_add_u32 m0, s{sLDSW}, {slot*SLOT + 1024*t}")
    A(f"v_mad_u32_u24 v{vCT}, v{vCS+t}, {c}, v{vCB+t}")
    if t == 2:
        A("s_mov_b32 exec_hi, 0xffff")
    A.vm(f"buffer_load_dwordx4 v{vCT}, {WS}, 0 offen sc1 lds", ("c", c))
    if t == 2:
        A("s_mov_b32 exec_hi, -1")


def dma_chunk(A, c):
    for t in range(3):
        dma_chunk_piece(A, c, t)


def dma_w_piece(A, part, st, t):
    off = (WA_OFF if part == 0 else WB_OFF)[st]
    A(f"s_add_u32 m0, s{sLDSW2}, {off + 1024*t}")
    A(f"s_add_u32 s{sT0}, s{sWSRC}, {(part*80 + 16*st)*10240}")
    if t == 2:
        A("s_mov_b32 exec_hi, 0")
    A.vm(f"buffer_load_dwordx4 v{(vW0, vW1, vW2)[t]}, {WS}, s{sT0} offen sc1 lds", ("w", part, st))
    if t == 2:
        A("s_mov_b32 exec_hi, -1")


def rd_k01(A, t):
    if EXP.get('halfrd') and t % 2 == 1:
        return
    c, tt = t // TPC, t % TPC
    A.lds(f"ds_read_b128 {v(K01,4)}, v{vK01 + c % NSLOT} offset:{tt*512}", ("k01", t))


def rd_k2(A, t):
    if EXP.get('halfrd') and t % 2 == 1:
        return
    c, tt = t // TPC, t % TPC
    A.lds(f"ds_read_b64 {v(K2,2)}, v{vK2 + c % NSLOT} offset:{8192 + tt*512}", ("k2", t))


def rd_v(A, t, a):
    if EXP.get('halfrd') and t % 2 == 1:
        return
    c, tt = t // TPC, t % TPC
    areg = vV + c % NSLOT if tt < 4 else vV2[c % NSLOT]
    A.lds(f"ds_read_b128 {v(V1 if a else V0,4)}, v{areg} offset:{(2*(tt % 4) + a)*640}", ("v", t, a))


def exps(A, sreg, g, preg=P):
    for i in range(4):
        A(f"v_exp_f32 v{sreg+4*g+i}, v{sreg+4*g+i}")
    A(f"v_cvt_pk_bf16_f32 v{preg+2*g}, v{sreg+4*g}, v{sreg+4*g+1}")
    A(f"v_cvt_pk_bf16_f32 v{preg+2*g+1}, v{sreg+4*g+2}, v{sreg+4*g+3}")


def cross_half_max(A, reg, tmp):
    A(f"v_mov_b32 v{tmp}, v{reg}")
    A("s_nop 1")
    A(f"v_permlane32_swap_b32 v{reg}, v{tmp}")
    A("s_nop 1")
    A(f"v_max_f32 v{reg}, v{reg}, v{tmp}")


def max16(A, dst, src, first):
    if first:
        A(f"v_max3_f32 v{dst}, v{src}, v{src+1}, v{src+2}")
        rest = list(range(3, 16))
    else:
        rest = list(range(0, 16))
    while rest:
        if len(rest) >= 2:
            A(f"v_max3_f32 v{dst}, v{dst}, v{src+rest[0]}, v{src+rest[1]}")
            rest = rest[2:]
        else:
            A(f"v_max_f32 v{dst}, v{dst}, v{src+rest[0]}")
            rest = rest[1:]


def row_sum(A, oreg):
    A(f"v_mov_b32 v{vT}, v{oreg+8}")
    A(f"v_mov_b32 v{vT+1}, v{oreg+8}")
    A("s_nop 1")
    A(f"v_permlane32_swap_b32 v{vT}, v{vT+1}")


def finish_tile(A, oreg, gate, one_minus, vaddr, tok_sreg, chunk0, tag):
    A(f"v_rcp_f32 v{vT+2}, v{vT+1}")
    A(f"s_lshl_b32 s{sT0}, s{tok_sreg}, 4")
    A(f"s_add_u32 s{sT0}, s{sT0}, {OC + chunk0*32768}")
    if one_minus:
        A(f"v_sub_f32 v{vT}, 1.0, v{gate}")
        A(f"v_mul_f32 v{vT+2}, v{vT+2}, v{vT}")
    else:
        A(f"v_mul_f32 v{vT+2}, v{vT+2}, v{gate}")
    A(f"v_mov_b32 v{vT+3}, v{vT+2}")
    for i in range(0, 12, 2):
        A(f"v_pk_mul_f32 {v(oreg+i,2)}, {v(oreg+i,2)}, v[{vT+2}:{vT+3}]")
    for i in range(4):
        A(f"v_cvt_pk_bf16_f32 v{oreg+i}, v{oreg+2*i}, v{oreg+2*i+1}")
    A(f"v_cvt_pk_bf16_f32 v{oreg+8}, v{oreg+8}, v{oreg+9}")
    A(f"v_cvt_pk_bf16_f32 v{oreg+9}, v{oreg+10}, v{oreg+11}")
    A(f"v_permlane32_swap_b32 v{oreg}, v{oreg+2}")
    A(f"v_permlane32_swap_b32 v{oreg+1}, v{oreg+3}")
    A.vm(f"buffer_store_dwordx4 {v(oreg,4)}, v{vaddr}, {WS}, s{sT0} offen sc1", tag)
    A("s_mov_b32 exec_hi, 0")
    A.vm(f"buffer_store_dwordx2 {v(oreg+8,2)}, v{vaddr+2}, {WS}, s{sT0} offen sc1", tag)
    A("s_mov_b64 exec, -1")


def oc_load(A, part, k):
    reg = OCA if part == 0 else OCB
    A(f"s_add_u32 s{sT0}, s{sOCB}, {(part*80 + 4*k)*32768}")
    A.vm(f"buffer_load_dwordx4 {v(reg+4*k,4)}, v{vOC}, {WS}, s{sT0} offen sc1", ("oc", part, k))


def outproj(A, part, first, hook=None):
    offs = WA_OFF if part == 0 else WB_OFF
    reg = OCA if part == 0 else OCB
    for kg in range(2):
        if kg == 0:
            A(f"s_cmp_eq_u32 s{sKG}, 1")
            A(f"s_cbranch_scc1 L_op{part}_g1")
            saved = (list(A.vm_q), list(A.lds_q))
        else:
            A.label(f"L_op{part}_g1")
            A.vm_q, A.lds_q = list(saved[0]), list(saved[1])
        seq = [(k, nt) for k in range(10) for nt in range(5)]

        def rd(i):
            k, nt = seq[i]
            kk = 10 * kg + k
            off = offs[kk // 4] + (kk % 4) * 5120 + nt * 256
            areg = (vWR, vT + 5, vT + 6)[off >> 16]
            A.lds(f"ds_read_b128 {v(WF + (i % 8)*4,4)}, v{areg} offset:{off & 0xffff}", ("wf", i))

        LOOK = 5
        for i in range(LOOK):
            rd(i)
        for i, (k, nt) in enumerate(seq):
            if i + LOOK < len(seq):
                rd(i + LOOK)
            if nt == 0:
                A.vm_wait(("oc", part, k))
                if hook:
                    hook(k, kg)
            A.lds_wait(("wf", i))
            c = "0" if (first and k == 0) else v(ACC + 4*nt, 4)
            A(f"v_mfma_f32_16x16x32_bf16 {v(ACC+4*nt,4)}, {v(WF + (i % 8)*4,4)}, {v(reg+4*k,4)}, {c}")
        if kg == 0:
            end0 = (list(A.vm_q), list(A.lds_q))
            A(f"s_branch L_op{part}_done")
    A.label(f"L_op{part}_done")
    assert end0[0] == A.vm_q and end0[1] == A.lds_q


def keypos(kappa):
    return (kappa & 25) | ((kappa >> 1) & 1) << 2 | ((kappa >> 2) & 1) << 1


def band_mask(j, i, prev):
    m = 0
    for l in range(64):
        q, hh = l & 31, l >> 5
        key = keypos(8 * j + 4 * hh + i) - (32 if prev else 0)
        if 0 <= q - key <= 7:
            m |= 1 << l
    return m


def b_consts(A):
    A(f"v_cmp_eq_u32 vcc, 20, v{vR}")
    A(f"v_mov_b32 v{vT+6}, 0")
    A(f"v_mov_b32 v{vT+7}, 0x3f803f80")
    A(f"v_cndmask_b32 v{vT+6}, v{vT+6}, v{vT+7}, vcc")
    for base in (BV0, BV1, BVP):
        for i in range(4):
            A(f"v_mov_b32 v{base+i}, v{vT+6}")
    A(f"v_mov_b32 v{BQ2}, 0")
    A(f"v_mov_b32 v{BQ2+1}, 0")


def b_load_items():
    def mk(instr, pre=None, gate=False):
        def f(A):
            if gate:
                A(f"v_lshlrev_b32 v{vCT}, 1, v{vGA}")
                A.vm(instr.replace(f"v{vGA},", f"v{vCT},"), "b")
                return
            if pre:
                A(pre)
            A.vm(instr, "b")
            if pre:
                A("s_mov_b64 exec, -1")
        return f
    lo20 = f"s_mov_b64 exec, s[{sLO20}:{sLO20+1}]"
    return [
        mk(f"buffer_load_dwordx4 {v(BQ01,4)}, v{vBA}, {WS}, s{sBA} offen sc1"),
        mk(f"buffer_load_dwordx4 {v(BK01,4)}, v{vBA+2}, {WS}, s{sBA+2} offen sc1"),
        mk(f"buffer_load_dwordx2 {v(BK2,2)}, v{vBA+3}, {WS}, s{sBA+3} offen sc1"),
        mk(f"buffer_load_dwordx4 {v(BKP01,4)}, v{vBA+2}, {WS}, s{sBA+5} offen sc1"),
        mk(f"buffer_load_dwordx2 {v(BKP2,2)}, v{vBA+3}, {WS}, s{sBA+6} offen sc1"),
        mk(f"buffer_load_dword v{vGB}, v{vGA}, {WS}, s{sBA+8} offen sc1", None, True),
        mk(f"buffer_load_dwordx2 {v(BQ2,2)}, v{vBA+1}, {WS}, s{sBA+1} offen sc1", "s_mov_b32 exec_hi, 0"),
        mk(f"buffer_load_dwordx4 {v(BV0,4)}, v{vBA+4}, {WS}, s{sBA+4} offen sc1", lo20),
        mk(f"buffer_load_dwordx4 {v(BV1,4)}, v{vBA+4}, {WS}, s{sBA+4} offen offset:640 sc1", lo20),
        mk(f"buffer_load_dwordx4 {v(BVP,4)}, v{vBA+4}, {WS}, s{sBA+7} offen offset:640 sc1", lo20),
    ]


def b_unit(A):
    S0, S1 = BS0, BS1
    jitter(A, True)
    A.vm_wait("b")
    mf16(A, S0, BK01, BQ01, "0")
    mf16(A, S1, BKP01, BQ01, "0")
    mf8(A, S0, BK2, BQ2, v(S0, 16))
    mf8(A, S1, BKP2, BQ2, v(S1, 16))
    A(f"v_mov_b32 v{vT}, {hex(f32bits(-1e30))}")
    A(f"s_cmp_eq_u32 s{sQT}, 0")
    A(f"s_cselect_b32 s{sT3}, 0, -1")
    A("s_nop 7")
    A("s_nop 5")
    for j in range(4):
        for i in range(4):
            m = band_mask(j, i, False)
            A(f"s_mov_b32 s{sM}, {hex(m & 0xffffffff)}")
            A(f"s_mov_b32 s{sM+1}, {hex(m >> 32)}")
            A(f"v_cndmask_b32 v{S0+4*j+i}, v{vT}, v{S0+4*j+i}, s[{sM}:{sM+1}]")
    for i in range(4):
        m = band_mask(3, i, True)
        A(f"s_and_b32 s{sM}, s{sT3}, {hex(m & 0xffffffff)}")
        A(f"s_and_b32 s{sM+1}, s{sT3}, {hex(m >> 32)}")
        A(f"v_cndmask_b32 v{S1+12+i}, v{vT}, v{S1+12+i}, s[{sM}:{sM+1}]")
    max16(A, vT + 1, S0, True)
    A(f"v_max3_f32 v{vT+1}, v{vT+1}, v{S1+12}, v{S1+13}")
    A(f"v_max3_f32 v{vT+1}, v{vT+1}, v{S1+14}, v{S1+15}")
    cross_half_max(A, vT + 1, vT + 2)
    for r in list(range(S0, S0 + 16)) + list(range(S1 + 12, S1 + 16)):
        A(f"v_sub_f32 v{r}, v{r}, v{vT+1}")
    for g in range(4):
        exps(A, S0, g, BP)
    PP = BP + 8
    for i in range(4):
        A(f"v_exp_f32 v{S1+12+i}, v{S1+12+i}")
    A(f"v_mov_b32 v{PP}, 0")
    A(f"v_mov_b32 v{PP+1}, 0")
    A(f"v_cvt_pk_bf16_f32 v{PP+2}, v{S1+12}, v{S1+13}")
    A(f"v_cvt_pk_bf16_f32 v{PP+3}, v{S1+14}, v{S1+15}")
    A("s_nop 1")
    mf16(A, BO, BV0, BP, "0")
    mf16(A, BO, BV1, BP + 4, v(BO, 16))
    mf16(A, BO, BVP, PP, v(BO, 16))
    A("s_nop 7")
    A("s_nop 3")
    row_sum(A, BO)
    A("s_nop 1")
    finish_tile(A, BO, vGB, True, vOST + 1, sBT, 80, "stb")


def fallback(A):
    A.comment("---- fallback: two-pass softmax with the true row max")
    A.label("L_fallback")
    A("s_waitcnt vmcnt(0) lgkmcnt(0)")
    A(f"v_lshlrev_b32 v{vT+4}, 15, v{vHH}")
    A(f"v_lshl_add_u32 v{vT+4}, v{vR}, 4, v{vT+4}")
    A(f"v_lshlrev_b32 v{vT+5}, 4, v{vR}")
    A(f"v_mul_u32_u24 v{vT+6}, 320, v{vHH}")
    A(f"v_lshl_add_u32 v{vT+6}, v{vR}, 4, v{vT+6}")
    A(f"v_mov_b32 v{vT+7}, {hex(f32bits(-3.0e38))}")

    def tile_addr():
        A(f"s_lshl_b32 s{sT0}, s{sCNT}, 9")
        A(f"s_lshl_b32 s{sT1}, s{sPA}, 15")
        A(f"s_add_u32 s{sT1}, s{sT1}, s{sT0}")
        A(f"s_add_u32 s{sT1}, s{sT1}, {KA}")
        A(f"s_lshl_b32 s{sT2}, s{sP2L}, 15")
        A(f"s_add_u32 s{sT2}, s{sT2}, s{sT0}")
        A(f"s_and_b32 s{sT3}, s{sH}, 1")
        A(f"s_lshl_b32 s{sT3}, s{sT3}, 3")
        A(f"s_add_u32 s{sT2}, s{sT2}, s{sT3}")
        A(f"s_add_u32 s{sT2}, s{sT2}, {KA}")
        A(f"s_mul_i32 s{sT3}, s{sCNT}, 1280")
        A(f"s_add_u32 s{sT3}, s{sT3}, s{sVH}")
        A(f"s_add_u32 s{sT3}, s{sT3}, {VA}")

    A(f"s_mov_b32 s{sCNT}, 0")
    A.label("L_fb1")
    tile_addr()
    A(f"buffer_load_dwordx4 {v(K01,4)}, v{vT+4}, {WS}, s{sT1} offen sc1")
    A(f"buffer_load_dwordx2 {v(K2,2)}, v{vT+5}, {WS}, s{sT2} offen sc1")
    A("s_waitcnt vmcnt(0)")
    mf16(A, SA, K01, Q01, "0")
    mf8(A, SA, K2, Q2, v(SA, 16))
    A("s_nop 7")
    A("s_nop 7")
    max16(A, vT + 7, SA, False)
    A(f"s_add_u32 s{sCNT}, s{sCNT}, 1")
    A(f"s_cmp_lt_u32 s{sCNT}, 64")
    A("s_cbranch_scc1 L_fb1")
    cross_half_max(A, vT + 7, vT)
    for i in range(16):
        A(f"v_sub_f32 v{NEGM+i}, 0, v{vT+7}")
        A(f"v_mov_b32 v{O+i}, 0")
    A(f"v_cmp_eq_u32 vcc, 20, v{vR}")
    A(f"v_mov_b32 v{vT}, 0")
    A(f"v_mov_b32 v{vT+1}, 0x3f803f80")
    A(f"v_cndmask_b32 v{vT}, v{vT}, v{vT+1}, vcc")
    for i in range(4):
        A(f"v_mov_b32 v{V0+i}, v{vT}")
        A(f"v_mov_b32 v{V1+i}, v{vT}")
    A(f"s_mov_b32 s{sCNT}, 0")
    A.label("L_fb2")
    tile_addr()
    A(f"buffer_load_dwordx4 {v(K01,4)}, v{vT+4}, {WS}, s{sT1} offen sc1")
    A(f"buffer_load_dwordx2 {v(K2,2)}, v{vT+5}, {WS}, s{sT2} offen sc1")
    A(f"s_mov_b64 exec, s[{sLO20}:{sLO20+1}]")
    A(f"buffer_load_dwordx4 {v(V0,4)}, v{vT+6}, {WS}, s{sT3} offen sc1")
    A(f"buffer_load_dwordx4 {v(V1,4)}, v{vT+6}, {WS}, s{sT3} offen offset:640 sc1")
    A("s_mov_b64 exec, -1")
    A("s_waitcnt vmcnt(0)")
    mf16(A, SA, K01, Q01, v(NEGM, 16))
    mf8(A, SA, K2, Q2, v(SA, 16))
    A("s_nop 7")
    A("s_nop 7")
    for g in range(4):
        exps(A, SA, g)
    A("s_nop 1")
    mf16(A, O, V0, P, v(O, 16))
    mf16(A, O, V1, P + 4, v(O, 16))
    A(f"s_add_u32 s{sCNT}, s{sCNT}, 1")
    A(f"s_cmp_lt_u32 s{sCNT}, 64")
    A("s_cbranch_scc1 L_fb2")
    A("s_nop 7")
    A("s_nop 7")
    row_sum(A, O)
    A("s_nop 1")
    A("s_branch L_finish")


def touch_chip(A, which):
    A(f"s_and_b32 s{sT1}, s{sW}, 1")
    A(f"s_lshl_b32 s{sT1}, s{sT1}, 6")
    A(f"v_add_u32 v{vT}, s{sT1}, v{vL}")
    A(f"s_cmp_ge_u32 s{sW}, 2")
    A(f"s_cbranch_scc1 L_tc_w{which}")
    if "x" in which:
        A(f"v_min_u32 v{vT}, 79, v{vT}")
        A(f"v_lshlrev_b32 v{vT}, 7, v{vT}")
        A(f"s_mul_i32 s{sT0}, s2, 10240")
        A(f"buffer_load_dword v{G_P+1}, v{vT}, s[{sX}:{sX+3}], s{sT0} offen")
    A(f"s_branch L_tc_done{which}")
    A.label(f"L_tc_w{which}")
    A(f"v_min_u32 v{vT}, 74, v{vT}")
    A(f"v_lshlrev_b32 v{vT}, 7, v{vT}")
    A(f"s_mul_i32 s{sT0}, s2, 9600")
    if "a" in which:
        A(f"buffer_load_dword v{G_P+2}, v{vT}, s[{sWA}:{sWA+3}], s{sT0} offen")
    if "b" in which:
        A(f"buffer_load_dword v{G_P+3}, v{vT}, s[{sWB}:{sWB+3}], s{sT0} offen")
    A.label(f"L_tc_done{which}")


def touch_phase(A, phase):
    L = f"L_tp{phase}"
    if phase != 2:
        k0, nk = {0: (3, 3), 1: (6, 4), 3: (0, 3)}[phase]
        wx, ww = {0: (0, 1), 1: (2, 3), 3: (2, 3)}[phase]
        A(f"s_cmp_lg_u32 s{sW}, {wx}")
        A(f"s_cbranch_scc1 {L}_w")
        if nk == 3:
            A(f"v_mul_u32_u24 v{vT}, 86, v{vL}")
            A(f"v_lshrrev_b32 v{vT}, 8, v{vT}")
        else:
            A(f"v_lshrrev_b32 v{vT}, 2, v{vL}")
        A(f"v_mul_u32_u24 v{vT+1}, {nk}, v{vT}")
        A(f"v_sub_u32 v{vT+1}, v{vL}, v{vT+1}")
        A(f"v_min_u32 v{vT}, 7, v{vT}")
        A(f"v_mul_u32_u24 v{vT}, 1280, v{vT}")
        A(f"v_lshl_add_u32 v{vT}, v{vT+1}, 7, v{vT}")
        A(f"s_mul_i32 s{sT0}, s2, 10240")
        A(f"s_add_u32 s{sT0}, s{sT0}, {128*k0}")
        A(f"buffer_load_dword v{G_P+1}, v{vT}, s[{sX}:{sX+3}], s{sT0} offen")
        A.label(f"{L}_w")
        per = 64 * nk * 30 // 256 + (1 if (64 * nk * 30) % 256 else 0)
        A(f"s_cmp_lg_u32 s{sW}, {ww}")
        A(f"s_cbranch_scc1 {L}_done")
        A(f"v_min_u32 v{vT}, {per - 1}, v{vL}")
        A(f"v_lshlrev_b32 v{vT}, 7, v{vT}")
        A(f"s_mul_i32 s{sT0}, s2, {64 * nk * 3840 // 256}")
        A(f"s_and_b32 s{sT0}, s{sT0}, 0xffffff80")
        A(f"s_add_u32 s{sT0}, s{sT0}, {64 * k0 * 3840}")
        A(f"buffer_load_dword v{G_P+2}, v{vT}, s[{sWA}:{sWA+3}], s{sT0} offen")
    else:
        A(f"s_cmp_ge_u32 s{sW}, 2")
        A(f"s_cbranch_scc1 {L}_done")
        A(f"s_lshl_b32 s{sT1}, s{sW}, 6")
        A(f"v_add_u32 v{vT}, s{sT1}, v{vL}")
        A(f"v_min_u32 v{vT}, 74, v{vT}")
        A(f"v_lshlrev_b32 v{vT}, 7, v{vT}")
        A(f"s_mul_i32 s{sT0}, s2, 9600")
        A(f"buffer_load_dword v{G_P+3}, v{vT}, s[{sWB}:{sWB+3}], s{sT0} offen")
    A.label(f"{L}_done")


def touch_xcd_first(A):
    A(f"s_cmp_eq_u32 s{sW}, 7")
    A("s_cbranch_scc1 L_txf_done")
    A(f"s_sub_u32 s{sT1}, s{sW}, 4")
    A(f"s_and_b32 s{sT0}, s{sCT}, 3")
    A(f"s_lshl_b32 s{sT0}, s{sT0}, 5")
    A(f"v_add_u32 v{vT}, s{sT0}, v{vR}")
    A(f"v_mul_u32_u24 v{vT}, 1280, v{vT}")
    A(f"s_lshl_b32 s{sT0}, s{sT1}, 7")
    A(f"s_add_u32 s{sT0}, s{sT0}, s{sXOFF}")
    A(f"buffer_load_dword v{G_P}, v{vT}, s[{sX}:{sX+3}], s{sT0} offen")
    A(f"s_and_b32 s{sT0}, s{sRB}, 7")
    A(f"s_lshl_b32 s{sT0}, s{sT0}, 3")
    A(f"s_lshl_b32 s{sT1}, s{sT1}, 6")
    A(f"s_add_u32 s{sT0}, s{sT0}, s{sT1}")
    A(f"v_bfe_u32 v{vT}, v{vL}, 1, 3")
    A(f"v_add_u32 v{vT}, s{sT0}, v{vT}")
    A(f"v_mul_u32_u24 v{vT}, 3840, v{vT}")
    A(f"v_and_b32 v{vT+1}, 1, v{vL}")
    A(f"v_lshl_add_u32 v{vT}, v{vT+1}, 7, v{vT}")
    A(f"buffer_load_dword v{G_P+1}, v{vT}, s[{sWA}:{sWA+3}], s{sWOFF} offen")
    A.label("L_txf_done")
    if EXP.get("txf") == 2:
        A("s_waitcnt vmcnt(0)")


def touch_chip_wide(A, which, tag):
    A(f"s_cmp_ge_u32 s{sW}, 4")
    A(f"s_cbranch_scc1 L_tcw{tag}")
    A(f"s_lshl_b32 s{sT1}, s{sW}, 10")
    A(f"v_add_u32 v{vT}, s{sT1}, v{vL16}")
    k = 0
    for name, srd_, size in (("x", sX, 10240), ("a", sWA, 9600), ("b", sWB, 9600)):
        if name not in which:
            continue
        A(f"s_mul_i32 s{sT0}, s2, {size}")
        for i in range(3):
            A(f"v_add_u32 v{vT+1}, {4096*i}, v{vT}")
            A(f"v_min_u32 v{vT+1}, {size - 16}, v{vT+1}")
            A(f"buffer_load_dwordx4 {v(G_P + 4*k, 4)}, v{vT+1}, s[{srd_}:{srd_+3}], s{sT0} offen")
            k += 1
    A.label(f"L_tcw{tag}")


def touch_chip_b(A, n):
    A(f"s_cmp_ge_u32 s{sW}, 2")
    A(f"s_cbranch_scc1 L_tcb{n}")
    A(f"s_lshl_b32 s{sT1}, s{sW}, 6")
    A(f"v_add_u32 v{vT}, s{sT1}, v{vL}")
    A(f"v_min_u32 v{vT}, 74, v{vT}")
    A(f"v_lshlrev_b32 v{vT}, 7, v{vT}")
    A(f"s_mul_i32 s{sT0}, s2, 9600")
    A(f"buffer_load_dword v{G_P+3}, v{vT}, s[{sWB}:{sWB+3}], s{sT0} offen")
    A.label(f"L_tcb{n}")


def touch_wb(A, n):
    A(f"s_cmp_ge_u32 s{sW}, 3")
    A(f"s_cbranch_scc1 L_twb{n}")
    A(f"s_and_b32 s{sT0}, s{sRB}, 7")
    A(f"s_mul_i32 s{sT0}, s{sT0}, 80")
    A(f"s_lshl_b32 s{sT1}, s{sW}, 5")
    A(f"v_lshrrev_b32 v{vT}, 1, v{vL}")
    A(f"v_add_u32 v{vT}, s{sT1}, v{vT}")
    A(f"v_min_u32 v{vT}, 79, v{vT}")
    A(f"v_add_u32 v{vT}, s{sT0}, v{vT}")
    A(f"v_mul_u32_u24 v{vT}, 3840, v{vT}")
    A(f"v_and_b32 v{vT+1}, 1, v{vL}")
    A(f"v_lshl_add_u32 v{vT}, v{vT+1}, 7, v{vT}")
    A(f"buffer_load_dword v{G_P}, v{vT}, s[{sWB}:{sWB+3}], s{sWOFF} offen")
    A.label(f"L_twb{n}")


def touch_a(A, n):
    A(f"v_mul_u32_u24 v{vT}, 37, v{vL}")
    A(f"v_lshrrev_b32 v{vT}, 8, v{vT}")
    A(f"v_mul_u32_u24 v{vT+1}, 7, v{vT}")
    A(f"v_sub_u32 v{vT+1}, v{vL}, v{vT+1}")
    A(f"v_min_u32 v{vT}, 7, v{vT}")
    A(f"s_and_b32 s{sT0}, s{sCT}, 3")
    A(f"s_lshl_b32 s{sT0}, s{sT0}, 2")
    A(f"s_add_u32 s{sT0}, s{sT0}, s{sW}")
    A(f"s_lshl_b32 s{sT0}, s{sT0}, 3")
    A(f"v_add_u32 v{vT}, s{sT0}, v{vT}")
    A(f"v_mul_u32_u24 v{vT}, 1280, v{vT}")
    A(f"v_lshl_add_u32 v{vT}, v{vT+1}, 7, v{vT}")
    A(f"v_add_u32 v{vT}, 384, v{vT}")
    A(f"buffer_load_dword v{G_P+1}, v{vT}, s[{sX}:{sX+3}], s{sXOFF} offen")
    A(f"s_cmp_ge_u32 s{sW}, 2")
    A(f"s_cbranch_scc1 L_twa{n}")
    A(f"s_and_b32 s{sT0}, s{sRB}, 7")
    A(f"s_mul_i32 s{sT0}, s{sT0}, 56")
    A(f"s_mul_i32 s{sT1}, s{sW}, 28")
    A(f"s_add_u32 s{sT0}, s{sT0}, s{sT1}")
    A(f"s_add_u32 s{sT0}, s{sT0}, 192")
    A(f"v_lshrrev_b32 v{vT}, 1, v{vL}")
    A(f"v_min_u32 v{vT}, 27, v{vT}")
    A(f"v_add_u32 v{vT}, s{sT0}, v{vT}")
    A(f"v_mul_u32_u24 v{vT}, 3840, v{vT}")
    A(f"v_and_b32 v{vT+1}, 1, v{vL}")
    A(f"v_lshl_add_u32 v{vT}, v{vT+1}, 7, v{vT}")
    A(f"buffer_load_dword v{G_P+2}, v{vT}, s[{sWA}:{sWA+3}], s{sWOFF} offen")
    A.label(f"L_twa{n}")


def setup_phase1_reads(A):
    A(f"v_lshrrev_b32 v{vT+2}, 1, v{vR}")
    A(f"v_and_b32 v{vT+2}, 7, v{vT+2}")
    A(f"v_xor_b32 v{vT+2}, v{vT+2}, v{vHH}")
    A(f"v_lshlrev_b32 v{vT+2}, 4, v{vT+2}")
    A(f"s_lshl_b32 s{sT0}, s{sMH}, 6")
    A(f"v_add_u32 v{vT+3}, s{sT0}, v{vR}")
    A(f"v_lshl_add_u32 v{vXR}, v{vT+3}, 7, v{vT+2}")
    for ks in range(1, 4):
        A(f"v_xor_b32 v{vXR+3*ks}, {ks*32}, v{vXR}")
    for ks in range(4):
        A(f"v_add_u32 v{vXR+3*ks+1}, 0x10000, v{vXR+3*ks}")
        A(f"v_add_u32 v{vXR+3*ks+2}, 0x20000, v{vXR+3*ks}")
    A(f"v_bfe_u32 v{vT+2}, v{vL}, 2, 2")
    A(f"v_lshl_add_u32 v{vT+3}, v{vHH}, 3, v{vT+2}")
    A(f"v_lshlrev_b32 v{vT+3}, 8, v{vT+3}")
    A(f"v_bfe_u32 v{vT+4}, v{vL}, 4, 1")
    A(f"v_lshlrev_b32 v{vT+4}, 5, v{vT+4}")
    A(f"v_add_u32 v{vT+3}, v{vT+3}, v{vT+4}")
    A(f"v_and_b32 v{vT+4}, 3, v{vL}")
    A(f"v_lshlrev_b32 v{vT+4}, 3, v{vT+4}")
    A(f"v_add_u32 v{vT+3}, v{vT+3}, v{vT+4}")
    for nt in range(2):
        A(f"s_lshl_b32 s{sT0}, s{sNH}, 1")
        A(f"s_add_u32 s{sT0}, s{sT0}, {nt}")
        A(f"v_xor_b32 v{vT+4}, s{sT0}, v{vT+2}")
        A(f"v_lshl_add_u32 v{vWR1+3*nt}, v{vT+4}, 6, v{vT+3}")
        A(f"v_add_u32 v{vWR1+3*nt+1}, 0x10000, v{vWR1+3*nt}")
        A(f"v_add_u32 v{vWR1+3*nt+2}, 0x20000, v{vWR1+3*nt}")


def setup_p2_0(A):
    A(f"s_lshl_b32 s{sF1}, s{sCT}, 4")
    A(f"s_add_u32 s{sF1}, s{sF1}, s{sRB}")
    A(f"s_lshl_b32 s{sF1}, s{sF1}, 2")
    A(f"s_and_b32 s{sT0}, s2, 7")
    A(f"s_lshl_b32 s{sT0}, s{sT0}, 2")
    A(f"s_lshr_b32 s{sT1}, s2, 3")
    A(f"s_and_b32 s{sT1}, s{sT1}, 3")
    A(f"s_add_u32 s{sH}, s{sT0}, s{sT1}")
    A(f"s_lshr_b32 s{sQB}, s2, 5")
    A(f"s_lshr_b32 s{sT0}, s{sH}, 1")
    A(f"s_mul_i32 s{sT0}, s{sT0}, 5")
    A(f"s_add_u32 s{sP2L}, s{sT0}, 2")
    A(f"s_and_b32 s{sT1}, s{sH}, 1")
    A(f"s_mul_i32 s{sT1}, s{sT1}, 3")
    A(f"s_add_u32 s{sPA}, s{sT0}, s{sT1}")
    A(f"s_mul_i32 s{sVH}, s{sH}, {VH}")
    A(f"s_mul_i32 s{sLDSW}, s{sW}, 2816")
    A(f"s_mul_i32 s{sLDSW2}, s{sW}, 2560")
    A(f"s_lshl_b32 s{sQ0}, s{sQB}, 8")
    A(f"s_lshl_b32 s{sT0}, s{sW}, 5")
    A(f"s_add_u32 s{sQ0}, s{sQ0}, s{sT0}")
    A(f"s_lshl_b32 s{sQT}, s{sQB}, 2")
    A(f"s_lshr_b32 s{sT0}, s{sW}, 1")
    A(f"s_add_u32 s{sQT}, s{sQT}, s{sT0}")
    A(f"s_and_b32 s{sT1}, s{sW}, 1")
    A(f"s_lshl_b32 s{sBT}, s{sQT}, 6")
    A(f"s_add_u32 s{sBT}, s{sBT}, s{sT1}")
    A(f"s_mov_b32 s{sLO20}, 0xfffff")
    A(f"s_mov_b32 s{sLO20+1}, 0xfffff")
    A(f"v_lshlrev_b32 v{vQA}, 15, v{vHH}")
    A(f"v_lshl_add_u32 v{vQA}, v{vR}, 4, v{vQA}")
    A(f"v_lshlrev_b32 v{vQA2}, 4, v{vR}")
    A(f"v_lshlrev_b32 v{vGA}, 2, v{vR}")
    A(f"s_lshl_b32 s{sT0}, s{sQ0}, 4")
    A(f"s_lshl_b32 s{sQOFF}, s{sPA}, 15")
    A(f"s_add_u32 s{sQOFF}, s{sQOFF}, s{sT0}")
    if QA:
        A(f"s_add_u32 s{sQOFF}, s{sQOFF}, {QA}")
    A(f"s_lshl_b32 s{sQOFF2}, s{sP2L}, 15")
    A(f"s_add_u32 s{sQOFF2}, s{sQOFF2}, s{sT0}")
    A(f"s_and_b32 s{sT1}, s{sH}, 1")
    A(f"s_lshl_b32 s{sT1}, s{sT1}, 3")
    A(f"s_add_u32 s{sQOFF2}, s{sQOFF2}, s{sT1}")
    if QA:
        A(f"s_add_u32 s{sQOFF2}, s{sQOFF2}, {QA}")
    A(f"s_lshl_b32 s{sGOFF}, s{sQ0}, 2")
    A(f"s_add_u32 s{sGOFF}, s{sGOFF}, {GATE}")


def setup_p2_1(A):
    A(f"s_and_b32 s{sT1}, s{sH}, 1")
    A(f"s_lshl_b32 s{sT1}, s{sT1}, 3")
    A(f"v_lshlrev_b32 v{vT}, 12, v{vHH}")
    A(f"v_lshl_add_u32 v{vT}, v{vR}, 4, v{vT}")
    A(f"v_lshlrev_b32 v{vT+1}, 4, v{vR}")
    A(f"v_add_u32 v{vT+1}, s{sT1}, v{vT+1}")
    A(f"v_mul_u32_u24 v{vT+2}, 320, v{vHH}")
    A(f"v_lshl_add_u32 v{vT+2}, v{vR}, 4, v{vT+2}")
    A(f"v_add_u32 v{vT+3}, {ONES}, v{vT+2}")
    A(f"v_cmp_gt_u32 vcc, 20, v{vR}")
    for sl in range(NSLOT):
        A(f"v_add_u32 v{vK01+sl}, {sl*SLOT}, v{vT}")
        A(f"v_add_u32 v{vK2+sl}, {sl*SLOT}, v{vT+1}")
        A(f"v_add_u32 v{vT+4}, {sl*SLOT + 12288}, v{vT+2}")
        A(f"v_cndmask_b32 v{vV+sl}, v{vT+3}, v{vT+4}, vcc")
    A(f"s_lshl_b32 s{sT2}, s{sPA}, 15")
    A(f"s_add_u32 s{sT2}, s{sT2}, {KA}")
    A(f"s_lshl_b32 s{sT3}, s{sP2L}, 15")
    A(f"s_add_u32 s{sT3}, s{sT3}, {KA - 8192}")
    A(f"s_add_u32 s{sT4}, s{sVH}, {VA - 12288}")
    for t in range(3):
        A(f"v_add_u32 v{vT}, s{sLDSW}, v{vL16}")
        if t:
            A(f"v_add_u32 v{vT}, {1024*t}, v{vT}")
        A(f"v_lshrrev_b32 v{vT+1}, 12, v{vT}")
        A(f"v_and_b32 v{vT+2}, 4095, v{vT}")
        A(f"v_lshl_add_u32 v{vT+2}, v{vT+1}, 15, v{vT+2}")
        A(f"v_add_u32 v{vT+2}, s{sT2}, v{vT+2}")
        A(f"v_add_u32 v{vT+3}, s{sT3}, v{vT}")
        A(f"v_add_u32 v{vT+4}, s{sT4}, v{vT}")
        A(f"v_cmp_eq_u32 vcc, 2, v{vT+1}")
        A(f"v_mov_b32 v{vT+5}, 4096")
        A(f"v_mov_b32 v{vT+6}, 10240")
        A(f"v_cndmask_b32 v{vT+2}, v{vT+2}, v{vT+3}, vcc")
        A(f"v_cmp_le_u32 vcc, 3, v{vT+1}")
        A("s_nop 1")
        A(f"v_cndmask_b32 v{vCB+t}, v{vT+2}, v{vT+4}, vcc")
        A(f"v_cndmask_b32 v{vCS+t}, v{vT+5}, v{vT+6}, vcc")


def setup_p2_2(A):
    A(f"s_lshr_b32 s{sT0}, s{sH}, 1")
    A(f"s_mul_i32 s{sT0}, s{sT0}, 5")
    A(f"s_and_b32 s{sT1}, s{sH}, 1")
    A(f"s_lshl_b32 s{sT2}, s{sT1}, 1")
    A(f"s_add_u32 s{sT2}, s{sT2}, s{sT0}")
    A(f"v_add_u32 v{vT}, s{sT2}, v{vHH}")
    A(f"v_lshlrev_b32 v{vT}, 15, v{vT}")
    A(f"v_lshl_add_u32 v{vOST}, v{vR}, 4, v{vT}")
    A(f"v_lshl_add_u32 v{vOST+1}, v{vR}, 5, v{vT}")
    A(f"s_add_u32 s{sT0}, s{sT0}, 4")
    A(f"s_lshl_b32 s{sT0}, s{sT0}, 15")
    A(f"s_lshl_b32 s{sT1}, s{sT1}, 3")
    A(f"s_add_u32 s{sT0}, s{sT0}, s{sT1}")
    A(f"v_lshlrev_b32 v{vT}, 4, v{vR}")
    A(f"v_add_u32 v{vOST+2}, s{sT0}, v{vT}")
    A(f"v_lshlrev_b32 v{vT}, 5, v{vR}")
    A(f"v_add_u32 v{vOST+3}, s{sT0}, v{vT}")
    A(f"s_mul_i32 s{sT0}, s{sH}, 20")
    A(f"s_add_u32 s{sT1}, s{sT0}, 19")
    A(f"s_lshr_b32 s{sT0}, s{sT0}, 7")
    A(f"s_lshr_b32 s{sT1}, s{sT1}, 7")
    A(f"v_bfe_u32 v{vT}, v{vL}, 4, 1")
    A(f"s_sub_u32 s{sT2}, s{sT1}, s{sT0}")
    A(f"v_mul_u32_u24 v{vT+1}, s{sT2}, v{vT}")
    A(f"v_add_u32 v{vT+1}, s{sT0}, v{vT+1}")
    A(f"v_mul_u32_u24 v{vT+2}, 5, v{vHH}")
    A(f"v_add_u32 v{vT+2}, 5, v{vT+2}")
    A(f"v_add_u32 v{vT+2}, v{vT+2}, v{vT+1}")
    A(f"v_and_b32 v{vT+3}, 15, v{vL}")
    A(f"v_lshl_add_u32 v{vT+2}, v{vT+2}, 4, v{vT+3}")
    A(f"v_lshlrev_b32 v{vF1}, 2, v{vT+2}")
    A(f"v_add_u32 v{vT+2}, {15*16}, v{vT+3}")
    A(f"v_lshlrev_b32 v{vF4}, 2, v{vT+2}")
    A(f"v_and_b32 v{vT+4}, 1, v{vL}")
    A(f"s_lshl_b32 s{sT3}, s{sQB}, 1")
    A(f"v_add_u32 v{vT+4}, s{sT3}, v{vT+4}")
    A(f"v_lshl_add_u32 v{vT+4}, v{vT+1}, 4, v{vT+4}")
    A(f"v_lshlrev_b32 v{vF2}, 2, v{vT+4}")
    A(f"v_and_b32 v{vT}, 1, v{vL}")
    A(f"v_mul_u32_u24 v{vT+1}, s{sT2}, v{vT}")
    A(f"v_add_u32 v{vT+1}, s{sT0}, v{vT+1}")
    A(f"v_bfe_u32 v{vT+2}, v{vL}, 1, 2")
    A(f"v_min_u32 v{vT+2}, 2, v{vT+2}")
    A(f"v_mul_u32_u24 v{vT+2}, 5, v{vT+2}")
    A(f"v_add_u32 v{vT+1}, v{vT+1}, v{vT+2}")
    A(f"s_lshl_b32 s{sT3}, s{sQB}, 1")
    A(f"v_bfe_u32 v{vT+2}, v{vL}, 3, 2")
    A(f"v_min_u32 v{vT+2}, 2, v{vT+2}")
    A(f"v_add_u32 v{vT+2}, s{sT3}, v{vT+2}")
    A(f"v_max_u32 v{vT+2}, 1, v{vT+2}")
    A(f"v_subrev_u32 v{vT+2}, 1, v{vT+2}")
    A(f"v_lshl_add_u32 v{vT+1}, v{vT+1}, 4, v{vT+2}")
    A(f"v_lshlrev_b32 v{vF3}, 2, v{vT+1}")


def setup_p2_3(A):
    A(f"v_lshlrev_b32 v{vBA}, 15, v{vHH}")
    A(f"v_lshl_add_u32 v{vBA}, v{vR}, 4, v{vBA}")
    A(f"v_lshlrev_b32 v{vBA+1}, 4, v{vR}")
    A(f"v_and_b32 v{vT+2}, 25, v{vR}")
    A(f"v_bfe_u32 v{vT+3}, v{vR}, 1, 1")
    A(f"v_lshl_or_b32 v{vT+2}, v{vT+3}, 2, v{vT+2}")
    A(f"v_bfe_u32 v{vT+3}, v{vR}, 2, 1")
    A(f"v_lshl_or_b32 v{vT+2}, v{vT+3}, 1, v{vT+2}")
    A(f"v_lshlrev_b32 v{vT+3}, 15, v{vHH}")
    A(f"v_lshl_add_u32 v{vBA+2}, v{vT+2}, 4, v{vT+3}")
    A(f"v_lshlrev_b32 v{vBA+3}, 4, v{vT+2}")
    A(f"v_mul_u32_u24 v{vT+4}, 320, v{vHH}")
    A(f"v_lshl_add_u32 v{vBA+4}, v{vR}, 4, v{vT+4}")
    A(f"s_and_b32 s{sT1}, s{sW}, 1")
    A(f"s_lshl_b32 s{sT1}, s{sT1}, 10")
    A(f"s_lshl_b32 s{sT0}, s{sQT}, 5")
    A(f"s_add_u32 s{sT2}, s{sT1}, s{sT0}")
    A(f"s_lshl_b32 s{sT0}, s{sPA}, 15")
    A(f"s_lshl_b32 s{sT1}, s{sP2L}, 15")
    A(f"s_and_b32 s{sT3}, s{sH}, 1")
    A(f"s_lshl_b32 s{sT3}, s{sT3}, 3")
    A(f"s_add_u32 s{sT1}, s{sT1}, s{sT3}")
    for prev in range(2):
        if prev:
            A(f"s_cmp_eq_u32 s{sQT}, 0")
            A(f"s_cselect_b32 s{sT3}, 0, 32")
            A(f"s_sub_u32 s{sT2}, s{sT2}, s{sT3}")
        A(f"s_lshl_b32 s{sT3}, s{sT2}, 4")
        if not prev:
            A(f"s_add_u32 s{sBA}, s{sT3}, s{sT0}")
            A(f"s_add_u32 s{sBA}, s{sBA}, {QB}")
            A(f"s_add_u32 s{sBA+1}, s{sT3}, s{sT1}")
            A(f"s_add_u32 s{sBA+1}, s{sBA+1}, {QB}")
        o = sBA + 2 + 3 * prev
        A(f"s_add_u32 s{o}, s{sT3}, s{sT0}")
        A(f"s_add_u32 s{o}, s{o}, {KB}")
        A(f"s_add_u32 s{o+1}, s{sT3}, s{sT1}")
        A(f"s_add_u32 s{o+1}, s{o+1}, {KB}")
        A(f"s_lshr_b32 s{sT3}, s{sT2}, 4")
        A(f"s_mul_i32 s{sT3}, s{sT3}, 640")
        A(f"s_add_u32 s{o+2}, s{sT3}, s{sVH}")
        A(f"s_add_u32 s{o+2}, s{o+2}, {VB}")
    A(f"s_lshl_b32 s{sBA+8}, s{sBT}, 2")
    A(f"s_add_u32 s{sBA+8}, s{sBA+8}, {GATE}")


def setup_p2_4(A):
    sRT, sCO, sTG = sT1, sT2, sT3
    A(f"s_lshr_b32 s{sRT}, s{sH}, 3")
    A(f"s_lshl_b32 s{sT0}, s{sQB}, 2")
    A(f"s_add_u32 s{sRT}, s{sRT}, s{sT0}")
    A(f"s_and_b32 s{sCO}, s{sH}, 7")
    A(f"s_and_b32 s{sTG}, s{sW}, 3")
    A(f"s_lshr_b32 s{sKG}, s{sW}, 2")
    A(f"s_lshl_b32 s{sFLG}, s{sRT}, 8")
    A(f"s_mul_i32 s{sWSRC}, s{sW}, 20480")
    A(f"s_mul_i32 s{sT0}, s{sCO}, 1280")
    A(f"s_add_u32 s{sWSRC}, s{sWSRC}, s{sT0}")
    A(f"s_add_u32 s{sWSRC}, s{sWSRC}, {WOT}")
    A(f"s_lshl_b32 s{sRT}, s{sRT}, 6")
    A(f"s_lshl_b32 s{sTG}, s{sTG}, 4")
    A(f"s_add_u32 s{sRT}, s{sRT}, s{sTG}")
    A(f"s_mul_i32 s{sOUTO}, s{sRT}, 1280")
    A(f"s_mul_i32 s{sT0}, s{sCO}, 160")
    A(f"s_add_u32 s{sOUTO}, s{sOUTO}, s{sT0}")
    A(f"s_lshl_b32 s{sOCB}, s{sRT}, 4")
    A(f"s_mul_i32 s{sT0}, s{sKG}, {40*32768}")
    A(f"s_add_u32 s{sOCB}, s{sOCB}, s{sT0}")
    A(f"s_add_u32 s{sOCB}, s{sOCB}, {OC}")
    A(f"s_lshl_b32 s{sPUB}, s{sQT}, 6")
    A(f"s_lshl_b32 s{sT0}, s{sH}, 1")
    A(f"s_add_u32 s{sPUB}, s{sPUB}, s{sT0}")
    A(f"s_and_b32 s{sT0}, s{sW}, 1")
    A(f"s_add_u32 s{sPUB}, s{sPUB}, s{sT0}")
    A(f"s_lshl_b32 s{sPUB}, s{sPUB}, 2")
    A(f"v_lshlrev_b32 v{vFA}, 2, v{vL}")
    A(f"v_mov_b32 v{vW0}, v{vL16}")
    A(f"v_add_u32 v{vT}, 1024, v{vL16}")
    A(f"v_add_u32 v{vT+1}, {10240 - 256}, v{vL16}")
    A(f"v_cmp_gt_u32 vcc, 16, v{vL}")
    A(f"v_add_u32 v{vW2}, {10240 + 768}, v{vL16}")
    A(f"v_lshrrev_b32 v{vT+2}, 4, v{vL}")
    A(f"v_cndmask_b32 v{vW1}, v{vT+1}, v{vT}, vcc")
    A(f"v_and_b32 v{vT+3}, 15, v{vL}")
    A(f"v_lshlrev_b32 v{vT+4}, 15, v{vT+2}")
    A(f"v_lshl_add_u32 v{vOC}, v{vT+3}, 4, v{vT+4}")
    A(f"v_mul_u32_u24 v{vT+4}, 1280, v{vT+2}")
    A(f"v_lshl_add_u32 v{vWR}, v{vT+3}, 4, v{vT+4}")
    A(f"v_mul_u32_u24 v{vT+4}, 1280, v{vT+3}")
    A(f"v_lshl_add_u32 v{vST}, v{vT+2}, 3, v{vT+4}")


SETUP_P2 = [setup_p2_0, setup_p2_1, setup_p2_2, setup_p2_3, setup_p2_4]


def setup_phase2(A):
    for f in SETUP_P2:
        f(A)


def pattern_fill(A, n):
    for r in range(2):
        A(f"v_and_b32 v{vT}, 255, v0")
        if r:
            A(f"v_add_u32 v{vT}, 256, v{vT}")
        A(f"v_mul_u32_u24 v{vT+1}, 3277, v{vT}")
        A(f"v_lshrrev_b32 v{vT+1}, 16, v{vT+1}")
        A(f"v_mul_u32_u24 v{vT+1}, 20, v{vT+1}")
        A(f"v_cmp_eq_u32 vcc, v{vT+1}, v{vT}")
        A(f"v_mov_b32 v{vT+4}, 0")
        A(f"v_mov_b32 v{vT+5}, 0x3f803f80")
        A(f"v_cndmask_b32 v{vT+4}, v{vT+4}, v{vT+5}, vcc")
        for i in range(1, 4):
            A(f"v_mov_b32 v{vT+4+i}, v{vT+4}")
        if r == 1:
            A(f"v_cmp_gt_u32 vcc, {PAT_UNITS}, v{vT}")
        A(f"v_lshlrev_b32 v{vT}, 4, v{vT}")
        A(f"v_add_u32 v{vT}, {ONES}, v{vT}")
        if r == 1:
            A("s_and_saveexec_b64 s[%d:%d], vcc" % (sT4, sT5))
            A(f"s_cbranch_execz L_pat_done{n}")
        A(f"ds_write_b128 v{vT}, {v(vT+4,4)}")
    A.label(f"L_pat_done{n}")
    A("s_mov_b64 exec, -1")
    A.lds_wait_all()


def gen(prof=False):
    A = Asm()
    A.prof = prof
    A.PROF_V = 239
    A.lines.append(DOC.rstrip())
    kernel_header(A, NAME)
    A("s_cmp_ge_u32 s2, 256")
    A("s_cbranch_scc1 L_end")
    A.stamp("start")
    if EXP.get("jit"):
        A(f"s_mov_b32 s{sW}, 0")
        jitter(A)
    A("s_load_dwordx4 s[4:7], s[0:1], 0")
    A(f"s_load_dwordx2 s[{sP}:{sP+1}], s[0:1], 32")
    A(f"s_load_dwordx2 s[{sP+2}:{sP+3}], s[0:1], 72")
    A(f"s_load_dwordx4 s[{sDBG}:{sDBG+3}], s[0:1], 56")
    A(f"v_lshrrev_b32 v{vT}, 6, v0")
    A(f"v_and_b32 v{vL}, 63, v0")
    A(f"v_readfirstlane_b32 s{sW}, v{vT}")
    A(f"v_and_b32 v{vR}, 31, v{vL}")
    A(f"v_lshrrev_b32 v{vHH}, 5, v{vL}")
    A(f"v_lshlrev_b32 v{vL16}, 4, v{vL}")
    A(f"s_and_b32 s{sT0}, s2, 7")
    A(f"s_lshr_b32 s{sT1}, s2, 3")
    A(f"s_and_b32 s{sRB}, s{sT0}, 1")
    A(f"s_lshl_b32 s{sRB}, s{sRB}, 3")
    A(f"s_and_b32 s{sT2}, s{sT1}, 7")
    A(f"s_add_u32 s{sRB}, s{sRB}, s{sT2}")
    A(f"s_lshr_b32 s{sCT}, s{sT0}, 1")
    A(f"s_lshl_b32 s{sCT}, s{sCT}, 2")
    A(f"s_lshr_b32 s{sT2}, s{sT1}, 3")
    A(f"s_add_u32 s{sCT}, s{sCT}, s{sT2}")
    if EXP.get("defer", 0):
        A(f"s_mov_b32 s{sDEFON}, 0")
    A(f"s_and_b32 s{sGI}, s{sW}, 3")
    A(f"s_and_b32 s{sMH}, s{sGI}, 1")
    A(f"s_lshr_b32 s{sNH}, s{sGI}, 1")
    A(f"s_mul_i32 s{sXOFF}, s{sRB}, {128*1280}")
    A(f"s_lshl_b32 s{sWOFF}, s{sCT}, 8")
    A(f"s_lshl_b32 s{sLDS1}, s{sGI}, 10")
    A(f"s_mul_hi_u32 s{sT0}, s{sCT}, 0x33333334")
    A(f"s_mul_i32 s{sT0}, s{sT0}, 5")
    A(f"s_sub_u32 s{sCT5}, s{sCT}, s{sT0}")
    A(f"v_lshrrev_b32 v{vT}, 3, v{vL}")
    A(f"s_lshl_b32 s{sT0}, s{sGI}, 3")
    A(f"v_add_u32 v{vT}, s{sT0}, v{vT}")
    A(f"v_lshrrev_b32 v{vT+1}, 1, v{vT}")
    A(f"v_xor_b32 v{vT+1}, v{vT+1}, v{vL}")
    A(f"v_and_b32 v{vT+1}, 7, v{vT+1}")
    A(f"v_lshlrev_b32 v{vT+1}, 4, v{vT+1}")
    A(f"v_mul_u32_u24 v{vT+2}, 1280, v{vT}")
    A(f"v_add_u32 v{vXD}, v{vT+2}, v{vT+1}")
    A(f"v_lshrrev_b32 v{vT}, 4, v{vL}")
    A(f"v_lshlrev_b32 v{vT+1}, 2, v{vT}")
    A(f"v_xor_b32 v{vT+1}, v{vT+1}, v{vL}")
    A(f"v_and_b32 v{vT+1}, 15, v{vT+1}")
    A(f"v_lshlrev_b32 v{vT+1}, 4, v{vT+1}")
    A(f"s_lshl_b32 s{sT0}, s{sGI}, 2")
    A(f"v_add_u32 v{vT}, s{sT0}, v{vT}")
    A(f"v_mul_u32_u24 v{vT}, 3840, v{vT}")
    A(f"v_add_u32 v{vWD}, v{vT}, v{vT+1}")
    if EXP.get("stampP"):
        A("s_memtime s[96:97]")
        A("s_memrealtime s[98:99]")
    A("s_waitcnt lgkmcnt(0)")
    if EXP.get("stampP"):
        A(f"v_writelane_b32 v{A.PROF_V}, s96, 14")
        A(f"v_writelane_b32 v{A.PROF_V}, s98, 30")
        A.stamp("", 15)
    srd(A, sX, 4, X_BYTES)
    srd(A, sWA, 6, W_BYTES)
    srd(A, sWB, sP, W_BYTES)
    srd(A, sWS, sP + 2, WS_USED)
    srd(A, sOUT, sDBG, OUT_BYTES)
    A(f"s_mov_b32 s{sDBG}, s{sDBG+2}")
    A(f"s_and_b32 s{sDBG+1}, s{sDBG+3}, 0xffff")
    A(f"s_mov_b32 s{sDBG+2}, 256")
    A(f"s_mov_b32 s{sDBG+3}, 0x20000")
    A(f"s_cmp_eq_u32 s{sCT}, 15")
    A("s_cbranch_scc1 L_nodma")
    A(f"s_cmp_lt_u32 s{sW}, 4")
    A("s_cbranch_scc1 L_nodma")
    if EXP.get("txf"):
        touch_xcd_first(A)
    for b in range(3):
        for p in range(8):
            g_dma(A, b, p)
    A(f"s_cmp_ge_u32 s{sCT}, 10")
    A("s_cbranch_scc1 L_g1n")
    A("s_branch L_g1t")
    A.label("L_nodma")
    if EXP.get("tchip", 13) in (1, 2, 3):
        touch_chip(A, {1: "xab", 2: "xa", 3: "b"}[EXP["tchip"]])
    if EXP.get("tchip") == 6:
        touch_chip_wide(A, "xa", "e")
    if EXP.get("tchip") == 7:
        touch_chip_wide(A, "ax", "e")
    A(f"s_or_b32 s{sT0}, s2, s{sW}")
    A(f"s_cmp_lg_u32 s{sT0}, 0")
    A("s_cbranch_scc1 L_nonce_done")
    A(f"s_memrealtime s[{sT4}:{sT5}]")
    A("s_waitcnt lgkmcnt(0)")
    A(f"s_or_b32 s{sT0}, s{sT4}, 1")
    A(f"v_mov_b32 v{vT}, s{sT0}")
    A(f"v_mov_b32 v{vT+1}, 0")
    A("s_mov_b64 exec, 1")
    A(f"buffer_store_dword v{vT}, v{vT+1}, s[{sDBG}:{sDBG+3}], 0 offen sc1")
    A("s_mov_b64 exec, -1")
    A.label("L_nonce_done")
    if EXP.get("cpf"):
        A(f"s_lshr_b32 s{sT1}, s2, 3")
        A(f"s_cmp_ge_u32 s{sT1}, 8")
        A("s_cbranch_scc1 L_cpf_done")
        A(f"s_cmp_lg_u32 s{sW}, {EXP['cpf'] - 1}")
        A("s_cbranch_scc1 L_cpf_done")
        A(f"s_getpc_b64 s[{sT4}:{sT5}]")
        A.label("L_cpf_pc")
        A(f"s_sub_u32 s{sT4}, s{sT4}, L_cpf_pc - {NAME}")
        A(f"s_subb_u32 s{sT5}, s{sT5}, 0")
        A(f"s_lshl_b32 s{sT1}, s{sT1}, 13")
        A(f"v_lshlrev_b32 v{vT}, 7, v{vL}")
        A(f"v_add_u32 v{vT}, s{sT1}, v{vT}")
        A(f"v_min_u32 v{vT}, L_end - {NAME}, v{vT}")
        A(f"global_load_dword v{G_P}, v{vT}, s[{sT4}:{sT5}]")
        A.label("L_cpf_done")
    if EXP.get("tchip", 13) == 15:
        touch_phase(A, 3)
        setup_phase1_reads(A)
        setup_phase2(A)
        touch_phase(A, 0)
        touch_phase(A, 1)
        touch_phase(A, 2)
    elif EXP.get("tchip", 13) == 16:
        touch_phase(A, 3)
        setup_phase1_reads(A)
        for k, f in enumerate(SETUP_P2):
            if k == 2:
                touch_phase(A, 0)
            f(A)
        touch_phase(A, 1)
        touch_phase(A, 2)
    elif EXP.get("tchip", 13) in (10, 11, 12, 13, 14):
        m = EXP.get("tchip", 13)
        if m in (13, 14):
            touch_phase(A, 3)
        if m in (10, 14):
            touch_phase(A, 0)
        setup_phase1_reads(A)
        if m not in (10, 14):
            touch_phase(A, 0)
        for k, f in enumerate(SETUP_P2):
            if k == (1 if m != 12 else 2):
                touch_phase(A, 1)
            f(A)
        touch_phase(A, 2)
    elif EXP.get("tchip") in (5, 9):
        setup_phase1_reads(A)
        touch_chip(A, "xa" if EXP["tchip"] == 5 else "xab")
        setup_phase2(A)
    else:
        setup_phase1_reads(A)
        setup_phase2(A)
    if EXP.get("tchip") == 4:
        touch_chip(A, "xa")
    if EXP.get("tchip") == 8:
        touch_chip(A, "xab")
    A.stamp("issued")
    A(f"s_cmp_eq_u32 s{sCT}, 15")
    A("s_cbranch_scc1 L_spare")
    A(f"s_cmp_ge_u32 s{sCT}, 10")
    A("s_cbranch_scc1 L_vtile")
    if prof:
        A.stamps += ["blk0 landed", "gemm0", "epi0", "gemm1", "epi1"]
        if EXP.get("stampB"):
            A.stamps += ["B10", "B12", "B14", "B16"]
        if EXP.get("stampA"):
            A.stamps += ["B0", "B2", "B4", "B6"]
    gemm(A, True, "t")
    A("s_branch L_attn")
    A.label("L_vtile")
    gemm(A, False, "n")
    A.label("L_attn")
    A.vm_q, A.lds_q = [], []
    jitter(A)
    A.stamp("attn start")
    if EXP.get("prio") == 1:
        A(f"s_cmp_lt_u32 s{sW}, 4")
        A("s_cbranch_scc1 L_prio_done")
        A("s_setprio 1")
        A.label("L_prio_done")
    rd_k01(A, 0)
    rd_k2(A, 0)
    dma_chunk(A, 3)
    A(f"v_cmp_gt_u32 vcc, 20, v{vR}")
    A(f"v_mov_b32 v{vT}, 0")
    A(f"v_mov_b32 v{vT+1}, 5120")
    A(f"v_cndmask_b32 v{vT}, v{vT}, v{vT+1}, vcc")
    for sl in range(NSLOT):
        A(f"v_add_u32 v{vV2[sl]}, v{vV+sl}, v{vT}")
    b_consts(A)
    A.lds_wait_all()
    mf16(A, SA, K01, Q01, "0")
    mf8(A, SA, K2, Q2, v(SA, 16))
    A("s_nop 7")
    A("s_nop 5")
    max16(A, vT, SA, True)
    cross_half_max(A, vT, vT + 1)
    for i in range(16):
        A(f"v_sub_f32 v{NEGM+i}, 0, v{vT}")
    A("s_nop 1")
    mf16(A, SA, K01, Q01, v(NEGM, 16))
    mf8(A, SA, K2, Q2, v(SA, 16))
    rd_k01(A, 1)
    rd_k2(A, 1)
    rd_v(A, 0, 0)
    A("s_nop 7")
    A("s_nop 3")
    NT = 64
    sched = {}
    def at(t, half, fn):
        sched.setdefault((t, half), []).append(fn)
    fb_items = [(vFL, vF3, F1B, None), (vFL2, vF4, F1A, None)]
    pos = {}
    def issue(name, items):
        def f(A):
            pos[name] = poll_issue(A, items, name)
        return f
    if EXP.get("defer", 0):
        def deferred(g):
            def f(A):
                A(f"s_cmp_eq_u32 s{sDEFON}, 0")
                A(f"s_cbranch_scc1 L_def{g}")
                A(f"buffer_store_dwordx4 {v(G_P + 4*g, 4)}, v{vDEF[(g >> 1) & 1]}, {WS}, s{sDEF+g} offen sc1")
                A.label(f"L_def{g}")
            return f
        for g in range(8):
            at(6 + (g + 1), 0, deferred(g)) if g < 7 else at(13, 1, deferred(g))
        T_PUB1B, T_POLL1B, T_CHK1B = 22, 25, 30
        T_G, T_BL, T_BU, T_WB, T_PUBB, T_C7, T_POLLB = (30, 1), 31, 39, 40, 47, 47, 51
    else:
        T_PUB1B, T_POLL1B, T_CHK1B = 6, 13, 22
        T_G, T_BL, T_BU, T_WB, T_PUBB, T_C7, T_POLLB = (22, 1), 23, 31, 42, 38, 39, 48
    at(T_POLL1B, 0, issue("f1b", fb_items))
    fo_items = [(vFL, vFA, FLAGB, sFLG)]
    pre_barrier = {T_CHK1B: lambda A: poll_check(A, fb_items, pos["f1b"], "f1b"),
                   54: lambda A: poll_check(A, fo_items, pos["fb"], "fb")}
    at(T_G[0], T_G[1], lambda A: A.vm(f"buffer_load_dword v{vG}, v{vGA}, {WS}, s{sGOFF} offen sc1", "g"))
    for i, f in enumerate(b_load_items()):
        at(T_BL + i // 2, i % 2, f)
    at(T_BU, 0, b_unit)
    at(T_PUBB, 0 if EXP.get("defer", 0) else 1, lambda A: publish(A, sPUB, FLAGB, "stb"))
    at(T_POLLB, 0, issue("fb", fo_items))
    for k in range(10):
        at(55 + k // 2, k % 2, lambda A, k=k: oc_load(A, 1, k))
    for st in range(3):
        for p in range(3):
            i = 3 * st + p
            at(T_WB + i // 2, i % 2, lambda A, st=st, p=p: dma_w_piece(A, 1, st, p))
    for st in range(3, 5):
        for p in range(3):
            i = 3 * (st - 3) + p
            at(57 + i // 2, 1 - i % 2, lambda A, st=st, p=p: dma_w_piece(A, 1, st, p))
    for c in range(2, NCH - 2):
        t0 = TPC * c - 1
        if c == 4:
            t0 = 31 if EXP.get("defer", 0) else 32
        if c == 5:
            t0 = T_C7
        for p in range(3):
            at(t0 + (p + 1) // 2, (p + 1) % 2, lambda A, c=c, p=p: dma_chunk_piece(A, c + 2, p))
    for t in range(NT):
        cur = SA if t % 2 == 0 else SB
        nxt = SB if t % 2 == 0 else SA
        if (t == 32 and not (EXP.get("stampB") or EXP.get("stampA"))) or (EXP.get("stampB") and t in (21, 24)):
            A.stamp("t%d" % t)
        if t % TPC == TPC - 2 and t + 2 < NT:
            c = (t + 2) // TPC
            if c == 1:
                A.vm_wait_all()
            if c == 3:
                A.vm_wait_all()
            A.vm_wait(("c", c))
            if t in pre_barrier:
                pre_barrier[t](A)
            A("s_barrier")
            if t == T_PUB1B:
                with Wave0(A, "pubb"):
                    publish(A, sF1, F1B)
        if EXP.get("prio") == 2 and t == 55:
            A(f"s_cmp_lt_u32 s{sW}, 4")
            A("s_cbranch_scc1 L_prio_done")
            A("s_setprio 1")
            A.label("L_prio_done")
        if EXP.get("prio") == 3 and t % 8 == 7:
            A(f"s_lshr_b32 s{sT0}, s{sW}, 2")
            A(f"s_cmp_eq_u32 s{sT0}, {(t // 8) % 2}")
            A(f"s_cbranch_scc1 L_prio_a{t}")
            A("s_setprio 0")
            A(f"s_branch L_prio_b{t}")
            A.label(f"L_prio_a{t}")
            A("s_setprio 1")
            A.label(f"L_prio_b{t}")
        if EXP.get("xbar") and t == EXP["xbar"]:
            A("s_barrier")
        if t == 63:
            A.vm_wait(("w", 1, 4))
        for f in sched.get((t, 0), []):
            f(A)
        if t + 1 < NT:
            if EXP.get("w2"):
                A.lds_wait(("k01", t + 1), ("v", t - 1, 1), ("k2", t + 1))
            else:
                A.lds_wait(("k01", t + 1))
            mf16(A, nxt, K01, Q01, "0" if EXP.get("m0") else v(NEGM, 16))
            if t + 2 < NT:
                rd_k01(A, t + 2)
        exps(A, cur, 0)
        if t > 0:
            A.lds_wait(("v", t - 1, 1))
            mf16(A, O, V1, P + 4, v(O, 16))
        rd_v(A, t, 1)
        exps(A, cur, 1)
        for f in sched.get((t, 1), []):
            f(A)
        if t + 1 < NT:
            A.lds_wait(("k2", t + 1))
            mf8(A, nxt, K2, Q2, v(nxt, 16))
            if t + 2 < NT:
                rd_k2(A, t + 2)
        exps(A, cur, 2)
        A.lds_wait(("v", t, 0))
        mf16(A, O, V0, P, "0" if t == 0 else v(O, 16))
        if t + 1 < NT:
            rd_v(A, t + 1, 0)
        exps(A, cur, 3)
    A.lds_wait(("v", NT - 1, 1))
    A("s_nop 1")
    mf16(A, O, V1, P + 4, v(O, 16))
    A(f"v_add_u32 v{vT+5}, 0x10000, v{vWR}")
    A(f"v_add_u32 v{vT+6}, 0x20000, v{vWR}")
    A(f"v_mov_b32 v{vT+3}, {hex(f32bits(BIG))}")
    A("s_nop 7")
    A("s_nop 3")
    A.stamp("loop end")
    row_sum(A, O)
    A(f"v_mul_f32 v{vT+2}, 0, v{O}")
    for i in range(1, 12):
        A(f"v_fma_f32 v{vT+2}, v{O+i}, 0, v{vT+2}")
    A(f"v_add_f32 v{vT+2}, v{vT+2}, v{vT+1}")
    A(f"v_cmp_lt_f32 vcc, v{vT+2}, v{vT+3}")
    A("s_nop 4")
    A("s_cmp_eq_u64 vcc, exec")
    A("s_cbranch_scc0 L_fallback")
    A.label("L_finish")
    jitter(A, True)
    A.vm_wait("g")
    finish_tile(A, O, vG, False, vOST, sQ0, 0, "sta")
    A(f"v_add_u32 v{vT+5}, 0x10000, v{vWR}")
    A(f"v_add_u32 v{vT+6}, 0x20000, v{vWR}")
    A("s_barrier")
    A.stamp("ring free") if not (EXP.get("stampB") or EXP.get("stampA")) else None
    wa = [(st, p) for st in range(2) for p in range(3)]

    def hook_b(k, kg):
        pk = EXP.get("pubk", 2)
        if k == pk:
            publish(A, sPUB, FLAGA, "sta")
        if pk <= k < pk + 6:
            st, p = wa[k - pk]
            dma_w_piece(A, 0, st, p)
    outproj(A, 1, True, hook_b)
    A.stamp("b part") if not (EXP.get("stampB") or EXP.get("stampA")) else None
    A("s_barrier")
    for st in range(2, 5):
        for p in range(3):
            dma_w_piece(A, 0, st, p)
    if EXP.get("notight"):
        fa_items = [(vFL, vFA, FLAGA, sFLG)]
        pfa = poll_issue(A, fa_items, "fa")
        poll_check(A, fa_items, pfa, "fa")
    else:
        poll_tight(A, FLAGA, sFLG, vFA, "fa")
    A.vm_wait(("w", 0, 4))
    A("s_barrier")
    A.stamp("flags a") if not (EXP.get("stampB") or EXP.get("stampA")) else None
    for k in range(10):
        oc_load(A, 0, k)
    outproj(A, 0, False)
    A.stamp("a part") if not (EXP.get("stampB") or EXP.get("stampA")) else None
    A(f"s_and_b32 s{sT0}, s{sW}, 3")
    A(f"s_mul_i32 s{sT0}, s{sT0}, 5120")
    A(f"v_add_u32 v{vT}, s{sT0}, v{vL16}")
    A(f"s_cmp_eq_u32 s{sKG}, 0")
    A("s_cbranch_scc1 L_red_a")

    def finish_out(tiles):
        A.lds_q = []
        for nt in tiles:
            A.lds(f"ds_read_b128 {v(WF+4*nt,4)}, v{vT} offset:{nt*1024}", ("r", nt))
        for nt in tiles:
            A.lds_wait(("r", nt))
            for i in range(4):
                A(f"v_add_f32 v{ACC+4*nt+i}, v{ACC+4*nt+i}, v{WF+4*nt+i}")
            A(f"v_cvt_pk_bf16_f32 v{ACC+4*nt}, v{ACC+4*nt}, v{ACC+4*nt+1}")
            A(f"v_cvt_pk_bf16_f32 v{ACC+4*nt+1}, v{ACC+4*nt+2}, v{ACC+4*nt+3}")
            A.vm(f"buffer_store_dwordx2 {v(ACC+4*nt,2)}, v{vST}, s[{sOUT}:{sOUT+3}], s{sOUTO} offen offset:{nt*32}{EXP.get('outst','')}", "st")

    A("s_nop 5")
    for nt in range(3):
        A(f"ds_write_b128 v{vT}, {v(ACC+4*nt,4)} offset:{nt*1024}")
    A("s_waitcnt lgkmcnt(0)")
    A("s_barrier")
    finish_out((3, 4))
    if prof:
        A.stamp("", len(A.stamps))
        A.stamp_flush(0, sWS, PROF, vT + 2)
    A("s_endpgm")
    A.label("L_red_a")
    A("s_nop 5")
    for nt in (3, 4):
        A(f"ds_write_b128 v{vT}, {v(ACC+4*nt,4)} offset:{nt*1024}")
    A("s_waitcnt lgkmcnt(0)")
    A("s_barrier")
    finish_out((0, 1, 2))
    A.stamp("end")
    if prof and EXP.get("dbg"):
        with Wave0(A, "dbgout"):
            A(f"v_subrev_u32 v{vT}, s{sNONCE}, v{A.PROF_V}")
            A(f"v_subrev_u32 v{vT+1}, 16, v{vL}")
            A(f"v_lshlrev_b32 v{vT+1}, 2, v{vT+1}")
            if EXP["dbg"] == 2:
                A(f"v_sub_u32 v{vT}, 0x100000, v{vT}")
            A("s_mov_b32 exec_lo, 0xfffe0000")
            A("s_mov_b32 exec_hi, 0")
            A(f"buffer_atomic_umax v{vT}, v{vT+1}, s[{sDBG}:{sDBG+3}], 0 offen")
            A("s_mov_b64 exec, -1")
    A.stamp_flush(0, sWS, PROF, vT)
    A("s_endpgm")
    fallback(A)
    spare(A)
    A.label("L_end")
    A("s_endpgm")
    kernel_footer(A, NAME, NV, 100 if EXP.get("jit") else 96)
    gen.stamps = getattr(A, "stamps", [])
    if prof and EXP.get("stampP"):
        assert len(gen.stamps) == 14, len(gen.stamps)
        gen.stamps = gen.stamps + ["pre-kernarg", "kernarg"]
    return A.text()

if __name__ == "__main__":
    print(gen())
```
